```python
import torch

def _softmax(x, axis=-1):
    return torch.softmax(x, dim=axis)
def _gelu(x):
    return torch.nn.functional.gelu(x, approximate="tanh")
def _silu(x):
    return torch.nn.functional.silu(x)
def _sigmoid(x):
    return torch.sigmoid(x)
def _layernorm(x, axis=-1, eps=1e-5):
    m = x.mean(dim=axis, keepdim=True)
    v = x.var(dim=axis, keepdim=True, unbiased=False)
    return (x - m) / torch.sqrt(v + eps)
def _scatter_add(tgt, idx, src, axis=0):
    return tgt.clone().index_add_(axis, idx, src)
def _segment_sum(src, seg, n):
    out = torch.zeros((n,) + src.shape[1:], dtype=src.dtype)
    return out.index_add_(0, seg, src)
def _pad(x, pw):
    flat = tuple(v for pair in reversed(pw) for v in pair)
    return torch.nn.functional.pad(x, flat)

kernel_name = 'interleave_layers__ssm_conv_s4d__glu_gated_glu__prompt'

def setup_inputs():

    _w = (lambda a: (lambda t: t.to(torch.bfloat16) if t.is_floating_point() else t)(torch.as_tensor(a)))
    def _A_setup():
        Bsz, L, D, N = 1, 2048, 512, 128
        return {
            "u": _w((lambda *s: torch.randn(*s, dtype=torch.bfloat16) * 0.05)(Bsz, L, D)),
            "log_A_real": _w((lambda *s: torch.randn(*s, dtype=torch.bfloat16) * 3.2)(D, N) * 0.5),
            "A_imag": _w((lambda *s: torch.randn(*s, dtype=torch.bfloat16) * 0.1)(D, N) * 3.14),
            "C_real": _w((lambda *s: torch.randn(*s, dtype=torch.bfloat16) * 0.1)(D, N) / N ** 0.5),
            "C_imag": _w((lambda *s: torch.randn(*s, dtype=torch.bfloat16) * 0.1)(D, N) / N ** 0.5),
            "log_dt": _w((lambda *s: torch.randn(*s, dtype=torch.bfloat16) * 0.1)(D) * 0.5 - 4.0),
            "D_skip": _w((lambda *s: torch.randn(*s, dtype=torch.bfloat16) * 0.1)(D)),
        }
    _A_in = _A_setup()

    def _B_setup():
        B, S, D, F = 1, 2048, 512, 1376
        return {
            "x": _w((lambda *s: torch.randn(*s, dtype=torch.bfloat16) * 0.05)(B, S, D)),
            "w_gate": _w((lambda *s: torch.randn(*s, dtype=torch.bfloat16) * 0.05)(D, F)),
            "w_up": _w((lambda *s: torch.randn(*s, dtype=torch.bfloat16) * 0.05)(D, F)),
            "w_down": _w((lambda *s: torch.randn(*s, dtype=torch.bfloat16) * 0.05)(F, D)),
        }
    _B_in = _B_setup()

    return {
        "A_u": _A_in["u"],
        "A_log_A_real": _A_in["log_A_real"],
        "A_A_imag": _A_in["A_imag"],
        "A_C_real": _A_in["C_real"],
        "A_C_imag": _A_in["C_imag"],
        "A_log_dt": _A_in["log_dt"],
        "A_D_skip": _A_in["D_skip"],
        "B_x": _B_in["x"],
        "B_w_gate": _B_in["w_gate"],
        "B_w_up": _B_in["w_up"],
        "B_w_down": _B_in["w_down"],
    }

def reference(A_u, A_log_A_real, A_A_imag, A_C_real, A_C_imag, A_log_dt, A_D_skip, B_x, B_w_gate, B_w_up, B_w_down):
    def _A_ref(u, log_A_real, A_imag, C_real, C_imag, log_dt, D_skip):
        L = u.shape[1]
        dt = torch.exp(log_dt)
        A = -torch.exp(log_A_real) + 1j * A_imag
        C = (C_real + 1j * C_imag) * dt[:, None]
        pos = (lambda x, dt: x.to(dt))(torch.arange(L), log_dt.dtype)
        P = torch.exp((A * dt[:, None])[:, :, None] * pos[None, None, :])
        K = 2.0 * torch.einsum("dn,dnl->dl", C, P).real
        L2 = 2 * L
        u_t = (lambda x, *d: x.permute(*d))(u, 0, 2, 1)
        Kf = (lambda x, *a, **k: torch.fft.rfft(x.float(), *a, **k))(K, L2)
        Uf = (lambda x, *a, **k: torch.fft.rfft(x.float(), *a, **k))(u_t, L2)
        y = (lambda x, *a, **k: torch.fft.irfft(x, *a, **k).to(torch.bfloat16))(Uf * Kf[None, :, :], L2)[:, :, :L]
        y = (lambda x, *d: x.permute(*d))(y, 0, 2, 1)
        return y + u * D_skip[None, None, :]

    def _B_ref(x, w_gate, w_up, w_down):
        g = torch.einsum("bsd,df->bsf", x, w_gate)
        u = torch.einsum("bsd,df->bsf", x, w_up)
        h = _sigmoid(g) * u
        return torch.einsum("bsf,fd->bsd", h, w_down)

    x = A_u
    x = x + _A_ref(_layernorm(x, axis=-1), A_log_A_real, A_A_imag, A_C_real, A_C_imag, A_log_dt, A_D_skip)
    x = x + _B_ref(_layernorm(x, axis=-1), B_w_gate, B_w_up, B_w_down)
    x = x + _A_ref(_layernorm(x, axis=-1), A_log_A_real, A_A_imag, A_C_real, A_C_imag, A_log_dt, A_D_skip)
    x = x + _B_ref(_layernorm(x, axis=-1), B_w_gate, B_w_up, B_w_down)
    return x
```

```python
import re

REG_RE = re.compile(r"\b([vas])\[(\d+):(\d+)\]|\b([vas])(\d+)\b|\b(vcc|exec|m0|scc)\b")

def regs_of(tok):
    out = set()
    for m in REG_RE.finditer(tok):
        if m.group(1):
            for i in range(int(m.group(2)), int(m.group(3)) + 1):
                out.add((m.group(1), i))
        elif m.group(4):
            out.add((m.group(4), int(m.group(5))))
        else:
            out.add((m.group(6), 0))
    return out

TRANS = ("v_exp_f32", "v_log_f32", "v_rcp_f32", "v_rsq_f32", "v_sqrt_f32", "v_sin_f32", "v_cos_f32", "v_rcp_iflag_f32",
         "v_exp_f16", "v_log_f16", "v_rcp_f16", "v_rsq_f16", "v_sqrt_f16", "v_sin_f16", "v_cos_f16")

def mfma_info(op):
    if "32x32x16_bf16" in op or "32x32x16_f16" in op or "32x32x8" in op: return ("xdl", 8)
    if "16x16x32_bf16" in op or "16x16x32_f16" in op or "16x16x16" in op: return ("xdl", 4)
    if "32x32x2_f32" in op or "32x32x2f32" in op: return ("sgemm", 16)
    if "16x16x4_f32" in op or "16x16x4f32" in op: return ("sgemm", 8)
    raise ValueError("unknown mfma " + op)

class Ins:
    __slots__ = ("text", "op", "kind", "dst", "src", "srcC", "srcAB", "minfo", "dpp", "trans", "wide_store_data", "opsel", "states")
    def __init__(self, text):
        self.text = text
        t = text.split(";")[0].strip()
        parts = t.split(None, 1)
        op = parts[0]
        rest = parts[1] if len(parts) > 1 else ""
        ops = [o.strip() for o in split_ops(rest)]
        self.op = op
        self.dst = set(); self.src = set(); self.srcC = set(); self.srcAB = set()
        self.minfo = None; self.dpp = False; self.trans = False; self.wide_store_data = set(); self.opsel = False
        self.states = 1
        base = re.sub(r"_(e32|e64|dpp|sdwa)$", "", op)
        if op == "s_nop":
            self.kind = "nop"; self.states = int(ops[0], 0) + 1; return
        if op.startswith("v_mfma"):
            self.kind = "mfma"; self.minfo = mfma_info(op)
            self.dst = regs_of(ops[0]); self.srcAB = regs_of(ops[1]) | regs_of(ops[2]); self.srcC = regs_of(ops[3].split()[0])
            self.src = self.srcAB | self.srcC
            return
        if op.startswith("v_"):
            self.kind = "valu"
            self.trans = base in TRANS
            self.dpp = ("row_" in rest or "quad_perm" in rest or "wave_" in rest or op.endswith("_dpp"))
            self.opsel = ("op_sel" in rest and not op.startswith("v_pk_")) or "dst_sel" in rest or op.endswith("_sdwa")
            if base.startswith("v_cmpx"):
                self.dst = regs_of(ops[0]) | {("exec", 0)}; self.src = set().union(*[regs_of(o) for o in ops[1:]])
            elif base.startswith("v_cmp"):
                self.dst = regs_of(ops[0]); self.src = set().union(*[regs_of(o) for o in ops[1:]])
            elif base in ("v_add_co_u32", "v_sub_co_u32", "v_subrev_co_u32", "v_addc_co_u32", "v_subb_co_u32", "v_div_scale_f32", "v_mad_u64_u32"):
                self.dst = regs_of(ops[0]) | regs_of(ops[1]); self.src = set().union(*[regs_of(o) for o in ops[2:]])
            elif base.startswith("v_permlane") or base.startswith("v_swap"):
                self.dst = regs_of(ops[0]) | regs_of(ops[1]); self.src = set(self.dst)
            elif base == "v_nop":
                pass
            else:
                self.dst = regs_of(ops[0]); self.src = set().union(*[regs_of(o) for o in ops[1:]]) if len(ops) > 1 else set()
                if base.startswith("v_fmac") or base.startswith("v_pk_fmac") or base.startswith("v_dot2c") or base == "v_writelane_b32" or self.dpp or self.opsel:
                    self.src |= self.dst
            return
        if op.startswith("buffer_") or op.startswith("global_") or op.startswith("flat_"):
            self.kind = "vmem"
            allr = [regs_of(o) for o in ops]
            is_lds = re.search(r"\blds\b", rest) is not None or "_lds_" in op
            if "load" in op and not is_lds:
                self.dst = allr[0]; self.src = set().union(*allr[1:])
            elif is_lds:
                self.src = set().union(*allr) | {("m0", 0)}
            elif "atomic" in op:
                self.src = set().union(*allr)
                if re.search(r"\bsc0\b", rest):
                    self.dst = allr[0]
            elif "store" in op:
                self.src = set().union(*allr)
                if "x3" in op or "x4" in op:
                    self.wide_store_data = allr[0] if op.startswith("buffer_") else allr[1]
            else:
                pass
            return
        if op.startswith("ds_"):
            self.kind = "ds"
            allr = [regs_of(o) for o in ops]
            if op.startswith("ds_read") or op.startswith("ds_bpermute") or op.startswith("ds_permute") or op.startswith("ds_swizzle") or "_rtn" in op:
                self.dst = allr[0]; self.src = set().union(*allr[1:]) if len(allr) > 1 else set()
            else:
                self.src = set().union(*allr)
            return
        if op.startswith("s_load") or op.startswith("s_buffer_load") or op.startswith("s_memtime") or op.startswith("s_memrealtime") or op.startswith("s_atomic"):
            self.kind = "smem"
            self.dst = regs_of(ops[0]); self.src = set().union(*[regs_of(o) for o in ops[1:]]) if len(ops) > 1 else set()
            return
        if op.startswith("s_"):
            self.kind = "salu"
            if op.startswith("s_cmp") or op.startswith("s_cbranch") or op in ("s_branch", "s_waitcnt", "s_barrier", "s_endpgm", "s_setprio", "s_sleep", "s_bitcmp0_b32", "s_bitcmp1_b32"):
                self.src = set().union(*[regs_of(o) for o in ops]) if ops else set()
            else:
                self.dst = regs_of(ops[0]); self.src = set().union(*[regs_of(o) for o in ops[1:]]) if len(ops) > 1 else set()
                if "saveexec" in op: self.dst |= {("exec", 0)}
            return
        raise ValueError("cannot classify: " + text)

def split_ops(s):
    out = []; depth = 0; cur = ""
    for ch in s:
        if ch in "[(": depth += 1
        if ch in "])": depth -= 1
        if ch == "," and depth == 0:
            out.append(cur); cur = ""
        else:
            cur += ch
    if cur.strip(): out.append(cur)
    return out

def is_vreg(r): return r[0] in ("v", "a")
def is_sreg(r): return r[0] in ("s", "vcc")

XDL_AB = {2: 5, 4: 8, 8: 12, 16: 20}
XDL_COV = {2: 4, 4: 6, 8: 10, 16: 18}
SG_AB = {2: 4, 4: 6, 8: 10, 16: 18}
SG_COV = {2: 2, 4: 4, 8: 8, 16: 16}
XDL_WARC = {2: 1, 4: 3, 8: 7, 16: 15}

def required(p, c):
    need = 0
    pv = {r for r in p.dst if is_vreg(r)}
    ps = {r for r in p.dst if is_sreg(r)}
    if p.kind == "valu":
        if c.kind == "mfma" and pv & c.src: need = max(need, 2)
        if c.kind == "valu":
            if p.trans and not c.trans and pv & c.src: need = max(need, 1)
            if p.trans and c.trans and pv & c.src: need = max(need, 1)
            if c.dpp and pv & c.src: need = max(need, 2)
            if (c.op.startswith("v_readlane") or c.op.startswith("v_readfirstlane")) and pv & c.src: need = max(need, 1)
            if c.op.startswith("v_permlane") and pv & c.src: need = max(need, 2)
            if p.opsel and pv & (c.src | c.dst): need = max(need, 1)
            if ps & c.src:
                need = max(need, 4 if (c.op.startswith("v_readlane") or c.op.startswith("v_writelane") or c.op.startswith("v_div_fmas")) else 2)
            if ("exec", 0) in p.dst:
                need = max(need, 5 if c.dpp else 4)
        if c.kind in ("vmem",) and ps & c.src: need = max(need, 5)
        if c.kind in ("vmem", "ds") and p.trans and pv & c.src: need = max(need, 1)
        if c.kind == "salu" and ps & c.src: need = max(need, 1)
        if c.kind == "mfma" and ("exec", 0) in p.dst: need = max(need, 4)
    if p.kind == "mfma":
        cls, ps_ = p.minfo
        if c.kind == "mfma":
            if pv & c.srcAB: need = max(need, (XDL_AB if cls == "xdl" else SG_AB)[ps_])
            if pv & c.srcC:
                if c.srcC == pv and c.minfo == p.minfo:
                    need = max(need, 2 if ps_ == 2 else 0)
                else:
                    need = max(need, (XDL_COV if cls == "xdl" else SG_COV)[ps_])
            elif pv & c.dst:
                need = max(need, (XDL_COV if cls == "xdl" else SG_COV)[ps_])
        elif c.kind in ("valu", "vmem", "ds"):
            if pv & (c.src | c.dst): need = max(need, (XDL_AB if cls == "xdl" else SG_AB)[ps_])
            if cls == "xdl" and c.kind == "valu" and p.srcC & c.dst: need = max(need, XDL_WARC[ps_])
    if p.kind == "vmem" and p.wide_store_data:
        if p.wide_store_data & c.dst: need = max(need, 2 if c.kind in ("valu", "mfma") else 1)
    if p.kind == "salu" and ("m0", 0) in p.dst:
        if ("m0", 0) in c.src and c.kind in ("vmem", "ds", "salu"): need = max(need, 1)
    return need

MAXD = 22

def fix_hazards(lines):
    items = []
    for l in lines:
        s = l.strip()
        if not s or s.startswith(";") or s.startswith(".") or s.endswith(":"):
            items.append((l, None))
        else:
            items.append((l, Ins(s)))
    labels = {}
    out = []
    def need_before(hist, c):
        dist = 0; need = 0
        for p in reversed(hist):
            if dist >= MAXD: break
            r = required(p, c)
            if r > dist: need = max(need, r - dist)
            dist += p.states
        return need
    def emit_nops(n):
        res = []
        while n > 0:
            k = min(n, 16)
            res.append(Ins(f"s_nop {k - 1}")); n -= k
        return res
    hist = []
    for text, ins in items:
        if ins is None:
            s = text.strip()
            if s.endswith(":"):
                labels[s[:-1]] = len(out)
            out.append((text, None)); continue
        n = need_before(hist, ins)
        for nop in emit_nops(n):
            out.append(("    " + nop.text, nop)); hist.append(nop)
        out.append((text, ins)); hist.append(ins)
        if len(hist) > 64: hist = hist[-40:]
    changed = True
    it = 0
    while changed:
        changed = False; it += 1
        assert it < 50
        labels = {t.strip()[:-1]: i for i, (t, ins) in enumerate(out) if ins is None and t.strip().endswith(":")}
        for i, (t, ins) in enumerate(out):
            if ins is None or not (ins.op.startswith("s_cbranch") or ins.op == "s_branch"): continue
            tgt = t.split(";")[0].split()[-1]
            if tgt not in labels: continue
            h = [x for (_, x) in out[max(0, i - 60): i + 1] if x is not None]
            j = labels[tgt]; cnt = 0
            worst = 0
            hh = list(h)
            while j < len(out) and cnt < MAXD:
                x = out[j][1]
                if x is not None:
                    n = need_before(hh, x)
                    worst = max(worst, n)
                    hh.append(x); cnt += x.states
                    if x.op in ("s_branch", "s_endpgm"): break
                j += 1
            if worst > 0:
                nops = emit_nops(worst)
                out[i:i] = [("    " + n.text, n) for n in nops]
                changed = True
                break
    return [t for t, _ in out]

class Kern:
    def __init__(self, name):
        self.name = name; self.lines = []
    def __call__(self, s):
        for l in s.strip("\n").split("\n"):
            l = l.strip()
            if not l: continue
            self.lines.append(l if l.endswith(":") else "    " + l)
    def label(self, l): self.lines.append(l + ":")
    def text(self): return "\n".join(fix_hazards(self.lines)) + "\n"

def vr(a, n=1, t="v"):
    return f"{t}{a}" if n == 1 else f"{t}[{a}:{a + n - 1}]"
def ar(a, n=1): return vr(a, n, "a")
def sr(a, n=1): return vr(a, n, "s")

def descriptor(name, vgpr, sgpr, accum):
    return f""".section .rodata,"a"
.p2align 6
.amdhsa_kernel {name}
  .amdhsa_next_free_vgpr {vgpr}
  .amdhsa_next_free_sgpr {sgpr}
  .amdhsa_accum_offset {accum}
  .amdhsa_group_segment_fixed_size 0
  .amdhsa_kernarg_size 112
  .amdhsa_user_sgpr_count 2
  .amdhsa_user_sgpr_kernarg_segment_ptr 1
  .amdhsa_system_sgpr_workgroup_id_x 1
  .amdhsa_float_denorm_mode_32 3
.end_amdhsa_kernel
"""
```

```python
import sys, struct
from asmlib import *

NAME = "interleave_layers__ssm_conv_s4d__glu_gated_glu__prompt"
KA_U, KA_LOGA, KA_AIM, KA_CRE, KA_CIM, KA_LOGDT, KA_DSKIP, KA_BX, KA_WG, KA_WU, KA_WD, KA_OUT, KA_DBG, KA_WS = [8 * i for i in range(14)]
XT0, X1T, X2T, X3T = 0x0000000, 0x0200000, 0x0400000, 0x0600000
ST0, ST1, CSUM = 0x0800000, 0x0804000, 0x0808000
KP = 0x0900000; KP_STRIDE = 4352
WP = 0x0C00000
WD = 0x1000000
HB = 0x1200000
WS_BYTES = 0x10000000
L, D, F, NST = 2048, 512, 1376, 128
NKS2 = 44
HKS = 45

def f2u(x): return struct.unpack("<I", struct.pack("<f", x))[0]
def fl(x): return "0x%08x" % f2u(x)
LOG2E = 1.4426950408889634
L2E_HI = struct.unpack("<f", struct.pack("<f", LOG2E))[0]
L2E_LO = LOG2E - L2E_HI
LN2 = 0.6931471805599453

def srd(k, s, base, nbytes):
    k(f"""
    s_mov_b32 s{s}, s{base}
    s_and_b32 s{s+1}, s{base+1}, 0xffff
    s_mov_b32 s{s+2}, {nbytes:#x}
    s_mov_b32 s{s+3}, 0x20000
    """)

def rnd_bf16(k, dst, a, b=None):
    k(f"v_cvt_pk_bf16_f32 v{dst}, v{a}, v{b if b is not None else a}")

def exp_acc(k, dst, x, t0, t1):
    k(f"""
    v_mul_f32 v{t0}, s40, v{x}
    v_fma_f32 v{t1}, s40, v{x}, -v{t0}
    v_fma_f32 v{t1}, s41, v{x}, v{t1}
    v_exp_f32 v{dst}, v{t0}
    v_mul_f32 v{t1}, s42, v{t1}
    v_fma_f32 v{dst}, v{dst}, v{t1}, v{dst}
    """)

N_K, N_T, N_S, N_W, N_D, N_C = 512, 256, 256, 240, 176, 44
B_T = N_K; B_S = B_T + N_T; B_W = B_S + N_S; B_D = B_W + N_W; B_C = B_D + N_D; PREP_WGS = B_C + N_C
PREP_LDS = 2048 + 12288 + 64

def gen_prep():
    k = Kern("prep_kernel")
    k(f"""
    s_load_dwordx2 s[4:5], s[0:1], {KA_WS}
    s_cmp_lt_u32 s2, {B_T}
    s_cbranch_scc1 P_KGEN
    s_cmp_lt_u32 s2, {B_S}
    s_cbranch_scc1 P_TR
    s_cmp_lt_u32 s2, {B_W}
    s_cbranch_scc1 P_ST
    s_cmp_lt_u32 s2, {B_D}
    s_cbranch_scc1 P_W
    s_cmp_lt_u32 s2, {B_C}
    s_cbranch_scc1 P_D
    s_cmp_lt_u32 s2, {PREP_WGS}
    s_cbranch_scc1 P_C
    s_endpgm
    """)
    k.label("P_KGEN")
    k(f"""
    s_load_dwordx4 s[8:11], s[0:1], {KA_LOGA}
    s_load_dwordx4 s[12:15], s[0:1], {KA_CRE}
    s_load_dwordx2 s[16:17], s[0:1], {KA_LOGDT}
    s_mov_b32 s40, {fl(L2E_HI)}
    s_mov_b32 s41, {fl(L2E_LO)}
    s_mov_b32 s42, {fl(LN2)}
    v_and_b32 v1, 127, v0
    s_lshl_b32 s3, s2, 8
    v_lshl_add_u32 v2, v1, 1, s3
    s_lshl_b32 s18, s2, 1
    v_mov_b32 v3, s18
    s_waitcnt lgkmcnt(0)
    global_load_ushort v4, v2, s[8:9]
    global_load_ushort v5, v2, s[10:11]
    global_load_ushort v6, v2, s[12:13]
    global_load_ushort v7, v2, s[14:15]
    global_load_ushort v8, v3, s[16:17]
    """)
    k(f"""
    v_mov_b32 v12, 0
    v_mov_b32 v13, 0
    v_mov_b32 v14, 0
    v_mov_b32 v15, 0
    v_lshlrev_b32 v9, 4, v0
    ds_write_b128 v9, v[12:15] offset:2048
    ds_write_b128 v9, v[12:15] offset:{2048+4096}
    ds_write_b128 v9, v[12:15] offset:{2048+8192}
    """)
    k(f"""
    v_and_b32 v20, 15, v0                 ; i / j
    v_bfe_u32 v21, v0, 4, 2               ; kk / g'
    v_lshrrev_b32 v22, 6, v0              ; wave
    ; hi0 = 128*(i>>3) + (i&7)
    v_lshrrev_b32 v23, 3, v20
    v_and_b32 v24, 7, v20
    v_lshl_add_u32 v23, v23, 7, v24
    v_cvt_f32_u32 v30, v23
    ; hi1 = (g''<2 ? 256+2g'' : 256*g'') + 128*((i>>1)&1) + 4*(i&1)   [g''=i>>2; 512+256(g''-2) = 256 g'']
    v_lshrrev_b32 v23, 2, v20
    v_lshlrev_b32 v24, 1, v23
    v_add_u32 v24, 0x100, v24
    v_lshlrev_b32 v25, 8, v23
    v_cmp_gt_u32 vcc, 2, v23
    v_cndmask_b32 v24, v25, v24, vcc
    v_bfe_u32 v25, v20, 1, 1
    v_lshl_add_u32 v24, v25, 7, v24
    v_and_b32 v25, 1, v20
    v_lshl_add_u32 v24, v25, 2, v24
    v_cvt_f32_u32 v31, v24
    ; hi2 = 1024 + 128 i
    v_lshlrev_b32 v23, 7, v20
    v_add_u32 v23, 0x400, v23
    v_cvt_f32_u32 v32, v23
    ; lo = 8 j
    v_lshlrev_b32 v23, 3, v20
    v_cvt_f32_u32 v33, v23
    v_lshl_add_u32 v34, v22, 5, v21
    v_lshlrev_b32 v34, 4, v34
    v_lshrrev_b32 v23, 1, v21
    v_and_b32 v24, 1, v21
    v_lshlrev_b32 v24, 2, v24
    v_lshl_add_u32 v23, v23, 7, v24       ; 128*(g'>>1) + 4*(g'&1)
    v_lshl_add_u32 v23, v20, 3, v23
    v_lshlrev_b32 v35, 2, v23
    v_lshlrev_b32 v24, 1, v21
    v_add_u32 v24, 0x100, v24
    v_lshlrev_b32 v25, 8, v21
    v_cmp_gt_u32 vcc, 2, v21
    v_cndmask_b32 v24, v25, v24, vcc
    v_lshl_add_u32 v24, v20, 3, v24
    v_lshlrev_b32 v36, 2, v24
    v_lshlrev_b32 v24, 9, v21
    v_add_u32 v24, 0x400, v24
    v_lshl_add_u32 v24, v20, 3, v24
    v_lshlrev_b32 v37, 2, v24
    """)
    k(f"""
    s_waitcnt vmcnt(0)
    v_lshlrev_b32 v4, 16, v4
    v_lshlrev_b32 v5, 16, v5
    v_lshlrev_b32 v6, 16, v6
    v_lshlrev_b32 v7, 16, v7
    v_lshlrev_b32 v8, 16, v8
    """)
    exp_acc(k, 10, 8, 16, 17)
    exp_acc(k, 11, 4, 18, 19)
    k(f"""
    v_cvt_pk_bf16_f32 v10, v10, v11
    v_and_b32 v11, 0xffff0000, v10        ; eA
    v_lshlrev_b32 v10, 16, v10            ; dt
    v_mul_f32 v12, v11, v10
    v_mul_f32 v12, s40, v12
    v_sub_f32 v12, 0, v12
    v_mul_f32 v13, v5, v10
    v_mul_f32 v13, 0.15915494, v13
    v_add_f32 v10, v10, v10
    v_mul_f32 v14, v6, v10                ; 2*Cre*dt
    v_mul_f32 v15, v7, v10                ; 2*Cim*dt
    v_lshlrev_b32 v9, 4, v1
    ds_write_b128 v9, v[12:15]
    """)
    for r in range(40, 52): k(f"v_mov_b32 v{r}, 0")
    k(f"""
    s_waitcnt lgkmcnt(0)
    s_barrier
    s_mov_b32 s20, 0
    ds_read_b128 v[12:15], v34
    P_KLOOP:
    s_waitcnt lgkmcnt(0)
    v_mul_f32 v52, v12, v30
    v_mul_f32 v53, v12, v31
    v_mul_f32 v54, v12, v32
    v_mul_f32 v55, v12, v33
    v_mul_f32 v56, v13, v30
    v_mul_f32 v57, v13, v31
    v_mul_f32 v58, v13, v32
    v_mul_f32 v59, v13, v33
    v_mov_b32 v16, v14
    v_mov_b32 v17, v15
    v_add_u32 v34, 64, v34
    ds_read_b128 v[12:15], v34
    v_exp_f32 v52, v52
    v_exp_f32 v53, v53
    v_exp_f32 v54, v54
    v_exp_f32 v55, v55
    v_fract_f32 v56, v56
    v_fract_f32 v57, v57
    v_fract_f32 v58, v58
    v_fract_f32 v59, v59
    v_cos_f32 v60, v56
    v_sin_f32 v61, v56
    v_cos_f32 v62, v57
    v_sin_f32 v63, v57
    v_cos_f32 v64, v58
    v_sin_f32 v65, v58
    v_cos_f32 v66, v59
    v_sin_f32 v67, v59
    v_mul_f32 v60, v52, v60
    v_mul_f32 v61, v52, v61
    v_mul_f32 v62, v53, v62
    v_mul_f32 v63, v53, v63
    v_mul_f32 v64, v54, v64
    v_mul_f32 v65, v54, v65
    v_mul_f32 v66, v55, v66               ; er
    v_mul_f32 v67, v55, v67               ; ei
    v_mul_f32 v68, v16, v66
    v_fma_f32 v68, -v17, v67, v68
    v_mul_f32 v69, v16, v67
    v_fma_f32 v69, v17, v66, v69
    v_sub_f32 v69, 0, v69                 ; -B_im
    v_mfma_f32_16x16x4_f32 v[40:43], v60, v68, v[40:43]
    v_mfma_f32_16x16x4_f32 v[44:47], v62, v68, v[44:47]
    v_mfma_f32_16x16x4_f32 v[48:51], v64, v68, v[48:51]
    v_mfma_f32_16x16x4_f32 v[40:43], v61, v69, v[40:43]
    v_mfma_f32_16x16x4_f32 v[44:47], v63, v69, v[44:47]
    v_mfma_f32_16x16x4_f32 v[48:51], v65, v69, v[48:51]
    s_add_u32 s20, s20, 1
    s_cmp_lt_u32 s20, 8
    s_cbranch_scc1 P_KLOOP
    """)
    for r in range(4):
        k(f"ds_add_f32 v35, v{40+r} offset:{2048 + 4*r}")
    for r in range(4):
        k(f"ds_add_f32 v36, v{44+r} offset:{2048 + 4*(128*(r>>1) + 4*(r&1))}")
    for r in range(4):
        k(f"ds_add_f32 v37, v{48+r} offset:{2048 + 512*r}")
    k("v_lshlrev_b32 v1, 3, v0")
    for e in range(8):
        k(f"v_add_u32 v{52+e}, {e}, v1")
        k(f"v_cvt_f32_u32 v{52+e}, v{52+e}")
    for e in range(0, 8, 2):
        k(f"v_cvt_pk_bf16_f32 v{60+e//2}, v{52+e}, v{53+e}")
    for e in range(0, 8, 2):
        k(f"v_lshlrev_b32 v{52+e}, 16, v{60+e//2}")
        k(f"v_and_b32 v{53+e}, 0xffff0000, v{60+e//2}")
    for e in range(8):
        k(f"v_cvt_u32_f32 v{52+e}, v{52+e}")
        k(f"v_lshlrev_b32 v{52+e}, 2, v{52+e}")
    k("""
    s_waitcnt lgkmcnt(0)
    s_barrier
    """)
    for e in range(8):
        k(f"ds_read_b32 v{52+e}, v{52+e} offset:2048")
    k(f"""
    s_mul_i32 s3, s2, {KP_STRIDE}
    s_add_u32 s3, s3, {KP}
    v_lshlrev_b32 v1, 4, v0
    v_add_u32 v1, s3, v1
    v_mov_b32 v12, 0
    v_mov_b32 v13, 0
    v_mov_b32 v14, 0
    v_mov_b32 v15, 0
    s_waitcnt lgkmcnt(0)
    v_cvt_pk_bf16_f32 v60, v59, v58
    v_cvt_pk_bf16_f32 v61, v57, v56
    v_cvt_pk_bf16_f32 v62, v55, v54
    v_cvt_pk_bf16_f32 v63, v53, v52
    global_store_dwordx4 v1, v[60:63], s[4:5] offset:240
    v_cmp_gt_u32 vcc, 15, v0
    s_and_saveexec_b64 s[22:23], vcc
    s_cbranch_execz P_KEND
    global_store_dwordx4 v1, v[12:15], s[4:5]
    P_KEND:
    s_endpgm
    """)
    k.label("P_TR")
    PITCH = 144
    k(f"""
    s_load_dwordx2 s[8:9], s[0:1], {KA_U}
    s_sub_u32 s3, s2, {B_T}
    s_lshr_b32 s10, s3, 3                 ; lt (0..31)
    s_and_b32 s11, s3, 7                  ; dt (0..7)
    v_lshrrev_b32 v1, 3, v0               ; row 0..31
    v_and_b32 v2, 7, v0                   ; chunk
    s_lshl_b32 s12, s10, 16               ; lt*64*1024
    s_lshl_b32 s13, s11, 7
    s_add_u32 s12, s12, s13
    v_lshlrev_b32 v3, 10, v1
    v_lshl_add_u32 v3, v2, 4, v3
    v_add_u32 v3, s12, v3
    v_add_u32 v4, 0x8000, v3
    s_waitcnt lgkmcnt(0)
    global_load_dwordx4 v[8:11], v3, s[8:9]
    global_load_dwordx4 v[12:15], v4, s[8:9]
    v_mul_u32_u24 v5, {PITCH}, v1
    v_lshl_add_u32 v5, v2, 4, v5
    v_and_b32 v6, 15, v0                  ; lam
    v_bfe_u32 v7, v0, 4, 2                ; g
    v_lshrrev_b32 v16, 6, v0              ; w
    v_lshrrev_b32 v17, 2, v6              ; r = lam>>2
    v_lshl_add_u32 v17, v7, 3, v17        ; row = 8g + r
    v_mul_u32_u24 v17, {PITCH}, v17
    v_and_b32 v18, 3, v6
    v_lshl_add_u32 v17, v18, 3, v17       ; + c*8
    v_lshl_add_u32 v17, v16, 5, v17       ; + w*32 bytes
    s_lshl_b32 s12, s11, 18
    s_lshl_b32 s13, s10, 7
    s_add_u32 s12, s12, s13
    s_add_u32 s12, s12, {XT0}
    v_lshl_add_u32 v19, v16, 4, v6
    v_lshlrev_b32 v19, 12, v19
    v_lshl_add_u32 v19, v7, 4, v19
    v_add_u32 v19, s12, v19
    s_waitcnt vmcnt(0)
    ds_write_b128 v5, v[8:11]
    ds_write_b128 v5, v[12:15] offset:{32*PITCH}
    s_waitcnt lgkmcnt(0)
    s_barrier
    ds_read_b64_tr_b16 v[8:9], v17
    ds_read_b64_tr_b16 v[10:11], v17 offset:{4*PITCH}
    ds_read_b64_tr_b16 v[12:13], v17 offset:{32*PITCH}
    ds_read_b64_tr_b16 v[14:15], v17 offset:{36*PITCH}
    s_waitcnt lgkmcnt(0)
    global_store_dwordx4 v19, v[8:11], s[4:5]
    global_store_dwordx4 v19, v[12:15], s[4:5] offset:64
    s_endpgm
    """)
    k.label("P_ST")
    k(f"""
    s_load_dwordx2 s[8:9], s[0:1], {KA_U}
    s_sub_u32 s3, s2, {B_S}
    v_lshrrev_b32 v1, 6, v0
    v_and_b32 v2, 63, v0
    s_lshl_b32 s10, s3, 13                ; 8 rows * 1024
    v_lshlrev_b32 v3, 11, v1
    v_lshl_add_u32 v3, v2, 4, v3
    v_add_u32 v3, s10, v3
    s_waitcnt lgkmcnt(0)
    global_load_dwordx4 v[8:11], v3, s[8:9]
    global_load_dwordx4 v[12:15], v3, s[8:9] offset:1024
    s_lshl_b32 s10, s3, 6
    v_lshlrev_b32 v4, 4, v1
    v_add_u32 v4, s10, v4
    v_add_u32 v5, {ST0}, v4
    v_add_u32 v6, {ST1}, v4
    s_waitcnt vmcnt(0)
    """)
    for row, (base, sm, sq) in enumerate([(8, 20, 21), (12, 22, 23)]):
        for j in range(4):
            k(f"v_lshlrev_b32 v16, 16, v{base+j}")
            k(f"v_and_b32 v17, 0xffff0000, v{base+j}")
            if j == 0:
                k(f"v_add_f32 v{sm}, v16, v17")
                k(f"v_mul_f32 v{sq}, v16, v16")
            else:
                k(f"v_add_f32 v{sm}, v{sm}, v16")
                k(f"v_add_f32 v{sm}, v{sm}, v17")
                k(f"v_fmac_f32 v{sq}, v16, v16")
            k(f"v_fmac_f32 v{sq}, v17, v17")
    for sh in ("row_shr:1", "row_shr:2", "row_shr:4", "row_shr:8"):
        for r in range(20, 24):
            k(f"v_add_f32_dpp v{r}, v{r}, v{r} {sh} row_mask:0xf bank_mask:0xf bound_ctrl:0")
    for r in range(20, 24):
        k(f"v_add_f32_dpp v{r}, v{r}, v{r} row_bcast:15 row_mask:0xa bank_mask:0xf")
    for r in range(20, 24):
        k(f"v_add_f32_dpp v{r}, v{r}, v{r} row_bcast:31 row_mask:0xc bank_mask:0xf")
    k(f"""
    v_mov_b32 v24, 0
    v_mov_b32 v25, 0
    v_mov_b32 v26, 0
    v_mov_b32 v27, 0
    v_cmp_eq_u32 vcc, 63, v2
    s_and_saveexec_b64 s[22:23], vcc
    global_store_dwordx4 v5, v[20:23], s[4:5]
    global_store_dwordx4 v6, v[24:27], s[4:5]
    s_endpgm
    """)
    k.label("P_W")
    WPITCH = 400
    k(f"""
    s_load_dwordx4 s[8:11], s[0:1], {KA_WG}
    s_sub_u32 s3, s2, {B_W}
    s_lshr_b32 s12, s3, 4                 ; ft
    s_and_b32 s13, s3, 15                 ; s
    """)
    k(f"""
    s_mul_i32 s14, s13, {32*F*2}
    s_mul_i32 s15, s12, 192
    s_add_u32 s14, s14, s15
    s_mul_i32 s16, s12, 12
    s_mov_b32 s17, 0x15555556
    """)
    k(f"v_mov_b32 v5, {F//8}")
    for i in range(2):
        k(f"""
        v_add_u32 v1, {256*i}, v0
        v_mul_hi_u32 v2, v1, s17
        v_mul_u32_u24 v3, 12, v2
        v_sub_u32 v3, v1, v3                  ; chunk
        v_mul_u32_u24 v4, {F*2}, v2
        v_lshl_add_u32 v4, v3, 4, v4
        v_add_u32 v{40+i}, s14, v4
        v_mul_u32_u24 v4, {WPITCH}, v2
        v_lshl_add_u32 v{42+i}, v3, 5, v4
        v_add_u32 v3, s16, v3
        v_cmp_gt_u32 s[{24+2*i}:{25+2*i}], v5, v3
        """)
    for r in range(8, 24): k(f"v_mov_b32 v{r}, 0")
    k(f"""
    v_cmp_gt_u32 vcc, 0x80, v0
    s_and_b64 s[26:27], s[26:27], vcc
    s_waitcnt lgkmcnt(0)
    s_mov_b64 s[28:29], exec
    s_mov_b64 exec, s[24:25]
    s_cbranch_execz P_W1
    global_load_dwordx4 v[8:11], v40, s[8:9]
    global_load_dwordx4 v[12:15], v40, s[10:11]
    P_W1:
    s_mov_b64 exec, s[26:27]
    s_cbranch_execz P_W2
    global_load_dwordx4 v[16:19], v41, s[8:9]
    global_load_dwordx4 v[20:23], v41, s[10:11]
    P_W2:
    s_mov_b64 exec, s[28:29]
    s_waitcnt vmcnt(0)
    ds_write2_b32 v42, v8, v9 offset0:0 offset1:2
    ds_write2_b32 v42, v10, v11 offset0:4 offset1:6
    ds_write2_b32 v42, v12, v13 offset0:1 offset1:3
    ds_write2_b32 v42, v14, v15 offset0:5 offset1:7
    s_and_saveexec_b64 s[28:29], vcc
    s_cbranch_execz P_W3
    ds_write2_b32 v43, v16, v17 offset0:0 offset1:2
    ds_write2_b32 v43, v18, v19 offset0:4 offset1:6
    ds_write2_b32 v43, v20, v21 offset0:1 offset1:3
    ds_write2_b32 v43, v22, v23 offset0:5 offset1:7
    P_W3:
    s_mov_b64 exec, s[28:29]
    v_and_b32 v1, 15, v0
    v_bfe_u32 v2, v0, 4, 2
    v_lshrrev_b32 v3, 2, v1
    v_lshl_add_u32 v3, v2, 2, v3
    v_mul_u32_u24 v3, {WPITCH}, v3
    v_and_b32 v4, 3, v1
    v_lshl_add_u32 v3, v4, 3, v3
    v_readfirstlane_b32 s18, v0
    s_lshr_b32 s18, s18, 6                ; w
    s_lshl_b32 s19, s18, 7
    s_mov_b32 s20, 32
    s_cmp_eq_u32 s18, 3
    s_cselect_b32 s19, 96, s19
    s_cselect_b32 s20, 128, s20
    v_add_u32 v3, s19, v3
    v_add_u32 v4, s20, v3
    v_add_u32 v5, s20, v4
    s_lshl_b32 s21, s12, 2
    s_add_u32 s21, s21, s18
    s_mul_i32 s21, s21, {3*16*1024}
    s_lshl_b32 s22, s13, 10
    s_add_u32 s21, s21, s22
    s_add_u32 s21, s21, {WP}
    v_and_b32 v6, 63, v0
    v_lshlrev_b32 v6, 4, v6
    v_add_u32 v6, s21, v6
    v_add_u32 v7, 0x4000, v6
    v_add_u32 v24, 0x8000, v6
    s_waitcnt lgkmcnt(0)
    s_barrier
    ds_read_b64_tr_b16 v[8:9], v3
    ds_read_b64_tr_b16 v[10:11], v3 offset:{16*WPITCH}
    ds_read_b64_tr_b16 v[12:13], v4
    ds_read_b64_tr_b16 v[14:15], v4 offset:{16*WPITCH}
    ds_read_b64_tr_b16 v[16:17], v5
    ds_read_b64_tr_b16 v[18:19], v5 offset:{16*WPITCH}
    s_waitcnt lgkmcnt(0)
    global_store_dwordx4 v6, v[8:11], s[4:5]
    global_store_dwordx4 v7, v[12:15], s[4:5]
    global_store_dwordx4 v24, v[16:19], s[4:5]
    s_endpgm
    """)
    k.label("P_D")
    DPITCH = 272
    k(f"""
    s_load_dwordx2 s[8:9], s[0:1], {KA_WD}
    s_sub_u32 s3, s2, {B_D}
    s_lshr_b32 s12, s3, 2                 ; ks 0..43
    s_and_b32 s13, s3, 3                  ; dq
    v_lshrrev_b32 v1, 4, v0               ; row 0..15 (+16)
    v_and_b32 v2, 15, v0                  ; chunk
    s_lshl_b32 s14, s12, 15               ; ks*32*1024
    s_lshl_b32 s15, s13, 8
    s_add_u32 s14, s14, s15
    v_lshlrev_b32 v3, 10, v1
    v_lshl_add_u32 v3, v2, 4, v3
    v_add_u32 v3, s14, v3
    v_add_u32 v4, 0x4000, v3
    """)
    for r in range(8, 16): k(f"v_mov_b32 v{r}, 0")
    k(f"""
    s_waitcnt lgkmcnt(0)
    s_cmp_ge_u32 s12, 43
    s_cbranch_scc1 P_D1
    global_load_dwordx4 v[8:11], v3, s[8:9]
    global_load_dwordx4 v[12:15], v4, s[8:9]
    P_D1:
    v_bfe_u32 v5, v1, 1, 2                ; g
    v_lshrrev_b32 v6, 3, v1               ; dw (0/1)
    v_and_b32 v7, 1, v1
    v_lshl_add_u32 v7, v6, 1, v7
    v_lshl_add_u32 v7, v5, 3, v7          ; rho
    v_mul_u32_u24 v7, {DPITCH}, v7
    v_lshl_add_u32 v7, v2, 4, v7
    v_and_b32 v1, 15, v0
    v_bfe_u32 v2, v0, 4, 2
    v_lshrrev_b32 v16, 6, v0
    v_lshrrev_b32 v3, 2, v1
    v_lshl_add_u32 v3, v2, 3, v3          ; row = 8g + r
    v_mul_u32_u24 v3, {DPITCH}, v3
    v_and_b32 v4, 3, v1
    v_lshl_add_u32 v3, v4, 4, v3          ; + c*16 bytes (8 d)
    v_lshl_add_u32 v3, v16, 6, v3         ; + w*64
    s_lshl_b32 s16, s13, 3
    v_lshl_add_u32 v17, v16, 1, s16
    v_mul_u32_u24 v17, {NKS2*1024}, v17
    v_and_b32 v18, 63, v0
    v_lshl_add_u32 v17, v18, 4, v17
    s_lshl_b32 s16, s12, 10
    s_add_u32 s16, s16, {WD}
    v_add_u32 v17, s16, v17
    v_add_u32 v18, {NKS2*1024}, v17
    s_waitcnt vmcnt(0)
    ds_write_b128 v7, v[8:11]
    ds_write_b128 v7, v[12:15] offset:{4*DPITCH}
    s_waitcnt lgkmcnt(0)
    s_barrier
    ds_read_b64_tr_b16 v[8:9], v3
    ds_read_b64_tr_b16 v[10:11], v3 offset:{4*DPITCH}
    ds_read_b64_tr_b16 v[12:13], v3 offset:8
    ds_read_b64_tr_b16 v[14:15], v3 offset:{4*DPITCH+8}
    s_waitcnt lgkmcnt(0)
    global_store_dwordx4 v17, v[8:11], s[4:5]
    global_store_dwordx4 v18, v[12:15], s[4:5]
    s_endpgm
    """)
    k.label("P_C")
    k(f"""
    s_load_dwordx4 s[8:11], s[0:1], {KA_WG}
    s_sub_u32 s3, s2, {B_C}
    s_and_b32 s12, s3, 1                  ; mat
    s_lshr_b32 s13, s3, 1                 ; cb 0..21
    v_lshrrev_b32 v1, 3, v0
    v_and_b32 v2, 7, v0                   ; chunk
    s_lshl_b32 s14, s13, 3
    v_add_u32 v3, s14, v2
    v_mul_u32_u24 v4, {F*2}, v1
    v_lshl_add_u32 v4, v3, 4, v4
    s_waitcnt lgkmcnt(0)
    s_cmp_eq_u32 s12, 1
    s_cselect_b32 s8, s10, s8
    s_cselect_b32 s9, s11, s9
    v_mov_b32 v5, {F//8}
    v_cmp_gt_u32 vcc, v5, v3
    """)
    for r in range(8, 16): k(f"v_mov_b32 v{r}, 0")
    k("""
    s_and_saveexec_b64 s[28:29], vcc
    s_cbranch_execz P_C2
    """)
    for i in range(16):
        k(f"global_load_dwordx4 v[{16+4*i}:{19+4*i}], v4, s[8:9]")
        if i < 15: k(f"v_add_u32 v4, {32*F*2}, v4")
    for i in range(16):
        k(f"s_waitcnt vmcnt({15-i})")
        for j in range(4):
            k(f"v_lshlrev_b32 v6, 16, v{16+4*i+j}")
            k(f"v_and_b32 v7, 0xffff0000, v{16+4*i+j}")
            k(f"v_add_f32 v{8+2*j}, v{8+2*j}, v6")
            k(f"v_add_f32 v{9+2*j}, v{9+2*j}, v7")
    k(f"""
    P_C2:
    s_mov_b64 exec, s[28:29]
    v_lshlrev_b32 v6, 5, v0
    ds_write_b128 v6, v[8:11]
    ds_write_b128 v6, v[12:15] offset:16
    s_waitcnt lgkmcnt(0)
    s_barrier
    v_cmp_gt_u32 vcc, 64, v0
    s_and_saveexec_b64 s[28:29], vcc
    s_cbranch_execz P_C3
    v_lshlrev_b32 v6, 2, v0
    """)
    for i in range(32):
        k(f"ds_read_b32 v{16+i}, v6 offset:{256*i}")
    k("s_waitcnt lgkmcnt(0)")
    for i in range(1, 32):
        k(f"v_add_f32 v16, v16, v{16+i}")
    k(f"""
    s_lshl_b32 s14, s13, 6
    v_add_u32 v1, s14, v0                 ; f
    s_mov_b32 s17, 0x2aaaaab
    v_mul_hi_u32 v2, v1, s17              ; ft
    v_mul_u32_u24 v3, 96, v2
    v_sub_u32 v3, v1, v3                  ; rem
    v_lshrrev_b32 v4, 5, v3               ; j
    v_bfe_u32 v5, v3, 3, 2                ; dw
    v_mul_u32_u24 v7, 3, v4
    v_add_u32 v7, v7, v5                  ; 3j + dw
    v_add_u32 v8, 9, v4                   ; 9 + j
    v_cmp_eq_u32 vcc, 3, v5
    v_cndmask_b32 v7, v7, v8, vcc         ; w*3+tau
    v_mul_u32_u24 v8, 12, v2
    v_add_u32 v7, v7, v8
    v_lshlrev_b32 v7, 4, v7
    v_bfe_u32 v8, v3, 1, 2
    v_lshl_add_u32 v7, v8, 2, v7
    v_and_b32 v8, 1, v3
    v_add_u32 v7, v7, v8
    s_lshl_b32 s14, s12, 1
    v_add_u32 v7, s14, v7
    v_lshlrev_b32 v7, 2, v7
    v_add_u32 v7, {CSUM}, v7
    global_store_dword v7, v16, s[4:5]
    s_cmp_lg_u32 s13, 21
    s_cbranch_scc1 P_C3
    v_cmp_gt_u32 vcc, 32, v0
    s_and_b64 exec, exec, vcc
    v_bfe_u32 v5, v0, 3, 2
    v_add_u32 v7, 6, v5
    v_cmp_eq_u32 vcc, 3, v5
    v_cndmask_b32 v7, v7, 11, vcc
    v_add_u32 v7, {14*12}, v7
    v_lshlrev_b32 v7, 4, v7
    v_bfe_u32 v8, v0, 1, 2
    v_lshl_add_u32 v7, v8, 2, v7
    v_and_b32 v8, 1, v0
    v_add_u32 v7, v7, v8
    v_add_u32 v7, s14, v7
    v_lshlrev_b32 v7, 2, v7
    v_add_u32 v7, {CSUM}, v7
    v_mov_b32 v16, 0
    global_store_dword v7, v16, s[4:5]
    P_C3:
    s_endpgm
    """)
    return k, dict(vgpr=80, sgpr=48, accum=80, grid=PREP_WGS, block=256, lds=PREP_LDS)


def stats_pair(k, sa, qa, sb, qb, t):
    for s_, q_ in ((sa, qa), (sb, qb)):
        k(f"""
        v_mul_f32 v{s_}, s43, v{s_}
        v_mul_f32 v{q_}, s43, v{q_}
        v_fma_f32 v{q_}, -v{s_}, v{s_}, v{q_}
        v_max_f32 v{q_}, 0, v{q_}
        v_cvt_pk_bf16_f32 v{q_}, v{s_}, v{q_}
        v_lshlrev_b32 v{s_}, 16, v{q_}
        v_and_b32 v{q_}, 0xffff0000, v{q_}
        v_add_f32 v{q_}, s44, v{q_}
        """)
    k(f"""
    v_cvt_pk_bf16_f32 v{t}, v{qa}, v{qb}
    v_lshlrev_b32 v{qa}, 16, v{t}
    v_and_b32 v{qb}, 0xffff0000, v{t}
    v_sqrt_f32 v{qa}, v{qa}
    v_sqrt_f32 v{qb}, v{qb}
    v_cvt_pk_bf16_f32 v{t}, v{qa}, v{qb}
    v_lshlrev_b32 v{qa}, 16, v{t}
    v_and_b32 v{qb}, 0xffff0000, v{t}
    v_rcp_f32 v{qa}, v{qa}
    v_rcp_f32 v{qb}, v{qb}
    """)

CS = 4384
CRED = 8 * CS
CONV_LDS = CRED + 32768

def gen_conv():
    k = Kern("conv")
    k(f"""
    conv1_kernel:
    s_mov_b32 s30, {XT0}
    s_mov_b32 s31, {ST0}
    s_mov_b32 s32, {X1T}
    CONV_BODY:
    s_cmp_ge_u32 s2, 512
    s_cbranch_scc1 CONV_END
    s_load_dwordx2 s[4:5], s[0:1], {KA_WS}
    s_load_dwordx2 s[6:7], s[0:1], {KA_DSKIP}
    s_mov_b32 s43, {fl(1.0/512)}
    s_mov_b32 s44, {fl(1e-5)}
    s_lshl_b32 s12, s2, 12                ; d*4096
    s_add_u32 s13, s12, s30
    s_add_u32 s14, s12, s32
    s_mul_i32 s15, s2, {KP_STRIDE}
    s_add_u32 s15, s15, {KP}
    s_lshr_b32 s16, s2, 1
    s_lshl_b32 s16, s16, 2
    v_lshlrev_b32 v1, 4, v0               ; tid*16
    v_lshlrev_b32 v2, 6, v0               ; tid*64
    v_and_b32 v3, 15, v0                  ; c / r
    v_bfe_u32 v4, v0, 4, 2                ; g
    v_lshrrev_b32 v5, 6, v0               ; pi
    v_add_u32 v6, v3, v4
    v_lshlrev_b32 v6, 4, v6
    v_lshl_add_u32 v6, v5, 6, v6
    v_lshlrev_b32 v7, 10, v5
    v_lshl_add_u32 v7, v3, 4, v7
    v_lshrrev_b32 v8, 1, v4
    v_lshl_add_u32 v7, v8, 8, v7
    v_and_b32 v8, 1, v4
    v_lshl_add_u32 v7, v8, 3, v7
    s_waitcnt lgkmcnt(0)
    s_load_dword s20, s[6:7], s16
    """)
    srd(k, 8, 4, WS_BYTES)
    k(f"""
    buffer_load_dwordx4 v[12:15], v1, s[8:11], s13 offen
    buffer_load_dwordx4 v[16:19], v2, s[8:11], s31 offen
    buffer_load_dwordx4 v[20:23], v2, s[8:11], s31 offen offset:16
    buffer_load_dwordx4 v[24:27], v2, s[8:11], s31 offen offset:32
    buffer_load_dwordx4 v[28:31], v2, s[8:11], s31 offen offset:48
    """)
    for t in range(16):
        k(f"buffer_load_dwordx4 a[{4*t}:{4*t+3}], v6, s[8:11], s15 offen offset:{256*t}")
    k(f"""
    buffer_load_dwordx2 v[32:33], v7, s[8:11], s13 offen
    buffer_load_dwordx2 v[34:35], v7, s[8:11], s13 offen offset:512
    v_mov_b32 v36, 0
    v_mov_b32 v37, 0
    v_mov_b32 v38, 0
    v_mov_b32 v39, 0
    v_bfe_u32 v9, v0, 4, 3
    v_mul_u32_u24 v9, {CS}, v9
    v_lshl_add_u32 v9, v3, 4, v9
    ds_write_b128 v9, v[36:39]
    v_and_b32 v9, 7, v3
    v_mul_u32_u24 v9, {CS}, v9
    v_lshrrev_b32 v10, 3, v3
    v_lshlrev_b32 v10, 4, v10
    v_add_u32 v10, 15, v10
    v_sub_u32 v10, v10, v4
    v_lshlrev_b32 v11, 2, v5
    v_sub_u32 v10, v10, v11
    v_lshl_add_u32 v9, v10, 4, v9         ; v9 = A addr
    v_and_b32 v10, 63, v0
    v_lshlrev_b32 v10, 4, v10
    v_lshl_add_u32 v11, v5, 13, v10
    v_lshl_add_u32 v10, v5, 11, v10
    s_waitcnt vmcnt(18)
    """)
    for i in range(4):
        stats_pair(k, 16 + 4*i, 17 + 4*i, 18 + 4*i, 19 + 4*i, 40)
    for j in range(4):
        k(f"""
        v_lshlrev_b32 v40, 16, v{12+j}
        v_and_b32 v41, 0xffff0000, v{12+j}
        v_sub_f32 v40, v40, v{16+4*j}
        v_sub_f32 v41, v41, v{18+4*j}
        v_cvt_pk_bf16_f32 v41, v40, v41
        v_lshlrev_b32 v40, 16, v41
        v_and_b32 v41, 0xffff0000, v41
        v_mul_f32 v40, v40, v{17+4*j}
        v_mul_f32 v41, v41, v{19+4*j}
        v_cvt_pk_bf16_f32 v{48+j}, v40, v41
        """)
    k(f"""
    ds_write_b128 v1, v[48:51] offset:{7*CS + 256}
    s_waitcnt lgkmcnt(0)
    s_barrier
    ds_read_b128 v[44:47], v1 offset:{7*CS + 240}
    s_waitcnt lgkmcnt(0)
    """)
    for i in range(6): k(f"v_alignbit_b32 v{52+i}, v{45+i}, v{44+i}, 16")
    k(f"ds_write_b128 v1, v[52:55] offset:{0*CS + 256}")
    k(f"ds_write_b128 v1, v[54:57] offset:{4*CS + 256}")
    k(f"ds_write_b128 v1, v[46:49] offset:{3*CS + 256}")
    for i in range(1, 7): k(f"v_alignbit_b32 v{59+i}, v{45+i}, v{44+i}, 16")
    k(f"ds_write_b128 v1, v[60:63] offset:{2*CS + 256}")
    k(f"ds_write_b128 v1, v[62:65] offset:{6*CS + 256}")
    for i in range(1, 7): k(f"v_mov_b32 v{65+i}, v{44+i}")
    k(f"ds_write_b128 v1, v[66:69] offset:{1*CS + 256}")
    k(f"ds_write_b128 v1, v[68:71] offset:{5*CS + 256}")
    k("""
    s_waitcnt lgkmcnt(0)
    s_barrier
    """)
    AB = 72; ACC = 88
    for mu in range(4):
        k(f"ds_read_b128 v[{AB+4*mu}:{AB+4*mu+3}], v9 offset:{256*mu}")
    k(f"ds_read_b64 v[40:41], v7 offset:{7*CS + 256}")
    k(f"ds_read_b64 v[42:43], v7 offset:{7*CS + 256 + 512}")
    k("s_waitcnt vmcnt(2)")
    outstanding = ["A0", "A1", "A2", "A3", "u", "u"]
    for mu in range(16):
        idx = outstanding.index(f"A{mu}")
        k(f"s_waitcnt lgkmcnt({len(outstanding) - idx - 1})")
        outstanding = outstanding[idx + 1:]
        a = AB + 4 * (mu & 3)
        q0 = max(0, -(-(mu - 1) // 2))
        for q in range(q0, 8):
            tp = 2 * q + 1 - mu
            c = "0" if mu == 0 else f"v[{ACC+4*q}:{ACC+4*q+3}]"
            k(f"v_mfma_f32_16x16x32_bf16 v[{ACC+4*q}:{ACC+4*q+3}], v[{a}:{a+3}], a[{4*tp}:{4*tp+3}], {c}")
        if mu + 4 < 16:
            k(f"ds_read_b128 v[{a}:{a+3}], v9 offset:{256*(mu+4)}")
            outstanding.append(f"A{mu+4}")
    for q in range(8):
        k(f"ds_write_b128 v10, v[{ACC+4*q}:{ACC+4*q+3}] offset:{CRED + (q>>1)*8192 + (q&1)*1024}")
    k(f"""
    s_and_b32 s21, s20, 0xffff0000
    s_lshl_b32 s20, s20, 16
    s_bitcmp1_b32 s2, 0
    s_cselect_b32 s20, s21, s20
    s_waitcnt lgkmcnt(0)
    s_barrier
    """)
    for src in range(4):
        for t in range(2):
            k(f"ds_read_b128 v[{ACC+8*src+4*t}:{ACC+8*src+4*t+3}], v11 offset:{CRED + src*2048 + t*1024}")
    k("s_waitcnt lgkmcnt(0)")
    for r in range(8):
        k(f"v_add_f32 v{ACC+r}, v{ACC+r}, v{ACC+8+r}")
        k(f"v_add_f32 v{ACC+16+r}, v{ACC+16+r}, v{ACC+24+r}")
    for r in range(8):
        k(f"v_add_f32 v{ACC+r}, v{ACC+r}, v{ACC+16+r}")
    k("s_waitcnt vmcnt(0)")
    for p in range(4):
        y0, y1 = ACC + 2*p, ACC + 2*p + 1
        u = 40 + p; x = 32 + p
        k(f"""
        v_cvt_pk_bf16_f32 v{y1}, v{y0}, v{y1}
        v_lshlrev_b32 v{y0}, 16, v{y1}
        v_and_b32 v{y1}, 0xffff0000, v{y1}
        v_lshlrev_b32 v44, 16, v{u}
        v_and_b32 v45, 0xffff0000, v{u}
        v_mul_f32 v44, s20, v44
        v_mul_f32 v45, s20, v45
        v_cvt_pk_bf16_f32 v45, v44, v45
        v_lshlrev_b32 v44, 16, v45
        v_and_b32 v45, 0xffff0000, v45
        v_add_f32 v{y0}, v{y0}, v44
        v_add_f32 v{y1}, v{y1}, v45
        v_cvt_pk_bf16_f32 v{y1}, v{y0}, v{y1}
        v_lshlrev_b32 v{y0}, 16, v{y1}
        v_and_b32 v{y1}, 0xffff0000, v{y1}
        v_lshlrev_b32 v44, 16, v{x}
        v_and_b32 v45, 0xffff0000, v{x}
        v_add_f32 v{y0}, v{y0}, v44
        v_add_f32 v{y1}, v{y1}, v45
        v_cvt_pk_bf16_f32 v{48+p}, v{y0}, v{y1}
        """)
    k(f"""
    buffer_store_dwordx2 v[48:49], v7, s[8:11], s14 offen
    buffer_store_dwordx2 v[50:51], v7, s[8:11], s14 offen offset:512
    CONV_END:
    s_endpgm
    .p2align 8
    conv2_kernel:
    s_mov_b32 s30, {X2T}
    s_mov_b32 s31, {ST1}
    s_mov_b32 s32, {X3T}
    s_branch CONV_BODY
    """)
    info = dict(vgpr=120 + 64, sgpr=48, accum=120, grid=512, block=256, lds=CONV_LDS)
    return k, info

G1_LDS = 131072 + 1024
def gen_gemm1():
    k = Kern("gemm1")
    ACC = 0
    SACC = 96
    XF = 112
    ONES = 176
    XA = 180
    CSR = 188
    VDMA0, VDMA1, VW, VT0, VT1, VT2, VH = 200, 201, 202, 203, 204, 205, 206
    MR = 208
    TMP = 224
    k(f"""
    gemm1a_kernel:
    s_mov_b32 s30, {X1T}
    G1_BODY:
    s_cmp_ge_u32 s2, 256
    s_cbranch_scc1 G1_END
    s_load_dwordx2 s[4:5], s[0:1], {KA_WS}
    s_and_b32 s12, s2, 7                  ; xcd
    s_lshr_b32 s13, s2, 3                 ; idx
    s_and_b32 s14, s12, 1
    s_lshl_b32 s14, s14, 3
    s_and_b32 s15, s13, 7
    s_add_u32 s14, s14, s15               ; lt
    s_lshr_b32 s15, s12, 1
    s_lshl_b32 s15, s15, 2
    s_lshr_b32 s16, s13, 3
    s_add_u32 s15, s15, s16               ; ft
    s_cmp_ge_u32 s15, 15
    s_cbranch_scc1 G1_END
    v_readfirstlane_b32 s17, v0
    s_lshr_b32 s17, s17, 6                ; w
    s_mov_b32 s43, {fl(1.0/512)}
    s_mov_b32 s44, {fl(1e-5)}
    s_mov_b32 s45, {fl(-LOG2E)}
    v_and_b32 v{VT0}, 63, v0              ; lane
    v_and_b32 v{VT1}, 15, v0              ; lam / j
    v_bfe_u32 v{VT2}, v0, 4, 2            ; g
    v_lshrrev_b32 v{TMP}, 1, v{VT1}
    v_xor_b32 v{TMP+1}, v{TMP}, v{VT2}
    v_xor_b32 v{TMP+2}, 4, v{TMP+1}
    v_and_b32 v{TMP+3}, 1, v{VT1}
    v_lshlrev_b32 v{TMP+3}, 4, v{TMP+3}
    v_lshl_add_u32 v{TMP+3}, v{VT2}, 12, v{TMP+3}     ; g*4096 + (c'&1)*16
    v_lshl_add_u32 v{VDMA0}, v{TMP+1}, 5, v{TMP+3}
    v_lshl_add_u32 v{VDMA1}, v{TMP+2}, 5, v{TMP+3}
    v_add_u32 v{VDMA1}, 0x4000, v{VDMA1}
    v_lshlrev_b32 v{VW}, 4, v{VT0}                    ; lane*16
    s_lshl_b32 s18, s14, 8
    s_add_u32 s18, s18, s30
    s_lshl_b32 s19, s17, 15
    s_add_u32 s18, s18, s19
    s_lshl_b32 s19, s17, 11               ; m0 base: (8 s + 2 w)*1024
    s_lshl_b32 s20, s15, 2
    s_add_u32 s20, s20, s17
    s_mul_i32 s21, s20, {3*16*1024}
    s_add_u32 s21, s21, {WP}
    s_add_u32 s22, s21, 0x4000
    s_add_u32 s23, s21, 0x8000
    s_mul_i32 s24, s20, {3*16*4}
    s_add_u32 s24, s24, {CSUM}
    s_waitcnt lgkmcnt(0)
    """)
    srd(k, 8, 4, WS_BYTES)
    def issue_group(s):
        k(f"""
        s_mov_b32 m0, s19
        s_add_u32 s19, s19, 0x400
        buffer_load_dwordx4 v{VDMA0}, s[8:11], s18 offen lds
        s_mov_b32 m0, s19
        s_add_u32 s19, s19, 0x1c00
        buffer_load_dwordx4 v{VDMA1}, s[8:11], s18 offen lds
        s_add_u32 s18, s18, 0x20000
        """)
        for tau in range(3):
            k(f"buffer_load_dwordx4 a[{12*s+4*tau}:{12*s+4*tau+3}], v{VW}, s[8:11], s{21+tau} offen offset:{1024*(s&3)}")
        if (s & 3) == 3:
            for tau in range(3): k(f"s_add_u32 s{21+tau}, s{21+tau}, 0x1000")
    PRE = 12
    for s in range(PRE): issue_group(s)
    k(f"""
    v_lshrrev_b32 v{TMP}, 2, v{VT1}
    v_lshl_add_u32 v{TMP}, v{VT2}, 2, v{TMP}          ; 4g + r
    v_and_b32 v{TMP+1}, 7, v{TMP}                     ; xi
    v_and_b32 v{TMP+2}, 3, v{VT1}
    v_lshlrev_b32 v{TMP+2}, 3, v{TMP+2}
    v_lshl_add_u32 v{TMP+2}, v{TMP}, 8, v{TMP+2}
    s_lshl_b32 s25, s17, 1
    """)
    for b in range(8):
        k(f"""
        s_add_u32 s26, s25, {b}
        s_and_b32 s26, s26, 7
        v_xor_b32 v{TMP+3}, s26, v{TMP+1}
        v_lshl_add_u32 v{XA+b}, v{TMP+3}, 5, v{TMP+2}
        """)
    for r in range(4): k(f"v_mov_b32 v{ONES+r}, 0x3f803f80")
    def xreads(s):
        res = []
        buf = XF + 32 * (s & 1)
        for b in range(8):
            off = (s & 7) * 8192
            res.append(f"ds_read_b64_tr_b16 v[{buf+4*b}:{buf+4*b+1}], v{XA+b} offset:{off}")
            res.append(f"ds_read_b64_tr_b16 v[{buf+4*b+2}:{buf+4*b+3}], v{XA+b} offset:{off+4096}")
        return res
    issued = PRE
    extra = 0
    k(f"s_waitcnt vmcnt({5*(issued-1)})")
    k("s_barrier")
    for r in xreads(0): k(r)
    for s in range(16):
        fill = []
        if s < 15:
            k(f"s_waitcnt vmcnt({5*(issued-(s+2)) + extra})")
            k("s_barrier")
        k("s_waitcnt lgkmcnt(0)")
        if s < 15:
            if s + 1 == 8:
                for b in range(8): k(f"v_add_u32 v{XA+b}, 0x10000, v{XA+b}")
            fill = xreads(s + 1)
        mf = []
        buf = XF + 32 * (s & 1)
        for b in range(8):
            for tau in range(3):
                a = ACC + (b * 3 + tau) * 4
                c = "0" if s == 0 else f"v[{a}:{a+3}]"
                mf.append(f"v_mfma_f32_16x16x32_bf16 v[{a}:{a+3}], a[{12*s+4*tau}:{12*s+4*tau+3}], v[{buf+4*b}:{buf+4*b+3}], {c}")
            if b < 2:
                a = SACC + 8 * b
                c = "0" if s == 0 else f"v[{a}:{a+3}]"
                mf.append(f"v_mfma_f32_16x16x32_bf16 v[{a}:{a+3}], v[{buf+4*b}:{buf+4*b+3}], v[{buf+4*b}:{buf+4*b+3}], {c}")
                a += 4
                c = "0" if s == 0 else f"v[{a}:{a+3}]"
                mf.append(f"v_mfma_f32_16x16x32_bf16 v[{a}:{a+3}], v[{ONES}:{ONES+3}], v[{buf+4*b}:{buf+4*b+3}], {c}")
        for i, m in enumerate(mf):
            k(m)
            if i < len(fill): k(fill[i])
            if i == 18:
                if issued < 16:
                    issue_group(issued); issued += 1
                elif extra == 0:
                    k(f"v_lshlrev_b32 v{TMP}, 4, v{VT2}")
                    for tau in range(3):
                        k(f"buffer_load_dwordx4 v[{CSR+4*tau}:{CSR+4*tau+3}], v{TMP}, s[8:11], s24 offen offset:{64*tau}")
                    extra = 3
    k(f"""
    v_and_b32 v{TMP}, 3, v{VT1}
    v_cmp_eq_u32 s[32:33], 1, v{TMP}
    v_cmp_eq_u32 s[34:35], 2, v{TMP}
    v_cmp_eq_u32 s[36:37], 3, v{TMP}
    v_lshrrev_b32 v{TMP}, 2, v{VT1}
    v_cmp_eq_u32 s[38:39], v{TMP}, v{VT2}
    """)
    for b in range(2):
        a = SACC + 8 * b
        k(f"""
        v_cndmask_b32 v{a}, v{a}, v{a+1}, s[32:33]
        v_cndmask_b32 v{a}, v{a}, v{a+2}, s[34:35]
        v_cndmask_b32 v{a+5}, v{a}, v{a+3}, s[36:37]
        """)
    stats_pair(k, SACC+4, SACC+5, SACC+12, SACC+13, TMP)
    k(f"""
    s_lshl_b32 s26, s17, 8
    v_lshl_add_u32 v{TMP}, v{VT1}, 3, s26
    v_add_u32 v{TMP}, 0x20000, v{TMP}
    s_mov_b64 s[40:41], exec
    s_mov_b64 exec, s[38:39]
    ds_write_b64 v{TMP}, v[{SACC+4}:{SACC+5}]
    ds_write_b64 v{TMP}, v[{SACC+12}:{SACC+13}] offset:128
    s_mov_b64 exec, s[40:41]
    s_waitcnt lgkmcnt(0)
    s_barrier
    v_lshlrev_b32 v{TMP+1}, 3, v{VT1}
    v_add_u32 v{TMP+1}, 0x20000, v{TMP+1}
    """)
    for b in range(8):
        k(f"""
        s_add_u32 s26, s25, {b}
        s_and_b32 s26, s26, 7
        s_lshl_b32 s26, s26, 7
        v_add_u32 v{TMP+2}, s26, v{TMP+1}
        ds_read_b64 v[{MR+2*b}:{MR+2*b+1}], v{TMP+2}
        """)
    k(f"""
    v_bfe_u32 v{TMP}, v{VT1}, 2, 1                    ; half
    v_mul_u32_u24 v{VH}, {HKS*1024}, v{TMP}
    v_lshrrev_b32 v{TMP}, 3, v{VT1}
    v_lshl_add_u32 v{VH}, v{TMP}, 6, v{VH}
    v_and_b32 v{TMP}, 3, v{VT1}
    v_lshl_add_u32 v{VH}, v{TMP}, 4, v{VH}
    v_lshl_add_u32 v{VH}, v{VT2}, 8, v{VH}
    s_mul_i32 s27, s14, {8*HKS*1024}
    s_mul_i32 s28, s15, 3072
    s_add_u32 s27, s27, s28
    s_add_u32 s27, s27, {HB}
    s_lshl_b32 s28, s17, 10
    s_cmp_eq_u32 s17, 3
    s_cselect_b32 s28, 12, s28
    s_add_u32 s27, s27, s28               ; + w*1024 (w<3) or +12 (w==3)
    """)
    for pp in range(4):
        k(f"""
        s_add_u32 s26, s17, {pp}
        s_and_b32 s26, s26, 3
        s_mul_i32 s26, s26, {2*HKS*1024}
        s_add_u32 s{48+pp}, s27, s26
        """)
    k("s_waitcnt vmcnt(0) lgkmcnt(0)")
    HR = XF
    for b in range(8):
        m, rs = MR + 2*b, MR + 2*b + 1
        k(f"v_mul_f32 v{TMP}, s45, v{rs}")
        for tau in range(3):
            a = ACC + (b * 3 + tau) * 4
            c = CSR + 4 * tau
            t = TMP + 2 + 2 * tau
            k(f"""
            v_pk_fma_f32 v[{a}:{a+1}], v[{m}:{m+1}], v[{c}:{c+1}], v[{a}:{a+1}] op_sel_hi:[0,1,1] neg_lo:[1,0,0] neg_hi:[1,0,0]
            v_pk_fma_f32 v[{a+2}:{a+3}], v[{m}:{m+1}], v[{c+2}:{c+3}], v[{a+2}:{a+3}] op_sel_hi:[0,1,1] neg_lo:[1,0,0] neg_hi:[1,0,0]
            v_pk_mul_f32 v[{a}:{a+1}], v[{a}:{a+1}], v[{TMP}:{TMP+1}] op_sel_hi:[1,0]
            v_pk_mul_f32 v[{a+2}:{a+3}], v[{a+2}:{a+3}], v[{m}:{m+1}] op_sel:[0,1] op_sel_hi:[1,1]
            v_exp_f32 v{a}, v{a}
            v_exp_f32 v{a+1}, v{a+1}
            """)
        for tau in range(3):
            a = ACC + (b * 3 + tau) * 4
            k(f"""
            v_pk_add_f32 v[{a}:{a+1}], v[{a}:{a+1}], 1.0 op_sel_hi:[1,0]
            v_rcp_f32 v{a}, v{a}
            v_rcp_f32 v{a+1}, v{a+1}
            """)
        for tau in range(3):
            a = ACC + (b * 3 + tau) * 4
            k(f"""
            v_pk_mul_f32 v[{a}:{a+1}], v[{a}:{a+1}], v[{a+2}:{a+3}]
            v_cvt_pk_bf16_f32 v{HR+4*b+tau}, v{a}, v{a+1}
            """)
    k("""
    s_cmp_eq_u32 s17, 3
    s_cbranch_scc1 G1_W3
    """)
    for b in range(8):
        k(f"buffer_store_dwordx3 v[{HR+4*b}:{HR+4*b+2}], v{VH}, s[8:11], s{48+(b>>1)} offen offset:{128*(b&1)}")
    k("s_endpgm")
    k.label("G1_W3")
    for b in range(8):
        for tau in range(3):
            k(f"buffer_store_dword v{HR+4*b+tau}, v{VH}, s[8:11], s{48+(b>>1)} offen offset:{128*(b&1) + 1024*tau}")
    k(f"""
    G1_END:
    s_endpgm
    .p2align 8
    gemm1b_kernel:
    s_mov_b32 s30, {X3T}
    s_branch G1_BODY
    """)
    info = dict(vgpr=256 + 192, sgpr=64, accum=256, grid=256, block=256, lds=G1_LDS)
    return k, info

G2_LDS = 65536 + 8192
def gen_gemm2(final):
    nm = "gemm2b" if final else "gemm2a"
    k = Kern(nm)
    P = nm.upper()
    ACC = 0
    VL, VLAM, VG, T0 = 64, 65, 66, 68
    RES = 84
    def frag(i, which, j):
        n = (i * 8 + which * 4 + j) * 4
        if n < 256: return f"a[{n}:{n+3}]"
        n = n - 256 + 96
        return f"v[{n}:{n+3}]"
    xin = X3T if final else X1T
    k(f"""
    {nm}_kernel:
    s_cmp_ge_u32 s2, 256
    s_cbranch_scc1 {P}_END
    s_load_dwordx2 s[4:5], s[0:1], {KA_WS}
    s_load_dwordx2 s[6:7], s[0:1], {KA_OUT}
    s_and_b32 s12, s2, 7
    s_lshr_b32 s13, s2, 3
    s_lshr_b32 s14, s12, 1
    s_lshl_b32 s14, s14, 3
    s_and_b32 s15, s13, 7
    s_add_u32 s14, s14, s15               ; lt (0..31)
    s_and_b32 s15, s12, 1
    s_lshl_b32 s15, s15, 2
    s_lshr_b32 s16, s13, 3
    s_add_u32 s15, s15, s16               ; dt (0..7)
    v_readfirstlane_b32 s17, v0
    s_lshr_b32 s17, s17, 6                ; w
    v_and_b32 v{VL}, 63, v0
    v_and_b32 v{VLAM}, 15, v0
    v_bfe_u32 v{VG}, v0, 4, 2
    v_lshlrev_b32 v{VL}, 4, v{VL}         ; lane*16
    s_mul_i32 s18, s17, {11*1024}
    s_mul_i32 s19, s14, {4*HKS*1024}
    s_add_u32 s19, s19, s18
    s_add_u32 s20, s19, {HB}
    s_add_u32 s21, s20, {HKS*1024}
    s_add_u32 s22, s21, {HKS*1024}
    s_add_u32 s23, s22, {HKS*1024}
    s_mul_i32 s19, s15, {4*NKS2*1024}
    s_add_u32 s19, s19, s18
    s_add_u32 s24, s19, {WD}
    s_add_u32 s25, s24, {NKS2*1024}
    s_add_u32 s26, s25, {NKS2*1024}
    s_add_u32 s27, s26, {NKS2*1024}
    s_waitcnt lgkmcnt(0)
    """)
    srd(k, 8, 4, WS_BYTES)
    def issue(i):
        for which in range(2):
            for j in range(4):
                k(f"buffer_load_dwordx4 {frag(i, which, j)}, v{VL}, s[8:11], s{20+4*which+j} offen offset:{1024*(i&3)}")
        if (i & 3) == 3:
            for r in range(20, 28): k(f"s_add_u32 s{r}, s{r}, 0x1000")
    PRE = 7
    for i in range(2): issue(i)
    k(f"""
    v_lshrrev_b32 v{T0}, 2, v{VLAM}
    v_and_b32 v{T0+1}, 3, v{VLAM}
    v_lshl_add_u32 v{T0}, v{T0}, 3, v{T0+1}           ; pidx
    s_lshr_b32 s28, s17, 1                ; p / lh
    s_and_b32 s29, s17, 1
    """)
    if not final:
        k(f"""
        s_lshl_b32 s32, s15, 6
        s_lshl_b32 s33, s29, 5
        s_add_u32 s32, s32, s33
        s_lshl_b32 s32, s32, 12               ; d0*4096
        s_lshl_b32 s33, s14, 7
        s_add_u32 s32, s32, s33
        s_lshl_b32 s33, s28, 6
        s_add_u32 s32, s32, s33               ; + l0*2
        s_add_u32 s33, s32, {xin}
        s_add_u32 s34, s33, 0x4000
        s_add_u32 s35, s32, {X2T}
        s_add_u32 s36, s35, 0x4000
        v_lshlrev_b32 v{T0+2}, 12, v{T0}
        v_lshl_add_u32 v{T0+2}, v{VG}, 4, v{T0+2}
        buffer_load_dwordx4 v[{RES}:{RES+3}], v{T0+2}, s[8:11], s33 offen
        buffer_load_dwordx4 v[{RES+4}:{RES+7}], v{T0+2}, s[8:11], s34 offen
        """)
    else:
        k(f"""
        s_lshl_b32 s32, s15, 6
        s_lshl_b32 s33, s17, 4
        s_add_u32 s32, s32, s33
        s_lshl_b32 s32, s32, 12
        s_lshl_b32 s33, s14, 7
        s_add_u32 s32, s32, s33
        s_add_u32 s33, s32, {xin}
        s_add_u32 s34, s33, 0x8000
        v_bfe_u32 v{T0+2}, v0, 3, 3
        v_lshlrev_b32 v{T0+2}, 12, v{T0+2}
        v_and_b32 v{T0+3}, 7, v0
        v_lshl_add_u32 v{T0+2}, v{T0+3}, 4, v{T0+2}
        s_lshl_b32 s35, s17, 11
        s_add_u32 s35, s35, 0x10000
        s_mov_b32 m0, s35
        s_add_u32 s35, s35, 0x400
        buffer_load_dwordx4 v{T0+2}, s[8:11], s33 offen lds
        s_mov_b32 m0, s35
        s_nop 0
        buffer_load_dwordx4 v{T0+2}, s[8:11], s34 offen lds
        """)
    for i in range(2, PRE): issue(i)
    issued = PRE
    for i in range(11):
        n_after = 8 * (issued - (i + 1)) + (2 if i < 2 else 0)
        k(f"s_waitcnt vmcnt({n_after})")
        cnt = 0
        for lb in range(4):
            for db in range(4):
                a = ACC + (lb * 4 + db) * 4
                c = "0" if i == 0 else f"v[{a}:{a+3}]"
                A, B = frag(i, 0, lb), frag(i, 1, db)
                if final: A, B = B, A
                k(f"v_mfma_f32_16x16x32_bf16 v[{a}:{a+3}], {A}, {B}, {c}")
                cnt += 1
                if cnt == 4 and issued < 11:
                    issue(issued); issued += 1
    k(f"""
    s_lshl_b32 s37, s17, 12
    v_add_u32 v{T0+4}, s37, v{VL}
    s_lshl_b32 s37, s17, 14
    v_add_u32 v{T0+5}, s37, v{VL}
    """)
    for lb in range(4):
        for db in range(4):
            a = ACC + (lb * 4 + db) * 4
            wd = 2 * (lb >> 1) + (db >> 1); t = 2 * (lb & 1) + (db & 1)
            k(f"ds_write_b128 v{T0+4}, v[{a}:{a+3}] offset:{wd*16384 + t*1024}")
    k("""
    s_waitcnt lgkmcnt(0)
    s_barrier
    """)
    for src in range(4):
        for t in range(4):
            a = ACC + (src * 4 + t) * 4
            k(f"ds_read_b128 v[{a}:{a+3}], v{T0+5} offset:{src*4096 + t*1024}")
    if final:
        k(f"""
        v_lshrrev_b32 v{T0+6}, 2, v{VLAM}
        v_lshl_add_u32 v{T0+6}, v{VG}, 3, v{T0+6}
        v_lshlrev_b32 v{T0+6}, 7, v{T0+6}
        v_lshl_add_u32 v{T0+6}, v{T0+1}, 4, v{T0+6}
        s_lshl_b32 s37, s29, 12
        s_lshl_b32 s38, s28, 6
        s_add_u32 s37, s37, s38
        s_add_u32 s37, s37, 0x10000
        v_add_u32 v{T0+6}, s37, v{T0+6}
        ds_read_b64_tr_b16 v[{RES}:{RES+1}], v{T0+6}
        ds_read_b64_tr_b16 v[{RES+2}:{RES+3}], v{T0+6} offset:512
        ds_read_b64_tr_b16 v[{RES+4}:{RES+5}], v{T0+6} offset:8
        ds_read_b64_tr_b16 v[{RES+6}:{RES+7}], v{T0+6} offset:520
        """)
    k("s_waitcnt lgkmcnt(0)")
    for r in range(16):
        k(f"v_add_f32 v{ACC+r}, v{ACC+r}, v{ACC+16+r}")
        k(f"v_add_f32 v{ACC+32+r}, v{ACC+32+r}, v{ACC+48+r}")
    for r in range(16):
        k(f"v_add_f32 v{ACC+r}, v{ACC+r}, v{ACC+32+r}")
    OUT = 32
    for o in range(2):
        tiles = (o, 2 + o) if not final else (2 * o, 2 * o + 1)
        for h in range(2):
            for pr in range(2):
                y0 = ACC + 4 * tiles[h] + 2 * pr; y1 = y0 + 1
                x = RES + 4 * o + 2 * h + pr
                dst = OUT + 4 * o + 2 * h + pr
                k(f"""
                v_cvt_pk_bf16_f32 v{y1}, v{y0}, v{y1}
                v_lshlrev_b32 v{y0}, 16, v{y1}
                v_and_b32 v{y1}, 0xffff0000, v{y1}
                v_lshlrev_b32 v{T0+8}, 16, v{x}
                v_and_b32 v{T0+9}, 0xffff0000, v{x}
                v_add_f32 v{y0}, v{y0}, v{T0+8}
                v_add_f32 v{y1}, v{y1}, v{T0+9}
                v_cvt_pk_bf16_f32 v{dst}, v{y0}, v{y1}
                """)
    if final:
        srd(k, 40, 6, L * D * 2)
        k(f"""
        s_lshl_b32 s32, s14, 6
        s_lshl_b32 s33, s28, 5
        s_add_u32 s32, s32, s33
        s_lshl_b32 s32, s32, 10
        s_lshl_b32 s33, s15, 7
        s_add_u32 s32, s32, s33
        s_lshl_b32 s33, s29, 6
        s_add_u32 s32, s32, s33
        s_add_u32 s33, s32, 0x1000
        v_lshlrev_b32 v{T0+2}, 10, v{T0}
        v_lshl_add_u32 v{T0+2}, v{VG}, 4, v{T0+2}
        buffer_store_dwordx4 v[{OUT}:{OUT+3}], v{T0+2}, s[40:43], s32 offen
        buffer_store_dwordx4 v[{OUT+4}:{OUT+7}], v{T0+2}, s[40:43], s33 offen
        """)
    else:
        k(f"""
        buffer_store_dwordx4 v[{OUT}:{OUT+3}], v{T0+2}, s[8:11], s35 offen
        buffer_store_dwordx4 v[{OUT+4}:{OUT+7}], v{T0+2}, s[8:11], s36 offen
        """)
        Q = 40
        for j in range(4):
            k(f"""
            v_lshlrev_b32 v{T0+8}, 16, v{OUT+j}
            v_and_b32 v{T0+9}, 0xffff0000, v{OUT+j}
            v_lshlrev_b32 v{T0+10}, 16, v{OUT+4+j}
            v_and_b32 v{T0+11}, 0xffff0000, v{OUT+4+j}
            v_add_f32 v{Q+4*j}, v{T0+8}, v{T0+10}
            v_mul_f32 v{Q+4*j+1}, v{T0+8}, v{T0+8}
            v_fmac_f32 v{Q+4*j+1}, v{T0+10}, v{T0+10}
            v_add_f32 v{Q+4*j+2}, v{T0+9}, v{T0+11}
            v_mul_f32 v{Q+4*j+3}, v{T0+9}, v{T0+9}
            v_fmac_f32 v{Q+4*j+3}, v{T0+11}, v{T0+11}
            """)
        for q in range(8):
            k(f"v_add_f32_dpp v{Q+q}, v{Q+q}, v{Q+q} row_ror:8 row_mask:0xf bank_mask:0x3")
            k(f"v_add_f32_dpp v{Q+q}, v{Q+q+8}, v{Q+q+8} row_ror:8 row_mask:0xf bank_mask:0xc")
        for q in range(4):
            k(f"v_add_f32_dpp v{Q+q}, v{Q+q}, v{Q+q} row_shl:4 row_mask:0xf bank_mask:0x5")
            k(f"v_add_f32_dpp v{Q+q}, v{Q+q+4}, v{Q+q+4} row_shr:4 row_mask:0xf bank_mask:0xa")
        for q in range(4):
            k(f"v_add_f32_dpp v{Q+q}, v{Q+q}, v{Q+q} quad_perm:[1,0,3,2] row_mask:0xf bank_mask:0xf")
        for q in range(4):
            k(f"v_add_f32_dpp v{Q+q}, v{Q+q}, v{Q+q} quad_perm:[2,3,0,1] row_mask:0xf bank_mask:0xf")
        k(f"""
        v_cmp_eq_u32 s[32:33], 1, v{T0+1}
        v_cmp_eq_u32 s[38:39], 2, v{T0+1}
        v_cmp_eq_u32 s[40:41], 3, v{T0+1}
        v_cndmask_b32 v{Q}, v{Q}, v{Q+1}, s[32:33]
        v_cndmask_b32 v{Q}, v{Q}, v{Q+2}, s[38:39]
        v_cndmask_b32 v{Q}, v{Q}, v{Q+3}, s[40:41]
        s_lshl_b32 s37, s14, 9
        s_lshl_b32 s42, s28, 8
        s_add_u32 s37, s37, s42
        s_add_u32 s37, s37, {ST1}
        v_lshrrev_b32 v{T0+8}, 2, v{VL}       ; lane*4
        buffer_atomic_add_f32 v{Q}, v{T0+8}, s[8:11], s37 offen
        """)
    k(f"""
    {P}_END:
    s_endpgm
    """)
    info = dict(vgpr=192 + 256, sgpr=64, accum=192, grid=256, block=256, lds=G2_LDS)
    return k, info

def emit(path, launches=None):
    kp, ip = gen_prep()
    kc, ic = gen_conv()
    k1, i1 = gen_gemm1()
    k2a, i2a = gen_gemm2(False)
    k2b, i2b = gen_gemm2(True)
    infos = {"prep_kernel": ip, "conv1_kernel": ic, "conv2_kernel": ic, "gemm1a_kernel": i1, "gemm1b_kernel": i1, "gemm2a_kernel": i2a, "gemm2b_kernel": i2b}
    order = launches or ["prep_kernel", "conv1_kernel", "gemm1a_kernel", "gemm2a_kernel", "conv2_kernel", "gemm1b_kernel", "gemm2b_kernel"]
    hdr = open("cdna_kernels/" + NAME + ".s.ref").read().split("; Override launch")[0]
    out = [hdr.rstrip("\n")]
    for n in order:
        i = infos[n]
        out.append(f"; @launch kernel={n} grid=({i['grid']},1,1) block=({i['block']},1,1) lds={i['lds']}")
    out.append('.amdgcn_target "amdgcn-amd-amdhsa--gfx950"\n.text')
    for n in infos:
        out.append(f".globl {n}\n.type {n},@function")
    out.append(".p2align 8\nprep_kernel:\n" + kp.text())
    for kk in (kc, k1, k2a, k2b):
        out.append(".p2align 8\n" + kk.text())
    for n, i in infos.items():
        out.append(descriptor(n, i["vgpr"], i["sgpr"], i["accum"]))
    open(path, "w").write("\n".join(out))

if __name__ == "__main__":
    emit(sys.argv[1] if len(sys.argv) > 1 else "cdna_kernels/" + NAME + ".s")
```

```python
import sys, struct
from asmlib import *

NAME = "interleave_layers__ssm_conv_s4d__glu_gated_glu__prompt"
KA_U, KA_LOGA, KA_AIM, KA_CRE, KA_CIM, KA_LOGDT, KA_DSKIP, KA_BX, KA_WG, KA_WU, KA_WD, KA_OUT, KA_DBG, KA_WS = [8 * i for i in range(14)]
XT0, X1T, X2T, X3T = 0x3000000, 0x3300000, 0x3600000, 0x3900000
ST0, ST1, CSUM = 0x0800000, 0x0804000, 0x0808000
WP = 0x0C00000
WD = 0x1000000
HB = 0x1200000
HB1 = 0x2200000
ZR = 0x0810000; STX = 0x0810000; FLG = 0x0820000
KP = 0x1800000; KCS = 4160; KP_STRIDE = 4 * KCS
WS_BYTES = 0x10000000
L, D, F, NST = 2048, 512, 1376, 128
NKS2 = 44
HKS = 45

import os
XP = int(os.environ.get('XP', '4352'))
PREP_W_POL = os.environ.get('PREP_W_POL', 'sc1')
PREP_K_POL = os.environ.get('PREP_K_POL', '')
PREP_X_POL = os.environ.get('PREP_X_POL', 'sc1')
DIAG = int(os.environ.get("DIAG", "0"))
DIAG_OFF = 0x4000000
_Kern = Kern
class Kern(_Kern):
    def __call__(self, s):
        for l in s.strip("\n").split("\n"):
            t = l.strip()
            if t.startswith("@"):
                if not DIAG: continue
                p = t.split()
                if p[0] == "@KID":
                    super().__call__(f"s_mov_b32 s59, {DIAG_OFF + int(p[1]) * 0x80000}\ns_mov_b32 s57, {3 if int(p[1]) in (2, 5) else 2}")
                elif p[0] == "@INIT":
                    super().__call__("v_readfirstlane_b32 s58, v0\ns_memrealtime s[64:65]\ns_memtime s[66:67]")
                elif p[0] == "@STAMP":
                    i = int(p[1]); super().__call__(f"s_memtime s[{64+2*i}:{65+2*i}]")
                elif p[0] == "@FLUSH":
                    n = int(p[1])
                    super().__call__(f"""
                    s_waitcnt vmcnt(0)
                    s_memtime s[{64+2*n}:{65+2*n}]
                    s_memrealtime s[{66+2*n}:{67+2*n}]
                    s_waitcnt lgkmcnt(0)
                    s_mov_b64 exec, -1
                    s_lshr_b32 s58, s58, 6
                    s_lshl_b32 s61, s2, s57
                    s_add_u32 s60, s58, s61
                    s_lshl_b32 s60, s60, 6
                    s_add_u32 s60, s60, s59
                    v_mov_b32 v1, s60
                    """)
                    for i in range(n + 2):
                        super().__call__(f"v_mov_b32 v2, s{64+2*i}\nglobal_store_dword v1, v2, s[4:5] offset:{4*i}")
                    super().__call__("s_getreg_b32 s61, hwreg(HW_REG_XCC_ID)\nv_mov_b32 v2, s61\nglobal_store_dword v1, v2, s[4:5] offset:60")
                continue
            super().__call__(l)

def f2u(x): return struct.unpack("<I", struct.pack("<f", x))[0]
def fl(x): return "0x%08x" % f2u(x)
LOG2E = 1.4426950408889634
L2E_HI = struct.unpack("<f", struct.pack("<f", LOG2E))[0]
L2E_LO = LOG2E - L2E_HI
LN2 = 0.6931471805599453

def srd(k, s, base, nbytes):
    k(f"""
    s_mov_b32 s{s}, s{base}
    s_and_b32 s{s+1}, s{base+1}, 0xffff
    s_mov_b32 s{s+2}, {nbytes:#x}
    s_mov_b32 s{s+3}, 0x20000
    """)

def rnd_bf16(k, dst, a, b=None):
    k(f"v_cvt_pk_bf16_f32 v{dst}, v{a}, v{b if b is not None else a}")

def exp_acc(k, dst, x, t0, t1):
    k(f"""
    v_mul_f32 v{t0}, s40, v{x}
    v_fma_f32 v{t1}, s40, v{x}, -v{t0}
    v_fma_f32 v{t1}, s41, v{x}, v{t1}
    v_exp_f32 v{dst}, v{t0}
    v_mul_f32 v{t1}, s42, v{t1}
    v_fma_f32 v{dst}, v{dst}, v{t1}, v{dst}
    """)

N_K, N_T, N_S, N_W, N_D, N_C = 512, 256, 256, 240, 176, 44
B_T = N_K; B_S = B_T + N_T; B_W = B_S + N_S; B_D = B_W + N_W; B_C = B_D + N_D; PREP_WGS = B_C + N_C
PREP_LDS = 28672

def gen_prep():
    k = Kern("prep_kernel")
    k(f"""
    @KID 0
    @INIT
    s_load_dwordx2 s[4:5], s[0:1], {KA_WS}
    s_cmp_lt_u32 s2, {B_T}
    s_cbranch_scc1 P_KGEN
    s_cmp_lt_u32 s2, {B_S}
    s_cbranch_scc1 P_TR
    s_cmp_lt_u32 s2, {B_W}
    s_cbranch_scc1 P_ST
    s_cmp_lt_u32 s2, {B_D}
    s_cbranch_scc1 P_W
    s_cmp_lt_u32 s2, {B_C}
    s_cbranch_scc1 P_D
    s_cmp_lt_u32 s2, {PREP_WGS}
    s_cbranch_scc1 P_C
    s_endpgm
    """)
    k.label("P_KGEN")
    TB = 16384
    k(f"""
    s_load_dwordx4 s[8:11], s[0:1], {KA_LOGA}
    s_load_dwordx4 s[12:15], s[0:1], {KA_CRE}
    s_load_dwordx2 s[16:17], s[0:1], {KA_LOGDT}
    s_mov_b32 s40, {fl(L2E_HI)}
    s_mov_b32 s41, {fl(L2E_LO)}
    s_mov_b32 s42, {fl(LN2)}
    v_and_b32 v1, 127, v0
    s_lshl_b32 s3, s2, 8
    v_lshl_add_u32 v2, v1, 1, s3
    s_lshl_b32 s18, s2, 1
    v_mov_b32 v3, s18
    v_readfirstlane_b32 s19, v0
    s_lshr_b32 s19, s19, 6                ; wave
    s_waitcnt lgkmcnt(0)
    global_load_ushort v4, v2, s[8:9]
    global_load_ushort v8, v3, s[16:17]
    global_load_ushort v5, v2, s[10:11]
    global_load_ushort v6, v2, s[12:13]
    global_load_ushort v7, v2, s[14:15]
    v_and_b32 v20, 15, v0                 ; i / j
    v_bfe_u32 v21, v0, 4, 2               ; g
    ; hi0 = 128*(i>>3) + (i&7)
    v_lshrrev_b32 v23, 3, v20
    v_and_b32 v24, 7, v20
    v_lshl_add_u32 v23, v23, 7, v24
    v_cvt_f32_u32 v30, v23
    ; hi1 = (g''<2 ? 256+2g'' : 256*g'') + 128*((i>>1)&1) + 4*(i&1)
    v_lshrrev_b32 v23, 2, v20
    v_lshlrev_b32 v24, 1, v23
    v_add_u32 v24, 0x100, v24
    v_lshlrev_b32 v25, 8, v23
    v_cmp_gt_u32 vcc, 2, v23
    v_cndmask_b32 v24, v25, v24, vcc
    v_bfe_u32 v25, v20, 1, 1
    v_lshl_add_u32 v24, v25, 7, v24
    v_and_b32 v25, 1, v20
    v_lshl_add_u32 v24, v25, 2, v24
    v_cvt_f32_u32 v31, v24
    v_lshlrev_b32 v23, 7, v20
    v_add_u32 v23, 0x400, v23
    v_cvt_f32_u32 v32, v23                ; hi2
    v_lshlrev_b32 v23, 3, v20
    v_cvt_f32_u32 v33, v23                ; lo
    s_lshl_b32 s20, s19, 9
    v_lshl_add_u32 v34, v21, 6, s20
    v_lshrrev_b32 v23, 1, v21
    v_and_b32 v24, 1, v21
    v_lshlrev_b32 v24, 2, v24
    v_lshl_add_u32 v35, v23, 7, v24       ; tile0: 128*(g'>>1) + 4*(g'&1)
    v_lshlrev_b32 v24, 1, v21
    v_add_u32 v24, 0x100, v24
    v_lshlrev_b32 v25, 8, v21
    v_cmp_gt_u32 vcc, 2, v21
    v_cndmask_b32 v36, v25, v24, vcc      ; tile1
    v_lshlrev_b32 v24, 9, v21
    v_add_u32 v37, 0x400, v24             ; tile2
    s_cmp_eq_u32 s19, 1
    s_cselect_b64 vcc, -1, 0
    s_cselect_b32 s21, 16, 4
    s_cselect_b32 s22, 0x200, 8
    v_cndmask_b32 v35, v35, v36, vcc
    s_cmp_eq_u32 s19, 2
    s_cselect_b64 vcc, -1, 0
    s_cselect_b32 s21, 0x200, s21
    s_cselect_b32 s22, 0x400, s22
    v_cndmask_b32 v35, v35, v37, vcc
    v_lshl_add_u32 v35, v20, 3, v35
    v_lshlrev_b32 v35, 2, v35
    v_add_u32 v36, s21, v35
    v_add_u32 v37, s22, v35
    v_add_u32 v38, s21, v37
    v_and_b32 v39, 63, v0
    v_lshlrev_b32 v39, 4, v39             ; lane*16
    s_waitcnt vmcnt(3)
    @STAMP 2
    v_lshlrev_b32 v4, 16, v4
    v_lshlrev_b32 v8, 16, v8
    """)
    exp_acc(k, 10, 8, 16, 17)
    exp_acc(k, 11, 4, 18, 19)
    k(f"""
    v_cvt_pk_bf16_f32 v10, v10, v11
    v_and_b32 v11, 0xffff0000, v10        ; eA
    v_lshlrev_b32 v10, 16, v10            ; dt
    v_mul_f32 v12, v11, v10
    v_mul_f32 v12, s40, v12
    v_sub_f32 v12, 0, v12
    s_waitcnt vmcnt(0)
    v_lshlrev_b32 v5, 16, v5
    v_lshlrev_b32 v6, 16, v6
    v_lshlrev_b32 v7, 16, v7
    v_mul_f32 v13, v5, v10
    v_mul_f32 v13, 0.15915494, v13
    v_add_f32 v10, v10, v10
    v_mul_f32 v14, v6, v10                ; 2*Cre*dt
    v_mul_f32 v15, v7, v10                ; 2*Cim*dt
    v_lshlrev_b32 v9, 4, v1
    ds_write_b128 v9, v[12:15]
    v_max3_f32 v16, |v14|, |v15|, 0
    v_max_f32_dpp v16, v16, v16 row_shr:1 row_mask:0xf bank_mask:0xf
    v_max_f32_dpp v16, v16, v16 row_shr:2 row_mask:0xf bank_mask:0xf
    v_max_f32_dpp v16, v16, v16 row_shr:4 row_mask:0xf bank_mask:0xf
    v_max_f32_dpp v16, v16, v16 row_shr:8 row_mask:0xf bank_mask:0xf
    v_max_f32_dpp v16, v16, v16 row_bcast:15 row_mask:0xa bank_mask:0xf
    v_max_f32_dpp v16, v16, v16 row_bcast:31 row_mask:0xc bank_mask:0xf
    v_readlane_b32 s23, v16, 63
    s_and_b32 s24, s19, 1
    s_lshl_b32 s24, s24, 2
    v_mov_b32 v17, s24
    v_mov_b32 v16, s23
    ds_write_b32 v17, v16 offset:2048
    v_mov_b32 v18, 0
    s_waitcnt lgkmcnt(0)
    s_barrier
    @STAMP 3
    ds_read_b64 v[16:17], v18 offset:2048
    s_mov_b32 s20, 0
    s_waitcnt lgkmcnt(0)
    v_max_f32 v16, v16, v17
    v_bfe_u32 v16, v16, 23, 8
    v_max_u32 v16, 14, v16
    v_sub_u32 v17, 0x8c, v16
    v_cvt_f32_i32 v29, v17                ; kf = 140 - e'
    v_mov_b32 v28, 0
    v_subrev_u32 v16, 13, v16
    v_lshlrev_b32 v27, 23, v16            ; Sinv
    P_KLOOP:
    ds_read_b128 v[52:55], v34
    ds_read_b128 v[56:59], v34 offset:16
    ds_read_b128 v[60:63], v34 offset:32
    ds_read_b128 v[64:67], v34 offset:48
    v_add_u32 v34, 0x100, v34
    """)
    for nn in range(4):
        p = 52 + 4 * nn
        k(f"""
        s_waitcnt lgkmcnt({3-nn})
        v_pk_mul_f32 v[2:3], v[30:31], v[{p}:{p+1}] op_sel_hi:[1,0]
        v_pk_fma_f32 v[4:5], v[32:33], v[{p}:{p+1}], v[28:29] op_sel_hi:[1,0,1]
        v_pk_mul_f32 v[6:7], v[30:31], v[{p}:{p+1}] op_sel:[0,1] op_sel_hi:[1,1]
        v_pk_mul_f32 v[8:9], v[32:33], v[{p}:{p+1}] op_sel:[0,1] op_sel_hi:[1,1]
        v_exp_f32 v2, v2
        v_exp_f32 v3, v3
        v_exp_f32 v4, v4
        v_exp_f32 v5, v5
        v_fract_f32 v6, v6
        v_fract_f32 v7, v7
        v_fract_f32 v8, v8
        v_fract_f32 v9, v9
        v_cos_f32 v10, v6
        v_sin_f32 v11, v6
        v_cos_f32 v12, v7
        v_sin_f32 v13, v7
        v_cos_f32 v14, v8
        v_sin_f32 v15, v8
        v_cos_f32 v16, v9
        v_sin_f32 v17, v9
        v_pk_mul_f32 v[10:11], v[10:11], v[2:3] op_sel_hi:[1,0]
        v_pk_mul_f32 v[12:13], v[12:13], v[2:3] op_sel:[0,1] op_sel_hi:[1,1]
        v_pk_mul_f32 v[14:15], v[14:15], v[4:5] op_sel_hi:[1,0]
        v_pk_mul_f32 v[16:17], v[16:17], v[4:5] op_sel:[0,1] op_sel_hi:[1,1]
        v_cvt_pk_f16_f32 v{68+nn}, v10, v11
        v_cvt_pk_f16_f32 v{72+nn}, v12, v13
        v_cvt_pk_f16_f32 v{76+nn}, v14, v15
        v_pk_mul_f32 v[18:19], v[16:17], v[{p+2}:{p+3}] op_sel_hi:[1,0]
        v_pk_fma_f32 v[18:19], v[16:17], v[{p+2}:{p+3}], v[18:19] op_sel:[1,1,0] op_sel_hi:[0,1,1] neg_lo:[1,0,0]
        v_cvt_pk_f16_f32 v{80+nn}, v18, -v19
        """)
    k(f"""
    s_cmp_eq_u32 s20, 1
    s_cbranch_scc1 P_KL2
    v_mfma_f32_16x16x32_f16 v[40:43], v[68:71], v[80:83], 0
    v_mfma_f32_16x16x32_f16 v[44:47], v[72:75], v[80:83], 0
    v_mfma_f32_16x16x32_f16 v[48:51], v[76:79], v[80:83], 0
    s_mov_b32 s20, 1
    s_branch P_KLOOP
    P_KL2:
    v_mfma_f32_16x16x32_f16 v[40:43], v[68:71], v[80:83], v[40:43]
    v_mfma_f32_16x16x32_f16 v[44:47], v[72:75], v[80:83], v[44:47]
    v_mfma_f32_16x16x32_f16 v[48:51], v[76:79], v[80:83], v[48:51]
    @STAMP 4
    s_mul_i32 s20, s19, 3072
    v_add_u32 v2, s20, v39
    s_lshl_b32 s20, s19, 10
    v_add_u32 v3, s20, v39
    """)
    k("v_lshlrev_b32 v1, 3, v0")
    for e in range(11):
        k(f"v_add_u32 v{52+e}, {e-3}, v1")
        if e < 3: k(f"v_max_i32 v{52+e}, 0, v{52+e}")
        k(f"v_cvt_f32_u32 v{52+e}, v{52+e}")
    k(f"""
    ds_write_b128 v2, v[40:43] offset:4096
    ds_write_b128 v2, v[44:47] offset:5120
    ds_write_b128 v2, v[48:51] offset:6144
    """)
    for e in range(0, 11, 2):
        k(f"v_cvt_pk_bf16_f32 v{64+e//2}, v{52+e}, v{min(53+e, 62)}")
    for e in range(0, 11, 2):
        k(f"v_lshlrev_b32 v{52+e}, 16, v{64+e//2}")
        if e < 10: k(f"v_and_b32 v{53+e}, 0xffff0000, v{64+e//2}")
    for e in range(11):
        k(f"v_cvt_u32_f32 v{52+e}, v{52+e}")
        k(f"v_lshlrev_b32 v{52+e}, 2, v{52+e}")
    k(f"""
    s_waitcnt lgkmcnt(0)
    s_barrier
    s_cmp_eq_u32 s19, 3
    s_cbranch_scc1 P_KS
    ds_read_b128 v[40:43], v3 offset:4096
    ds_read_b128 v[44:47], v3 offset:{4096+3072}
    ds_read_b128 v[48:51], v3 offset:{4096+6144}
    ds_read_b128 v[4:7], v3 offset:{4096+9216}
    s_waitcnt lgkmcnt(2)
    v_pk_add_f32 v[40:41], v[40:41], v[44:45]
    v_pk_add_f32 v[42:43], v[42:43], v[46:47]
    s_waitcnt lgkmcnt(0)
    v_pk_add_f32 v[48:49], v[48:49], v[4:5]
    v_pk_add_f32 v[50:51], v[50:51], v[6:7]
    v_pk_add_f32 v[40:41], v[40:41], v[48:49]
    v_pk_add_f32 v[42:43], v[42:43], v[50:51]
    v_mul_f32 v40, v27, v40
    v_mul_f32 v41, v27, v41
    v_mul_f32 v42, v27, v42
    v_mul_f32 v43, v27, v43
    ds_write_b32 v35, v40 offset:{TB}
    ds_write_b32 v36, v41 offset:{TB}
    ds_write_b32 v37, v42 offset:{TB}
    ds_write_b32 v38, v43 offset:{TB}
    P_KS:
    s_waitcnt lgkmcnt(0)
    s_barrier
    @STAMP 5
    """)
    for e in range(11):
        k(f"ds_read_b32 v{52+e}, v{52+e} offset:{TB}")
    k(f"""
    s_mul_i32 s3, s2, {KP_STRIDE}
    s_add_u32 s3, s3, {KP}
    v_lshlrev_b32 v1, 4, v0
    v_add_u32 v1, s3, v1
    v_add_u32 v2, {KCS}, v1
    v_add_u32 v3, {2*KCS}, v1
    v_add_u32 v4, {3*KCS}, v1
    v_mov_b32 v12, 0
    v_mov_b32 v13, 0
    v_mov_b32 v14, 0
    v_mov_b32 v15, 0
    v_cmp_eq_u32 vcc, 0, v0
    v_lshrrev_b32 v5, 2, v0
    v_mul_u32_u24 v5, {KCS}, v5
    v_and_b32 v6, 3, v0
    v_lshl_add_u32 v5, v6, 4, v5
    v_add_u32 v5, s3, v5
    v_cmp_gt_u32 s[24:25], 3, v6
    v_cmp_gt_u32 s[26:27], 16, v0
    s_and_b64 s[24:25], s[24:25], s[26:27]
    s_waitcnt lgkmcnt(0)
    v_cndmask_b32 v52, v52, v12, vcc
    v_cndmask_b32 v53, v53, v12, vcc
    v_cndmask_b32 v54, v54, v12, vcc
    """)
    for sft in range(4):
        for j in range(4):
            k(f"v_cvt_pk_bf16_f32 v{64+4*sft+j}, v{52+sft+7-2*j}, v{52+sft+6-2*j}")
        k(f"global_store_dwordx4 v{1+sft}, v[{64+4*sft}:{67+4*sft}], s[4:5] offset:48 {PREP_K_POL}")
    k(f"""
    s_mov_b64 exec, s[24:25]
    s_cbranch_execz P_KEND
    global_store_dwordx4 v5, v[12:15], s[4:5]
    P_KEND:
    @FLUSH 6
    s_endpgm
    """)
    k.label("P_TR")
    PITCH = 144
    k(f"""
    s_load_dwordx2 s[8:9], s[0:1], {KA_U}
    s_sub_u32 s3, s2, {B_T}
    s_lshr_b32 s10, s3, 3                 ; lt (0..31)
    s_and_b32 s11, s3, 7                  ; dt (0..7)
    v_lshrrev_b32 v1, 3, v0               ; row 0..31
    v_and_b32 v2, 7, v0                   ; chunk
    s_lshl_b32 s12, s10, 16               ; lt*64*1024
    s_lshl_b32 s13, s11, 7
    s_add_u32 s12, s12, s13
    v_lshlrev_b32 v3, 10, v1
    v_lshl_add_u32 v3, v2, 4, v3
    v_add_u32 v3, s12, v3
    v_add_u32 v4, 0x8000, v3
    s_waitcnt lgkmcnt(0)
    global_load_dwordx4 v[8:11], v3, s[8:9]
    global_load_dwordx4 v[12:15], v4, s[8:9]
    v_mul_u32_u24 v5, {PITCH}, v1
    v_lshl_add_u32 v5, v2, 4, v5
    v_and_b32 v6, 15, v0                  ; lam
    v_bfe_u32 v7, v0, 4, 2                ; g
    v_lshrrev_b32 v16, 6, v0              ; w
    v_lshrrev_b32 v17, 2, v6              ; r = lam>>2
    v_lshl_add_u32 v17, v7, 3, v17        ; row = 8g + r
    v_mul_u32_u24 v17, {PITCH}, v17
    v_and_b32 v18, 3, v6
    v_lshl_add_u32 v17, v18, 3, v17       ; + c*8
    v_lshl_add_u32 v17, v16, 5, v17       ; + w*32 bytes
    s_mul_i32 s12, s11, {64*XP}
    s_lshl_b32 s13, s10, 7
    s_add_u32 s12, s12, s13
    s_add_u32 s12, s12, {XT0}
    v_lshl_add_u32 v19, v16, 4, v6
    v_mul_u32_u24 v19, {XP}, v19
    v_lshl_add_u32 v19, v7, 4, v19
    v_add_u32 v19, s12, v19
    s_waitcnt vmcnt(0)
    ds_write_b128 v5, v[8:11]
    ds_write_b128 v5, v[12:15] offset:{32*PITCH}
    s_waitcnt lgkmcnt(0)
    s_barrier
    ds_read_b64_tr_b16 v[8:9], v17
    ds_read_b64_tr_b16 v[10:11], v17 offset:{4*PITCH}
    ds_read_b64_tr_b16 v[12:13], v17 offset:{32*PITCH}
    ds_read_b64_tr_b16 v[14:15], v17 offset:{36*PITCH}
    s_waitcnt lgkmcnt(0)
    global_store_dwordx4 v19, v[8:11], s[4:5] {PREP_X_POL}
    global_store_dwordx4 v19, v[12:15], s[4:5] offset:64 {PREP_X_POL}
    @FLUSH 2
    s_endpgm
    """)
    k.label("P_ST")
    k(f"""
    s_load_dwordx2 s[8:9], s[0:1], {KA_U}
    s_sub_u32 s3, s2, {B_S}
    v_lshrrev_b32 v1, 6, v0
    v_and_b32 v2, 63, v0
    s_lshl_b32 s10, s3, 13                ; 8 rows * 1024
    v_lshlrev_b32 v3, 11, v1
    v_lshl_add_u32 v3, v2, 4, v3
    v_add_u32 v3, s10, v3
    s_waitcnt lgkmcnt(0)
    global_load_dwordx4 v[8:11], v3, s[8:9]
    global_load_dwordx4 v[12:15], v3, s[8:9] offset:1024
    s_lshl_b32 s10, s3, 4
    v_lshlrev_b32 v4, 12, v1
    v_add_u32 v4, s10, v4                 ; w*4096 + wg*16
    v_add_u32 v5, {ST0}, v4
    v_add_u32 v6, {ST1}, v4
    s_waitcnt vmcnt(0)
    """)
    for row, (base, sm, sq) in enumerate([(8, 20, 21), (12, 22, 23)]):
        for j in range(4):
            k(f"v_lshlrev_b32 v16, 16, v{base+j}")
            k(f"v_and_b32 v17, 0xffff0000, v{base+j}")
            if j == 0:
                k(f"v_add_f32 v{sm}, v16, v17")
                k(f"v_mul_f32 v{sq}, v16, v16")
            else:
                k(f"v_add_f32 v{sm}, v{sm}, v16")
                k(f"v_add_f32 v{sm}, v{sm}, v17")
                k(f"v_fmac_f32 v{sq}, v16, v16")
            k(f"v_fmac_f32 v{sq}, v17, v17")
    for sh in ("row_shr:1", "row_shr:2", "row_shr:4", "row_shr:8"):
        for r in range(20, 24):
            k(f"v_add_f32_dpp v{r}, v{r}, v{r} {sh} row_mask:0xf bank_mask:0xf bound_ctrl:0")
    for r in range(20, 24):
        k(f"v_add_f32_dpp v{r}, v{r}, v{r} row_bcast:15 row_mask:0xa bank_mask:0xf")
    for r in range(20, 24):
        k(f"v_add_f32_dpp v{r}, v{r}, v{r} row_bcast:31 row_mask:0xc bank_mask:0xf")
    k(f"""
    v_mov_b32 v24, 0
    v_mov_b32 v25, 0
    v_mov_b32 v26, 0
    v_mov_b32 v27, 0
    s_lshl_b32 s10, s3, 9
    s_add_u32 s10, s10, {ZR}
    v_and_b32 v7, 31, v0
    v_lshl_add_u32 v7, v7, 4, s10
    global_store_dwordx4 v7, v[24:27], s[4:5]
    v_cmp_eq_u32 vcc, 63, v2
    s_and_saveexec_b64 s[22:23], vcc
    global_store_dwordx4 v5, v[20:23], s[4:5]
    global_store_dwordx4 v6, v[24:27], s[4:5]
    @FLUSH 2
    s_endpgm
    """)
    k.label("P_W")
    WPITCH = 400
    k(f"""
    s_load_dwordx4 s[8:11], s[0:1], {KA_WG}
    s_sub_u32 s3, s2, {B_W}
    s_lshr_b32 s12, s3, 4                 ; ft
    s_and_b32 s13, s3, 15                 ; s
    """)
    k(f"""
    s_mul_i32 s14, s13, {32*F*2}
    s_mul_i32 s15, s12, 192
    s_add_u32 s14, s14, s15
    s_mul_i32 s16, s12, 12
    s_mov_b32 s17, 0x15555556
    """)
    k(f"v_mov_b32 v5, {F//8}")
    for i in range(2):
        k(f"""
        v_add_u32 v1, {256*i}, v0
        v_mul_hi_u32 v2, v1, s17
        v_mul_u32_u24 v3, 12, v2
        v_sub_u32 v3, v1, v3                  ; chunk
        v_mul_u32_u24 v4, {F*2}, v2
        v_lshl_add_u32 v4, v3, 4, v4
        v_add_u32 v{40+i}, s14, v4
        v_mul_u32_u24 v4, {WPITCH}, v2
        v_lshl_add_u32 v{42+i}, v3, 5, v4
        v_add_u32 v3, s16, v3
        v_cmp_gt_u32 s[{24+2*i}:{25+2*i}], v5, v3
        """)
    for r in range(8, 24): k(f"v_mov_b32 v{r}, 0")
    k(f"""
    v_cmp_gt_u32 vcc, 0x80, v0
    s_and_b64 s[26:27], s[26:27], vcc
    s_waitcnt lgkmcnt(0)
    s_mov_b64 s[28:29], exec
    s_mov_b64 exec, s[24:25]
    s_cbranch_execz P_W1
    global_load_dwordx4 v[8:11], v40, s[8:9]
    global_load_dwordx4 v[12:15], v40, s[10:11]
    P_W1:
    s_mov_b64 exec, s[26:27]
    s_cbranch_execz P_W2
    global_load_dwordx4 v[16:19], v41, s[8:9]
    global_load_dwordx4 v[20:23], v41, s[10:11]
    P_W2:
    s_mov_b64 exec, s[28:29]
    s_waitcnt vmcnt(0)
    ds_write2_b32 v42, v8, v9 offset0:0 offset1:2
    ds_write2_b32 v42, v10, v11 offset0:4 offset1:6
    ds_write2_b32 v42, v12, v13 offset0:1 offset1:3
    ds_write2_b32 v42, v14, v15 offset0:5 offset1:7
    s_and_saveexec_b64 s[28:29], vcc
    s_cbranch_execz P_W3
    ds_write2_b32 v43, v16, v17 offset0:0 offset1:2
    ds_write2_b32 v43, v18, v19 offset0:4 offset1:6
    ds_write2_b32 v43, v20, v21 offset0:1 offset1:3
    ds_write2_b32 v43, v22, v23 offset0:5 offset1:7
    P_W3:
    s_mov_b64 exec, s[28:29]
    v_and_b32 v1, 15, v0
    v_bfe_u32 v2, v0, 4, 2
    v_lshrrev_b32 v3, 2, v1
    v_lshl_add_u32 v3, v2, 2, v3
    v_mul_u32_u24 v3, {WPITCH}, v3
    v_and_b32 v4, 3, v1
    v_lshl_add_u32 v3, v4, 3, v3
    v_readfirstlane_b32 s18, v0
    s_lshr_b32 s18, s18, 6                ; w
    s_lshl_b32 s19, s18, 7
    s_mov_b32 s20, 32
    s_cmp_eq_u32 s18, 3
    s_cselect_b32 s19, 96, s19
    s_cselect_b32 s20, 128, s20
    v_add_u32 v3, s19, v3
    v_add_u32 v4, s20, v3
    v_add_u32 v5, s20, v4
    s_lshl_b32 s21, s12, 2
    s_add_u32 s21, s21, s18
    s_lshl_b32 s21, s21, 4
    s_add_u32 s21, s21, s13
    s_mul_i32 s21, s21, 3072
    s_add_u32 s21, s21, {WP}
    v_and_b32 v6, 63, v0
    v_lshlrev_b32 v6, 4, v6
    v_add_u32 v6, s21, v6
    v_add_u32 v7, 0x400, v6
    v_add_u32 v24, 0x800, v6
    s_waitcnt lgkmcnt(0)
    s_barrier
    ds_read_b64_tr_b16 v[8:9], v3
    ds_read_b64_tr_b16 v[10:11], v3 offset:{16*WPITCH}
    ds_read_b64_tr_b16 v[12:13], v4
    ds_read_b64_tr_b16 v[14:15], v4 offset:{16*WPITCH}
    ds_read_b64_tr_b16 v[16:17], v5
    ds_read_b64_tr_b16 v[18:19], v5 offset:{16*WPITCH}
    s_waitcnt lgkmcnt(0)
    global_store_dwordx4 v6, v[8:11], s[4:5] {PREP_W_POL}
    global_store_dwordx4 v7, v[12:15], s[4:5] {PREP_W_POL}
    global_store_dwordx4 v24, v[16:19], s[4:5] {PREP_W_POL}
    @FLUSH 2
    s_endpgm
    """)
    k.label("P_D")
    DPITCH = 272
    k(f"""
    s_load_dwordx2 s[8:9], s[0:1], {KA_WD}
    s_sub_u32 s3, s2, {B_D}
    s_lshr_b32 s12, s3, 2                 ; ks 0..43
    s_and_b32 s13, s3, 3                  ; dq
    v_lshrrev_b32 v1, 4, v0               ; row 0..15 (+16)
    v_and_b32 v2, 15, v0                  ; chunk
    s_lshl_b32 s14, s12, 15               ; ks*32*1024
    s_lshl_b32 s15, s13, 8
    s_add_u32 s14, s14, s15
    v_lshlrev_b32 v3, 10, v1
    v_lshl_add_u32 v3, v2, 4, v3
    v_add_u32 v3, s14, v3
    v_add_u32 v4, 0x4000, v3
    """)
    for r in range(8, 16): k(f"v_mov_b32 v{r}, 0")
    k(f"""
    s_waitcnt lgkmcnt(0)
    s_cmp_ge_u32 s12, 43
    s_cbranch_scc1 P_D1
    global_load_dwordx4 v[8:11], v3, s[8:9]
    global_load_dwordx4 v[12:15], v4, s[8:9]
    P_D1:
    v_bfe_u32 v5, v1, 1, 2                ; g
    v_lshrrev_b32 v6, 3, v1               ; dw (0/1)
    v_and_b32 v7, 1, v1
    v_lshl_add_u32 v7, v6, 1, v7
    v_lshl_add_u32 v7, v5, 3, v7          ; rho
    v_mul_u32_u24 v7, {DPITCH}, v7
    v_lshl_add_u32 v7, v2, 4, v7
    v_and_b32 v1, 15, v0
    v_bfe_u32 v2, v0, 4, 2
    v_lshrrev_b32 v16, 6, v0
    v_lshrrev_b32 v3, 2, v1
    v_lshl_add_u32 v3, v2, 3, v3          ; row = 8g + r
    v_mul_u32_u24 v3, {DPITCH}, v3
    v_and_b32 v4, 3, v1
    v_lshl_add_u32 v3, v4, 3, v3          ; + c*8 bytes (4 d)
    v_lshl_add_u32 v3, v16, 6, v3         ; + w*64
    s_lshl_b32 s16, s13, 3
    v_lshl_add_u32 v17, v16, 1, s16
    v_mul_u32_u24 v17, {NKS2*1024}, v17
    v_and_b32 v18, 63, v0
    v_lshl_add_u32 v17, v18, 4, v17
    s_lshl_b32 s16, s12, 10
    s_add_u32 s16, s16, {WD}
    v_add_u32 v17, s16, v17
    v_add_u32 v18, {NKS2*1024}, v17
    s_waitcnt vmcnt(0)
    ds_write_b128 v7, v[8:11]
    ds_write_b128 v7, v[12:15] offset:{4*DPITCH}
    s_waitcnt lgkmcnt(0)
    s_barrier
    ds_read_b64_tr_b16 v[8:9], v3
    ds_read_b64_tr_b16 v[10:11], v3 offset:{4*DPITCH}
    ds_read_b64_tr_b16 v[12:13], v3 offset:32
    ds_read_b64_tr_b16 v[14:15], v3 offset:{4*DPITCH+32}
    s_waitcnt lgkmcnt(0)
    global_store_dwordx4 v17, v[8:11], s[4:5] {PREP_W_POL}
    global_store_dwordx4 v18, v[12:15], s[4:5] {PREP_W_POL}
    @FLUSH 2
    s_endpgm
    """)
    k.label("P_C")
    k(f"""
    s_load_dwordx4 s[8:11], s[0:1], {KA_WG}
    s_sub_u32 s3, s2, {B_C}
    s_and_b32 s12, s3, 1                  ; mat
    s_lshr_b32 s13, s3, 1                 ; cb 0..21
    v_lshrrev_b32 v1, 3, v0
    v_and_b32 v2, 7, v0                   ; chunk
    s_lshl_b32 s14, s13, 3
    v_add_u32 v3, s14, v2
    v_mul_u32_u24 v4, {F*2}, v1
    v_lshl_add_u32 v4, v3, 4, v4
    s_waitcnt lgkmcnt(0)
    s_cmp_eq_u32 s12, 1
    s_cselect_b32 s8, s10, s8
    s_cselect_b32 s9, s11, s9
    v_mov_b32 v5, {F//8}
    v_cmp_gt_u32 vcc, v5, v3
    """)
    for r in range(8, 16): k(f"v_mov_b32 v{r}, 0")
    k("""
    s_and_saveexec_b64 s[28:29], vcc
    s_cbranch_execz P_C2
    """)
    for i in range(16):
        k(f"global_load_dwordx4 v[{16+4*i}:{19+4*i}], v4, s[8:9]")
        if i < 15: k(f"v_add_u32 v4, {32*F*2}, v4")
    for i in range(16):
        k(f"s_waitcnt vmcnt({15-i})")
        for j in range(4):
            k(f"v_lshlrev_b32 v6, 16, v{16+4*i+j}")
            k(f"v_and_b32 v7, 0xffff0000, v{16+4*i+j}")
            k(f"v_add_f32 v{8+2*j}, v{8+2*j}, v6")
            k(f"v_add_f32 v{9+2*j}, v{9+2*j}, v7")
    k(f"""
    P_C2:
    s_mov_b64 exec, s[28:29]
    v_lshlrev_b32 v6, 5, v0
    ds_write_b128 v6, v[8:11]
    ds_write_b128 v6, v[12:15] offset:16
    s_waitcnt lgkmcnt(0)
    s_barrier
    v_cmp_gt_u32 vcc, 64, v0
    s_and_saveexec_b64 s[28:29], vcc
    s_cbranch_execz P_C3
    v_lshlrev_b32 v6, 2, v0
    """)
    for i in range(32):
        k(f"ds_read_b32 v{16+i}, v6 offset:{256*i}")
    k("s_waitcnt lgkmcnt(0)")
    for i in range(1, 32):
        k(f"v_add_f32 v16, v16, v{16+i}")
    k(f"""
    s_lshl_b32 s14, s13, 6
    v_add_u32 v1, s14, v0                 ; f
    s_mov_b32 s17, 0x2aaaaab
    v_mul_hi_u32 v2, v1, s17              ; ft
    v_mul_u32_u24 v3, 96, v2
    v_sub_u32 v3, v1, v3                  ; rem
    v_lshrrev_b32 v4, 5, v3               ; j
    v_bfe_u32 v5, v3, 3, 2                ; dw
    v_mul_u32_u24 v7, 3, v4
    v_add_u32 v7, v7, v5                  ; 3j + dw
    v_add_u32 v8, 9, v4                   ; 9 + j
    v_cmp_eq_u32 vcc, 3, v5
    v_cndmask_b32 v7, v7, v8, vcc         ; w*3+tau
    v_mul_u32_u24 v8, 12, v2
    v_add_u32 v7, v7, v8
    v_lshlrev_b32 v7, 4, v7
    v_bfe_u32 v8, v3, 1, 2
    v_lshl_add_u32 v7, v8, 2, v7
    v_and_b32 v8, 1, v3
    v_add_u32 v7, v7, v8
    s_lshl_b32 s14, s12, 1
    v_add_u32 v7, s14, v7
    v_lshlrev_b32 v7, 2, v7
    v_add_u32 v7, {CSUM}, v7
    global_store_dword v7, v16, s[4:5]
    s_cmp_lg_u32 s13, 21
    s_cbranch_scc1 P_C3
    v_cmp_gt_u32 vcc, 32, v0
    s_and_b64 exec, exec, vcc
    v_bfe_u32 v5, v0, 3, 2
    v_add_u32 v7, 6, v5
    v_cmp_eq_u32 vcc, 3, v5
    v_cndmask_b32 v7, v7, 11, vcc
    v_add_u32 v7, {14*12}, v7
    v_lshlrev_b32 v7, 4, v7
    v_bfe_u32 v8, v0, 1, 2
    v_lshl_add_u32 v7, v8, 2, v7
    v_and_b32 v8, 1, v0
    v_add_u32 v7, v7, v8
    v_add_u32 v7, s14, v7
    v_lshlrev_b32 v7, 2, v7
    v_add_u32 v7, {CSUM}, v7
    v_mov_b32 v16, 0
    global_store_dword v7, v16, s[4:5]
    P_C3:
    @FLUSH 2
    s_endpgm
    """)
    return k, dict(vgpr=96, sgpr=48, accum=96, grid=PREP_WGS, block=256, lds=PREP_LDS)


def stats_pair(k, sa, qa, sb, qb, t, keep=None):
    for s_, q_ in ((sa, qa), (sb, qb)):
        k(f"""
        v_mul_f32 v{s_}, s43, v{s_}
        v_mul_f32 v{q_}, s43, v{q_}
        v_fma_f32 v{q_}, -v{s_}, v{s_}, v{q_}
        v_max_f32 v{q_}, 0, v{q_}
        v_cvt_pk_bf16_f32 v{q_}, v{s_}, v{q_}
        v_lshlrev_b32 v{s_}, 16, v{q_}
        v_and_b32 v{q_}, 0xffff0000, v{q_}
        v_add_f32 v{q_}, s44, v{q_}
        """)
    k(f"""
    v_cvt_pk_bf16_f32 v{t}, v{qa}, v{qb}
    v_lshlrev_b32 v{qa}, 16, v{t}
    v_and_b32 v{qb}, 0xffff0000, v{t}
    v_sqrt_f32 v{qa}, v{qa}
    v_sqrt_f32 v{qb}, v{qb}
    v_cvt_pk_bf16_f32 v{t}, v{qa}, v{qb}
    v_lshlrev_b32 v{keep[0] if keep else qa}, 16, v{t}
    v_and_b32 v{keep[1] if keep else qb}, 0xffff0000, v{t}
    v_rcp_f32 v{qa}, v{keep[0] if keep else qa}
    v_rcp_f32 v{qb}, v{keep[1] if keep else qb}
    """)

CSU = 4576
CPF = int(os.environ.get('CPF', '1'))
CPF_STRIDE = int(os.environ.get('CPF_STRIDE', '128'))
KL = 2 * CSU
CRED = KL + 17408
CONV_LDS = CRED + 32768

def gen_conv():
    k = Kern("conv")
    k(f"""
    conv1_kernel:
    s_mov_b32 s30, {XT0}
    s_mov_b32 s31, {ST0}
    s_mov_b32 s32, {X1T}
    @KID 1
    CONV_BODY:
    s_cmp_ge_u32 s2, 512
    s_cbranch_scc1 CONV_END
    @INIT
    s_load_dwordx2 s[4:5], s[0:1], {KA_WS}
    s_load_dwordx2 s[6:7], s[0:1], {KA_DSKIP}
    v_readfirstlane_b32 s17, v0
    s_mov_b32 s43, {fl(1.0/512)}
    s_mov_b32 s44, {fl(1e-5)}
    s_lshr_b32 s17, s17, 6                ; pi
    s_mul_i32 s12, s2, {XP}
    s_add_u32 s13, s12, s30
    s_add_u32 s14, s12, s32
    s_mul_i32 s15, s2, {KP_STRIDE}
    s_add_u32 s15, s15, {KP}
    s_add_u32 s19, s15, 0x4000            ; chunk 16
    s_lshl_b32 s18, s17, 10
    s_add_u32 s15, s15, s18
    s_add_u32 s18, s18, {KL}
    s_lshr_b32 s16, s2, 1
    s_lshl_b32 s16, s16, 2
    v_lshlrev_b32 v1, 4, v0               ; tid*16
    v_lshlrev_b32 v2, 6, v0               ; tid*64
    v_and_b32 v3, 15, v0                  ; c / r
    v_bfe_u32 v4, v0, 4, 2                ; g
    v_and_b32 v5, 63, v0
    v_lshlrev_b32 v6, 4, v5               ; lane*16
    s_waitcnt lgkmcnt(0)
    @STAMP 11
    s_load_dword s20, s[6:7], s16
    """)
    srd(k, 8, 4, WS_BYTES)
    k(f"""
    buffer_load_dwordx4 v[16:19], v1, s[8:11], s31 offen
    s_add_u32 s31, s31, 0x1000
    buffer_load_dwordx4 v[20:23], v1, s[8:11], s31 offen
    s_add_u32 s31, s31, 0x1000
    buffer_load_dwordx4 v[24:27], v1, s[8:11], s31 offen
    s_add_u32 s31, s31, 0x1000
    buffer_load_dwordx4 v[28:31], v1, s[8:11], s31 offen
    buffer_load_dwordx4 v[12:15], v1, s[8:11], s13 offen
    @STAMP 12
    """)
    for i in range(4):
        k(f"""
        s_mov_b32 m0, s18
        s_add_u32 s18, s18, 0x1000
        buffer_load_dwordx4 v6, s[8:11], s15 offen lds
        s_add_u32 s15, s15, 0x1000
        """)
    k(f"""
    s_mov_b32 m0, {KL + 16384}
    v_mov_b32 v36, 0
    buffer_load_dwordx4 v6, s[8:11], s19 offen lds
    @STAMP 10
    v_mov_b32 v37, 0
    s_and_b32 s21, s17, 1
    s_sub_u32 s22, 56, s21
    s_mul_i32 s21, s21, {CSU}
    v_min_u32 v9, s22, v5
    v_lshl_add_u32 v9, v9, 3, s21
    ds_write_b64 v9, v[36:37]
    v_and_b32 v9, 1, v3
    v_mul_u32_u24 v9, {CSU}, v9
    v_lshrrev_b32 v10, 1, v3
    v_lshlrev_b32 v11, 2, v10
    v_sub_u32 v11, v11, v4
    s_lshl_b32 s21, s17, 2
    s_sub_u32 s21, 15, s21
    v_add_u32 v11, s21, v11
    v_lshl_add_u32 v9, v11, 4, v9         ; v9 = u addr
    v_and_b32 v7, 3, v3
    v_mul_u32_u24 v7, {KCS}, v7
    v_lshrrev_b32 v8, 2, v3
    v_add_u32 v8, v8, v4
    v_lshl_add_u32 v7, v8, 4, v7
    s_lshl_b32 s21, s17, 6
    s_add_u32 s21, s21, {KL}
    v_add_u32 v7, s21, v7                 ; v7 = K addr
    v_xor_b32 v8, v4, v10
    v_and_b32 v8, 3, v8
    v_lshlrev_b32 v8, 1, v8
    v_lshl_add_u32 v8, v10, 3, v8
    v_and_b32 v11, 1, v3
    v_add_u32 v8, v8, v11
    s_lshl_b32 s21, s17, 11
    v_lshl_add_u32 v10, v8, 4, s21
    v_bfe_u32 v8, v0, 2, 3
    v_xor_b32 v11, v8, v0
    v_and_b32 v11, 3, v11
    v_lshlrev_b32 v11, 5, v11
    v_lshl_add_u32 v11, v8, 7, v11
    v_bfe_u32 v8, v0, 5, 1
    v_lshl_add_u32 v11, v8, 10, v11
    s_lshl_b32 s21, s17, 13
    v_add_u32 v11, s21, v11
    @STAMP 2
    s_waitcnt vmcnt(6)
    @STAMP 3
    """)
    for i in range(4):
        stats_pair(k, 16 + 4*i, 17 + 4*i, 18 + 4*i, 19 + 4*i, 40)
    k("s_waitcnt vmcnt(5)")
    for j in range(4):
        k(f"""
        v_lshlrev_b32 v40, 16, v{12+j}
        v_and_b32 v41, 0xffff0000, v{12+j}
        v_sub_f32 v40, v40, v{16+4*j}
        v_sub_f32 v41, v41, v{18+4*j}
        v_cvt_pk_bf16_f32 v41, v40, v41
        v_lshlrev_b32 v40, 16, v41
        v_and_b32 v41, 0xffff0000, v41
        v_mul_f32 v40, v40, v{17+4*j}
        v_mul_f32 v41, v41, v{19+4*j}
        v_cvt_pk_bf16_f32 v{32+j}, v40, v41
        """)
    k(f"""
    ds_write_b128 v1, v[32:35] offset:{CSU + 16*28}
    ds_write2_b64 v1, v[32:33], v[34:35] offset0:57 offset1:58
    @STAMP 4
    s_waitcnt vmcnt(0) lgkmcnt(0)
    s_barrier
    @STAMP 5
    """)
    if CPF:
        k(f"""
        s_lshr_b32 s21, s2, 3
        s_lshl_b32 s21, s21, 2
        s_add_u32 s21, s21, s17
        s_mul_i32 s22, s21, 6144
        s_and_b32 s23, s2, 1
        s_mul_i32 s23, s23, {8*196608}
        s_add_u32 s22, s22, s23
        s_add_u32 s22, s22, {WP}
        s_mul_i32 s23, s21, 5632
        s_add_u32 s23, s23, {WD}
        v_mul_u32_u24 v38, {CPF_STRIDE}, v5
        """)
        for j in range(-(-6144 // (64 * CPF_STRIDE))):
            k(f"buffer_load_dword v39, v38, s[8:11], s22 offen\ns_add_u32 s22, s22, {64*CPF_STRIDE}")
        if CPF > 1:
            for j in range(-(-5632 // (64 * CPF_STRIDE))):
                k(f"buffer_load_dword v39, v38, s[8:11], s23 offen\ns_add_u32 s23, s23, {64*CPF_STRIDE}")
    KF = 48; UB = 16; ACC = 112
    pend = []
    def rd(tag):
        if tag[0] == "U":
            mu = int(tag[1:]); r = UB + 4 * (mu & 3)
            k(f"ds_read_b128 v[{r}:{r+3}], v9 offset:{256*mu}")
        else:
            t = int(tag[1:]); r = KF + 4 * t
            k(f"ds_read_b128 v[{r}:{r+3}], v7 offset:{256*t}")
        pend.append(tag)
    def need(tags):
        idx = max([pend.index(t) for t in tags if t in pend], default=-1)
        if idx >= 0:
            k(f"s_waitcnt lgkmcnt({len(pend) - idx - 1})")
            del pend[:idx + 1]
    queue = ["U0"] + [f"K{t}" for t in range(1, 16, 2)] + ["U1"] + [f"K{t}" for t in range(0, 16, 2)] + ["U2", "U3"]
    for t in queue[:12]: rd(t)
    queue = queue[12:]
    for mu in range(16):
        a = UB + 4 * (mu & 3)
        q0 = max(0, -(-(mu - 1) // 2))
        for q in range(q0, 8):
            tp = 2 * q + 1 - mu
            need([f"U{mu}", f"K{tp}"])
            c = "0" if mu == 0 else f"v[{ACC+4*q}:{ACC+4*q+3}]"
            k(f"v_mfma_f32_16x16x32_bf16 v[{ACC+4*q}:{ACC+4*q+3}], v[{KF+4*tp}:{KF+4*tp+3}], v[{a}:{a+3}], {c}")
            if queue: rd(queue.pop(0))
        if mu + 4 < 16: rd(f"U{mu+4}")
        if mu & 1 and mu >= 3:
            q = (mu - 3) // 2
            k(f"ds_write_b128 v10, v[{ACC+4*q}:{ACC+4*q+3}] offset:{CRED + (q>>1)*8192 + (q&1)*1024}")
            pend.append("W")
    k("@STAMP 6")
    k(f"""
    s_and_b32 s21, s20, 0xffff0000
    s_lshl_b32 s20, s20, 16
    s_bitcmp1_b32 s2, 0
    s_cselect_b32 s20, s21, s20
    """)
    for p in range(4):
        k(f"""
        v_lshlrev_b32 v40, 16, v{32+p}
        v_and_b32 v41, 0xffff0000, v{32+p}
        v_mul_f32 v40, s20, v40
        v_mul_f32 v41, s20, v41
        v_cvt_pk_bf16_f32 v41, v40, v41
        """)
        if p == 0:
            k(f"ds_write_b128 v10, v[{ACC+28}:{ACC+31}] offset:{CRED + 3*8192 + 1024}")
        k(f"""
        v_lshlrev_b32 v{48+2*p}, 16, v41
        v_and_b32 v{49+2*p}, 0xffff0000, v41
        v_lshlrev_b32 v{56+2*p}, 16, v{12+p}
        v_and_b32 v{57+2*p}, 0xffff0000, v{12+p}
        """)
    k("""
    s_waitcnt lgkmcnt(0)
    s_barrier
    @STAMP 7
    """)
    for src in range(4):
        for t in range(2):
            k(f"ds_read_b128 v[{ACC+8*src+4*t}:{ACC+8*src+4*t+3}], v11 offset:{CRED + src*2048 + t*16}")
    k("s_waitcnt lgkmcnt(4)")
    for r in range(0, 8, 2):
        k(f"v_pk_add_f32 v[{ACC+r}:{ACC+r+1}], v[{ACC+r}:{ACC+r+1}], v[{ACC+8+r}:{ACC+9+r}]")
    k("s_waitcnt lgkmcnt(0)")
    for r in range(0, 8, 2):
        k(f"v_pk_add_f32 v[{ACC+16+r}:{ACC+17+r}], v[{ACC+16+r}:{ACC+17+r}], v[{ACC+24+r}:{ACC+25+r}]")
    for r in range(0, 8, 2):
        k(f"v_pk_add_f32 v[{ACC+r}:{ACC+r+1}], v[{ACC+r}:{ACC+r+1}], v[{ACC+16+r}:{ACC+17+r}]")
    k("@STAMP 8")
    for p in range(4):
        y0, y1 = ACC + 2*p, ACC + 2*p + 1
        k(f"""
        v_cvt_pk_bf16_f32 v{y1}, v{y0}, v{y1}
        v_lshlrev_b32 v{y0}, 16, v{y1}
        v_and_b32 v{y1}, 0xffff0000, v{y1}
        v_pk_add_f32 v[{y0}:{y1}], v[{y0}:{y1}], v[{48+2*p}:{49+2*p}]
        v_cvt_pk_bf16_f32 v{y1}, v{y0}, v{y1}
        v_lshlrev_b32 v{y0}, 16, v{y1}
        v_and_b32 v{y1}, 0xffff0000, v{y1}
        v_pk_add_f32 v[{y0}:{y1}], v[{y0}:{y1}], v[{56+2*p}:{57+2*p}]
        v_cvt_pk_bf16_f32 v{44+p}, v{y0}, v{y1}
        """)
    k(f"""
    buffer_store_dwordx4 v[44:47], v1, s[8:11], s14 offen
    @STAMP 9
    @FLUSH 13
    CONV_END:
    s_endpgm
    .p2align 8
    conv2_kernel:
    s_mov_b32 s30, {X2T}
    s_mov_b32 s31, {ST1}
    s_mov_b32 s32, {X3T}
    @KID 4
    s_branch CONV_BODY
    """)
    info = dict(vgpr=144, sgpr=48, accum=144, grid=512, block=256, lds=CONV_LDS)
    return k, info

MLP_LDS = 163840
H_LD = os.environ.get('H_LD', 'sc1')
M_PRE2 = int(os.environ.get('M_PRE2', '5'))
M_WDM = int(os.environ.get('M_WDM', '4'))
M_WDE = int(os.environ.get('M_WDE', '2'))
M_AHEAD2 = int(os.environ.get('M_AHEAD2', '6'))
SPIN_MAX = 1 << 20
SLOT = 40960
def gen_mlp():
    k = Kern("mlp")
    ACC = 0
    FR = 48
    XA = 104
    WA = 112
    CSR = 114
    STV = 126
    RES = 130
    VDMA, VW, VT0, VT1, VT2 = 134, 135, 136, 137, 138
    SA = 139
    VRES = 142; VSTX = 143; VPUB = 144; VCS = 145
    MR = 146
    TMP = 150
    NV = 168
    def wdreg(i): return f"a[{4*i}:{4*i+3}]"
    k(f"""
    mlpa_kernel:
    s_mov_b32 s30, {X1T}
    s_mov_b32 s31, {HB}
    s_mov_b32 s33, {STX}
    s_mov_b32 s34, {FLG}
    s_mov_b32 s35, 0
    @KID 2
    M_BODY:
    s_cmp_ge_u32 s2, 256
    s_cbranch_scc1 M_END
    @INIT
    s_load_dwordx2 s[4:5], s[0:1], {KA_WS}
    s_load_dwordx2 s[6:7], s[0:1], {KA_OUT}
    v_readfirstlane_b32 s17, v0
    s_and_b32 s12, s2, 7                  ; xcd
    s_lshr_b32 s13, s2, 3                 ; idx
    s_lshr_b32 s14, s12, 1
    s_lshl_b32 s14, s14, 2
    s_and_b32 s15, s13, 3
    s_add_u32 s14, s14, s15               ; lt
    s_lshl_b32 s36, s12, 2
    s_add_u32 s36, s36, s15               ; lt64
    s_lshr_b32 s37, s13, 2                ; dt
    s_and_b32 s15, s12, 1
    s_lshl_b32 s15, s15, 3
    s_add_u32 s15, s15, s37               ; ft
    s_lshr_b32 s17, s17, 6                ; w
    s_and_b32 s16, s17, 3
    s_lshr_b32 s29, s17, 2
    v_and_b32 v{VT0}, 63, v0              ; lane
    v_and_b32 v{VT1}, 15, v0              ; lam / j
    v_bfe_u32 v{VT2}, v0, 4, 2            ; g
    s_and_b32 s20, s17, 1
    s_lshl_b32 s20, s20, 2
    v_lshrrev_b32 v{TMP}, 1, v{VT1}
    v_xor_b32 v{TMP+1}, v{TMP}, v{VT2}
    v_xor_b32 v{TMP+1}, s20, v{TMP+1}
    v_and_b32 v{TMP+3}, 1, v{VT1}
    v_lshlrev_b32 v{TMP+3}, 4, v{TMP+3}
    v_mul_u32_u24 v{TMP+4}, {XP}, v{VT2}
    v_add_u32 v{TMP+3}, v{TMP+4}, v{TMP+3}
    v_lshl_add_u32 v{VDMA}, v{TMP+1}, 5, v{TMP+3}
    v_lshlrev_b32 v{VW}, 4, v{VT0}                    ; lane*16
    s_lshl_b32 s18, s14, 8
    s_add_u32 s18, s18, s30
    s_mul_i32 s19, s17, {4*XP}
    s_add_u32 s18, s18, s19
    s_lshl_b32 s19, s17, 10               ; x m0 part: w*1024
    s_lshl_b32 s20, s15, 2
    s_add_u32 s20, s20, s16
    s_lshl_b32 s21, s20, 4
    s_add_u32 s21, s21, s29
    s_mul_i32 s21, s21, 3072
    s_add_u32 s21, s21, {WP}
    s_mul_i32 s22, s17, 3072
    s_add_u32 s22, s22, 0x4000
    s_mul_i32 s24, s20, {3*16*4}
    s_add_u32 s24, s24, {CSUM}
    s_lshl_b32 s38, s37, 2
    s_add_u32 s38, s38, s16
    s_mul_i32 s38, s38, {NKS2*1024}
    s_mul_i32 s23, s29, {22*1024}
    s_add_u32 s38, s38, s23
    s_add_u32 s38, s38, {WD}
    s_waitcnt lgkmcnt(0)
    """)
    srd(k, 8, 4, WS_BYTES)
    k("""
    s_cmp_eq_u32 s15, 15
    s_cbranch_scc1 M_STATS
    """)
    def group_parts(t):
        base = (t & 3) * SLOT
        parts = [f"""
        s_add_u32 m0, s19, {base}
        s_nop 0
        buffer_load_dwordx4 v{VDMA}, s[8:11], s18 offen lds
        s_add_u32 s18, s18, {32*XP}
        """, f"""
        s_add_u32 m0, s22, {base}
        s_nop 0
        buffer_load_dwordx4 v{VW}, s[8:11], s21 offen lds
        """, f"""
        buffer_load_dwordx4 v{VW}, s[8:11], s21 offen offset:1024 lds
        """, f"""
        buffer_load_dwordx4 v{VW}, s[8:11], s21 offen offset:2048 lds
        s_add_u32 s21, s21, 0x1800
        """, f"""
        s_add_u32 m0, s19, {base + 8192}
        s_nop 0
        buffer_load_dwordx4 v{VDMA}, s[8:11], s18 offen lds
        s_add_u32 s18, s18, {32*XP}
        """]
        return parts
    def wd_part(i):
        p = f"buffer_load_dwordx4 {wdreg(i)}, v{VW}, s[8:11], s38 offen offset:{1024*(i&3)}"
        if (i & 3) == 3: p += "\ns_add_u32 s38, s38, 0x1000"
        return p
    def common_addr():
        k(f"""
        s_mov_b32 s43, {fl(1.0/512)}
        s_mov_b32 s44, {fl(1e-5)}
        s_mov_b32 s45, {fl(-LOG2E)}
        v_lshrrev_b32 v{TMP}, 2, v{VT1}
        v_lshl_add_u32 v{TMP}, v{VT2}, 2, v{TMP}          ; 4g + r
        v_and_b32 v{TMP+1}, 7, v{TMP}                     ; xi
        v_and_b32 v{TMP+2}, 3, v{VT1}
        v_lshlrev_b32 v{TMP+2}, 3, v{TMP+2}
        v_lshl_add_u32 v{TMP+2}, v{TMP}, 8, v{TMP+2}
        v_mul_u32_u24 v{VRES}, {XP}, v{VT1}
        v_lshl_add_u32 v{VRES}, v{VT2}, 4, v{VRES}
        s_lshl_b32 s39, s37, 2
        s_add_u32 s39, s39, s16
        s_mul_i32 s39, s39, {16*XP}
        s_lshl_b32 s40, s36, 7
        s_add_u32 s39, s39, s40
        s_lshl_b32 s40, s29, 6
        s_add_u32 s39, s39, s40
        s_add_u32 s40, s39, s30
        """)
    res_parts = [f"buffer_load_dwordx4 v[{RES}:{RES+3}], v{VRES}, s[8:11], s40 offen"]
    for t in range(2):
        for p in group_parts(t): k(p)
    common_addr()
    k("s_lshl_b32 s25, s29, 2")
    for b in range(4):
        k(f"""
        s_add_u32 s26, s25, {b}
        v_xor_b32 v{TMP+3}, s26, v{TMP+1}
        v_lshl_add_u32 v{XA+b}, v{TMP+3}, 5, v{TMP+2}
        v_add_u32 v{XA+4+b}, {2*SLOT}, v{XA+b}
        """)
    k(f"""
    s_mul_i32 s26, s16, 3072
    s_add_u32 s26, s26, 0x4000
    v_add_u32 v{WA}, s26, v{VW}
    v_add_u32 v{WA+1}, {2*SLOT}, v{WA}
    """)
    def late_addr():
        k(f"""
        v_bfe_u32 v{TMP}, v{VT1}, 2, 1                    ; half
        v_mul_u32_u24 v{TMP+4}, 3072, v{TMP}
        v_lshrrev_b32 v{TMP}, 3, v{VT1}
        v_lshl_add_u32 v{TMP+4}, v{TMP}, 6, v{TMP+4}
        v_and_b32 v{TMP}, 3, v{VT1}
        v_lshl_add_u32 v{TMP+4}, v{TMP}, 4, v{TMP+4}
        v_lshl_add_u32 v{TMP+4}, v{VT2}, 8, v{TMP+4}
        s_lshl_b32 s26, s16, 10
        s_cmp_eq_u32 s16, 3
        s_cselect_b32 s26, 12, s26
        s_cselect_b32 s27, 0x400, 4
        s_mul_i32 s28, s29, 12288
        s_add_u32 s26, s26, s28
        v_add_u32 v{SA}, s26, v{TMP+4}
        v_add_u32 v{SA+1}, s27, v{SA}
        v_add_u32 v{SA+2}, s27, v{SA+1}
        v_lshlrev_b32 v{VSTX}, 2, v{VT1}
        s_lshl_b32 s41, s14, 9
        s_lshl_b32 s26, s29, 8
        s_add_u32 s41, s41, s26
        s_add_u32 s41, s41, s33
        s_mul_i32 s26, s17, 3072
        v_add_u32 v{VPUB}, s26, v{VW}
        s_lshl_b32 s42, s14, 3
        s_add_u32 s42, s42, s17
        s_mul_i32 s42, s42, {HKS*1024}
        s_mul_i32 s26, s15, 3072
        s_add_u32 s42, s42, s26
        s_add_u32 s42, s42, s31
        v_lshlrev_b32 v{VCS}, 4, v{VT2}
        """)
    late_addr()
    def reads(s):
        res = []
        t = s >> 1; hi = (t & 3) >> 1; base = (t & 1) * SLOT
        buf = FR + 28 * (s & 1)
        for tau in range(3):
            r = buf + 16 + 4 * tau
            res.append(f"ds_read_b128 v[{r}:{r+3}], v{WA+hi} offset:{base + (s&1)*12288 + tau*1024}")
        for b in range(4):
            off = base + (s & 1) * 8192
            res.append(f"ds_read_b64_tr_b16 v[{buf+4*b}:{buf+4*b+1}], v{XA+4*hi+b} offset:{off}")
            res.append(f"ds_read_b64_tr_b16 v[{buf+4*b+2}:{buf+4*b+3}], v{XA+4*hi+b} offset:{off+4096}")
        return res
    later = [f"buffer_load_dwordx4 v[{CSR+4*tau}:{CSR+4*tau+3}], v{VCS}, s[8:11], s24 offen offset:{64*tau}" for tau in range(3)]
    later += res_parts + [wd_part(i) for i in range(M_WDM)]
    later += [f"buffer_load_dword v{STV+b}, v{VSTX}, s[8:11], s41 offen offset:{64*b} sc1" for b in range(4)]
    n_need = len(later)
    later += [wd_part(i) for i in range(M_WDM, 22)]
    vm = []
    vm += ["G0"] * 5 + ["G1"] * 5
    def wait_for(tag):
        idx = max(i for i, x in enumerate(vm) if x == tag)
        k(f"s_waitcnt vmcnt({len(vm) - idx - 1})")
        del vm[:idx + 1]
    nlater = 0
    k("@STAMP 2")
    wait_for("G0")
    k("s_barrier")
    k("@STAMP 3")
    for r in reads(0): k(r)
    for s in range(16):
        t = s >> 1
        if s == 1:
            wait_for("G1"); k("s_barrier")
        elif (s & 1) == 0 and 0 < t < 7:
            wait_for(f"G{t+1}"); k("s_barrier")
        k("s_waitcnt lgkmcnt(0)")
        if s == 8: k("@STAMP 4")
        fill = reads(s + 1) if s < 15 else []
        mf = []
        buf = FR + 28 * (s & 1)
        for b in range(4):
            for tau in range(3):
                a = ACC + (b * 3 + tau) * 4
                c = "0" if s == 0 else f"v[{a}:{a+3}]"
                mf.append(f"v_mfma_f32_16x16x32_bf16 v[{a}:{a+3}], v[{buf+16+4*tau}:{buf+19+4*tau}], v[{buf+4*b}:{buf+4*b+3}], {c}")
        if s == 0: parts = [(p, "G2") for p in group_parts(2)]
        elif s == 1: parts = [(p, "G3") for p in group_parts(3)]
        elif t + 3 <= 7:
            gp = group_parts(t + 3)
            parts = [(p, f"G{t+3}") for p in (gp[:3] if (s & 1) == 0 else gp[3:])]
        else:
            lpp = -(-n_need // 6)
            parts = [(p, "N") for i, p in enumerate(later[nlater:min(nlater + lpp, n_need)])]
            nlater += len(parts)
        step = 12 // max(len(parts), 1)
        slots = {1 + step * j: p for j, p in enumerate(parts)}
        EXP = os.environ.get('EXP', '')
        for i, m in enumerate(mf):
            if 'nomfma' not in EXP: k(m)
            if i < len(fill) and 'nolds' not in EXP: k(fill[i])
            if i in slots:
                if not ('novm' in EXP and slots[i][1][0] == 'G') and not ('nox' in EXP and f'v{VDMA},' in slots[i][0]) and not ('now' in EXP and 's21' in slots[i][0]) and not ('nolater' in EXP and 's38' in slots[i][0]): k(slots[i][0])
                vm.append(slots[i][1])
    assert nlater >= n_need
    k("@STAMP 5")
    wait_for("N")
    k(f"""
    s_mov_b32 s47, 0
    M_STCHK:
    v_min3_u32 v{TMP}, v{STV}, v{STV+1}, v{STV+2}
    v_min_u32 v{TMP}, v{TMP}, v{STV+3}
    v_cmp_eq_u32 vcc, 0, v{TMP}
    s_cmp_eq_u64 vcc, 0
    s_cbranch_scc1 M_STOK
    s_add_u32 s47, s47, 1
    s_cmp_ge_u32 s47, {SPIN_MAX}
    s_cbranch_scc1 M_STOK
    s_sleep 2
    """)
    for b in range(4): k(f"buffer_load_dword v{STV+b}, v{VSTX}, s[8:11], s41 offen offset:{64*b} sc1")
    k("""
    s_waitcnt vmcnt(0)
    s_branch M_STCHK
    M_STOK:
    @STAMP 6
    """)
    PB = FR
    for b in range(4):
        m = MR
        k(f"""
        v_and_b32 v{m+2}, 0xffff0000, v{STV+b}        ; s
        v_lshlrev_b32 v{m}, 16, v{STV+b}              ; m
        v_rcp_f32 v{m+1}, v{m+2}
        v_mul_f32 v{m+1}, s45, v{m+1}
        """)
        for tau in range(3):
            a = ACC + (b * 3 + tau) * 4
            c = CSR + 4 * tau
            k(f"""
            v_pk_fma_f32 v[{a}:{a+1}], v[{m}:{m+1}], v[{c}:{c+1}], v[{a}:{a+1}] op_sel_hi:[0,1,1] neg_lo:[1,0,0] neg_hi:[1,0,0]
            v_pk_fma_f32 v[{a+2}:{a+3}], v[{m}:{m+1}], v[{c+2}:{c+3}], v[{a+2}:{a+3}] op_sel_hi:[0,1,1] neg_lo:[1,0,0] neg_hi:[1,0,0]
            v_pk_mul_f32 v[{a}:{a+1}], v[{a}:{a+1}], v[{m}:{m+1}] op_sel:[0,1] op_sel_hi:[1,1]
            v_exp_f32 v{a}, v{a}
            v_exp_f32 v{a+1}, v{a+1}
            """)
            if tau < M_WDE and nlater < len(later):
                k(later[nlater]); nlater += 1
        for tau in range(3):
            a = ACC + (b * 3 + tau) * 4
            k(f"""
            v_pk_fma_f32 v[{a}:{a+1}], v[{a}:{a+1}], v[{m+2}:{m+3}], v[{m+2}:{m+3}] op_sel_hi:[1,0,0]
            v_rcp_f32 v{a}, v{a}
            v_rcp_f32 v{a+1}, v{a+1}
            """)
        for tau in range(3):
            a = ACC + (b * 3 + tau) * 4
            k(f"""
            v_pk_mul_f32 v[{a}:{a+1}], v[{a}:{a+1}], v[{a+2}:{a+3}]
            v_cvt_pk_bf16_f32 v{a}, v{a}, v{a+1}
            ds_write_b32 v{SA+tau}, v{a} offset:{(b>>1)*6144 + (b&1)*128}
            """)
    k("""
    s_waitcnt lgkmcnt(0)
    s_barrier
    @STAMP 7
    """)
    for i in range(3):
        k(f"ds_read_b128 v[{PB+4*i}:{PB+4*i+3}], v{VPUB} offset:{1024*i}")
    for i in range(3):
        k(f"s_waitcnt lgkmcnt({2-i})")
        k(f"buffer_store_dwordx4 v[{PB+4*i}:{PB+4*i+3}], v{VW}, s[8:11], s42 offen offset:{1024*i} sc1")
    rest = later[nlater:]
    k(f"""
    s_lshl_b32 s26, s14, 4
    s_add_u32 s26, s26, s15
    s_lshl_b32 s26, s26, 7
    s_add_u32 s26, s26, s34
    v_mov_b32 v{TMP}, 1
    v_mov_b32 v{TMP+1}, 0
    s_waitcnt vmcnt(0)
    s_barrier
    s_cmp_lg_u32 s17, 0
    s_cbranch_scc1 M_NOFLAG
    s_mov_b64 exec, 1
    buffer_store_dword v{TMP}, v{TMP+1}, s[8:11], s26 offen sc1
    s_mov_b64 exec, -1
    M_NOFLAG:
    """)
    for p in rest: k(p)
    HA = XA
    k(f"""
    M_SYNC:
    @STAMP 8
    s_lshl_b32 s26, s36, 2
    s_add_u32 s26, s26, s16
    s_mul_i32 s26, s26, {HKS*1024}
    s_mul_i32 s27, s29, {22*1024}
    s_add_u32 s26, s26, s27
    s_add_u32 s26, s26, s31
    s_lshl_b32 s27, s17, 11               ; m0 part
    s_mul_i32 s28, s29, 0x3000
    v_add_u32 v{HA}, s28, v{VW}
    s_lshl_b32 s28, s29, 12
    s_add_u32 s28, s28, 0x1000
    v_add_u32 v{HA+1}, s28, v{VW}
    v_add_u32 v{HA+2}, 0x10000, v{HA}
    v_add_u32 v{HA+3}, 0x10000, v{HA+1}
    v_add_u32 v{HA+4}, 0x20000, v{HA}
    v_add_u32 v{HA+5}, 0x20000, v{HA+1}
    s_cmp_lg_u32 s17, 1
    s_cbranch_scc1 M_WAITB
    s_lshr_b32 s28, s36, 1
    s_lshl_b32 s28, s28, 11
    s_add_u32 s28, s28, s34
    v_min_u32 v{TMP+4}, 14, v{VT0}
    v_lshlrev_b32 v{TMP+4}, 7, v{TMP+4}
    s_mov_b32 s47, 0
    M_POLL:
    buffer_load_dword v{TMP+5}, v{TMP+4}, s[8:11], s28 offen sc1
    s_waitcnt vmcnt(0)
    v_cmp_eq_u32 vcc, 0, v{TMP+5}
    s_cmp_eq_u64 vcc, 0
    s_cbranch_scc1 M_WAITB
    s_add_u32 s47, s47, 1
    s_cmp_lt_u32 s47, {SPIN_MAX}
    s_cbranch_scc1 M_POLL
    M_WAITB:
    s_barrier
    @STAMP 9
    """)
    def hchunk(c):
        return [f"""
        s_add_u32 m0, s27, {(c % 10) * 16384}
        s_nop 0
        buffer_load_dwordx4 v{VW}, s[8:11], s26 offen {H_LD} lds
        """, f"""
        buffer_load_dwordx4 v{VW}, s[8:11], s26 offen offset:1024 {H_LD} lds
        s_add_u32 s26, s26, 0x800
        """]
    HF = 16
    A2 = 0
    def hreads(c):
        res = []
        for i in range(2):
            for lb in range(4):
                off = (c % 10) * 16384 + (lb & 1) * 2048 + i * 1024
                base = HA + 2 * (off >> 16) + (lb >> 1)
                r = HF + 32 * (c & 1) + (i * 4 + lb) * 4
                res.append(f"ds_read_b128 v[{r}:{r+3}], v{base} offset:{off & 0xffff}")
        return res
    iss = M_PRE2
    for c in range(iss):
        for p in hchunk(c): k(p)
    k(f"s_waitcnt vmcnt({2*(iss-1)})")
    k("s_barrier")
    k("@STAMP 10")
    for r in hreads(0): k(r)
    for c in range(11):
        fill = []
        if c < 10:
            k(f"s_waitcnt vmcnt({2*(iss-(c+2))})")
            k("s_barrier")
        k("s_waitcnt lgkmcnt(0)")
        if c < 10: fill = hreads(c + 1)
        parts = []
        for rep_ in range(2):
            if iss < 11 and (iss < 10 or c >= 1) and iss < c + M_AHEAD2:
                parts += hchunk(iss); iss += 1
        slots = {1 + 2 * j: p for j, p in enumerate(parts)}
        n = 0
        for i in range(2):
            for lb in range(4):
                r = HF + 32 * (c & 1) + (i * 4 + lb) * 4
                a = A2 + 4 * lb
                cc = "0" if (c == 0 and i == 0) else f"v[{a}:{a+3}]"
                k(f"v_mfma_f32_16x16x32_bf16 v[{a}:{a+3}], v[{r}:{r+3}], {wdreg(2*c+i)}, {cc}")
                if n < len(fill): k(fill[n])
                if n in slots: k(slots[n])
                n += 1
    k("@STAMP 11")
    XB = 65536
    k(f"""
    s_lshl_b32 s26, s17, 11
    s_add_u32 s26, s26, {XB}
    v_add_u32 v{TMP}, s26, v{VW}
    s_xor_b32 s26, s26, 0x2000
    v_add_u32 v{TMP+1}, s26, v{VW}
    """)
    for j in range(4):
        k(f"v_lshlrev_b32 v{32+2*j}, 16, v{RES+j}")
        k(f"v_and_b32 v{33+2*j}, 0xffff0000, v{RES+j}")
    k(f"""
    ds_write_b128 v{TMP}, v[8:11]
    ds_write_b128 v{TMP}, v[12:15] offset:1024
    s_waitcnt lgkmcnt(0)
    s_barrier
    ds_read_b128 v[8:11], v{TMP+1}
    ds_read_b128 v[12:15], v{TMP+1} offset:1024
    s_waitcnt lgkmcnt(0)
    """)
    OUT = 16
    for j in range(4):
        y0, y1 = A2 + 2*j, A2 + 2*j + 1
        k(f"""
        v_pk_add_f32 v[{y0}:{y1}], v[{y0}:{y1}], v[{y0+8}:{y1+8}]
        v_cvt_pk_bf16_f32 v{y1}, v{y0}, v{y1}
        v_lshlrev_b32 v{y0}, 16, v{y1}
        v_and_b32 v{y1}, 0xffff0000, v{y1}
        v_pk_add_f32 v[{y0}:{y1}], v[{y0}:{y1}], v[{32+2*j}:{33+2*j}]
        v_cvt_pk_bf16_f32 v{OUT+j}, v{y0}, v{y1}
        """)
    k(f"""
    s_cmp_lg_u32 s35, 0
    s_cbranch_scc1 M_FINAL
    s_add_u32 s40, s39, {X2T}
    buffer_store_dwordx4 v[{OUT}:{OUT+3}], v{VRES}, s[8:11], s40 offen
    """)
    Q = 48
    for j in range(4):
        k(f"""
        v_lshlrev_b32 v{Q+4*j}, 16, v{OUT+j}
        v_and_b32 v{Q+4*j+2}, 0xffff0000, v{OUT+j}
        v_mul_f32 v{Q+4*j+1}, v{Q+4*j}, v{Q+4*j}
        v_mul_f32 v{Q+4*j+3}, v{Q+4*j+2}, v{Q+4*j+2}
        """)
    for q in range(8):
        k(f"v_add_f32_dpp v{Q+q}, v{Q+q}, v{Q+q} row_ror:8 row_mask:0xf bank_mask:0x3")
        k(f"v_add_f32_dpp v{Q+q}, v{Q+q+8}, v{Q+q+8} row_ror:8 row_mask:0xf bank_mask:0xc")
    for q in range(4):
        k(f"v_add_f32_dpp v{Q+q}, v{Q+q}, v{Q+q} row_shl:4 row_mask:0xf bank_mask:0x5")
        k(f"v_add_f32_dpp v{Q+q}, v{Q+q+4}, v{Q+q+4} row_shr:4 row_mask:0xf bank_mask:0xa")
    for q in range(4):
        k(f"v_add_f32_dpp v{Q+q}, v{Q+q}, v{Q+q} quad_perm:[1,0,3,2] row_mask:0xf bank_mask:0xf")
    for q in range(4):
        k(f"v_add_f32_dpp v{Q+q}, v{Q+q}, v{Q+q} quad_perm:[2,3,0,1] row_mask:0xf bank_mask:0xf")
    SB = 98304
    k(f"""
    v_and_b32 v{TMP}, 3, v{VT1}
    v_cmp_eq_u32 s[48:49], 1, v{TMP}
    v_cmp_eq_u32 s[50:51], 2, v{TMP}
    v_cmp_eq_u32 s[52:53], 3, v{TMP}
    v_lshrrev_b32 v{TMP+1}, 2, v{VT1}
    v_lshlrev_b32 v{TMP+1}, 7, v{TMP+1}
    v_lshl_add_u32 v{TMP+1}, v{VT2}, 4, v{TMP+1}
    v_lshl_add_u32 v{TMP+1}, v{TMP}, 2, v{TMP+1}
    s_lshl_b32 s26, s16, 9
    s_lshl_b32 s27, s29, 6
    s_add_u32 s26, s26, s27
    s_add_u32 s26, s26, {SB}
    v_add_u32 v{TMP+1}, s26, v{TMP+1}
    v_cndmask_b32 v{Q}, v{Q}, v{Q+1}, s[48:49]
    v_cndmask_b32 v{Q}, v{Q}, v{Q+2}, s[50:51]
    v_cndmask_b32 v{Q}, v{Q}, v{Q+3}, s[52:53]
    ds_write_b32 v{TMP+1}, v{Q}
    s_lshl_b32 s26, s17, 8
    s_add_u32 s26, s26, {SB}
    v_lshl_add_u32 v{TMP+2}, v{VT0}, 2, s26
    v_lshrrev_b32 v{TMP+3}, 5, v{VT0}
    v_lshlrev_b32 v{TMP+3}, 12, v{TMP+3}
    v_and_b32 v{TMP+4}, 31, v{VT0}
    v_lshl_add_u32 v{TMP+3}, v{TMP+4}, 2, v{TMP+3}
    s_lshl_b32 s26, s36, 7
    s_lshl_b32 s27, s17, 13
    s_add_u32 s26, s26, s27
    s_add_u32 s26, s26, {ST1}
    s_waitcnt lgkmcnt(0)
    s_barrier
    s_cmp_ge_u32 s17, 2
    s_cbranch_scc1 M_NOAT
    ds_read_b32 v{Q}, v{TMP+2}
    ds_read_b32 v{Q+1}, v{TMP+2} offset:512
    ds_read_b32 v{Q+2}, v{TMP+2} offset:1024
    ds_read_b32 v{Q+3}, v{TMP+2} offset:1536
    s_waitcnt lgkmcnt(0)
    v_add_f32 v{Q}, v{Q}, v{Q+1}
    v_add_f32 v{Q+2}, v{Q+2}, v{Q+3}
    v_add_f32 v{Q}, v{Q}, v{Q+2}
    buffer_atomic_add_f32 v{Q}, v{TMP+3}, s[8:11], s26 offen
    M_NOAT:
    @STAMP 12
    @FLUSH 13
    s_endpgm
    M_FINAL:
    """)
    TP = 144; TB2 = 98304
    srd(k, 48, 6, L * D * 2)
    k(f"""
    s_lshl_b32 s26, s16, 4
    v_add_u32 v{TMP}, s26, v{VT1}
    v_mul_u32_u24 v{TMP}, {TP}, v{TMP}
    v_lshl_add_u32 v{TMP}, v{VT2}, 4, v{TMP}
    s_lshl_b32 s26, s29, 6
    s_add_u32 s26, s26, {TB2}
    v_add_u32 v{TMP}, s26, v{TMP}
    ds_write_b128 v{TMP}, v[{OUT}:{OUT+3}]
    v_lshrrev_b32 v{TMP+1}, 2, v{VT1}
    v_lshl_add_u32 v{TMP+1}, v{VT2}, 3, v{TMP+1}
    v_mul_u32_u24 v{TMP+1}, {TP}, v{TMP+1}
    v_and_b32 v{TMP+2}, 3, v{VT1}
    v_lshl_add_u32 v{TMP+1}, v{TMP+2}, 3, v{TMP+1}
    s_lshl_b32 s26, s16, 5
    s_mul_i32 s27, s29, {32*TP}
    s_add_u32 s26, s26, s27
    s_add_u32 s26, s26, {TB2}
    v_add_u32 v{TMP+1}, s26, v{TMP+1}
    v_lshlrev_b32 v{TMP+2}, 10, v{VT1}
    v_lshl_add_u32 v{TMP+2}, v{VT2}, 4, v{TMP+2}
    s_lshl_b32 s26, s36, 2
    s_add_u32 s26, s26, s16
    s_lshl_b32 s26, s26, 14
    s_lshl_b32 s27, s37, 7
    s_add_u32 s26, s26, s27
    s_lshl_b32 s27, s29, 6
    s_add_u32 s26, s26, s27
    s_waitcnt lgkmcnt(0)
    s_barrier
    ds_read_b64_tr_b16 v[32:33], v{TMP+1}
    ds_read_b64_tr_b16 v[34:35], v{TMP+1} offset:{4*TP}
    s_waitcnt lgkmcnt(0)
    buffer_store_dwordx4 v[32:35], v{TMP+2}, s[48:51], s26 offen
    @STAMP 12
    @FLUSH 13
    M_END:
    s_endpgm
    """)
    k(f"""
    M_STATS:
    s_mov_b32 s47, 0
    M_SL1:
    s_mov_b32 m0, s19
    s_add_u32 s19, s19, 0x2000
    buffer_load_dwordx4 v{VDMA}, s[8:11], s18 offen lds
    s_add_u32 s18, s18, {32*XP}
    s_mov_b32 m0, s19
    s_add_u32 s19, s19, 0x2000
    buffer_load_dwordx4 v{VDMA}, s[8:11], s18 offen lds
    s_add_u32 s18, s18, {32*XP}
    s_add_u32 s47, s47, 1
    s_cmp_lt_u32 s47, 8
    s_cbranch_scc1 M_SL1
    """)
    common_addr()
    SACC = 0; ONES = 16
    k(f"""
    v_xor_b32 v{TMP+3}, s17, v{TMP+1}
    v_lshl_add_u32 v{XA}, v{TMP+3}, 5, v{TMP+2}
    """)
    for r in range(8): k(f"v_mov_b32 v{SACC+r}, 0")
    for r in range(4): k(f"v_mov_b32 v{ONES+r}, 0x3f803f80")
    k(f"""
    s_mov_b32 s47, 0
    s_waitcnt vmcnt(0)
    s_barrier
    M_SL2:
    """)
    for u in range(8):
        r = FR + 4 * u
        if u == 7: k("s_waitcnt lgkmcnt(12)")
        k(f"ds_read_b64_tr_b16 v[{r}:{r+1}], v{XA} offset:{u*8192}")
        k(f"ds_read_b64_tr_b16 v[{r+2}:{r+3}], v{XA} offset:{u*8192+4096}")
    k(f"v_add_u32 v{XA}, 0x10000, v{XA}")
    for u in range(8):
        r = FR + 4 * u
        k(f"s_waitcnt lgkmcnt({14 - 2*u})")
        k(f"v_mfma_f32_16x16x32_bf16 v[{SACC}:{SACC+3}], v[{r}:{r+3}], v[{r}:{r+3}], v[{SACC}:{SACC+3}]")
        k(f"v_mfma_f32_16x16x32_bf16 v[{SACC+4}:{SACC+7}], v[{ONES}:{ONES+3}], v[{r}:{r+3}], v[{SACC+4}:{SACC+7}]")
    k(f"""
    s_add_u32 s47, s47, 1
    s_cmp_lt_u32 s47, 2
    s_cbranch_scc1 M_SL2
    v_and_b32 v{TMP}, 3, v{VT1}
    v_cmp_eq_u32 s[48:49], 1, v{TMP}
    v_cmp_eq_u32 s[50:51], 2, v{TMP}
    v_cmp_eq_u32 s[52:53], 3, v{TMP}
    v_lshrrev_b32 v{TMP}, 2, v{VT1}
    v_cmp_eq_u32 s[54:55], v{TMP}, v{VT2}
    v_cndmask_b32 v{SACC}, v{SACC}, v{SACC+1}, s[48:49]
    v_cndmask_b32 v{SACC}, v{SACC}, v{SACC+2}, s[50:51]
    v_cndmask_b32 v{SACC+5}, v{SACC}, v{SACC+3}, s[52:53]
    v_mov_b32 v{SACC+12}, v{SACC+4}
    v_mov_b32 v{SACC+13}, v{SACC+5}
    """)
    stats_pair(k, SACC+4, SACC+5, SACC+12, SACC+13, TMP, keep=(SACC+6, SACC+14))
    k(f"""
    v_lshrrev_b32 v{SACC+4}, 16, v{SACC+4}
    v_or_b32 v{SACC+4}, v{SACC+4}, v{SACC+6}
    v_lshlrev_b32 v{VSTX}, 2, v{VT1}
    s_lshl_b32 s41, s14, 9
    s_lshl_b32 s26, s17, 6
    s_add_u32 s41, s41, s26
    s_add_u32 s41, s41, s33
    s_mov_b64 exec, s[54:55]
    buffer_store_dword v{SACC+4}, v{VSTX}, s[8:11], s41 offen sc1
    s_mov_b64 exec, -1
    """)
    for p in res_parts: k(p)
    for i in range(22): k(wd_part(i))
    k(f"""
    s_barrier
    s_branch M_SYNC
    .p2align 8
    mlpb_kernel:
    s_mov_b32 s30, {X3T}
    s_mov_b32 s31, {HB1}
    s_mov_b32 s33, {STX + 0x2000}
    s_mov_b32 s34, {FLG + 0x8000}
    s_mov_b32 s35, 1
    @KID 5
    s_branch M_BODY
    """)
    info = dict(vgpr=NV + 88, sgpr=64, accum=NV, grid=256, block=512, lds=MLP_LDS)
    return k, info

DIAG_KN = {2: ("mlpa", 13), 5: ("mlpb", 13), 3: ("none", 1), 6: ("none", 1)}
def emit(path, launches=None):
    kp, ip = gen_prep()
    kc, ic = gen_conv()
    km, im = gen_mlp()
    infos = {"prep_kernel": ip, "conv1_kernel": ic, "conv2_kernel": ic, "mlpa_kernel": im, "mlpb_kernel": im}
    if os.environ.get("ORDER"): launches = [x + "_kernel" for x in os.environ["ORDER"].split(",")]
    order = launches or ["prep_kernel", "conv1_kernel", "mlpa_kernel", "conv2_kernel", "mlpb_kernel"]
    hdr = open("cdna_kernels/" + NAME + ".s.ref").read().split("; Override launch")[0]
    out = [hdr.rstrip("\n")]
    for n in order:
        i = infos[n]
        out.append(f"; @launch kernel={n} grid=({i['grid']},1,1) block=({i['block']},1,1) lds={i['lds']}")
    out.append('.amdgcn_target "amdgcn-amd-amdhsa--gfx950"\n.text')
    for n in infos:
        out.append(f".globl {n}\n.type {n},@function")
    out.append(".p2align 8\nprep_kernel:\n" + kp.text())
    for kk in (kc, km):
        out.append(".p2align 8\n" + kk.text())
    for n, i in infos.items():
        out.append(descriptor(n, i["vgpr"], 102 if DIAG else i["sgpr"], i["accum"]))
    open(path, "w").write("\n".join(out))

if __name__ == "__main__":
    emit(sys.argv[1] if len(sys.argv) > 1 else "cdna_kernels/" + NAME + ".s")
```

```python
import sys, struct
from asmlib import *

NAME = "interleave_layers__ssm_conv_s4d__glu_gated_glu__prompt"
KA_U, KA_LOGA, KA_AIM, KA_CRE, KA_CIM, KA_LOGDT, KA_DSKIP, KA_BX, KA_WG, KA_WU, KA_WD, KA_OUT, KA_DBG, KA_WS = [8 * i for i in range(14)]
XT0, X1T, X2T, X3T = 0x3000000, 0x3300000, 0x3600000, 0x3900000
ST0, ST1, CSUM = 0x0800000, 0x0804000, 0x0808000
WP = 0x0C00000
WD = 0x1000000
HB = 0x1200000
HB1 = 0x2200000
ZR = 0x0810000; STX = 0x0810000; FLG = 0x0820000
KP = 0x1800000; KCS = 4160; KP_STRIDE = 4 * KCS
WS_BYTES = 0x10000000
L, D, F, NST = 2048, 512, 1376, 128
NKS2 = 44
HKS = 45

import os
XP = int(os.environ.get('XP', '4352'))
PREP_W_POL = os.environ.get('PREP_W_POL', 'sc1')
PREP_K_POL = os.environ.get('PREP_K_POL', '')
PREP_X_POL = os.environ.get('PREP_X_POL', 'sc1')
CODEPF = int(os.environ.get('CODEPF', '1'))
DIAG = int(os.environ.get("DIAG", "0"))
DIAG_OFF = 0x4000000
_Kern = Kern
class Kern(_Kern):
    def __call__(self, s):
        for l in s.strip("\n").split("\n"):
            t = l.strip()
            if t.startswith("@CODEPF"):
                if CODEPF:
                    super().__call__(f"""
                    s_cmp_ge_u32 s2, 8
                    s_cbranch_scc1 P_NOPF
                    s_getpc_b64 s[6:7]
                    v_lshlrev_b32 v1, 6, v0
                    global_load_dword v94, v1, s[6:7]
                    v_add_u32 v1, 0x4000, v1
                    global_load_dword v95, v1, s[6:7]
                    P_NOPF:
                    """)
                continue
            if t.startswith("@"):
                if not DIAG: continue
                p = t.split()
                if p[0] == "@KID":
                    super().__call__(f"s_mov_b32 s59, {DIAG_OFF + int(p[1]) * 0x80000}\ns_mov_b32 s57, {3 if int(p[1]) in (2, 5) else 2}")
                elif p[0] == "@INIT":
                    super().__call__("v_readfirstlane_b32 s58, v0\ns_memrealtime s[64:65]\ns_memtime s[66:67]")
                elif p[0] == "@STAMP":
                    i = int(p[1]); super().__call__(f"s_memtime s[{64+2*i}:{65+2*i}]")
                elif p[0] == "@FLUSH":
                    n = int(p[1])
                    super().__call__(f"""
                    s_waitcnt vmcnt(0)
                    s_memtime s[{64+2*n}:{65+2*n}]
                    s_memrealtime s[{66+2*n}:{67+2*n}]
                    s_waitcnt lgkmcnt(0)
                    s_mov_b64 exec, -1
                    s_lshr_b32 s58, s58, 6
                    s_lshl_b32 s61, s2, s57
                    s_add_u32 s60, s58, s61
                    s_lshl_b32 s60, s60, 6
                    s_add_u32 s60, s60, s59
                    v_mov_b32 v1, s60
                    """)
                    for i in range(n + 2):
                        super().__call__(f"v_mov_b32 v2, s{64+2*i}\nglobal_store_dword v1, v2, s[4:5] offset:{4*i}")
                    super().__call__("s_getreg_b32 s61, hwreg(HW_REG_XCC_ID)\nv_mov_b32 v2, s61\nglobal_store_dword v1, v2, s[4:5] offset:60")
                continue
            super().__call__(l)

def f2u(x): return struct.unpack("<I", struct.pack("<f", x))[0]
def fl(x): return "0x%08x" % f2u(x)
LOG2E = 1.4426950408889634
L2E_HI = struct.unpack("<f", struct.pack("<f", LOG2E))[0]
L2E_LO = LOG2E - L2E_HI
LN2 = 0.6931471805599453

def srd(k, s, base, nbytes):
    k(f"""
    s_mov_b32 s{s}, s{base}
    s_and_b32 s{s+1}, s{base+1}, 0xffff
    s_mov_b32 s{s+2}, {nbytes:#x}
    s_mov_b32 s{s+3}, 0x20000
    """)

def rnd_bf16(k, dst, a, b=None):
    k(f"v_cvt_pk_bf16_f32 v{dst}, v{a}, v{b if b is not None else a}")

def exp_acc(k, dst, x, t0, t1):
    k(f"""
    v_mul_f32 v{t0}, s40, v{x}
    v_fma_f32 v{t1}, s40, v{x}, -v{t0}
    v_fma_f32 v{t1}, s41, v{x}, v{t1}
    v_exp_f32 v{dst}, v{t0}
    v_mul_f32 v{t1}, s42, v{t1}
    v_fma_f32 v{dst}, v{dst}, v{t1}, v{dst}
    """)

N_K, N_T, N_S, N_W, N_D, N_C = 512, 256, 256, 240, 176, 44
B_T = N_K; B_S = B_T + N_T; B_W = B_S + N_S; B_D = B_W + N_W; B_C = B_D + N_D; PREP_WGS = B_C + N_C
PREP_LDS = 28672

def gen_prep():
    k = Kern("prep_kernel")
    k(f"""
    @KID 0
    @INIT
    s_load_dwordx2 s[4:5], s[0:1], {KA_WS}
    @CODEPF
    s_cmp_lt_u32 s2, {B_T}
    s_cbranch_scc1 P_KGEN
    s_cmp_lt_u32 s2, {B_S}
    s_cbranch_scc1 P_TR
    s_cmp_lt_u32 s2, {B_W}
    s_cbranch_scc1 P_ST
    s_cmp_lt_u32 s2, {B_D}
    s_cbranch_scc1 P_W
    s_cmp_lt_u32 s2, {B_C}
    s_cbranch_scc1 P_D
    s_cmp_lt_u32 s2, {PREP_WGS}
    s_cbranch_scc1 P_C
    s_endpgm
    """)
    k.label("P_KGEN")
    TB = 16384
    k(f"""
    s_load_dwordx4 s[8:11], s[0:1], {KA_LOGA}
    s_load_dwordx4 s[12:15], s[0:1], {KA_CRE}
    s_load_dwordx2 s[16:17], s[0:1], {KA_LOGDT}
    s_mov_b32 s40, {fl(L2E_HI)}
    s_mov_b32 s41, {fl(L2E_LO)}
    s_mov_b32 s42, {fl(LN2)}
    v_and_b32 v1, 127, v0
    s_lshl_b32 s3, s2, 8
    v_lshl_add_u32 v2, v1, 1, s3
    s_lshl_b32 s18, s2, 1
    v_mov_b32 v3, s18
    v_readfirstlane_b32 s19, v0
    s_lshr_b32 s19, s19, 6                ; wave
    s_waitcnt lgkmcnt(0)
    global_load_ushort v4, v2, s[8:9]
    global_load_ushort v8, v3, s[16:17]
    global_load_ushort v5, v2, s[10:11]
    global_load_ushort v6, v2, s[12:13]
    global_load_ushort v7, v2, s[14:15]
    v_and_b32 v20, 15, v0                 ; i / j
    v_bfe_u32 v21, v0, 4, 2               ; g
    ; hi0 = 128*(i>>3) + (i&7)
    v_lshrrev_b32 v23, 3, v20
    v_and_b32 v24, 7, v20
    v_lshl_add_u32 v23, v23, 7, v24
    v_cvt_f32_u32 v30, v23
    ; hi1 = (g''<2 ? 256+2g'' : 256*g'') + 128*((i>>1)&1) + 4*(i&1)
    v_lshrrev_b32 v23, 2, v20
    v_lshlrev_b32 v24, 1, v23
    v_add_u32 v24, 0x100, v24
    v_lshlrev_b32 v25, 8, v23
    v_cmp_gt_u32 vcc, 2, v23
    v_cndmask_b32 v24, v25, v24, vcc
    v_bfe_u32 v25, v20, 1, 1
    v_lshl_add_u32 v24, v25, 7, v24
    v_and_b32 v25, 1, v20
    v_lshl_add_u32 v24, v25, 2, v24
    v_cvt_f32_u32 v31, v24
    v_lshlrev_b32 v23, 7, v20
    v_add_u32 v23, 0x400, v23
    v_cvt_f32_u32 v32, v23                ; hi2
    v_lshlrev_b32 v23, 3, v20
    v_cvt_f32_u32 v33, v23                ; lo
    s_lshl_b32 s20, s19, 9
    v_lshl_add_u32 v34, v21, 6, s20
    v_lshrrev_b32 v23, 1, v21
    v_and_b32 v24, 1, v21
    v_lshlrev_b32 v24, 2, v24
    v_lshl_add_u32 v35, v23, 7, v24       ; tile0: 128*(g'>>1) + 4*(g'&1)
    v_lshlrev_b32 v24, 1, v21
    v_add_u32 v24, 0x100, v24
    v_lshlrev_b32 v25, 8, v21
    v_cmp_gt_u32 vcc, 2, v21
    v_cndmask_b32 v36, v25, v24, vcc      ; tile1
    v_lshlrev_b32 v24, 9, v21
    v_add_u32 v37, 0x400, v24             ; tile2
    s_cmp_eq_u32 s19, 1
    s_cselect_b64 vcc, -1, 0
    s_cselect_b32 s21, 16, 4
    s_cselect_b32 s22, 0x200, 8
    v_cndmask_b32 v35, v35, v36, vcc
    s_cmp_eq_u32 s19, 2
    s_cselect_b64 vcc, -1, 0
    s_cselect_b32 s21, 0x200, s21
    s_cselect_b32 s22, 0x400, s22
    v_cndmask_b32 v35, v35, v37, vcc
    v_lshl_add_u32 v35, v20, 3, v35
    v_lshlrev_b32 v35, 2, v35
    v_add_u32 v36, s21, v35
    v_add_u32 v37, s22, v35
    v_add_u32 v38, s21, v37
    v_and_b32 v39, 63, v0
    v_lshlrev_b32 v39, 4, v39             ; lane*16
    s_waitcnt vmcnt(3)
    @STAMP 2
    v_lshlrev_b32 v4, 16, v4
    v_lshlrev_b32 v8, 16, v8
    """)
    exp_acc(k, 10, 8, 16, 17)
    exp_acc(k, 11, 4, 18, 19)
    k(f"""
    v_cvt_pk_bf16_f32 v10, v10, v11
    v_and_b32 v11, 0xffff0000, v10        ; eA
    v_lshlrev_b32 v10, 16, v10            ; dt
    v_mul_f32 v12, v11, v10
    v_mul_f32 v12, s40, v12
    v_sub_f32 v12, 0, v12
    s_waitcnt vmcnt(0)
    v_lshlrev_b32 v5, 16, v5
    v_lshlrev_b32 v6, 16, v6
    v_lshlrev_b32 v7, 16, v7
    v_mul_f32 v13, v5, v10
    v_mul_f32 v13, 0.15915494, v13
    v_add_f32 v10, v10, v10
    v_mul_f32 v14, v6, v10                ; 2*Cre*dt
    v_mul_f32 v15, v7, v10                ; 2*Cim*dt
    v_lshlrev_b32 v9, 4, v1
    ds_write_b128 v9, v[12:15]
    v_max3_f32 v16, |v14|, |v15|, 0
    v_max_f32_dpp v16, v16, v16 row_shr:1 row_mask:0xf bank_mask:0xf
    v_max_f32_dpp v16, v16, v16 row_shr:2 row_mask:0xf bank_mask:0xf
    v_max_f32_dpp v16, v16, v16 row_shr:4 row_mask:0xf bank_mask:0xf
    v_max_f32_dpp v16, v16, v16 row_shr:8 row_mask:0xf bank_mask:0xf
    v_max_f32_dpp v16, v16, v16 row_bcast:15 row_mask:0xa bank_mask:0xf
    v_max_f32_dpp v16, v16, v16 row_bcast:31 row_mask:0xc bank_mask:0xf
    v_readlane_b32 s23, v16, 63
    s_and_b32 s24, s19, 1
    s_lshl_b32 s24, s24, 2
    v_mov_b32 v17, s24
    v_mov_b32 v16, s23
    ds_write_b32 v17, v16 offset:2048
    v_mov_b32 v18, 0
    s_waitcnt lgkmcnt(0)
    s_barrier
    @STAMP 3
    ds_read_b64 v[16:17], v18 offset:2048
    s_mov_b32 s20, 0
    s_waitcnt lgkmcnt(0)
    v_max_f32 v16, v16, v17
    v_bfe_u32 v16, v16, 23, 8
    v_max_u32 v16, 14, v16
    v_sub_u32 v17, 0x8c, v16
    v_cvt_f32_i32 v29, v17                ; kf = 140 - e'
    v_mov_b32 v28, 0
    v_subrev_u32 v16, 13, v16
    v_lshlrev_b32 v27, 23, v16            ; Sinv
    P_KLOOP:
    ds_read_b128 v[52:55], v34
    ds_read_b128 v[56:59], v34 offset:16
    ds_read_b128 v[60:63], v34 offset:32
    ds_read_b128 v[64:67], v34 offset:48
    v_add_u32 v34, 0x100, v34
    """)
    for nn in range(4):
        p = 52 + 4 * nn
        k(f"""
        s_waitcnt lgkmcnt({3-nn})
        v_pk_mul_f32 v[2:3], v[30:31], v[{p}:{p+1}] op_sel_hi:[1,0]
        v_pk_fma_f32 v[4:5], v[32:33], v[{p}:{p+1}], v[28:29] op_sel_hi:[1,0,1]
        v_pk_mul_f32 v[6:7], v[30:31], v[{p}:{p+1}] op_sel:[0,1] op_sel_hi:[1,1]
        v_pk_mul_f32 v[8:9], v[32:33], v[{p}:{p+1}] op_sel:[0,1] op_sel_hi:[1,1]
        v_exp_f32 v2, v2
        v_exp_f32 v3, v3
        v_exp_f32 v4, v4
        v_exp_f32 v5, v5
        v_fract_f32 v6, v6
        v_fract_f32 v7, v7
        v_fract_f32 v8, v8
        v_fract_f32 v9, v9
        v_cos_f32 v10, v6
        v_sin_f32 v11, v6
        v_cos_f32 v12, v7
        v_sin_f32 v13, v7
        v_cos_f32 v14, v8
        v_sin_f32 v15, v8
        v_cos_f32 v16, v9
        v_sin_f32 v17, v9
        v_pk_mul_f32 v[10:11], v[10:11], v[2:3] op_sel_hi:[1,0]
        v_pk_mul_f32 v[12:13], v[12:13], v[2:3] op_sel:[0,1] op_sel_hi:[1,1]
        v_pk_mul_f32 v[14:15], v[14:15], v[4:5] op_sel_hi:[1,0]
        v_pk_mul_f32 v[16:17], v[16:17], v[4:5] op_sel:[0,1] op_sel_hi:[1,1]
        v_cvt_pk_f16_f32 v{68+nn}, v10, v11
        v_cvt_pk_f16_f32 v{72+nn}, v12, v13
        v_cvt_pk_f16_f32 v{76+nn}, v14, v15
        v_pk_mul_f32 v[18:19], v[16:17], v[{p+2}:{p+3}] op_sel_hi:[1,0]
        v_pk_fma_f32 v[18:19], v[16:17], v[{p+2}:{p+3}], v[18:19] op_sel:[1,1,0] op_sel_hi:[0,1,1] neg_lo:[1,0,0]
        v_cvt_pk_f16_f32 v{80+nn}, v18, -v19
        """)
    k(f"""
    s_cmp_eq_u32 s20, 1
    s_cbranch_scc1 P_KL2
    v_mfma_f32_16x16x32_f16 v[40:43], v[68:71], v[80:83], 0
    v_mfma_f32_16x16x32_f16 v[44:47], v[72:75], v[80:83], 0
    v_mfma_f32_16x16x32_f16 v[48:51], v[76:79], v[80:83], 0
    s_mov_b32 s20, 1
    s_branch P_KLOOP
    P_KL2:
    v_mfma_f32_16x16x32_f16 v[40:43], v[68:71], v[80:83], v[40:43]
    v_mfma_f32_16x16x32_f16 v[44:47], v[72:75], v[80:83], v[44:47]
    v_mfma_f32_16x16x32_f16 v[48:51], v[76:79], v[80:83], v[48:51]
    @STAMP 4
    s_mul_i32 s20, s19, 3072
    v_add_u32 v2, s20, v39
    s_lshl_b32 s20, s19, 10
    v_add_u32 v3, s20, v39
    """)
    k("v_lshlrev_b32 v1, 3, v0")
    for e in range(11):
        k(f"v_add_u32 v{52+e}, {e-3}, v1")
        if e < 3: k(f"v_max_i32 v{52+e}, 0, v{52+e}")
        k(f"v_cvt_f32_u32 v{52+e}, v{52+e}")
    k(f"""
    ds_write_b128 v2, v[40:43] offset:4096
    ds_write_b128 v2, v[44:47] offset:5120
    ds_write_b128 v2, v[48:51] offset:6144
    """)
    for e in range(0, 11, 2):
        k(f"v_cvt_pk_bf16_f32 v{64+e//2}, v{52+e}, v{min(53+e, 62)}")
    for e in range(0, 11, 2):
        k(f"v_lshlrev_b32 v{52+e}, 16, v{64+e//2}")
        if e < 10: k(f"v_and_b32 v{53+e}, 0xffff0000, v{64+e//2}")
    for e in range(11):
        k(f"v_cvt_u32_f32 v{52+e}, v{52+e}")
        k(f"v_lshlrev_b32 v{52+e}, 2, v{52+e}")
    k(f"""
    s_waitcnt lgkmcnt(0)
    s_barrier
    s_cmp_eq_u32 s19, 3
    s_cbranch_scc1 P_KS
    ds_read_b128 v[40:43], v3 offset:4096
    ds_read_b128 v[44:47], v3 offset:{4096+3072}
    ds_read_b128 v[48:51], v3 offset:{4096+6144}
    ds_read_b128 v[4:7], v3 offset:{4096+9216}
    s_waitcnt lgkmcnt(2)
    v_pk_add_f32 v[40:41], v[40:41], v[44:45]
    v_pk_add_f32 v[42:43], v[42:43], v[46:47]
    s_waitcnt lgkmcnt(0)
    v_pk_add_f32 v[48:49], v[48:49], v[4:5]
    v_pk_add_f32 v[50:51], v[50:51], v[6:7]
    v_pk_add_f32 v[40:41], v[40:41], v[48:49]
    v_pk_add_f32 v[42:43], v[42:43], v[50:51]
    v_mul_f32 v40, v27, v40
    v_mul_f32 v41, v27, v41
    v_mul_f32 v42, v27, v42
    v_mul_f32 v43, v27, v43
    ds_write_b32 v35, v40 offset:{TB}
    ds_write_b32 v36, v41 offset:{TB}
    ds_write_b32 v37, v42 offset:{TB}
    ds_write_b32 v38, v43 offset:{TB}
    P_KS:
    s_waitcnt lgkmcnt(0)
    s_barrier
    @STAMP 5
    """)
    for e in range(11):
        k(f"ds_read_b32 v{52+e}, v{52+e} offset:{TB}")
    k(f"""
    s_mul_i32 s3, s2, {KP_STRIDE}
    s_add_u32 s3, s3, {KP}
    v_lshlrev_b32 v1, 4, v0
    v_add_u32 v1, s3, v1
    v_add_u32 v2, {KCS}, v1
    v_add_u32 v3, {2*KCS}, v1
    v_add_u32 v4, {3*KCS}, v1
    v_mov_b32 v12, 0
    v_mov_b32 v13, 0
    v_mov_b32 v14, 0
    v_mov_b32 v15, 0
    v_cmp_eq_u32 vcc, 0, v0
    v_lshrrev_b32 v5, 2, v0
    v_mul_u32_u24 v5, {KCS}, v5
    v_and_b32 v6, 3, v0
    v_lshl_add_u32 v5, v6, 4, v5
    v_add_u32 v5, s3, v5
    v_cmp_gt_u32 s[24:25], 3, v6
    v_cmp_gt_u32 s[26:27], 16, v0
    s_and_b64 s[24:25], s[24:25], s[26:27]
    s_waitcnt lgkmcnt(0)
    v_cndmask_b32 v52, v52, v12, vcc
    v_cndmask_b32 v53, v53, v12, vcc
    v_cndmask_b32 v54, v54, v12, vcc
    """)
    for sft in range(4):
        for j in range(4):
            k(f"v_cvt_pk_bf16_f32 v{64+4*sft+j}, v{52+sft+7-2*j}, v{52+sft+6-2*j}")
        k(f"global_store_dwordx4 v{1+sft}, v[{64+4*sft}:{67+4*sft}], s[4:5] offset:48 {PREP_K_POL}")
    k(f"""
    s_mov_b64 exec, s[24:25]
    s_cbranch_execz P_KEND
    global_store_dwordx4 v5, v[12:15], s[4:5]
    P_KEND:
    @FLUSH 6
    s_endpgm
    """)
    k.label("P_TR")
    PITCH = 144
    k(f"""
    s_load_dwordx2 s[8:9], s[0:1], {KA_U}
    s_sub_u32 s3, s2, {B_T}
    s_lshr_b32 s10, s3, 3                 ; lt (0..31)
    s_and_b32 s11, s3, 7                  ; dt (0..7)
    v_lshrrev_b32 v1, 3, v0               ; row 0..31
    v_and_b32 v2, 7, v0                   ; chunk
    s_lshl_b32 s12, s10, 16               ; lt*64*1024
    s_lshl_b32 s13, s11, 7
    s_add_u32 s12, s12, s13
    v_lshlrev_b32 v3, 10, v1
    v_lshl_add_u32 v3, v2, 4, v3
    v_add_u32 v3, s12, v3
    v_add_u32 v4, 0x8000, v3
    s_waitcnt lgkmcnt(0)
    global_load_dwordx4 v[8:11], v3, s[8:9]
    global_load_dwordx4 v[12:15], v4, s[8:9]
    v_mul_u32_u24 v5, {PITCH}, v1
    v_lshl_add_u32 v5, v2, 4, v5
    v_and_b32 v6, 15, v0                  ; lam
    v_bfe_u32 v7, v0, 4, 2                ; g
    v_lshrrev_b32 v16, 6, v0              ; w
    v_lshrrev_b32 v17, 2, v6              ; r = lam>>2
    v_lshl_add_u32 v17, v7, 3, v17        ; row = 8g + r
    v_mul_u32_u24 v17, {PITCH}, v17
    v_and_b32 v18, 3, v6
    v_lshl_add_u32 v17, v18, 3, v17       ; + c*8
    v_lshl_add_u32 v17, v16, 5, v17       ; + w*32 bytes
    s_mul_i32 s12, s11, {64*XP}
    s_lshl_b32 s13, s10, 7
    s_add_u32 s12, s12, s13
    s_add_u32 s12, s12, {XT0}
    v_lshl_add_u32 v19, v16, 4, v6
    v_mul_u32_u24 v19, {XP}, v19
    v_lshl_add_u32 v19, v7, 4, v19
    v_add_u32 v19, s12, v19
    s_waitcnt vmcnt(0)
    ds_write_b128 v5, v[8:11]
    ds_write_b128 v5, v[12:15] offset:{32*PITCH}
    s_waitcnt lgkmcnt(0)
    s_barrier
    ds_read_b64_tr_b16 v[8:9], v17
    ds_read_b64_tr_b16 v[10:11], v17 offset:{4*PITCH}
    ds_read_b64_tr_b16 v[12:13], v17 offset:{32*PITCH}
    ds_read_b64_tr_b16 v[14:15], v17 offset:{36*PITCH}
    s_waitcnt lgkmcnt(0)
    global_store_dwordx4 v19, v[8:11], s[4:5] {PREP_X_POL}
    global_store_dwordx4 v19, v[12:15], s[4:5] offset:64 {PREP_X_POL}
    @FLUSH 2
    s_endpgm
    """)
    k.label("P_ST")
    k(f"""
    s_load_dwordx2 s[8:9], s[0:1], {KA_U}
    s_sub_u32 s3, s2, {B_S}
    v_lshrrev_b32 v1, 6, v0
    v_and_b32 v2, 63, v0
    s_lshl_b32 s10, s3, 13                ; 8 rows * 1024
    v_lshlrev_b32 v3, 11, v1
    v_lshl_add_u32 v3, v2, 4, v3
    v_add_u32 v3, s10, v3
    s_waitcnt lgkmcnt(0)
    global_load_dwordx4 v[8:11], v3, s[8:9]
    global_load_dwordx4 v[12:15], v3, s[8:9] offset:1024
    s_lshl_b32 s10, s3, 4
    v_lshlrev_b32 v4, 12, v1
    v_add_u32 v4, s10, v4                 ; w*4096 + wg*16
    v_add_u32 v5, {ST0}, v4
    v_add_u32 v6, {ST1}, v4
    s_waitcnt vmcnt(0)
    """)
    for row, (base, sm, sq) in enumerate([(8, 20, 21), (12, 22, 23)]):
        for j in range(4):
            k(f"v_lshlrev_b32 v16, 16, v{base+j}")
            k(f"v_and_b32 v17, 0xffff0000, v{base+j}")
            if j == 0:
                k(f"v_add_f32 v{sm}, v16, v17")
                k(f"v_mul_f32 v{sq}, v16, v16")
            else:
                k(f"v_add_f32 v{sm}, v{sm}, v16")
                k(f"v_add_f32 v{sm}, v{sm}, v17")
                k(f"v_fmac_f32 v{sq}, v16, v16")
            k(f"v_fmac_f32 v{sq}, v17, v17")
    for sh in ("row_shr:1", "row_shr:2", "row_shr:4", "row_shr:8"):
        for r in range(20, 24):
            k(f"v_add_f32_dpp v{r}, v{r}, v{r} {sh} row_mask:0xf bank_mask:0xf bound_ctrl:0")
    for r in range(20, 24):
        k(f"v_add_f32_dpp v{r}, v{r}, v{r} row_bcast:15 row_mask:0xa bank_mask:0xf")
    for r in range(20, 24):
        k(f"v_add_f32_dpp v{r}, v{r}, v{r} row_bcast:31 row_mask:0xc bank_mask:0xf")
    k(f"""
    v_mov_b32 v24, 0
    v_mov_b32 v25, 0
    v_mov_b32 v26, 0
    v_mov_b32 v27, 0
    s_lshl_b32 s10, s3, 9
    s_add_u32 s10, s10, {ZR}
    v_and_b32 v7, 31, v0
    v_lshl_add_u32 v7, v7, 4, s10
    global_store_dwordx4 v7, v[24:27], s[4:5]
    v_cmp_eq_u32 vcc, 63, v2
    s_and_saveexec_b64 s[22:23], vcc
    global_store_dwordx4 v5, v[20:23], s[4:5]
    global_store_dwordx4 v6, v[24:27], s[4:5]
    @FLUSH 2
    s_endpgm
    """)
    k.label("P_W")
    WPITCH = 400
    k(f"""
    s_load_dwordx4 s[8:11], s[0:1], {KA_WG}
    s_sub_u32 s3, s2, {B_W}
    s_lshr_b32 s12, s3, 4                 ; ft
    s_and_b32 s13, s3, 15                 ; s
    """)
    k(f"""
    s_mul_i32 s14, s13, {32*F*2}
    s_mul_i32 s15, s12, 192
    s_add_u32 s14, s14, s15
    s_mul_i32 s16, s12, 12
    s_mov_b32 s17, 0x15555556
    """)
    k(f"v_mov_b32 v5, {F//8}")
    for i in range(2):
        k(f"""
        v_add_u32 v1, {256*i}, v0
        v_mul_hi_u32 v2, v1, s17
        v_mul_u32_u24 v3, 12, v2
        v_sub_u32 v3, v1, v3                  ; chunk
        v_mul_u32_u24 v4, {F*2}, v2
        v_lshl_add_u32 v4, v3, 4, v4
        v_add_u32 v{40+i}, s14, v4
        v_mul_u32_u24 v4, {WPITCH}, v2
        v_lshl_add_u32 v{42+i}, v3, 5, v4
        v_add_u32 v3, s16, v3
        v_cmp_gt_u32 s[{24+2*i}:{25+2*i}], v5, v3
        """)
    for r in range(8, 24): k(f"v_mov_b32 v{r}, 0")
    k(f"""
    v_cmp_gt_u32 vcc, 0x80, v0
    s_and_b64 s[26:27], s[26:27], vcc
    s_waitcnt lgkmcnt(0)
    s_mov_b64 s[28:29], exec
    s_mov_b64 exec, s[24:25]
    s_cbranch_execz P_W1
    global_load_dwordx4 v[8:11], v40, s[8:9]
    global_load_dwordx4 v[12:15], v40, s[10:11]
    P_W1:
    s_mov_b64 exec, s[26:27]
    s_cbranch_execz P_W2
    global_load_dwordx4 v[16:19], v41, s[8:9]
    global_load_dwordx4 v[20:23], v41, s[10:11]
    P_W2:
    s_mov_b64 exec, s[28:29]
    s_waitcnt vmcnt(0)
    ds_write2_b32 v42, v8, v9 offset0:0 offset1:2
    ds_write2_b32 v42, v10, v11 offset0:4 offset1:6
    ds_write2_b32 v42, v12, v13 offset0:1 offset1:3
    ds_write2_b32 v42, v14, v15 offset0:5 offset1:7
    s_and_saveexec_b64 s[28:29], vcc
    s_cbranch_execz P_W3
    ds_write2_b32 v43, v16, v17 offset0:0 offset1:2
    ds_write2_b32 v43, v18, v19 offset0:4 offset1:6
    ds_write2_b32 v43, v20, v21 offset0:1 offset1:3
    ds_write2_b32 v43, v22, v23 offset0:5 offset1:7
    P_W3:
    s_mov_b64 exec, s[28:29]
    v_and_b32 v1, 15, v0
    v_bfe_u32 v2, v0, 4, 2
    v_lshrrev_b32 v3, 2, v1
    v_lshl_add_u32 v3, v2, 2, v3
    v_mul_u32_u24 v3, {WPITCH}, v3
    v_and_b32 v4, 3, v1
    v_lshl_add_u32 v3, v4, 3, v3
    v_readfirstlane_b32 s18, v0
    s_lshr_b32 s18, s18, 6                ; w
    s_lshl_b32 s19, s18, 7
    s_mov_b32 s20, 32
    s_cmp_eq_u32 s18, 3
    s_cselect_b32 s19, 96, s19
    s_cselect_b32 s20, 128, s20
    v_add_u32 v3, s19, v3
    v_add_u32 v4, s20, v3
    v_add_u32 v5, s20, v4
    s_lshl_b32 s21, s12, 2
    s_add_u32 s21, s21, s18
    s_lshl_b32 s21, s21, 4
    s_add_u32 s21, s21, s13
    s_mul_i32 s21, s21, 3072
    s_add_u32 s21, s21, {WP}
    v_and_b32 v6, 63, v0
    v_lshlrev_b32 v6, 4, v6
    v_add_u32 v6, s21, v6
    v_add_u32 v7, 0x400, v6
    v_add_u32 v24, 0x800, v6
    s_waitcnt lgkmcnt(0)
    s_barrier
    ds_read_b64_tr_b16 v[8:9], v3
    ds_read_b64_tr_b16 v[10:11], v3 offset:{16*WPITCH}
    ds_read_b64_tr_b16 v[12:13], v4
    ds_read_b64_tr_b16 v[14:15], v4 offset:{16*WPITCH}
    ds_read_b64_tr_b16 v[16:17], v5
    ds_read_b64_tr_b16 v[18:19], v5 offset:{16*WPITCH}
    s_waitcnt lgkmcnt(0)
    global_store_dwordx4 v6, v[8:11], s[4:5] {PREP_W_POL}
    global_store_dwordx4 v7, v[12:15], s[4:5] {PREP_W_POL}
    global_store_dwordx4 v24, v[16:19], s[4:5] {PREP_W_POL}
    @FLUSH 2
    s_endpgm
    """)
    k.label("P_D")
    DPITCH = 272
    k(f"""
    s_load_dwordx2 s[8:9], s[0:1], {KA_WD}
    s_sub_u32 s3, s2, {B_D}
    s_lshr_b32 s12, s3, 2                 ; ks 0..43
    s_and_b32 s13, s3, 3                  ; dq
    v_lshrrev_b32 v1, 4, v0               ; row 0..15 (+16)
    v_and_b32 v2, 15, v0                  ; chunk
    s_lshl_b32 s14, s12, 15               ; ks*32*1024
    s_lshl_b32 s15, s13, 8
    s_add_u32 s14, s14, s15
    v_lshlrev_b32 v3, 10, v1
    v_lshl_add_u32 v3, v2, 4, v3
    v_add_u32 v3, s14, v3
    v_add_u32 v4, 0x4000, v3
    """)
    for r in range(8, 16): k(f"v_mov_b32 v{r}, 0")
    k(f"""
    s_waitcnt lgkmcnt(0)
    s_cmp_ge_u32 s12, 43
    s_cbranch_scc1 P_D1
    global_load_dwordx4 v[8:11], v3, s[8:9]
    global_load_dwordx4 v[12:15], v4, s[8:9]
    P_D1:
    v_bfe_u32 v5, v1, 1, 2                ; g
    v_lshrrev_b32 v6, 3, v1               ; dw (0/1)
    v_and_b32 v7, 1, v1
    v_lshl_add_u32 v7, v6, 1, v7
    v_lshl_add_u32 v7, v5, 3, v7          ; rho
    v_mul_u32_u24 v7, {DPITCH}, v7
    v_lshl_add_u32 v7, v2, 4, v7
    v_and_b32 v1, 15, v0
    v_bfe_u32 v2, v0, 4, 2
    v_lshrrev_b32 v16, 6, v0
    v_lshrrev_b32 v3, 2, v1
    v_lshl_add_u32 v3, v2, 3, v3          ; row = 8g + r
    v_mul_u32_u24 v3, {DPITCH}, v3
    v_and_b32 v4, 3, v1
    v_lshl_add_u32 v3, v4, 3, v3          ; + c*8 bytes (4 d)
    v_lshl_add_u32 v3, v16, 6, v3         ; + w*64
    s_lshl_b32 s16, s13, 3
    v_lshl_add_u32 v17, v16, 1, s16
    v_mul_u32_u24 v17, {NKS2*1024}, v17
    v_and_b32 v18, 63, v0
    v_lshl_add_u32 v17, v18, 4, v17
    s_lshl_b32 s16, s12, 10
    s_add_u32 s16, s16, {WD}
    v_add_u32 v17, s16, v17
    v_add_u32 v18, {NKS2*1024}, v17
    s_waitcnt vmcnt(0)
    ds_write_b128 v7, v[8:11]
    ds_write_b128 v7, v[12:15] offset:{4*DPITCH}
    s_waitcnt lgkmcnt(0)
    s_barrier
    ds_read_b64_tr_b16 v[8:9], v3
    ds_read_b64_tr_b16 v[10:11], v3 offset:{4*DPITCH}
    ds_read_b64_tr_b16 v[12:13], v3 offset:32
    ds_read_b64_tr_b16 v[14:15], v3 offset:{4*DPITCH+32}
    s_waitcnt lgkmcnt(0)
    global_store_dwordx4 v17, v[8:11], s[4:5] {PREP_W_POL}
    global_store_dwordx4 v18, v[12:15], s[4:5] {PREP_W_POL}
    @FLUSH 2
    s_endpgm
    """)
    k.label("P_C")
    k(f"""
    s_load_dwordx4 s[8:11], s[0:1], {KA_WG}
    s_sub_u32 s3, s2, {B_C}
    s_and_b32 s12, s3, 1                  ; mat
    s_lshr_b32 s13, s3, 1                 ; cb 0..21
    v_lshrrev_b32 v1, 3, v0
    v_and_b32 v2, 7, v0                   ; chunk
    s_lshl_b32 s14, s13, 3
    v_add_u32 v3, s14, v2
    v_mul_u32_u24 v4, {F*2}, v1
    v_lshl_add_u32 v4, v3, 4, v4
    s_waitcnt lgkmcnt(0)
    s_cmp_eq_u32 s12, 1
    s_cselect_b32 s8, s10, s8
    s_cselect_b32 s9, s11, s9
    v_mov_b32 v5, {F//8}
    v_cmp_gt_u32 vcc, v5, v3
    """)
    for r in range(8, 16): k(f"v_mov_b32 v{r}, 0")
    k("""
    s_and_saveexec_b64 s[28:29], vcc
    s_cbranch_execz P_C2
    """)
    for i in range(16):
        k(f"global_load_dwordx4 v[{16+4*i}:{19+4*i}], v4, s[8:9]")
        if i < 15: k(f"v_add_u32 v4, {32*F*2}, v4")
    for i in range(16):
        k(f"s_waitcnt vmcnt({15-i})")
        for j in range(4):
            k(f"v_lshlrev_b32 v6, 16, v{16+4*i+j}")
            k(f"v_and_b32 v7, 0xffff0000, v{16+4*i+j}")
            k(f"v_add_f32 v{8+2*j}, v{8+2*j}, v6")
            k(f"v_add_f32 v{9+2*j}, v{9+2*j}, v7")
    k(f"""
    P_C2:
    s_mov_b64 exec, s[28:29]
    v_lshlrev_b32 v6, 5, v0
    ds_write_b128 v6, v[8:11]
    ds_write_b128 v6, v[12:15] offset:16
    s_waitcnt lgkmcnt(0)
    s_barrier
    v_cmp_gt_u32 vcc, 64, v0
    s_and_saveexec_b64 s[28:29], vcc
    s_cbranch_execz P_C3
    v_lshlrev_b32 v6, 2, v0
    """)
    for i in range(32):
        k(f"ds_read_b32 v{16+i}, v6 offset:{256*i}")
    k("s_waitcnt lgkmcnt(0)")
    for i in range(1, 32):
        k(f"v_add_f32 v16, v16, v{16+i}")
    k(f"""
    s_lshl_b32 s14, s13, 6
    v_add_u32 v1, s14, v0                 ; f
    s_mov_b32 s17, 0x2aaaaab
    v_mul_hi_u32 v2, v1, s17              ; ft
    v_mul_u32_u24 v3, 96, v2
    v_sub_u32 v3, v1, v3                  ; rem
    v_lshrrev_b32 v4, 5, v3               ; j
    v_bfe_u32 v5, v3, 3, 2                ; dw
    v_mul_u32_u24 v7, 3, v4
    v_add_u32 v7, v7, v5                  ; 3j + dw
    v_add_u32 v8, 9, v4                   ; 9 + j
    v_cmp_eq_u32 vcc, 3, v5
    v_cndmask_b32 v7, v7, v8, vcc         ; w*3+tau
    v_mul_u32_u24 v8, 12, v2
    v_add_u32 v7, v7, v8
    v_lshlrev_b32 v7, 4, v7
    v_bfe_u32 v8, v3, 1, 2
    v_lshl_add_u32 v7, v8, 2, v7
    v_and_b32 v8, 1, v3
    v_add_u32 v7, v7, v8
    s_lshl_b32 s14, s12, 1
    v_add_u32 v7, s14, v7
    v_lshlrev_b32 v7, 2, v7
    v_add_u32 v7, {CSUM}, v7
    global_store_dword v7, v16, s[4:5]
    s_cmp_lg_u32 s13, 21
    s_cbranch_scc1 P_C3
    v_cmp_gt_u32 vcc, 32, v0
    s_and_b64 exec, exec, vcc
    v_bfe_u32 v5, v0, 3, 2
    v_add_u32 v7, 6, v5
    v_cmp_eq_u32 vcc, 3, v5
    v_cndmask_b32 v7, v7, 11, vcc
    v_add_u32 v7, {14*12}, v7
    v_lshlrev_b32 v7, 4, v7
    v_bfe_u32 v8, v0, 1, 2
    v_lshl_add_u32 v7, v8, 2, v7
    v_and_b32 v8, 1, v0
    v_add_u32 v7, v7, v8
    v_add_u32 v7, s14, v7
    v_lshlrev_b32 v7, 2, v7
    v_add_u32 v7, {CSUM}, v7
    v_mov_b32 v16, 0
    global_store_dword v7, v16, s[4:5]
    P_C3:
    @FLUSH 2
    s_endpgm
    """)
    return k, dict(vgpr=96, sgpr=48, accum=96, grid=PREP_WGS, block=256, lds=PREP_LDS)


def stats_pair(k, sa, qa, sb, qb, t, keep=None):
    for s_, q_ in ((sa, qa), (sb, qb)):
        k(f"""
        v_mul_f32 v{s_}, s43, v{s_}
        v_mul_f32 v{q_}, s43, v{q_}
        v_fma_f32 v{q_}, -v{s_}, v{s_}, v{q_}
        v_max_f32 v{q_}, 0, v{q_}
        v_cvt_pk_bf16_f32 v{q_}, v{s_}, v{q_}
        v_lshlrev_b32 v{s_}, 16, v{q_}
        v_and_b32 v{q_}, 0xffff0000, v{q_}
        v_add_f32 v{q_}, s44, v{q_}
        """)
    k(f"""
    v_cvt_pk_bf16_f32 v{t}, v{qa}, v{qb}
    v_lshlrev_b32 v{qa}, 16, v{t}
    v_and_b32 v{qb}, 0xffff0000, v{t}
    v_sqrt_f32 v{qa}, v{qa}
    v_sqrt_f32 v{qb}, v{qb}
    v_cvt_pk_bf16_f32 v{t}, v{qa}, v{qb}
    v_lshlrev_b32 v{keep[0] if keep else qa}, 16, v{t}
    v_and_b32 v{keep[1] if keep else qb}, 0xffff0000, v{t}
    v_rcp_f32 v{qa}, v{keep[0] if keep else qa}
    v_rcp_f32 v{qb}, v{keep[1] if keep else qb}
    """)

CSU = 4576
CPF = int(os.environ.get('CPF', '1'))
CPF_STRIDE = int(os.environ.get('CPF_STRIDE', '128'))
KL = 2 * CSU
CRED = KL + 17408
CONV_LDS = CRED + 32768

def gen_conv():
    k = Kern("conv")
    k(f"""
    conv1_kernel:
    s_mov_b32 s30, {XT0}
    s_mov_b32 s31, {ST0}
    s_mov_b32 s32, {X1T}
    @KID 1
    CONV_BODY:
    s_cmp_ge_u32 s2, 512
    s_cbranch_scc1 CONV_END
    @INIT
    s_load_dwordx2 s[4:5], s[0:1], {KA_WS}
    s_load_dwordx2 s[6:7], s[0:1], {KA_DSKIP}
    v_readfirstlane_b32 s17, v0
    s_mov_b32 s43, {fl(1.0/512)}
    s_mov_b32 s44, {fl(1e-5)}
    s_lshr_b32 s17, s17, 6                ; pi
    s_mul_i32 s12, s2, {XP}
    s_add_u32 s13, s12, s30
    s_add_u32 s14, s12, s32
    s_mul_i32 s15, s2, {KP_STRIDE}
    s_add_u32 s15, s15, {KP}
    s_add_u32 s19, s15, 0x4000            ; chunk 16
    s_lshl_b32 s18, s17, 10
    s_add_u32 s15, s15, s18
    s_add_u32 s18, s18, {KL}
    s_lshr_b32 s16, s2, 1
    s_lshl_b32 s16, s16, 2
    v_lshlrev_b32 v1, 4, v0               ; tid*16
    v_lshlrev_b32 v2, 6, v0               ; tid*64
    v_and_b32 v3, 15, v0                  ; c / r
    v_bfe_u32 v4, v0, 4, 2                ; g
    v_and_b32 v5, 63, v0
    v_lshlrev_b32 v6, 4, v5               ; lane*16
    s_waitcnt lgkmcnt(0)
    @STAMP 11
    s_load_dword s20, s[6:7], s16
    """)
    srd(k, 8, 4, WS_BYTES)
    k(f"""
    buffer_load_dwordx4 v[16:19], v1, s[8:11], s31 offen
    s_add_u32 s31, s31, 0x1000
    buffer_load_dwordx4 v[20:23], v1, s[8:11], s31 offen
    s_add_u32 s31, s31, 0x1000
    buffer_load_dwordx4 v[24:27], v1, s[8:11], s31 offen
    s_add_u32 s31, s31, 0x1000
    buffer_load_dwordx4 v[28:31], v1, s[8:11], s31 offen
    buffer_load_dwordx4 v[12:15], v1, s[8:11], s13 offen
    @STAMP 12
    """)
    for i in range(4):
        k(f"""
        s_mov_b32 m0, s18
        s_add_u32 s18, s18, 0x1000
        buffer_load_dwordx4 v6, s[8:11], s15 offen lds
        s_add_u32 s15, s15, 0x1000
        """)
    k(f"""
    s_mov_b32 m0, {KL + 16384}
    v_mov_b32 v36, 0
    buffer_load_dwordx4 v6, s[8:11], s19 offen lds
    @STAMP 10
    v_mov_b32 v37, 0
    s_and_b32 s21, s17, 1
    s_sub_u32 s22, 56, s21
    s_mul_i32 s21, s21, {CSU}
    v_min_u32 v9, s22, v5
    v_lshl_add_u32 v9, v9, 3, s21
    ds_write_b64 v9, v[36:37]
    v_and_b32 v9, 1, v3
    v_mul_u32_u24 v9, {CSU}, v9
    v_lshrrev_b32 v10, 1, v3
    v_lshlrev_b32 v11, 2, v10
    v_sub_u32 v11, v11, v4
    s_lshl_b32 s21, s17, 2
    s_sub_u32 s21, 15, s21
    v_add_u32 v11, s21, v11
    v_lshl_add_u32 v9, v11, 4, v9         ; v9 = u addr
    v_and_b32 v7, 3, v3
    v_mul_u32_u24 v7, {KCS}, v7
    v_lshrrev_b32 v8, 2, v3
    v_add_u32 v8, v8, v4
    v_lshl_add_u32 v7, v8, 4, v7
    s_lshl_b32 s21, s17, 6
    s_add_u32 s21, s21, {KL}
    v_add_u32 v7, s21, v7                 ; v7 = K addr
    v_xor_b32 v8, v4, v10
    v_and_b32 v8, 3, v8
    v_lshlrev_b32 v8, 1, v8
    v_lshl_add_u32 v8, v10, 3, v8
    v_and_b32 v11, 1, v3
    v_add_u32 v8, v8, v11
    s_lshl_b32 s21, s17, 11
    v_lshl_add_u32 v10, v8, 4, s21
    v_bfe_u32 v8, v0, 2, 3
    v_xor_b32 v11, v8, v0
    v_and_b32 v11, 3, v11
    v_lshlrev_b32 v11, 5, v11
    v_lshl_add_u32 v11, v8, 7, v11
    v_bfe_u32 v8, v0, 5, 1
    v_lshl_add_u32 v11, v8, 10, v11
    s_lshl_b32 s21, s17, 13
    v_add_u32 v11, s21, v11
    @STAMP 2
    s_waitcnt vmcnt(6)
    @STAMP 3
    """)
    for i in range(4):
        stats_pair(k, 16 + 4*i, 17 + 4*i, 18 + 4*i, 19 + 4*i, 40)
    k("s_waitcnt vmcnt(5)")
    for j in range(4):
        k(f"""
        v_lshlrev_b32 v40, 16, v{12+j}
        v_and_b32 v41, 0xffff0000, v{12+j}
        v_sub_f32 v40, v40, v{16+4*j}
        v_sub_f32 v41, v41, v{18+4*j}
        v_cvt_pk_bf16_f32 v41, v40, v41
        v_lshlrev_b32 v40, 16, v41
        v_and_b32 v41, 0xffff0000, v41
        v_mul_f32 v40, v40, v{17+4*j}
        v_mul_f32 v41, v41, v{19+4*j}
        v_cvt_pk_bf16_f32 v{32+j}, v40, v41
        """)
    k(f"""
    ds_write_b128 v1, v[32:35] offset:{CSU + 16*28}
    ds_write2_b64 v1, v[32:33], v[34:35] offset0:57 offset1:58
    @STAMP 4
    s_waitcnt vmcnt(0) lgkmcnt(0)
    s_barrier
    @STAMP 5
    """)
    if CPF:
        k(f"""
        s_lshr_b32 s21, s2, 3
        s_lshl_b32 s21, s21, 2
        s_add_u32 s21, s21, s17
        s_mul_i32 s22, s21, 6144
        s_and_b32 s23, s2, 1
        s_mul_i32 s23, s23, {8*196608}
        s_add_u32 s22, s22, s23
        s_add_u32 s22, s22, {WP}
        s_mul_i32 s23, s21, 5632
        s_add_u32 s23, s23, {WD}
        v_mul_u32_u24 v38, {CPF_STRIDE}, v5
        """)
        for j in range(-(-6144 // (64 * CPF_STRIDE))):
            k(f"buffer_load_dword v39, v38, s[8:11], s22 offen\ns_add_u32 s22, s22, {64*CPF_STRIDE}")
        if CPF > 1:
            for j in range(-(-5632 // (64 * CPF_STRIDE))):
                k(f"buffer_load_dword v39, v38, s[8:11], s23 offen\ns_add_u32 s23, s23, {64*CPF_STRIDE}")
    KF = 48; UB = 16; ACC = 112
    pend = []
    def rd(tag):
        if tag[0] == "U":
            mu = int(tag[1:]); r = UB + 4 * (mu & 3)
            k(f"ds_read_b128 v[{r}:{r+3}], v9 offset:{256*mu}")
        else:
            t = int(tag[1:]); r = KF + 4 * t
            k(f"ds_read_b128 v[{r}:{r+3}], v7 offset:{256*t}")
        pend.append(tag)
    def need(tags):
        idx = max([pend.index(t) for t in tags if t in pend], default=-1)
        if idx >= 0:
            k(f"s_waitcnt lgkmcnt({len(pend) - idx - 1})")
            del pend[:idx + 1]
    queue = ["U0"] + [f"K{t}" for t in range(1, 16, 2)] + ["U1"] + [f"K{t}" for t in range(0, 16, 2)] + ["U2", "U3"]
    for t in queue[:12]: rd(t)
    queue = queue[12:]
    for mu in range(16):
        a = UB + 4 * (mu & 3)
        q0 = max(0, -(-(mu - 1) // 2))
        for q in range(q0, 8):
            tp = 2 * q + 1 - mu
            need([f"U{mu}", f"K{tp}"])
            c = "0" if mu == 0 else f"v[{ACC+4*q}:{ACC+4*q+3}]"
            k(f"v_mfma_f32_16x16x32_bf16 v[{ACC+4*q}:{ACC+4*q+3}], v[{KF+4*tp}:{KF+4*tp+3}], v[{a}:{a+3}], {c}")
            if queue: rd(queue.pop(0))
        if mu + 4 < 16: rd(f"U{mu+4}")
        if mu & 1 and mu >= 3:
            q = (mu - 3) // 2
            k(f"ds_write_b128 v10, v[{ACC+4*q}:{ACC+4*q+3}] offset:{CRED + (q>>1)*8192 + (q&1)*1024}")
            pend.append("W")
    k("@STAMP 6")
    k(f"""
    s_and_b32 s21, s20, 0xffff0000
    s_lshl_b32 s20, s20, 16
    s_bitcmp1_b32 s2, 0
    s_cselect_b32 s20, s21, s20
    """)
    for p in range(4):
        k(f"""
        v_lshlrev_b32 v40, 16, v{32+p}
        v_and_b32 v41, 0xffff0000, v{32+p}
        v_mul_f32 v40, s20, v40
        v_mul_f32 v41, s20, v41
        v_cvt_pk_bf16_f32 v41, v40, v41
        """)
        if p == 0:
            k(f"ds_write_b128 v10, v[{ACC+28}:{ACC+31}] offset:{CRED + 3*8192 + 1024}")
        k(f"""
        v_lshlrev_b32 v{48+2*p}, 16, v41
        v_and_b32 v{49+2*p}, 0xffff0000, v41
        v_lshlrev_b32 v{56+2*p}, 16, v{12+p}
        v_and_b32 v{57+2*p}, 0xffff0000, v{12+p}
        """)
    k("""
    s_waitcnt lgkmcnt(0)
    s_barrier
    @STAMP 7
    """)
    for src in range(4):
        for t in range(2):
            k(f"ds_read_b128 v[{ACC+8*src+4*t}:{ACC+8*src+4*t+3}], v11 offset:{CRED + src*2048 + t*16}")
    k("s_waitcnt lgkmcnt(4)")
    for r in range(0, 8, 2):
        k(f"v_pk_add_f32 v[{ACC+r}:{ACC+r+1}], v[{ACC+r}:{ACC+r+1}], v[{ACC+8+r}:{ACC+9+r}]")
    k("s_waitcnt lgkmcnt(0)")
    for r in range(0, 8, 2):
        k(f"v_pk_add_f32 v[{ACC+16+r}:{ACC+17+r}], v[{ACC+16+r}:{ACC+17+r}], v[{ACC+24+r}:{ACC+25+r}]")
    for r in range(0, 8, 2):
        k(f"v_pk_add_f32 v[{ACC+r}:{ACC+r+1}], v[{ACC+r}:{ACC+r+1}], v[{ACC+16+r}:{ACC+17+r}]")
    k("@STAMP 8")
    for p in range(4):
        y0, y1 = ACC + 2*p, ACC + 2*p + 1
        k(f"""
        v_cvt_pk_bf16_f32 v{y1}, v{y0}, v{y1}
        v_lshlrev_b32 v{y0}, 16, v{y1}
        v_and_b32 v{y1}, 0xffff0000, v{y1}
        v_pk_add_f32 v[{y0}:{y1}], v[{y0}:{y1}], v[{48+2*p}:{49+2*p}]
        v_cvt_pk_bf16_f32 v{y1}, v{y0}, v{y1}
        v_lshlrev_b32 v{y0}, 16, v{y1}
        v_and_b32 v{y1}, 0xffff0000, v{y1}
        v_pk_add_f32 v[{y0}:{y1}], v[{y0}:{y1}], v[{56+2*p}:{57+2*p}]
        v_cvt_pk_bf16_f32 v{44+p}, v{y0}, v{y1}
        """)
    k(f"""
    buffer_store_dwordx4 v[44:47], v1, s[8:11], s14 offen
    @STAMP 9
    @FLUSH 13
    CONV_END:
    s_endpgm
    .p2align 8
    conv2_kernel:
    s_mov_b32 s30, {X2T}
    s_mov_b32 s31, {ST1}
    s_mov_b32 s32, {X3T}
    @KID 4
    s_branch CONV_BODY
    """)
    info = dict(vgpr=144, sgpr=48, accum=144, grid=512, block=256, lds=CONV_LDS)
    return k, info

MLP_LDS = 163840
H_LD = os.environ.get('H_LD', 'sc1')
M_PRE2 = int(os.environ.get('M_PRE2', '5'))
M_WDM = int(os.environ.get('M_WDM', '4'))
M_WDE = int(os.environ.get('M_WDE', '2'))
M_AHEAD2 = int(os.environ.get('M_AHEAD2', '6'))
SPIN_MAX = 1 << 20
SLOT = 40960
def gen_mlp():
    k = Kern("mlp")
    ACC = 0
    FR = 48
    XA = 104
    WA = 112
    CSR = 114
    STV = 126
    RES = 130
    VDMA, VW, VT0, VT1, VT2 = 134, 135, 136, 137, 138
    SA = 139
    VRES = 142; VSTX = 143; VPUB = 144; VCS = 145
    MR = 146
    TMP = 150
    NV = 168
    def wdreg(i): return f"a[{4*i}:{4*i+3}]"
    k(f"""
    mlpa_kernel:
    s_mov_b32 s30, {X1T}
    s_mov_b32 s31, {HB}
    s_mov_b32 s33, {STX}
    s_mov_b32 s34, {FLG}
    s_mov_b32 s35, 0
    @KID 2
    M_BODY:
    s_cmp_ge_u32 s2, 256
    s_cbranch_scc1 M_END
    @INIT
    s_load_dwordx2 s[4:5], s[0:1], {KA_WS}
    s_load_dwordx2 s[6:7], s[0:1], {KA_OUT}
    v_readfirstlane_b32 s17, v0
    s_and_b32 s12, s2, 7                  ; xcd
    s_lshr_b32 s13, s2, 3                 ; idx
    s_lshr_b32 s14, s12, 1
    s_lshl_b32 s14, s14, 2
    s_and_b32 s15, s13, 3
    s_add_u32 s14, s14, s15               ; lt
    s_lshl_b32 s36, s12, 2
    s_add_u32 s36, s36, s15               ; lt64
    s_lshr_b32 s37, s13, 2                ; dt
    s_and_b32 s15, s12, 1
    s_lshl_b32 s15, s15, 3
    s_add_u32 s15, s15, s37               ; ft
    s_lshr_b32 s17, s17, 6                ; w
    s_and_b32 s16, s17, 3
    s_lshr_b32 s29, s17, 2
    v_and_b32 v{VT0}, 63, v0              ; lane
    v_and_b32 v{VT1}, 15, v0              ; lam / j
    v_bfe_u32 v{VT2}, v0, 4, 2            ; g
    s_and_b32 s20, s17, 1
    s_lshl_b32 s20, s20, 2
    v_lshrrev_b32 v{TMP}, 1, v{VT1}
    v_xor_b32 v{TMP+1}, v{TMP}, v{VT2}
    v_xor_b32 v{TMP+1}, s20, v{TMP+1}
    v_and_b32 v{TMP+3}, 1, v{VT1}
    v_lshlrev_b32 v{TMP+3}, 4, v{TMP+3}
    v_mul_u32_u24 v{TMP+4}, {XP}, v{VT2}
    v_add_u32 v{TMP+3}, v{TMP+4}, v{TMP+3}
    v_lshl_add_u32 v{VDMA}, v{TMP+1}, 5, v{TMP+3}
    v_lshlrev_b32 v{VW}, 4, v{VT0}                    ; lane*16
    s_lshl_b32 s18, s14, 8
    s_add_u32 s18, s18, s30
    s_mul_i32 s19, s17, {4*XP}
    s_add_u32 s18, s18, s19
    s_lshl_b32 s19, s17, 10               ; x m0 part: w*1024
    s_lshl_b32 s20, s15, 2
    s_add_u32 s20, s20, s16
    s_lshl_b32 s21, s20, 4
    s_add_u32 s21, s21, s29
    s_mul_i32 s21, s21, 3072
    s_add_u32 s21, s21, {WP}
    s_mul_i32 s22, s17, 3072
    s_add_u32 s22, s22, 0x4000
    s_mul_i32 s24, s20, {3*16*4}
    s_add_u32 s24, s24, {CSUM}
    s_lshl_b32 s38, s37, 2
    s_add_u32 s38, s38, s16
    s_mul_i32 s38, s38, {NKS2*1024}
    s_mul_i32 s23, s29, {22*1024}
    s_add_u32 s38, s38, s23
    s_add_u32 s38, s38, {WD}
    s_waitcnt lgkmcnt(0)
    """)
    srd(k, 8, 4, WS_BYTES)
    k("""
    s_cmp_eq_u32 s15, 15
    s_cbranch_scc1 M_STATS
    """)
    def group_parts(t):
        base = (t & 3) * SLOT
        parts = [f"""
        s_add_u32 m0, s19, {base}
        s_nop 0
        buffer_load_dwordx4 v{VDMA}, s[8:11], s18 offen lds
        s_add_u32 s18, s18, {32*XP}
        """, f"""
        s_add_u32 m0, s22, {base}
        s_nop 0
        buffer_load_dwordx4 v{VW}, s[8:11], s21 offen lds
        """, f"""
        buffer_load_dwordx4 v{VW}, s[8:11], s21 offen offset:1024 lds
        """, f"""
        buffer_load_dwordx4 v{VW}, s[8:11], s21 offen offset:2048 lds
        s_add_u32 s21, s21, 0x1800
        """, f"""
        s_add_u32 m0, s19, {base + 8192}
        s_nop 0
        buffer_load_dwordx4 v{VDMA}, s[8:11], s18 offen lds
        s_add_u32 s18, s18, {32*XP}
        """]
        return parts
    def wd_part(i):
        p = f"buffer_load_dwordx4 {wdreg(i)}, v{VW}, s[8:11], s38 offen offset:{1024*(i&3)}"
        if (i & 3) == 3: p += "\ns_add_u32 s38, s38, 0x1000"
        return p
    def common_addr():
        k(f"""
        s_mov_b32 s43, {fl(1.0/512)}
        s_mov_b32 s44, {fl(1e-5)}
        s_mov_b32 s45, {fl(-LOG2E)}
        v_lshrrev_b32 v{TMP}, 2, v{VT1}
        v_lshl_add_u32 v{TMP}, v{VT2}, 2, v{TMP}          ; 4g + r
        v_and_b32 v{TMP+1}, 7, v{TMP}                     ; xi
        v_and_b32 v{TMP+2}, 3, v{VT1}
        v_lshlrev_b32 v{TMP+2}, 3, v{TMP+2}
        v_lshl_add_u32 v{TMP+2}, v{TMP}, 8, v{TMP+2}
        v_mul_u32_u24 v{VRES}, {XP}, v{VT1}
        v_lshl_add_u32 v{VRES}, v{VT2}, 4, v{VRES}
        s_lshl_b32 s39, s37, 2
        s_add_u32 s39, s39, s16
        s_mul_i32 s39, s39, {16*XP}
        s_lshl_b32 s40, s36, 7
        s_add_u32 s39, s39, s40
        s_lshl_b32 s40, s29, 6
        s_add_u32 s39, s39, s40
        s_add_u32 s40, s39, s30
        """)
    res_parts = [f"buffer_load_dwordx4 v[{RES}:{RES+3}], v{VRES}, s[8:11], s40 offen"]
    for t in range(2):
        for p in group_parts(t): k(p)
    common_addr()
    k("s_lshl_b32 s25, s29, 2")
    for b in range(4):
        k(f"""
        s_add_u32 s26, s25, {b}
        v_xor_b32 v{TMP+3}, s26, v{TMP+1}
        v_lshl_add_u32 v{XA+b}, v{TMP+3}, 5, v{TMP+2}
        v_add_u32 v{XA+4+b}, {2*SLOT}, v{XA+b}
        """)
    k(f"""
    s_mul_i32 s26, s16, 3072
    s_add_u32 s26, s26, 0x4000
    v_add_u32 v{WA}, s26, v{VW}
    v_add_u32 v{WA+1}, {2*SLOT}, v{WA}
    """)
    def late_addr():
        k(f"""
        v_bfe_u32 v{TMP}, v{VT1}, 2, 1                    ; half
        v_mul_u32_u24 v{TMP+4}, 3072, v{TMP}
        v_lshrrev_b32 v{TMP}, 3, v{VT1}
        v_lshl_add_u32 v{TMP+4}, v{TMP}, 6, v{TMP+4}
        v_and_b32 v{TMP}, 3, v{VT1}
        v_lshl_add_u32 v{TMP+4}, v{TMP}, 4, v{TMP+4}
        v_lshl_add_u32 v{TMP+4}, v{VT2}, 8, v{TMP+4}
        s_lshl_b32 s26, s16, 10
        s_cmp_eq_u32 s16, 3
        s_cselect_b32 s26, 12, s26
        s_cselect_b32 s27, 0x400, 4
        s_mul_i32 s28, s29, 12288
        s_add_u32 s26, s26, s28
        v_add_u32 v{SA}, s26, v{TMP+4}
        v_add_u32 v{SA+1}, s27, v{SA}
        v_add_u32 v{SA+2}, s27, v{SA+1}
        v_lshlrev_b32 v{VSTX}, 2, v{VT1}
        s_lshl_b32 s41, s14, 9
        s_lshl_b32 s26, s29, 8
        s_add_u32 s41, s41, s26
        s_add_u32 s41, s41, s33
        s_mul_i32 s26, s17, 3072
        v_add_u32 v{VPUB}, s26, v{VW}
        s_lshl_b32 s42, s14, 3
        s_add_u32 s42, s42, s17
        s_mul_i32 s42, s42, {HKS*1024}
        s_mul_i32 s26, s15, 3072
        s_add_u32 s42, s42, s26
        s_add_u32 s42, s42, s31
        v_lshlrev_b32 v{VCS}, 4, v{VT2}
        """)
    late_addr()
    def reads(s):
        res = []
        t = s >> 1; hi = (t & 3) >> 1; base = (t & 1) * SLOT
        buf = FR + 28 * (s & 1)
        for tau in range(3):
            r = buf + 16 + 4 * tau
            res.append(f"ds_read_b128 v[{r}:{r+3}], v{WA+hi} offset:{base + (s&1)*12288 + tau*1024}")
        for b in range(4):
            off = base + (s & 1) * 8192
            res.append(f"ds_read_b64_tr_b16 v[{buf+4*b}:{buf+4*b+1}], v{XA+4*hi+b} offset:{off}")
            res.append(f"ds_read_b64_tr_b16 v[{buf+4*b+2}:{buf+4*b+3}], v{XA+4*hi+b} offset:{off+4096}")
        return res
    later = [f"buffer_load_dwordx4 v[{CSR+4*tau}:{CSR+4*tau+3}], v{VCS}, s[8:11], s24 offen offset:{64*tau}" for tau in range(3)]
    later += res_parts + [wd_part(i) for i in range(M_WDM)]
    later += [f"buffer_load_dword v{STV+b}, v{VSTX}, s[8:11], s41 offen offset:{64*b} sc1" for b in range(4)]
    n_need = len(later)
    later += [wd_part(i) for i in range(M_WDM, 22)]
    vm = []
    vm += ["G0"] * 5 + ["G1"] * 5
    def wait_for(tag):
        idx = max(i for i, x in enumerate(vm) if x == tag)
        k(f"s_waitcnt vmcnt({len(vm) - idx - 1})")
        del vm[:idx + 1]
    nlater = 0
    k("@STAMP 2")
    wait_for("G0")
    k("s_barrier")
    k("@STAMP 3")
    for r in reads(0): k(r)
    for s in range(16):
        t = s >> 1
        if s == 1:
            wait_for("G1"); k("s_barrier")
        elif (s & 1) == 0 and 0 < t < 7:
            wait_for(f"G{t+1}"); k("s_barrier")
        k("s_waitcnt lgkmcnt(0)")
        if s == 8: k("@STAMP 4")
        fill = reads(s + 1) if s < 15 else []
        mf = []
        buf = FR + 28 * (s & 1)
        for b in range(4):
            for tau in range(3):
                a = ACC + (b * 3 + tau) * 4
                c = "0" if s == 0 else f"v[{a}:{a+3}]"
                mf.append(f"v_mfma_f32_16x16x32_bf16 v[{a}:{a+3}], v[{buf+16+4*tau}:{buf+19+4*tau}], v[{buf+4*b}:{buf+4*b+3}], {c}")
        if s == 0: parts = [(p, "G2") for p in group_parts(2)]
        elif s == 1: parts = [(p, "G3") for p in group_parts(3)]
        elif t + 3 <= 7:
            gp = group_parts(t + 3)
            parts = [(p, f"G{t+3}") for p in (gp[:3] if (s & 1) == 0 else gp[3:])]
        else:
            lpp = -(-n_need // 6)
            parts = [(p, "N") for i, p in enumerate(later[nlater:min(nlater + lpp, n_need)])]
            nlater += len(parts)
        step = 12 // max(len(parts), 1)
        slots = {1 + step * j: p for j, p in enumerate(parts)}
        EXP = os.environ.get('EXP', '')
        for i, m in enumerate(mf):
            if 'nomfma' not in EXP: k(m)
            if i < len(fill) and 'nolds' not in EXP: k(fill[i])
            if i in slots:
                if not ('novm' in EXP and slots[i][1][0] == 'G') and not ('nox' in EXP and f'v{VDMA},' in slots[i][0]) and not ('now' in EXP and 's21' in slots[i][0]) and not ('nolater' in EXP and 's38' in slots[i][0]): k(slots[i][0])
                vm.append(slots[i][1])
    assert nlater >= n_need
    k("@STAMP 5")
    wait_for("N")
    k(f"""
    s_mov_b32 s47, 0
    M_STCHK:
    v_min3_u32 v{TMP}, v{STV}, v{STV+1}, v{STV+2}
    v_min_u32 v{TMP}, v{TMP}, v{STV+3}
    v_cmp_eq_u32 vcc, 0, v{TMP}
    s_cmp_eq_u64 vcc, 0
    s_cbranch_scc1 M_STOK
    s_add_u32 s47, s47, 1
    s_cmp_ge_u32 s47, {SPIN_MAX}
    s_cbranch_scc1 M_STOK
    s_sleep 2
    """)
    for b in range(4): k(f"buffer_load_dword v{STV+b}, v{VSTX}, s[8:11], s41 offen offset:{64*b} sc1")
    k("""
    s_waitcnt vmcnt(0)
    s_branch M_STCHK
    M_STOK:
    @STAMP 6
    """)
    PB = FR
    for b in range(4):
        m = MR
        k(f"""
        v_and_b32 v{m+2}, 0xffff0000, v{STV+b}        ; s
        v_lshlrev_b32 v{m}, 16, v{STV+b}              ; m
        v_rcp_f32 v{m+1}, v{m+2}
        v_mul_f32 v{m+1}, s45, v{m+1}
        """)
        for tau in range(3):
            a = ACC + (b * 3 + tau) * 4
            c = CSR + 4 * tau
            k(f"""
            v_pk_fma_f32 v[{a}:{a+1}], v[{m}:{m+1}], v[{c}:{c+1}], v[{a}:{a+1}] op_sel_hi:[0,1,1] neg_lo:[1,0,0] neg_hi:[1,0,0]
            v_pk_fma_f32 v[{a+2}:{a+3}], v[{m}:{m+1}], v[{c+2}:{c+3}], v[{a+2}:{a+3}] op_sel_hi:[0,1,1] neg_lo:[1,0,0] neg_hi:[1,0,0]
            v_pk_mul_f32 v[{a}:{a+1}], v[{a}:{a+1}], v[{m}:{m+1}] op_sel:[0,1] op_sel_hi:[1,1]
            v_exp_f32 v{a}, v{a}
            v_exp_f32 v{a+1}, v{a+1}
            """)
            if tau < M_WDE and nlater < len(later):
                k(later[nlater]); nlater += 1
        for tau in range(3):
            a = ACC + (b * 3 + tau) * 4
            k(f"""
            v_pk_fma_f32 v[{a}:{a+1}], v[{a}:{a+1}], v[{m+2}:{m+3}], v[{m+2}:{m+3}] op_sel_hi:[1,0,0]
            v_rcp_f32 v{a}, v{a}
            v_rcp_f32 v{a+1}, v{a+1}
            """)
        for tau in range(3):
            a = ACC + (b * 3 + tau) * 4
            k(f"""
            v_pk_mul_f32 v[{a}:{a+1}], v[{a}:{a+1}], v[{a+2}:{a+3}]
            v_cvt_pk_bf16_f32 v{a}, v{a}, v{a+1}
            ds_write_b32 v{SA+tau}, v{a} offset:{(b>>1)*6144 + (b&1)*128}
            """)
    k("""
    s_waitcnt lgkmcnt(0)
    s_barrier
    @STAMP 7
    """)
    for i in range(3):
        k(f"ds_read_b128 v[{PB+4*i}:{PB+4*i+3}], v{VPUB} offset:{1024*i}")
    for i in range(3):
        k(f"s_waitcnt lgkmcnt({2-i})")
        k(f"buffer_store_dwordx4 v[{PB+4*i}:{PB+4*i+3}], v{VW}, s[8:11], s42 offen offset:{1024*i} sc1")
    rest = later[nlater:]
    k(f"""
    s_lshl_b32 s26, s14, 4
    s_add_u32 s26, s26, s15
    s_lshl_b32 s26, s26, 7
    s_add_u32 s26, s26, s34
    v_mov_b32 v{TMP}, 1
    v_mov_b32 v{TMP+1}, 0
    s_waitcnt vmcnt(0)
    s_barrier
    s_cmp_lg_u32 s17, 0
    s_cbranch_scc1 M_NOFLAG
    s_mov_b64 exec, 1
    buffer_store_dword v{TMP}, v{TMP+1}, s[8:11], s26 offen sc1
    s_mov_b64 exec, -1
    M_NOFLAG:
    """)
    for p in rest: k(p)
    HA = XA
    k(f"""
    M_SYNC:
    @STAMP 8
    s_lshl_b32 s26, s36, 2
    s_add_u32 s26, s26, s16
    s_mul_i32 s26, s26, {HKS*1024}
    s_mul_i32 s27, s29, {22*1024}
    s_add_u32 s26, s26, s27
    s_add_u32 s26, s26, s31
    s_lshl_b32 s27, s17, 11               ; m0 part
    s_mul_i32 s28, s29, 0x3000
    v_add_u32 v{HA}, s28, v{VW}
    s_lshl_b32 s28, s29, 12
    s_add_u32 s28, s28, 0x1000
    v_add_u32 v{HA+1}, s28, v{VW}
    v_add_u32 v{HA+2}, 0x10000, v{HA}
    v_add_u32 v{HA+3}, 0x10000, v{HA+1}
    v_add_u32 v{HA+4}, 0x20000, v{HA}
    v_add_u32 v{HA+5}, 0x20000, v{HA+1}
    s_cmp_lg_u32 s17, 1
    s_cbranch_scc1 M_WAITB
    s_lshr_b32 s28, s36, 1
    s_lshl_b32 s28, s28, 11
    s_add_u32 s28, s28, s34
    v_min_u32 v{TMP+4}, 14, v{VT0}
    v_lshlrev_b32 v{TMP+4}, 7, v{TMP+4}
    s_mov_b32 s47, 0
    M_POLL:
    buffer_load_dword v{TMP+5}, v{TMP+4}, s[8:11], s28 offen sc1
    s_waitcnt vmcnt(0)
    v_cmp_eq_u32 vcc, 0, v{TMP+5}
    s_cmp_eq_u64 vcc, 0
    s_cbranch_scc1 M_WAITB
    s_add_u32 s47, s47, 1
    s_cmp_lt_u32 s47, {SPIN_MAX}
    s_cbranch_scc1 M_POLL
    M_WAITB:
    s_barrier
    @STAMP 9
    """)
    def hchunk(c):
        return [f"""
        s_add_u32 m0, s27, {(c % 10) * 16384}
        s_nop 0
        buffer_load_dwordx4 v{VW}, s[8:11], s26 offen {H_LD} lds
        """, f"""
        buffer_load_dwordx4 v{VW}, s[8:11], s26 offen offset:1024 {H_LD} lds
        s_add_u32 s26, s26, 0x800
        """]
    HF = 16
    A2 = 0
    def hreads(c):
        res = []
        for i in range(2):
            for lb in range(4):
                off = (c % 10) * 16384 + (lb & 1) * 2048 + i * 1024
                base = HA + 2 * (off >> 16) + (lb >> 1)
                r = HF + 32 * (c & 1) + (i * 4 + lb) * 4
                res.append(f"ds_read_b128 v[{r}:{r+3}], v{base} offset:{off & 0xffff}")
        return res
    iss = M_PRE2
    for c in range(iss):
        for p in hchunk(c): k(p)
    k(f"s_waitcnt vmcnt({2*(iss-1)})")
    k("s_barrier")
    k("@STAMP 10")
    for r in hreads(0): k(r)
    for c in range(11):
        fill = []
        if c < 10:
            k(f"s_waitcnt vmcnt({2*(iss-(c+2))})")
            k("s_barrier")
        k("s_waitcnt lgkmcnt(0)")
        if c < 10: fill = hreads(c + 1)
        parts = []
        for rep_ in range(2):
            if iss < 11 and (iss < 10 or c >= 1) and iss < c + M_AHEAD2:
                parts += hchunk(iss); iss += 1
        slots = {1 + 2 * j: p for j, p in enumerate(parts)}
        n = 0
        for i in range(2):
            for lb in range(4):
                r = HF + 32 * (c & 1) + (i * 4 + lb) * 4
                a = A2 + 4 * lb
                cc = "0" if (c == 0 and i == 0) else f"v[{a}:{a+3}]"
                k(f"v_mfma_f32_16x16x32_bf16 v[{a}:{a+3}], v[{r}:{r+3}], {wdreg(2*c+i)}, {cc}")
                if n < len(fill): k(fill[n])
                if n in slots: k(slots[n])
                n += 1
    k("@STAMP 11")
    XB = 65536
    k(f"""
    s_lshl_b32 s26, s17, 11
    s_add_u32 s26, s26, {XB}
    v_add_u32 v{TMP}, s26, v{VW}
    s_xor_b32 s26, s26, 0x2000
    v_add_u32 v{TMP+1}, s26, v{VW}
    """)
    for j in range(4):
        k(f"v_lshlrev_b32 v{32+2*j}, 16, v{RES+j}")
        k(f"v_and_b32 v{33+2*j}, 0xffff0000, v{RES+j}")
    k(f"""
    ds_write_b128 v{TMP}, v[8:11]
    ds_write_b128 v{TMP}, v[12:15] offset:1024
    s_waitcnt lgkmcnt(0)
    s_barrier
    ds_read_b128 v[8:11], v{TMP+1}
    ds_read_b128 v[12:15], v{TMP+1} offset:1024
    s_waitcnt lgkmcnt(0)
    """)
    OUT = 16
    for j in range(4):
        y0, y1 = A2 + 2*j, A2 + 2*j + 1
        k(f"""
        v_pk_add_f32 v[{y0}:{y1}], v[{y0}:{y1}], v[{y0+8}:{y1+8}]
        v_cvt_pk_bf16_f32 v{y1}, v{y0}, v{y1}
        v_lshlrev_b32 v{y0}, 16, v{y1}
        v_and_b32 v{y1}, 0xffff0000, v{y1}
        v_pk_add_f32 v[{y0}:{y1}], v[{y0}:{y1}], v[{32+2*j}:{33+2*j}]
        v_cvt_pk_bf16_f32 v{OUT+j}, v{y0}, v{y1}
        """)
    k(f"""
    s_cmp_lg_u32 s35, 0
    s_cbranch_scc1 M_FINAL
    s_add_u32 s40, s39, {X2T}
    buffer_store_dwordx4 v[{OUT}:{OUT+3}], v{VRES}, s[8:11], s40 offen
    """)
    Q = 48
    for j in range(4):
        k(f"""
        v_lshlrev_b32 v{Q+4*j}, 16, v{OUT+j}
        v_and_b32 v{Q+4*j+2}, 0xffff0000, v{OUT+j}
        v_mul_f32 v{Q+4*j+1}, v{Q+4*j}, v{Q+4*j}
        v_mul_f32 v{Q+4*j+3}, v{Q+4*j+2}, v{Q+4*j+2}
        """)
    for q in range(8):
        k(f"v_add_f32_dpp v{Q+q}, v{Q+q}, v{Q+q} row_ror:8 row_mask:0xf bank_mask:0x3")
        k(f"v_add_f32_dpp v{Q+q}, v{Q+q+8}, v{Q+q+8} row_ror:8 row_mask:0xf bank_mask:0xc")
    for q in range(4):
        k(f"v_add_f32_dpp v{Q+q}, v{Q+q}, v{Q+q} row_shl:4 row_mask:0xf bank_mask:0x5")
        k(f"v_add_f32_dpp v{Q+q}, v{Q+q+4}, v{Q+q+4} row_shr:4 row_mask:0xf bank_mask:0xa")
    for q in range(4):
        k(f"v_add_f32_dpp v{Q+q}, v{Q+q}, v{Q+q} quad_perm:[1,0,3,2] row_mask:0xf bank_mask:0xf")
    for q in range(4):
        k(f"v_add_f32_dpp v{Q+q}, v{Q+q}, v{Q+q} quad_perm:[2,3,0,1] row_mask:0xf bank_mask:0xf")
    SB = 98304
    k(f"""
    v_and_b32 v{TMP}, 3, v{VT1}
    v_cmp_eq_u32 s[48:49], 1, v{TMP}
    v_cmp_eq_u32 s[50:51], 2, v{TMP}
    v_cmp_eq_u32 s[52:53], 3, v{TMP}
    v_lshrrev_b32 v{TMP+1}, 2, v{VT1}
    v_lshlrev_b32 v{TMP+1}, 7, v{TMP+1}
    v_lshl_add_u32 v{TMP+1}, v{VT2}, 4, v{TMP+1}
    v_lshl_add_u32 v{TMP+1}, v{TMP}, 2, v{TMP+1}
    s_lshl_b32 s26, s16, 9
    s_lshl_b32 s27, s29, 6
    s_add_u32 s26, s26, s27
    s_add_u32 s26, s26, {SB}
    v_add_u32 v{TMP+1}, s26, v{TMP+1}
    v_cndmask_b32 v{Q}, v{Q}, v{Q+1}, s[48:49]
    v_cndmask_b32 v{Q}, v{Q}, v{Q+2}, s[50:51]
    v_cndmask_b32 v{Q}, v{Q}, v{Q+3}, s[52:53]
    ds_write_b32 v{TMP+1}, v{Q}
    s_lshl_b32 s26, s17, 8
    s_add_u32 s26, s26, {SB}
    v_lshl_add_u32 v{TMP+2}, v{VT0}, 2, s26
    v_lshrrev_b32 v{TMP+3}, 5, v{VT0}
    v_lshlrev_b32 v{TMP+3}, 12, v{TMP+3}
    v_and_b32 v{TMP+4}, 31, v{VT0}
    v_lshl_add_u32 v{TMP+3}, v{TMP+4}, 2, v{TMP+3}
    s_lshl_b32 s26, s36, 7
    s_lshl_b32 s27, s17, 13
    s_add_u32 s26, s26, s27
    s_add_u32 s26, s26, {ST1}
    s_waitcnt lgkmcnt(0)
    s_barrier
    s_cmp_ge_u32 s17, 2
    s_cbranch_scc1 M_NOAT
    ds_read_b32 v{Q}, v{TMP+2}
    ds_read_b32 v{Q+1}, v{TMP+2} offset:512
    ds_read_b32 v{Q+2}, v{TMP+2} offset:1024
    ds_read_b32 v{Q+3}, v{TMP+2} offset:1536
    s_waitcnt lgkmcnt(0)
    v_add_f32 v{Q}, v{Q}, v{Q+1}
    v_add_f32 v{Q+2}, v{Q+2}, v{Q+3}
    v_add_f32 v{Q}, v{Q}, v{Q+2}
    buffer_atomic_add_f32 v{Q}, v{TMP+3}, s[8:11], s26 offen
    M_NOAT:
    @STAMP 12
    @FLUSH 13
    s_endpgm
    M_FINAL:
    """)
    TP = 144; TB2 = 98304
    srd(k, 48, 6, L * D * 2)
    k(f"""
    s_lshl_b32 s26, s16, 4
    v_add_u32 v{TMP}, s26, v{VT1}
    v_mul_u32_u24 v{TMP}, {TP}, v{TMP}
    v_lshl_add_u32 v{TMP}, v{VT2}, 4, v{TMP}
    s_lshl_b32 s26, s29, 6
    s_add_u32 s26, s26, {TB2}
    v_add_u32 v{TMP}, s26, v{TMP}
    ds_write_b128 v{TMP}, v[{OUT}:{OUT+3}]
    v_lshrrev_b32 v{TMP+1}, 2, v{VT1}
    v_lshl_add_u32 v{TMP+1}, v{VT2}, 3, v{TMP+1}
    v_mul_u32_u24 v{TMP+1}, {TP}, v{TMP+1}
    v_and_b32 v{TMP+2}, 3, v{VT1}
    v_lshl_add_u32 v{TMP+1}, v{TMP+2}, 3, v{TMP+1}
    s_lshl_b32 s26, s16, 5
    s_mul_i32 s27, s29, {32*TP}
    s_add_u32 s26, s26, s27
    s_add_u32 s26, s26, {TB2}
    v_add_u32 v{TMP+1}, s26, v{TMP+1}
    v_lshlrev_b32 v{TMP+2}, 10, v{VT1}
    v_lshl_add_u32 v{TMP+2}, v{VT2}, 4, v{TMP+2}
    s_lshl_b32 s26, s36, 2
    s_add_u32 s26, s26, s16
    s_lshl_b32 s26, s26, 14
    s_lshl_b32 s27, s37, 7
    s_add_u32 s26, s26, s27
    s_lshl_b32 s27, s29, 6
    s_add_u32 s26, s26, s27
    s_waitcnt lgkmcnt(0)
    s_barrier
    ds_read_b64_tr_b16 v[32:33], v{TMP+1}
    ds_read_b64_tr_b16 v[34:35], v{TMP+1} offset:{4*TP}
    s_waitcnt lgkmcnt(0)
    buffer_store_dwordx4 v[32:35], v{TMP+2}, s[48:51], s26 offen
    @STAMP 12
    @FLUSH 13
    M_END:
    s_endpgm
    """)
    k(f"""
    M_STATS:
    s_mov_b32 s47, 0
    M_SL1:
    s_mov_b32 m0, s19
    s_add_u32 s19, s19, 0x2000
    buffer_load_dwordx4 v{VDMA}, s[8:11], s18 offen lds
    s_add_u32 s18, s18, {32*XP}
    s_mov_b32 m0, s19
    s_add_u32 s19, s19, 0x2000
    buffer_load_dwordx4 v{VDMA}, s[8:11], s18 offen lds
    s_add_u32 s18, s18, {32*XP}
    s_add_u32 s47, s47, 1
    s_cmp_lt_u32 s47, 8
    s_cbranch_scc1 M_SL1
    """)
    common_addr()
    SACC = 0; ONES = 16
    k(f"""
    v_xor_b32 v{TMP+3}, s17, v{TMP+1}
    v_lshl_add_u32 v{XA}, v{TMP+3}, 5, v{TMP+2}
    """)
    for r in range(8): k(f"v_mov_b32 v{SACC+r}, 0")
    for r in range(4): k(f"v_mov_b32 v{ONES+r}, 0x3f803f80")
    k(f"""
    s_mov_b32 s47, 0
    s_waitcnt vmcnt(0)
    s_barrier
    M_SL2:
    """)
    for u in range(8):
        r = FR + 4 * u
        if u == 7: k("s_waitcnt lgkmcnt(12)")
        k(f"ds_read_b64_tr_b16 v[{r}:{r+1}], v{XA} offset:{u*8192}")
        k(f"ds_read_b64_tr_b16 v[{r+2}:{r+3}], v{XA} offset:{u*8192+4096}")
    k(f"v_add_u32 v{XA}, 0x10000, v{XA}")
    for u in range(8):
        r = FR + 4 * u
        k(f"s_waitcnt lgkmcnt({14 - 2*u})")
        k(f"v_mfma_f32_16x16x32_bf16 v[{SACC}:{SACC+3}], v[{r}:{r+3}], v[{r}:{r+3}], v[{SACC}:{SACC+3}]")
        k(f"v_mfma_f32_16x16x32_bf16 v[{SACC+4}:{SACC+7}], v[{ONES}:{ONES+3}], v[{r}:{r+3}], v[{SACC+4}:{SACC+7}]")
    k(f"""
    s_add_u32 s47, s47, 1
    s_cmp_lt_u32 s47, 2
    s_cbranch_scc1 M_SL2
    v_and_b32 v{TMP}, 3, v{VT1}
    v_cmp_eq_u32 s[48:49], 1, v{TMP}
    v_cmp_eq_u32 s[50:51], 2, v{TMP}
    v_cmp_eq_u32 s[52:53], 3, v{TMP}
    v_lshrrev_b32 v{TMP}, 2, v{VT1}
    v_cmp_eq_u32 s[54:55], v{TMP}, v{VT2}
    v_cndmask_b32 v{SACC}, v{SACC}, v{SACC+1}, s[48:49]
    v_cndmask_b32 v{SACC}, v{SACC}, v{SACC+2}, s[50:51]
    v_cndmask_b32 v{SACC+5}, v{SACC}, v{SACC+3}, s[52:53]
    v_mov_b32 v{SACC+12}, v{SACC+4}
    v_mov_b32 v{SACC+13}, v{SACC+5}
    """)
    stats_pair(k, SACC+4, SACC+5, SACC+12, SACC+13, TMP, keep=(SACC+6, SACC+14))
    k(f"""
    v_lshrrev_b32 v{SACC+4}, 16, v{SACC+4}
    v_or_b32 v{SACC+4}, v{SACC+4}, v{SACC+6}
    v_lshlrev_b32 v{VSTX}, 2, v{VT1}
    s_lshl_b32 s41, s14, 9
    s_lshl_b32 s26, s17, 6
    s_add_u32 s41, s41, s26
    s_add_u32 s41, s41, s33
    s_mov_b64 exec, s[54:55]
    buffer_store_dword v{SACC+4}, v{VSTX}, s[8:11], s41 offen sc1
    s_mov_b64 exec, -1
    """)
    for p in res_parts: k(p)
    for i in range(22): k(wd_part(i))
    k(f"""
    s_barrier
    s_branch M_SYNC
    .p2align 8
    mlpb_kernel:
    s_mov_b32 s30, {X3T}
    s_mov_b32 s31, {HB1}
    s_mov_b32 s33, {STX + 0x2000}
    s_mov_b32 s34, {FLG + 0x8000}
    s_mov_b32 s35, 1
    @KID 5
    s_branch M_BODY
    """)
    info = dict(vgpr=NV + 88, sgpr=64, accum=NV, grid=256, block=512, lds=MLP_LDS)
    return k, info

DIAG_KN = {2: ("mlpa", 13), 5: ("mlpb", 13), 3: ("none", 1), 6: ("none", 1)}
def emit(path, launches=None):
    kp, ip = gen_prep()
    kc, ic = gen_conv()
    km, im = gen_mlp()
    infos = {"prep_kernel": ip, "conv1_kernel": ic, "conv2_kernel": ic, "mlpa_kernel": im, "mlpb_kernel": im}
    if os.environ.get("ORDER"): launches = [x + "_kernel" for x in os.environ["ORDER"].split(",")]
    order = launches or ["prep_kernel", "conv1_kernel", "mlpa_kernel", "conv2_kernel", "mlpb_kernel"]
    hdr = open("cdna_kernels/" + NAME + ".s.ref").read().split("; Override launch")[0]
    out = [hdr.rstrip("\n")]
    for n in order:
        i = infos[n]
        out.append(f"; @launch kernel={n} grid=({i['grid']},1,1) block=({i['block']},1,1) lds={i['lds']}")
    out.append('.amdgcn_target "amdgcn-amd-amdhsa--gfx950"\n.text')
    for n in infos:
        out.append(f".globl {n}\n.type {n},@function")
    out.append(".p2align 8\nprep_kernel:\n" + kp.text())
    for kk in (kc, km):
        out.append(".p2align 8\n" + kk.text())
    for n, i in infos.items():
        out.append(descriptor(n, i["vgpr"], 102 if DIAG else i["sgpr"], i["accum"]))
    open(path, "w").write("\n".join(out))

if __name__ == "__main__":
    emit(sys.argv[1] if len(sys.argv) > 1 else "cdna_kernels/" + NAME + ".s")
```

```python
import sys, struct, re
from asmlib import *

NAME = "interleave_layers__ssm_conv_s4d__glu_gated_glu__prompt"
KA_U, KA_LOGA, KA_AIM, KA_CRE, KA_CIM, KA_LOGDT, KA_DSKIP, KA_BX, KA_WG, KA_WU, KA_WD, KA_OUT, KA_DBG, KA_WS = [8 * i for i in range(14)]
XT0, X1T, X2T, X3T = 0x3000000, 0x3300000, 0x3600000, 0x3900000
ST0, ST1, CSUM = 0x0800000, 0x0804000, 0x0808000
WP = 0x0C00000
WD = 0x1000000
HB = 0x1200000
HB1 = 0x2200000
ZR = 0x0810000; STX = 0x0810000; FLG = 0x0820000
KP = 0x1800000; KCS = 4160; KP_STRIDE = 1536
WS_BYTES = 0x10000000
L, D, F, NST = 2048, 512, 1376, 128
NKS2 = 44
HKS = 45

import os
XP = int(os.environ.get('XP', '4352'))
PREP_W_POL = os.environ.get('PREP_W_POL', '')
PREP_K_POL = os.environ.get('PREP_K_POL', '')
PREP_X_POL = 'sc1'
PREP_PRIO = int(os.environ.get('PREP_PRIO', '0'))
CONV_ST = os.environ.get('CONV_ST', '')
X2_ST = os.environ.get('X2_ST', '')
F1_SLEEP = int(os.environ.get('F1_SLEEP', '8'))
CODEPF_BASE = int(os.environ.get('CODEPF_BASE', '768'))
CODEPF = int(os.environ.get('CODEPF', '1'))
DIAG = int(os.environ.get("DIAG", "0"))
DIAG_OFF = 0x4000000
_Kern = Kern
class Kern(_Kern):
    def __call__(self, s):
        for l in s.strip("\n").split("\n"):
            t = l.strip()
            if t.startswith("@CNTLOAD"):
                super().__call__("global_load_dword v59, v2, s[28:29] sc1")
                continue
            if t.startswith("@CODEPF"):
                if CODEPF:
                    super().__call__(f"""
                    s_sub_u32 s3, s2, {CODEPF_BASE}
                    s_cmp_ge_u32 s3, 8
                    s_cbranch_scc1 P_NOPF
                    s_getpc_b64 s[6:7]
                    v_lshlrev_b32 v1, 6, v0
                    global_load_dword v158, v1, s[6:7]
                    v_add_u32 v1, 0x4000, v1
                    global_load_dword v159, v1, s[6:7]
                    P_NOPF:
                    """)
                continue
            if t.startswith("@"):
                if not DIAG: continue
                p = t.split()
                if p[0] == "@KID":
                    super().__call__(f"s_mov_b32 s59, {DIAG_OFF + int(p[1]) * 0x80000}\ns_mov_b32 s57, {3 if int(p[1]) in (2, 5) else 2}")
                elif p[0] == "@INIT":
                    super().__call__("v_readfirstlane_b32 s58, v0\ns_memrealtime s[64:65]\ns_memtime s[66:67]")
                elif p[0] == "@STAMP":
                    i = int(p[1]); super().__call__(f"s_memtime s[{64+2*i}:{65+2*i}]")
                elif p[0] == "@FLUSH":
                    n = int(p[1])
                    super().__call__(f"""
                    s_waitcnt vmcnt(0)
                    s_memtime s[{64+2*n}:{65+2*n}]
                    s_memrealtime s[{66+2*n}:{67+2*n}]
                    s_waitcnt lgkmcnt(0)
                    s_mov_b64 exec, -1
                    s_lshr_b32 s58, s58, 6
                    s_lshl_b32 s61, s2, s57
                    s_add_u32 s60, s58, s61
                    s_lshl_b32 s60, s60, 6
                    s_add_u32 s60, s60, s59
                    v_mov_b32 v1, s60
                    """)
                    for i in range(n + 2):
                        super().__call__(f"v_mov_b32 v2, s{64+2*i}\nglobal_store_dword v1, v2, s[4:5] offset:{4*i}")
                    super().__call__("s_getreg_b32 s61, hwreg(HW_REG_XCC_ID)\nv_mov_b32 v2, s61\nglobal_store_dword v1, v2, s[4:5] offset:60")
                continue
            super().__call__(l)

def f2u(x): return struct.unpack("<I", struct.pack("<f", x))[0]
def fl(x): return "0x%08x" % f2u(x)
LOG2E = 1.4426950408889634
L2E_HI = struct.unpack("<f", struct.pack("<f", LOG2E))[0]
L2E_LO = LOG2E - L2E_HI
LN2 = 0.6931471805599453

def srd(k, s, base, nbytes):
    k(f"""
    s_mov_b32 s{s}, s{base}
    s_and_b32 s{s+1}, s{base+1}, 0xffff
    s_mov_b32 s{s+2}, {nbytes:#x}
    s_mov_b32 s{s+3}, 0x20000
    """)

def rnd_bf16(k, dst, a, b=None):
    k(f"v_cvt_pk_bf16_f32 v{dst}, v{a}, v{b if b is not None else a}")

def exp_acc(k, dst, x, t0, t1):
    k(f"""
    v_mul_f32 v{t0}, s40, v{x}
    v_fma_f32 v{t1}, s40, v{x}, -v{t0}
    v_fma_f32 v{t1}, s41, v{x}, v{t1}
    v_exp_f32 v{dst}, v{t0}
    v_mul_f32 v{t1}, s42, v{t1}
    v_fma_f32 v{dst}, v{dst}, v{t1}, v{dst}
    """)

N_K, N_T, N_W, N_D, N_C = 512, 256, 240, 176, 44
B_T = 0; B_K = N_T; B_C = B_K + N_K; B_W = B_C + N_C; B_D = B_W + N_W; PREP_WGS = B_D + N_D
PREP_GROUPS = [("f1.T", 0, B_K, 2), ("f1.C", B_C, B_W, 2), ("f1.W", B_W, B_D, 2), ("f1.D", B_D, PREP_WGS, 2)]
CSU = 4576
KL = 2 * CSU
CRED = KL + 16640
CONV_LDS = CRED + 24576
CPF = int(os.environ.get('CPF', '1'))
CPF_STRIDE = int(os.environ.get('CPF_STRIDE', '128'))
SPIN_MAX = 1 << 20

class Remap:
    def __init__(self, k, voff, smap): self.k = k; self.voff = voff; self.smap = smap
    def __call__(self, t):
        def rv(m):
            if m.group(1): return f"v[{int(m.group(1))+self.voff}:{int(m.group(2))+self.voff}]"
            n = int(m.group(3)); return "v0" if n == 0 else f"v{n+self.voff}"
        t = re.sub(r"\bv\[(\d+):(\d+)\]|\bv(\d+)\b", rv, t)
        def rs(m):
            if m.group(1):
                a = int(m.group(1)); b = int(m.group(2))
                if a in self.smap: return f"s[{self.smap[a]}:{self.smap[a]+b-a}]"
                return m.group(0)
            n = int(m.group(3)); return f"s{self.smap.get(n, n)}"
        t = re.sub(r"\bs\[(\d+):(\d+)\]|\bs(\d+)\b", rs, t)
        self.k(t)
    def label(self, l): self.k.label(l)

def conv_setup(k):
    k(f"""
    v_readfirstlane_b32 s17, v0
    s_mov_b32 s43, {fl(1.0/512)}
    s_mov_b32 s44, {fl(1e-5)}
    s_lshr_b32 s17, s17, 6                ; pi
    s_mul_i32 s12, s2, {XP}
    s_add_u32 s13, s12, s30
    s_add_u32 s14, s12, s32
    s_mul_i32 s15, s2, {KP_STRIDE}
    s_add_u32 s15, s15, {KP}
    s_lshr_b32 s16, s2, 1
    s_lshl_b32 s16, s16, 2
    v_lshlrev_b32 v1, 4, v0               ; tid*16
    v_and_b32 v3, 15, v0                  ; c / r
    v_bfe_u32 v4, v0, 4, 2                ; g
    v_and_b32 v5, 63, v0
    v_lshlrev_b32 v6, 4, v5               ; lane*16
    """)

def conv_loads(k, pol=""):
    k(f"""
    buffer_load_dwordx4 v[16:19], v1, s[8:11], s31 offen {pol}
    s_add_u32 s31, s31, 0x1000
    buffer_load_dwordx4 v[20:23], v1, s[8:11], s31 offen {pol}
    s_add_u32 s31, s31, 0x1000
    buffer_load_dwordx4 v[24:27], v1, s[8:11], s31 offen {pol}
    s_add_u32 s31, s31, 0x1000
    buffer_load_dwordx4 v[28:31], v1, s[8:11], s31 offen {pol}
    buffer_load_dwordx4 v[12:15], v1, s[8:11], s13 offen {pol}
    """)

def conv_p3(k):
    k(f"""
    v_mov_b32 v36, 0
    v_mov_b32 v37, 0
    v_mov_b32 v38, 0
    v_mov_b32 v39, 0
    v_bfe_u32 v9, v0, 2, 2
    v_mul_u32_u24 v9, {KCS}, v9
    v_and_b32 v10, 3, v0
    v_min_u32 v10, 2, v10
    v_lshl_add_u32 v9, v10, 4, v9
    ds_write_b128 v9, v[36:39] offset:{KL}
    v_lshlrev_b32 v40, 3, v0
    s_sub_u32 s19, s18, {2 * (0x4300 - 128)}
    """)
    for e in range(11):
        k(f"v_add_u32 v{48+e}, {e-3}, v40")
        if e < 3: k(f"v_max_i32 v{48+e}, 0, v{48+e}")
        k(f"v_cvt_f32_u32 v{60+e}, v{48+e}")
    for e in range(0, 11, 2):
        k(f"v_cvt_pk_bf16_f32 v{72+e//2}, v{60+e}, v{min(61+e, 70)}")
    for e in range(11):
        src = 72 + e // 2
        if e & 1: k(f"v_lshrrev_b32 v{60+e}, 16, v{src}")
        else: k(f"v_and_b32 v{60+e}, 0xffff, v{src}")
        k(f"v_lshl_add_u32 v{60+e}, v{60+e}, 1, s19")
        k(f"v_lshl_add_u32 v{48+e}, v{48+e}, 1, s18")
    k("v_cmp_gt_u32 s[24:25], 17, v0")
    for e in range(11):
        k(f"v_cndmask_b32 v{48+e}, v{60+e}, v{48+e}, s[24:25]")
    k(f"""
    s_and_b32 s21, s17, 1
    s_sub_u32 s22, 56, s21
    s_mul_i32 s21, s21, {CSU}
    v_min_u32 v9, s22, v5
    v_lshl_add_u32 v9, v9, 3, s21
    ds_write_b64 v9, v[36:37]
    v_and_b32 v9, 1, v3
    v_mul_u32_u24 v9, {CSU}, v9
    v_lshrrev_b32 v10, 1, v3
    v_lshlrev_b32 v11, 2, v10
    v_sub_u32 v11, v11, v4
    s_lshl_b32 s21, s17, 2
    s_sub_u32 s21, 15, s21
    v_add_u32 v11, s21, v11
    v_lshl_add_u32 v9, v11, 4, v9         ; v9 = u addr
    v_and_b32 v7, 3, v3
    v_mul_u32_u24 v7, {KCS}, v7
    v_lshrrev_b32 v8, 2, v3
    v_add_u32 v8, v8, v4
    v_lshl_add_u32 v7, v8, 4, v7
    s_lshl_b32 s21, s17, 6
    s_add_u32 s21, s21, {KL}
    v_add_u32 v7, s21, v7                 ; v7 = K addr
    v_xor_b32 v8, v4, v10
    v_and_b32 v8, 3, v8
    v_lshlrev_b32 v8, 1, v8
    v_lshl_add_u32 v8, v10, 3, v8
    v_and_b32 v11, 1, v3
    v_add_u32 v8, v8, v11
    s_lshl_b32 s21, s17, 11
    v_lshl_add_u32 v10, v8, 4, s21
    v_bfe_u32 v8, v0, 2, 3
    v_xor_b32 v11, v8, v0
    v_and_b32 v11, 3, v11
    v_lshlrev_b32 v11, 5, v11
    v_lshl_add_u32 v11, v8, 7, v11
    v_bfe_u32 v8, v0, 5, 1
    v_lshl_add_u32 v11, v8, 10, v11
    s_lshl_b32 s21, s17, 13
    s_add_u32 s21, s21, {CRED}
    s_cmp_eq_u32 s17, 3
    s_cselect_b32 s21, {KL}, s21
    v_add_u32 v11, s21, v11
    """)

def conv_expand(k):
    k("""
    v_cmp_eq_u32 vcc, 0, v0
    s_waitcnt lgkmcnt(0)
    v_cndmask_b32 v48, v48, v36, vcc
    v_cndmask_b32 v49, v49, v36, vcc
    v_cndmask_b32 v50, v50, v36, vcc
    """)
    for sft in range(4):
        for j in range(4):
            k(f"v_lshl_or_b32 v{64+4*sft+j}, v{48+sft+6-2*j}, 16, v{48+sft+7-2*j}")
        k(f"ds_write_b128 v1, v[{64+4*sft}:{67+4*sft}] offset:{KL + sft*KCS + 48}")

def conv_norm(k):
    for j in range(4):
        k(f"""
        v_lshlrev_b32 v40, 16, v{12+j}
        v_and_b32 v41, 0xffff0000, v{12+j}
        v_sub_f32 v40, v40, v{16+4*j}
        v_sub_f32 v41, v41, v{18+4*j}
        v_cvt_pk_bf16_f32 v41, v40, v41
        v_lshlrev_b32 v40, 16, v41
        v_and_b32 v41, 0xffff0000, v41
        v_mul_f32 v40, v40, v{17+4*j}
        v_mul_f32 v41, v41, v{19+4*j}
        v_cvt_pk_bf16_f32 v{32+j}, v40, v41
        """)
    k(f"""
    ds_write_b128 v1, v[32:35] offset:{CSU + 16*28}
    ds_write2_b64 v1, v[32:33], v[34:35] offset0:57 offset1:58
    """)

def gen_prep():
    k = Kern("f1_kernel")
    k(f"""
    @KID 0
    @INIT
    s_load_dwordx2 s[4:5], s[0:1], {KA_WS}
    s_load_dwordx2 s[28:29], s[0:1], {KA_DBG}
    @CODEPF
    s_cmp_lt_u32 s2, {B_K}
    s_cbranch_scc1 P_TR
    s_cmp_lt_u32 s2, {B_C}
    s_cbranch_scc1 P_KGEN
    s_cmp_lt_u32 s2, {B_W}
    s_cbranch_scc1 P_C
    s_cmp_lt_u32 s2, {B_D}
    s_cbranch_scc1 P_W
    s_cmp_lt_u32 s2, {PREP_WGS}
    s_cbranch_scc1 P_D
    s_endpgm
    """)
    k.label("P_KGEN")
    KS = CRED; TB = KS + 16384
    kk = Remap(k, 64, {19: 33, 20: 34, 23: 35, 24: 36, 3: 37, 22: 38, 18: 45})
    kk(f"""
    @KID 1
    s_load_dwordx4 s[8:11], s[0:1], {KA_LOGA}
    s_load_dwordx4 s[12:15], s[0:1], {KA_CRE}
    s_load_dwordx2 s[16:17], s[0:1], {KA_LOGDT}
    s_load_dwordx2 s[6:7], s[0:1], {KA_DSKIP}
    s_sub_u32 s2, s2, {B_K}
    s_mov_b32 s40, {fl(L2E_HI)}
    s_mov_b32 s41, {fl(L2E_LO)}
    s_mov_b32 s42, {fl(LN2)}
    v_and_b32 v1, 127, v0
    s_lshl_b32 s3, s2, 8
    v_lshl_add_u32 v2, v1, 1, s3
    s_lshl_b32 s18, s2, 1
    v_mov_b32 v3, s18
    v_readfirstlane_b32 s19, v0
    s_lshr_b32 s19, s19, 6                ; wave
    v_and_b32 v20, 15, v0                 ; i / j
    v_bfe_u32 v21, v0, 4, 2               ; g
    ; hi0 = 128*(i>>3) + (i&7)
    v_lshrrev_b32 v23, 3, v20
    v_and_b32 v24, 7, v20
    v_lshl_add_u32 v23, v23, 7, v24
    v_cvt_f32_u32 v30, v23
    ; hi1 = (g''<2 ? 256+2g'' : 256*g'') + 128*((i>>1)&1) + 4*(i&1)
    v_lshrrev_b32 v23, 2, v20
    v_lshlrev_b32 v24, 1, v23
    v_add_u32 v24, 0x100, v24
    v_lshlrev_b32 v25, 8, v23
    v_cmp_gt_u32 vcc, 2, v23
    v_cndmask_b32 v24, v25, v24, vcc
    v_bfe_u32 v25, v20, 1, 1
    v_lshl_add_u32 v24, v25, 7, v24
    v_and_b32 v25, 1, v20
    v_lshl_add_u32 v24, v25, 2, v24
    v_cvt_f32_u32 v31, v24
    v_lshlrev_b32 v23, 7, v20
    v_add_u32 v23, 0x400, v23
    v_cvt_f32_u32 v32, v23                ; hi2
    v_lshlrev_b32 v23, 3, v20
    v_cvt_f32_u32 v33, v23                ; lo
    s_lshl_b32 s20, s19, 9
    v_lshl_add_u32 v34, v21, 6, s20
    v_lshrrev_b32 v23, 1, v21
    v_and_b32 v24, 1, v21
    v_lshlrev_b32 v24, 2, v24
    v_lshl_add_u32 v35, v23, 7, v24
    v_lshl_add_u32 v35, v20, 3, v35
    v_mov_b32 v36, 1
    v_mov_b32 v37, 2
    s_cmp_eq_u32 s19, 0
    s_cbranch_scc1 P_KA
    v_lshl_add_u32 v35, v21, 6, v20
    v_add_u32 v35, 0x200, v35
    v_mov_b32 v36, 16
    v_mov_b32 v37, 32
    s_cmp_lg_u32 s19, 1
    s_cbranch_scc1 P_KA
    v_lshl_add_u32 v23, v20, 2, v21
    v_add_u32 v23, 0x100, v23             ; seg1: 256 + g' + 4j ; o1=2 o2=64
    v_lshlrev_b32 v24, 6, v21
    v_lshl_add_u32 v24, v20, 1, v24
    v_add_u32 v24, 0x100, v24             ; seg2: 384 + 64(g'-2) + 2j ; o1=1 o2=32
    v_cmp_gt_u32 vcc, 2, v21
    v_cndmask_b32 v35, v24, v23, vcc
    v_cndmask_b32 v36, 1, 2, vcc
    v_cndmask_b32 v37, 32, 64, vcc
    P_KA:
    v_add_u32 v38, v36, v37
    v_add_lshl_u32 v36, v36, v35, 1
    v_add_lshl_u32 v37, v37, v35, 1
    v_add_lshl_u32 v38, v38, v35, 1
    v_lshlrev_b32 v35, 1, v35
    v_and_b32 v39, 63, v0
    v_lshlrev_b32 v39, 4, v39             ; lane*16
    s_waitcnt lgkmcnt(0)
    global_load_ushort v84, v2, s[8:9]
    global_load_ushort v85, v3, s[16:17]
    global_load_ushort v86, v2, s[10:11]
    global_load_ushort v87, v2, s[12:13]
    global_load_ushort v88, v2, s[14:15]
    v_mov_b32 v89, v1
    """)
    k(f"""
    s_mov_b32 s30, {XT0}
    s_mov_b32 s31, {ST0}
    s_mov_b32 s32, {X1T}
    s_mov_b32 s18, {TB}
    """)
    conv_setup(k)
    k("s_load_dword s20, s[6:7], s16")
    srd(k, 8, 4, WS_BYTES)
    conv_p3(k)
    k(f"""
    v_and_b32 v2, 3, v0
    v_lshlrev_b32 v2, 6, v2
    """)
    kk(f"""
    s_waitcnt vmcnt(0)
    v_mov_b32 v4, v84
    v_mov_b32 v8, v85
    v_mov_b32 v5, v86
    v_mov_b32 v6, v87
    v_mov_b32 v7, v88
    v_mov_b32 v1, v89
    s_waitcnt vmcnt(3)
    @STAMP 10
    v_lshlrev_b32 v4, 16, v4
    v_lshlrev_b32 v8, 16, v8
    """)
    exp_acc(kk, 10, 8, 16, 17)
    exp_acc(kk, 11, 4, 18, 19)
    kk(f"""
    v_cvt_pk_bf16_f32 v10, v10, v11
    v_and_b32 v11, 0xffff0000, v10        ; eA
    v_lshlrev_b32 v10, 16, v10            ; dt
    v_mul_f32 v12, v11, v10
    v_mul_f32 v12, s40, v12
    v_sub_f32 v12, 0, v12
    s_waitcnt vmcnt(0)
    v_lshlrev_b32 v5, 16, v5
    v_lshlrev_b32 v6, 16, v6
    v_lshlrev_b32 v7, 16, v7
    v_mul_f32 v13, v5, v10
    v_mul_f32 v13, 0.15915494, v13
    v_add_f32 v10, v10, v10
    v_mul_f32 v14, v6, v10                ; 2*Cre*dt
    v_mul_f32 v15, v7, v10                ; 2*Cim*dt
    v_lshlrev_b32 v9, 4, v1
    ds_write_b128 v9, v[12:15] offset:{KS}
    v_max3_f32 v16, |v14|, |v15|, 0
    v_max_f32_dpp v16, v16, v16 row_shr:1 row_mask:0xf bank_mask:0xf
    v_max_f32_dpp v16, v16, v16 row_shr:2 row_mask:0xf bank_mask:0xf
    v_max_f32_dpp v16, v16, v16 row_shr:4 row_mask:0xf bank_mask:0xf
    v_max_f32_dpp v16, v16, v16 row_shr:8 row_mask:0xf bank_mask:0xf
    v_max_f32_dpp v16, v16, v16 row_bcast:15 row_mask:0xa bank_mask:0xf
    v_max_f32_dpp v16, v16, v16 row_bcast:31 row_mask:0xc bank_mask:0xf
    v_readlane_b32 s23, v16, 63
    s_and_b32 s24, s19, 1
    s_lshl_b32 s24, s24, 2
    v_mov_b32 v17, s24
    v_mov_b32 v16, s23
    ds_write_b32 v17, v16 offset:{KS+2048}
    v_mov_b32 v18, 0
    s_waitcnt lgkmcnt(0)
    s_barrier
    @STAMP 11
    ds_read_b64 v[16:17], v18 offset:{KS+2048}
    s_mov_b32 s20, 0
    s_waitcnt lgkmcnt(0)
    v_max_f32 v16, v16, v17
    v_bfe_u32 v16, v16, 23, 8
    v_max_u32 v16, 14, v16
    v_sub_u32 v17, 0x8c, v16
    v_cvt_f32_i32 v29, v17                ; kf = 140 - e'
    v_mov_b32 v28, 0
    v_subrev_u32 v16, 13, v16
    v_lshlrev_b32 v27, 23, v16            ; Sinv
    P_KLOOP:
    ds_read_b128 v[52:55], v34 offset:{KS}
    ds_read_b128 v[56:59], v34 offset:{KS+16}
    ds_read_b128 v[60:63], v34 offset:{KS+32}
    ds_read_b128 v[64:67], v34 offset:{KS+48}
    v_add_u32 v34, 0x100, v34
    """)
    for nn in range(4):
        p = 52 + 4 * nn
        kk(f"""
        s_waitcnt lgkmcnt({3-nn})
        v_pk_mul_f32 v[2:3], v[30:31], v[{p}:{p+1}] op_sel_hi:[1,0]
        v_pk_fma_f32 v[4:5], v[32:33], v[{p}:{p+1}], v[28:29] op_sel_hi:[1,0,1]
        v_pk_mul_f32 v[6:7], v[30:31], v[{p}:{p+1}] op_sel:[0,1] op_sel_hi:[1,1]
        v_pk_mul_f32 v[8:9], v[32:33], v[{p}:{p+1}] op_sel:[0,1] op_sel_hi:[1,1]
        v_exp_f32 v2, v2
        v_exp_f32 v3, v3
        v_exp_f32 v4, v4
        v_exp_f32 v5, v5
        v_fract_f32 v6, v6
        v_fract_f32 v7, v7
        v_fract_f32 v8, v8
        v_fract_f32 v9, v9
        v_cos_f32 v10, v6
        v_sin_f32 v11, v6
        v_cos_f32 v12, v7
        v_sin_f32 v13, v7
        v_cos_f32 v14, v8
        v_sin_f32 v15, v8
        v_cos_f32 v16, v9
        v_sin_f32 v17, v9
        v_pk_mul_f32 v[10:11], v[10:11], v[2:3] op_sel_hi:[1,0]
        v_pk_mul_f32 v[12:13], v[12:13], v[2:3] op_sel:[0,1] op_sel_hi:[1,1]
        v_pk_mul_f32 v[14:15], v[14:15], v[4:5] op_sel_hi:[1,0]
        v_pk_mul_f32 v[16:17], v[16:17], v[4:5] op_sel:[0,1] op_sel_hi:[1,1]
        v_cvt_pk_f16_f32 v{68+nn}, v10, v11
        v_cvt_pk_f16_f32 v{72+nn}, v12, v13
        v_cvt_pk_f16_f32 v{76+nn}, v14, v15
        v_pk_mul_f32 v[18:19], v[16:17], v[{p+2}:{p+3}] op_sel_hi:[1,0]
        v_pk_fma_f32 v[18:19], v[16:17], v[{p+2}:{p+3}], v[18:19] op_sel:[1,1,0] op_sel_hi:[0,1,1] neg_lo:[1,0,0]
        v_cvt_pk_f16_f32 v{80+nn}, v18, -v19
        """)
    kk(f"""
    s_cmp_eq_u32 s20, 1
    s_cbranch_scc1 P_KL2
    v_mfma_f32_16x16x32_f16 v[40:43], v[68:71], v[80:83], 0
    v_mfma_f32_16x16x32_f16 v[44:47], v[72:75], v[80:83], 0
    v_mfma_f32_16x16x32_f16 v[48:51], v[76:79], v[80:83], 0
    s_mov_b32 s20, 1
    s_branch P_KLOOP
    P_KL2:
    v_mfma_f32_16x16x32_f16 v[40:43], v[68:71], v[80:83], v[40:43]
    v_mfma_f32_16x16x32_f16 v[44:47], v[72:75], v[80:83], v[44:47]
    v_mfma_f32_16x16x32_f16 v[48:51], v[76:79], v[80:83], v[48:51]
    @STAMP 12
    s_mul_i32 s20, s19, 3072
    v_add_u32 v2, s20, v39
    s_lshl_b32 s20, s19, 10
    v_add_u32 v3, s20, v39
    ds_write_b128 v2, v[40:43] offset:{KS+4096}
    ds_write_b128 v2, v[44:47] offset:{KS+5120}
    ds_write_b128 v2, v[48:51] offset:{KS+6144}
    """)
    k(f"""
    s_cmp_lg_u32 s17, 3
    s_cbranch_scc1 F1_GO
    s_mov_b32 s26, 0
    F1_CHK:
    global_load_dword v59, v2, s[28:29] sc1
    s_waitcnt vmcnt(0)
    v_readlane_b32 s21, v59, 0
    v_readlane_b32 s22, v59, 1
    v_readlane_b32 s23, v59, 2
    v_readlane_b32 s27, v59, 3
    s_add_u32 s21, s21, s22
    s_add_u32 s23, s23, s27
    s_add_u32 s21, s21, s23
    s_cmp_ge_u32 s21, {N_T}
    s_cbranch_scc1 F1_GO
    s_add_u32 s26, s26, 1
    s_cmp_ge_u32 s26, {SPIN_MAX}
    s_cbranch_scc1 F1_GO
    s_sleep {F1_SLEEP}
    s_branch F1_CHK
    F1_GO:
    s_waitcnt lgkmcnt(0)
    s_barrier
    @STAMP 2
    """)
    conv_loads(k, "sc1")
    kk(f"""
    s_cmp_eq_u32 s19, 3
    s_cbranch_scc1 P_KS
    ds_read_b128 v[40:43], v3 offset:{KS+4096}
    ds_read_b128 v[44:47], v3 offset:{KS+4096+3072}
    ds_read_b128 v[48:51], v3 offset:{KS+4096+6144}
    ds_read_b128 v[4:7], v3 offset:{KS+4096+9216}
    s_waitcnt lgkmcnt(2)
    v_pk_add_f32 v[40:41], v[40:41], v[44:45]
    v_pk_add_f32 v[42:43], v[42:43], v[46:47]
    s_waitcnt lgkmcnt(0)
    v_pk_add_f32 v[48:49], v[48:49], v[4:5]
    v_pk_add_f32 v[50:51], v[50:51], v[6:7]
    v_pk_add_f32 v[40:41], v[40:41], v[48:49]
    v_pk_add_f32 v[42:43], v[42:43], v[50:51]
    v_mul_f32 v40, v27, v40
    v_mul_f32 v41, v27, v41
    v_mul_f32 v42, v27, v42
    v_mul_f32 v43, v27, v43
    v_cvt_pk_bf16_f32 v40, v40, v41
    v_cvt_pk_bf16_f32 v42, v42, v43
    ds_write_b16 v35, v40 offset:{TB}
    ds_write_b16_d16_hi v36, v40 offset:{TB}
    ds_write_b16 v37, v42 offset:{TB}
    ds_write_b16_d16_hi v38, v42 offset:{TB}
    P_KS:
    s_waitcnt lgkmcnt(0)
    s_barrier
    """)
    for e in range(11):
        k(f"ds_read_u16 v{48+e}, v{48+e}")
    k(f"""
    v_min_u32 v2, 0x5f0, v1
    ds_read_b128 v[80:83], v2 offset:{TB}
    s_waitcnt vmcnt(1)
    @STAMP 3
    """)
    stats_pair(k, 16, 17, 18, 19, 40)
    conv_expand(k)
    k("buffer_store_dwordx4 v[80:83], v2, s[8:11], s15 offen")
    for i in range(1, 4):
        stats_pair(k, 16 + 4*i, 17 + 4*i, 18 + 4*i, 19 + 4*i, 40)
    k("s_waitcnt vmcnt(1)")
    conv_norm(k)
    k("""
    @STAMP 4
    s_waitcnt lgkmcnt(0)
    s_branch CONV_MAIN
    """)
    k.label("P_TR")
    PITCH = 144
    k(f"""
    s_load_dwordx2 s[8:9], s[0:1], {KA_U}
    s_setprio 3
    s_sub_u32 s3, s2, {B_T}
    s_lshr_b32 s10, s3, 3                 ; lt (0..31)
    s_and_b32 s11, s3, 7                  ; dt (0..7)
    v_lshrrev_b32 v1, 3, v0               ; row 0..31
    v_and_b32 v2, 7, v0                   ; chunk
    s_lshl_b32 s12, s10, 16               ; lt*64*1024
    s_lshl_b32 s13, s11, 7
    s_add_u32 s12, s12, s13
    v_lshlrev_b32 v3, 10, v1
    v_lshl_add_u32 v3, v2, 4, v3
    v_add_u32 v3, s12, v3
    v_add_u32 v4, 0x8000, v3
    s_waitcnt lgkmcnt(0)
    global_load_dwordx4 v[8:11], v3, s[8:9]
    global_load_dwordx4 v[12:15], v4, s[8:9]
    v_lshrrev_b32 v41, 6, v0
    v_and_b32 v42, 63, v0
    s_lshl_b32 s14, s3, 13                ; 8 rows * 1024
    v_lshlrev_b32 v43, 11, v41
    v_lshl_add_u32 v43, v42, 4, v43
    v_add_u32 v43, s14, v43
    global_load_dwordx4 v[48:51], v43, s[8:9]
    global_load_dwordx4 v[52:55], v43, s[8:9] offset:1024
    v_mul_u32_u24 v5, {PITCH}, v1
    v_lshl_add_u32 v5, v2, 4, v5
    v_and_b32 v6, 15, v0                  ; lam
    v_bfe_u32 v7, v0, 4, 2                ; g
    v_lshrrev_b32 v16, 6, v0              ; w
    v_lshrrev_b32 v17, 2, v6              ; r = lam>>2
    v_lshl_add_u32 v17, v7, 3, v17        ; row = 8g + r
    v_mul_u32_u24 v17, {PITCH}, v17
    v_and_b32 v18, 3, v6
    v_lshl_add_u32 v17, v18, 3, v17       ; + c*8
    v_lshl_add_u32 v17, v16, 5, v17       ; + w*32 bytes
    s_mul_i32 s12, s11, {64*XP}
    s_lshl_b32 s13, s10, 7
    s_add_u32 s12, s12, s13
    s_add_u32 s12, s12, {XT0}
    v_lshl_add_u32 v19, v16, 4, v6
    v_mul_u32_u24 v19, {XP}, v19
    v_lshl_add_u32 v19, v7, 4, v19
    v_add_u32 v19, s12, v19
    s_waitcnt vmcnt(2)
    ds_write_b128 v5, v[8:11]
    ds_write_b128 v5, v[12:15] offset:{32*PITCH}
    s_waitcnt lgkmcnt(0)
    s_barrier
    ds_read_b64_tr_b16 v[8:9], v17
    ds_read_b64_tr_b16 v[10:11], v17 offset:{4*PITCH}
    ds_read_b64_tr_b16 v[12:13], v17 offset:{32*PITCH}
    ds_read_b64_tr_b16 v[14:15], v17 offset:{36*PITCH}
    s_waitcnt lgkmcnt(0)
    global_store_dwordx4 v19, v[8:11], s[4:5] {PREP_X_POL}
    global_store_dwordx4 v19, v[12:15], s[4:5] offset:64 {PREP_X_POL}
    """)
    k(f"""
    v_mov_b32 v2, v42
    s_lshl_b32 s10, s3, 4
    v_lshlrev_b32 v4, 12, v41
    v_add_u32 v4, s10, v4                 ; w*4096 + wg*16
    v_add_u32 v5, {ST0}, v4
    v_add_u32 v6, {ST1}, v4
    s_waitcnt vmcnt(2)
    """)
    for row, (base, sm, sq) in enumerate([(48, 20, 21), (52, 22, 23)]):
        for j in range(4):
            k(f"v_lshlrev_b32 v16, 16, v{base+j}")
            k(f"v_and_b32 v17, 0xffff0000, v{base+j}")
            if j == 0:
                k(f"v_add_f32 v{sm}, v16, v17")
                k(f"v_mul_f32 v{sq}, v16, v16")
            else:
                k(f"v_add_f32 v{sm}, v{sm}, v16")
                k(f"v_add_f32 v{sm}, v{sm}, v17")
                k(f"v_fmac_f32 v{sq}, v16, v16")
            k(f"v_fmac_f32 v{sq}, v17, v17")
    for sh in ("row_shr:1", "row_shr:2", "row_shr:4", "row_shr:8"):
        for r in range(20, 24):
            k(f"v_add_f32_dpp v{r}, v{r}, v{r} {sh} row_mask:0xf bank_mask:0xf bound_ctrl:0")
    for r in range(20, 24):
        k(f"v_add_f32_dpp v{r}, v{r}, v{r} row_bcast:15 row_mask:0xa bank_mask:0xf")
    for r in range(20, 24):
        k(f"v_add_f32_dpp v{r}, v{r}, v{r} row_bcast:31 row_mask:0xc bank_mask:0xf")
    k(f"""
    v_mov_b32 v24, 0
    v_mov_b32 v25, 0
    v_mov_b32 v26, 0
    v_mov_b32 v27, 0
    s_lshl_b32 s10, s3, 9
    s_add_u32 s10, s10, {ZR}
    v_and_b32 v7, 31, v0
    v_lshl_add_u32 v7, v7, 4, s10
    global_store_dwordx4 v7, v[24:27], s[4:5]
    v_cmp_eq_u32 vcc, 63, v2
    s_and_saveexec_b64 s[22:23], vcc
    global_store_dwordx4 v5, v[20:23], s[4:5] sc1
    global_store_dwordx4 v6, v[24:27], s[4:5]
    s_mov_b64 exec, -1
    s_and_b32 s10, s2, 3
    s_lshl_b32 s10, s10, 6
    v_mov_b32 v8, s10
    v_mov_b32 v9, 1
    v_cmp_eq_u32 vcc, 0, v0
    s_waitcnt vmcnt(0)
    s_barrier
    s_and_saveexec_b64 s[22:23], vcc
    s_cbranch_execz P_TEND
    global_atomic_add v8, v9, s[28:29] sc1
    P_TEND:
    @FLUSH 2
    s_endpgm
    """)
    k.label("P_W")
    WPITCH = 400
    k(f"""
    s_load_dwordx4 s[8:11], s[0:1], {KA_WG}
    s_sub_u32 s3, s2, {B_W}
    s_lshr_b32 s12, s3, 4                 ; ft
    s_and_b32 s13, s3, 15                 ; s
    """)
    k(f"""
    s_mul_i32 s14, s13, {32*F*2}
    s_mul_i32 s15, s12, 192
    s_add_u32 s14, s14, s15
    s_mul_i32 s16, s12, 12
    s_mov_b32 s17, 0x15555556
    """)
    k(f"v_mov_b32 v5, {F//8}")
    for i in range(2):
        k(f"""
        v_add_u32 v1, {256*i}, v0
        v_mul_hi_u32 v2, v1, s17
        v_mul_u32_u24 v3, 12, v2
        v_sub_u32 v3, v1, v3                  ; chunk
        v_mul_u32_u24 v4, {F*2}, v2
        v_lshl_add_u32 v4, v3, 4, v4
        v_add_u32 v{40+i}, s14, v4
        v_mul_u32_u24 v4, {WPITCH}, v2
        v_lshl_add_u32 v{42+i}, v3, 5, v4
        v_add_u32 v3, s16, v3
        v_cmp_gt_u32 s[{24+2*i}:{25+2*i}], v5, v3
        """)
    for r in range(8, 24): k(f"v_mov_b32 v{r}, 0")
    k(f"""
    v_cmp_gt_u32 vcc, 0x80, v0
    s_and_b64 s[26:27], s[26:27], vcc
    s_waitcnt lgkmcnt(0)
    s_mov_b64 s[46:47], exec
    s_mov_b64 exec, s[24:25]
    s_cbranch_execz P_W1
    global_load_dwordx4 v[8:11], v40, s[8:9]
    global_load_dwordx4 v[12:15], v40, s[10:11]
    P_W1:
    s_mov_b64 exec, s[26:27]
    s_cbranch_execz P_W2
    global_load_dwordx4 v[16:19], v41, s[8:9]
    global_load_dwordx4 v[20:23], v41, s[10:11]
    P_W2:
    s_mov_b64 exec, s[46:47]
    s_waitcnt vmcnt(0)
    ds_write2_b32 v42, v8, v9 offset0:0 offset1:2
    ds_write2_b32 v42, v10, v11 offset0:4 offset1:6
    ds_write2_b32 v42, v12, v13 offset0:1 offset1:3
    ds_write2_b32 v42, v14, v15 offset0:5 offset1:7
    s_and_saveexec_b64 s[46:47], vcc
    s_cbranch_execz P_W3
    ds_write2_b32 v43, v16, v17 offset0:0 offset1:2
    ds_write2_b32 v43, v18, v19 offset0:4 offset1:6
    ds_write2_b32 v43, v20, v21 offset0:1 offset1:3
    ds_write2_b32 v43, v22, v23 offset0:5 offset1:7
    P_W3:
    s_mov_b64 exec, s[46:47]
    v_and_b32 v1, 15, v0
    v_bfe_u32 v2, v0, 4, 2
    v_lshrrev_b32 v3, 2, v1
    v_lshl_add_u32 v3, v2, 2, v3
    v_mul_u32_u24 v3, {WPITCH}, v3
    v_and_b32 v4, 3, v1
    v_lshl_add_u32 v3, v4, 3, v3
    v_readfirstlane_b32 s18, v0
    s_lshr_b32 s18, s18, 6                ; w
    s_lshl_b32 s19, s18, 7
    s_mov_b32 s20, 32
    s_cmp_eq_u32 s18, 3
    s_cselect_b32 s19, 96, s19
    s_cselect_b32 s20, 128, s20
    v_add_u32 v3, s19, v3
    v_add_u32 v4, s20, v3
    v_add_u32 v5, s20, v4
    s_lshl_b32 s21, s12, 2
    s_add_u32 s21, s21, s18
    s_lshl_b32 s21, s21, 4
    s_add_u32 s21, s21, s13
    s_mul_i32 s21, s21, 3072
    s_add_u32 s21, s21, {WP}
    v_and_b32 v6, 63, v0
    v_lshlrev_b32 v6, 4, v6
    v_add_u32 v6, s21, v6
    v_add_u32 v7, 0x400, v6
    v_add_u32 v24, 0x800, v6
    s_waitcnt lgkmcnt(0)
    s_barrier
    ds_read_b64_tr_b16 v[8:9], v3
    ds_read_b64_tr_b16 v[10:11], v3 offset:{16*WPITCH}
    ds_read_b64_tr_b16 v[12:13], v4
    ds_read_b64_tr_b16 v[14:15], v4 offset:{16*WPITCH}
    ds_read_b64_tr_b16 v[16:17], v5
    ds_read_b64_tr_b16 v[18:19], v5 offset:{16*WPITCH}
    s_waitcnt lgkmcnt(0)
    global_store_dwordx4 v6, v[8:11], s[4:5] {PREP_W_POL}
    global_store_dwordx4 v7, v[12:15], s[4:5] {PREP_W_POL}
    global_store_dwordx4 v24, v[16:19], s[4:5] {PREP_W_POL}
    @FLUSH 2
    s_endpgm
    """)
    k.label("P_D")
    DPITCH = 272
    k(f"""
    s_load_dwordx2 s[8:9], s[0:1], {KA_WD}
    s_sub_u32 s3, s2, {B_D}
    s_lshr_b32 s12, s3, 2                 ; ks 0..43
    s_and_b32 s13, s3, 3                  ; dq
    v_lshrrev_b32 v1, 4, v0               ; row 0..15 (+16)
    v_and_b32 v2, 15, v0                  ; chunk
    s_lshl_b32 s14, s12, 15               ; ks*32*1024
    s_lshl_b32 s15, s13, 8
    s_add_u32 s14, s14, s15
    v_lshlrev_b32 v3, 10, v1
    v_lshl_add_u32 v3, v2, 4, v3
    v_add_u32 v3, s14, v3
    v_add_u32 v4, 0x4000, v3
    """)
    for r in range(8, 16): k(f"v_mov_b32 v{r}, 0")
    k(f"""
    s_waitcnt lgkmcnt(0)
    s_cmp_ge_u32 s12, 43
    s_cbranch_scc1 P_D1
    global_load_dwordx4 v[8:11], v3, s[8:9]
    global_load_dwordx4 v[12:15], v4, s[8:9]
    P_D1:
    v_bfe_u32 v5, v1, 1, 2                ; g
    v_lshrrev_b32 v6, 3, v1               ; dw (0/1)
    v_and_b32 v7, 1, v1
    v_lshl_add_u32 v7, v6, 1, v7
    v_lshl_add_u32 v7, v5, 3, v7          ; rho
    v_mul_u32_u24 v7, {DPITCH}, v7
    v_lshl_add_u32 v7, v2, 4, v7
    v_and_b32 v1, 15, v0
    v_bfe_u32 v2, v0, 4, 2
    v_lshrrev_b32 v16, 6, v0
    v_lshrrev_b32 v3, 2, v1
    v_lshl_add_u32 v3, v2, 3, v3          ; row = 8g + r
    v_mul_u32_u24 v3, {DPITCH}, v3
    v_and_b32 v4, 3, v1
    v_lshl_add_u32 v3, v4, 3, v3          ; + c*8 bytes (4 d)
    v_lshl_add_u32 v3, v16, 6, v3         ; + w*64
    s_lshl_b32 s16, s13, 3
    v_lshl_add_u32 v17, v16, 1, s16
    v_mul_u32_u24 v17, {NKS2*1024}, v17
    v_and_b32 v18, 63, v0
    v_lshl_add_u32 v17, v18, 4, v17
    s_lshl_b32 s16, s12, 10
    s_add_u32 s16, s16, {WD}
    v_add_u32 v17, s16, v17
    v_add_u32 v18, {NKS2*1024}, v17
    s_waitcnt vmcnt(0)
    ds_write_b128 v7, v[8:11]
    ds_write_b128 v7, v[12:15] offset:{4*DPITCH}
    s_waitcnt lgkmcnt(0)
    s_barrier
    ds_read_b64_tr_b16 v[8:9], v3
    ds_read_b64_tr_b16 v[10:11], v3 offset:{4*DPITCH}
    ds_read_b64_tr_b16 v[12:13], v3 offset:32
    ds_read_b64_tr_b16 v[14:15], v3 offset:{4*DPITCH+32}
    s_waitcnt lgkmcnt(0)
    global_store_dwordx4 v17, v[8:11], s[4:5] {PREP_W_POL}
    global_store_dwordx4 v18, v[12:15], s[4:5] {PREP_W_POL}
    @FLUSH 2
    s_endpgm
    """)
    k.label("P_C")
    k(f"""
    s_load_dwordx4 s[8:11], s[0:1], {KA_WG}
    s_sub_u32 s3, s2, {B_C}
    s_and_b32 s12, s3, 1                  ; mat
    s_lshr_b32 s13, s3, 1                 ; cb 0..21
    v_lshrrev_b32 v1, 3, v0
    v_and_b32 v2, 7, v0                   ; chunk
    s_lshl_b32 s14, s13, 3
    v_add_u32 v3, s14, v2
    v_mul_u32_u24 v4, {F*2}, v1
    v_lshl_add_u32 v4, v3, 4, v4
    s_waitcnt lgkmcnt(0)
    s_cmp_eq_u32 s12, 1
    s_cselect_b32 s8, s10, s8
    s_cselect_b32 s9, s11, s9
    v_mov_b32 v5, {F//8}
    v_cmp_gt_u32 vcc, v5, v3
    """)
    for r in range(8, 16): k(f"v_mov_b32 v{r}, 0")
    k("""
    s_and_saveexec_b64 s[46:47], vcc
    s_cbranch_execz P_C2
    """)
    for i in range(16):
        k(f"global_load_dwordx4 v[{16+4*i}:{19+4*i}], v4, s[8:9]")
        if i < 15: k(f"v_add_u32 v4, {32*F*2}, v4")
    for i in range(16):
        k(f"s_waitcnt vmcnt({15-i})")
        for j in range(4):
            k(f"v_lshlrev_b32 v6, 16, v{16+4*i+j}")
            k(f"v_and_b32 v7, 0xffff0000, v{16+4*i+j}")
            k(f"v_add_f32 v{8+2*j}, v{8+2*j}, v6")
            k(f"v_add_f32 v{9+2*j}, v{9+2*j}, v7")
    k(f"""
    P_C2:
    s_mov_b64 exec, s[46:47]
    v_lshlrev_b32 v6, 5, v0
    ds_write_b128 v6, v[8:11]
    ds_write_b128 v6, v[12:15] offset:16
    s_waitcnt lgkmcnt(0)
    s_barrier
    v_cmp_gt_u32 vcc, 64, v0
    s_and_saveexec_b64 s[46:47], vcc
    s_cbranch_execz P_C3
    v_lshlrev_b32 v6, 2, v0
    """)
    for i in range(32):
        k(f"ds_read_b32 v{16+i}, v6 offset:{256*i}")
    k("s_waitcnt lgkmcnt(0)")
    for i in range(1, 32):
        k(f"v_add_f32 v16, v16, v{16+i}")
    k(f"""
    s_lshl_b32 s14, s13, 6
    v_add_u32 v1, s14, v0                 ; f
    s_mov_b32 s17, 0x2aaaaab
    v_mul_hi_u32 v2, v1, s17              ; ft
    v_mul_u32_u24 v3, 96, v2
    v_sub_u32 v3, v1, v3                  ; rem
    v_lshrrev_b32 v4, 5, v3               ; j
    v_bfe_u32 v5, v3, 3, 2                ; dw
    v_mul_u32_u24 v7, 3, v4
    v_add_u32 v7, v7, v5                  ; 3j + dw
    v_add_u32 v8, 9, v4                   ; 9 + j
    v_cmp_eq_u32 vcc, 3, v5
    v_cndmask_b32 v7, v7, v8, vcc         ; w*3+tau
    v_mul_u32_u24 v8, 12, v2
    v_add_u32 v7, v7, v8
    v_lshlrev_b32 v7, 4, v7
    v_bfe_u32 v8, v3, 1, 2
    v_lshl_add_u32 v7, v8, 2, v7
    v_and_b32 v8, 1, v3
    v_add_u32 v7, v7, v8
    s_lshl_b32 s14, s12, 1
    v_add_u32 v7, s14, v7
    v_lshlrev_b32 v7, 2, v7
    v_add_u32 v7, {CSUM}, v7
    global_store_dword v7, v16, s[4:5]
    s_cmp_lg_u32 s13, 21
    s_cbranch_scc1 P_C3
    v_cmp_gt_u32 vcc, 32, v0
    s_and_b64 exec, exec, vcc
    v_bfe_u32 v5, v0, 3, 2
    v_add_u32 v7, 6, v5
    v_cmp_eq_u32 vcc, 3, v5
    v_cndmask_b32 v7, v7, 11, vcc
    v_add_u32 v7, {14*12}, v7
    v_lshlrev_b32 v7, 4, v7
    v_bfe_u32 v8, v0, 1, 2
    v_lshl_add_u32 v7, v8, 2, v7
    v_and_b32 v8, 1, v0
    v_add_u32 v7, v7, v8
    v_add_u32 v7, s14, v7
    v_lshlrev_b32 v7, 2, v7
    v_add_u32 v7, {CSUM}, v7
    v_mov_b32 v16, 0
    global_store_dword v7, v16, s[4:5]
    P_C3:
    @FLUSH 2
    s_endpgm
    """)
    return k, dict(vgpr=160, sgpr=48, accum=160, grid=PREP_WGS, block=256, lds=CONV_LDS)


def stats_pair(k, sa, qa, sb, qb, t, keep=None):
    for s_, q_ in ((sa, qa), (sb, qb)):
        k(f"""
        v_mul_f32 v{s_}, s43, v{s_}
        v_mul_f32 v{q_}, s43, v{q_}
        v_fma_f32 v{q_}, -v{s_}, v{s_}, v{q_}
        v_max_f32 v{q_}, 0, v{q_}
        v_cvt_pk_bf16_f32 v{q_}, v{s_}, v{q_}
        v_lshlrev_b32 v{s_}, 16, v{q_}
        v_and_b32 v{q_}, 0xffff0000, v{q_}
        v_add_f32 v{q_}, s44, v{q_}
        """)
    k(f"""
    v_cvt_pk_bf16_f32 v{t}, v{qa}, v{qb}
    v_lshlrev_b32 v{qa}, 16, v{t}
    v_and_b32 v{qb}, 0xffff0000, v{t}
    v_sqrt_f32 v{qa}, v{qa}
    v_sqrt_f32 v{qb}, v{qb}
    v_cvt_pk_bf16_f32 v{t}, v{qa}, v{qb}
    v_lshlrev_b32 v{keep[0] if keep else qa}, 16, v{t}
    v_and_b32 v{keep[1] if keep else qb}, 0xffff0000, v{t}
    v_rcp_f32 v{qa}, v{keep[0] if keep else qa}
    v_rcp_f32 v{qb}, v{keep[1] if keep else qb}
    """)

def gen_conv():
    k = Kern("conv")
    k(f"""
    conv2_kernel:
    s_mov_b32 s30, {X2T}
    s_mov_b32 s31, {ST1}
    s_mov_b32 s32, {X3T}
    @KID 4
    s_cmp_ge_u32 s2, 512
    s_cbranch_scc1 CONV_END
    @INIT
    s_load_dwordx2 s[4:5], s[0:1], {KA_WS}
    s_load_dwordx2 s[6:7], s[0:1], {KA_DSKIP}
    """)
    conv_setup(k)
    k(f"""
    s_lshl_b32 s18, s17, 11
    s_add_u32 s18, s18, {CRED}
    """)
    conv_p3(k)
    k("""
    @STAMP 10
    s_waitcnt lgkmcnt(0)
    @STAMP 11
    s_load_dword s20, s[6:7], s16
    """)
    srd(k, 8, 4, WS_BYTES)
    k(f"""
    s_mov_b32 m0, s18
    s_nop 0
    buffer_load_dwordx4 v6, s[8:11], s15 offen lds
    buffer_load_dwordx4 v6, s[8:11], s15 offen offset:1024 lds
    """)
    conv_loads(k)
    k("""
    @STAMP 12
    @STAMP 2
    s_waitcnt vmcnt(5)
    """)
    for e in range(11):
        k(f"ds_read_u16 v{48+e}, v{48+e}")
    conv_expand(k)
    k("""
    s_waitcnt vmcnt(1)
    @STAMP 3
    """)
    for i in range(4):
        stats_pair(k, 16 + 4*i, 17 + 4*i, 18 + 4*i, 19 + 4*i, 40)
    k("s_waitcnt vmcnt(0)")
    conv_norm(k)
    if CPF:
        k(f"""
        s_lshr_b32 s21, s2, 3
        s_lshl_b32 s21, s21, 2
        s_add_u32 s21, s21, s17
        s_mul_i32 s22, s21, 6144
        s_and_b32 s23, s2, 1
        s_mul_i32 s23, s23, {8*196608}
        s_add_u32 s22, s22, s23
        s_add_u32 s22, s22, {WP}
        v_mul_u32_u24 v38, {CPF_STRIDE}, v5
        """)
        for j in range(-(-6144 // (64 * CPF_STRIDE))):
            k(f"buffer_load_dword v39, v38, s[8:11], s22 offen\ns_add_u32 s22, s22, {64*CPF_STRIDE}")
    k("""
    @STAMP 4
    s_waitcnt lgkmcnt(0)
    CONV_MAIN:
    s_barrier
    @STAMP 5
    """)
    KF = 48; UB = 16; ACC = 112
    pend = []
    def rd(tag):
        if tag[0] == "U":
            mu = int(tag[1:]); r = UB + 4 * (mu & 3)
            k(f"ds_read_b128 v[{r}:{r+3}], v9 offset:{256*mu}")
        else:
            t = int(tag[1:]); r = KF + 4 * t
            k(f"ds_read_b128 v[{r}:{r+3}], v7 offset:{256*t}")
        pend.append(tag)
    def need(tags):
        idx = max([pend.index(t) for t in tags if t in pend], default=-1)
        if idx >= 0:
            k(f"s_waitcnt lgkmcnt({len(pend) - idx - 1})")
            del pend[:idx + 1]
    queue = ["U0"] + [f"K{t}" for t in range(1, 16, 2)] + ["U1"] + [f"K{t}" for t in range(0, 16, 2)] + ["U2", "U3"]
    for t in queue[:12]: rd(t)
    queue = queue[12:]
    for mu in range(16):
        a = UB + 4 * (mu & 3)
        q0 = max(0, -(-(mu - 1) // 2))
        for q in range(q0, 8):
            tp = 2 * q + 1 - mu
            need([f"U{mu}", f"K{tp}"])
            c = "0" if mu == 0 else f"v[{ACC+4*q}:{ACC+4*q+3}]"
            k(f"v_mfma_f32_16x16x32_bf16 v[{ACC+4*q}:{ACC+4*q+3}], v[{KF+4*tp}:{KF+4*tp+3}], v[{a}:{a+3}], {c}")
            if queue: rd(queue.pop(0))
        if mu + 4 < 16: rd(f"U{mu+4}")
        if mu & 1 and mu >= 3:
            q = (mu - 3) // 2
            k(f"ds_write_b128 v10, v[{ACC+4*q}:{ACC+4*q+3}] offset:{(CRED + (q>>1)*8192 if q < 6 else KL) + (q&1)*1024}")
            pend.append("W")
        if mu == 6:
            assert not any(t[0] == "K" for t in pend + queue)
            k("s_barrier")
    k("@STAMP 6")
    k(f"""
    s_and_b32 s21, s20, 0xffff0000
    s_lshl_b32 s20, s20, 16
    s_bitcmp1_b32 s2, 0
    s_cselect_b32 s20, s21, s20
    """)
    for p in range(4):
        k(f"""
        v_lshlrev_b32 v40, 16, v{32+p}
        v_and_b32 v41, 0xffff0000, v{32+p}
        v_mul_f32 v40, s20, v40
        v_mul_f32 v41, s20, v41
        v_cvt_pk_bf16_f32 v41, v40, v41
        """)
        if p == 0:
            k(f"ds_write_b128 v10, v[{ACC+28}:{ACC+31}] offset:{KL + 1024}")
        k(f"""
        v_lshlrev_b32 v{48+2*p}, 16, v41
        v_and_b32 v{49+2*p}, 0xffff0000, v41
        v_lshlrev_b32 v{56+2*p}, 16, v{12+p}
        v_and_b32 v{57+2*p}, 0xffff0000, v{12+p}
        """)
    k("""
    s_waitcnt lgkmcnt(0)
    s_barrier
    @STAMP 7
    """)
    for src in range(4):
        for t in range(2):
            k(f"ds_read_b128 v[{ACC+8*src+4*t}:{ACC+8*src+4*t+3}], v11 offset:{src*2048 + t*16}")
    k("s_waitcnt lgkmcnt(4)")
    for r in range(0, 8, 2):
        k(f"v_pk_add_f32 v[{ACC+r}:{ACC+r+1}], v[{ACC+r}:{ACC+r+1}], v[{ACC+8+r}:{ACC+9+r}]")
    k("s_waitcnt lgkmcnt(0)")
    for r in range(0, 8, 2):
        k(f"v_pk_add_f32 v[{ACC+16+r}:{ACC+17+r}], v[{ACC+16+r}:{ACC+17+r}], v[{ACC+24+r}:{ACC+25+r}]")
    for r in range(0, 8, 2):
        k(f"v_pk_add_f32 v[{ACC+r}:{ACC+r+1}], v[{ACC+r}:{ACC+r+1}], v[{ACC+16+r}:{ACC+17+r}]")
    k("@STAMP 8")
    for p in range(4):
        y0, y1 = ACC + 2*p, ACC + 2*p + 1
        k(f"""
        v_cvt_pk_bf16_f32 v{y1}, v{y0}, v{y1}
        v_lshlrev_b32 v{y0}, 16, v{y1}
        v_and_b32 v{y1}, 0xffff0000, v{y1}
        v_pk_add_f32 v[{y0}:{y1}], v[{y0}:{y1}], v[{48+2*p}:{49+2*p}]
        v_cvt_pk_bf16_f32 v{y1}, v{y0}, v{y1}
        v_lshlrev_b32 v{y0}, 16, v{y1}
        v_and_b32 v{y1}, 0xffff0000, v{y1}
        v_pk_add_f32 v[{y0}:{y1}], v[{y0}:{y1}], v[{56+2*p}:{57+2*p}]
        v_cvt_pk_bf16_f32 v{44+p}, v{y0}, v{y1}
        """)
    k(f"""
    buffer_store_dwordx4 v[44:47], v1, s[8:11], s14 offen {CONV_ST}
    @STAMP 9
    @FLUSH 13
    CONV_END:
    s_endpgm
    """)
    info = dict(vgpr=144, sgpr=48, accum=144, grid=512, block=256, lds=CONV_LDS)
    return k, info

MLP_LDS = 163840
H_LD = os.environ.get('H_LD', 'sc1')
M_PRE2 = int(os.environ.get('M_PRE2', '5'))
M_OLD = int(os.environ.get('M_OLD', '1'))
M_LOOK = int(os.environ.get('M_LOOK', '5'))
M_TOUCH = int(os.environ.get('M_TOUCH', '0'))
M_PRE = int(os.environ.get('M_PRE', '8'))
M_OPS = int(os.environ.get('M_OPS', '3'))
M_RAMP = int(os.environ.get('M_RAMP', '5'))
M_WDM = int(os.environ.get('M_WDM', '4'))
M_WDE = int(os.environ.get('M_WDE', '2'))
M_AHEAD2 = int(os.environ.get('M_AHEAD2', '6'))
SPIN_MAX = 1 << 20
SLOT = 40960
def gen_mlp():
    k = Kern("mlp")
    ACC = 0
    FR = 48
    XA = 104
    WA = 112
    CSR = 114
    STV = 126
    RES = 130
    VDMA, VW, VT0, VT1, VT2 = 134, 135, 136, 137, 138
    SA = 139
    VRES = 142; VSTX = 143; VPUB = 144; VCS = 145
    MR = 146
    TMP = 150
    NV = 168
    def wdreg(i): return f"a[{4*i}:{4*i+3}]"
    k(f"""
    mlpa_kernel:
    s_mov_b32 s30, {X1T}
    s_mov_b32 s31, {HB}
    s_mov_b32 s33, {STX}
    s_mov_b32 s34, {FLG}
    s_mov_b32 s35, 0
    @KID 2
    M_BODY:
    s_cmp_ge_u32 s2, 256
    s_cbranch_scc1 M_END
    @INIT
    s_load_dwordx2 s[4:5], s[0:1], {KA_WS}
    s_load_dwordx2 s[6:7], s[0:1], {KA_OUT}
    v_readfirstlane_b32 s17, v0
    s_and_b32 s12, s2, 7                  ; xcd
    s_lshr_b32 s13, s2, 3                 ; idx
    s_lshr_b32 s14, s12, 1
    s_lshl_b32 s14, s14, 2
    s_and_b32 s15, s13, 3
    s_add_u32 s14, s14, s15               ; lt
    s_lshl_b32 s36, s12, 2
    s_add_u32 s36, s36, s15               ; lt64
    s_lshr_b32 s37, s13, 2                ; dt
    s_and_b32 s15, s12, 1
    s_lshl_b32 s15, s15, 3
    s_add_u32 s15, s15, s37               ; ft
    s_lshr_b32 s17, s17, 6                ; w
    s_and_b32 s16, s17, 3
    s_lshr_b32 s29, s17, 2
    v_and_b32 v{VT0}, 63, v0              ; lane
    v_and_b32 v{VT1}, 15, v0              ; lam / j
    v_bfe_u32 v{VT2}, v0, 4, 2            ; g
    s_and_b32 s20, s17, 1
    s_lshl_b32 s20, s20, 2
    v_lshrrev_b32 v{TMP}, 1, v{VT1}
    v_xor_b32 v{TMP+1}, v{TMP}, v{VT2}
    v_xor_b32 v{TMP+1}, s20, v{TMP+1}
    v_and_b32 v{TMP+3}, 1, v{VT1}
    v_lshlrev_b32 v{TMP+3}, 4, v{TMP+3}
    v_mul_u32_u24 v{TMP+4}, {XP}, v{VT2}
    v_add_u32 v{TMP+3}, v{TMP+4}, v{TMP+3}
    v_lshl_add_u32 v{VDMA}, v{TMP+1}, 5, v{TMP+3}
    v_lshlrev_b32 v{VW}, 4, v{VT0}                    ; lane*16
    s_lshl_b32 s18, s14, 8
    s_add_u32 s18, s18, s30
    s_mul_i32 s19, s17, {4*XP}
    s_add_u32 s18, s18, s19
    s_lshl_b32 s19, s17, 10               ; x m0 part: w*1024
    s_lshl_b32 s20, s15, 2
    s_add_u32 s20, s20, s16
    s_lshl_b32 s21, s20, 4
    s_add_u32 s21, s21, s29
    s_mul_i32 s21, s21, 3072
    s_add_u32 s21, s21, {WP}
    s_mul_i32 s22, s17, 3072
    s_add_u32 s22, s22, 0x4000
    s_mul_i32 s24, s20, {3*16*4}
    s_add_u32 s24, s24, {CSUM}
    s_lshl_b32 s38, s37, 2
    s_add_u32 s38, s38, s16
    s_mul_i32 s38, s38, {NKS2*1024}
    s_mul_i32 s23, s29, {22*1024}
    s_add_u32 s38, s38, s23
    s_add_u32 s38, s38, {WD}
    """)
    def group_parts(t):
        base = (t & 3) * SLOT
        parts = [f"""
        s_add_u32 m0, s19, {base}
        s_nop 0
        buffer_load_dwordx4 v{VDMA}, s[8:11], s18 offen lds
        s_add_u32 s18, s18, {32*XP}
        """, f"""
        s_add_u32 m0, s22, {base}
        s_nop 0
        buffer_load_dwordx4 v{VW}, s[8:11], s21 offen lds
        """, f"""
        buffer_load_dwordx4 v{VW}, s[8:11], s21 offen offset:1024 lds
        """, f"""
        buffer_load_dwordx4 v{VW}, s[8:11], s21 offen offset:2048 lds
        s_add_u32 s21, s21, 0x1800
        """, f"""
        s_add_u32 m0, s19, {base + 8192}
        s_nop 0
        buffer_load_dwordx4 v{VDMA}, s[8:11], s18 offen lds
        s_add_u32 s18, s18, {32*XP}
        """]
        return parts
    def wd_part(i):
        p = f"buffer_load_dwordx4 {wdreg(i)}, v{VW}, s[8:11], s38 offen offset:{1024*(i&3)}"
        if (i & 3) == 3: p += "\ns_add_u32 s38, s38, 0x1000"
        return p
    def common_addr():
        k(f"""
        s_mov_b32 s43, {fl(1.0/512)}
        s_mov_b32 s44, {fl(1e-5)}
        s_mov_b32 s45, {fl(-LOG2E)}
        v_lshrrev_b32 v{TMP}, 2, v{VT1}
        v_lshl_add_u32 v{TMP}, v{VT2}, 2, v{TMP}          ; 4g + r
        v_and_b32 v{TMP+1}, 7, v{TMP}                     ; xi
        v_and_b32 v{TMP+2}, 3, v{VT1}
        v_lshlrev_b32 v{TMP+2}, 3, v{TMP+2}
        v_lshl_add_u32 v{TMP+2}, v{TMP}, 8, v{TMP+2}
        v_mul_u32_u24 v{VRES}, {XP}, v{VT1}
        v_lshl_add_u32 v{VRES}, v{VT2}, 4, v{VRES}
        s_lshl_b32 s39, s37, 2
        s_add_u32 s39, s39, s16
        s_mul_i32 s39, s39, {16*XP}
        s_lshl_b32 s40, s36, 7
        s_add_u32 s39, s39, s40
        s_lshl_b32 s40, s29, 6
        s_add_u32 s39, s39, s40
        s_add_u32 s40, s39, s30
        """)
    res_parts = [f"buffer_load_dwordx4 v[{RES}:{RES+3}], v{VRES}, s[8:11], s40 offen"]
    common_addr()
    k("s_lshl_b32 s25, s29, 2")
    for b in range(4):
        k(f"""
        s_add_u32 s26, s25, {b}
        v_xor_b32 v{TMP+3}, s26, v{TMP+1}
        v_lshl_add_u32 v{XA+b}, v{TMP+3}, 5, v{TMP+2}
        v_add_u32 v{XA+4+b}, {2*SLOT}, v{XA+b}
        """)
    k(f"""
    s_mul_i32 s26, s16, 3072
    s_add_u32 s26, s26, 0x4000
    v_add_u32 v{WA}, s26, v{VW}
    v_add_u32 v{WA+1}, {2*SLOT}, v{WA}
    """)
    def late_addr():
        k(f"""
        v_bfe_u32 v{TMP}, v{VT1}, 2, 1                    ; half
        v_mul_u32_u24 v{TMP+4}, 3072, v{TMP}
        v_lshrrev_b32 v{TMP}, 3, v{VT1}
        v_lshl_add_u32 v{TMP+4}, v{TMP}, 6, v{TMP+4}
        v_and_b32 v{TMP}, 3, v{VT1}
        v_lshl_add_u32 v{TMP+4}, v{TMP}, 4, v{TMP+4}
        v_lshl_add_u32 v{TMP+4}, v{VT2}, 8, v{TMP+4}
        s_lshl_b32 s26, s16, 10
        s_cmp_eq_u32 s16, 3
        s_cselect_b32 s26, 12, s26
        s_cselect_b32 s27, 0x400, 4
        s_mul_i32 s28, s29, 12288
        s_add_u32 s26, s26, s28
        v_add_u32 v{SA}, s26, v{TMP+4}
        v_add_u32 v{SA+1}, s27, v{SA}
        v_add_u32 v{SA+2}, s27, v{SA+1}
        v_lshlrev_b32 v{VSTX}, 2, v{VT1}
        s_lshl_b32 s41, s14, 9
        s_lshl_b32 s26, s29, 8
        s_add_u32 s41, s41, s26
        s_add_u32 s41, s41, s33
        s_mul_i32 s26, s17, 3072
        v_add_u32 v{VPUB}, s26, v{VW}
        s_lshl_b32 s42, s14, 3
        s_add_u32 s42, s42, s17
        s_mul_i32 s42, s42, {HKS*1024}
        s_mul_i32 s26, s15, 3072
        s_add_u32 s42, s42, s26
        s_add_u32 s42, s42, s31
        v_lshlrev_b32 v{VCS}, 4, v{VT2}
        """)
    late_addr()
    k(f"""
    v_lshrrev_b32 v{TMP+6}, 3, v{VT0}
    v_mul_u32_u24 v{TMP+6}, {XP}, v{TMP+6}
    v_and_b32 v{TMP+7}, 7, v{VT0}
    v_lshl_add_u32 v{TMP+6}, v{TMP+7}, 5, v{TMP+6}
    s_lshl_b32 s46, s37, 3
    s_add_u32 s46, s46, s17
    s_mul_i32 s46, s46, {8*XP}
    s_lshl_b32 s47, s14, 8
    s_add_u32 s46, s46, s47
    s_add_u32 s46, s46, s30
    """)
    k("s_waitcnt lgkmcnt(0)")
    srd(k, 8, 4, WS_BYTES)
    if M_TOUCH & 1: k(f"buffer_load_dword v{TMP+8}, v{TMP+6}, s[8:11], s46 offen")
    k("""
    s_cmp_eq_u32 s15, 15
    s_cbranch_scc1 M_STATS
    """)
    def reads(s):
        res = []
        t = s >> 1; hi = (t & 3) >> 1; base = (t & 1) * SLOT
        buf = FR + 28 * (s & 1)
        for tau in range(3):
            r = buf + 16 + 4 * tau
            res.append(f"ds_read_b128 v[{r}:{r+3}], v{WA+hi} offset:{base + (s&1)*12288 + tau*1024}")
        for b in range(4):
            off = base + (s & 1) * 8192
            res.append(f"ds_read_b64_tr_b16 v[{buf+4*b}:{buf+4*b+1}], v{XA+4*hi+b} offset:{off}")
            res.append(f"ds_read_b64_tr_b16 v[{buf+4*b+2}:{buf+4*b+3}], v{XA+4*hi+b} offset:{off+4096}")
        return res
    later = [f"buffer_load_dwordx4 v[{CSR+4*tau}:{CSR+4*tau+3}], v{VCS}, s[8:11], s24 offen offset:{64*tau}" for tau in range(3)]
    later += res_parts
    later += [wd_part(i) for i in range(M_WDM)]
    later += [f"buffer_load_dword v{STV+b}, v{VSTX}, s[8:11], s41 offen offset:{64*b} sc1" for b in range(4)]
    n_need = len(later)
    later += [wd_part(i) for i in range(M_WDM, 22)]
    vm = []
    def wait_for(tag):
        assert not any(o[1] == tag for o in opq), tag
        idxs = [i for i, x in enumerate(vm) if x == tag]
        if not idxs: return
        idx = max(idxs)
        k(f"s_waitcnt vmcnt({len(vm) - idx - 1})")
        del vm[:idx + 1]
    opq = []
    for u in range(8):
        gp = group_parts(u)
        e0 = max(2*u - 7, 2*u - M_LOOK)
        if M_OLD: e0 = {0: -1, 1: -1, 2: 0, 3: 1}.get(u, 2*u - 6)
        for j in (0, 1, 2): opq.append((gp[j], f"D{2*u}", e0))
        opq.append((gp[3], f"D{2*u}", e0 + 1 if u > (3 if M_OLD else 1) else e0))
        opq.append((gp[4], f"D{2*u+1}", e0 + 1 if u > (3 if M_OLD else 1) else e0))
    for i, p in enumerate(later[:n_need]): opq.append((p, "N", -100))
    nlater = n_need
    def issue(n, s):
        out = []
        while opq and len(out) < n and opq[0][2] <= s:
            out.append(opq.pop(0))
        return out
    for p, tag, _ in issue(10 if M_OLD else M_PRE, -1):
        k(p); vm.append(tag)
    k("@STAMP 2")
    wait_for("D1" if M_OLD else "D0")
    k("s_barrier")
    k("@STAMP 3")
    for r in reads(0): k(r)
    EXP = os.environ.get('EXP', '')
    for s in range(16):
        if M_OLD:
            bar = False
            if s == 1: wait_for("D3"); bar = True
            elif (s & 1) == 0 and 0 < s < 14: wait_for(f"D{s+3}"); bar = True
            if bar: k("s_barrier")
            k("s_waitcnt lgkmcnt(0)")
        else:
            if s == 0: wait_for("D1")
            elif s < 15 and (s & 1): wait_for(f"D{s+2}")
            k("s_waitcnt lgkmcnt(0)")
            if s < 15 and (s == 0 or (s & 1)): k("s_barrier")
        if s == 8: k("@STAMP 4")
        fill = reads(s + 1) if s < 15 else []
        mf = []
        buf = FR + 28 * (s & 1)
        for b in range(4):
            for tau in range(3):
                a = ACC + (b * 3 + tau) * 4
                c = "0" if s == 0 else f"v[{a}:{a+3}]"
                mf.append(f"v_mfma_f32_16x16x32_bf16 v[{a}:{a+3}], v[{buf+16+4*tau}:{buf+19+4*tau}], v[{buf+4*b}:{buf+4*b+3}], {c}")
        parts = issue((5 if s < 2 else 3) if M_OLD else (M_OPS if s < M_RAMP else 3), s)
        step = 12 // max(len(parts), 1)
        slots = {1 + step * j: p for j, p in enumerate(parts)}
        for i, m in enumerate(mf):
            k(m)
            if i < len(fill): k(fill[i])
            if i in slots:
                k(slots[i][0]); vm.append(slots[i][1])
    assert not opq, len(opq)
    assert nlater >= n_need
    k("@STAMP 5")
    wait_for("N")
    k(f"""
    s_mov_b32 s47, 0
    M_STCHK:
    v_min3_u32 v{TMP}, v{STV}, v{STV+1}, v{STV+2}
    v_min_u32 v{TMP}, v{TMP}, v{STV+3}
    v_cmp_eq_u32 vcc, 0, v{TMP}
    s_cmp_eq_u64 vcc, 0
    s_cbranch_scc1 M_STOK
    s_add_u32 s47, s47, 1
    s_cmp_ge_u32 s47, {SPIN_MAX}
    s_cbranch_scc1 M_STOK
    s_sleep 2
    """)
    for b in range(4): k(f"buffer_load_dword v{STV+b}, v{VSTX}, s[8:11], s41 offen offset:{64*b} sc1")
    k("""
    s_waitcnt vmcnt(0)
    s_branch M_STCHK
    M_STOK:
    @STAMP 6
    """)
    PB = FR
    for b in range(4):
        m = MR
        k(f"""
        v_and_b32 v{m+2}, 0xffff0000, v{STV+b}        ; s
        v_lshlrev_b32 v{m}, 16, v{STV+b}              ; m
        v_rcp_f32 v{m+1}, v{m+2}
        v_mul_f32 v{m+1}, s45, v{m+1}
        """)
        for tau in range(3):
            a = ACC + (b * 3 + tau) * 4
            c = CSR + 4 * tau
            k(f"""
            v_pk_fma_f32 v[{a}:{a+1}], v[{m}:{m+1}], v[{c}:{c+1}], v[{a}:{a+1}] op_sel_hi:[0,1,1] neg_lo:[1,0,0] neg_hi:[1,0,0]
            v_pk_fma_f32 v[{a+2}:{a+3}], v[{m}:{m+1}], v[{c+2}:{c+3}], v[{a+2}:{a+3}] op_sel_hi:[0,1,1] neg_lo:[1,0,0] neg_hi:[1,0,0]
            v_pk_mul_f32 v[{a}:{a+1}], v[{a}:{a+1}], v[{m}:{m+1}] op_sel:[0,1] op_sel_hi:[1,1]
            v_exp_f32 v{a}, v{a}
            v_exp_f32 v{a+1}, v{a+1}
            """)
            if tau < M_WDE and nlater < len(later):
                k(later[nlater]); nlater += 1
        for tau in range(3):
            a = ACC + (b * 3 + tau) * 4
            k(f"""
            v_pk_fma_f32 v[{a}:{a+1}], v[{a}:{a+1}], v[{m+2}:{m+3}], v[{m+2}:{m+3}] op_sel_hi:[1,0,0]
            v_rcp_f32 v{a}, v{a}
            v_rcp_f32 v{a+1}, v{a+1}
            """)
        for tau in range(3):
            a = ACC + (b * 3 + tau) * 4
            k(f"""
            v_pk_mul_f32 v[{a}:{a+1}], v[{a}:{a+1}], v[{a+2}:{a+3}]
            v_cvt_pk_bf16_f32 v{a}, v{a}, v{a+1}
            ds_write_b32 v{SA+tau}, v{a} offset:{(b>>1)*6144 + (b&1)*128}
            """)
    k("""
    s_waitcnt lgkmcnt(0)
    s_barrier
    @STAMP 7
    """)
    for i in range(3):
        k(f"ds_read_b128 v[{PB+4*i}:{PB+4*i+3}], v{VPUB} offset:{1024*i}")
    for i in range(3):
        k(f"s_waitcnt lgkmcnt({2-i})")
        k(f"buffer_store_dwordx4 v[{PB+4*i}:{PB+4*i+3}], v{VW}, s[8:11], s42 offen offset:{1024*i} sc1")
    rest = later[nlater:]
    k(f"""
    s_lshl_b32 s26, s14, 4
    s_add_u32 s26, s26, s15
    s_lshl_b32 s26, s26, 7
    s_add_u32 s26, s26, s34
    v_mov_b32 v{TMP}, 1
    v_mov_b32 v{TMP+1}, 0
    s_waitcnt vmcnt(0)
    s_barrier
    s_cmp_lg_u32 s17, 0
    s_cbranch_scc1 M_NOFLAG
    s_mov_b64 exec, 1
    buffer_store_dword v{TMP}, v{TMP+1}, s[8:11], s26 offen sc1
    s_mov_b64 exec, -1
    M_NOFLAG:
    """)
    for p in rest: k(p)
    HA = XA
    k(f"""
    M_SYNC:
    @STAMP 8
    s_lshl_b32 s26, s36, 2
    s_add_u32 s26, s26, s16
    s_mul_i32 s26, s26, {HKS*1024}
    s_mul_i32 s27, s29, {22*1024}
    s_add_u32 s26, s26, s27
    s_add_u32 s26, s26, s31
    s_lshl_b32 s27, s17, 11               ; m0 part
    s_mul_i32 s28, s29, 0x3000
    v_add_u32 v{HA}, s28, v{VW}
    s_lshl_b32 s28, s29, 12
    s_add_u32 s28, s28, 0x1000
    v_add_u32 v{HA+1}, s28, v{VW}
    v_add_u32 v{HA+2}, 0x10000, v{HA}
    v_add_u32 v{HA+3}, 0x10000, v{HA+1}
    v_add_u32 v{HA+4}, 0x20000, v{HA}
    v_add_u32 v{HA+5}, 0x20000, v{HA+1}
    s_cmp_lg_u32 s17, 1
    s_cbranch_scc1 M_WAITB
    s_lshr_b32 s28, s36, 1
    s_lshl_b32 s28, s28, 11
    s_add_u32 s28, s28, s34
    v_min_u32 v{TMP+4}, 14, v{VT0}
    v_lshlrev_b32 v{TMP+4}, 7, v{TMP+4}
    s_mov_b32 s47, 0
    M_POLL:
    buffer_load_dword v{TMP+5}, v{TMP+4}, s[8:11], s28 offen sc1
    s_waitcnt vmcnt(0)
    v_cmp_eq_u32 vcc, 0, v{TMP+5}
    s_cmp_eq_u64 vcc, 0
    s_cbranch_scc1 M_WAITB
    s_add_u32 s47, s47, 1
    s_cmp_lt_u32 s47, {SPIN_MAX}
    s_cbranch_scc1 M_POLL
    M_WAITB:
    s_lshl_b32 s46, s37, 3
    s_add_u32 s46, s46, s17
    s_mul_i32 s46, s46, 2880
    s_mul_i32 s47, s36, {4*HKS*1024}
    s_add_u32 s46, s46, s47
    s_add_u32 s46, s46, s31
    v_min_u32 v{TMP+6}, 44, v{VT0}
    v_lshlrev_b32 v{TMP+6}, 6, v{TMP+6}
    s_barrier
    @STAMP 9
    """)
    if M_TOUCH & 2: k(f"buffer_load_dword v{TMP+8}, v{TMP+6}, s[8:11], s46 offen")
    def hchunk(c):
        return [f"""
        s_add_u32 m0, s27, {(c % 10) * 16384}
        s_nop 0
        buffer_load_dwordx4 v{VW}, s[8:11], s26 offen {H_LD} lds
        """, f"""
        buffer_load_dwordx4 v{VW}, s[8:11], s26 offen offset:1024 {H_LD} lds
        s_add_u32 s26, s26, 0x800
        """]
    HF = 16
    A2 = 0
    def hreads(c):
        res = []
        for i in range(2):
            for lb in range(4):
                off = (c % 10) * 16384 + (lb & 1) * 2048 + i * 1024
                base = HA + 2 * (off >> 16) + (lb >> 1)
                r = HF + 32 * (c & 1) + (i * 4 + lb) * 4
                res.append(f"ds_read_b128 v[{r}:{r+3}], v{base} offset:{off & 0xffff}")
        return res
    iss = M_PRE2
    for c in range(iss):
        for p in hchunk(c): k(p)
    k(f"s_waitcnt vmcnt({2*(iss-1)})")
    k("s_barrier")
    k("@STAMP 10")
    for r in hreads(0): k(r)
    for c in range(11):
        fill = []
        if c < 10:
            k(f"s_waitcnt vmcnt({2*(iss-(c+2))})")
            k("s_barrier")
        k("s_waitcnt lgkmcnt(0)")
        if c < 10: fill = hreads(c + 1)
        parts = []
        for rep_ in range(2):
            if iss < 11 and (iss < 10 or c >= 1) and iss < c + M_AHEAD2:
                parts += hchunk(iss); iss += 1
        slots = {1 + 2 * j: p for j, p in enumerate(parts)}
        n = 0
        for i in range(2):
            for lb in range(4):
                r = HF + 32 * (c & 1) + (i * 4 + lb) * 4
                a = A2 + 4 * lb
                cc = "0" if (c == 0 and i == 0) else f"v[{a}:{a+3}]"
                k(f"v_mfma_f32_16x16x32_bf16 v[{a}:{a+3}], v[{r}:{r+3}], {wdreg(2*c+i)}, {cc}")
                if n < len(fill): k(fill[n])
                if n in slots: k(slots[n])
                n += 1
    k("@STAMP 11")
    XB = 65536
    k(f"""
    s_lshl_b32 s26, s17, 11
    s_add_u32 s26, s26, {XB}
    v_add_u32 v{TMP}, s26, v{VW}
    s_xor_b32 s26, s26, 0x2000
    v_add_u32 v{TMP+1}, s26, v{VW}
    """)
    for j in range(4):
        k(f"v_lshlrev_b32 v{32+2*j}, 16, v{RES+j}")
        k(f"v_and_b32 v{33+2*j}, 0xffff0000, v{RES+j}")
    k(f"""
    ds_write_b128 v{TMP}, v[8:11]
    ds_write_b128 v{TMP}, v[12:15] offset:1024
    s_waitcnt lgkmcnt(0)
    s_barrier
    ds_read_b128 v[8:11], v{TMP+1}
    ds_read_b128 v[12:15], v{TMP+1} offset:1024
    s_waitcnt lgkmcnt(0)
    """)
    OUT = 16
    for j in range(4):
        y0, y1 = A2 + 2*j, A2 + 2*j + 1
        k(f"""
        v_pk_add_f32 v[{y0}:{y1}], v[{y0}:{y1}], v[{y0+8}:{y1+8}]
        v_cvt_pk_bf16_f32 v{y1}, v{y0}, v{y1}
        v_lshlrev_b32 v{y0}, 16, v{y1}
        v_and_b32 v{y1}, 0xffff0000, v{y1}
        v_pk_add_f32 v[{y0}:{y1}], v[{y0}:{y1}], v[{32+2*j}:{33+2*j}]
        v_cvt_pk_bf16_f32 v{OUT+j}, v{y0}, v{y1}
        """)
    k(f"""
    s_cmp_lg_u32 s35, 0
    s_cbranch_scc1 M_FINAL
    s_add_u32 s40, s39, {X2T}
    buffer_store_dwordx4 v[{OUT}:{OUT+3}], v{VRES}, s[8:11], s40 offen {X2_ST}
    """)
    Q = 48
    for j in range(4):
        k(f"""
        v_lshlrev_b32 v{Q+4*j}, 16, v{OUT+j}
        v_and_b32 v{Q+4*j+2}, 0xffff0000, v{OUT+j}
        v_mul_f32 v{Q+4*j+1}, v{Q+4*j}, v{Q+4*j}
        v_mul_f32 v{Q+4*j+3}, v{Q+4*j+2}, v{Q+4*j+2}
        """)
    for q in range(8):
        k(f"v_add_f32_dpp v{Q+q}, v{Q+q}, v{Q+q} row_ror:8 row_mask:0xf bank_mask:0x3")
        k(f"v_add_f32_dpp v{Q+q}, v{Q+q+8}, v{Q+q+8} row_ror:8 row_mask:0xf bank_mask:0xc")
    for q in range(4):
        k(f"v_add_f32_dpp v{Q+q}, v{Q+q}, v{Q+q} row_shl:4 row_mask:0xf bank_mask:0x5")
        k(f"v_add_f32_dpp v{Q+q}, v{Q+q+4}, v{Q+q+4} row_shr:4 row_mask:0xf bank_mask:0xa")
    for q in range(4):
        k(f"v_add_f32_dpp v{Q+q}, v{Q+q}, v{Q+q} quad_perm:[1,0,3,2] row_mask:0xf bank_mask:0xf")
    for q in range(4):
        k(f"v_add_f32_dpp v{Q+q}, v{Q+q}, v{Q+q} quad_perm:[2,3,0,1] row_mask:0xf bank_mask:0xf")
    SB = 98304
    k(f"""
    v_and_b32 v{TMP}, 3, v{VT1}
    v_cmp_eq_u32 s[48:49], 1, v{TMP}
    v_cmp_eq_u32 s[50:51], 2, v{TMP}
    v_cmp_eq_u32 s[52:53], 3, v{TMP}
    v_lshrrev_b32 v{TMP+1}, 2, v{VT1}
    v_lshlrev_b32 v{TMP+1}, 7, v{TMP+1}
    v_lshl_add_u32 v{TMP+1}, v{VT2}, 4, v{TMP+1}
    v_lshl_add_u32 v{TMP+1}, v{TMP}, 2, v{TMP+1}
    s_lshl_b32 s26, s16, 9
    s_lshl_b32 s27, s29, 6
    s_add_u32 s26, s26, s27
    s_add_u32 s26, s26, {SB}
    v_add_u32 v{TMP+1}, s26, v{TMP+1}
    v_cndmask_b32 v{Q}, v{Q}, v{Q+1}, s[48:49]
    v_cndmask_b32 v{Q}, v{Q}, v{Q+2}, s[50:51]
    v_cndmask_b32 v{Q}, v{Q}, v{Q+3}, s[52:53]
    ds_write_b32 v{TMP+1}, v{Q}
    s_lshl_b32 s26, s17, 8
    s_add_u32 s26, s26, {SB}
    v_lshl_add_u32 v{TMP+2}, v{VT0}, 2, s26
    v_lshrrev_b32 v{TMP+3}, 5, v{VT0}
    v_lshlrev_b32 v{TMP+3}, 12, v{TMP+3}
    v_and_b32 v{TMP+4}, 31, v{VT0}
    v_lshl_add_u32 v{TMP+3}, v{TMP+4}, 2, v{TMP+3}
    s_lshl_b32 s26, s36, 7
    s_lshl_b32 s27, s17, 13
    s_add_u32 s26, s26, s27
    s_add_u32 s26, s26, {ST1}
    s_waitcnt lgkmcnt(0)
    s_barrier
    s_cmp_ge_u32 s17, 2
    s_cbranch_scc1 M_NOAT
    ds_read_b32 v{Q}, v{TMP+2}
    ds_read_b32 v{Q+1}, v{TMP+2} offset:512
    ds_read_b32 v{Q+2}, v{TMP+2} offset:1024
    ds_read_b32 v{Q+3}, v{TMP+2} offset:1536
    s_waitcnt lgkmcnt(0)
    v_add_f32 v{Q}, v{Q}, v{Q+1}
    v_add_f32 v{Q+2}, v{Q+2}, v{Q+3}
    v_add_f32 v{Q}, v{Q}, v{Q+2}
    buffer_atomic_add_f32 v{Q}, v{TMP+3}, s[8:11], s26 offen
    M_NOAT:
    @STAMP 12
    @FLUSH 13
    s_endpgm
    M_FINAL:
    """)
    TP = 144; TB2 = 98304
    srd(k, 48, 6, L * D * 2)
    k(f"""
    s_lshl_b32 s26, s16, 4
    v_add_u32 v{TMP}, s26, v{VT1}
    v_mul_u32_u24 v{TMP}, {TP}, v{TMP}
    v_lshl_add_u32 v{TMP}, v{VT2}, 4, v{TMP}
    s_lshl_b32 s26, s29, 6
    s_add_u32 s26, s26, {TB2}
    v_add_u32 v{TMP}, s26, v{TMP}
    ds_write_b128 v{TMP}, v[{OUT}:{OUT+3}]
    v_lshrrev_b32 v{TMP+1}, 2, v{VT1}
    v_lshl_add_u32 v{TMP+1}, v{VT2}, 3, v{TMP+1}
    v_mul_u32_u24 v{TMP+1}, {TP}, v{TMP+1}
    v_and_b32 v{TMP+2}, 3, v{VT1}
    v_lshl_add_u32 v{TMP+1}, v{TMP+2}, 3, v{TMP+1}
    s_lshl_b32 s26, s16, 5
    s_mul_i32 s27, s29, {32*TP}
    s_add_u32 s26, s26, s27
    s_add_u32 s26, s26, {TB2}
    v_add_u32 v{TMP+1}, s26, v{TMP+1}
    v_lshlrev_b32 v{TMP+2}, 10, v{VT1}
    v_lshl_add_u32 v{TMP+2}, v{VT2}, 4, v{TMP+2}
    s_lshl_b32 s26, s36, 2
    s_add_u32 s26, s26, s16
    s_lshl_b32 s26, s26, 14
    s_lshl_b32 s27, s37, 7
    s_add_u32 s26, s26, s27
    s_lshl_b32 s27, s29, 6
    s_add_u32 s26, s26, s27
    s_waitcnt lgkmcnt(0)
    s_barrier
    ds_read_b64_tr_b16 v[32:33], v{TMP+1}
    ds_read_b64_tr_b16 v[34:35], v{TMP+1} offset:{4*TP}
    s_waitcnt lgkmcnt(0)
    buffer_store_dwordx4 v[32:35], v{TMP+2}, s[48:51], s26 offen
    @STAMP 12
    @FLUSH 13
    M_END:
    s_endpgm
    """)
    k(f"""
    M_STATS:
    s_mov_b32 s47, 0
    M_SL1:
    s_mov_b32 m0, s19
    s_add_u32 s19, s19, 0x2000
    buffer_load_dwordx4 v{VDMA}, s[8:11], s18 offen lds
    s_add_u32 s18, s18, {32*XP}
    s_mov_b32 m0, s19
    s_add_u32 s19, s19, 0x2000
    buffer_load_dwordx4 v{VDMA}, s[8:11], s18 offen lds
    s_add_u32 s18, s18, {32*XP}
    s_add_u32 s47, s47, 1
    s_cmp_lt_u32 s47, 8
    s_cbranch_scc1 M_SL1
    """)
    SACC = 0; ONES = 16
    k(f"""
    v_xor_b32 v{TMP+3}, s17, v{TMP+1}
    v_lshl_add_u32 v{XA}, v{TMP+3}, 5, v{TMP+2}
    """)
    for r in range(8): k(f"v_mov_b32 v{SACC+r}, 0")
    for r in range(4): k(f"v_mov_b32 v{ONES+r}, 0x3f803f80")
    k(f"""
    s_mov_b32 s47, 0
    s_waitcnt vmcnt(0)
    s_barrier
    M_SL2:
    """)
    for u in range(8):
        r = FR + 4 * u
        if u == 7: k("s_waitcnt lgkmcnt(12)")
        k(f"ds_read_b64_tr_b16 v[{r}:{r+1}], v{XA} offset:{u*8192}")
        k(f"ds_read_b64_tr_b16 v[{r+2}:{r+3}], v{XA} offset:{u*8192+4096}")
    k(f"v_add_u32 v{XA}, 0x10000, v{XA}")
    for u in range(8):
        r = FR + 4 * u
        k(f"s_waitcnt lgkmcnt({14 - 2*u})")
        k(f"v_mfma_f32_16x16x32_bf16 v[{SACC}:{SACC+3}], v[{r}:{r+3}], v[{r}:{r+3}], v[{SACC}:{SACC+3}]")
        k(f"v_mfma_f32_16x16x32_bf16 v[{SACC+4}:{SACC+7}], v[{ONES}:{ONES+3}], v[{r}:{r+3}], v[{SACC+4}:{SACC+7}]")
    k(f"""
    s_add_u32 s47, s47, 1
    s_cmp_lt_u32 s47, 2
    s_cbranch_scc1 M_SL2
    v_and_b32 v{TMP}, 3, v{VT1}
    v_cmp_eq_u32 s[48:49], 1, v{TMP}
    v_cmp_eq_u32 s[50:51], 2, v{TMP}
    v_cmp_eq_u32 s[52:53], 3, v{TMP}
    v_lshrrev_b32 v{TMP}, 2, v{VT1}
    v_cmp_eq_u32 s[54:55], v{TMP}, v{VT2}
    v_cndmask_b32 v{SACC}, v{SACC}, v{SACC+1}, s[48:49]
    v_cndmask_b32 v{SACC}, v{SACC}, v{SACC+2}, s[50:51]
    v_cndmask_b32 v{SACC+5}, v{SACC}, v{SACC+3}, s[52:53]
    v_mov_b32 v{SACC+12}, v{SACC+4}
    v_mov_b32 v{SACC+13}, v{SACC+5}
    """)
    stats_pair(k, SACC+4, SACC+5, SACC+12, SACC+13, TMP, keep=(SACC+6, SACC+14))
    k(f"""
    v_lshrrev_b32 v{SACC+4}, 16, v{SACC+4}
    v_or_b32 v{SACC+4}, v{SACC+4}, v{SACC+6}
    v_lshlrev_b32 v{VSTX}, 2, v{VT1}
    s_lshl_b32 s41, s14, 9
    s_lshl_b32 s26, s17, 6
    s_add_u32 s41, s41, s26
    s_add_u32 s41, s41, s33
    s_mov_b64 exec, s[54:55]
    buffer_store_dword v{SACC+4}, v{VSTX}, s[8:11], s41 offen sc1
    s_mov_b64 exec, -1
    """)
    for p in res_parts: k(p)
    for i in range(22): k(wd_part(i))
    k(f"""
    s_barrier
    s_branch M_SYNC
    .p2align 8
    mlpb_kernel:
    s_mov_b32 s30, {X3T}
    s_mov_b32 s31, {HB1}
    s_mov_b32 s33, {STX + 0x2000}
    s_mov_b32 s34, {FLG + 0x8000}
    s_mov_b32 s35, 1
    @KID 5
    s_branch M_BODY
    """)
    info = dict(vgpr=NV + 88, sgpr=64, accum=NV, grid=256, block=512, lds=MLP_LDS)
    return k, info

DIAG_KN = {2: ("mlpa", 13), 5: ("mlpb", 13), 3: ("none", 1), 6: ("none", 1)}
def emit(path, launches=None):
    kp, ip = gen_prep()
    kc, ic = gen_conv()
    km, im = gen_mlp()
    infos = {"f1_kernel": ip, "conv2_kernel": ic, "mlpa_kernel": im, "mlpb_kernel": im}
    if os.environ.get("ORDER"): launches = [x + "_kernel" for x in os.environ["ORDER"].split(",")]
    order = launches or ["f1_kernel", "mlpa_kernel", "conv2_kernel", "mlpb_kernel"]
    hdr = open("cdna_kernels/" + NAME + ".s.ref").read().split("; Override launch")[0]
    out = [hdr.rstrip("\n")]
    for n in order:
        i = infos[n]
        out.append(f"; @launch kernel={n} grid=({i['grid']},1,1) block=({i['block']},1,1) lds={i['lds']}")
    out.append('.amdgcn_target "amdgcn-amd-amdhsa--gfx950"\n.text')
    for n in infos:
        out.append(f".globl {n}\n.type {n},@function")
    out.append(".p2align 8\nf1_kernel:\n" + kp.text())
    for kk in (kc, km):
        out.append(".p2align 8\n" + kk.text())
    for n, i in infos.items():
        out.append(descriptor(n, i["vgpr"], 102 if DIAG else i["sgpr"], i["accum"]))
    open(path, "w").write("\n".join(out))

if __name__ == "__main__":
    emit(sys.argv[1] if len(sys.argv) > 1 else "cdna_kernels/" + NAME + ".s")
```

```python
import sys, struct
from asmlib import *

NAME = "interleave_layers__ssm_conv_s4d__glu_gated_glu__prompt"
KA_U, KA_LOGA, KA_AIM, KA_CRE, KA_CIM, KA_LOGDT, KA_DSKIP, KA_BX, KA_WG, KA_WU, KA_WD, KA_OUT, KA_DBG, KA_WS = [8 * i for i in range(14)]
XT0, X1T, X2T, X3T = 0x3000000, 0x3300000, 0x3600000, 0x3900000
ST0, ST1, CSUM = 0x0800000, 0x0804000, 0x0808000
WP = 0x0C00000
WD = 0x1000000
HB = 0x1200000
HB1 = 0x2200000
ZR = 0x0810000; STX = 0x0810000; FLG = 0x0820000
KP = 0x1800000; KCS = 4160; KP_STRIDE = 1536
WS_BYTES = 0x10000000
L, D, F, NST = 2048, 512, 1376, 128
NKS2 = 44
HKS = 45

import os
XP = int(os.environ.get('XP', '4352'))
PREP_W_POL = os.environ.get('PREP_W_POL', '')
PREP_K_POL = os.environ.get('PREP_K_POL', '')
PREP_X_POL = os.environ.get('PREP_X_POL', '')
PREP_PRIO = int(os.environ.get('PREP_PRIO', '0'))
CONV_ST = os.environ.get('CONV_ST', '')
X2_ST = os.environ.get('X2_ST', '')
CODEPF = int(os.environ.get('CODEPF', '1'))
DIAG = int(os.environ.get("DIAG", "0"))
DIAG_OFF = 0x4000000
_Kern = Kern
class Kern(_Kern):
    def __call__(self, s):
        for l in s.strip("\n").split("\n"):
            t = l.strip()
            if t.startswith("@CODEPF"):
                if CODEPF:
                    super().__call__(f"""
                    s_cmp_ge_u32 s2, 8
                    s_cbranch_scc1 P_NOPF
                    s_getpc_b64 s[6:7]
                    v_lshlrev_b32 v1, 6, v0
                    global_load_dword v94, v1, s[6:7]
                    v_add_u32 v1, 0x4000, v1
                    global_load_dword v95, v1, s[6:7]
                    P_NOPF:
                    """)
                continue
            if t.startswith("@"):
                if not DIAG: continue
                p = t.split()
                if p[0] == "@KID":
                    super().__call__(f"s_mov_b32 s59, {DIAG_OFF + int(p[1]) * 0x80000}\ns_mov_b32 s57, {3 if int(p[1]) in (2, 5) else 2}")
                elif p[0] == "@INIT":
                    super().__call__("v_readfirstlane_b32 s58, v0\ns_memrealtime s[64:65]\ns_memtime s[66:67]")
                elif p[0] == "@STAMP":
                    i = int(p[1]); super().__call__(f"s_memtime s[{64+2*i}:{65+2*i}]")
                elif p[0] == "@FLUSH":
                    n = int(p[1])
                    super().__call__(f"""
                    s_waitcnt vmcnt(0)
                    s_memtime s[{64+2*n}:{65+2*n}]
                    s_memrealtime s[{66+2*n}:{67+2*n}]
                    s_waitcnt lgkmcnt(0)
                    s_mov_b64 exec, -1
                    s_lshr_b32 s58, s58, 6
                    s_lshl_b32 s61, s2, s57
                    s_add_u32 s60, s58, s61
                    s_lshl_b32 s60, s60, 6
                    s_add_u32 s60, s60, s59
                    v_mov_b32 v1, s60
                    """)
                    for i in range(n + 2):
                        super().__call__(f"v_mov_b32 v2, s{64+2*i}\nglobal_store_dword v1, v2, s[4:5] offset:{4*i}")
                    super().__call__("s_getreg_b32 s61, hwreg(HW_REG_XCC_ID)\nv_mov_b32 v2, s61\nglobal_store_dword v1, v2, s[4:5] offset:60")
                continue
            super().__call__(l)

def f2u(x): return struct.unpack("<I", struct.pack("<f", x))[0]
def fl(x): return "0x%08x" % f2u(x)
LOG2E = 1.4426950408889634
L2E_HI = struct.unpack("<f", struct.pack("<f", LOG2E))[0]
L2E_LO = LOG2E - L2E_HI
LN2 = 0.6931471805599453

def srd(k, s, base, nbytes):
    k(f"""
    s_mov_b32 s{s}, s{base}
    s_and_b32 s{s+1}, s{base+1}, 0xffff
    s_mov_b32 s{s+2}, {nbytes:#x}
    s_mov_b32 s{s+3}, 0x20000
    """)

def rnd_bf16(k, dst, a, b=None):
    k(f"v_cvt_pk_bf16_f32 v{dst}, v{a}, v{b if b is not None else a}")

def exp_acc(k, dst, x, t0, t1):
    k(f"""
    v_mul_f32 v{t0}, s40, v{x}
    v_fma_f32 v{t1}, s40, v{x}, -v{t0}
    v_fma_f32 v{t1}, s41, v{x}, v{t1}
    v_exp_f32 v{dst}, v{t0}
    v_mul_f32 v{t1}, s42, v{t1}
    v_fma_f32 v{dst}, v{dst}, v{t1}, v{dst}
    """)

N_K, N_T, N_W, N_D, N_C = 512, 256, 240, 176, 44
B_C = N_K; B_W = B_C + N_C; B_T = B_W + N_W; B_D = B_T + N_T; PREP_WGS = B_D + N_D
PREP_LDS = 18432
PREP_GROUPS = [("prep.K", 0, B_C, 6), ("prep.C", B_C, B_W, 2), ("prep.W", B_W, B_T, 2), ("prep.T", B_T, B_D, 2), ("prep.D", B_D, PREP_WGS, 2)]

def gen_prep():
    k = Kern("prep_kernel")
    k(f"""
    @KID 0
    @INIT
    s_load_dwordx2 s[4:5], s[0:1], {KA_WS}
    @CODEPF
    s_cmp_lt_u32 s2, {B_C}
    s_cbranch_scc1 P_KGEN
    s_setprio {PREP_PRIO}
    s_cmp_lt_u32 s2, {B_W}
    s_cbranch_scc1 P_C
    s_cmp_lt_u32 s2, {B_T}
    s_cbranch_scc1 P_W
    s_cmp_lt_u32 s2, {B_D}
    s_cbranch_scc1 P_TR
    s_cmp_lt_u32 s2, {PREP_WGS}
    s_cbranch_scc1 P_D
    s_endpgm
    """)
    k.label("P_KGEN")
    TB = 16384
    k(f"""
    s_load_dwordx4 s[8:11], s[0:1], {KA_LOGA}
    s_load_dwordx4 s[12:15], s[0:1], {KA_CRE}
    s_load_dwordx2 s[16:17], s[0:1], {KA_LOGDT}
    s_mov_b32 s40, {fl(L2E_HI)}
    s_mov_b32 s41, {fl(L2E_LO)}
    s_mov_b32 s42, {fl(LN2)}
    v_and_b32 v1, 127, v0
    s_lshl_b32 s3, s2, 8
    v_lshl_add_u32 v2, v1, 1, s3
    s_lshl_b32 s18, s2, 1
    v_mov_b32 v3, s18
    v_readfirstlane_b32 s19, v0
    s_lshr_b32 s19, s19, 6                ; wave
    s_waitcnt lgkmcnt(0)
    global_load_ushort v4, v2, s[8:9]
    global_load_ushort v8, v3, s[16:17]
    global_load_ushort v5, v2, s[10:11]
    global_load_ushort v6, v2, s[12:13]
    global_load_ushort v7, v2, s[14:15]
    v_and_b32 v20, 15, v0                 ; i / j
    v_bfe_u32 v21, v0, 4, 2               ; g
    ; hi0 = 128*(i>>3) + (i&7)
    v_lshrrev_b32 v23, 3, v20
    v_and_b32 v24, 7, v20
    v_lshl_add_u32 v23, v23, 7, v24
    v_cvt_f32_u32 v30, v23
    ; hi1 = (g''<2 ? 256+2g'' : 256*g'') + 128*((i>>1)&1) + 4*(i&1)
    v_lshrrev_b32 v23, 2, v20
    v_lshlrev_b32 v24, 1, v23
    v_add_u32 v24, 0x100, v24
    v_lshlrev_b32 v25, 8, v23
    v_cmp_gt_u32 vcc, 2, v23
    v_cndmask_b32 v24, v25, v24, vcc
    v_bfe_u32 v25, v20, 1, 1
    v_lshl_add_u32 v24, v25, 7, v24
    v_and_b32 v25, 1, v20
    v_lshl_add_u32 v24, v25, 2, v24
    v_cvt_f32_u32 v31, v24
    v_lshlrev_b32 v23, 7, v20
    v_add_u32 v23, 0x400, v23
    v_cvt_f32_u32 v32, v23                ; hi2
    v_lshlrev_b32 v23, 3, v20
    v_cvt_f32_u32 v33, v23                ; lo
    s_lshl_b32 s20, s19, 9
    v_lshl_add_u32 v34, v21, 6, s20
    v_lshrrev_b32 v23, 1, v21
    v_and_b32 v24, 1, v21
    v_lshlrev_b32 v24, 2, v24
    v_lshl_add_u32 v35, v23, 7, v24
    v_lshl_add_u32 v35, v20, 3, v35
    v_mov_b32 v36, 1
    v_mov_b32 v37, 2
    s_cmp_eq_u32 s19, 0
    s_cbranch_scc1 P_KA
    v_lshl_add_u32 v35, v21, 6, v20
    v_add_u32 v35, 0x200, v35
    v_mov_b32 v36, 16
    v_mov_b32 v37, 32
    s_cmp_lg_u32 s19, 1
    s_cbranch_scc1 P_KA
    v_lshl_add_u32 v23, v20, 2, v21
    v_add_u32 v23, 0x100, v23             ; seg1: 256 + g' + 4j ; o1=2 o2=64
    v_lshlrev_b32 v24, 6, v21
    v_lshl_add_u32 v24, v20, 1, v24
    v_add_u32 v24, 0x100, v24             ; seg2: 384 + 64(g'-2) + 2j ; o1=1 o2=32
    v_cmp_gt_u32 vcc, 2, v21
    v_cndmask_b32 v35, v24, v23, vcc
    v_cndmask_b32 v36, 1, 2, vcc
    v_cndmask_b32 v37, 32, 64, vcc
    P_KA:
    v_add_u32 v38, v36, v37
    v_add_lshl_u32 v36, v36, v35, 1
    v_add_lshl_u32 v37, v37, v35, 1
    v_add_lshl_u32 v38, v38, v35, 1
    v_lshlrev_b32 v35, 1, v35
    v_and_b32 v39, 63, v0
    v_lshlrev_b32 v39, 4, v39             ; lane*16
    s_waitcnt vmcnt(3)
    @STAMP 2
    v_lshlrev_b32 v4, 16, v4
    v_lshlrev_b32 v8, 16, v8
    """)
    exp_acc(k, 10, 8, 16, 17)
    exp_acc(k, 11, 4, 18, 19)
    k(f"""
    v_cvt_pk_bf16_f32 v10, v10, v11
    v_and_b32 v11, 0xffff0000, v10        ; eA
    v_lshlrev_b32 v10, 16, v10            ; dt
    v_mul_f32 v12, v11, v10
    v_mul_f32 v12, s40, v12
    v_sub_f32 v12, 0, v12
    s_waitcnt vmcnt(0)
    v_lshlrev_b32 v5, 16, v5
    v_lshlrev_b32 v6, 16, v6
    v_lshlrev_b32 v7, 16, v7
    v_mul_f32 v13, v5, v10
    v_mul_f32 v13, 0.15915494, v13
    v_add_f32 v10, v10, v10
    v_mul_f32 v14, v6, v10                ; 2*Cre*dt
    v_mul_f32 v15, v7, v10                ; 2*Cim*dt
    v_lshlrev_b32 v9, 4, v1
    ds_write_b128 v9, v[12:15]
    v_max3_f32 v16, |v14|, |v15|, 0
    v_max_f32_dpp v16, v16, v16 row_shr:1 row_mask:0xf bank_mask:0xf
    v_max_f32_dpp v16, v16, v16 row_shr:2 row_mask:0xf bank_mask:0xf
    v_max_f32_dpp v16, v16, v16 row_shr:4 row_mask:0xf bank_mask:0xf
    v_max_f32_dpp v16, v16, v16 row_shr:8 row_mask:0xf bank_mask:0xf
    v_max_f32_dpp v16, v16, v16 row_bcast:15 row_mask:0xa bank_mask:0xf
    v_max_f32_dpp v16, v16, v16 row_bcast:31 row_mask:0xc bank_mask:0xf
    v_readlane_b32 s23, v16, 63
    s_and_b32 s24, s19, 1
    s_lshl_b32 s24, s24, 2
    v_mov_b32 v17, s24
    v_mov_b32 v16, s23
    ds_write_b32 v17, v16 offset:2048
    v_mov_b32 v18, 0
    s_waitcnt lgkmcnt(0)
    s_barrier
    @STAMP 3
    ds_read_b64 v[16:17], v18 offset:2048
    s_mov_b32 s20, 0
    s_waitcnt lgkmcnt(0)
    v_max_f32 v16, v16, v17
    v_bfe_u32 v16, v16, 23, 8
    v_max_u32 v16, 14, v16
    v_sub_u32 v17, 0x8c, v16
    v_cvt_f32_i32 v29, v17                ; kf = 140 - e'
    v_mov_b32 v28, 0
    v_subrev_u32 v16, 13, v16
    v_lshlrev_b32 v27, 23, v16            ; Sinv
    P_KLOOP:
    ds_read_b128 v[52:55], v34
    ds_read_b128 v[56:59], v34 offset:16
    ds_read_b128 v[60:63], v34 offset:32
    ds_read_b128 v[64:67], v34 offset:48
    v_add_u32 v34, 0x100, v34
    """)
    for nn in range(4):
        p = 52 + 4 * nn
        k(f"""
        s_waitcnt lgkmcnt({3-nn})
        v_pk_mul_f32 v[2:3], v[30:31], v[{p}:{p+1}] op_sel_hi:[1,0]
        v_pk_fma_f32 v[4:5], v[32:33], v[{p}:{p+1}], v[28:29] op_sel_hi:[1,0,1]
        v_pk_mul_f32 v[6:7], v[30:31], v[{p}:{p+1}] op_sel:[0,1] op_sel_hi:[1,1]
        v_pk_mul_f32 v[8:9], v[32:33], v[{p}:{p+1}] op_sel:[0,1] op_sel_hi:[1,1]
        v_exp_f32 v2, v2
        v_exp_f32 v3, v3
        v_exp_f32 v4, v4
        v_exp_f32 v5, v5
        v_fract_f32 v6, v6
        v_fract_f32 v7, v7
        v_fract_f32 v8, v8
        v_fract_f32 v9, v9
        v_cos_f32 v10, v6
        v_sin_f32 v11, v6
        v_cos_f32 v12, v7
        v_sin_f32 v13, v7
        v_cos_f32 v14, v8
        v_sin_f32 v15, v8
        v_cos_f32 v16, v9
        v_sin_f32 v17, v9
        v_pk_mul_f32 v[10:11], v[10:11], v[2:3] op_sel_hi:[1,0]
        v_pk_mul_f32 v[12:13], v[12:13], v[2:3] op_sel:[0,1] op_sel_hi:[1,1]
        v_pk_mul_f32 v[14:15], v[14:15], v[4:5] op_sel_hi:[1,0]
        v_pk_mul_f32 v[16:17], v[16:17], v[4:5] op_sel:[0,1] op_sel_hi:[1,1]
        v_cvt_pk_f16_f32 v{68+nn}, v10, v11
        v_cvt_pk_f16_f32 v{72+nn}, v12, v13
        v_cvt_pk_f16_f32 v{76+nn}, v14, v15
        v_pk_mul_f32 v[18:19], v[16:17], v[{p+2}:{p+3}] op_sel_hi:[1,0]
        v_pk_fma_f32 v[18:19], v[16:17], v[{p+2}:{p+3}], v[18:19] op_sel:[1,1,0] op_sel_hi:[0,1,1] neg_lo:[1,0,0]
        v_cvt_pk_f16_f32 v{80+nn}, v18, -v19
        """)
    k(f"""
    s_cmp_eq_u32 s20, 1
    s_cbranch_scc1 P_KL2
    v_mfma_f32_16x16x32_f16 v[40:43], v[68:71], v[80:83], 0
    v_mfma_f32_16x16x32_f16 v[44:47], v[72:75], v[80:83], 0
    v_mfma_f32_16x16x32_f16 v[48:51], v[76:79], v[80:83], 0
    s_mov_b32 s20, 1
    s_branch P_KLOOP
    P_KL2:
    v_mfma_f32_16x16x32_f16 v[40:43], v[68:71], v[80:83], v[40:43]
    v_mfma_f32_16x16x32_f16 v[44:47], v[72:75], v[80:83], v[44:47]
    v_mfma_f32_16x16x32_f16 v[48:51], v[76:79], v[80:83], v[48:51]
    @STAMP 4
    s_mul_i32 s20, s19, 3072
    v_add_u32 v2, s20, v39
    s_lshl_b32 s20, s19, 10
    v_add_u32 v3, s20, v39
    """)
    k(f"""
    ds_write_b128 v2, v[40:43] offset:4096
    ds_write_b128 v2, v[44:47] offset:5120
    ds_write_b128 v2, v[48:51] offset:6144
    s_mul_i32 s3, s2, {KP_STRIDE}
    s_add_u32 s3, s3, {KP}
    v_lshlrev_b32 v1, 4, v0
    v_add_u32 v8, s3, v1
    s_waitcnt lgkmcnt(0)
    s_barrier
    s_cmp_eq_u32 s19, 3
    s_cbranch_scc1 P_KS
    ds_read_b128 v[40:43], v3 offset:4096
    ds_read_b128 v[44:47], v3 offset:{4096+3072}
    ds_read_b128 v[48:51], v3 offset:{4096+6144}
    ds_read_b128 v[4:7], v3 offset:{4096+9216}
    s_waitcnt lgkmcnt(2)
    v_pk_add_f32 v[40:41], v[40:41], v[44:45]
    v_pk_add_f32 v[42:43], v[42:43], v[46:47]
    s_waitcnt lgkmcnt(0)
    v_pk_add_f32 v[48:49], v[48:49], v[4:5]
    v_pk_add_f32 v[50:51], v[50:51], v[6:7]
    v_pk_add_f32 v[40:41], v[40:41], v[48:49]
    v_pk_add_f32 v[42:43], v[42:43], v[50:51]
    v_mul_f32 v40, v27, v40
    v_mul_f32 v41, v27, v41
    v_mul_f32 v42, v27, v42
    v_mul_f32 v43, v27, v43
    v_cvt_pk_bf16_f32 v40, v40, v41
    v_cvt_pk_bf16_f32 v42, v42, v43
    ds_write_b16 v35, v40 offset:{TB}
    ds_write_b16_d16_hi v36, v40 offset:{TB}
    ds_write_b16 v37, v42 offset:{TB}
    ds_write_b16_d16_hi v38, v42 offset:{TB}
    P_KS:
    s_waitcnt lgkmcnt(0)
    s_barrier
    @STAMP 5
    v_cmp_gt_u32 vcc, 0x60, v0
    s_and_saveexec_b64 s[22:23], vcc
    s_cbranch_execz P_KEND
    ds_read_b128 v[40:43], v1 offset:{TB}
    s_waitcnt lgkmcnt(0)
    global_store_dwordx4 v8, v[40:43], s[4:5]
    P_KEND:
    @FLUSH 6
    s_endpgm
    """)
    k.label("P_TR")
    PITCH = 144
    k(f"""
    s_load_dwordx2 s[8:9], s[0:1], {KA_U}
    s_sub_u32 s3, s2, {B_T}
    s_lshr_b32 s10, s3, 3                 ; lt (0..31)
    s_and_b32 s11, s3, 7                  ; dt (0..7)
    v_lshrrev_b32 v1, 3, v0               ; row 0..31
    v_and_b32 v2, 7, v0                   ; chunk
    s_lshl_b32 s12, s10, 16               ; lt*64*1024
    s_lshl_b32 s13, s11, 7
    s_add_u32 s12, s12, s13
    v_lshlrev_b32 v3, 10, v1
    v_lshl_add_u32 v3, v2, 4, v3
    v_add_u32 v3, s12, v3
    v_add_u32 v4, 0x8000, v3
    s_waitcnt lgkmcnt(0)
    global_load_dwordx4 v[8:11], v3, s[8:9]
    global_load_dwordx4 v[12:15], v4, s[8:9]
    v_lshrrev_b32 v41, 6, v0
    v_and_b32 v42, 63, v0
    s_lshl_b32 s14, s3, 13                ; 8 rows * 1024
    v_lshlrev_b32 v43, 11, v41
    v_lshl_add_u32 v43, v42, 4, v43
    v_add_u32 v43, s14, v43
    global_load_dwordx4 v[48:51], v43, s[8:9]
    global_load_dwordx4 v[52:55], v43, s[8:9] offset:1024
    v_mul_u32_u24 v5, {PITCH}, v1
    v_lshl_add_u32 v5, v2, 4, v5
    v_and_b32 v6, 15, v0                  ; lam
    v_bfe_u32 v7, v0, 4, 2                ; g
    v_lshrrev_b32 v16, 6, v0              ; w
    v_lshrrev_b32 v17, 2, v6              ; r = lam>>2
    v_lshl_add_u32 v17, v7, 3, v17        ; row = 8g + r
    v_mul_u32_u24 v17, {PITCH}, v17
    v_and_b32 v18, 3, v6
    v_lshl_add_u32 v17, v18, 3, v17       ; + c*8
    v_lshl_add_u32 v17, v16, 5, v17       ; + w*32 bytes
    s_mul_i32 s12, s11, {64*XP}
    s_lshl_b32 s13, s10, 7
    s_add_u32 s12, s12, s13
    s_add_u32 s12, s12, {XT0}
    v_lshl_add_u32 v19, v16, 4, v6
    v_mul_u32_u24 v19, {XP}, v19
    v_lshl_add_u32 v19, v7, 4, v19
    v_add_u32 v19, s12, v19
    s_waitcnt vmcnt(2)
    ds_write_b128 v5, v[8:11]
    ds_write_b128 v5, v[12:15] offset:{32*PITCH}
    s_waitcnt lgkmcnt(0)
    s_barrier
    ds_read_b64_tr_b16 v[8:9], v17
    ds_read_b64_tr_b16 v[10:11], v17 offset:{4*PITCH}
    ds_read_b64_tr_b16 v[12:13], v17 offset:{32*PITCH}
    ds_read_b64_tr_b16 v[14:15], v17 offset:{36*PITCH}
    s_waitcnt lgkmcnt(0)
    global_store_dwordx4 v19, v[8:11], s[4:5] {PREP_X_POL}
    global_store_dwordx4 v19, v[12:15], s[4:5] offset:64 {PREP_X_POL}
    """)
    k(f"""
    v_mov_b32 v2, v42
    s_lshl_b32 s10, s3, 4
    v_lshlrev_b32 v4, 12, v41
    v_add_u32 v4, s10, v4                 ; w*4096 + wg*16
    v_add_u32 v5, {ST0}, v4
    v_add_u32 v6, {ST1}, v4
    s_waitcnt vmcnt(2)
    """)
    for row, (base, sm, sq) in enumerate([(48, 20, 21), (52, 22, 23)]):
        for j in range(4):
            k(f"v_lshlrev_b32 v16, 16, v{base+j}")
            k(f"v_and_b32 v17, 0xffff0000, v{base+j}")
            if j == 0:
                k(f"v_add_f32 v{sm}, v16, v17")
                k(f"v_mul_f32 v{sq}, v16, v16")
            else:
                k(f"v_add_f32 v{sm}, v{sm}, v16")
                k(f"v_add_f32 v{sm}, v{sm}, v17")
                k(f"v_fmac_f32 v{sq}, v16, v16")
            k(f"v_fmac_f32 v{sq}, v17, v17")
    for sh in ("row_shr:1", "row_shr:2", "row_shr:4", "row_shr:8"):
        for r in range(20, 24):
            k(f"v_add_f32_dpp v{r}, v{r}, v{r} {sh} row_mask:0xf bank_mask:0xf bound_ctrl:0")
    for r in range(20, 24):
        k(f"v_add_f32_dpp v{r}, v{r}, v{r} row_bcast:15 row_mask:0xa bank_mask:0xf")
    for r in range(20, 24):
        k(f"v_add_f32_dpp v{r}, v{r}, v{r} row_bcast:31 row_mask:0xc bank_mask:0xf")
    k(f"""
    v_mov_b32 v24, 0
    v_mov_b32 v25, 0
    v_mov_b32 v26, 0
    v_mov_b32 v27, 0
    s_lshl_b32 s10, s3, 9
    s_add_u32 s10, s10, {ZR}
    v_and_b32 v7, 31, v0
    v_lshl_add_u32 v7, v7, 4, s10
    global_store_dwordx4 v7, v[24:27], s[4:5]
    v_cmp_eq_u32 vcc, 63, v2
    s_and_saveexec_b64 s[22:23], vcc
    global_store_dwordx4 v5, v[20:23], s[4:5]
    global_store_dwordx4 v6, v[24:27], s[4:5]
    @FLUSH 2
    s_endpgm
    """)
    k.label("P_W")
    WPITCH = 400
    k(f"""
    s_load_dwordx4 s[8:11], s[0:1], {KA_WG}
    s_sub_u32 s3, s2, {B_W}
    s_lshr_b32 s12, s3, 4                 ; ft
    s_and_b32 s13, s3, 15                 ; s
    """)
    k(f"""
    s_mul_i32 s14, s13, {32*F*2}
    s_mul_i32 s15, s12, 192
    s_add_u32 s14, s14, s15
    s_mul_i32 s16, s12, 12
    s_mov_b32 s17, 0x15555556
    """)
    k(f"v_mov_b32 v5, {F//8}")
    for i in range(2):
        k(f"""
        v_add_u32 v1, {256*i}, v0
        v_mul_hi_u32 v2, v1, s17
        v_mul_u32_u24 v3, 12, v2
        v_sub_u32 v3, v1, v3                  ; chunk
        v_mul_u32_u24 v4, {F*2}, v2
        v_lshl_add_u32 v4, v3, 4, v4
        v_add_u32 v{40+i}, s14, v4
        v_mul_u32_u24 v4, {WPITCH}, v2
        v_lshl_add_u32 v{42+i}, v3, 5, v4
        v_add_u32 v3, s16, v3
        v_cmp_gt_u32 s[{24+2*i}:{25+2*i}], v5, v3
        """)
    for r in range(8, 24): k(f"v_mov_b32 v{r}, 0")
    k(f"""
    v_cmp_gt_u32 vcc, 0x80, v0
    s_and_b64 s[26:27], s[26:27], vcc
    s_waitcnt lgkmcnt(0)
    s_mov_b64 s[28:29], exec
    s_mov_b64 exec, s[24:25]
    s_cbranch_execz P_W1
    global_load_dwordx4 v[8:11], v40, s[8:9]
    global_load_dwordx4 v[12:15], v40, s[10:11]
    P_W1:
    s_mov_b64 exec, s[26:27]
    s_cbranch_execz P_W2
    global_load_dwordx4 v[16:19], v41, s[8:9]
    global_load_dwordx4 v[20:23], v41, s[10:11]
    P_W2:
    s_mov_b64 exec, s[28:29]
    s_waitcnt vmcnt(0)
    ds_write2_b32 v42, v8, v9 offset0:0 offset1:2
    ds_write2_b32 v42, v10, v11 offset0:4 offset1:6
    ds_write2_b32 v42, v12, v13 offset0:1 offset1:3
    ds_write2_b32 v42, v14, v15 offset0:5 offset1:7
    s_and_saveexec_b64 s[28:29], vcc
    s_cbranch_execz P_W3
    ds_write2_b32 v43, v16, v17 offset0:0 offset1:2
    ds_write2_b32 v43, v18, v19 offset0:4 offset1:6
    ds_write2_b32 v43, v20, v21 offset0:1 offset1:3
    ds_write2_b32 v43, v22, v23 offset0:5 offset1:7
    P_W3:
    s_mov_b64 exec, s[28:29]
    v_and_b32 v1, 15, v0
    v_bfe_u32 v2, v0, 4, 2
    v_lshrrev_b32 v3, 2, v1
    v_lshl_add_u32 v3, v2, 2, v3
    v_mul_u32_u24 v3, {WPITCH}, v3
    v_and_b32 v4, 3, v1
    v_lshl_add_u32 v3, v4, 3, v3
    v_readfirstlane_b32 s18, v0
    s_lshr_b32 s18, s18, 6                ; w
    s_lshl_b32 s19, s18, 7
    s_mov_b32 s20, 32
    s_cmp_eq_u32 s18, 3
    s_cselect_b32 s19, 96, s19
    s_cselect_b32 s20, 128, s20
    v_add_u32 v3, s19, v3
    v_add_u32 v4, s20, v3
    v_add_u32 v5, s20, v4
    s_lshl_b32 s21, s12, 2
    s_add_u32 s21, s21, s18
    s_lshl_b32 s21, s21, 4
    s_add_u32 s21, s21, s13
    s_mul_i32 s21, s21, 3072
    s_add_u32 s21, s21, {WP}
    v_and_b32 v6, 63, v0
    v_lshlrev_b32 v6, 4, v6
    v_add_u32 v6, s21, v6
    v_add_u32 v7, 0x400, v6
    v_add_u32 v24, 0x800, v6
    s_waitcnt lgkmcnt(0)
    s_barrier
    ds_read_b64_tr_b16 v[8:9], v3
    ds_read_b64_tr_b16 v[10:11], v3 offset:{16*WPITCH}
    ds_read_b64_tr_b16 v[12:13], v4
    ds_read_b64_tr_b16 v[14:15], v4 offset:{16*WPITCH}
    ds_read_b64_tr_b16 v[16:17], v5
    ds_read_b64_tr_b16 v[18:19], v5 offset:{16*WPITCH}
    s_waitcnt lgkmcnt(0)
    global_store_dwordx4 v6, v[8:11], s[4:5] {PREP_W_POL}
    global_store_dwordx4 v7, v[12:15], s[4:5] {PREP_W_POL}
    global_store_dwordx4 v24, v[16:19], s[4:5] {PREP_W_POL}
    @FLUSH 2
    s_endpgm
    """)
    k.label("P_D")
    DPITCH = 272
    k(f"""
    s_load_dwordx2 s[8:9], s[0:1], {KA_WD}
    s_sub_u32 s3, s2, {B_D}
    s_lshr_b32 s12, s3, 2                 ; ks 0..43
    s_and_b32 s13, s3, 3                  ; dq
    v_lshrrev_b32 v1, 4, v0               ; row 0..15 (+16)
    v_and_b32 v2, 15, v0                  ; chunk
    s_lshl_b32 s14, s12, 15               ; ks*32*1024
    s_lshl_b32 s15, s13, 8
    s_add_u32 s14, s14, s15
    v_lshlrev_b32 v3, 10, v1
    v_lshl_add_u32 v3, v2, 4, v3
    v_add_u32 v3, s14, v3
    v_add_u32 v4, 0x4000, v3
    """)
    for r in range(8, 16): k(f"v_mov_b32 v{r}, 0")
    k(f"""
    s_waitcnt lgkmcnt(0)
    s_cmp_ge_u32 s12, 43
    s_cbranch_scc1 P_D1
    global_load_dwordx4 v[8:11], v3, s[8:9]
    global_load_dwordx4 v[12:15], v4, s[8:9]
    P_D1:
    v_bfe_u32 v5, v1, 1, 2                ; g
    v_lshrrev_b32 v6, 3, v1               ; dw (0/1)
    v_and_b32 v7, 1, v1
    v_lshl_add_u32 v7, v6, 1, v7
    v_lshl_add_u32 v7, v5, 3, v7          ; rho
    v_mul_u32_u24 v7, {DPITCH}, v7
    v_lshl_add_u32 v7, v2, 4, v7
    v_and_b32 v1, 15, v0
    v_bfe_u32 v2, v0, 4, 2
    v_lshrrev_b32 v16, 6, v0
    v_lshrrev_b32 v3, 2, v1
    v_lshl_add_u32 v3, v2, 3, v3          ; row = 8g + r
    v_mul_u32_u24 v3, {DPITCH}, v3
    v_and_b32 v4, 3, v1
    v_lshl_add_u32 v3, v4, 3, v3          ; + c*8 bytes (4 d)
    v_lshl_add_u32 v3, v16, 6, v3         ; + w*64
    s_lshl_b32 s16, s13, 3
    v_lshl_add_u32 v17, v16, 1, s16
    v_mul_u32_u24 v17, {NKS2*1024}, v17
    v_and_b32 v18, 63, v0
    v_lshl_add_u32 v17, v18, 4, v17
    s_lshl_b32 s16, s12, 10
    s_add_u32 s16, s16, {WD}
    v_add_u32 v17, s16, v17
    v_add_u32 v18, {NKS2*1024}, v17
    s_waitcnt vmcnt(0)
    ds_write_b128 v7, v[8:11]
    ds_write_b128 v7, v[12:15] offset:{4*DPITCH}
    s_waitcnt lgkmcnt(0)
    s_barrier
    ds_read_b64_tr_b16 v[8:9], v3
    ds_read_b64_tr_b16 v[10:11], v3 offset:{4*DPITCH}
    ds_read_b64_tr_b16 v[12:13], v3 offset:32
    ds_read_b64_tr_b16 v[14:15], v3 offset:{4*DPITCH+32}
    s_waitcnt lgkmcnt(0)
    global_store_dwordx4 v17, v[8:11], s[4:5] {PREP_W_POL}
    global_store_dwordx4 v18, v[12:15], s[4:5] {PREP_W_POL}
    @FLUSH 2
    s_endpgm
    """)
    k.label("P_C")
    k(f"""
    s_load_dwordx4 s[8:11], s[0:1], {KA_WG}
    s_sub_u32 s3, s2, {B_C}
    s_and_b32 s12, s3, 1                  ; mat
    s_lshr_b32 s13, s3, 1                 ; cb 0..21
    v_lshrrev_b32 v1, 3, v0
    v_and_b32 v2, 7, v0                   ; chunk
    s_lshl_b32 s14, s13, 3
    v_add_u32 v3, s14, v2
    v_mul_u32_u24 v4, {F*2}, v1
    v_lshl_add_u32 v4, v3, 4, v4
    s_waitcnt lgkmcnt(0)
    s_cmp_eq_u32 s12, 1
    s_cselect_b32 s8, s10, s8
    s_cselect_b32 s9, s11, s9
    v_mov_b32 v5, {F//8}
    v_cmp_gt_u32 vcc, v5, v3
    """)
    for r in range(8, 16): k(f"v_mov_b32 v{r}, 0")
    k("""
    s_and_saveexec_b64 s[28:29], vcc
    s_cbranch_execz P_C2
    """)
    for i in range(16):
        k(f"global_load_dwordx4 v[{16+4*i}:{19+4*i}], v4, s[8:9]")
        if i < 15: k(f"v_add_u32 v4, {32*F*2}, v4")
    for i in range(16):
        k(f"s_waitcnt vmcnt({15-i})")
        for j in range(4):
            k(f"v_lshlrev_b32 v6, 16, v{16+4*i+j}")
            k(f"v_and_b32 v7, 0xffff0000, v{16+4*i+j}")
            k(f"v_add_f32 v{8+2*j}, v{8+2*j}, v6")
            k(f"v_add_f32 v{9+2*j}, v{9+2*j}, v7")
    k(f"""
    P_C2:
    s_mov_b64 exec, s[28:29]
    v_lshlrev_b32 v6, 5, v0
    ds_write_b128 v6, v[8:11]
    ds_write_b128 v6, v[12:15] offset:16
    s_waitcnt lgkmcnt(0)
    s_barrier
    v_cmp_gt_u32 vcc, 64, v0
    s_and_saveexec_b64 s[28:29], vcc
    s_cbranch_execz P_C3
    v_lshlrev_b32 v6, 2, v0
    """)
    for i in range(32):
        k(f"ds_read_b32 v{16+i}, v6 offset:{256*i}")
    k("s_waitcnt lgkmcnt(0)")
    for i in range(1, 32):
        k(f"v_add_f32 v16, v16, v{16+i}")
    k(f"""
    s_lshl_b32 s14, s13, 6
    v_add_u32 v1, s14, v0                 ; f
    s_mov_b32 s17, 0x2aaaaab
    v_mul_hi_u32 v2, v1, s17              ; ft
    v_mul_u32_u24 v3, 96, v2
    v_sub_u32 v3, v1, v3                  ; rem
    v_lshrrev_b32 v4, 5, v3               ; j
    v_bfe_u32 v5, v3, 3, 2                ; dw
    v_mul_u32_u24 v7, 3, v4
    v_add_u32 v7, v7, v5                  ; 3j + dw
    v_add_u32 v8, 9, v4                   ; 9 + j
    v_cmp_eq_u32 vcc, 3, v5
    v_cndmask_b32 v7, v7, v8, vcc         ; w*3+tau
    v_mul_u32_u24 v8, 12, v2
    v_add_u32 v7, v7, v8
    v_lshlrev_b32 v7, 4, v7
    v_bfe_u32 v8, v3, 1, 2
    v_lshl_add_u32 v7, v8, 2, v7
    v_and_b32 v8, 1, v3
    v_add_u32 v7, v7, v8
    s_lshl_b32 s14, s12, 1
    v_add_u32 v7, s14, v7
    v_lshlrev_b32 v7, 2, v7
    v_add_u32 v7, {CSUM}, v7
    global_store_dword v7, v16, s[4:5]
    s_cmp_lg_u32 s13, 21
    s_cbranch_scc1 P_C3
    v_cmp_gt_u32 vcc, 32, v0
    s_and_b64 exec, exec, vcc
    v_bfe_u32 v5, v0, 3, 2
    v_add_u32 v7, 6, v5
    v_cmp_eq_u32 vcc, 3, v5
    v_cndmask_b32 v7, v7, 11, vcc
    v_add_u32 v7, {14*12}, v7
    v_lshlrev_b32 v7, 4, v7
    v_bfe_u32 v8, v0, 1, 2
    v_lshl_add_u32 v7, v8, 2, v7
    v_and_b32 v8, 1, v0
    v_add_u32 v7, v7, v8
    v_add_u32 v7, s14, v7
    v_lshlrev_b32 v7, 2, v7
    v_add_u32 v7, {CSUM}, v7
    v_mov_b32 v16, 0
    global_store_dword v7, v16, s[4:5]
    P_C3:
    @FLUSH 2
    s_endpgm
    """)
    return k, dict(vgpr=96, sgpr=48, accum=96, grid=PREP_WGS, block=256, lds=PREP_LDS)


def stats_pair(k, sa, qa, sb, qb, t, keep=None):
    for s_, q_ in ((sa, qa), (sb, qb)):
        k(f"""
        v_mul_f32 v{s_}, s43, v{s_}
        v_mul_f32 v{q_}, s43, v{q_}
        v_fma_f32 v{q_}, -v{s_}, v{s_}, v{q_}
        v_max_f32 v{q_}, 0, v{q_}
        v_cvt_pk_bf16_f32 v{q_}, v{s_}, v{q_}
        v_lshlrev_b32 v{s_}, 16, v{q_}
        v_and_b32 v{q_}, 0xffff0000, v{q_}
        v_add_f32 v{q_}, s44, v{q_}
        """)
    k(f"""
    v_cvt_pk_bf16_f32 v{t}, v{qa}, v{qb}
    v_lshlrev_b32 v{qa}, 16, v{t}
    v_and_b32 v{qb}, 0xffff0000, v{t}
    v_sqrt_f32 v{qa}, v{qa}
    v_sqrt_f32 v{qb}, v{qb}
    v_cvt_pk_bf16_f32 v{t}, v{qa}, v{qb}
    v_lshlrev_b32 v{keep[0] if keep else qa}, 16, v{t}
    v_and_b32 v{keep[1] if keep else qb}, 0xffff0000, v{t}
    v_rcp_f32 v{qa}, v{keep[0] if keep else qa}
    v_rcp_f32 v{qb}, v{keep[1] if keep else qb}
    """)

CSU = 4576
CPF = int(os.environ.get('CPF', '1'))
CPF_STRIDE = int(os.environ.get('CPF_STRIDE', '128'))
KL = 2 * CSU
CRED = KL + 16640
CONV_LDS = CRED + 32768

def gen_conv():
    k = Kern("conv")
    k(f"""
    conv1_kernel:
    s_mov_b32 s30, {XT0}
    s_mov_b32 s31, {ST0}
    s_mov_b32 s32, {X1T}
    @KID 1
    CONV_BODY:
    s_cmp_ge_u32 s2, 512
    s_cbranch_scc1 CONV_END
    @INIT
    s_load_dwordx2 s[4:5], s[0:1], {KA_WS}
    s_load_dwordx2 s[6:7], s[0:1], {KA_DSKIP}
    v_readfirstlane_b32 s17, v0
    s_mov_b32 s43, {fl(1.0/512)}
    s_mov_b32 s44, {fl(1e-5)}
    s_lshr_b32 s17, s17, 6                ; pi
    s_mul_i32 s12, s2, {XP}
    s_add_u32 s13, s12, s30
    s_add_u32 s14, s12, s32
    s_mul_i32 s15, s2, {KP_STRIDE}
    s_add_u32 s15, s15, {KP}
    s_lshl_b32 s18, s17, 11
    s_add_u32 s18, s18, {CRED}
    s_lshr_b32 s16, s2, 1
    s_lshl_b32 s16, s16, 2
    v_lshlrev_b32 v1, 4, v0               ; tid*16
    v_lshlrev_b32 v2, 6, v0               ; tid*64
    v_and_b32 v3, 15, v0                  ; c / r
    v_bfe_u32 v4, v0, 4, 2                ; g
    v_and_b32 v5, 63, v0
    v_lshlrev_b32 v6, 4, v5               ; lane*16
    s_waitcnt lgkmcnt(0)
    @STAMP 11
    s_load_dword s20, s[6:7], s16
    """)
    srd(k, 8, 4, WS_BYTES)
    k(f"""
    s_mov_b32 m0, s18
    s_nop 0
    buffer_load_dwordx4 v6, s[8:11], s15 offen lds
    buffer_load_dwordx4 v6, s[8:11], s15 offen offset:1024 lds
    buffer_load_dwordx4 v[16:19], v1, s[8:11], s31 offen
    s_add_u32 s31, s31, 0x1000
    buffer_load_dwordx4 v[20:23], v1, s[8:11], s31 offen
    s_add_u32 s31, s31, 0x1000
    buffer_load_dwordx4 v[24:27], v1, s[8:11], s31 offen
    s_add_u32 s31, s31, 0x1000
    buffer_load_dwordx4 v[28:31], v1, s[8:11], s31 offen
    buffer_load_dwordx4 v[12:15], v1, s[8:11], s13 offen
    @STAMP 12
    v_mov_b32 v36, 0
    v_mov_b32 v37, 0
    v_mov_b32 v38, 0
    v_mov_b32 v39, 0
    v_bfe_u32 v9, v0, 2, 2
    v_mul_u32_u24 v9, {KCS}, v9
    v_and_b32 v10, 3, v0
    v_min_u32 v10, 2, v10
    v_lshl_add_u32 v9, v10, 4, v9
    ds_write_b128 v9, v[36:39] offset:{KL}
    """)
    k("v_lshlrev_b32 v40, 3, v0")
    k(f"s_sub_u32 s19, s18, {2 * (0x4300 - 128)}")
    k("v_cmp_gt_u32 vcc, 16, v0")
    for e in range(11):
        k(f"v_add_u32 v{48+e}, {e-3}, v40")
        if e < 3: k(f"v_max_i32 v{48+e}, 0, v{48+e}")
        k(f"v_cvt_f32_u32 v{60+e}, v{48+e}")
    for e in range(0, 11, 2):
        k(f"v_cvt_pk_bf16_f32 v{72+e//2}, v{60+e}, v{min(61+e, 70)}")
    for e in range(11):
        src = 72 + e // 2
        if e & 1: k(f"v_lshrrev_b32 v{60+e}, 16, v{src}")
        else: k(f"v_and_b32 v{60+e}, 0xffff, v{src}")
        k(f"v_lshl_add_u32 v{60+e}, v{60+e}, 1, s19")
        k(f"v_lshl_add_u32 v{48+e}, v{48+e}, 1, s18")
    k("v_cmp_gt_u32 s[24:25], 17, v0")
    for e in range(11):
        k(f"v_cndmask_b32 v{48+e}, v{60+e}, v{48+e}, s[24:25]")
    k(f"""
    @STAMP 10
    s_and_b32 s21, s17, 1
    s_sub_u32 s22, 56, s21
    s_mul_i32 s21, s21, {CSU}
    v_min_u32 v9, s22, v5
    v_lshl_add_u32 v9, v9, 3, s21
    ds_write_b64 v9, v[36:37]
    v_and_b32 v9, 1, v3
    v_mul_u32_u24 v9, {CSU}, v9
    v_lshrrev_b32 v10, 1, v3
    v_lshlrev_b32 v11, 2, v10
    v_sub_u32 v11, v11, v4
    s_lshl_b32 s21, s17, 2
    s_sub_u32 s21, 15, s21
    v_add_u32 v11, s21, v11
    v_lshl_add_u32 v9, v11, 4, v9         ; v9 = u addr
    v_and_b32 v7, 3, v3
    v_mul_u32_u24 v7, {KCS}, v7
    v_lshrrev_b32 v8, 2, v3
    v_add_u32 v8, v8, v4
    v_lshl_add_u32 v7, v8, 4, v7
    s_lshl_b32 s21, s17, 6
    s_add_u32 s21, s21, {KL}
    v_add_u32 v7, s21, v7                 ; v7 = K addr
    v_xor_b32 v8, v4, v10
    v_and_b32 v8, 3, v8
    v_lshlrev_b32 v8, 1, v8
    v_lshl_add_u32 v8, v10, 3, v8
    v_and_b32 v11, 1, v3
    v_add_u32 v8, v8, v11
    s_lshl_b32 s21, s17, 11
    v_lshl_add_u32 v10, v8, 4, s21
    v_bfe_u32 v8, v0, 2, 3
    v_xor_b32 v11, v8, v0
    v_and_b32 v11, 3, v11
    v_lshlrev_b32 v11, 5, v11
    v_lshl_add_u32 v11, v8, 7, v11
    v_bfe_u32 v8, v0, 5, 1
    v_lshl_add_u32 v11, v8, 10, v11
    s_lshl_b32 s21, s17, 13
    v_add_u32 v11, s21, v11
    @STAMP 2
    s_waitcnt vmcnt(5)
    """)
    for e in range(11):
        k(f"ds_read_u16 v{48+e}, v{48+e}")
    k("""
    s_waitcnt vmcnt(1)
    @STAMP 3
    """)
    stats_pair(k, 16, 17, 18, 19, 40)
    k("""
    v_cmp_eq_u32 vcc, 0, v0
    s_waitcnt lgkmcnt(0)
    v_cndmask_b32 v48, v48, v36, vcc
    v_cndmask_b32 v49, v49, v36, vcc
    v_cndmask_b32 v50, v50, v36, vcc
    """)
    for sft in range(4):
        for j in range(4):
            k(f"v_lshl_or_b32 v{64+4*sft+j}, v{48+sft+6-2*j}, 16, v{48+sft+7-2*j}")
        k(f"ds_write_b128 v1, v[{64+4*sft}:{67+4*sft}] offset:{KL + sft*KCS + 48}")
    for i in range(1, 4):
        stats_pair(k, 16 + 4*i, 17 + 4*i, 18 + 4*i, 19 + 4*i, 40)
    k("s_waitcnt vmcnt(0)")
    for j in range(4):
        k(f"""
        v_lshlrev_b32 v40, 16, v{12+j}
        v_and_b32 v41, 0xffff0000, v{12+j}
        v_sub_f32 v40, v40, v{16+4*j}
        v_sub_f32 v41, v41, v{18+4*j}
        v_cvt_pk_bf16_f32 v41, v40, v41
        v_lshlrev_b32 v40, 16, v41
        v_and_b32 v41, 0xffff0000, v41
        v_mul_f32 v40, v40, v{17+4*j}
        v_mul_f32 v41, v41, v{19+4*j}
        v_cvt_pk_bf16_f32 v{32+j}, v40, v41
        """)
    k(f"""
    ds_write_b128 v1, v[32:35] offset:{CSU + 16*28}
    ds_write2_b64 v1, v[32:33], v[34:35] offset0:57 offset1:58
    @STAMP 4
    s_waitcnt vmcnt(0) lgkmcnt(0)
    s_barrier
    @STAMP 5
    """)
    if CPF:
        k(f"""
        s_lshr_b32 s21, s2, 3
        s_lshl_b32 s21, s21, 2
        s_add_u32 s21, s21, s17
        s_mul_i32 s22, s21, 6144
        s_and_b32 s23, s2, 1
        s_mul_i32 s23, s23, {8*196608}
        s_add_u32 s22, s22, s23
        s_add_u32 s22, s22, {WP}
        s_mul_i32 s23, s21, 5632
        s_add_u32 s23, s23, {WD}
        v_mul_u32_u24 v38, {CPF_STRIDE}, v5
        """)
        for j in range(-(-6144 // (64 * CPF_STRIDE))):
            k(f"buffer_load_dword v39, v38, s[8:11], s22 offen\ns_add_u32 s22, s22, {64*CPF_STRIDE}")
        if CPF > 1:
            for j in range(-(-5632 // (64 * CPF_STRIDE))):
                k(f"buffer_load_dword v39, v38, s[8:11], s23 offen\ns_add_u32 s23, s23, {64*CPF_STRIDE}")
    KF = 48; UB = 16; ACC = 112
    pend = []
    def rd(tag):
        if tag[0] == "U":
            mu = int(tag[1:]); r = UB + 4 * (mu & 3)
            k(f"ds_read_b128 v[{r}:{r+3}], v9 offset:{256*mu}")
        else:
            t = int(tag[1:]); r = KF + 4 * t
            k(f"ds_read_b128 v[{r}:{r+3}], v7 offset:{256*t}")
        pend.append(tag)
    def need(tags):
        idx = max([pend.index(t) for t in tags if t in pend], default=-1)
        if idx >= 0:
            k(f"s_waitcnt lgkmcnt({len(pend) - idx - 1})")
            del pend[:idx + 1]
    queue = ["U0"] + [f"K{t}" for t in range(1, 16, 2)] + ["U1"] + [f"K{t}" for t in range(0, 16, 2)] + ["U2", "U3"]
    for t in queue[:12]: rd(t)
    queue = queue[12:]
    for mu in range(16):
        a = UB + 4 * (mu & 3)
        q0 = max(0, -(-(mu - 1) // 2))
        for q in range(q0, 8):
            tp = 2 * q + 1 - mu
            need([f"U{mu}", f"K{tp}"])
            c = "0" if mu == 0 else f"v[{ACC+4*q}:{ACC+4*q+3}]"
            k(f"v_mfma_f32_16x16x32_bf16 v[{ACC+4*q}:{ACC+4*q+3}], v[{KF+4*tp}:{KF+4*tp+3}], v[{a}:{a+3}], {c}")
            if queue: rd(queue.pop(0))
        if mu + 4 < 16: rd(f"U{mu+4}")
        if mu & 1 and mu >= 3:
            q = (mu - 3) // 2
            k(f"ds_write_b128 v10, v[{ACC+4*q}:{ACC+4*q+3}] offset:{CRED + (q>>1)*8192 + (q&1)*1024}")
            pend.append("W")
    k("@STAMP 6")
    k(f"""
    s_and_b32 s21, s20, 0xffff0000
    s_lshl_b32 s20, s20, 16
    s_bitcmp1_b32 s2, 0
    s_cselect_b32 s20, s21, s20
    """)
    for p in range(4):
        k(f"""
        v_lshlrev_b32 v40, 16, v{32+p}
        v_and_b32 v41, 0xffff0000, v{32+p}
        v_mul_f32 v40, s20, v40
        v_mul_f32 v41, s20, v41
        v_cvt_pk_bf16_f32 v41, v40, v41
        """)
        if p == 0:
            k(f"ds_write_b128 v10, v[{ACC+28}:{ACC+31}] offset:{CRED + 3*8192 + 1024}")
        k(f"""
        v_lshlrev_b32 v{48+2*p}, 16, v41
        v_and_b32 v{49+2*p}, 0xffff0000, v41
        v_lshlrev_b32 v{56+2*p}, 16, v{12+p}
        v_and_b32 v{57+2*p}, 0xffff0000, v{12+p}
        """)
    k("""
    s_waitcnt lgkmcnt(0)
    s_barrier
    @STAMP 7
    """)
    for src in range(4):
        for t in range(2):
            k(f"ds_read_b128 v[{ACC+8*src+4*t}:{ACC+8*src+4*t+3}], v11 offset:{CRED + src*2048 + t*16}")
    k("s_waitcnt lgkmcnt(4)")
    for r in range(0, 8, 2):
        k(f"v_pk_add_f32 v[{ACC+r}:{ACC+r+1}], v[{ACC+r}:{ACC+r+1}], v[{ACC+8+r}:{ACC+9+r}]")
    k("s_waitcnt lgkmcnt(0)")
    for r in range(0, 8, 2):
        k(f"v_pk_add_f32 v[{ACC+16+r}:{ACC+17+r}], v[{ACC+16+r}:{ACC+17+r}], v[{ACC+24+r}:{ACC+25+r}]")
    for r in range(0, 8, 2):
        k(f"v_pk_add_f32 v[{ACC+r}:{ACC+r+1}], v[{ACC+r}:{ACC+r+1}], v[{ACC+16+r}:{ACC+17+r}]")
    k("@STAMP 8")
    for p in range(4):
        y0, y1 = ACC + 2*p, ACC + 2*p + 1
        k(f"""
        v_cvt_pk_bf16_f32 v{y1}, v{y0}, v{y1}
        v_lshlrev_b32 v{y0}, 16, v{y1}
        v_and_b32 v{y1}, 0xffff0000, v{y1}
        v_pk_add_f32 v[{y0}:{y1}], v[{y0}:{y1}], v[{48+2*p}:{49+2*p}]
        v_cvt_pk_bf16_f32 v{y1}, v{y0}, v{y1}
        v_lshlrev_b32 v{y0}, 16, v{y1}
        v_and_b32 v{y1}, 0xffff0000, v{y1}
        v_pk_add_f32 v[{y0}:{y1}], v[{y0}:{y1}], v[{56+2*p}:{57+2*p}]
        v_cvt_pk_bf16_f32 v{44+p}, v{y0}, v{y1}
        """)
    k(f"""
    buffer_store_dwordx4 v[44:47], v1, s[8:11], s14 offen {CONV_ST}
    @STAMP 9
    @FLUSH 13
    CONV_END:
    s_endpgm
    .p2align 8
    conv2_kernel:
    s_mov_b32 s30, {X2T}
    s_mov_b32 s31, {ST1}
    s_mov_b32 s32, {X3T}
    @KID 4
    s_branch CONV_BODY
    """)
    info = dict(vgpr=144, sgpr=48, accum=144, grid=512, block=256, lds=CONV_LDS)
    return k, info

MLP_LDS = 163840
H_LD = os.environ.get('H_LD', 'sc1')
M_PRE2 = int(os.environ.get('M_PRE2', '5'))
M_OLD = int(os.environ.get('M_OLD', '1'))
M_LOOK = int(os.environ.get('M_LOOK', '5'))
M_TOUCH = int(os.environ.get('M_TOUCH', '0'))
M_PRE = int(os.environ.get('M_PRE', '8'))
M_OPS = int(os.environ.get('M_OPS', '3'))
M_RAMP = int(os.environ.get('M_RAMP', '5'))
M_WDM = int(os.environ.get('M_WDM', '4'))
M_WDE = int(os.environ.get('M_WDE', '2'))
M_AHEAD2 = int(os.environ.get('M_AHEAD2', '6'))
SPIN_MAX = 1 << 20
SLOT = 40960
def gen_mlp():
    k = Kern("mlp")
    ACC = 0
    FR = 48
    XA = 104
    WA = 112
    CSR = 114
    STV = 126
    RES = 130
    VDMA, VW, VT0, VT1, VT2 = 134, 135, 136, 137, 138
    SA = 139
    VRES = 142; VSTX = 143; VPUB = 144; VCS = 145
    MR = 146
    TMP = 150
    NV = 168
    def wdreg(i): return f"a[{4*i}:{4*i+3}]"
    k(f"""
    mlpa_kernel:
    s_mov_b32 s30, {X1T}
    s_mov_b32 s31, {HB}
    s_mov_b32 s33, {STX}
    s_mov_b32 s34, {FLG}
    s_mov_b32 s35, 0
    @KID 2
    M_BODY:
    s_cmp_ge_u32 s2, 256
    s_cbranch_scc1 M_END
    @INIT
    s_load_dwordx2 s[4:5], s[0:1], {KA_WS}
    s_load_dwordx2 s[6:7], s[0:1], {KA_OUT}
    v_readfirstlane_b32 s17, v0
    s_and_b32 s12, s2, 7                  ; xcd
    s_lshr_b32 s13, s2, 3                 ; idx
    s_lshr_b32 s14, s12, 1
    s_lshl_b32 s14, s14, 2
    s_and_b32 s15, s13, 3
    s_add_u32 s14, s14, s15               ; lt
    s_lshl_b32 s36, s12, 2
    s_add_u32 s36, s36, s15               ; lt64
    s_lshr_b32 s37, s13, 2                ; dt
    s_and_b32 s15, s12, 1
    s_lshl_b32 s15, s15, 3
    s_add_u32 s15, s15, s37               ; ft
    s_lshr_b32 s17, s17, 6                ; w
    s_and_b32 s16, s17, 3
    s_lshr_b32 s29, s17, 2
    v_and_b32 v{VT0}, 63, v0              ; lane
    v_and_b32 v{VT1}, 15, v0              ; lam / j
    v_bfe_u32 v{VT2}, v0, 4, 2            ; g
    s_and_b32 s20, s17, 1
    s_lshl_b32 s20, s20, 2
    v_lshrrev_b32 v{TMP}, 1, v{VT1}
    v_xor_b32 v{TMP+1}, v{TMP}, v{VT2}
    v_xor_b32 v{TMP+1}, s20, v{TMP+1}
    v_and_b32 v{TMP+3}, 1, v{VT1}
    v_lshlrev_b32 v{TMP+3}, 4, v{TMP+3}
    v_mul_u32_u24 v{TMP+4}, {XP}, v{VT2}
    v_add_u32 v{TMP+3}, v{TMP+4}, v{TMP+3}
    v_lshl_add_u32 v{VDMA}, v{TMP+1}, 5, v{TMP+3}
    v_lshlrev_b32 v{VW}, 4, v{VT0}                    ; lane*16
    s_lshl_b32 s18, s14, 8
    s_add_u32 s18, s18, s30
    s_mul_i32 s19, s17, {4*XP}
    s_add_u32 s18, s18, s19
    s_lshl_b32 s19, s17, 10               ; x m0 part: w*1024
    s_lshl_b32 s20, s15, 2
    s_add_u32 s20, s20, s16
    s_lshl_b32 s21, s20, 4
    s_add_u32 s21, s21, s29
    s_mul_i32 s21, s21, 3072
    s_add_u32 s21, s21, {WP}
    s_mul_i32 s22, s17, 3072
    s_add_u32 s22, s22, 0x4000
    s_mul_i32 s24, s20, {3*16*4}
    s_add_u32 s24, s24, {CSUM}
    s_lshl_b32 s38, s37, 2
    s_add_u32 s38, s38, s16
    s_mul_i32 s38, s38, {NKS2*1024}
    s_mul_i32 s23, s29, {22*1024}
    s_add_u32 s38, s38, s23
    s_add_u32 s38, s38, {WD}
    """)
    def group_parts(t):
        base = (t & 3) * SLOT
        parts = [f"""
        s_add_u32 m0, s19, {base}
        s_nop 0
        buffer_load_dwordx4 v{VDMA}, s[8:11], s18 offen lds
        s_add_u32 s18, s18, {32*XP}
        """, f"""
        s_add_u32 m0, s22, {base}
        s_nop 0
        buffer_load_dwordx4 v{VW}, s[8:11], s21 offen lds
        """, f"""
        buffer_load_dwordx4 v{VW}, s[8:11], s21 offen offset:1024 lds
        """, f"""
        buffer_load_dwordx4 v{VW}, s[8:11], s21 offen offset:2048 lds
        s_add_u32 s21, s21, 0x1800
        """, f"""
        s_add_u32 m0, s19, {base + 8192}
        s_nop 0
        buffer_load_dwordx4 v{VDMA}, s[8:11], s18 offen lds
        s_add_u32 s18, s18, {32*XP}
        """]
        return parts
    def wd_part(i):
        p = f"buffer_load_dwordx4 {wdreg(i)}, v{VW}, s[8:11], s38 offen offset:{1024*(i&3)}"
        if (i & 3) == 3: p += "\ns_add_u32 s38, s38, 0x1000"
        return p
    def common_addr():
        k(f"""
        s_mov_b32 s43, {fl(1.0/512)}
        s_mov_b32 s44, {fl(1e-5)}
        s_mov_b32 s45, {fl(-LOG2E)}
        v_lshrrev_b32 v{TMP}, 2, v{VT1}
        v_lshl_add_u32 v{TMP}, v{VT2}, 2, v{TMP}          ; 4g + r
        v_and_b32 v{TMP+1}, 7, v{TMP}                     ; xi
        v_and_b32 v{TMP+2}, 3, v{VT1}
        v_lshlrev_b32 v{TMP+2}, 3, v{TMP+2}
        v_lshl_add_u32 v{TMP+2}, v{TMP}, 8, v{TMP+2}
        v_mul_u32_u24 v{VRES}, {XP}, v{VT1}
        v_lshl_add_u32 v{VRES}, v{VT2}, 4, v{VRES}
        s_lshl_b32 s39, s37, 2
        s_add_u32 s39, s39, s16
        s_mul_i32 s39, s39, {16*XP}
        s_lshl_b32 s40, s36, 7
        s_add_u32 s39, s39, s40
        s_lshl_b32 s40, s29, 6
        s_add_u32 s39, s39, s40
        s_add_u32 s40, s39, s30
        """)
    res_parts = [f"buffer_load_dwordx4 v[{RES}:{RES+3}], v{VRES}, s[8:11], s40 offen"]
    common_addr()
    k("s_lshl_b32 s25, s29, 2")
    for b in range(4):
        k(f"""
        s_add_u32 s26, s25, {b}
        v_xor_b32 v{TMP+3}, s26, v{TMP+1}
        v_lshl_add_u32 v{XA+b}, v{TMP+3}, 5, v{TMP+2}
        v_add_u32 v{XA+4+b}, {2*SLOT}, v{XA+b}
        """)
    k(f"""
    s_mul_i32 s26, s16, 3072
    s_add_u32 s26, s26, 0x4000
    v_add_u32 v{WA}, s26, v{VW}
    v_add_u32 v{WA+1}, {2*SLOT}, v{WA}
    """)
    def late_addr():
        k(f"""
        v_bfe_u32 v{TMP}, v{VT1}, 2, 1                    ; half
        v_mul_u32_u24 v{TMP+4}, 3072, v{TMP}
        v_lshrrev_b32 v{TMP}, 3, v{VT1}
        v_lshl_add_u32 v{TMP+4}, v{TMP}, 6, v{TMP+4}
        v_and_b32 v{TMP}, 3, v{VT1}
        v_lshl_add_u32 v{TMP+4}, v{TMP}, 4, v{TMP+4}
        v_lshl_add_u32 v{TMP+4}, v{VT2}, 8, v{TMP+4}
        s_lshl_b32 s26, s16, 10
        s_cmp_eq_u32 s16, 3
        s_cselect_b32 s26, 12, s26
        s_cselect_b32 s27, 0x400, 4
        s_mul_i32 s28, s29, 12288
        s_add_u32 s26, s26, s28
        v_add_u32 v{SA}, s26, v{TMP+4}
        v_add_u32 v{SA+1}, s27, v{SA}
        v_add_u32 v{SA+2}, s27, v{SA+1}
        v_lshlrev_b32 v{VSTX}, 2, v{VT1}
        s_lshl_b32 s41, s14, 9
        s_lshl_b32 s26, s29, 8
        s_add_u32 s41, s41, s26
        s_add_u32 s41, s41, s33
        s_mul_i32 s26, s17, 3072
        v_add_u32 v{VPUB}, s26, v{VW}
        s_lshl_b32 s42, s14, 3
        s_add_u32 s42, s42, s17
        s_mul_i32 s42, s42, {HKS*1024}
        s_mul_i32 s26, s15, 3072
        s_add_u32 s42, s42, s26
        s_add_u32 s42, s42, s31
        v_lshlrev_b32 v{VCS}, 4, v{VT2}
        """)
    late_addr()
    k(f"""
    v_lshrrev_b32 v{TMP+6}, 3, v{VT0}
    v_mul_u32_u24 v{TMP+6}, {XP}, v{TMP+6}
    v_and_b32 v{TMP+7}, 7, v{VT0}
    v_lshl_add_u32 v{TMP+6}, v{TMP+7}, 5, v{TMP+6}
    s_lshl_b32 s46, s37, 3
    s_add_u32 s46, s46, s17
    s_mul_i32 s46, s46, {8*XP}
    s_lshl_b32 s47, s14, 8
    s_add_u32 s46, s46, s47
    s_add_u32 s46, s46, s30
    """)
    k("s_waitcnt lgkmcnt(0)")
    srd(k, 8, 4, WS_BYTES)
    if M_TOUCH & 1: k(f"buffer_load_dword v{TMP+8}, v{TMP+6}, s[8:11], s46 offen")
    k("""
    s_cmp_eq_u32 s15, 15
    s_cbranch_scc1 M_STATS
    """)
    def reads(s):
        res = []
        t = s >> 1; hi = (t & 3) >> 1; base = (t & 1) * SLOT
        buf = FR + 28 * (s & 1)
        for tau in range(3):
            r = buf + 16 + 4 * tau
            res.append(f"ds_read_b128 v[{r}:{r+3}], v{WA+hi} offset:{base + (s&1)*12288 + tau*1024}")
        for b in range(4):
            off = base + (s & 1) * 8192
            res.append(f"ds_read_b64_tr_b16 v[{buf+4*b}:{buf+4*b+1}], v{XA+4*hi+b} offset:{off}")
            res.append(f"ds_read_b64_tr_b16 v[{buf+4*b+2}:{buf+4*b+3}], v{XA+4*hi+b} offset:{off+4096}")
        return res
    later = [f"buffer_load_dwordx4 v[{CSR+4*tau}:{CSR+4*tau+3}], v{VCS}, s[8:11], s24 offen offset:{64*tau}" for tau in range(3)]
    later += res_parts
    later += [wd_part(i) for i in range(M_WDM)]
    later += [f"buffer_load_dword v{STV+b}, v{VSTX}, s[8:11], s41 offen offset:{64*b} sc1" for b in range(4)]
    n_need = len(later)
    later += [wd_part(i) for i in range(M_WDM, 22)]
    vm = []
    def wait_for(tag):
        assert not any(o[1] == tag for o in opq), tag
        idxs = [i for i, x in enumerate(vm) if x == tag]
        if not idxs: return
        idx = max(idxs)
        k(f"s_waitcnt vmcnt({len(vm) - idx - 1})")
        del vm[:idx + 1]
    opq = []
    for u in range(8):
        gp = group_parts(u)
        e0 = max(2*u - 7, 2*u - M_LOOK)
        if M_OLD: e0 = {0: -1, 1: -1, 2: 0, 3: 1}.get(u, 2*u - 6)
        for j in (0, 1, 2): opq.append((gp[j], f"D{2*u}", e0))
        opq.append((gp[3], f"D{2*u}", e0 + 1 if u > (3 if M_OLD else 1) else e0))
        opq.append((gp[4], f"D{2*u+1}", e0 + 1 if u > (3 if M_OLD else 1) else e0))
    for i, p in enumerate(later[:n_need]): opq.append((p, "N", -100))
    nlater = n_need
    def issue(n, s):
        out = []
        while opq and len(out) < n and opq[0][2] <= s:
            out.append(opq.pop(0))
        return out
    for p, tag, _ in issue(10 if M_OLD else M_PRE, -1):
        k(p); vm.append(tag)
    k("@STAMP 2")
    wait_for("D1" if M_OLD else "D0")
    k("s_barrier")
    k("@STAMP 3")
    for r in reads(0): k(r)
    EXP = os.environ.get('EXP', '')
    for s in range(16):
        if M_OLD:
            bar = False
            if s == 1: wait_for("D3"); bar = True
            elif (s & 1) == 0 and 0 < s < 14: wait_for(f"D{s+3}"); bar = True
            if bar: k("s_barrier")
            k("s_waitcnt lgkmcnt(0)")
        else:
            if s == 0: wait_for("D1")
            elif s < 15 and (s & 1): wait_for(f"D{s+2}")
            k("s_waitcnt lgkmcnt(0)")
            if s < 15 and (s == 0 or (s & 1)): k("s_barrier")
        if s == 8: k("@STAMP 4")
        fill = reads(s + 1) if s < 15 else []
        mf = []
        buf = FR + 28 * (s & 1)
        for b in range(4):
            for tau in range(3):
                a = ACC + (b * 3 + tau) * 4
                c = "0" if s == 0 else f"v[{a}:{a+3}]"
                mf.append(f"v_mfma_f32_16x16x32_bf16 v[{a}:{a+3}], v[{buf+16+4*tau}:{buf+19+4*tau}], v[{buf+4*b}:{buf+4*b+3}], {c}")
        parts = issue((5 if s < 2 else 3) if M_OLD else (M_OPS if s < M_RAMP else 3), s)
        step = 12 // max(len(parts), 1)
        slots = {1 + step * j: p for j, p in enumerate(parts)}
        for i, m in enumerate(mf):
            k(m)
            if i < len(fill): k(fill[i])
            if i in slots:
                k(slots[i][0]); vm.append(slots[i][1])
    assert not opq, len(opq)
    assert nlater >= n_need
    k("@STAMP 5")
    wait_for("N")
    k(f"""
    s_mov_b32 s47, 0
    M_STCHK:
    v_min3_u32 v{TMP}, v{STV}, v{STV+1}, v{STV+2}
    v_min_u32 v{TMP}, v{TMP}, v{STV+3}
    v_cmp_eq_u32 vcc, 0, v{TMP}
    s_cmp_eq_u64 vcc, 0
    s_cbranch_scc1 M_STOK
    s_add_u32 s47, s47, 1
    s_cmp_ge_u32 s47, {SPIN_MAX}
    s_cbranch_scc1 M_STOK
    s_sleep 2
    """)
    for b in range(4): k(f"buffer_load_dword v{STV+b}, v{VSTX}, s[8:11], s41 offen offset:{64*b} sc1")
    k("""
    s_waitcnt vmcnt(0)
    s_branch M_STCHK
    M_STOK:
    @STAMP 6
    """)
    PB = FR
    for b in range(4):
        m = MR
        k(f"""
        v_and_b32 v{m+2}, 0xffff0000, v{STV+b}        ; s
        v_lshlrev_b32 v{m}, 16, v{STV+b}              ; m
        v_rcp_f32 v{m+1}, v{m+2}
        v_mul_f32 v{m+1}, s45, v{m+1}
        """)
        for tau in range(3):
            a = ACC + (b * 3 + tau) * 4
            c = CSR + 4 * tau
            k(f"""
            v_pk_fma_f32 v[{a}:{a+1}], v[{m}:{m+1}], v[{c}:{c+1}], v[{a}:{a+1}] op_sel_hi:[0,1,1] neg_lo:[1,0,0] neg_hi:[1,0,0]
            v_pk_fma_f32 v[{a+2}:{a+3}], v[{m}:{m+1}], v[{c+2}:{c+3}], v[{a+2}:{a+3}] op_sel_hi:[0,1,1] neg_lo:[1,0,0] neg_hi:[1,0,0]
            v_pk_mul_f32 v[{a}:{a+1}], v[{a}:{a+1}], v[{m}:{m+1}] op_sel:[0,1] op_sel_hi:[1,1]
            v_exp_f32 v{a}, v{a}
            v_exp_f32 v{a+1}, v{a+1}
            """)
            if tau < M_WDE and nlater < len(later):
                k(later[nlater]); nlater += 1
        for tau in range(3):
            a = ACC + (b * 3 + tau) * 4
            k(f"""
            v_pk_fma_f32 v[{a}:{a+1}], v[{a}:{a+1}], v[{m+2}:{m+3}], v[{m+2}:{m+3}] op_sel_hi:[1,0,0]
            v_rcp_f32 v{a}, v{a}
            v_rcp_f32 v{a+1}, v{a+1}
            """)
        for tau in range(3):
            a = ACC + (b * 3 + tau) * 4
            k(f"""
            v_pk_mul_f32 v[{a}:{a+1}], v[{a}:{a+1}], v[{a+2}:{a+3}]
            v_cvt_pk_bf16_f32 v{a}, v{a}, v{a+1}
            ds_write_b32 v{SA+tau}, v{a} offset:{(b>>1)*6144 + (b&1)*128}
            """)
    k("""
    s_waitcnt lgkmcnt(0)
    s_barrier
    @STAMP 7
    """)
    for i in range(3):
        k(f"ds_read_b128 v[{PB+4*i}:{PB+4*i+3}], v{VPUB} offset:{1024*i}")
    for i in range(3):
        k(f"s_waitcnt lgkmcnt({2-i})")
        k(f"buffer_store_dwordx4 v[{PB+4*i}:{PB+4*i+3}], v{VW}, s[8:11], s42 offen offset:{1024*i} sc1")
    rest = later[nlater:]
    k(f"""
    s_lshl_b32 s26, s14, 4
    s_add_u32 s26, s26, s15
    s_lshl_b32 s26, s26, 7
    s_add_u32 s26, s26, s34
    v_mov_b32 v{TMP}, 1
    v_mov_b32 v{TMP+1}, 0
    s_waitcnt vmcnt(0)
    s_barrier
    s_cmp_lg_u32 s17, 0
    s_cbranch_scc1 M_NOFLAG
    s_mov_b64 exec, 1
    buffer_store_dword v{TMP}, v{TMP+1}, s[8:11], s26 offen sc1
    s_mov_b64 exec, -1
    M_NOFLAG:
    """)
    for p in rest: k(p)
    HA = XA
    k(f"""
    M_SYNC:
    @STAMP 8
    s_lshl_b32 s26, s36, 2
    s_add_u32 s26, s26, s16
    s_mul_i32 s26, s26, {HKS*1024}
    s_mul_i32 s27, s29, {22*1024}
    s_add_u32 s26, s26, s27
    s_add_u32 s26, s26, s31
    s_lshl_b32 s27, s17, 11               ; m0 part
    s_mul_i32 s28, s29, 0x3000
    v_add_u32 v{HA}, s28, v{VW}
    s_lshl_b32 s28, s29, 12
    s_add_u32 s28, s28, 0x1000
    v_add_u32 v{HA+1}, s28, v{VW}
    v_add_u32 v{HA+2}, 0x10000, v{HA}
    v_add_u32 v{HA+3}, 0x10000, v{HA+1}
    v_add_u32 v{HA+4}, 0x20000, v{HA}
    v_add_u32 v{HA+5}, 0x20000, v{HA+1}
    s_cmp_lg_u32 s17, 1
    s_cbranch_scc1 M_WAITB
    s_lshr_b32 s28, s36, 1
    s_lshl_b32 s28, s28, 11
    s_add_u32 s28, s28, s34
    v_min_u32 v{TMP+4}, 14, v{VT0}
    v_lshlrev_b32 v{TMP+4}, 7, v{TMP+4}
    s_mov_b32 s47, 0
    M_POLL:
    buffer_load_dword v{TMP+5}, v{TMP+4}, s[8:11], s28 offen sc1
    s_waitcnt vmcnt(0)
    v_cmp_eq_u32 vcc, 0, v{TMP+5}
    s_cmp_eq_u64 vcc, 0
    s_cbranch_scc1 M_WAITB
    s_add_u32 s47, s47, 1
    s_cmp_lt_u32 s47, {SPIN_MAX}
    s_cbranch_scc1 M_POLL
    M_WAITB:
    s_lshl_b32 s46, s37, 3
    s_add_u32 s46, s46, s17
    s_mul_i32 s46, s46, 2880
    s_mul_i32 s47, s36, {4*HKS*1024}
    s_add_u32 s46, s46, s47
    s_add_u32 s46, s46, s31
    v_min_u32 v{TMP+6}, 44, v{VT0}
    v_lshlrev_b32 v{TMP+6}, 6, v{TMP+6}
    s_barrier
    @STAMP 9
    """)
    if M_TOUCH & 2: k(f"buffer_load_dword v{TMP+8}, v{TMP+6}, s[8:11], s46 offen")
    def hchunk(c):
        return [f"""
        s_add_u32 m0, s27, {(c % 10) * 16384}
        s_nop 0
        buffer_load_dwordx4 v{VW}, s[8:11], s26 offen {H_LD} lds
        """, f"""
        buffer_load_dwordx4 v{VW}, s[8:11], s26 offen offset:1024 {H_LD} lds
        s_add_u32 s26, s26, 0x800
        """]
    HF = 16
    A2 = 0
    def hreads(c):
        res = []
        for i in range(2):
            for lb in range(4):
                off = (c % 10) * 16384 + (lb & 1) * 2048 + i * 1024
                base = HA + 2 * (off >> 16) + (lb >> 1)
                r = HF + 32 * (c & 1) + (i * 4 + lb) * 4
                res.append(f"ds_read_b128 v[{r}:{r+3}], v{base} offset:{off & 0xffff}")
        return res
    iss = M_PRE2
    for c in range(iss):
        for p in hchunk(c): k(p)
    k(f"s_waitcnt vmcnt({2*(iss-1)})")
    k("s_barrier")
    k("@STAMP 10")
    for r in hreads(0): k(r)
    for c in range(11):
        fill = []
        if c < 10:
            k(f"s_waitcnt vmcnt({2*(iss-(c+2))})")
            k("s_barrier")
        k("s_waitcnt lgkmcnt(0)")
        if c < 10: fill = hreads(c + 1)
        parts = []
        for rep_ in range(2):
            if iss < 11 and (iss < 10 or c >= 1) and iss < c + M_AHEAD2:
                parts += hchunk(iss); iss += 1
        slots = {1 + 2 * j: p for j, p in enumerate(parts)}
        n = 0
        for i in range(2):
            for lb in range(4):
                r = HF + 32 * (c & 1) + (i * 4 + lb) * 4
                a = A2 + 4 * lb
                cc = "0" if (c == 0 and i == 0) else f"v[{a}:{a+3}]"
                k(f"v_mfma_f32_16x16x32_bf16 v[{a}:{a+3}], v[{r}:{r+3}], {wdreg(2*c+i)}, {cc}")
                if n < len(fill): k(fill[n])
                if n in slots: k(slots[n])
                n += 1
    k("@STAMP 11")
    XB = 65536
    k(f"""
    s_lshl_b32 s26, s17, 11
    s_add_u32 s26, s26, {XB}
    v_add_u32 v{TMP}, s26, v{VW}
    s_xor_b32 s26, s26, 0x2000
    v_add_u32 v{TMP+1}, s26, v{VW}
    """)
    for j in range(4):
        k(f"v_lshlrev_b32 v{32+2*j}, 16, v{RES+j}")
        k(f"v_and_b32 v{33+2*j}, 0xffff0000, v{RES+j}")
    k(f"""
    ds_write_b128 v{TMP}, v[8:11]
    ds_write_b128 v{TMP}, v[12:15] offset:1024
    s_waitcnt lgkmcnt(0)
    s_barrier
    ds_read_b128 v[8:11], v{TMP+1}
    ds_read_b128 v[12:15], v{TMP+1} offset:1024
    s_waitcnt lgkmcnt(0)
    """)
    OUT = 16
    for j in range(4):
        y0, y1 = A2 + 2*j, A2 + 2*j + 1
        k(f"""
        v_pk_add_f32 v[{y0}:{y1}], v[{y0}:{y1}], v[{y0+8}:{y1+8}]
        v_cvt_pk_bf16_f32 v{y1}, v{y0}, v{y1}
        v_lshlrev_b32 v{y0}, 16, v{y1}
        v_and_b32 v{y1}, 0xffff0000, v{y1}
        v_pk_add_f32 v[{y0}:{y1}], v[{y0}:{y1}], v[{32+2*j}:{33+2*j}]
        v_cvt_pk_bf16_f32 v{OUT+j}, v{y0}, v{y1}
        """)
    k(f"""
    s_cmp_lg_u32 s35, 0
    s_cbranch_scc1 M_FINAL
    s_add_u32 s40, s39, {X2T}
    buffer_store_dwordx4 v[{OUT}:{OUT+3}], v{VRES}, s[8:11], s40 offen {X2_ST}
    """)
    Q = 48
    for j in range(4):
        k(f"""
        v_lshlrev_b32 v{Q+4*j}, 16, v{OUT+j}
        v_and_b32 v{Q+4*j+2}, 0xffff0000, v{OUT+j}
        v_mul_f32 v{Q+4*j+1}, v{Q+4*j}, v{Q+4*j}
        v_mul_f32 v{Q+4*j+3}, v{Q+4*j+2}, v{Q+4*j+2}
        """)
    for q in range(8):
        k(f"v_add_f32_dpp v{Q+q}, v{Q+q}, v{Q+q} row_ror:8 row_mask:0xf bank_mask:0x3")
        k(f"v_add_f32_dpp v{Q+q}, v{Q+q+8}, v{Q+q+8} row_ror:8 row_mask:0xf bank_mask:0xc")
    for q in range(4):
        k(f"v_add_f32_dpp v{Q+q}, v{Q+q}, v{Q+q} row_shl:4 row_mask:0xf bank_mask:0x5")
        k(f"v_add_f32_dpp v{Q+q}, v{Q+q+4}, v{Q+q+4} row_shr:4 row_mask:0xf bank_mask:0xa")
    for q in range(4):
        k(f"v_add_f32_dpp v{Q+q}, v{Q+q}, v{Q+q} quad_perm:[1,0,3,2] row_mask:0xf bank_mask:0xf")
    for q in range(4):
        k(f"v_add_f32_dpp v{Q+q}, v{Q+q}, v{Q+q} quad_perm:[2,3,0,1] row_mask:0xf bank_mask:0xf")
    SB = 98304
    k(f"""
    v_and_b32 v{TMP}, 3, v{VT1}
    v_cmp_eq_u32 s[48:49], 1, v{TMP}
    v_cmp_eq_u32 s[50:51], 2, v{TMP}
    v_cmp_eq_u32 s[52:53], 3, v{TMP}
    v_lshrrev_b32 v{TMP+1}, 2, v{VT1}
    v_lshlrev_b32 v{TMP+1}, 7, v{TMP+1}
    v_lshl_add_u32 v{TMP+1}, v{VT2}, 4, v{TMP+1}
    v_lshl_add_u32 v{TMP+1}, v{TMP}, 2, v{TMP+1}
    s_lshl_b32 s26, s16, 9
    s_lshl_b32 s27, s29, 6
    s_add_u32 s26, s26, s27
    s_add_u32 s26, s26, {SB}
    v_add_u32 v{TMP+1}, s26, v{TMP+1}
    v_cndmask_b32 v{Q}, v{Q}, v{Q+1}, s[48:49]
    v_cndmask_b32 v{Q}, v{Q}, v{Q+2}, s[50:51]
    v_cndmask_b32 v{Q}, v{Q}, v{Q+3}, s[52:53]
    ds_write_b32 v{TMP+1}, v{Q}
    s_lshl_b32 s26, s17, 8
    s_add_u32 s26, s26, {SB}
    v_lshl_add_u32 v{TMP+2}, v{VT0}, 2, s26
    v_lshrrev_b32 v{TMP+3}, 5, v{VT0}
    v_lshlrev_b32 v{TMP+3}, 12, v{TMP+3}
    v_and_b32 v{TMP+4}, 31, v{VT0}
    v_lshl_add_u32 v{TMP+3}, v{TMP+4}, 2, v{TMP+3}
    s_lshl_b32 s26, s36, 7
    s_lshl_b32 s27, s17, 13
    s_add_u32 s26, s26, s27
    s_add_u32 s26, s26, {ST1}
    s_waitcnt lgkmcnt(0)
    s_barrier
    s_cmp_ge_u32 s17, 2
    s_cbranch_scc1 M_NOAT
    ds_read_b32 v{Q}, v{TMP+2}
    ds_read_b32 v{Q+1}, v{TMP+2} offset:512
    ds_read_b32 v{Q+2}, v{TMP+2} offset:1024
    ds_read_b32 v{Q+3}, v{TMP+2} offset:1536
    s_waitcnt lgkmcnt(0)
    v_add_f32 v{Q}, v{Q}, v{Q+1}
    v_add_f32 v{Q+2}, v{Q+2}, v{Q+3}
    v_add_f32 v{Q}, v{Q}, v{Q+2}
    buffer_atomic_add_f32 v{Q}, v{TMP+3}, s[8:11], s26 offen
    M_NOAT:
    @STAMP 12
    @FLUSH 13
    s_endpgm
    M_FINAL:
    """)
    TP = 144; TB2 = 98304
    srd(k, 48, 6, L * D * 2)
    k(f"""
    s_lshl_b32 s26, s16, 4
    v_add_u32 v{TMP}, s26, v{VT1}
    v_mul_u32_u24 v{TMP}, {TP}, v{TMP}
    v_lshl_add_u32 v{TMP}, v{VT2}, 4, v{TMP}
    s_lshl_b32 s26, s29, 6
    s_add_u32 s26, s26, {TB2}
    v_add_u32 v{TMP}, s26, v{TMP}
    ds_write_b128 v{TMP}, v[{OUT}:{OUT+3}]
    v_lshrrev_b32 v{TMP+1}, 2, v{VT1}
    v_lshl_add_u32 v{TMP+1}, v{VT2}, 3, v{TMP+1}
    v_mul_u32_u24 v{TMP+1}, {TP}, v{TMP+1}
    v_and_b32 v{TMP+2}, 3, v{VT1}
    v_lshl_add_u32 v{TMP+1}, v{TMP+2}, 3, v{TMP+1}
    s_lshl_b32 s26, s16, 5
    s_mul_i32 s27, s29, {32*TP}
    s_add_u32 s26, s26, s27
    s_add_u32 s26, s26, {TB2}
    v_add_u32 v{TMP+1}, s26, v{TMP+1}
    v_lshlrev_b32 v{TMP+2}, 10, v{VT1}
    v_lshl_add_u32 v{TMP+2}, v{VT2}, 4, v{TMP+2}
    s_lshl_b32 s26, s36, 2
    s_add_u32 s26, s26, s16
    s_lshl_b32 s26, s26, 14
    s_lshl_b32 s27, s37, 7
    s_add_u32 s26, s26, s27
    s_lshl_b32 s27, s29, 6
    s_add_u32 s26, s26, s27
    s_waitcnt lgkmcnt(0)
    s_barrier
    ds_read_b64_tr_b16 v[32:33], v{TMP+1}
    ds_read_b64_tr_b16 v[34:35], v{TMP+1} offset:{4*TP}
    s_waitcnt lgkmcnt(0)
    buffer_store_dwordx4 v[32:35], v{TMP+2}, s[48:51], s26 offen
    @STAMP 12
    @FLUSH 13
    M_END:
    s_endpgm
    """)
    k(f"""
    M_STATS:
    s_mov_b32 s47, 0
    M_SL1:
    s_mov_b32 m0, s19
    s_add_u32 s19, s19, 0x2000
    buffer_load_dwordx4 v{VDMA}, s[8:11], s18 offen lds
    s_add_u32 s18, s18, {32*XP}
    s_mov_b32 m0, s19
    s_add_u32 s19, s19, 0x2000
    buffer_load_dwordx4 v{VDMA}, s[8:11], s18 offen lds
    s_add_u32 s18, s18, {32*XP}
    s_add_u32 s47, s47, 1
    s_cmp_lt_u32 s47, 8
    s_cbranch_scc1 M_SL1
    """)
    SACC = 0; ONES = 16
    k(f"""
    v_xor_b32 v{TMP+3}, s17, v{TMP+1}
    v_lshl_add_u32 v{XA}, v{TMP+3}, 5, v{TMP+2}
    """)
    for r in range(8): k(f"v_mov_b32 v{SACC+r}, 0")
    for r in range(4): k(f"v_mov_b32 v{ONES+r}, 0x3f803f80")
    k(f"""
    s_mov_b32 s47, 0
    s_waitcnt vmcnt(0)
    s_barrier
    M_SL2:
    """)
    for u in range(8):
        r = FR + 4 * u
        if u == 7: k("s_waitcnt lgkmcnt(12)")
        k(f"ds_read_b64_tr_b16 v[{r}:{r+1}], v{XA} offset:{u*8192}")
        k(f"ds_read_b64_tr_b16 v[{r+2}:{r+3}], v{XA} offset:{u*8192+4096}")
    k(f"v_add_u32 v{XA}, 0x10000, v{XA}")
    for u in range(8):
        r = FR + 4 * u
        k(f"s_waitcnt lgkmcnt({14 - 2*u})")
        k(f"v_mfma_f32_16x16x32_bf16 v[{SACC}:{SACC+3}], v[{r}:{r+3}], v[{r}:{r+3}], v[{SACC}:{SACC+3}]")
        k(f"v_mfma_f32_16x16x32_bf16 v[{SACC+4}:{SACC+7}], v[{ONES}:{ONES+3}], v[{r}:{r+3}], v[{SACC+4}:{SACC+7}]")
    k(f"""
    s_add_u32 s47, s47, 1
    s_cmp_lt_u32 s47, 2
    s_cbranch_scc1 M_SL2
    v_and_b32 v{TMP}, 3, v{VT1}
    v_cmp_eq_u32 s[48:49], 1, v{TMP}
    v_cmp_eq_u32 s[50:51], 2, v{TMP}
    v_cmp_eq_u32 s[52:53], 3, v{TMP}
    v_lshrrev_b32 v{TMP}, 2, v{VT1}
    v_cmp_eq_u32 s[54:55], v{TMP}, v{VT2}
    v_cndmask_b32 v{SACC}, v{SACC}, v{SACC+1}, s[48:49]
    v_cndmask_b32 v{SACC}, v{SACC}, v{SACC+2}, s[50:51]
    v_cndmask_b32 v{SACC+5}, v{SACC}, v{SACC+3}, s[52:53]
    v_mov_b32 v{SACC+12}, v{SACC+4}
    v_mov_b32 v{SACC+13}, v{SACC+5}
    """)
    stats_pair(k, SACC+4, SACC+5, SACC+12, SACC+13, TMP, keep=(SACC+6, SACC+14))
    k(f"""
    v_lshrrev_b32 v{SACC+4}, 16, v{SACC+4}
    v_or_b32 v{SACC+4}, v{SACC+4}, v{SACC+6}
    v_lshlrev_b32 v{VSTX}, 2, v{VT1}
    s_lshl_b32 s41, s14, 9
    s_lshl_b32 s26, s17, 6
    s_add_u32 s41, s41, s26
    s_add_u32 s41, s41, s33
    s_mov_b64 exec, s[54:55]
    buffer_store_dword v{SACC+4}, v{VSTX}, s[8:11], s41 offen sc1
    s_mov_b64 exec, -1
    """)
    for p in res_parts: k(p)
    for i in range(22): k(wd_part(i))
    k(f"""
    s_barrier
    s_branch M_SYNC
    .p2align 8
    mlpb_kernel:
    s_mov_b32 s30, {X3T}
    s_mov_b32 s31, {HB1}
    s_mov_b32 s33, {STX + 0x2000}
    s_mov_b32 s34, {FLG + 0x8000}
    s_mov_b32 s35, 1
    @KID 5
    s_branch M_BODY
    """)
    info = dict(vgpr=NV + 88, sgpr=64, accum=NV, grid=256, block=512, lds=MLP_LDS)
    return k, info

DIAG_KN = {2: ("mlpa", 13), 5: ("mlpb", 13), 3: ("none", 1), 6: ("none", 1)}
def emit(path, launches=None):
    kp, ip = gen_prep()
    kc, ic = gen_conv()
    km, im = gen_mlp()
    infos = {"prep_kernel": ip, "conv1_kernel": ic, "conv2_kernel": ic, "mlpa_kernel": im, "mlpb_kernel": im}
    if os.environ.get("ORDER"): launches = [x + "_kernel" for x in os.environ["ORDER"].split(",")]
    order = launches or ["prep_kernel", "conv1_kernel", "mlpa_kernel", "conv2_kernel", "mlpb_kernel"]
    hdr = open("cdna_kernels/" + NAME + ".s.ref").read().split("; Override launch")[0]
    out = [hdr.rstrip("\n")]
    for n in order:
        i = infos[n]
        out.append(f"; @launch kernel={n} grid=({i['grid']},1,1) block=({i['block']},1,1) lds={i['lds']}")
    out.append('.amdgcn_target "amdgcn-amd-amdhsa--gfx950"\n.text')
    for n in infos:
        out.append(f".globl {n}\n.type {n},@function")
    out.append(".p2align 8\nprep_kernel:\n" + kp.text())
    for kk in (kc, km):
        out.append(".p2align 8\n" + kk.text())
    for n, i in infos.items():
        out.append(descriptor(n, i["vgpr"], 102 if DIAG else i["sgpr"], i["accum"]))
    open(path, "w").write("\n".join(out))

if __name__ == "__main__":
    emit(sys.argv[1] if len(sys.argv) > 1 else "cdna_kernels/" + NAME + ".s")
```

```python
import sys, struct, re
from asmlib import *

NAME = "interleave_layers__ssm_conv_s4d__glu_gated_glu__prompt"
KA_U, KA_LOGA, KA_AIM, KA_CRE, KA_CIM, KA_LOGDT, KA_DSKIP, KA_BX, KA_WG, KA_WU, KA_WD, KA_OUT, KA_DBG, KA_WS = [8 * i for i in range(14)]
XT0, X1T, X2T, X3T = 0x3000000, 0x3300000, 0x3600000, 0x3900000
ST0, ST1, CSUM = 0x0800000, 0x0804000, 0x0808000
WP = 0x0C00000
WD = 0x1000000
HB = 0x1200000
HB1 = 0x2200000
ZR = 0x0810000; STX = 0x0810000; FLG = 0x0820000
KP = 0x1800000; KCS = 4160; KP_STRIDE = 1536
WS_BYTES = 0x10000000
L, D, F, NST = 2048, 512, 1376, 128
NKS2 = 44
HKS = 45

import os
XP = int(os.environ.get('XP', '4352'))
PREP_W_POL = os.environ.get('PREP_W_POL', '')
PREP_K_POL = os.environ.get('PREP_K_POL', '')
PREP_X_POL = ''
PREP_PRIO = int(os.environ.get('PREP_PRIO', '0'))
CONV_ST = os.environ.get('CONV_ST', '')
X2_ST = os.environ.get('X2_ST', '')
F1_SLEEP = int(os.environ.get('F1_SLEEP', '8'))
CODEPF_BASE = int(os.environ.get('CODEPF_BASE', '0'))
CODEPF = int(os.environ.get('CODEPF', '1'))
DIAG = int(os.environ.get("DIAG", "0"))
DIAG_OFF = 0x4000000
_Kern = Kern
class Kern(_Kern):
    def __call__(self, s):
        for l in s.strip("\n").split("\n"):
            t = l.strip()
            if t.startswith("@CNTLOAD"):
                super().__call__("global_load_dword v59, v2, s[28:29] sc1")
                continue
            if t.startswith("@CODEPF"):
                if CODEPF:
                    super().__call__(f"""
                    s_sub_u32 s3, s2, {CODEPF_BASE}
                    s_cmp_ge_u32 s3, 8
                    s_cbranch_scc1 P_NOPF
                    s_getpc_b64 s[6:7]
                    v_lshlrev_b32 v1, 6, v0
                    global_load_dword v94, v1, s[6:7]
                    v_add_u32 v1, 0x4000, v1
                    global_load_dword v95, v1, s[6:7]
                    P_NOPF:
                    """)
                continue
            if t.startswith("@"):
                if not DIAG: continue
                p = t.split()
                if p[0] == "@KID":
                    super().__call__(f"s_mov_b32 s59, {DIAG_OFF + int(p[1]) * 0x80000}\ns_mov_b32 s57, {3 if int(p[1]) in (2, 5) else 2}")
                elif p[0] == "@INIT":
                    super().__call__("v_readfirstlane_b32 s58, v0\ns_memrealtime s[64:65]\ns_memtime s[66:67]")
                elif p[0] == "@STAMP":
                    i = int(p[1]); super().__call__(f"s_memtime s[{64+2*i}:{65+2*i}]")
                elif p[0] == "@FLUSH":
                    n = int(p[1])
                    super().__call__(f"""
                    s_waitcnt vmcnt(0)
                    s_memtime s[{64+2*n}:{65+2*n}]
                    s_memrealtime s[{66+2*n}:{67+2*n}]
                    s_waitcnt lgkmcnt(0)
                    s_mov_b64 exec, -1
                    s_lshr_b32 s58, s58, 6
                    s_lshl_b32 s61, s2, s57
                    s_add_u32 s60, s58, s61
                    s_lshl_b32 s60, s60, 6
                    s_add_u32 s60, s60, s59
                    v_mov_b32 v1, s60
                    """)
                    for i in range(n + 2):
                        super().__call__(f"v_mov_b32 v2, s{64+2*i}\nglobal_store_dword v1, v2, s[4:5] offset:{4*i}")
                    super().__call__("s_getreg_b32 s61, hwreg(HW_REG_XCC_ID)\nv_mov_b32 v2, s61\nglobal_store_dword v1, v2, s[4:5] offset:60")
                continue
            super().__call__(l)

def f2u(x): return struct.unpack("<I", struct.pack("<f", x))[0]
def fl(x): return "0x%08x" % f2u(x)
LOG2E = 1.4426950408889634
L2E_HI = struct.unpack("<f", struct.pack("<f", LOG2E))[0]
L2E_LO = LOG2E - L2E_HI
LN2 = 0.6931471805599453

def srd(k, s, base, nbytes):
    k(f"""
    s_mov_b32 s{s}, s{base}
    s_and_b32 s{s+1}, s{base+1}, 0xffff
    s_mov_b32 s{s+2}, {nbytes:#x}
    s_mov_b32 s{s+3}, 0x20000
    """)

def rnd_bf16(k, dst, a, b=None):
    k(f"v_cvt_pk_bf16_f32 v{dst}, v{a}, v{b if b is not None else a}")

def exp_acc(k, dst, x, t0, t1):
    k(f"""
    v_mul_f32 v{t0}, s40, v{x}
    v_fma_f32 v{t1}, s40, v{x}, -v{t0}
    v_fma_f32 v{t1}, s41, v{x}, v{t1}
    v_exp_f32 v{dst}, v{t0}
    v_mul_f32 v{t1}, s42, v{t1}
    v_fma_f32 v{dst}, v{dst}, v{t1}, v{dst}
    """)

N_K, N_T, N_W, N_D, N_C = 512, 256, 240, 176, 44
KLAST = int(os.environ.get('KLAST', '0'))
if KLAST:
    B_C = 0; B_W = B_C + N_C; B_T = B_W + N_W; B_D = B_T + N_T; B_E = B_D + N_D; B_K = 720; PREP_WGS = B_K + N_K
else:
    B_K = 0; B_C = N_K; B_W = B_C + N_C; B_T = B_W + N_W; B_D = B_T + N_T; B_E = B_D + N_D; PREP_WGS = B_E
PREP_LDS = 18432
PREP_GROUPS = [("prep.K", B_K, B_K + N_K, 6), ("prep.C", B_C, B_W, 2), ("prep.W", B_W, B_T, 2), ("prep.T", B_T, B_D, 2), ("prep.D", B_D, B_E, 2)]
CSU = 4576
KL = 2 * CSU
CRED = KL + 16640
CONV_LDS = CRED + 24576
CPF = int(os.environ.get('CPF', '1'))
CPF_STRIDE = int(os.environ.get('CPF_STRIDE', '128'))
SPIN_MAX = 1 << 20

class Remap:
    def __init__(self, k, voff, smap): self.k = k; self.voff = voff; self.smap = smap
    def __call__(self, t):
        def rv(m):
            if m.group(1): return f"v[{int(m.group(1))+self.voff}:{int(m.group(2))+self.voff}]"
            n = int(m.group(3)); return "v0" if n == 0 else f"v{n+self.voff}"
        t = re.sub(r"\bv\[(\d+):(\d+)\]|\bv(\d+)\b", rv, t)
        def rs(m):
            if m.group(1):
                a = int(m.group(1)); b = int(m.group(2))
                if a in self.smap: return f"s[{self.smap[a]}:{self.smap[a]+b-a}]"
                return m.group(0)
            n = int(m.group(3)); return f"s{self.smap.get(n, n)}"
        t = re.sub(r"\bs\[(\d+):(\d+)\]|\bs(\d+)\b", rs, t)
        self.k(t)
    def label(self, l): self.k.label(l)

class Remap2:
    def __init__(self, k, vmap): self.k = k; self.vmap = vmap
    def __call__(self, t):
        t = re.sub(r"\bv(\d+)\b", lambda m: f"v{self.vmap.get(int(m.group(1)), int(m.group(1)))}", t)
        self.k(t)

def conv_setup(k):
    k(f"""
    v_readfirstlane_b32 s17, v0
    s_mov_b32 s43, {fl(1.0/512)}
    s_mov_b32 s44, {fl(1e-5)}
    s_lshr_b32 s17, s17, 6                ; pi
    s_mul_i32 s12, s2, {XP}
    s_add_u32 s13, s12, s30
    s_add_u32 s14, s12, s32
    s_mul_i32 s15, s2, {KP_STRIDE}
    s_add_u32 s15, s15, {KP}
    s_lshr_b32 s16, s2, 1
    s_lshl_b32 s16, s16, 2
    v_lshlrev_b32 v1, 4, v0               ; tid*16
    v_and_b32 v3, 15, v0                  ; c / r
    v_bfe_u32 v4, v0, 4, 2                ; g
    v_and_b32 v5, 63, v0
    v_lshlrev_b32 v6, 4, v5               ; lane*16
    """)

def conv_loads(k, pol=""):
    k(f"""
    buffer_load_dwordx4 v[16:19], v1, s[8:11], s31 offen {pol}
    s_add_u32 s31, s31, 0x1000
    buffer_load_dwordx4 v[20:23], v1, s[8:11], s31 offen {pol}
    s_add_u32 s31, s31, 0x1000
    buffer_load_dwordx4 v[24:27], v1, s[8:11], s31 offen {pol}
    s_add_u32 s31, s31, 0x1000
    buffer_load_dwordx4 v[28:31], v1, s[8:11], s31 offen {pol}
    buffer_load_dwordx4 v[12:15], v1, s[8:11], s13 offen {pol}
    """)

def conv_p3(k):
    k(f"""
    v_mov_b32 v36, 0
    v_mov_b32 v37, 0
    v_mov_b32 v38, 0
    v_mov_b32 v39, 0
    v_bfe_u32 v9, v0, 2, 2
    v_mul_u32_u24 v9, {KCS}, v9
    v_and_b32 v10, 3, v0
    v_min_u32 v10, 2, v10
    v_lshl_add_u32 v9, v10, 4, v9
    ds_write_b128 v9, v[36:39] offset:{KL}
    v_lshlrev_b32 v40, 3, v0
    s_sub_u32 s19, s18, {2 * (0x4300 - 128)}
    """)
    for e in range(11):
        k(f"v_add_u32 v{48+e}, {e-3}, v40")
        if e < 3: k(f"v_max_i32 v{48+e}, 0, v{48+e}")
        k(f"v_cvt_f32_u32 v{60+e}, v{48+e}")
    for e in range(0, 11, 2):
        k(f"v_cvt_pk_bf16_f32 v{72+e//2}, v{60+e}, v{min(61+e, 70)}")
    for e in range(11):
        src = 72 + e // 2
        if e & 1: k(f"v_lshrrev_b32 v{60+e}, 16, v{src}")
        else: k(f"v_and_b32 v{60+e}, 0xffff, v{src}")
        k(f"v_lshl_add_u32 v{60+e}, v{60+e}, 1, s19")
        k(f"v_lshl_add_u32 v{48+e}, v{48+e}, 1, s18")
    k("v_cmp_gt_u32 s[24:25], 17, v0")
    for e in range(11):
        k(f"v_cndmask_b32 v{48+e}, v{60+e}, v{48+e}, s[24:25]")
    k(f"""
    s_and_b32 s21, s17, 1
    s_sub_u32 s22, 56, s21
    s_mul_i32 s21, s21, {CSU}
    v_min_u32 v9, s22, v5
    v_lshl_add_u32 v9, v9, 3, s21
    ds_write_b64 v9, v[36:37]
    v_and_b32 v9, 1, v3
    v_mul_u32_u24 v9, {CSU}, v9
    v_lshrrev_b32 v10, 1, v3
    v_lshlrev_b32 v11, 2, v10
    v_sub_u32 v11, v11, v4
    s_lshl_b32 s21, s17, 2
    s_sub_u32 s21, 15, s21
    v_add_u32 v11, s21, v11
    v_lshl_add_u32 v9, v11, 4, v9         ; v9 = u addr
    v_and_b32 v7, 3, v3
    v_mul_u32_u24 v7, {KCS}, v7
    v_lshrrev_b32 v8, 2, v3
    v_add_u32 v8, v8, v4
    v_lshl_add_u32 v7, v8, 4, v7
    s_lshl_b32 s21, s17, 6
    s_add_u32 s21, s21, {KL}
    v_add_u32 v7, s21, v7                 ; v7 = K addr
    v_xor_b32 v8, v4, v10
    v_and_b32 v8, 3, v8
    v_lshlrev_b32 v8, 1, v8
    v_lshl_add_u32 v8, v10, 3, v8
    v_and_b32 v11, 1, v3
    v_add_u32 v8, v8, v11
    s_lshl_b32 s21, s17, 11
    v_lshl_add_u32 v10, v8, 4, s21
    v_bfe_u32 v8, v0, 2, 3
    v_xor_b32 v11, v8, v0
    v_and_b32 v11, 3, v11
    v_lshlrev_b32 v11, 5, v11
    v_lshl_add_u32 v11, v8, 7, v11
    v_bfe_u32 v8, v0, 5, 1
    v_lshl_add_u32 v11, v8, 10, v11
    s_lshl_b32 s21, s17, 13
    s_add_u32 s21, s21, {CRED}
    s_cmp_eq_u32 s17, 3
    s_cselect_b32 s21, {KL}, s21
    v_add_u32 v11, s21, v11
    """)

def conv_expand(k):
    k("""
    v_cmp_eq_u32 vcc, 0, v0
    s_waitcnt lgkmcnt(0)
    v_cndmask_b32 v48, v48, v36, vcc
    v_cndmask_b32 v49, v49, v36, vcc
    v_cndmask_b32 v50, v50, v36, vcc
    """)
    for sft in range(4):
        for j in range(4):
            k(f"v_lshl_or_b32 v{64+4*sft+j}, v{48+sft+6-2*j}, 16, v{48+sft+7-2*j}")
        k(f"ds_write_b128 v1, v[{64+4*sft}:{67+4*sft}] offset:{KL + sft*KCS + 48}")

def conv_norm(k):
    for j in range(4):
        k(f"""
        v_lshlrev_b32 v40, 16, v{12+j}
        v_and_b32 v41, 0xffff0000, v{12+j}
        v_sub_f32 v40, v40, v{16+4*j}
        v_sub_f32 v41, v41, v{18+4*j}
        v_cvt_pk_bf16_f32 v41, v40, v41
        v_lshlrev_b32 v40, 16, v41
        v_and_b32 v41, 0xffff0000, v41
        v_mul_f32 v40, v40, v{17+4*j}
        v_mul_f32 v41, v41, v{19+4*j}
        v_cvt_pk_bf16_f32 v{32+j}, v40, v41
        """)
    k(f"""
    ds_write_b128 v1, v[32:35] offset:{CSU + 16*28}
    ds_write2_b64 v1, v[32:33], v[34:35] offset0:57 offset1:58
    """)

def gen_prep():
    k = Kern("prep_kernel")
    k(f"""
    @KID 0
    @INIT
    s_load_dwordx2 s[4:5], s[0:1], {KA_WS}
    @CODEPF
    s_sub_u32 s26, s2, {B_K}
    s_cmp_lt_u32 s26, {N_K}
    s_cbranch_scc1 P_KGEN
    s_setprio {PREP_PRIO}
    s_cmp_lt_u32 s2, {B_W}
    s_cbranch_scc1 P_C
    s_cmp_lt_u32 s2, {B_T}
    s_cbranch_scc1 P_W
    s_cmp_lt_u32 s2, {B_D}
    s_cbranch_scc1 P_TR
    s_cmp_lt_u32 s2, {B_E}
    s_cbranch_scc1 P_D
    s_endpgm
    """)
    k.label("P_KGEN")
    TB = 16384
    k(f"""
    s_load_dwordx4 s[8:11], s[0:1], {KA_LOGA}
    s_load_dwordx4 s[12:15], s[0:1], {KA_CRE}
    s_load_dwordx2 s[16:17], s[0:1], {KA_LOGDT}
    s_mov_b32 s40, {fl(L2E_HI)}
    s_mov_b32 s41, {fl(L2E_LO)}
    s_mov_b32 s42, {fl(LN2)}
    v_lshrrev_b32 v1, 1, v0
    v_and_b32 v1, 0x60, v1
    v_and_or_b32 v1, v0, 31, v1           ; n = 32 w + (lane & 31)
    s_lshl_b32 s3, s26, 8
    v_lshl_add_u32 v2, v1, 1, s3
    s_lshl_b32 s18, s26, 1
    v_mov_b32 v3, s18
    v_readfirstlane_b32 s19, v0
    s_lshr_b32 s19, s19, 6                ; wave
    s_waitcnt lgkmcnt(0)
    global_load_ushort v4, v2, s[8:9]
    global_load_ushort v8, v3, s[16:17]
    global_load_ushort v5, v2, s[10:11]
    global_load_ushort v6, v2, s[12:13]
    global_load_ushort v7, v2, s[14:15]
    v_and_b32 v20, 15, v0                 ; i / j
    v_bfe_u32 v21, v0, 4, 2               ; g
    ; hi0 = 128*(i>>3) + (i&7)
    v_lshrrev_b32 v23, 3, v20
    v_and_b32 v24, 7, v20
    v_lshl_add_u32 v23, v23, 7, v24
    v_cvt_f32_u32 v30, v23
    ; hi1 = (g''<2 ? 256+2g'' : 256*g'') + 128*((i>>1)&1) + 4*(i&1)
    v_lshrrev_b32 v23, 2, v20
    v_lshlrev_b32 v24, 1, v23
    v_add_u32 v24, 0x100, v24
    v_lshlrev_b32 v25, 8, v23
    v_cmp_gt_u32 vcc, 2, v23
    v_cndmask_b32 v24, v25, v24, vcc
    v_bfe_u32 v25, v20, 1, 1
    v_lshl_add_u32 v24, v25, 7, v24
    v_and_b32 v25, 1, v20
    v_lshl_add_u32 v24, v25, 2, v24
    v_cvt_f32_u32 v31, v24
    v_lshlrev_b32 v23, 7, v20
    v_add_u32 v23, 0x400, v23
    v_cvt_f32_u32 v32, v23                ; hi2
    v_lshlrev_b32 v23, 3, v20
    v_cvt_f32_u32 v33, v23                ; lo
    s_lshl_b32 s20, s19, 9
    v_lshl_add_u32 v34, v21, 6, s20
    v_lshrrev_b32 v23, 1, v21
    v_and_b32 v24, 1, v21
    v_lshlrev_b32 v24, 2, v24
    v_lshl_add_u32 v35, v23, 7, v24
    v_lshl_add_u32 v35, v20, 3, v35
    v_mov_b32 v36, 1
    v_mov_b32 v37, 2
    s_cmp_eq_u32 s19, 0
    s_cbranch_scc1 P_KA
    v_lshl_add_u32 v35, v21, 6, v20
    v_add_u32 v35, 0x200, v35
    v_mov_b32 v36, 16
    v_mov_b32 v37, 32
    s_cmp_lg_u32 s19, 1
    s_cbranch_scc1 P_KA
    v_lshl_add_u32 v23, v20, 2, v21
    v_add_u32 v23, 0x100, v23             ; seg1: 256 + g' + 4j ; o1=2 o2=64
    v_lshlrev_b32 v24, 6, v21
    v_lshl_add_u32 v24, v20, 1, v24
    v_add_u32 v24, 0x100, v24             ; seg2: 384 + 64(g'-2) + 2j ; o1=1 o2=32
    v_cmp_gt_u32 vcc, 2, v21
    v_cndmask_b32 v35, v24, v23, vcc
    v_cndmask_b32 v36, 1, 2, vcc
    v_cndmask_b32 v37, 32, 64, vcc
    P_KA:
    v_add_u32 v38, v36, v37
    v_add_lshl_u32 v36, v36, v35, 1
    v_add_lshl_u32 v37, v37, v35, 1
    v_add_lshl_u32 v38, v38, v35, 1
    v_lshlrev_b32 v35, 1, v35
    v_and_b32 v39, 63, v0
    v_lshlrev_b32 v39, 4, v39             ; lane*16
    s_waitcnt vmcnt(3)
    @STAMP 2
    v_lshlrev_b32 v4, 16, v4
    v_lshlrev_b32 v8, 16, v8
    """)
    exp_acc(k, 10, 8, 16, 17)
    exp_acc(k, 11, 4, 18, 19)
    k(f"""
    v_cvt_pk_bf16_f32 v10, v10, v11
    v_and_b32 v11, 0xffff0000, v10        ; eA
    v_lshlrev_b32 v10, 16, v10            ; dt
    v_mul_f32 v12, v11, v10
    v_mul_f32 v12, s40, v12
    v_sub_f32 v12, 0, v12
    s_waitcnt vmcnt(0)
    v_lshlrev_b32 v5, 16, v5
    v_lshlrev_b32 v6, 16, v6
    v_lshlrev_b32 v7, 16, v7
    v_mul_f32 v13, v5, v10
    v_mul_f32 v13, 0.15915494, v13
    v_add_f32 v10, v10, v10
    v_mul_f32 v14, v6, v10                ; 2*Cre*dt
    v_mul_f32 v15, v7, v10                ; 2*Cim*dt
    v_lshlrev_b32 v9, 4, v1
    ds_write_b128 v9, v[12:15]
    v_max3_f32 v16, |v14|, |v15|, 0
    v_max_f32_dpp v16, v16, v16 row_shr:1 row_mask:0xf bank_mask:0xf
    v_max_f32_dpp v16, v16, v16 row_shr:2 row_mask:0xf bank_mask:0xf
    v_max_f32_dpp v16, v16, v16 row_shr:4 row_mask:0xf bank_mask:0xf
    v_max_f32_dpp v16, v16, v16 row_shr:8 row_mask:0xf bank_mask:0xf
    v_max_f32_dpp v16, v16, v16 row_bcast:15 row_mask:0xa bank_mask:0xf
    v_readlane_b32 s23, v16, 31
    s_mov_b32 s20, 0
    @STAMP 3
    v_mov_b32 v16, s23
    v_bfe_u32 v16, v16, 23, 8
    v_max_u32 v16, 14, v16
    v_sub_u32 v17, 0x8c, v16
    v_cvt_f32_i32 v29, v17                ; kf = 140 - e'
    v_mov_b32 v28, 0
    v_subrev_u32 v16, 13, v16
    v_lshlrev_b32 v27, 23, v16            ; Sinv
    P_KLOOP:
    ds_read_b128 v[52:55], v34
    ds_read_b128 v[56:59], v34 offset:16
    ds_read_b128 v[60:63], v34 offset:32
    ds_read_b128 v[64:67], v34 offset:48
    v_add_u32 v34, 0x100, v34
    """)
    for nn in range(4):
        p = 52 + 4 * nn
        k(f"""
        s_waitcnt lgkmcnt({3-nn})
        v_pk_mul_f32 v[2:3], v[30:31], v[{p}:{p+1}] op_sel_hi:[1,0]
        v_pk_fma_f32 v[4:5], v[32:33], v[{p}:{p+1}], v[28:29] op_sel_hi:[1,0,1]
        v_pk_mul_f32 v[6:7], v[30:31], v[{p}:{p+1}] op_sel:[0,1] op_sel_hi:[1,1]
        v_pk_mul_f32 v[8:9], v[32:33], v[{p}:{p+1}] op_sel:[0,1] op_sel_hi:[1,1]
        v_exp_f32 v2, v2
        v_exp_f32 v3, v3
        v_exp_f32 v4, v4
        v_exp_f32 v5, v5
        v_fract_f32 v6, v6
        v_fract_f32 v7, v7
        v_fract_f32 v8, v8
        v_fract_f32 v9, v9
        v_cos_f32 v10, v6
        v_sin_f32 v11, v6
        v_cos_f32 v12, v7
        v_sin_f32 v13, v7
        v_cos_f32 v14, v8
        v_sin_f32 v15, v8
        v_cos_f32 v16, v9
        v_sin_f32 v17, v9
        v_pk_mul_f32 v[10:11], v[10:11], v[2:3] op_sel_hi:[1,0]
        v_pk_mul_f32 v[12:13], v[12:13], v[2:3] op_sel:[0,1] op_sel_hi:[1,1]
        v_pk_mul_f32 v[14:15], v[14:15], v[4:5] op_sel_hi:[1,0]
        v_pk_mul_f32 v[16:17], v[16:17], v[4:5] op_sel:[0,1] op_sel_hi:[1,1]
        v_cvt_pk_f16_f32 v{68+nn}, v10, v11
        v_cvt_pk_f16_f32 v{72+nn}, v12, v13
        v_cvt_pk_f16_f32 v{76+nn}, v14, v15
        v_pk_mul_f32 v[18:19], v[16:17], v[{p+2}:{p+3}] op_sel_hi:[1,0]
        v_pk_fma_f32 v[18:19], v[16:17], v[{p+2}:{p+3}], v[18:19] op_sel:[1,1,0] op_sel_hi:[0,1,1] neg_lo:[1,0,0]
        v_cvt_pk_f16_f32 v{80+nn}, v18, -v19
        """)
    k(f"""
    s_cmp_eq_u32 s20, 1
    s_cbranch_scc1 P_KL2
    v_mfma_f32_16x16x32_f16 v[40:43], v[68:71], v[80:83], 0
    v_mfma_f32_16x16x32_f16 v[44:47], v[72:75], v[80:83], 0
    v_mfma_f32_16x16x32_f16 v[48:51], v[76:79], v[80:83], 0
    s_mov_b32 s20, 1
    s_branch P_KLOOP
    P_KL2:
    v_mfma_f32_16x16x32_f16 v[40:43], v[68:71], v[80:83], v[40:43]
    v_mfma_f32_16x16x32_f16 v[44:47], v[72:75], v[80:83], v[44:47]
    v_mfma_f32_16x16x32_f16 v[48:51], v[76:79], v[80:83], v[48:51]
    @STAMP 4
    s_mul_i32 s20, s19, 3072
    v_add_u32 v2, s20, v39
    s_lshl_b32 s20, s19, 10
    v_add_u32 v3, s20, v39
    """)
    k("v_mov_b32 v26, v27")
    for r in range(40, 52, 2): k(f"v_pk_mul_f32 v[{r}:{r+1}], v[{r}:{r+1}], v[26:27]")
    k(f"""
    ds_write_b128 v2, v[40:43] offset:4096
    ds_write_b128 v2, v[44:47] offset:5120
    ds_write_b128 v2, v[48:51] offset:6144
    s_mul_i32 s3, s26, {KP_STRIDE}
    s_add_u32 s3, s3, {KP}
    v_lshlrev_b32 v1, 4, v0
    v_add_u32 v8, s3, v1
    s_waitcnt lgkmcnt(0)
    s_barrier
    s_cmp_eq_u32 s19, 3
    s_cbranch_scc1 P_KS
    ds_read_b128 v[40:43], v3 offset:4096
    ds_read_b128 v[44:47], v3 offset:{4096+3072}
    ds_read_b128 v[48:51], v3 offset:{4096+6144}
    ds_read_b128 v[4:7], v3 offset:{4096+9216}
    s_waitcnt lgkmcnt(2)
    v_pk_add_f32 v[40:41], v[40:41], v[44:45]
    v_pk_add_f32 v[42:43], v[42:43], v[46:47]
    s_waitcnt lgkmcnt(0)
    v_pk_add_f32 v[48:49], v[48:49], v[4:5]
    v_pk_add_f32 v[50:51], v[50:51], v[6:7]
    v_pk_add_f32 v[40:41], v[40:41], v[48:49]
    v_pk_add_f32 v[42:43], v[42:43], v[50:51]
    v_cvt_pk_bf16_f32 v40, v40, v41
    v_cvt_pk_bf16_f32 v42, v42, v43
    ds_write_b16 v35, v40 offset:{TB}
    ds_write_b16_d16_hi v36, v40 offset:{TB}
    ds_write_b16 v37, v42 offset:{TB}
    ds_write_b16_d16_hi v38, v42 offset:{TB}
    P_KS:
    s_waitcnt lgkmcnt(0)
    s_barrier
    @STAMP 5
    v_cmp_gt_u32 vcc, 0x60, v0
    s_and_saveexec_b64 s[22:23], vcc
    s_cbranch_execz P_KEND
    ds_read_b128 v[40:43], v1 offset:{TB}
    s_waitcnt lgkmcnt(0)
    global_store_dwordx4 v8, v[40:43], s[4:5]
    P_KEND:
    @FLUSH 6
    s_endpgm
    """)
    k.label("P_TR")
    PITCH = 144
    k(f"""
    s_load_dwordx2 s[8:9], s[0:1], {KA_U}
    s_sub_u32 s3, s2, {B_T}
    s_lshr_b32 s10, s3, 3                 ; lt (0..31)
    s_and_b32 s11, s3, 7                  ; dt (0..7)
    v_lshrrev_b32 v1, 3, v0               ; row 0..31
    v_and_b32 v2, 7, v0                   ; chunk
    s_lshl_b32 s12, s10, 16               ; lt*64*1024
    s_lshl_b32 s13, s11, 7
    s_add_u32 s12, s12, s13
    v_lshlrev_b32 v3, 10, v1
    v_lshl_add_u32 v3, v2, 4, v3
    v_add_u32 v3, s12, v3
    v_add_u32 v4, 0x8000, v3
    s_waitcnt lgkmcnt(0)
    global_load_dwordx4 v[8:11], v3, s[8:9]
    global_load_dwordx4 v[12:15], v4, s[8:9]
    v_lshrrev_b32 v41, 6, v0
    v_and_b32 v42, 63, v0
    s_lshl_b32 s14, s3, 13                ; 8 rows * 1024
    v_lshlrev_b32 v43, 11, v41
    v_lshl_add_u32 v43, v42, 4, v43
    v_add_u32 v43, s14, v43
    global_load_dwordx4 v[48:51], v43, s[8:9]
    global_load_dwordx4 v[52:55], v43, s[8:9] offset:1024
    v_mul_u32_u24 v5, {PITCH}, v1
    v_lshl_add_u32 v5, v2, 4, v5
    v_and_b32 v6, 15, v0                  ; lam
    v_bfe_u32 v7, v0, 4, 2                ; g
    v_lshrrev_b32 v16, 6, v0              ; w
    v_lshrrev_b32 v17, 2, v6              ; r = lam>>2
    v_lshl_add_u32 v17, v7, 3, v17        ; row = 8g + r
    v_mul_u32_u24 v17, {PITCH}, v17
    v_and_b32 v18, 3, v6
    v_lshl_add_u32 v17, v18, 3, v17       ; + c*8
    v_lshl_add_u32 v17, v16, 5, v17       ; + w*32 bytes
    s_mul_i32 s12, s11, {64*XP}
    s_lshl_b32 s13, s10, 7
    s_add_u32 s12, s12, s13
    s_add_u32 s12, s12, {XT0}
    v_lshl_add_u32 v19, v16, 4, v6
    v_mul_u32_u24 v19, {XP}, v19
    v_lshl_add_u32 v19, v7, 4, v19
    v_add_u32 v19, s12, v19
    s_waitcnt vmcnt(2)
    ds_write_b128 v5, v[8:11]
    ds_write_b128 v5, v[12:15] offset:{32*PITCH}
    s_waitcnt lgkmcnt(0)
    s_barrier
    ds_read_b64_tr_b16 v[8:9], v17
    ds_read_b64_tr_b16 v[10:11], v17 offset:{4*PITCH}
    ds_read_b64_tr_b16 v[12:13], v17 offset:{32*PITCH}
    ds_read_b64_tr_b16 v[14:15], v17 offset:{36*PITCH}
    s_waitcnt lgkmcnt(0)
    global_store_dwordx4 v19, v[8:11], s[4:5] {PREP_X_POL}
    global_store_dwordx4 v19, v[12:15], s[4:5] offset:64 {PREP_X_POL}
    """)
    k(f"""
    v_mov_b32 v2, v42
    s_lshl_b32 s10, s3, 4
    v_lshlrev_b32 v4, 12, v41
    v_add_u32 v4, s10, v4                 ; w*4096 + wg*16
    v_add_u32 v5, {ST0}, v4
    v_add_u32 v6, {ST1}, v4
    s_waitcnt vmcnt(2)
    """)
    for row, (base, sm, sq) in enumerate([(48, 20, 21), (52, 22, 23)]):
        for j in range(4):
            k(f"v_lshlrev_b32 v16, 16, v{base+j}")
            k(f"v_and_b32 v17, 0xffff0000, v{base+j}")
            if j == 0:
                k(f"v_add_f32 v{sm}, v16, v17")
                k(f"v_mul_f32 v{sq}, v16, v16")
            else:
                k(f"v_add_f32 v{sm}, v{sm}, v16")
                k(f"v_add_f32 v{sm}, v{sm}, v17")
                k(f"v_fmac_f32 v{sq}, v16, v16")
            k(f"v_fmac_f32 v{sq}, v17, v17")
    for sh in ("row_shr:1", "row_shr:2", "row_shr:4", "row_shr:8"):
        for r in range(20, 24):
            k(f"v_add_f32_dpp v{r}, v{r}, v{r} {sh} row_mask:0xf bank_mask:0xf bound_ctrl:0")
    for r in range(20, 24):
        k(f"v_add_f32_dpp v{r}, v{r}, v{r} row_bcast:15 row_mask:0xa bank_mask:0xf")
    for r in range(20, 24):
        k(f"v_add_f32_dpp v{r}, v{r}, v{r} row_bcast:31 row_mask:0xc bank_mask:0xf")
    k(f"""
    v_mov_b32 v24, 0
    v_mov_b32 v25, 0
    v_mov_b32 v26, 0
    v_mov_b32 v27, 0
    s_lshl_b32 s10, s3, 9
    s_add_u32 s10, s10, {ZR}
    v_and_b32 v7, 31, v0
    v_lshl_add_u32 v7, v7, 4, s10
    global_store_dwordx4 v7, v[24:27], s[4:5]
    v_cmp_eq_u32 vcc, 63, v2
    s_and_saveexec_b64 s[22:23], vcc
    global_store_dwordx4 v5, v[20:23], s[4:5]
    global_store_dwordx4 v6, v[24:27], s[4:5]
    @FLUSH 2
    s_endpgm
    """)
    k.label("P_W")
    WPITCH = 400
    k(f"""
    s_load_dwordx4 s[8:11], s[0:1], {KA_WG}
    s_sub_u32 s3, s2, {B_W}
    s_lshr_b32 s12, s3, 4                 ; ft
    s_and_b32 s13, s3, 15                 ; s
    """)
    k(f"""
    s_mul_i32 s14, s13, {32*F*2}
    s_mul_i32 s15, s12, 192
    s_add_u32 s14, s14, s15
    s_mul_i32 s16, s12, 12
    s_mov_b32 s17, 0x15555556
    """)
    k(f"v_mov_b32 v5, {F//8}")
    for i in range(2):
        k(f"""
        v_add_u32 v1, {256*i}, v0
        v_mul_hi_u32 v2, v1, s17
        v_mul_u32_u24 v3, 12, v2
        v_sub_u32 v3, v1, v3                  ; chunk
        v_mul_u32_u24 v4, {F*2}, v2
        v_lshl_add_u32 v4, v3, 4, v4
        v_add_u32 v{40+i}, s14, v4
        v_mul_u32_u24 v4, {WPITCH}, v2
        v_lshl_add_u32 v{42+i}, v3, 5, v4
        v_add_u32 v3, s16, v3
        v_cmp_gt_u32 s[{24+2*i}:{25+2*i}], v5, v3
        """)
    for r in range(8, 24): k(f"v_mov_b32 v{r}, 0")
    k(f"""
    v_cmp_gt_u32 vcc, 0x80, v0
    s_and_b64 s[26:27], s[26:27], vcc
    s_waitcnt lgkmcnt(0)
    s_mov_b64 s[28:29], exec
    s_mov_b64 exec, s[24:25]
    s_cbranch_execz P_W1
    global_load_dwordx4 v[8:11], v40, s[8:9]
    global_load_dwordx4 v[12:15], v40, s[10:11]
    P_W1:
    s_mov_b64 exec, s[26:27]
    s_cbranch_execz P_W2
    global_load_dwordx4 v[16:19], v41, s[8:9]
    global_load_dwordx4 v[20:23], v41, s[10:11]
    P_W2:
    s_mov_b64 exec, s[28:29]
    s_waitcnt vmcnt(0)
    ds_write2_b32 v42, v8, v9 offset0:0 offset1:2
    ds_write2_b32 v42, v10, v11 offset0:4 offset1:6
    ds_write2_b32 v42, v12, v13 offset0:1 offset1:3
    ds_write2_b32 v42, v14, v15 offset0:5 offset1:7
    s_and_saveexec_b64 s[28:29], vcc
    s_cbranch_execz P_W3
    ds_write2_b32 v43, v16, v17 offset0:0 offset1:2
    ds_write2_b32 v43, v18, v19 offset0:4 offset1:6
    ds_write2_b32 v43, v20, v21 offset0:1 offset1:3
    ds_write2_b32 v43, v22, v23 offset0:5 offset1:7
    P_W3:
    s_mov_b64 exec, s[28:29]
    v_and_b32 v1, 15, v0
    v_bfe_u32 v2, v0, 4, 2
    v_lshrrev_b32 v3, 2, v1
    v_lshl_add_u32 v3, v2, 2, v3
    v_mul_u32_u24 v3, {WPITCH}, v3
    v_and_b32 v4, 3, v1
    v_lshl_add_u32 v3, v4, 3, v3
    v_readfirstlane_b32 s18, v0
    s_lshr_b32 s18, s18, 6                ; w
    s_lshl_b32 s19, s18, 7
    s_mov_b32 s20, 32
    s_cmp_eq_u32 s18, 3
    s_cselect_b32 s19, 96, s19
    s_cselect_b32 s20, 128, s20
    v_add_u32 v3, s19, v3
    v_add_u32 v4, s20, v3
    v_add_u32 v5, s20, v4
    s_lshl_b32 s21, s12, 2
    s_add_u32 s21, s21, s18
    s_lshl_b32 s21, s21, 4
    s_add_u32 s21, s21, s13
    s_mul_i32 s21, s21, 3072
    s_add_u32 s21, s21, {WP}
    v_and_b32 v6, 63, v0
    v_lshlrev_b32 v6, 4, v6
    v_add_u32 v6, s21, v6
    v_add_u32 v7, 0x400, v6
    v_add_u32 v24, 0x800, v6
    s_waitcnt lgkmcnt(0)
    s_barrier
    ds_read_b64_tr_b16 v[8:9], v3
    ds_read_b64_tr_b16 v[10:11], v3 offset:{16*WPITCH}
    ds_read_b64_tr_b16 v[12:13], v4
    ds_read_b64_tr_b16 v[14:15], v4 offset:{16*WPITCH}
    ds_read_b64_tr_b16 v[16:17], v5
    ds_read_b64_tr_b16 v[18:19], v5 offset:{16*WPITCH}
    s_waitcnt lgkmcnt(0)
    global_store_dwordx4 v6, v[8:11], s[4:5] {PREP_W_POL}
    global_store_dwordx4 v7, v[12:15], s[4:5] {PREP_W_POL}
    global_store_dwordx4 v24, v[16:19], s[4:5] {PREP_W_POL}
    @FLUSH 2
    s_endpgm
    """)
    k.label("P_D")
    DPITCH = 272
    k(f"""
    s_load_dwordx2 s[8:9], s[0:1], {KA_WD}
    s_sub_u32 s3, s2, {B_D}
    s_lshr_b32 s12, s3, 2                 ; ks 0..43
    s_and_b32 s13, s3, 3                  ; dq
    v_lshrrev_b32 v1, 4, v0               ; row 0..15 (+16)
    v_and_b32 v2, 15, v0                  ; chunk
    s_lshl_b32 s14, s12, 15               ; ks*32*1024
    s_lshl_b32 s15, s13, 8
    s_add_u32 s14, s14, s15
    v_lshlrev_b32 v3, 10, v1
    v_lshl_add_u32 v3, v2, 4, v3
    v_add_u32 v3, s14, v3
    v_add_u32 v4, 0x4000, v3
    """)
    for r in range(8, 16): k(f"v_mov_b32 v{r}, 0")
    k(f"""
    s_waitcnt lgkmcnt(0)
    s_cmp_ge_u32 s12, 43
    s_cbranch_scc1 P_D1
    global_load_dwordx4 v[8:11], v3, s[8:9]
    global_load_dwordx4 v[12:15], v4, s[8:9]
    P_D1:
    v_bfe_u32 v5, v1, 1, 2                ; g
    v_lshrrev_b32 v6, 3, v1               ; dw (0/1)
    v_and_b32 v7, 1, v1
    v_lshl_add_u32 v7, v6, 1, v7
    v_lshl_add_u32 v7, v5, 3, v7          ; rho
    v_mul_u32_u24 v7, {DPITCH}, v7
    v_lshl_add_u32 v7, v2, 4, v7
    v_and_b32 v1, 15, v0
    v_bfe_u32 v2, v0, 4, 2
    v_lshrrev_b32 v16, 6, v0
    v_lshrrev_b32 v3, 2, v1
    v_lshl_add_u32 v3, v2, 3, v3          ; row = 8g + r
    v_mul_u32_u24 v3, {DPITCH}, v3
    v_and_b32 v4, 3, v1
    v_lshl_add_u32 v3, v4, 3, v3          ; + c*8 bytes (4 d)
    v_lshl_add_u32 v3, v16, 6, v3         ; + w*64
    s_lshl_b32 s16, s13, 3
    v_lshl_add_u32 v17, v16, 1, s16
    v_mul_u32_u24 v17, {NKS2*1024}, v17
    v_and_b32 v18, 63, v0
    v_lshl_add_u32 v17, v18, 4, v17
    s_lshl_b32 s16, s12, 10
    s_add_u32 s16, s16, {WD}
    v_add_u32 v17, s16, v17
    v_add_u32 v18, {NKS2*1024}, v17
    s_waitcnt vmcnt(0)
    ds_write_b128 v7, v[8:11]
    ds_write_b128 v7, v[12:15] offset:{4*DPITCH}
    s_waitcnt lgkmcnt(0)
    s_barrier
    ds_read_b64_tr_b16 v[8:9], v3
    ds_read_b64_tr_b16 v[10:11], v3 offset:{4*DPITCH}
    ds_read_b64_tr_b16 v[12:13], v3 offset:32
    ds_read_b64_tr_b16 v[14:15], v3 offset:{4*DPITCH+32}
    s_waitcnt lgkmcnt(0)
    global_store_dwordx4 v17, v[8:11], s[4:5] {PREP_W_POL}
    global_store_dwordx4 v18, v[12:15], s[4:5] {PREP_W_POL}
    @FLUSH 2
    s_endpgm
    """)
    k.label("P_C")
    k(f"""
    s_load_dwordx4 s[8:11], s[0:1], {KA_WG}
    s_sub_u32 s3, s2, {B_C}
    s_and_b32 s12, s3, 1                  ; mat
    s_lshr_b32 s13, s3, 1                 ; cb 0..21
    v_lshrrev_b32 v1, 3, v0
    v_and_b32 v2, 7, v0                   ; chunk
    s_lshl_b32 s14, s13, 3
    v_add_u32 v3, s14, v2
    v_mul_u32_u24 v4, {F*2}, v1
    v_lshl_add_u32 v4, v3, 4, v4
    s_waitcnt lgkmcnt(0)
    s_cmp_eq_u32 s12, 1
    s_cselect_b32 s8, s10, s8
    s_cselect_b32 s9, s11, s9
    v_mov_b32 v5, {F//8}
    v_cmp_gt_u32 vcc, v5, v3
    """)
    for r in range(8, 16): k(f"v_mov_b32 v{r}, 0")
    k("""
    s_and_saveexec_b64 s[28:29], vcc
    s_cbranch_execz P_C2
    """)
    for i in range(16):
        k(f"global_load_dwordx4 v[{16+4*i}:{19+4*i}], v4, s[8:9]")
        if i < 15: k(f"v_add_u32 v4, {32*F*2}, v4")
    for i in range(16):
        k(f"s_waitcnt vmcnt({15-i})")
        for j in range(4):
            k(f"v_lshlrev_b32 v6, 16, v{16+4*i+j}")
            k(f"v_and_b32 v7, 0xffff0000, v{16+4*i+j}")
            k(f"v_add_f32 v{8+2*j}, v{8+2*j}, v6")
            k(f"v_add_f32 v{9+2*j}, v{9+2*j}, v7")
    k(f"""
    P_C2:
    s_mov_b64 exec, s[28:29]
    v_lshlrev_b32 v6, 5, v0
    ds_write_b128 v6, v[8:11]
    ds_write_b128 v6, v[12:15] offset:16
    s_waitcnt lgkmcnt(0)
    s_barrier
    v_cmp_gt_u32 vcc, 64, v0
    s_and_saveexec_b64 s[28:29], vcc
    s_cbranch_execz P_C3
    v_lshlrev_b32 v6, 2, v0
    """)
    for i in range(32):
        k(f"ds_read_b32 v{16+i}, v6 offset:{256*i}")
    k("s_waitcnt lgkmcnt(0)")
    for i in range(1, 32):
        k(f"v_add_f32 v16, v16, v{16+i}")
    k(f"""
    s_lshl_b32 s14, s13, 6
    v_add_u32 v1, s14, v0                 ; f
    s_mov_b32 s17, 0x2aaaaab
    v_mul_hi_u32 v2, v1, s17              ; ft
    v_mul_u32_u24 v3, 96, v2
    v_sub_u32 v3, v1, v3                  ; rem
    v_lshrrev_b32 v4, 5, v3               ; j
    v_bfe_u32 v5, v3, 3, 2                ; dw
    v_mul_u32_u24 v7, 3, v4
    v_add_u32 v7, v7, v5                  ; 3j + dw
    v_add_u32 v8, 9, v4                   ; 9 + j
    v_cmp_eq_u32 vcc, 3, v5
    v_cndmask_b32 v7, v7, v8, vcc         ; w*3+tau
    v_mul_u32_u24 v8, 12, v2
    v_add_u32 v7, v7, v8
    v_lshlrev_b32 v7, 4, v7
    v_bfe_u32 v8, v3, 1, 2
    v_lshl_add_u32 v7, v8, 2, v7
    v_and_b32 v8, 1, v3
    v_add_u32 v7, v7, v8
    s_lshl_b32 s14, s12, 1
    v_add_u32 v7, s14, v7
    v_lshlrev_b32 v7, 2, v7
    v_add_u32 v7, {CSUM}, v7
    global_store_dword v7, v16, s[4:5]
    s_cmp_lg_u32 s13, 21
    s_cbranch_scc1 P_C3
    v_cmp_gt_u32 vcc, 32, v0
    s_and_b64 exec, exec, vcc
    v_bfe_u32 v5, v0, 3, 2
    v_add_u32 v7, 6, v5
    v_cmp_eq_u32 vcc, 3, v5
    v_cndmask_b32 v7, v7, 11, vcc
    v_add_u32 v7, {14*12}, v7
    v_lshlrev_b32 v7, 4, v7
    v_bfe_u32 v8, v0, 1, 2
    v_lshl_add_u32 v7, v8, 2, v7
    v_and_b32 v8, 1, v0
    v_add_u32 v7, v7, v8
    v_add_u32 v7, s14, v7
    v_lshlrev_b32 v7, 2, v7
    v_add_u32 v7, {CSUM}, v7
    v_mov_b32 v16, 0
    global_store_dword v7, v16, s[4:5]
    P_C3:
    @FLUSH 2
    s_endpgm
    """)
    return k, dict(vgpr=96, sgpr=48, accum=96, grid=PREP_WGS, block=256, lds=PREP_LDS)


def stats_pair(k, sa, qa, sb, qb, t, keep=None):
    for s_, q_ in ((sa, qa), (sb, qb)):
        k(f"""
        v_mul_f32 v{s_}, s43, v{s_}
        v_mul_f32 v{q_}, s43, v{q_}
        v_fma_f32 v{q_}, -v{s_}, v{s_}, v{q_}
        v_max_f32 v{q_}, 0, v{q_}
        v_cvt_pk_bf16_f32 v{q_}, v{s_}, v{q_}
        v_lshlrev_b32 v{s_}, 16, v{q_}
        v_and_b32 v{q_}, 0xffff0000, v{q_}
        v_add_f32 v{q_}, s44, v{q_}
        """)
    k(f"""
    v_cvt_pk_bf16_f32 v{t}, v{qa}, v{qb}
    v_lshlrev_b32 v{qa}, 16, v{t}
    v_and_b32 v{qb}, 0xffff0000, v{t}
    v_sqrt_f32 v{qa}, v{qa}
    v_sqrt_f32 v{qb}, v{qb}
    v_cvt_pk_bf16_f32 v{t}, v{qa}, v{qb}
    v_lshlrev_b32 v{keep[0] if keep else qa}, 16, v{t}
    v_and_b32 v{keep[1] if keep else qb}, 0xffff0000, v{t}
    v_rcp_f32 v{qa}, v{keep[0] if keep else qa}
    v_rcp_f32 v{qb}, v{keep[1] if keep else qb}
    """)


def gen_conv():
    k = Kern("conv")
    k(f"""
    conv1_kernel:
    s_mov_b32 s30, {XT0}
    s_mov_b32 s31, {ST0}
    s_mov_b32 s32, {X1T}
    @KID 1
    CONV_BODY:
    s_cmp_ge_u32 s2, 512
    s_cbranch_scc1 CONV_END
    @INIT
    s_load_dwordx2 s[4:5], s[0:1], {KA_WS}
    s_load_dwordx2 s[6:7], s[0:1], {KA_DSKIP}
    """)
    conv_setup(k)
    k(f"""
    s_lshl_b32 s18, s17, 11
    s_add_u32 s18, s18, {CRED}
    """)
    conv_p3(k)
    k("""
    @STAMP 10
    s_waitcnt lgkmcnt(0)
    @STAMP 11
    s_load_dword s20, s[6:7], s16
    """)
    srd(k, 8, 4, WS_BYTES)
    k(f"""
    s_mov_b32 m0, s18
    s_nop 0
    buffer_load_dwordx4 v6, s[8:11], s15 offen lds
    buffer_load_dwordx4 v6, s[8:11], s15 offen offset:1024 lds
    """)
    conv_loads(k)
    k("""
    @STAMP 12
    @STAMP 2
    s_waitcnt vmcnt(5)
    """)
    for e in range(11):
        k(f"ds_read_u16 v{48+e}, v{48+e}")
    conv_expand(k)
    k("""
    s_waitcnt vmcnt(1)
    @STAMP 3
    """)
    for i in range(4):
        stats_pair(k, 16 + 4*i, 17 + 4*i, 18 + 4*i, 19 + 4*i, 40)
    k("s_waitcnt vmcnt(0)")
    conv_norm(k)
    if CPF:
        k(f"""
        s_lshr_b32 s21, s2, 3
        s_lshl_b32 s21, s21, 2
        s_add_u32 s21, s21, s17
        s_mul_i32 s22, s21, 6144
        s_and_b32 s23, s2, 1
        s_mul_i32 s23, s23, {8*196608}
        s_add_u32 s22, s22, s23
        s_add_u32 s22, s22, {WP}
        v_mul_u32_u24 v38, {CPF_STRIDE}, v5
        """)
        for j in range(-(-6144 // (64 * CPF_STRIDE))):
            k(f"buffer_load_dword v39, v38, s[8:11], s22 offen\ns_add_u32 s22, s22, {64*CPF_STRIDE}")
    k("""
    @STAMP 4
    s_waitcnt lgkmcnt(0)
    s_barrier
    CONV_MAIN2:
    @STAMP 5
    """)
    KF = 48; UB = 16; ACC = 112
    pend = []
    def rd(tag):
        if tag[0] == "U":
            mu = int(tag[1:]); r = UB + 4 * (mu & 3)
            k(f"ds_read_b128 v[{r}:{r+3}], v9 offset:{256*mu}")
        else:
            t = int(tag[1:]); r = KF + 4 * t
            k(f"ds_read_b128 v[{r}:{r+3}], v7 offset:{256*t}")
        pend.append(tag)
    def need(tags):
        idx = max([pend.index(t) for t in tags if t in pend], default=-1)
        if idx >= 0:
            k(f"s_waitcnt lgkmcnt({len(pend) - idx - 1})")
            del pend[:idx + 1]
    queue = ["U0"] + [f"K{t}" for t in range(1, 16, 2)] + ["U1"] + [f"K{t}" for t in range(0, 16, 2)] + ["U2", "U3"]
    for t in queue[:12]: rd(t)
    queue = queue[12:]
    for mu in range(16):
        a = UB + 4 * (mu & 3)
        q0 = max(0, -(-(mu - 1) // 2))
        for q in range(q0, 8):
            tp = 2 * q + 1 - mu
            need([f"U{mu}", f"K{tp}"])
            c = "0" if mu == 0 else f"v[{ACC+4*q}:{ACC+4*q+3}]"
            k(f"v_mfma_f32_16x16x32_bf16 v[{ACC+4*q}:{ACC+4*q+3}], v[{KF+4*tp}:{KF+4*tp+3}], v[{a}:{a+3}], {c}")
            if queue: rd(queue.pop(0))
        if mu + 4 < 16: rd(f"U{mu+4}")
        if mu & 1 and mu >= 3:
            q = (mu - 3) // 2
            k(f"ds_write_b128 v10, v[{ACC+4*q}:{ACC+4*q+3}] offset:{(CRED + (q>>1)*8192 if q < 6 else KL) + (q&1)*1024}")
            pend.append("W")
        if mu == 6:
            assert not any(t[0] == "K" for t in pend + queue)
            k("s_barrier")
    k("@STAMP 6")
    k(f"""
    s_and_b32 s21, s20, 0xffff0000
    s_lshl_b32 s20, s20, 16
    s_bitcmp1_b32 s2, 0
    s_cselect_b32 s20, s21, s20
    """)
    for p in range(4):
        k(f"""
        v_lshlrev_b32 v40, 16, v{32+p}
        v_and_b32 v41, 0xffff0000, v{32+p}
        v_mul_f32 v40, s20, v40
        v_mul_f32 v41, s20, v41
        v_cvt_pk_bf16_f32 v41, v40, v41
        """)
        if p == 0:
            k(f"ds_write_b128 v10, v[{ACC+28}:{ACC+31}] offset:{KL + 1024}")
        k(f"""
        v_lshlrev_b32 v{48+2*p}, 16, v41
        v_and_b32 v{49+2*p}, 0xffff0000, v41
        v_lshlrev_b32 v{56+2*p}, 16, v{12+p}
        v_and_b32 v{57+2*p}, 0xffff0000, v{12+p}
        """)
    k("""
    s_waitcnt lgkmcnt(0)
    s_barrier
    @STAMP 7
    """)
    for src in range(4):
        for t in range(2):
            k(f"ds_read_b128 v[{ACC+8*src+4*t}:{ACC+8*src+4*t+3}], v11 offset:{src*2048 + t*16}")
    k("s_waitcnt lgkmcnt(4)")
    for r in range(0, 8, 2):
        k(f"v_pk_add_f32 v[{ACC+r}:{ACC+r+1}], v[{ACC+r}:{ACC+r+1}], v[{ACC+8+r}:{ACC+9+r}]")
    k("s_waitcnt lgkmcnt(0)")
    for r in range(0, 8, 2):
        k(f"v_pk_add_f32 v[{ACC+16+r}:{ACC+17+r}], v[{ACC+16+r}:{ACC+17+r}], v[{ACC+24+r}:{ACC+25+r}]")
    for r in range(0, 8, 2):
        k(f"v_pk_add_f32 v[{ACC+r}:{ACC+r+1}], v[{ACC+r}:{ACC+r+1}], v[{ACC+16+r}:{ACC+17+r}]")
    k("@STAMP 8")
    for p in range(4):
        y0, y1 = ACC + 2*p, ACC + 2*p + 1
        k(f"""
        v_cvt_pk_bf16_f32 v{y1}, v{y0}, v{y1}
        v_lshlrev_b32 v{y0}, 16, v{y1}
        v_and_b32 v{y1}, 0xffff0000, v{y1}
        v_pk_add_f32 v[{y0}:{y1}], v[{y0}:{y1}], v[{48+2*p}:{49+2*p}]
        v_cvt_pk_bf16_f32 v{y1}, v{y0}, v{y1}
        v_lshlrev_b32 v{y0}, 16, v{y1}
        v_and_b32 v{y1}, 0xffff0000, v{y1}
        v_pk_add_f32 v[{y0}:{y1}], v[{y0}:{y1}], v[{56+2*p}:{57+2*p}]
        v_cvt_pk_bf16_f32 v{44+p}, v{y0}, v{y1}
        """)
    k(f"""
    buffer_store_dwordx4 v[44:47], v1, s[8:11], s14 offen {CONV_ST}
    @STAMP 9
    @FLUSH 13
    CONV_END:
    s_endpgm
    .p2align 8
    conv2_kernel:
    s_mov_b32 s30, {X2T}
    s_mov_b32 s31, {ST1}
    s_mov_b32 s32, {X3T}
    @KID 4
    s_branch CONV_BODY
    """)
    info = dict(vgpr=144, sgpr=48, accum=144, grid=512, block=256, lds=CONV_LDS)
    return k, info

MLP_LDS = 163840
H_LD = os.environ.get('H_LD', 'sc1')
M_PRE2 = int(os.environ.get('M_PRE2', '5'))
M_OLD = int(os.environ.get('M_OLD', '1'))
M_LOOK = int(os.environ.get('M_LOOK', '5'))
M_TOUCH = int(os.environ.get('M_TOUCH', '0'))
M_PRE = int(os.environ.get('M_PRE', '8'))
M_OPS = int(os.environ.get('M_OPS', '3'))
M_RAMP = int(os.environ.get('M_RAMP', '5'))
M_WDM = int(os.environ.get('M_WDM', '4'))
M_WDE = int(os.environ.get('M_WDE', '2'))
M_AHEAD2 = int(os.environ.get('M_AHEAD2', '6'))
SPIN_MAX = 1 << 20
SLOT = 40960
def gen_mlp():
    k = Kern("mlp")
    ACC = 0
    FR = 48
    XA = 104
    WA = 112
    CSR = 114
    STV = 126
    RES = 130
    VDMA, VW, VT0, VT1, VT2 = 134, 135, 136, 137, 138
    SA = 139
    VRES = 142; VSTX = 143; VPUB = 144; VCS = 145
    MR = 146
    TMP = 150
    NV = 168
    def wdreg(i): return f"a[{4*i}:{4*i+3}]"
    k(f"""
    mlpa_kernel:
    s_mov_b32 s30, {X1T}
    s_mov_b32 s31, {HB}
    s_mov_b32 s33, {STX}
    s_mov_b32 s34, {FLG}
    s_mov_b32 s35, 0
    @KID 2
    M_BODY:
    s_cmp_ge_u32 s2, 256
    s_cbranch_scc1 M_END
    @INIT
    s_load_dwordx2 s[4:5], s[0:1], {KA_WS}
    s_load_dwordx2 s[6:7], s[0:1], {KA_OUT}
    v_readfirstlane_b32 s17, v0
    s_and_b32 s12, s2, 7                  ; xcd
    s_lshr_b32 s13, s2, 3                 ; idx
    s_lshr_b32 s14, s12, 1
    s_lshl_b32 s14, s14, 2
    s_and_b32 s15, s13, 3
    s_add_u32 s14, s14, s15               ; lt
    s_lshl_b32 s36, s12, 2
    s_add_u32 s36, s36, s15               ; lt64
    s_lshr_b32 s37, s13, 2                ; dt
    s_and_b32 s15, s12, 1
    s_lshl_b32 s15, s15, 3
    s_add_u32 s15, s15, s37               ; ft
    s_lshr_b32 s17, s17, 6                ; w
    s_and_b32 s16, s17, 3
    s_lshr_b32 s29, s17, 2
    v_and_b32 v{VT0}, 63, v0              ; lane
    v_and_b32 v{VT1}, 15, v0              ; lam / j
    v_bfe_u32 v{VT2}, v0, 4, 2            ; g
    s_and_b32 s20, s17, 1
    s_lshl_b32 s20, s20, 2
    v_lshrrev_b32 v{TMP}, 1, v{VT1}
    v_xor_b32 v{TMP+1}, v{TMP}, v{VT2}
    v_xor_b32 v{TMP+1}, s20, v{TMP+1}
    v_and_b32 v{TMP+3}, 1, v{VT1}
    v_lshlrev_b32 v{TMP+3}, 4, v{TMP+3}
    v_mul_u32_u24 v{TMP+4}, {XP}, v{VT2}
    v_add_u32 v{TMP+3}, v{TMP+4}, v{TMP+3}
    v_lshl_add_u32 v{VDMA}, v{TMP+1}, 5, v{TMP+3}
    v_lshlrev_b32 v{VW}, 4, v{VT0}                    ; lane*16
    s_lshl_b32 s18, s14, 8
    s_add_u32 s18, s18, s30
    s_mul_i32 s19, s17, {4*XP}
    s_add_u32 s18, s18, s19
    s_lshl_b32 s19, s17, 10               ; x m0 part: w*1024
    s_lshl_b32 s20, s15, 2
    s_add_u32 s20, s20, s16
    s_lshl_b32 s21, s20, 4
    s_add_u32 s21, s21, s29
    s_mul_i32 s21, s21, 3072
    s_add_u32 s21, s21, {WP}
    s_mul_i32 s22, s17, 3072
    s_add_u32 s22, s22, 0x4000
    s_mul_i32 s24, s20, {3*16*4}
    s_add_u32 s24, s24, {CSUM}
    s_lshl_b32 s38, s37, 2
    s_add_u32 s38, s38, s16
    s_mul_i32 s38, s38, {NKS2*1024}
    s_mul_i32 s23, s29, {22*1024}
    s_add_u32 s38, s38, s23
    s_add_u32 s38, s38, {WD}
    """)
    def group_parts(t):
        base = (t & 3) * SLOT
        parts = [f"""
        s_add_u32 m0, s19, {base}
        s_nop 0
        buffer_load_dwordx4 v{VDMA}, s[8:11], s18 offen lds
        s_add_u32 s18, s18, {32*XP}
        """, f"""
        s_add_u32 m0, s22, {base}
        s_nop 0
        buffer_load_dwordx4 v{VW}, s[8:11], s21 offen lds
        """, f"""
        buffer_load_dwordx4 v{VW}, s[8:11], s21 offen offset:1024 lds
        """, f"""
        buffer_load_dwordx4 v{VW}, s[8:11], s21 offen offset:2048 lds
        s_add_u32 s21, s21, 0x1800
        """, f"""
        s_add_u32 m0, s19, {base + 8192}
        s_nop 0
        buffer_load_dwordx4 v{VDMA}, s[8:11], s18 offen lds
        s_add_u32 s18, s18, {32*XP}
        """]
        return parts
    def wd_part(i):
        p = f"buffer_load_dwordx4 {wdreg(i)}, v{VW}, s[8:11], s38 offen offset:{1024*(i&3)}"
        if (i & 3) == 3: p += "\ns_add_u32 s38, s38, 0x1000"
        return p
    def common_addr():
        k(f"""
        s_mov_b32 s43, {fl(1.0/512)}
        s_mov_b32 s44, {fl(1e-5)}
        s_mov_b32 s45, {fl(-LOG2E)}
        v_lshrrev_b32 v{TMP}, 2, v{VT1}
        v_lshl_add_u32 v{TMP}, v{VT2}, 2, v{TMP}          ; 4g + r
        v_and_b32 v{TMP+1}, 7, v{TMP}                     ; xi
        v_and_b32 v{TMP+2}, 3, v{VT1}
        v_lshlrev_b32 v{TMP+2}, 3, v{TMP+2}
        v_lshl_add_u32 v{TMP+2}, v{TMP}, 8, v{TMP+2}
        v_mul_u32_u24 v{VRES}, {XP}, v{VT1}
        v_lshl_add_u32 v{VRES}, v{VT2}, 4, v{VRES}
        s_lshl_b32 s39, s37, 2
        s_add_u32 s39, s39, s16
        s_mul_i32 s39, s39, {16*XP}
        s_lshl_b32 s40, s36, 7
        s_add_u32 s39, s39, s40
        s_lshl_b32 s40, s29, 6
        s_add_u32 s39, s39, s40
        s_add_u32 s40, s39, s30
        """)
    res_parts = [f"buffer_load_dwordx4 v[{RES}:{RES+3}], v{VRES}, s[8:11], s40 offen"]
    common_addr()
    k("s_lshl_b32 s25, s29, 2")
    for b in range(4):
        k(f"""
        s_add_u32 s26, s25, {b}
        v_xor_b32 v{TMP+3}, s26, v{TMP+1}
        v_lshl_add_u32 v{XA+b}, v{TMP+3}, 5, v{TMP+2}
        v_add_u32 v{XA+4+b}, {2*SLOT}, v{XA+b}
        """)
    k(f"""
    s_mul_i32 s26, s16, 3072
    s_add_u32 s26, s26, 0x4000
    v_add_u32 v{WA}, s26, v{VW}
    v_add_u32 v{WA+1}, {2*SLOT}, v{WA}
    """)
    def late_addr():
        k(f"""
        v_bfe_u32 v{TMP}, v{VT1}, 2, 1                    ; half
        v_mul_u32_u24 v{TMP+4}, 3072, v{TMP}
        v_lshrrev_b32 v{TMP}, 3, v{VT1}
        v_lshl_add_u32 v{TMP+4}, v{TMP}, 6, v{TMP+4}
        v_and_b32 v{TMP}, 3, v{VT1}
        v_lshl_add_u32 v{TMP+4}, v{TMP}, 4, v{TMP+4}
        v_lshl_add_u32 v{TMP+4}, v{VT2}, 8, v{TMP+4}
        s_lshl_b32 s26, s16, 10
        s_cmp_eq_u32 s16, 3
        s_cselect_b32 s26, 12, s26
        s_cselect_b32 s27, 0x400, 4
        s_mul_i32 s28, s29, 12288
        s_add_u32 s26, s26, s28
        v_add_u32 v{SA}, s26, v{TMP+4}
        v_add_u32 v{SA+1}, s27, v{SA}
        v_add_u32 v{SA+2}, s27, v{SA+1}
        v_lshlrev_b32 v{VSTX}, 2, v{VT1}
        s_lshl_b32 s41, s14, 9
        s_lshl_b32 s26, s29, 8
        s_add_u32 s41, s41, s26
        s_add_u32 s41, s41, s33
        s_mul_i32 s26, s17, 3072
        v_add_u32 v{VPUB}, s26, v{VW}
        s_lshl_b32 s42, s14, 3
        s_add_u32 s42, s42, s17
        s_mul_i32 s42, s42, {HKS*1024}
        s_mul_i32 s26, s15, 3072
        s_add_u32 s42, s42, s26
        s_add_u32 s42, s42, s31
        v_lshlrev_b32 v{VCS}, 4, v{VT2}
        """)
    late_addr()
    k(f"""
    v_lshrrev_b32 v{TMP+6}, 3, v{VT0}
    v_mul_u32_u24 v{TMP+6}, {XP}, v{TMP+6}
    v_and_b32 v{TMP+7}, 7, v{VT0}
    v_lshl_add_u32 v{TMP+6}, v{TMP+7}, 5, v{TMP+6}
    s_lshl_b32 s46, s37, 3
    s_add_u32 s46, s46, s17
    s_mul_i32 s46, s46, {8*XP}
    s_lshl_b32 s47, s14, 8
    s_add_u32 s46, s46, s47
    s_add_u32 s46, s46, s30
    """)
    k("s_waitcnt lgkmcnt(0)")
    srd(k, 8, 4, WS_BYTES)
    if M_TOUCH & 1: k(f"buffer_load_dword v{TMP+8}, v{TMP+6}, s[8:11], s46 offen")
    k("""
    s_cmp_eq_u32 s15, 15
    s_cbranch_scc1 M_STATS
    """)
    def reads(s):
        res = []
        t = s >> 1; hi = (t & 3) >> 1; base = (t & 1) * SLOT
        buf = FR + 28 * (s & 1)
        for tau in range(3):
            r = buf + 16 + 4 * tau
            res.append(f"ds_read_b128 v[{r}:{r+3}], v{WA+hi} offset:{base + (s&1)*12288 + tau*1024}")
        for b in range(4):
            off = base + (s & 1) * 8192
            res.append(f"ds_read_b64_tr_b16 v[{buf+4*b}:{buf+4*b+1}], v{XA+4*hi+b} offset:{off}")
            res.append(f"ds_read_b64_tr_b16 v[{buf+4*b+2}:{buf+4*b+3}], v{XA+4*hi+b} offset:{off+4096}")
        return res
    later = [f"buffer_load_dwordx4 v[{CSR+4*tau}:{CSR+4*tau+3}], v{VCS}, s[8:11], s24 offen offset:{64*tau}" for tau in range(3)]
    later += res_parts
    later += [wd_part(i) for i in range(M_WDM)]
    later += [f"buffer_load_dword v{STV+b}, v{VSTX}, s[8:11], s41 offen offset:{64*b} sc1" for b in range(4)]
    n_need = len(later)
    later += [wd_part(i) for i in range(M_WDM, 22)]
    vm = []
    def wait_for(tag):
        assert not any(o[1] == tag for o in opq), tag
        idxs = [i for i, x in enumerate(vm) if x == tag]
        if not idxs: return
        idx = max(idxs)
        k(f"s_waitcnt vmcnt({len(vm) - idx - 1})")
        del vm[:idx + 1]
    opq = []
    for u in range(8):
        gp = group_parts(u)
        e0 = max(2*u - 7, 2*u - M_LOOK)
        if M_OLD: e0 = {0: -1, 1: -1, 2: 0, 3: 1}.get(u, 2*u - 6)
        for j in (0, 1, 2): opq.append((gp[j], f"D{2*u}", e0))
        opq.append((gp[3], f"D{2*u}", e0 + 1 if u > (3 if M_OLD else 1) else e0))
        opq.append((gp[4], f"D{2*u+1}", e0 + 1 if u > (3 if M_OLD else 1) else e0))
    for i, p in enumerate(later[:n_need]): opq.append((p, "N", -100))
    nlater = n_need
    def issue(n, s):
        out = []
        while opq and len(out) < n and opq[0][2] <= s:
            out.append(opq.pop(0))
        return out
    for p, tag, _ in issue(10 if M_OLD else M_PRE, -1):
        k(p); vm.append(tag)
    k("@STAMP 2")
    wait_for("D1" if M_OLD else "D0")
    k("s_barrier")
    k("@STAMP 3")
    for r in reads(0): k(r)
    EXP = os.environ.get('EXP', '')
    for s in range(16):
        if M_OLD:
            bar = False
            if s == 1: wait_for("D3"); bar = True
            elif (s & 1) == 0 and 0 < s < 14: wait_for(f"D{s+3}"); bar = True
            if bar: k("s_barrier")
            k("s_waitcnt lgkmcnt(0)")
        else:
            if s == 0: wait_for("D1")
            elif s < 15 and (s & 1): wait_for(f"D{s+2}")
            k("s_waitcnt lgkmcnt(0)")
            if s < 15 and (s == 0 or (s & 1)): k("s_barrier")
        if s == 8: k("@STAMP 4")
        fill = reads(s + 1) if s < 15 else []
        mf = []
        buf = FR + 28 * (s & 1)
        for b in range(4):
            for tau in range(3):
                a = ACC + (b * 3 + tau) * 4
                c = "0" if s == 0 else f"v[{a}:{a+3}]"
                mf.append(f"v_mfma_f32_16x16x32_bf16 v[{a}:{a+3}], v[{buf+16+4*tau}:{buf+19+4*tau}], v[{buf+4*b}:{buf+4*b+3}], {c}")
        parts = issue((5 if s < 2 else 3) if M_OLD else (M_OPS if s < M_RAMP else 3), s)
        step = 12 // max(len(parts), 1)
        slots = {1 + step * j: p for j, p in enumerate(parts)}
        for i, m in enumerate(mf):
            k(m)
            if i < len(fill): k(fill[i])
            if i in slots:
                k(slots[i][0]); vm.append(slots[i][1])
    assert not opq, len(opq)
    assert nlater >= n_need
    k("@STAMP 5")
    wait_for("N")
    k(f"""
    s_mov_b32 s47, 0
    M_STCHK:
    v_min3_u32 v{TMP}, v{STV}, v{STV+1}, v{STV+2}
    v_min_u32 v{TMP}, v{TMP}, v{STV+3}
    v_cmp_eq_u32 vcc, 0, v{TMP}
    s_cmp_eq_u64 vcc, 0
    s_cbranch_scc1 M_STOK
    s_add_u32 s47, s47, 1
    s_cmp_ge_u32 s47, {SPIN_MAX}
    s_cbranch_scc1 M_STOK
    s_sleep 2
    """)
    for b in range(4): k(f"buffer_load_dword v{STV+b}, v{VSTX}, s[8:11], s41 offen offset:{64*b} sc1")
    k("""
    s_waitcnt vmcnt(0)
    s_branch M_STCHK
    M_STOK:
    @STAMP 6
    """)
    PB = FR
    for b in range(4):
        m = MR
        k(f"""
        v_and_b32 v{m+2}, 0xffff0000, v{STV+b}        ; s
        v_lshlrev_b32 v{m}, 16, v{STV+b}              ; m
        v_rcp_f32 v{m+1}, v{m+2}
        v_mul_f32 v{m+1}, s45, v{m+1}
        """)
        for tau in range(3):
            a = ACC + (b * 3 + tau) * 4
            c = CSR + 4 * tau
            k(f"""
            v_pk_fma_f32 v[{a}:{a+1}], v[{m}:{m+1}], v[{c}:{c+1}], v[{a}:{a+1}] op_sel_hi:[0,1,1] neg_lo:[1,0,0] neg_hi:[1,0,0]
            v_pk_fma_f32 v[{a+2}:{a+3}], v[{m}:{m+1}], v[{c+2}:{c+3}], v[{a+2}:{a+3}] op_sel_hi:[0,1,1] neg_lo:[1,0,0] neg_hi:[1,0,0]
            v_pk_mul_f32 v[{a}:{a+1}], v[{a}:{a+1}], v[{m}:{m+1}] op_sel:[0,1] op_sel_hi:[1,1]
            v_exp_f32 v{a}, v{a}
            v_exp_f32 v{a+1}, v{a+1}
            """)
            if tau < M_WDE and nlater < len(later):
                k(later[nlater]); nlater += 1
        for tau in range(3):
            a = ACC + (b * 3 + tau) * 4
            k(f"""
            v_pk_fma_f32 v[{a}:{a+1}], v[{a}:{a+1}], v[{m+2}:{m+3}], v[{m+2}:{m+3}] op_sel_hi:[1,0,0]
            v_rcp_f32 v{a}, v{a}
            v_rcp_f32 v{a+1}, v{a+1}
            """)
        for tau in range(3):
            a = ACC + (b * 3 + tau) * 4
            k(f"""
            v_pk_mul_f32 v[{a}:{a+1}], v[{a}:{a+1}], v[{a+2}:{a+3}]
            v_cvt_pk_bf16_f32 v{a}, v{a}, v{a+1}
            ds_write_b32 v{SA+tau}, v{a} offset:{(b>>1)*6144 + (b&1)*128}
            """)
    k("""
    s_waitcnt lgkmcnt(0)
    s_barrier
    @STAMP 7
    """)
    for i in range(3):
        k(f"ds_read_b128 v[{PB+4*i}:{PB+4*i+3}], v{VPUB} offset:{1024*i}")
    for i in range(3):
        k(f"s_waitcnt lgkmcnt({2-i})")
        k(f"buffer_store_dwordx4 v[{PB+4*i}:{PB+4*i+3}], v{VW}, s[8:11], s42 offen offset:{1024*i} sc1")
    rest = later[nlater:]
    k(f"""
    s_lshl_b32 s26, s14, 4
    s_add_u32 s26, s26, s15
    s_lshl_b32 s26, s26, 7
    s_add_u32 s26, s26, s34
    v_mov_b32 v{TMP}, 1
    v_mov_b32 v{TMP+1}, 0
    s_waitcnt vmcnt(0)
    s_barrier
    s_cmp_lg_u32 s17, 0
    s_cbranch_scc1 M_NOFLAG
    s_mov_b64 exec, 1
    buffer_store_dword v{TMP}, v{TMP+1}, s[8:11], s26 offen sc1
    s_mov_b64 exec, -1
    M_NOFLAG:
    """)
    for p in rest: k(p)
    HA = XA
    k(f"""
    M_SYNC:
    @STAMP 8
    s_lshl_b32 s26, s36, 2
    s_add_u32 s26, s26, s16
    s_mul_i32 s26, s26, {HKS*1024}
    s_mul_i32 s27, s29, {22*1024}
    s_add_u32 s26, s26, s27
    s_add_u32 s26, s26, s31
    s_lshl_b32 s27, s17, 11               ; m0 part
    s_mul_i32 s28, s29, 0x3000
    v_add_u32 v{HA}, s28, v{VW}
    s_lshl_b32 s28, s29, 12
    s_add_u32 s28, s28, 0x1000
    v_add_u32 v{HA+1}, s28, v{VW}
    v_add_u32 v{HA+2}, 0x10000, v{HA}
    v_add_u32 v{HA+3}, 0x10000, v{HA+1}
    v_add_u32 v{HA+4}, 0x20000, v{HA}
    v_add_u32 v{HA+5}, 0x20000, v{HA+1}
    s_cmp_lg_u32 s17, 1
    s_cbranch_scc1 M_WAITB
    s_lshr_b32 s28, s36, 1
    s_lshl_b32 s28, s28, 11
    s_add_u32 s28, s28, s34
    v_min_u32 v{TMP+4}, 14, v{VT0}
    v_lshlrev_b32 v{TMP+4}, 7, v{TMP+4}
    s_mov_b32 s47, 0
    M_POLL:
    buffer_load_dword v{TMP+5}, v{TMP+4}, s[8:11], s28 offen sc1
    s_waitcnt vmcnt(0)
    v_cmp_eq_u32 vcc, 0, v{TMP+5}
    s_cmp_eq_u64 vcc, 0
    s_cbranch_scc1 M_WAITB
    s_add_u32 s47, s47, 1
    s_cmp_lt_u32 s47, {SPIN_MAX}
    s_cbranch_scc1 M_POLL
    M_WAITB:
    s_lshl_b32 s46, s37, 3
    s_add_u32 s46, s46, s17
    s_mul_i32 s46, s46, 2880
    s_mul_i32 s47, s36, {4*HKS*1024}
    s_add_u32 s46, s46, s47
    s_add_u32 s46, s46, s31
    v_min_u32 v{TMP+6}, 44, v{VT0}
    v_lshlrev_b32 v{TMP+6}, 6, v{TMP+6}
    s_barrier
    @STAMP 9
    """)
    if M_TOUCH & 2: k(f"buffer_load_dword v{TMP+8}, v{TMP+6}, s[8:11], s46 offen")
    def hchunk(c):
        return [f"""
        s_add_u32 m0, s27, {(c % 10) * 16384}
        s_nop 0
        buffer_load_dwordx4 v{VW}, s[8:11], s26 offen {H_LD} lds
        """, f"""
        buffer_load_dwordx4 v{VW}, s[8:11], s26 offen offset:1024 {H_LD} lds
        s_add_u32 s26, s26, 0x800
        """]
    HF = 16
    A2 = 0
    def hreads(c):
        res = []
        for i in range(2):
            for lb in range(4):
                off = (c % 10) * 16384 + (lb & 1) * 2048 + i * 1024
                base = HA + 2 * (off >> 16) + (lb >> 1)
                r = HF + 32 * (c & 1) + (i * 4 + lb) * 4
                res.append(f"ds_read_b128 v[{r}:{r+3}], v{base} offset:{off & 0xffff}")
        return res
    iss = M_PRE2
    for c in range(iss):
        for p in hchunk(c): k(p)
    k(f"s_waitcnt vmcnt({2*(iss-1)})")
    k("s_barrier")
    k("@STAMP 10")
    for r in hreads(0): k(r)
    for c in range(11):
        fill = []
        if c < 10:
            k(f"s_waitcnt vmcnt({2*(iss-(c+2))})")
            k("s_barrier")
        k("s_waitcnt lgkmcnt(0)")
        if c < 10: fill = hreads(c + 1)
        parts = []
        for rep_ in range(2):
            if iss < 11 and (iss < 10 or c >= 1) and iss < c + M_AHEAD2:
                parts += hchunk(iss); iss += 1
        slots = {1 + 2 * j: p for j, p in enumerate(parts)}
        n = 0
        for i in range(2):
            for lb in range(4):
                r = HF + 32 * (c & 1) + (i * 4 + lb) * 4
                a = A2 + 4 * lb
                cc = "0" if (c == 0 and i == 0) else f"v[{a}:{a+3}]"
                k(f"v_mfma_f32_16x16x32_bf16 v[{a}:{a+3}], v[{r}:{r+3}], {wdreg(2*c+i)}, {cc}")
                if n < len(fill): k(fill[n])
                if n in slots: k(slots[n])
                n += 1
    k("@STAMP 11")
    XB = 65536
    k(f"""
    s_lshl_b32 s26, s17, 11
    s_add_u32 s26, s26, {XB}
    v_add_u32 v{TMP}, s26, v{VW}
    s_xor_b32 s26, s26, 0x2000
    v_add_u32 v{TMP+1}, s26, v{VW}
    """)
    for j in range(4):
        k(f"v_lshlrev_b32 v{32+2*j}, 16, v{RES+j}")
        k(f"v_and_b32 v{33+2*j}, 0xffff0000, v{RES+j}")
    k(f"""
    ds_write_b128 v{TMP}, v[8:11]
    ds_write_b128 v{TMP}, v[12:15] offset:1024
    s_waitcnt lgkmcnt(0)
    s_barrier
    ds_read_b128 v[8:11], v{TMP+1}
    ds_read_b128 v[12:15], v{TMP+1} offset:1024
    s_waitcnt lgkmcnt(0)
    """)
    OUT = 16
    for j in range(4):
        y0, y1 = A2 + 2*j, A2 + 2*j + 1
        k(f"""
        v_pk_add_f32 v[{y0}:{y1}], v[{y0}:{y1}], v[{y0+8}:{y1+8}]
        v_cvt_pk_bf16_f32 v{y1}, v{y0}, v{y1}
        v_lshlrev_b32 v{y0}, 16, v{y1}
        v_and_b32 v{y1}, 0xffff0000, v{y1}
        v_pk_add_f32 v[{y0}:{y1}], v[{y0}:{y1}], v[{32+2*j}:{33+2*j}]
        v_cvt_pk_bf16_f32 v{OUT+j}, v{y0}, v{y1}
        """)
    k(f"""
    s_cmp_lg_u32 s35, 0
    s_cbranch_scc1 M_FINAL
    s_add_u32 s40, s39, {X2T}
    buffer_store_dwordx4 v[{OUT}:{OUT+3}], v{VRES}, s[8:11], s40 offen {X2_ST}
    """)
    Q = 48
    for j in range(4):
        k(f"""
        v_lshlrev_b32 v{Q+4*j}, 16, v{OUT+j}
        v_and_b32 v{Q+4*j+2}, 0xffff0000, v{OUT+j}
        v_mul_f32 v{Q+4*j+1}, v{Q+4*j}, v{Q+4*j}
        v_mul_f32 v{Q+4*j+3}, v{Q+4*j+2}, v{Q+4*j+2}
        """)
    for q in range(8):
        k(f"v_add_f32_dpp v{Q+q}, v{Q+q}, v{Q+q} row_ror:8 row_mask:0xf bank_mask:0x3")
        k(f"v_add_f32_dpp v{Q+q}, v{Q+q+8}, v{Q+q+8} row_ror:8 row_mask:0xf bank_mask:0xc")
    for q in range(4):
        k(f"v_add_f32_dpp v{Q+q}, v{Q+q}, v{Q+q} row_shl:4 row_mask:0xf bank_mask:0x5")
        k(f"v_add_f32_dpp v{Q+q}, v{Q+q+4}, v{Q+q+4} row_shr:4 row_mask:0xf bank_mask:0xa")
    for q in range(4):
        k(f"v_add_f32_dpp v{Q+q}, v{Q+q}, v{Q+q} quad_perm:[1,0,3,2] row_mask:0xf bank_mask:0xf")
    for q in range(4):
        k(f"v_add_f32_dpp v{Q+q}, v{Q+q}, v{Q+q} quad_perm:[2,3,0,1] row_mask:0xf bank_mask:0xf")
    SB = 98304
    k(f"""
    v_and_b32 v{TMP}, 3, v{VT1}
    v_cmp_eq_u32 s[48:49], 1, v{TMP}
    v_cmp_eq_u32 s[50:51], 2, v{TMP}
    v_cmp_eq_u32 s[52:53], 3, v{TMP}
    v_lshrrev_b32 v{TMP+1}, 2, v{VT1}
    v_lshlrev_b32 v{TMP+1}, 7, v{TMP+1}
    v_lshl_add_u32 v{TMP+1}, v{VT2}, 4, v{TMP+1}
    v_lshl_add_u32 v{TMP+1}, v{TMP}, 2, v{TMP+1}
    s_lshl_b32 s26, s16, 9
    s_lshl_b32 s27, s29, 6
    s_add_u32 s26, s26, s27
    s_add_u32 s26, s26, {SB}
    v_add_u32 v{TMP+1}, s26, v{TMP+1}
    v_cndmask_b32 v{Q}, v{Q}, v{Q+1}, s[48:49]
    v_cndmask_b32 v{Q}, v{Q}, v{Q+2}, s[50:51]
    v_cndmask_b32 v{Q}, v{Q}, v{Q+3}, s[52:53]
    ds_write_b32 v{TMP+1}, v{Q}
    s_lshl_b32 s26, s17, 8
    s_add_u32 s26, s26, {SB}
    v_lshl_add_u32 v{TMP+2}, v{VT0}, 2, s26
    v_lshrrev_b32 v{TMP+3}, 5, v{VT0}
    v_lshlrev_b32 v{TMP+3}, 12, v{TMP+3}
    v_and_b32 v{TMP+4}, 31, v{VT0}
    v_lshl_add_u32 v{TMP+3}, v{TMP+4}, 2, v{TMP+3}
    s_lshl_b32 s26, s36, 7
    s_lshl_b32 s27, s17, 13
    s_add_u32 s26, s26, s27
    s_add_u32 s26, s26, {ST1}
    s_waitcnt lgkmcnt(0)
    s_barrier
    s_cmp_ge_u32 s17, 2
    s_cbranch_scc1 M_NOAT
    ds_read_b32 v{Q}, v{TMP+2}
    ds_read_b32 v{Q+1}, v{TMP+2} offset:512
    ds_read_b32 v{Q+2}, v{TMP+2} offset:1024
    ds_read_b32 v{Q+3}, v{TMP+2} offset:1536
    s_waitcnt lgkmcnt(0)
    v_add_f32 v{Q}, v{Q}, v{Q+1}
    v_add_f32 v{Q+2}, v{Q+2}, v{Q+3}
    v_add_f32 v{Q}, v{Q}, v{Q+2}
    buffer_atomic_add_f32 v{Q}, v{TMP+3}, s[8:11], s26 offen
    M_NOAT:
    @STAMP 12
    @FLUSH 13
    s_endpgm
    M_FINAL:
    """)
    TP = 144; TB2 = 98304
    srd(k, 48, 6, L * D * 2)
    k(f"""
    s_lshl_b32 s26, s16, 4
    v_add_u32 v{TMP}, s26, v{VT1}
    v_mul_u32_u24 v{TMP}, {TP}, v{TMP}
    v_lshl_add_u32 v{TMP}, v{VT2}, 4, v{TMP}
    s_lshl_b32 s26, s29, 6
    s_add_u32 s26, s26, {TB2}
    v_add_u32 v{TMP}, s26, v{TMP}
    ds_write_b128 v{TMP}, v[{OUT}:{OUT+3}]
    v_lshrrev_b32 v{TMP+1}, 2, v{VT1}
    v_lshl_add_u32 v{TMP+1}, v{VT2}, 3, v{TMP+1}
    v_mul_u32_u24 v{TMP+1}, {TP}, v{TMP+1}
    v_and_b32 v{TMP+2}, 3, v{VT1}
    v_lshl_add_u32 v{TMP+1}, v{TMP+2}, 3, v{TMP+1}
    s_lshl_b32 s26, s16, 5
    s_mul_i32 s27, s29, {32*TP}
    s_add_u32 s26, s26, s27
    s_add_u32 s26, s26, {TB2}
    v_add_u32 v{TMP+1}, s26, v{TMP+1}
    v_lshlrev_b32 v{TMP+2}, 10, v{VT1}
    v_lshl_add_u32 v{TMP+2}, v{VT2}, 4, v{TMP+2}
    s_lshl_b32 s26, s36, 2
    s_add_u32 s26, s26, s16
    s_lshl_b32 s26, s26, 14
    s_lshl_b32 s27, s37, 7
    s_add_u32 s26, s26, s27
    s_lshl_b32 s27, s29, 6
    s_add_u32 s26, s26, s27
    s_waitcnt lgkmcnt(0)
    s_barrier
    ds_read_b64_tr_b16 v[32:33], v{TMP+1}
    ds_read_b64_tr_b16 v[34:35], v{TMP+1} offset:{4*TP}
    s_waitcnt lgkmcnt(0)
    buffer_store_dwordx4 v[32:35], v{TMP+2}, s[48:51], s26 offen
    @STAMP 12
    @FLUSH 13
    M_END:
    s_endpgm
    """)
    k(f"""
    M_STATS:
    s_mov_b32 s47, 0
    M_SL1:
    s_mov_b32 m0, s19
    s_add_u32 s19, s19, 0x2000
    buffer_load_dwordx4 v{VDMA}, s[8:11], s18 offen lds
    s_add_u32 s18, s18, {32*XP}
    s_mov_b32 m0, s19
    s_add_u32 s19, s19, 0x2000
    buffer_load_dwordx4 v{VDMA}, s[8:11], s18 offen lds
    s_add_u32 s18, s18, {32*XP}
    s_add_u32 s47, s47, 1
    s_cmp_lt_u32 s47, 8
    s_cbranch_scc1 M_SL1
    """)
    SACC = 0; ONES = 16
    k(f"""
    v_xor_b32 v{TMP+3}, s17, v{TMP+1}
    v_lshl_add_u32 v{XA}, v{TMP+3}, 5, v{TMP+2}
    """)
    for r in range(8): k(f"v_mov_b32 v{SACC+r}, 0")
    for r in range(4): k(f"v_mov_b32 v{ONES+r}, 0x3f803f80")
    k(f"""
    s_mov_b32 s47, 0
    s_waitcnt vmcnt(0)
    s_barrier
    M_SL2:
    """)
    for u in range(8):
        r = FR + 4 * u
        if u == 7: k("s_waitcnt lgkmcnt(12)")
        k(f"ds_read_b64_tr_b16 v[{r}:{r+1}], v{XA} offset:{u*8192}")
        k(f"ds_read_b64_tr_b16 v[{r+2}:{r+3}], v{XA} offset:{u*8192+4096}")
    k(f"v_add_u32 v{XA}, 0x10000, v{XA}")
    for u in range(8):
        r = FR + 4 * u
        k(f"s_waitcnt lgkmcnt({14 - 2*u})")
        k(f"v_mfma_f32_16x16x32_bf16 v[{SACC}:{SACC+3}], v[{r}:{r+3}], v[{r}:{r+3}], v[{SACC}:{SACC+3}]")
        k(f"v_mfma_f32_16x16x32_bf16 v[{SACC+4}:{SACC+7}], v[{ONES}:{ONES+3}], v[{r}:{r+3}], v[{SACC+4}:{SACC+7}]")
    k(f"""
    s_add_u32 s47, s47, 1
    s_cmp_lt_u32 s47, 2
    s_cbranch_scc1 M_SL2
    v_and_b32 v{TMP}, 3, v{VT1}
    v_cmp_eq_u32 s[48:49], 1, v{TMP}
    v_cmp_eq_u32 s[50:51], 2, v{TMP}
    v_cmp_eq_u32 s[52:53], 3, v{TMP}
    v_lshrrev_b32 v{TMP}, 2, v{VT1}
    v_cmp_eq_u32 s[54:55], v{TMP}, v{VT2}
    v_cndmask_b32 v{SACC}, v{SACC}, v{SACC+1}, s[48:49]
    v_cndmask_b32 v{SACC}, v{SACC}, v{SACC+2}, s[50:51]
    v_cndmask_b32 v{SACC+5}, v{SACC}, v{SACC+3}, s[52:53]
    v_mov_b32 v{SACC+12}, v{SACC+4}
    v_mov_b32 v{SACC+13}, v{SACC+5}
    """)
    stats_pair(k, SACC+4, SACC+5, SACC+12, SACC+13, TMP, keep=(SACC+6, SACC+14))
    k(f"""
    v_lshrrev_b32 v{SACC+4}, 16, v{SACC+4}
    v_or_b32 v{SACC+4}, v{SACC+4}, v{SACC+6}
    v_lshlrev_b32 v{VSTX}, 2, v{VT1}
    s_lshl_b32 s41, s14, 9
    s_lshl_b32 s26, s17, 6
    s_add_u32 s41, s41, s26
    s_add_u32 s41, s41, s33
    s_mov_b64 exec, s[54:55]
    buffer_store_dword v{SACC+4}, v{VSTX}, s[8:11], s41 offen sc1
    s_mov_b64 exec, -1
    """)
    for p in res_parts: k(p)
    for i in range(22): k(wd_part(i))
    k(f"""
    s_barrier
    s_branch M_SYNC
    .p2align 8
    mlpb_kernel:
    s_mov_b32 s30, {X3T}
    s_mov_b32 s31, {HB1}
    s_mov_b32 s33, {STX + 0x2000}
    s_mov_b32 s34, {FLG + 0x8000}
    s_mov_b32 s35, 1
    @KID 5
    s_branch M_BODY
    """)
    info = dict(vgpr=NV + 88, sgpr=64, accum=NV, grid=256, block=512, lds=MLP_LDS)
    return k, info

DIAG_KN = {2: ("mlpa", 13), 5: ("mlpb", 13), 3: ("none", 1), 6: ("none", 1)}
def emit(path, launches=None):
    kp, ip = gen_prep()
    kc, ic = gen_conv()
    km, im = gen_mlp()
    infos = {"prep_kernel": ip, "conv1_kernel": ic, "conv2_kernel": ic, "mlpa_kernel": im, "mlpb_kernel": im}
    if os.environ.get("ORDER"): launches = [x + "_kernel" for x in os.environ["ORDER"].split(",")]
    order = launches or ["prep_kernel", "conv1_kernel", "mlpa_kernel", "conv2_kernel", "mlpb_kernel"]
    hdr = open("cdna_kernels/" + NAME + ".s.ref").read().split("; Override launch")[0]
    out = [hdr.rstrip("\n")]
    for n in order:
        i = infos[n]
        out.append(f"; @launch kernel={n} grid=({i['grid']},1,1) block=({i['block']},1,1) lds={i['lds']}")
    out.append('.amdgcn_target "amdgcn-amd-amdhsa--gfx950"\n.text')
    for n in infos:
        out.append(f".globl {n}\n.type {n},@function")
    out.append(".p2align 8\nprep_kernel:\n" + kp.text())
    for kk in (kc, km):
        out.append(".p2align 8\n" + kk.text())
    for n, i in infos.items():
        out.append(descriptor(n, i["vgpr"], 102 if DIAG else i["sgpr"], i["accum"]))
    open(path, "w").write("\n".join(out))

if __name__ == "__main__":
    emit(sys.argv[1] if len(sys.argv) > 1 else "cdna_kernels/" + NAME + ".s")
```

```python
import sys, struct, re
from asmlib import *

NAME = "interleave_layers__ssm_conv_s4d__glu_gated_glu__prompt"
KA_U, KA_LOGA, KA_AIM, KA_CRE, KA_CIM, KA_LOGDT, KA_DSKIP, KA_BX, KA_WG, KA_WU, KA_WD, KA_OUT, KA_DBG, KA_WS = [8 * i for i in range(14)]
XT0, X1T, X2T, X3T = 0x3000000, 0x3300000, 0x3600000, 0x3900000
ST0, ST1, CSUM = 0x0800000, 0x0804000, 0x0808000
WP = 0x0C00000
WD = 0x1000000
HB = 0x1200000
HB1 = 0x2200000
ZR = 0x0810000; STX = 0x0810000; FLG = 0x0820000
KP = 0x1800000; KCS = 4160; KP_STRIDE = 1536
WS_BYTES = 0x10000000
L, D, F, NST = 2048, 512, 1376, 128
NKS2 = 44
HKS = 45

import os
XP = int(os.environ.get('XP', '4352'))
PREP_W_POL = os.environ.get('PREP_W_POL', '')
PREP_K_POL = os.environ.get('PREP_K_POL', '')
PREP_X_POL = ''
PREP_PRIO = int(os.environ.get('PREP_PRIO', '0'))
CONV_ST = os.environ.get('CONV_ST', '')
X2_ST = os.environ.get('X2_ST', '')
F1_SLEEP = int(os.environ.get('F1_SLEEP', '8'))
CODEPF_BASE = int(os.environ.get('CODEPF_BASE', '0'))
CODEPF2 = int(os.environ.get('CODEPF2', '1'))
CODEPF = int(os.environ.get('CODEPF', '1'))
DIAG = int(os.environ.get("DIAG", "0"))
DIAG_OFF = 0x4000000
_Kern = Kern
class Kern(_Kern):
    def __call__(self, s):
        for l in s.strip("\n").split("\n"):
            t = l.strip()
            if t.startswith("@CNTLOAD"):
                super().__call__("global_load_dword v59, v2, s[28:29] sc1")
                continue
            if t.startswith("@CODEPF"):
                if CODEPF:
                    super().__call__(f"""
                    s_sub_u32 s3, s2, {CODEPF_BASE}
                    s_cmp_ge_u32 s3, 8
                    s_cbranch_scc1 P_NOPF
                    s_getpc_b64 s[6:7]
                    v_lshlrev_b32 v1, 6, v0
                    global_load_dword v94, v1, s[6:7]
                    v_add_u32 v1, 0x4000, v1
                    global_load_dword v95, v1, s[6:7]
                    P_NOPF:
                    """)
                continue
            if t.startswith("@"):
                if not DIAG: continue
                p = t.split()
                if p[0] == "@KID":
                    super().__call__(f"s_mov_b32 s59, {DIAG_OFF + int(p[1]) * 0x80000}\ns_mov_b32 s57, {3 if int(p[1]) in (2, 5) else 2}")
                elif p[0] == "@INIT":
                    super().__call__("v_readfirstlane_b32 s58, v0\ns_memrealtime s[64:65]\ns_memtime s[66:67]")
                elif p[0] == "@STAMP":
                    i = int(p[1]); super().__call__(f"s_memtime s[{64+2*i}:{65+2*i}]")
                elif p[0] == "@FLUSH":
                    n = int(p[1])
                    super().__call__(f"""
                    s_waitcnt vmcnt(0)
                    s_memtime s[{64+2*n}:{65+2*n}]
                    s_memrealtime s[{66+2*n}:{67+2*n}]
                    s_waitcnt lgkmcnt(0)
                    s_mov_b64 exec, -1
                    s_lshr_b32 s58, s58, 6
                    s_lshl_b32 s61, s2, s57
                    s_add_u32 s60, s58, s61
                    s_lshl_b32 s60, s60, 6
                    s_add_u32 s60, s60, s59
                    v_mov_b32 v1, s60
                    """)
                    for i in range(n + 2):
                        super().__call__(f"v_mov_b32 v2, s{64+2*i}\nglobal_store_dword v1, v2, s[4:5] offset:{4*i}")
                    super().__call__("s_getreg_b32 s61, hwreg(HW_REG_XCC_ID)\nv_mov_b32 v2, s61\nglobal_store_dword v1, v2, s[4:5] offset:60")
                continue
            super().__call__(l)

def f2u(x): return struct.unpack("<I", struct.pack("<f", x))[0]
def fl(x): return "0x%08x" % f2u(x)
LOG2E = 1.4426950408889634
L2E_HI = struct.unpack("<f", struct.pack("<f", LOG2E))[0]
L2E_LO = LOG2E - L2E_HI
LN2 = 0.6931471805599453

def srd(k, s, base, nbytes):
    k(f"""
    s_mov_b32 s{s}, s{base}
    s_and_b32 s{s+1}, s{base+1}, 0xffff
    s_mov_b32 s{s+2}, {nbytes:#x}
    s_mov_b32 s{s+3}, 0x20000
    """)

def rnd_bf16(k, dst, a, b=None):
    k(f"v_cvt_pk_bf16_f32 v{dst}, v{a}, v{b if b is not None else a}")

def exp_acc(k, dst, x, t0, t1):
    k(f"""
    v_mul_f32 v{t0}, s40, v{x}
    v_fma_f32 v{t1}, s40, v{x}, -v{t0}
    v_fma_f32 v{t1}, s41, v{x}, v{t1}
    v_exp_f32 v{dst}, v{t0}
    v_mul_f32 v{t1}, s42, v{t1}
    v_fma_f32 v{dst}, v{dst}, v{t1}, v{dst}
    """)

N_K, N_T, N_W, N_D, N_C = 512, 256, 240, 176, 44
KLAST = int(os.environ.get('KLAST', '0'))
if KLAST:
    B_C = 0; B_W = B_C + N_C; B_T = B_W + N_W; B_D = B_T + N_T; B_E = B_D + N_D; B_K = 720; PREP_WGS = B_K + N_K
else:
    B_K = 0; B_C = N_K; B_W = B_C + N_C; B_T = B_W + N_W; B_D = B_T + N_T; B_E = B_D + N_D; PREP_WGS = B_E
PREP_LDS = 18432
PREP_GROUPS = [("prep.K", B_K, B_K + N_K, 6), ("prep.C", B_C, B_W, 2), ("prep.W", B_W, B_T, 2), ("prep.T", B_T, B_D, 2), ("prep.D", B_D, B_E, 2)]
CSU = 4576
KL = 2 * CSU
CRED = KL + 16640
CONV_LDS = CRED + 24576
CPF = int(os.environ.get('CPF', '1'))
CPF_STRIDE = int(os.environ.get('CPF_STRIDE', '128'))
SPIN_MAX = 1 << 20

class Remap:
    def __init__(self, k, voff, smap): self.k = k; self.voff = voff; self.smap = smap
    def __call__(self, t):
        def rv(m):
            if m.group(1): return f"v[{int(m.group(1))+self.voff}:{int(m.group(2))+self.voff}]"
            n = int(m.group(3)); return "v0" if n == 0 else f"v{n+self.voff}"
        t = re.sub(r"\bv\[(\d+):(\d+)\]|\bv(\d+)\b", rv, t)
        def rs(m):
            if m.group(1):
                a = int(m.group(1)); b = int(m.group(2))
                if a in self.smap: return f"s[{self.smap[a]}:{self.smap[a]+b-a}]"
                return m.group(0)
            n = int(m.group(3)); return f"s{self.smap.get(n, n)}"
        t = re.sub(r"\bs\[(\d+):(\d+)\]|\bs(\d+)\b", rs, t)
        self.k(t)
    def label(self, l): self.k.label(l)

class Remap2:
    def __init__(self, k, vmap): self.k = k; self.vmap = vmap
    def __call__(self, t):
        t = re.sub(r"\bv(\d+)\b", lambda m: f"v{self.vmap.get(int(m.group(1)), int(m.group(1)))}", t)
        self.k(t)

def conv_setup(k):
    k(f"""
    v_readfirstlane_b32 s17, v0
    s_mov_b32 s43, {fl(1.0/512)}
    s_mov_b32 s44, {fl(1e-5)}
    s_lshr_b32 s17, s17, 6                ; pi
    s_mul_i32 s12, s2, {XP}
    s_add_u32 s13, s12, s30
    s_add_u32 s14, s12, s32
    s_mul_i32 s15, s2, {KP_STRIDE}
    s_add_u32 s15, s15, {KP}
    s_lshr_b32 s16, s2, 1
    s_lshl_b32 s16, s16, 2
    v_lshlrev_b32 v1, 4, v0               ; tid*16
    v_and_b32 v3, 15, v0                  ; c / r
    v_bfe_u32 v4, v0, 4, 2                ; g
    v_and_b32 v5, 63, v0
    v_lshlrev_b32 v6, 4, v5               ; lane*16
    """)

def conv_loads(k, pol=""):
    k(f"""
    buffer_load_dwordx4 v[16:19], v1, s[8:11], s31 offen {pol}
    s_add_u32 s31, s31, 0x1000
    buffer_load_dwordx4 v[20:23], v1, s[8:11], s31 offen {pol}
    s_add_u32 s31, s31, 0x1000
    buffer_load_dwordx4 v[24:27], v1, s[8:11], s31 offen {pol}
    s_add_u32 s31, s31, 0x1000
    buffer_load_dwordx4 v[28:31], v1, s[8:11], s31 offen {pol}
    buffer_load_dwordx4 v[12:15], v1, s[8:11], s13 offen {pol}
    """)

def conv_p3(k):
    k(f"""
    v_mov_b32 v36, 0
    v_mov_b32 v37, 0
    v_mov_b32 v38, 0
    v_mov_b32 v39, 0
    v_bfe_u32 v9, v0, 2, 2
    v_mul_u32_u24 v9, {KCS}, v9
    v_and_b32 v10, 3, v0
    v_min_u32 v10, 2, v10
    v_lshl_add_u32 v9, v10, 4, v9
    ds_write_b128 v9, v[36:39] offset:{KL}
    v_lshlrev_b32 v40, 3, v0
    s_sub_u32 s19, s18, {2 * (0x4300 - 128)}
    """)
    for e in range(11):
        k(f"v_add_u32 v{48+e}, {e-3}, v40")
        if e < 3: k(f"v_max_i32 v{48+e}, 0, v{48+e}")
        k(f"v_cvt_f32_u32 v{60+e}, v{48+e}")
    for e in range(0, 11, 2):
        k(f"v_cvt_pk_bf16_f32 v{72+e//2}, v{60+e}, v{min(61+e, 70)}")
    for e in range(11):
        src = 72 + e // 2
        if e & 1: k(f"v_lshrrev_b32 v{60+e}, 16, v{src}")
        else: k(f"v_and_b32 v{60+e}, 0xffff, v{src}")
        k(f"v_lshl_add_u32 v{60+e}, v{60+e}, 1, s19")
        k(f"v_lshl_add_u32 v{48+e}, v{48+e}, 1, s18")
    k("v_cmp_gt_u32 s[24:25], 17, v0")
    for e in range(11):
        k(f"v_cndmask_b32 v{48+e}, v{60+e}, v{48+e}, s[24:25]")
    k(f"""
    s_and_b32 s21, s17, 1
    s_sub_u32 s22, 56, s21
    s_mul_i32 s21, s21, {CSU}
    v_min_u32 v9, s22, v5
    v_lshl_add_u32 v9, v9, 3, s21
    ds_write_b64 v9, v[36:37]
    v_and_b32 v9, 1, v3
    v_mul_u32_u24 v9, {CSU}, v9
    v_lshrrev_b32 v10, 1, v3
    v_lshlrev_b32 v11, 2, v10
    v_sub_u32 v11, v11, v4
    s_lshl_b32 s21, s17, 2
    s_sub_u32 s21, 15, s21
    v_add_u32 v11, s21, v11
    v_lshl_add_u32 v9, v11, 4, v9         ; v9 = u addr
    v_and_b32 v7, 3, v3
    v_mul_u32_u24 v7, {KCS}, v7
    v_lshrrev_b32 v8, 2, v3
    v_add_u32 v8, v8, v4
    v_lshl_add_u32 v7, v8, 4, v7
    s_lshl_b32 s21, s17, 6
    s_add_u32 s21, s21, {KL}
    v_add_u32 v7, s21, v7                 ; v7 = K addr
    v_xor_b32 v8, v4, v10
    v_and_b32 v8, 3, v8
    v_lshlrev_b32 v8, 1, v8
    v_lshl_add_u32 v8, v10, 3, v8
    v_and_b32 v11, 1, v3
    v_add_u32 v8, v8, v11
    s_lshl_b32 s21, s17, 11
    v_lshl_add_u32 v10, v8, 4, s21
    v_bfe_u32 v8, v0, 2, 3
    v_xor_b32 v11, v8, v0
    v_and_b32 v11, 3, v11
    v_lshlrev_b32 v11, 5, v11
    v_lshl_add_u32 v11, v8, 7, v11
    v_bfe_u32 v8, v0, 5, 1
    v_lshl_add_u32 v11, v8, 10, v11
    s_lshl_b32 s21, s17, 13
    s_add_u32 s21, s21, {CRED}
    s_cmp_eq_u32 s17, 3
    s_cselect_b32 s21, {KL}, s21
    v_add_u32 v11, s21, v11
    """)

def conv_expand(k):
    k("""
    v_cmp_eq_u32 vcc, 0, v0
    s_waitcnt lgkmcnt(0)
    v_cndmask_b32 v48, v48, v36, vcc
    v_cndmask_b32 v49, v49, v36, vcc
    v_cndmask_b32 v50, v50, v36, vcc
    """)
    for sft in range(4):
        for j in range(4):
            k(f"v_lshl_or_b32 v{64+4*sft+j}, v{48+sft+6-2*j}, 16, v{48+sft+7-2*j}")
        k(f"ds_write_b128 v1, v[{64+4*sft}:{67+4*sft}] offset:{KL + sft*KCS + 48}")

def conv_norm(k):
    for j in range(4):
        k(f"""
        v_lshlrev_b32 v40, 16, v{12+j}
        v_and_b32 v41, 0xffff0000, v{12+j}
        v_sub_f32 v40, v40, v{16+4*j}
        v_sub_f32 v41, v41, v{18+4*j}
        v_cvt_pk_bf16_f32 v41, v40, v41
        v_lshlrev_b32 v40, 16, v41
        v_and_b32 v41, 0xffff0000, v41
        v_mul_f32 v40, v40, v{17+4*j}
        v_mul_f32 v41, v41, v{19+4*j}
        v_cvt_pk_bf16_f32 v{32+j}, v40, v41
        """)
    k(f"""
    ds_write_b128 v1, v[32:35] offset:{CSU + 16*28}
    ds_write2_b64 v1, v[32:33], v[34:35] offset0:57 offset1:58
    """)

def gen_prep():
    k = Kern("prep_kernel")
    k(f"""
    @KID 0
    @INIT
    s_load_dwordx2 s[4:5], s[0:1], {KA_WS}
    @CODEPF
    s_sub_u32 s26, s2, {B_K}
    s_cmp_lt_u32 s26, {N_K}
    s_cbranch_scc1 P_KGEN
    s_setprio {PREP_PRIO}
    s_cmp_lt_u32 s2, {B_W}
    s_cbranch_scc1 P_C
    s_cmp_lt_u32 s2, {B_T}
    s_cbranch_scc1 P_W
    s_cmp_lt_u32 s2, {B_D}
    s_cbranch_scc1 P_TR
    s_cmp_lt_u32 s2, {B_E}
    s_cbranch_scc1 P_D
    s_endpgm
    """)
    k.label("P_KGEN")
    TB = 16384
    k(f"""
    s_load_dwordx4 s[8:11], s[0:1], {KA_LOGA}
    s_load_dwordx4 s[12:15], s[0:1], {KA_CRE}
    s_load_dwordx2 s[16:17], s[0:1], {KA_LOGDT}
    s_mov_b32 s40, {fl(L2E_HI)}
    s_mov_b32 s41, {fl(L2E_LO)}
    s_mov_b32 s42, {fl(LN2)}
    v_lshrrev_b32 v1, 1, v0
    v_and_b32 v1, 0x60, v1
    v_and_or_b32 v1, v0, 31, v1           ; n = 32 w + (lane & 31)
    s_lshl_b32 s3, s26, 8
    v_lshl_add_u32 v2, v1, 1, s3
    s_lshl_b32 s18, s26, 1
    v_mov_b32 v3, s18
    v_readfirstlane_b32 s19, v0
    s_lshr_b32 s19, s19, 6                ; wave
    s_waitcnt lgkmcnt(0)
    global_load_ushort v4, v2, s[8:9]
    global_load_ushort v8, v3, s[16:17]
    global_load_ushort v5, v2, s[10:11]
    global_load_ushort v6, v2, s[12:13]
    global_load_ushort v7, v2, s[14:15]
    v_and_b32 v20, 15, v0                 ; i / j
    v_bfe_u32 v21, v0, 4, 2               ; g
    ; hi0 = 128*(i>>3) + (i&7)
    v_lshrrev_b32 v23, 3, v20
    v_and_b32 v24, 7, v20
    v_lshl_add_u32 v23, v23, 7, v24
    v_cvt_f32_u32 v30, v23
    ; hi1 = (g''<2 ? 256+2g'' : 256*g'') + 128*((i>>1)&1) + 4*(i&1)
    v_lshrrev_b32 v23, 2, v20
    v_lshlrev_b32 v24, 1, v23
    v_add_u32 v24, 0x100, v24
    v_lshlrev_b32 v25, 8, v23
    v_cmp_gt_u32 vcc, 2, v23
    v_cndmask_b32 v24, v25, v24, vcc
    v_bfe_u32 v25, v20, 1, 1
    v_lshl_add_u32 v24, v25, 7, v24
    v_and_b32 v25, 1, v20
    v_lshl_add_u32 v24, v25, 2, v24
    v_cvt_f32_u32 v31, v24
    v_lshlrev_b32 v23, 7, v20
    v_add_u32 v23, 0x400, v23
    v_cvt_f32_u32 v32, v23                ; hi2
    v_lshlrev_b32 v23, 3, v20
    v_cvt_f32_u32 v33, v23                ; lo
    s_lshl_b32 s20, s19, 9
    v_lshl_add_u32 v34, v21, 6, s20
    v_lshrrev_b32 v23, 1, v21
    v_and_b32 v24, 1, v21
    v_lshlrev_b32 v24, 2, v24
    v_lshl_add_u32 v35, v23, 7, v24
    v_lshl_add_u32 v35, v20, 3, v35
    v_mov_b32 v36, 1
    v_mov_b32 v37, 2
    s_cmp_eq_u32 s19, 0
    s_cbranch_scc1 P_KA
    v_lshl_add_u32 v35, v21, 6, v20
    v_add_u32 v35, 0x200, v35
    v_mov_b32 v36, 16
    v_mov_b32 v37, 32
    s_cmp_lg_u32 s19, 1
    s_cbranch_scc1 P_KA
    v_lshl_add_u32 v23, v20, 2, v21
    v_add_u32 v23, 0x100, v23             ; seg1: 256 + g' + 4j ; o1=2 o2=64
    v_lshlrev_b32 v24, 6, v21
    v_lshl_add_u32 v24, v20, 1, v24
    v_add_u32 v24, 0x100, v24             ; seg2: 384 + 64(g'-2) + 2j ; o1=1 o2=32
    v_cmp_gt_u32 vcc, 2, v21
    v_cndmask_b32 v35, v24, v23, vcc
    v_cndmask_b32 v36, 1, 2, vcc
    v_cndmask_b32 v37, 32, 64, vcc
    P_KA:
    v_add_u32 v38, v36, v37
    v_add_lshl_u32 v36, v36, v35, 1
    v_add_lshl_u32 v37, v37, v35, 1
    v_add_lshl_u32 v38, v38, v35, 1
    v_lshlrev_b32 v35, 1, v35
    v_and_b32 v39, 63, v0
    v_lshlrev_b32 v39, 4, v39             ; lane*16
    s_waitcnt vmcnt(3)
    @STAMP 2
    v_lshlrev_b32 v4, 16, v4
    v_lshlrev_b32 v8, 16, v8
    """)
    exp_acc(k, 10, 8, 16, 17)
    exp_acc(k, 11, 4, 18, 19)
    k(f"""
    v_cvt_pk_bf16_f32 v10, v10, v11
    v_and_b32 v11, 0xffff0000, v10        ; eA
    v_lshlrev_b32 v10, 16, v10            ; dt
    v_mul_f32 v12, v11, v10
    v_mul_f32 v12, s40, v12
    v_sub_f32 v12, 0, v12
    s_waitcnt vmcnt(0)
    v_lshlrev_b32 v5, 16, v5
    v_lshlrev_b32 v6, 16, v6
    v_lshlrev_b32 v7, 16, v7
    v_mul_f32 v13, v5, v10
    v_mul_f32 v13, 0.15915494, v13
    v_add_f32 v10, v10, v10
    v_mul_f32 v14, v6, v10                ; 2*Cre*dt
    v_mul_f32 v15, v7, v10                ; 2*Cim*dt
    v_lshlrev_b32 v9, 4, v1
    ds_write_b128 v9, v[12:15]
    v_max3_f32 v16, |v14|, |v15|, 0
    v_max_f32_dpp v16, v16, v16 row_shr:1 row_mask:0xf bank_mask:0xf
    v_max_f32_dpp v16, v16, v16 row_shr:2 row_mask:0xf bank_mask:0xf
    v_max_f32_dpp v16, v16, v16 row_shr:4 row_mask:0xf bank_mask:0xf
    v_max_f32_dpp v16, v16, v16 row_shr:8 row_mask:0xf bank_mask:0xf
    v_max_f32_dpp v16, v16, v16 row_bcast:15 row_mask:0xa bank_mask:0xf
    v_readlane_b32 s23, v16, 31
    s_mov_b32 s20, 0
    @STAMP 3
    v_mov_b32 v16, s23
    v_bfe_u32 v16, v16, 23, 8
    v_max_u32 v16, 14, v16
    v_sub_u32 v17, 0x8c, v16
    v_cvt_f32_i32 v29, v17                ; kf = 140 - e'
    v_mov_b32 v28, 0
    v_subrev_u32 v16, 13, v16
    v_lshlrev_b32 v27, 23, v16            ; Sinv
    P_KLOOP:
    ds_read_b128 v[52:55], v34
    ds_read_b128 v[56:59], v34 offset:16
    ds_read_b128 v[60:63], v34 offset:32
    ds_read_b128 v[64:67], v34 offset:48
    v_add_u32 v34, 0x100, v34
    """)
    for nn in range(4):
        p = 52 + 4 * nn
        k(f"""
        s_waitcnt lgkmcnt({3-nn})
        v_pk_mul_f32 v[2:3], v[30:31], v[{p}:{p+1}] op_sel_hi:[1,0]
        v_pk_fma_f32 v[4:5], v[32:33], v[{p}:{p+1}], v[28:29] op_sel_hi:[1,0,1]
        v_pk_mul_f32 v[6:7], v[30:31], v[{p}:{p+1}] op_sel:[0,1] op_sel_hi:[1,1]
        v_pk_mul_f32 v[8:9], v[32:33], v[{p}:{p+1}] op_sel:[0,1] op_sel_hi:[1,1]
        v_exp_f32 v2, v2
        v_exp_f32 v3, v3
        v_exp_f32 v4, v4
        v_exp_f32 v5, v5
        v_fract_f32 v6, v6
        v_fract_f32 v7, v7
        v_fract_f32 v8, v8
        v_fract_f32 v9, v9
        v_cos_f32 v10, v6
        v_sin_f32 v11, v6
        v_cos_f32 v12, v7
        v_sin_f32 v13, v7
        v_cos_f32 v14, v8
        v_sin_f32 v15, v8
        v_cos_f32 v16, v9
        v_sin_f32 v17, v9
        v_pk_mul_f32 v[10:11], v[10:11], v[2:3] op_sel_hi:[1,0]
        v_pk_mul_f32 v[12:13], v[12:13], v[2:3] op_sel:[0,1] op_sel_hi:[1,1]
        v_pk_mul_f32 v[14:15], v[14:15], v[4:5] op_sel_hi:[1,0]
        v_pk_mul_f32 v[16:17], v[16:17], v[4:5] op_sel:[0,1] op_sel_hi:[1,1]
        v_cvt_pk_f16_f32 v{68+nn}, v10, v11
        v_cvt_pk_f16_f32 v{72+nn}, v12, v13
        v_cvt_pk_f16_f32 v{76+nn}, v14, v15
        v_pk_mul_f32 v[18:19], v[16:17], v[{p+2}:{p+3}] op_sel_hi:[1,0]
        v_pk_fma_f32 v[18:19], v[16:17], v[{p+2}:{p+3}], v[18:19] op_sel:[1,1,0] op_sel_hi:[0,1,1] neg_lo:[1,0,0]
        v_cvt_pk_f16_f32 v{80+nn}, v18, -v19
        """)
    k(f"""
    s_cmp_eq_u32 s20, 1
    s_cbranch_scc1 P_KL2
    v_mfma_f32_16x16x32_f16 v[40:43], v[68:71], v[80:83], 0
    v_mfma_f32_16x16x32_f16 v[44:47], v[72:75], v[80:83], 0
    v_mfma_f32_16x16x32_f16 v[48:51], v[76:79], v[80:83], 0
    s_mov_b32 s20, 1
    s_branch P_KLOOP
    P_KL2:
    v_mfma_f32_16x16x32_f16 v[40:43], v[68:71], v[80:83], v[40:43]
    v_mfma_f32_16x16x32_f16 v[44:47], v[72:75], v[80:83], v[44:47]
    v_mfma_f32_16x16x32_f16 v[48:51], v[76:79], v[80:83], v[48:51]
    @STAMP 4
    s_mul_i32 s20, s19, 3072
    v_add_u32 v2, s20, v39
    s_lshl_b32 s20, s19, 10
    v_add_u32 v3, s20, v39
    """)
    k("v_mov_b32 v26, v27")
    for r in range(40, 52, 2): k(f"v_pk_mul_f32 v[{r}:{r+1}], v[{r}:{r+1}], v[26:27]")
    k(f"""
    ds_write_b128 v2, v[40:43] offset:4096
    ds_write_b128 v2, v[44:47] offset:5120
    ds_write_b128 v2, v[48:51] offset:6144
    s_mul_i32 s3, s26, {KP_STRIDE}
    s_add_u32 s3, s3, {KP}
    v_lshlrev_b32 v1, 4, v0
    v_add_u32 v8, s3, v1
    s_waitcnt lgkmcnt(0)
    s_barrier
    s_cmp_eq_u32 s19, 3
    s_cbranch_scc1 P_KS
    ds_read_b128 v[40:43], v3 offset:4096
    ds_read_b128 v[44:47], v3 offset:{4096+3072}
    ds_read_b128 v[48:51], v3 offset:{4096+6144}
    ds_read_b128 v[4:7], v3 offset:{4096+9216}
    s_waitcnt lgkmcnt(2)
    v_pk_add_f32 v[40:41], v[40:41], v[44:45]
    v_pk_add_f32 v[42:43], v[42:43], v[46:47]
    s_waitcnt lgkmcnt(0)
    v_pk_add_f32 v[48:49], v[48:49], v[4:5]
    v_pk_add_f32 v[50:51], v[50:51], v[6:7]
    v_pk_add_f32 v[40:41], v[40:41], v[48:49]
    v_pk_add_f32 v[42:43], v[42:43], v[50:51]
    v_cvt_pk_bf16_f32 v40, v40, v41
    v_cvt_pk_bf16_f32 v42, v42, v43
    ds_write_b16 v35, v40 offset:{TB}
    ds_write_b16_d16_hi v36, v40 offset:{TB}
    ds_write_b16 v37, v42 offset:{TB}
    ds_write_b16_d16_hi v38, v42 offset:{TB}
    P_KS:
    s_waitcnt lgkmcnt(0)
    s_barrier
    @STAMP 5
    v_cmp_gt_u32 vcc, 0x60, v0
    s_and_saveexec_b64 s[22:23], vcc
    s_cbranch_execz P_KEND
    ds_read_b128 v[40:43], v1 offset:{TB}
    s_waitcnt lgkmcnt(0)
    global_store_dwordx4 v8, v[40:43], s[4:5]
    P_KEND:
    @FLUSH 6
    s_endpgm
    """)
    k.label("P_TR")
    PITCH = 144
    k(f"""
    s_load_dwordx2 s[8:9], s[0:1], {KA_U}
    s_sub_u32 s3, s2, {B_T}
    s_lshr_b32 s10, s3, 3                 ; lt (0..31)
    s_and_b32 s11, s3, 7                  ; dt (0..7)
    v_lshrrev_b32 v1, 3, v0               ; row 0..31
    v_and_b32 v2, 7, v0                   ; chunk
    s_lshl_b32 s12, s10, 16               ; lt*64*1024
    s_lshl_b32 s13, s11, 7
    s_add_u32 s12, s12, s13
    v_lshlrev_b32 v3, 10, v1
    v_lshl_add_u32 v3, v2, 4, v3
    v_add_u32 v3, s12, v3
    v_add_u32 v4, 0x8000, v3
    s_waitcnt lgkmcnt(0)
    global_load_dwordx4 v[8:11], v3, s[8:9]
    global_load_dwordx4 v[12:15], v4, s[8:9]
    v_lshrrev_b32 v41, 6, v0
    v_and_b32 v42, 63, v0
    s_lshl_b32 s14, s3, 13                ; 8 rows * 1024
    v_lshlrev_b32 v43, 11, v41
    v_lshl_add_u32 v43, v42, 4, v43
    v_add_u32 v43, s14, v43
    global_load_dwordx4 v[48:51], v43, s[8:9]
    global_load_dwordx4 v[52:55], v43, s[8:9] offset:1024
    v_mul_u32_u24 v5, {PITCH}, v1
    v_lshl_add_u32 v5, v2, 4, v5
    v_and_b32 v6, 15, v0                  ; lam
    v_bfe_u32 v7, v0, 4, 2                ; g
    v_lshrrev_b32 v16, 6, v0              ; w
    v_lshrrev_b32 v17, 2, v6              ; r = lam>>2
    v_lshl_add_u32 v17, v7, 3, v17        ; row = 8g + r
    v_mul_u32_u24 v17, {PITCH}, v17
    v_and_b32 v18, 3, v6
    v_lshl_add_u32 v17, v18, 3, v17       ; + c*8
    v_lshl_add_u32 v17, v16, 5, v17       ; + w*32 bytes
    s_mul_i32 s12, s11, {64*XP}
    s_lshl_b32 s13, s10, 7
    s_add_u32 s12, s12, s13
    s_add_u32 s12, s12, {XT0}
    v_lshl_add_u32 v19, v16, 4, v6
    v_mul_u32_u24 v19, {XP}, v19
    v_lshl_add_u32 v19, v7, 4, v19
    v_add_u32 v19, s12, v19
    s_waitcnt vmcnt(2)
    ds_write_b128 v5, v[8:11]
    ds_write_b128 v5, v[12:15] offset:{32*PITCH}
    s_waitcnt lgkmcnt(0)
    s_barrier
    ds_read_b64_tr_b16 v[8:9], v17
    ds_read_b64_tr_b16 v[10:11], v17 offset:{4*PITCH}
    ds_read_b64_tr_b16 v[12:13], v17 offset:{32*PITCH}
    ds_read_b64_tr_b16 v[14:15], v17 offset:{36*PITCH}
    s_waitcnt lgkmcnt(0)
    global_store_dwordx4 v19, v[8:11], s[4:5] {PREP_X_POL}
    global_store_dwordx4 v19, v[12:15], s[4:5] offset:64 {PREP_X_POL}
    """)
    k(f"""
    v_mov_b32 v2, v42
    s_lshl_b32 s10, s3, 4
    v_lshlrev_b32 v4, 12, v41
    v_add_u32 v4, s10, v4                 ; w*4096 + wg*16
    v_add_u32 v5, {ST0}, v4
    v_add_u32 v6, {ST1}, v4
    s_waitcnt vmcnt(2)
    """)
    for row, (base, sm, sq) in enumerate([(48, 20, 21), (52, 22, 23)]):
        for j in range(4):
            k(f"v_lshlrev_b32 v16, 16, v{base+j}")
            k(f"v_and_b32 v17, 0xffff0000, v{base+j}")
            if j == 0:
                k(f"v_add_f32 v{sm}, v16, v17")
                k(f"v_mul_f32 v{sq}, v16, v16")
            else:
                k(f"v_add_f32 v{sm}, v{sm}, v16")
                k(f"v_add_f32 v{sm}, v{sm}, v17")
                k(f"v_fmac_f32 v{sq}, v16, v16")
            k(f"v_fmac_f32 v{sq}, v17, v17")
    for sh in ("row_shr:1", "row_shr:2", "row_shr:4", "row_shr:8"):
        for r in range(20, 24):
            k(f"v_add_f32_dpp v{r}, v{r}, v{r} {sh} row_mask:0xf bank_mask:0xf bound_ctrl:0")
    for r in range(20, 24):
        k(f"v_add_f32_dpp v{r}, v{r}, v{r} row_bcast:15 row_mask:0xa bank_mask:0xf")
    for r in range(20, 24):
        k(f"v_add_f32_dpp v{r}, v{r}, v{r} row_bcast:31 row_mask:0xc bank_mask:0xf")
    k(f"""
    v_mov_b32 v24, 0
    v_mov_b32 v25, 0
    v_mov_b32 v26, 0
    v_mov_b32 v27, 0
    s_lshl_b32 s10, s3, 9
    s_add_u32 s10, s10, {ZR}
    v_and_b32 v7, 31, v0
    v_lshl_add_u32 v7, v7, 4, s10
    global_store_dwordx4 v7, v[24:27], s[4:5]
    v_cmp_eq_u32 vcc, 63, v2
    s_and_saveexec_b64 s[22:23], vcc
    global_store_dwordx4 v5, v[20:23], s[4:5]
    global_store_dwordx4 v6, v[24:27], s[4:5]
    @FLUSH 2
    s_endpgm
    """)
    k.label("P_W")
    WPITCH = 400
    k(f"""
    s_load_dwordx4 s[8:11], s[0:1], {KA_WG}
    s_sub_u32 s3, s2, {B_W}
    s_lshr_b32 s12, s3, 4                 ; ft
    s_and_b32 s13, s3, 15                 ; s
    """)
    k(f"""
    s_mul_i32 s14, s13, {32*F*2}
    s_mul_i32 s15, s12, 192
    s_add_u32 s14, s14, s15
    s_mul_i32 s16, s12, 12
    s_mov_b32 s17, 0x15555556
    """)
    k(f"v_mov_b32 v5, {F//8}")
    for i in range(2):
        k(f"""
        v_add_u32 v1, {256*i}, v0
        v_mul_hi_u32 v2, v1, s17
        v_mul_u32_u24 v3, 12, v2
        v_sub_u32 v3, v1, v3                  ; chunk
        v_mul_u32_u24 v4, {F*2}, v2
        v_lshl_add_u32 v4, v3, 4, v4
        v_add_u32 v{40+i}, s14, v4
        v_mul_u32_u24 v4, {WPITCH}, v2
        v_lshl_add_u32 v{42+i}, v3, 5, v4
        v_add_u32 v3, s16, v3
        v_cmp_gt_u32 s[{24+2*i}:{25+2*i}], v5, v3
        """)
    for r in range(8, 24): k(f"v_mov_b32 v{r}, 0")
    k(f"""
    v_cmp_gt_u32 vcc, 0x80, v0
    s_and_b64 s[26:27], s[26:27], vcc
    s_waitcnt lgkmcnt(0)
    s_mov_b64 s[28:29], exec
    s_mov_b64 exec, s[24:25]
    s_cbranch_execz P_W1
    global_load_dwordx4 v[8:11], v40, s[8:9]
    global_load_dwordx4 v[12:15], v40, s[10:11]
    P_W1:
    s_mov_b64 exec, s[26:27]
    s_cbranch_execz P_W2
    global_load_dwordx4 v[16:19], v41, s[8:9]
    global_load_dwordx4 v[20:23], v41, s[10:11]
    P_W2:
    s_mov_b64 exec, s[28:29]
    s_waitcnt vmcnt(0)
    ds_write2_b32 v42, v8, v9 offset0:0 offset1:2
    ds_write2_b32 v42, v10, v11 offset0:4 offset1:6
    ds_write2_b32 v42, v12, v13 offset0:1 offset1:3
    ds_write2_b32 v42, v14, v15 offset0:5 offset1:7
    s_and_saveexec_b64 s[28:29], vcc
    s_cbranch_execz P_W3
    ds_write2_b32 v43, v16, v17 offset0:0 offset1:2
    ds_write2_b32 v43, v18, v19 offset0:4 offset1:6
    ds_write2_b32 v43, v20, v21 offset0:1 offset1:3
    ds_write2_b32 v43, v22, v23 offset0:5 offset1:7
    P_W3:
    s_mov_b64 exec, s[28:29]
    v_and_b32 v1, 15, v0
    v_bfe_u32 v2, v0, 4, 2
    v_lshrrev_b32 v3, 2, v1
    v_lshl_add_u32 v3, v2, 2, v3
    v_mul_u32_u24 v3, {WPITCH}, v3
    v_and_b32 v4, 3, v1
    v_lshl_add_u32 v3, v4, 3, v3
    v_readfirstlane_b32 s18, v0
    s_lshr_b32 s18, s18, 6                ; w
    s_lshl_b32 s19, s18, 7
    s_mov_b32 s20, 32
    s_cmp_eq_u32 s18, 3
    s_cselect_b32 s19, 96, s19
    s_cselect_b32 s20, 128, s20
    v_add_u32 v3, s19, v3
    v_add_u32 v4, s20, v3
    v_add_u32 v5, s20, v4
    s_lshl_b32 s21, s12, 2
    s_add_u32 s21, s21, s18
    s_lshl_b32 s21, s21, 4
    s_add_u32 s21, s21, s13
    s_mul_i32 s21, s21, 3072
    s_add_u32 s21, s21, {WP}
    v_and_b32 v6, 63, v0
    v_lshlrev_b32 v6, 4, v6
    v_add_u32 v6, s21, v6
    v_add_u32 v7, 0x400, v6
    v_add_u32 v24, 0x800, v6
    s_waitcnt lgkmcnt(0)
    s_barrier
    ds_read_b64_tr_b16 v[8:9], v3
    ds_read_b64_tr_b16 v[10:11], v3 offset:{16*WPITCH}
    ds_read_b64_tr_b16 v[12:13], v4
    ds_read_b64_tr_b16 v[14:15], v4 offset:{16*WPITCH}
    ds_read_b64_tr_b16 v[16:17], v5
    ds_read_b64_tr_b16 v[18:19], v5 offset:{16*WPITCH}
    s_waitcnt lgkmcnt(0)
    global_store_dwordx4 v6, v[8:11], s[4:5] {PREP_W_POL}
    global_store_dwordx4 v7, v[12:15], s[4:5] {PREP_W_POL}
    global_store_dwordx4 v24, v[16:19], s[4:5] {PREP_W_POL}
    @FLUSH 2
    s_endpgm
    """)
    k.label("P_D")
    DPITCH = 272
    k(f"""
    s_load_dwordx2 s[8:9], s[0:1], {KA_WD}
    s_sub_u32 s3, s2, {B_D}
    s_lshr_b32 s12, s3, 2                 ; ks 0..43
    s_and_b32 s13, s3, 3                  ; dq
    v_lshrrev_b32 v1, 4, v0               ; row 0..15 (+16)
    v_and_b32 v2, 15, v0                  ; chunk
    s_lshl_b32 s14, s12, 15               ; ks*32*1024
    s_lshl_b32 s15, s13, 8
    s_add_u32 s14, s14, s15
    v_lshlrev_b32 v3, 10, v1
    v_lshl_add_u32 v3, v2, 4, v3
    v_add_u32 v3, s14, v3
    v_add_u32 v4, 0x4000, v3
    """)
    for r in range(8, 16): k(f"v_mov_b32 v{r}, 0")
    k(f"""
    s_waitcnt lgkmcnt(0)
    s_cmp_ge_u32 s12, 43
    s_cbranch_scc1 P_D1
    global_load_dwordx4 v[8:11], v3, s[8:9]
    global_load_dwordx4 v[12:15], v4, s[8:9]
    P_D1:
    v_bfe_u32 v5, v1, 1, 2                ; g
    v_lshrrev_b32 v6, 3, v1               ; dw (0/1)
    v_and_b32 v7, 1, v1
    v_lshl_add_u32 v7, v6, 1, v7
    v_lshl_add_u32 v7, v5, 3, v7          ; rho
    v_mul_u32_u24 v7, {DPITCH}, v7
    v_lshl_add_u32 v7, v2, 4, v7
    v_and_b32 v1, 15, v0
    v_bfe_u32 v2, v0, 4, 2
    v_lshrrev_b32 v16, 6, v0
    v_lshrrev_b32 v3, 2, v1
    v_lshl_add_u32 v3, v2, 3, v3          ; row = 8g + r
    v_mul_u32_u24 v3, {DPITCH}, v3
    v_and_b32 v4, 3, v1
    v_lshl_add_u32 v3, v4, 3, v3          ; + c*8 bytes (4 d)
    v_lshl_add_u32 v3, v16, 6, v3         ; + w*64
    s_lshl_b32 s16, s13, 3
    v_lshl_add_u32 v17, v16, 1, s16
    v_mul_u32_u24 v17, {NKS2*1024}, v17
    v_and_b32 v18, 63, v0
    v_lshl_add_u32 v17, v18, 4, v17
    s_lshl_b32 s16, s12, 10
    s_add_u32 s16, s16, {WD}
    v_add_u32 v17, s16, v17
    v_add_u32 v18, {NKS2*1024}, v17
    s_waitcnt vmcnt(0)
    ds_write_b128 v7, v[8:11]
    ds_write_b128 v7, v[12:15] offset:{4*DPITCH}
    s_waitcnt lgkmcnt(0)
    s_barrier
    ds_read_b64_tr_b16 v[8:9], v3
    ds_read_b64_tr_b16 v[10:11], v3 offset:{4*DPITCH}
    ds_read_b64_tr_b16 v[12:13], v3 offset:32
    ds_read_b64_tr_b16 v[14:15], v3 offset:{4*DPITCH+32}
    s_waitcnt lgkmcnt(0)
    global_store_dwordx4 v17, v[8:11], s[4:5] {PREP_W_POL}
    global_store_dwordx4 v18, v[12:15], s[4:5] {PREP_W_POL}
    @FLUSH 2
    s_endpgm
    """)
    k.label("P_C")
    k(f"""
    s_load_dwordx4 s[8:11], s[0:1], {KA_WG}
    s_sub_u32 s3, s2, {B_C}
    s_and_b32 s12, s3, 1                  ; mat
    s_lshr_b32 s13, s3, 1                 ; cb 0..21
    v_lshrrev_b32 v1, 3, v0
    v_and_b32 v2, 7, v0                   ; chunk
    s_lshl_b32 s14, s13, 3
    v_add_u32 v3, s14, v2
    v_mul_u32_u24 v4, {F*2}, v1
    v_lshl_add_u32 v4, v3, 4, v4
    s_waitcnt lgkmcnt(0)
    s_cmp_eq_u32 s12, 1
    s_cselect_b32 s8, s10, s8
    s_cselect_b32 s9, s11, s9
    v_mov_b32 v5, {F//8}
    v_cmp_gt_u32 vcc, v5, v3
    """)
    for r in range(8, 16): k(f"v_mov_b32 v{r}, 0")
    k("""
    s_and_saveexec_b64 s[28:29], vcc
    s_cbranch_execz P_C2
    """)
    for i in range(16):
        k(f"global_load_dwordx4 v[{16+4*i}:{19+4*i}], v4, s[8:9]")
        if i < 15: k(f"v_add_u32 v4, {32*F*2}, v4")
    for i in range(16):
        k(f"s_waitcnt vmcnt({15-i})")
        for j in range(4):
            k(f"v_lshlrev_b32 v6, 16, v{16+4*i+j}")
            k(f"v_and_b32 v7, 0xffff0000, v{16+4*i+j}")
            k(f"v_add_f32 v{8+2*j}, v{8+2*j}, v6")
            k(f"v_add_f32 v{9+2*j}, v{9+2*j}, v7")
    k(f"""
    P_C2:
    s_mov_b64 exec, s[28:29]
    v_lshlrev_b32 v6, 5, v0
    ds_write_b128 v6, v[8:11]
    ds_write_b128 v6, v[12:15] offset:16
    s_waitcnt lgkmcnt(0)
    s_barrier
    v_cmp_gt_u32 vcc, 64, v0
    s_and_saveexec_b64 s[28:29], vcc
    s_cbranch_execz P_C3
    v_lshlrev_b32 v6, 2, v0
    """)
    for i in range(32):
        k(f"ds_read_b32 v{16+i}, v6 offset:{256*i}")
    k("s_waitcnt lgkmcnt(0)")
    for i in range(1, 32):
        k(f"v_add_f32 v16, v16, v{16+i}")
    k(f"""
    s_lshl_b32 s14, s13, 6
    v_add_u32 v1, s14, v0                 ; f
    s_mov_b32 s17, 0x2aaaaab
    v_mul_hi_u32 v2, v1, s17              ; ft
    v_mul_u32_u24 v3, 96, v2
    v_sub_u32 v3, v1, v3                  ; rem
    v_lshrrev_b32 v4, 5, v3               ; j
    v_bfe_u32 v5, v3, 3, 2                ; dw
    v_mul_u32_u24 v7, 3, v4
    v_add_u32 v7, v7, v5                  ; 3j + dw
    v_add_u32 v8, 9, v4                   ; 9 + j
    v_cmp_eq_u32 vcc, 3, v5
    v_cndmask_b32 v7, v7, v8, vcc         ; w*3+tau
    v_mul_u32_u24 v8, 12, v2
    v_add_u32 v7, v7, v8
    v_lshlrev_b32 v7, 4, v7
    v_bfe_u32 v8, v3, 1, 2
    v_lshl_add_u32 v7, v8, 2, v7
    v_and_b32 v8, 1, v3
    v_add_u32 v7, v7, v8
    s_lshl_b32 s14, s12, 1
    v_add_u32 v7, s14, v7
    v_lshlrev_b32 v7, 2, v7
    v_add_u32 v7, {CSUM}, v7
    global_store_dword v7, v16, s[4:5]
    s_cmp_lg_u32 s13, 21
    s_cbranch_scc1 P_C3
    v_cmp_gt_u32 vcc, 32, v0
    s_and_b64 exec, exec, vcc
    v_bfe_u32 v5, v0, 3, 2
    v_add_u32 v7, 6, v5
    v_cmp_eq_u32 vcc, 3, v5
    v_cndmask_b32 v7, v7, 11, vcc
    v_add_u32 v7, {14*12}, v7
    v_lshlrev_b32 v7, 4, v7
    v_bfe_u32 v8, v0, 1, 2
    v_lshl_add_u32 v7, v8, 2, v7
    v_and_b32 v8, 1, v0
    v_add_u32 v7, v7, v8
    v_add_u32 v7, s14, v7
    v_lshlrev_b32 v7, 2, v7
    v_add_u32 v7, {CSUM}, v7
    v_mov_b32 v16, 0
    global_store_dword v7, v16, s[4:5]
    P_C3:
    @FLUSH 2
    s_endpgm
    """)
    return k, dict(vgpr=96, sgpr=48, accum=96, grid=PREP_WGS, block=256, lds=PREP_LDS)


def stats_pair(k, sa, qa, sb, qb, t, keep=None):
    for s_, q_ in ((sa, qa), (sb, qb)):
        k(f"""
        v_mul_f32 v{s_}, s43, v{s_}
        v_mul_f32 v{q_}, s43, v{q_}
        v_fma_f32 v{q_}, -v{s_}, v{s_}, v{q_}
        v_max_f32 v{q_}, 0, v{q_}
        v_cvt_pk_bf16_f32 v{q_}, v{s_}, v{q_}
        v_lshlrev_b32 v{s_}, 16, v{q_}
        v_and_b32 v{q_}, 0xffff0000, v{q_}
        v_add_f32 v{q_}, s44, v{q_}
        """)
    k(f"""
    v_cvt_pk_bf16_f32 v{t}, v{qa}, v{qb}
    v_lshlrev_b32 v{qa}, 16, v{t}
    v_and_b32 v{qb}, 0xffff0000, v{t}
    v_sqrt_f32 v{qa}, v{qa}
    v_sqrt_f32 v{qb}, v{qb}
    v_cvt_pk_bf16_f32 v{t}, v{qa}, v{qb}
    v_lshlrev_b32 v{keep[0] if keep else qa}, 16, v{t}
    v_and_b32 v{keep[1] if keep else qb}, 0xffff0000, v{t}
    v_rcp_f32 v{qa}, v{keep[0] if keep else qa}
    v_rcp_f32 v{qb}, v{keep[1] if keep else qb}
    """)


def gen_conv():
    k = Kern("conv")
    k(f"""
    conv1_kernel:
    s_mov_b32 s30, {XT0}
    s_mov_b32 s31, {ST0}
    s_mov_b32 s32, {X1T}
    @KID 1
    CONV_BODY:
    s_cmp_ge_u32 s2, 512
    s_cbranch_scc1 CONV_END
    @INIT
    s_load_dwordx2 s[4:5], s[0:1], {KA_WS}
    s_load_dwordx2 s[6:7], s[0:1], {KA_DSKIP}
    """)
    conv_setup(k)
    k(f"""
    s_lshl_b32 s18, s17, 11
    s_add_u32 s18, s18, {CRED}
    """)
    conv_p3(k)
    k("""
    @STAMP 10
    s_waitcnt lgkmcnt(0)
    @STAMP 11
    s_load_dword s20, s[6:7], s16
    """)
    srd(k, 8, 4, WS_BYTES)
    k(f"""
    s_mov_b32 m0, s18
    s_nop 0
    buffer_load_dwordx4 v6, s[8:11], s15 offen lds
    buffer_load_dwordx4 v6, s[8:11], s15 offen offset:1024 lds
    """)
    conv_loads(k)
    k("""
    @STAMP 12
    @STAMP 2
    s_waitcnt vmcnt(5)
    """)
    for e in range(11):
        k(f"ds_read_u16 v{48+e}, v{48+e}")
    conv_expand(k)
    k("""
    s_waitcnt vmcnt(1)
    @STAMP 3
    """)
    for i in range(4):
        stats_pair(k, 16 + 4*i, 17 + 4*i, 18 + 4*i, 19 + 4*i, 40)
    k("s_waitcnt vmcnt(0)")
    conv_norm(k)
    if CPF:
        k(f"""
        s_lshr_b32 s21, s2, 3
        s_lshl_b32 s21, s21, 2
        s_add_u32 s21, s21, s17
        s_mul_i32 s22, s21, 6144
        s_and_b32 s23, s2, 1
        s_mul_i32 s23, s23, {8*196608}
        s_add_u32 s22, s22, s23
        s_add_u32 s22, s22, {WP}
        v_mul_u32_u24 v38, {CPF_STRIDE}, v5
        """)
        for j in range(-(-6144 // (64 * CPF_STRIDE))):
            k(f"buffer_load_dword v39, v38, s[8:11], s22 offen\ns_add_u32 s22, s22, {64*CPF_STRIDE}")
    if CODEPF2:
        k(f"""
        s_cmp_ge_u32 s2, 8
        s_cbranch_scc1 CONV_NOPF
        s_getpc_b64 s[22:23]
        v_lshlrev_b32 v38, 6, v0
        global_load_dword v39, v38, s[22:23]
        CONV_NOPF:
        """)
    k("""
    @STAMP 4
    s_waitcnt lgkmcnt(0)
    s_barrier
    CONV_MAIN2:
    @STAMP 5
    """)
    KF = 48; UB = 16; ACC = 112
    pend = []
    def rd(tag):
        if tag[0] == "U":
            mu = int(tag[1:]); r = UB + 4 * (mu & 3)
            k(f"ds_read_b128 v[{r}:{r+3}], v9 offset:{256*mu}")
        else:
            t = int(tag[1:]); r = KF + 4 * t
            k(f"ds_read_b128 v[{r}:{r+3}], v7 offset:{256*t}")
        pend.append(tag)
    def need(tags):
        idx = max([pend.index(t) for t in tags if t in pend], default=-1)
        if idx >= 0:
            k(f"s_waitcnt lgkmcnt({len(pend) - idx - 1})")
            del pend[:idx + 1]
    queue = ["U0"] + [f"K{t}" for t in range(1, 16, 2)] + ["U1"] + [f"K{t}" for t in range(0, 16, 2)] + ["U2", "U3"]
    for t in queue[:12]: rd(t)
    queue = queue[12:]
    for mu in range(16):
        a = UB + 4 * (mu & 3)
        q0 = max(0, -(-(mu - 1) // 2))
        for q in range(q0, 8):
            tp = 2 * q + 1 - mu
            need([f"U{mu}", f"K{tp}"])
            c = "0" if mu == 0 else f"v[{ACC+4*q}:{ACC+4*q+3}]"
            k(f"v_mfma_f32_16x16x32_bf16 v[{ACC+4*q}:{ACC+4*q+3}], v[{KF+4*tp}:{KF+4*tp+3}], v[{a}:{a+3}], {c}")
            if queue: rd(queue.pop(0))
        if mu + 4 < 16: rd(f"U{mu+4}")
        if mu & 1 and mu >= 3:
            q = (mu - 3) // 2
            k(f"ds_write_b128 v10, v[{ACC+4*q}:{ACC+4*q+3}] offset:{(CRED + (q>>1)*8192 if q < 6 else KL) + (q&1)*1024}")
            pend.append("W")
        if mu == 6:
            assert not any(t[0] == "K" for t in pend + queue)
            k("s_barrier")
    k("@STAMP 6")
    k(f"""
    s_and_b32 s21, s20, 0xffff0000
    s_lshl_b32 s20, s20, 16
    s_bitcmp1_b32 s2, 0
    s_cselect_b32 s20, s21, s20
    """)
    for p in range(4):
        k(f"""
        v_lshlrev_b32 v40, 16, v{32+p}
        v_and_b32 v41, 0xffff0000, v{32+p}
        v_mul_f32 v40, s20, v40
        v_mul_f32 v41, s20, v41
        v_cvt_pk_bf16_f32 v41, v40, v41
        """)
        if p == 0:
            k(f"ds_write_b128 v10, v[{ACC+28}:{ACC+31}] offset:{KL + 1024}")
        k(f"""
        v_lshlrev_b32 v{48+2*p}, 16, v41
        v_and_b32 v{49+2*p}, 0xffff0000, v41
        v_lshlrev_b32 v{56+2*p}, 16, v{12+p}
        v_and_b32 v{57+2*p}, 0xffff0000, v{12+p}
        """)
    k("""
    s_waitcnt lgkmcnt(0)
    s_barrier
    @STAMP 7
    """)
    for src in range(4):
        for t in range(2):
            k(f"ds_read_b128 v[{ACC+8*src+4*t}:{ACC+8*src+4*t+3}], v11 offset:{src*2048 + t*16}")
    k("s_waitcnt lgkmcnt(4)")
    for r in range(0, 8, 2):
        k(f"v_pk_add_f32 v[{ACC+r}:{ACC+r+1}], v[{ACC+r}:{ACC+r+1}], v[{ACC+8+r}:{ACC+9+r}]")
    k("s_waitcnt lgkmcnt(0)")
    for r in range(0, 8, 2):
        k(f"v_pk_add_f32 v[{ACC+16+r}:{ACC+17+r}], v[{ACC+16+r}:{ACC+17+r}], v[{ACC+24+r}:{ACC+25+r}]")
    for r in range(0, 8, 2):
        k(f"v_pk_add_f32 v[{ACC+r}:{ACC+r+1}], v[{ACC+r}:{ACC+r+1}], v[{ACC+16+r}:{ACC+17+r}]")
    k("@STAMP 8")
    for p in range(4):
        y0, y1 = ACC + 2*p, ACC + 2*p + 1
        k(f"""
        v_cvt_pk_bf16_f32 v{y1}, v{y0}, v{y1}
        v_lshlrev_b32 v{y0}, 16, v{y1}
        v_and_b32 v{y1}, 0xffff0000, v{y1}
        v_pk_add_f32 v[{y0}:{y1}], v[{y0}:{y1}], v[{48+2*p}:{49+2*p}]
        v_cvt_pk_bf16_f32 v{y1}, v{y0}, v{y1}
        v_lshlrev_b32 v{y0}, 16, v{y1}
        v_and_b32 v{y1}, 0xffff0000, v{y1}
        v_pk_add_f32 v[{y0}:{y1}], v[{y0}:{y1}], v[{56+2*p}:{57+2*p}]
        v_cvt_pk_bf16_f32 v{44+p}, v{y0}, v{y1}
        """)
    k(f"""
    buffer_store_dwordx4 v[44:47], v1, s[8:11], s14 offen {CONV_ST}
    @STAMP 9
    @FLUSH 13
    CONV_END:
    s_endpgm
    .p2align 8
    conv2_kernel:
    s_mov_b32 s30, {X2T}
    s_mov_b32 s31, {ST1}
    s_mov_b32 s32, {X3T}
    @KID 4
    s_branch CONV_BODY
    """)
    info = dict(vgpr=144, sgpr=48, accum=144, grid=512, block=256, lds=CONV_LDS)
    return k, info

MLP_LDS = 163840
H_LD = os.environ.get('H_LD', 'sc1')
M_PRE2 = int(os.environ.get('M_PRE2', '5'))
M_OLD = int(os.environ.get('M_OLD', '1'))
M_LOOK = int(os.environ.get('M_LOOK', '5'))
M_TOUCH = int(os.environ.get('M_TOUCH', '0'))
M_PRE = int(os.environ.get('M_PRE', '8'))
M_OPS = int(os.environ.get('M_OPS', '3'))
M_RAMP = int(os.environ.get('M_RAMP', '5'))
M_WDM = int(os.environ.get('M_WDM', '4'))
M_WDE = int(os.environ.get('M_WDE', '2'))
M_AHEAD2 = int(os.environ.get('M_AHEAD2', '6'))
SPIN_MAX = 1 << 20
SLOT = 40960
def gen_mlp():
    k = Kern("mlp")
    ACC = 0
    FR = 48
    XA = 104
    WA = 112
    CSR = 114
    STV = 126
    RES = 130
    VDMA, VW, VT0, VT1, VT2 = 134, 135, 136, 137, 138
    SA = 139
    VRES = 142; VSTX = 143; VPUB = 144; VCS = 145
    MR = 146
    TMP = 150
    NV = 168
    def wdreg(i): return f"a[{4*i}:{4*i+3}]"
    k(f"""
    mlpa_kernel:
    s_mov_b32 s30, {X1T}
    s_mov_b32 s31, {HB}
    s_mov_b32 s33, {STX}
    s_mov_b32 s34, {FLG}
    s_mov_b32 s35, 0
    @KID 2
    M_BODY:
    s_cmp_ge_u32 s2, 256
    s_cbranch_scc1 M_END
    @INIT
    s_load_dwordx2 s[4:5], s[0:1], {KA_WS}
    s_load_dwordx2 s[6:7], s[0:1], {KA_OUT}
    v_readfirstlane_b32 s17, v0
    s_and_b32 s12, s2, 7                  ; xcd
    s_lshr_b32 s13, s2, 3                 ; idx
    s_lshr_b32 s14, s12, 1
    s_lshl_b32 s14, s14, 2
    s_and_b32 s15, s13, 3
    s_add_u32 s14, s14, s15               ; lt
    s_lshl_b32 s36, s12, 2
    s_add_u32 s36, s36, s15               ; lt64
    s_lshr_b32 s37, s13, 2                ; dt
    s_and_b32 s15, s12, 1
    s_lshl_b32 s15, s15, 3
    s_add_u32 s15, s15, s37               ; ft
    s_lshr_b32 s17, s17, 6                ; w
    s_and_b32 s16, s17, 3
    s_lshr_b32 s29, s17, 2
    v_and_b32 v{VT0}, 63, v0              ; lane
    v_and_b32 v{VT1}, 15, v0              ; lam / j
    v_bfe_u32 v{VT2}, v0, 4, 2            ; g
    s_and_b32 s20, s17, 1
    s_lshl_b32 s20, s20, 2
    v_lshrrev_b32 v{TMP}, 1, v{VT1}
    v_xor_b32 v{TMP+1}, v{TMP}, v{VT2}
    v_xor_b32 v{TMP+1}, s20, v{TMP+1}
    v_and_b32 v{TMP+3}, 1, v{VT1}
    v_lshlrev_b32 v{TMP+3}, 4, v{TMP+3}
    v_mul_u32_u24 v{TMP+4}, {XP}, v{VT2}
    v_add_u32 v{TMP+3}, v{TMP+4}, v{TMP+3}
    v_lshl_add_u32 v{VDMA}, v{TMP+1}, 5, v{TMP+3}
    v_lshlrev_b32 v{VW}, 4, v{VT0}                    ; lane*16
    s_lshl_b32 s18, s14, 8
    s_add_u32 s18, s18, s30
    s_mul_i32 s19, s17, {4*XP}
    s_add_u32 s18, s18, s19
    s_lshl_b32 s19, s17, 10               ; x m0 part: w*1024
    s_lshl_b32 s20, s15, 2
    s_add_u32 s20, s20, s16
    s_lshl_b32 s21, s20, 4
    s_add_u32 s21, s21, s29
    s_mul_i32 s21, s21, 3072
    s_add_u32 s21, s21, {WP}
    s_mul_i32 s22, s17, 3072
    s_add_u32 s22, s22, 0x4000
    s_mul_i32 s24, s20, {3*16*4}
    s_add_u32 s24, s24, {CSUM}
    s_lshl_b32 s38, s37, 2
    s_add_u32 s38, s38, s16
    s_mul_i32 s38, s38, {NKS2*1024}
    s_mul_i32 s23, s29, {22*1024}
    s_add_u32 s38, s38, s23
    s_add_u32 s38, s38, {WD}
    """)
    def group_parts(t):
        base = (t & 3) * SLOT
        parts = [f"""
        s_add_u32 m0, s19, {base}
        s_nop 0
        buffer_load_dwordx4 v{VDMA}, s[8:11], s18 offen lds
        s_add_u32 s18, s18, {32*XP}
        """, f"""
        s_add_u32 m0, s22, {base}
        s_nop 0
        buffer_load_dwordx4 v{VW}, s[8:11], s21 offen lds
        """, f"""
        buffer_load_dwordx4 v{VW}, s[8:11], s21 offen offset:1024 lds
        """, f"""
        buffer_load_dwordx4 v{VW}, s[8:11], s21 offen offset:2048 lds
        s_add_u32 s21, s21, 0x1800
        """, f"""
        s_add_u32 m0, s19, {base + 8192}
        s_nop 0
        buffer_load_dwordx4 v{VDMA}, s[8:11], s18 offen lds
        s_add_u32 s18, s18, {32*XP}
        """]
        return parts
    def wd_part(i):
        p = f"buffer_load_dwordx4 {wdreg(i)}, v{VW}, s[8:11], s38 offen offset:{1024*(i&3)}"
        if (i & 3) == 3: p += "\ns_add_u32 s38, s38, 0x1000"
        return p
    def common_addr():
        k(f"""
        s_mov_b32 s43, {fl(1.0/512)}
        s_mov_b32 s44, {fl(1e-5)}
        s_mov_b32 s45, {fl(-LOG2E)}
        v_lshrrev_b32 v{TMP}, 2, v{VT1}
        v_lshl_add_u32 v{TMP}, v{VT2}, 2, v{TMP}          ; 4g + r
        v_and_b32 v{TMP+1}, 7, v{TMP}                     ; xi
        v_and_b32 v{TMP+2}, 3, v{VT1}
        v_lshlrev_b32 v{TMP+2}, 3, v{TMP+2}
        v_lshl_add_u32 v{TMP+2}, v{TMP}, 8, v{TMP+2}
        v_mul_u32_u24 v{VRES}, {XP}, v{VT1}
        v_lshl_add_u32 v{VRES}, v{VT2}, 4, v{VRES}
        s_lshl_b32 s39, s37, 2
        s_add_u32 s39, s39, s16
        s_mul_i32 s39, s39, {16*XP}
        s_lshl_b32 s40, s36, 7
        s_add_u32 s39, s39, s40
        s_lshl_b32 s40, s29, 6
        s_add_u32 s39, s39, s40
        s_add_u32 s40, s39, s30
        """)
    res_parts = [f"buffer_load_dwordx4 v[{RES}:{RES+3}], v{VRES}, s[8:11], s40 offen"]
    common_addr()
    k("s_lshl_b32 s25, s29, 2")
    for b in range(4):
        k(f"""
        s_add_u32 s26, s25, {b}
        v_xor_b32 v{TMP+3}, s26, v{TMP+1}
        v_lshl_add_u32 v{XA+b}, v{TMP+3}, 5, v{TMP+2}
        v_add_u32 v{XA+4+b}, {2*SLOT}, v{XA+b}
        """)
    k(f"""
    s_mul_i32 s26, s16, 3072
    s_add_u32 s26, s26, 0x4000
    v_add_u32 v{WA}, s26, v{VW}
    v_add_u32 v{WA+1}, {2*SLOT}, v{WA}
    """)
    def late_addr():
        k(f"""
        v_bfe_u32 v{TMP}, v{VT1}, 2, 1                    ; half
        v_mul_u32_u24 v{TMP+4}, 3072, v{TMP}
        v_lshrrev_b32 v{TMP}, 3, v{VT1}
        v_lshl_add_u32 v{TMP+4}, v{TMP}, 6, v{TMP+4}
        v_and_b32 v{TMP}, 3, v{VT1}
        v_lshl_add_u32 v{TMP+4}, v{TMP}, 4, v{TMP+4}
        v_lshl_add_u32 v{TMP+4}, v{VT2}, 8, v{TMP+4}
        s_lshl_b32 s26, s16, 10
        s_cmp_eq_u32 s16, 3
        s_cselect_b32 s26, 12, s26
        s_cselect_b32 s27, 0x400, 4
        s_mul_i32 s28, s29, 12288
        s_add_u32 s26, s26, s28
        v_add_u32 v{SA}, s26, v{TMP+4}
        v_add_u32 v{SA+1}, s27, v{SA}
        v_add_u32 v{SA+2}, s27, v{SA+1}
        v_lshlrev_b32 v{VSTX}, 2, v{VT1}
        s_lshl_b32 s41, s14, 9
        s_lshl_b32 s26, s29, 8
        s_add_u32 s41, s41, s26
        s_add_u32 s41, s41, s33
        s_mul_i32 s26, s17, 3072
        v_add_u32 v{VPUB}, s26, v{VW}
        s_lshl_b32 s42, s14, 3
        s_add_u32 s42, s42, s17
        s_mul_i32 s42, s42, {HKS*1024}
        s_mul_i32 s26, s15, 3072
        s_add_u32 s42, s42, s26
        s_add_u32 s42, s42, s31
        v_lshlrev_b32 v{VCS}, 4, v{VT2}
        """)
    late_addr()
    k(f"""
    v_lshrrev_b32 v{TMP+6}, 3, v{VT0}
    v_mul_u32_u24 v{TMP+6}, {XP}, v{TMP+6}
    v_and_b32 v{TMP+7}, 7, v{VT0}
    v_lshl_add_u32 v{TMP+6}, v{TMP+7}, 5, v{TMP+6}
    s_lshl_b32 s46, s37, 3
    s_add_u32 s46, s46, s17
    s_mul_i32 s46, s46, {8*XP}
    s_lshl_b32 s47, s14, 8
    s_add_u32 s46, s46, s47
    s_add_u32 s46, s46, s30
    """)
    k("s_waitcnt lgkmcnt(0)")
    srd(k, 8, 4, WS_BYTES)
    if M_TOUCH & 1: k(f"buffer_load_dword v{TMP+8}, v{TMP+6}, s[8:11], s46 offen")
    k("""
    s_cmp_eq_u32 s15, 15
    s_cbranch_scc1 M_STATS
    """)
    def reads(s):
        res = []
        t = s >> 1; hi = (t & 3) >> 1; base = (t & 1) * SLOT
        buf = FR + 28 * (s & 1)
        for tau in range(3):
            r = buf + 16 + 4 * tau
            res.append(f"ds_read_b128 v[{r}:{r+3}], v{WA+hi} offset:{base + (s&1)*12288 + tau*1024}")
        for b in range(4):
            off = base + (s & 1) * 8192
            res.append(f"ds_read_b64_tr_b16 v[{buf+4*b}:{buf+4*b+1}], v{XA+4*hi+b} offset:{off}")
            res.append(f"ds_read_b64_tr_b16 v[{buf+4*b+2}:{buf+4*b+3}], v{XA+4*hi+b} offset:{off+4096}")
        return res
    later = [f"buffer_load_dwordx4 v[{CSR+4*tau}:{CSR+4*tau+3}], v{VCS}, s[8:11], s24 offen offset:{64*tau}" for tau in range(3)]
    later += res_parts
    later += [wd_part(i) for i in range(M_WDM)]
    later += [f"buffer_load_dword v{STV+b}, v{VSTX}, s[8:11], s41 offen offset:{64*b} sc1" for b in range(4)]
    n_need = len(later)
    later += [wd_part(i) for i in range(M_WDM, 22)]
    vm = []
    def wait_for(tag):
        assert not any(o[1] == tag for o in opq), tag
        idxs = [i for i, x in enumerate(vm) if x == tag]
        if not idxs: return
        idx = max(idxs)
        k(f"s_waitcnt vmcnt({len(vm) - idx - 1})")
        del vm[:idx + 1]
    opq = []
    for u in range(8):
        gp = group_parts(u)
        e0 = max(2*u - 7, 2*u - M_LOOK)
        if M_OLD: e0 = {0: -1, 1: -1, 2: 0, 3: 1}.get(u, 2*u - 6)
        for j in (0, 1, 2): opq.append((gp[j], f"D{2*u}", e0))
        opq.append((gp[3], f"D{2*u}", e0 + 1 if u > (3 if M_OLD else 1) else e0))
        opq.append((gp[4], f"D{2*u+1}", e0 + 1 if u > (3 if M_OLD else 1) else e0))
    for i, p in enumerate(later[:n_need]): opq.append((p, "N", -100))
    nlater = n_need
    def issue(n, s):
        out = []
        while opq and len(out) < n and opq[0][2] <= s:
            out.append(opq.pop(0))
        return out
    for p, tag, _ in issue(10 if M_OLD else M_PRE, -1):
        k(p); vm.append(tag)
    k("@STAMP 2")
    wait_for("D1" if M_OLD else "D0")
    k("s_barrier")
    k("@STAMP 3")
    for r in reads(0): k(r)
    EXP = os.environ.get('EXP', '')
    for s in range(16):
        if M_OLD:
            bar = False
            if s == 1: wait_for("D3"); bar = True
            elif (s & 1) == 0 and 0 < s < 14: wait_for(f"D{s+3}"); bar = True
            if bar: k("s_barrier")
            k("s_waitcnt lgkmcnt(0)")
        else:
            if s == 0: wait_for("D1")
            elif s < 15 and (s & 1): wait_for(f"D{s+2}")
            k("s_waitcnt lgkmcnt(0)")
            if s < 15 and (s == 0 or (s & 1)): k("s_barrier")
        if s == 8: k("@STAMP 4")
        fill = reads(s + 1) if s < 15 else []
        mf = []
        buf = FR + 28 * (s & 1)
        for b in range(4):
            for tau in range(3):
                a = ACC + (b * 3 + tau) * 4
                c = "0" if s == 0 else f"v[{a}:{a+3}]"
                mf.append(f"v_mfma_f32_16x16x32_bf16 v[{a}:{a+3}], v[{buf+16+4*tau}:{buf+19+4*tau}], v[{buf+4*b}:{buf+4*b+3}], {c}")
        parts = issue((5 if s < 2 else 3) if M_OLD else (M_OPS if s < M_RAMP else 3), s)
        step = 12 // max(len(parts), 1)
        slots = {1 + step * j: p for j, p in enumerate(parts)}
        for i, m in enumerate(mf):
            k(m)
            if i < len(fill): k(fill[i])
            if i in slots:
                k(slots[i][0]); vm.append(slots[i][1])
    assert not opq, len(opq)
    assert nlater >= n_need
    k("@STAMP 5")
    wait_for("N")
    k(f"""
    s_mov_b32 s47, 0
    M_STCHK:
    v_min3_u32 v{TMP}, v{STV}, v{STV+1}, v{STV+2}
    v_min_u32 v{TMP}, v{TMP}, v{STV+3}
    v_cmp_eq_u32 vcc, 0, v{TMP}
    s_cmp_eq_u64 vcc, 0
    s_cbranch_scc1 M_STOK
    s_add_u32 s47, s47, 1
    s_cmp_ge_u32 s47, {SPIN_MAX}
    s_cbranch_scc1 M_STOK
    s_sleep 2
    """)
    for b in range(4): k(f"buffer_load_dword v{STV+b}, v{VSTX}, s[8:11], s41 offen offset:{64*b} sc1")
    k("""
    s_waitcnt vmcnt(0)
    s_branch M_STCHK
    M_STOK:
    @STAMP 6
    """)
    PB = FR
    for b in range(4):
        m = MR
        k(f"""
        v_and_b32 v{m+2}, 0xffff0000, v{STV+b}        ; s
        v_lshlrev_b32 v{m}, 16, v{STV+b}              ; m
        v_rcp_f32 v{m+1}, v{m+2}
        v_mul_f32 v{m+1}, s45, v{m+1}
        """)
        for tau in range(3):
            a = ACC + (b * 3 + tau) * 4
            c = CSR + 4 * tau
            k(f"""
            v_pk_fma_f32 v[{a}:{a+1}], v[{m}:{m+1}], v[{c}:{c+1}], v[{a}:{a+1}] op_sel_hi:[0,1,1] neg_lo:[1,0,0] neg_hi:[1,0,0]
            v_pk_fma_f32 v[{a+2}:{a+3}], v[{m}:{m+1}], v[{c+2}:{c+3}], v[{a+2}:{a+3}] op_sel_hi:[0,1,1] neg_lo:[1,0,0] neg_hi:[1,0,0]
            v_pk_mul_f32 v[{a}:{a+1}], v[{a}:{a+1}], v[{m}:{m+1}] op_sel:[0,1] op_sel_hi:[1,1]
            v_exp_f32 v{a}, v{a}
            v_exp_f32 v{a+1}, v{a+1}
            """)
            if tau < M_WDE and nlater < len(later):
                k(later[nlater]); nlater += 1
        for tau in range(3):
            a = ACC + (b * 3 + tau) * 4
            k(f"""
            v_pk_fma_f32 v[{a}:{a+1}], v[{a}:{a+1}], v[{m+2}:{m+3}], v[{m+2}:{m+3}] op_sel_hi:[1,0,0]
            v_rcp_f32 v{a}, v{a}
            v_rcp_f32 v{a+1}, v{a+1}
            """)
        for tau in range(3):
            a = ACC + (b * 3 + tau) * 4
            k(f"""
            v_pk_mul_f32 v[{a}:{a+1}], v[{a}:{a+1}], v[{a+2}:{a+3}]
            v_cvt_pk_bf16_f32 v{a}, v{a}, v{a+1}
            ds_write_b32 v{SA+tau}, v{a} offset:{(b>>1)*6144 + (b&1)*128}
            """)
    k("""
    s_waitcnt lgkmcnt(0)
    s_barrier
    @STAMP 7
    """)
    for i in range(3):
        k(f"ds_read_b128 v[{PB+4*i}:{PB+4*i+3}], v{VPUB} offset:{1024*i}")
    for i in range(3):
        k(f"s_waitcnt lgkmcnt({2-i})")
        k(f"buffer_store_dwordx4 v[{PB+4*i}:{PB+4*i+3}], v{VW}, s[8:11], s42 offen offset:{1024*i} sc1")
    rest = later[nlater:]
    k(f"""
    s_lshl_b32 s26, s14, 4
    s_add_u32 s26, s26, s15
    s_lshl_b32 s26, s26, 7
    s_add_u32 s26, s26, s34
    v_mov_b32 v{TMP}, 1
    v_mov_b32 v{TMP+1}, 0
    s_waitcnt vmcnt(0)
    s_barrier
    s_cmp_lg_u32 s17, 0
    s_cbranch_scc1 M_NOFLAG
    s_mov_b64 exec, 1
    buffer_store_dword v{TMP}, v{TMP+1}, s[8:11], s26 offen sc1
    s_mov_b64 exec, -1
    M_NOFLAG:
    """)
    for p in rest: k(p)
    HA = XA
    k(f"""
    M_SYNC:
    @STAMP 8
    s_lshl_b32 s26, s36, 2
    s_add_u32 s26, s26, s16
    s_mul_i32 s26, s26, {HKS*1024}
    s_mul_i32 s27, s29, {22*1024}
    s_add_u32 s26, s26, s27
    s_add_u32 s26, s26, s31
    s_lshl_b32 s27, s17, 11               ; m0 part
    s_mul_i32 s28, s29, 0x3000
    v_add_u32 v{HA}, s28, v{VW}
    s_lshl_b32 s28, s29, 12
    s_add_u32 s28, s28, 0x1000
    v_add_u32 v{HA+1}, s28, v{VW}
    v_add_u32 v{HA+2}, 0x10000, v{HA}
    v_add_u32 v{HA+3}, 0x10000, v{HA+1}
    v_add_u32 v{HA+4}, 0x20000, v{HA}
    v_add_u32 v{HA+5}, 0x20000, v{HA+1}
    s_cmp_lg_u32 s17, 1
    s_cbranch_scc1 M_WAITB
    s_lshr_b32 s28, s36, 1
    s_lshl_b32 s28, s28, 11
    s_add_u32 s28, s28, s34
    v_min_u32 v{TMP+4}, 14, v{VT0}
    v_lshlrev_b32 v{TMP+4}, 7, v{TMP+4}
    s_mov_b32 s47, 0
    M_POLL:
    buffer_load_dword v{TMP+5}, v{TMP+4}, s[8:11], s28 offen sc1
    s_waitcnt vmcnt(0)
    v_cmp_eq_u32 vcc, 0, v{TMP+5}
    s_cmp_eq_u64 vcc, 0
    s_cbranch_scc1 M_WAITB
    s_add_u32 s47, s47, 1
    s_cmp_lt_u32 s47, {SPIN_MAX}
    s_cbranch_scc1 M_POLL
    M_WAITB:
    s_lshl_b32 s46, s37, 3
    s_add_u32 s46, s46, s17
    s_mul_i32 s46, s46, 2880
    s_mul_i32 s47, s36, {4*HKS*1024}
    s_add_u32 s46, s46, s47
    s_add_u32 s46, s46, s31
    v_min_u32 v{TMP+6}, 44, v{VT0}
    v_lshlrev_b32 v{TMP+6}, 6, v{TMP+6}
    s_barrier
    @STAMP 9
    """)
    if M_TOUCH & 2: k(f"buffer_load_dword v{TMP+8}, v{TMP+6}, s[8:11], s46 offen")
    def hchunk(c):
        return [f"""
        s_add_u32 m0, s27, {(c % 10) * 16384}
        s_nop 0
        buffer_load_dwordx4 v{VW}, s[8:11], s26 offen {H_LD} lds
        """, f"""
        buffer_load_dwordx4 v{VW}, s[8:11], s26 offen offset:1024 {H_LD} lds
        s_add_u32 s26, s26, 0x800
        """]
    HF = 16
    A2 = 0
    def hreads(c):
        res = []
        for i in range(2):
            for lb in range(4):
                off = (c % 10) * 16384 + (lb & 1) * 2048 + i * 1024
                base = HA + 2 * (off >> 16) + (lb >> 1)
                r = HF + 32 * (c & 1) + (i * 4 + lb) * 4
                res.append(f"ds_read_b128 v[{r}:{r+3}], v{base} offset:{off & 0xffff}")
        return res
    iss = M_PRE2
    for c in range(iss):
        for p in hchunk(c): k(p)
    k(f"s_waitcnt vmcnt({2*(iss-1)})")
    k("s_barrier")
    k("@STAMP 10")
    for r in hreads(0): k(r)
    for c in range(11):
        fill = []
        if c < 10:
            k(f"s_waitcnt vmcnt({2*(iss-(c+2))})")
            k("s_barrier")
        k("s_waitcnt lgkmcnt(0)")
        if c < 10: fill = hreads(c + 1)
        parts = []
        for rep_ in range(2):
            if iss < 11 and (iss < 10 or c >= 1) and iss < c + M_AHEAD2:
                parts += hchunk(iss); iss += 1
        slots = {1 + 2 * j: p for j, p in enumerate(parts)}
        n = 0
        for i in range(2):
            for lb in range(4):
                r = HF + 32 * (c & 1) + (i * 4 + lb) * 4
                a = A2 + 4 * lb
                cc = "0" if (c == 0 and i == 0) else f"v[{a}:{a+3}]"
                k(f"v_mfma_f32_16x16x32_bf16 v[{a}:{a+3}], v[{r}:{r+3}], {wdreg(2*c+i)}, {cc}")
                if n < len(fill): k(fill[n])
                if n in slots: k(slots[n])
                n += 1
    k("@STAMP 11")
    XB = 65536
    k(f"""
    s_lshl_b32 s26, s17, 11
    s_add_u32 s26, s26, {XB}
    v_add_u32 v{TMP}, s26, v{VW}
    s_xor_b32 s26, s26, 0x2000
    v_add_u32 v{TMP+1}, s26, v{VW}
    """)
    for j in range(4):
        k(f"v_lshlrev_b32 v{32+2*j}, 16, v{RES+j}")
        k(f"v_and_b32 v{33+2*j}, 0xffff0000, v{RES+j}")
    k(f"""
    ds_write_b128 v{TMP}, v[8:11]
    ds_write_b128 v{TMP}, v[12:15] offset:1024
    s_waitcnt lgkmcnt(0)
    s_barrier
    ds_read_b128 v[8:11], v{TMP+1}
    ds_read_b128 v[12:15], v{TMP+1} offset:1024
    s_waitcnt lgkmcnt(0)
    """)
    OUT = 16
    for j in range(4):
        y0, y1 = A2 + 2*j, A2 + 2*j + 1
        k(f"""
        v_pk_add_f32 v[{y0}:{y1}], v[{y0}:{y1}], v[{y0+8}:{y1+8}]
        v_cvt_pk_bf16_f32 v{y1}, v{y0}, v{y1}
        v_lshlrev_b32 v{y0}, 16, v{y1}
        v_and_b32 v{y1}, 0xffff0000, v{y1}
        v_pk_add_f32 v[{y0}:{y1}], v[{y0}:{y1}], v[{32+2*j}:{33+2*j}]
        v_cvt_pk_bf16_f32 v{OUT+j}, v{y0}, v{y1}
        """)
    k(f"""
    s_cmp_lg_u32 s35, 0
    s_cbranch_scc1 M_FINAL
    s_add_u32 s40, s39, {X2T}
    buffer_store_dwordx4 v[{OUT}:{OUT+3}], v{VRES}, s[8:11], s40 offen {X2_ST}
    """)
    Q = 48
    for j in range(4):
        k(f"""
        v_lshlrev_b32 v{Q+4*j}, 16, v{OUT+j}
        v_and_b32 v{Q+4*j+2}, 0xffff0000, v{OUT+j}
        v_mul_f32 v{Q+4*j+1}, v{Q+4*j}, v{Q+4*j}
        v_mul_f32 v{Q+4*j+3}, v{Q+4*j+2}, v{Q+4*j+2}
        """)
    for q in range(8):
        k(f"v_add_f32_dpp v{Q+q}, v{Q+q}, v{Q+q} row_ror:8 row_mask:0xf bank_mask:0x3")
        k(f"v_add_f32_dpp v{Q+q}, v{Q+q+8}, v{Q+q+8} row_ror:8 row_mask:0xf bank_mask:0xc")
    for q in range(4):
        k(f"v_add_f32_dpp v{Q+q}, v{Q+q}, v{Q+q} row_shl:4 row_mask:0xf bank_mask:0x5")
        k(f"v_add_f32_dpp v{Q+q}, v{Q+q+4}, v{Q+q+4} row_shr:4 row_mask:0xf bank_mask:0xa")
    for q in range(4):
        k(f"v_add_f32_dpp v{Q+q}, v{Q+q}, v{Q+q} quad_perm:[1,0,3,2] row_mask:0xf bank_mask:0xf")
    for q in range(4):
        k(f"v_add_f32_dpp v{Q+q}, v{Q+q}, v{Q+q} quad_perm:[2,3,0,1] row_mask:0xf bank_mask:0xf")
    SB = 98304
    k(f"""
    v_and_b32 v{TMP}, 3, v{VT1}
    v_cmp_eq_u32 s[48:49], 1, v{TMP}
    v_cmp_eq_u32 s[50:51], 2, v{TMP}
    v_cmp_eq_u32 s[52:53], 3, v{TMP}
    v_lshrrev_b32 v{TMP+1}, 2, v{VT1}
    v_lshlrev_b32 v{TMP+1}, 7, v{TMP+1}
    v_lshl_add_u32 v{TMP+1}, v{VT2}, 4, v{TMP+1}
    v_lshl_add_u32 v{TMP+1}, v{TMP}, 2, v{TMP+1}
    s_lshl_b32 s26, s16, 9
    s_lshl_b32 s27, s29, 6
    s_add_u32 s26, s26, s27
    s_add_u32 s26, s26, {SB}
    v_add_u32 v{TMP+1}, s26, v{TMP+1}
    v_cndmask_b32 v{Q}, v{Q}, v{Q+1}, s[48:49]
    v_cndmask_b32 v{Q}, v{Q}, v{Q+2}, s[50:51]
    v_cndmask_b32 v{Q}, v{Q}, v{Q+3}, s[52:53]
    ds_write_b32 v{TMP+1}, v{Q}
    s_lshl_b32 s26, s17, 8
    s_add_u32 s26, s26, {SB}
    v_lshl_add_u32 v{TMP+2}, v{VT0}, 2, s26
    v_lshrrev_b32 v{TMP+3}, 5, v{VT0}
    v_lshlrev_b32 v{TMP+3}, 12, v{TMP+3}
    v_and_b32 v{TMP+4}, 31, v{VT0}
    v_lshl_add_u32 v{TMP+3}, v{TMP+4}, 2, v{TMP+3}
    s_lshl_b32 s26, s36, 7
    s_lshl_b32 s27, s17, 13
    s_add_u32 s26, s26, s27
    s_add_u32 s26, s26, {ST1}
    s_waitcnt lgkmcnt(0)
    s_barrier
    s_cmp_ge_u32 s17, 2
    s_cbranch_scc1 M_NOAT
    ds_read_b32 v{Q}, v{TMP+2}
    ds_read_b32 v{Q+1}, v{TMP+2} offset:512
    ds_read_b32 v{Q+2}, v{TMP+2} offset:1024
    ds_read_b32 v{Q+3}, v{TMP+2} offset:1536
    s_waitcnt lgkmcnt(0)
    v_add_f32 v{Q}, v{Q}, v{Q+1}
    v_add_f32 v{Q+2}, v{Q+2}, v{Q+3}
    v_add_f32 v{Q}, v{Q}, v{Q+2}
    buffer_atomic_add_f32 v{Q}, v{TMP+3}, s[8:11], s26 offen
    M_NOAT:
    @STAMP 12
    @FLUSH 13
    s_endpgm
    M_FINAL:
    """)
    TP = 144; TB2 = 98304
    srd(k, 48, 6, L * D * 2)
    k(f"""
    s_lshl_b32 s26, s16, 4
    v_add_u32 v{TMP}, s26, v{VT1}
    v_mul_u32_u24 v{TMP}, {TP}, v{TMP}
    v_lshl_add_u32 v{TMP}, v{VT2}, 4, v{TMP}
    s_lshl_b32 s26, s29, 6
    s_add_u32 s26, s26, {TB2}
    v_add_u32 v{TMP}, s26, v{TMP}
    ds_write_b128 v{TMP}, v[{OUT}:{OUT+3}]
    v_lshrrev_b32 v{TMP+1}, 2, v{VT1}
    v_lshl_add_u32 v{TMP+1}, v{VT2}, 3, v{TMP+1}
    v_mul_u32_u24 v{TMP+1}, {TP}, v{TMP+1}
    v_and_b32 v{TMP+2}, 3, v{VT1}
    v_lshl_add_u32 v{TMP+1}, v{TMP+2}, 3, v{TMP+1}
    s_lshl_b32 s26, s16, 5
    s_mul_i32 s27, s29, {32*TP}
    s_add_u32 s26, s26, s27
    s_add_u32 s26, s26, {TB2}
    v_add_u32 v{TMP+1}, s26, v{TMP+1}
    v_lshlrev_b32 v{TMP+2}, 10, v{VT1}
    v_lshl_add_u32 v{TMP+2}, v{VT2}, 4, v{TMP+2}
    s_lshl_b32 s26, s36, 2
    s_add_u32 s26, s26, s16
    s_lshl_b32 s26, s26, 14
    s_lshl_b32 s27, s37, 7
    s_add_u32 s26, s26, s27
    s_lshl_b32 s27, s29, 6
    s_add_u32 s26, s26, s27
    s_waitcnt lgkmcnt(0)
    s_barrier
    ds_read_b64_tr_b16 v[32:33], v{TMP+1}
    ds_read_b64_tr_b16 v[34:35], v{TMP+1} offset:{4*TP}
    s_waitcnt lgkmcnt(0)
    buffer_store_dwordx4 v[32:35], v{TMP+2}, s[48:51], s26 offen
    @STAMP 12
    @FLUSH 13
    M_END:
    s_endpgm
    """)
    k(f"""
    M_STATS:
    s_mov_b32 s47, 0
    M_SL1:
    s_mov_b32 m0, s19
    s_add_u32 s19, s19, 0x2000
    buffer_load_dwordx4 v{VDMA}, s[8:11], s18 offen lds
    s_add_u32 s18, s18, {32*XP}
    s_mov_b32 m0, s19
    s_add_u32 s19, s19, 0x2000
    buffer_load_dwordx4 v{VDMA}, s[8:11], s18 offen lds
    s_add_u32 s18, s18, {32*XP}
    s_add_u32 s47, s47, 1
    s_cmp_lt_u32 s47, 8
    s_cbranch_scc1 M_SL1
    """)
    SACC = 0; ONES = 16
    k(f"""
    v_xor_b32 v{TMP+3}, s17, v{TMP+1}
    v_lshl_add_u32 v{XA}, v{TMP+3}, 5, v{TMP+2}
    """)
    for r in range(8): k(f"v_mov_b32 v{SACC+r}, 0")
    for r in range(4): k(f"v_mov_b32 v{ONES+r}, 0x3f803f80")
    k(f"""
    s_mov_b32 s47, 0
    s_waitcnt vmcnt(0)
    s_barrier
    M_SL2:
    """)
    for u in range(8):
        r = FR + 4 * u
        if u == 7: k("s_waitcnt lgkmcnt(12)")
        k(f"ds_read_b64_tr_b16 v[{r}:{r+1}], v{XA} offset:{u*8192}")
        k(f"ds_read_b64_tr_b16 v[{r+2}:{r+3}], v{XA} offset:{u*8192+4096}")
    k(f"v_add_u32 v{XA}, 0x10000, v{XA}")
    for u in range(8):
        r = FR + 4 * u
        k(f"s_waitcnt lgkmcnt({14 - 2*u})")
        k(f"v_mfma_f32_16x16x32_bf16 v[{SACC}:{SACC+3}], v[{r}:{r+3}], v[{r}:{r+3}], v[{SACC}:{SACC+3}]")
        k(f"v_mfma_f32_16x16x32_bf16 v[{SACC+4}:{SACC+7}], v[{ONES}:{ONES+3}], v[{r}:{r+3}], v[{SACC+4}:{SACC+7}]")
    k(f"""
    s_add_u32 s47, s47, 1
    s_cmp_lt_u32 s47, 2
    s_cbranch_scc1 M_SL2
    v_and_b32 v{TMP}, 3, v{VT1}
    v_cmp_eq_u32 s[48:49], 1, v{TMP}
    v_cmp_eq_u32 s[50:51], 2, v{TMP}
    v_cmp_eq_u32 s[52:53], 3, v{TMP}
    v_lshrrev_b32 v{TMP}, 2, v{VT1}
    v_cmp_eq_u32 s[54:55], v{TMP}, v{VT2}
    v_cndmask_b32 v{SACC}, v{SACC}, v{SACC+1}, s[48:49]
    v_cndmask_b32 v{SACC}, v{SACC}, v{SACC+2}, s[50:51]
    v_cndmask_b32 v{SACC+5}, v{SACC}, v{SACC+3}, s[52:53]
    v_mov_b32 v{SACC+12}, v{SACC+4}
    v_mov_b32 v{SACC+13}, v{SACC+5}
    """)
    stats_pair(k, SACC+4, SACC+5, SACC+12, SACC+13, TMP, keep=(SACC+6, SACC+14))
    k(f"""
    v_lshrrev_b32 v{SACC+4}, 16, v{SACC+4}
    v_or_b32 v{SACC+4}, v{SACC+4}, v{SACC+6}
    v_lshlrev_b32 v{VSTX}, 2, v{VT1}
    s_lshl_b32 s41, s14, 9
    s_lshl_b32 s26, s17, 6
    s_add_u32 s41, s41, s26
    s_add_u32 s41, s41, s33
    s_mov_b64 exec, s[54:55]
    buffer_store_dword v{SACC+4}, v{VSTX}, s[8:11], s41 offen sc1
    s_mov_b64 exec, -1
    """)
    for p in res_parts: k(p)
    for i in range(22): k(wd_part(i))
    k(f"""
    s_barrier
    s_branch M_SYNC
    .p2align 8
    mlpb_kernel:
    s_mov_b32 s30, {X3T}
    s_mov_b32 s31, {HB1}
    s_mov_b32 s33, {STX + 0x2000}
    s_mov_b32 s34, {FLG + 0x8000}
    s_mov_b32 s35, 1
    @KID 5
    s_branch M_BODY
    """)
    info = dict(vgpr=NV + 88, sgpr=64, accum=NV, grid=256, block=512, lds=MLP_LDS)
    return k, info

DIAG_KN = {2: ("mlpa", 13), 5: ("mlpb", 13), 3: ("none", 1), 6: ("none", 1)}
def emit(path, launches=None):
    kp, ip = gen_prep()
    kc, ic = gen_conv()
    km, im = gen_mlp()
    infos = {"prep_kernel": ip, "conv1_kernel": ic, "conv2_kernel": ic, "mlpa_kernel": im, "mlpb_kernel": im}
    if os.environ.get("ORDER"): launches = [x + "_kernel" for x in os.environ["ORDER"].split(",")]
    order = launches or ["prep_kernel", "conv1_kernel", "mlpa_kernel", "conv2_kernel", "mlpb_kernel"]
    hdr = open("cdna_kernels/" + NAME + ".s.ref").read().split("; Override launch")[0]
    out = [hdr.rstrip("\n")]
    for n in order:
        i = infos[n]
        out.append(f"; @launch kernel={n} grid=({i['grid']},1,1) block=({i['block']},1,1) lds={i['lds']}")
    out.append('.amdgcn_target "amdgcn-amd-amdhsa--gfx950"\n.text')
    for n in infos:
        out.append(f".globl {n}\n.type {n},@function")
    out.append(".p2align 8\nprep_kernel:\n" + kp.text())
    for kk in (kc, km):
        out.append(".p2align 8\n" + kk.text())
    for n, i in infos.items():
        out.append(descriptor(n, i["vgpr"], 102 if DIAG else i["sgpr"], i["accum"]))
    open(path, "w").write("\n".join(out))

if __name__ == "__main__":
    emit(sys.argv[1] if len(sys.argv) > 1 else "cdna_kernels/" + NAME + ".s")
```

```python
import sys, struct, re
from asmlib import *

NAME = "interleave_layers__ssm_conv_s4d__glu_gated_glu__prompt"
KA_U, KA_LOGA, KA_AIM, KA_CRE, KA_CIM, KA_LOGDT, KA_DSKIP, KA_BX, KA_WG, KA_WU, KA_WD, KA_OUT, KA_DBG, KA_WS = [8 * i for i in range(14)]
XT0, X1T, X2T, X3T = 0x3000000, 0x3300000, 0x3600000, 0x3900000
ST0, ST1, CSUM = 0x0800000, 0x0804000, 0x0808000
WP = 0x0C00000
WD = 0x1000000
HB = 0x1200000
HB1 = 0x2200000
ZR = 0x0810000; STX = 0x0810000; FLG = 0x0820000
KP = 0x1800000; KCS = 4160; KP_STRIDE = 1536
WS_BYTES = 0x10000000
L, D, F, NST = 2048, 512, 1376, 128
NKS2 = 44
HKS = 45

import os
XP = int(os.environ.get('XP', '4352'))
PREP_W_POL = os.environ.get('PREP_W_POL', '')
PREP_K_POL = os.environ.get('PREP_K_POL', '')
PREP_X_POL = ''
PREP_PRIO = int(os.environ.get('PREP_PRIO', '0'))
CONV_ST = os.environ.get('CONV_ST', '')
X2_ST = os.environ.get('X2_ST', '')
F1_SLEEP = int(os.environ.get('F1_SLEEP', '8'))
CODEPF_BASE = int(os.environ.get('CODEPF_BASE', '0'))
CODEPF2 = int(os.environ.get('CODEPF2', '1'))
TLBPF = int(os.environ.get('TLBPF', '1'))
TLBPF_BASE = int(os.environ.get('TLBPF_BASE', '1216'))
CODEPF = int(os.environ.get('CODEPF', '1'))
DIAG = int(os.environ.get("DIAG", "0"))
DIAG_OFF = 0x4000000
_Kern = Kern
class Kern(_Kern):
    def __call__(self, s):
        for l in s.strip("\n").split("\n"):
            t = l.strip()
            if t.startswith("@CNTLOAD"):
                super().__call__("global_load_dword v59, v2, s[28:29] sc1")
                continue
            if t.startswith("@CODEPF"):
                if CODEPF:
                    super().__call__(f"""
                    s_sub_u32 s3, s2, {CODEPF_BASE}
                    s_cmp_ge_u32 s3, 8
                    s_cbranch_scc1 P_NOPF
                    s_getpc_b64 s[6:7]
                    v_lshlrev_b32 v1, 6, v0
                    global_load_dword v94, v1, s[6:7]
                    v_add_u32 v1, 0x4000, v1
                    global_load_dword v95, v1, s[6:7]
                    P_NOPF:
                    """)
                if TLBPF:
                    super().__call__(f"""
                    s_sub_u32 s3, s2, {TLBPF_BASE}
                    s_cmp_ge_u32 s3, 8
                    s_cbranch_scc1 P_NOPF2
                    s_load_dwordx2 s[6:7], s[0:1], {KA_OUT}
                    v_lshlrev_b32 v1, 18, v0
                    v_lshlrev_b32 v2, 13, v0
                    s_waitcnt lgkmcnt(0)
                    global_load_dword v93, v1, s[4:5]
                    global_load_dword v92, v2, s[6:7]
                    P_NOPF2:
                    """)
                continue
            if t.startswith("@"):
                if not DIAG: continue
                p = t.split()
                if p[0] == "@KID":
                    super().__call__(f"s_mov_b32 s59, {DIAG_OFF + int(p[1]) * 0x80000}\ns_mov_b32 s57, {3 if int(p[1]) in (2, 5) else 2}")
                elif p[0] == "@INIT":
                    super().__call__("v_readfirstlane_b32 s58, v0\ns_memrealtime s[64:65]\ns_memtime s[66:67]")
                elif p[0] == "@STAMP":
                    i = int(p[1]); super().__call__(f"s_memtime s[{64+2*i}:{65+2*i}]")
                elif p[0] == "@FLUSH":
                    n = int(p[1])
                    super().__call__(f"""
                    s_waitcnt vmcnt(0)
                    s_memtime s[{64+2*n}:{65+2*n}]
                    s_memrealtime s[{66+2*n}:{67+2*n}]
                    s_waitcnt lgkmcnt(0)
                    s_mov_b64 exec, -1
                    s_lshr_b32 s58, s58, 6
                    s_lshl_b32 s61, s2, s57
                    s_add_u32 s60, s58, s61
                    s_lshl_b32 s60, s60, 6
                    s_add_u32 s60, s60, s59
                    v_mov_b32 v1, s60
                    """)
                    for i in range(n + 2):
                        super().__call__(f"v_mov_b32 v2, s{64+2*i}\nglobal_store_dword v1, v2, s[4:5] offset:{4*i}")
                    super().__call__("s_getreg_b32 s61, hwreg(HW_REG_XCC_ID)\nv_mov_b32 v2, s61\nglobal_store_dword v1, v2, s[4:5] offset:60")
                continue
            super().__call__(l)

def f2u(x): return struct.unpack("<I", struct.pack("<f", x))[0]
def fl(x): return "0x%08x" % f2u(x)
LOG2E = 1.4426950408889634
L2E_HI = struct.unpack("<f", struct.pack("<f", LOG2E))[0]
L2E_LO = LOG2E - L2E_HI
LN2 = 0.6931471805599453

def srd(k, s, base, nbytes):
    k(f"""
    s_mov_b32 s{s}, s{base}
    s_and_b32 s{s+1}, s{base+1}, 0xffff
    s_mov_b32 s{s+2}, {nbytes:#x}
    s_mov_b32 s{s+3}, 0x20000
    """)

def rnd_bf16(k, dst, a, b=None):
    k(f"v_cvt_pk_bf16_f32 v{dst}, v{a}, v{b if b is not None else a}")

def exp_acc(k, dst, x, t0, t1):
    k(f"""
    v_mul_f32 v{t0}, s40, v{x}
    v_fma_f32 v{t1}, s40, v{x}, -v{t0}
    v_fma_f32 v{t1}, s41, v{x}, v{t1}
    v_exp_f32 v{dst}, v{t0}
    v_mul_f32 v{t1}, s42, v{t1}
    v_fma_f32 v{dst}, v{dst}, v{t1}, v{dst}
    """)

N_K, N_T, N_W, N_D, N_C = 512, 256, 240, 176, 44
KLAST = int(os.environ.get('KLAST', '0'))
if KLAST:
    B_C = 0; B_W = B_C + N_C; B_T = B_W + N_W; B_D = B_T + N_T; B_E = B_D + N_D; B_K = 720; PREP_WGS = B_K + N_K
else:
    B_K = 0; B_C = N_K; B_W = B_C + N_C; B_T = B_W + N_W; B_D = B_T + N_T; B_E = B_D + N_D; PREP_WGS = B_E
PREP_LDS = 18432
PREP_GROUPS = [("prep.K", B_K, B_K + N_K, 6), ("prep.C", B_C, B_W, 2), ("prep.W", B_W, B_T, 2), ("prep.T", B_T, B_D, 2), ("prep.D", B_D, B_E, 2)]
CSU = 4576
KL = 2 * CSU
CRED = KL + 16640
CONV_LDS = CRED + 24576
CPF = int(os.environ.get('CPF', '1'))
CPF_STRIDE = int(os.environ.get('CPF_STRIDE', '128'))
SPIN_MAX = 1 << 20

class Remap:
    def __init__(self, k, voff, smap): self.k = k; self.voff = voff; self.smap = smap
    def __call__(self, t):
        def rv(m):
            if m.group(1): return f"v[{int(m.group(1))+self.voff}:{int(m.group(2))+self.voff}]"
            n = int(m.group(3)); return "v0" if n == 0 else f"v{n+self.voff}"
        t = re.sub(r"\bv\[(\d+):(\d+)\]|\bv(\d+)\b", rv, t)
        def rs(m):
            if m.group(1):
                a = int(m.group(1)); b = int(m.group(2))
                if a in self.smap: return f"s[{self.smap[a]}:{self.smap[a]+b-a}]"
                return m.group(0)
            n = int(m.group(3)); return f"s{self.smap.get(n, n)}"
        t = re.sub(r"\bs\[(\d+):(\d+)\]|\bs(\d+)\b", rs, t)
        self.k(t)
    def label(self, l): self.k.label(l)

class Remap2:
    def __init__(self, k, vmap): self.k = k; self.vmap = vmap
    def __call__(self, t):
        t = re.sub(r"\bv(\d+)\b", lambda m: f"v{self.vmap.get(int(m.group(1)), int(m.group(1)))}", t)
        self.k(t)

def conv_setup(k):
    k(f"""
    v_readfirstlane_b32 s17, v0
    s_mov_b32 s43, {fl(1.0/512)}
    s_mov_b32 s44, {fl(1e-5)}
    s_lshr_b32 s17, s17, 6                ; pi
    s_mul_i32 s12, s2, {XP}
    s_add_u32 s13, s12, s30
    s_add_u32 s14, s12, s32
    s_mul_i32 s15, s2, {KP_STRIDE}
    s_add_u32 s15, s15, {KP}
    s_lshr_b32 s16, s2, 1
    s_lshl_b32 s16, s16, 2
    v_lshlrev_b32 v1, 4, v0               ; tid*16
    v_and_b32 v3, 15, v0                  ; c / r
    v_bfe_u32 v4, v0, 4, 2                ; g
    v_and_b32 v5, 63, v0
    v_lshlrev_b32 v6, 4, v5               ; lane*16
    """)

def conv_loads(k, pol=""):
    k(f"""
    buffer_load_dwordx4 v[16:19], v1, s[8:11], s31 offen {pol}
    s_add_u32 s31, s31, 0x1000
    buffer_load_dwordx4 v[20:23], v1, s[8:11], s31 offen {pol}
    s_add_u32 s31, s31, 0x1000
    buffer_load_dwordx4 v[24:27], v1, s[8:11], s31 offen {pol}
    s_add_u32 s31, s31, 0x1000
    buffer_load_dwordx4 v[28:31], v1, s[8:11], s31 offen {pol}
    buffer_load_dwordx4 v[12:15], v1, s[8:11], s13 offen {pol}
    """)

def conv_p3(k):
    k(f"""
    v_mov_b32 v36, 0
    v_mov_b32 v37, 0
    v_mov_b32 v38, 0
    v_mov_b32 v39, 0
    v_bfe_u32 v9, v0, 2, 2
    v_mul_u32_u24 v9, {KCS}, v9
    v_and_b32 v10, 3, v0
    v_min_u32 v10, 2, v10
    v_lshl_add_u32 v9, v10, 4, v9
    ds_write_b128 v9, v[36:39] offset:{KL}
    v_lshlrev_b32 v40, 3, v0
    s_sub_u32 s19, s18, {2 * (0x4300 - 128)}
    """)
    for e in range(11):
        k(f"v_add_u32 v{48+e}, {e-3}, v40")
        if e < 3: k(f"v_max_i32 v{48+e}, 0, v{48+e}")
        k(f"v_cvt_f32_u32 v{60+e}, v{48+e}")
    for e in range(0, 11, 2):
        k(f"v_cvt_pk_bf16_f32 v{72+e//2}, v{60+e}, v{min(61+e, 70)}")
    for e in range(11):
        src = 72 + e // 2
        if e & 1: k(f"v_lshrrev_b32 v{60+e}, 16, v{src}")
        else: k(f"v_and_b32 v{60+e}, 0xffff, v{src}")
        k(f"v_lshl_add_u32 v{60+e}, v{60+e}, 1, s19")
        k(f"v_lshl_add_u32 v{48+e}, v{48+e}, 1, s18")
    k("v_cmp_gt_u32 s[24:25], 17, v0")
    for e in range(11):
        k(f"v_cndmask_b32 v{48+e}, v{60+e}, v{48+e}, s[24:25]")
    k(f"""
    s_and_b32 s21, s17, 1
    s_sub_u32 s22, 56, s21
    s_mul_i32 s21, s21, {CSU}
    v_min_u32 v9, s22, v5
    v_lshl_add_u32 v9, v9, 3, s21
    ds_write_b64 v9, v[36:37]
    v_and_b32 v9, 1, v3
    v_mul_u32_u24 v9, {CSU}, v9
    v_lshrrev_b32 v10, 1, v3
    v_lshlrev_b32 v11, 2, v10
    v_sub_u32 v11, v11, v4
    s_lshl_b32 s21, s17, 2
    s_sub_u32 s21, 15, s21
    v_add_u32 v11, s21, v11
    v_lshl_add_u32 v9, v11, 4, v9         ; v9 = u addr
    v_and_b32 v7, 3, v3
    v_mul_u32_u24 v7, {KCS}, v7
    v_lshrrev_b32 v8, 2, v3
    v_add_u32 v8, v8, v4
    v_lshl_add_u32 v7, v8, 4, v7
    s_lshl_b32 s21, s17, 6
    s_add_u32 s21, s21, {KL}
    v_add_u32 v7, s21, v7                 ; v7 = K addr
    v_xor_b32 v8, v4, v10
    v_and_b32 v8, 3, v8
    v_lshlrev_b32 v8, 1, v8
    v_lshl_add_u32 v8, v10, 3, v8
    v_and_b32 v11, 1, v3
    v_add_u32 v8, v8, v11
    s_lshl_b32 s21, s17, 11
    v_lshl_add_u32 v10, v8, 4, s21
    v_bfe_u32 v8, v0, 2, 3
    v_xor_b32 v11, v8, v0
    v_and_b32 v11, 3, v11
    v_lshlrev_b32 v11, 5, v11
    v_lshl_add_u32 v11, v8, 7, v11
    v_bfe_u32 v8, v0, 5, 1
    v_lshl_add_u32 v11, v8, 10, v11
    s_lshl_b32 s21, s17, 13
    s_add_u32 s21, s21, {CRED}
    s_cmp_eq_u32 s17, 3
    s_cselect_b32 s21, {KL}, s21
    v_add_u32 v11, s21, v11
    """)

def conv_expand(k):
    k("""
    v_cmp_eq_u32 vcc, 0, v0
    s_waitcnt lgkmcnt(0)
    v_cndmask_b32 v48, v48, v36, vcc
    v_cndmask_b32 v49, v49, v36, vcc
    v_cndmask_b32 v50, v50, v36, vcc
    """)
    for sft in range(4):
        for j in range(4):
            k(f"v_lshl_or_b32 v{64+4*sft+j}, v{48+sft+6-2*j}, 16, v{48+sft+7-2*j}")
        k(f"ds_write_b128 v1, v[{64+4*sft}:{67+4*sft}] offset:{KL + sft*KCS + 48}")

def conv_norm(k):
    for j in range(4):
        k(f"""
        v_lshlrev_b32 v40, 16, v{12+j}
        v_and_b32 v41, 0xffff0000, v{12+j}
        v_sub_f32 v40, v40, v{16+4*j}
        v_sub_f32 v41, v41, v{18+4*j}
        v_cvt_pk_bf16_f32 v41, v40, v41
        v_lshlrev_b32 v40, 16, v41
        v_and_b32 v41, 0xffff0000, v41
        v_mul_f32 v40, v40, v{17+4*j}
        v_mul_f32 v41, v41, v{19+4*j}
        v_cvt_pk_bf16_f32 v{32+j}, v40, v41
        """)
    k(f"""
    ds_write_b128 v1, v[32:35] offset:{CSU + 16*28}
    ds_write2_b64 v1, v[32:33], v[34:35] offset0:57 offset1:58
    """)

def gen_prep():
    k = Kern("prep_kernel")
    k(f"""
    @KID 0
    @INIT
    s_load_dwordx2 s[4:5], s[0:1], {KA_WS}
    @CODEPF
    s_sub_u32 s26, s2, {B_K}
    s_cmp_lt_u32 s26, {N_K}
    s_cbranch_scc1 P_KGEN
    s_setprio {PREP_PRIO}
    s_cmp_lt_u32 s2, {B_W}
    s_cbranch_scc1 P_C
    s_cmp_lt_u32 s2, {B_T}
    s_cbranch_scc1 P_W
    s_cmp_lt_u32 s2, {B_D}
    s_cbranch_scc1 P_TR
    s_cmp_lt_u32 s2, {B_E}
    s_cbranch_scc1 P_D
    s_endpgm
    """)
    k.label("P_KGEN")
    TB = 16384
    k(f"""
    s_load_dwordx4 s[8:11], s[0:1], {KA_LOGA}
    s_load_dwordx4 s[12:15], s[0:1], {KA_CRE}
    s_load_dwordx2 s[16:17], s[0:1], {KA_LOGDT}
    s_mov_b32 s40, {fl(L2E_HI)}
    s_mov_b32 s41, {fl(L2E_LO)}
    s_mov_b32 s42, {fl(LN2)}
    v_lshrrev_b32 v1, 1, v0
    v_and_b32 v1, 0x60, v1
    v_and_or_b32 v1, v0, 31, v1           ; n = 32 w + (lane & 31)
    s_lshl_b32 s3, s26, 8
    v_lshl_add_u32 v2, v1, 1, s3
    s_lshl_b32 s18, s26, 1
    v_mov_b32 v3, s18
    v_readfirstlane_b32 s19, v0
    s_lshr_b32 s19, s19, 6                ; wave
    s_waitcnt lgkmcnt(0)
    global_load_ushort v4, v2, s[8:9]
    global_load_ushort v8, v3, s[16:17]
    global_load_ushort v5, v2, s[10:11]
    global_load_ushort v6, v2, s[12:13]
    global_load_ushort v7, v2, s[14:15]
    v_and_b32 v20, 15, v0                 ; i / j
    v_bfe_u32 v21, v0, 4, 2               ; g
    ; hi0 = 128*(i>>3) + (i&7)
    v_lshrrev_b32 v23, 3, v20
    v_and_b32 v24, 7, v20
    v_lshl_add_u32 v23, v23, 7, v24
    v_cvt_f32_u32 v30, v23
    ; hi1 = (g''<2 ? 256+2g'' : 256*g'') + 128*((i>>1)&1) + 4*(i&1)
    v_lshrrev_b32 v23, 2, v20
    v_lshlrev_b32 v24, 1, v23
    v_add_u32 v24, 0x100, v24
    v_lshlrev_b32 v25, 8, v23
    v_cmp_gt_u32 vcc, 2, v23
    v_cndmask_b32 v24, v25, v24, vcc
    v_bfe_u32 v25, v20, 1, 1
    v_lshl_add_u32 v24, v25, 7, v24
    v_and_b32 v25, 1, v20
    v_lshl_add_u32 v24, v25, 2, v24
    v_cvt_f32_u32 v31, v24
    v_lshlrev_b32 v23, 7, v20
    v_add_u32 v23, 0x400, v23
    v_cvt_f32_u32 v32, v23                ; hi2
    v_lshlrev_b32 v23, 3, v20
    v_cvt_f32_u32 v33, v23                ; lo
    s_lshl_b32 s20, s19, 9
    v_lshl_add_u32 v34, v21, 6, s20
    v_lshrrev_b32 v23, 1, v21
    v_and_b32 v24, 1, v21
    v_lshlrev_b32 v24, 2, v24
    v_lshl_add_u32 v35, v23, 7, v24
    v_lshl_add_u32 v35, v20, 3, v35
    v_mov_b32 v36, 1
    v_mov_b32 v37, 2
    s_cmp_eq_u32 s19, 0
    s_cbranch_scc1 P_KA
    v_lshl_add_u32 v35, v21, 6, v20
    v_add_u32 v35, 0x200, v35
    v_mov_b32 v36, 16
    v_mov_b32 v37, 32
    s_cmp_lg_u32 s19, 1
    s_cbranch_scc1 P_KA
    v_lshl_add_u32 v23, v20, 2, v21
    v_add_u32 v23, 0x100, v23             ; seg1: 256 + g' + 4j ; o1=2 o2=64
    v_lshlrev_b32 v24, 6, v21
    v_lshl_add_u32 v24, v20, 1, v24
    v_add_u32 v24, 0x100, v24             ; seg2: 384 + 64(g'-2) + 2j ; o1=1 o2=32
    v_cmp_gt_u32 vcc, 2, v21
    v_cndmask_b32 v35, v24, v23, vcc
    v_cndmask_b32 v36, 1, 2, vcc
    v_cndmask_b32 v37, 32, 64, vcc
    P_KA:
    v_add_u32 v38, v36, v37
    v_add_lshl_u32 v36, v36, v35, 1
    v_add_lshl_u32 v37, v37, v35, 1
    v_add_lshl_u32 v38, v38, v35, 1
    v_lshlrev_b32 v35, 1, v35
    v_and_b32 v39, 63, v0
    v_lshlrev_b32 v39, 4, v39             ; lane*16
    s_waitcnt vmcnt(3)
    @STAMP 2
    v_lshlrev_b32 v4, 16, v4
    v_lshlrev_b32 v8, 16, v8
    """)
    exp_acc(k, 10, 8, 16, 17)
    exp_acc(k, 11, 4, 18, 19)
    k(f"""
    v_cvt_pk_bf16_f32 v10, v10, v11
    v_and_b32 v11, 0xffff0000, v10        ; eA
    v_lshlrev_b32 v10, 16, v10            ; dt
    v_mul_f32 v12, v11, v10
    v_mul_f32 v12, s40, v12
    v_sub_f32 v12, 0, v12
    s_waitcnt vmcnt(0)
    v_lshlrev_b32 v5, 16, v5
    v_lshlrev_b32 v6, 16, v6
    v_lshlrev_b32 v7, 16, v7
    v_mul_f32 v13, v5, v10
    v_mul_f32 v13, 0.15915494, v13
    v_add_f32 v10, v10, v10
    v_mul_f32 v14, v6, v10                ; 2*Cre*dt
    v_mul_f32 v15, v7, v10                ; 2*Cim*dt
    v_lshlrev_b32 v9, 4, v1
    ds_write_b128 v9, v[12:15]
    v_max3_f32 v16, |v14|, |v15|, 0
    v_max_f32_dpp v16, v16, v16 row_shr:1 row_mask:0xf bank_mask:0xf
    v_max_f32_dpp v16, v16, v16 row_shr:2 row_mask:0xf bank_mask:0xf
    v_max_f32_dpp v16, v16, v16 row_shr:4 row_mask:0xf bank_mask:0xf
    v_max_f32_dpp v16, v16, v16 row_shr:8 row_mask:0xf bank_mask:0xf
    v_max_f32_dpp v16, v16, v16 row_bcast:15 row_mask:0xa bank_mask:0xf
    v_readlane_b32 s23, v16, 31
    s_mov_b32 s20, 0
    @STAMP 3
    v_mov_b32 v16, s23
    v_bfe_u32 v16, v16, 23, 8
    v_max_u32 v16, 14, v16
    v_sub_u32 v17, 0x8c, v16
    v_cvt_f32_i32 v29, v17                ; kf = 140 - e'
    v_mov_b32 v28, 0
    v_subrev_u32 v16, 13, v16
    v_lshlrev_b32 v27, 23, v16            ; Sinv
    P_KLOOP:
    ds_read_b128 v[52:55], v34
    ds_read_b128 v[56:59], v34 offset:16
    ds_read_b128 v[60:63], v34 offset:32
    ds_read_b128 v[64:67], v34 offset:48
    v_add_u32 v34, 0x100, v34
    """)
    for nn in range(4):
        p = 52 + 4 * nn
        k(f"""
        s_waitcnt lgkmcnt({3-nn})
        v_pk_mul_f32 v[2:3], v[30:31], v[{p}:{p+1}] op_sel_hi:[1,0]
        v_pk_fma_f32 v[4:5], v[32:33], v[{p}:{p+1}], v[28:29] op_sel_hi:[1,0,1]
        v_pk_mul_f32 v[6:7], v[30:31], v[{p}:{p+1}] op_sel:[0,1] op_sel_hi:[1,1]
        v_pk_mul_f32 v[8:9], v[32:33], v[{p}:{p+1}] op_sel:[0,1] op_sel_hi:[1,1]
        v_exp_f32 v2, v2
        v_exp_f32 v3, v3
        v_exp_f32 v4, v4
        v_exp_f32 v5, v5
        v_fract_f32 v6, v6
        v_fract_f32 v7, v7
        v_fract_f32 v8, v8
        v_fract_f32 v9, v9
        v_cos_f32 v10, v6
        v_sin_f32 v11, v6
        v_cos_f32 v12, v7
        v_sin_f32 v13, v7
        v_cos_f32 v14, v8
        v_sin_f32 v15, v8
        v_cos_f32 v16, v9
        v_sin_f32 v17, v9
        v_pk_mul_f32 v[10:11], v[10:11], v[2:3] op_sel_hi:[1,0]
        v_pk_mul_f32 v[12:13], v[12:13], v[2:3] op_sel:[0,1] op_sel_hi:[1,1]
        v_pk_mul_f32 v[14:15], v[14:15], v[4:5] op_sel_hi:[1,0]
        v_pk_mul_f32 v[16:17], v[16:17], v[4:5] op_sel:[0,1] op_sel_hi:[1,1]
        v_cvt_pk_f16_f32 v{68+nn}, v10, v11
        v_cvt_pk_f16_f32 v{72+nn}, v12, v13
        v_cvt_pk_f16_f32 v{76+nn}, v14, v15
        v_pk_mul_f32 v[18:19], v[16:17], v[{p+2}:{p+3}] op_sel_hi:[1,0]
        v_pk_fma_f32 v[18:19], v[16:17], v[{p+2}:{p+3}], v[18:19] op_sel:[1,1,0] op_sel_hi:[0,1,1] neg_lo:[1,0,0]
        v_cvt_pk_f16_f32 v{80+nn}, v18, -v19
        """)
    k(f"""
    s_cmp_eq_u32 s20, 1
    s_cbranch_scc1 P_KL2
    v_mfma_f32_16x16x32_f16 v[40:43], v[68:71], v[80:83], 0
    v_mfma_f32_16x16x32_f16 v[44:47], v[72:75], v[80:83], 0
    v_mfma_f32_16x16x32_f16 v[48:51], v[76:79], v[80:83], 0
    s_mov_b32 s20, 1
    s_branch P_KLOOP
    P_KL2:
    v_mfma_f32_16x16x32_f16 v[40:43], v[68:71], v[80:83], v[40:43]
    v_mfma_f32_16x16x32_f16 v[44:47], v[72:75], v[80:83], v[44:47]
    v_mfma_f32_16x16x32_f16 v[48:51], v[76:79], v[80:83], v[48:51]
    @STAMP 4
    s_mul_i32 s20, s19, 3072
    v_add_u32 v2, s20, v39
    s_lshl_b32 s20, s19, 10
    v_add_u32 v3, s20, v39
    """)
    k("v_mov_b32 v26, v27")
    for r in range(40, 52, 2): k(f"v_pk_mul_f32 v[{r}:{r+1}], v[{r}:{r+1}], v[26:27]")
    k(f"""
    ds_write_b128 v2, v[40:43] offset:4096
    ds_write_b128 v2, v[44:47] offset:5120
    ds_write_b128 v2, v[48:51] offset:6144
    s_mul_i32 s3, s26, {KP_STRIDE}
    s_add_u32 s3, s3, {KP}
    v_lshlrev_b32 v1, 4, v0
    v_add_u32 v8, s3, v1
    s_waitcnt lgkmcnt(0)
    s_barrier
    s_cmp_eq_u32 s19, 3
    s_cbranch_scc1 P_KS
    ds_read_b128 v[40:43], v3 offset:4096
    ds_read_b128 v[44:47], v3 offset:{4096+3072}
    ds_read_b128 v[48:51], v3 offset:{4096+6144}
    ds_read_b128 v[4:7], v3 offset:{4096+9216}
    s_waitcnt lgkmcnt(2)
    v_pk_add_f32 v[40:41], v[40:41], v[44:45]
    v_pk_add_f32 v[42:43], v[42:43], v[46:47]
    s_waitcnt lgkmcnt(0)
    v_pk_add_f32 v[48:49], v[48:49], v[4:5]
    v_pk_add_f32 v[50:51], v[50:51], v[6:7]
    v_pk_add_f32 v[40:41], v[40:41], v[48:49]
    v_pk_add_f32 v[42:43], v[42:43], v[50:51]
    v_cvt_pk_bf16_f32 v40, v40, v41
    v_cvt_pk_bf16_f32 v42, v42, v43
    ds_write_b16 v35, v40 offset:{TB}
    ds_write_b16_d16_hi v36, v40 offset:{TB}
    ds_write_b16 v37, v42 offset:{TB}
    ds_write_b16_d16_hi v38, v42 offset:{TB}
    P_KS:
    s_waitcnt lgkmcnt(0)
    s_barrier
    @STAMP 5
    v_cmp_gt_u32 vcc, 0x60, v0
    s_and_saveexec_b64 s[22:23], vcc
    s_cbranch_execz P_KEND
    ds_read_b128 v[40:43], v1 offset:{TB}
    s_waitcnt lgkmcnt(0)
    global_store_dwordx4 v8, v[40:43], s[4:5]
    P_KEND:
    @FLUSH 6
    s_endpgm
    """)
    k.label("P_TR")
    PITCH = 144
    k(f"""
    s_load_dwordx2 s[8:9], s[0:1], {KA_U}
    s_sub_u32 s3, s2, {B_T}
    s_lshr_b32 s10, s3, 3                 ; lt (0..31)
    s_and_b32 s11, s3, 7                  ; dt (0..7)
    v_lshrrev_b32 v1, 3, v0               ; row 0..31
    v_and_b32 v2, 7, v0                   ; chunk
    s_lshl_b32 s12, s10, 16               ; lt*64*1024
    s_lshl_b32 s13, s11, 7
    s_add_u32 s12, s12, s13
    v_lshlrev_b32 v3, 10, v1
    v_lshl_add_u32 v3, v2, 4, v3
    v_add_u32 v3, s12, v3
    v_add_u32 v4, 0x8000, v3
    s_waitcnt lgkmcnt(0)
    global_load_dwordx4 v[8:11], v3, s[8:9]
    global_load_dwordx4 v[12:15], v4, s[8:9]
    v_lshrrev_b32 v41, 6, v0
    v_and_b32 v42, 63, v0
    s_lshl_b32 s14, s3, 13                ; 8 rows * 1024
    v_lshlrev_b32 v43, 11, v41
    v_lshl_add_u32 v43, v42, 4, v43
    v_add_u32 v43, s14, v43
    global_load_dwordx4 v[48:51], v43, s[8:9]
    global_load_dwordx4 v[52:55], v43, s[8:9] offset:1024
    v_mul_u32_u24 v5, {PITCH}, v1
    v_lshl_add_u32 v5, v2, 4, v5
    v_and_b32 v6, 15, v0                  ; lam
    v_bfe_u32 v7, v0, 4, 2                ; g
    v_lshrrev_b32 v16, 6, v0              ; w
    v_lshrrev_b32 v17, 2, v6              ; r = lam>>2
    v_lshl_add_u32 v17, v7, 3, v17        ; row = 8g + r
    v_mul_u32_u24 v17, {PITCH}, v17
    v_and_b32 v18, 3, v6
    v_lshl_add_u32 v17, v18, 3, v17       ; + c*8
    v_lshl_add_u32 v17, v16, 5, v17       ; + w*32 bytes
    s_mul_i32 s12, s11, {64*XP}
    s_lshl_b32 s13, s10, 7
    s_add_u32 s12, s12, s13
    s_add_u32 s12, s12, {XT0}
    v_lshl_add_u32 v19, v16, 4, v6
    v_mul_u32_u24 v19, {XP}, v19
    v_lshl_add_u32 v19, v7, 4, v19
    v_add_u32 v19, s12, v19
    s_waitcnt vmcnt(2)
    ds_write_b128 v5, v[8:11]
    ds_write_b128 v5, v[12:15] offset:{32*PITCH}
    s_waitcnt lgkmcnt(0)
    s_barrier
    ds_read_b64_tr_b16 v[8:9], v17
    ds_read_b64_tr_b16 v[10:11], v17 offset:{4*PITCH}
    ds_read_b64_tr_b16 v[12:13], v17 offset:{32*PITCH}
    ds_read_b64_tr_b16 v[14:15], v17 offset:{36*PITCH}
    s_waitcnt lgkmcnt(0)
    global_store_dwordx4 v19, v[8:11], s[4:5] {PREP_X_POL}
    global_store_dwordx4 v19, v[12:15], s[4:5] offset:64 {PREP_X_POL}
    """)
    k(f"""
    v_mov_b32 v2, v42
    s_lshl_b32 s10, s3, 4
    v_lshlrev_b32 v4, 12, v41
    v_add_u32 v4, s10, v4                 ; w*4096 + wg*16
    v_add_u32 v5, {ST0}, v4
    v_add_u32 v6, {ST1}, v4
    s_waitcnt vmcnt(2)
    """)
    for row, (base, sm, sq) in enumerate([(48, 20, 21), (52, 22, 23)]):
        for j in range(4):
            k(f"v_lshlrev_b32 v16, 16, v{base+j}")
            k(f"v_and_b32 v17, 0xffff0000, v{base+j}")
            if j == 0:
                k(f"v_add_f32 v{sm}, v16, v17")
                k(f"v_mul_f32 v{sq}, v16, v16")
            else:
                k(f"v_add_f32 v{sm}, v{sm}, v16")
                k(f"v_add_f32 v{sm}, v{sm}, v17")
                k(f"v_fmac_f32 v{sq}, v16, v16")
            k(f"v_fmac_f32 v{sq}, v17, v17")
    for sh in ("row_shr:1", "row_shr:2", "row_shr:4", "row_shr:8"):
        for r in range(20, 24):
            k(f"v_add_f32_dpp v{r}, v{r}, v{r} {sh} row_mask:0xf bank_mask:0xf bound_ctrl:0")
    for r in range(20, 24):
        k(f"v_add_f32_dpp v{r}, v{r}, v{r} row_bcast:15 row_mask:0xa bank_mask:0xf")
    for r in range(20, 24):
        k(f"v_add_f32_dpp v{r}, v{r}, v{r} row_bcast:31 row_mask:0xc bank_mask:0xf")
    k(f"""
    v_mov_b32 v24, 0
    v_mov_b32 v25, 0
    v_mov_b32 v26, 0
    v_mov_b32 v27, 0
    s_lshl_b32 s10, s3, 9
    s_add_u32 s10, s10, {ZR}
    v_and_b32 v7, 31, v0
    v_lshl_add_u32 v7, v7, 4, s10
    global_store_dwordx4 v7, v[24:27], s[4:5]
    v_cmp_eq_u32 vcc, 63, v2
    s_and_saveexec_b64 s[22:23], vcc
    global_store_dwordx4 v5, v[20:23], s[4:5]
    global_store_dwordx4 v6, v[24:27], s[4:5]
    @FLUSH 2
    s_endpgm
    """)
    k.label("P_W")
    WPITCH = 400
    k(f"""
    s_load_dwordx4 s[8:11], s[0:1], {KA_WG}
    s_sub_u32 s3, s2, {B_W}
    s_lshr_b32 s12, s3, 4                 ; ft
    s_and_b32 s13, s3, 15                 ; s
    """)
    k(f"""
    s_mul_i32 s14, s13, {32*F*2}
    s_mul_i32 s15, s12, 192
    s_add_u32 s14, s14, s15
    s_mul_i32 s16, s12, 12
    s_mov_b32 s17, 0x15555556
    """)
    k(f"v_mov_b32 v5, {F//8}")
    for i in range(2):
        k(f"""
        v_add_u32 v1, {256*i}, v0
        v_mul_hi_u32 v2, v1, s17
        v_mul_u32_u24 v3, 12, v2
        v_sub_u32 v3, v1, v3                  ; chunk
        v_mul_u32_u24 v4, {F*2}, v2
        v_lshl_add_u32 v4, v3, 4, v4
        v_add_u32 v{40+i}, s14, v4
        v_mul_u32_u24 v4, {WPITCH}, v2
        v_lshl_add_u32 v{42+i}, v3, 5, v4
        v_add_u32 v3, s16, v3
        v_cmp_gt_u32 s[{24+2*i}:{25+2*i}], v5, v3
        """)
    for r in range(8, 24): k(f"v_mov_b32 v{r}, 0")
    k(f"""
    v_cmp_gt_u32 vcc, 0x80, v0
    s_and_b64 s[26:27], s[26:27], vcc
    s_waitcnt lgkmcnt(0)
    s_mov_b64 s[28:29], exec
    s_mov_b64 exec, s[24:25]
    s_cbranch_execz P_W1
    global_load_dwordx4 v[8:11], v40, s[8:9]
    global_load_dwordx4 v[12:15], v40, s[10:11]
    P_W1:
    s_mov_b64 exec, s[26:27]
    s_cbranch_execz P_W2
    global_load_dwordx4 v[16:19], v41, s[8:9]
    global_load_dwordx4 v[20:23], v41, s[10:11]
    P_W2:
    s_mov_b64 exec, s[28:29]
    s_waitcnt vmcnt(0)
    ds_write2_b32 v42, v8, v9 offset0:0 offset1:2
    ds_write2_b32 v42, v10, v11 offset0:4 offset1:6
    ds_write2_b32 v42, v12, v13 offset0:1 offset1:3
    ds_write2_b32 v42, v14, v15 offset0:5 offset1:7
    s_and_saveexec_b64 s[28:29], vcc
    s_cbranch_execz P_W3
    ds_write2_b32 v43, v16, v17 offset0:0 offset1:2
    ds_write2_b32 v43, v18, v19 offset0:4 offset1:6
    ds_write2_b32 v43, v20, v21 offset0:1 offset1:3
    ds_write2_b32 v43, v22, v23 offset0:5 offset1:7
    P_W3:
    s_mov_b64 exec, s[28:29]
    v_and_b32 v1, 15, v0
    v_bfe_u32 v2, v0, 4, 2
    v_lshrrev_b32 v3, 2, v1
    v_lshl_add_u32 v3, v2, 2, v3
    v_mul_u32_u24 v3, {WPITCH}, v3
    v_and_b32 v4, 3, v1
    v_lshl_add_u32 v3, v4, 3, v3
    v_readfirstlane_b32 s18, v0
    s_lshr_b32 s18, s18, 6                ; w
    s_lshl_b32 s19, s18, 7
    s_mov_b32 s20, 32
    s_cmp_eq_u32 s18, 3
    s_cselect_b32 s19, 96, s19
    s_cselect_b32 s20, 128, s20
    v_add_u32 v3, s19, v3
    v_add_u32 v4, s20, v3
    v_add_u32 v5, s20, v4
    s_lshl_b32 s21, s12, 2
    s_add_u32 s21, s21, s18
    s_lshl_b32 s21, s21, 4
    s_add_u32 s21, s21, s13
    s_mul_i32 s21, s21, 3072
    s_add_u32 s21, s21, {WP}
    v_and_b32 v6, 63, v0
    v_lshlrev_b32 v6, 4, v6
    v_add_u32 v6, s21, v6
    v_add_u32 v7, 0x400, v6
    v_add_u32 v24, 0x800, v6
    s_waitcnt lgkmcnt(0)
    s_barrier
    ds_read_b64_tr_b16 v[8:9], v3
    ds_read_b64_tr_b16 v[10:11], v3 offset:{16*WPITCH}
    ds_read_b64_tr_b16 v[12:13], v4
    ds_read_b64_tr_b16 v[14:15], v4 offset:{16*WPITCH}
    ds_read_b64_tr_b16 v[16:17], v5
    ds_read_b64_tr_b16 v[18:19], v5 offset:{16*WPITCH}
    s_waitcnt lgkmcnt(0)
    global_store_dwordx4 v6, v[8:11], s[4:5] {PREP_W_POL}
    global_store_dwordx4 v7, v[12:15], s[4:5] {PREP_W_POL}
    global_store_dwordx4 v24, v[16:19], s[4:5] {PREP_W_POL}
    @FLUSH 2
    s_endpgm
    """)
    k.label("P_D")
    DPITCH = 272
    k(f"""
    s_load_dwordx2 s[8:9], s[0:1], {KA_WD}
    s_sub_u32 s3, s2, {B_D}
    s_lshr_b32 s12, s3, 2                 ; ks 0..43
    s_and_b32 s13, s3, 3                  ; dq
    v_lshrrev_b32 v1, 4, v0               ; row 0..15 (+16)
    v_and_b32 v2, 15, v0                  ; chunk
    s_lshl_b32 s14, s12, 15               ; ks*32*1024
    s_lshl_b32 s15, s13, 8
    s_add_u32 s14, s14, s15
    v_lshlrev_b32 v3, 10, v1
    v_lshl_add_u32 v3, v2, 4, v3
    v_add_u32 v3, s14, v3
    v_add_u32 v4, 0x4000, v3
    """)
    for r in range(8, 16): k(f"v_mov_b32 v{r}, 0")
    k(f"""
    s_waitcnt lgkmcnt(0)
    s_cmp_ge_u32 s12, 43
    s_cbranch_scc1 P_D1
    global_load_dwordx4 v[8:11], v3, s[8:9]
    global_load_dwordx4 v[12:15], v4, s[8:9]
    P_D1:
    v_bfe_u32 v5, v1, 1, 2                ; g
    v_lshrrev_b32 v6, 3, v1               ; dw (0/1)
    v_and_b32 v7, 1, v1
    v_lshl_add_u32 v7, v6, 1, v7
    v_lshl_add_u32 v7, v5, 3, v7          ; rho
    v_mul_u32_u24 v7, {DPITCH}, v7
    v_lshl_add_u32 v7, v2, 4, v7
    v_and_b32 v1, 15, v0
    v_bfe_u32 v2, v0, 4, 2
    v_lshrrev_b32 v16, 6, v0
    v_lshrrev_b32 v3, 2, v1
    v_lshl_add_u32 v3, v2, 3, v3          ; row = 8g + r
    v_mul_u32_u24 v3, {DPITCH}, v3
    v_and_b32 v4, 3, v1
    v_lshl_add_u32 v3, v4, 3, v3          ; + c*8 bytes (4 d)
    v_lshl_add_u32 v3, v16, 6, v3         ; + w*64
    s_lshl_b32 s16, s13, 3
    v_lshl_add_u32 v17, v16, 1, s16
    v_mul_u32_u24 v17, {NKS2*1024}, v17
    v_and_b32 v18, 63, v0
    v_lshl_add_u32 v17, v18, 4, v17
    s_lshl_b32 s16, s12, 10
    s_add_u32 s16, s16, {WD}
    v_add_u32 v17, s16, v17
    v_add_u32 v18, {NKS2*1024}, v17
    s_waitcnt vmcnt(0)
    ds_write_b128 v7, v[8:11]
    ds_write_b128 v7, v[12:15] offset:{4*DPITCH}
    s_waitcnt lgkmcnt(0)
    s_barrier
    ds_read_b64_tr_b16 v[8:9], v3
    ds_read_b64_tr_b16 v[10:11], v3 offset:{4*DPITCH}
    ds_read_b64_tr_b16 v[12:13], v3 offset:32
    ds_read_b64_tr_b16 v[14:15], v3 offset:{4*DPITCH+32}
    s_waitcnt lgkmcnt(0)
    global_store_dwordx4 v17, v[8:11], s[4:5] {PREP_W_POL}
    global_store_dwordx4 v18, v[12:15], s[4:5] {PREP_W_POL}
    @FLUSH 2
    s_endpgm
    """)
    k.label("P_C")
    k(f"""
    s_load_dwordx4 s[8:11], s[0:1], {KA_WG}
    s_sub_u32 s3, s2, {B_C}
    s_and_b32 s12, s3, 1                  ; mat
    s_lshr_b32 s13, s3, 1                 ; cb 0..21
    v_lshrrev_b32 v1, 3, v0
    v_and_b32 v2, 7, v0                   ; chunk
    s_lshl_b32 s14, s13, 3
    v_add_u32 v3, s14, v2
    v_mul_u32_u24 v4, {F*2}, v1
    v_lshl_add_u32 v4, v3, 4, v4
    s_waitcnt lgkmcnt(0)
    s_cmp_eq_u32 s12, 1
    s_cselect_b32 s8, s10, s8
    s_cselect_b32 s9, s11, s9
    v_mov_b32 v5, {F//8}
    v_cmp_gt_u32 vcc, v5, v3
    """)
    for r in range(8, 16): k(f"v_mov_b32 v{r}, 0")
    k("""
    s_and_saveexec_b64 s[28:29], vcc
    s_cbranch_execz P_C2
    """)
    for i in range(16):
        k(f"global_load_dwordx4 v[{16+4*i}:{19+4*i}], v4, s[8:9]")
        if i < 15: k(f"v_add_u32 v4, {32*F*2}, v4")
    for i in range(16):
        k(f"s_waitcnt vmcnt({15-i})")
        for j in range(4):
            k(f"v_lshlrev_b32 v6, 16, v{16+4*i+j}")
            k(f"v_and_b32 v7, 0xffff0000, v{16+4*i+j}")
            k(f"v_add_f32 v{8+2*j}, v{8+2*j}, v6")
            k(f"v_add_f32 v{9+2*j}, v{9+2*j}, v7")
    k(f"""
    P_C2:
    s_mov_b64 exec, s[28:29]
    v_lshlrev_b32 v6, 5, v0
    ds_write_b128 v6, v[8:11]
    ds_write_b128 v6, v[12:15] offset:16
    s_waitcnt lgkmcnt(0)
    s_barrier
    v_cmp_gt_u32 vcc, 64, v0
    s_and_saveexec_b64 s[28:29], vcc
    s_cbranch_execz P_C3
    v_lshlrev_b32 v6, 2, v0
    """)
    for i in range(32):
        k(f"ds_read_b32 v{16+i}, v6 offset:{256*i}")
    k("s_waitcnt lgkmcnt(0)")
    for i in range(1, 32):
        k(f"v_add_f32 v16, v16, v{16+i}")
    k(f"""
    s_lshl_b32 s14, s13, 6
    v_add_u32 v1, s14, v0                 ; f
    s_mov_b32 s17, 0x2aaaaab
    v_mul_hi_u32 v2, v1, s17              ; ft
    v_mul_u32_u24 v3, 96, v2
    v_sub_u32 v3, v1, v3                  ; rem
    v_lshrrev_b32 v4, 5, v3               ; j
    v_bfe_u32 v5, v3, 3, 2                ; dw
    v_mul_u32_u24 v7, 3, v4
    v_add_u32 v7, v7, v5                  ; 3j + dw
    v_add_u32 v8, 9, v4                   ; 9 + j
    v_cmp_eq_u32 vcc, 3, v5
    v_cndmask_b32 v7, v7, v8, vcc         ; w*3+tau
    v_mul_u32_u24 v8, 12, v2
    v_add_u32 v7, v7, v8
    v_lshlrev_b32 v7, 4, v7
    v_bfe_u32 v8, v3, 1, 2
    v_lshl_add_u32 v7, v8, 2, v7
    v_and_b32 v8, 1, v3
    v_add_u32 v7, v7, v8
    s_lshl_b32 s14, s12, 1
    v_add_u32 v7, s14, v7
    v_lshlrev_b32 v7, 2, v7
    v_add_u32 v7, {CSUM}, v7
    global_store_dword v7, v16, s[4:5]
    s_cmp_lg_u32 s13, 21
    s_cbranch_scc1 P_C3
    v_cmp_gt_u32 vcc, 32, v0
    s_and_b64 exec, exec, vcc
    v_bfe_u32 v5, v0, 3, 2
    v_add_u32 v7, 6, v5
    v_cmp_eq_u32 vcc, 3, v5
    v_cndmask_b32 v7, v7, 11, vcc
    v_add_u32 v7, {14*12}, v7
    v_lshlrev_b32 v7, 4, v7
    v_bfe_u32 v8, v0, 1, 2
    v_lshl_add_u32 v7, v8, 2, v7
    v_and_b32 v8, 1, v0
    v_add_u32 v7, v7, v8
    v_add_u32 v7, s14, v7
    v_lshlrev_b32 v7, 2, v7
    v_add_u32 v7, {CSUM}, v7
    v_mov_b32 v16, 0
    global_store_dword v7, v16, s[4:5]
    P_C3:
    @FLUSH 2
    s_endpgm
    """)
    return k, dict(vgpr=96, sgpr=48, accum=96, grid=PREP_WGS, block=256, lds=PREP_LDS)


def stats_pair(k, sa, qa, sb, qb, t, keep=None):
    for s_, q_ in ((sa, qa), (sb, qb)):
        k(f"""
        v_mul_f32 v{s_}, s43, v{s_}
        v_mul_f32 v{q_}, s43, v{q_}
        v_fma_f32 v{q_}, -v{s_}, v{s_}, v{q_}
        v_max_f32 v{q_}, 0, v{q_}
        v_cvt_pk_bf16_f32 v{q_}, v{s_}, v{q_}
        v_lshlrev_b32 v{s_}, 16, v{q_}
        v_and_b32 v{q_}, 0xffff0000, v{q_}
        v_add_f32 v{q_}, s44, v{q_}
        """)
    k(f"""
    v_cvt_pk_bf16_f32 v{t}, v{qa}, v{qb}
    v_lshlrev_b32 v{qa}, 16, v{t}
    v_and_b32 v{qb}, 0xffff0000, v{t}
    v_sqrt_f32 v{qa}, v{qa}
    v_sqrt_f32 v{qb}, v{qb}
    v_cvt_pk_bf16_f32 v{t}, v{qa}, v{qb}
    v_lshlrev_b32 v{keep[0] if keep else qa}, 16, v{t}
    v_and_b32 v{keep[1] if keep else qb}, 0xffff0000, v{t}
    v_rcp_f32 v{qa}, v{keep[0] if keep else qa}
    v_rcp_f32 v{qb}, v{keep[1] if keep else qb}
    """)


def gen_conv():
    k = Kern("conv")
    k(f"""
    conv1_kernel:
    s_mov_b32 s30, {XT0}
    s_mov_b32 s31, {ST0}
    s_mov_b32 s32, {X1T}
    @KID 1
    CONV_BODY:
    s_cmp_ge_u32 s2, 512
    s_cbranch_scc1 CONV_END
    @INIT
    s_load_dwordx2 s[4:5], s[0:1], {KA_WS}
    s_load_dwordx2 s[6:7], s[0:1], {KA_DSKIP}
    """)
    conv_setup(k)
    k(f"""
    s_lshl_b32 s18, s17, 11
    s_add_u32 s18, s18, {CRED}
    """)
    conv_p3(k)
    k("""
    @STAMP 10
    s_waitcnt lgkmcnt(0)
    @STAMP 11
    s_load_dword s20, s[6:7], s16
    """)
    srd(k, 8, 4, WS_BYTES)
    k(f"""
    s_mov_b32 m0, s18
    s_nop 0
    buffer_load_dwordx4 v6, s[8:11], s15 offen lds
    buffer_load_dwordx4 v6, s[8:11], s15 offen offset:1024 lds
    """)
    conv_loads(k)
    k("""
    @STAMP 12
    @STAMP 2
    s_waitcnt vmcnt(5)
    """)
    for e in range(11):
        k(f"ds_read_u16 v{48+e}, v{48+e}")
    conv_expand(k)
    k("""
    s_waitcnt vmcnt(1)
    @STAMP 3
    """)
    for i in range(4):
        stats_pair(k, 16 + 4*i, 17 + 4*i, 18 + 4*i, 19 + 4*i, 40)
    k("s_waitcnt vmcnt(0)")
    conv_norm(k)
    if CPF:
        k(f"""
        s_lshr_b32 s21, s2, 3
        s_lshl_b32 s21, s21, 2
        s_add_u32 s21, s21, s17
        s_mul_i32 s22, s21, 6144
        s_and_b32 s23, s2, 1
        s_mul_i32 s23, s23, {8*196608}
        s_add_u32 s22, s22, s23
        s_add_u32 s22, s22, {WP}
        v_mul_u32_u24 v38, {CPF_STRIDE}, v5
        """)
        for j in range(-(-6144 // (64 * CPF_STRIDE))):
            k(f"buffer_load_dword v39, v38, s[8:11], s22 offen\ns_add_u32 s22, s22, {64*CPF_STRIDE}")
    if CODEPF2:
        k(f"""
        s_cmp_ge_u32 s2, 8
        s_cbranch_scc1 CONV_NOPF
        s_getpc_b64 s[22:23]
        v_lshlrev_b32 v38, 6, v0
        global_load_dword v39, v38, s[22:23]
        CONV_NOPF:
        """)
    k("""
    @STAMP 4
    s_waitcnt lgkmcnt(0)
    s_barrier
    CONV_MAIN2:
    @STAMP 5
    """)
    KF = 48; UB = 16; ACC = 112
    pend = []
    def rd(tag):
        if tag[0] == "U":
            mu = int(tag[1:]); r = UB + 4 * (mu & 3)
            k(f"ds_read_b128 v[{r}:{r+3}], v9 offset:{256*mu}")
        else:
            t = int(tag[1:]); r = KF + 4 * t
            k(f"ds_read_b128 v[{r}:{r+3}], v7 offset:{256*t}")
        pend.append(tag)
    def need(tags):
        idx = max([pend.index(t) for t in tags if t in pend], default=-1)
        if idx >= 0:
            k(f"s_waitcnt lgkmcnt({len(pend) - idx - 1})")
            del pend[:idx + 1]
    queue = ["U0"] + [f"K{t}" for t in range(1, 16, 2)] + ["U1"] + [f"K{t}" for t in range(0, 16, 2)] + ["U2", "U3"]
    for t in queue[:12]: rd(t)
    queue = queue[12:]
    for mu in range(16):
        a = UB + 4 * (mu & 3)
        q0 = max(0, -(-(mu - 1) // 2))
        for q in range(q0, 8):
            tp = 2 * q + 1 - mu
            need([f"U{mu}", f"K{tp}"])
            c = "0" if mu == 0 else f"v[{ACC+4*q}:{ACC+4*q+3}]"
            k(f"v_mfma_f32_16x16x32_bf16 v[{ACC+4*q}:{ACC+4*q+3}], v[{KF+4*tp}:{KF+4*tp+3}], v[{a}:{a+3}], {c}")
            if queue: rd(queue.pop(0))
        if mu + 4 < 16: rd(f"U{mu+4}")
        if mu & 1 and mu >= 3:
            q = (mu - 3) // 2
            k(f"ds_write_b128 v10, v[{ACC+4*q}:{ACC+4*q+3}] offset:{(CRED + (q>>1)*8192 if q < 6 else KL) + (q&1)*1024}")
            pend.append("W")
        if mu == 6:
            assert not any(t[0] == "K" for t in pend + queue)
            k("s_barrier")
    k("@STAMP 6")
    k(f"""
    s_and_b32 s21, s20, 0xffff0000
    s_lshl_b32 s20, s20, 16
    s_bitcmp1_b32 s2, 0
    s_cselect_b32 s20, s21, s20
    """)
    for p in range(4):
        k(f"""
        v_lshlrev_b32 v40, 16, v{32+p}
        v_and_b32 v41, 0xffff0000, v{32+p}
        v_mul_f32 v40, s20, v40
        v_mul_f32 v41, s20, v41
        v_cvt_pk_bf16_f32 v41, v40, v41
        """)
        if p == 0:
            k(f"ds_write_b128 v10, v[{ACC+28}:{ACC+31}] offset:{KL + 1024}")
        k(f"""
        v_lshlrev_b32 v{48+2*p}, 16, v41
        v_and_b32 v{49+2*p}, 0xffff0000, v41
        v_lshlrev_b32 v{56+2*p}, 16, v{12+p}
        v_and_b32 v{57+2*p}, 0xffff0000, v{12+p}
        """)
    k("""
    s_waitcnt lgkmcnt(0)
    s_barrier
    @STAMP 7
    """)
    for src in range(4):
        for t in range(2):
            k(f"ds_read_b128 v[{ACC+8*src+4*t}:{ACC+8*src+4*t+3}], v11 offset:{src*2048 + t*16}")
    k("s_waitcnt lgkmcnt(4)")
    for r in range(0, 8, 2):
        k(f"v_pk_add_f32 v[{ACC+r}:{ACC+r+1}], v[{ACC+r}:{ACC+r+1}], v[{ACC+8+r}:{ACC+9+r}]")
    k("s_waitcnt lgkmcnt(0)")
    for r in range(0, 8, 2):
        k(f"v_pk_add_f32 v[{ACC+16+r}:{ACC+17+r}], v[{ACC+16+r}:{ACC+17+r}], v[{ACC+24+r}:{ACC+25+r}]")
    for r in range(0, 8, 2):
        k(f"v_pk_add_f32 v[{ACC+r}:{ACC+r+1}], v[{ACC+r}:{ACC+r+1}], v[{ACC+16+r}:{ACC+17+r}]")
    k("@STAMP 8")
    for p in range(4):
        y0, y1 = ACC + 2*p, ACC + 2*p + 1
        k(f"""
        v_cvt_pk_bf16_f32 v{y1}, v{y0}, v{y1}
        v_lshlrev_b32 v{y0}, 16, v{y1}
        v_and_b32 v{y1}, 0xffff0000, v{y1}
        v_pk_add_f32 v[{y0}:{y1}], v[{y0}:{y1}], v[{48+2*p}:{49+2*p}]
        v_cvt_pk_bf16_f32 v{y1}, v{y0}, v{y1}
        v_lshlrev_b32 v{y0}, 16, v{y1}
        v_and_b32 v{y1}, 0xffff0000, v{y1}
        v_pk_add_f32 v[{y0}:{y1}], v[{y0}:{y1}], v[{56+2*p}:{57+2*p}]
        v_cvt_pk_bf16_f32 v{44+p}, v{y0}, v{y1}
        """)
    k(f"""
    buffer_store_dwordx4 v[44:47], v1, s[8:11], s14 offen {CONV_ST}
    @STAMP 9
    @FLUSH 13
    CONV_END:
    s_endpgm
    .p2align 8
    conv2_kernel:
    s_mov_b32 s30, {X2T}
    s_mov_b32 s31, {ST1}
    s_mov_b32 s32, {X3T}
    @KID 4
    s_branch CONV_BODY
    """)
    info = dict(vgpr=144, sgpr=48, accum=144, grid=512, block=256, lds=CONV_LDS)
    return k, info

MLP_LDS = 163840
H_LD = os.environ.get('H_LD', 'sc1')
M_PRE2 = int(os.environ.get('M_PRE2', '5'))
M_OLD = int(os.environ.get('M_OLD', '1'))
M_LOOK = int(os.environ.get('M_LOOK', '5'))
M_TOUCH = int(os.environ.get('M_TOUCH', '0'))
M_PRE = int(os.environ.get('M_PRE', '8'))
M_OPS = int(os.environ.get('M_OPS', '3'))
M_RAMP = int(os.environ.get('M_RAMP', '5'))
M_WDM = int(os.environ.get('M_WDM', '4'))
M_WDE = int(os.environ.get('M_WDE', '2'))
M_AHEAD2 = int(os.environ.get('M_AHEAD2', '6'))
SPIN_MAX = 1 << 20
SLOT = 40960
def gen_mlp():
    k = Kern("mlp")
    ACC = 0
    FR = 48
    XA = 104
    WA = 112
    CSR = 114
    STV = 126
    RES = 130
    VDMA, VW, VT0, VT1, VT2 = 134, 135, 136, 137, 138
    SA = 139
    VRES = 142; VSTX = 143; VPUB = 144; VCS = 145
    MR = 146
    TMP = 150
    NV = 168
    def wdreg(i): return f"a[{4*i}:{4*i+3}]"
    k(f"""
    mlpa_kernel:
    s_mov_b32 s30, {X1T}
    s_mov_b32 s31, {HB}
    s_mov_b32 s33, {STX}
    s_mov_b32 s34, {FLG}
    s_mov_b32 s35, 0
    @KID 2
    M_BODY:
    s_cmp_ge_u32 s2, 256
    s_cbranch_scc1 M_END
    @INIT
    s_load_dwordx2 s[4:5], s[0:1], {KA_WS}
    s_load_dwordx2 s[6:7], s[0:1], {KA_OUT}
    v_readfirstlane_b32 s17, v0
    s_and_b32 s12, s2, 7                  ; xcd
    s_lshr_b32 s13, s2, 3                 ; idx
    s_lshr_b32 s14, s12, 1
    s_lshl_b32 s14, s14, 2
    s_and_b32 s15, s13, 3
    s_add_u32 s14, s14, s15               ; lt
    s_lshl_b32 s36, s12, 2
    s_add_u32 s36, s36, s15               ; lt64
    s_lshr_b32 s37, s13, 2                ; dt
    s_and_b32 s15, s12, 1
    s_lshl_b32 s15, s15, 3
    s_add_u32 s15, s15, s37               ; ft
    s_lshr_b32 s17, s17, 6                ; w
    s_and_b32 s16, s17, 3
    s_lshr_b32 s29, s17, 2
    v_and_b32 v{VT0}, 63, v0              ; lane
    v_and_b32 v{VT1}, 15, v0              ; lam / j
    v_bfe_u32 v{VT2}, v0, 4, 2            ; g
    s_and_b32 s20, s17, 1
    s_lshl_b32 s20, s20, 2
    v_lshrrev_b32 v{TMP}, 1, v{VT1}
    v_xor_b32 v{TMP+1}, v{TMP}, v{VT2}
    v_xor_b32 v{TMP+1}, s20, v{TMP+1}
    v_and_b32 v{TMP+3}, 1, v{VT1}
    v_lshlrev_b32 v{TMP+3}, 4, v{TMP+3}
    v_mul_u32_u24 v{TMP+4}, {XP}, v{VT2}
    v_add_u32 v{TMP+3}, v{TMP+4}, v{TMP+3}
    v_lshl_add_u32 v{VDMA}, v{TMP+1}, 5, v{TMP+3}
    v_lshlrev_b32 v{VW}, 4, v{VT0}                    ; lane*16
    s_lshl_b32 s18, s14, 8
    s_add_u32 s18, s18, s30
    s_mul_i32 s19, s17, {4*XP}
    s_add_u32 s18, s18, s19
    s_lshl_b32 s19, s17, 10               ; x m0 part: w*1024
    s_lshl_b32 s20, s15, 2
    s_add_u32 s20, s20, s16
    s_lshl_b32 s21, s20, 4
    s_add_u32 s21, s21, s29
    s_mul_i32 s21, s21, 3072
    s_add_u32 s21, s21, {WP}
    s_mul_i32 s22, s17, 3072
    s_add_u32 s22, s22, 0x4000
    s_mul_i32 s24, s20, {3*16*4}
    s_add_u32 s24, s24, {CSUM}
    s_lshl_b32 s38, s37, 2
    s_add_u32 s38, s38, s16
    s_mul_i32 s38, s38, {NKS2*1024}
    s_mul_i32 s23, s29, {22*1024}
    s_add_u32 s38, s38, s23
    s_add_u32 s38, s38, {WD}
    """)
    def group_parts(t):
        base = (t & 3) * SLOT
        parts = [f"""
        s_add_u32 m0, s19, {base}
        s_nop 0
        buffer_load_dwordx4 v{VDMA}, s[8:11], s18 offen lds
        s_add_u32 s18, s18, {32*XP}
        """, f"""
        s_add_u32 m0, s22, {base}
        s_nop 0
        buffer_load_dwordx4 v{VW}, s[8:11], s21 offen lds
        """, f"""
        buffer_load_dwordx4 v{VW}, s[8:11], s21 offen offset:1024 lds
        """, f"""
        buffer_load_dwordx4 v{VW}, s[8:11], s21 offen offset:2048 lds
        s_add_u32 s21, s21, 0x1800
        """, f"""
        s_add_u32 m0, s19, {base + 8192}
        s_nop 0
        buffer_load_dwordx4 v{VDMA}, s[8:11], s18 offen lds
        s_add_u32 s18, s18, {32*XP}
        """]
        return parts
    def wd_part(i):
        p = f"buffer_load_dwordx4 {wdreg(i)}, v{VW}, s[8:11], s38 offen offset:{1024*(i&3)}"
        if (i & 3) == 3: p += "\ns_add_u32 s38, s38, 0x1000"
        return p
    def common_addr():
        k(f"""
        s_mov_b32 s43, {fl(1.0/512)}
        s_mov_b32 s44, {fl(1e-5)}
        s_mov_b32 s45, {fl(-LOG2E)}
        v_lshrrev_b32 v{TMP}, 2, v{VT1}
        v_lshl_add_u32 v{TMP}, v{VT2}, 2, v{TMP}          ; 4g + r
        v_and_b32 v{TMP+1}, 7, v{TMP}                     ; xi
        v_and_b32 v{TMP+2}, 3, v{VT1}
        v_lshlrev_b32 v{TMP+2}, 3, v{TMP+2}
        v_lshl_add_u32 v{TMP+2}, v{TMP}, 8, v{TMP+2}
        v_mul_u32_u24 v{VRES}, {XP}, v{VT1}
        v_lshl_add_u32 v{VRES}, v{VT2}, 4, v{VRES}
        s_lshl_b32 s39, s37, 2
        s_add_u32 s39, s39, s16
        s_mul_i32 s39, s39, {16*XP}
        s_lshl_b32 s40, s36, 7
        s_add_u32 s39, s39, s40
        s_lshl_b32 s40, s29, 6
        s_add_u32 s39, s39, s40
        s_add_u32 s40, s39, s30
        """)
    res_parts = [f"buffer_load_dwordx4 v[{RES}:{RES+3}], v{VRES}, s[8:11], s40 offen"]
    common_addr()
    k("s_lshl_b32 s25, s29, 2")
    for b in range(4):
        k(f"""
        s_add_u32 s26, s25, {b}
        v_xor_b32 v{TMP+3}, s26, v{TMP+1}
        v_lshl_add_u32 v{XA+b}, v{TMP+3}, 5, v{TMP+2}
        v_add_u32 v{XA+4+b}, {2*SLOT}, v{XA+b}
        """)
    k(f"""
    s_mul_i32 s26, s16, 3072
    s_add_u32 s26, s26, 0x4000
    v_add_u32 v{WA}, s26, v{VW}
    v_add_u32 v{WA+1}, {2*SLOT}, v{WA}
    """)
    def late_addr():
        k(f"""
        v_bfe_u32 v{TMP}, v{VT1}, 2, 1                    ; half
        v_mul_u32_u24 v{TMP+4}, 3072, v{TMP}
        v_lshrrev_b32 v{TMP}, 3, v{VT1}
        v_lshl_add_u32 v{TMP+4}, v{TMP}, 6, v{TMP+4}
        v_and_b32 v{TMP}, 3, v{VT1}
        v_lshl_add_u32 v{TMP+4}, v{TMP}, 4, v{TMP+4}
        v_lshl_add_u32 v{TMP+4}, v{VT2}, 8, v{TMP+4}
        s_lshl_b32 s26, s16, 10
        s_cmp_eq_u32 s16, 3
        s_cselect_b32 s26, 12, s26
        s_cselect_b32 s27, 0x400, 4
        s_mul_i32 s28, s29, 12288
        s_add_u32 s26, s26, s28
        v_add_u32 v{SA}, s26, v{TMP+4}
        v_add_u32 v{SA+1}, s27, v{SA}
        v_add_u32 v{SA+2}, s27, v{SA+1}
        v_lshlrev_b32 v{VSTX}, 2, v{VT1}
        s_lshl_b32 s41, s14, 9
        s_lshl_b32 s26, s29, 8
        s_add_u32 s41, s41, s26
        s_add_u32 s41, s41, s33
        s_mul_i32 s26, s17, 3072
        v_add_u32 v{VPUB}, s26, v{VW}
        s_lshl_b32 s42, s14, 3
        s_add_u32 s42, s42, s17
        s_mul_i32 s42, s42, {HKS*1024}
        s_mul_i32 s26, s15, 3072
        s_add_u32 s42, s42, s26
        s_add_u32 s42, s42, s31
        v_lshlrev_b32 v{VCS}, 4, v{VT2}
        """)
    late_addr()
    k(f"""
    v_lshrrev_b32 v{TMP+6}, 3, v{VT0}
    v_mul_u32_u24 v{TMP+6}, {XP}, v{TMP+6}
    v_and_b32 v{TMP+7}, 7, v{VT0}
    v_lshl_add_u32 v{TMP+6}, v{TMP+7}, 5, v{TMP+6}
    s_lshl_b32 s46, s37, 3
    s_add_u32 s46, s46, s17
    s_mul_i32 s46, s46, {8*XP}
    s_lshl_b32 s47, s14, 8
    s_add_u32 s46, s46, s47
    s_add_u32 s46, s46, s30
    """)
    k("s_waitcnt lgkmcnt(0)")
    srd(k, 8, 4, WS_BYTES)
    if M_TOUCH & 1: k(f"buffer_load_dword v{TMP+8}, v{TMP+6}, s[8:11], s46 offen")
    k("""
    s_cmp_eq_u32 s15, 15
    s_cbranch_scc1 M_STATS
    """)
    def reads(s):
        res = []
        t = s >> 1; hi = (t & 3) >> 1; base = (t & 1) * SLOT
        buf = FR + 28 * (s & 1)
        for tau in range(3):
            r = buf + 16 + 4 * tau
            res.append(f"ds_read_b128 v[{r}:{r+3}], v{WA+hi} offset:{base + (s&1)*12288 + tau*1024}")
        for b in range(4):
            off = base + (s & 1) * 8192
            res.append(f"ds_read_b64_tr_b16 v[{buf+4*b}:{buf+4*b+1}], v{XA+4*hi+b} offset:{off}")
            res.append(f"ds_read_b64_tr_b16 v[{buf+4*b+2}:{buf+4*b+3}], v{XA+4*hi+b} offset:{off+4096}")
        return res
    later = [f"buffer_load_dwordx4 v[{CSR+4*tau}:{CSR+4*tau+3}], v{VCS}, s[8:11], s24 offen offset:{64*tau}" for tau in range(3)]
    later += res_parts
    later += [wd_part(i) for i in range(M_WDM)]
    later += [f"buffer_load_dword v{STV+b}, v{VSTX}, s[8:11], s41 offen offset:{64*b} sc1" for b in range(4)]
    n_need = len(later)
    later += [wd_part(i) for i in range(M_WDM, 22)]
    vm = []
    def wait_for(tag):
        assert not any(o[1] == tag for o in opq), tag
        idxs = [i for i, x in enumerate(vm) if x == tag]
        if not idxs: return
        idx = max(idxs)
        k(f"s_waitcnt vmcnt({len(vm) - idx - 1})")
        del vm[:idx + 1]
    opq = []
    for u in range(8):
        gp = group_parts(u)
        e0 = max(2*u - 7, 2*u - M_LOOK)
        if M_OLD: e0 = {0: -1, 1: -1, 2: 0, 3: 1}.get(u, 2*u - 6)
        for j in (0, 1, 2): opq.append((gp[j], f"D{2*u}", e0))
        opq.append((gp[3], f"D{2*u}", e0 + 1 if u > (3 if M_OLD else 1) else e0))
        opq.append((gp[4], f"D{2*u+1}", e0 + 1 if u > (3 if M_OLD else 1) else e0))
    for i, p in enumerate(later[:n_need]): opq.append((p, "N", -100))
    nlater = n_need
    def issue(n, s):
        out = []
        while opq and len(out) < n and opq[0][2] <= s:
            out.append(opq.pop(0))
        return out
    for p, tag, _ in issue(10 if M_OLD else M_PRE, -1):
        k(p); vm.append(tag)
    k("@STAMP 2")
    wait_for("D1" if M_OLD else "D0")
    k("s_barrier")
    k("@STAMP 3")
    for r in reads(0): k(r)
    EXP = os.environ.get('EXP', '')
    for s in range(16):
        if M_OLD:
            bar = False
            if s == 1: wait_for("D3"); bar = True
            elif (s & 1) == 0 and 0 < s < 14: wait_for(f"D{s+3}"); bar = True
            if bar: k("s_barrier")
            k("s_waitcnt lgkmcnt(0)")
        else:
            if s == 0: wait_for("D1")
            elif s < 15 and (s & 1): wait_for(f"D{s+2}")
            k("s_waitcnt lgkmcnt(0)")
            if s < 15 and (s == 0 or (s & 1)): k("s_barrier")
        if s == 8: k("@STAMP 4")
        fill = reads(s + 1) if s < 15 else []
        mf = []
        buf = FR + 28 * (s & 1)
        for b in range(4):
            for tau in range(3):
                a = ACC + (b * 3 + tau) * 4
                c = "0" if s == 0 else f"v[{a}:{a+3}]"
                mf.append(f"v_mfma_f32_16x16x32_bf16 v[{a}:{a+3}], v[{buf+16+4*tau}:{buf+19+4*tau}], v[{buf+4*b}:{buf+4*b+3}], {c}")
        parts = issue((5 if s < 2 else 3) if M_OLD else (M_OPS if s < M_RAMP else 3), s)
        step = 12 // max(len(parts), 1)
        slots = {1 + step * j: p for j, p in enumerate(parts)}
        for i, m in enumerate(mf):
            k(m)
            if i < len(fill): k(fill[i])
            if i in slots:
                k(slots[i][0]); vm.append(slots[i][1])
    assert not opq, len(opq)
    assert nlater >= n_need
    k("@STAMP 5")
    wait_for("N")
    k(f"""
    s_mov_b32 s47, 0
    M_STCHK:
    v_min3_u32 v{TMP}, v{STV}, v{STV+1}, v{STV+2}
    v_min_u32 v{TMP}, v{TMP}, v{STV+3}
    v_cmp_eq_u32 vcc, 0, v{TMP}
    s_cmp_eq_u64 vcc, 0
    s_cbranch_scc1 M_STOK
    s_add_u32 s47, s47, 1
    s_cmp_ge_u32 s47, {SPIN_MAX}
    s_cbranch_scc1 M_STOK
    s_sleep 2
    """)
    for b in range(4): k(f"buffer_load_dword v{STV+b}, v{VSTX}, s[8:11], s41 offen offset:{64*b} sc1")
    k("""
    s_waitcnt vmcnt(0)
    s_branch M_STCHK
    M_STOK:
    @STAMP 6
    """)
    PB = FR
    for b in range(4):
        m = MR
        k(f"""
        v_and_b32 v{m+2}, 0xffff0000, v{STV+b}        ; s
        v_lshlrev_b32 v{m}, 16, v{STV+b}              ; m
        v_rcp_f32 v{m+1}, v{m+2}
        v_mul_f32 v{m+1}, s45, v{m+1}
        """)
        for tau in range(3):
            a = ACC + (b * 3 + tau) * 4
            c = CSR + 4 * tau
            k(f"""
            v_pk_fma_f32 v[{a}:{a+1}], v[{m}:{m+1}], v[{c}:{c+1}], v[{a}:{a+1}] op_sel_hi:[0,1,1] neg_lo:[1,0,0] neg_hi:[1,0,0]
            v_pk_fma_f32 v[{a+2}:{a+3}], v[{m}:{m+1}], v[{c+2}:{c+3}], v[{a+2}:{a+3}] op_sel_hi:[0,1,1] neg_lo:[1,0,0] neg_hi:[1,0,0]
            v_pk_mul_f32 v[{a}:{a+1}], v[{a}:{a+1}], v[{m}:{m+1}] op_sel:[0,1] op_sel_hi:[1,1]
            v_exp_f32 v{a}, v{a}
            v_exp_f32 v{a+1}, v{a+1}
            """)
            if tau < M_WDE and nlater < len(later):
                k(later[nlater]); nlater += 1
        for tau in range(3):
            a = ACC + (b * 3 + tau) * 4
            k(f"""
            v_pk_fma_f32 v[{a}:{a+1}], v[{a}:{a+1}], v[{m+2}:{m+3}], v[{m+2}:{m+3}] op_sel_hi:[1,0,0]
            v_rcp_f32 v{a}, v{a}
            v_rcp_f32 v{a+1}, v{a+1}
            """)
        for tau in range(3):
            a = ACC + (b * 3 + tau) * 4
            k(f"""
            v_pk_mul_f32 v[{a}:{a+1}], v[{a}:{a+1}], v[{a+2}:{a+3}]
            v_cvt_pk_bf16_f32 v{a}, v{a}, v{a+1}
            ds_write_b32 v{SA+tau}, v{a} offset:{(b>>1)*6144 + (b&1)*128}
            """)
    k("""
    s_waitcnt lgkmcnt(0)
    s_barrier
    @STAMP 7
    """)
    for i in range(3):
        k(f"ds_read_b128 v[{PB+4*i}:{PB+4*i+3}], v{VPUB} offset:{1024*i}")
    for i in range(3):
        k(f"s_waitcnt lgkmcnt({2-i})")
        k(f"buffer_store_dwordx4 v[{PB+4*i}:{PB+4*i+3}], v{VW}, s[8:11], s42 offen offset:{1024*i} sc1")
    rest = later[nlater:]
    k(f"""
    s_lshl_b32 s26, s14, 4
    s_add_u32 s26, s26, s15
    s_lshl_b32 s26, s26, 7
    s_add_u32 s26, s26, s34
    v_mov_b32 v{TMP}, 1
    v_mov_b32 v{TMP+1}, 0
    s_waitcnt vmcnt(0)
    s_barrier
    s_cmp_lg_u32 s17, 0
    s_cbranch_scc1 M_NOFLAG
    s_mov_b64 exec, 1
    buffer_store_dword v{TMP}, v{TMP+1}, s[8:11], s26 offen sc1
    s_mov_b64 exec, -1
    M_NOFLAG:
    """)
    for p in rest: k(p)
    HA = XA
    k(f"""
    M_SYNC:
    @STAMP 8
    s_lshl_b32 s26, s36, 2
    s_add_u32 s26, s26, s16
    s_mul_i32 s26, s26, {HKS*1024}
    s_mul_i32 s27, s29, {22*1024}
    s_add_u32 s26, s26, s27
    s_add_u32 s26, s26, s31
    s_lshl_b32 s27, s17, 11               ; m0 part
    s_mul_i32 s28, s29, 0x3000
    v_add_u32 v{HA}, s28, v{VW}
    s_lshl_b32 s28, s29, 12
    s_add_u32 s28, s28, 0x1000
    v_add_u32 v{HA+1}, s28, v{VW}
    v_add_u32 v{HA+2}, 0x10000, v{HA}
    v_add_u32 v{HA+3}, 0x10000, v{HA+1}
    v_add_u32 v{HA+4}, 0x20000, v{HA}
    v_add_u32 v{HA+5}, 0x20000, v{HA+1}
    s_cmp_lg_u32 s17, 1
    s_cbranch_scc1 M_WAITB
    s_lshr_b32 s28, s36, 1
    s_lshl_b32 s28, s28, 11
    s_add_u32 s28, s28, s34
    v_min_u32 v{TMP+4}, 14, v{VT0}
    v_lshlrev_b32 v{TMP+4}, 7, v{TMP+4}
    s_mov_b32 s47, 0
    M_POLL:
    buffer_load_dword v{TMP+5}, v{TMP+4}, s[8:11], s28 offen sc1
    s_waitcnt vmcnt(0)
    v_cmp_eq_u32 vcc, 0, v{TMP+5}
    s_cmp_eq_u64 vcc, 0
    s_cbranch_scc1 M_WAITB
    s_add_u32 s47, s47, 1
    s_cmp_lt_u32 s47, {SPIN_MAX}
    s_cbranch_scc1 M_POLL
    M_WAITB:
    s_lshl_b32 s46, s37, 3
    s_add_u32 s46, s46, s17
    s_mul_i32 s46, s46, 2880
    s_mul_i32 s47, s36, {4*HKS*1024}
    s_add_u32 s46, s46, s47
    s_add_u32 s46, s46, s31
    v_min_u32 v{TMP+6}, 44, v{VT0}
    v_lshlrev_b32 v{TMP+6}, 6, v{TMP+6}
    s_barrier
    @STAMP 9
    """)
    if M_TOUCH & 2: k(f"buffer_load_dword v{TMP+8}, v{TMP+6}, s[8:11], s46 offen")
    def hchunk(c):
        return [f"""
        s_add_u32 m0, s27, {(c % 10) * 16384}
        s_nop 0
        buffer_load_dwordx4 v{VW}, s[8:11], s26 offen {H_LD} lds
        """, f"""
        buffer_load_dwordx4 v{VW}, s[8:11], s26 offen offset:1024 {H_LD} lds
        s_add_u32 s26, s26, 0x800
        """]
    HF = 16
    A2 = 0
    def hreads(c):
        res = []
        for i in range(2):
            for lb in range(4):
                off = (c % 10) * 16384 + (lb & 1) * 2048 + i * 1024
                base = HA + 2 * (off >> 16) + (lb >> 1)
                r = HF + 32 * (c & 1) + (i * 4 + lb) * 4
                res.append(f"ds_read_b128 v[{r}:{r+3}], v{base} offset:{off & 0xffff}")
        return res
    iss = M_PRE2
    for c in range(iss):
        for p in hchunk(c): k(p)
    k(f"s_waitcnt vmcnt({2*(iss-1)})")
    k("s_barrier")
    k("@STAMP 10")
    for r in hreads(0): k(r)
    for c in range(11):
        fill = []
        if c < 10:
            k(f"s_waitcnt vmcnt({2*(iss-(c+2))})")
            k("s_barrier")
        k("s_waitcnt lgkmcnt(0)")
        if c < 10: fill = hreads(c + 1)
        parts = []
        for rep_ in range(2):
            if iss < 11 and (iss < 10 or c >= 1) and iss < c + M_AHEAD2:
                parts += hchunk(iss); iss += 1
        slots = {1 + 2 * j: p for j, p in enumerate(parts)}
        n = 0
        for i in range(2):
            for lb in range(4):
                r = HF + 32 * (c & 1) + (i * 4 + lb) * 4
                a = A2 + 4 * lb
                cc = "0" if (c == 0 and i == 0) else f"v[{a}:{a+3}]"
                k(f"v_mfma_f32_16x16x32_bf16 v[{a}:{a+3}], v[{r}:{r+3}], {wdreg(2*c+i)}, {cc}")
                if n < len(fill): k(fill[n])
                if n in slots: k(slots[n])
                n += 1
    k("@STAMP 11")
    XB = 65536
    k(f"""
    s_lshl_b32 s26, s17, 11
    s_add_u32 s26, s26, {XB}
    v_add_u32 v{TMP}, s26, v{VW}
    s_xor_b32 s26, s26, 0x2000
    v_add_u32 v{TMP+1}, s26, v{VW}
    """)
    for j in range(4):
        k(f"v_lshlrev_b32 v{32+2*j}, 16, v{RES+j}")
        k(f"v_and_b32 v{33+2*j}, 0xffff0000, v{RES+j}")
    k(f"""
    ds_write_b128 v{TMP}, v[8:11]
    ds_write_b128 v{TMP}, v[12:15] offset:1024
    s_waitcnt lgkmcnt(0)
    s_barrier
    ds_read_b128 v[8:11], v{TMP+1}
    ds_read_b128 v[12:15], v{TMP+1} offset:1024
    s_waitcnt lgkmcnt(0)
    """)
    OUT = 16
    for j in range(4):
        y0, y1 = A2 + 2*j, A2 + 2*j + 1
        k(f"""
        v_pk_add_f32 v[{y0}:{y1}], v[{y0}:{y1}], v[{y0+8}:{y1+8}]
        v_cvt_pk_bf16_f32 v{y1}, v{y0}, v{y1}
        v_lshlrev_b32 v{y0}, 16, v{y1}
        v_and_b32 v{y1}, 0xffff0000, v{y1}
        v_pk_add_f32 v[{y0}:{y1}], v[{y0}:{y1}], v[{32+2*j}:{33+2*j}]
        v_cvt_pk_bf16_f32 v{OUT+j}, v{y0}, v{y1}
        """)
    k(f"""
    s_cmp_lg_u32 s35, 0
    s_cbranch_scc1 M_FINAL
    s_add_u32 s40, s39, {X2T}
    buffer_store_dwordx4 v[{OUT}:{OUT+3}], v{VRES}, s[8:11], s40 offen {X2_ST}
    """)
    Q = 48
    for j in range(4):
        k(f"""
        v_lshlrev_b32 v{Q+4*j}, 16, v{OUT+j}
        v_and_b32 v{Q+4*j+2}, 0xffff0000, v{OUT+j}
        v_mul_f32 v{Q+4*j+1}, v{Q+4*j}, v{Q+4*j}
        v_mul_f32 v{Q+4*j+3}, v{Q+4*j+2}, v{Q+4*j+2}
        """)
    for q in range(8):
        k(f"v_add_f32_dpp v{Q+q}, v{Q+q}, v{Q+q} row_ror:8 row_mask:0xf bank_mask:0x3")
        k(f"v_add_f32_dpp v{Q+q}, v{Q+q+8}, v{Q+q+8} row_ror:8 row_mask:0xf bank_mask:0xc")
    for q in range(4):
        k(f"v_add_f32_dpp v{Q+q}, v{Q+q}, v{Q+q} row_shl:4 row_mask:0xf bank_mask:0x5")
        k(f"v_add_f32_dpp v{Q+q}, v{Q+q+4}, v{Q+q+4} row_shr:4 row_mask:0xf bank_mask:0xa")
    for q in range(4):
        k(f"v_add_f32_dpp v{Q+q}, v{Q+q}, v{Q+q} quad_perm:[1,0,3,2] row_mask:0xf bank_mask:0xf")
    for q in range(4):
        k(f"v_add_f32_dpp v{Q+q}, v{Q+q}, v{Q+q} quad_perm:[2,3,0,1] row_mask:0xf bank_mask:0xf")
    SB = 98304
    k(f"""
    v_and_b32 v{TMP}, 3, v{VT1}
    v_cmp_eq_u32 s[48:49], 1, v{TMP}
    v_cmp_eq_u32 s[50:51], 2, v{TMP}
    v_cmp_eq_u32 s[52:53], 3, v{TMP}
    v_lshrrev_b32 v{TMP+1}, 2, v{VT1}
    v_lshlrev_b32 v{TMP+1}, 7, v{TMP+1}
    v_lshl_add_u32 v{TMP+1}, v{VT2}, 4, v{TMP+1}
    v_lshl_add_u32 v{TMP+1}, v{TMP}, 2, v{TMP+1}
    s_lshl_b32 s26, s16, 9
    s_lshl_b32 s27, s29, 6
    s_add_u32 s26, s26, s27
    s_add_u32 s26, s26, {SB}
    v_add_u32 v{TMP+1}, s26, v{TMP+1}
    v_cndmask_b32 v{Q}, v{Q}, v{Q+1}, s[48:49]
    v_cndmask_b32 v{Q}, v{Q}, v{Q+2}, s[50:51]
    v_cndmask_b32 v{Q}, v{Q}, v{Q+3}, s[52:53]
    ds_write_b32 v{TMP+1}, v{Q}
    s_lshl_b32 s26, s17, 8
    s_add_u32 s26, s26, {SB}
    v_lshl_add_u32 v{TMP+2}, v{VT0}, 2, s26
    v_lshrrev_b32 v{TMP+3}, 5, v{VT0}
    v_lshlrev_b32 v{TMP+3}, 12, v{TMP+3}
    v_and_b32 v{TMP+4}, 31, v{VT0}
    v_lshl_add_u32 v{TMP+3}, v{TMP+4}, 2, v{TMP+3}
    s_lshl_b32 s26, s36, 7
    s_lshl_b32 s27, s17, 13
    s_add_u32 s26, s26, s27
    s_add_u32 s26, s26, {ST1}
    s_waitcnt lgkmcnt(0)
    s_barrier
    s_cmp_ge_u32 s17, 2
    s_cbranch_scc1 M_NOAT
    ds_read_b32 v{Q}, v{TMP+2}
    ds_read_b32 v{Q+1}, v{TMP+2} offset:512
    ds_read_b32 v{Q+2}, v{TMP+2} offset:1024
    ds_read_b32 v{Q+3}, v{TMP+2} offset:1536
    s_waitcnt lgkmcnt(0)
    v_add_f32 v{Q}, v{Q}, v{Q+1}
    v_add_f32 v{Q+2}, v{Q+2}, v{Q+3}
    v_add_f32 v{Q}, v{Q}, v{Q+2}
    buffer_atomic_add_f32 v{Q}, v{TMP+3}, s[8:11], s26 offen
    M_NOAT:
    @STAMP 12
    @FLUSH 13
    s_endpgm
    M_FINAL:
    """)
    TP = 144; TB2 = 98304
    srd(k, 48, 6, L * D * 2)
    k(f"""
    s_lshl_b32 s26, s16, 4
    v_add_u32 v{TMP}, s26, v{VT1}
    v_mul_u32_u24 v{TMP}, {TP}, v{TMP}
    v_lshl_add_u32 v{TMP}, v{VT2}, 4, v{TMP}
    s_lshl_b32 s26, s29, 6
    s_add_u32 s26, s26, {TB2}
    v_add_u32 v{TMP}, s26, v{TMP}
    ds_write_b128 v{TMP}, v[{OUT}:{OUT+3}]
    v_lshrrev_b32 v{TMP+1}, 2, v{VT1}
    v_lshl_add_u32 v{TMP+1}, v{VT2}, 3, v{TMP+1}
    v_mul_u32_u24 v{TMP+1}, {TP}, v{TMP+1}
    v_and_b32 v{TMP+2}, 3, v{VT1}
    v_lshl_add_u32 v{TMP+1}, v{TMP+2}, 3, v{TMP+1}
    s_lshl_b32 s26, s16, 5
    s_mul_i32 s27, s29, {32*TP}
    s_add_u32 s26, s26, s27
    s_add_u32 s26, s26, {TB2}
    v_add_u32 v{TMP+1}, s26, v{TMP+1}
    v_lshlrev_b32 v{TMP+2}, 10, v{VT1}
    v_lshl_add_u32 v{TMP+2}, v{VT2}, 4, v{TMP+2}
    s_lshl_b32 s26, s36, 2
    s_add_u32 s26, s26, s16
    s_lshl_b32 s26, s26, 14
    s_lshl_b32 s27, s37, 7
    s_add_u32 s26, s26, s27
    s_lshl_b32 s27, s29, 6
    s_add_u32 s26, s26, s27
    s_waitcnt lgkmcnt(0)
    s_barrier
    ds_read_b64_tr_b16 v[32:33], v{TMP+1}
    ds_read_b64_tr_b16 v[34:35], v{TMP+1} offset:{4*TP}
    s_waitcnt lgkmcnt(0)
    buffer_store_dwordx4 v[32:35], v{TMP+2}, s[48:51], s26 offen
    @STAMP 12
    @FLUSH 13
    M_END:
    s_endpgm
    """)
    k(f"""
    M_STATS:
    s_mov_b32 s47, 0
    M_SL1:
    s_mov_b32 m0, s19
    s_add_u32 s19, s19, 0x2000
    buffer_load_dwordx4 v{VDMA}, s[8:11], s18 offen lds
    s_add_u32 s18, s18, {32*XP}
    s_mov_b32 m0, s19
    s_add_u32 s19, s19, 0x2000
    buffer_load_dwordx4 v{VDMA}, s[8:11], s18 offen lds
    s_add_u32 s18, s18, {32*XP}
    s_add_u32 s47, s47, 1
    s_cmp_lt_u32 s47, 8
    s_cbranch_scc1 M_SL1
    """)
    SACC = 0; ONES = 16
    k(f"""
    v_xor_b32 v{TMP+3}, s17, v{TMP+1}
    v_lshl_add_u32 v{XA}, v{TMP+3}, 5, v{TMP+2}
    """)
    for r in range(8): k(f"v_mov_b32 v{SACC+r}, 0")
    for r in range(4): k(f"v_mov_b32 v{ONES+r}, 0x3f803f80")
    k(f"""
    s_mov_b32 s47, 0
    s_waitcnt vmcnt(0)
    s_barrier
    M_SL2:
    """)
    for u in range(8):
        r = FR + 4 * u
        if u == 7: k("s_waitcnt lgkmcnt(12)")
        k(f"ds_read_b64_tr_b16 v[{r}:{r+1}], v{XA} offset:{u*8192}")
        k(f"ds_read_b64_tr_b16 v[{r+2}:{r+3}], v{XA} offset:{u*8192+4096}")
    k(f"v_add_u32 v{XA}, 0x10000, v{XA}")
    for u in range(8):
        r = FR + 4 * u
        k(f"s_waitcnt lgkmcnt({14 - 2*u})")
        k(f"v_mfma_f32_16x16x32_bf16 v[{SACC}:{SACC+3}], v[{r}:{r+3}], v[{r}:{r+3}], v[{SACC}:{SACC+3}]")
        k(f"v_mfma_f32_16x16x32_bf16 v[{SACC+4}:{SACC+7}], v[{ONES}:{ONES+3}], v[{r}:{r+3}], v[{SACC+4}:{SACC+7}]")
    k(f"""
    s_add_u32 s47, s47, 1
    s_cmp_lt_u32 s47, 2
    s_cbranch_scc1 M_SL2
    v_and_b32 v{TMP}, 3, v{VT1}
    v_cmp_eq_u32 s[48:49], 1, v{TMP}
    v_cmp_eq_u32 s[50:51], 2, v{TMP}
    v_cmp_eq_u32 s[52:53], 3, v{TMP}
    v_lshrrev_b32 v{TMP}, 2, v{VT1}
    v_cmp_eq_u32 s[54:55], v{TMP}, v{VT2}
    v_cndmask_b32 v{SACC}, v{SACC}, v{SACC+1}, s[48:49]
    v_cndmask_b32 v{SACC}, v{SACC}, v{SACC+2}, s[50:51]
    v_cndmask_b32 v{SACC+5}, v{SACC}, v{SACC+3}, s[52:53]
    v_mov_b32 v{SACC+12}, v{SACC+4}
    v_mov_b32 v{SACC+13}, v{SACC+5}
    """)
    stats_pair(k, SACC+4, SACC+5, SACC+12, SACC+13, TMP, keep=(SACC+6, SACC+14))
    k(f"""
    v_lshrrev_b32 v{SACC+4}, 16, v{SACC+4}
    v_or_b32 v{SACC+4}, v{SACC+4}, v{SACC+6}
    v_lshlrev_b32 v{VSTX}, 2, v{VT1}
    s_lshl_b32 s41, s14, 9
    s_lshl_b32 s26, s17, 6
    s_add_u32 s41, s41, s26
    s_add_u32 s41, s41, s33
    s_mov_b64 exec, s[54:55]
    buffer_store_dword v{SACC+4}, v{VSTX}, s[8:11], s41 offen sc1
    s_mov_b64 exec, -1
    """)
    for p in res_parts: k(p)
    for i in range(22): k(wd_part(i))
    k(f"""
    s_barrier
    s_branch M_SYNC
    .p2align 8
    mlpb_kernel:
    s_mov_b32 s30, {X3T}
    s_mov_b32 s31, {HB1}
    s_mov_b32 s33, {STX + 0x2000}
    s_mov_b32 s34, {FLG + 0x8000}
    s_mov_b32 s35, 1
    @KID 5
    s_branch M_BODY
    """)
    info = dict(vgpr=NV + 88, sgpr=64, accum=NV, grid=256, block=512, lds=MLP_LDS)
    return k, info

DIAG_KN = {2: ("mlpa", 13), 5: ("mlpb", 13), 3: ("none", 1), 6: ("none", 1)}
def emit(path, launches=None):
    kp, ip = gen_prep()
    kc, ic = gen_conv()
    km, im = gen_mlp()
    infos = {"prep_kernel": ip, "conv1_kernel": ic, "conv2_kernel": ic, "mlpa_kernel": im, "mlpb_kernel": im}
    if os.environ.get("ORDER"): launches = [x + "_kernel" for x in os.environ["ORDER"].split(",")]
    order = launches or ["prep_kernel", "conv1_kernel", "mlpa_kernel", "conv2_kernel", "mlpb_kernel"]
    hdr = open("cdna_kernels/" + NAME + ".s.ref").read().split("; Override launch")[0]
    out = [hdr.rstrip("\n")]
    for n in order:
        i = infos[n]
        out.append(f"; @launch kernel={n} grid=({i['grid']},1,1) block=({i['block']},1,1) lds={i['lds']}")
    out.append('.amdgcn_target "amdgcn-amd-amdhsa--gfx950"\n.text')
    for n in infos:
        out.append(f".globl {n}\n.type {n},@function")
    out.append(".p2align 8\nprep_kernel:\n" + kp.text())
    for kk in (kc, km):
        out.append(".p2align 8\n" + kk.text())
    for n, i in infos.items():
        out.append(descriptor(n, i["vgpr"], 102 if DIAG else i["sgpr"], i["accum"]))
    open(path, "w").write("\n".join(out))

if __name__ == "__main__":
    emit(sys.argv[1] if len(sys.argv) > 1 else "cdna_kernels/" + NAME + ".s")
```

```python
import sys, struct, re
from asmlib import *

NAME = "interleave_layers__ssm_conv_s4d__glu_gated_glu__prompt"
KA_U, KA_LOGA, KA_AIM, KA_CRE, KA_CIM, KA_LOGDT, KA_DSKIP, KA_BX, KA_WG, KA_WU, KA_WD, KA_OUT, KA_DBG, KA_WS = [8 * i for i in range(14)]
XT0, X1T, X2T, X3T = 0x3000000, 0x3300000, 0x3600000, 0x3900000
ST0, ST1, CSUM = 0x0800000, 0x0804000, 0x0808000
WP = 0x0C00000
WD = 0x1000000
HB = 0x1200000
HB1 = 0x2200000
ZR = 0x0810000; STX = 0x0810000; FLG = 0x0820000
KP = 0x1800000; KCS = 4160; KP_STRIDE = 1536
WS_BYTES = 0x10000000
L, D, F, NST = 2048, 512, 1376, 128
NKS2 = 44
HKS = 45

import os
XP = int(os.environ.get('XP', '4352'))
PREP_W_POL = os.environ.get('PREP_W_POL', '')
PREP_K_POL = os.environ.get('PREP_K_POL', '')
PREP_X_POL = ''
PREP_PRIO = int(os.environ.get('PREP_PRIO', '0'))
CONV_ST = os.environ.get('CONV_ST', '')
X2_ST = os.environ.get('X2_ST', '')
F1_SLEEP = int(os.environ.get('F1_SLEEP', '8'))
CODEPF_BASE = int(os.environ.get('CODEPF_BASE', '0'))
CODEPF2 = int(os.environ.get('CODEPF2', '1'))
TLBPF = int(os.environ.get('TLBPF', '0'))
TLBPF_BASE = int(os.environ.get('TLBPF_BASE', '1216'))
CODEPF = int(os.environ.get('CODEPF', '1'))
DIAG = int(os.environ.get("DIAG", "0"))
DIAG_OFF = 0x4000000
_Kern = Kern
class Kern(_Kern):
    def __call__(self, s):
        for l in s.strip("\n").split("\n"):
            t = l.strip()
            if t.startswith("@CNTLOAD"):
                super().__call__("global_load_dword v59, v2, s[28:29] sc1")
                continue
            if t.startswith("@CODEPF"):
                if CODEPF:
                    super().__call__(f"""
                    s_sub_u32 s3, s2, {CODEPF_BASE}
                    s_cmp_ge_u32 s3, 8
                    s_cbranch_scc1 P_NOPF
                    s_getpc_b64 s[6:7]
                    v_lshlrev_b32 v1, 6, v0
                    global_load_dword v94, v1, s[6:7]
                    v_add_u32 v1, 0x4000, v1
                    global_load_dword v95, v1, s[6:7]
                    P_NOPF:
                    """)
                if TLBPF:
                    super().__call__(f"""
                    s_sub_u32 s3, s2, {TLBPF_BASE}
                    s_cmp_ge_u32 s3, 8
                    s_cbranch_scc1 P_NOPF2
                    s_load_dwordx2 s[6:7], s[0:1], {KA_OUT}
                    v_lshlrev_b32 v1, 18, v0
                    v_lshlrev_b32 v2, 13, v0
                    s_waitcnt lgkmcnt(0)
                    global_load_dword v93, v1, s[4:5]
                    global_load_dword v92, v2, s[6:7]
                    P_NOPF2:
                    """)
                continue
            if t.startswith("@"):
                if not DIAG: continue
                p = t.split()
                if p[0] == "@KID":
                    super().__call__(f"s_mov_b32 s59, {DIAG_OFF + int(p[1]) * 0x80000}\ns_mov_b32 s57, {3 if int(p[1]) in (2, 5) else 2}")
                elif p[0] == "@INIT":
                    super().__call__("v_readfirstlane_b32 s58, v0\ns_memrealtime s[64:65]\ns_memtime s[66:67]")
                elif p[0] == "@STAMP":
                    i = int(p[1]); super().__call__(f"s_memtime s[{64+2*i}:{65+2*i}]")
                elif p[0] == "@FLUSH":
                    n = int(p[1])
                    super().__call__(f"""
                    s_waitcnt vmcnt(0)
                    s_memtime s[{64+2*n}:{65+2*n}]
                    s_memrealtime s[{66+2*n}:{67+2*n}]
                    s_waitcnt lgkmcnt(0)
                    s_mov_b64 exec, -1
                    s_lshr_b32 s58, s58, 6
                    s_lshl_b32 s61, s2, s57
                    s_add_u32 s60, s58, s61
                    s_lshl_b32 s60, s60, 6
                    s_add_u32 s60, s60, s59
                    v_mov_b32 v1, s60
                    """)
                    for i in range(n + 2):
                        super().__call__(f"v_mov_b32 v2, s{64+2*i}\nglobal_store_dword v1, v2, s[4:5] offset:{4*i}")
                    super().__call__("s_getreg_b32 s61, hwreg(HW_REG_XCC_ID)\nv_mov_b32 v2, s61\nglobal_store_dword v1, v2, s[4:5] offset:60")
                    if DIAG == 2 and len(p) > 2:
                        lab = f"DG{len(self.lines)}"
                        txt = f"s_or_b32 s60, s2, s58\ns_cmp_lg_u32 s60, 0\ns_cbranch_scc1 {lab}\ns_load_dwordx2 s[62:63], s[0:1], {KA_DBG}\ns_waitcnt vmcnt(0) lgkmcnt(0)\n"
                        j = 0
                        for kid, nn in ((0, 6), (1, 13), (2, 13), (4, 13), (5, 13)):
                            for slot in (0, nn + 1):
                                txt += f"v_mov_b32 v1, {DIAG_OFF + kid * 0x80000 + 4 * slot}\nglobal_load_dword v2, v1, s[4:5] sc1\nv_mov_b32 v3, {4*j}\ns_waitcnt vmcnt(0)\nglobal_store_dword v3, v2, s[62:63]\n"
                                j += 1
                        for kid, slot in ((2, 1), (2, 3), (2, 5), (2, 9), (1, 1), (1, 5)):
                            txt += f"v_mov_b32 v1, {DIAG_OFF + kid * 0x80000 + 4 * slot}\nglobal_load_dword v2, v1, s[4:5] sc1\nv_mov_b32 v3, {4*j}\ns_waitcnt vmcnt(0)\nglobal_store_dword v3, v2, s[62:63]\n"
                            j += 1
                        super().__call__(txt + f"{lab}:")
                continue
            super().__call__(l)

def f2u(x): return struct.unpack("<I", struct.pack("<f", x))[0]
def fl(x): return "0x%08x" % f2u(x)
LOG2E = 1.4426950408889634
L2E_HI = struct.unpack("<f", struct.pack("<f", LOG2E))[0]
L2E_LO = LOG2E - L2E_HI
LN2 = 0.6931471805599453

def srd(k, s, base, nbytes):
    k(f"""
    s_mov_b32 s{s}, s{base}
    s_and_b32 s{s+1}, s{base+1}, 0xffff
    s_mov_b32 s{s+2}, {nbytes:#x}
    s_mov_b32 s{s+3}, 0x20000
    """)

def rnd_bf16(k, dst, a, b=None):
    k(f"v_cvt_pk_bf16_f32 v{dst}, v{a}, v{b if b is not None else a}")

def exp_acc(k, dst, x, t0, t1):
    k(f"""
    v_mul_f32 v{t0}, s40, v{x}
    v_fma_f32 v{t1}, s40, v{x}, -v{t0}
    v_fma_f32 v{t1}, s41, v{x}, v{t1}
    v_exp_f32 v{dst}, v{t0}
    v_mul_f32 v{t1}, s42, v{t1}
    v_fma_f32 v{dst}, v{dst}, v{t1}, v{dst}
    """)

N_K, N_T, N_W, N_D, N_C = 512, 256, 240, 176, 44
KLAST = int(os.environ.get('KLAST', '0'))
if KLAST:
    B_C = 0; B_W = B_C + N_C; B_T = B_W + N_W; B_D = B_T + N_T; B_E = B_D + N_D; B_K = 720; PREP_WGS = B_K + N_K
else:
    B_K = 0; B_C = N_K; B_W = B_C + N_C; B_T = B_W + N_W; B_D = B_T + N_T; B_E = B_D + N_D; PREP_WGS = B_E
PREP_LDS = 18432
PREP_GROUPS = [("prep.K", B_K, B_K + N_K, 6), ("prep.C", B_C, B_W, 2), ("prep.W", B_W, B_T, 2), ("prep.T", B_T, B_D, 2), ("prep.D", B_D, B_E, 2)]
CSU = 4576
KL = 2 * CSU
CRED = KL + 16640
CONV_LDS = CRED + 24576
CPF = int(os.environ.get('CPF', '1'))
CPF_STRIDE = int(os.environ.get('CPF_STRIDE', '128'))
SPIN_MAX = 1 << 20

class Remap:
    def __init__(self, k, voff, smap): self.k = k; self.voff = voff; self.smap = smap
    def __call__(self, t):
        def rv(m):
            if m.group(1): return f"v[{int(m.group(1))+self.voff}:{int(m.group(2))+self.voff}]"
            n = int(m.group(3)); return "v0" if n == 0 else f"v{n+self.voff}"
        t = re.sub(r"\bv\[(\d+):(\d+)\]|\bv(\d+)\b", rv, t)
        def rs(m):
            if m.group(1):
                a = int(m.group(1)); b = int(m.group(2))
                if a in self.smap: return f"s[{self.smap[a]}:{self.smap[a]+b-a}]"
                return m.group(0)
            n = int(m.group(3)); return f"s{self.smap.get(n, n)}"
        t = re.sub(r"\bs\[(\d+):(\d+)\]|\bs(\d+)\b", rs, t)
        self.k(t)
    def label(self, l): self.k.label(l)

class Remap2:
    def __init__(self, k, vmap): self.k = k; self.vmap = vmap
    def __call__(self, t):
        t = re.sub(r"\bv(\d+)\b", lambda m: f"v{self.vmap.get(int(m.group(1)), int(m.group(1)))}", t)
        self.k(t)

def conv_setup(k):
    k(f"""
    v_readfirstlane_b32 s17, v0
    s_mov_b32 s43, {fl(1.0/512)}
    s_mov_b32 s44, {fl(1e-5)}
    s_lshr_b32 s17, s17, 6                ; pi
    s_mul_i32 s12, s2, {XP}
    s_add_u32 s13, s12, s30
    s_add_u32 s14, s12, s32
    s_mul_i32 s15, s2, {KP_STRIDE}
    s_add_u32 s15, s15, {KP}
    s_lshr_b32 s16, s2, 1
    s_lshl_b32 s16, s16, 2
    v_lshlrev_b32 v1, 4, v0               ; tid*16
    v_and_b32 v3, 15, v0                  ; c / r
    v_bfe_u32 v4, v0, 4, 2                ; g
    v_and_b32 v5, 63, v0
    v_lshlrev_b32 v6, 4, v5               ; lane*16
    """)

def conv_loads(k, pol=""):
    k(f"""
    buffer_load_dwordx4 v[16:19], v1, s[8:11], s31 offen {pol}
    s_add_u32 s31, s31, 0x1000
    buffer_load_dwordx4 v[20:23], v1, s[8:11], s31 offen {pol}
    s_add_u32 s31, s31, 0x1000
    buffer_load_dwordx4 v[24:27], v1, s[8:11], s31 offen {pol}
    s_add_u32 s31, s31, 0x1000
    buffer_load_dwordx4 v[28:31], v1, s[8:11], s31 offen {pol}
    buffer_load_dwordx4 v[12:15], v1, s[8:11], s13 offen {pol}
    """)

def conv_p3(k):
    k(f"""
    v_mov_b32 v36, 0
    v_mov_b32 v37, 0
    v_mov_b32 v38, 0
    v_mov_b32 v39, 0
    v_bfe_u32 v9, v0, 2, 2
    v_mul_u32_u24 v9, {KCS}, v9
    v_and_b32 v10, 3, v0
    v_min_u32 v10, 2, v10
    v_lshl_add_u32 v9, v10, 4, v9
    ds_write_b128 v9, v[36:39] offset:{KL}
    v_lshlrev_b32 v40, 3, v0
    s_sub_u32 s19, s18, {2 * (0x4300 - 128)}
    """)
    for e in range(11):
        k(f"v_add_u32 v{48+e}, {e-3}, v40")
        if e < 3: k(f"v_max_i32 v{48+e}, 0, v{48+e}")
        k(f"v_cvt_f32_u32 v{60+e}, v{48+e}")
    for e in range(0, 11, 2):
        k(f"v_cvt_pk_bf16_f32 v{72+e//2}, v{60+e}, v{min(61+e, 70)}")
    for e in range(11):
        src = 72 + e // 2
        if e & 1: k(f"v_lshrrev_b32 v{60+e}, 16, v{src}")
        else: k(f"v_and_b32 v{60+e}, 0xffff, v{src}")
        k(f"v_lshl_add_u32 v{60+e}, v{60+e}, 1, s19")
        k(f"v_lshl_add_u32 v{48+e}, v{48+e}, 1, s18")
    k("v_cmp_gt_u32 s[24:25], 17, v0")
    for e in range(11):
        k(f"v_cndmask_b32 v{48+e}, v{60+e}, v{48+e}, s[24:25]")
    k(f"""
    s_and_b32 s21, s17, 1
    s_sub_u32 s22, 56, s21
    s_mul_i32 s21, s21, {CSU}
    v_min_u32 v9, s22, v5
    v_lshl_add_u32 v9, v9, 3, s21
    ds_write_b64 v9, v[36:37]
    v_and_b32 v9, 1, v3
    v_mul_u32_u24 v9, {CSU}, v9
    v_lshrrev_b32 v10, 1, v3
    v_lshlrev_b32 v11, 2, v10
    v_sub_u32 v11, v11, v4
    s_lshl_b32 s21, s17, 2
    s_sub_u32 s21, 15, s21
    v_add_u32 v11, s21, v11
    v_lshl_add_u32 v9, v11, 4, v9         ; v9 = u addr
    v_and_b32 v7, 3, v3
    v_mul_u32_u24 v7, {KCS}, v7
    v_lshrrev_b32 v8, 2, v3
    v_add_u32 v8, v8, v4
    v_lshl_add_u32 v7, v8, 4, v7
    s_lshl_b32 s21, s17, 6
    s_add_u32 s21, s21, {KL}
    v_add_u32 v7, s21, v7                 ; v7 = K addr
    v_xor_b32 v8, v4, v10
    v_and_b32 v8, 3, v8
    v_lshlrev_b32 v8, 1, v8
    v_lshl_add_u32 v8, v10, 3, v8
    v_and_b32 v11, 1, v3
    v_add_u32 v8, v8, v11
    s_lshl_b32 s21, s17, 11
    v_lshl_add_u32 v10, v8, 4, s21
    v_bfe_u32 v8, v0, 2, 3
    v_xor_b32 v11, v8, v0
    v_and_b32 v11, 3, v11
    v_lshlrev_b32 v11, 5, v11
    v_lshl_add_u32 v11, v8, 7, v11
    v_bfe_u32 v8, v0, 5, 1
    v_lshl_add_u32 v11, v8, 10, v11
    s_lshl_b32 s21, s17, 13
    s_add_u32 s21, s21, {CRED}
    s_cmp_eq_u32 s17, 3
    s_cselect_b32 s21, {KL}, s21
    v_add_u32 v11, s21, v11
    """)

def conv_expand(k):
    k("""
    v_cmp_eq_u32 vcc, 0, v0
    s_waitcnt lgkmcnt(0)
    v_cndmask_b32 v48, v48, v36, vcc
    v_cndmask_b32 v49, v49, v36, vcc
    v_cndmask_b32 v50, v50, v36, vcc
    """)
    for sft in range(4):
        for j in range(4):
            k(f"v_lshl_or_b32 v{64+4*sft+j}, v{48+sft+6-2*j}, 16, v{48+sft+7-2*j}")
        k(f"ds_write_b128 v1, v[{64+4*sft}:{67+4*sft}] offset:{KL + sft*KCS + 48}")

def conv_norm(k):
    for j in range(4):
        k(f"""
        v_lshlrev_b32 v40, 16, v{12+j}
        v_and_b32 v41, 0xffff0000, v{12+j}
        v_sub_f32 v40, v40, v{16+4*j}
        v_sub_f32 v41, v41, v{18+4*j}
        v_cvt_pk_bf16_f32 v41, v40, v41
        v_lshlrev_b32 v40, 16, v41
        v_and_b32 v41, 0xffff0000, v41
        v_mul_f32 v40, v40, v{17+4*j}
        v_mul_f32 v41, v41, v{19+4*j}
        v_cvt_pk_bf16_f32 v{32+j}, v40, v41
        """)
    k(f"""
    ds_write_b128 v1, v[32:35] offset:{CSU + 16*28}
    ds_write2_b64 v1, v[32:33], v[34:35] offset0:57 offset1:58
    """)

def gen_prep():
    k = Kern("prep_kernel")
    k(f"""
    @KID 0
    @INIT
    s_load_dwordx2 s[4:5], s[0:1], {KA_WS}
    @CODEPF
    s_sub_u32 s26, s2, {B_K}
    s_cmp_lt_u32 s26, {N_K}
    s_cbranch_scc1 P_KGEN
    s_setprio {PREP_PRIO}
    s_cmp_lt_u32 s2, {B_W}
    s_cbranch_scc1 P_C
    s_cmp_lt_u32 s2, {B_T}
    s_cbranch_scc1 P_W
    s_cmp_lt_u32 s2, {B_D}
    s_cbranch_scc1 P_TR
    s_cmp_lt_u32 s2, {B_E}
    s_cbranch_scc1 P_D
    s_endpgm
    """)
    k.label("P_KGEN")
    TB = 16384
    k(f"""
    s_load_dwordx4 s[8:11], s[0:1], {KA_LOGA}
    s_load_dwordx4 s[12:15], s[0:1], {KA_CRE}
    s_load_dwordx2 s[16:17], s[0:1], {KA_LOGDT}
    s_mov_b32 s40, {fl(L2E_HI)}
    s_mov_b32 s41, {fl(L2E_LO)}
    s_mov_b32 s42, {fl(LN2)}
    v_lshrrev_b32 v1, 1, v0
    v_and_b32 v1, 0x60, v1
    v_and_or_b32 v1, v0, 31, v1           ; n = 32 w + (lane & 31)
    s_lshl_b32 s3, s26, 8
    v_lshl_add_u32 v2, v1, 1, s3
    s_lshl_b32 s18, s26, 1
    v_mov_b32 v3, s18
    v_readfirstlane_b32 s19, v0
    s_lshr_b32 s19, s19, 6                ; wave
    s_waitcnt lgkmcnt(0)
    global_load_ushort v4, v2, s[8:9]
    global_load_ushort v8, v3, s[16:17]
    global_load_ushort v5, v2, s[10:11]
    global_load_ushort v6, v2, s[12:13]
    global_load_ushort v7, v2, s[14:15]
    v_and_b32 v20, 15, v0                 ; i / j
    v_bfe_u32 v21, v0, 4, 2               ; g
    ; hi0 = 128*(i>>3) + (i&7)
    v_lshrrev_b32 v23, 3, v20
    v_and_b32 v24, 7, v20
    v_lshl_add_u32 v23, v23, 7, v24
    v_cvt_f32_u32 v30, v23
    ; hi1 = (g''<2 ? 256+2g'' : 256*g'') + 128*((i>>1)&1) + 4*(i&1)
    v_lshrrev_b32 v23, 2, v20
    v_lshlrev_b32 v24, 1, v23
    v_add_u32 v24, 0x100, v24
    v_lshlrev_b32 v25, 8, v23
    v_cmp_gt_u32 vcc, 2, v23
    v_cndmask_b32 v24, v25, v24, vcc
    v_bfe_u32 v25, v20, 1, 1
    v_lshl_add_u32 v24, v25, 7, v24
    v_and_b32 v25, 1, v20
    v_lshl_add_u32 v24, v25, 2, v24
    v_cvt_f32_u32 v31, v24
    v_lshlrev_b32 v23, 7, v20
    v_add_u32 v23, 0x400, v23
    v_cvt_f32_u32 v32, v23                ; hi2
    v_lshlrev_b32 v23, 3, v20
    v_cvt_f32_u32 v33, v23                ; lo
    s_lshl_b32 s20, s19, 9
    v_lshl_add_u32 v34, v21, 6, s20
    v_lshrrev_b32 v23, 1, v21
    v_and_b32 v24, 1, v21
    v_lshlrev_b32 v24, 2, v24
    v_lshl_add_u32 v35, v23, 7, v24
    v_lshl_add_u32 v35, v20, 3, v35
    v_mov_b32 v36, 1
    v_mov_b32 v37, 2
    s_cmp_eq_u32 s19, 0
    s_cbranch_scc1 P_KA
    v_lshl_add_u32 v35, v21, 6, v20
    v_add_u32 v35, 0x200, v35
    v_mov_b32 v36, 16
    v_mov_b32 v37, 32
    s_cmp_lg_u32 s19, 1
    s_cbranch_scc1 P_KA
    v_lshl_add_u32 v23, v20, 2, v21
    v_add_u32 v23, 0x100, v23             ; seg1: 256 + g' + 4j ; o1=2 o2=64
    v_lshlrev_b32 v24, 6, v21
    v_lshl_add_u32 v24, v20, 1, v24
    v_add_u32 v24, 0x100, v24             ; seg2: 384 + 64(g'-2) + 2j ; o1=1 o2=32
    v_cmp_gt_u32 vcc, 2, v21
    v_cndmask_b32 v35, v24, v23, vcc
    v_cndmask_b32 v36, 1, 2, vcc
    v_cndmask_b32 v37, 32, 64, vcc
    P_KA:
    v_add_u32 v38, v36, v37
    v_add_lshl_u32 v36, v36, v35, 1
    v_add_lshl_u32 v37, v37, v35, 1
    v_add_lshl_u32 v38, v38, v35, 1
    v_lshlrev_b32 v35, 1, v35
    v_and_b32 v39, 63, v0
    v_lshlrev_b32 v39, 4, v39             ; lane*16
    s_waitcnt vmcnt(3)
    @STAMP 2
    v_lshlrev_b32 v4, 16, v4
    v_lshlrev_b32 v8, 16, v8
    """)
    exp_acc(k, 10, 8, 16, 17)
    exp_acc(k, 11, 4, 18, 19)
    k(f"""
    v_cvt_pk_bf16_f32 v10, v10, v11
    v_and_b32 v11, 0xffff0000, v10        ; eA
    v_lshlrev_b32 v10, 16, v10            ; dt
    v_mul_f32 v12, v11, v10
    v_mul_f32 v12, s40, v12
    v_sub_f32 v12, 0, v12
    s_waitcnt vmcnt(0)
    v_lshlrev_b32 v5, 16, v5
    v_lshlrev_b32 v6, 16, v6
    v_lshlrev_b32 v7, 16, v7
    v_mul_f32 v13, v5, v10
    v_mul_f32 v13, 0.15915494, v13
    v_add_f32 v10, v10, v10
    v_mul_f32 v14, v6, v10                ; 2*Cre*dt
    v_mul_f32 v15, v7, v10                ; 2*Cim*dt
    v_lshlrev_b32 v9, 4, v1
    ds_write_b128 v9, v[12:15]
    v_max3_f32 v16, |v14|, |v15|, 0
    v_max_f32_dpp v16, v16, v16 row_shr:1 row_mask:0xf bank_mask:0xf
    v_max_f32_dpp v16, v16, v16 row_shr:2 row_mask:0xf bank_mask:0xf
    v_max_f32_dpp v16, v16, v16 row_shr:4 row_mask:0xf bank_mask:0xf
    v_max_f32_dpp v16, v16, v16 row_shr:8 row_mask:0xf bank_mask:0xf
    v_max_f32_dpp v16, v16, v16 row_bcast:15 row_mask:0xa bank_mask:0xf
    v_readlane_b32 s23, v16, 31
    s_mov_b32 s20, 0
    @STAMP 3
    v_mov_b32 v16, s23
    v_bfe_u32 v16, v16, 23, 8
    v_max_u32 v16, 14, v16
    v_sub_u32 v17, 0x8c, v16
    v_cvt_f32_i32 v29, v17                ; kf = 140 - e'
    v_mov_b32 v28, 0
    v_subrev_u32 v16, 13, v16
    v_lshlrev_b32 v27, 23, v16            ; Sinv
    P_KLOOP:
    ds_read_b128 v[52:55], v34
    ds_read_b128 v[56:59], v34 offset:16
    ds_read_b128 v[60:63], v34 offset:32
    ds_read_b128 v[64:67], v34 offset:48
    v_add_u32 v34, 0x100, v34
    """)
    for nn in range(4):
        p = 52 + 4 * nn
        k(f"""
        s_waitcnt lgkmcnt({3-nn})
        v_pk_mul_f32 v[2:3], v[30:31], v[{p}:{p+1}] op_sel_hi:[1,0]
        v_pk_fma_f32 v[4:5], v[32:33], v[{p}:{p+1}], v[28:29] op_sel_hi:[1,0,1]
        v_pk_mul_f32 v[6:7], v[30:31], v[{p}:{p+1}] op_sel:[0,1] op_sel_hi:[1,1]
        v_pk_mul_f32 v[8:9], v[32:33], v[{p}:{p+1}] op_sel:[0,1] op_sel_hi:[1,1]
        v_exp_f32 v2, v2
        v_exp_f32 v3, v3
        v_exp_f32 v4, v4
        v_exp_f32 v5, v5
        v_fract_f32 v6, v6
        v_fract_f32 v7, v7
        v_fract_f32 v8, v8
        v_fract_f32 v9, v9
        v_cos_f32 v10, v6
        v_sin_f32 v11, v6
        v_cos_f32 v12, v7
        v_sin_f32 v13, v7
        v_cos_f32 v14, v8
        v_sin_f32 v15, v8
        v_cos_f32 v16, v9
        v_sin_f32 v17, v9
        v_pk_mul_f32 v[10:11], v[10:11], v[2:3] op_sel_hi:[1,0]
        v_pk_mul_f32 v[12:13], v[12:13], v[2:3] op_sel:[0,1] op_sel_hi:[1,1]
        v_pk_mul_f32 v[14:15], v[14:15], v[4:5] op_sel_hi:[1,0]
        v_pk_mul_f32 v[16:17], v[16:17], v[4:5] op_sel:[0,1] op_sel_hi:[1,1]
        v_cvt_pk_f16_f32 v{68+nn}, v10, v11
        v_cvt_pk_f16_f32 v{72+nn}, v12, v13
        v_cvt_pk_f16_f32 v{76+nn}, v14, v15
        v_pk_mul_f32 v[18:19], v[16:17], v[{p+2}:{p+3}] op_sel_hi:[1,0]
        v_pk_fma_f32 v[18:19], v[16:17], v[{p+2}:{p+3}], v[18:19] op_sel:[1,1,0] op_sel_hi:[0,1,1] neg_lo:[1,0,0]
        v_cvt_pk_f16_f32 v{80+nn}, v18, -v19
        """)
    k(f"""
    s_cmp_eq_u32 s20, 1
    s_cbranch_scc1 P_KL2
    v_mfma_f32_16x16x32_f16 v[40:43], v[68:71], v[80:83], 0
    v_mfma_f32_16x16x32_f16 v[44:47], v[72:75], v[80:83], 0
    v_mfma_f32_16x16x32_f16 v[48:51], v[76:79], v[80:83], 0
    s_mov_b32 s20, 1
    s_branch P_KLOOP
    P_KL2:
    v_mfma_f32_16x16x32_f16 v[40:43], v[68:71], v[80:83], v[40:43]
    v_mfma_f32_16x16x32_f16 v[44:47], v[72:75], v[80:83], v[44:47]
    v_mfma_f32_16x16x32_f16 v[48:51], v[76:79], v[80:83], v[48:51]
    @STAMP 4
    s_mul_i32 s20, s19, 3072
    v_add_u32 v2, s20, v39
    s_lshl_b32 s20, s19, 10
    v_add_u32 v3, s20, v39
    """)
    k("v_mov_b32 v26, v27")
    for r in range(40, 52, 2): k(f"v_pk_mul_f32 v[{r}:{r+1}], v[{r}:{r+1}], v[26:27]")
    k(f"""
    ds_write_b128 v2, v[40:43] offset:4096
    ds_write_b128 v2, v[44:47] offset:5120
    ds_write_b128 v2, v[48:51] offset:6144
    s_mul_i32 s3, s26, {KP_STRIDE}
    s_add_u32 s3, s3, {KP}
    v_lshlrev_b32 v1, 4, v0
    v_add_u32 v8, s3, v1
    s_waitcnt lgkmcnt(0)
    s_barrier
    s_cmp_eq_u32 s19, 3
    s_cbranch_scc1 P_KS
    ds_read_b128 v[40:43], v3 offset:4096
    ds_read_b128 v[44:47], v3 offset:{4096+3072}
    ds_read_b128 v[48:51], v3 offset:{4096+6144}
    ds_read_b128 v[4:7], v3 offset:{4096+9216}
    s_waitcnt lgkmcnt(2)
    v_pk_add_f32 v[40:41], v[40:41], v[44:45]
    v_pk_add_f32 v[42:43], v[42:43], v[46:47]
    s_waitcnt lgkmcnt(0)
    v_pk_add_f32 v[48:49], v[48:49], v[4:5]
    v_pk_add_f32 v[50:51], v[50:51], v[6:7]
    v_pk_add_f32 v[40:41], v[40:41], v[48:49]
    v_pk_add_f32 v[42:43], v[42:43], v[50:51]
    v_cvt_pk_bf16_f32 v40, v40, v41
    v_cvt_pk_bf16_f32 v42, v42, v43
    ds_write_b16 v35, v40 offset:{TB}
    ds_write_b16_d16_hi v36, v40 offset:{TB}
    ds_write_b16 v37, v42 offset:{TB}
    ds_write_b16_d16_hi v38, v42 offset:{TB}
    P_KS:
    s_waitcnt lgkmcnt(0)
    s_barrier
    @STAMP 5
    v_cmp_gt_u32 vcc, 0x60, v0
    s_and_saveexec_b64 s[22:23], vcc
    s_cbranch_execz P_KEND
    ds_read_b128 v[40:43], v1 offset:{TB}
    s_waitcnt lgkmcnt(0)
    global_store_dwordx4 v8, v[40:43], s[4:5]
    P_KEND:
    @FLUSH 6
    s_endpgm
    """)
    k.label("P_TR")
    PITCH = 144
    k(f"""
    s_load_dwordx2 s[8:9], s[0:1], {KA_U}
    s_sub_u32 s3, s2, {B_T}
    s_lshr_b32 s10, s3, 3                 ; lt (0..31)
    s_and_b32 s11, s3, 7                  ; dt (0..7)
    v_lshrrev_b32 v1, 3, v0               ; row 0..31
    v_and_b32 v2, 7, v0                   ; chunk
    s_lshl_b32 s12, s10, 16               ; lt*64*1024
    s_lshl_b32 s13, s11, 7
    s_add_u32 s12, s12, s13
    v_lshlrev_b32 v3, 10, v1
    v_lshl_add_u32 v3, v2, 4, v3
    v_add_u32 v3, s12, v3
    v_add_u32 v4, 0x8000, v3
    s_waitcnt lgkmcnt(0)
    global_load_dwordx4 v[8:11], v3, s[8:9]
    global_load_dwordx4 v[12:15], v4, s[8:9]
    v_lshrrev_b32 v41, 6, v0
    v_and_b32 v42, 63, v0
    s_lshl_b32 s14, s3, 13                ; 8 rows * 1024
    v_lshlrev_b32 v43, 11, v41
    v_lshl_add_u32 v43, v42, 4, v43
    v_add_u32 v43, s14, v43
    global_load_dwordx4 v[48:51], v43, s[8:9]
    global_load_dwordx4 v[52:55], v43, s[8:9] offset:1024
    v_mul_u32_u24 v5, {PITCH}, v1
    v_lshl_add_u32 v5, v2, 4, v5
    v_and_b32 v6, 15, v0                  ; lam
    v_bfe_u32 v7, v0, 4, 2                ; g
    v_lshrrev_b32 v16, 6, v0              ; w
    v_lshrrev_b32 v17, 2, v6              ; r = lam>>2
    v_lshl_add_u32 v17, v7, 3, v17        ; row = 8g + r
    v_mul_u32_u24 v17, {PITCH}, v17
    v_and_b32 v18, 3, v6
    v_lshl_add_u32 v17, v18, 3, v17       ; + c*8
    v_lshl_add_u32 v17, v16, 5, v17       ; + w*32 bytes
    s_mul_i32 s12, s11, {64*XP}
    s_lshl_b32 s13, s10, 7
    s_add_u32 s12, s12, s13
    s_add_u32 s12, s12, {XT0}
    v_lshl_add_u32 v19, v16, 4, v6
    v_mul_u32_u24 v19, {XP}, v19
    v_lshl_add_u32 v19, v7, 4, v19
    v_add_u32 v19, s12, v19
    s_waitcnt vmcnt(2)
    ds_write_b128 v5, v[8:11]
    ds_write_b128 v5, v[12:15] offset:{32*PITCH}
    s_waitcnt lgkmcnt(0)
    s_barrier
    ds_read_b64_tr_b16 v[8:9], v17
    ds_read_b64_tr_b16 v[10:11], v17 offset:{4*PITCH}
    ds_read_b64_tr_b16 v[12:13], v17 offset:{32*PITCH}
    ds_read_b64_tr_b16 v[14:15], v17 offset:{36*PITCH}
    s_waitcnt lgkmcnt(0)
    global_store_dwordx4 v19, v[8:11], s[4:5] {PREP_X_POL}
    global_store_dwordx4 v19, v[12:15], s[4:5] offset:64 {PREP_X_POL}
    """)
    k(f"""
    v_mov_b32 v2, v42
    s_lshl_b32 s10, s3, 4
    v_lshlrev_b32 v4, 12, v41
    v_add_u32 v4, s10, v4                 ; w*4096 + wg*16
    v_add_u32 v5, {ST0}, v4
    v_add_u32 v6, {ST1}, v4
    s_waitcnt vmcnt(2)
    """)
    for row, (base, sm, sq) in enumerate([(48, 20, 21), (52, 22, 23)]):
        for j in range(4):
            k(f"v_lshlrev_b32 v16, 16, v{base+j}")
            k(f"v_and_b32 v17, 0xffff0000, v{base+j}")
            if j == 0:
                k(f"v_add_f32 v{sm}, v16, v17")
                k(f"v_mul_f32 v{sq}, v16, v16")
            else:
                k(f"v_add_f32 v{sm}, v{sm}, v16")
                k(f"v_add_f32 v{sm}, v{sm}, v17")
                k(f"v_fmac_f32 v{sq}, v16, v16")
            k(f"v_fmac_f32 v{sq}, v17, v17")
    for sh in ("row_shr:1", "row_shr:2", "row_shr:4", "row_shr:8"):
        for r in range(20, 24):
            k(f"v_add_f32_dpp v{r}, v{r}, v{r} {sh} row_mask:0xf bank_mask:0xf bound_ctrl:0")
    for r in range(20, 24):
        k(f"v_add_f32_dpp v{r}, v{r}, v{r} row_bcast:15 row_mask:0xa bank_mask:0xf")
    for r in range(20, 24):
        k(f"v_add_f32_dpp v{r}, v{r}, v{r} row_bcast:31 row_mask:0xc bank_mask:0xf")
    k(f"""
    v_mov_b32 v24, 0
    v_mov_b32 v25, 0
    v_mov_b32 v26, 0
    v_mov_b32 v27, 0
    s_lshl_b32 s10, s3, 9
    s_add_u32 s10, s10, {ZR}
    v_and_b32 v7, 31, v0
    v_lshl_add_u32 v7, v7, 4, s10
    global_store_dwordx4 v7, v[24:27], s[4:5]
    v_cmp_eq_u32 vcc, 63, v2
    s_and_saveexec_b64 s[22:23], vcc
    global_store_dwordx4 v5, v[20:23], s[4:5]
    global_store_dwordx4 v6, v[24:27], s[4:5]
    @FLUSH 2
    s_endpgm
    """)
    k.label("P_W")
    WPITCH = 400
    k(f"""
    s_load_dwordx4 s[8:11], s[0:1], {KA_WG}
    s_sub_u32 s3, s2, {B_W}
    s_lshr_b32 s12, s3, 4                 ; ft
    s_and_b32 s13, s3, 15                 ; s
    """)
    k(f"""
    s_mul_i32 s14, s13, {32*F*2}
    s_mul_i32 s15, s12, 192
    s_add_u32 s14, s14, s15
    s_mul_i32 s16, s12, 12
    s_mov_b32 s17, 0x15555556
    """)
    k(f"v_mov_b32 v5, {F//8}")
    for i in range(2):
        k(f"""
        v_add_u32 v1, {256*i}, v0
        v_mul_hi_u32 v2, v1, s17
        v_mul_u32_u24 v3, 12, v2
        v_sub_u32 v3, v1, v3                  ; chunk
        v_mul_u32_u24 v4, {F*2}, v2
        v_lshl_add_u32 v4, v3, 4, v4
        v_add_u32 v{40+i}, s14, v4
        v_mul_u32_u24 v4, {WPITCH}, v2
        v_lshl_add_u32 v{42+i}, v3, 5, v4
        v_add_u32 v3, s16, v3
        v_cmp_gt_u32 s[{24+2*i}:{25+2*i}], v5, v3
        """)
    for r in range(8, 24): k(f"v_mov_b32 v{r}, 0")
    k(f"""
    v_cmp_gt_u32 vcc, 0x80, v0
    s_and_b64 s[26:27], s[26:27], vcc
    s_waitcnt lgkmcnt(0)
    s_mov_b64 s[28:29], exec
    s_mov_b64 exec, s[24:25]
    s_cbranch_execz P_W1
    global_load_dwordx4 v[8:11], v40, s[8:9]
    global_load_dwordx4 v[12:15], v40, s[10:11]
    P_W1:
    s_mov_b64 exec, s[26:27]
    s_cbranch_execz P_W2
    global_load_dwordx4 v[16:19], v41, s[8:9]
    global_load_dwordx4 v[20:23], v41, s[10:11]
    P_W2:
    s_mov_b64 exec, s[28:29]
    s_waitcnt vmcnt(0)
    ds_write2_b32 v42, v8, v9 offset0:0 offset1:2
    ds_write2_b32 v42, v10, v11 offset0:4 offset1:6
    ds_write2_b32 v42, v12, v13 offset0:1 offset1:3
    ds_write2_b32 v42, v14, v15 offset0:5 offset1:7
    s_and_saveexec_b64 s[28:29], vcc
    s_cbranch_execz P_W3
    ds_write2_b32 v43, v16, v17 offset0:0 offset1:2
    ds_write2_b32 v43, v18, v19 offset0:4 offset1:6
    ds_write2_b32 v43, v20, v21 offset0:1 offset1:3
    ds_write2_b32 v43, v22, v23 offset0:5 offset1:7
    P_W3:
    s_mov_b64 exec, s[28:29]
    v_and_b32 v1, 15, v0
    v_bfe_u32 v2, v0, 4, 2
    v_lshrrev_b32 v3, 2, v1
    v_lshl_add_u32 v3, v2, 2, v3
    v_mul_u32_u24 v3, {WPITCH}, v3
    v_and_b32 v4, 3, v1
    v_lshl_add_u32 v3, v4, 3, v3
    v_readfirstlane_b32 s18, v0
    s_lshr_b32 s18, s18, 6                ; w
    s_lshl_b32 s19, s18, 7
    s_mov_b32 s20, 32
    s_cmp_eq_u32 s18, 3
    s_cselect_b32 s19, 96, s19
    s_cselect_b32 s20, 128, s20
    v_add_u32 v3, s19, v3
    v_add_u32 v4, s20, v3
    v_add_u32 v5, s20, v4
    s_lshl_b32 s21, s12, 2
    s_add_u32 s21, s21, s18
    s_lshl_b32 s21, s21, 4
    s_add_u32 s21, s21, s13
    s_mul_i32 s21, s21, 3072
    s_add_u32 s21, s21, {WP}
    v_and_b32 v6, 63, v0
    v_lshlrev_b32 v6, 4, v6
    v_add_u32 v6, s21, v6
    v_add_u32 v7, 0x400, v6
    v_add_u32 v24, 0x800, v6
    s_waitcnt lgkmcnt(0)
    s_barrier
    ds_read_b64_tr_b16 v[8:9], v3
    ds_read_b64_tr_b16 v[10:11], v3 offset:{16*WPITCH}
    ds_read_b64_tr_b16 v[12:13], v4
    ds_read_b64_tr_b16 v[14:15], v4 offset:{16*WPITCH}
    ds_read_b64_tr_b16 v[16:17], v5
    ds_read_b64_tr_b16 v[18:19], v5 offset:{16*WPITCH}
    s_waitcnt lgkmcnt(0)
    global_store_dwordx4 v6, v[8:11], s[4:5] {PREP_W_POL}
    global_store_dwordx4 v7, v[12:15], s[4:5] {PREP_W_POL}
    global_store_dwordx4 v24, v[16:19], s[4:5] {PREP_W_POL}
    @FLUSH 2
    s_endpgm
    """)
    k.label("P_D")
    DPITCH = 272
    k(f"""
    s_load_dwordx2 s[8:9], s[0:1], {KA_WD}
    s_sub_u32 s3, s2, {B_D}
    s_lshr_b32 s12, s3, 2                 ; ks 0..43
    s_and_b32 s13, s3, 3                  ; dq
    v_lshrrev_b32 v1, 4, v0               ; row 0..15 (+16)
    v_and_b32 v2, 15, v0                  ; chunk
    s_lshl_b32 s14, s12, 15               ; ks*32*1024
    s_lshl_b32 s15, s13, 8
    s_add_u32 s14, s14, s15
    v_lshlrev_b32 v3, 10, v1
    v_lshl_add_u32 v3, v2, 4, v3
    v_add_u32 v3, s14, v3
    v_add_u32 v4, 0x4000, v3
    """)
    for r in range(8, 16): k(f"v_mov_b32 v{r}, 0")
    k(f"""
    s_waitcnt lgkmcnt(0)
    s_cmp_ge_u32 s12, 43
    s_cbranch_scc1 P_D1
    global_load_dwordx4 v[8:11], v3, s[8:9]
    global_load_dwordx4 v[12:15], v4, s[8:9]
    P_D1:
    v_bfe_u32 v5, v1, 1, 2                ; g
    v_lshrrev_b32 v6, 3, v1               ; dw (0/1)
    v_and_b32 v7, 1, v1
    v_lshl_add_u32 v7, v6, 1, v7
    v_lshl_add_u32 v7, v5, 3, v7          ; rho
    v_mul_u32_u24 v7, {DPITCH}, v7
    v_lshl_add_u32 v7, v2, 4, v7
    v_and_b32 v1, 15, v0
    v_bfe_u32 v2, v0, 4, 2
    v_lshrrev_b32 v16, 6, v0
    v_lshrrev_b32 v3, 2, v1
    v_lshl_add_u32 v3, v2, 3, v3          ; row = 8g + r
    v_mul_u32_u24 v3, {DPITCH}, v3
    v_and_b32 v4, 3, v1
    v_lshl_add_u32 v3, v4, 3, v3          ; + c*8 bytes (4 d)
    v_lshl_add_u32 v3, v16, 6, v3         ; + w*64
    s_lshl_b32 s16, s13, 3
    v_lshl_add_u32 v17, v16, 1, s16
    v_mul_u32_u24 v17, {NKS2*1024}, v17
    v_and_b32 v18, 63, v0
    v_lshl_add_u32 v17, v18, 4, v17
    s_lshl_b32 s16, s12, 10
    s_add_u32 s16, s16, {WD}
    v_add_u32 v17, s16, v17
    v_add_u32 v18, {NKS2*1024}, v17
    s_waitcnt vmcnt(0)
    ds_write_b128 v7, v[8:11]
    ds_write_b128 v7, v[12:15] offset:{4*DPITCH}
    s_waitcnt lgkmcnt(0)
    s_barrier
    ds_read_b64_tr_b16 v[8:9], v3
    ds_read_b64_tr_b16 v[10:11], v3 offset:{4*DPITCH}
    ds_read_b64_tr_b16 v[12:13], v3 offset:32
    ds_read_b64_tr_b16 v[14:15], v3 offset:{4*DPITCH+32}
    s_waitcnt lgkmcnt(0)
    global_store_dwordx4 v17, v[8:11], s[4:5] {PREP_W_POL}
    global_store_dwordx4 v18, v[12:15], s[4:5] {PREP_W_POL}
    @FLUSH 2
    s_endpgm
    """)
    k.label("P_C")
    k(f"""
    s_load_dwordx4 s[8:11], s[0:1], {KA_WG}
    s_sub_u32 s3, s2, {B_C}
    s_and_b32 s12, s3, 1                  ; mat
    s_lshr_b32 s13, s3, 1                 ; cb 0..21
    v_lshrrev_b32 v1, 3, v0
    v_and_b32 v2, 7, v0                   ; chunk
    s_lshl_b32 s14, s13, 3
    v_add_u32 v3, s14, v2
    v_mul_u32_u24 v4, {F*2}, v1
    v_lshl_add_u32 v4, v3, 4, v4
    s_waitcnt lgkmcnt(0)
    s_cmp_eq_u32 s12, 1
    s_cselect_b32 s8, s10, s8
    s_cselect_b32 s9, s11, s9
    v_mov_b32 v5, {F//8}
    v_cmp_gt_u32 vcc, v5, v3
    """)
    for r in range(8, 16): k(f"v_mov_b32 v{r}, 0")
    k("""
    s_and_saveexec_b64 s[28:29], vcc
    s_cbranch_execz P_C2
    """)
    for i in range(16):
        k(f"global_load_dwordx4 v[{16+4*i}:{19+4*i}], v4, s[8:9]")
        if i < 15: k(f"v_add_u32 v4, {32*F*2}, v4")
    for i in range(16):
        k(f"s_waitcnt vmcnt({15-i})")
        for j in range(4):
            k(f"v_lshlrev_b32 v6, 16, v{16+4*i+j}")
            k(f"v_and_b32 v7, 0xffff0000, v{16+4*i+j}")
            k(f"v_add_f32 v{8+2*j}, v{8+2*j}, v6")
            k(f"v_add_f32 v{9+2*j}, v{9+2*j}, v7")
    k(f"""
    P_C2:
    s_mov_b64 exec, s[28:29]
    v_lshlrev_b32 v6, 5, v0
    ds_write_b128 v6, v[8:11]
    ds_write_b128 v6, v[12:15] offset:16
    s_waitcnt lgkmcnt(0)
    s_barrier
    v_cmp_gt_u32 vcc, 64, v0
    s_and_saveexec_b64 s[28:29], vcc
    s_cbranch_execz P_C3
    v_lshlrev_b32 v6, 2, v0
    """)
    for i in range(32):
        k(f"ds_read_b32 v{16+i}, v6 offset:{256*i}")
    k("s_waitcnt lgkmcnt(0)")
    for i in range(1, 32):
        k(f"v_add_f32 v16, v16, v{16+i}")
    k(f"""
    s_lshl_b32 s14, s13, 6
    v_add_u32 v1, s14, v0                 ; f
    s_mov_b32 s17, 0x2aaaaab
    v_mul_hi_u32 v2, v1, s17              ; ft
    v_mul_u32_u24 v3, 96, v2
    v_sub_u32 v3, v1, v3                  ; rem
    v_lshrrev_b32 v4, 5, v3               ; j
    v_bfe_u32 v5, v3, 3, 2                ; dw
    v_mul_u32_u24 v7, 3, v4
    v_add_u32 v7, v7, v5                  ; 3j + dw
    v_add_u32 v8, 9, v4                   ; 9 + j
    v_cmp_eq_u32 vcc, 3, v5
    v_cndmask_b32 v7, v7, v8, vcc         ; w*3+tau
    v_mul_u32_u24 v8, 12, v2
    v_add_u32 v7, v7, v8
    v_lshlrev_b32 v7, 4, v7
    v_bfe_u32 v8, v3, 1, 2
    v_lshl_add_u32 v7, v8, 2, v7
    v_and_b32 v8, 1, v3
    v_add_u32 v7, v7, v8
    s_lshl_b32 s14, s12, 1
    v_add_u32 v7, s14, v7
    v_lshlrev_b32 v7, 2, v7
    v_add_u32 v7, {CSUM}, v7
    global_store_dword v7, v16, s[4:5]
    s_cmp_lg_u32 s13, 21
    s_cbranch_scc1 P_C3
    v_cmp_gt_u32 vcc, 32, v0
    s_and_b64 exec, exec, vcc
    v_bfe_u32 v5, v0, 3, 2
    v_add_u32 v7, 6, v5
    v_cmp_eq_u32 vcc, 3, v5
    v_cndmask_b32 v7, v7, 11, vcc
    v_add_u32 v7, {14*12}, v7
    v_lshlrev_b32 v7, 4, v7
    v_bfe_u32 v8, v0, 1, 2
    v_lshl_add_u32 v7, v8, 2, v7
    v_and_b32 v8, 1, v0
    v_add_u32 v7, v7, v8
    v_add_u32 v7, s14, v7
    v_lshlrev_b32 v7, 2, v7
    v_add_u32 v7, {CSUM}, v7
    v_mov_b32 v16, 0
    global_store_dword v7, v16, s[4:5]
    P_C3:
    @FLUSH 2
    s_endpgm
    """)
    return k, dict(vgpr=96, sgpr=48, accum=96, grid=PREP_WGS, block=256, lds=PREP_LDS)


def stats_pair(k, sa, qa, sb, qb, t, keep=None):
    for s_, q_ in ((sa, qa), (sb, qb)):
        k(f"""
        v_mul_f32 v{s_}, s43, v{s_}
        v_mul_f32 v{q_}, s43, v{q_}
        v_fma_f32 v{q_}, -v{s_}, v{s_}, v{q_}
        v_max_f32 v{q_}, 0, v{q_}
        v_cvt_pk_bf16_f32 v{q_}, v{s_}, v{q_}
        v_lshlrev_b32 v{s_}, 16, v{q_}
        v_and_b32 v{q_}, 0xffff0000, v{q_}
        v_add_f32 v{q_}, s44, v{q_}
        """)
    k(f"""
    v_cvt_pk_bf16_f32 v{t}, v{qa}, v{qb}
    v_lshlrev_b32 v{qa}, 16, v{t}
    v_and_b32 v{qb}, 0xffff0000, v{t}
    v_sqrt_f32 v{qa}, v{qa}
    v_sqrt_f32 v{qb}, v{qb}
    v_cvt_pk_bf16_f32 v{t}, v{qa}, v{qb}
    v_lshlrev_b32 v{keep[0] if keep else qa}, 16, v{t}
    v_and_b32 v{keep[1] if keep else qb}, 0xffff0000, v{t}
    v_rcp_f32 v{qa}, v{keep[0] if keep else qa}
    v_rcp_f32 v{qb}, v{keep[1] if keep else qb}
    """)


def gen_conv():
    k = Kern("conv")
    k(f"""
    conv1_kernel:
    s_mov_b32 s30, {XT0}
    s_mov_b32 s31, {ST0}
    s_mov_b32 s32, {X1T}
    @KID 1
    CONV_BODY:
    s_cmp_ge_u32 s2, 512
    s_cbranch_scc1 CONV_END
    @INIT
    s_load_dwordx2 s[4:5], s[0:1], {KA_WS}
    s_load_dwordx2 s[6:7], s[0:1], {KA_DSKIP}
    """)
    conv_setup(k)
    k(f"""
    s_lshl_b32 s18, s17, 11
    s_add_u32 s18, s18, {CRED}
    """)
    conv_p3(k)
    k("""
    @STAMP 10
    s_waitcnt lgkmcnt(0)
    @STAMP 11
    s_load_dword s20, s[6:7], s16
    """)
    srd(k, 8, 4, WS_BYTES)
    k(f"""
    s_mov_b32 m0, s18
    s_nop 0
    buffer_load_dwordx4 v6, s[8:11], s15 offen lds
    buffer_load_dwordx4 v6, s[8:11], s15 offen offset:1024 lds
    """)
    conv_loads(k)
    k("""
    @STAMP 12
    @STAMP 2
    s_waitcnt vmcnt(5)
    """)
    for e in range(11):
        k(f"ds_read_u16 v{48+e}, v{48+e}")
    conv_expand(k)
    k("""
    s_waitcnt vmcnt(1)
    @STAMP 3
    """)
    for i in range(4):
        stats_pair(k, 16 + 4*i, 17 + 4*i, 18 + 4*i, 19 + 4*i, 40)
    k("s_waitcnt vmcnt(0)")
    conv_norm(k)
    if CPF:
        k(f"""
        s_lshr_b32 s21, s2, 3
        s_lshl_b32 s21, s21, 2
        s_add_u32 s21, s21, s17
        s_mul_i32 s22, s21, 6144
        s_and_b32 s23, s2, 1
        s_mul_i32 s23, s23, {8*196608}
        s_add_u32 s22, s22, s23
        s_add_u32 s22, s22, {WP}
        v_mul_u32_u24 v38, {CPF_STRIDE}, v5
        """)
        for j in range(-(-6144 // (64 * CPF_STRIDE))):
            k(f"buffer_load_dword v39, v38, s[8:11], s22 offen\ns_add_u32 s22, s22, {64*CPF_STRIDE}")
    if CODEPF2:
        k(f"""
        s_cmp_ge_u32 s2, 8
        s_cbranch_scc1 CONV_NOPF
        s_getpc_b64 s[22:23]
        v_lshlrev_b32 v38, 6, v0
        global_load_dword v39, v38, s[22:23]
        CONV_NOPF:
        """)
    k("""
    @STAMP 4
    s_waitcnt lgkmcnt(0)
    s_barrier
    CONV_MAIN2:
    @STAMP 5
    """)
    KF = 48; UB = 16; ACC = 112
    pend = []
    def rd(tag):
        if tag[0] == "U":
            mu = int(tag[1:]); r = UB + 4 * (mu & 3)
            k(f"ds_read_b128 v[{r}:{r+3}], v9 offset:{256*mu}")
        else:
            t = int(tag[1:]); r = KF + 4 * t
            k(f"ds_read_b128 v[{r}:{r+3}], v7 offset:{256*t}")
        pend.append(tag)
    def need(tags):
        idx = max([pend.index(t) for t in tags if t in pend], default=-1)
        if idx >= 0:
            k(f"s_waitcnt lgkmcnt({len(pend) - idx - 1})")
            del pend[:idx + 1]
    queue = ["U0"] + [f"K{t}" for t in range(1, 16, 2)] + ["U1"] + [f"K{t}" for t in range(0, 16, 2)] + ["U2", "U3"]
    for t in queue[:12]: rd(t)
    queue = queue[12:]
    for mu in range(16):
        a = UB + 4 * (mu & 3)
        q0 = max(0, -(-(mu - 1) // 2))
        for q in range(q0, 8):
            tp = 2 * q + 1 - mu
            need([f"U{mu}", f"K{tp}"])
            c = "0" if mu == 0 else f"v[{ACC+4*q}:{ACC+4*q+3}]"
            k(f"v_mfma_f32_16x16x32_bf16 v[{ACC+4*q}:{ACC+4*q+3}], v[{KF+4*tp}:{KF+4*tp+3}], v[{a}:{a+3}], {c}")
            if queue: rd(queue.pop(0))
        if mu + 4 < 16: rd(f"U{mu+4}")
        if mu & 1 and mu >= 3:
            q = (mu - 3) // 2
            k(f"ds_write_b128 v10, v[{ACC+4*q}:{ACC+4*q+3}] offset:{(CRED + (q>>1)*8192 if q < 6 else KL) + (q&1)*1024}")
            pend.append("W")
        if mu == 6:
            assert not any(t[0] == "K" for t in pend + queue)
            k("s_barrier")
    k("@STAMP 6")
    k(f"""
    s_and_b32 s21, s20, 0xffff0000
    s_lshl_b32 s20, s20, 16
    s_bitcmp1_b32 s2, 0
    s_cselect_b32 s20, s21, s20
    """)
    for p in range(4):
        k(f"""
        v_lshlrev_b32 v40, 16, v{32+p}
        v_and_b32 v41, 0xffff0000, v{32+p}
        v_mul_f32 v40, s20, v40
        v_mul_f32 v41, s20, v41
        v_cvt_pk_bf16_f32 v41, v40, v41
        """)
        if p == 0:
            k(f"ds_write_b128 v10, v[{ACC+28}:{ACC+31}] offset:{KL + 1024}")
        k(f"""
        v_lshlrev_b32 v{48+2*p}, 16, v41
        v_and_b32 v{49+2*p}, 0xffff0000, v41
        v_lshlrev_b32 v{56+2*p}, 16, v{12+p}
        v_and_b32 v{57+2*p}, 0xffff0000, v{12+p}
        """)
    k("""
    s_waitcnt lgkmcnt(0)
    s_barrier
    @STAMP 7
    """)
    for src in range(4):
        for t in range(2):
            k(f"ds_read_b128 v[{ACC+8*src+4*t}:{ACC+8*src+4*t+3}], v11 offset:{src*2048 + t*16}")
    k("s_waitcnt lgkmcnt(4)")
    for r in range(0, 8, 2):
        k(f"v_pk_add_f32 v[{ACC+r}:{ACC+r+1}], v[{ACC+r}:{ACC+r+1}], v[{ACC+8+r}:{ACC+9+r}]")
    k("s_waitcnt lgkmcnt(0)")
    for r in range(0, 8, 2):
        k(f"v_pk_add_f32 v[{ACC+16+r}:{ACC+17+r}], v[{ACC+16+r}:{ACC+17+r}], v[{ACC+24+r}:{ACC+25+r}]")
    for r in range(0, 8, 2):
        k(f"v_pk_add_f32 v[{ACC+r}:{ACC+r+1}], v[{ACC+r}:{ACC+r+1}], v[{ACC+16+r}:{ACC+17+r}]")
    k("@STAMP 8")
    for p in range(4):
        y0, y1 = ACC + 2*p, ACC + 2*p + 1
        k(f"""
        v_cvt_pk_bf16_f32 v{y1}, v{y0}, v{y1}
        v_lshlrev_b32 v{y0}, 16, v{y1}
        v_and_b32 v{y1}, 0xffff0000, v{y1}
        v_pk_add_f32 v[{y0}:{y1}], v[{y0}:{y1}], v[{48+2*p}:{49+2*p}]
        v_cvt_pk_bf16_f32 v{y1}, v{y0}, v{y1}
        v_lshlrev_b32 v{y0}, 16, v{y1}
        v_and_b32 v{y1}, 0xffff0000, v{y1}
        v_pk_add_f32 v[{y0}:{y1}], v[{y0}:{y1}], v[{56+2*p}:{57+2*p}]
        v_cvt_pk_bf16_f32 v{44+p}, v{y0}, v{y1}
        """)
    k(f"""
    buffer_store_dwordx4 v[44:47], v1, s[8:11], s14 offen {CONV_ST}
    @STAMP 9
    @FLUSH 13
    CONV_END:
    s_endpgm
    .p2align 8
    conv2_kernel:
    s_mov_b32 s30, {X2T}
    s_mov_b32 s31, {ST1}
    s_mov_b32 s32, {X3T}
    @KID 4
    s_branch CONV_BODY
    """)
    info = dict(vgpr=144, sgpr=48, accum=144, grid=512, block=256, lds=CONV_LDS)
    return k, info

MLP_LDS = 163840
H_LD = os.environ.get('H_LD', 'sc1')
M_PRE2 = int(os.environ.get('M_PRE2', '5'))
M_OLD = int(os.environ.get('M_OLD', '1'))
M_LOOK = int(os.environ.get('M_LOOK', '5'))
M_TOUCH = int(os.environ.get('M_TOUCH', '0'))
M_PRE = int(os.environ.get('M_PRE', '8'))
M_OPS = int(os.environ.get('M_OPS', '3'))
M_RAMP = int(os.environ.get('M_RAMP', '5'))
M_WDM = int(os.environ.get('M_WDM', '4'))
M_WDE = int(os.environ.get('M_WDE', '2'))
M_AHEAD2 = int(os.environ.get('M_AHEAD2', '6'))
SPIN_MAX = 1 << 20
SLOT = 40960
def gen_mlp():
    k = Kern("mlp")
    ACC = 0
    FR = 48
    XA = 104
    WA = 112
    CSR = 114
    STV = 126
    RES = 130
    VDMA, VW, VT0, VT1, VT2 = 134, 135, 136, 137, 138
    SA = 139
    VRES = 142; VSTX = 143; VPUB = 144; VCS = 145
    MR = 146
    TMP = 150
    NV = 168
    def wdreg(i): return f"a[{4*i}:{4*i+3}]"
    k(f"""
    mlpa_kernel:
    s_mov_b32 s30, {X1T}
    s_mov_b32 s31, {HB}
    s_mov_b32 s33, {STX}
    s_mov_b32 s34, {FLG}
    s_mov_b32 s35, 0
    @KID 2
    M_BODY:
    s_cmp_ge_u32 s2, 256
    s_cbranch_scc1 M_END
    @INIT
    s_load_dwordx2 s[4:5], s[0:1], {KA_WS}
    s_load_dwordx2 s[6:7], s[0:1], {KA_OUT}
    v_readfirstlane_b32 s17, v0
    s_and_b32 s12, s2, 7                  ; xcd
    s_lshr_b32 s13, s2, 3                 ; idx
    s_lshr_b32 s14, s12, 1
    s_lshl_b32 s14, s14, 2
    s_and_b32 s15, s13, 3
    s_add_u32 s14, s14, s15               ; lt
    s_lshl_b32 s36, s12, 2
    s_add_u32 s36, s36, s15               ; lt64
    s_lshr_b32 s37, s13, 2                ; dt
    s_and_b32 s15, s12, 1
    s_lshl_b32 s15, s15, 3
    s_add_u32 s15, s15, s37               ; ft
    s_lshr_b32 s17, s17, 6                ; w
    s_and_b32 s16, s17, 3
    s_lshr_b32 s29, s17, 2
    v_and_b32 v{VT0}, 63, v0              ; lane
    v_and_b32 v{VT1}, 15, v0              ; lam / j
    v_bfe_u32 v{VT2}, v0, 4, 2            ; g
    s_and_b32 s20, s17, 1
    s_lshl_b32 s20, s20, 2
    v_lshrrev_b32 v{TMP}, 1, v{VT1}
    v_xor_b32 v{TMP+1}, v{TMP}, v{VT2}
    v_xor_b32 v{TMP+1}, s20, v{TMP+1}
    v_and_b32 v{TMP+3}, 1, v{VT1}
    v_lshlrev_b32 v{TMP+3}, 4, v{TMP+3}
    v_mul_u32_u24 v{TMP+4}, {XP}, v{VT2}
    v_add_u32 v{TMP+3}, v{TMP+4}, v{TMP+3}
    v_lshl_add_u32 v{VDMA}, v{TMP+1}, 5, v{TMP+3}
    v_lshlrev_b32 v{VW}, 4, v{VT0}                    ; lane*16
    s_lshl_b32 s18, s14, 8
    s_add_u32 s18, s18, s30
    s_mul_i32 s19, s17, {4*XP}
    s_add_u32 s18, s18, s19
    s_lshl_b32 s19, s17, 10               ; x m0 part: w*1024
    s_lshl_b32 s20, s15, 2
    s_add_u32 s20, s20, s16
    s_lshl_b32 s21, s20, 4
    s_add_u32 s21, s21, s29
    s_mul_i32 s21, s21, 3072
    s_add_u32 s21, s21, {WP}
    s_mul_i32 s22, s17, 3072
    s_add_u32 s22, s22, 0x4000
    s_mul_i32 s24, s20, {3*16*4}
    s_add_u32 s24, s24, {CSUM}
    s_lshl_b32 s38, s37, 2
    s_add_u32 s38, s38, s16
    s_mul_i32 s38, s38, {NKS2*1024}
    s_mul_i32 s23, s29, {22*1024}
    s_add_u32 s38, s38, s23
    s_add_u32 s38, s38, {WD}
    """)
    def group_parts(t):
        base = (t & 3) * SLOT
        parts = [f"""
        s_add_u32 m0, s19, {base}
        s_nop 0
        buffer_load_dwordx4 v{VDMA}, s[8:11], s18 offen lds
        s_add_u32 s18, s18, {32*XP}
        """, f"""
        s_add_u32 m0, s22, {base}
        s_nop 0
        buffer_load_dwordx4 v{VW}, s[8:11], s21 offen lds
        """, f"""
        buffer_load_dwordx4 v{VW}, s[8:11], s21 offen offset:1024 lds
        """, f"""
        buffer_load_dwordx4 v{VW}, s[8:11], s21 offen offset:2048 lds
        s_add_u32 s21, s21, 0x1800
        """, f"""
        s_add_u32 m0, s19, {base + 8192}
        s_nop 0
        buffer_load_dwordx4 v{VDMA}, s[8:11], s18 offen lds
        s_add_u32 s18, s18, {32*XP}
        """]
        return parts
    def wd_part(i):
        p = f"buffer_load_dwordx4 {wdreg(i)}, v{VW}, s[8:11], s38 offen offset:{1024*(i&3)}"
        if (i & 3) == 3: p += "\ns_add_u32 s38, s38, 0x1000"
        return p
    def common_addr():
        k(f"""
        s_mov_b32 s43, {fl(1.0/512)}
        s_mov_b32 s44, {fl(1e-5)}
        s_mov_b32 s45, {fl(-LOG2E)}
        v_lshrrev_b32 v{TMP}, 2, v{VT1}
        v_lshl_add_u32 v{TMP}, v{VT2}, 2, v{TMP}          ; 4g + r
        v_and_b32 v{TMP+1}, 7, v{TMP}                     ; xi
        v_and_b32 v{TMP+2}, 3, v{VT1}
        v_lshlrev_b32 v{TMP+2}, 3, v{TMP+2}
        v_lshl_add_u32 v{TMP+2}, v{TMP}, 8, v{TMP+2}
        v_mul_u32_u24 v{VRES}, {XP}, v{VT1}
        v_lshl_add_u32 v{VRES}, v{VT2}, 4, v{VRES}
        s_lshl_b32 s39, s37, 2
        s_add_u32 s39, s39, s16
        s_mul_i32 s39, s39, {16*XP}
        s_lshl_b32 s40, s36, 7
        s_add_u32 s39, s39, s40
        s_lshl_b32 s40, s29, 6
        s_add_u32 s39, s39, s40
        s_add_u32 s40, s39, s30
        """)
    res_parts = [f"buffer_load_dwordx4 v[{RES}:{RES+3}], v{VRES}, s[8:11], s40 offen"]
    common_addr()
    k("s_lshl_b32 s25, s29, 2")
    for b in range(4):
        k(f"""
        s_add_u32 s26, s25, {b}
        v_xor_b32 v{TMP+3}, s26, v{TMP+1}
        v_lshl_add_u32 v{XA+b}, v{TMP+3}, 5, v{TMP+2}
        v_add_u32 v{XA+4+b}, {2*SLOT}, v{XA+b}
        """)
    k(f"""
    s_mul_i32 s26, s16, 3072
    s_add_u32 s26, s26, 0x4000
    v_add_u32 v{WA}, s26, v{VW}
    v_add_u32 v{WA+1}, {2*SLOT}, v{WA}
    """)
    def late_addr():
        k(f"""
        v_bfe_u32 v{TMP}, v{VT1}, 2, 1                    ; half
        v_mul_u32_u24 v{TMP+4}, 3072, v{TMP}
        v_lshrrev_b32 v{TMP}, 3, v{VT1}
        v_lshl_add_u32 v{TMP+4}, v{TMP}, 6, v{TMP+4}
        v_and_b32 v{TMP}, 3, v{VT1}
        v_lshl_add_u32 v{TMP+4}, v{TMP}, 4, v{TMP+4}
        v_lshl_add_u32 v{TMP+4}, v{VT2}, 8, v{TMP+4}
        s_lshl_b32 s26, s16, 10
        s_cmp_eq_u32 s16, 3
        s_cselect_b32 s26, 12, s26
        s_cselect_b32 s27, 0x400, 4
        s_mul_i32 s28, s29, 12288
        s_add_u32 s26, s26, s28
        v_add_u32 v{SA}, s26, v{TMP+4}
        v_add_u32 v{SA+1}, s27, v{SA}
        v_add_u32 v{SA+2}, s27, v{SA+1}
        v_lshlrev_b32 v{VSTX}, 2, v{VT1}
        s_lshl_b32 s41, s14, 9
        s_lshl_b32 s26, s29, 8
        s_add_u32 s41, s41, s26
        s_add_u32 s41, s41, s33
        s_mul_i32 s26, s17, 3072
        v_add_u32 v{VPUB}, s26, v{VW}
        s_lshl_b32 s42, s14, 3
        s_add_u32 s42, s42, s17
        s_mul_i32 s42, s42, {HKS*1024}
        s_mul_i32 s26, s15, 3072
        s_add_u32 s42, s42, s26
        s_add_u32 s42, s42, s31
        v_lshlrev_b32 v{VCS}, 4, v{VT2}
        """)
    late_addr()
    k(f"""
    v_lshrrev_b32 v{TMP+6}, 3, v{VT0}
    v_mul_u32_u24 v{TMP+6}, {XP}, v{TMP+6}
    v_and_b32 v{TMP+7}, 7, v{VT0}
    v_lshl_add_u32 v{TMP+6}, v{TMP+7}, 5, v{TMP+6}
    s_lshl_b32 s46, s37, 3
    s_add_u32 s46, s46, s17
    s_mul_i32 s46, s46, {8*XP}
    s_lshl_b32 s47, s14, 8
    s_add_u32 s46, s46, s47
    s_add_u32 s46, s46, s30
    """)
    k("s_waitcnt lgkmcnt(0)")
    srd(k, 8, 4, WS_BYTES)
    if M_TOUCH & 1: k(f"buffer_load_dword v{TMP+8}, v{TMP+6}, s[8:11], s46 offen")
    k("""
    s_cmp_eq_u32 s15, 15
    s_cbranch_scc1 M_STATS
    """)
    def reads(s):
        res = []
        t = s >> 1; hi = (t & 3) >> 1; base = (t & 1) * SLOT
        buf = FR + 28 * (s & 1)
        for tau in range(3):
            r = buf + 16 + 4 * tau
            res.append(f"ds_read_b128 v[{r}:{r+3}], v{WA+hi} offset:{base + (s&1)*12288 + tau*1024}")
        for b in range(4):
            off = base + (s & 1) * 8192
            res.append(f"ds_read_b64_tr_b16 v[{buf+4*b}:{buf+4*b+1}], v{XA+4*hi+b} offset:{off}")
            res.append(f"ds_read_b64_tr_b16 v[{buf+4*b+2}:{buf+4*b+3}], v{XA+4*hi+b} offset:{off+4096}")
        return res
    later = [f"buffer_load_dwordx4 v[{CSR+4*tau}:{CSR+4*tau+3}], v{VCS}, s[8:11], s24 offen offset:{64*tau}" for tau in range(3)]
    later += res_parts
    later += [wd_part(i) for i in range(M_WDM)]
    later += [f"buffer_load_dword v{STV+b}, v{VSTX}, s[8:11], s41 offen offset:{64*b} sc1" for b in range(4)]
    n_need = len(later)
    later += [wd_part(i) for i in range(M_WDM, 22)]
    vm = []
    def wait_for(tag):
        assert not any(o[1] == tag for o in opq), tag
        idxs = [i for i, x in enumerate(vm) if x == tag]
        if not idxs: return
        idx = max(idxs)
        k(f"s_waitcnt vmcnt({len(vm) - idx - 1})")
        del vm[:idx + 1]
    opq = []
    for u in range(8):
        gp = group_parts(u)
        e0 = max(2*u - 7, 2*u - M_LOOK)
        if M_OLD: e0 = {0: -1, 1: -1, 2: 0, 3: 1}.get(u, 2*u - 6)
        for j in (0, 1, 2): opq.append((gp[j], f"D{2*u}", e0))
        opq.append((gp[3], f"D{2*u}", e0 + 1 if u > (3 if M_OLD else 1) else e0))
        opq.append((gp[4], f"D{2*u+1}", e0 + 1 if u > (3 if M_OLD else 1) else e0))
    for i, p in enumerate(later[:n_need]): opq.append((p, "N", -100))
    nlater = n_need
    def issue(n, s):
        out = []
        while opq and len(out) < n and opq[0][2] <= s:
            out.append(opq.pop(0))
        return out
    for p, tag, _ in issue(10 if M_OLD else M_PRE, -1):
        k(p); vm.append(tag)
    k("@STAMP 2")
    wait_for("D1" if M_OLD else "D0")
    k("s_barrier")
    k("@STAMP 3")
    for r in reads(0): k(r)
    EXP = os.environ.get('EXP', '')
    for s in range(16):
        if M_OLD:
            bar = False
            if s == 1: wait_for("D3"); bar = True
            elif (s & 1) == 0 and 0 < s < 14: wait_for(f"D{s+3}"); bar = True
            if bar: k("s_barrier")
            k("s_waitcnt lgkmcnt(0)")
        else:
            if s == 0: wait_for("D1")
            elif s < 15 and (s & 1): wait_for(f"D{s+2}")
            k("s_waitcnt lgkmcnt(0)")
            if s < 15 and (s == 0 or (s & 1)): k("s_barrier")
        if s == 8: k("@STAMP 4")
        fill = reads(s + 1) if s < 15 else []
        mf = []
        buf = FR + 28 * (s & 1)
        for b in range(4):
            for tau in range(3):
                a = ACC + (b * 3 + tau) * 4
                c = "0" if s == 0 else f"v[{a}:{a+3}]"
                mf.append(f"v_mfma_f32_16x16x32_bf16 v[{a}:{a+3}], v[{buf+16+4*tau}:{buf+19+4*tau}], v[{buf+4*b}:{buf+4*b+3}], {c}")
        parts = issue((5 if s < 2 else 3) if M_OLD else (M_OPS if s < M_RAMP else 3), s)
        step = 12 // max(len(parts), 1)
        slots = {1 + step * j: p for j, p in enumerate(parts)}
        for i, m in enumerate(mf):
            k(m)
            if i < len(fill): k(fill[i])
            if i in slots:
                k(slots[i][0]); vm.append(slots[i][1])
    assert not opq, len(opq)
    assert nlater >= n_need
    k("@STAMP 5")
    wait_for("N")
    k(f"""
    s_mov_b32 s47, 0
    M_STCHK:
    v_min3_u32 v{TMP}, v{STV}, v{STV+1}, v{STV+2}
    v_min_u32 v{TMP}, v{TMP}, v{STV+3}
    v_cmp_eq_u32 vcc, 0, v{TMP}
    s_cmp_eq_u64 vcc, 0
    s_cbranch_scc1 M_STOK
    s_add_u32 s47, s47, 1
    s_cmp_ge_u32 s47, {SPIN_MAX}
    s_cbranch_scc1 M_STOK
    s_sleep 2
    """)
    for b in range(4): k(f"buffer_load_dword v{STV+b}, v{VSTX}, s[8:11], s41 offen offset:{64*b} sc1")
    k("""
    s_waitcnt vmcnt(0)
    s_branch M_STCHK
    M_STOK:
    @STAMP 6
    """)
    PB = FR
    for b in range(4):
        m = MR
        k(f"""
        v_and_b32 v{m+2}, 0xffff0000, v{STV+b}        ; s
        v_lshlrev_b32 v{m}, 16, v{STV+b}              ; m
        v_rcp_f32 v{m+1}, v{m+2}
        v_mul_f32 v{m+1}, s45, v{m+1}
        """)
        for tau in range(3):
            a = ACC + (b * 3 + tau) * 4
            c = CSR + 4 * tau
            k(f"""
            v_pk_fma_f32 v[{a}:{a+1}], v[{m}:{m+1}], v[{c}:{c+1}], v[{a}:{a+1}] op_sel_hi:[0,1,1] neg_lo:[1,0,0] neg_hi:[1,0,0]
            v_pk_fma_f32 v[{a+2}:{a+3}], v[{m}:{m+1}], v[{c+2}:{c+3}], v[{a+2}:{a+3}] op_sel_hi:[0,1,1] neg_lo:[1,0,0] neg_hi:[1,0,0]
            v_pk_mul_f32 v[{a}:{a+1}], v[{a}:{a+1}], v[{m}:{m+1}] op_sel:[0,1] op_sel_hi:[1,1]
            v_exp_f32 v{a}, v{a}
            v_exp_f32 v{a+1}, v{a+1}
            """)
            if tau < M_WDE and nlater < len(later):
                k(later[nlater]); nlater += 1
        for tau in range(3):
            a = ACC + (b * 3 + tau) * 4
            k(f"""
            v_pk_fma_f32 v[{a}:{a+1}], v[{a}:{a+1}], v[{m+2}:{m+3}], v[{m+2}:{m+3}] op_sel_hi:[1,0,0]
            v_rcp_f32 v{a}, v{a}
            v_rcp_f32 v{a+1}, v{a+1}
            """)
        for tau in range(3):
            a = ACC + (b * 3 + tau) * 4
            k(f"""
            v_pk_mul_f32 v[{a}:{a+1}], v[{a}:{a+1}], v[{a+2}:{a+3}]
            v_cvt_pk_bf16_f32 v{a}, v{a}, v{a+1}
            ds_write_b32 v{SA+tau}, v{a} offset:{(b>>1)*6144 + (b&1)*128}
            """)
    k("""
    s_waitcnt lgkmcnt(0)
    s_barrier
    @STAMP 7
    """)
    for i in range(3):
        k(f"ds_read_b128 v[{PB+4*i}:{PB+4*i+3}], v{VPUB} offset:{1024*i}")
    for i in range(3):
        k(f"s_waitcnt lgkmcnt({2-i})")
        k(f"buffer_store_dwordx4 v[{PB+4*i}:{PB+4*i+3}], v{VW}, s[8:11], s42 offen offset:{1024*i} sc1")
    rest = later[nlater:]
    k(f"""
    s_lshl_b32 s26, s14, 4
    s_add_u32 s26, s26, s15
    s_lshl_b32 s26, s26, 7
    s_add_u32 s26, s26, s34
    v_mov_b32 v{TMP}, 1
    v_mov_b32 v{TMP+1}, 0
    s_waitcnt vmcnt(0)
    s_barrier
    s_cmp_lg_u32 s17, 0
    s_cbranch_scc1 M_NOFLAG
    s_mov_b64 exec, 1
    buffer_store_dword v{TMP}, v{TMP+1}, s[8:11], s26 offen sc1
    s_mov_b64 exec, -1
    M_NOFLAG:
    """)
    for p in rest: k(p)
    HA = XA
    k(f"""
    M_SYNC:
    @STAMP 8
    s_lshl_b32 s26, s36, 2
    s_add_u32 s26, s26, s16
    s_mul_i32 s26, s26, {HKS*1024}
    s_mul_i32 s27, s29, {22*1024}
    s_add_u32 s26, s26, s27
    s_add_u32 s26, s26, s31
    s_lshl_b32 s27, s17, 11               ; m0 part
    s_mul_i32 s28, s29, 0x3000
    v_add_u32 v{HA}, s28, v{VW}
    s_lshl_b32 s28, s29, 12
    s_add_u32 s28, s28, 0x1000
    v_add_u32 v{HA+1}, s28, v{VW}
    v_add_u32 v{HA+2}, 0x10000, v{HA}
    v_add_u32 v{HA+3}, 0x10000, v{HA+1}
    v_add_u32 v{HA+4}, 0x20000, v{HA}
    v_add_u32 v{HA+5}, 0x20000, v{HA+1}
    s_cmp_lg_u32 s17, 1
    s_cbranch_scc1 M_WAITB
    s_lshr_b32 s28, s36, 1
    s_lshl_b32 s28, s28, 11
    s_add_u32 s28, s28, s34
    v_min_u32 v{TMP+4}, 14, v{VT0}
    v_lshlrev_b32 v{TMP+4}, 7, v{TMP+4}
    s_mov_b32 s47, 0
    M_POLL:
    buffer_load_dword v{TMP+5}, v{TMP+4}, s[8:11], s28 offen sc1
    s_waitcnt vmcnt(0)
    v_cmp_eq_u32 vcc, 0, v{TMP+5}
    s_cmp_eq_u64 vcc, 0
    s_cbranch_scc1 M_WAITB
    s_add_u32 s47, s47, 1
    s_cmp_lt_u32 s47, {SPIN_MAX}
    s_cbranch_scc1 M_POLL
    M_WAITB:
    s_lshl_b32 s46, s37, 3
    s_add_u32 s46, s46, s17
    s_mul_i32 s46, s46, 2880
    s_mul_i32 s47, s36, {4*HKS*1024}
    s_add_u32 s46, s46, s47
    s_add_u32 s46, s46, s31
    v_min_u32 v{TMP+6}, 44, v{VT0}
    v_lshlrev_b32 v{TMP+6}, 6, v{TMP+6}
    s_barrier
    @STAMP 9
    """)
    if M_TOUCH & 2: k(f"buffer_load_dword v{TMP+8}, v{TMP+6}, s[8:11], s46 offen")
    def hchunk(c):
        return [f"""
        s_add_u32 m0, s27, {(c % 10) * 16384}
        s_nop 0
        buffer_load_dwordx4 v{VW}, s[8:11], s26 offen {H_LD} lds
        """, f"""
        buffer_load_dwordx4 v{VW}, s[8:11], s26 offen offset:1024 {H_LD} lds
        s_add_u32 s26, s26, 0x800
        """]
    HF = 16
    A2 = 0
    def hreads(c):
        res = []
        for i in range(2):
            for lb in range(4):
                off = (c % 10) * 16384 + (lb & 1) * 2048 + i * 1024
                base = HA + 2 * (off >> 16) + (lb >> 1)
                r = HF + 32 * (c & 1) + (i * 4 + lb) * 4
                res.append(f"ds_read_b128 v[{r}:{r+3}], v{base} offset:{off & 0xffff}")
        return res
    iss = M_PRE2
    for c in range(iss):
        for p in hchunk(c): k(p)
    k(f"s_waitcnt vmcnt({2*(iss-1)})")
    k("s_barrier")
    k("@STAMP 10")
    for r in hreads(0): k(r)
    for c in range(11):
        fill = []
        if c < 10:
            k(f"s_waitcnt vmcnt({2*(iss-(c+2))})")
            k("s_barrier")
        k("s_waitcnt lgkmcnt(0)")
        if c < 10: fill = hreads(c + 1)
        parts = []
        for rep_ in range(2):
            if iss < 11 and (iss < 10 or c >= 1) and iss < c + M_AHEAD2:
                parts += hchunk(iss); iss += 1
        slots = {1 + 2 * j: p for j, p in enumerate(parts)}
        n = 0
        for i in range(2):
            for lb in range(4):
                r = HF + 32 * (c & 1) + (i * 4 + lb) * 4
                a = A2 + 4 * lb
                cc = "0" if (c == 0 and i == 0) else f"v[{a}:{a+3}]"
                k(f"v_mfma_f32_16x16x32_bf16 v[{a}:{a+3}], v[{r}:{r+3}], {wdreg(2*c+i)}, {cc}")
                if n < len(fill): k(fill[n])
                if n in slots: k(slots[n])
                n += 1
    k("@STAMP 11")
    XB = 65536
    k(f"""
    s_lshl_b32 s26, s17, 11
    s_add_u32 s26, s26, {XB}
    v_add_u32 v{TMP}, s26, v{VW}
    s_xor_b32 s26, s26, 0x2000
    v_add_u32 v{TMP+1}, s26, v{VW}
    """)
    for j in range(4):
        k(f"v_lshlrev_b32 v{32+2*j}, 16, v{RES+j}")
        k(f"v_and_b32 v{33+2*j}, 0xffff0000, v{RES+j}")
    k(f"""
    ds_write_b128 v{TMP}, v[8:11]
    ds_write_b128 v{TMP}, v[12:15] offset:1024
    s_waitcnt lgkmcnt(0)
    s_barrier
    ds_read_b128 v[8:11], v{TMP+1}
    ds_read_b128 v[12:15], v{TMP+1} offset:1024
    s_waitcnt lgkmcnt(0)
    """)
    OUT = 16
    for j in range(4):
        y0, y1 = A2 + 2*j, A2 + 2*j + 1
        k(f"""
        v_pk_add_f32 v[{y0}:{y1}], v[{y0}:{y1}], v[{y0+8}:{y1+8}]
        v_cvt_pk_bf16_f32 v{y1}, v{y0}, v{y1}
        v_lshlrev_b32 v{y0}, 16, v{y1}
        v_and_b32 v{y1}, 0xffff0000, v{y1}
        v_pk_add_f32 v[{y0}:{y1}], v[{y0}:{y1}], v[{32+2*j}:{33+2*j}]
        v_cvt_pk_bf16_f32 v{OUT+j}, v{y0}, v{y1}
        """)
    k(f"""
    s_cmp_lg_u32 s35, 0
    s_cbranch_scc1 M_FINAL
    s_add_u32 s40, s39, {X2T}
    buffer_store_dwordx4 v[{OUT}:{OUT+3}], v{VRES}, s[8:11], s40 offen {X2_ST}
    """)
    Q = 48
    for j in range(4):
        k(f"""
        v_lshlrev_b32 v{Q+4*j}, 16, v{OUT+j}
        v_and_b32 v{Q+4*j+2}, 0xffff0000, v{OUT+j}
        v_mul_f32 v{Q+4*j+1}, v{Q+4*j}, v{Q+4*j}
        v_mul_f32 v{Q+4*j+3}, v{Q+4*j+2}, v{Q+4*j+2}
        """)
    for q in range(8):
        k(f"v_add_f32_dpp v{Q+q}, v{Q+q}, v{Q+q} row_ror:8 row_mask:0xf bank_mask:0x3")
        k(f"v_add_f32_dpp v{Q+q}, v{Q+q+8}, v{Q+q+8} row_ror:8 row_mask:0xf bank_mask:0xc")
    for q in range(4):
        k(f"v_add_f32_dpp v{Q+q}, v{Q+q}, v{Q+q} row_shl:4 row_mask:0xf bank_mask:0x5")
        k(f"v_add_f32_dpp v{Q+q}, v{Q+q+4}, v{Q+q+4} row_shr:4 row_mask:0xf bank_mask:0xa")
    for q in range(4):
        k(f"v_add_f32_dpp v{Q+q}, v{Q+q}, v{Q+q} quad_perm:[1,0,3,2] row_mask:0xf bank_mask:0xf")
    for q in range(4):
        k(f"v_add_f32_dpp v{Q+q}, v{Q+q}, v{Q+q} quad_perm:[2,3,0,1] row_mask:0xf bank_mask:0xf")
    SB = 98304
    k(f"""
    v_and_b32 v{TMP}, 3, v{VT1}
    v_cmp_eq_u32 s[48:49], 1, v{TMP}
    v_cmp_eq_u32 s[50:51], 2, v{TMP}
    v_cmp_eq_u32 s[52:53], 3, v{TMP}
    v_lshrrev_b32 v{TMP+1}, 2, v{VT1}
    v_lshlrev_b32 v{TMP+1}, 7, v{TMP+1}
    v_lshl_add_u32 v{TMP+1}, v{VT2}, 4, v{TMP+1}
    v_lshl_add_u32 v{TMP+1}, v{TMP}, 2, v{TMP+1}
    s_lshl_b32 s26, s16, 9
    s_lshl_b32 s27, s29, 6
    s_add_u32 s26, s26, s27
    s_add_u32 s26, s26, {SB}
    v_add_u32 v{TMP+1}, s26, v{TMP+1}
    v_cndmask_b32 v{Q}, v{Q}, v{Q+1}, s[48:49]
    v_cndmask_b32 v{Q}, v{Q}, v{Q+2}, s[50:51]
    v_cndmask_b32 v{Q}, v{Q}, v{Q+3}, s[52:53]
    ds_write_b32 v{TMP+1}, v{Q}
    s_lshl_b32 s26, s17, 8
    s_add_u32 s26, s26, {SB}
    v_lshl_add_u32 v{TMP+2}, v{VT0}, 2, s26
    v_lshrrev_b32 v{TMP+3}, 5, v{VT0}
    v_lshlrev_b32 v{TMP+3}, 12, v{TMP+3}
    v_and_b32 v{TMP+4}, 31, v{VT0}
    v_lshl_add_u32 v{TMP+3}, v{TMP+4}, 2, v{TMP+3}
    s_lshl_b32 s26, s36, 7
    s_lshl_b32 s27, s17, 13
    s_add_u32 s26, s26, s27
    s_add_u32 s26, s26, {ST1}
    s_waitcnt lgkmcnt(0)
    s_barrier
    s_cmp_ge_u32 s17, 2
    s_cbranch_scc1 M_NOAT
    ds_read_b32 v{Q}, v{TMP+2}
    ds_read_b32 v{Q+1}, v{TMP+2} offset:512
    ds_read_b32 v{Q+2}, v{TMP+2} offset:1024
    ds_read_b32 v{Q+3}, v{TMP+2} offset:1536
    s_waitcnt lgkmcnt(0)
    v_add_f32 v{Q}, v{Q}, v{Q+1}
    v_add_f32 v{Q+2}, v{Q+2}, v{Q+3}
    v_add_f32 v{Q}, v{Q}, v{Q+2}
    buffer_atomic_add_f32 v{Q}, v{TMP+3}, s[8:11], s26 offen
    M_NOAT:
    @STAMP 12
    @FLUSH 13
    s_endpgm
    M_FINAL:
    """)
    TP = 144; TB2 = 98304
    srd(k, 48, 6, L * D * 2)
    k(f"""
    s_lshl_b32 s26, s16, 4
    v_add_u32 v{TMP}, s26, v{VT1}
    v_mul_u32_u24 v{TMP}, {TP}, v{TMP}
    v_lshl_add_u32 v{TMP}, v{VT2}, 4, v{TMP}
    s_lshl_b32 s26, s29, 6
    s_add_u32 s26, s26, {TB2}
    v_add_u32 v{TMP}, s26, v{TMP}
    ds_write_b128 v{TMP}, v[{OUT}:{OUT+3}]
    v_lshrrev_b32 v{TMP+1}, 2, v{VT1}
    v_lshl_add_u32 v{TMP+1}, v{VT2}, 3, v{TMP+1}
    v_mul_u32_u24 v{TMP+1}, {TP}, v{TMP+1}
    v_and_b32 v{TMP+2}, 3, v{VT1}
    v_lshl_add_u32 v{TMP+1}, v{TMP+2}, 3, v{TMP+1}
    s_lshl_b32 s26, s16, 5
    s_mul_i32 s27, s29, {32*TP}
    s_add_u32 s26, s26, s27
    s_add_u32 s26, s26, {TB2}
    v_add_u32 v{TMP+1}, s26, v{TMP+1}
    v_lshlrev_b32 v{TMP+2}, 10, v{VT1}
    v_lshl_add_u32 v{TMP+2}, v{VT2}, 4, v{TMP+2}
    s_lshl_b32 s26, s36, 2
    s_add_u32 s26, s26, s16
    s_lshl_b32 s26, s26, 14
    s_lshl_b32 s27, s37, 7
    s_add_u32 s26, s26, s27
    s_lshl_b32 s27, s29, 6
    s_add_u32 s26, s26, s27
    s_waitcnt lgkmcnt(0)
    s_barrier
    ds_read_b64_tr_b16 v[32:33], v{TMP+1}
    ds_read_b64_tr_b16 v[34:35], v{TMP+1} offset:{4*TP}
    s_waitcnt lgkmcnt(0)
    buffer_store_dwordx4 v[32:35], v{TMP+2}, s[48:51], s26 offen
    @STAMP 12
    @FLUSH 13 last
    M_END:
    s_endpgm
    """)
    k(f"""
    M_STATS:
    s_mov_b32 s47, 0
    M_SL1:
    s_mov_b32 m0, s19
    s_add_u32 s19, s19, 0x2000
    buffer_load_dwordx4 v{VDMA}, s[8:11], s18 offen lds
    s_add_u32 s18, s18, {32*XP}
    s_mov_b32 m0, s19
    s_add_u32 s19, s19, 0x2000
    buffer_load_dwordx4 v{VDMA}, s[8:11], s18 offen lds
    s_add_u32 s18, s18, {32*XP}
    s_add_u32 s47, s47, 1
    s_cmp_lt_u32 s47, 8
    s_cbranch_scc1 M_SL1
    """)
    SACC = 0; ONES = 16
    k(f"""
    v_xor_b32 v{TMP+3}, s17, v{TMP+1}
    v_lshl_add_u32 v{XA}, v{TMP+3}, 5, v{TMP+2}
    """)
    for r in range(8): k(f"v_mov_b32 v{SACC+r}, 0")
    for r in range(4): k(f"v_mov_b32 v{ONES+r}, 0x3f803f80")
    k(f"""
    s_mov_b32 s47, 0
    s_waitcnt vmcnt(0)
    s_barrier
    M_SL2:
    """)
    for u in range(8):
        r = FR + 4 * u
        if u == 7: k("s_waitcnt lgkmcnt(12)")
        k(f"ds_read_b64_tr_b16 v[{r}:{r+1}], v{XA} offset:{u*8192}")
        k(f"ds_read_b64_tr_b16 v[{r+2}:{r+3}], v{XA} offset:{u*8192+4096}")
    k(f"v_add_u32 v{XA}, 0x10000, v{XA}")
    for u in range(8):
        r = FR + 4 * u
        k(f"s_waitcnt lgkmcnt({14 - 2*u})")
        k(f"v_mfma_f32_16x16x32_bf16 v[{SACC}:{SACC+3}], v[{r}:{r+3}], v[{r}:{r+3}], v[{SACC}:{SACC+3}]")
        k(f"v_mfma_f32_16x16x32_bf16 v[{SACC+4}:{SACC+7}], v[{ONES}:{ONES+3}], v[{r}:{r+3}], v[{SACC+4}:{SACC+7}]")
    k(f"""
    s_add_u32 s47, s47, 1
    s_cmp_lt_u32 s47, 2
    s_cbranch_scc1 M_SL2
    v_and_b32 v{TMP}, 3, v{VT1}
    v_cmp_eq_u32 s[48:49], 1, v{TMP}
    v_cmp_eq_u32 s[50:51], 2, v{TMP}
    v_cmp_eq_u32 s[52:53], 3, v{TMP}
    v_lshrrev_b32 v{TMP}, 2, v{VT1}
    v_cmp_eq_u32 s[54:55], v{TMP}, v{VT2}
    v_cndmask_b32 v{SACC}, v{SACC}, v{SACC+1}, s[48:49]
    v_cndmask_b32 v{SACC}, v{SACC}, v{SACC+2}, s[50:51]
    v_cndmask_b32 v{SACC+5}, v{SACC}, v{SACC+3}, s[52:53]
    v_mov_b32 v{SACC+12}, v{SACC+4}
    v_mov_b32 v{SACC+13}, v{SACC+5}
    """)
    stats_pair(k, SACC+4, SACC+5, SACC+12, SACC+13, TMP, keep=(SACC+6, SACC+14))
    k(f"""
    v_lshrrev_b32 v{SACC+4}, 16, v{SACC+4}
    v_or_b32 v{SACC+4}, v{SACC+4}, v{SACC+6}
    v_lshlrev_b32 v{VSTX}, 2, v{VT1}
    s_lshl_b32 s41, s14, 9
    s_lshl_b32 s26, s17, 6
    s_add_u32 s41, s41, s26
    s_add_u32 s41, s41, s33
    s_mov_b64 exec, s[54:55]
    buffer_store_dword v{SACC+4}, v{VSTX}, s[8:11], s41 offen sc1
    s_mov_b64 exec, -1
    """)
    for p in res_parts: k(p)
    for i in range(22): k(wd_part(i))
    k(f"""
    s_barrier
    s_branch M_SYNC
    .p2align 8
    mlpb_kernel:
    s_mov_b32 s30, {X3T}
    s_mov_b32 s31, {HB1}
    s_mov_b32 s33, {STX + 0x2000}
    s_mov_b32 s34, {FLG + 0x8000}
    s_mov_b32 s35, 1
    @KID 5
    s_branch M_BODY
    """)
    info = dict(vgpr=NV + 88, sgpr=64, accum=NV, grid=256, block=512, lds=MLP_LDS)
    return k, info

DIAG_KN = {2: ("mlpa", 13), 5: ("mlpb", 13), 3: ("none", 1), 6: ("none", 1)}
def emit(path, launches=None):
    kp, ip = gen_prep()
    kc, ic = gen_conv()
    km, im = gen_mlp()
    infos = {"prep_kernel": ip, "conv1_kernel": ic, "conv2_kernel": ic, "mlpa_kernel": im, "mlpb_kernel": im}
    if os.environ.get("ORDER"): launches = [x + "_kernel" for x in os.environ["ORDER"].split(",")]
    order = launches or ["prep_kernel", "conv1_kernel", "mlpa_kernel", "conv2_kernel", "mlpb_kernel"]
    hdr = open("cdna_kernels/" + NAME + ".s.ref").read().split("; Override launch")[0]
    out = [hdr.rstrip("\n")]
    for n in order:
        i = infos[n]
        out.append(f"; @launch kernel={n} grid=({i['grid']},1,1) block=({i['block']},1,1) lds={i['lds']}")
    out.append('.amdgcn_target "amdgcn-amd-amdhsa--gfx950"\n.text')
    for n in infos:
        out.append(f".globl {n}\n.type {n},@function")
    out.append(".p2align 8\nprep_kernel:\n" + kp.text())
    for kk in (kc, km):
        out.append(".p2align 8\n" + kk.text())
    for n, i in infos.items():
        out.append(descriptor(n, i["vgpr"], 102 if DIAG else i["sgpr"], i["accum"]))
    open(path, "w").write("\n".join(out))

if __name__ == "__main__":
    emit(sys.argv[1] if len(sys.argv) > 1 else "cdna_kernels/" + NAME + ".s")
```

```python
import sys, struct, re
from asmlib import *

NAME = "interleave_layers__ssm_conv_s4d__glu_gated_glu__prompt"
KA_U, KA_LOGA, KA_AIM, KA_CRE, KA_CIM, KA_LOGDT, KA_DSKIP, KA_BX, KA_WG, KA_WU, KA_WD, KA_OUT, KA_DBG, KA_WS = [8 * i for i in range(14)]
XT0, X1T, X2T, X3T = 0x3000000, 0x3300000, 0x3600000, 0x3900000
ST0, ST1, CSUM = 0x0800000, 0x0804000, 0x0808000
WP = 0x0C00000
WD = 0x1000000
HB = 0x1200000
HB1 = 0x2200000
ZR = 0x0810000; STX = 0x0810000; FLG = 0x0820000
KP = 0x1800000; KCS = 4160; KP_STRIDE = 1536
WS_BYTES = 0x10000000
L, D, F, NST = 2048, 512, 1376, 128
NKS2 = 44
HKS = 45

import os
XP = int(os.environ.get('XP', '4352'))
PREP_W_POL = os.environ.get('PREP_W_POL', '')
PREP_K_POL = os.environ.get('PREP_K_POL', '')
PREP_X_POL = ''
PREP_PRIO = int(os.environ.get('PREP_PRIO', '0'))
CONV_ST = os.environ.get('CONV_ST', '')
X2_ST = os.environ.get('X2_ST', '')
F1_SLEEP = int(os.environ.get('F1_SLEEP', '8'))
CODEPF_BASE = int(os.environ.get('CODEPF_BASE', '0'))
SENT = int(os.environ.get('SENT', '0'))
SPLITPUB = int(os.environ.get('SPLITPUB', '1'))
POISON_POL = os.environ.get('POISON_POL', 'sc1')
SENT_SLEEP = int(os.environ.get('SENT_SLEEP', '2'))
CODEPF2 = int(os.environ.get('CODEPF2', '1'))
TLBPF = int(os.environ.get('TLBPF', '0'))
TLBPF_BASE = int(os.environ.get('TLBPF_BASE', '1216'))
CODEPF = int(os.environ.get('CODEPF', '1'))
DIAG = int(os.environ.get("DIAG", "0"))
DIAG_OFF = 0x4000000
_Kern = Kern
class Kern(_Kern):
    def __call__(self, s):
        for l in s.strip("\n").split("\n"):
            t = l.strip()
            if t.startswith("@CNTLOAD"):
                super().__call__("global_load_dword v59, v2, s[28:29] sc1")
                continue
            if t.startswith("@CODEPF"):
                if CODEPF:
                    super().__call__(f"""
                    s_sub_u32 s3, s2, {CODEPF_BASE}
                    s_cmp_ge_u32 s3, 8
                    s_cbranch_scc1 P_NOPF
                    s_getpc_b64 s[6:7]
                    v_lshlrev_b32 v1, 6, v0
                    global_load_dword v94, v1, s[6:7]
                    v_add_u32 v1, 0x4000, v1
                    global_load_dword v95, v1, s[6:7]
                    P_NOPF:
                    """)
                if TLBPF:
                    super().__call__(f"""
                    s_sub_u32 s3, s2, {TLBPF_BASE}
                    s_cmp_ge_u32 s3, 8
                    s_cbranch_scc1 P_NOPF2
                    s_load_dwordx2 s[6:7], s[0:1], {KA_OUT}
                    v_lshlrev_b32 v1, 18, v0
                    v_lshlrev_b32 v2, 13, v0
                    s_waitcnt lgkmcnt(0)
                    global_load_dword v93, v1, s[4:5]
                    global_load_dword v92, v2, s[6:7]
                    P_NOPF2:
                    """)
                continue
            if t.startswith("@"):
                if not DIAG: continue
                p = t.split()
                if p[0] == "@KID":
                    super().__call__(f"s_mov_b32 s59, {DIAG_OFF + int(p[1]) * 0x80000}\ns_mov_b32 s57, {3 if int(p[1]) in (2, 5) else 2}")
                elif p[0] == "@INIT":
                    super().__call__("v_readfirstlane_b32 s58, v0\ns_memrealtime s[64:65]\ns_memtime s[66:67]")
                elif p[0] == "@STAMP":
                    i = int(p[1]); super().__call__(f"s_memtime s[{64+2*i}:{65+2*i}]")
                elif p[0] == "@FLUSH":
                    n = int(p[1])
                    super().__call__(f"""
                    s_waitcnt vmcnt(0)
                    s_memtime s[{64+2*n}:{65+2*n}]
                    s_memrealtime s[{66+2*n}:{67+2*n}]
                    s_waitcnt lgkmcnt(0)
                    s_mov_b64 exec, -1
                    s_lshr_b32 s58, s58, 6
                    s_lshl_b32 s61, s2, s57
                    s_add_u32 s60, s58, s61
                    s_lshl_b32 s60, s60, 6
                    s_add_u32 s60, s60, s59
                    v_mov_b32 v1, s60
                    """)
                    for i in range(n + 2):
                        super().__call__(f"v_mov_b32 v2, s{64+2*i}\nglobal_store_dword v1, v2, s[4:5] offset:{4*i}")
                    super().__call__("s_getreg_b32 s61, hwreg(HW_REG_XCC_ID)\nv_mov_b32 v2, s61\nglobal_store_dword v1, v2, s[4:5] offset:60")
                    if DIAG == 2 and len(p) > 2:
                        lab = f"DG{len(self.lines)}"
                        txt = f"s_or_b32 s60, s2, s58\ns_cmp_lg_u32 s60, 0\ns_cbranch_scc1 {lab}\ns_load_dwordx2 s[62:63], s[0:1], {KA_DBG}\ns_waitcnt vmcnt(0) lgkmcnt(0)\n"
                        j = 0
                        for kid, nn in ((0, 6), (1, 13), (2, 13), (4, 13), (5, 13)):
                            for slot in (0, nn + 1):
                                txt += f"v_mov_b32 v1, {DIAG_OFF + kid * 0x80000 + 4 * slot}\nglobal_load_dword v2, v1, s[4:5] sc1\nv_mov_b32 v3, {4*j}\ns_waitcnt vmcnt(0)\nglobal_store_dword v3, v2, s[62:63]\n"
                                j += 1
                        for kid, slot in ((2, 1), (2, 3), (2, 5), (2, 9), (1, 1), (1, 5)):
                            txt += f"v_mov_b32 v1, {DIAG_OFF + kid * 0x80000 + 4 * slot}\nglobal_load_dword v2, v1, s[4:5] sc1\nv_mov_b32 v3, {4*j}\ns_waitcnt vmcnt(0)\nglobal_store_dword v3, v2, s[62:63]\n"
                            j += 1
                        super().__call__(txt + f"{lab}:")
                continue
            super().__call__(l)

def f2u(x): return struct.unpack("<I", struct.pack("<f", x))[0]
def fl(x): return "0x%08x" % f2u(x)
LOG2E = 1.4426950408889634
L2E_HI = struct.unpack("<f", struct.pack("<f", LOG2E))[0]
L2E_LO = LOG2E - L2E_HI
LN2 = 0.6931471805599453

def srd(k, s, base, nbytes):
    k(f"""
    s_mov_b32 s{s}, s{base}
    s_and_b32 s{s+1}, s{base+1}, 0xffff
    s_mov_b32 s{s+2}, {nbytes:#x}
    s_mov_b32 s{s+3}, 0x20000
    """)

def rnd_bf16(k, dst, a, b=None):
    k(f"v_cvt_pk_bf16_f32 v{dst}, v{a}, v{b if b is not None else a}")

def exp_acc(k, dst, x, t0, t1):
    k(f"""
    v_mul_f32 v{t0}, s40, v{x}
    v_fma_f32 v{t1}, s40, v{x}, -v{t0}
    v_fma_f32 v{t1}, s41, v{x}, v{t1}
    v_exp_f32 v{dst}, v{t0}
    v_mul_f32 v{t1}, s42, v{t1}
    v_fma_f32 v{dst}, v{dst}, v{t1}, v{dst}
    """)

N_K, N_T, N_W, N_D, N_C = 512, 256, 240, 176, 90
WINC = os.environ.get('WINC', 'C')
_sz = {"C": N_C, "W": N_W, "D": N_D, "T": N_T}
B_K = 0
_pos = N_K; PREP_ROLES = []; _base = {}
for r in "CWTD":
    if r not in WINC:
        _base[r] = _pos; _pos += _sz[r]; PREP_ROLES.append((r, _pos))
PREP_WGS = _pos
_pos = 512; CONV_ROLES = []
for r in "CWD":
    if r in WINC:
        _base[r] = _pos; _pos += _sz[r]; CONV_ROLES.append((r, _pos))
B_E = _pos
B_C, B_W, B_T, B_D = _base["C"], _base["W"], _base["T"], _base["D"]
PREP_GROUPS = [("prep.K", 0, N_K, 6)] + [("prep." + r, _base[r], e, 2) for r, e in PREP_ROLES]
_lab = {"C": "P_C", "W": "P_W", "T": "P_TR", "D": "P_D"}
PREP_LDS = 18432
CSU = 4576
KL = 2 * CSU
CRED = KL + 16640
CONV_LDS = CRED + 24576
CPF = int(os.environ.get('CPF', '1'))
CPF_STRIDE = int(os.environ.get('CPF_STRIDE', '128'))
LOCALMAP0 = int(os.environ.get('LOCALMAP', '0'))
PFQ = int(os.environ.get('PFQ', '6144'))
SPIN_MAX = 1 << 20

class Remap:
    def __init__(self, k, voff, smap): self.k = k; self.voff = voff; self.smap = smap
    def __call__(self, t):
        def rv(m):
            if m.group(1): return f"v[{int(m.group(1))+self.voff}:{int(m.group(2))+self.voff}]"
            n = int(m.group(3)); return "v0" if n == 0 else f"v{n+self.voff}"
        t = re.sub(r"\bv\[(\d+):(\d+)\]|\bv(\d+)\b", rv, t)
        def rs(m):
            if m.group(1):
                a = int(m.group(1)); b = int(m.group(2))
                if a in self.smap: return f"s[{self.smap[a]}:{self.smap[a]+b-a}]"
                return m.group(0)
            n = int(m.group(3)); return f"s{self.smap.get(n, n)}"
        t = re.sub(r"\bs\[(\d+):(\d+)\]|\bs(\d+)\b", rs, t)
        self.k(t)
    def label(self, l): self.k.label(l)

class Remap2:
    def __init__(self, k, vmap): self.k = k; self.vmap = vmap
    def __call__(self, t):
        t = re.sub(r"\bv(\d+)\b", lambda m: f"v{self.vmap.get(int(m.group(1)), int(m.group(1)))}", t)
        self.k(t)

def conv_setup(k):
    k(f"""
    v_readfirstlane_b32 s17, v0
    s_mov_b32 s43, {fl(1.0/512)}
    s_mov_b32 s44, {fl(1e-5)}
    s_lshr_b32 s17, s17, 6                ; pi
    s_mul_i32 s12, s2, {XP}
    s_add_u32 s13, s12, s30
    s_add_u32 s14, s12, s32
    s_mul_i32 s15, s2, {KP_STRIDE}
    s_add_u32 s15, s15, {KP}
    s_lshr_b32 s16, s2, 1
    s_lshl_b32 s16, s16, 2
    v_lshlrev_b32 v1, 4, v0               ; tid*16
    v_and_b32 v3, 15, v0                  ; c / r
    v_bfe_u32 v4, v0, 4, 2                ; g
    v_and_b32 v5, 63, v0
    v_lshlrev_b32 v6, 4, v5               ; lane*16
    """)

def conv_loads(k, pol=""):
    k(f"""
    buffer_load_dwordx4 v[16:19], v1, s[8:11], s31 offen {pol}
    s_add_u32 s31, s31, 0x1000
    buffer_load_dwordx4 v[20:23], v1, s[8:11], s31 offen {pol}
    s_add_u32 s31, s31, 0x1000
    buffer_load_dwordx4 v[24:27], v1, s[8:11], s31 offen {pol}
    s_add_u32 s31, s31, 0x1000
    buffer_load_dwordx4 v[28:31], v1, s[8:11], s31 offen {pol}
    buffer_load_dwordx4 v[12:15], v1, s[8:11], s13 offen {pol}
    """)

def conv_p3(k):
    k(f"""
    v_mov_b32 v36, 0
    v_mov_b32 v37, 0
    v_mov_b32 v38, 0
    v_mov_b32 v39, 0
    v_bfe_u32 v9, v0, 2, 2
    v_mul_u32_u24 v9, {KCS}, v9
    v_and_b32 v10, 3, v0
    v_min_u32 v10, 2, v10
    v_lshl_add_u32 v9, v10, 4, v9
    ds_write_b128 v9, v[36:39] offset:{KL}
    v_lshlrev_b32 v40, 3, v0
    s_sub_u32 s19, s18, {2 * (0x4300 - 128)}
    """)
    for e in range(11):
        k(f"v_add_u32 v{48+e}, {e-3}, v40")
        if e < 3: k(f"v_max_i32 v{48+e}, 0, v{48+e}")
        k(f"v_cvt_f32_u32 v{60+e}, v{48+e}")
    for e in range(0, 11, 2):
        k(f"v_cvt_pk_bf16_f32 v{72+e//2}, v{60+e}, v{min(61+e, 70)}")
    for e in range(11):
        src = 72 + e // 2
        if e & 1: k(f"v_lshrrev_b32 v{60+e}, 16, v{src}")
        else: k(f"v_and_b32 v{60+e}, 0xffff, v{src}")
        k(f"v_lshl_add_u32 v{60+e}, v{60+e}, 1, s19")
        k(f"v_lshl_add_u32 v{48+e}, v{48+e}, 1, s18")
    k("v_cmp_gt_u32 s[24:25], 17, v0")
    for e in range(11):
        k(f"v_cndmask_b32 v{48+e}, v{60+e}, v{48+e}, s[24:25]")
    k(f"""
    s_and_b32 s21, s17, 1
    s_sub_u32 s22, 56, s21
    s_mul_i32 s21, s21, {CSU}
    v_min_u32 v9, s22, v5
    v_lshl_add_u32 v9, v9, 3, s21
    ds_write_b64 v9, v[36:37]
    v_and_b32 v9, 1, v3
    v_mul_u32_u24 v9, {CSU}, v9
    v_lshrrev_b32 v10, 1, v3
    v_lshlrev_b32 v11, 2, v10
    v_sub_u32 v11, v11, v4
    s_lshl_b32 s21, s17, 2
    s_sub_u32 s21, 15, s21
    v_add_u32 v11, s21, v11
    v_lshl_add_u32 v9, v11, 4, v9         ; v9 = u addr
    v_and_b32 v7, 3, v3
    v_mul_u32_u24 v7, {KCS}, v7
    v_lshrrev_b32 v8, 2, v3
    v_add_u32 v8, v8, v4
    v_lshl_add_u32 v7, v8, 4, v7
    s_lshl_b32 s21, s17, 6
    s_add_u32 s21, s21, {KL}
    v_add_u32 v7, s21, v7                 ; v7 = K addr
    v_xor_b32 v8, v4, v10
    v_and_b32 v8, 3, v8
    v_lshlrev_b32 v8, 1, v8
    v_lshl_add_u32 v8, v10, 3, v8
    v_and_b32 v11, 1, v3
    v_add_u32 v8, v8, v11
    s_lshl_b32 s21, s17, 11
    v_lshl_add_u32 v10, v8, 4, s21
    v_bfe_u32 v8, v0, 2, 3
    v_xor_b32 v11, v8, v0
    v_and_b32 v11, 3, v11
    v_lshlrev_b32 v11, 5, v11
    v_lshl_add_u32 v11, v8, 7, v11
    v_bfe_u32 v8, v0, 5, 1
    v_lshl_add_u32 v11, v8, 10, v11
    s_lshl_b32 s21, s17, 13
    s_add_u32 s21, s21, {CRED}
    s_cmp_eq_u32 s17, 3
    s_cselect_b32 s21, {KL}, s21
    v_add_u32 v11, s21, v11
    """)

def conv_expand(k):
    k("""
    v_cmp_eq_u32 vcc, 0, v0
    s_waitcnt lgkmcnt(0)
    v_cndmask_b32 v48, v48, v36, vcc
    v_cndmask_b32 v49, v49, v36, vcc
    v_cndmask_b32 v50, v50, v36, vcc
    """)
    for sft in range(4):
        for j in range(4):
            k(f"v_lshl_or_b32 v{64+4*sft+j}, v{48+sft+6-2*j}, 16, v{48+sft+7-2*j}")
        k(f"ds_write_b128 v1, v[{64+4*sft}:{67+4*sft}] offset:{KL + sft*KCS + 48}")

def conv_norm(k):
    for j in range(4):
        k(f"""
        v_lshlrev_b32 v40, 16, v{12+j}
        v_and_b32 v41, 0xffff0000, v{12+j}
        v_sub_f32 v40, v40, v{16+4*j}
        v_sub_f32 v41, v41, v{18+4*j}
        v_cvt_pk_bf16_f32 v41, v40, v41
        v_lshlrev_b32 v40, 16, v41
        v_and_b32 v41, 0xffff0000, v41
        v_mul_f32 v40, v40, v{17+4*j}
        v_mul_f32 v41, v41, v{19+4*j}
        v_cvt_pk_bf16_f32 v{32+j}, v40, v41
        """)
    k(f"""
    ds_write_b128 v1, v[32:35] offset:{CSU + 16*28}
    ds_write2_b64 v1, v[32:33], v[34:35] offset0:57 offset1:58
    """)

def gen_prep():
    k = Kern("prep_kernel")
    k(f"""
    @KID 0
    @INIT
    s_load_dwordx2 s[4:5], s[0:1], {KA_WS}
    @CODEPF
    s_sub_u32 s26, s2, {B_K}
    s_cmp_lt_u32 s26, {N_K}
    s_cbranch_scc1 P_KGEN
    """)
    for r, e in PREP_ROLES: k(f"s_cmp_lt_u32 s2, {e}\ns_cbranch_scc1 {_lab[r]}")
    k(f"""
    s_endpgm
    P_WROLES:
    @KID 3
    @INIT
    s_load_dwordx2 s[4:5], s[0:1], {KA_WS}
    """)
    for r, e in CONV_ROLES: k(f"s_cmp_lt_u32 s2, {e}\ns_cbranch_scc1 {_lab[r]}")
    k("s_endpgm")
    k.label("P_KGEN")
    TB = 16384
    k(f"""
    s_load_dwordx4 s[8:11], s[0:1], {KA_LOGA}
    s_load_dwordx4 s[12:15], s[0:1], {KA_CRE}
    s_load_dwordx2 s[16:17], s[0:1], {KA_LOGDT}
    s_mov_b32 s40, {fl(L2E_HI)}
    s_mov_b32 s41, {fl(L2E_LO)}
    s_mov_b32 s42, {fl(LN2)}
    v_lshrrev_b32 v1, 1, v0
    v_and_b32 v1, 0x60, v1
    v_and_or_b32 v1, v0, 31, v1           ; n = 32 w + (lane & 31)
    s_lshl_b32 s3, s26, 8
    v_lshl_add_u32 v2, v1, 1, s3
    s_lshl_b32 s18, s26, 1
    v_mov_b32 v3, s18
    v_readfirstlane_b32 s19, v0
    s_lshr_b32 s19, s19, 6                ; wave
    s_waitcnt lgkmcnt(0)
    global_load_ushort v4, v2, s[8:9]
    global_load_ushort v8, v3, s[16:17]
    global_load_ushort v5, v2, s[10:11]
    global_load_ushort v6, v2, s[12:13]
    global_load_ushort v7, v2, s[14:15]
    v_and_b32 v20, 15, v0                 ; i / j
    v_bfe_u32 v21, v0, 4, 2               ; g
    ; hi0 = 128*(i>>3) + (i&7)
    v_lshrrev_b32 v23, 3, v20
    v_and_b32 v24, 7, v20
    v_lshl_add_u32 v23, v23, 7, v24
    v_cvt_f32_u32 v30, v23
    ; hi1 = (g''<2 ? 256+2g'' : 256*g'') + 128*((i>>1)&1) + 4*(i&1)
    v_lshrrev_b32 v23, 2, v20
    v_lshlrev_b32 v24, 1, v23
    v_add_u32 v24, 0x100, v24
    v_lshlrev_b32 v25, 8, v23
    v_cmp_gt_u32 vcc, 2, v23
    v_cndmask_b32 v24, v25, v24, vcc
    v_bfe_u32 v25, v20, 1, 1
    v_lshl_add_u32 v24, v25, 7, v24
    v_and_b32 v25, 1, v20
    v_lshl_add_u32 v24, v25, 2, v24
    v_cvt_f32_u32 v31, v24
    v_lshlrev_b32 v23, 7, v20
    v_add_u32 v23, 0x400, v23
    v_cvt_f32_u32 v32, v23                ; hi2
    v_lshlrev_b32 v23, 3, v20
    v_cvt_f32_u32 v33, v23                ; lo
    s_lshl_b32 s20, s19, 9
    v_lshl_add_u32 v34, v21, 6, s20
    v_lshrrev_b32 v23, 1, v21
    v_and_b32 v24, 1, v21
    v_lshlrev_b32 v24, 2, v24
    v_lshl_add_u32 v35, v23, 7, v24
    v_lshl_add_u32 v35, v20, 3, v35
    v_mov_b32 v36, 1
    v_mov_b32 v37, 2
    s_cmp_eq_u32 s19, 0
    s_cbranch_scc1 P_KA
    v_lshl_add_u32 v35, v21, 6, v20
    v_add_u32 v35, 0x200, v35
    v_mov_b32 v36, 16
    v_mov_b32 v37, 32
    s_cmp_lg_u32 s19, 1
    s_cbranch_scc1 P_KA
    v_lshl_add_u32 v23, v20, 2, v21
    v_add_u32 v23, 0x100, v23             ; seg1: 256 + g' + 4j ; o1=2 o2=64
    v_lshlrev_b32 v24, 6, v21
    v_lshl_add_u32 v24, v20, 1, v24
    v_add_u32 v24, 0x100, v24             ; seg2: 384 + 64(g'-2) + 2j ; o1=1 o2=32
    v_cmp_gt_u32 vcc, 2, v21
    v_cndmask_b32 v35, v24, v23, vcc
    v_cndmask_b32 v36, 1, 2, vcc
    v_cndmask_b32 v37, 32, 64, vcc
    P_KA:
    v_add_u32 v38, v36, v37
    v_add_lshl_u32 v36, v36, v35, 1
    v_add_lshl_u32 v37, v37, v35, 1
    v_add_lshl_u32 v38, v38, v35, 1
    v_lshlrev_b32 v35, 1, v35
    v_and_b32 v39, 63, v0
    v_lshlrev_b32 v39, 4, v39             ; lane*16
    s_waitcnt vmcnt(3)
    @STAMP 2
    v_lshlrev_b32 v4, 16, v4
    v_lshlrev_b32 v8, 16, v8
    """)
    exp_acc(k, 10, 8, 16, 17)
    exp_acc(k, 11, 4, 18, 19)
    k(f"""
    v_cvt_pk_bf16_f32 v10, v10, v11
    v_and_b32 v11, 0xffff0000, v10        ; eA
    v_lshlrev_b32 v10, 16, v10            ; dt
    v_mul_f32 v12, v11, v10
    v_mul_f32 v12, s40, v12
    v_sub_f32 v12, 0, v12
    s_waitcnt vmcnt(0)
    v_lshlrev_b32 v5, 16, v5
    v_lshlrev_b32 v6, 16, v6
    v_lshlrev_b32 v7, 16, v7
    v_mul_f32 v13, v5, v10
    v_mul_f32 v13, 0.15915494, v13
    v_add_f32 v10, v10, v10
    v_mul_f32 v14, v6, v10                ; 2*Cre*dt
    v_mul_f32 v15, v7, v10                ; 2*Cim*dt
    v_lshlrev_b32 v9, 4, v1
    ds_write_b128 v9, v[12:15]
    v_max3_f32 v16, |v14|, |v15|, 0
    v_max_f32_dpp v16, v16, v16 row_shr:1 row_mask:0xf bank_mask:0xf
    v_max_f32_dpp v16, v16, v16 row_shr:2 row_mask:0xf bank_mask:0xf
    v_max_f32_dpp v16, v16, v16 row_shr:4 row_mask:0xf bank_mask:0xf
    v_max_f32_dpp v16, v16, v16 row_shr:8 row_mask:0xf bank_mask:0xf
    v_max_f32_dpp v16, v16, v16 row_bcast:15 row_mask:0xa bank_mask:0xf
    v_readlane_b32 s23, v16, 31
    s_mov_b32 s20, 0
    @STAMP 3
    v_mov_b32 v16, s23
    v_bfe_u32 v16, v16, 23, 8
    v_max_u32 v16, 14, v16
    v_sub_u32 v17, 0x8c, v16
    v_cvt_f32_i32 v29, v17                ; kf = 140 - e'
    v_mov_b32 v28, 0
    v_subrev_u32 v16, 13, v16
    v_lshlrev_b32 v27, 23, v16            ; Sinv
    P_KLOOP:
    ds_read_b128 v[52:55], v34
    ds_read_b128 v[56:59], v34 offset:16
    ds_read_b128 v[60:63], v34 offset:32
    ds_read_b128 v[64:67], v34 offset:48
    v_add_u32 v34, 0x100, v34
    """)
    for nn in range(4):
        p = 52 + 4 * nn
        k(f"""
        s_waitcnt lgkmcnt({3-nn})
        v_pk_mul_f32 v[2:3], v[30:31], v[{p}:{p+1}] op_sel_hi:[1,0]
        v_pk_fma_f32 v[4:5], v[32:33], v[{p}:{p+1}], v[28:29] op_sel_hi:[1,0,1]
        v_pk_mul_f32 v[6:7], v[30:31], v[{p}:{p+1}] op_sel:[0,1] op_sel_hi:[1,1]
        v_pk_mul_f32 v[8:9], v[32:33], v[{p}:{p+1}] op_sel:[0,1] op_sel_hi:[1,1]
        v_exp_f32 v2, v2
        v_exp_f32 v3, v3
        v_exp_f32 v4, v4
        v_exp_f32 v5, v5
        v_fract_f32 v6, v6
        v_fract_f32 v7, v7
        v_fract_f32 v8, v8
        v_fract_f32 v9, v9
        v_cos_f32 v10, v6
        v_sin_f32 v11, v6
        v_cos_f32 v12, v7
        v_sin_f32 v13, v7
        v_cos_f32 v14, v8
        v_sin_f32 v15, v8
        v_cos_f32 v16, v9
        v_sin_f32 v17, v9
        v_pk_mul_f32 v[10:11], v[10:11], v[2:3] op_sel_hi:[1,0]
        v_pk_mul_f32 v[12:13], v[12:13], v[2:3] op_sel:[0,1] op_sel_hi:[1,1]
        v_pk_mul_f32 v[14:15], v[14:15], v[4:5] op_sel_hi:[1,0]
        v_pk_mul_f32 v[16:17], v[16:17], v[4:5] op_sel:[0,1] op_sel_hi:[1,1]
        v_cvt_pk_f16_f32 v{68+nn}, v10, v11
        v_cvt_pk_f16_f32 v{72+nn}, v12, v13
        v_cvt_pk_f16_f32 v{76+nn}, v14, v15
        v_pk_mul_f32 v[18:19], v[16:17], v[{p+2}:{p+3}] op_sel_hi:[1,0]
        v_pk_fma_f32 v[18:19], v[16:17], v[{p+2}:{p+3}], v[18:19] op_sel:[1,1,0] op_sel_hi:[0,1,1] neg_lo:[1,0,0]
        v_cvt_pk_f16_f32 v{80+nn}, v18, -v19
        """)
    k(f"""
    s_cmp_eq_u32 s20, 1
    s_cbranch_scc1 P_KL2
    v_mfma_f32_16x16x32_f16 v[40:43], v[68:71], v[80:83], 0
    v_mfma_f32_16x16x32_f16 v[44:47], v[72:75], v[80:83], 0
    v_mfma_f32_16x16x32_f16 v[48:51], v[76:79], v[80:83], 0
    s_mov_b32 s20, 1
    s_branch P_KLOOP
    P_KL2:
    v_mfma_f32_16x16x32_f16 v[40:43], v[68:71], v[80:83], v[40:43]
    v_mfma_f32_16x16x32_f16 v[44:47], v[72:75], v[80:83], v[44:47]
    v_mfma_f32_16x16x32_f16 v[48:51], v[76:79], v[80:83], v[48:51]
    @STAMP 4
    s_mul_i32 s20, s19, 3072
    v_add_u32 v2, s20, v39
    s_lshl_b32 s20, s19, 10
    v_add_u32 v3, s20, v39
    """)
    k("v_mov_b32 v26, v27")
    for r in range(40, 52, 2): k(f"v_pk_mul_f32 v[{r}:{r+1}], v[{r}:{r+1}], v[26:27]")
    k(f"""
    ds_write_b128 v2, v[40:43] offset:4096
    ds_write_b128 v2, v[44:47] offset:5120
    ds_write_b128 v2, v[48:51] offset:6144
    s_mul_i32 s3, s26, {KP_STRIDE}
    s_add_u32 s3, s3, {KP}
    v_lshlrev_b32 v1, 4, v0
    v_add_u32 v8, s3, v1
    s_waitcnt lgkmcnt(0)
    s_barrier
    s_cmp_eq_u32 s19, 3
    s_cbranch_scc1 P_KS
    ds_read_b128 v[40:43], v3 offset:4096
    ds_read_b128 v[44:47], v3 offset:{4096+3072}
    ds_read_b128 v[48:51], v3 offset:{4096+6144}
    ds_read_b128 v[4:7], v3 offset:{4096+9216}
    s_waitcnt lgkmcnt(2)
    v_pk_add_f32 v[40:41], v[40:41], v[44:45]
    v_pk_add_f32 v[42:43], v[42:43], v[46:47]
    s_waitcnt lgkmcnt(0)
    v_pk_add_f32 v[48:49], v[48:49], v[4:5]
    v_pk_add_f32 v[50:51], v[50:51], v[6:7]
    v_pk_add_f32 v[40:41], v[40:41], v[48:49]
    v_pk_add_f32 v[42:43], v[42:43], v[50:51]
    v_cvt_pk_bf16_f32 v40, v40, v41
    v_cvt_pk_bf16_f32 v42, v42, v43
    ds_write_b16 v35, v40 offset:{TB}
    ds_write_b16_d16_hi v36, v40 offset:{TB}
    ds_write_b16 v37, v42 offset:{TB}
    ds_write_b16_d16_hi v38, v42 offset:{TB}
    P_KS:
    s_waitcnt lgkmcnt(0)
    s_barrier
    @STAMP 5
    v_cmp_gt_u32 vcc, 0x60, v0
    s_and_saveexec_b64 s[22:23], vcc
    s_cbranch_execz P_KEND
    ds_read_b128 v[40:43], v1 offset:{TB}
    s_waitcnt lgkmcnt(0)
    global_store_dwordx4 v8, v[40:43], s[4:5]
    P_KEND:
    @FLUSH 6
    s_endpgm
    """)
    k.label("P_TR")
    PITCH = 144
    k(f"""
    s_load_dwordx2 s[8:9], s[0:1], {KA_U}
    s_sub_u32 s3, s2, {B_T}
    s_lshr_b32 s10, s3, 3                 ; lt (0..31)
    s_and_b32 s11, s3, 7                  ; dt (0..7)
    v_lshrrev_b32 v1, 3, v0               ; row 0..31
    v_and_b32 v2, 7, v0                   ; chunk
    s_lshl_b32 s12, s10, 16               ; lt*64*1024
    s_lshl_b32 s13, s11, 7
    s_add_u32 s12, s12, s13
    v_lshlrev_b32 v3, 10, v1
    v_lshl_add_u32 v3, v2, 4, v3
    v_add_u32 v3, s12, v3
    v_add_u32 v4, 0x8000, v3
    s_waitcnt lgkmcnt(0)
    global_load_dwordx4 v[8:11], v3, s[8:9]
    global_load_dwordx4 v[12:15], v4, s[8:9]
    v_lshrrev_b32 v41, 6, v0
    v_and_b32 v42, 63, v0
    s_lshl_b32 s14, s3, 13                ; 8 rows * 1024
    v_lshlrev_b32 v43, 11, v41
    v_lshl_add_u32 v43, v42, 4, v43
    v_add_u32 v43, s14, v43
    global_load_dwordx4 v[48:51], v43, s[8:9]
    global_load_dwordx4 v[52:55], v43, s[8:9] offset:1024
    v_mul_u32_u24 v5, {PITCH}, v1
    v_lshl_add_u32 v5, v2, 4, v5
    v_and_b32 v6, 15, v0                  ; lam
    v_bfe_u32 v7, v0, 4, 2                ; g
    v_lshrrev_b32 v16, 6, v0              ; w
    v_lshrrev_b32 v17, 2, v6              ; r = lam>>2
    v_lshl_add_u32 v17, v7, 3, v17        ; row = 8g + r
    v_mul_u32_u24 v17, {PITCH}, v17
    v_and_b32 v18, 3, v6
    v_lshl_add_u32 v17, v18, 3, v17       ; + c*8
    v_lshl_add_u32 v17, v16, 5, v17       ; + w*32 bytes
    s_mul_i32 s12, s11, {64*XP}
    s_lshl_b32 s13, s10, 7
    s_add_u32 s12, s12, s13
    s_add_u32 s12, s12, {XT0}
    v_lshl_add_u32 v19, v16, 4, v6
    v_mul_u32_u24 v19, {XP}, v19
    v_lshl_add_u32 v19, v7, 4, v19
    v_add_u32 v19, s12, v19
    s_waitcnt vmcnt(2)
    ds_write_b128 v5, v[8:11]
    ds_write_b128 v5, v[12:15] offset:{32*PITCH}
    s_waitcnt lgkmcnt(0)
    s_barrier
    ds_read_b64_tr_b16 v[8:9], v17
    ds_read_b64_tr_b16 v[10:11], v17 offset:{4*PITCH}
    ds_read_b64_tr_b16 v[12:13], v17 offset:{32*PITCH}
    ds_read_b64_tr_b16 v[14:15], v17 offset:{36*PITCH}
    s_waitcnt lgkmcnt(0)
    global_store_dwordx4 v19, v[8:11], s[4:5] {PREP_X_POL}
    global_store_dwordx4 v19, v[12:15], s[4:5] offset:64 {PREP_X_POL}
    """)
    k(f"""
    v_mov_b32 v2, v42
    s_lshl_b32 s10, s3, 4
    v_lshlrev_b32 v4, 12, v41
    v_add_u32 v4, s10, v4                 ; w*4096 + wg*16
    v_add_u32 v5, {ST0}, v4
    v_add_u32 v6, {ST1}, v4
    s_waitcnt vmcnt(2)
    """)
    for row, (base, sm, sq) in enumerate([(48, 20, 21), (52, 22, 23)]):
        for j in range(4):
            k(f"v_lshlrev_b32 v16, 16, v{base+j}")
            k(f"v_and_b32 v17, 0xffff0000, v{base+j}")
            if j == 0:
                k(f"v_add_f32 v{sm}, v16, v17")
                k(f"v_mul_f32 v{sq}, v16, v16")
            else:
                k(f"v_add_f32 v{sm}, v{sm}, v16")
                k(f"v_add_f32 v{sm}, v{sm}, v17")
                k(f"v_fmac_f32 v{sq}, v16, v16")
            k(f"v_fmac_f32 v{sq}, v17, v17")
    for sh in ("row_shr:1", "row_shr:2", "row_shr:4", "row_shr:8"):
        for r in range(20, 24):
            k(f"v_add_f32_dpp v{r}, v{r}, v{r} {sh} row_mask:0xf bank_mask:0xf bound_ctrl:0")
    for r in range(20, 24):
        k(f"v_add_f32_dpp v{r}, v{r}, v{r} row_bcast:15 row_mask:0xa bank_mask:0xf")
    for r in range(20, 24):
        k(f"v_add_f32_dpp v{r}, v{r}, v{r} row_bcast:31 row_mask:0xc bank_mask:0xf")
    k(f"""
    v_mov_b32 v24, 0
    v_mov_b32 v25, 0
    v_mov_b32 v26, 0
    v_mov_b32 v27, 0
    s_lshl_b32 s10, s3, 9
    s_add_u32 s10, s10, {ZR}
    v_and_b32 v7, 31, v0
    v_lshl_add_u32 v7, v7, 4, s10
    global_store_dwordx4 v7, v[24:27], s[4:5]
    v_cmp_eq_u32 vcc, 63, v2
    s_and_saveexec_b64 s[22:23], vcc
    global_store_dwordx4 v5, v[20:23], s[4:5]
    global_store_dwordx4 v6, v[24:27], s[4:5]
    @FLUSH 2
    s_endpgm
    """)
    k.label("P_W")
    WPITCH = 400
    k(f"""
    s_load_dwordx4 s[8:11], s[0:1], {KA_WG}
    s_sub_u32 s3, s2, {B_W}
    s_lshr_b32 s12, s3, 4                 ; ft
    s_and_b32 s13, s3, 15                 ; s
    """)
    k(f"""
    s_mul_i32 s14, s13, {32*F*2}
    s_mul_i32 s15, s12, 192
    s_add_u32 s14, s14, s15
    s_mul_i32 s16, s12, 12
    s_mov_b32 s17, 0x15555556
    """)
    k(f"v_mov_b32 v5, {F//8}")
    for i in range(2):
        k(f"""
        v_add_u32 v1, {256*i}, v0
        v_mul_hi_u32 v2, v1, s17
        v_mul_u32_u24 v3, 12, v2
        v_sub_u32 v3, v1, v3                  ; chunk
        v_mul_u32_u24 v4, {F*2}, v2
        v_lshl_add_u32 v4, v3, 4, v4
        v_add_u32 v{40+i}, s14, v4
        v_mul_u32_u24 v4, {WPITCH}, v2
        v_lshl_add_u32 v{42+i}, v3, 5, v4
        v_add_u32 v3, s16, v3
        v_cmp_gt_u32 s[{24+2*i}:{25+2*i}], v5, v3
        """)
    for r in range(8, 24): k(f"v_mov_b32 v{r}, 0")
    k(f"""
    v_cmp_gt_u32 vcc, 0x80, v0
    s_and_b64 s[26:27], s[26:27], vcc
    s_waitcnt lgkmcnt(0)
    s_mov_b64 s[28:29], exec
    s_mov_b64 exec, s[24:25]
    s_cbranch_execz P_W1
    global_load_dwordx4 v[8:11], v40, s[8:9]
    global_load_dwordx4 v[12:15], v40, s[10:11]
    P_W1:
    s_mov_b64 exec, s[26:27]
    s_cbranch_execz P_W2
    global_load_dwordx4 v[16:19], v41, s[8:9]
    global_load_dwordx4 v[20:23], v41, s[10:11]
    P_W2:
    s_mov_b64 exec, s[28:29]
    s_waitcnt vmcnt(0)
    ds_write2_b32 v42, v8, v9 offset0:0 offset1:2
    ds_write2_b32 v42, v10, v11 offset0:4 offset1:6
    ds_write2_b32 v42, v12, v13 offset0:1 offset1:3
    ds_write2_b32 v42, v14, v15 offset0:5 offset1:7
    s_and_saveexec_b64 s[28:29], vcc
    s_cbranch_execz P_W3
    ds_write2_b32 v43, v16, v17 offset0:0 offset1:2
    ds_write2_b32 v43, v18, v19 offset0:4 offset1:6
    ds_write2_b32 v43, v20, v21 offset0:1 offset1:3
    ds_write2_b32 v43, v22, v23 offset0:5 offset1:7
    P_W3:
    s_mov_b64 exec, s[28:29]
    v_and_b32 v1, 15, v0
    v_bfe_u32 v2, v0, 4, 2
    v_lshrrev_b32 v3, 2, v1
    v_lshl_add_u32 v3, v2, 2, v3
    v_mul_u32_u24 v3, {WPITCH}, v3
    v_and_b32 v4, 3, v1
    v_lshl_add_u32 v3, v4, 3, v3
    v_readfirstlane_b32 s18, v0
    s_lshr_b32 s18, s18, 6                ; w
    s_lshl_b32 s19, s18, 7
    s_mov_b32 s20, 32
    s_cmp_eq_u32 s18, 3
    s_cselect_b32 s19, 96, s19
    s_cselect_b32 s20, 128, s20
    v_add_u32 v3, s19, v3
    v_add_u32 v4, s20, v3
    v_add_u32 v5, s20, v4
    s_lshl_b32 s21, s12, 2
    s_add_u32 s21, s21, s18
    s_lshl_b32 s21, s21, 4
    s_add_u32 s21, s21, s13
    s_mul_i32 s21, s21, 3072
    s_add_u32 s21, s21, {WP}
    v_and_b32 v6, 63, v0
    v_lshlrev_b32 v6, 4, v6
    v_add_u32 v6, s21, v6
    v_add_u32 v7, 0x400, v6
    v_add_u32 v24, 0x800, v6
    s_waitcnt lgkmcnt(0)
    s_barrier
    ds_read_b64_tr_b16 v[8:9], v3
    ds_read_b64_tr_b16 v[10:11], v3 offset:{16*WPITCH}
    ds_read_b64_tr_b16 v[12:13], v4
    ds_read_b64_tr_b16 v[14:15], v4 offset:{16*WPITCH}
    ds_read_b64_tr_b16 v[16:17], v5
    ds_read_b64_tr_b16 v[18:19], v5 offset:{16*WPITCH}
    s_waitcnt lgkmcnt(0)
    global_store_dwordx4 v6, v[8:11], s[4:5] {PREP_W_POL}
    global_store_dwordx4 v7, v[12:15], s[4:5] {PREP_W_POL}
    global_store_dwordx4 v24, v[16:19], s[4:5] {PREP_W_POL}
    @FLUSH 2
    s_endpgm
    """)
    k.label("P_D")
    DPITCH = 272
    k(f"""
    s_load_dwordx2 s[8:9], s[0:1], {KA_WD}
    s_sub_u32 s3, s2, {B_D}
    s_lshr_b32 s12, s3, 2                 ; ks 0..43
    s_and_b32 s13, s3, 3                  ; dq
    v_lshrrev_b32 v1, 4, v0               ; row 0..15 (+16)
    v_and_b32 v2, 15, v0                  ; chunk
    s_lshl_b32 s14, s12, 15               ; ks*32*1024
    s_lshl_b32 s15, s13, 8
    s_add_u32 s14, s14, s15
    v_lshlrev_b32 v3, 10, v1
    v_lshl_add_u32 v3, v2, 4, v3
    v_add_u32 v3, s14, v3
    v_add_u32 v4, 0x4000, v3
    """)
    for r in range(8, 16): k(f"v_mov_b32 v{r}, 0")
    k(f"""
    s_waitcnt lgkmcnt(0)
    s_cmp_ge_u32 s12, 43
    s_cbranch_scc1 P_D1
    global_load_dwordx4 v[8:11], v3, s[8:9]
    global_load_dwordx4 v[12:15], v4, s[8:9]
    P_D1:
    v_bfe_u32 v5, v1, 1, 2                ; g
    v_lshrrev_b32 v6, 3, v1               ; dw (0/1)
    v_and_b32 v7, 1, v1
    v_lshl_add_u32 v7, v6, 1, v7
    v_lshl_add_u32 v7, v5, 3, v7          ; rho
    v_mul_u32_u24 v7, {DPITCH}, v7
    v_lshl_add_u32 v7, v2, 4, v7
    v_and_b32 v1, 15, v0
    v_bfe_u32 v2, v0, 4, 2
    v_lshrrev_b32 v16, 6, v0
    v_lshrrev_b32 v3, 2, v1
    v_lshl_add_u32 v3, v2, 3, v3          ; row = 8g + r
    v_mul_u32_u24 v3, {DPITCH}, v3
    v_and_b32 v4, 3, v1
    v_lshl_add_u32 v3, v4, 3, v3          ; + c*8 bytes (4 d)
    v_lshl_add_u32 v3, v16, 6, v3         ; + w*64
    s_lshl_b32 s16, s13, 3
    v_lshl_add_u32 v17, v16, 1, s16
    v_mul_u32_u24 v17, {NKS2*1024}, v17
    v_and_b32 v18, 63, v0
    v_lshl_add_u32 v17, v18, 4, v17
    s_lshl_b32 s16, s12, 10
    s_add_u32 s16, s16, {WD}
    v_add_u32 v17, s16, v17
    v_add_u32 v18, {NKS2*1024}, v17
    s_waitcnt vmcnt(0)
    ds_write_b128 v7, v[8:11]
    ds_write_b128 v7, v[12:15] offset:{4*DPITCH}
    s_waitcnt lgkmcnt(0)
    s_barrier
    ds_read_b64_tr_b16 v[8:9], v3
    ds_read_b64_tr_b16 v[10:11], v3 offset:{4*DPITCH}
    ds_read_b64_tr_b16 v[12:13], v3 offset:32
    ds_read_b64_tr_b16 v[14:15], v3 offset:{4*DPITCH+32}
    s_waitcnt lgkmcnt(0)
    global_store_dwordx4 v17, v[8:11], s[4:5] {PREP_W_POL}
    global_store_dwordx4 v18, v[12:15], s[4:5] {PREP_W_POL}
    @FLUSH 2
    s_endpgm
    """)
    k.label("P_C")
    k(f"""
    s_load_dwordx4 s[8:11], s[0:1], {KA_WG}
    s_sub_u32 s3, s2, {B_C}
    s_and_b32 s12, s3, 1                  ; mat
    s_lshr_b32 s13, s3, 1                 ; cb 0..44
    v_lshrrev_b32 v1, 2, v0
    v_and_b32 v2, 3, v0                   ; chunk
    s_lshl_b32 s14, s13, 6
    v_mul_u32_u24 v4, {F*2}, v1
    v_lshl_add_u32 v4, v2, 4, v4
    v_add_u32 v4, s14, v4
    """)
    for r in range(8, 16): k(f"v_mov_b32 v{r}, 0")
    k(f"""
    s_waitcnt lgkmcnt(0)
    s_cmp_eq_u32 s12, 1
    s_cselect_b32 s8, s10, s8
    s_cselect_b32 s9, s11, s9
    s_cmp_ge_u32 s13, 43
    s_cbranch_scc1 P_C2
    """)
    for i in range(8):
        k(f"global_load_dwordx4 v[{16+4*i}:{19+4*i}], v4, s[8:9]")
        if i < 7: k(f"v_add_u32 v4, {64*F*2}, v4")
    for i in range(8):
        k(f"s_waitcnt vmcnt({7-i})")
        for j in range(4):
            k(f"v_lshlrev_b32 v6, 16, v{16+4*i+j}")
            k(f"v_and_b32 v7, 0xffff0000, v{16+4*i+j}")
            k(f"v_pk_add_f32 v[{8+2*j}:{9+2*j}], v[{8+2*j}:{9+2*j}], v[6:7]")
    for sh in ("row_shr:4", "row_shr:8"):
        for r in range(8, 16):
            k(f"v_add_f32_dpp v{r}, v{r}, v{r} {sh} row_mask:0xf bank_mask:0xf bound_ctrl:0")
    k(f"""
    P_C2:
    v_lshrrev_b32 v6, 4, v0
    v_lshlrev_b32 v6, 7, v6
    v_lshl_add_u32 v6, v2, 5, v6
    v_and_b32 v7, 12, v0
    v_cmp_eq_u32 vcc, 12, v7
    s_and_saveexec_b64 s[46:47], vcc
    ds_write_b128 v6, v[8:11]
    ds_write_b128 v6, v[12:15] offset:16
    s_mov_b64 exec, s[46:47]
    s_waitcnt lgkmcnt(0)
    s_barrier
    v_cmp_gt_u32 vcc, 32, v0
    s_and_saveexec_b64 s[46:47], vcc
    s_cbranch_execz P_C3
    v_lshlrev_b32 v6, 2, v0
    """)
    for i in range(16):
        k(f"ds_read_b32 v{16+i}, v6 offset:{128*i}")
    k(f"""
    s_mul_i32 s14, s13, 0x5556
    s_lshr_b32 s14, s14, 16               ; ft
    s_mul_i32 s15, s14, 3
    s_sub_u32 s15, s13, s15               ; j
    s_mul_i32 s16, s15, 3
    s_add_u32 s17, s15, 9
    v_lshrrev_b32 v5, 3, v0               ; dw
    v_add_u32 v7, s16, v5
    v_mov_b32 v8, s17
    v_cmp_eq_u32 vcc, 3, v5
    v_cndmask_b32 v7, v7, v8, vcc         ; w*3+tau
    s_mul_i32 s14, s14, 12
    v_add_u32 v7, s14, v7
    v_lshlrev_b32 v7, 4, v7
    v_bfe_u32 v8, v0, 1, 2
    v_lshl_add_u32 v7, v8, 2, v7
    v_and_b32 v8, 1, v0
    v_add_u32 v7, v7, v8
    s_lshl_b32 s14, s12, 1
    v_add_u32 v7, s14, v7
    v_lshlrev_b32 v7, 2, v7
    v_add_u32 v7, {CSUM}, v7
    s_waitcnt lgkmcnt(0)
    """)
    for st in (8, 4, 2, 1):
        for i in range(st):
            k(f"v_add_f32 v{16+i}, v{16+i}, v{16+i+st}")
    k(f"""
    global_store_dword v7, v16, s[4:5]
    P_C3:
    @FLUSH 2
    s_endpgm
    """)
    return k, dict(vgpr=96, sgpr=48, accum=96, grid=PREP_WGS, block=256, lds=PREP_LDS)


def stats_pair(k, sa, qa, sb, qb, t, keep=None):
    for s_, q_ in ((sa, qa), (sb, qb)):
        k(f"""
        v_mul_f32 v{s_}, s43, v{s_}
        v_mul_f32 v{q_}, s43, v{q_}
        v_fma_f32 v{q_}, -v{s_}, v{s_}, v{q_}
        v_max_f32 v{q_}, 0, v{q_}
        v_cvt_pk_bf16_f32 v{q_}, v{s_}, v{q_}
        v_lshlrev_b32 v{s_}, 16, v{q_}
        v_and_b32 v{q_}, 0xffff0000, v{q_}
        v_add_f32 v{q_}, s44, v{q_}
        """)
    k(f"""
    v_cvt_pk_bf16_f32 v{t}, v{qa}, v{qb}
    v_lshlrev_b32 v{qa}, 16, v{t}
    v_and_b32 v{qb}, 0xffff0000, v{t}
    v_sqrt_f32 v{qa}, v{qa}
    v_sqrt_f32 v{qb}, v{qb}
    v_cvt_pk_bf16_f32 v{t}, v{qa}, v{qb}
    v_lshlrev_b32 v{keep[0] if keep else qa}, 16, v{t}
    v_and_b32 v{keep[1] if keep else qb}, 0xffff0000, v{t}
    v_rcp_f32 v{qa}, v{keep[0] if keep else qa}
    v_rcp_f32 v{qb}, v{keep[1] if keep else qb}
    """)


def gen_conv():
    k = Kern("conv")
    k(f"""
    conv1_kernel:
    s_cmp_ge_u32 s2, 512
    s_cbranch_scc1 P_WROLES
    s_mov_b32 s34, {0 if 'W' in WINC else 1}
    s_mov_b32 s30, {XT0}
    s_mov_b32 s31, {ST0}
    s_mov_b32 s32, {X1T}
    s_mov_b32 s33, {HB}
    @KID 1
    CONV_BODY:
    s_cmp_ge_u32 s2, 512
    s_cbranch_scc1 CONV_END
    @INIT
    s_load_dwordx2 s[4:5], s[0:1], {KA_WS}
    s_load_dwordx2 s[6:7], s[0:1], {KA_DSKIP}
    """)
    conv_setup(k)
    k(f"""
    s_lshl_b32 s18, s17, 11
    s_add_u32 s18, s18, {CRED}
    """)
    conv_p3(k)
    k("""
    @STAMP 10
    s_waitcnt lgkmcnt(0)
    @STAMP 11
    s_load_dword s20, s[6:7], s16
    """)
    srd(k, 8, 4, WS_BYTES)
    k(f"""
    s_mov_b32 m0, s18
    s_nop 0
    buffer_load_dwordx4 v6, s[8:11], s15 offen lds
    buffer_load_dwordx4 v6, s[8:11], s15 offen offset:1024 lds
    """)
    conv_loads(k)
    npf = 0
    k(f"""
    @STAMP 12
    @STAMP 2
    s_waitcnt vmcnt({5 + npf})
    """)
    for e in range(11):
        k(f"ds_read_u16 v{48+e}, v{48+e}")
    conv_expand(k)
    k(f"""
    s_waitcnt vmcnt({1 + npf})
    @STAMP 3
    """)
    for i in range(4):
        stats_pair(k, 16 + 4*i, 17 + 4*i, 18 + 4*i, 19 + 4*i, 40)
    k(f"s_waitcnt vmcnt({npf})")
    conv_norm(k)
    if CPF:
        if LOCALMAP0:
            k(f"""
            s_lshr_b32 s21, s2, 3
            s_mul_i32 s22, s21, 49152
            s_mul_i32 s23, s17, {PFQ}
            s_add_u32 s22, s22, s23
            s_add_u32 s22, s22, {WP}
            v_min_u32 v38, {PFQ // 128 - 1}, v5
            v_lshlrev_b32 v38, 7, v38
            buffer_load_dword v150, v38, s[8:11], s22 offen
            """)
        else:
            k(f"""
            s_lshr_b32 s21, s2, 3
            s_lshl_b32 s21, s21, 2
            s_add_u32 s21, s21, s17
            s_mul_i32 s22, s21, 6144
            s_and_b32 s23, s2, 1
            s_mul_i32 s23, s23, {8*196608}
            s_add_u32 s22, s22, s23
            s_add_u32 s22, s22, {WP}
            v_lshlrev_b32 v38, 7, v5
            s_cmp_eq_u32 s34, 0
            s_cbranch_scc1 CONV_NOW
            buffer_load_dword v150, v38, s[8:11], s22 offen
            CONV_NOW:
            """)
    if SENT:
        k(f"""
        v_mov_b32 v40, -1
        v_mov_b32 v41, -1
        v_mov_b32 v42, -1
        v_mov_b32 v43, -1
        s_mul_i32 s21, s2, 11520
        s_add_u32 s21, s21, s33
        v_min_u32 v38, {11520 - 8192 - 16}, v1
        buffer_store_dwordx4 v[40:43], v1, s[8:11], s21 offen {POISON_POL}
        s_add_u32 s21, s21, 0x1000
        buffer_store_dwordx4 v[40:43], v1, s[8:11], s21 offen {POISON_POL}
        s_add_u32 s21, s21, 0x1000
        buffer_store_dwordx4 v[40:43], v38, s[8:11], s21 offen {POISON_POL}
        """)
    if CODEPF2:
        k(f"""
        s_cmp_ge_u32 s2, 8
        s_cbranch_scc1 CONV_NOPF
        s_getpc_b64 s[22:23]
        v_lshlrev_b32 v38, 6, v0
        global_load_dword v39, v38, s[22:23]
        CONV_NOPF:
        """)
    k("""
    @STAMP 4
    s_waitcnt lgkmcnt(0)
    s_barrier
    CONV_MAIN2:
    @STAMP 5
    """)
    KF = 48; UB = 16; ACC = 112
    pend = []
    def rd(tag):
        if tag[0] == "U":
            mu = int(tag[1:]); r = UB + 4 * (mu & 3)
            k(f"ds_read_b128 v[{r}:{r+3}], v9 offset:{256*mu}")
        else:
            t = int(tag[1:]); r = KF + 4 * t
            k(f"ds_read_b128 v[{r}:{r+3}], v7 offset:{256*t}")
        pend.append(tag)
    def need(tags):
        idx = max([pend.index(t) for t in tags if t in pend], default=-1)
        if idx >= 0:
            k(f"s_waitcnt lgkmcnt({len(pend) - idx - 1})")
            del pend[:idx + 1]
    queue = ["U0"] + [f"K{t}" for t in range(1, 16, 2)] + ["U1"] + [f"K{t}" for t in range(0, 16, 2)] + ["U2", "U3"]
    for t in queue[:12]: rd(t)
    queue = queue[12:]
    for mu in range(16):
        a = UB + 4 * (mu & 3)
        q0 = max(0, -(-(mu - 1) // 2))
        for q in range(q0, 8):
            tp = 2 * q + 1 - mu
            need([f"U{mu}", f"K{tp}"])
            c = "0" if mu == 0 else f"v[{ACC+4*q}:{ACC+4*q+3}]"
            k(f"v_mfma_f32_16x16x32_bf16 v[{ACC+4*q}:{ACC+4*q+3}], v[{KF+4*tp}:{KF+4*tp+3}], v[{a}:{a+3}], {c}")
            if queue: rd(queue.pop(0))
        if mu + 4 < 16: rd(f"U{mu+4}")
        if mu & 1 and mu >= 3:
            q = (mu - 3) // 2
            k(f"ds_write_b128 v10, v[{ACC+4*q}:{ACC+4*q+3}] offset:{(CRED + (q>>1)*8192 if q < 6 else KL) + (q&1)*1024}")
            pend.append("W")
        if mu == 6:
            assert not any(t[0] == "K" for t in pend + queue)
            k("s_barrier")
    k("@STAMP 6")
    k(f"""
    s_and_b32 s21, s20, 0xffff0000
    s_lshl_b32 s20, s20, 16
    s_bitcmp1_b32 s2, 0
    s_cselect_b32 s20, s21, s20
    """)
    for p in range(4):
        k(f"""
        v_lshlrev_b32 v40, 16, v{32+p}
        v_and_b32 v41, 0xffff0000, v{32+p}
        v_mul_f32 v40, s20, v40
        v_mul_f32 v41, s20, v41
        v_cvt_pk_bf16_f32 v41, v40, v41
        """)
        if p == 0:
            k(f"ds_write_b128 v10, v[{ACC+28}:{ACC+31}] offset:{KL + 1024}")
        k(f"""
        v_lshlrev_b32 v{48+2*p}, 16, v41
        v_and_b32 v{49+2*p}, 0xffff0000, v41
        v_lshlrev_b32 v{56+2*p}, 16, v{12+p}
        v_and_b32 v{57+2*p}, 0xffff0000, v{12+p}
        """)
    k("""
    s_waitcnt lgkmcnt(0)
    s_barrier
    @STAMP 7
    """)
    for src in range(4):
        for t in range(2):
            k(f"ds_read_b128 v[{ACC+8*src+4*t}:{ACC+8*src+4*t+3}], v11 offset:{src*2048 + t*16}")
    k("s_waitcnt lgkmcnt(4)")
    for r in range(0, 8, 2):
        k(f"v_pk_add_f32 v[{ACC+r}:{ACC+r+1}], v[{ACC+r}:{ACC+r+1}], v[{ACC+8+r}:{ACC+9+r}]")
    k("s_waitcnt lgkmcnt(0)")
    for r in range(0, 8, 2):
        k(f"v_pk_add_f32 v[{ACC+16+r}:{ACC+17+r}], v[{ACC+16+r}:{ACC+17+r}], v[{ACC+24+r}:{ACC+25+r}]")
    for r in range(0, 8, 2):
        k(f"v_pk_add_f32 v[{ACC+r}:{ACC+r+1}], v[{ACC+r}:{ACC+r+1}], v[{ACC+16+r}:{ACC+17+r}]")
    k("@STAMP 8")
    for p in range(4):
        y0, y1 = ACC + 2*p, ACC + 2*p + 1
        k(f"""
        v_cvt_pk_bf16_f32 v{y1}, v{y0}, v{y1}
        v_lshlrev_b32 v{y0}, 16, v{y1}
        v_and_b32 v{y1}, 0xffff0000, v{y1}
        v_pk_add_f32 v[{y0}:{y1}], v[{y0}:{y1}], v[{48+2*p}:{49+2*p}]
        v_cvt_pk_bf16_f32 v{y1}, v{y0}, v{y1}
        v_lshlrev_b32 v{y0}, 16, v{y1}
        v_and_b32 v{y1}, 0xffff0000, v{y1}
        v_pk_add_f32 v[{y0}:{y1}], v[{y0}:{y1}], v[{56+2*p}:{57+2*p}]
        v_cvt_pk_bf16_f32 v{44+p}, v{y0}, v{y1}
        """)
    k(f"""
    buffer_store_dwordx4 v[44:47], v1, s[8:11], s14 offen {CONV_ST}
    @STAMP 9
    @FLUSH 13
    CONV_END:
    s_endpgm
    .p2align 8
    conv2_kernel:
    s_mov_b32 s34, 1
    s_mov_b32 s30, {X2T}
    s_mov_b32 s31, {ST1}
    s_mov_b32 s32, {X3T}
    s_mov_b32 s33, {HB1}
    @KID 4
    s_branch CONV_BODY
    """)
    info = dict(vgpr=152, sgpr=48, accum=152, grid=512, block=256, lds=CONV_LDS)
    return k, info

MLP_LDS = 163840
H_LD = os.environ.get('H_LD', 'sc1')
M_PRE2 = int(os.environ.get('M_PRE2', '5'))
M_OLD = int(os.environ.get('M_OLD', '1'))
M_LOOK = int(os.environ.get('M_LOOK', '5'))
M_TOUCH = int(os.environ.get('M_TOUCH', '0'))
M_PRE = int(os.environ.get('M_PRE', '8'))
M_OPS = int(os.environ.get('M_OPS', '3'))
M_RAMP = int(os.environ.get('M_RAMP', '5'))
M_LATE = int(os.environ.get('M_LATE', '-100'))
LOCALMAP = int(os.environ.get('LOCALMAP', '0'))
LOC_POL = os.environ.get('LOC_POL', '')
IDT = ZR + 0x4000
M_WDM = int(os.environ.get('M_WDM', '6'))
M_WDE = int(os.environ.get('M_WDE', '2'))
M_AHEAD2 = int(os.environ.get('M_AHEAD2', '6'))
SPIN_MAX = 1 << 20
SLOT = 40960
def gen_mlp():
    k = Kern("mlp")
    ACC = 0
    FR = 48
    XA = 104
    WA = 112
    CSR = 114
    STV = 126
    RES = 130
    VDMA, VW, VT0, VT1, VT2 = 134, 135, 136, 137, 138
    SA = 139
    VRES = 142; VSTX = 143; VPUB = 144; VCS = 145
    MR = 146
    TMP = 150
    NV = 168
    VID = TMP + 14
    def wdreg(i): return f"a[{4*i}:{4*i+3}]"
    k(f"""
    mlpa_kernel:
    s_mov_b32 s30, {X1T}
    s_mov_b32 s31, {HB}
    s_mov_b32 s33, {STX}
    s_mov_b32 s34, {FLG}
    s_mov_b32 s35, 0
    s_mov_b32 s56, {IDT}
    @KID 2
    M_BODY:
    s_cmp_ge_u32 s2, 256
    s_cbranch_scc1 M_END
    @INIT
    s_load_dwordx2 s[4:5], s[0:1], {KA_WS}
    s_load_dwordx2 s[6:7], s[0:1], {KA_OUT}
    v_readfirstlane_b32 s17, v0
    s_and_b32 s12, s2, 7                  ; xcd
    s_lshr_b32 s13, s2, 3                 ; idx
    """)
    if LOCALMAP:
        k(f"""
        s_lshl_b32 s14, s12, 1
        s_and_b32 s15, s13, 1
        s_add_u32 s14, s14, s15
        s_lshl_b32 s36, s12, 2
        s_and_b32 s15, s13, 3
        s_add_u32 s36, s36, s15
        s_lshr_b32 s37, s13, 2                ; dt
        s_lshr_b32 s15, s13, 1                ; ft
        """)
    else:
        k(f"""
    s_lshr_b32 s14, s12, 1
    s_lshl_b32 s14, s14, 2
    s_and_b32 s15, s13, 3
    s_add_u32 s14, s14, s15               ; lt
    s_lshl_b32 s36, s12, 2
    s_add_u32 s36, s36, s15               ; lt64
    s_lshr_b32 s37, s13, 2                ; dt
    s_and_b32 s15, s12, 1
    s_lshl_b32 s15, s15, 3
    s_add_u32 s15, s15, s37               ; ft
        """)
    k(f"""
    s_lshr_b32 s17, s17, 6                ; w
    s_and_b32 s16, s17, 3
    s_lshr_b32 s29, s17, 2
    v_and_b32 v{VT0}, 63, v0              ; lane
    v_and_b32 v{VT1}, 15, v0              ; lam / j
    v_bfe_u32 v{VT2}, v0, 4, 2            ; g
    s_and_b32 s20, s17, 1
    s_lshl_b32 s20, s20, 2
    v_lshrrev_b32 v{TMP}, 1, v{VT1}
    v_xor_b32 v{TMP+1}, v{TMP}, v{VT2}
    v_xor_b32 v{TMP+1}, s20, v{TMP+1}
    v_and_b32 v{TMP+3}, 1, v{VT1}
    v_lshlrev_b32 v{TMP+3}, 4, v{TMP+3}
    v_mul_u32_u24 v{TMP+4}, {XP}, v{VT2}
    v_add_u32 v{TMP+3}, v{TMP+4}, v{TMP+3}
    v_lshl_add_u32 v{VDMA}, v{TMP+1}, 5, v{TMP+3}
    v_lshlrev_b32 v{VW}, 4, v{VT0}                    ; lane*16
    s_lshl_b32 s18, s14, 8
    s_add_u32 s18, s18, s30
    s_mul_i32 s19, s17, {4*XP}
    s_add_u32 s18, s18, s19
    s_lshl_b32 s19, s17, 10               ; x m0 part: w*1024
    s_lshl_b32 s20, s15, 2
    s_add_u32 s20, s20, s16
    s_lshl_b32 s21, s20, 4
    s_add_u32 s21, s21, s29
    s_mul_i32 s21, s21, 3072
    s_add_u32 s21, s21, {WP}
    s_mul_i32 s22, s17, 3072
    s_add_u32 s22, s22, 0x4000
    s_mul_i32 s24, s20, {3*16*4}
    s_add_u32 s24, s24, {CSUM}
    s_lshl_b32 s38, s37, 2
    s_add_u32 s38, s38, s16
    s_mul_i32 s38, s38, {NKS2*1024}
    s_mul_i32 s23, s29, {22*1024}
    s_add_u32 s38, s38, s23
    s_add_u32 s38, s38, {WD}
    """)
    def group_parts(t):
        base = (t & 3) * SLOT
        parts = [f"""
        s_add_u32 m0, s19, {base}
        s_nop 0
        buffer_load_dwordx4 v{VDMA}, s[8:11], s18 offen lds
        s_add_u32 s18, s18, {32*XP}
        """, f"""
        s_add_u32 m0, s22, {base}
        s_nop 0
        buffer_load_dwordx4 v{VW}, s[8:11], s21 offen lds
        """, f"""
        buffer_load_dwordx4 v{VW}, s[8:11], s21 offen offset:1024 lds
        """, f"""
        buffer_load_dwordx4 v{VW}, s[8:11], s21 offen offset:2048 lds
        s_add_u32 s21, s21, 0x1800
        """, f"""
        s_add_u32 m0, s19, {base + 8192}
        s_nop 0
        buffer_load_dwordx4 v{VDMA}, s[8:11], s18 offen lds
        s_add_u32 s18, s18, {32*XP}
        """]
        return parts
    def wd_part(i):
        p = f"buffer_load_dwordx4 {wdreg(i)}, v{VW}, s[8:11], s38 offen offset:{1024*(i&3)}"
        if (i & 3) == 3: p += "\ns_add_u32 s38, s38, 0x1000"
        return p
    def common_addr():
        k(f"""
        s_mov_b32 s43, {fl(1.0/512)}
        s_mov_b32 s44, {fl(1e-5)}
        s_mov_b32 s45, {fl(-LOG2E)}
        v_lshrrev_b32 v{TMP}, 2, v{VT1}
        v_lshl_add_u32 v{TMP}, v{VT2}, 2, v{TMP}          ; 4g + r
        v_and_b32 v{TMP+1}, 7, v{TMP}                     ; xi
        v_and_b32 v{TMP+2}, 3, v{VT1}
        v_lshlrev_b32 v{TMP+2}, 3, v{TMP+2}
        v_lshl_add_u32 v{TMP+2}, v{TMP}, 8, v{TMP+2}
        v_mul_u32_u24 v{VRES}, {XP}, v{VT1}
        v_lshl_add_u32 v{VRES}, v{VT2}, 4, v{VRES}
        s_lshl_b32 s39, s37, 2
        s_add_u32 s39, s39, s16
        s_mul_i32 s39, s39, {16*XP}
        s_lshl_b32 s40, s36, 7
        s_add_u32 s39, s39, s40
        s_lshl_b32 s40, s29, 6
        s_add_u32 s39, s39, s40
        s_add_u32 s40, s39, s30
        """)
    res_parts = [f"buffer_load_dwordx4 v[{RES}:{RES+3}], v{VRES}, s[8:11], s40 offen"]
    common_addr()
    k("s_lshl_b32 s25, s29, 2")
    for b in range(4):
        k(f"""
        s_add_u32 s26, s25, {b}
        v_xor_b32 v{TMP+3}, s26, v{TMP+1}
        v_lshl_add_u32 v{XA+b}, v{TMP+3}, 5, v{TMP+2}
        v_add_u32 v{XA+4+b}, {2*SLOT}, v{XA+b}
        """)
    k(f"""
    s_mul_i32 s26, s16, 3072
    s_add_u32 s26, s26, 0x4000
    v_add_u32 v{WA}, s26, v{VW}
    v_add_u32 v{WA+1}, {2*SLOT}, v{WA}
    """)
    def late_addr():
        k(f"""
        v_bfe_u32 v{TMP}, v{VT1}, 2, 1                    ; half
        v_mul_u32_u24 v{TMP+4}, 3072, v{TMP}
        v_lshrrev_b32 v{TMP}, 3, v{VT1}
        v_lshl_add_u32 v{TMP+4}, v{TMP}, 6, v{TMP+4}
        v_and_b32 v{TMP}, 3, v{VT1}
        v_lshl_add_u32 v{TMP+4}, v{TMP}, 4, v{TMP+4}
        v_lshl_add_u32 v{TMP+4}, v{VT2}, 8, v{TMP+4}
        s_lshl_b32 s26, s16, 10
        s_cmp_eq_u32 s16, 3
        s_cselect_b32 s26, 12, s26
        s_cselect_b32 s27, 0x400, 4
        s_mul_i32 s28, s29, 12288
        s_add_u32 s26, s26, s28
        v_add_u32 v{SA}, s26, v{TMP+4}
        v_add_u32 v{SA+1}, s27, v{SA}
        v_add_u32 v{SA+2}, s27, v{SA+1}
        v_lshlrev_b32 v{VSTX}, 2, v{VT1}
        s_lshl_b32 s41, s14, 9
        s_lshl_b32 s26, s29, 8
        s_add_u32 s41, s41, s26
        s_add_u32 s41, s41, s33
        s_and_b32 s27, s17, 1
        s_and_b32 s28, s17, 2
        s_lshl_b32 s28, s28, 1
        s_or_b32 s27, s27, s28
        s_lshl_b32 s28, s29, 1
        s_or_b32 s27, s27, s28
        s_mul_i32 s26, s27, 3072
        v_add_u32 v{VPUB}, s26, v{VW}
        s_lshl_b32 s42, s14, 3
        s_add_u32 s42, s42, s27
        s_mul_i32 s42, s42, {HKS*1024}
        s_mul_i32 s26, s15, 3072
        s_add_u32 s42, s42, s26
        s_add_u32 s42, s42, s31
        v_lshlrev_b32 v{VCS}, 4, v{VT2}
        """)
    late_addr()
    k(f"""
    v_lshrrev_b32 v{TMP+6}, 3, v{VT0}
    v_mul_u32_u24 v{TMP+6}, {XP}, v{TMP+6}
    v_and_b32 v{TMP+7}, 7, v{VT0}
    v_lshl_add_u32 v{TMP+6}, v{TMP+7}, 5, v{TMP+6}
    s_lshl_b32 s46, s37, 3
    s_add_u32 s46, s46, s17
    s_mul_i32 s46, s46, {8*XP}
    s_lshl_b32 s47, s14, 8
    s_add_u32 s46, s46, s47
    s_add_u32 s46, s46, s30
    """)
    if LOCALMAP:
        k(f"""
        s_getreg_b32 s23, hwreg(HW_REG_XCC_ID)
        s_and_b32 s23, s23, 15
        s_add_u32 s23, s23, 1
        s_lshl_b32 s26, s12, 7
        s_add_u32 s56, s56, s26
        s_lshl_b32 s26, s13, 2
        v_mov_b32 v{VID}, s23
        v_mov_b32 v{VID+1}, s26
        v_and_b32 v{VID+2}, 31, v{VT0}
        v_lshlrev_b32 v{VID+2}, 2, v{VID+2}
        """)
    k("s_waitcnt lgkmcnt(0)")
    srd(k, 8, 4, WS_BYTES)
    if M_TOUCH & 1: k(f"buffer_load_dword v{TMP+8}, v{TMP+6}, s[8:11], s46 offen")
    if LOCALMAP:
        k(f"""
        s_cmp_lg_u32 s17, 7
        s_cbranch_scc1 M_NOID
        s_mov_b64 exec, 1
        buffer_store_dword v{VID}, v{VID+1}, s[8:11], s56 offen sc1
        s_mov_b64 exec, -1
        M_NOID:
        """)
    k("""
    s_cmp_eq_u32 s15, 15
    s_cbranch_scc1 M_STATS
    """)
    def reads(s):
        res = []
        t = s >> 1; hi = (t & 3) >> 1; base = (t & 1) * SLOT
        buf = FR + 28 * (s & 1)
        for tau in range(3):
            r = buf + 16 + 4 * tau
            res.append(f"ds_read_b128 v[{r}:{r+3}], v{WA+hi} offset:{base + (s&1)*12288 + tau*1024}")
        for b in range(4):
            off = base + (s & 1) * 8192
            res.append(f"ds_read_b64_tr_b16 v[{buf+4*b}:{buf+4*b+1}], v{XA+4*hi+b} offset:{off}")
            res.append(f"ds_read_b64_tr_b16 v[{buf+4*b+2}:{buf+4*b+3}], v{XA+4*hi+b} offset:{off+4096}")
        return res
    later = [f"buffer_load_dwordx4 v[{CSR+4*tau}:{CSR+4*tau+3}], v{VCS}, s[8:11], s24 offen offset:{64*tau}" for tau in range(3)]
    later += res_parts
    later += [f"buffer_load_dword v{STV+b}, v{VSTX}, s[8:11], s41 offen offset:{64*b} sc1" for b in range(4)]
    if LOCALMAP: later += [f"buffer_load_dword v{VID+3}, v{VID+2}, s[8:11], s56 offen sc1"]
    n_crit = len(later)
    later += [wd_part(i) for i in range(M_WDM)]
    n_need = len(later)
    later += [wd_part(i) for i in range(M_WDM, 22)]
    vm = []
    def wait_for(tag):
        assert not any(o[1] == tag for o in opq), tag
        idxs = [i for i, x in enumerate(vm) if x == tag]
        if not idxs: return
        idx = max(idxs)
        k(f"s_waitcnt vmcnt({len(vm) - idx - 1})")
        del vm[:idx + 1]
    opq = []
    for u in range(8):
        gp = group_parts(u)
        e0 = max(2*u - 7, 2*u - M_LOOK)
        if M_OLD: e0 = {0: -1, 1: -1, 2: 0, 3: 1}.get(u, 2*u - 6)
        for j in (0, 1, 2): opq.append((gp[j], f"D{2*u}", e0))
        opq.append((gp[3], f"D{2*u}", e0 + 1 if u > (3 if M_OLD else 1) else e0))
        opq.append((gp[4], f"D{2*u+1}", e0 + 1 if u > (3 if M_OLD else 1) else e0))
    for i, p in enumerate(later[:n_need]): opq.append((p, "N" if i < n_crit else "L", -100 if i < n_crit else M_LATE))
    nlater = n_need
    def issue(n, s):
        out = []
        while opq and len(out) < n and opq[0][2] <= s:
            out.append(opq.pop(0))
        return out
    for p, tag, _ in issue(10 if M_OLD else M_PRE, -1):
        k(p); vm.append(tag)
    k("@STAMP 2")
    wait_for("D1" if M_OLD else "D0")
    k("s_barrier")
    k("@STAMP 3")
    for r in reads(0): k(r)
    EXP = os.environ.get('EXP', '')
    for s in range(16):
        if M_OLD:
            bar = False
            if s == 1: wait_for("D3"); bar = True
            elif (s & 1) == 0 and 0 < s < 14: wait_for(f"D{s+3}"); bar = True
            if bar: k("s_barrier")
            k("s_waitcnt lgkmcnt(0)")
        else:
            if s == 0: wait_for("D1")
            elif s < 15 and (s & 1): wait_for(f"D{s+2}")
            k("s_waitcnt lgkmcnt(0)")
            if s < 15 and (s == 0 or (s & 1)): k("s_barrier")
        if s == 8: k("@STAMP 4")
        fill = reads(s + 1) if s < 15 else []
        mf = []
        buf = FR + 28 * (s & 1)
        for b in range(4):
            for tau in range(3):
                a = ACC + (b * 3 + tau) * 4
                c = "0" if s == 0 else f"v[{a}:{a+3}]"
                mf.append(f"v_mfma_f32_16x16x32_bf16 v[{a}:{a+3}], v[{buf+16+4*tau}:{buf+19+4*tau}], v[{buf+4*b}:{buf+4*b+3}], {c}")
        parts = issue((5 if (s < 2 or s >= 12) else 3) if M_OLD else (M_OPS if s < M_RAMP else 3), s)
        step = 12 // max(len(parts), 1)
        slots = {1 + step * j: p for j, p in enumerate(parts)}
        for i, m in enumerate(mf):
            k(m)
            if i < len(fill): k(fill[i])
            if i in slots:
                k(slots[i][0]); vm.append(slots[i][1])
    assert not opq, len(opq)
    assert nlater >= n_need
    k("@STAMP 5")
    wait_for("N")
    k(f"""
    s_mov_b32 s47, 0
    M_STCHK:
    v_min3_u32 v{TMP}, v{STV}, v{STV+1}, v{STV+2}
    v_min_u32 v{TMP}, v{TMP}, v{STV+3}
    v_cmp_eq_u32 vcc, 0, v{TMP}
    s_cmp_eq_u64 vcc, 0
    s_cbranch_scc1 M_STOK
    s_add_u32 s47, s47, 1
    s_cmp_ge_u32 s47, {SPIN_MAX}
    s_cbranch_scc1 M_STOK
    s_sleep 2
    """)
    for b in range(4): k(f"buffer_load_dword v{STV+b}, v{VSTX}, s[8:11], s41 offen offset:{64*b} sc1")
    k("""
    s_waitcnt vmcnt(0)
    s_branch M_STCHK
    M_STOK:
    @STAMP 6
    """)
    if LOCALMAP:
        k(f"""
        v_cmp_ne_u32 vcc, s23, v{VID+3}
        s_cmp_eq_u64 vcc, 0
        s_cselect_b32 s54, 1, 0
        """)
    PB = FR
    def pub():
        for i in range(3):
            k(f"ds_read_b128 v[{PB+4*i}:{PB+4*i+3}], v{VPUB} offset:{1024*i}")
        if LOCALMAP:
            pub.n += 1
            k(f"""
            s_cmp_eq_u32 s54, 0
            s_cbranch_scc1 M_PG{pub.n}
            """)
            for i in range(3):
                k(f"s_waitcnt lgkmcnt({2-i})")
                k(f"buffer_store_dwordx4 v[{PB+4*i}:{PB+4*i+3}], v{VW}, s[8:11], s42 offen offset:{1024*i} {LOC_POL}")
            k(f"s_branch M_PE{pub.n}\nM_PG{pub.n}:")
        for i in range(3):
            k(f"s_waitcnt lgkmcnt({2-i})")
            k(f"buffer_store_dwordx4 v[{PB+4*i}:{PB+4*i+3}], v{VW}, s[8:11], s42 offen offset:{1024*i} sc1")
        if LOCALMAP: k(f"M_PE{pub.n}:")
    pub.n = 0
    for b in range(4):
        m = MR
        k(f"""
        v_and_b32 v{m+2}, 0xffff0000, v{STV+b}        ; s
        v_lshlrev_b32 v{m}, 16, v{STV+b}              ; m
        v_rcp_f32 v{m+1}, v{m+2}
        v_mul_f32 v{m+1}, s45, v{m+1}
        """)
        for tau in range(3):
            a = ACC + (b * 3 + tau) * 4
            c = CSR + 4 * tau
            k(f"""
            v_pk_fma_f32 v[{a}:{a+1}], v[{m}:{m+1}], v[{c}:{c+1}], v[{a}:{a+1}] op_sel_hi:[0,1,1] neg_lo:[1,0,0] neg_hi:[1,0,0]
            v_pk_fma_f32 v[{a+2}:{a+3}], v[{m}:{m+1}], v[{c+2}:{c+3}], v[{a+2}:{a+3}] op_sel_hi:[0,1,1] neg_lo:[1,0,0] neg_hi:[1,0,0]
            v_pk_mul_f32 v[{a}:{a+1}], v[{a}:{a+1}], v[{m}:{m+1}] op_sel:[0,1] op_sel_hi:[1,1]
            v_exp_f32 v{a}, v{a}
            v_exp_f32 v{a+1}, v{a+1}
            """)
            if tau < M_WDE and nlater < len(later):
                k(later[nlater]); nlater += 1
        for tau in range(3):
            a = ACC + (b * 3 + tau) * 4
            k(f"""
            v_pk_fma_f32 v[{a}:{a+1}], v[{a}:{a+1}], v[{m+2}:{m+3}], v[{m+2}:{m+3}] op_sel_hi:[1,0,0]
            v_rcp_f32 v{a}, v{a}
            v_rcp_f32 v{a+1}, v{a+1}
            """)
        for _ in range(M_WDE - 3):
            if nlater < len(later):
                k(later[nlater]); nlater += 1
        for tau in range(3):
            a = ACC + (b * 3 + tau) * 4
            k(f"""
            v_pk_mul_f32 v[{a}:{a+1}], v[{a}:{a+1}], v[{a+2}:{a+3}]
            v_cvt_pk_bf16_f32 v{a}, v{a}, v{a+1}
            ds_write_b32 v{SA+tau}, v{a} offset:{(b>>1)*6144 + (b&1)*128}
            """)
        if b == 1 and SPLITPUB:
            k("""
            s_waitcnt lgkmcnt(0)
            s_barrier
            s_cmp_lg_u32 s29, 0
            s_cbranch_scc1 M_PUB1
            """)
            pub()
            k.label("M_PUB1")
    k("""
    s_waitcnt lgkmcnt(0)
    s_barrier
    @STAMP 7
    """)
    if SPLITPUB:
        k("""
        s_cmp_eq_u32 s29, 0
        s_cbranch_scc1 M_PUB2
        """)
    pub()
    k.label("M_PUB2")
    rest = later[nlater:]
    if not SENT:
        k(f"""
        s_lshl_b32 s26, s14, 4
        s_add_u32 s26, s26, s15
        s_lshl_b32 s26, s26, 7
        s_add_u32 s26, s26, s34
        v_mov_b32 v{TMP}, 1
        v_mov_b32 v{TMP+1}, 0
        s_waitcnt vmcnt(0)
        s_barrier
        s_cmp_lg_u32 s17, 0
        s_cbranch_scc1 M_NOFLAG
        s_mov_b64 exec, 1
        s_cmp_eq_u32 s54, {1 if LOCALMAP else 77}
        s_cbranch_scc1 M_FLOC
        buffer_store_dword v{TMP}, v{TMP+1}, s[8:11], s26 offen sc1
        s_branch M_FEND
        M_FLOC:
        buffer_store_dword v{TMP}, v{TMP+1}, s[8:11], s26 offen
        M_FEND:
        s_mov_b64 exec, -1
        M_NOFLAG:
        """)
    for p in rest: k(p)
    HA = XA
    k(f"""
    M_SYNC:
    s_mov_b32 s55, 0
    M_SYNC2:
    @STAMP 8
    v_mov_b32 v{TMP+10}, 0
    s_lshl_b32 s26, s36, 2
    s_add_u32 s26, s26, s16
    s_mul_i32 s26, s26, {HKS*1024}
    s_mul_i32 s27, s29, {22*1024}
    s_add_u32 s26, s26, s27
    s_add_u32 s26, s26, s31
    s_lshl_b32 s27, s17, 11               ; m0 part
    s_mul_i32 s28, s29, 0x3000
    v_add_u32 v{HA}, s28, v{VW}
    s_lshl_b32 s28, s29, 12
    s_add_u32 s28, s28, 0x1000
    v_add_u32 v{HA+1}, s28, v{VW}
    v_add_u32 v{HA+2}, 0x10000, v{HA}
    v_add_u32 v{HA+3}, 0x10000, v{HA+1}
    v_add_u32 v{HA+4}, 0x20000, v{HA}
    v_add_u32 v{HA+5}, 0x20000, v{HA+1}
    s_cmp_lg_u32 s17, 1
    s_cbranch_scc1 M_WAITB
    """)
    if SENT:
        k(f"""
        s_mul_i32 s28, s36, {4*HKS*1024}
        s_add_u32 s28, s28, s31
        v_min_u32 v{TMP+4}, 14, v{VT1}
        v_mul_u32_u24 v{TMP+4}, 3072, v{TMP+4}
        v_mul_u32_u24 v{TMP+5}, {HKS*1024}, v{VT2}
        v_add_u32 v{TMP+4}, v{TMP+4}, v{TMP+5}
        s_mov_b32 s47, 0
        M_POLL:
        buffer_load_dword v{TMP+5}, v{TMP+4}, s[8:11], s28 offen offset:3056 sc1
        s_waitcnt vmcnt(0)
        v_cmp_eq_u32 vcc, -1, v{TMP+5}
        s_cmp_eq_u64 vcc, 0
        s_cbranch_scc1 M_WAITB
        s_sleep {SENT_SLEEP}
        s_add_u32 s47, s47, 1
        s_cmp_lt_u32 s47, {SPIN_MAX}
        s_cbranch_scc1 M_POLL
        """)
    else:
        k(f"""
        s_lshr_b32 s28, s36, 1
        s_lshl_b32 s28, s28, 11
        s_add_u32 s28, s28, s34
        v_min_u32 v{TMP+4}, 14, v{VT0}
        v_lshlrev_b32 v{TMP+4}, 7, v{TMP+4}
        s_mov_b32 s47, 0
        M_POLL:
        buffer_load_dword v{TMP+5}, v{TMP+4}, s[8:11], s28 offen sc1
        s_waitcnt vmcnt(0)
        v_cmp_eq_u32 vcc, 0, v{TMP+5}
        s_cmp_eq_u64 vcc, 0
        s_cbranch_scc1 M_WAITB
        s_add_u32 s47, s47, 1
        s_cmp_lt_u32 s47, {SPIN_MAX}
        s_cbranch_scc1 M_POLL
        """)
    k(f"""
    M_WAITB:
    s_lshl_b32 s46, s37, 3
    s_add_u32 s46, s46, s17
    s_mul_i32 s46, s46, 2880
    s_mul_i32 s47, s36, {4*HKS*1024}
    s_add_u32 s46, s46, s47
    s_add_u32 s46, s46, s31
    v_min_u32 v{TMP+6}, 44, v{VT0}
    v_lshlrev_b32 v{TMP+6}, 6, v{TMP+6}
    s_barrier
    @STAMP 9
    """)
    if M_TOUCH & 2: k(f"buffer_load_dword v{TMP+8}, v{TMP+6}, s[8:11], s46 offen")
    def hchunk(c):
        return [f"""
        s_add_u32 m0, s27, {(c % 10) * 16384}
        s_nop 0
        buffer_load_dwordx4 v{VW}, s[8:11], s26 offen {H_LD} lds
        """, f"""
        buffer_load_dwordx4 v{VW}, s[8:11], s26 offen offset:1024 {H_LD} lds
        s_add_u32 s26, s26, 0x800
        """]
    HF = 16
    A2 = 0
    def hreads(c):
        res = []
        for i in range(2):
            for lb in range(4):
                off = (c % 10) * 16384 + (lb & 1) * 2048 + i * 1024
                base = HA + 2 * (off >> 16) + (lb >> 1)
                r = HF + 32 * (c & 1) + (i * 4 + lb) * 4
                res.append(f"ds_read_b128 v[{r}:{r+3}], v{base} offset:{off & 0xffff}")
        return res
    iss = M_PRE2
    for c in range(iss):
        for p in hchunk(c): k(p)
    k(f"s_waitcnt vmcnt({2*(iss-1)})")
    k("s_barrier")
    k("@STAMP 10")
    for r in hreads(0): k(r)
    for c in range(11):
        fill = []
        if c < 10:
            k(f"s_waitcnt vmcnt({2*(iss-(c+2))})")
            k("s_barrier")
        k("s_waitcnt lgkmcnt(0)")
        if c < 10: fill = hreads(c + 1)
        parts = []
        for rep_ in range(2):
            if iss < 11 and (iss < 10 or c >= 1) and iss < c + M_AHEAD2:
                parts += hchunk(iss); iss += 1
        slots = {1 + 2 * j: p for j, p in enumerate(parts)}
        n = 0
        for i in range(2):
            for lb in range(4):
                r = HF + 32 * (c & 1) + (i * 4 + lb) * 4
                a = A2 + 4 * lb
                cc = "0" if (c == 0 and i == 0) else f"v[{a}:{a+3}]"
                k(f"v_mfma_f32_16x16x32_bf16 v[{a}:{a+3}], v[{r}:{r+3}], {wdreg(2*c+i)}, {cc}")
                if SENT and (n & 1) == 0: k(f"v_max3_u32 v{TMP+10}, v{r}, v{r+4}, v{TMP+10}")
                if n < len(fill): k(fill[n])
                if n in slots: k(slots[n])
                n += 1
    k("@STAMP 11")
    XB = 65536
    k(f"""
    s_lshl_b32 s26, s17, 11
    s_add_u32 s26, s26, {XB}
    v_add_u32 v{TMP}, s26, v{VW}
    s_xor_b32 s26, s26, 0x2000
    v_add_u32 v{TMP+1}, s26, v{VW}
    """)
    for j in range(4):
        k(f"v_lshlrev_b32 v{32+2*j}, 16, v{RES+j}")
        k(f"v_and_b32 v{33+2*j}, 0xffff0000, v{RES+j}")
    k(f"""
    ds_write_b128 v{TMP}, v[8:11]
    ds_write_b128 v{TMP}, v[12:15] offset:1024
    """)
    if SENT:
        k(f"""
        v_cmp_eq_u32 vcc, -1, v{TMP+10}
        s_cmp_lg_u64 vcc, 0
        s_cselect_b32 s26, 1, 0
        s_lshl_b32 s27, s17, 2
        s_add_u32 s27, s27, {XB + 16384}
        v_mov_b32 v{TMP+11}, s26
        v_mov_b32 v{TMP+12}, s27
        v_and_b32 v{TMP+13}, 7, v{VT0}
        v_lshlrev_b32 v{TMP+13}, 2, v{TMP+13}
        v_add_u32 v{TMP+13}, {XB + 16384}, v{TMP+13}
        ds_write_b32 v{TMP+12}, v{TMP+11}
        """)
    k(f"""
    s_waitcnt lgkmcnt(0)
    s_barrier
    ds_read_b128 v[8:11], v{TMP+1}
    ds_read_b128 v[12:15], v{TMP+1} offset:1024
    """)
    if SENT:
        k(f"""
        ds_read_b32 v{TMP+11}, v{TMP+13}
        s_waitcnt lgkmcnt(0)
        v_cmp_ne_u32 vcc, 0, v{TMP+11}
        s_cmp_eq_u64 vcc, 0
        s_cbranch_scc1 M_OK
        s_add_u32 s55, s55, 1
        s_cmp_lt_u32 s55, 64
        s_cbranch_scc1 M_SYNC2
        M_OK:
        """)
    k("s_waitcnt lgkmcnt(0)")
    OUT = 16
    for j in range(4):
        y0, y1 = A2 + 2*j, A2 + 2*j + 1
        k(f"""
        v_pk_add_f32 v[{y0}:{y1}], v[{y0}:{y1}], v[{y0+8}:{y1+8}]
        v_cvt_pk_bf16_f32 v{y1}, v{y0}, v{y1}
        v_lshlrev_b32 v{y0}, 16, v{y1}
        v_and_b32 v{y1}, 0xffff0000, v{y1}
        v_pk_add_f32 v[{y0}:{y1}], v[{y0}:{y1}], v[{32+2*j}:{33+2*j}]
        v_cvt_pk_bf16_f32 v{OUT+j}, v{y0}, v{y1}
        """)
    k(f"""
    s_cmp_lg_u32 s35, 0
    s_cbranch_scc1 M_FINAL
    s_add_u32 s40, s39, {X2T}
    buffer_store_dwordx4 v[{OUT}:{OUT+3}], v{VRES}, s[8:11], s40 offen {X2_ST}
    """)
    Q = 48
    for j in range(4):
        k(f"""
        v_lshlrev_b32 v{Q+4*j}, 16, v{OUT+j}
        v_and_b32 v{Q+4*j+2}, 0xffff0000, v{OUT+j}
        v_mul_f32 v{Q+4*j+1}, v{Q+4*j}, v{Q+4*j}
        v_mul_f32 v{Q+4*j+3}, v{Q+4*j+2}, v{Q+4*j+2}
        """)
    for q in range(8):
        k(f"v_add_f32_dpp v{Q+q}, v{Q+q}, v{Q+q} row_ror:8 row_mask:0xf bank_mask:0x3")
        k(f"v_add_f32_dpp v{Q+q}, v{Q+q+8}, v{Q+q+8} row_ror:8 row_mask:0xf bank_mask:0xc")
    for q in range(4):
        k(f"v_add_f32_dpp v{Q+q}, v{Q+q}, v{Q+q} row_shl:4 row_mask:0xf bank_mask:0x5")
        k(f"v_add_f32_dpp v{Q+q}, v{Q+q+4}, v{Q+q+4} row_shr:4 row_mask:0xf bank_mask:0xa")
    for q in range(4):
        k(f"v_add_f32_dpp v{Q+q}, v{Q+q}, v{Q+q} quad_perm:[1,0,3,2] row_mask:0xf bank_mask:0xf")
    for q in range(4):
        k(f"v_add_f32_dpp v{Q+q}, v{Q+q}, v{Q+q} quad_perm:[2,3,0,1] row_mask:0xf bank_mask:0xf")
    SB = 98304
    k(f"""
    v_and_b32 v{TMP}, 3, v{VT1}
    v_cmp_eq_u32 s[48:49], 1, v{TMP}
    v_cmp_eq_u32 s[50:51], 2, v{TMP}
    v_cmp_eq_u32 s[52:53], 3, v{TMP}
    v_lshrrev_b32 v{TMP+1}, 2, v{VT1}
    v_lshlrev_b32 v{TMP+1}, 7, v{TMP+1}
    v_lshl_add_u32 v{TMP+1}, v{VT2}, 4, v{TMP+1}
    v_lshl_add_u32 v{TMP+1}, v{TMP}, 2, v{TMP+1}
    s_lshl_b32 s26, s16, 9
    s_lshl_b32 s27, s29, 6
    s_add_u32 s26, s26, s27
    s_add_u32 s26, s26, {SB}
    v_add_u32 v{TMP+1}, s26, v{TMP+1}
    v_cndmask_b32 v{Q}, v{Q}, v{Q+1}, s[48:49]
    v_cndmask_b32 v{Q}, v{Q}, v{Q+2}, s[50:51]
    v_cndmask_b32 v{Q}, v{Q}, v{Q+3}, s[52:53]
    ds_write_b32 v{TMP+1}, v{Q}
    s_lshl_b32 s26, s17, 8
    s_add_u32 s26, s26, {SB}
    v_lshl_add_u32 v{TMP+2}, v{VT0}, 2, s26
    v_lshrrev_b32 v{TMP+3}, 5, v{VT0}
    v_lshlrev_b32 v{TMP+3}, 12, v{TMP+3}
    v_and_b32 v{TMP+4}, 31, v{VT0}
    v_lshl_add_u32 v{TMP+3}, v{TMP+4}, 2, v{TMP+3}
    s_lshl_b32 s26, s36, 7
    s_lshl_b32 s27, s17, 13
    s_add_u32 s26, s26, s27
    s_add_u32 s26, s26, {ST1}
    s_waitcnt lgkmcnt(0)
    s_barrier
    s_cmp_ge_u32 s17, 2
    s_cbranch_scc1 M_NOAT
    ds_read_b32 v{Q}, v{TMP+2}
    ds_read_b32 v{Q+1}, v{TMP+2} offset:512
    ds_read_b32 v{Q+2}, v{TMP+2} offset:1024
    ds_read_b32 v{Q+3}, v{TMP+2} offset:1536
    s_waitcnt lgkmcnt(0)
    v_add_f32 v{Q}, v{Q}, v{Q+1}
    v_add_f32 v{Q+2}, v{Q+2}, v{Q+3}
    v_add_f32 v{Q}, v{Q}, v{Q+2}
    buffer_atomic_add_f32 v{Q}, v{TMP+3}, s[8:11], s26 offen
    M_NOAT:
    @STAMP 12
    @FLUSH 13
    s_endpgm
    M_FINAL:
    """)
    TP = 144; TB2 = 98304
    srd(k, 48, 6, L * D * 2)
    k(f"""
    s_lshl_b32 s26, s16, 4
    v_add_u32 v{TMP}, s26, v{VT1}
    v_mul_u32_u24 v{TMP}, {TP}, v{TMP}
    v_lshl_add_u32 v{TMP}, v{VT2}, 4, v{TMP}
    s_lshl_b32 s26, s29, 6
    s_add_u32 s26, s26, {TB2}
    v_add_u32 v{TMP}, s26, v{TMP}
    ds_write_b128 v{TMP}, v[{OUT}:{OUT+3}]
    v_lshrrev_b32 v{TMP+1}, 2, v{VT1}
    v_lshl_add_u32 v{TMP+1}, v{VT2}, 3, v{TMP+1}
    v_mul_u32_u24 v{TMP+1}, {TP}, v{TMP+1}
    v_and_b32 v{TMP+2}, 3, v{VT1}
    v_lshl_add_u32 v{TMP+1}, v{TMP+2}, 3, v{TMP+1}
    s_lshl_b32 s26, s16, 5
    s_mul_i32 s27, s29, {32*TP}
    s_add_u32 s26, s26, s27
    s_add_u32 s26, s26, {TB2}
    v_add_u32 v{TMP+1}, s26, v{TMP+1}
    v_lshlrev_b32 v{TMP+2}, 10, v{VT1}
    v_lshl_add_u32 v{TMP+2}, v{VT2}, 4, v{TMP+2}
    s_lshl_b32 s26, s36, 2
    s_add_u32 s26, s26, s16
    s_lshl_b32 s26, s26, 14
    s_lshl_b32 s27, s37, 7
    s_add_u32 s26, s26, s27
    s_lshl_b32 s27, s29, 6
    s_add_u32 s26, s26, s27
    s_waitcnt lgkmcnt(0)
    s_barrier
    ds_read_b64_tr_b16 v[32:33], v{TMP+1}
    ds_read_b64_tr_b16 v[34:35], v{TMP+1} offset:{4*TP}
    s_waitcnt lgkmcnt(0)
    buffer_store_dwordx4 v[32:35], v{TMP+2}, s[48:51], s26 offen
    @STAMP 12
    @FLUSH 13 last
    M_END:
    s_endpgm
    """)
    k(f"""
    M_STATS:
    s_mov_b32 s47, 0
    M_SL1:
    s_mov_b32 m0, s19
    s_add_u32 s19, s19, 0x2000
    buffer_load_dwordx4 v{VDMA}, s[8:11], s18 offen lds
    s_add_u32 s18, s18, {32*XP}
    s_mov_b32 m0, s19
    s_add_u32 s19, s19, 0x2000
    buffer_load_dwordx4 v{VDMA}, s[8:11], s18 offen lds
    s_add_u32 s18, s18, {32*XP}
    s_add_u32 s47, s47, 1
    s_cmp_lt_u32 s47, 8
    s_cbranch_scc1 M_SL1
    """)
    SACC = 0; ONES = 16
    k(f"""
    v_xor_b32 v{TMP+3}, s17, v{TMP+1}
    v_lshl_add_u32 v{XA}, v{TMP+3}, 5, v{TMP+2}
    """)
    for r in range(8): k(f"v_mov_b32 v{SACC+r}, 0")
    for r in range(4): k(f"v_mov_b32 v{ONES+r}, 0x3f803f80")
    k(f"""
    s_mov_b32 s47, 0
    s_waitcnt vmcnt(0)
    s_barrier
    M_SL2:
    """)
    for u in range(8):
        r = FR + 4 * u
        if u == 7: k("s_waitcnt lgkmcnt(12)")
        k(f"ds_read_b64_tr_b16 v[{r}:{r+1}], v{XA} offset:{u*8192}")
        k(f"ds_read_b64_tr_b16 v[{r+2}:{r+3}], v{XA} offset:{u*8192+4096}")
    k(f"v_add_u32 v{XA}, 0x10000, v{XA}")
    for u in range(8):
        r = FR + 4 * u
        k(f"s_waitcnt lgkmcnt({14 - 2*u})")
        k(f"v_mfma_f32_16x16x32_bf16 v[{SACC}:{SACC+3}], v[{r}:{r+3}], v[{r}:{r+3}], v[{SACC}:{SACC+3}]")
        k(f"v_mfma_f32_16x16x32_bf16 v[{SACC+4}:{SACC+7}], v[{ONES}:{ONES+3}], v[{r}:{r+3}], v[{SACC+4}:{SACC+7}]")
    k(f"""
    s_add_u32 s47, s47, 1
    s_cmp_lt_u32 s47, 2
    s_cbranch_scc1 M_SL2
    v_and_b32 v{TMP}, 3, v{VT1}
    v_cmp_eq_u32 s[48:49], 1, v{TMP}
    v_cmp_eq_u32 s[50:51], 2, v{TMP}
    v_cmp_eq_u32 s[52:53], 3, v{TMP}
    v_lshrrev_b32 v{TMP}, 2, v{VT1}
    v_cmp_eq_u32 s[54:55], v{TMP}, v{VT2}
    v_cndmask_b32 v{SACC}, v{SACC}, v{SACC+1}, s[48:49]
    v_cndmask_b32 v{SACC}, v{SACC}, v{SACC+2}, s[50:51]
    v_cndmask_b32 v{SACC+5}, v{SACC}, v{SACC+3}, s[52:53]
    v_mov_b32 v{SACC+12}, v{SACC+4}
    v_mov_b32 v{SACC+13}, v{SACC+5}
    """)
    stats_pair(k, SACC+4, SACC+5, SACC+12, SACC+13, TMP, keep=(SACC+6, SACC+14))
    k(f"""
    v_lshrrev_b32 v{SACC+4}, 16, v{SACC+4}
    v_or_b32 v{SACC+4}, v{SACC+4}, v{SACC+6}
    v_lshlrev_b32 v{VSTX}, 2, v{VT1}
    s_lshl_b32 s41, s14, 9
    s_lshl_b32 s26, s17, 6
    s_add_u32 s41, s41, s26
    s_add_u32 s41, s41, s33
    s_mov_b64 exec, s[54:55]
    buffer_store_dword v{SACC+4}, v{VSTX}, s[8:11], s41 offen sc1
    s_mov_b64 exec, -1
    """)
    for p in res_parts: k(p)
    for i in range(22): k(wd_part(i))
    k(f"""
    s_barrier
    s_branch M_SYNC
    .p2align 8
    mlpb_kernel:
    s_mov_b32 s30, {X3T}
    s_mov_b32 s31, {HB1}
    s_mov_b32 s33, {STX + 0x2000}
    s_mov_b32 s34, {FLG + 0x8000}
    s_mov_b32 s35, 1
    s_mov_b32 s56, {IDT + 0x400}
    @KID 5
    s_branch M_BODY
    """)
    info = dict(vgpr=NV + 88, sgpr=64, accum=NV, grid=256, block=512, lds=MLP_LDS)
    return k, info

DIAG_KN = {2: ("mlpa", 13), 5: ("mlpb", 13), 3: ("wroles", 2), 6: ("none", 1)}
def emit(path, launches=None):
    kp, ip = gen_prep()
    kc, ic = gen_conv()
    km, im = gen_mlp()
    ic1 = dict(ic); ic1["grid"] = B_E
    infos = {"prep_kernel": ip, "conv1_kernel": ic1, "conv2_kernel": ic, "mlpa_kernel": im, "mlpb_kernel": im}
    if os.environ.get("ORDER"): launches = [x + "_kernel" for x in os.environ["ORDER"].split(",")]
    order = launches or ["prep_kernel", "conv1_kernel", "mlpa_kernel", "conv2_kernel", "mlpb_kernel"]
    hdr = open("cdna_kernels/" + NAME + ".s.ref").read().split("; Override launch")[0]
    out = [hdr.rstrip("\n")]
    for n in order:
        i = infos[n]
        out.append(f"; @launch kernel={n} grid=({i['grid']},1,1) block=({i['block']},1,1) lds={i['lds']}")
    out.append('.amdgcn_target "amdgcn-amd-amdhsa--gfx950"\n.text')
    for n in infos:
        out.append(f".globl {n}\n.type {n},@function")
    out.append(".p2align 8\nprep_kernel:\n" + kp.text())
    for kk in (kc, km):
        out.append(".p2align 8\n" + kk.text())
    for n, i in infos.items():
        out.append(descriptor(n, i["vgpr"], 102 if DIAG else i["sgpr"], i["accum"]))
    open(path, "w").write("\n".join(out))

if __name__ == "__main__":
    emit(sys.argv[1] if len(sys.argv) > 1 else "cdna_kernels/" + NAME + ".s")
```

```python
import sys, struct, re
from asmlib import *

NAME = "interleave_layers__ssm_conv_s4d__glu_gated_glu__prompt"
KA_U, KA_LOGA, KA_AIM, KA_CRE, KA_CIM, KA_LOGDT, KA_DSKIP, KA_BX, KA_WG, KA_WU, KA_WD, KA_OUT, KA_DBG, KA_WS = [8 * i for i in range(14)]
XT0, X1T, X2T, X3T = 0x3000000, 0x3300000, 0x3600000, 0x3900000
ST0, ST1, CSUM = 0x0800000, 0x0804000, 0x0808000
WP = 0x0C00000
WD = 0x1000000
HB = 0x1200000
HB1 = 0x2200000
ZR = 0x0810000; STX = 0x0810000; FLG = 0x0820000
KP = 0x1800000; KCS = 4160; KP_STRIDE = 1536
WS_BYTES = 0x10000000
L, D, F, NST = 2048, 512, 1376, 128
NKS2 = 44
HKS = 45

import os
XP = int(os.environ.get('XP', '4352'))
PREP_W_POL = os.environ.get('PREP_W_POL', '')
PREP_K_POL = os.environ.get('PREP_K_POL', '')
PREP_X_POL = os.environ.get('PREP_X_POL', '')
PREP_PRIO = int(os.environ.get('PREP_PRIO', '0'))
CONV_ST = os.environ.get('CONV_ST', 'sc1')
OUT_ST = os.environ.get('OUT_ST', '')
X2_ST = os.environ.get('X2_ST', 'sc1')
F1_SLEEP = int(os.environ.get('F1_SLEEP', '8'))
CODEPF_BASE = int(os.environ.get('CODEPF_BASE', '0'))
SENT = int(os.environ.get('SENT', '0'))
SPLITPUB = int(os.environ.get('SPLITPUB', '1'))
POISON_POL = os.environ.get('POISON_POL', 'sc1')
SENT_SLEEP = int(os.environ.get('SENT_SLEEP', '2'))
CODEPF2 = int(os.environ.get('CODEPF2', '1'))
TLBPF = int(os.environ.get('TLBPF', '0'))
TLBPF_BASE = int(os.environ.get('TLBPF_BASE', '1216'))
CODEPF = int(os.environ.get('CODEPF', '1'))
DIAG = int(os.environ.get("DIAG", "0"))
DIAG_OFF = 0x4000000
_Kern = Kern
class Kern(_Kern):
    def __call__(self, s):
        for l in s.strip("\n").split("\n"):
            t = l.strip()
            if t.startswith("@CNTLOAD"):
                super().__call__("global_load_dword v59, v2, s[28:29] sc1")
                continue
            if t.startswith("@CODEPF"):
                if CODEPF:
                    super().__call__(f"""
                    s_sub_u32 s3, s2, {CODEPF_BASE}
                    s_cmp_ge_u32 s3, 8
                    s_cbranch_scc1 P_NOPF
                    s_getpc_b64 s[6:7]
                    v_lshlrev_b32 v1, 6, v0
                    global_load_dword v94, v1, s[6:7]
                    v_add_u32 v1, 0x4000, v1
                    global_load_dword v95, v1, s[6:7]
                    P_NOPF:
                    """)
                if TLBPF:
                    super().__call__(f"""
                    s_sub_u32 s3, s2, {TLBPF_BASE}
                    s_cmp_ge_u32 s3, 8
                    s_cbranch_scc1 P_NOPF2
                    s_load_dwordx2 s[6:7], s[0:1], {KA_OUT}
                    v_lshlrev_b32 v1, 18, v0
                    v_lshlrev_b32 v2, 13, v0
                    s_waitcnt lgkmcnt(0)
                    global_load_dword v93, v1, s[4:5]
                    global_load_dword v92, v2, s[6:7]
                    P_NOPF2:
                    """)
                continue
            if t.startswith("@"):
                if not DIAG: continue
                p = t.split()
                if p[0] == "@KID":
                    super().__call__(f"s_mov_b32 s59, {DIAG_OFF + int(p[1]) * 0x80000}\ns_mov_b32 s57, {3 if int(p[1]) in (2, 5) else 2}")
                elif p[0] == "@INIT":
                    super().__call__("v_readfirstlane_b32 s58, v0\ns_memrealtime s[64:65]\ns_memtime s[66:67]")
                elif p[0] == "@STAMP":
                    i = int(p[1]); super().__call__(f"s_memtime s[{64+2*i}:{65+2*i}]")
                elif p[0] == "@FLUSH":
                    n = int(p[1])
                    super().__call__(f"""
                    s_waitcnt vmcnt(0)
                    s_memtime s[{64+2*n}:{65+2*n}]
                    s_memrealtime s[{66+2*n}:{67+2*n}]
                    s_waitcnt lgkmcnt(0)
                    s_mov_b64 exec, -1
                    s_lshr_b32 s58, s58, 6
                    s_lshl_b32 s61, s2, s57
                    s_add_u32 s60, s58, s61
                    s_lshl_b32 s60, s60, 6
                    s_add_u32 s60, s60, s59
                    v_mov_b32 v1, s60
                    """)
                    for i in range(n + 2):
                        super().__call__(f"v_mov_b32 v2, s{64+2*i}\nglobal_store_dword v1, v2, s[4:5] offset:{4*i}")
                    super().__call__("s_getreg_b32 s61, hwreg(HW_REG_XCC_ID)\nv_mov_b32 v2, s61\nglobal_store_dword v1, v2, s[4:5] offset:60")
                    if DIAG == 2 and len(p) > 2:
                        lab = f"DG{len(self.lines)}"
                        txt = f"s_or_b32 s60, s2, s58\ns_cmp_lg_u32 s60, 0\ns_cbranch_scc1 {lab}\ns_load_dwordx2 s[62:63], s[0:1], {KA_DBG}\ns_waitcnt vmcnt(0) lgkmcnt(0)\n"
                        j = 0
                        for kid, nn in ((0, 6), (1, 13), (2, 13), (4, 13), (5, 13)):
                            for slot in (0, nn + 1):
                                txt += f"v_mov_b32 v1, {DIAG_OFF + kid * 0x80000 + 4 * slot}\nglobal_load_dword v2, v1, s[4:5] sc1\nv_mov_b32 v3, {4*j}\ns_waitcnt vmcnt(0)\nglobal_store_dword v3, v2, s[62:63]\n"
                                j += 1
                        for kid, slot in ((2, 1), (2, 3), (2, 5), (2, 9), (1, 1), (1, 5)):
                            txt += f"v_mov_b32 v1, {DIAG_OFF + kid * 0x80000 + 4 * slot}\nglobal_load_dword v2, v1, s[4:5] sc1\nv_mov_b32 v3, {4*j}\ns_waitcnt vmcnt(0)\nglobal_store_dword v3, v2, s[62:63]\n"
                            j += 1
                        super().__call__(txt + f"{lab}:")
                continue
            super().__call__(l)

def f2u(x): return struct.unpack("<I", struct.pack("<f", x))[0]
def fl(x): return "0x%08x" % f2u(x)
LOG2E = 1.4426950408889634
L2E_HI = struct.unpack("<f", struct.pack("<f", LOG2E))[0]
L2E_LO = LOG2E - L2E_HI
LN2 = 0.6931471805599453

def srd(k, s, base, nbytes):
    k(f"""
    s_mov_b32 s{s}, s{base}
    s_and_b32 s{s+1}, s{base+1}, 0xffff
    s_mov_b32 s{s+2}, {nbytes:#x}
    s_mov_b32 s{s+3}, 0x20000
    """)

def rnd_bf16(k, dst, a, b=None):
    k(f"v_cvt_pk_bf16_f32 v{dst}, v{a}, v{b if b is not None else a}")

def exp_acc(k, dst, x, t0, t1):
    k(f"""
    v_mul_f32 v{t0}, s40, v{x}
    v_fma_f32 v{t1}, s40, v{x}, -v{t0}
    v_fma_f32 v{t1}, s41, v{x}, v{t1}
    v_exp_f32 v{dst}, v{t0}
    v_mul_f32 v{t1}, s42, v{t1}
    v_fma_f32 v{dst}, v{dst}, v{t1}, v{dst}
    """)

N_K, N_T, N_W, N_D, N_C = 512, 256, 240, 176, 90
WINC = os.environ.get('WINC', 'X')
_sz = {"C": N_C, "W": N_W, "D": N_D, "T": N_T}
B_K = 0
_pos = N_K; PREP_ROLES = []; _base = {}
for r in "CWTD":
    if r not in WINC:
        _base[r] = _pos; _pos += _sz[r]; PREP_ROLES.append((r, _pos))
PREP_WGS = _pos
_pos = 512; CONV_ROLES = []
for r in "CWD":
    if r in WINC:
        _base[r] = _pos; _pos += _sz[r]; CONV_ROLES.append((r, _pos))
B_E = _pos
B_C, B_W, B_T, B_D = _base["C"], _base["W"], _base["T"], _base["D"]
PREP_GROUPS = [("prep.K", 0, N_K, 6)] + [("prep." + r, _base[r], e, 2) for r, e in PREP_ROLES]
_lab = {"C": "P_C", "W": "P_W", "T": "P_TR", "D": "P_D"}
PREP_LDS = 18432
CSU = 4576
KL = 2 * CSU
CRED = KL + 16640
CONV_LDS = CRED + 24576
CPF = int(os.environ.get('CPF', '1'))
CPF_STRIDE = int(os.environ.get('CPF_STRIDE', '128'))
LOCALMAP0 = int(os.environ.get('LOCALMAP', '0'))
PFQ = int(os.environ.get('PFQ', '6144'))
SPIN_MAX = 1 << 20

class Remap:
    def __init__(self, k, voff, smap): self.k = k; self.voff = voff; self.smap = smap
    def __call__(self, t):
        def rv(m):
            if m.group(1): return f"v[{int(m.group(1))+self.voff}:{int(m.group(2))+self.voff}]"
            n = int(m.group(3)); return "v0" if n == 0 else f"v{n+self.voff}"
        t = re.sub(r"\bv\[(\d+):(\d+)\]|\bv(\d+)\b", rv, t)
        def rs(m):
            if m.group(1):
                a = int(m.group(1)); b = int(m.group(2))
                if a in self.smap: return f"s[{self.smap[a]}:{self.smap[a]+b-a}]"
                return m.group(0)
            n = int(m.group(3)); return f"s{self.smap.get(n, n)}"
        t = re.sub(r"\bs\[(\d+):(\d+)\]|\bs(\d+)\b", rs, t)
        self.k(t)
    def label(self, l): self.k.label(l)

class NoPk:
    def __init__(self, k): self.k = k
    def __call__(self, t):
        def f(m):
            d, a, b = int(m.group(1)), int(m.group(2)), int(m.group(3))
            return f"v_add_f32 v{d}, v{a}, v{b}\nv_add_f32 v{d+1}, v{a+1}, v{b+1}"
        self.k(re.sub(r"v_pk_add_f32 v\[(\d+):\d+\], v\[(\d+):\d+\], v\[(\d+):\d+\]", f, t))
    def label(self, l): self.k.label(l)
CONV_NOPK = int(os.environ.get('CONV_NOPK', '1'))

class Remap2:
    def __init__(self, k, vmap): self.k = k; self.vmap = vmap
    def __call__(self, t):
        t = re.sub(r"\bv(\d+)\b", lambda m: f"v{self.vmap.get(int(m.group(1)), int(m.group(1)))}", t)
        self.k(t)

def conv_setup(k):
    k(f"""
    v_readfirstlane_b32 s17, v0
    s_mov_b32 s43, {fl(1.0/512)}
    s_mov_b32 s44, {fl(1e-5)}
    s_mov_b32 s45, {fl(1e-5)}
    s_mov_b32 s46, {fl(1.0/512)}
    s_mov_b32 s47, {fl(1.0/512)}
    s_lshr_b32 s17, s17, 6                ; pi
    s_mul_i32 s12, s2, {XP}
    s_add_u32 s13, s12, s30
    s_add_u32 s14, s12, s32
    s_mul_i32 s15, s2, {KP_STRIDE}
    s_add_u32 s15, s15, {KP}
    s_lshr_b32 s16, s2, 1
    s_lshl_b32 s16, s16, 2
    v_lshlrev_b32 v1, 4, v0               ; tid*16
    v_and_b32 v3, 15, v0                  ; c / r
    v_bfe_u32 v4, v0, 4, 2                ; g
    v_and_b32 v5, 63, v0
    v_lshlrev_b32 v6, 4, v5               ; lane*16
    """)

def conv_loads(k, pol=""):
    k(f"""
    buffer_load_dwordx4 v[16:19], v1, s[8:11], s31 offen {pol}
    s_add_u32 s31, s31, 0x1000
    buffer_load_dwordx4 v[20:23], v1, s[8:11], s31 offen {pol}
    s_add_u32 s31, s31, 0x1000
    buffer_load_dwordx4 v[24:27], v1, s[8:11], s31 offen {pol}
    s_add_u32 s31, s31, 0x1000
    buffer_load_dwordx4 v[28:31], v1, s[8:11], s31 offen {pol}
    buffer_load_dwordx4 v[12:15], v1, s[8:11], s13 offen {pol}
    """)

def conv_p3(k):
    k(f"""
    v_mov_b32 v36, 0
    v_mov_b32 v37, 0
    v_mov_b32 v38, 0
    v_mov_b32 v39, 0
    v_bfe_u32 v9, v0, 2, 2
    v_mul_u32_u24 v9, {KCS}, v9
    v_and_b32 v10, 3, v0
    v_min_u32 v10, 2, v10
    v_lshl_add_u32 v9, v10, 4, v9
    ds_write_b128 v9, v[36:39] offset:{KL}
    v_lshlrev_b32 v40, 3, v0
    s_sub_u32 s19, s18, {2 * (0x4300 - 128)}
    """)
    for e in range(11):
        k(f"v_add_u32 v{48+e}, {e-3}, v40")
        if e < 3: k(f"v_max_i32 v{48+e}, 0, v{48+e}")
        k(f"v_cvt_f32_u32 v{60+e}, v{48+e}")
    for e in range(0, 11, 2):
        k(f"v_cvt_pk_bf16_f32 v{72+e//2}, v{60+e}, v{min(61+e, 70)}")
    for e in range(11):
        src = 72 + e // 2
        if e & 1: k(f"v_lshrrev_b32 v{60+e}, 16, v{src}")
        else: k(f"v_and_b32 v{60+e}, 0xffff, v{src}")
        k(f"v_lshl_add_u32 v{60+e}, v{60+e}, 1, s19")
        k(f"v_lshl_add_u32 v{48+e}, v{48+e}, 1, s18")
    k("v_cmp_gt_u32 s[24:25], 17, v0")
    for e in range(11):
        k(f"v_cndmask_b32 v{48+e}, v{60+e}, v{48+e}, s[24:25]")
    k(f"""
    s_and_b32 s21, s17, 1
    s_sub_u32 s22, 56, s21
    s_mul_i32 s21, s21, {CSU}
    v_min_u32 v9, s22, v5
    v_lshl_add_u32 v9, v9, 3, s21
    ds_write_b64 v9, v[36:37]
    v_and_b32 v9, 1, v3
    v_mul_u32_u24 v9, {CSU}, v9
    v_lshrrev_b32 v10, 1, v3
    v_lshlrev_b32 v11, 2, v10
    v_sub_u32 v11, v11, v4
    s_lshl_b32 s21, s17, 2
    s_sub_u32 s21, 15, s21
    v_add_u32 v11, s21, v11
    v_lshl_add_u32 v9, v11, 4, v9         ; v9 = u addr
    v_and_b32 v7, 3, v3
    v_mul_u32_u24 v7, {KCS}, v7
    v_lshrrev_b32 v8, 2, v3
    v_add_u32 v8, v8, v4
    v_lshl_add_u32 v7, v8, 4, v7
    s_lshl_b32 s21, s17, 6
    s_add_u32 s21, s21, {KL}
    v_add_u32 v7, s21, v7                 ; v7 = K addr
    v_xor_b32 v8, v4, v10
    v_and_b32 v8, 3, v8
    v_lshlrev_b32 v8, 1, v8
    v_lshl_add_u32 v8, v10, 3, v8
    v_and_b32 v11, 1, v3
    v_add_u32 v8, v8, v11
    s_lshl_b32 s21, s17, 11
    v_lshl_add_u32 v10, v8, 4, s21
    v_bfe_u32 v8, v0, 2, 3
    v_xor_b32 v11, v8, v0
    v_and_b32 v11, 3, v11
    v_lshlrev_b32 v11, 5, v11
    v_lshl_add_u32 v11, v8, 7, v11
    v_bfe_u32 v8, v0, 5, 1
    v_lshl_add_u32 v11, v8, 10, v11
    s_lshl_b32 s21, s17, 13
    s_add_u32 s21, s21, {CRED}
    s_cmp_eq_u32 s17, 3
    s_cselect_b32 s21, {KL}, s21
    v_add_u32 v11, s21, v11
    """)

def conv_expand(k):
    k("""
    v_cmp_eq_u32 vcc, 0, v0
    s_waitcnt lgkmcnt(0)
    v_cndmask_b32 v48, v48, v36, vcc
    v_cndmask_b32 v49, v49, v36, vcc
    v_cndmask_b32 v50, v50, v36, vcc
    """)
    for sft in range(4):
        for j in range(4):
            k(f"v_lshl_or_b32 v{64+4*sft+j}, v{48+sft+6-2*j}, 16, v{48+sft+7-2*j}")
        k(f"ds_write_b128 v1, v[{64+4*sft}:{67+4*sft}] offset:{KL + sft*KCS + 48}")

def conv_norm(k):
    for j in range(4):
        k(f"""
        v_lshlrev_b32 v40, 16, v{12+j}
        v_and_b32 v41, 0xffff0000, v{12+j}
        v_sub_f32 v40, v40, v{16+4*j}
        v_sub_f32 v41, v41, v{18+4*j}
        v_cvt_pk_bf16_f32 v41, v40, v41
        v_lshlrev_b32 v40, 16, v41
        v_and_b32 v41, 0xffff0000, v41
        v_mul_f32 v40, v40, v{17+4*j}
        v_mul_f32 v41, v41, v{19+4*j}
        v_cvt_pk_bf16_f32 v{32+j}, v40, v41
        """)
    k(f"""
    ds_write_b128 v1, v[32:35] offset:{CSU + 16*28}
    ds_write2_b64 v1, v[32:33], v[34:35] offset0:57 offset1:58
    """)

def gen_prep():
    k = Kern("prep_kernel")
    k(f"""
    @KID 0
    @INIT
    s_load_dwordx2 s[4:5], s[0:1], {KA_WS}
    @CODEPF
    s_sub_u32 s26, s2, {B_K}
    s_cmp_lt_u32 s26, {N_K}
    s_cbranch_scc1 P_KGEN
    """)
    for r, e in PREP_ROLES: k(f"s_cmp_lt_u32 s2, {e}\ns_cbranch_scc1 {_lab[r]}")
    k(f"""
    s_endpgm
    P_WROLES:
    @KID 3
    @INIT
    s_load_dwordx2 s[4:5], s[0:1], {KA_WS}
    """)
    for r, e in CONV_ROLES: k(f"s_cmp_lt_u32 s2, {e}\ns_cbranch_scc1 {_lab[r]}")
    k("s_endpgm")
    k.label("P_KGEN")
    TB = 16384
    k(f"""
    s_load_dwordx4 s[8:11], s[0:1], {KA_LOGA}
    s_load_dwordx4 s[12:15], s[0:1], {KA_CRE}
    s_load_dwordx2 s[16:17], s[0:1], {KA_LOGDT}
    s_mov_b32 s40, {fl(L2E_HI)}
    s_mov_b32 s41, {fl(L2E_LO)}
    s_mov_b32 s42, {fl(LN2)}
    v_lshrrev_b32 v1, 1, v0
    v_and_b32 v1, 0x60, v1
    v_and_or_b32 v1, v0, 31, v1           ; n = 32 w + (lane & 31)
    s_lshl_b32 s3, s26, 8
    v_lshl_add_u32 v2, v1, 1, s3
    s_lshl_b32 s18, s26, 1
    v_mov_b32 v3, s18
    v_readfirstlane_b32 s19, v0
    s_lshr_b32 s19, s19, 6                ; wave
    s_waitcnt lgkmcnt(0)
    global_load_ushort v4, v2, s[8:9]
    global_load_ushort v8, v3, s[16:17]
    global_load_ushort v5, v2, s[10:11]
    global_load_ushort v6, v2, s[12:13]
    global_load_ushort v7, v2, s[14:15]
    v_and_b32 v20, 15, v0                 ; i / j
    v_bfe_u32 v21, v0, 4, 2               ; g
    ; hi0 = 128*(i>>3) + (i&7)
    v_lshrrev_b32 v23, 3, v20
    v_and_b32 v24, 7, v20
    v_lshl_add_u32 v23, v23, 7, v24
    v_cvt_f32_u32 v30, v23
    ; hi1 = (g''<2 ? 256+2g'' : 256*g'') + 128*((i>>1)&1) + 4*(i&1)
    v_lshrrev_b32 v23, 2, v20
    v_lshlrev_b32 v24, 1, v23
    v_add_u32 v24, 0x100, v24
    v_lshlrev_b32 v25, 8, v23
    v_cmp_gt_u32 vcc, 2, v23
    v_cndmask_b32 v24, v25, v24, vcc
    v_bfe_u32 v25, v20, 1, 1
    v_lshl_add_u32 v24, v25, 7, v24
    v_and_b32 v25, 1, v20
    v_lshl_add_u32 v24, v25, 2, v24
    v_cvt_f32_u32 v31, v24
    v_lshlrev_b32 v23, 7, v20
    v_add_u32 v23, 0x400, v23
    v_cvt_f32_u32 v32, v23                ; hi2
    v_lshlrev_b32 v23, 3, v20
    v_cvt_f32_u32 v33, v23                ; lo
    s_lshl_b32 s20, s19, 9
    v_lshl_add_u32 v34, v21, 6, s20
    v_lshrrev_b32 v23, 1, v21
    v_and_b32 v24, 1, v21
    v_lshlrev_b32 v24, 2, v24
    v_lshl_add_u32 v35, v23, 7, v24
    v_lshl_add_u32 v35, v20, 3, v35
    v_mov_b32 v36, 1
    v_mov_b32 v37, 2
    s_cmp_eq_u32 s19, 0
    s_cbranch_scc1 P_KA
    v_lshl_add_u32 v35, v21, 6, v20
    v_add_u32 v35, 0x200, v35
    v_mov_b32 v36, 16
    v_mov_b32 v37, 32
    s_cmp_lg_u32 s19, 1
    s_cbranch_scc1 P_KA
    v_lshl_add_u32 v23, v20, 2, v21
    v_add_u32 v23, 0x100, v23             ; seg1: 256 + g' + 4j ; o1=2 o2=64
    v_lshlrev_b32 v24, 6, v21
    v_lshl_add_u32 v24, v20, 1, v24
    v_add_u32 v24, 0x100, v24             ; seg2: 384 + 64(g'-2) + 2j ; o1=1 o2=32
    v_cmp_gt_u32 vcc, 2, v21
    v_cndmask_b32 v35, v24, v23, vcc
    v_cndmask_b32 v36, 1, 2, vcc
    v_cndmask_b32 v37, 32, 64, vcc
    P_KA:
    v_add_u32 v38, v36, v37
    v_add_lshl_u32 v36, v36, v35, 1
    v_add_lshl_u32 v37, v37, v35, 1
    v_add_lshl_u32 v38, v38, v35, 1
    v_lshlrev_b32 v35, 1, v35
    v_and_b32 v39, 63, v0
    v_lshlrev_b32 v39, 4, v39             ; lane*16
    s_waitcnt vmcnt(3)
    @STAMP 2
    v_lshlrev_b32 v4, 16, v4
    v_lshlrev_b32 v8, 16, v8
    """)
    exp_acc(k, 10, 8, 16, 17)
    exp_acc(k, 11, 4, 18, 19)
    k(f"""
    v_cvt_pk_bf16_f32 v10, v10, v11
    v_and_b32 v11, 0xffff0000, v10        ; eA
    v_lshlrev_b32 v10, 16, v10            ; dt
    v_mul_f32 v12, v11, v10
    v_mul_f32 v12, s40, v12
    v_sub_f32 v12, 0, v12
    s_waitcnt vmcnt(0)
    v_lshlrev_b32 v5, 16, v5
    v_lshlrev_b32 v6, 16, v6
    v_lshlrev_b32 v7, 16, v7
    v_mul_f32 v13, v5, v10
    v_mul_f32 v13, 0.15915494, v13
    v_add_f32 v10, v10, v10
    v_mul_f32 v14, v6, v10                ; 2*Cre*dt
    v_mul_f32 v15, v7, v10                ; 2*Cim*dt
    v_lshlrev_b32 v9, 4, v1
    ds_write_b128 v9, v[12:15]
    v_max3_f32 v16, |v14|, |v15|, 0
    v_max_f32_dpp v16, v16, v16 row_shr:1 row_mask:0xf bank_mask:0xf
    v_max_f32_dpp v16, v16, v16 row_shr:2 row_mask:0xf bank_mask:0xf
    v_max_f32_dpp v16, v16, v16 row_shr:4 row_mask:0xf bank_mask:0xf
    v_max_f32_dpp v16, v16, v16 row_shr:8 row_mask:0xf bank_mask:0xf
    v_max_f32_dpp v16, v16, v16 row_bcast:15 row_mask:0xa bank_mask:0xf
    v_readlane_b32 s23, v16, 31
    s_mov_b32 s20, 0
    @STAMP 3
    v_mov_b32 v16, s23
    v_bfe_u32 v16, v16, 23, 8
    v_max_u32 v16, 14, v16
    v_sub_u32 v17, 0x8c, v16
    v_cvt_f32_i32 v29, v17                ; kf = 140 - e'
    v_mov_b32 v28, 0
    v_subrev_u32 v16, 13, v16
    v_lshlrev_b32 v27, 23, v16            ; Sinv
    P_KLOOP:
    ds_read_b128 v[52:55], v34
    ds_read_b128 v[56:59], v34 offset:16
    ds_read_b128 v[60:63], v34 offset:32
    ds_read_b128 v[64:67], v34 offset:48
    v_add_u32 v34, 0x100, v34
    """)
    for nn in range(4):
        p = 52 + 4 * nn
        k(f"""
        s_waitcnt lgkmcnt({3-nn})
        v_pk_mul_f32 v[2:3], v[30:31], v[{p}:{p+1}] op_sel_hi:[1,0]
        v_pk_fma_f32 v[4:5], v[32:33], v[{p}:{p+1}], v[28:29] op_sel_hi:[1,0,1]
        v_pk_mul_f32 v[6:7], v[30:31], v[{p}:{p+1}] op_sel:[0,1] op_sel_hi:[1,1]
        v_pk_mul_f32 v[8:9], v[32:33], v[{p}:{p+1}] op_sel:[0,1] op_sel_hi:[1,1]
        v_exp_f32 v2, v2
        v_exp_f32 v3, v3
        v_exp_f32 v4, v4
        v_exp_f32 v5, v5
        v_fract_f32 v6, v6
        v_fract_f32 v7, v7
        v_fract_f32 v8, v8
        v_fract_f32 v9, v9
        v_cos_f32 v10, v6
        v_sin_f32 v11, v6
        v_cos_f32 v12, v7
        v_sin_f32 v13, v7
        v_cos_f32 v14, v8
        v_sin_f32 v15, v8
        v_cos_f32 v16, v9
        v_sin_f32 v17, v9
        v_pk_mul_f32 v[10:11], v[10:11], v[2:3] op_sel_hi:[1,0]
        v_pk_mul_f32 v[12:13], v[12:13], v[2:3] op_sel:[0,1] op_sel_hi:[1,1]
        v_pk_mul_f32 v[14:15], v[14:15], v[4:5] op_sel_hi:[1,0]
        v_pk_mul_f32 v[16:17], v[16:17], v[4:5] op_sel:[0,1] op_sel_hi:[1,1]
        v_cvt_pk_f16_f32 v{68+nn}, v10, v11
        v_cvt_pk_f16_f32 v{72+nn}, v12, v13
        v_cvt_pk_f16_f32 v{76+nn}, v14, v15
        v_pk_mul_f32 v[18:19], v[16:17], v[{p+2}:{p+3}] op_sel_hi:[1,0]
        v_pk_fma_f32 v[18:19], v[16:17], v[{p+2}:{p+3}], v[18:19] op_sel:[1,1,0] op_sel_hi:[0,1,1] neg_lo:[1,0,0]
        v_cvt_pk_f16_f32 v{80+nn}, v18, -v19
        """)
    k(f"""
    s_cmp_eq_u32 s20, 1
    s_cbranch_scc1 P_KL2
    v_mfma_f32_16x16x32_f16 v[40:43], v[68:71], v[80:83], 0
    v_mfma_f32_16x16x32_f16 v[44:47], v[72:75], v[80:83], 0
    v_mfma_f32_16x16x32_f16 v[48:51], v[76:79], v[80:83], 0
    s_mov_b32 s20, 1
    s_branch P_KLOOP
    P_KL2:
    v_mfma_f32_16x16x32_f16 v[40:43], v[68:71], v[80:83], v[40:43]
    v_mfma_f32_16x16x32_f16 v[44:47], v[72:75], v[80:83], v[44:47]
    v_mfma_f32_16x16x32_f16 v[48:51], v[76:79], v[80:83], v[48:51]
    @STAMP 4
    s_mul_i32 s20, s19, 3072
    v_add_u32 v2, s20, v39
    s_lshl_b32 s20, s19, 10
    v_add_u32 v3, s20, v39
    """)
    k("v_mov_b32 v26, v27")
    for r in range(40, 52, 2): k(f"v_pk_mul_f32 v[{r}:{r+1}], v[{r}:{r+1}], v[26:27]")
    k(f"""
    ds_write_b128 v2, v[40:43] offset:4096
    ds_write_b128 v2, v[44:47] offset:5120
    ds_write_b128 v2, v[48:51] offset:6144
    s_mul_i32 s3, s26, {KP_STRIDE}
    s_add_u32 s3, s3, {KP}
    v_lshlrev_b32 v1, 4, v0
    v_add_u32 v8, s3, v1
    s_waitcnt lgkmcnt(0)
    s_barrier
    s_cmp_eq_u32 s19, 3
    s_cbranch_scc1 P_KS
    ds_read_b128 v[40:43], v3 offset:4096
    ds_read_b128 v[44:47], v3 offset:{4096+3072}
    ds_read_b128 v[48:51], v3 offset:{4096+6144}
    ds_read_b128 v[4:7], v3 offset:{4096+9216}
    s_waitcnt lgkmcnt(2)
    v_pk_add_f32 v[40:41], v[40:41], v[44:45]
    v_pk_add_f32 v[42:43], v[42:43], v[46:47]
    s_waitcnt lgkmcnt(0)
    v_pk_add_f32 v[48:49], v[48:49], v[4:5]
    v_pk_add_f32 v[50:51], v[50:51], v[6:7]
    v_pk_add_f32 v[40:41], v[40:41], v[48:49]
    v_pk_add_f32 v[42:43], v[42:43], v[50:51]
    v_cvt_pk_bf16_f32 v40, v40, v41
    v_cvt_pk_bf16_f32 v42, v42, v43
    ds_write_b16 v35, v40 offset:{TB}
    ds_write_b16_d16_hi v36, v40 offset:{TB}
    ds_write_b16 v37, v42 offset:{TB}
    ds_write_b16_d16_hi v38, v42 offset:{TB}
    P_KS:
    s_waitcnt lgkmcnt(0)
    s_barrier
    @STAMP 5
    v_cmp_gt_u32 vcc, 0x60, v0
    s_and_saveexec_b64 s[22:23], vcc
    s_cbranch_execz P_KEND
    ds_read_b128 v[40:43], v1 offset:{TB}
    s_waitcnt lgkmcnt(0)
    global_store_dwordx4 v8, v[40:43], s[4:5]
    P_KEND:
    @FLUSH 6
    s_endpgm
    """)
    k.label("P_TR")
    PITCH = 144
    k(f"""
    s_load_dwordx2 s[8:9], s[0:1], {KA_U}
    s_sub_u32 s3, s2, {B_T}
    s_lshr_b32 s10, s3, 3                 ; lt (0..31)
    s_and_b32 s11, s3, 7                  ; dt (0..7)
    v_lshrrev_b32 v1, 3, v0               ; row 0..31
    v_and_b32 v2, 7, v0                   ; chunk
    s_lshl_b32 s12, s10, 16               ; lt*64*1024
    s_lshl_b32 s13, s11, 7
    s_add_u32 s12, s12, s13
    v_lshlrev_b32 v3, 10, v1
    v_lshl_add_u32 v3, v2, 4, v3
    v_add_u32 v3, s12, v3
    v_add_u32 v4, 0x8000, v3
    s_waitcnt lgkmcnt(0)
    global_load_dwordx4 v[8:11], v3, s[8:9]
    global_load_dwordx4 v[12:15], v4, s[8:9]
    v_lshrrev_b32 v41, 6, v0
    v_and_b32 v42, 63, v0
    s_lshl_b32 s14, s3, 13                ; 8 rows * 1024
    v_lshlrev_b32 v43, 11, v41
    v_lshl_add_u32 v43, v42, 4, v43
    v_add_u32 v43, s14, v43
    global_load_dwordx4 v[48:51], v43, s[8:9]
    global_load_dwordx4 v[52:55], v43, s[8:9] offset:1024
    v_mul_u32_u24 v5, {PITCH}, v1
    v_lshl_add_u32 v5, v2, 4, v5
    v_and_b32 v6, 15, v0                  ; lam
    v_bfe_u32 v7, v0, 4, 2                ; g
    v_lshrrev_b32 v16, 6, v0              ; w
    v_lshrrev_b32 v17, 2, v6              ; r = lam>>2
    v_lshl_add_u32 v17, v7, 3, v17        ; row = 8g + r
    v_mul_u32_u24 v17, {PITCH}, v17
    v_and_b32 v18, 3, v6
    v_lshl_add_u32 v17, v18, 3, v17       ; + c*8
    v_lshl_add_u32 v17, v16, 5, v17       ; + w*32 bytes
    s_mul_i32 s12, s11, {64*XP}
    s_lshl_b32 s13, s10, 7
    s_add_u32 s12, s12, s13
    s_add_u32 s12, s12, {XT0}
    v_lshl_add_u32 v19, v16, 4, v6
    v_mul_u32_u24 v19, {XP}, v19
    v_lshl_add_u32 v19, v7, 4, v19
    v_add_u32 v19, s12, v19
    s_waitcnt vmcnt(2)
    ds_write_b128 v5, v[8:11]
    ds_write_b128 v5, v[12:15] offset:{32*PITCH}
    s_waitcnt lgkmcnt(0)
    s_barrier
    ds_read_b64_tr_b16 v[8:9], v17
    ds_read_b64_tr_b16 v[10:11], v17 offset:{4*PITCH}
    ds_read_b64_tr_b16 v[12:13], v17 offset:{32*PITCH}
    ds_read_b64_tr_b16 v[14:15], v17 offset:{36*PITCH}
    s_waitcnt lgkmcnt(0)
    global_store_dwordx4 v19, v[8:11], s[4:5] {PREP_X_POL}
    global_store_dwordx4 v19, v[12:15], s[4:5] offset:64 {PREP_X_POL}
    """)
    k(f"""
    v_mov_b32 v2, v42
    s_lshl_b32 s10, s3, 4
    v_lshlrev_b32 v4, 12, v41
    v_add_u32 v4, s10, v4                 ; w*4096 + wg*16
    v_add_u32 v5, {ST0}, v4
    v_add_u32 v6, {ST1}, v4
    s_waitcnt vmcnt(2)
    """)
    for row, (base, sm, sq) in enumerate([(48, 20, 21), (52, 22, 23)]):
        for j in range(4):
            k(f"v_lshlrev_b32 v16, 16, v{base+j}")
            k(f"v_and_b32 v17, 0xffff0000, v{base+j}")
            if j == 0:
                k(f"v_add_f32 v{sm}, v16, v17")
                k(f"v_mul_f32 v{sq}, v16, v16")
            else:
                k(f"v_add_f32 v{sm}, v{sm}, v16")
                k(f"v_add_f32 v{sm}, v{sm}, v17")
                k(f"v_fmac_f32 v{sq}, v16, v16")
            k(f"v_fmac_f32 v{sq}, v17, v17")
    for sh in ("row_shr:1", "row_shr:2", "row_shr:4", "row_shr:8"):
        for r in range(20, 24):
            k(f"v_add_f32_dpp v{r}, v{r}, v{r} {sh} row_mask:0xf bank_mask:0xf bound_ctrl:0")
    for r in range(20, 24):
        k(f"v_add_f32_dpp v{r}, v{r}, v{r} row_bcast:15 row_mask:0xa bank_mask:0xf")
    for r in range(20, 24):
        k(f"v_add_f32_dpp v{r}, v{r}, v{r} row_bcast:31 row_mask:0xc bank_mask:0xf")
    k(f"""
    v_mov_b32 v24, 0
    v_mov_b32 v25, 0
    v_mov_b32 v26, 0
    v_mov_b32 v27, 0
    s_lshl_b32 s10, s3, 9
    s_add_u32 s10, s10, {ZR}
    v_and_b32 v7, 31, v0
    v_lshl_add_u32 v7, v7, 4, s10
    global_store_dwordx4 v7, v[24:27], s[4:5]
    v_cmp_eq_u32 vcc, 63, v2
    s_and_saveexec_b64 s[22:23], vcc
    global_store_dwordx4 v5, v[20:23], s[4:5]
    global_store_dwordx4 v6, v[24:27], s[4:5]
    @FLUSH 2
    s_endpgm
    """)
    k.label("P_W")
    WPITCH = 400
    k(f"""
    s_load_dwordx4 s[8:11], s[0:1], {KA_WG}
    s_sub_u32 s3, s2, {B_W}
    s_lshr_b32 s12, s3, 4                 ; ft
    s_and_b32 s13, s3, 15                 ; s
    """)
    k(f"""
    s_mul_i32 s14, s13, {32*F*2}
    s_mul_i32 s15, s12, 192
    s_add_u32 s14, s14, s15
    s_mul_i32 s16, s12, 12
    s_mov_b32 s17, 0x15555556
    """)
    k(f"v_mov_b32 v5, {F//8}")
    for i in range(2):
        k(f"""
        v_add_u32 v1, {256*i}, v0
        v_mul_hi_u32 v2, v1, s17
        v_mul_u32_u24 v3, 12, v2
        v_sub_u32 v3, v1, v3                  ; chunk
        v_mul_u32_u24 v4, {F*2}, v2
        v_lshl_add_u32 v4, v3, 4, v4
        v_add_u32 v{40+i}, s14, v4
        v_mul_u32_u24 v4, {WPITCH}, v2
        v_lshl_add_u32 v{42+i}, v3, 5, v4
        v_add_u32 v3, s16, v3
        v_cmp_gt_u32 s[{24+2*i}:{25+2*i}], v5, v3
        """)
    for r in range(8, 24): k(f"v_mov_b32 v{r}, 0")
    k(f"""
    v_cmp_gt_u32 vcc, 0x80, v0
    s_and_b64 s[26:27], s[26:27], vcc
    s_waitcnt lgkmcnt(0)
    s_mov_b64 s[28:29], exec
    s_mov_b64 exec, s[24:25]
    s_cbranch_execz P_W1
    global_load_dwordx4 v[8:11], v40, s[8:9]
    global_load_dwordx4 v[12:15], v40, s[10:11]
    P_W1:
    s_mov_b64 exec, s[26:27]
    s_cbranch_execz P_W2
    global_load_dwordx4 v[16:19], v41, s[8:9]
    global_load_dwordx4 v[20:23], v41, s[10:11]
    P_W2:
    s_mov_b64 exec, s[28:29]
    s_waitcnt vmcnt(0)
    ds_write2_b32 v42, v8, v9 offset0:0 offset1:2
    ds_write2_b32 v42, v10, v11 offset0:4 offset1:6
    ds_write2_b32 v42, v12, v13 offset0:1 offset1:3
    ds_write2_b32 v42, v14, v15 offset0:5 offset1:7
    s_and_saveexec_b64 s[28:29], vcc
    s_cbranch_execz P_W3
    ds_write2_b32 v43, v16, v17 offset0:0 offset1:2
    ds_write2_b32 v43, v18, v19 offset0:4 offset1:6
    ds_write2_b32 v43, v20, v21 offset0:1 offset1:3
    ds_write2_b32 v43, v22, v23 offset0:5 offset1:7
    P_W3:
    s_mov_b64 exec, s[28:29]
    v_and_b32 v1, 15, v0
    v_bfe_u32 v2, v0, 4, 2
    v_lshrrev_b32 v3, 2, v1
    v_lshl_add_u32 v3, v2, 2, v3
    v_mul_u32_u24 v3, {WPITCH}, v3
    v_and_b32 v4, 3, v1
    v_lshl_add_u32 v3, v4, 3, v3
    v_readfirstlane_b32 s18, v0
    s_lshr_b32 s18, s18, 6                ; w
    s_lshl_b32 s19, s18, 7
    s_mov_b32 s20, 32
    s_cmp_eq_u32 s18, 3
    s_cselect_b32 s19, 96, s19
    s_cselect_b32 s20, 128, s20
    v_add_u32 v3, s19, v3
    v_add_u32 v4, s20, v3
    v_add_u32 v5, s20, v4
    s_lshl_b32 s21, s12, 2
    s_add_u32 s21, s21, s18
    s_lshl_b32 s21, s21, 4
    s_add_u32 s21, s21, s13
    s_mul_i32 s21, s21, 3072
    s_add_u32 s21, s21, {WP}
    v_and_b32 v6, 63, v0
    v_lshlrev_b32 v6, 4, v6
    v_add_u32 v6, s21, v6
    v_add_u32 v7, 0x400, v6
    v_add_u32 v24, 0x800, v6
    s_waitcnt lgkmcnt(0)
    s_barrier
    ds_read_b64_tr_b16 v[8:9], v3
    ds_read_b64_tr_b16 v[10:11], v3 offset:{16*WPITCH}
    ds_read_b64_tr_b16 v[12:13], v4
    ds_read_b64_tr_b16 v[14:15], v4 offset:{16*WPITCH}
    ds_read_b64_tr_b16 v[16:17], v5
    ds_read_b64_tr_b16 v[18:19], v5 offset:{16*WPITCH}
    s_waitcnt lgkmcnt(0)
    global_store_dwordx4 v6, v[8:11], s[4:5] {PREP_W_POL}
    global_store_dwordx4 v7, v[12:15], s[4:5] {PREP_W_POL}
    global_store_dwordx4 v24, v[16:19], s[4:5] {PREP_W_POL}
    @FLUSH 2
    s_endpgm
    """)
    k.label("P_D")
    DPITCH = 272
    k(f"""
    s_load_dwordx2 s[8:9], s[0:1], {KA_WD}
    s_sub_u32 s3, s2, {B_D}
    s_lshr_b32 s12, s3, 2                 ; ks 0..43
    s_and_b32 s13, s3, 3                  ; dq
    v_lshrrev_b32 v1, 4, v0               ; row 0..15 (+16)
    v_and_b32 v2, 15, v0                  ; chunk
    s_lshl_b32 s14, s12, 15               ; ks*32*1024
    s_lshl_b32 s15, s13, 8
    s_add_u32 s14, s14, s15
    v_lshlrev_b32 v3, 10, v1
    v_lshl_add_u32 v3, v2, 4, v3
    v_add_u32 v3, s14, v3
    v_add_u32 v4, 0x4000, v3
    """)
    for r in range(8, 16): k(f"v_mov_b32 v{r}, 0")
    k(f"""
    s_waitcnt lgkmcnt(0)
    s_cmp_ge_u32 s12, 43
    s_cbranch_scc1 P_D1
    global_load_dwordx4 v[8:11], v3, s[8:9]
    global_load_dwordx4 v[12:15], v4, s[8:9]
    P_D1:
    v_bfe_u32 v5, v1, 1, 2                ; g
    v_lshrrev_b32 v6, 3, v1               ; dw (0/1)
    v_and_b32 v7, 1, v1
    v_lshl_add_u32 v7, v6, 1, v7
    v_lshl_add_u32 v7, v5, 3, v7          ; rho
    v_mul_u32_u24 v7, {DPITCH}, v7
    v_lshl_add_u32 v7, v2, 4, v7
    v_and_b32 v1, 15, v0
    v_bfe_u32 v2, v0, 4, 2
    v_lshrrev_b32 v16, 6, v0
    v_lshrrev_b32 v3, 2, v1
    v_lshl_add_u32 v3, v2, 3, v3          ; row = 8g + r
    v_mul_u32_u24 v3, {DPITCH}, v3
    v_and_b32 v4, 3, v1
    v_lshl_add_u32 v3, v4, 3, v3          ; + c*8 bytes (4 d)
    v_lshl_add_u32 v3, v16, 6, v3         ; + w*64
    s_lshl_b32 s16, s13, 3
    v_lshl_add_u32 v17, v16, 1, s16
    v_mul_u32_u24 v17, {NKS2*1024}, v17
    v_and_b32 v18, 63, v0
    v_lshl_add_u32 v17, v18, 4, v17
    s_lshl_b32 s16, s12, 10
    s_add_u32 s16, s16, {WD}
    v_add_u32 v17, s16, v17
    v_add_u32 v18, {NKS2*1024}, v17
    s_waitcnt vmcnt(0)
    ds_write_b128 v7, v[8:11]
    ds_write_b128 v7, v[12:15] offset:{4*DPITCH}
    s_waitcnt lgkmcnt(0)
    s_barrier
    ds_read_b64_tr_b16 v[8:9], v3
    ds_read_b64_tr_b16 v[10:11], v3 offset:{4*DPITCH}
    ds_read_b64_tr_b16 v[12:13], v3 offset:32
    ds_read_b64_tr_b16 v[14:15], v3 offset:{4*DPITCH+32}
    s_waitcnt lgkmcnt(0)
    global_store_dwordx4 v17, v[8:11], s[4:5] {PREP_W_POL}
    global_store_dwordx4 v18, v[12:15], s[4:5] {PREP_W_POL}
    @FLUSH 2
    s_endpgm
    """)
    k.label("P_C")
    k(f"""
    s_load_dwordx4 s[8:11], s[0:1], {KA_WG}
    s_sub_u32 s3, s2, {B_C}
    s_and_b32 s12, s3, 1                  ; mat
    s_lshr_b32 s13, s3, 1                 ; cb 0..44
    v_lshrrev_b32 v1, 2, v0
    v_and_b32 v2, 3, v0                   ; chunk
    s_lshl_b32 s14, s13, 6
    v_mul_u32_u24 v4, {F*2}, v1
    v_lshl_add_u32 v4, v2, 4, v4
    v_add_u32 v4, s14, v4
    """)
    for r in range(8, 16): k(f"v_mov_b32 v{r}, 0")
    k(f"""
    s_waitcnt lgkmcnt(0)
    s_cmp_eq_u32 s12, 1
    s_cselect_b32 s8, s10, s8
    s_cselect_b32 s9, s11, s9
    s_cmp_ge_u32 s13, 43
    s_cbranch_scc1 P_C2
    """)
    for i in range(8):
        k(f"global_load_dwordx4 v[{16+4*i}:{19+4*i}], v4, s[8:9]")
        if i < 7: k(f"v_add_u32 v4, {64*F*2}, v4")
    for i in range(8):
        k(f"s_waitcnt vmcnt({7-i})")
        for j in range(4):
            k(f"v_lshlrev_b32 v6, 16, v{16+4*i+j}")
            k(f"v_and_b32 v7, 0xffff0000, v{16+4*i+j}")
            k(f"v_pk_add_f32 v[{8+2*j}:{9+2*j}], v[{8+2*j}:{9+2*j}], v[6:7]")
    for sh in ("row_shr:4", "row_shr:8"):
        for r in range(8, 16):
            k(f"v_add_f32_dpp v{r}, v{r}, v{r} {sh} row_mask:0xf bank_mask:0xf bound_ctrl:0")
    k(f"""
    P_C2:
    v_lshrrev_b32 v6, 4, v0
    v_lshlrev_b32 v6, 7, v6
    v_lshl_add_u32 v6, v2, 5, v6
    v_and_b32 v7, 12, v0
    v_cmp_eq_u32 vcc, 12, v7
    s_and_saveexec_b64 s[46:47], vcc
    ds_write_b128 v6, v[8:11]
    ds_write_b128 v6, v[12:15] offset:16
    s_mov_b64 exec, s[46:47]
    s_waitcnt lgkmcnt(0)
    s_barrier
    v_cmp_gt_u32 vcc, 32, v0
    s_and_saveexec_b64 s[46:47], vcc
    s_cbranch_execz P_C3
    v_lshlrev_b32 v6, 2, v0
    """)
    for i in range(16):
        k(f"ds_read_b32 v{16+i}, v6 offset:{128*i}")
    k(f"""
    s_mul_i32 s14, s13, 0x5556
    s_lshr_b32 s14, s14, 16               ; ft
    s_mul_i32 s15, s14, 3
    s_sub_u32 s15, s13, s15               ; j
    s_mul_i32 s16, s15, 3
    s_add_u32 s17, s15, 9
    v_lshrrev_b32 v5, 3, v0               ; dw
    v_add_u32 v7, s16, v5
    v_mov_b32 v8, s17
    v_cmp_eq_u32 vcc, 3, v5
    v_cndmask_b32 v7, v7, v8, vcc         ; w*3+tau
    s_mul_i32 s14, s14, 12
    v_add_u32 v7, s14, v7
    v_lshlrev_b32 v7, 4, v7
    v_bfe_u32 v8, v0, 1, 2
    v_lshl_add_u32 v7, v8, 2, v7
    v_and_b32 v8, 1, v0
    v_add_u32 v7, v7, v8
    s_lshl_b32 s14, s12, 1
    v_add_u32 v7, s14, v7
    v_lshlrev_b32 v7, 2, v7
    v_add_u32 v7, {CSUM}, v7
    s_waitcnt lgkmcnt(0)
    """)
    for st in (8, 4, 2, 1):
        for i in range(st):
            k(f"v_add_f32 v{16+i}, v{16+i}, v{16+i+st}")
    k(f"""
    global_store_dword v7, v16, s[4:5]
    P_C3:
    @FLUSH 2
    s_endpgm
    """)
    return k, dict(vgpr=96, sgpr=48, accum=96, grid=PREP_WGS, block=256, lds=PREP_LDS)


def stats_pair(k, sa, qa, sb, qb, t, keep=None):
    for s_, q_ in ((sa, qa), (sb, qb)):
        k(f"""
        v_mul_f32 v{s_}, s43, v{s_}
        v_mul_f32 v{q_}, s43, v{q_}
        v_fma_f32 v{q_}, -v{s_}, v{s_}, v{q_}
        v_max_f32 v{q_}, 0, v{q_}
        v_cvt_pk_bf16_f32 v{q_}, v{s_}, v{q_}
        v_lshlrev_b32 v{s_}, 16, v{q_}
        v_and_b32 v{q_}, 0xffff0000, v{q_}
        v_add_f32 v{q_}, s44, v{q_}
        """)
    k(f"""
    v_cvt_pk_bf16_f32 v{t}, v{qa}, v{qb}
    v_lshlrev_b32 v{qa}, 16, v{t}
    v_and_b32 v{qb}, 0xffff0000, v{t}
    v_sqrt_f32 v{qa}, v{qa}
    v_sqrt_f32 v{qb}, v{qb}
    v_cvt_pk_bf16_f32 v{t}, v{qa}, v{qb}
    v_lshlrev_b32 v{keep[0] if keep else qa}, 16, v{t}
    v_and_b32 v{keep[1] if keep else qb}, 0xffff0000, v{t}
    v_rcp_f32 v{qa}, v{keep[0] if keep else qa}
    v_rcp_f32 v{qb}, v{keep[1] if keep else qb}
    """)


def conv_stats_norm(k, wait_x):
    for i in range(4):
        b = 16 + 4 * i
        k(f"""
        v_pk_mul_f32 v[{b}:{b+1}], v[{b}:{b+1}], s[46:47]
        v_pk_mul_f32 v[{b+2}:{b+3}], v[{b+2}:{b+3}], s[46:47]
        v_fma_f32 v{b+1}, -v{b}, v{b}, v{b+1}
        v_fma_f32 v{b+3}, -v{b+2}, v{b+2}, v{b+3}
        v_cvt_pk_bf16_f32 v{b}, v{b}, v{b+2}          ; (m_a, m_b)
        v_cvt_pk_bf16_f32 v{b+2}, v{b+1}, v{b+3}
        v_and_b32 v{b+1}, 0xffff0000, v{b}
        v_lshlrev_b32 v{b}, 16, v{b}                  ; v[b:b+1] = (m_a, m_b) f32
        v_and_b32 v{b+3}, 0xffff0000, v{b+2}
        v_lshlrev_b32 v{b+2}, 16, v{b+2}
        v_max_f32 v{b+2}, 0, v{b+2}
        v_max_f32 v{b+3}, 0, v{b+3}
        v_pk_add_f32 v[{b+2}:{b+3}], v[{b+2}:{b+3}], s[44:45]
        v_cvt_pk_bf16_f32 v{b+2}, v{b+2}, v{b+3}
        v_and_b32 v{b+3}, 0xffff0000, v{b+2}
        v_lshlrev_b32 v{b+2}, 16, v{b+2}
        v_sqrt_f32 v{b+2}, v{b+2}
        v_sqrt_f32 v{b+3}, v{b+3}
        """)
    for i in range(4):
        b = 16 + 4 * i
        k(f"""
        v_cvt_pk_bf16_f32 v{b+2}, v{b+2}, v{b+3}
        v_and_b32 v{b+3}, 0xffff0000, v{b+2}
        v_lshlrev_b32 v{b+2}, 16, v{b+2}
        v_rcp_f32 v{b+2}, v{b+2}
        v_rcp_f32 v{b+3}, v{b+3}
        """)
    k(wait_x)
    for j in range(4):
        b = 16 + 4 * j
        k(f"""
        v_lshlrev_b32 v40, 16, v{12+j}
        v_and_b32 v41, 0xffff0000, v{12+j}
        v_pk_add_f32 v[40:41], v[40:41], v[{b}:{b+1}] neg_lo:[0,1] neg_hi:[0,1]
        v_cvt_pk_bf16_f32 v41, v40, v41
        v_lshlrev_b32 v40, 16, v41
        v_and_b32 v41, 0xffff0000, v41
        v_pk_mul_f32 v[40:41], v[40:41], v[{b+2}:{b+3}]
        v_cvt_pk_bf16_f32 v{32+j}, v40, v41
        """)
    k(f"""
    ds_write_b128 v1, v[32:35] offset:{CSU + 16*28}
    ds_write2_b64 v1, v[32:33], v[34:35] offset0:57 offset1:58
    """)

def gen_conv():
    k = Kern("conv")
    k(f"""
    conv1_kernel:
    s_cmp_ge_u32 s2, 512
    s_cbranch_scc1 P_WROLES
    s_mov_b32 s34, {0 if 'W' in WINC else 1}
    s_mov_b32 s30, {XT0}
    s_mov_b32 s31, {ST0}
    s_mov_b32 s32, {X1T}
    s_mov_b32 s33, {HB}
    @KID 1
    CONV_BODY:
    s_cmp_ge_u32 s2, 512
    s_cbranch_scc1 CONV_END
    @INIT
    s_load_dwordx2 s[4:5], s[0:1], {KA_WS}
    s_load_dwordx2 s[6:7], s[0:1], {KA_DSKIP}
    """)
    conv_setup(k)
    k(f"""
    s_lshl_b32 s18, s17, 11
    s_add_u32 s18, s18, {CRED}
    """)
    conv_p3(k)
    k("""
    @STAMP 10
    s_waitcnt lgkmcnt(0)
    @STAMP 11
    s_load_dword s20, s[6:7], s16
    """)
    srd(k, 8, 4, WS_BYTES)
    k(f"""
    s_mov_b32 m0, s18
    s_nop 0
    buffer_load_dwordx4 v6, s[8:11], s15 offen lds
    buffer_load_dwordx4 v6, s[8:11], s15 offen offset:1024 lds
    """)
    conv_loads(k)
    npf = 0
    k(f"""
    @STAMP 12
    @STAMP 2
    s_waitcnt vmcnt({5 + npf})
    """)
    for e in range(11):
        k(f"ds_read_u16 v{48+e}, v{48+e}")
    conv_expand(k)
    k(f"""
    s_waitcnt vmcnt({1 + npf})
    @STAMP 3
    """)
    for i in range(4):
        stats_pair(k, 16 + 4*i, 17 + 4*i, 18 + 4*i, 19 + 4*i, 40)
    k(f"s_waitcnt vmcnt({npf})")
    conv_norm(k)
    if CPF:
        if LOCALMAP0:
            k(f"""
            s_lshr_b32 s21, s2, 3
            s_mul_i32 s22, s21, 49152
            s_mul_i32 s23, s17, {PFQ}
            s_add_u32 s22, s22, s23
            s_add_u32 s22, s22, {WP}
            v_min_u32 v38, {PFQ // 128 - 1}, v5
            v_lshlrev_b32 v38, 7, v38
            buffer_load_dword v150, v38, s[8:11], s22 offen
            """)
        else:
            k(f"""
            s_lshr_b32 s21, s2, 3
            s_lshl_b32 s21, s21, 2
            s_add_u32 s21, s21, s17
            s_mul_i32 s22, s21, 6144
            s_and_b32 s23, s2, 1
            s_mul_i32 s23, s23, {8*196608}
            s_add_u32 s22, s22, s23
            s_add_u32 s22, s22, {WP}
            v_lshlrev_b32 v38, 7, v5
            s_cmp_eq_u32 s34, 0
            s_cbranch_scc1 CONV_NOW
            buffer_load_dword v150, v38, s[8:11], s22 offen
            CONV_NOW:
            """)
    if SENT:
        k(f"""
        v_mov_b32 v40, -1
        v_mov_b32 v41, -1
        v_mov_b32 v42, -1
        v_mov_b32 v43, -1
        s_mul_i32 s21, s2, 11520
        s_add_u32 s21, s21, s33
        v_min_u32 v38, {11520 - 8192 - 16}, v1
        buffer_store_dwordx4 v[40:43], v1, s[8:11], s21 offen {POISON_POL}
        s_add_u32 s21, s21, 0x1000
        buffer_store_dwordx4 v[40:43], v1, s[8:11], s21 offen {POISON_POL}
        s_add_u32 s21, s21, 0x1000
        buffer_store_dwordx4 v[40:43], v38, s[8:11], s21 offen {POISON_POL}
        """)
    if CODEPF2:
        k(f"""
        s_cmp_ge_u32 s2, 8
        s_cbranch_scc1 CONV_NOPF
        s_getpc_b64 s[22:23]
        v_lshlrev_b32 v38, 6, v0
        global_load_dword v39, v38, s[22:23]
        CONV_NOPF:
        """)
    k("""
    @STAMP 4
    s_waitcnt lgkmcnt(0)
    s_barrier
    CONV_MAIN2:
    @STAMP 5
    """)
    if CONV_NOPK: k = NoPk(k)
    KF = 48; UB = 16; ACC = 112
    pend = []
    def rd(tag):
        if tag[0] == "U":
            mu = int(tag[1:]); r = UB + 4 * (mu & 3)
            k(f"ds_read_b128 v[{r}:{r+3}], v9 offset:{256*mu}")
        else:
            t = int(tag[1:]); r = KF + 4 * t
            k(f"ds_read_b128 v[{r}:{r+3}], v7 offset:{256*t}")
        pend.append(tag)
    def need(tags):
        idx = max([pend.index(t) for t in tags if t in pend], default=-1)
        if idx >= 0:
            k(f"s_waitcnt lgkmcnt({len(pend) - idx - 1})")
            del pend[:idx + 1]
    queue = ["U0"] + [f"K{t}" for t in range(1, 16, 2)] + ["U1"] + [f"K{t}" for t in range(0, 16, 2)] + ["U2", "U3"]
    for t in queue[:12]: rd(t)
    queue = queue[12:]
    for mu in range(16):
        a = UB + 4 * (mu & 3)
        q0 = max(0, -(-(mu - 1) // 2))
        for q in range(q0, 8):
            tp = 2 * q + 1 - mu
            need([f"U{mu}", f"K{tp}"])
            c = "0" if mu == 0 else f"v[{ACC+4*q}:{ACC+4*q+3}]"
            k(f"v_mfma_f32_16x16x32_bf16 v[{ACC+4*q}:{ACC+4*q+3}], v[{KF+4*tp}:{KF+4*tp+3}], v[{a}:{a+3}], {c}")
            if queue: rd(queue.pop(0))
        if mu + 4 < 16: rd(f"U{mu+4}")
        if mu & 1 and mu >= 3:
            q = (mu - 3) // 2
            k(f"ds_write_b128 v10, v[{ACC+4*q}:{ACC+4*q+3}] offset:{(CRED + (q>>1)*8192 if q < 6 else KL) + (q&1)*1024}")
            pend.append("W")
        if mu == 6:
            assert not any(t[0] == "K" for t in pend + queue)
            k("s_barrier")
    k("@STAMP 6")
    k(f"""
    s_and_b32 s21, s20, 0xffff0000
    s_lshl_b32 s20, s20, 16
    s_bitcmp1_b32 s2, 0
    s_cselect_b32 s20, s21, s20
    """)
    for p in range(4):
        k(f"""
        v_lshlrev_b32 v40, 16, v{32+p}
        v_and_b32 v41, 0xffff0000, v{32+p}
        v_mul_f32 v40, s20, v40
        v_mul_f32 v41, s20, v41
        v_cvt_pk_bf16_f32 v41, v40, v41
        """)
        if p == 0:
            k(f"ds_write_b128 v10, v[{ACC+28}:{ACC+31}] offset:{KL + 1024}")
        k(f"""
        v_lshlrev_b32 v{48+2*p}, 16, v41
        v_and_b32 v{49+2*p}, 0xffff0000, v41
        v_lshlrev_b32 v{56+2*p}, 16, v{12+p}
        v_and_b32 v{57+2*p}, 0xffff0000, v{12+p}
        """)
    k("""
    s_waitcnt lgkmcnt(0)
    s_barrier
    @STAMP 7
    """)
    for src in range(4):
        for t in range(2):
            k(f"ds_read_b128 v[{ACC+8*src+4*t}:{ACC+8*src+4*t+3}], v11 offset:{src*2048 + t*16}")
    k("s_waitcnt lgkmcnt(4)")
    for r in range(0, 8, 2):
        k(f"v_pk_add_f32 v[{ACC+r}:{ACC+r+1}], v[{ACC+r}:{ACC+r+1}], v[{ACC+8+r}:{ACC+9+r}]")
    k("s_waitcnt lgkmcnt(0)")
    for r in range(0, 8, 2):
        k(f"v_pk_add_f32 v[{ACC+16+r}:{ACC+17+r}], v[{ACC+16+r}:{ACC+17+r}], v[{ACC+24+r}:{ACC+25+r}]")
    for r in range(0, 8, 2):
        k(f"v_pk_add_f32 v[{ACC+r}:{ACC+r+1}], v[{ACC+r}:{ACC+r+1}], v[{ACC+16+r}:{ACC+17+r}]")
    k("@STAMP 8")
    for p in range(4):
        y0, y1 = ACC + 2*p, ACC + 2*p + 1
        k(f"""
        v_cvt_pk_bf16_f32 v{y1}, v{y0}, v{y1}
        v_lshlrev_b32 v{y0}, 16, v{y1}
        v_and_b32 v{y1}, 0xffff0000, v{y1}
        v_pk_add_f32 v[{y0}:{y1}], v[{y0}:{y1}], v[{48+2*p}:{49+2*p}]
        v_cvt_pk_bf16_f32 v{y1}, v{y0}, v{y1}
        v_lshlrev_b32 v{y0}, 16, v{y1}
        v_and_b32 v{y1}, 0xffff0000, v{y1}
        v_pk_add_f32 v[{y0}:{y1}], v[{y0}:{y1}], v[{56+2*p}:{57+2*p}]
        v_cvt_pk_bf16_f32 v{44+p}, v{y0}, v{y1}
        """)
    k(f"""
    buffer_store_dwordx4 v[44:47], v1, s[8:11], s14 offen {CONV_ST}
    @STAMP 9
    @FLUSH 13
    CONV_END:
    s_endpgm
    .p2align 8
    conv2_kernel:
    s_mov_b32 s34, 1
    s_mov_b32 s30, {X2T}
    s_mov_b32 s31, {ST1}
    s_mov_b32 s32, {X3T}
    s_mov_b32 s33, {HB1}
    @KID 4
    s_branch CONV_BODY
    """)
    if CONV_NOPK: k = k.k
    info = dict(vgpr=152, sgpr=48, accum=152, grid=512, block=256, lds=CONV_LDS)
    return k, info

MLP_LDS = 163840
H_LD = os.environ.get('H_LD', 'sc1')
M_PRE2 = int(os.environ.get('M_PRE2', '5'))
M_OLD = int(os.environ.get('M_OLD', '1'))
M_LOOK = int(os.environ.get('M_LOOK', '5'))
M_TOUCH = int(os.environ.get('M_TOUCH', '0'))
M_PRE = int(os.environ.get('M_PRE', '8'))
M_OPS = int(os.environ.get('M_OPS', '3'))
M_RAMP = int(os.environ.get('M_RAMP', '5'))
M_LATE = int(os.environ.get('M_LATE', '-100'))
LOCALMAP = int(os.environ.get('LOCALMAP', '0'))
LOC_POL = os.environ.get('LOC_POL', 'sc1')
IDT = ZR + 0x4000
M_PRIO = int(os.environ.get('M_PRIO', '0'))
M_FIRST = int(os.environ.get('M_FIRST', '1'))
M_WDM = int(os.environ.get('M_WDM', '6'))
M_WDE = int(os.environ.get('M_WDE', '2'))
M_AHEAD2 = int(os.environ.get('M_AHEAD2', '6'))
SPIN_MAX = 1 << 20
SLOT = 40960
def gen_mlp():
    k = Kern("mlp")
    ACC = 0
    FR = 48
    XA = 104
    WA = 112
    CSR = 114
    STV = 126
    RES = 130
    VDMA, VW, VT0, VT1, VT2 = 134, 135, 136, 137, 138
    SA = 139
    VRES = 142; VSTX = 143; VPUB = 144; VCS = 145
    MR = 146
    TMP = 150
    NV = 168
    VID = TMP + 14
    def wdreg(i): return f"a[{4*i}:{4*i+3}]"
    k(f"""
    mlpa_kernel:
    s_mov_b32 s30, {X1T}
    s_mov_b32 s31, {HB}
    s_mov_b32 s33, {STX}
    s_mov_b32 s34, {FLG}
    s_mov_b32 s35, 0
    s_mov_b32 s56, {IDT}
    @KID 2
    M_BODY:
    s_cmp_ge_u32 s2, 256
    s_cbranch_scc1 M_END
    @INIT
    s_load_dwordx2 s[4:5], s[0:1], {KA_WS}
    s_load_dwordx2 s[6:7], s[0:1], {KA_OUT}
    v_readfirstlane_b32 s17, v0
    s_and_b32 s12, s2, 7                  ; xcd
    s_lshr_b32 s13, s2, 3                 ; idx
    """)
    if LOCALMAP:
        k(f"""
        s_lshl_b32 s14, s12, 1
        s_and_b32 s15, s13, 1
        s_add_u32 s14, s14, s15
        s_lshl_b32 s36, s12, 2
        s_and_b32 s15, s13, 3
        s_add_u32 s36, s36, s15
        s_lshr_b32 s37, s13, 2                ; dt
        s_lshr_b32 s15, s13, 1                ; ft
        """)
    else:
        k(f"""
    s_lshr_b32 s14, s12, 1
    s_lshl_b32 s14, s14, 2
    s_and_b32 s15, s13, 3
    s_add_u32 s14, s14, s15               ; lt
    s_lshl_b32 s36, s12, 2
    s_add_u32 s36, s36, s15               ; lt64
    s_lshr_b32 s37, s13, 2                ; dt
    s_and_b32 s15, s12, 1
    s_lshl_b32 s15, s15, 3
    s_add_u32 s15, s15, s37               ; ft
        """)
    k(f"""
    s_lshr_b32 s17, s17, 6                ; w
    s_and_b32 s16, s17, 3
    s_lshr_b32 s29, s17, 2
    v_and_b32 v{VT0}, 63, v0              ; lane
    v_and_b32 v{VT1}, 15, v0              ; lam / j
    v_bfe_u32 v{VT2}, v0, 4, 2            ; g
    s_and_b32 s20, s17, 1
    s_lshl_b32 s20, s20, 2
    v_lshrrev_b32 v{TMP}, 1, v{VT1}
    v_xor_b32 v{TMP+1}, v{TMP}, v{VT2}
    v_xor_b32 v{TMP+1}, s20, v{TMP+1}
    v_and_b32 v{TMP+3}, 1, v{VT1}
    v_lshlrev_b32 v{TMP+3}, 4, v{TMP+3}
    v_mul_u32_u24 v{TMP+4}, {XP}, v{VT2}
    v_add_u32 v{TMP+3}, v{TMP+4}, v{TMP+3}
    v_lshl_add_u32 v{VDMA}, v{TMP+1}, 5, v{TMP+3}
    v_lshlrev_b32 v{VW}, 4, v{VT0}                    ; lane*16
    s_lshl_b32 s18, s14, 8
    s_add_u32 s18, s18, s30
    s_mul_i32 s19, s17, {4*XP}
    s_add_u32 s18, s18, s19
    s_lshl_b32 s19, s17, 10               ; x m0 part: w*1024
    s_lshl_b32 s20, s15, 2
    s_add_u32 s20, s20, s16
    s_lshl_b32 s21, s20, 4
    s_add_u32 s21, s21, s29
    s_mul_i32 s21, s21, 3072
    s_add_u32 s21, s21, {WP}
    s_mul_i32 s22, s17, 3072
    s_add_u32 s22, s22, 0x4000
    s_mul_i32 s24, s20, {3*16*4}
    s_add_u32 s24, s24, {CSUM}
    s_lshl_b32 s38, s37, 2
    s_add_u32 s38, s38, s16
    s_mul_i32 s38, s38, {NKS2*1024}
    s_mul_i32 s23, s29, {22*1024}
    s_add_u32 s38, s38, s23
    s_add_u32 s38, s38, {WD}
    """)
    def group_parts(t):
        base = (t & 3) * SLOT
        parts = [f"""
        s_add_u32 m0, s19, {base}
        s_nop 0
        buffer_load_dwordx4 v{VDMA}, s[8:11], s18 offen lds
        s_add_u32 s18, s18, {32*XP}
        """, f"""
        s_add_u32 m0, s22, {base}
        s_nop 0
        buffer_load_dwordx4 v{VW}, s[8:11], s21 offen lds
        """, f"""
        buffer_load_dwordx4 v{VW}, s[8:11], s21 offen offset:1024 lds
        """, f"""
        buffer_load_dwordx4 v{VW}, s[8:11], s21 offen offset:2048 lds
        s_add_u32 s21, s21, 0x1800
        """, f"""
        s_add_u32 m0, s19, {base + 8192}
        s_nop 0
        buffer_load_dwordx4 v{VDMA}, s[8:11], s18 offen lds
        s_add_u32 s18, s18, {32*XP}
        """]
        return parts
    def wd_part(i):
        p = f"buffer_load_dwordx4 {wdreg(i)}, v{VW}, s[8:11], s38 offen offset:{1024*(i&3)}"
        if (i & 3) == 3: p += "\ns_add_u32 s38, s38, 0x1000"
        return p
    def common_addr():
        k(f"""
        s_mov_b32 s43, {fl(1.0/512)}
        s_mov_b32 s44, {fl(1e-5)}
        s_mov_b32 s45, {fl(-LOG2E)}
        v_lshrrev_b32 v{TMP}, 2, v{VT1}
        v_lshl_add_u32 v{TMP}, v{VT2}, 2, v{TMP}          ; 4g + r
        v_and_b32 v{TMP+1}, 7, v{TMP}                     ; xi
        v_and_b32 v{TMP+2}, 3, v{VT1}
        v_lshlrev_b32 v{TMP+2}, 3, v{TMP+2}
        v_lshl_add_u32 v{TMP+2}, v{TMP}, 8, v{TMP+2}
        v_mul_u32_u24 v{VRES}, {XP}, v{VT1}
        v_lshl_add_u32 v{VRES}, v{VT2}, 4, v{VRES}
        s_lshl_b32 s39, s37, 2
        s_add_u32 s39, s39, s16
        s_mul_i32 s39, s39, {16*XP}
        s_lshl_b32 s40, s36, 7
        s_add_u32 s39, s39, s40
        s_lshl_b32 s40, s29, 6
        s_add_u32 s39, s39, s40
        s_add_u32 s40, s39, s30
        """)
    res_parts = [f"buffer_load_dwordx4 v[{RES}:{RES+3}], v{VRES}, s[8:11], s40 offen"]
    common_addr()
    k("s_lshl_b32 s25, s29, 2")
    for b in range(4):
        k(f"""
        s_add_u32 s26, s25, {b}
        v_xor_b32 v{TMP+3}, s26, v{TMP+1}
        v_lshl_add_u32 v{XA+b}, v{TMP+3}, 5, v{TMP+2}
        v_add_u32 v{XA+4+b}, {2*SLOT}, v{XA+b}
        """)
    k(f"""
    s_mul_i32 s26, s16, 3072
    s_add_u32 s26, s26, 0x4000
    v_add_u32 v{WA}, s26, v{VW}
    v_add_u32 v{WA+1}, {2*SLOT}, v{WA}
    """)
    def late_addr():
        k(f"""
        v_bfe_u32 v{TMP}, v{VT1}, 2, 1                    ; half
        v_mul_u32_u24 v{TMP+4}, 3072, v{TMP}
        v_lshrrev_b32 v{TMP}, 3, v{VT1}
        v_lshl_add_u32 v{TMP+4}, v{TMP}, 6, v{TMP+4}
        v_and_b32 v{TMP}, 3, v{VT1}
        v_lshl_add_u32 v{TMP+4}, v{TMP}, 4, v{TMP+4}
        v_lshl_add_u32 v{TMP+4}, v{VT2}, 8, v{TMP+4}
        s_lshl_b32 s26, s16, 10
        s_cmp_eq_u32 s16, 3
        s_cselect_b32 s26, 12, s26
        s_cselect_b32 s27, 0x400, 4
        s_mul_i32 s28, s29, 12288
        s_add_u32 s26, s26, s28
        v_add_u32 v{SA}, s26, v{TMP+4}
        v_add_u32 v{SA+1}, s27, v{SA}
        v_add_u32 v{SA+2}, s27, v{SA+1}
        v_lshlrev_b32 v{VSTX}, 2, v{VT1}
        s_lshl_b32 s41, s14, 9
        s_lshl_b32 s26, s29, 8
        s_add_u32 s41, s41, s26
        s_add_u32 s41, s41, s33
        s_and_b32 s27, s17, 1
        s_and_b32 s28, s17, 2
        s_lshl_b32 s28, s28, 1
        s_or_b32 s27, s27, s28
        s_lshl_b32 s28, s29, 1
        s_or_b32 s27, s27, s28
        s_mul_i32 s26, s27, 3072
        v_add_u32 v{VPUB}, s26, v{VW}
        s_lshl_b32 s42, s14, 3
        s_add_u32 s42, s42, s27
        s_mul_i32 s42, s42, {HKS*1024}
        s_mul_i32 s26, s15, 3072
        s_add_u32 s42, s42, s26
        s_add_u32 s42, s42, s31
        v_lshlrev_b32 v{VCS}, 4, v{VT2}
        """)
    late_addr()
    k(f"""
    v_lshrrev_b32 v{TMP+6}, 3, v{VT0}
    v_mul_u32_u24 v{TMP+6}, {XP}, v{TMP+6}
    v_and_b32 v{TMP+7}, 7, v{VT0}
    v_lshl_add_u32 v{TMP+6}, v{TMP+7}, 5, v{TMP+6}
    s_lshl_b32 s46, s37, 3
    s_add_u32 s46, s46, s17
    s_mul_i32 s46, s46, {8*XP}
    s_lshl_b32 s47, s14, 8
    s_add_u32 s46, s46, s47
    s_add_u32 s46, s46, s30
    """)
    if LOCALMAP:
        k(f"""
        s_getreg_b32 s23, hwreg(HW_REG_XCC_ID)
        s_and_b32 s23, s23, 15
        s_add_u32 s23, s23, 1
        s_lshl_b32 s26, s12, 7
        s_add_u32 s56, s56, s26
        s_lshl_b32 s26, s13, 2
        v_mov_b32 v{VID}, s23
        v_mov_b32 v{VID+1}, s26
        v_and_b32 v{VID+2}, 31, v{VT0}
        v_lshlrev_b32 v{VID+2}, 2, v{VID+2}
        """)
    k("s_waitcnt lgkmcnt(0)")
    srd(k, 8, 4, WS_BYTES)
    if M_TOUCH & 1: k(f"buffer_load_dword v{TMP+8}, v{TMP+6}, s[8:11], s46 offen")
    def id_store(tag):
        if LOCALMAP:
            k(f"""
            s_mov_b64 exec, 1
            buffer_store_dword v{VID}, v{VID+1}, s[8:11], s56 offen sc1
            s_mov_b64 exec, -1
            """)
    if M_PRIO:
        k(f"""
        s_cmp_lg_u32 s29, {M_PRIO - 1}
        s_cbranch_scc1 M_NOPRIO
        s_setprio 1
        M_NOPRIO:
        """)
    k("""
    s_cmp_eq_u32 s15, 15
    s_cbranch_scc1 M_STATS
    """)
    def reads(s):
        res = []
        t = s >> 1; hi = (t & 3) >> 1; base = (t & 1) * SLOT
        buf = FR + 28 * (s & 1)
        for tau in range(3):
            r = buf + 16 + 4 * tau
            res.append(f"ds_read_b128 v[{r}:{r+3}], v{WA+hi} offset:{base + (s&1)*12288 + tau*1024}")
        for b in range(4):
            off = base + (s & 1) * 8192
            res.append(f"ds_read_b64_tr_b16 v[{buf+4*b}:{buf+4*b+1}], v{XA+4*hi+b} offset:{off}")
            res.append(f"ds_read_b64_tr_b16 v[{buf+4*b+2}:{buf+4*b+3}], v{XA+4*hi+b} offset:{off+4096}")
        return res
    later = [f"buffer_load_dwordx4 v[{CSR+4*tau}:{CSR+4*tau+3}], v{VCS}, s[8:11], s24 offen offset:{64*tau}" for tau in range(3)]
    later += res_parts
    later += [f"buffer_load_dword v{STV+b}, v{VSTX}, s[8:11], s41 offen offset:{64*b} sc1" for b in range(4)]
    if LOCALMAP: later += [f"buffer_load_dword v{VID+3}, v{VID+2}, s[8:11], s56 offen sc1"]
    n_crit = len(later)
    later += [wd_part(i) for i in range(M_WDM)]
    n_need = len(later)
    later += [wd_part(i) for i in range(M_WDM, 22)]
    vm = []
    def wait_for(tag):
        assert not any(o[1] == tag for o in opq), tag
        idxs = [i for i, x in enumerate(vm) if x == tag]
        if not idxs: return
        idx = max(idxs)
        k(f"s_waitcnt vmcnt({len(vm) - idx - 1})")
        del vm[:idx + 1]
    opq = []
    for u in range(8):
        gp = group_parts(u)
        e0 = max(2*u - 7, 2*u - M_LOOK)
        if M_OLD: e0 = {0: -1, 1: -1, 2: 0, 3: 1}.get(u, 2*u - 6)
        for j in (0, 1, 2): opq.append((gp[j], f"D{2*u}", e0))
        opq.append((gp[3], f"D{2*u}", e0 + 1 if u > (3 if M_OLD else 1) else e0))
        opq.append((gp[4], f"D{2*u+1}", e0 + 1 if u > (3 if M_OLD else 1) else e0))
    for i, p in enumerate(later[:n_need]): opq.append((p, "N" if i < n_crit else "L", -100 if i < n_crit else M_LATE))
    nlater = n_need
    def issue(n, s):
        out = []
        while opq and len(out) < n and opq[0][2] <= s:
            out.append(opq.pop(0))
        return out
    for p, tag, _ in issue(10 if M_OLD else M_PRE, -1):
        k(p); vm.append(tag)
    k("@STAMP 2")
    wait_for("D1" if (M_OLD and not M_FIRST) else "D0")
    k("s_barrier")
    k("@STAMP 3")
    for r in reads(0): k(r)
    EXP = os.environ.get('EXP', '')
    for s in range(16):
        if M_OLD:
            bar = False
            if s == 0 and M_FIRST: wait_for("D1"); bar = True
            if s == 1: wait_for("D3"); bar = True
            elif (s & 1) == 0 and 0 < s < 14: wait_for(f"D{s+3}"); bar = True
            if bar: k("s_barrier")
            k("s_waitcnt lgkmcnt(0)")
        else:
            if s == 0: wait_for("D1")
            elif s < 15 and (s & 1): wait_for(f"D{s+2}")
            k("s_waitcnt lgkmcnt(0)")
            if s < 15 and (s == 0 or (s & 1)): k("s_barrier")
        if s == 8: k("@STAMP 4")
        if s == 3 and LOCALMAP:
            id_store("m"); vm.append("I")
        fill = reads(s + 1) if s < 15 else []
        mf = []
        buf = FR + 28 * (s & 1)
        for b in range(4):
            for tau in range(3):
                a = ACC + (b * 3 + tau) * 4
                c = "0" if s == 0 else f"v[{a}:{a+3}]"
                mf.append(f"v_mfma_f32_16x16x32_bf16 v[{a}:{a+3}], v[{buf+16+4*tau}:{buf+19+4*tau}], v[{buf+4*b}:{buf+4*b+3}], {c}")
        parts = issue((5 if (s < 2 or s >= 12) else 3) if M_OLD else (M_OPS if s < M_RAMP else 3), s)
        step = 12 // max(len(parts), 1)
        slots = {1 + step * j: p for j, p in enumerate(parts)}
        for i, m in enumerate(mf):
            k(m)
            if i < len(fill): k(fill[i])
            if i in slots:
                k(slots[i][0]); vm.append(slots[i][1])
    assert not opq, len(opq)
    assert nlater >= n_need
    k("@STAMP 5")
    wait_for("N")
    k(f"""
    s_mov_b32 s47, 0
    M_STCHK:
    v_min3_u32 v{TMP}, v{STV}, v{STV+1}, v{STV+2}
    v_min_u32 v{TMP}, v{TMP}, v{STV+3}
    v_cmp_eq_u32 vcc, 0, v{TMP}
    s_cmp_eq_u64 vcc, 0
    s_cbranch_scc1 M_STOK
    s_add_u32 s47, s47, 1
    s_cmp_ge_u32 s47, {SPIN_MAX}
    s_cbranch_scc1 M_STOK
    s_sleep 2
    """)
    for b in range(4): k(f"buffer_load_dword v{STV+b}, v{VSTX}, s[8:11], s41 offen offset:{64*b} sc1")
    k("""
    s_waitcnt vmcnt(0)
    s_branch M_STCHK
    M_STOK:
    @STAMP 6
    """)
    if LOCALMAP:
        k(f"""
        v_cmp_ne_u32 vcc, s23, v{VID+3}
        s_cmp_eq_u64 vcc, 0
        s_cselect_b32 s54, 1, 0
        """)
    PB = FR
    def pub():
        for i in range(3):
            k(f"ds_read_b128 v[{PB+4*i}:{PB+4*i+3}], v{VPUB} offset:{1024*i}")
        if LOCALMAP:
            pub.n += 1
            k(f"""
            s_cmp_eq_u32 s54, 0
            s_cbranch_scc1 M_PG{pub.n}
            """)
            for i in range(3):
                k(f"s_waitcnt lgkmcnt({2-i})")
                k(f"buffer_store_dwordx4 v[{PB+4*i}:{PB+4*i+3}], v{VW}, s[8:11], s42 offen offset:{1024*i} {LOC_POL}")
            k(f"s_branch M_PE{pub.n}\nM_PG{pub.n}:")
        for i in range(3):
            k(f"s_waitcnt lgkmcnt({2-i})")
            k(f"buffer_store_dwordx4 v[{PB+4*i}:{PB+4*i+3}], v{VW}, s[8:11], s42 offen offset:{1024*i} sc1")
        if LOCALMAP: k(f"M_PE{pub.n}:")
    pub.n = 0
    for b in range(4):
        m = MR
        k(f"""
        v_and_b32 v{m+2}, 0xffff0000, v{STV+b}        ; s
        v_lshlrev_b32 v{m}, 16, v{STV+b}              ; m
        v_rcp_f32 v{m+1}, v{m+2}
        v_mul_f32 v{m+1}, s45, v{m+1}
        """)
        for tau in range(3):
            a = ACC + (b * 3 + tau) * 4
            c = CSR + 4 * tau
            k(f"""
            v_pk_fma_f32 v[{a}:{a+1}], v[{m}:{m+1}], v[{c}:{c+1}], v[{a}:{a+1}] op_sel_hi:[0,1,1] neg_lo:[1,0,0] neg_hi:[1,0,0]
            v_pk_fma_f32 v[{a+2}:{a+3}], v[{m}:{m+1}], v[{c+2}:{c+3}], v[{a+2}:{a+3}] op_sel_hi:[0,1,1] neg_lo:[1,0,0] neg_hi:[1,0,0]
            v_pk_mul_f32 v[{a}:{a+1}], v[{a}:{a+1}], v[{m}:{m+1}] op_sel:[0,1] op_sel_hi:[1,1]
            v_exp_f32 v{a}, v{a}
            v_exp_f32 v{a+1}, v{a+1}
            """)
            if tau < M_WDE and nlater < len(later):
                k(later[nlater]); nlater += 1
        for tau in range(3):
            a = ACC + (b * 3 + tau) * 4
            k(f"""
            v_pk_fma_f32 v[{a}:{a+1}], v[{a}:{a+1}], v[{m+2}:{m+3}], v[{m+2}:{m+3}] op_sel_hi:[1,0,0]
            v_rcp_f32 v{a}, v{a}
            v_rcp_f32 v{a+1}, v{a+1}
            """)
        for _ in range(M_WDE - 3):
            if nlater < len(later):
                k(later[nlater]); nlater += 1
        for tau in range(3):
            a = ACC + (b * 3 + tau) * 4
            k(f"""
            v_pk_mul_f32 v[{a}:{a+1}], v[{a}:{a+1}], v[{a+2}:{a+3}]
            v_cvt_pk_bf16_f32 v{a}, v{a}, v{a+1}
            ds_write_b32 v{SA+tau}, v{a} offset:{(b>>1)*6144 + (b&1)*128}
            """)
        if b == 1 and SPLITPUB:
            k("""
            s_waitcnt lgkmcnt(0)
            s_barrier
            s_cmp_lg_u32 s29, 0
            s_cbranch_scc1 M_PUB1
            """)
            pub()
            k.label("M_PUB1")
    k("""
    s_waitcnt lgkmcnt(0)
    s_barrier
    @STAMP 7
    """)
    if SPLITPUB:
        k("""
        s_cmp_eq_u32 s29, 0
        s_cbranch_scc1 M_PUB2
        """)
    pub()
    k.label("M_PUB2")
    rest = later[nlater:]
    if not SENT:
        k(f"""
        s_lshl_b32 s26, s14, 4
        s_add_u32 s26, s26, s15
        s_lshl_b32 s26, s26, 7
        s_add_u32 s26, s26, s34
        v_mov_b32 v{TMP}, 1
        v_mov_b32 v{TMP+1}, 0
        s_waitcnt vmcnt(0)
        s_barrier
        s_cmp_lg_u32 s17, 0
        s_cbranch_scc1 M_NOFLAG
        s_mov_b64 exec, 1
        s_cmp_eq_u32 s54, {1 if LOCALMAP else 77}
        s_cbranch_scc1 M_FLOC
        buffer_store_dword v{TMP}, v{TMP+1}, s[8:11], s26 offen sc1
        s_branch M_FEND
        M_FLOC:
        buffer_store_dword v{TMP}, v{TMP+1}, s[8:11], s26 offen
        M_FEND:
        s_mov_b64 exec, -1
        M_NOFLAG:
        """)
    for p in rest: k(p)
    HA = XA
    k(f"""
    M_SYNC:
    s_mov_b32 s55, 0
    M_SYNC2:
    @STAMP 8
    v_mov_b32 v{TMP+10}, 0
    s_lshl_b32 s26, s36, 2
    s_add_u32 s26, s26, s16
    s_mul_i32 s26, s26, {HKS*1024}
    s_mul_i32 s27, s29, {22*1024}
    s_add_u32 s26, s26, s27
    s_add_u32 s26, s26, s31
    s_lshl_b32 s27, s17, 11               ; m0 part
    s_mul_i32 s28, s29, 0x3000
    v_add_u32 v{HA}, s28, v{VW}
    s_lshl_b32 s28, s29, 12
    s_add_u32 s28, s28, 0x1000
    v_add_u32 v{HA+1}, s28, v{VW}
    v_add_u32 v{HA+2}, 0x10000, v{HA}
    v_add_u32 v{HA+3}, 0x10000, v{HA+1}
    v_add_u32 v{HA+4}, 0x20000, v{HA}
    v_add_u32 v{HA+5}, 0x20000, v{HA+1}
    s_cmp_lg_u32 s17, 1
    s_cbranch_scc1 M_WAITB
    """)
    if SENT:
        k(f"""
        s_mul_i32 s28, s36, {4*HKS*1024}
        s_add_u32 s28, s28, s31
        v_min_u32 v{TMP+4}, 14, v{VT1}
        v_mul_u32_u24 v{TMP+4}, 3072, v{TMP+4}
        v_mul_u32_u24 v{TMP+5}, {HKS*1024}, v{VT2}
        v_add_u32 v{TMP+4}, v{TMP+4}, v{TMP+5}
        s_mov_b32 s47, 0
        M_POLL:
        buffer_load_dword v{TMP+5}, v{TMP+4}, s[8:11], s28 offen offset:3056 sc1
        s_waitcnt vmcnt(0)
        v_cmp_eq_u32 vcc, -1, v{TMP+5}
        s_cmp_eq_u64 vcc, 0
        s_cbranch_scc1 M_WAITB
        s_sleep {SENT_SLEEP}
        s_add_u32 s47, s47, 1
        s_cmp_lt_u32 s47, {SPIN_MAX}
        s_cbranch_scc1 M_POLL
        """)
    else:
        k(f"""
        s_lshr_b32 s28, s36, 1
        s_lshl_b32 s28, s28, 11
        s_add_u32 s28, s28, s34
        v_min_u32 v{TMP+4}, 14, v{VT0}
        v_lshlrev_b32 v{TMP+4}, 7, v{TMP+4}
        s_mov_b32 s47, 0
        M_POLL:
        buffer_load_dword v{TMP+5}, v{TMP+4}, s[8:11], s28 offen sc1
        s_waitcnt vmcnt(0)
        v_cmp_eq_u32 vcc, 0, v{TMP+5}
        s_cmp_eq_u64 vcc, 0
        s_cbranch_scc1 M_WAITB
        s_add_u32 s47, s47, 1
        s_cmp_lt_u32 s47, {SPIN_MAX}
        s_cbranch_scc1 M_POLL
        """)
    k(f"""
    M_WAITB:
    s_lshl_b32 s46, s37, 3
    s_add_u32 s46, s46, s17
    s_mul_i32 s46, s46, 2880
    s_mul_i32 s47, s36, {4*HKS*1024}
    s_add_u32 s46, s46, s47
    s_add_u32 s46, s46, s31
    v_min_u32 v{TMP+6}, 44, v{VT0}
    v_lshlrev_b32 v{TMP+6}, 6, v{TMP+6}
    s_barrier
    @STAMP 9
    """)
    if M_TOUCH & 2: k(f"buffer_load_dword v{TMP+8}, v{TMP+6}, s[8:11], s46 offen")
    def hchunk(c):
        return [f"""
        s_add_u32 m0, s27, {(c % 10) * 16384}
        s_nop 0
        buffer_load_dwordx4 v{VW}, s[8:11], s26 offen {H_LD} lds
        """, f"""
        buffer_load_dwordx4 v{VW}, s[8:11], s26 offen offset:1024 {H_LD} lds
        s_add_u32 s26, s26, 0x800
        """]
    HF = 16
    A2 = 0
    def hreads(c):
        res = []
        for i in range(2):
            for lb in range(4):
                off = (c % 10) * 16384 + (lb & 1) * 2048 + i * 1024
                base = HA + 2 * (off >> 16) + (lb >> 1)
                r = HF + 32 * (c & 1) + (i * 4 + lb) * 4
                res.append(f"ds_read_b128 v[{r}:{r+3}], v{base} offset:{off & 0xffff}")
        return res
    iss = M_PRE2
    for c in range(iss):
        for p in hchunk(c): k(p)
    k(f"s_waitcnt vmcnt({2*(iss-1)})")
    k("s_barrier")
    k("@STAMP 10")
    for r in hreads(0): k(r)
    for c in range(11):
        fill = []
        if c < 10:
            k(f"s_waitcnt vmcnt({2*(iss-(c+2))})")
            k("s_barrier")
        k("s_waitcnt lgkmcnt(0)")
        if c < 10: fill = hreads(c + 1)
        parts = []
        for rep_ in range(2):
            if iss < 11 and (iss < 10 or c >= 1) and iss < c + M_AHEAD2:
                parts += hchunk(iss); iss += 1
        slots = {1 + 2 * j: p for j, p in enumerate(parts)}
        n = 0
        for i in range(2):
            for lb in range(4):
                r = HF + 32 * (c & 1) + (i * 4 + lb) * 4
                a = A2 + 4 * lb
                cc = "0" if (c == 0 and i == 0) else f"v[{a}:{a+3}]"
                k(f"v_mfma_f32_16x16x32_bf16 v[{a}:{a+3}], v[{r}:{r+3}], {wdreg(2*c+i)}, {cc}")
                if SENT and (n & 1) == 0: k(f"v_max3_u32 v{TMP+10}, v{r}, v{r+4}, v{TMP+10}")
                if n < len(fill): k(fill[n])
                if n in slots: k(slots[n])
                n += 1
    k("@STAMP 11")
    XB = 65536
    k(f"""
    s_lshl_b32 s26, s17, 11
    s_add_u32 s26, s26, {XB}
    v_add_u32 v{TMP}, s26, v{VW}
    s_xor_b32 s26, s26, 0x2000
    v_add_u32 v{TMP+1}, s26, v{VW}
    """)
    for j in range(4):
        k(f"v_lshlrev_b32 v{32+2*j}, 16, v{RES+j}")
        k(f"v_and_b32 v{33+2*j}, 0xffff0000, v{RES+j}")
    k(f"""
    ds_write_b128 v{TMP}, v[8:11]
    ds_write_b128 v{TMP}, v[12:15] offset:1024
    """)
    if SENT:
        k(f"""
        v_cmp_eq_u32 vcc, -1, v{TMP+10}
        s_cmp_lg_u64 vcc, 0
        s_cselect_b32 s26, 1, 0
        s_lshl_b32 s27, s17, 2
        s_add_u32 s27, s27, {XB + 16384}
        v_mov_b32 v{TMP+11}, s26
        v_mov_b32 v{TMP+12}, s27
        v_and_b32 v{TMP+13}, 7, v{VT0}
        v_lshlrev_b32 v{TMP+13}, 2, v{TMP+13}
        v_add_u32 v{TMP+13}, {XB + 16384}, v{TMP+13}
        ds_write_b32 v{TMP+12}, v{TMP+11}
        """)
    k(f"""
    s_waitcnt lgkmcnt(0)
    s_barrier
    ds_read_b128 v[8:11], v{TMP+1}
    ds_read_b128 v[12:15], v{TMP+1} offset:1024
    """)
    if SENT:
        k(f"""
        ds_read_b32 v{TMP+11}, v{TMP+13}
        s_waitcnt lgkmcnt(0)
        v_cmp_ne_u32 vcc, 0, v{TMP+11}
        s_cmp_eq_u64 vcc, 0
        s_cbranch_scc1 M_OK
        s_add_u32 s55, s55, 1
        s_cmp_lt_u32 s55, 64
        s_cbranch_scc1 M_SYNC2
        M_OK:
        """)
    k("s_waitcnt lgkmcnt(0)")
    OUT = 16
    for j in range(4):
        y0, y1 = A2 + 2*j, A2 + 2*j + 1
        k(f"""
        v_pk_add_f32 v[{y0}:{y1}], v[{y0}:{y1}], v[{y0+8}:{y1+8}]
        v_cvt_pk_bf16_f32 v{y1}, v{y0}, v{y1}
        v_lshlrev_b32 v{y0}, 16, v{y1}
        v_and_b32 v{y1}, 0xffff0000, v{y1}
        v_pk_add_f32 v[{y0}:{y1}], v[{y0}:{y1}], v[{32+2*j}:{33+2*j}]
        v_cvt_pk_bf16_f32 v{OUT+j}, v{y0}, v{y1}
        """)
    k(f"""
    s_cmp_lg_u32 s35, 0
    s_cbranch_scc1 M_FINAL
    s_add_u32 s40, s39, {X2T}
    buffer_store_dwordx4 v[{OUT}:{OUT+3}], v{VRES}, s[8:11], s40 offen {X2_ST}
    """)
    Q = 48
    for j in range(4):
        k(f"""
        v_lshlrev_b32 v{Q+4*j}, 16, v{OUT+j}
        v_and_b32 v{Q+4*j+2}, 0xffff0000, v{OUT+j}
        v_mul_f32 v{Q+4*j+1}, v{Q+4*j}, v{Q+4*j}
        v_mul_f32 v{Q+4*j+3}, v{Q+4*j+2}, v{Q+4*j+2}
        """)
    for q in range(8):
        k(f"v_add_f32_dpp v{Q+q}, v{Q+q}, v{Q+q} row_ror:8 row_mask:0xf bank_mask:0x3")
        k(f"v_add_f32_dpp v{Q+q}, v{Q+q+8}, v{Q+q+8} row_ror:8 row_mask:0xf bank_mask:0xc")
    for q in range(4):
        k(f"v_add_f32_dpp v{Q+q}, v{Q+q}, v{Q+q} row_shl:4 row_mask:0xf bank_mask:0x5")
        k(f"v_add_f32_dpp v{Q+q}, v{Q+q+4}, v{Q+q+4} row_shr:4 row_mask:0xf bank_mask:0xa")
    for q in range(4):
        k(f"v_add_f32_dpp v{Q+q}, v{Q+q}, v{Q+q} quad_perm:[1,0,3,2] row_mask:0xf bank_mask:0xf")
    for q in range(4):
        k(f"v_add_f32_dpp v{Q+q}, v{Q+q}, v{Q+q} quad_perm:[2,3,0,1] row_mask:0xf bank_mask:0xf")
    SB = 98304
    k(f"""
    v_and_b32 v{TMP}, 3, v{VT1}
    v_cmp_eq_u32 s[48:49], 1, v{TMP}
    v_cmp_eq_u32 s[50:51], 2, v{TMP}
    v_cmp_eq_u32 s[52:53], 3, v{TMP}
    v_lshrrev_b32 v{TMP+1}, 2, v{VT1}
    v_lshlrev_b32 v{TMP+1}, 7, v{TMP+1}
    v_lshl_add_u32 v{TMP+1}, v{VT2}, 4, v{TMP+1}
    v_lshl_add_u32 v{TMP+1}, v{TMP}, 2, v{TMP+1}
    s_lshl_b32 s26, s16, 9
    s_lshl_b32 s27, s29, 6
    s_add_u32 s26, s26, s27
    s_add_u32 s26, s26, {SB}
    v_add_u32 v{TMP+1}, s26, v{TMP+1}
    v_cndmask_b32 v{Q}, v{Q}, v{Q+1}, s[48:49]
    v_cndmask_b32 v{Q}, v{Q}, v{Q+2}, s[50:51]
    v_cndmask_b32 v{Q}, v{Q}, v{Q+3}, s[52:53]
    ds_write_b32 v{TMP+1}, v{Q}
    s_lshl_b32 s26, s17, 8
    s_add_u32 s26, s26, {SB}
    v_lshl_add_u32 v{TMP+2}, v{VT0}, 2, s26
    v_lshrrev_b32 v{TMP+3}, 5, v{VT0}
    v_lshlrev_b32 v{TMP+3}, 12, v{TMP+3}
    v_and_b32 v{TMP+4}, 31, v{VT0}
    v_lshl_add_u32 v{TMP+3}, v{TMP+4}, 2, v{TMP+3}
    s_lshl_b32 s26, s36, 7
    s_lshl_b32 s27, s17, 13
    s_add_u32 s26, s26, s27
    s_add_u32 s26, s26, {ST1}
    s_waitcnt lgkmcnt(0)
    s_barrier
    s_cmp_ge_u32 s17, 2
    s_cbranch_scc1 M_NOAT
    ds_read_b32 v{Q}, v{TMP+2}
    ds_read_b32 v{Q+1}, v{TMP+2} offset:512
    ds_read_b32 v{Q+2}, v{TMP+2} offset:1024
    ds_read_b32 v{Q+3}, v{TMP+2} offset:1536
    s_waitcnt lgkmcnt(0)
    v_add_f32 v{Q}, v{Q}, v{Q+1}
    v_add_f32 v{Q+2}, v{Q+2}, v{Q+3}
    v_add_f32 v{Q}, v{Q}, v{Q+2}
    buffer_atomic_add_f32 v{Q}, v{TMP+3}, s[8:11], s26 offen
    M_NOAT:
    @STAMP 12
    @FLUSH 13
    s_endpgm
    M_FINAL:
    """)
    TP = 144; TB2 = 98304
    srd(k, 48, 6, L * D * 2)
    k(f"""
    s_lshl_b32 s26, s16, 4
    v_add_u32 v{TMP}, s26, v{VT1}
    v_mul_u32_u24 v{TMP}, {TP}, v{TMP}
    v_lshl_add_u32 v{TMP}, v{VT2}, 4, v{TMP}
    s_lshl_b32 s26, s29, 6
    s_add_u32 s26, s26, {TB2}
    v_add_u32 v{TMP}, s26, v{TMP}
    ds_write_b128 v{TMP}, v[{OUT}:{OUT+3}]
    v_lshrrev_b32 v{TMP+1}, 2, v{VT1}
    v_lshl_add_u32 v{TMP+1}, v{VT2}, 3, v{TMP+1}
    v_mul_u32_u24 v{TMP+1}, {TP}, v{TMP+1}
    v_and_b32 v{TMP+2}, 3, v{VT1}
    v_lshl_add_u32 v{TMP+1}, v{TMP+2}, 3, v{TMP+1}
    s_lshl_b32 s26, s16, 5
    s_mul_i32 s27, s29, {32*TP}
    s_add_u32 s26, s26, s27
    s_add_u32 s26, s26, {TB2}
    v_add_u32 v{TMP+1}, s26, v{TMP+1}
    v_lshlrev_b32 v{TMP+2}, 10, v{VT1}
    v_lshl_add_u32 v{TMP+2}, v{VT2}, 4, v{TMP+2}
    s_lshl_b32 s26, s36, 2
    s_add_u32 s26, s26, s16
    s_lshl_b32 s26, s26, 14
    s_lshl_b32 s27, s37, 7
    s_add_u32 s26, s26, s27
    s_lshl_b32 s27, s29, 6
    s_add_u32 s26, s26, s27
    s_waitcnt lgkmcnt(0)
    s_barrier
    ds_read_b64_tr_b16 v[32:33], v{TMP+1}
    ds_read_b64_tr_b16 v[34:35], v{TMP+1} offset:{4*TP}
    s_waitcnt lgkmcnt(0)
    buffer_store_dwordx4 v[32:35], v{TMP+2}, s[48:51], s26 offen {OUT_ST}
    @STAMP 12
    @FLUSH 13 last
    M_END:
    s_endpgm
    """)
    k(f"""
    M_STATS:
    s_mov_b32 s47, 0
    M_SL1:
    s_mov_b32 m0, s19
    s_add_u32 s19, s19, 0x2000
    buffer_load_dwordx4 v{VDMA}, s[8:11], s18 offen lds
    s_add_u32 s18, s18, {32*XP}
    s_mov_b32 m0, s19
    s_add_u32 s19, s19, 0x2000
    buffer_load_dwordx4 v{VDMA}, s[8:11], s18 offen lds
    s_add_u32 s18, s18, {32*XP}
    s_add_u32 s47, s47, 1
    s_cmp_lt_u32 s47, 8
    s_cbranch_scc1 M_SL1
    """)
    id_store("s")
    SACC = 0; ONES = 16
    k(f"""
    v_xor_b32 v{TMP+3}, s17, v{TMP+1}
    v_lshl_add_u32 v{XA}, v{TMP+3}, 5, v{TMP+2}
    """)
    for r in range(8): k(f"v_mov_b32 v{SACC+r}, 0")
    for r in range(4): k(f"v_mov_b32 v{ONES+r}, 0x3f803f80")
    k(f"""
    s_mov_b32 s47, 0
    s_waitcnt vmcnt(0)
    s_barrier
    M_SL2:
    """)
    for u in range(8):
        r = FR + 4 * u
        if u == 7: k("s_waitcnt lgkmcnt(12)")
        k(f"ds_read_b64_tr_b16 v[{r}:{r+1}], v{XA} offset:{u*8192}")
        k(f"ds_read_b64_tr_b16 v[{r+2}:{r+3}], v{XA} offset:{u*8192+4096}")
    k(f"v_add_u32 v{XA}, 0x10000, v{XA}")
    for u in range(8):
        r = FR + 4 * u
        k(f"s_waitcnt lgkmcnt({14 - 2*u})")
        k(f"v_mfma_f32_16x16x32_bf16 v[{SACC}:{SACC+3}], v[{r}:{r+3}], v[{r}:{r+3}], v[{SACC}:{SACC+3}]")
        k(f"v_mfma_f32_16x16x32_bf16 v[{SACC+4}:{SACC+7}], v[{ONES}:{ONES+3}], v[{r}:{r+3}], v[{SACC+4}:{SACC+7}]")
    k(f"""
    s_add_u32 s47, s47, 1
    s_cmp_lt_u32 s47, 2
    s_cbranch_scc1 M_SL2
    v_and_b32 v{TMP}, 3, v{VT1}
    v_cmp_eq_u32 s[48:49], 1, v{TMP}
    v_cmp_eq_u32 s[50:51], 2, v{TMP}
    v_cmp_eq_u32 s[52:53], 3, v{TMP}
    v_lshrrev_b32 v{TMP}, 2, v{VT1}
    v_cmp_eq_u32 s[54:55], v{TMP}, v{VT2}
    v_cndmask_b32 v{SACC}, v{SACC}, v{SACC+1}, s[48:49]
    v_cndmask_b32 v{SACC}, v{SACC}, v{SACC+2}, s[50:51]
    v_cndmask_b32 v{SACC+5}, v{SACC}, v{SACC+3}, s[52:53]
    v_mov_b32 v{SACC+12}, v{SACC+4}
    v_mov_b32 v{SACC+13}, v{SACC+5}
    """)
    stats_pair(k, SACC+4, SACC+5, SACC+12, SACC+13, TMP, keep=(SACC+6, SACC+14))
    k(f"""
    v_lshrrev_b32 v{SACC+4}, 16, v{SACC+4}
    v_or_b32 v{SACC+4}, v{SACC+4}, v{SACC+6}
    v_lshlrev_b32 v{VSTX}, 2, v{VT1}
    s_lshl_b32 s41, s14, 9
    s_lshl_b32 s26, s17, 6
    s_add_u32 s41, s41, s26
    s_add_u32 s41, s41, s33
    s_mov_b64 exec, s[54:55]
    buffer_store_dword v{SACC+4}, v{VSTX}, s[8:11], s41 offen sc1
    s_mov_b64 exec, -1
    """)
    for p in res_parts: k(p)
    for i in range(22): k(wd_part(i))
    k(f"""
    s_barrier
    s_branch M_SYNC
    .p2align 8
    mlpb_kernel:
    s_mov_b32 s30, {X3T}
    s_mov_b32 s31, {HB1}
    s_mov_b32 s33, {STX + 0x2000}
    s_mov_b32 s34, {FLG + 0x8000}
    s_mov_b32 s35, 1
    s_mov_b32 s56, {IDT + 0x400}
    @KID 5
    s_branch M_BODY
    """)
    info = dict(vgpr=NV + 88, sgpr=64, accum=NV, grid=256, block=512, lds=MLP_LDS)
    return k, info

DIAG_KN = {2: ("mlpa", 13), 5: ("mlpb", 13), 3: ("wroles", 2), 6: ("none", 1)}
def emit(path, launches=None):
    kp, ip = gen_prep()
    kc, ic = gen_conv()
    km, im = gen_mlp()
    ic1 = dict(ic); ic1["grid"] = B_E
    infos = {"prep_kernel": ip, "conv1_kernel": ic1, "conv2_kernel": ic, "mlpa_kernel": im, "mlpb_kernel": im}
    if os.environ.get("ORDER"): launches = [x + "_kernel" for x in os.environ["ORDER"].split(",")]
    order = launches or ["prep_kernel", "conv1_kernel", "mlpa_kernel", "conv2_kernel", "mlpb_kernel"]
    hdr = open("cdna_kernels/" + NAME + ".s.ref").read().split("; Override launch")[0]
    out = [hdr.rstrip("\n")]
    for n in order:
        i = infos[n]
        out.append(f"; @launch kernel={n} grid=({i['grid']},1,1) block=({i['block']},1,1) lds={i['lds']}")
    out.append('.amdgcn_target "amdgcn-amd-amdhsa--gfx950"\n.text')
    for n in infos:
        out.append(f".globl {n}\n.type {n},@function")
    out.append(".p2align 8\nprep_kernel:\n" + kp.text())
    for kk in (kc, km):
        out.append(".p2align 8\n" + kk.text())
    for n, i in infos.items():
        out.append(descriptor(n, i["vgpr"], 102 if DIAG else i["sgpr"], i["accum"]))
    open(path, "w").write("\n".join(out))

if __name__ == "__main__":
    emit(sys.argv[1] if len(sys.argv) > 1 else "cdna_kernels/" + NAME + ".s")
```

```python
import sys, struct, re
from asmlib import *

NAME = "interleave_layers__ssm_conv_s4d__glu_gated_glu__prompt"
KA_U, KA_LOGA, KA_AIM, KA_CRE, KA_CIM, KA_LOGDT, KA_DSKIP, KA_BX, KA_WG, KA_WU, KA_WD, KA_OUT, KA_DBG, KA_WS = [8 * i for i in range(14)]
XT0, X1T, X2T, X3T = 0x3000000, 0x3300000, 0x3600000, 0x3900000
ST0, ST1, CSUM = 0x0800000, 0x0804000, 0x0808000
WP = 0x0C00000
WD = 0x1000000
HB = 0x1200000
HB1 = 0x2200000
ZR = 0x0810000; STX = 0x0810000; FLG = 0x0820000
KP = 0x1800000; KCS = 4160; KP_STRIDE = 1536
WS_BYTES = 0x10000000
L, D, F, NST = 2048, 512, 1376, 128
NKS2 = 44
HKS = 45

import os
XP = int(os.environ.get('XP', '4352'))
PREP_W_POL = os.environ.get('PREP_W_POL', '')
PREP_K_POL = os.environ.get('PREP_K_POL', '')
PREP_X_POL = os.environ.get('PREP_X_POL', '')
PREP_PRIO = int(os.environ.get('PREP_PRIO', '0'))
CONV_ST = os.environ.get('CONV_ST', 'sc1')
OUT_ST = os.environ.get('OUT_ST', '')
X2_ST = os.environ.get('X2_ST', 'sc1')
F1_SLEEP = int(os.environ.get('F1_SLEEP', '8'))
CODEPF_BASE = int(os.environ.get('CODEPF_BASE', '0'))
SENT = int(os.environ.get('SENT', '0'))
SPLITPUB = int(os.environ.get('SPLITPUB', '1'))
POISON_POL = os.environ.get('POISON_POL', 'sc1')
SENT_SLEEP = int(os.environ.get('SENT_SLEEP', '2'))
CODEPF3 = int(os.environ.get('CODEPF3', '1'))
CODEPF2 = int(os.environ.get('CODEPF2', '1'))
TLBPF = int(os.environ.get('TLBPF', '0'))
TLBPF_BASE = int(os.environ.get('TLBPF_BASE', '1216'))
CODEPF = int(os.environ.get('CODEPF', '1'))
DIAG = int(os.environ.get("DIAG", "0"))
DIAG_OFF = 0x4000000
_Kern = Kern
class Kern(_Kern):
    def __call__(self, s):
        for l in s.strip("\n").split("\n"):
            t = l.strip()
            if t.startswith("@CODEPF3"):
                if CODEPF3:
                    super().__call__(f"""
                    s_cmp_ge_u32 s2, 8
                    s_cbranch_scc1 M_NOPF
                    s_cmp_lt_u32 s17, 2
                    s_cbranch_scc1 M_NOPF
                    s_getpc_b64 s[26:27]
                    M_PFPC:
                    s_sub_u32 s26, s26, M_PFPC-conv1_kernel
                    s_subb_u32 s27, s27, 0
                    s_and_b32 s28, s17, 1
                    s_lshl_b32 s28, s28, 12
                    v_lshl_add_u32 v163, v136, 6, s28
                    global_load_dword v163, v163, s[26:27]
                    M_NOPF:
                    """)
                continue
            if t.startswith("@CNTLOAD"):
                super().__call__("global_load_dword v59, v2, s[28:29] sc1")
                continue
            if t.startswith("@CODEPF"):
                if CODEPF:
                    super().__call__(f"""
                    s_sub_u32 s3, s2, {CODEPF_BASE}
                    s_cmp_ge_u32 s3, 8
                    s_cbranch_scc1 P_NOPF
                    s_getpc_b64 s[6:7]
                    v_lshlrev_b32 v1, 6, v0
                    global_load_dword v94, v1, s[6:7]
                    v_add_u32 v1, 0x4000, v1
                    global_load_dword v95, v1, s[6:7]
                    P_NOPF:
                    """)
                if TLBPF:
                    super().__call__(f"""
                    s_sub_u32 s3, s2, {TLBPF_BASE}
                    s_cmp_ge_u32 s3, 8
                    s_cbranch_scc1 P_NOPF2
                    s_load_dwordx2 s[6:7], s[0:1], {KA_OUT}
                    v_lshlrev_b32 v1, 18, v0
                    v_lshlrev_b32 v2, 13, v0
                    s_waitcnt lgkmcnt(0)
                    global_load_dword v93, v1, s[4:5]
                    global_load_dword v92, v2, s[6:7]
                    P_NOPF2:
                    """)
                continue
            if t.startswith("@"):
                if not DIAG: continue
                p = t.split()
                if p[0] == "@KID":
                    super().__call__(f"s_mov_b32 s59, {DIAG_OFF + int(p[1]) * 0x80000}\ns_mov_b32 s57, {3 if int(p[1]) in (2, 5) else 2}")
                elif p[0] == "@INIT":
                    super().__call__("v_readfirstlane_b32 s58, v0\ns_memrealtime s[64:65]\ns_memtime s[66:67]")
                elif p[0] == "@STAMP":
                    i = int(p[1]); super().__call__(f"s_memtime s[{64+2*i}:{65+2*i}]")
                elif p[0] == "@FLUSH":
                    n = int(p[1])
                    super().__call__(f"""
                    s_waitcnt vmcnt(0)
                    s_memtime s[{64+2*n}:{65+2*n}]
                    s_memrealtime s[{66+2*n}:{67+2*n}]
                    s_waitcnt lgkmcnt(0)
                    s_mov_b64 exec, -1
                    s_lshr_b32 s58, s58, 6
                    s_lshl_b32 s61, s2, s57
                    s_add_u32 s60, s58, s61
                    s_lshl_b32 s60, s60, 6
                    s_add_u32 s60, s60, s59
                    v_mov_b32 v1, s60
                    """)
                    for i in range(n + 2):
                        super().__call__(f"v_mov_b32 v2, s{64+2*i}\nglobal_store_dword v1, v2, s[4:5] offset:{4*i}")
                    super().__call__("s_getreg_b32 s61, hwreg(HW_REG_XCC_ID)\nv_mov_b32 v2, s61\nglobal_store_dword v1, v2, s[4:5] offset:60")
                    if DIAG == 2 and len(p) > 2:
                        lab = f"DG{len(self.lines)}"
                        txt = f"s_or_b32 s60, s2, s58\ns_cmp_lg_u32 s60, 0\ns_cbranch_scc1 {lab}\ns_load_dwordx2 s[62:63], s[0:1], {KA_DBG}\ns_waitcnt vmcnt(0) lgkmcnt(0)\n"
                        j = 0
                        for kid, nn in ((0, 6), (1, 13), (2, 13), (4, 13), (5, 13)):
                            for slot in (0, nn + 1):
                                txt += f"v_mov_b32 v1, {DIAG_OFF + kid * 0x80000 + 4 * slot}\nglobal_load_dword v2, v1, s[4:5] sc1\nv_mov_b32 v3, {4*j}\ns_waitcnt vmcnt(0)\nglobal_store_dword v3, v2, s[62:63]\n"
                                j += 1
                        for kid, slot in ((2, 1), (2, 3), (2, 5), (2, 9), (1, 1), (1, 5)):
                            txt += f"v_mov_b32 v1, {DIAG_OFF + kid * 0x80000 + 4 * slot}\nglobal_load_dword v2, v1, s[4:5] sc1\nv_mov_b32 v3, {4*j}\ns_waitcnt vmcnt(0)\nglobal_store_dword v3, v2, s[62:63]\n"
                            j += 1
                        super().__call__(txt + f"{lab}:")
                continue
            super().__call__(l)

def f2u(x): return struct.unpack("<I", struct.pack("<f", x))[0]
def fl(x): return "0x%08x" % f2u(x)
LOG2E = 1.4426950408889634
L2E_HI = struct.unpack("<f", struct.pack("<f", LOG2E))[0]
L2E_LO = LOG2E - L2E_HI
LN2 = 0.6931471805599453

def srd(k, s, base, nbytes):
    k(f"""
    s_mov_b32 s{s}, s{base}
    s_and_b32 s{s+1}, s{base+1}, 0xffff
    s_mov_b32 s{s+2}, {nbytes:#x}
    s_mov_b32 s{s+3}, 0x20000
    """)

def rnd_bf16(k, dst, a, b=None):
    k(f"v_cvt_pk_bf16_f32 v{dst}, v{a}, v{b if b is not None else a}")

def exp_acc(k, dst, x, t0, t1):
    k(f"""
    v_mul_f32 v{t0}, s40, v{x}
    v_fma_f32 v{t1}, s40, v{x}, -v{t0}
    v_fma_f32 v{t1}, s41, v{x}, v{t1}
    v_exp_f32 v{dst}, v{t0}
    v_mul_f32 v{t1}, s42, v{t1}
    v_fma_f32 v{dst}, v{dst}, v{t1}, v{dst}
    """)

N_K, N_T, N_W, N_D, N_C = 512, 256, 240, 176, 90
WINC = os.environ.get('WINC', 'X')
_sz = {"C": N_C, "W": N_W, "D": N_D, "T": N_T}
B_K = 0
_pos = N_K; PREP_ROLES = []; _base = {}
for r in "CWTD":
    if r not in WINC:
        _base[r] = _pos; _pos += _sz[r]; PREP_ROLES.append((r, _pos))
PREP_WGS = _pos
_pos = 512; CONV_ROLES = []
for r in "CWD":
    if r in WINC:
        _base[r] = _pos; _pos += _sz[r]; CONV_ROLES.append((r, _pos))
B_E = _pos
B_C, B_W, B_T, B_D = _base["C"], _base["W"], _base["T"], _base["D"]
PREP_GROUPS = [("prep.K", 0, N_K, 6)] + [("prep." + r, _base[r], e, 2) for r, e in PREP_ROLES]
_lab = {"C": "P_C", "W": "P_W", "T": "P_TR", "D": "P_D"}
PREP_LDS = 18432
CSU = 4576
KL = 2 * CSU
CRED = KL + 16640
CONV_LDS = CRED + 24576
CPF = int(os.environ.get('CPF', '1'))
CPF_STRIDE = int(os.environ.get('CPF_STRIDE', '128'))
LOCALMAP0 = int(os.environ.get('LOCALMAP', '0'))
PFQ = int(os.environ.get('PFQ', '6144'))
SPIN_MAX = 1 << 20

class Remap:
    def __init__(self, k, voff, smap): self.k = k; self.voff = voff; self.smap = smap
    def __call__(self, t):
        def rv(m):
            if m.group(1): return f"v[{int(m.group(1))+self.voff}:{int(m.group(2))+self.voff}]"
            n = int(m.group(3)); return "v0" if n == 0 else f"v{n+self.voff}"
        t = re.sub(r"\bv\[(\d+):(\d+)\]|\bv(\d+)\b", rv, t)
        def rs(m):
            if m.group(1):
                a = int(m.group(1)); b = int(m.group(2))
                if a in self.smap: return f"s[{self.smap[a]}:{self.smap[a]+b-a}]"
                return m.group(0)
            n = int(m.group(3)); return f"s{self.smap.get(n, n)}"
        t = re.sub(r"\bs\[(\d+):(\d+)\]|\bs(\d+)\b", rs, t)
        self.k(t)
    def label(self, l): self.k.label(l)

class NoPk:
    def __init__(self, k): self.k = k
    def __call__(self, t):
        def f(m):
            d, a, b = int(m.group(1)), int(m.group(2)), int(m.group(3))
            return f"v_add_f32 v{d}, v{a}, v{b}\nv_add_f32 v{d+1}, v{a+1}, v{b+1}"
        self.k(re.sub(r"v_pk_add_f32 v\[(\d+):\d+\], v\[(\d+):\d+\], v\[(\d+):\d+\]", f, t))
    def label(self, l): self.k.label(l)
CONV_NOPK = int(os.environ.get('CONV_NOPK', '1'))

class Remap2:
    def __init__(self, k, vmap): self.k = k; self.vmap = vmap
    def __call__(self, t):
        t = re.sub(r"\bv(\d+)\b", lambda m: f"v{self.vmap.get(int(m.group(1)), int(m.group(1)))}", t)
        self.k(t)

def conv_setup(k):
    k(f"""
    v_readfirstlane_b32 s17, v0
    s_mov_b32 s43, {fl(1.0/512)}
    s_mov_b32 s44, {fl(1e-5)}
    s_mov_b32 s45, {fl(1e-5)}
    s_mov_b32 s46, {fl(1.0/512)}
    s_mov_b32 s47, {fl(1.0/512)}
    s_lshr_b32 s17, s17, 6                ; pi
    s_mul_i32 s12, s2, {XP}
    s_add_u32 s13, s12, s30
    s_lshl_b32 s14, s2, 8
    s_add_u32 s14, s14, s32               ; out: d*256
    s_mul_i32 s15, s2, {KP_STRIDE}
    s_add_u32 s15, s15, {KP}
    s_lshr_b32 s16, s2, 1
    s_lshl_b32 s16, s16, 2
    v_lshlrev_b32 v1, 4, v0               ; tid*16
    v_and_b32 v3, 15, v0                  ; c / r
    v_bfe_u32 v4, v0, 4, 2                ; g
    v_and_b32 v5, 63, v0
    v_lshlrev_b32 v6, 4, v5               ; lane*16
    s_and_b32 s21, s2, 7
    v_bfe_u32 v2, v0, 1, 3
    v_xor_b32 v2, s21, v2
    v_lshlrev_b32 v2, 5, v2
    v_lshrrev_b32 v8, 4, v0
    v_lshl_add_u32 v2, v8, 17, v2
    v_and_b32 v8, 1, v0
    v_lshl_add_u32 v2, v8, 4, v2
    """)

def conv_loads(k, pol=""):
    k(f"""
    buffer_load_dwordx4 v[16:19], v1, s[8:11], s31 offen {pol}
    s_add_u32 s31, s31, 0x1000
    buffer_load_dwordx4 v[20:23], v1, s[8:11], s31 offen {pol}
    s_add_u32 s31, s31, 0x1000
    buffer_load_dwordx4 v[24:27], v1, s[8:11], s31 offen {pol}
    s_add_u32 s31, s31, 0x1000
    buffer_load_dwordx4 v[28:31], v1, s[8:11], s31 offen {pol}
    buffer_load_dwordx4 v[12:15], v1, s[8:11], s13 offen {pol}
    """)

def conv_p3(k):
    k(f"""
    v_mov_b32 v36, 0
    v_mov_b32 v37, 0
    v_mov_b32 v38, 0
    v_mov_b32 v39, 0
    v_bfe_u32 v9, v0, 2, 2
    v_mul_u32_u24 v9, {KCS}, v9
    v_and_b32 v10, 3, v0
    v_min_u32 v10, 2, v10
    v_lshl_add_u32 v9, v10, 4, v9
    ds_write_b128 v9, v[36:39] offset:{KL}
    v_lshlrev_b32 v40, 3, v0
    s_sub_u32 s19, s18, {2 * (0x4300 - 128)}
    """)
    for e in range(11):
        k(f"v_add_u32 v{48+e}, {e-3}, v40")
        if e < 3: k(f"v_max_i32 v{48+e}, 0, v{48+e}")
        k(f"v_cvt_f32_u32 v{60+e}, v{48+e}")
    for e in range(0, 11, 2):
        k(f"v_cvt_pk_bf16_f32 v{72+e//2}, v{60+e}, v{min(61+e, 70)}")
    for e in range(11):
        src = 72 + e // 2
        if e & 1: k(f"v_lshrrev_b32 v{60+e}, 16, v{src}")
        else: k(f"v_and_b32 v{60+e}, 0xffff, v{src}")
        k(f"v_lshl_add_u32 v{60+e}, v{60+e}, 1, s19")
        k(f"v_lshl_add_u32 v{48+e}, v{48+e}, 1, s18")
    k("v_cmp_gt_u32 s[24:25], 17, v0")
    for e in range(11):
        k(f"v_cndmask_b32 v{48+e}, v{60+e}, v{48+e}, s[24:25]")
    k(f"""
    s_and_b32 s21, s17, 1
    s_sub_u32 s22, 56, s21
    s_mul_i32 s21, s21, {CSU}
    v_min_u32 v9, s22, v5
    v_lshl_add_u32 v9, v9, 3, s21
    ds_write_b64 v9, v[36:37]
    v_and_b32 v9, 1, v3
    v_mul_u32_u24 v9, {CSU}, v9
    v_lshrrev_b32 v10, 1, v3
    v_lshlrev_b32 v11, 2, v10
    v_sub_u32 v11, v11, v4
    s_lshl_b32 s21, s17, 2
    s_sub_u32 s21, 15, s21
    v_add_u32 v11, s21, v11
    v_lshl_add_u32 v9, v11, 4, v9         ; v9 = u addr
    v_and_b32 v7, 3, v3
    v_mul_u32_u24 v7, {KCS}, v7
    v_lshrrev_b32 v8, 2, v3
    v_add_u32 v8, v8, v4
    v_lshl_add_u32 v7, v8, 4, v7
    s_lshl_b32 s21, s17, 6
    s_add_u32 s21, s21, {KL}
    v_add_u32 v7, s21, v7                 ; v7 = K addr
    v_xor_b32 v8, v4, v10
    v_and_b32 v8, 3, v8
    v_lshlrev_b32 v8, 1, v8
    v_lshl_add_u32 v8, v10, 3, v8
    v_and_b32 v11, 1, v3
    v_add_u32 v8, v8, v11
    s_lshl_b32 s21, s17, 11
    v_lshl_add_u32 v10, v8, 4, s21
    v_bfe_u32 v8, v0, 2, 3
    v_xor_b32 v11, v8, v0
    v_and_b32 v11, 3, v11
    v_lshlrev_b32 v11, 5, v11
    v_lshl_add_u32 v11, v8, 7, v11
    v_bfe_u32 v8, v0, 5, 1
    v_lshl_add_u32 v11, v8, 10, v11
    s_lshl_b32 s21, s17, 13
    s_add_u32 s21, s21, {CRED}
    s_cmp_eq_u32 s17, 3
    s_cselect_b32 s21, {KL}, s21
    v_add_u32 v11, s21, v11
    """)

def conv_expand(k):
    k("""
    v_cmp_eq_u32 vcc, 0, v0
    s_waitcnt lgkmcnt(0)
    v_cndmask_b32 v48, v48, v36, vcc
    v_cndmask_b32 v49, v49, v36, vcc
    v_cndmask_b32 v50, v50, v36, vcc
    """)
    for sft in range(4):
        for j in range(4):
            k(f"v_lshl_or_b32 v{64+4*sft+j}, v{48+sft+6-2*j}, 16, v{48+sft+7-2*j}")
        k(f"ds_write_b128 v1, v[{64+4*sft}:{67+4*sft}] offset:{KL + sft*KCS + 48}")

def conv_norm(k):
    for j in range(4):
        k(f"""
        v_lshlrev_b32 v40, 16, v{12+j}
        v_and_b32 v41, 0xffff0000, v{12+j}
        v_sub_f32 v40, v40, v{16+4*j}
        v_sub_f32 v41, v41, v{18+4*j}
        v_cvt_pk_bf16_f32 v41, v40, v41
        v_lshlrev_b32 v40, 16, v41
        v_and_b32 v41, 0xffff0000, v41
        v_mul_f32 v40, v40, v{17+4*j}
        v_mul_f32 v41, v41, v{19+4*j}
        v_cvt_pk_bf16_f32 v{32+j}, v40, v41
        """)
    k(f"""
    ds_write_b128 v1, v[32:35] offset:{CSU + 16*28}
    ds_write2_b64 v1, v[32:33], v[34:35] offset0:57 offset1:58
    """)

def gen_prep():
    k = Kern("prep_kernel")
    k(f"""
    @KID 0
    @INIT
    s_load_dwordx2 s[4:5], s[0:1], {KA_WS}
    @CODEPF
    s_sub_u32 s26, s2, {B_K}
    s_cmp_lt_u32 s26, {N_K}
    s_cbranch_scc1 P_KGEN
    """)
    for r, e in PREP_ROLES: k(f"s_cmp_lt_u32 s2, {e}\ns_cbranch_scc1 {_lab[r]}")
    k(f"""
    s_endpgm
    P_WROLES:
    @KID 3
    @INIT
    s_load_dwordx2 s[4:5], s[0:1], {KA_WS}
    """)
    for r, e in CONV_ROLES: k(f"s_cmp_lt_u32 s2, {e}\ns_cbranch_scc1 {_lab[r]}")
    k("s_endpgm")
    k.label("P_KGEN")
    TB = 16384
    k(f"""
    s_load_dwordx4 s[8:11], s[0:1], {KA_LOGA}
    s_load_dwordx4 s[12:15], s[0:1], {KA_CRE}
    s_load_dwordx2 s[16:17], s[0:1], {KA_LOGDT}
    s_mov_b32 s40, {fl(L2E_HI)}
    s_mov_b32 s41, {fl(L2E_LO)}
    s_mov_b32 s42, {fl(LN2)}
    v_lshrrev_b32 v1, 1, v0
    v_and_b32 v1, 0x60, v1
    v_and_or_b32 v1, v0, 31, v1           ; n = 32 w + (lane & 31)
    s_lshl_b32 s3, s26, 8
    v_lshl_add_u32 v2, v1, 1, s3
    s_lshl_b32 s18, s26, 1
    v_mov_b32 v3, s18
    v_readfirstlane_b32 s19, v0
    s_lshr_b32 s19, s19, 6                ; wave
    s_waitcnt lgkmcnt(0)
    global_load_ushort v4, v2, s[8:9]
    global_load_ushort v8, v3, s[16:17]
    global_load_ushort v5, v2, s[10:11]
    global_load_ushort v6, v2, s[12:13]
    global_load_ushort v7, v2, s[14:15]
    v_and_b32 v20, 15, v0                 ; i / j
    v_bfe_u32 v21, v0, 4, 2               ; g
    ; hi0 = 128*(i>>3) + (i&7)
    v_lshrrev_b32 v23, 3, v20
    v_and_b32 v24, 7, v20
    v_lshl_add_u32 v23, v23, 7, v24
    v_cvt_f32_u32 v30, v23
    ; hi1 = (g''<2 ? 256+2g'' : 256*g'') + 128*((i>>1)&1) + 4*(i&1)
    v_lshrrev_b32 v23, 2, v20
    v_lshlrev_b32 v24, 1, v23
    v_add_u32 v24, 0x100, v24
    v_lshlrev_b32 v25, 8, v23
    v_cmp_gt_u32 vcc, 2, v23
    v_cndmask_b32 v24, v25, v24, vcc
    v_bfe_u32 v25, v20, 1, 1
    v_lshl_add_u32 v24, v25, 7, v24
    v_and_b32 v25, 1, v20
    v_lshl_add_u32 v24, v25, 2, v24
    v_cvt_f32_u32 v31, v24
    v_lshlrev_b32 v23, 7, v20
    v_add_u32 v23, 0x400, v23
    v_cvt_f32_u32 v32, v23                ; hi2
    v_lshlrev_b32 v23, 3, v20
    v_cvt_f32_u32 v33, v23                ; lo
    s_lshl_b32 s20, s19, 9
    v_lshl_add_u32 v34, v21, 6, s20
    v_lshrrev_b32 v23, 1, v21
    v_and_b32 v24, 1, v21
    v_lshlrev_b32 v24, 2, v24
    v_lshl_add_u32 v35, v23, 7, v24
    v_lshl_add_u32 v35, v20, 3, v35
    v_mov_b32 v36, 1
    v_mov_b32 v37, 2
    s_cmp_eq_u32 s19, 0
    s_cbranch_scc1 P_KA
    v_lshl_add_u32 v35, v21, 6, v20
    v_add_u32 v35, 0x200, v35
    v_mov_b32 v36, 16
    v_mov_b32 v37, 32
    s_cmp_lg_u32 s19, 1
    s_cbranch_scc1 P_KA
    v_lshl_add_u32 v23, v20, 2, v21
    v_add_u32 v23, 0x100, v23             ; seg1: 256 + g' + 4j ; o1=2 o2=64
    v_lshlrev_b32 v24, 6, v21
    v_lshl_add_u32 v24, v20, 1, v24
    v_add_u32 v24, 0x100, v24             ; seg2: 384 + 64(g'-2) + 2j ; o1=1 o2=32
    v_cmp_gt_u32 vcc, 2, v21
    v_cndmask_b32 v35, v24, v23, vcc
    v_cndmask_b32 v36, 1, 2, vcc
    v_cndmask_b32 v37, 32, 64, vcc
    P_KA:
    v_add_u32 v38, v36, v37
    v_add_lshl_u32 v36, v36, v35, 1
    v_add_lshl_u32 v37, v37, v35, 1
    v_add_lshl_u32 v38, v38, v35, 1
    v_lshlrev_b32 v35, 1, v35
    v_and_b32 v39, 63, v0
    v_lshlrev_b32 v39, 4, v39             ; lane*16
    s_waitcnt vmcnt(3)
    @STAMP 2
    v_lshlrev_b32 v4, 16, v4
    v_lshlrev_b32 v8, 16, v8
    """)
    exp_acc(k, 10, 8, 16, 17)
    exp_acc(k, 11, 4, 18, 19)
    k(f"""
    v_cvt_pk_bf16_f32 v10, v10, v11
    v_and_b32 v11, 0xffff0000, v10        ; eA
    v_lshlrev_b32 v10, 16, v10            ; dt
    v_mul_f32 v12, v11, v10
    v_mul_f32 v12, s40, v12
    v_sub_f32 v12, 0, v12
    s_waitcnt vmcnt(0)
    v_lshlrev_b32 v5, 16, v5
    v_lshlrev_b32 v6, 16, v6
    v_lshlrev_b32 v7, 16, v7
    v_mul_f32 v13, v5, v10
    v_mul_f32 v13, 0.15915494, v13
    v_add_f32 v10, v10, v10
    v_mul_f32 v14, v6, v10                ; 2*Cre*dt
    v_mul_f32 v15, v7, v10                ; 2*Cim*dt
    v_lshlrev_b32 v9, 4, v1
    ds_write_b128 v9, v[12:15]
    v_max3_f32 v16, |v14|, |v15|, 0
    v_max_f32_dpp v16, v16, v16 row_shr:1 row_mask:0xf bank_mask:0xf
    v_max_f32_dpp v16, v16, v16 row_shr:2 row_mask:0xf bank_mask:0xf
    v_max_f32_dpp v16, v16, v16 row_shr:4 row_mask:0xf bank_mask:0xf
    v_max_f32_dpp v16, v16, v16 row_shr:8 row_mask:0xf bank_mask:0xf
    v_max_f32_dpp v16, v16, v16 row_bcast:15 row_mask:0xa bank_mask:0xf
    v_readlane_b32 s23, v16, 31
    s_mov_b32 s20, 0
    @STAMP 3
    v_mov_b32 v16, s23
    v_bfe_u32 v16, v16, 23, 8
    v_max_u32 v16, 14, v16
    v_sub_u32 v17, 0x8c, v16
    v_cvt_f32_i32 v29, v17                ; kf = 140 - e'
    v_mov_b32 v28, 0
    v_subrev_u32 v16, 13, v16
    v_lshlrev_b32 v27, 23, v16            ; Sinv
    P_KLOOP:
    ds_read_b128 v[52:55], v34
    ds_read_b128 v[56:59], v34 offset:16
    ds_read_b128 v[60:63], v34 offset:32
    ds_read_b128 v[64:67], v34 offset:48
    v_add_u32 v34, 0x100, v34
    """)
    for nn in range(4):
        p = 52 + 4 * nn
        k(f"""
        s_waitcnt lgkmcnt({3-nn})
        v_pk_mul_f32 v[2:3], v[30:31], v[{p}:{p+1}] op_sel_hi:[1,0]
        v_pk_fma_f32 v[4:5], v[32:33], v[{p}:{p+1}], v[28:29] op_sel_hi:[1,0,1]
        v_pk_mul_f32 v[6:7], v[30:31], v[{p}:{p+1}] op_sel:[0,1] op_sel_hi:[1,1]
        v_pk_mul_f32 v[8:9], v[32:33], v[{p}:{p+1}] op_sel:[0,1] op_sel_hi:[1,1]
        v_exp_f32 v2, v2
        v_exp_f32 v3, v3
        v_exp_f32 v4, v4
        v_exp_f32 v5, v5
        v_fract_f32 v6, v6
        v_fract_f32 v7, v7
        v_fract_f32 v8, v8
        v_fract_f32 v9, v9
        v_cos_f32 v10, v6
        v_sin_f32 v11, v6
        v_cos_f32 v12, v7
        v_sin_f32 v13, v7
        v_cos_f32 v14, v8
        v_sin_f32 v15, v8
        v_cos_f32 v16, v9
        v_sin_f32 v17, v9
        v_pk_mul_f32 v[10:11], v[10:11], v[2:3] op_sel_hi:[1,0]
        v_pk_mul_f32 v[12:13], v[12:13], v[2:3] op_sel:[0,1] op_sel_hi:[1,1]
        v_pk_mul_f32 v[14:15], v[14:15], v[4:5] op_sel_hi:[1,0]
        v_pk_mul_f32 v[16:17], v[16:17], v[4:5] op_sel:[0,1] op_sel_hi:[1,1]
        v_cvt_pk_f16_f32 v{68+nn}, v10, v11
        v_cvt_pk_f16_f32 v{72+nn}, v12, v13
        v_cvt_pk_f16_f32 v{76+nn}, v14, v15
        v_pk_mul_f32 v[18:19], v[16:17], v[{p+2}:{p+3}] op_sel_hi:[1,0]
        v_pk_fma_f32 v[18:19], v[16:17], v[{p+2}:{p+3}], v[18:19] op_sel:[1,1,0] op_sel_hi:[0,1,1] neg_lo:[1,0,0]
        v_cvt_pk_f16_f32 v{80+nn}, v18, -v19
        """)
    k(f"""
    s_cmp_eq_u32 s20, 1
    s_cbranch_scc1 P_KL2
    v_mfma_f32_16x16x32_f16 v[40:43], v[68:71], v[80:83], 0
    v_mfma_f32_16x16x32_f16 v[44:47], v[72:75], v[80:83], 0
    v_mfma_f32_16x16x32_f16 v[48:51], v[76:79], v[80:83], 0
    s_mov_b32 s20, 1
    s_branch P_KLOOP
    P_KL2:
    v_mfma_f32_16x16x32_f16 v[40:43], v[68:71], v[80:83], v[40:43]
    v_mfma_f32_16x16x32_f16 v[44:47], v[72:75], v[80:83], v[44:47]
    v_mfma_f32_16x16x32_f16 v[48:51], v[76:79], v[80:83], v[48:51]
    @STAMP 4
    s_mul_i32 s20, s19, 3072
    v_add_u32 v2, s20, v39
    s_lshl_b32 s20, s19, 10
    v_add_u32 v3, s20, v39
    """)
    k("v_mov_b32 v26, v27")
    for r in range(40, 52, 2): k(f"v_pk_mul_f32 v[{r}:{r+1}], v[{r}:{r+1}], v[26:27]")
    k(f"""
    ds_write_b128 v2, v[40:43] offset:4096
    ds_write_b128 v2, v[44:47] offset:5120
    ds_write_b128 v2, v[48:51] offset:6144
    s_mul_i32 s3, s26, {KP_STRIDE}
    s_add_u32 s3, s3, {KP}
    v_lshlrev_b32 v1, 4, v0
    v_add_u32 v8, s3, v1
    s_waitcnt lgkmcnt(0)
    s_barrier
    s_cmp_eq_u32 s19, 3
    s_cbranch_scc1 P_KS
    ds_read_b128 v[40:43], v3 offset:4096
    ds_read_b128 v[44:47], v3 offset:{4096+3072}
    ds_read_b128 v[48:51], v3 offset:{4096+6144}
    ds_read_b128 v[4:7], v3 offset:{4096+9216}
    s_waitcnt lgkmcnt(2)
    v_pk_add_f32 v[40:41], v[40:41], v[44:45]
    v_pk_add_f32 v[42:43], v[42:43], v[46:47]
    s_waitcnt lgkmcnt(0)
    v_pk_add_f32 v[48:49], v[48:49], v[4:5]
    v_pk_add_f32 v[50:51], v[50:51], v[6:7]
    v_pk_add_f32 v[40:41], v[40:41], v[48:49]
    v_pk_add_f32 v[42:43], v[42:43], v[50:51]
    v_cvt_pk_bf16_f32 v40, v40, v41
    v_cvt_pk_bf16_f32 v42, v42, v43
    ds_write_b16 v35, v40 offset:{TB}
    ds_write_b16_d16_hi v36, v40 offset:{TB}
    ds_write_b16 v37, v42 offset:{TB}
    ds_write_b16_d16_hi v38, v42 offset:{TB}
    P_KS:
    s_waitcnt lgkmcnt(0)
    s_barrier
    @STAMP 5
    v_cmp_gt_u32 vcc, 0x60, v0
    s_and_saveexec_b64 s[22:23], vcc
    s_cbranch_execz P_KEND
    ds_read_b128 v[40:43], v1 offset:{TB}
    s_waitcnt lgkmcnt(0)
    global_store_dwordx4 v8, v[40:43], s[4:5]
    P_KEND:
    @FLUSH 6
    s_endpgm
    """)
    k.label("P_TR")
    PITCH = 144
    k(f"""
    s_load_dwordx2 s[8:9], s[0:1], {KA_U}
    s_sub_u32 s3, s2, {B_T}
    s_lshr_b32 s10, s3, 3                 ; lt (0..31)
    s_and_b32 s11, s3, 7                  ; dt (0..7)
    v_lshrrev_b32 v1, 3, v0               ; row 0..31
    v_and_b32 v2, 7, v0                   ; chunk
    s_lshl_b32 s12, s10, 16               ; lt*64*1024
    s_lshl_b32 s13, s11, 7
    s_add_u32 s12, s12, s13
    v_lshlrev_b32 v3, 10, v1
    v_lshl_add_u32 v3, v2, 4, v3
    v_add_u32 v3, s12, v3
    v_add_u32 v4, 0x8000, v3
    s_waitcnt lgkmcnt(0)
    global_load_dwordx4 v[8:11], v3, s[8:9]
    global_load_dwordx4 v[12:15], v4, s[8:9]
    v_lshrrev_b32 v41, 6, v0
    v_and_b32 v42, 63, v0
    s_lshl_b32 s14, s3, 13                ; 8 rows * 1024
    v_lshlrev_b32 v43, 11, v41
    v_lshl_add_u32 v43, v42, 4, v43
    v_add_u32 v43, s14, v43
    global_load_dwordx4 v[48:51], v43, s[8:9]
    global_load_dwordx4 v[52:55], v43, s[8:9] offset:1024
    v_mul_u32_u24 v5, {PITCH}, v1
    v_lshl_add_u32 v5, v2, 4, v5
    v_and_b32 v6, 15, v0                  ; lam
    v_bfe_u32 v7, v0, 4, 2                ; g
    v_lshrrev_b32 v16, 6, v0              ; w
    v_lshrrev_b32 v17, 2, v6              ; r = lam>>2
    v_lshl_add_u32 v17, v7, 3, v17        ; row = 8g + r
    v_mul_u32_u24 v17, {PITCH}, v17
    v_and_b32 v18, 3, v6
    v_lshl_add_u32 v17, v18, 3, v17       ; + c*8
    v_lshl_add_u32 v17, v16, 5, v17       ; + w*32 bytes
    s_mul_i32 s12, s11, {64*XP}
    s_lshl_b32 s13, s10, 7
    s_add_u32 s12, s12, s13
    s_add_u32 s12, s12, {XT0}
    v_lshl_add_u32 v19, v16, 4, v6
    v_mul_u32_u24 v19, {XP}, v19
    v_lshl_add_u32 v19, v7, 4, v19
    v_add_u32 v19, s12, v19
    s_waitcnt vmcnt(2)
    ds_write_b128 v5, v[8:11]
    ds_write_b128 v5, v[12:15] offset:{32*PITCH}
    s_waitcnt lgkmcnt(0)
    s_barrier
    ds_read_b64_tr_b16 v[8:9], v17
    ds_read_b64_tr_b16 v[10:11], v17 offset:{4*PITCH}
    ds_read_b64_tr_b16 v[12:13], v17 offset:{32*PITCH}
    ds_read_b64_tr_b16 v[14:15], v17 offset:{36*PITCH}
    s_waitcnt lgkmcnt(0)
    global_store_dwordx4 v19, v[8:11], s[4:5] {PREP_X_POL}
    global_store_dwordx4 v19, v[12:15], s[4:5] offset:64 {PREP_X_POL}
    """)
    k(f"""
    v_mov_b32 v2, v42
    s_lshl_b32 s10, s3, 4
    v_lshlrev_b32 v4, 12, v41
    v_add_u32 v4, s10, v4                 ; w*4096 + wg*16
    v_add_u32 v5, {ST0}, v4
    v_add_u32 v6, {ST1}, v4
    s_waitcnt vmcnt(2)
    """)
    for row, (base, sm, sq) in enumerate([(48, 20, 21), (52, 22, 23)]):
        for j in range(4):
            k(f"v_lshlrev_b32 v16, 16, v{base+j}")
            k(f"v_and_b32 v17, 0xffff0000, v{base+j}")
            if j == 0:
                k(f"v_add_f32 v{sm}, v16, v17")
                k(f"v_mul_f32 v{sq}, v16, v16")
            else:
                k(f"v_add_f32 v{sm}, v{sm}, v16")
                k(f"v_add_f32 v{sm}, v{sm}, v17")
                k(f"v_fmac_f32 v{sq}, v16, v16")
            k(f"v_fmac_f32 v{sq}, v17, v17")
    for sh in ("row_shr:1", "row_shr:2", "row_shr:4", "row_shr:8"):
        for r in range(20, 24):
            k(f"v_add_f32_dpp v{r}, v{r}, v{r} {sh} row_mask:0xf bank_mask:0xf bound_ctrl:0")
    for r in range(20, 24):
        k(f"v_add_f32_dpp v{r}, v{r}, v{r} row_bcast:15 row_mask:0xa bank_mask:0xf")
    for r in range(20, 24):
        k(f"v_add_f32_dpp v{r}, v{r}, v{r} row_bcast:31 row_mask:0xc bank_mask:0xf")
    k(f"""
    v_mov_b32 v24, 0
    v_mov_b32 v25, 0
    v_mov_b32 v26, 0
    v_mov_b32 v27, 0
    s_lshl_b32 s10, s3, 9
    s_add_u32 s10, s10, {ZR}
    v_and_b32 v7, 31, v0
    v_lshl_add_u32 v7, v7, 4, s10
    global_store_dwordx4 v7, v[24:27], s[4:5]
    v_cmp_eq_u32 vcc, 63, v2
    s_and_saveexec_b64 s[22:23], vcc
    global_store_dwordx4 v5, v[20:23], s[4:5]
    global_store_dwordx4 v6, v[24:27], s[4:5]
    @FLUSH 2
    s_endpgm
    """)
    k.label("P_W")
    WPITCH = 400
    k(f"""
    s_load_dwordx4 s[8:11], s[0:1], {KA_WG}
    s_sub_u32 s3, s2, {B_W}
    s_lshr_b32 s12, s3, 4                 ; ft
    s_and_b32 s13, s3, 15                 ; s
    """)
    k(f"""
    s_mul_i32 s14, s13, {32*F*2}
    s_mul_i32 s15, s12, 192
    s_add_u32 s14, s14, s15
    s_mul_i32 s16, s12, 12
    s_mov_b32 s17, 0x15555556
    """)
    k(f"v_mov_b32 v5, {F//8}")
    for i in range(2):
        k(f"""
        v_add_u32 v1, {256*i}, v0
        v_mul_hi_u32 v2, v1, s17
        v_mul_u32_u24 v3, 12, v2
        v_sub_u32 v3, v1, v3                  ; chunk
        v_mul_u32_u24 v4, {F*2}, v2
        v_lshl_add_u32 v4, v3, 4, v4
        v_add_u32 v{40+i}, s14, v4
        v_mul_u32_u24 v4, {WPITCH}, v2
        v_lshl_add_u32 v{42+i}, v3, 5, v4
        v_add_u32 v3, s16, v3
        v_cmp_gt_u32 s[{24+2*i}:{25+2*i}], v5, v3
        """)
    for r in range(8, 24): k(f"v_mov_b32 v{r}, 0")
    k(f"""
    v_cmp_gt_u32 vcc, 0x80, v0
    s_and_b64 s[26:27], s[26:27], vcc
    s_waitcnt lgkmcnt(0)
    s_mov_b64 s[28:29], exec
    s_mov_b64 exec, s[24:25]
    s_cbranch_execz P_W1
    global_load_dwordx4 v[8:11], v40, s[8:9]
    global_load_dwordx4 v[12:15], v40, s[10:11]
    P_W1:
    s_mov_b64 exec, s[26:27]
    s_cbranch_execz P_W2
    global_load_dwordx4 v[16:19], v41, s[8:9]
    global_load_dwordx4 v[20:23], v41, s[10:11]
    P_W2:
    s_mov_b64 exec, s[28:29]
    s_waitcnt vmcnt(0)
    ds_write2_b32 v42, v8, v9 offset0:0 offset1:2
    ds_write2_b32 v42, v10, v11 offset0:4 offset1:6
    ds_write2_b32 v42, v12, v13 offset0:1 offset1:3
    ds_write2_b32 v42, v14, v15 offset0:5 offset1:7
    s_and_saveexec_b64 s[28:29], vcc
    s_cbranch_execz P_W3
    ds_write2_b32 v43, v16, v17 offset0:0 offset1:2
    ds_write2_b32 v43, v18, v19 offset0:4 offset1:6
    ds_write2_b32 v43, v20, v21 offset0:1 offset1:3
    ds_write2_b32 v43, v22, v23 offset0:5 offset1:7
    P_W3:
    s_mov_b64 exec, s[28:29]
    v_and_b32 v1, 15, v0
    v_bfe_u32 v2, v0, 4, 2
    v_lshrrev_b32 v3, 2, v1
    v_lshl_add_u32 v3, v2, 2, v3
    v_mul_u32_u24 v3, {WPITCH}, v3
    v_and_b32 v4, 3, v1
    v_lshl_add_u32 v3, v4, 3, v3
    v_readfirstlane_b32 s18, v0
    s_lshr_b32 s18, s18, 6                ; w
    s_lshl_b32 s19, s18, 7
    s_mov_b32 s20, 32
    s_cmp_eq_u32 s18, 3
    s_cselect_b32 s19, 96, s19
    s_cselect_b32 s20, 128, s20
    v_add_u32 v3, s19, v3
    v_add_u32 v4, s20, v3
    v_add_u32 v5, s20, v4
    s_lshl_b32 s21, s12, 2
    s_add_u32 s21, s21, s18
    s_lshl_b32 s21, s21, 4
    s_add_u32 s21, s21, s13
    s_mul_i32 s21, s21, 3072
    s_add_u32 s21, s21, {WP}
    v_and_b32 v6, 63, v0
    v_lshlrev_b32 v6, 4, v6
    v_add_u32 v6, s21, v6
    v_add_u32 v7, 0x400, v6
    v_add_u32 v24, 0x800, v6
    s_waitcnt lgkmcnt(0)
    s_barrier
    ds_read_b64_tr_b16 v[8:9], v3
    ds_read_b64_tr_b16 v[10:11], v3 offset:{16*WPITCH}
    ds_read_b64_tr_b16 v[12:13], v4
    ds_read_b64_tr_b16 v[14:15], v4 offset:{16*WPITCH}
    ds_read_b64_tr_b16 v[16:17], v5
    ds_read_b64_tr_b16 v[18:19], v5 offset:{16*WPITCH}
    s_waitcnt lgkmcnt(0)
    global_store_dwordx4 v6, v[8:11], s[4:5] {PREP_W_POL}
    global_store_dwordx4 v7, v[12:15], s[4:5] {PREP_W_POL}
    global_store_dwordx4 v24, v[16:19], s[4:5] {PREP_W_POL}
    @FLUSH 2
    s_endpgm
    """)
    k.label("P_D")
    DPITCH = 272
    k(f"""
    s_load_dwordx2 s[8:9], s[0:1], {KA_WD}
    s_sub_u32 s3, s2, {B_D}
    s_lshr_b32 s12, s3, 2                 ; ks 0..43
    s_and_b32 s13, s3, 3                  ; dq
    v_lshrrev_b32 v1, 4, v0               ; row 0..15 (+16)
    v_and_b32 v2, 15, v0                  ; chunk
    s_lshl_b32 s14, s12, 15               ; ks*32*1024
    s_lshl_b32 s15, s13, 8
    s_add_u32 s14, s14, s15
    v_lshlrev_b32 v3, 10, v1
    v_lshl_add_u32 v3, v2, 4, v3
    v_add_u32 v3, s14, v3
    v_add_u32 v4, 0x4000, v3
    """)
    for r in range(8, 16): k(f"v_mov_b32 v{r}, 0")
    k(f"""
    s_waitcnt lgkmcnt(0)
    s_cmp_ge_u32 s12, 43
    s_cbranch_scc1 P_D1
    global_load_dwordx4 v[8:11], v3, s[8:9]
    global_load_dwordx4 v[12:15], v4, s[8:9]
    P_D1:
    v_bfe_u32 v5, v1, 1, 2                ; g
    v_lshrrev_b32 v6, 3, v1               ; dw (0/1)
    v_and_b32 v7, 1, v1
    v_lshl_add_u32 v7, v6, 1, v7
    v_lshl_add_u32 v7, v5, 3, v7          ; rho
    v_mul_u32_u24 v7, {DPITCH}, v7
    v_lshl_add_u32 v7, v2, 4, v7
    v_and_b32 v1, 15, v0
    v_bfe_u32 v2, v0, 4, 2
    v_lshrrev_b32 v16, 6, v0
    v_lshrrev_b32 v3, 2, v1
    v_lshl_add_u32 v3, v2, 3, v3          ; row = 8g + r
    v_mul_u32_u24 v3, {DPITCH}, v3
    v_and_b32 v4, 3, v1
    v_lshl_add_u32 v3, v4, 3, v3          ; + c*8 bytes (4 d)
    v_lshl_add_u32 v3, v16, 6, v3         ; + w*64
    s_lshl_b32 s16, s13, 3
    v_lshl_add_u32 v17, v16, 1, s16
    v_mul_u32_u24 v17, {NKS2*1024}, v17
    v_and_b32 v18, 63, v0
    v_lshl_add_u32 v17, v18, 4, v17
    s_lshl_b32 s16, s12, 10
    s_add_u32 s16, s16, {WD}
    v_add_u32 v17, s16, v17
    v_add_u32 v18, {NKS2*1024}, v17
    s_waitcnt vmcnt(0)
    ds_write_b128 v7, v[8:11]
    ds_write_b128 v7, v[12:15] offset:{4*DPITCH}
    s_waitcnt lgkmcnt(0)
    s_barrier
    ds_read_b64_tr_b16 v[8:9], v3
    ds_read_b64_tr_b16 v[10:11], v3 offset:{4*DPITCH}
    ds_read_b64_tr_b16 v[12:13], v3 offset:32
    ds_read_b64_tr_b16 v[14:15], v3 offset:{4*DPITCH+32}
    s_waitcnt lgkmcnt(0)
    global_store_dwordx4 v17, v[8:11], s[4:5] {PREP_W_POL}
    global_store_dwordx4 v18, v[12:15], s[4:5] {PREP_W_POL}
    @FLUSH 2
    s_endpgm
    """)
    k.label("P_C")
    k(f"""
    s_load_dwordx4 s[8:11], s[0:1], {KA_WG}
    s_sub_u32 s3, s2, {B_C}
    s_and_b32 s12, s3, 1                  ; mat
    s_lshr_b32 s13, s3, 1                 ; cb 0..44
    v_lshrrev_b32 v1, 2, v0
    v_and_b32 v2, 3, v0                   ; chunk
    s_lshl_b32 s14, s13, 6
    v_mul_u32_u24 v4, {F*2}, v1
    v_lshl_add_u32 v4, v2, 4, v4
    v_add_u32 v4, s14, v4
    """)
    for r in range(8, 16): k(f"v_mov_b32 v{r}, 0")
    k(f"""
    s_waitcnt lgkmcnt(0)
    s_cmp_eq_u32 s12, 1
    s_cselect_b32 s8, s10, s8
    s_cselect_b32 s9, s11, s9
    s_cmp_ge_u32 s13, 43
    s_cbranch_scc1 P_C2
    """)
    for i in range(8):
        k(f"global_load_dwordx4 v[{16+4*i}:{19+4*i}], v4, s[8:9]")
        if i < 7: k(f"v_add_u32 v4, {64*F*2}, v4")
    for i in range(8):
        k(f"s_waitcnt vmcnt({7-i})")
        for j in range(4):
            k(f"v_lshlrev_b32 v6, 16, v{16+4*i+j}")
            k(f"v_and_b32 v7, 0xffff0000, v{16+4*i+j}")
            k(f"v_pk_add_f32 v[{8+2*j}:{9+2*j}], v[{8+2*j}:{9+2*j}], v[6:7]")
    for sh in ("row_shr:4", "row_shr:8"):
        for r in range(8, 16):
            k(f"v_add_f32_dpp v{r}, v{r}, v{r} {sh} row_mask:0xf bank_mask:0xf bound_ctrl:0")
    k(f"""
    P_C2:
    v_lshrrev_b32 v6, 4, v0
    v_lshlrev_b32 v6, 7, v6
    v_lshl_add_u32 v6, v2, 5, v6
    v_and_b32 v7, 12, v0
    v_cmp_eq_u32 vcc, 12, v7
    s_and_saveexec_b64 s[46:47], vcc
    ds_write_b128 v6, v[8:11]
    ds_write_b128 v6, v[12:15] offset:16
    s_mov_b64 exec, s[46:47]
    s_waitcnt lgkmcnt(0)
    s_barrier
    v_cmp_gt_u32 vcc, 32, v0
    s_and_saveexec_b64 s[46:47], vcc
    s_cbranch_execz P_C3
    v_lshlrev_b32 v6, 2, v0
    """)
    for i in range(16):
        k(f"ds_read_b32 v{16+i}, v6 offset:{128*i}")
    k(f"""
    s_mul_i32 s14, s13, 0x5556
    s_lshr_b32 s14, s14, 16               ; ft
    s_mul_i32 s15, s14, 3
    s_sub_u32 s15, s13, s15               ; j
    s_mul_i32 s16, s15, 3
    s_add_u32 s17, s15, 9
    v_lshrrev_b32 v5, 3, v0               ; dw
    v_add_u32 v7, s16, v5
    v_mov_b32 v8, s17
    v_cmp_eq_u32 vcc, 3, v5
    v_cndmask_b32 v7, v7, v8, vcc         ; w*3+tau
    s_mul_i32 s14, s14, 12
    v_add_u32 v7, s14, v7
    v_lshlrev_b32 v7, 4, v7
    v_bfe_u32 v8, v0, 1, 2
    v_lshl_add_u32 v7, v8, 2, v7
    v_and_b32 v8, 1, v0
    v_add_u32 v7, v7, v8
    s_lshl_b32 s14, s12, 1
    v_add_u32 v7, s14, v7
    v_lshlrev_b32 v7, 2, v7
    v_add_u32 v7, {CSUM}, v7
    s_waitcnt lgkmcnt(0)
    """)
    for st in (8, 4, 2, 1):
        for i in range(st):
            k(f"v_add_f32 v{16+i}, v{16+i}, v{16+i+st}")
    k(f"""
    global_store_dword v7, v16, s[4:5]
    P_C3:
    @FLUSH 2
    s_endpgm
    """)
    return k, dict(vgpr=96, sgpr=48, accum=96, grid=PREP_WGS, block=256, lds=PREP_LDS)


def stats_pair(k, sa, qa, sb, qb, t, keep=None):
    for s_, q_ in ((sa, qa), (sb, qb)):
        k(f"""
        v_mul_f32 v{s_}, s43, v{s_}
        v_mul_f32 v{q_}, s43, v{q_}
        v_fma_f32 v{q_}, -v{s_}, v{s_}, v{q_}
        v_max_f32 v{q_}, 0, v{q_}
        v_cvt_pk_bf16_f32 v{q_}, v{s_}, v{q_}
        v_lshlrev_b32 v{s_}, 16, v{q_}
        v_and_b32 v{q_}, 0xffff0000, v{q_}
        v_add_f32 v{q_}, s44, v{q_}
        """)
    k(f"""
    v_cvt_pk_bf16_f32 v{t}, v{qa}, v{qb}
    v_lshlrev_b32 v{qa}, 16, v{t}
    v_and_b32 v{qb}, 0xffff0000, v{t}
    v_sqrt_f32 v{qa}, v{qa}
    v_sqrt_f32 v{qb}, v{qb}
    v_cvt_pk_bf16_f32 v{t}, v{qa}, v{qb}
    v_lshlrev_b32 v{keep[0] if keep else qa}, 16, v{t}
    v_and_b32 v{keep[1] if keep else qb}, 0xffff0000, v{t}
    v_rcp_f32 v{qa}, v{keep[0] if keep else qa}
    v_rcp_f32 v{qb}, v{keep[1] if keep else qb}
    """)


def conv_stats_norm(k, wait_x):
    for i in range(4):
        b = 16 + 4 * i
        k(f"""
        v_pk_mul_f32 v[{b}:{b+1}], v[{b}:{b+1}], s[46:47]
        v_pk_mul_f32 v[{b+2}:{b+3}], v[{b+2}:{b+3}], s[46:47]
        v_fma_f32 v{b+1}, -v{b}, v{b}, v{b+1}
        v_fma_f32 v{b+3}, -v{b+2}, v{b+2}, v{b+3}
        v_cvt_pk_bf16_f32 v{b}, v{b}, v{b+2}          ; (m_a, m_b)
        v_cvt_pk_bf16_f32 v{b+2}, v{b+1}, v{b+3}
        v_and_b32 v{b+1}, 0xffff0000, v{b}
        v_lshlrev_b32 v{b}, 16, v{b}                  ; v[b:b+1] = (m_a, m_b) f32
        v_and_b32 v{b+3}, 0xffff0000, v{b+2}
        v_lshlrev_b32 v{b+2}, 16, v{b+2}
        v_max_f32 v{b+2}, 0, v{b+2}
        v_max_f32 v{b+3}, 0, v{b+3}
        v_pk_add_f32 v[{b+2}:{b+3}], v[{b+2}:{b+3}], s[44:45]
        v_cvt_pk_bf16_f32 v{b+2}, v{b+2}, v{b+3}
        v_and_b32 v{b+3}, 0xffff0000, v{b+2}
        v_lshlrev_b32 v{b+2}, 16, v{b+2}
        v_sqrt_f32 v{b+2}, v{b+2}
        v_sqrt_f32 v{b+3}, v{b+3}
        """)
    for i in range(4):
        b = 16 + 4 * i
        k(f"""
        v_cvt_pk_bf16_f32 v{b+2}, v{b+2}, v{b+3}
        v_and_b32 v{b+3}, 0xffff0000, v{b+2}
        v_lshlrev_b32 v{b+2}, 16, v{b+2}
        v_rcp_f32 v{b+2}, v{b+2}
        v_rcp_f32 v{b+3}, v{b+3}
        """)
    k(wait_x)
    for j in range(4):
        b = 16 + 4 * j
        k(f"""
        v_lshlrev_b32 v40, 16, v{12+j}
        v_and_b32 v41, 0xffff0000, v{12+j}
        v_pk_add_f32 v[40:41], v[40:41], v[{b}:{b+1}] neg_lo:[0,1] neg_hi:[0,1]
        v_cvt_pk_bf16_f32 v41, v40, v41
        v_lshlrev_b32 v40, 16, v41
        v_and_b32 v41, 0xffff0000, v41
        v_pk_mul_f32 v[40:41], v[40:41], v[{b+2}:{b+3}]
        v_cvt_pk_bf16_f32 v{32+j}, v40, v41
        """)
    k(f"""
    ds_write_b128 v1, v[32:35] offset:{CSU + 16*28}
    ds_write2_b64 v1, v[32:33], v[34:35] offset0:57 offset1:58
    """)

def gen_conv():
    k = Kern("conv")
    k(f"""
    conv1_kernel:
    s_cmp_ge_u32 s2, 512
    s_cbranch_scc1 P_WROLES
    s_mov_b32 s34, {0 if 'W' in WINC else 1}
    s_mov_b32 s30, {XT0}
    s_mov_b32 s31, {ST0}
    s_mov_b32 s32, {X1T}
    s_mov_b32 s33, {HB}
    @KID 1
    CONV_BODY:
    s_cmp_ge_u32 s2, 512
    s_cbranch_scc1 CONV_END
    @INIT
    s_load_dwordx2 s[4:5], s[0:1], {KA_WS}
    s_load_dwordx2 s[6:7], s[0:1], {KA_DSKIP}
    """)
    conv_setup(k)
    k(f"""
    s_lshl_b32 s18, s17, 11
    s_add_u32 s18, s18, {CRED}
    """)
    conv_p3(k)
    k("""
    @STAMP 10
    s_waitcnt lgkmcnt(0)
    @STAMP 11
    s_load_dword s20, s[6:7], s16
    """)
    srd(k, 8, 4, WS_BYTES)
    k(f"""
    s_mov_b32 m0, s18
    s_nop 0
    buffer_load_dwordx4 v6, s[8:11], s15 offen lds
    buffer_load_dwordx4 v6, s[8:11], s15 offen offset:1024 lds
    """)
    conv_loads(k)
    npf = 0
    k(f"""
    @STAMP 12
    @STAMP 2
    s_waitcnt vmcnt({5 + npf})
    """)
    for e in range(11):
        k(f"ds_read_u16 v{48+e}, v{48+e}")
    conv_expand(k)
    k(f"""
    s_waitcnt vmcnt({1 + npf})
    @STAMP 3
    """)
    for i in range(4):
        stats_pair(k, 16 + 4*i, 17 + 4*i, 18 + 4*i, 19 + 4*i, 40)
    k(f"s_waitcnt vmcnt({npf})")
    conv_norm(k)
    if CPF:
        if LOCALMAP0:
            k(f"""
            s_lshr_b32 s21, s2, 3
            s_mul_i32 s22, s21, 49152
            s_mul_i32 s23, s17, {PFQ}
            s_add_u32 s22, s22, s23
            s_add_u32 s22, s22, {WP}
            v_min_u32 v38, {PFQ // 128 - 1}, v5
            v_lshlrev_b32 v38, 7, v38
            buffer_load_dword v150, v38, s[8:11], s22 offen
            """)
        else:
            k(f"""
            s_lshr_b32 s21, s2, 3
            s_lshl_b32 s21, s21, 2
            s_add_u32 s21, s21, s17
            s_mul_i32 s22, s21, 6144
            s_and_b32 s23, s2, 1
            s_mul_i32 s23, s23, {8*196608}
            s_add_u32 s22, s22, s23
            s_add_u32 s22, s22, {WP}
            v_lshlrev_b32 v38, 7, v5
            s_cmp_eq_u32 s34, 0
            s_cbranch_scc1 CONV_NOW
            buffer_load_dword v150, v38, s[8:11], s22 offen
            CONV_NOW:
            """)
    if SENT:
        k(f"""
        v_mov_b32 v40, -1
        v_mov_b32 v41, -1
        v_mov_b32 v42, -1
        v_mov_b32 v43, -1
        s_mul_i32 s21, s2, 11520
        s_add_u32 s21, s21, s33
        v_min_u32 v38, {11520 - 8192 - 16}, v1
        buffer_store_dwordx4 v[40:43], v1, s[8:11], s21 offen {POISON_POL}
        s_add_u32 s21, s21, 0x1000
        buffer_store_dwordx4 v[40:43], v1, s[8:11], s21 offen {POISON_POL}
        s_add_u32 s21, s21, 0x1000
        buffer_store_dwordx4 v[40:43], v38, s[8:11], s21 offen {POISON_POL}
        """)
    if CODEPF2:
        k(f"""
        s_cmp_ge_u32 s2, 8
        s_cbranch_scc1 CONV_NOPF
        s_getpc_b64 s[22:23]
        v_lshlrev_b32 v38, 6, v0
        global_load_dword v39, v38, s[22:23]
        CONV_NOPF:
        """)
    k("""
    @STAMP 4
    s_waitcnt lgkmcnt(0)
    s_barrier
    CONV_MAIN2:
    @STAMP 5
    """)
    if CONV_NOPK: k = NoPk(k)
    KF = 48; UB = 16; ACC = 112
    pend = []
    def rd(tag):
        if tag[0] == "U":
            mu = int(tag[1:]); r = UB + 4 * (mu & 3)
            k(f"ds_read_b128 v[{r}:{r+3}], v9 offset:{256*mu}")
        else:
            t = int(tag[1:]); r = KF + 4 * t
            k(f"ds_read_b128 v[{r}:{r+3}], v7 offset:{256*t}")
        pend.append(tag)
    def need(tags):
        idx = max([pend.index(t) for t in tags if t in pend], default=-1)
        if idx >= 0:
            k(f"s_waitcnt lgkmcnt({len(pend) - idx - 1})")
            del pend[:idx + 1]
    queue = ["U0"] + [f"K{t}" for t in range(1, 16, 2)] + ["U1"] + [f"K{t}" for t in range(0, 16, 2)] + ["U2", "U3"]
    for t in queue[:12]: rd(t)
    queue = queue[12:]
    for mu in range(16):
        a = UB + 4 * (mu & 3)
        q0 = max(0, -(-(mu - 1) // 2))
        for q in range(q0, 8):
            tp = 2 * q + 1 - mu
            need([f"U{mu}", f"K{tp}"])
            c = "0" if mu == 0 else f"v[{ACC+4*q}:{ACC+4*q+3}]"
            k(f"v_mfma_f32_16x16x32_bf16 v[{ACC+4*q}:{ACC+4*q+3}], v[{KF+4*tp}:{KF+4*tp+3}], v[{a}:{a+3}], {c}")
            if queue: rd(queue.pop(0))
        if mu + 4 < 16: rd(f"U{mu+4}")
        if mu & 1 and mu >= 3:
            q = (mu - 3) // 2
            k(f"ds_write_b128 v10, v[{ACC+4*q}:{ACC+4*q+3}] offset:{(CRED + (q>>1)*8192 if q < 6 else KL) + (q&1)*1024}")
            pend.append("W")
        if mu == 6:
            assert not any(t[0] == "K" for t in pend + queue)
            k("s_barrier")
    k("@STAMP 6")
    k(f"""
    s_and_b32 s21, s20, 0xffff0000
    s_lshl_b32 s20, s20, 16
    s_bitcmp1_b32 s2, 0
    s_cselect_b32 s20, s21, s20
    """)
    for p in range(4):
        k(f"""
        v_lshlrev_b32 v40, 16, v{32+p}
        v_and_b32 v41, 0xffff0000, v{32+p}
        v_mul_f32 v40, s20, v40
        v_mul_f32 v41, s20, v41
        v_cvt_pk_bf16_f32 v41, v40, v41
        """)
        if p == 0:
            k(f"ds_write_b128 v10, v[{ACC+28}:{ACC+31}] offset:{KL + 1024}")
        k(f"""
        v_lshlrev_b32 v{48+2*p}, 16, v41
        v_and_b32 v{49+2*p}, 0xffff0000, v41
        v_lshlrev_b32 v{56+2*p}, 16, v{12+p}
        v_and_b32 v{57+2*p}, 0xffff0000, v{12+p}
        """)
    k("""
    s_waitcnt lgkmcnt(0)
    s_barrier
    @STAMP 7
    """)
    for src in range(4):
        for t in range(2):
            k(f"ds_read_b128 v[{ACC+8*src+4*t}:{ACC+8*src+4*t+3}], v11 offset:{src*2048 + t*16}")
    k("s_waitcnt lgkmcnt(4)")
    for r in range(0, 8, 2):
        k(f"v_pk_add_f32 v[{ACC+r}:{ACC+r+1}], v[{ACC+r}:{ACC+r+1}], v[{ACC+8+r}:{ACC+9+r}]")
    k("s_waitcnt lgkmcnt(0)")
    for r in range(0, 8, 2):
        k(f"v_pk_add_f32 v[{ACC+16+r}:{ACC+17+r}], v[{ACC+16+r}:{ACC+17+r}], v[{ACC+24+r}:{ACC+25+r}]")
    for r in range(0, 8, 2):
        k(f"v_pk_add_f32 v[{ACC+r}:{ACC+r+1}], v[{ACC+r}:{ACC+r+1}], v[{ACC+16+r}:{ACC+17+r}]")
    k("@STAMP 8")
    for p in range(4):
        y0, y1 = ACC + 2*p, ACC + 2*p + 1
        k(f"""
        v_cvt_pk_bf16_f32 v{y1}, v{y0}, v{y1}
        v_lshlrev_b32 v{y0}, 16, v{y1}
        v_and_b32 v{y1}, 0xffff0000, v{y1}
        v_pk_add_f32 v[{y0}:{y1}], v[{y0}:{y1}], v[{48+2*p}:{49+2*p}]
        v_cvt_pk_bf16_f32 v{y1}, v{y0}, v{y1}
        v_lshlrev_b32 v{y0}, 16, v{y1}
        v_and_b32 v{y1}, 0xffff0000, v{y1}
        v_pk_add_f32 v[{y0}:{y1}], v[{y0}:{y1}], v[{56+2*p}:{57+2*p}]
        v_cvt_pk_bf16_f32 v{44+p}, v{y0}, v{y1}
        """)
    k(f"""
    buffer_store_dwordx4 v[44:47], v2, s[8:11], s14 offen {CONV_ST}
    @STAMP 9
    @FLUSH 13
    CONV_END:
    s_endpgm
    .p2align 8
    conv2_kernel:
    s_mov_b32 s34, 1
    s_mov_b32 s30, {X2T}
    s_mov_b32 s31, {ST1}
    s_mov_b32 s32, {X3T}
    s_mov_b32 s33, {HB1}
    @KID 4
    s_branch CONV_BODY
    """)
    if CONV_NOPK: k = k.k
    info = dict(vgpr=152, sgpr=48, accum=152, grid=512, block=256, lds=CONV_LDS)
    return k, info

MLP_LDS = 163840
H_LD = os.environ.get('H_LD', 'sc1')
M_PRE2 = int(os.environ.get('M_PRE2', '5'))
M_OLD = int(os.environ.get('M_OLD', '1'))
M_LOOK = int(os.environ.get('M_LOOK', '5'))
M_TOUCH = int(os.environ.get('M_TOUCH', '0'))
M_PRE = int(os.environ.get('M_PRE', '8'))
M_OPS = int(os.environ.get('M_OPS', '3'))
M_RAMP = int(os.environ.get('M_RAMP', '5'))
M_LATE = int(os.environ.get('M_LATE', '-100'))
LOCALMAP = int(os.environ.get('LOCALMAP', '0'))
LOC_POL = os.environ.get('LOC_POL', 'sc1')
IDT = ZR + 0x4000
M_PRIO = int(os.environ.get('M_PRIO', '0'))
M_FIRST = int(os.environ.get('M_FIRST', '1'))
M_WDM = int(os.environ.get('M_WDM', '6'))
M_WDE = int(os.environ.get('M_WDE', '2'))
M_AHEAD2 = int(os.environ.get('M_AHEAD2', '6'))
SPIN_MAX = 1 << 20
SLOT = 40960
def gen_mlp():
    k = Kern("mlp")
    ACC = 0
    FR = 48
    XA = 104
    WA = 112
    CSR = 114
    STV = 126
    RES = 130
    VDMA, VW, VT0, VT1, VT2 = 134, 135, 136, 137, 138
    SA = 139
    VRES = 142; VSTX = 143; VPUB = 144; VCS = 145
    MR = 146
    TMP = 150
    NV = 168
    VID = TMP + 14
    VRES2 = TMP + 9
    def wdreg(i): return f"a[{4*i}:{4*i+3}]"
    k(f"""
    mlpa_kernel:
    s_mov_b32 s30, {X1T}
    s_mov_b32 s31, {HB}
    s_mov_b32 s33, {STX}
    s_mov_b32 s34, {FLG}
    s_mov_b32 s35, 0
    s_mov_b32 s56, {IDT}
    @KID 2
    M_BODY:
    s_cmp_ge_u32 s2, 256
    s_cbranch_scc1 M_END
    @INIT
    s_load_dwordx2 s[4:5], s[0:1], {KA_WS}
    s_load_dwordx2 s[6:7], s[0:1], {KA_OUT}
    v_readfirstlane_b32 s17, v0
    s_and_b32 s12, s2, 7                  ; xcd
    s_lshr_b32 s13, s2, 3                 ; idx
    """)
    if LOCALMAP:
        k(f"""
        s_lshl_b32 s14, s12, 1
        s_and_b32 s15, s13, 1
        s_add_u32 s14, s14, s15
        s_lshl_b32 s36, s12, 2
        s_and_b32 s15, s13, 3
        s_add_u32 s36, s36, s15
        s_lshr_b32 s37, s13, 2                ; dt
        s_lshr_b32 s15, s13, 1                ; ft
        """)
    else:
        k(f"""
    s_lshr_b32 s14, s12, 1
    s_lshl_b32 s14, s14, 2
    s_and_b32 s15, s13, 3
    s_add_u32 s14, s14, s15               ; lt
    s_lshl_b32 s36, s12, 2
    s_add_u32 s36, s36, s15               ; lt64
    s_lshr_b32 s37, s13, 2                ; dt
    s_and_b32 s15, s12, 1
    s_lshl_b32 s15, s15, 3
    s_add_u32 s15, s15, s37               ; ft
        """)
    k(f"""
    s_lshr_b32 s17, s17, 6                ; w
    s_and_b32 s16, s17, 3
    s_lshr_b32 s29, s17, 2
    v_and_b32 v{VT0}, 63, v0              ; lane
    v_and_b32 v{VT1}, 15, v0              ; lam / j
    v_bfe_u32 v{VT2}, v0, 4, 2            ; g
    v_lshlrev_b32 v{VDMA}, 4, v{VT0}
    v_lshlrev_b32 v{VW}, 4, v{VT0}                    ; lane*16
    s_lshl_b32 s18, s14, 17
    s_add_u32 s18, s18, s30
    s_lshl_b32 s19, s17, 10
    s_add_u32 s18, s18, s19
    s_lshl_b32 s19, s17, 10               ; x m0 part: w*1024
    s_lshl_b32 s20, s15, 2
    s_add_u32 s20, s20, s16
    s_lshl_b32 s21, s20, 4
    s_add_u32 s21, s21, s29
    s_mul_i32 s21, s21, 3072
    s_add_u32 s21, s21, {WP}
    s_mul_i32 s22, s17, 3072
    s_add_u32 s22, s22, 0x4000
    s_mul_i32 s24, s20, {3*16*4}
    s_add_u32 s24, s24, {CSUM}
    s_lshl_b32 s38, s37, 2
    s_add_u32 s38, s38, s16
    s_mul_i32 s38, s38, {NKS2*1024}
    s_mul_i32 s23, s29, {22*1024}
    s_add_u32 s38, s38, s23
    s_add_u32 s38, s38, {WD}
    """)
    def group_parts(t):
        base = (t & 3) * SLOT
        parts = [f"""
        s_add_u32 m0, s19, {base}
        s_nop 0
        buffer_load_dwordx4 v{VDMA}, s[8:11], s18 offen lds
        s_add_u32 s18, s18, 0x2000
        """, f"""
        s_add_u32 m0, s22, {base}
        s_nop 0
        buffer_load_dwordx4 v{VW}, s[8:11], s21 offen lds
        """, f"""
        buffer_load_dwordx4 v{VW}, s[8:11], s21 offen offset:1024 lds
        """, f"""
        buffer_load_dwordx4 v{VW}, s[8:11], s21 offen offset:2048 lds
        s_add_u32 s21, s21, 0x1800
        """, f"""
        s_add_u32 m0, s19, {base + 8192}
        s_nop 0
        buffer_load_dwordx4 v{VDMA}, s[8:11], s18 offen lds
        s_add_u32 s18, s18, 0x2000
        """]
        return parts
    def wd_part(i):
        p = f"buffer_load_dwordx4 {wdreg(i)}, v{VW}, s[8:11], s38 offen offset:{1024*(i&3)}"
        if (i & 3) == 3: p += "\ns_add_u32 s38, s38, 0x1000"
        return p
    def common_addr():
        k(f"""
        s_mov_b32 s43, {fl(1.0/512)}
        s_mov_b32 s44, {fl(1e-5)}
        s_mov_b32 s45, {fl(-LOG2E)}
        v_lshrrev_b32 v{TMP}, 2, v{VT1}
        v_lshl_add_u32 v{TMP}, v{VT2}, 2, v{TMP}          ; 4g + r
        v_and_b32 v{TMP+1}, 7, v{TMP}                     ; xi
        v_and_b32 v{TMP+2}, 3, v{VT1}
        v_lshlrev_b32 v{TMP+2}, 3, v{TMP+2}
        v_lshl_add_u32 v{TMP+2}, v{TMP}, 8, v{TMP+2}
        v_mul_u32_u24 v{VRES}, {XP}, v{VT1}
        v_lshl_add_u32 v{VRES}, v{VT2}, 4, v{VRES}
        s_lshl_b32 s39, s37, 2
        s_add_u32 s39, s39, s16
        s_mul_i32 s39, s39, {16*XP}
        s_lshl_b32 s40, s36, 7
        s_add_u32 s39, s39, s40
        s_lshl_b32 s40, s29, 6
        s_add_u32 s39, s39, s40
        s_lshr_b32 s40, s36, 1
        s_lshl_b32 s40, s40, 17
        s_add_u32 s40, s40, s30
        s_lshl_b32 s26, s37, 2
        s_add_u32 s26, s26, s16
        s_lshl_b32 s26, s26, 12
        s_add_u32 s40, s40, s26
        s_and_b32 s26, s36, 1
        s_lshl_b32 s26, s26, 1
        s_add_u32 s26, s26, s29
        s_lshl_b32 s26, s26, 1
        v_lshrrev_b32 v{TMP+3}, 1, v{VT2}
        v_add_u32 v{TMP+3}, s26, v{TMP+3}
        v_and_b32 v{TMP+4}, 7, v{VT1}
        v_xor_b32 v{TMP+3}, v{TMP+3}, v{TMP+4}
        v_lshlrev_b32 v{TMP+3}, 5, v{TMP+3}
        v_lshl_add_u32 v{TMP+3}, v{VT1}, 8, v{TMP+3}
        v_and_b32 v{TMP+4}, 1, v{VT2}
        v_lshl_add_u32 v{VRES2}, v{TMP+4}, 4, v{TMP+3}
        """)
    res_parts = [f"buffer_load_dwordx4 v[{RES}:{RES+3}], v{VRES2}, s[8:11], s40 offen"]
    common_addr()
    k("s_lshl_b32 s25, s29, 2")
    for b in range(4):
        k(f"""
        s_add_u32 s26, s25, {b}
        v_xor_b32 v{TMP+3}, s26, v{TMP+1}
        v_lshl_add_u32 v{XA+b}, v{TMP+3}, 5, v{TMP+2}
        v_add_u32 v{XA+4+b}, {2*SLOT}, v{XA+b}
        """)
    k(f"""
    s_mul_i32 s26, s16, 3072
    s_add_u32 s26, s26, 0x4000
    v_add_u32 v{WA}, s26, v{VW}
    v_add_u32 v{WA+1}, {2*SLOT}, v{WA}
    """)
    def late_addr():
        k(f"""
        v_bfe_u32 v{TMP}, v{VT1}, 2, 1                    ; half
        v_mul_u32_u24 v{TMP+4}, 3072, v{TMP}
        v_lshrrev_b32 v{TMP}, 3, v{VT1}
        v_lshl_add_u32 v{TMP+4}, v{TMP}, 6, v{TMP+4}
        v_and_b32 v{TMP}, 3, v{VT1}
        v_lshl_add_u32 v{TMP+4}, v{TMP}, 4, v{TMP+4}
        v_lshl_add_u32 v{TMP+4}, v{VT2}, 8, v{TMP+4}
        s_lshl_b32 s26, s16, 10
        s_cmp_eq_u32 s16, 3
        s_cselect_b32 s26, 12, s26
        s_cselect_b32 s27, 0x400, 4
        s_mul_i32 s28, s29, 12288
        s_add_u32 s26, s26, s28
        v_add_u32 v{SA}, s26, v{TMP+4}
        v_add_u32 v{SA+1}, s27, v{SA}
        v_add_u32 v{SA+2}, s27, v{SA+1}
        v_lshlrev_b32 v{VSTX}, 2, v{VT1}
        s_lshl_b32 s41, s14, 9
        s_lshl_b32 s26, s29, 8
        s_add_u32 s41, s41, s26
        s_add_u32 s41, s41, s33
        s_and_b32 s27, s17, 1
        s_and_b32 s28, s17, 2
        s_lshl_b32 s28, s28, 1
        s_or_b32 s27, s27, s28
        s_lshl_b32 s28, s29, 1
        s_or_b32 s27, s27, s28
        s_mul_i32 s26, s27, 3072
        v_add_u32 v{VPUB}, s26, v{VW}
        s_lshl_b32 s42, s14, 3
        s_add_u32 s42, s42, s27
        s_mul_i32 s42, s42, {HKS*1024}
        s_mul_i32 s26, s15, 3072
        s_add_u32 s42, s42, s26
        s_add_u32 s42, s42, s31
        v_lshlrev_b32 v{VCS}, 4, v{VT2}
        """)
    late_addr()
    k(f"""
    v_lshrrev_b32 v{TMP+6}, 3, v{VT0}
    v_mul_u32_u24 v{TMP+6}, {XP}, v{TMP+6}
    v_and_b32 v{TMP+7}, 7, v{VT0}
    v_lshl_add_u32 v{TMP+6}, v{TMP+7}, 5, v{TMP+6}
    s_lshl_b32 s46, s37, 3
    s_add_u32 s46, s46, s17
    s_mul_i32 s46, s46, {8*XP}
    s_lshl_b32 s47, s14, 8
    s_add_u32 s46, s46, s47
    s_add_u32 s46, s46, s30
    """)
    if LOCALMAP:
        k(f"""
        s_getreg_b32 s23, hwreg(HW_REG_XCC_ID)
        s_and_b32 s23, s23, 15
        s_add_u32 s23, s23, 1
        s_lshl_b32 s26, s12, 7
        s_add_u32 s56, s56, s26
        s_lshl_b32 s26, s13, 2
        v_mov_b32 v{VID}, s23
        v_mov_b32 v{VID+1}, s26
        v_and_b32 v{VID+2}, 31, v{VT0}
        v_lshlrev_b32 v{VID+2}, 2, v{VID+2}
        """)
    k("s_waitcnt lgkmcnt(0)")
    srd(k, 8, 4, WS_BYTES)
    if M_TOUCH & 1: k(f"buffer_load_dword v{TMP+8}, v{TMP+6}, s[8:11], s46 offen")
    def id_store(tag):
        if LOCALMAP:
            k(f"""
            s_mov_b64 exec, 1
            buffer_store_dword v{VID}, v{VID+1}, s[8:11], s56 offen sc1
            s_mov_b64 exec, -1
            """)
    if M_PRIO:
        k(f"""
        s_cmp_lg_u32 s29, {M_PRIO - 1}
        s_cbranch_scc1 M_NOPRIO
        s_setprio 1
        M_NOPRIO:
        """)
    k("""
    s_cmp_eq_u32 s15, 15
    s_cbranch_scc1 M_STATS
    """)
    def reads(s):
        res = []
        t = s >> 1; hi = (t & 3) >> 1; base = (t & 1) * SLOT
        buf = FR + 28 * (s & 1)
        for tau in range(3):
            r = buf + 16 + 4 * tau
            res.append(f"ds_read_b128 v[{r}:{r+3}], v{WA+hi} offset:{base + (s&1)*12288 + tau*1024}")
        for b in range(4):
            off = base + (s & 1) * 8192
            res.append(f"ds_read_b64_tr_b16 v[{buf+4*b}:{buf+4*b+1}], v{XA+4*hi+b} offset:{off}")
            res.append(f"ds_read_b64_tr_b16 v[{buf+4*b+2}:{buf+4*b+3}], v{XA+4*hi+b} offset:{off+4096}")
        return res
    later = [f"buffer_load_dwordx4 v[{CSR+4*tau}:{CSR+4*tau+3}], v{VCS}, s[8:11], s24 offen offset:{64*tau}" for tau in range(3)]
    later += res_parts
    later += [f"buffer_load_dword v{STV+b}, v{VSTX}, s[8:11], s41 offen offset:{64*b} sc1" for b in range(4)]
    if LOCALMAP: later += [f"buffer_load_dword v{VID+3}, v{VID+2}, s[8:11], s56 offen sc1"]
    n_crit = len(later)
    later += [wd_part(i) for i in range(M_WDM)]
    n_need = len(later)
    later += [wd_part(i) for i in range(M_WDM, 22)]
    vm = []
    def wait_for(tag):
        assert not any(o[1] == tag for o in opq), tag
        idxs = [i for i, x in enumerate(vm) if x == tag]
        if not idxs: return
        idx = max(idxs)
        k(f"s_waitcnt vmcnt({len(vm) - idx - 1})")
        del vm[:idx + 1]
    opq = []
    for u in range(8):
        gp = group_parts(u)
        e0 = max(2*u - 7, 2*u - M_LOOK)
        if M_OLD: e0 = {0: -1, 1: -1, 2: 0, 3: 1}.get(u, 2*u - 6)
        for j in (0, 1, 2): opq.append((gp[j], f"D{2*u}", e0))
        opq.append((gp[3], f"D{2*u}", e0 + 1 if u > (3 if M_OLD else 1) else e0))
        opq.append((gp[4], f"D{2*u+1}", e0 + 1 if u > (3 if M_OLD else 1) else e0))
    for i, p in enumerate(later[:n_need]): opq.append((p, "N" if i < n_crit else "L", -100 if i < n_crit else M_LATE))
    nlater = n_need
    def issue(n, s):
        out = []
        while opq and len(out) < n and opq[0][2] <= s:
            out.append(opq.pop(0))
        return out
    for p, tag, _ in issue(10 if M_OLD else M_PRE, -1):
        k(p); vm.append(tag)
    k("@STAMP 2")
    wait_for("D1" if (M_OLD and not M_FIRST) else "D0")
    k("s_barrier")
    k("@STAMP 3")
    for r in reads(0): k(r)
    EXP = os.environ.get('EXP', '')
    for s in range(16):
        if M_OLD:
            bar = False
            if s == 0 and M_FIRST: wait_for("D1"); bar = True
            if s == 1: wait_for("D3"); bar = True
            elif (s & 1) == 0 and 0 < s < 14: wait_for(f"D{s+3}"); bar = True
            if bar: k("s_barrier")
            k("s_waitcnt lgkmcnt(0)")
        else:
            if s == 0: wait_for("D1")
            elif s < 15 and (s & 1): wait_for(f"D{s+2}")
            k("s_waitcnt lgkmcnt(0)")
            if s < 15 and (s == 0 or (s & 1)): k("s_barrier")
        if s == 8: k("@STAMP 4")
        if s == 3 and LOCALMAP:
            id_store("m"); vm.append("I")
        fill = reads(s + 1) if s < 15 else []
        mf = []
        buf = FR + 28 * (s & 1)
        for b in range(4):
            for tau in range(3):
                a = ACC + (b * 3 + tau) * 4
                c = "0" if s == 0 else f"v[{a}:{a+3}]"
                mf.append(f"v_mfma_f32_16x16x32_bf16 v[{a}:{a+3}], v[{buf+16+4*tau}:{buf+19+4*tau}], v[{buf+4*b}:{buf+4*b+3}], {c}")
        parts = issue((5 if (s < 2 or s >= 12) else 3) if M_OLD else (M_OPS if s < M_RAMP else 3), s)
        step = 12 // max(len(parts), 1)
        slots = {1 + step * j: p for j, p in enumerate(parts)}
        for i, m in enumerate(mf):
            k(m)
            if i < len(fill): k(fill[i])
            if i in slots:
                k(slots[i][0]); vm.append(slots[i][1])
    assert not opq, len(opq)
    assert nlater >= n_need
    k("@STAMP 5")
    wait_for("N")
    k(f"""
    s_mov_b32 s47, 0
    M_STCHK:
    v_min3_u32 v{TMP}, v{STV}, v{STV+1}, v{STV+2}
    v_min_u32 v{TMP}, v{TMP}, v{STV+3}
    v_cmp_eq_u32 vcc, 0, v{TMP}
    s_cmp_eq_u64 vcc, 0
    s_cbranch_scc1 M_STOK
    s_add_u32 s47, s47, 1
    s_cmp_ge_u32 s47, {SPIN_MAX}
    s_cbranch_scc1 M_STOK
    s_sleep 2
    """)
    for b in range(4): k(f"buffer_load_dword v{STV+b}, v{VSTX}, s[8:11], s41 offen offset:{64*b} sc1")
    k("""
    s_waitcnt vmcnt(0)
    s_branch M_STCHK
    M_STOK:
    @STAMP 6
    """)
    if LOCALMAP:
        k(f"""
        v_cmp_ne_u32 vcc, s23, v{VID+3}
        s_cmp_eq_u64 vcc, 0
        s_cselect_b32 s54, 1, 0
        """)
    PB = FR
    def pub():
        for i in range(3):
            k(f"ds_read_b128 v[{PB+4*i}:{PB+4*i+3}], v{VPUB} offset:{1024*i}")
        if LOCALMAP:
            pub.n += 1
            k(f"""
            s_cmp_eq_u32 s54, 0
            s_cbranch_scc1 M_PG{pub.n}
            """)
            for i in range(3):
                k(f"s_waitcnt lgkmcnt({2-i})")
                k(f"buffer_store_dwordx4 v[{PB+4*i}:{PB+4*i+3}], v{VW}, s[8:11], s42 offen offset:{1024*i} {LOC_POL}")
            k(f"s_branch M_PE{pub.n}\nM_PG{pub.n}:")
        for i in range(3):
            k(f"s_waitcnt lgkmcnt({2-i})")
            k(f"buffer_store_dwordx4 v[{PB+4*i}:{PB+4*i+3}], v{VW}, s[8:11], s42 offen offset:{1024*i} sc1")
        if LOCALMAP: k(f"M_PE{pub.n}:")
    pub.n = 0
    for b in range(4):
        m = MR
        k(f"""
        v_and_b32 v{m+2}, 0xffff0000, v{STV+b}        ; s
        v_lshlrev_b32 v{m}, 16, v{STV+b}              ; m
        v_rcp_f32 v{m+1}, v{m+2}
        v_mul_f32 v{m+1}, s45, v{m+1}
        """)
        for tau in range(3):
            a = ACC + (b * 3 + tau) * 4
            c = CSR + 4 * tau
            k(f"""
            v_pk_fma_f32 v[{a}:{a+1}], v[{m}:{m+1}], v[{c}:{c+1}], v[{a}:{a+1}] op_sel_hi:[0,1,1] neg_lo:[1,0,0] neg_hi:[1,0,0]
            v_pk_fma_f32 v[{a+2}:{a+3}], v[{m}:{m+1}], v[{c+2}:{c+3}], v[{a+2}:{a+3}] op_sel_hi:[0,1,1] neg_lo:[1,0,0] neg_hi:[1,0,0]
            v_pk_mul_f32 v[{a}:{a+1}], v[{a}:{a+1}], v[{m}:{m+1}] op_sel:[0,1] op_sel_hi:[1,1]
            v_exp_f32 v{a}, v{a}
            v_exp_f32 v{a+1}, v{a+1}
            """)
            if tau < M_WDE and nlater < len(later):
                k(later[nlater]); nlater += 1
        for tau in range(3):
            a = ACC + (b * 3 + tau) * 4
            k(f"""
            v_pk_fma_f32 v[{a}:{a+1}], v[{a}:{a+1}], v[{m+2}:{m+3}], v[{m+2}:{m+3}] op_sel_hi:[1,0,0]
            v_rcp_f32 v{a}, v{a}
            v_rcp_f32 v{a+1}, v{a+1}
            """)
        for _ in range(M_WDE - 3):
            if nlater < len(later):
                k(later[nlater]); nlater += 1
        for tau in range(3):
            a = ACC + (b * 3 + tau) * 4
            k(f"""
            v_pk_mul_f32 v[{a}:{a+1}], v[{a}:{a+1}], v[{a+2}:{a+3}]
            v_cvt_pk_bf16_f32 v{a}, v{a}, v{a+1}
            ds_write_b32 v{SA+tau}, v{a} offset:{(b>>1)*6144 + (b&1)*128}
            """)
        if b == 1 and SPLITPUB:
            k("""
            s_waitcnt lgkmcnt(0)
            s_barrier
            s_cmp_lg_u32 s29, 0
            s_cbranch_scc1 M_PUB1
            """)
            pub()
            k.label("M_PUB1")
    k("""
    s_waitcnt lgkmcnt(0)
    s_barrier
    @STAMP 7
    """)
    if SPLITPUB:
        k("""
        s_cmp_eq_u32 s29, 0
        s_cbranch_scc1 M_PUB2
        """)
    pub()
    k.label("M_PUB2")
    rest = later[nlater:]
    if not SENT:
        k(f"""
        s_lshl_b32 s26, s14, 4
        s_add_u32 s26, s26, s15
        s_lshl_b32 s26, s26, 7
        s_add_u32 s26, s26, s34
        v_mov_b32 v{TMP}, 1
        v_mov_b32 v{TMP+1}, 0
        s_waitcnt vmcnt(0)
        s_barrier
        s_cmp_lg_u32 s17, 0
        s_cbranch_scc1 M_NOFLAG
        s_mov_b64 exec, 1
        s_cmp_eq_u32 s54, {1 if LOCALMAP else 77}
        s_cbranch_scc1 M_FLOC
        buffer_store_dword v{TMP}, v{TMP+1}, s[8:11], s26 offen sc1
        s_branch M_FEND
        M_FLOC:
        buffer_store_dword v{TMP}, v{TMP+1}, s[8:11], s26 offen
        M_FEND:
        s_mov_b64 exec, -1
        M_NOFLAG:
        """)
    for p in rest: k(p)
    HA = XA
    k(f"""
    M_SYNC:
    @CODEPF3
    s_mov_b32 s55, 0
    M_SYNC2:
    @STAMP 8
    v_mov_b32 v{TMP+10}, 0
    s_lshl_b32 s26, s36, 2
    s_add_u32 s26, s26, s16
    s_mul_i32 s26, s26, {HKS*1024}
    s_mul_i32 s27, s29, {22*1024}
    s_add_u32 s26, s26, s27
    s_add_u32 s26, s26, s31
    s_lshl_b32 s27, s17, 11               ; m0 part
    s_mul_i32 s28, s29, 0x3000
    v_add_u32 v{HA}, s28, v{VW}
    s_lshl_b32 s28, s29, 12
    s_add_u32 s28, s28, 0x1000
    v_add_u32 v{HA+1}, s28, v{VW}
    v_add_u32 v{HA+2}, 0x10000, v{HA}
    v_add_u32 v{HA+3}, 0x10000, v{HA+1}
    v_add_u32 v{HA+4}, 0x20000, v{HA}
    v_add_u32 v{HA+5}, 0x20000, v{HA+1}
    s_cmp_lg_u32 s17, 1
    s_cbranch_scc1 M_WAITB
    """)
    if SENT:
        k(f"""
        s_mul_i32 s28, s36, {4*HKS*1024}
        s_add_u32 s28, s28, s31
        v_min_u32 v{TMP+4}, 14, v{VT1}
        v_mul_u32_u24 v{TMP+4}, 3072, v{TMP+4}
        v_mul_u32_u24 v{TMP+5}, {HKS*1024}, v{VT2}
        v_add_u32 v{TMP+4}, v{TMP+4}, v{TMP+5}
        s_mov_b32 s47, 0
        M_POLL:
        buffer_load_dword v{TMP+5}, v{TMP+4}, s[8:11], s28 offen offset:3056 sc1
        s_waitcnt vmcnt(0)
        v_cmp_eq_u32 vcc, -1, v{TMP+5}
        s_cmp_eq_u64 vcc, 0
        s_cbranch_scc1 M_WAITB
        s_sleep {SENT_SLEEP}
        s_add_u32 s47, s47, 1
        s_cmp_lt_u32 s47, {SPIN_MAX}
        s_cbranch_scc1 M_POLL
        """)
    else:
        k(f"""
        s_lshr_b32 s28, s36, 1
        s_lshl_b32 s28, s28, 11
        s_add_u32 s28, s28, s34
        v_min_u32 v{TMP+4}, 14, v{VT0}
        v_lshlrev_b32 v{TMP+4}, 7, v{TMP+4}
        s_mov_b32 s47, 0
        M_POLL:
        buffer_load_dword v{TMP+5}, v{TMP+4}, s[8:11], s28 offen sc1
        s_waitcnt vmcnt(0)
        v_cmp_eq_u32 vcc, 0, v{TMP+5}
        s_cmp_eq_u64 vcc, 0
        s_cbranch_scc1 M_WAITB
        s_add_u32 s47, s47, 1
        s_cmp_lt_u32 s47, {SPIN_MAX}
        s_cbranch_scc1 M_POLL
        """)
    k(f"""
    M_WAITB:
    s_lshl_b32 s46, s37, 3
    s_add_u32 s46, s46, s17
    s_mul_i32 s46, s46, 2880
    s_mul_i32 s47, s36, {4*HKS*1024}
    s_add_u32 s46, s46, s47
    s_add_u32 s46, s46, s31
    v_min_u32 v{TMP+6}, 44, v{VT0}
    v_lshlrev_b32 v{TMP+6}, 6, v{TMP+6}
    s_barrier
    @STAMP 9
    """)
    if M_TOUCH & 2: k(f"buffer_load_dword v{TMP+8}, v{TMP+6}, s[8:11], s46 offen")
    def hchunk(c):
        return [f"""
        s_add_u32 m0, s27, {(c % 10) * 16384}
        s_nop 0
        buffer_load_dwordx4 v{VW}, s[8:11], s26 offen {H_LD} lds
        """, f"""
        buffer_load_dwordx4 v{VW}, s[8:11], s26 offen offset:1024 {H_LD} lds
        s_add_u32 s26, s26, 0x800
        """]
    HF = 16
    A2 = 0
    def hreads(c):
        res = []
        for i in range(2):
            for lb in range(4):
                off = (c % 10) * 16384 + (lb & 1) * 2048 + i * 1024
                base = HA + 2 * (off >> 16) + (lb >> 1)
                r = HF + 32 * (c & 1) + (i * 4 + lb) * 4
                res.append(f"ds_read_b128 v[{r}:{r+3}], v{base} offset:{off & 0xffff}")
        return res
    iss = M_PRE2
    for c in range(iss):
        for p in hchunk(c): k(p)
    k(f"s_waitcnt vmcnt({2*(iss-1)})")
    k("s_barrier")
    k("@STAMP 10")
    for r in hreads(0): k(r)
    for c in range(11):
        fill = []
        if c < 10:
            k(f"s_waitcnt vmcnt({2*(iss-(c+2))})")
            k("s_barrier")
        k("s_waitcnt lgkmcnt(0)")
        if c < 10: fill = hreads(c + 1)
        parts = []
        for rep_ in range(2):
            if iss < 11 and (iss < 10 or c >= 1) and iss < c + M_AHEAD2:
                parts += hchunk(iss); iss += 1
        slots = {1 + 2 * j: p for j, p in enumerate(parts)}
        n = 0
        for i in range(2):
            for lb in range(4):
                r = HF + 32 * (c & 1) + (i * 4 + lb) * 4
                a = A2 + 4 * lb
                cc = "0" if (c == 0 and i == 0) else f"v[{a}:{a+3}]"
                k(f"v_mfma_f32_16x16x32_bf16 v[{a}:{a+3}], v[{r}:{r+3}], {wdreg(2*c+i)}, {cc}")
                if SENT and (n & 1) == 0: k(f"v_max3_u32 v{TMP+10}, v{r}, v{r+4}, v{TMP+10}")
                if n < len(fill): k(fill[n])
                if n in slots: k(slots[n])
                n += 1
    k("@STAMP 11")
    XB = 65536
    k(f"""
    s_lshl_b32 s26, s17, 11
    s_add_u32 s26, s26, {XB}
    v_add_u32 v{TMP}, s26, v{VW}
    s_xor_b32 s26, s26, 0x2000
    v_add_u32 v{TMP+1}, s26, v{VW}
    """)
    for j in range(4):
        k(f"v_lshlrev_b32 v{32+2*j}, 16, v{RES+j}")
        k(f"v_and_b32 v{33+2*j}, 0xffff0000, v{RES+j}")
    k(f"""
    ds_write_b128 v{TMP}, v[8:11]
    ds_write_b128 v{TMP}, v[12:15] offset:1024
    """)
    if SENT:
        k(f"""
        v_cmp_eq_u32 vcc, -1, v{TMP+10}
        s_cmp_lg_u64 vcc, 0
        s_cselect_b32 s26, 1, 0
        s_lshl_b32 s27, s17, 2
        s_add_u32 s27, s27, {XB + 16384}
        v_mov_b32 v{TMP+11}, s26
        v_mov_b32 v{TMP+12}, s27
        v_and_b32 v{TMP+13}, 7, v{VT0}
        v_lshlrev_b32 v{TMP+13}, 2, v{TMP+13}
        v_add_u32 v{TMP+13}, {XB + 16384}, v{TMP+13}
        ds_write_b32 v{TMP+12}, v{TMP+11}
        """)
    k(f"""
    s_waitcnt lgkmcnt(0)
    s_barrier
    ds_read_b128 v[8:11], v{TMP+1}
    ds_read_b128 v[12:15], v{TMP+1} offset:1024
    """)
    if SENT:
        k(f"""
        ds_read_b32 v{TMP+11}, v{TMP+13}
        s_waitcnt lgkmcnt(0)
        v_cmp_ne_u32 vcc, 0, v{TMP+11}
        s_cmp_eq_u64 vcc, 0
        s_cbranch_scc1 M_OK
        s_add_u32 s55, s55, 1
        s_cmp_lt_u32 s55, 64
        s_cbranch_scc1 M_SYNC2
        M_OK:
        """)
    k("s_waitcnt lgkmcnt(0)")
    OUT = 16
    for j in range(4):
        y0, y1 = A2 + 2*j, A2 + 2*j + 1
        k(f"""
        v_pk_add_f32 v[{y0}:{y1}], v[{y0}:{y1}], v[{y0+8}:{y1+8}]
        v_cvt_pk_bf16_f32 v{y1}, v{y0}, v{y1}
        v_lshlrev_b32 v{y0}, 16, v{y1}
        v_and_b32 v{y1}, 0xffff0000, v{y1}
        v_pk_add_f32 v[{y0}:{y1}], v[{y0}:{y1}], v[{32+2*j}:{33+2*j}]
        v_cvt_pk_bf16_f32 v{OUT+j}, v{y0}, v{y1}
        """)
    k(f"""
    s_cmp_lg_u32 s35, 0
    s_cbranch_scc1 M_FINAL
    s_add_u32 s40, s39, {X2T}
    buffer_store_dwordx4 v[{OUT}:{OUT+3}], v{VRES}, s[8:11], s40 offen {X2_ST}
    """)
    Q = 48
    for j in range(4):
        k(f"""
        v_lshlrev_b32 v{Q+4*j}, 16, v{OUT+j}
        v_and_b32 v{Q+4*j+2}, 0xffff0000, v{OUT+j}
        v_mul_f32 v{Q+4*j+1}, v{Q+4*j}, v{Q+4*j}
        v_mul_f32 v{Q+4*j+3}, v{Q+4*j+2}, v{Q+4*j+2}
        """)
    for q in range(8):
        k(f"v_add_f32_dpp v{Q+q}, v{Q+q}, v{Q+q} row_ror:8 row_mask:0xf bank_mask:0x3")
        k(f"v_add_f32_dpp v{Q+q}, v{Q+q+8}, v{Q+q+8} row_ror:8 row_mask:0xf bank_mask:0xc")
    for q in range(4):
        k(f"v_add_f32_dpp v{Q+q}, v{Q+q}, v{Q+q} row_shl:4 row_mask:0xf bank_mask:0x5")
        k(f"v_add_f32_dpp v{Q+q}, v{Q+q+4}, v{Q+q+4} row_shr:4 row_mask:0xf bank_mask:0xa")
    for q in range(4):
        k(f"v_add_f32_dpp v{Q+q}, v{Q+q}, v{Q+q} quad_perm:[1,0,3,2] row_mask:0xf bank_mask:0xf")
    for q in range(4):
        k(f"v_add_f32_dpp v{Q+q}, v{Q+q}, v{Q+q} quad_perm:[2,3,0,1] row_mask:0xf bank_mask:0xf")
    SB = 98304
    k(f"""
    v_and_b32 v{TMP}, 3, v{VT1}
    v_cmp_eq_u32 s[48:49], 1, v{TMP}
    v_cmp_eq_u32 s[50:51], 2, v{TMP}
    v_cmp_eq_u32 s[52:53], 3, v{TMP}
    v_lshrrev_b32 v{TMP+1}, 2, v{VT1}
    v_lshlrev_b32 v{TMP+1}, 7, v{TMP+1}
    v_lshl_add_u32 v{TMP+1}, v{VT2}, 4, v{TMP+1}
    v_lshl_add_u32 v{TMP+1}, v{TMP}, 2, v{TMP+1}
    s_lshl_b32 s26, s16, 9
    s_lshl_b32 s27, s29, 6
    s_add_u32 s26, s26, s27
    s_add_u32 s26, s26, {SB}
    v_add_u32 v{TMP+1}, s26, v{TMP+1}
    v_cndmask_b32 v{Q}, v{Q}, v{Q+1}, s[48:49]
    v_cndmask_b32 v{Q}, v{Q}, v{Q+2}, s[50:51]
    v_cndmask_b32 v{Q}, v{Q}, v{Q+3}, s[52:53]
    ds_write_b32 v{TMP+1}, v{Q}
    s_lshl_b32 s26, s17, 8
    s_add_u32 s26, s26, {SB}
    v_lshl_add_u32 v{TMP+2}, v{VT0}, 2, s26
    v_lshrrev_b32 v{TMP+3}, 5, v{VT0}
    v_lshlrev_b32 v{TMP+3}, 12, v{TMP+3}
    v_and_b32 v{TMP+4}, 31, v{VT0}
    v_lshl_add_u32 v{TMP+3}, v{TMP+4}, 2, v{TMP+3}
    s_lshl_b32 s26, s36, 7
    s_lshl_b32 s27, s17, 13
    s_add_u32 s26, s26, s27
    s_add_u32 s26, s26, {ST1}
    s_waitcnt lgkmcnt(0)
    s_barrier
    s_cmp_ge_u32 s17, 2
    s_cbranch_scc1 M_NOAT
    ds_read_b32 v{Q}, v{TMP+2}
    ds_read_b32 v{Q+1}, v{TMP+2} offset:512
    ds_read_b32 v{Q+2}, v{TMP+2} offset:1024
    ds_read_b32 v{Q+3}, v{TMP+2} offset:1536
    s_waitcnt lgkmcnt(0)
    v_add_f32 v{Q}, v{Q}, v{Q+1}
    v_add_f32 v{Q+2}, v{Q+2}, v{Q+3}
    v_add_f32 v{Q}, v{Q}, v{Q+2}
    buffer_atomic_add_f32 v{Q}, v{TMP+3}, s[8:11], s26 offen
    M_NOAT:
    @STAMP 12
    @FLUSH 13
    s_endpgm
    M_FINAL:
    """)
    TP = 144; TB2 = 98304
    srd(k, 48, 6, L * D * 2)
    k(f"""
    s_lshl_b32 s26, s16, 4
    v_add_u32 v{TMP}, s26, v{VT1}
    v_mul_u32_u24 v{TMP}, {TP}, v{TMP}
    v_lshl_add_u32 v{TMP}, v{VT2}, 4, v{TMP}
    s_lshl_b32 s26, s29, 6
    s_add_u32 s26, s26, {TB2}
    v_add_u32 v{TMP}, s26, v{TMP}
    ds_write_b128 v{TMP}, v[{OUT}:{OUT+3}]
    v_lshrrev_b32 v{TMP+1}, 2, v{VT1}
    v_lshl_add_u32 v{TMP+1}, v{VT2}, 3, v{TMP+1}
    v_mul_u32_u24 v{TMP+1}, {TP}, v{TMP+1}
    v_and_b32 v{TMP+2}, 3, v{VT1}
    v_lshl_add_u32 v{TMP+1}, v{TMP+2}, 3, v{TMP+1}
    s_lshl_b32 s26, s16, 5
    s_mul_i32 s27, s29, {32*TP}
    s_add_u32 s26, s26, s27
    s_add_u32 s26, s26, {TB2}
    v_add_u32 v{TMP+1}, s26, v{TMP+1}
    v_lshlrev_b32 v{TMP+2}, 10, v{VT1}
    v_lshl_add_u32 v{TMP+2}, v{VT2}, 4, v{TMP+2}
    s_lshl_b32 s26, s36, 2
    s_add_u32 s26, s26, s16
    s_lshl_b32 s26, s26, 14
    s_lshl_b32 s27, s37, 7
    s_add_u32 s26, s26, s27
    s_lshl_b32 s27, s29, 6
    s_add_u32 s26, s26, s27
    s_waitcnt lgkmcnt(0)
    s_barrier
    ds_read_b64_tr_b16 v[32:33], v{TMP+1}
    ds_read_b64_tr_b16 v[34:35], v{TMP+1} offset:{4*TP}
    s_waitcnt lgkmcnt(0)
    buffer_store_dwordx4 v[32:35], v{TMP+2}, s[48:51], s26 offen {OUT_ST}
    @STAMP 12
    @FLUSH 13 last
    M_END:
    s_endpgm
    """)
    k(f"""
    M_STATS:
    s_mov_b32 s47, 0
    M_SL1:
    s_mov_b32 m0, s19
    s_add_u32 s19, s19, 0x2000
    buffer_load_dwordx4 v{VDMA}, s[8:11], s18 offen lds
    s_add_u32 s18, s18, 0x2000
    s_mov_b32 m0, s19
    s_add_u32 s19, s19, 0x2000
    buffer_load_dwordx4 v{VDMA}, s[8:11], s18 offen lds
    s_add_u32 s18, s18, 0x2000
    s_add_u32 s47, s47, 1
    s_cmp_lt_u32 s47, 8
    s_cbranch_scc1 M_SL1
    """)
    id_store("s")
    SACC = 0; ONES = 16
    k(f"""
    v_xor_b32 v{TMP+3}, s17, v{TMP+1}
    v_lshl_add_u32 v{XA}, v{TMP+3}, 5, v{TMP+2}
    """)
    for r in range(8): k(f"v_mov_b32 v{SACC+r}, 0")
    for r in range(4): k(f"v_mov_b32 v{ONES+r}, 0x3f803f80")
    k(f"""
    s_mov_b32 s47, 0
    s_waitcnt vmcnt(0)
    s_barrier
    M_SL2:
    """)
    for u in range(8):
        r = FR + 4 * u
        if u == 7: k("s_waitcnt lgkmcnt(12)")
        k(f"ds_read_b64_tr_b16 v[{r}:{r+1}], v{XA} offset:{u*8192}")
        k(f"ds_read_b64_tr_b16 v[{r+2}:{r+3}], v{XA} offset:{u*8192+4096}")
    k(f"v_add_u32 v{XA}, 0x10000, v{XA}")
    for u in range(8):
        r = FR + 4 * u
        k(f"s_waitcnt lgkmcnt({14 - 2*u})")
        k(f"v_mfma_f32_16x16x32_bf16 v[{SACC}:{SACC+3}], v[{r}:{r+3}], v[{r}:{r+3}], v[{SACC}:{SACC+3}]")
        k(f"v_mfma_f32_16x16x32_bf16 v[{SACC+4}:{SACC+7}], v[{ONES}:{ONES+3}], v[{r}:{r+3}], v[{SACC+4}:{SACC+7}]")
    k(f"""
    s_add_u32 s47, s47, 1
    s_cmp_lt_u32 s47, 2
    s_cbranch_scc1 M_SL2
    v_and_b32 v{TMP}, 3, v{VT1}
    v_cmp_eq_u32 s[48:49], 1, v{TMP}
    v_cmp_eq_u32 s[50:51], 2, v{TMP}
    v_cmp_eq_u32 s[52:53], 3, v{TMP}
    v_lshrrev_b32 v{TMP}, 2, v{VT1}
    v_cmp_eq_u32 s[54:55], v{TMP}, v{VT2}
    v_cndmask_b32 v{SACC}, v{SACC}, v{SACC+1}, s[48:49]
    v_cndmask_b32 v{SACC}, v{SACC}, v{SACC+2}, s[50:51]
    v_cndmask_b32 v{SACC+5}, v{SACC}, v{SACC+3}, s[52:53]
    v_mov_b32 v{SACC+12}, v{SACC+4}
    v_mov_b32 v{SACC+13}, v{SACC+5}
    """)
    stats_pair(k, SACC+4, SACC+5, SACC+12, SACC+13, TMP, keep=(SACC+6, SACC+14))
    k(f"""
    v_lshrrev_b32 v{SACC+4}, 16, v{SACC+4}
    v_or_b32 v{SACC+4}, v{SACC+4}, v{SACC+6}
    v_lshlrev_b32 v{VSTX}, 2, v{VT1}
    s_lshl_b32 s41, s14, 9
    s_lshl_b32 s26, s17, 6
    s_add_u32 s41, s41, s26
    s_add_u32 s41, s41, s33
    s_mov_b64 exec, s[54:55]
    buffer_store_dword v{SACC+4}, v{VSTX}, s[8:11], s41 offen sc1
    s_mov_b64 exec, -1
    """)
    for p in res_parts: k(p)
    for i in range(22): k(wd_part(i))
    k(f"""
    s_barrier
    s_branch M_SYNC
    .p2align 8
    mlpb_kernel:
    s_mov_b32 s30, {X3T}
    s_mov_b32 s31, {HB1}
    s_mov_b32 s33, {STX + 0x2000}
    s_mov_b32 s34, {FLG + 0x8000}
    s_mov_b32 s35, 1
    s_mov_b32 s56, {IDT + 0x400}
    @KID 5
    s_branch M_BODY
    """)
    info = dict(vgpr=NV + 88, sgpr=64, accum=NV, grid=256, block=512, lds=MLP_LDS)
    return k, info

DIAG_KN = {2: ("mlpa", 13), 5: ("mlpb", 13), 3: ("wroles", 2), 6: ("none", 1)}
def emit(path, launches=None):
    kp, ip = gen_prep()
    kc, ic = gen_conv()
    km, im = gen_mlp()
    ic1 = dict(ic); ic1["grid"] = B_E
    infos = {"prep_kernel": ip, "conv1_kernel": ic1, "conv2_kernel": ic, "mlpa_kernel": im, "mlpb_kernel": im}
    if os.environ.get("ORDER"): launches = [x + "_kernel" for x in os.environ["ORDER"].split(",")]
    order = launches or ["prep_kernel", "conv1_kernel", "mlpa_kernel", "conv2_kernel", "mlpb_kernel"]
    hdr = open("cdna_kernels/" + NAME + ".s.ref").read().split("; Override launch")[0]
    out = [hdr.rstrip("\n")]
    for n in order:
        i = infos[n]
        out.append(f"; @launch kernel={n} grid=({i['grid']},1,1) block=({i['block']},1,1) lds={i['lds']}")
    out.append('.amdgcn_target "amdgcn-amd-amdhsa--gfx950"\n.text')
    for n in infos:
        out.append(f".globl {n}\n.type {n},@function")
    out.append(".p2align 8\nprep_kernel:\n" + kp.text())
    for kk in (kc, km):
        out.append(".p2align 8\n" + kk.text())
    for n, i in infos.items():
        out.append(descriptor(n, i["vgpr"], 102 if DIAG else i["sgpr"], i["accum"]))
    open(path, "w").write("\n".join(out))

if __name__ == "__main__":
    emit(sys.argv[1] if len(sys.argv) > 1 else "cdna_kernels/" + NAME + ".s")
```

```python
import sys, struct, re
from asmlib import *

NAME = "interleave_layers__ssm_conv_s4d__glu_gated_glu__prompt"
KA_U, KA_LOGA, KA_AIM, KA_CRE, KA_CIM, KA_LOGDT, KA_DSKIP, KA_BX, KA_WG, KA_WU, KA_WD, KA_OUT, KA_DBG, KA_WS = [8 * i for i in range(14)]
XT0, X1T, X2T, X3T = 0x3000000, 0x3300000, 0x3600000, 0x3900000
ST0, ST1, CSUM = 0x0800000, 0x0804000, 0x0808000
WP = 0x0C00000
WD = 0x1000000
HB = 0x1200000
HB1 = 0x2200000
ZR = 0x0810000; STX = 0x0810000; FLG = 0x0820000
KP = 0x1800000; KCS = 4160; KP_STRIDE = 1536
WS_BYTES = 0x10000000
L, D, F, NST = 2048, 512, 1376, 128
NKS2 = 44
HKS = 45

import os
XP = int(os.environ.get('XP', '4352'))
PREP_W_POL = os.environ.get('PREP_W_POL', 'sc1')
PREP_K_POL = os.environ.get('PREP_K_POL', '')
PREP_X_POL = os.environ.get('PREP_X_POL', '')
LATE_PRIO = int(os.environ.get('LATE_PRIO', '0'))
PREP_PRIO = int(os.environ.get('PREP_PRIO', '0'))
CONV_ST = os.environ.get('CONV_ST', 'sc1')
OUT_ST = os.environ.get('OUT_ST', '')
X2_ST = os.environ.get('X2_ST', 'sc1')
F1_SLEEP = int(os.environ.get('F1_SLEEP', '8'))
CODEPF_BASE = int(os.environ.get('CODEPF_BASE', '0'))
SENT = int(os.environ.get('SENT', '0'))
SPLITPUB = int(os.environ.get('SPLITPUB', '1'))
POISON_POL = os.environ.get('POISON_POL', 'sc1')
SENT_SLEEP = int(os.environ.get('SENT_SLEEP', '2'))
WTOUCH = int(os.environ.get('WTOUCH', '0'))
CODEPF3 = int(os.environ.get('CODEPF3', '0'))
CODEPF2 = int(os.environ.get('CODEPF2', '1'))
TLBPF = int(os.environ.get('TLBPF', '0'))
TLBPF_BASE = int(os.environ.get('TLBPF_BASE', '1216'))
CODEPF = int(os.environ.get('CODEPF', '1'))
DIAG = int(os.environ.get("DIAG", "0"))
DIAG_OFF = 0x4000000
_Kern = Kern
class Kern(_Kern):
    def __call__(self, s):
        for l in s.strip("\n").split("\n"):
            t = l.strip()
            if t.startswith("@WTOUCH"):
                if WTOUCH:
                    super().__call__(f"""
                    s_mul_i32 s15, s3, 5504
                    v_min_u32 v90, 85, v0
                    v_lshl_add_u32 v90, v90, 6, s15
                    global_load_dword v91, v90, s[16:17]
                    global_load_dword v92, v90, s[18:19]
                    global_load_dword v93, v90, s[20:21]
                    """)
                continue
            if t.startswith("@CODEPF3"):
                if CODEPF3:
                    super().__call__(f"""
                    s_cmp_ge_u32 s2, 8
                    s_cbranch_scc1 M_NOPF
                    s_cmp_lt_u32 s17, 2
                    s_cbranch_scc1 M_NOPF
                    s_getpc_b64 s[26:27]
                    M_PFPC:
                    s_sub_u32 s26, s26, M_PFPC-conv1_kernel
                    s_subb_u32 s27, s27, 0
                    s_and_b32 s28, s17, 1
                    s_lshl_b32 s28, s28, 12
                    v_lshl_add_u32 v163, v136, 6, s28
                    global_load_dword v163, v163, s[26:27]
                    M_NOPF:
                    """)
                continue
            if t.startswith("@CNTLOAD"):
                super().__call__("global_load_dword v59, v2, s[28:29] sc1")
                continue
            if t.startswith("@CODEPF"):
                if CODEPF:
                    super().__call__(f"""
                    s_sub_u32 s3, s2, {CODEPF_BASE}
                    s_cmp_ge_u32 s3, 8
                    s_cbranch_scc1 P_NOPF
                    s_getpc_b64 s[6:7]
                    v_lshlrev_b32 v1, 6, v0
                    global_load_dword v94, v1, s[6:7]
                    v_add_u32 v1, 0x4000, v1
                    global_load_dword v95, v1, s[6:7]
                    P_NOPF:
                    """)
                if TLBPF:
                    super().__call__(f"""
                    s_sub_u32 s3, s2, {TLBPF_BASE}
                    s_cmp_ge_u32 s3, 8
                    s_cbranch_scc1 P_NOPF2
                    s_load_dwordx2 s[6:7], s[0:1], {KA_OUT}
                    v_lshlrev_b32 v1, 18, v0
                    v_lshlrev_b32 v2, 13, v0
                    s_waitcnt lgkmcnt(0)
                    global_load_dword v93, v1, s[4:5]
                    global_load_dword v92, v2, s[6:7]
                    P_NOPF2:
                    """)
                continue
            if t.startswith("@"):
                if not DIAG: continue
                p = t.split()
                if p[0] == "@KID":
                    super().__call__(f"s_mov_b32 s59, {DIAG_OFF + int(p[1]) * 0x80000}\ns_mov_b32 s57, {3 if int(p[1]) in (2, 5) else 2}")
                elif p[0] == "@INIT":
                    super().__call__("v_readfirstlane_b32 s58, v0\ns_memrealtime s[64:65]\ns_memtime s[66:67]")
                elif p[0] == "@STAMP":
                    i = int(p[1]); super().__call__(f"s_memtime s[{64+2*i}:{65+2*i}]")
                elif p[0] == "@FLUSH":
                    n = int(p[1])
                    super().__call__(f"""
                    s_waitcnt vmcnt(0)
                    s_memtime s[{64+2*n}:{65+2*n}]
                    s_memrealtime s[{66+2*n}:{67+2*n}]
                    s_waitcnt lgkmcnt(0)
                    s_mov_b64 exec, -1
                    s_lshr_b32 s58, s58, 6
                    s_lshl_b32 s61, s2, s57
                    s_add_u32 s60, s58, s61
                    s_lshl_b32 s60, s60, 6
                    s_add_u32 s60, s60, s59
                    v_mov_b32 v1, s60
                    """)
                    for i in range(n + 2):
                        super().__call__(f"v_mov_b32 v2, s{64+2*i}\nglobal_store_dword v1, v2, s[4:5] offset:{4*i}")
                    super().__call__("s_getreg_b32 s61, hwreg(HW_REG_XCC_ID)\nv_mov_b32 v2, s61\nglobal_store_dword v1, v2, s[4:5] offset:60")
                    if DIAG == 2 and len(p) > 2:
                        lab = f"DG{len(self.lines)}"
                        txt = f"s_or_b32 s60, s2, s58\ns_cmp_lg_u32 s60, 0\ns_cbranch_scc1 {lab}\ns_load_dwordx2 s[62:63], s[0:1], {KA_DBG}\ns_waitcnt vmcnt(0) lgkmcnt(0)\n"
                        j = 0
                        for kid, nn in ((0, 6), (1, 13), (2, 13), (4, 13), (5, 13)):
                            for slot in (0, nn + 1):
                                txt += f"v_mov_b32 v1, {DIAG_OFF + kid * 0x80000 + 4 * slot}\nglobal_load_dword v2, v1, s[4:5] sc1\nv_mov_b32 v3, {4*j}\ns_waitcnt vmcnt(0)\nglobal_store_dword v3, v2, s[62:63]\n"
                                j += 1
                        for kid, slot in ((2, 1), (2, 3), (2, 5), (2, 9), (1, 1), (1, 5)):
                            txt += f"v_mov_b32 v1, {DIAG_OFF + kid * 0x80000 + 4 * slot}\nglobal_load_dword v2, v1, s[4:5] sc1\nv_mov_b32 v3, {4*j}\ns_waitcnt vmcnt(0)\nglobal_store_dword v3, v2, s[62:63]\n"
                            j += 1
                        super().__call__(txt + f"{lab}:")
                continue
            super().__call__(l)

def f2u(x): return struct.unpack("<I", struct.pack("<f", x))[0]
def fl(x): return "0x%08x" % f2u(x)
LOG2E = 1.4426950408889634
L2E_HI = struct.unpack("<f", struct.pack("<f", LOG2E))[0]
L2E_LO = LOG2E - L2E_HI
LN2 = 0.6931471805599453

def srd(k, s, base, nbytes):
    k(f"""
    s_mov_b32 s{s}, s{base}
    s_and_b32 s{s+1}, s{base+1}, 0xffff
    s_mov_b32 s{s+2}, {nbytes:#x}
    s_mov_b32 s{s+3}, 0x20000
    """)

def rnd_bf16(k, dst, a, b=None):
    k(f"v_cvt_pk_bf16_f32 v{dst}, v{a}, v{b if b is not None else a}")

def exp_acc(k, dst, x, t0, t1):
    k(f"""
    v_mul_f32 v{t0}, s40, v{x}
    v_fma_f32 v{t1}, s40, v{x}, -v{t0}
    v_fma_f32 v{t1}, s41, v{x}, v{t1}
    v_exp_f32 v{dst}, v{t0}
    v_mul_f32 v{t1}, s42, v{t1}
    v_fma_f32 v{dst}, v{dst}, v{t1}, v{dst}
    """)

N_K, N_T, N_W, N_D, N_C = 512, 256, 240, 176, 90
WINC = os.environ.get('WINC', 'X')
_sz = {"C": N_C, "W": N_W, "D": N_D, "T": N_T}
B_K = 0
_pos = N_K; PREP_ROLES = []; _base = {}
for r in "CWTD":
    if r not in WINC:
        _base[r] = _pos; _pos += _sz[r]; PREP_ROLES.append((r, _pos))
PREP_WGS = _pos
_pos = 512; CONV_ROLES = []
for r in "CWD":
    if r in WINC:
        _base[r] = _pos; _pos += _sz[r]; CONV_ROLES.append((r, _pos))
B_E = _pos
B_C, B_W, B_T, B_D = _base["C"], _base["W"], _base["T"], _base["D"]
PREP_GROUPS = [("prep.K", 0, N_K, 6)] + [("prep." + r, _base[r], e, 2) for r, e in PREP_ROLES]
_lab = {"C": "P_C", "W": "P_W", "T": "P_TR", "D": "P_D"}
PREP_LDS = 18432
CSU = 4576
KL = 2 * CSU
CRED = KL + 16640
CONV_LDS = CRED + 24576
CPF = int(os.environ.get('CPF', '1'))
CPF_STRIDE = int(os.environ.get('CPF_STRIDE', '128'))
LOCALMAP0 = int(os.environ.get('LOCALMAP', '0'))
PFQ = int(os.environ.get('PFQ', '6144'))
SPIN_MAX = 1 << 20

class Remap:
    def __init__(self, k, voff, smap): self.k = k; self.voff = voff; self.smap = smap
    def __call__(self, t):
        def rv(m):
            if m.group(1): return f"v[{int(m.group(1))+self.voff}:{int(m.group(2))+self.voff}]"
            n = int(m.group(3)); return "v0" if n == 0 else f"v{n+self.voff}"
        t = re.sub(r"\bv\[(\d+):(\d+)\]|\bv(\d+)\b", rv, t)
        def rs(m):
            if m.group(1):
                a = int(m.group(1)); b = int(m.group(2))
                if a in self.smap: return f"s[{self.smap[a]}:{self.smap[a]+b-a}]"
                return m.group(0)
            n = int(m.group(3)); return f"s{self.smap.get(n, n)}"
        t = re.sub(r"\bs\[(\d+):(\d+)\]|\bs(\d+)\b", rs, t)
        self.k(t)
    def label(self, l): self.k.label(l)

class NoPk:
    def __init__(self, k): self.k = k
    def __call__(self, t):
        def f(m):
            d, a, b = int(m.group(1)), int(m.group(2)), int(m.group(3))
            return f"v_add_f32 v{d}, v{a}, v{b}\nv_add_f32 v{d+1}, v{a+1}, v{b+1}"
        self.k(re.sub(r"v_pk_add_f32 v\[(\d+):\d+\], v\[(\d+):\d+\], v\[(\d+):\d+\]", f, t))
    def label(self, l): self.k.label(l)
CONV_NOPK = int(os.environ.get('CONV_NOPK', '1'))

class Remap2:
    def __init__(self, k, vmap): self.k = k; self.vmap = vmap
    def __call__(self, t):
        t = re.sub(r"\bv(\d+)\b", lambda m: f"v{self.vmap.get(int(m.group(1)), int(m.group(1)))}", t)
        self.k(t)

def conv_setup(k):
    k(f"""
    v_readfirstlane_b32 s17, v0
    s_mov_b32 s43, {fl(1.0/512)}
    s_mov_b32 s44, {fl(1e-5)}
    s_mov_b32 s45, {fl(1e-5)}
    s_mov_b32 s46, {fl(1.0/512)}
    s_mov_b32 s47, {fl(1.0/512)}
    s_lshr_b32 s17, s17, 6                ; pi
    s_mul_i32 s12, s2, {XP}
    s_add_u32 s13, s12, s30
    s_lshl_b32 s14, s2, 8
    s_add_u32 s14, s14, s32               ; out: d*256
    s_mul_i32 s15, s2, {KP_STRIDE}
    s_add_u32 s15, s15, {KP}
    s_lshr_b32 s16, s2, 1
    s_lshl_b32 s16, s16, 2
    v_lshlrev_b32 v1, 4, v0               ; tid*16
    v_and_b32 v3, 15, v0                  ; c / r
    v_bfe_u32 v4, v0, 4, 2                ; g
    v_and_b32 v5, 63, v0
    v_lshlrev_b32 v6, 4, v5               ; lane*16
    s_and_b32 s21, s2, 7
    v_bfe_u32 v2, v0, 1, 3
    v_xor_b32 v2, s21, v2
    v_lshlrev_b32 v2, 5, v2
    v_lshrrev_b32 v8, 4, v0
    v_lshl_add_u32 v2, v8, 17, v2
    v_and_b32 v8, 1, v0
    v_lshl_add_u32 v2, v8, 4, v2
    """)

def conv_loads(k, pol=""):
    k(f"""
    buffer_load_dwordx4 v[16:19], v1, s[8:11], s31 offen {pol}
    s_add_u32 s31, s31, 0x1000
    buffer_load_dwordx4 v[20:23], v1, s[8:11], s31 offen {pol}
    s_add_u32 s31, s31, 0x1000
    buffer_load_dwordx4 v[24:27], v1, s[8:11], s31 offen {pol}
    s_add_u32 s31, s31, 0x1000
    buffer_load_dwordx4 v[28:31], v1, s[8:11], s31 offen {pol}
    buffer_load_dwordx4 v[12:15], v1, s[8:11], s13 offen {pol}
    """)

def conv_p3(k):
    k(f"""
    v_mov_b32 v36, 0
    v_mov_b32 v37, 0
    v_mov_b32 v38, 0
    v_mov_b32 v39, 0
    v_bfe_u32 v9, v0, 2, 2
    v_mul_u32_u24 v9, {KCS}, v9
    v_and_b32 v10, 3, v0
    v_min_u32 v10, 2, v10
    v_lshl_add_u32 v9, v10, 4, v9
    ds_write_b128 v9, v[36:39] offset:{KL}
    v_lshlrev_b32 v40, 3, v0
    s_sub_u32 s19, s18, {2 * (0x4300 - 128)}
    """)
    for e in range(11):
        k(f"v_add_u32 v{48+e}, {e-3}, v40")
        if e < 3: k(f"v_max_i32 v{48+e}, 0, v{48+e}")
        k(f"v_cvt_f32_u32 v{60+e}, v{48+e}")
    for e in range(0, 11, 2):
        k(f"v_cvt_pk_bf16_f32 v{72+e//2}, v{60+e}, v{min(61+e, 70)}")
    for e in range(11):
        src = 72 + e // 2
        if e & 1: k(f"v_lshrrev_b32 v{60+e}, 16, v{src}")
        else: k(f"v_and_b32 v{60+e}, 0xffff, v{src}")
        k(f"v_lshl_add_u32 v{60+e}, v{60+e}, 1, s19")
        k(f"v_lshl_add_u32 v{48+e}, v{48+e}, 1, s18")
    k("v_cmp_gt_u32 s[24:25], 17, v0")
    for e in range(11):
        k(f"v_cndmask_b32 v{48+e}, v{60+e}, v{48+e}, s[24:25]")
    k(f"""
    s_and_b32 s21, s17, 1
    s_sub_u32 s22, 56, s21
    s_mul_i32 s21, s21, {CSU}
    v_min_u32 v9, s22, v5
    v_lshl_add_u32 v9, v9, 3, s21
    ds_write_b64 v9, v[36:37]
    v_and_b32 v9, 1, v3
    v_mul_u32_u24 v9, {CSU}, v9
    v_lshrrev_b32 v10, 1, v3
    v_lshlrev_b32 v11, 2, v10
    v_sub_u32 v11, v11, v4
    s_lshl_b32 s21, s17, 2
    s_sub_u32 s21, 15, s21
    v_add_u32 v11, s21, v11
    v_lshl_add_u32 v9, v11, 4, v9         ; v9 = u addr
    v_and_b32 v7, 3, v3
    v_mul_u32_u24 v7, {KCS}, v7
    v_lshrrev_b32 v8, 2, v3
    v_add_u32 v8, v8, v4
    v_lshl_add_u32 v7, v8, 4, v7
    s_lshl_b32 s21, s17, 6
    s_add_u32 s21, s21, {KL}
    v_add_u32 v7, s21, v7                 ; v7 = K addr
    v_xor_b32 v8, v4, v10
    v_and_b32 v8, 3, v8
    v_lshlrev_b32 v8, 1, v8
    v_lshl_add_u32 v8, v10, 3, v8
    v_and_b32 v11, 1, v3
    v_add_u32 v8, v8, v11
    s_lshl_b32 s21, s17, 11
    v_lshl_add_u32 v10, v8, 4, s21
    v_bfe_u32 v8, v0, 2, 3
    v_xor_b32 v11, v8, v0
    v_and_b32 v11, 3, v11
    v_lshlrev_b32 v11, 5, v11
    v_lshl_add_u32 v11, v8, 7, v11
    v_bfe_u32 v8, v0, 5, 1
    v_lshl_add_u32 v11, v8, 10, v11
    s_lshl_b32 s21, s17, 13
    s_add_u32 s21, s21, {CRED}
    s_cmp_eq_u32 s17, 3
    s_cselect_b32 s21, {KL}, s21
    v_add_u32 v11, s21, v11
    """)

def conv_expand(k):
    k("""
    v_cmp_eq_u32 vcc, 0, v0
    s_waitcnt lgkmcnt(0)
    v_cndmask_b32 v48, v48, v36, vcc
    v_cndmask_b32 v49, v49, v36, vcc
    v_cndmask_b32 v50, v50, v36, vcc
    """)
    for sft in range(4):
        for j in range(4):
            k(f"v_lshl_or_b32 v{64+4*sft+j}, v{48+sft+6-2*j}, 16, v{48+sft+7-2*j}")
        k(f"ds_write_b128 v1, v[{64+4*sft}:{67+4*sft}] offset:{KL + sft*KCS + 48}")

def conv_norm(k):
    for j in range(4):
        k(f"""
        v_lshlrev_b32 v40, 16, v{12+j}
        v_and_b32 v41, 0xffff0000, v{12+j}
        v_sub_f32 v40, v40, v{16+4*j}
        v_sub_f32 v41, v41, v{18+4*j}
        v_cvt_pk_bf16_f32 v41, v40, v41
        v_lshlrev_b32 v40, 16, v41
        v_and_b32 v41, 0xffff0000, v41
        v_mul_f32 v40, v40, v{17+4*j}
        v_mul_f32 v41, v41, v{19+4*j}
        v_cvt_pk_bf16_f32 v{32+j}, v40, v41
        """)
    k(f"""
    ds_write_b128 v1, v[32:35] offset:{CSU + 16*28}
    ds_write2_b64 v1, v[32:33], v[34:35] offset0:57 offset1:58
    """)

def gen_prep():
    k = Kern("prep_kernel")
    k(f"""
    @KID 0
    @INIT
    s_load_dwordx2 s[4:5], s[0:1], {KA_WS}
    @CODEPF
    s_sub_u32 s26, s2, {B_K}
    s_cmp_lt_u32 s26, {N_K}
    s_cbranch_scc1 P_KGEN
    """)
    for r, e in PREP_ROLES: k(f"s_cmp_lt_u32 s2, {e}\ns_cbranch_scc1 {_lab[r]}")
    k(f"""
    s_endpgm
    P_WROLES:
    @KID 3
    @INIT
    s_load_dwordx2 s[4:5], s[0:1], {KA_WS}
    """)
    for r, e in CONV_ROLES: k(f"s_cmp_lt_u32 s2, {e}\ns_cbranch_scc1 {_lab[r]}")
    k("s_endpgm")
    k.label("P_KGEN")
    TB = 16384
    k(f"""
    s_load_dwordx4 s[8:11], s[0:1], {KA_LOGA}
    s_load_dwordx4 s[12:15], s[0:1], {KA_CRE}
    s_load_dwordx2 s[16:17], s[0:1], {KA_LOGDT}
    s_mov_b32 s40, {fl(L2E_HI)}
    s_mov_b32 s41, {fl(L2E_LO)}
    s_mov_b32 s42, {fl(LN2)}
    v_lshrrev_b32 v1, 1, v0
    v_and_b32 v1, 0x60, v1
    v_and_or_b32 v1, v0, 31, v1           ; n = 32 w + (lane & 31)
    s_lshl_b32 s3, s26, 8
    v_lshl_add_u32 v2, v1, 1, s3
    s_lshl_b32 s18, s26, 1
    v_mov_b32 v3, s18
    v_readfirstlane_b32 s19, v0
    s_lshr_b32 s19, s19, 6                ; wave
    s_waitcnt lgkmcnt(0)
    global_load_ushort v4, v2, s[8:9]
    global_load_ushort v8, v3, s[16:17]
    global_load_ushort v5, v2, s[10:11]
    global_load_ushort v6, v2, s[12:13]
    global_load_ushort v7, v2, s[14:15]
    v_and_b32 v20, 15, v0                 ; i / j
    v_bfe_u32 v21, v0, 4, 2               ; g
    ; hi0 = 128*(i>>3) + (i&7)
    v_lshrrev_b32 v23, 3, v20
    v_and_b32 v24, 7, v20
    v_lshl_add_u32 v23, v23, 7, v24
    v_cvt_f32_u32 v30, v23
    ; hi1 = (g''<2 ? 256+2g'' : 256*g'') + 128*((i>>1)&1) + 4*(i&1)
    v_lshrrev_b32 v23, 2, v20
    v_lshlrev_b32 v24, 1, v23
    v_add_u32 v24, 0x100, v24
    v_lshlrev_b32 v25, 8, v23
    v_cmp_gt_u32 vcc, 2, v23
    v_cndmask_b32 v24, v25, v24, vcc
    v_bfe_u32 v25, v20, 1, 1
    v_lshl_add_u32 v24, v25, 7, v24
    v_and_b32 v25, 1, v20
    v_lshl_add_u32 v24, v25, 2, v24
    v_cvt_f32_u32 v31, v24
    v_lshlrev_b32 v23, 7, v20
    v_add_u32 v23, 0x400, v23
    v_cvt_f32_u32 v32, v23                ; hi2
    v_lshlrev_b32 v23, 3, v20
    v_cvt_f32_u32 v33, v23                ; lo
    s_lshl_b32 s20, s19, 9
    v_lshl_add_u32 v34, v21, 6, s20
    v_lshrrev_b32 v23, 1, v21
    v_and_b32 v24, 1, v21
    v_lshlrev_b32 v24, 2, v24
    v_lshl_add_u32 v35, v23, 7, v24
    v_lshl_add_u32 v35, v20, 3, v35
    v_mov_b32 v36, 1
    v_mov_b32 v37, 2
    s_cmp_eq_u32 s19, 0
    s_cbranch_scc1 P_KA
    v_lshl_add_u32 v35, v21, 6, v20
    v_add_u32 v35, 0x200, v35
    v_mov_b32 v36, 16
    v_mov_b32 v37, 32
    s_cmp_lg_u32 s19, 1
    s_cbranch_scc1 P_KA
    v_lshl_add_u32 v23, v20, 2, v21
    v_add_u32 v23, 0x100, v23             ; seg1: 256 + g' + 4j ; o1=2 o2=64
    v_lshlrev_b32 v24, 6, v21
    v_lshl_add_u32 v24, v20, 1, v24
    v_add_u32 v24, 0x100, v24             ; seg2: 384 + 64(g'-2) + 2j ; o1=1 o2=32
    v_cmp_gt_u32 vcc, 2, v21
    v_cndmask_b32 v35, v24, v23, vcc
    v_cndmask_b32 v36, 1, 2, vcc
    v_cndmask_b32 v37, 32, 64, vcc
    P_KA:
    v_add_u32 v38, v36, v37
    v_add_lshl_u32 v36, v36, v35, 1
    v_add_lshl_u32 v37, v37, v35, 1
    v_add_lshl_u32 v38, v38, v35, 1
    v_lshlrev_b32 v35, 1, v35
    v_and_b32 v39, 63, v0
    v_lshlrev_b32 v39, 4, v39             ; lane*16
    s_waitcnt vmcnt(3)
    @STAMP 2
    v_lshlrev_b32 v4, 16, v4
    v_lshlrev_b32 v8, 16, v8
    """)
    exp_acc(k, 10, 8, 16, 17)
    exp_acc(k, 11, 4, 18, 19)
    k(f"""
    v_cvt_pk_bf16_f32 v10, v10, v11
    v_and_b32 v11, 0xffff0000, v10        ; eA
    v_lshlrev_b32 v10, 16, v10            ; dt
    v_mul_f32 v12, v11, v10
    v_mul_f32 v12, s40, v12
    v_sub_f32 v12, 0, v12
    s_waitcnt vmcnt(0)
    v_lshlrev_b32 v5, 16, v5
    v_lshlrev_b32 v6, 16, v6
    v_lshlrev_b32 v7, 16, v7
    v_mul_f32 v13, v5, v10
    v_mul_f32 v13, 0.15915494, v13
    v_add_f32 v10, v10, v10
    v_mul_f32 v14, v6, v10                ; 2*Cre*dt
    v_mul_f32 v15, v7, v10                ; 2*Cim*dt
    v_lshlrev_b32 v9, 4, v1
    ds_write_b128 v9, v[12:15]
    v_max3_f32 v16, |v14|, |v15|, 0
    v_max_f32_dpp v16, v16, v16 row_shr:1 row_mask:0xf bank_mask:0xf
    v_max_f32_dpp v16, v16, v16 row_shr:2 row_mask:0xf bank_mask:0xf
    v_max_f32_dpp v16, v16, v16 row_shr:4 row_mask:0xf bank_mask:0xf
    v_max_f32_dpp v16, v16, v16 row_shr:8 row_mask:0xf bank_mask:0xf
    v_max_f32_dpp v16, v16, v16 row_bcast:15 row_mask:0xa bank_mask:0xf
    v_readlane_b32 s23, v16, 31
    s_mov_b32 s20, 0
    @STAMP 3
    v_mov_b32 v16, s23
    v_bfe_u32 v16, v16, 23, 8
    v_max_u32 v16, 14, v16
    v_sub_u32 v17, 0x8c, v16
    v_cvt_f32_i32 v29, v17                ; kf = 140 - e'
    v_mov_b32 v28, 0
    v_subrev_u32 v16, 13, v16
    v_lshlrev_b32 v27, 23, v16            ; Sinv
    P_KLOOP:
    ds_read_b128 v[52:55], v34
    ds_read_b128 v[56:59], v34 offset:16
    ds_read_b128 v[60:63], v34 offset:32
    ds_read_b128 v[64:67], v34 offset:48
    v_add_u32 v34, 0x100, v34
    """)
    for nn in range(4):
        p = 52 + 4 * nn
        k(f"""
        s_waitcnt lgkmcnt({3-nn})
        v_pk_mul_f32 v[2:3], v[30:31], v[{p}:{p+1}] op_sel_hi:[1,0]
        v_pk_fma_f32 v[4:5], v[32:33], v[{p}:{p+1}], v[28:29] op_sel_hi:[1,0,1]
        v_pk_mul_f32 v[6:7], v[30:31], v[{p}:{p+1}] op_sel:[0,1] op_sel_hi:[1,1]
        v_pk_mul_f32 v[8:9], v[32:33], v[{p}:{p+1}] op_sel:[0,1] op_sel_hi:[1,1]
        v_exp_f32 v2, v2
        v_exp_f32 v3, v3
        v_exp_f32 v4, v4
        v_exp_f32 v5, v5
        v_fract_f32 v6, v6
        v_fract_f32 v7, v7
        v_fract_f32 v8, v8
        v_fract_f32 v9, v9
        v_cos_f32 v10, v6
        v_sin_f32 v11, v6
        v_cos_f32 v12, v7
        v_sin_f32 v13, v7
        v_cos_f32 v14, v8
        v_sin_f32 v15, v8
        v_cos_f32 v16, v9
        v_sin_f32 v17, v9
        v_pk_mul_f32 v[10:11], v[10:11], v[2:3] op_sel_hi:[1,0]
        v_pk_mul_f32 v[12:13], v[12:13], v[2:3] op_sel:[0,1] op_sel_hi:[1,1]
        v_pk_mul_f32 v[14:15], v[14:15], v[4:5] op_sel_hi:[1,0]
        v_pk_mul_f32 v[16:17], v[16:17], v[4:5] op_sel:[0,1] op_sel_hi:[1,1]
        v_cvt_pk_f16_f32 v{68+nn}, v10, v11
        v_cvt_pk_f16_f32 v{72+nn}, v12, v13
        v_cvt_pk_f16_f32 v{76+nn}, v14, v15
        v_pk_mul_f32 v[18:19], v[16:17], v[{p+2}:{p+3}] op_sel_hi:[1,0]
        v_pk_fma_f32 v[18:19], v[16:17], v[{p+2}:{p+3}], v[18:19] op_sel:[1,1,0] op_sel_hi:[0,1,1] neg_lo:[1,0,0]
        v_cvt_pk_f16_f32 v{80+nn}, v18, -v19
        """)
    k(f"""
    s_cmp_eq_u32 s20, 1
    s_cbranch_scc1 P_KL2
    v_mfma_f32_16x16x32_f16 v[40:43], v[68:71], v[80:83], 0
    v_mfma_f32_16x16x32_f16 v[44:47], v[72:75], v[80:83], 0
    v_mfma_f32_16x16x32_f16 v[48:51], v[76:79], v[80:83], 0
    s_mov_b32 s20, 1
    s_branch P_KLOOP
    P_KL2:
    v_mfma_f32_16x16x32_f16 v[40:43], v[68:71], v[80:83], v[40:43]
    v_mfma_f32_16x16x32_f16 v[44:47], v[72:75], v[80:83], v[44:47]
    v_mfma_f32_16x16x32_f16 v[48:51], v[76:79], v[80:83], v[48:51]
    @STAMP 4
    s_mul_i32 s20, s19, 3072
    v_add_u32 v2, s20, v39
    s_lshl_b32 s20, s19, 10
    v_add_u32 v3, s20, v39
    """)
    k("v_mov_b32 v26, v27")
    for r in range(40, 52, 2): k(f"v_pk_mul_f32 v[{r}:{r+1}], v[{r}:{r+1}], v[26:27]")
    k(f"""
    ds_write_b128 v2, v[40:43] offset:4096
    ds_write_b128 v2, v[44:47] offset:5120
    ds_write_b128 v2, v[48:51] offset:6144
    s_mul_i32 s3, s26, {KP_STRIDE}
    s_add_u32 s3, s3, {KP}
    v_lshlrev_b32 v1, 4, v0
    v_add_u32 v8, s3, v1
    s_waitcnt lgkmcnt(0)
    s_barrier
    s_cmp_eq_u32 s19, 3
    s_cbranch_scc1 P_KS
    ds_read_b128 v[40:43], v3 offset:4096
    ds_read_b128 v[44:47], v3 offset:{4096+3072}
    ds_read_b128 v[48:51], v3 offset:{4096+6144}
    ds_read_b128 v[4:7], v3 offset:{4096+9216}
    s_waitcnt lgkmcnt(2)
    v_pk_add_f32 v[40:41], v[40:41], v[44:45]
    v_pk_add_f32 v[42:43], v[42:43], v[46:47]
    s_waitcnt lgkmcnt(0)
    v_pk_add_f32 v[48:49], v[48:49], v[4:5]
    v_pk_add_f32 v[50:51], v[50:51], v[6:7]
    v_pk_add_f32 v[40:41], v[40:41], v[48:49]
    v_pk_add_f32 v[42:43], v[42:43], v[50:51]
    v_cvt_pk_bf16_f32 v40, v40, v41
    v_cvt_pk_bf16_f32 v42, v42, v43
    ds_write_b16 v35, v40 offset:{TB}
    ds_write_b16_d16_hi v36, v40 offset:{TB}
    ds_write_b16 v37, v42 offset:{TB}
    ds_write_b16_d16_hi v38, v42 offset:{TB}
    P_KS:
    s_waitcnt lgkmcnt(0)
    s_barrier
    @STAMP 5
    v_cmp_gt_u32 vcc, 0x60, v0
    s_and_saveexec_b64 s[22:23], vcc
    s_cbranch_execz P_KEND
    ds_read_b128 v[40:43], v1 offset:{TB}
    s_waitcnt lgkmcnt(0)
    global_store_dwordx4 v8, v[40:43], s[4:5]
    P_KEND:
    @FLUSH 6
    s_endpgm
    """)
    k.label("P_TR")
    PITCH = 144
    k(f"""
    s_load_dwordx2 s[8:9], s[0:1], {KA_U}
    s_load_dwordx4 s[16:19], s[0:1], {KA_WG}
    s_load_dwordx2 s[20:21], s[0:1], {KA_WD}
    s_sub_u32 s3, s2, {B_T}
    s_lshr_b32 s10, s3, 3                 ; lt (0..31)
    s_and_b32 s11, s3, 7                  ; dt (0..7)
    v_lshrrev_b32 v1, 3, v0               ; row 0..31
    v_and_b32 v2, 7, v0                   ; chunk
    s_lshl_b32 s12, s10, 16               ; lt*64*1024
    s_lshl_b32 s13, s11, 7
    s_add_u32 s12, s12, s13
    v_lshlrev_b32 v3, 10, v1
    v_lshl_add_u32 v3, v2, 4, v3
    v_add_u32 v3, s12, v3
    v_add_u32 v4, 0x8000, v3
    s_waitcnt lgkmcnt(0)
    global_load_dwordx4 v[8:11], v3, s[8:9]
    global_load_dwordx4 v[12:15], v4, s[8:9]
    v_lshrrev_b32 v41, 6, v0
    v_and_b32 v42, 63, v0
    s_lshl_b32 s14, s3, 13                ; 8 rows * 1024
    v_lshlrev_b32 v43, 11, v41
    v_lshl_add_u32 v43, v42, 4, v43
    v_add_u32 v43, s14, v43
    global_load_dwordx4 v[48:51], v43, s[8:9]
    global_load_dwordx4 v[52:55], v43, s[8:9] offset:1024
    s_setprio {LATE_PRIO}
    @WTOUCH
    v_mul_u32_u24 v5, {PITCH}, v1
    v_lshl_add_u32 v5, v2, 4, v5
    v_and_b32 v6, 15, v0                  ; lam
    v_bfe_u32 v7, v0, 4, 2                ; g
    v_lshrrev_b32 v16, 6, v0              ; w
    v_lshrrev_b32 v17, 2, v6              ; r = lam>>2
    v_lshl_add_u32 v17, v7, 3, v17        ; row = 8g + r
    v_mul_u32_u24 v17, {PITCH}, v17
    v_and_b32 v18, 3, v6
    v_lshl_add_u32 v17, v18, 3, v17       ; + c*8
    v_lshl_add_u32 v17, v16, 5, v17       ; + w*32 bytes
    s_mul_i32 s12, s11, {64*XP}
    s_lshl_b32 s13, s10, 7
    s_add_u32 s12, s12, s13
    s_add_u32 s12, s12, {XT0}
    v_lshl_add_u32 v19, v16, 4, v6
    v_mul_u32_u24 v19, {XP}, v19
    v_lshl_add_u32 v19, v7, 4, v19
    v_add_u32 v19, s12, v19
    s_waitcnt vmcnt({5 if WTOUCH else 2})
    ds_write_b128 v5, v[8:11]
    ds_write_b128 v5, v[12:15] offset:{32*PITCH}
    s_waitcnt lgkmcnt(0)
    s_barrier
    ds_read_b64_tr_b16 v[8:9], v17
    ds_read_b64_tr_b16 v[10:11], v17 offset:{4*PITCH}
    ds_read_b64_tr_b16 v[12:13], v17 offset:{32*PITCH}
    ds_read_b64_tr_b16 v[14:15], v17 offset:{36*PITCH}
    s_waitcnt lgkmcnt(0)
    global_store_dwordx4 v19, v[8:11], s[4:5] {PREP_X_POL}
    global_store_dwordx4 v19, v[12:15], s[4:5] offset:64 {PREP_X_POL}
    """)
    k(f"""
    v_mov_b32 v2, v42
    s_lshl_b32 s10, s3, 4
    v_lshlrev_b32 v4, 12, v41
    v_add_u32 v4, s10, v4                 ; w*4096 + wg*16
    v_add_u32 v5, {ST0}, v4
    v_add_u32 v6, {ST1}, v4
    s_waitcnt vmcnt({5 if WTOUCH else 2})
    """)
    for row, (base, sm, sq) in enumerate([(48, 20, 21), (52, 22, 23)]):
        for j in range(4):
            k(f"v_lshlrev_b32 v16, 16, v{base+j}")
            k(f"v_and_b32 v17, 0xffff0000, v{base+j}")
            if j == 0:
                k(f"v_add_f32 v{sm}, v16, v17")
                k(f"v_mul_f32 v{sq}, v16, v16")
            else:
                k(f"v_add_f32 v{sm}, v{sm}, v16")
                k(f"v_add_f32 v{sm}, v{sm}, v17")
                k(f"v_fmac_f32 v{sq}, v16, v16")
            k(f"v_fmac_f32 v{sq}, v17, v17")
    for sh in ("row_shr:1", "row_shr:2", "row_shr:4", "row_shr:8"):
        for r in range(20, 24):
            k(f"v_add_f32_dpp v{r}, v{r}, v{r} {sh} row_mask:0xf bank_mask:0xf bound_ctrl:0")
    for r in range(20, 24):
        k(f"v_add_f32_dpp v{r}, v{r}, v{r} row_bcast:15 row_mask:0xa bank_mask:0xf")
    for r in range(20, 24):
        k(f"v_add_f32_dpp v{r}, v{r}, v{r} row_bcast:31 row_mask:0xc bank_mask:0xf")
    k(f"""
    v_mov_b32 v24, 0
    v_mov_b32 v25, 0
    v_mov_b32 v26, 0
    v_mov_b32 v27, 0
    s_lshl_b32 s10, s3, 9
    s_add_u32 s10, s10, {ZR}
    v_and_b32 v7, 31, v0
    v_lshl_add_u32 v7, v7, 4, s10
    global_store_dwordx4 v7, v[24:27], s[4:5]
    v_cmp_eq_u32 vcc, 63, v2
    s_and_saveexec_b64 s[22:23], vcc
    global_store_dwordx4 v5, v[20:23], s[4:5]
    global_store_dwordx4 v6, v[24:27], s[4:5]
    @FLUSH 2
    s_endpgm
    """)
    k.label("P_W")
    WPITCH = 400
    k(f"""
    s_load_dwordx4 s[8:11], s[0:1], {KA_WG}
    s_sub_u32 s3, s2, {B_W}
    s_lshr_b32 s12, s3, 4                 ; ft
    s_and_b32 s13, s3, 15                 ; s
    """)
    k(f"""
    s_mul_i32 s14, s13, {32*F*2}
    s_mul_i32 s15, s12, 192
    s_add_u32 s14, s14, s15
    s_mul_i32 s16, s12, 12
    s_mov_b32 s17, 0x15555556
    """)
    k(f"v_mov_b32 v5, {F//8}")
    for i in range(2):
        k(f"""
        v_add_u32 v1, {256*i}, v0
        v_mul_hi_u32 v2, v1, s17
        v_mul_u32_u24 v3, 12, v2
        v_sub_u32 v3, v1, v3                  ; chunk
        v_mul_u32_u24 v4, {F*2}, v2
        v_lshl_add_u32 v4, v3, 4, v4
        v_add_u32 v{40+i}, s14, v4
        v_mul_u32_u24 v4, {WPITCH}, v2
        v_lshl_add_u32 v{42+i}, v3, 5, v4
        v_add_u32 v3, s16, v3
        v_cmp_gt_u32 s[{24+2*i}:{25+2*i}], v5, v3
        """)
    for r in range(8, 24): k(f"v_mov_b32 v{r}, 0")
    k(f"""
    v_cmp_gt_u32 vcc, 0x80, v0
    s_and_b64 s[26:27], s[26:27], vcc
    s_waitcnt lgkmcnt(0)
    s_mov_b64 s[28:29], exec
    s_mov_b64 exec, s[24:25]
    s_cbranch_execz P_W1
    global_load_dwordx4 v[8:11], v40, s[8:9]
    global_load_dwordx4 v[12:15], v40, s[10:11]
    P_W1:
    s_mov_b64 exec, s[26:27]
    s_cbranch_execz P_W2
    global_load_dwordx4 v[16:19], v41, s[8:9]
    global_load_dwordx4 v[20:23], v41, s[10:11]
    P_W2:
    s_setprio {LATE_PRIO}
    s_mov_b64 exec, s[28:29]
    s_waitcnt vmcnt(0)
    ds_write2_b32 v42, v8, v9 offset0:0 offset1:2
    ds_write2_b32 v42, v10, v11 offset0:4 offset1:6
    ds_write2_b32 v42, v12, v13 offset0:1 offset1:3
    ds_write2_b32 v42, v14, v15 offset0:5 offset1:7
    s_and_saveexec_b64 s[28:29], vcc
    s_cbranch_execz P_W3
    ds_write2_b32 v43, v16, v17 offset0:0 offset1:2
    ds_write2_b32 v43, v18, v19 offset0:4 offset1:6
    ds_write2_b32 v43, v20, v21 offset0:1 offset1:3
    ds_write2_b32 v43, v22, v23 offset0:5 offset1:7
    P_W3:
    s_mov_b64 exec, s[28:29]
    v_and_b32 v1, 15, v0
    v_bfe_u32 v2, v0, 4, 2
    v_lshrrev_b32 v3, 2, v1
    v_lshl_add_u32 v3, v2, 2, v3
    v_mul_u32_u24 v3, {WPITCH}, v3
    v_and_b32 v4, 3, v1
    v_lshl_add_u32 v3, v4, 3, v3
    v_readfirstlane_b32 s18, v0
    s_lshr_b32 s18, s18, 6                ; w
    s_lshl_b32 s19, s18, 7
    s_mov_b32 s20, 32
    s_cmp_eq_u32 s18, 3
    s_cselect_b32 s19, 96, s19
    s_cselect_b32 s20, 128, s20
    v_add_u32 v3, s19, v3
    v_add_u32 v4, s20, v3
    v_add_u32 v5, s20, v4
    s_lshl_b32 s21, s12, 2
    s_add_u32 s21, s21, s18
    s_lshl_b32 s21, s21, 4
    s_add_u32 s21, s21, s13
    s_mul_i32 s21, s21, 3072
    s_add_u32 s21, s21, {WP}
    v_and_b32 v6, 63, v0
    v_lshlrev_b32 v6, 4, v6
    v_add_u32 v6, s21, v6
    v_add_u32 v7, 0x400, v6
    v_add_u32 v24, 0x800, v6
    s_waitcnt lgkmcnt(0)
    s_barrier
    ds_read_b64_tr_b16 v[8:9], v3
    ds_read_b64_tr_b16 v[10:11], v3 offset:{16*WPITCH}
    ds_read_b64_tr_b16 v[12:13], v4
    ds_read_b64_tr_b16 v[14:15], v4 offset:{16*WPITCH}
    ds_read_b64_tr_b16 v[16:17], v5
    ds_read_b64_tr_b16 v[18:19], v5 offset:{16*WPITCH}
    s_waitcnt lgkmcnt(0)
    global_store_dwordx4 v6, v[8:11], s[4:5] {PREP_W_POL}
    global_store_dwordx4 v7, v[12:15], s[4:5] {PREP_W_POL}
    global_store_dwordx4 v24, v[16:19], s[4:5] {PREP_W_POL}
    @FLUSH 2
    s_endpgm
    """)
    k.label("P_D")
    DPITCH = 272
    k(f"""
    s_load_dwordx2 s[8:9], s[0:1], {KA_WD}
    s_sub_u32 s3, s2, {B_D}
    s_lshr_b32 s12, s3, 2                 ; ks 0..43
    s_and_b32 s13, s3, 3                  ; dq
    v_lshrrev_b32 v1, 4, v0               ; row 0..15 (+16)
    v_and_b32 v2, 15, v0                  ; chunk
    s_lshl_b32 s14, s12, 15               ; ks*32*1024
    s_lshl_b32 s15, s13, 8
    s_add_u32 s14, s14, s15
    v_lshlrev_b32 v3, 10, v1
    v_lshl_add_u32 v3, v2, 4, v3
    v_add_u32 v3, s14, v3
    v_add_u32 v4, 0x4000, v3
    """)
    for r in range(8, 16): k(f"v_mov_b32 v{r}, 0")
    k(f"""
    s_waitcnt lgkmcnt(0)
    s_cmp_ge_u32 s12, 43
    s_cbranch_scc1 P_D1
    global_load_dwordx4 v[8:11], v3, s[8:9]
    global_load_dwordx4 v[12:15], v4, s[8:9]
    P_D1:
    s_setprio {LATE_PRIO}
    v_bfe_u32 v5, v1, 1, 2                ; g
    v_lshrrev_b32 v6, 3, v1               ; dw (0/1)
    v_and_b32 v7, 1, v1
    v_lshl_add_u32 v7, v6, 1, v7
    v_lshl_add_u32 v7, v5, 3, v7          ; rho
    v_mul_u32_u24 v7, {DPITCH}, v7
    v_lshl_add_u32 v7, v2, 4, v7
    v_and_b32 v1, 15, v0
    v_bfe_u32 v2, v0, 4, 2
    v_lshrrev_b32 v16, 6, v0
    v_lshrrev_b32 v3, 2, v1
    v_lshl_add_u32 v3, v2, 3, v3          ; row = 8g + r
    v_mul_u32_u24 v3, {DPITCH}, v3
    v_and_b32 v4, 3, v1
    v_lshl_add_u32 v3, v4, 3, v3          ; + c*8 bytes (4 d)
    v_lshl_add_u32 v3, v16, 6, v3         ; + w*64
    s_lshl_b32 s16, s13, 3
    v_lshl_add_u32 v17, v16, 1, s16
    v_mul_u32_u24 v17, {NKS2*1024}, v17
    v_and_b32 v18, 63, v0
    v_lshl_add_u32 v17, v18, 4, v17
    s_lshl_b32 s16, s12, 10
    s_add_u32 s16, s16, {WD}
    v_add_u32 v17, s16, v17
    v_add_u32 v18, {NKS2*1024}, v17
    s_waitcnt vmcnt(0)
    ds_write_b128 v7, v[8:11]
    ds_write_b128 v7, v[12:15] offset:{4*DPITCH}
    s_waitcnt lgkmcnt(0)
    s_barrier
    ds_read_b64_tr_b16 v[8:9], v3
    ds_read_b64_tr_b16 v[10:11], v3 offset:{4*DPITCH}
    ds_read_b64_tr_b16 v[12:13], v3 offset:32
    ds_read_b64_tr_b16 v[14:15], v3 offset:{4*DPITCH+32}
    s_waitcnt lgkmcnt(0)
    global_store_dwordx4 v17, v[8:11], s[4:5] {PREP_W_POL}
    global_store_dwordx4 v18, v[12:15], s[4:5] {PREP_W_POL}
    @FLUSH 2
    s_endpgm
    """)
    k.label("P_C")
    k(f"""
    s_load_dwordx4 s[8:11], s[0:1], {KA_WG}
    s_sub_u32 s3, s2, {B_C}
    s_and_b32 s12, s3, 1                  ; mat
    s_lshr_b32 s13, s3, 1                 ; cb 0..44
    v_lshrrev_b32 v1, 2, v0
    v_and_b32 v2, 3, v0                   ; chunk
    s_lshl_b32 s14, s13, 6
    v_mul_u32_u24 v4, {F*2}, v1
    v_lshl_add_u32 v4, v2, 4, v4
    v_add_u32 v4, s14, v4
    """)
    for r in range(8, 16): k(f"v_mov_b32 v{r}, 0")
    k(f"""
    s_waitcnt lgkmcnt(0)
    s_cmp_eq_u32 s12, 1
    s_cselect_b32 s8, s10, s8
    s_cselect_b32 s9, s11, s9
    s_cmp_ge_u32 s13, 43
    s_cbranch_scc1 P_C2
    """)
    for i in range(8):
        k(f"global_load_dwordx4 v[{16+4*i}:{19+4*i}], v4, s[8:9]")
        if i < 7: k(f"v_add_u32 v4, {64*F*2}, v4")
    k(f"s_setprio {LATE_PRIO}")
    for i in range(8):
        k(f"s_waitcnt vmcnt({7-i})")
        for j in range(4):
            k(f"v_lshlrev_b32 v6, 16, v{16+4*i+j}")
            k(f"v_and_b32 v7, 0xffff0000, v{16+4*i+j}")
            k(f"v_pk_add_f32 v[{8+2*j}:{9+2*j}], v[{8+2*j}:{9+2*j}], v[6:7]")
    for sh in ("row_shr:4", "row_shr:8"):
        for r in range(8, 16):
            k(f"v_add_f32_dpp v{r}, v{r}, v{r} {sh} row_mask:0xf bank_mask:0xf bound_ctrl:0")
    k(f"""
    P_C2:
    v_lshrrev_b32 v6, 4, v0
    v_lshlrev_b32 v6, 7, v6
    v_lshl_add_u32 v6, v2, 5, v6
    v_and_b32 v7, 12, v0
    v_cmp_eq_u32 vcc, 12, v7
    s_and_saveexec_b64 s[46:47], vcc
    ds_write_b128 v6, v[8:11]
    ds_write_b128 v6, v[12:15] offset:16
    s_mov_b64 exec, s[46:47]
    s_waitcnt lgkmcnt(0)
    s_barrier
    v_cmp_gt_u32 vcc, 32, v0
    s_and_saveexec_b64 s[46:47], vcc
    s_cbranch_execz P_C3
    v_lshlrev_b32 v6, 2, v0
    """)
    for i in range(16):
        k(f"ds_read_b32 v{16+i}, v6 offset:{128*i}")
    k(f"""
    s_mul_i32 s14, s13, 0x5556
    s_lshr_b32 s14, s14, 16               ; ft
    s_mul_i32 s15, s14, 3
    s_sub_u32 s15, s13, s15               ; j
    s_mul_i32 s16, s15, 3
    s_add_u32 s17, s15, 9
    v_lshrrev_b32 v5, 3, v0               ; dw
    v_add_u32 v7, s16, v5
    v_mov_b32 v8, s17
    v_cmp_eq_u32 vcc, 3, v5
    v_cndmask_b32 v7, v7, v8, vcc         ; w*3+tau
    s_mul_i32 s14, s14, 12
    v_add_u32 v7, s14, v7
    v_lshlrev_b32 v7, 4, v7
    v_bfe_u32 v8, v0, 1, 2
    v_lshl_add_u32 v7, v8, 2, v7
    v_and_b32 v8, 1, v0
    v_add_u32 v7, v7, v8
    s_lshl_b32 s14, s12, 1
    v_add_u32 v7, s14, v7
    v_lshlrev_b32 v7, 2, v7
    v_add_u32 v7, {CSUM}, v7
    s_waitcnt lgkmcnt(0)
    """)
    for st in (8, 4, 2, 1):
        for i in range(st):
            k(f"v_add_f32 v{16+i}, v{16+i}, v{16+i+st}")
    k(f"""
    global_store_dword v7, v16, s[4:5]
    P_C3:
    @FLUSH 2
    s_endpgm
    """)
    return k, dict(vgpr=96, sgpr=48, accum=96, grid=PREP_WGS, block=256, lds=PREP_LDS)


def stats_pair(k, sa, qa, sb, qb, t, keep=None):
    for s_, q_ in ((sa, qa), (sb, qb)):
        k(f"""
        v_mul_f32 v{s_}, s43, v{s_}
        v_mul_f32 v{q_}, s43, v{q_}
        v_fma_f32 v{q_}, -v{s_}, v{s_}, v{q_}
        v_max_f32 v{q_}, 0, v{q_}
        v_cvt_pk_bf16_f32 v{q_}, v{s_}, v{q_}
        v_lshlrev_b32 v{s_}, 16, v{q_}
        v_and_b32 v{q_}, 0xffff0000, v{q_}
        v_add_f32 v{q_}, s44, v{q_}
        """)
    k(f"""
    v_cvt_pk_bf16_f32 v{t}, v{qa}, v{qb}
    v_lshlrev_b32 v{qa}, 16, v{t}
    v_and_b32 v{qb}, 0xffff0000, v{t}
    v_sqrt_f32 v{qa}, v{qa}
    v_sqrt_f32 v{qb}, v{qb}
    v_cvt_pk_bf16_f32 v{t}, v{qa}, v{qb}
    v_lshlrev_b32 v{keep[0] if keep else qa}, 16, v{t}
    v_and_b32 v{keep[1] if keep else qb}, 0xffff0000, v{t}
    v_rcp_f32 v{qa}, v{keep[0] if keep else qa}
    v_rcp_f32 v{qb}, v{keep[1] if keep else qb}
    """)


def conv_stats_norm(k, wait_x):
    for i in range(4):
        b = 16 + 4 * i
        k(f"""
        v_pk_mul_f32 v[{b}:{b+1}], v[{b}:{b+1}], s[46:47]
        v_pk_mul_f32 v[{b+2}:{b+3}], v[{b+2}:{b+3}], s[46:47]
        v_fma_f32 v{b+1}, -v{b}, v{b}, v{b+1}
        v_fma_f32 v{b+3}, -v{b+2}, v{b+2}, v{b+3}
        v_cvt_pk_bf16_f32 v{b}, v{b}, v{b+2}          ; (m_a, m_b)
        v_cvt_pk_bf16_f32 v{b+2}, v{b+1}, v{b+3}
        v_and_b32 v{b+1}, 0xffff0000, v{b}
        v_lshlrev_b32 v{b}, 16, v{b}                  ; v[b:b+1] = (m_a, m_b) f32
        v_and_b32 v{b+3}, 0xffff0000, v{b+2}
        v_lshlrev_b32 v{b+2}, 16, v{b+2}
        v_max_f32 v{b+2}, 0, v{b+2}
        v_max_f32 v{b+3}, 0, v{b+3}
        v_pk_add_f32 v[{b+2}:{b+3}], v[{b+2}:{b+3}], s[44:45]
        v_cvt_pk_bf16_f32 v{b+2}, v{b+2}, v{b+3}
        v_and_b32 v{b+3}, 0xffff0000, v{b+2}
        v_lshlrev_b32 v{b+2}, 16, v{b+2}
        v_sqrt_f32 v{b+2}, v{b+2}
        v_sqrt_f32 v{b+3}, v{b+3}
        """)
    for i in range(4):
        b = 16 + 4 * i
        k(f"""
        v_cvt_pk_bf16_f32 v{b+2}, v{b+2}, v{b+3}
        v_and_b32 v{b+3}, 0xffff0000, v{b+2}
        v_lshlrev_b32 v{b+2}, 16, v{b+2}
        v_rcp_f32 v{b+2}, v{b+2}
        v_rcp_f32 v{b+3}, v{b+3}
        """)
    k(wait_x)
    for j in range(4):
        b = 16 + 4 * j
        k(f"""
        v_lshlrev_b32 v40, 16, v{12+j}
        v_and_b32 v41, 0xffff0000, v{12+j}
        v_pk_add_f32 v[40:41], v[40:41], v[{b}:{b+1}] neg_lo:[0,1] neg_hi:[0,1]
        v_cvt_pk_bf16_f32 v41, v40, v41
        v_lshlrev_b32 v40, 16, v41
        v_and_b32 v41, 0xffff0000, v41
        v_pk_mul_f32 v[40:41], v[40:41], v[{b+2}:{b+3}]
        v_cvt_pk_bf16_f32 v{32+j}, v40, v41
        """)
    k(f"""
    ds_write_b128 v1, v[32:35] offset:{CSU + 16*28}
    ds_write2_b64 v1, v[32:33], v[34:35] offset0:57 offset1:58
    """)

def gen_conv():
    k = Kern("conv")
    k(f"""
    conv1_kernel:
    s_cmp_ge_u32 s2, 512
    s_cbranch_scc1 P_WROLES
    s_mov_b32 s34, {0 if 'W' in WINC else 1}
    s_mov_b32 s30, {XT0}
    s_mov_b32 s31, {ST0}
    s_mov_b32 s32, {X1T}
    s_mov_b32 s33, {HB}
    @KID 1
    CONV_BODY:
    s_cmp_ge_u32 s2, 512
    s_cbranch_scc1 CONV_END
    @INIT
    s_load_dwordx2 s[4:5], s[0:1], {KA_WS}
    s_load_dwordx2 s[6:7], s[0:1], {KA_DSKIP}
    """)
    conv_setup(k)
    k(f"""
    s_lshl_b32 s18, s17, 11
    s_add_u32 s18, s18, {CRED}
    """)
    conv_p3(k)
    k("""
    @STAMP 10
    s_waitcnt lgkmcnt(0)
    @STAMP 11
    s_load_dword s20, s[6:7], s16
    """)
    srd(k, 8, 4, WS_BYTES)
    k(f"""
    s_mov_b32 m0, s18
    s_nop 0
    buffer_load_dwordx4 v6, s[8:11], s15 offen lds
    buffer_load_dwordx4 v6, s[8:11], s15 offen offset:1024 lds
    """)
    conv_loads(k)
    npf = 0
    k(f"""
    @STAMP 12
    @STAMP 2
    s_waitcnt vmcnt({5 + npf})
    """)
    for e in range(11):
        k(f"ds_read_u16 v{48+e}, v{48+e}")
    conv_expand(k)
    k(f"""
    s_waitcnt vmcnt({1 + npf})
    @STAMP 3
    """)
    for i in range(4):
        stats_pair(k, 16 + 4*i, 17 + 4*i, 18 + 4*i, 19 + 4*i, 40)
    k(f"s_waitcnt vmcnt({npf})")
    conv_norm(k)
    if CPF:
        if LOCALMAP0:
            k(f"""
            s_lshr_b32 s21, s2, 3
            s_mul_i32 s22, s21, 49152
            s_mul_i32 s23, s17, {PFQ}
            s_add_u32 s22, s22, s23
            s_add_u32 s22, s22, {WP}
            v_min_u32 v38, {PFQ // 128 - 1}, v5
            v_lshlrev_b32 v38, 7, v38
            buffer_load_dword v150, v38, s[8:11], s22 offen
            """)
        else:
            k(f"""
            s_lshr_b32 s21, s2, 3
            s_lshl_b32 s21, s21, 2
            s_add_u32 s21, s21, s17
            s_mul_i32 s22, s21, 6144
            s_and_b32 s23, s2, 1
            s_mul_i32 s23, s23, {8*196608}
            s_add_u32 s22, s22, s23
            s_add_u32 s22, s22, {WP}
            v_lshlrev_b32 v38, 7, v5
            s_cmp_eq_u32 s34, 0
            s_cbranch_scc1 CONV_NOW
            buffer_load_dword v150, v38, s[8:11], s22 offen
            CONV_NOW:
            """)
    if SENT:
        k(f"""
        v_mov_b32 v40, -1
        v_mov_b32 v41, -1
        v_mov_b32 v42, -1
        v_mov_b32 v43, -1
        s_mul_i32 s21, s2, 11520
        s_add_u32 s21, s21, s33
        v_min_u32 v38, {11520 - 8192 - 16}, v1
        buffer_store_dwordx4 v[40:43], v1, s[8:11], s21 offen {POISON_POL}
        s_add_u32 s21, s21, 0x1000
        buffer_store_dwordx4 v[40:43], v1, s[8:11], s21 offen {POISON_POL}
        s_add_u32 s21, s21, 0x1000
        buffer_store_dwordx4 v[40:43], v38, s[8:11], s21 offen {POISON_POL}
        """)
    if CODEPF2:
        k(f"""
        s_cmp_ge_u32 s2, 8
        s_cbranch_scc1 CONV_NOPF
        s_getpc_b64 s[22:23]
        v_lshlrev_b32 v38, 6, v0
        global_load_dword v39, v38, s[22:23]
        CONV_NOPF:
        """)
    k("""
    @STAMP 4
    s_waitcnt lgkmcnt(0)
    s_barrier
    CONV_MAIN2:
    @STAMP 5
    """)
    if CONV_NOPK: k = NoPk(k)
    KF = 48; UB = 16; ACC = 112
    pend = []
    def rd(tag):
        if tag[0] == "U":
            mu = int(tag[1:]); r = UB + 4 * (mu & 3)
            k(f"ds_read_b128 v[{r}:{r+3}], v9 offset:{256*mu}")
        else:
            t = int(tag[1:]); r = KF + 4 * t
            k(f"ds_read_b128 v[{r}:{r+3}], v7 offset:{256*t}")
        pend.append(tag)
    def need(tags):
        idx = max([pend.index(t) for t in tags if t in pend], default=-1)
        if idx >= 0:
            k(f"s_waitcnt lgkmcnt({len(pend) - idx - 1})")
            del pend[:idx + 1]
    queue = ["U0"] + [f"K{t}" for t in range(1, 16, 2)] + ["U1"] + [f"K{t}" for t in range(0, 16, 2)] + ["U2", "U3"]
    for t in queue[:12]: rd(t)
    queue = queue[12:]
    for mu in range(16):
        a = UB + 4 * (mu & 3)
        q0 = max(0, -(-(mu - 1) // 2))
        for q in range(q0, 8):
            tp = 2 * q + 1 - mu
            need([f"U{mu}", f"K{tp}"])
            c = "0" if mu == 0 else f"v[{ACC+4*q}:{ACC+4*q+3}]"
            k(f"v_mfma_f32_16x16x32_bf16 v[{ACC+4*q}:{ACC+4*q+3}], v[{KF+4*tp}:{KF+4*tp+3}], v[{a}:{a+3}], {c}")
            if queue: rd(queue.pop(0))
        if mu + 4 < 16: rd(f"U{mu+4}")
        if mu & 1 and mu >= 3:
            q = (mu - 3) // 2
            k(f"ds_write_b128 v10, v[{ACC+4*q}:{ACC+4*q+3}] offset:{(CRED + (q>>1)*8192 if q < 6 else KL) + (q&1)*1024}")
            pend.append("W")
        if mu == 6:
            assert not any(t[0] == "K" for t in pend + queue)
            k("s_barrier")
    k("@STAMP 6")
    k(f"""
    s_and_b32 s21, s20, 0xffff0000
    s_lshl_b32 s20, s20, 16
    s_bitcmp1_b32 s2, 0
    s_cselect_b32 s20, s21, s20
    """)
    for p in range(4):
        k(f"""
        v_lshlrev_b32 v40, 16, v{32+p}
        v_and_b32 v41, 0xffff0000, v{32+p}
        v_mul_f32 v40, s20, v40
        v_mul_f32 v41, s20, v41
        v_cvt_pk_bf16_f32 v41, v40, v41
        """)
        if p == 0:
            k(f"ds_write_b128 v10, v[{ACC+28}:{ACC+31}] offset:{KL + 1024}")
        k(f"""
        v_lshlrev_b32 v{48+2*p}, 16, v41
        v_and_b32 v{49+2*p}, 0xffff0000, v41
        v_lshlrev_b32 v{56+2*p}, 16, v{12+p}
        v_and_b32 v{57+2*p}, 0xffff0000, v{12+p}
        """)
    k("""
    s_waitcnt lgkmcnt(0)
    s_barrier
    @STAMP 7
    """)
    for src in range(4):
        for t in range(2):
            k(f"ds_read_b128 v[{ACC+8*src+4*t}:{ACC+8*src+4*t+3}], v11 offset:{src*2048 + t*16}")
    k("s_waitcnt lgkmcnt(4)")
    for r in range(0, 8, 2):
        k(f"v_pk_add_f32 v[{ACC+r}:{ACC+r+1}], v[{ACC+r}:{ACC+r+1}], v[{ACC+8+r}:{ACC+9+r}]")
    k("s_waitcnt lgkmcnt(0)")
    for r in range(0, 8, 2):
        k(f"v_pk_add_f32 v[{ACC+16+r}:{ACC+17+r}], v[{ACC+16+r}:{ACC+17+r}], v[{ACC+24+r}:{ACC+25+r}]")
    for r in range(0, 8, 2):
        k(f"v_pk_add_f32 v[{ACC+r}:{ACC+r+1}], v[{ACC+r}:{ACC+r+1}], v[{ACC+16+r}:{ACC+17+r}]")
    k("@STAMP 8")
    for p in range(4):
        y0, y1 = ACC + 2*p, ACC + 2*p + 1
        k(f"""
        v_cvt_pk_bf16_f32 v{y1}, v{y0}, v{y1}
        v_lshlrev_b32 v{y0}, 16, v{y1}
        v_and_b32 v{y1}, 0xffff0000, v{y1}
        v_pk_add_f32 v[{y0}:{y1}], v[{y0}:{y1}], v[{48+2*p}:{49+2*p}]
        v_cvt_pk_bf16_f32 v{y1}, v{y0}, v{y1}
        v_lshlrev_b32 v{y0}, 16, v{y1}
        v_and_b32 v{y1}, 0xffff0000, v{y1}
        v_pk_add_f32 v[{y0}:{y1}], v[{y0}:{y1}], v[{56+2*p}:{57+2*p}]
        v_cvt_pk_bf16_f32 v{44+p}, v{y0}, v{y1}
        """)
    k(f"""
    buffer_store_dwordx4 v[44:47], v2, s[8:11], s14 offen {CONV_ST}
    @STAMP 9
    @FLUSH 13
    CONV_END:
    s_endpgm
    .p2align 8
    conv2_kernel:
    s_mov_b32 s34, 1
    s_mov_b32 s30, {X2T}
    s_mov_b32 s31, {ST1}
    s_mov_b32 s32, {X3T}
    s_mov_b32 s33, {HB1}
    @KID 4
    s_branch CONV_BODY
    """)
    if CONV_NOPK: k = k.k
    info = dict(vgpr=152, sgpr=48, accum=152, grid=512, block=256, lds=CONV_LDS)
    return k, info

MLP_LDS = 163840
H_LD = os.environ.get('H_LD', 'sc1')
M_PRE2 = int(os.environ.get('M_PRE2', '5'))
M_OLD = int(os.environ.get('M_OLD', '1'))
M_FINE = int(os.environ.get('M_FINE', '1'))
M_LOOK = int(os.environ.get('M_LOOK', '5'))
M_TOUCH = int(os.environ.get('M_TOUCH', '0'))
M_PRE = int(os.environ.get('M_PRE', '8'))
M_OPS = int(os.environ.get('M_OPS', '3'))
M_RAMP = int(os.environ.get('M_RAMP', '5'))
M_LATE = int(os.environ.get('M_LATE', '-100'))
LOCALMAP = int(os.environ.get('LOCALMAP', '0'))
LOC_POL = os.environ.get('LOC_POL', 'sc1')
IDT = ZR + 0x4000
M_PRIO = int(os.environ.get('M_PRIO', '0'))
M_FIRST = int(os.environ.get('M_FIRST', '1'))
M_WDM = int(os.environ.get('M_WDM', '6'))
M_WDE = int(os.environ.get('M_WDE', '2'))
M_AHEAD2 = int(os.environ.get('M_AHEAD2', '6'))
SPIN_MAX = 1 << 20
SLOT = 40960
def gen_mlp():
    k = Kern("mlp")
    ACC = 0
    FR = 48
    XA = 104
    WA = 112
    CSR = 114
    STV = 126
    RES = 130
    VDMA, VW, VT0, VT1, VT2 = 134, 135, 136, 137, 138
    SA = 139
    VRES = 142; VSTX = 143; VPUB = 144; VCS = 145
    MR = 146
    TMP = 150
    NV = 168
    VID = TMP + 14
    VRES2 = TMP + 9
    def wdreg(i): return f"a[{4*i}:{4*i+3}]"
    k(f"""
    mlpa_kernel:
    s_mov_b32 s30, {X1T}
    s_mov_b32 s31, {HB}
    s_mov_b32 s33, {STX}
    s_mov_b32 s34, {FLG}
    s_mov_b32 s35, 0
    s_mov_b32 s56, {IDT}
    @KID 2
    M_BODY:
    s_cmp_ge_u32 s2, 256
    s_cbranch_scc1 M_END
    @INIT
    s_load_dwordx2 s[4:5], s[0:1], {KA_WS}
    s_load_dwordx2 s[6:7], s[0:1], {KA_OUT}
    v_readfirstlane_b32 s17, v0
    s_and_b32 s12, s2, 7                  ; xcd
    s_lshr_b32 s13, s2, 3                 ; idx
    """)
    if LOCALMAP:
        k(f"""
        s_lshl_b32 s14, s12, 1
        s_and_b32 s15, s13, 1
        s_add_u32 s14, s14, s15
        s_lshl_b32 s36, s12, 2
        s_and_b32 s15, s13, 3
        s_add_u32 s36, s36, s15
        s_lshr_b32 s37, s13, 2                ; dt
        s_lshr_b32 s15, s13, 1                ; ft
        """)
    else:
        k(f"""
    s_lshr_b32 s14, s12, 1
    s_lshl_b32 s14, s14, 2
    s_and_b32 s15, s13, 3
    s_add_u32 s14, s14, s15               ; lt
    s_lshl_b32 s36, s12, 2
    s_add_u32 s36, s36, s15               ; lt64
    s_lshr_b32 s37, s13, 2                ; dt
    s_and_b32 s15, s12, 1
    s_lshl_b32 s15, s15, 3
    s_add_u32 s15, s15, s37               ; ft
        """)
    k(f"""
    s_lshr_b32 s17, s17, 6                ; w
    s_and_b32 s16, s17, 3
    s_lshr_b32 s29, s17, 2
    v_and_b32 v{VT0}, 63, v0              ; lane
    v_and_b32 v{VT1}, 15, v0              ; lam / j
    v_bfe_u32 v{VT2}, v0, 4, 2            ; g
    v_lshlrev_b32 v{VDMA}, 4, v{VT0}
    v_lshlrev_b32 v{VW}, 4, v{VT0}                    ; lane*16
    s_lshl_b32 s18, s14, 17
    s_add_u32 s18, s18, s30
    s_lshl_b32 s19, s17, 10
    s_add_u32 s18, s18, s19
    s_lshl_b32 s19, s17, 10               ; x m0 part: w*1024
    s_lshl_b32 s20, s15, 2
    s_add_u32 s20, s20, s16
    s_lshl_b32 s21, s20, 4
    s_add_u32 s21, s21, s29
    s_mul_i32 s21, s21, 3072
    s_add_u32 s21, s21, {WP}
    s_mul_i32 s22, s17, 3072
    s_add_u32 s22, s22, 0x4000
    s_mul_i32 s24, s20, {3*16*4}
    s_add_u32 s24, s24, {CSUM}
    s_lshl_b32 s38, s37, 2
    s_add_u32 s38, s38, s16
    s_mul_i32 s38, s38, {NKS2*1024}
    s_mul_i32 s23, s29, {22*1024}
    s_add_u32 s38, s38, s23
    s_add_u32 s38, s38, {WD}
    """)
    def group_parts(t):
        base = (t & 3) * SLOT
        parts = [f"""
        s_add_u32 m0, s19, {base}
        s_nop 0
        buffer_load_dwordx4 v{VDMA}, s[8:11], s18 offen lds
        s_add_u32 s18, s18, 0x2000
        """, f"""
        s_add_u32 m0, s22, {base}
        s_nop 0
        buffer_load_dwordx4 v{VW}, s[8:11], s21 offen lds
        """, f"""
        buffer_load_dwordx4 v{VW}, s[8:11], s21 offen offset:1024 lds
        """, f"""
        buffer_load_dwordx4 v{VW}, s[8:11], s21 offen offset:2048 lds
        s_add_u32 s21, s21, 0x1800
        """, f"""
        s_add_u32 m0, s19, {base + 8192}
        s_nop 0
        buffer_load_dwordx4 v{VDMA}, s[8:11], s18 offen lds
        s_add_u32 s18, s18, 0x2000
        """]
        return parts
    def wd_part(i):
        p = f"buffer_load_dwordx4 {wdreg(i)}, v{VW}, s[8:11], s38 offen offset:{1024*(i&3)}"
        if (i & 3) == 3: p += "\ns_add_u32 s38, s38, 0x1000"
        return p
    def common_addr():
        k(f"""
        s_mov_b32 s43, {fl(1.0/512)}
        s_mov_b32 s44, {fl(1e-5)}
        s_mov_b32 s45, {fl(-LOG2E)}
        v_lshrrev_b32 v{TMP}, 2, v{VT1}
        v_lshl_add_u32 v{TMP}, v{VT2}, 2, v{TMP}          ; 4g + r
        v_and_b32 v{TMP+1}, 7, v{TMP}                     ; xi
        v_and_b32 v{TMP+2}, 3, v{VT1}
        v_lshlrev_b32 v{TMP+2}, 3, v{TMP+2}
        v_lshl_add_u32 v{TMP+2}, v{TMP}, 8, v{TMP+2}
        v_mul_u32_u24 v{VRES}, {XP}, v{VT1}
        v_lshl_add_u32 v{VRES}, v{VT2}, 4, v{VRES}
        s_lshl_b32 s39, s37, 2
        s_add_u32 s39, s39, s16
        s_mul_i32 s39, s39, {16*XP}
        s_lshl_b32 s40, s36, 7
        s_add_u32 s39, s39, s40
        s_lshl_b32 s40, s29, 6
        s_add_u32 s39, s39, s40
        s_lshr_b32 s40, s36, 1
        s_lshl_b32 s40, s40, 17
        s_add_u32 s40, s40, s30
        s_lshl_b32 s26, s37, 2
        s_add_u32 s26, s26, s16
        s_lshl_b32 s26, s26, 12
        s_add_u32 s40, s40, s26
        s_and_b32 s26, s36, 1
        s_lshl_b32 s26, s26, 1
        s_add_u32 s26, s26, s29
        s_lshl_b32 s26, s26, 1
        v_lshrrev_b32 v{TMP+3}, 1, v{VT2}
        v_add_u32 v{TMP+3}, s26, v{TMP+3}
        v_and_b32 v{TMP+4}, 7, v{VT1}
        v_xor_b32 v{TMP+3}, v{TMP+3}, v{TMP+4}
        v_lshlrev_b32 v{TMP+3}, 5, v{TMP+3}
        v_lshl_add_u32 v{TMP+3}, v{VT1}, 8, v{TMP+3}
        v_and_b32 v{TMP+4}, 1, v{VT2}
        v_lshl_add_u32 v{VRES2}, v{TMP+4}, 4, v{TMP+3}
        """)
    res_parts = [f"buffer_load_dwordx4 v[{RES}:{RES+3}], v{VRES2}, s[8:11], s40 offen"]
    common_addr()
    k("s_lshl_b32 s25, s29, 2")
    for b in range(4):
        k(f"""
        s_add_u32 s26, s25, {b}
        v_xor_b32 v{TMP+3}, s26, v{TMP+1}
        v_lshl_add_u32 v{XA+b}, v{TMP+3}, 5, v{TMP+2}
        v_add_u32 v{XA+4+b}, {2*SLOT}, v{XA+b}
        """)
    k(f"""
    s_mul_i32 s26, s16, 3072
    s_add_u32 s26, s26, 0x4000
    v_add_u32 v{WA}, s26, v{VW}
    v_add_u32 v{WA+1}, {2*SLOT}, v{WA}
    """)
    def late_addr():
        k(f"""
        v_bfe_u32 v{TMP}, v{VT1}, 2, 1                    ; half
        v_mul_u32_u24 v{TMP+4}, 3072, v{TMP}
        v_lshrrev_b32 v{TMP}, 3, v{VT1}
        v_lshl_add_u32 v{TMP+4}, v{TMP}, 6, v{TMP+4}
        v_and_b32 v{TMP}, 3, v{VT1}
        v_lshl_add_u32 v{TMP+4}, v{TMP}, 4, v{TMP+4}
        v_lshl_add_u32 v{TMP+4}, v{VT2}, 8, v{TMP+4}
        s_lshl_b32 s26, s16, 10
        s_cmp_eq_u32 s16, 3
        s_cselect_b32 s26, 12, s26
        s_cselect_b32 s27, 0x400, 4
        s_mul_i32 s28, s29, 12288
        s_add_u32 s26, s26, s28
        v_add_u32 v{SA}, s26, v{TMP+4}
        v_add_u32 v{SA+1}, s27, v{SA}
        v_add_u32 v{SA+2}, s27, v{SA+1}
        v_lshlrev_b32 v{VSTX}, 2, v{VT1}
        s_lshl_b32 s41, s14, 9
        s_lshl_b32 s26, s29, 8
        s_add_u32 s41, s41, s26
        s_add_u32 s41, s41, s33
        s_and_b32 s27, s17, 1
        s_and_b32 s28, s17, 2
        s_lshl_b32 s28, s28, 1
        s_or_b32 s27, s27, s28
        s_lshl_b32 s28, s29, 1
        s_or_b32 s27, s27, s28
        s_mul_i32 s26, s27, 3072
        v_add_u32 v{VPUB}, s26, v{VW}
        s_lshl_b32 s42, s14, 3
        s_add_u32 s42, s42, s27
        s_mul_i32 s42, s42, {HKS*1024}
        s_mul_i32 s26, s15, 3072
        s_add_u32 s42, s42, s26
        s_add_u32 s42, s42, s31
        v_lshlrev_b32 v{VCS}, 4, v{VT2}
        """)
    late_addr()
    k(f"""
    v_lshrrev_b32 v{TMP+6}, 3, v{VT0}
    v_mul_u32_u24 v{TMP+6}, {XP}, v{TMP+6}
    v_and_b32 v{TMP+7}, 7, v{VT0}
    v_lshl_add_u32 v{TMP+6}, v{TMP+7}, 5, v{TMP+6}
    s_lshl_b32 s46, s37, 3
    s_add_u32 s46, s46, s17
    s_mul_i32 s46, s46, {8*XP}
    s_lshl_b32 s47, s14, 8
    s_add_u32 s46, s46, s47
    s_add_u32 s46, s46, s30
    """)
    if LOCALMAP:
        k(f"""
        s_getreg_b32 s23, hwreg(HW_REG_XCC_ID)
        s_and_b32 s23, s23, 15
        s_add_u32 s23, s23, 1
        s_lshl_b32 s26, s12, 7
        s_add_u32 s56, s56, s26
        s_lshl_b32 s26, s13, 2
        v_mov_b32 v{VID}, s23
        v_mov_b32 v{VID+1}, s26
        v_and_b32 v{VID+2}, 31, v{VT0}
        v_lshlrev_b32 v{VID+2}, 2, v{VID+2}
        """)
    k("s_waitcnt lgkmcnt(0)")
    srd(k, 8, 4, WS_BYTES)
    if M_TOUCH & 1: k(f"buffer_load_dword v{TMP+8}, v{TMP+6}, s[8:11], s46 offen")
    def id_store(tag):
        if LOCALMAP:
            k(f"""
            s_mov_b64 exec, 1
            buffer_store_dword v{VID}, v{VID+1}, s[8:11], s56 offen sc1
            s_mov_b64 exec, -1
            """)
    if M_PRIO:
        k(f"""
        s_cmp_lg_u32 s29, {M_PRIO - 1}
        s_cbranch_scc1 M_NOPRIO
        s_setprio 1
        M_NOPRIO:
        """)
    k("""
    s_cmp_eq_u32 s15, 15
    s_cbranch_scc1 M_STATS
    """)
    def reads(s):
        res = []
        t = s >> 1; hi = (t & 3) >> 1; base = (t & 1) * SLOT
        buf = FR + 28 * (s & 1)
        for tau in range(3):
            r = buf + 16 + 4 * tau
            res.append(f"ds_read_b128 v[{r}:{r+3}], v{WA+hi} offset:{base + (s&1)*12288 + tau*1024}")
        for b in range(4):
            off = base + (s & 1) * 8192
            res.append(f"ds_read_b64_tr_b16 v[{buf+4*b}:{buf+4*b+1}], v{XA+4*hi+b} offset:{off}")
            res.append(f"ds_read_b64_tr_b16 v[{buf+4*b+2}:{buf+4*b+3}], v{XA+4*hi+b} offset:{off+4096}")
        return res
    later = [f"buffer_load_dwordx4 v[{CSR+4*tau}:{CSR+4*tau+3}], v{VCS}, s[8:11], s24 offen offset:{64*tau}" for tau in range(3)]
    later += res_parts
    later += [f"buffer_load_dword v{STV+b}, v{VSTX}, s[8:11], s41 offen offset:{64*b} sc1" for b in range(4)]
    if LOCALMAP: later += [f"buffer_load_dword v{VID+3}, v{VID+2}, s[8:11], s56 offen sc1"]
    n_crit = len(later)
    later += [wd_part(i) for i in range(M_WDM)]
    n_need = len(later)
    later += [wd_part(i) for i in range(M_WDM, 22)]
    vm = []
    def wait_for(tag):
        assert not any(o[1] == tag for o in opq), tag
        idxs = [i for i, x in enumerate(vm) if x == tag]
        if not idxs: return
        idx = max(idxs)
        k(f"s_waitcnt vmcnt({len(vm) - idx - 1})")
        del vm[:idx + 1]
    opq = []
    for u in range(8):
        gp = group_parts(u)
        e0 = max(2*u - 7, 2*u - M_LOOK)
        if M_OLD: e0 = {0: -1, 1: -1, 2: 0, 3: 1}.get(u, 2*u - 6)
        for j in (0, 1, 2): opq.append((gp[j], f"D{2*u}", e0))
        opq.append((gp[3], f"D{2*u}", e0 + 1 if u > (3 if M_OLD else 1) else e0))
        opq.append((gp[4], f"D{2*u+1}", e0 + 1 if u > (3 if M_OLD else 1) else e0))
    for i, p in enumerate(later[:n_need]): opq.append((p, "N" if i < n_crit else "L", -100 if i < n_crit else M_LATE))
    nlater = n_need
    def issue(n, s):
        out = []
        while opq and len(out) < n and opq[0][2] <= s:
            out.append(opq.pop(0))
        return out
    for p, tag, _ in issue(10 if M_OLD else M_PRE, -1):
        k(p); vm.append(tag)
    k("@STAMP 2")
    wait_for("D1" if (M_OLD and not M_FIRST) else "D0")
    k("s_barrier")
    k("@STAMP 3")
    for r in reads(0): k(r)
    EXP = os.environ.get('EXP', '')
    for s in range(16):
        if M_OLD:
            bar = False
            if s == 0 and M_FIRST: wait_for("D1"); bar = True
            if s == 1: wait_for("D3"); bar = True
            elif (s & 1) == 0 and 0 < s < 14: wait_for(f"D{s+3}"); bar = True
            if bar: k("s_barrier")
            k("s_waitcnt lgkmcnt(0)")
        elif M_FINE:
            if s < 15: wait_for(f"D{s+1}")
            k("s_waitcnt lgkmcnt(0)")
            if s < 15: k("s_barrier")
        else:
            if s == 0: wait_for("D1")
            elif s < 15 and (s & 1): wait_for(f"D{s+2}")
            k("s_waitcnt lgkmcnt(0)")
            if s < 15 and (s == 0 or (s & 1)): k("s_barrier")
        if s == 8: k("@STAMP 4")
        if s == 3 and LOCALMAP:
            id_store("m"); vm.append("I")
        fill = reads(s + 1) if s < 15 else []
        mf = []
        buf = FR + 28 * (s & 1)
        for b in range(4):
            for tau in range(3):
                a = ACC + (b * 3 + tau) * 4
                c = "0" if s == 0 else f"v[{a}:{a+3}]"
                mf.append(f"v_mfma_f32_16x16x32_bf16 v[{a}:{a+3}], v[{buf+16+4*tau}:{buf+19+4*tau}], v[{buf+4*b}:{buf+4*b+3}], {c}")
        parts = issue((5 if (s < 2 or s >= 12) else 3) if M_OLD else (M_OPS if s < M_RAMP else (5 if s >= 12 else 3)), s)
        step = 12 // max(len(parts), 1)
        slots = {1 + step * j: p for j, p in enumerate(parts)}
        for i, m in enumerate(mf):
            k(m)
            if i < len(fill): k(fill[i])
            if i in slots:
                k(slots[i][0]); vm.append(slots[i][1])
    assert not opq, len(opq)
    assert nlater >= n_need
    k("@STAMP 5")
    wait_for("N")
    k(f"""
    s_mov_b32 s47, 0
    M_STCHK:
    v_min3_u32 v{TMP}, v{STV}, v{STV+1}, v{STV+2}
    v_min_u32 v{TMP}, v{TMP}, v{STV+3}
    v_cmp_eq_u32 vcc, 0, v{TMP}
    s_cmp_eq_u64 vcc, 0
    s_cbranch_scc1 M_STOK
    s_add_u32 s47, s47, 1
    s_cmp_ge_u32 s47, {SPIN_MAX}
    s_cbranch_scc1 M_STOK
    s_sleep 2
    """)
    for b in range(4): k(f"buffer_load_dword v{STV+b}, v{VSTX}, s[8:11], s41 offen offset:{64*b} sc1")
    k("""
    s_waitcnt vmcnt(0)
    s_branch M_STCHK
    M_STOK:
    @STAMP 6
    """)
    if LOCALMAP:
        k(f"""
        v_cmp_ne_u32 vcc, s23, v{VID+3}
        s_cmp_eq_u64 vcc, 0
        s_cselect_b32 s54, 1, 0
        """)
    PB = FR
    def pub():
        for i in range(3):
            k(f"ds_read_b128 v[{PB+4*i}:{PB+4*i+3}], v{VPUB} offset:{1024*i}")
        if LOCALMAP:
            pub.n += 1
            k(f"""
            s_cmp_eq_u32 s54, 0
            s_cbranch_scc1 M_PG{pub.n}
            """)
            for i in range(3):
                k(f"s_waitcnt lgkmcnt({2-i})")
                k(f"buffer_store_dwordx4 v[{PB+4*i}:{PB+4*i+3}], v{VW}, s[8:11], s42 offen offset:{1024*i} {LOC_POL}")
            k(f"s_branch M_PE{pub.n}\nM_PG{pub.n}:")
        for i in range(3):
            k(f"s_waitcnt lgkmcnt({2-i})")
            k(f"buffer_store_dwordx4 v[{PB+4*i}:{PB+4*i+3}], v{VW}, s[8:11], s42 offen offset:{1024*i} sc1")
        if LOCALMAP: k(f"M_PE{pub.n}:")
    pub.n = 0
    for b in range(4):
        m = MR
        k(f"""
        v_and_b32 v{m+2}, 0xffff0000, v{STV+b}        ; s
        v_lshlrev_b32 v{m}, 16, v{STV+b}              ; m
        v_rcp_f32 v{m+1}, v{m+2}
        v_mul_f32 v{m+1}, s45, v{m+1}
        """)
        for tau in range(3):
            a = ACC + (b * 3 + tau) * 4
            c = CSR + 4 * tau
            k(f"""
            v_pk_fma_f32 v[{a}:{a+1}], v[{m}:{m+1}], v[{c}:{c+1}], v[{a}:{a+1}] op_sel_hi:[0,1,1] neg_lo:[1,0,0] neg_hi:[1,0,0]
            v_pk_fma_f32 v[{a+2}:{a+3}], v[{m}:{m+1}], v[{c+2}:{c+3}], v[{a+2}:{a+3}] op_sel_hi:[0,1,1] neg_lo:[1,0,0] neg_hi:[1,0,0]
            v_pk_mul_f32 v[{a}:{a+1}], v[{a}:{a+1}], v[{m}:{m+1}] op_sel:[0,1] op_sel_hi:[1,1]
            v_exp_f32 v{a}, v{a}
            v_exp_f32 v{a+1}, v{a+1}
            """)
            if tau < M_WDE and nlater < len(later):
                k(later[nlater]); nlater += 1
        for tau in range(3):
            a = ACC + (b * 3 + tau) * 4
            k(f"""
            v_pk_fma_f32 v[{a}:{a+1}], v[{a}:{a+1}], v[{m+2}:{m+3}], v[{m+2}:{m+3}] op_sel_hi:[1,0,0]
            v_rcp_f32 v{a}, v{a}
            v_rcp_f32 v{a+1}, v{a+1}
            """)
        for _ in range(M_WDE - 3):
            if nlater < len(later):
                k(later[nlater]); nlater += 1
        for tau in range(3):
            a = ACC + (b * 3 + tau) * 4
            k(f"""
            v_pk_mul_f32 v[{a}:{a+1}], v[{a}:{a+1}], v[{a+2}:{a+3}]
            v_cvt_pk_bf16_f32 v{a}, v{a}, v{a+1}
            ds_write_b32 v{SA+tau}, v{a} offset:{(b>>1)*6144 + (b&1)*128}
            """)
        if b == 1 and SPLITPUB:
            k("""
            s_waitcnt lgkmcnt(0)
            s_barrier
            s_cmp_lg_u32 s29, 0
            s_cbranch_scc1 M_PUB1
            """)
            pub()
            k.label("M_PUB1")
    k("""
    s_waitcnt lgkmcnt(0)
    s_barrier
    @STAMP 7
    """)
    if SPLITPUB:
        k("""
        s_cmp_eq_u32 s29, 0
        s_cbranch_scc1 M_PUB2
        """)
    pub()
    k.label("M_PUB2")
    rest = later[nlater:]
    if not SENT:
        k(f"""
        s_lshl_b32 s26, s14, 4
        s_add_u32 s26, s26, s15
        s_lshl_b32 s26, s26, 7
        s_add_u32 s26, s26, s34
        v_mov_b32 v{TMP}, 1
        v_mov_b32 v{TMP+1}, 0
        s_waitcnt vmcnt(0)
        s_barrier
        s_cmp_lg_u32 s17, 0
        s_cbranch_scc1 M_NOFLAG
        s_mov_b64 exec, 1
        s_cmp_eq_u32 s54, {1 if LOCALMAP else 77}
        s_cbranch_scc1 M_FLOC
        buffer_store_dword v{TMP}, v{TMP+1}, s[8:11], s26 offen sc1
        s_branch M_FEND
        M_FLOC:
        buffer_store_dword v{TMP}, v{TMP+1}, s[8:11], s26 offen
        M_FEND:
        s_mov_b64 exec, -1
        M_NOFLAG:
        """)
    for p in rest: k(p)
    HA = XA
    k(f"""
    M_SYNC:
    @CODEPF3
    s_mov_b32 s55, 0
    M_SYNC2:
    @STAMP 8
    v_mov_b32 v{TMP+10}, 0
    s_lshl_b32 s26, s36, 2
    s_add_u32 s26, s26, s16
    s_mul_i32 s26, s26, {HKS*1024}
    s_mul_i32 s27, s29, {22*1024}
    s_add_u32 s26, s26, s27
    s_add_u32 s26, s26, s31
    s_lshl_b32 s27, s17, 11               ; m0 part
    s_mul_i32 s28, s29, 0x3000
    v_add_u32 v{HA}, s28, v{VW}
    s_lshl_b32 s28, s29, 12
    s_add_u32 s28, s28, 0x1000
    v_add_u32 v{HA+1}, s28, v{VW}
    v_add_u32 v{HA+2}, 0x10000, v{HA}
    v_add_u32 v{HA+3}, 0x10000, v{HA+1}
    v_add_u32 v{HA+4}, 0x20000, v{HA}
    v_add_u32 v{HA+5}, 0x20000, v{HA+1}
    s_cmp_lg_u32 s17, 1
    s_cbranch_scc1 M_WAITB
    """)
    if SENT:
        k(f"""
        s_mul_i32 s28, s36, {4*HKS*1024}
        s_add_u32 s28, s28, s31
        v_min_u32 v{TMP+4}, 14, v{VT1}
        v_mul_u32_u24 v{TMP+4}, 3072, v{TMP+4}
        v_mul_u32_u24 v{TMP+5}, {HKS*1024}, v{VT2}
        v_add_u32 v{TMP+4}, v{TMP+4}, v{TMP+5}
        s_mov_b32 s47, 0
        M_POLL:
        buffer_load_dword v{TMP+5}, v{TMP+4}, s[8:11], s28 offen offset:3056 sc1
        s_waitcnt vmcnt(0)
        v_cmp_eq_u32 vcc, -1, v{TMP+5}
        s_cmp_eq_u64 vcc, 0
        s_cbranch_scc1 M_WAITB
        s_sleep {SENT_SLEEP}
        s_add_u32 s47, s47, 1
        s_cmp_lt_u32 s47, {SPIN_MAX}
        s_cbranch_scc1 M_POLL
        """)
    else:
        k(f"""
        s_lshr_b32 s28, s36, 1
        s_lshl_b32 s28, s28, 11
        s_add_u32 s28, s28, s34
        v_min_u32 v{TMP+4}, 14, v{VT0}
        v_lshlrev_b32 v{TMP+4}, 7, v{TMP+4}
        s_mov_b32 s47, 0
        M_POLL:
        buffer_load_dword v{TMP+5}, v{TMP+4}, s[8:11], s28 offen sc1
        s_waitcnt vmcnt(0)
        v_cmp_eq_u32 vcc, 0, v{TMP+5}
        s_cmp_eq_u64 vcc, 0
        s_cbranch_scc1 M_WAITB
        s_add_u32 s47, s47, 1
        s_cmp_lt_u32 s47, {SPIN_MAX}
        s_cbranch_scc1 M_POLL
        """)
    k(f"""
    M_WAITB:
    s_lshl_b32 s46, s37, 3
    s_add_u32 s46, s46, s17
    s_mul_i32 s46, s46, 2880
    s_mul_i32 s47, s36, {4*HKS*1024}
    s_add_u32 s46, s46, s47
    s_add_u32 s46, s46, s31
    v_min_u32 v{TMP+6}, 44, v{VT0}
    v_lshlrev_b32 v{TMP+6}, 6, v{TMP+6}
    s_barrier
    @STAMP 9
    """)
    if M_TOUCH & 2: k(f"buffer_load_dword v{TMP+8}, v{TMP+6}, s[8:11], s46 offen")
    def hchunk(c):
        return [f"""
        s_add_u32 m0, s27, {(c % 10) * 16384}
        s_nop 0
        buffer_load_dwordx4 v{VW}, s[8:11], s26 offen {H_LD} lds
        """, f"""
        buffer_load_dwordx4 v{VW}, s[8:11], s26 offen offset:1024 {H_LD} lds
        s_add_u32 s26, s26, 0x800
        """]
    HF = 16
    A2 = 0
    def hreads(c):
        res = []
        for i in range(2):
            for lb in range(4):
                off = (c % 10) * 16384 + (lb & 1) * 2048 + i * 1024
                base = HA + 2 * (off >> 16) + (lb >> 1)
                r = HF + 32 * (c & 1) + (i * 4 + lb) * 4
                res.append(f"ds_read_b128 v[{r}:{r+3}], v{base} offset:{off & 0xffff}")
        return res
    iss = M_PRE2
    for c in range(iss):
        for p in hchunk(c): k(p)
    k(f"s_waitcnt vmcnt({2*(iss-1)})")
    k("s_barrier")
    k("@STAMP 10")
    for r in hreads(0): k(r)
    for c in range(11):
        fill = []
        if c < 10:
            k(f"s_waitcnt vmcnt({2*(iss-(c+2))})")
            k("s_barrier")
        k("s_waitcnt lgkmcnt(0)")
        if c < 10: fill = hreads(c + 1)
        parts = []
        for rep_ in range(2):
            if iss < 11 and (iss < 10 or c >= 1) and iss < c + M_AHEAD2:
                parts += hchunk(iss); iss += 1
        slots = {1 + 2 * j: p for j, p in enumerate(parts)}
        n = 0
        for i in range(2):
            for lb in range(4):
                r = HF + 32 * (c & 1) + (i * 4 + lb) * 4
                a = A2 + 4 * lb
                cc = "0" if (c == 0 and i == 0) else f"v[{a}:{a+3}]"
                k(f"v_mfma_f32_16x16x32_bf16 v[{a}:{a+3}], v[{r}:{r+3}], {wdreg(2*c+i)}, {cc}")
                if SENT and (n & 1) == 0: k(f"v_max3_u32 v{TMP+10}, v{r}, v{r+4}, v{TMP+10}")
                if n < len(fill): k(fill[n])
                if n in slots: k(slots[n])
                n += 1
    k("@STAMP 11")
    XB = 65536
    k(f"""
    s_lshl_b32 s26, s17, 11
    s_add_u32 s26, s26, {XB}
    v_add_u32 v{TMP}, s26, v{VW}
    s_xor_b32 s26, s26, 0x2000
    v_add_u32 v{TMP+1}, s26, v{VW}
    """)
    for j in range(4):
        k(f"v_lshlrev_b32 v{32+2*j}, 16, v{RES+j}")
        k(f"v_and_b32 v{33+2*j}, 0xffff0000, v{RES+j}")
    k(f"""
    ds_write_b128 v{TMP}, v[8:11]
    ds_write_b128 v{TMP}, v[12:15] offset:1024
    """)
    if SENT:
        k(f"""
        v_cmp_eq_u32 vcc, -1, v{TMP+10}
        s_cmp_lg_u64 vcc, 0
        s_cselect_b32 s26, 1, 0
        s_lshl_b32 s27, s17, 2
        s_add_u32 s27, s27, {XB + 16384}
        v_mov_b32 v{TMP+11}, s26
        v_mov_b32 v{TMP+12}, s27
        v_and_b32 v{TMP+13}, 7, v{VT0}
        v_lshlrev_b32 v{TMP+13}, 2, v{TMP+13}
        v_add_u32 v{TMP+13}, {XB + 16384}, v{TMP+13}
        ds_write_b32 v{TMP+12}, v{TMP+11}
        """)
    k(f"""
    s_waitcnt lgkmcnt(0)
    s_barrier
    ds_read_b128 v[8:11], v{TMP+1}
    ds_read_b128 v[12:15], v{TMP+1} offset:1024
    """)
    if SENT:
        k(f"""
        ds_read_b32 v{TMP+11}, v{TMP+13}
        s_waitcnt lgkmcnt(0)
        v_cmp_ne_u32 vcc, 0, v{TMP+11}
        s_cmp_eq_u64 vcc, 0
        s_cbranch_scc1 M_OK
        s_add_u32 s55, s55, 1
        s_cmp_lt_u32 s55, 64
        s_cbranch_scc1 M_SYNC2
        M_OK:
        """)
    k("s_waitcnt lgkmcnt(0)")
    OUT = 16
    for j in range(4):
        y0, y1 = A2 + 2*j, A2 + 2*j + 1
        k(f"""
        v_pk_add_f32 v[{y0}:{y1}], v[{y0}:{y1}], v[{y0+8}:{y1+8}]
        v_cvt_pk_bf16_f32 v{y1}, v{y0}, v{y1}
        v_lshlrev_b32 v{y0}, 16, v{y1}
        v_and_b32 v{y1}, 0xffff0000, v{y1}
        v_pk_add_f32 v[{y0}:{y1}], v[{y0}:{y1}], v[{32+2*j}:{33+2*j}]
        v_cvt_pk_bf16_f32 v{OUT+j}, v{y0}, v{y1}
        """)
    k(f"""
    s_cmp_lg_u32 s35, 0
    s_cbranch_scc1 M_FINAL
    s_add_u32 s40, s39, {X2T}
    buffer_store_dwordx4 v[{OUT}:{OUT+3}], v{VRES}, s[8:11], s40 offen {X2_ST}
    """)
    Q = 48
    for j in range(4):
        k(f"""
        v_lshlrev_b32 v{Q+4*j}, 16, v{OUT+j}
        v_and_b32 v{Q+4*j+2}, 0xffff0000, v{OUT+j}
        v_mul_f32 v{Q+4*j+1}, v{Q+4*j}, v{Q+4*j}
        v_mul_f32 v{Q+4*j+3}, v{Q+4*j+2}, v{Q+4*j+2}
        """)
    for q in range(8):
        k(f"v_add_f32_dpp v{Q+q}, v{Q+q}, v{Q+q} row_ror:8 row_mask:0xf bank_mask:0x3")
        k(f"v_add_f32_dpp v{Q+q}, v{Q+q+8}, v{Q+q+8} row_ror:8 row_mask:0xf bank_mask:0xc")
    for q in range(4):
        k(f"v_add_f32_dpp v{Q+q}, v{Q+q}, v{Q+q} row_shl:4 row_mask:0xf bank_mask:0x5")
        k(f"v_add_f32_dpp v{Q+q}, v{Q+q+4}, v{Q+q+4} row_shr:4 row_mask:0xf bank_mask:0xa")
    for q in range(4):
        k(f"v_add_f32_dpp v{Q+q}, v{Q+q}, v{Q+q} quad_perm:[1,0,3,2] row_mask:0xf bank_mask:0xf")
    for q in range(4):
        k(f"v_add_f32_dpp v{Q+q}, v{Q+q}, v{Q+q} quad_perm:[2,3,0,1] row_mask:0xf bank_mask:0xf")
    SB = 98304
    k(f"""
    v_and_b32 v{TMP}, 3, v{VT1}
    v_cmp_eq_u32 s[48:49], 1, v{TMP}
    v_cmp_eq_u32 s[50:51], 2, v{TMP}
    v_cmp_eq_u32 s[52:53], 3, v{TMP}
    v_lshrrev_b32 v{TMP+1}, 2, v{VT1}
    v_lshlrev_b32 v{TMP+1}, 7, v{TMP+1}
    v_lshl_add_u32 v{TMP+1}, v{VT2}, 4, v{TMP+1}
    v_lshl_add_u32 v{TMP+1}, v{TMP}, 2, v{TMP+1}
    s_lshl_b32 s26, s16, 9
    s_lshl_b32 s27, s29, 6
    s_add_u32 s26, s26, s27
    s_add_u32 s26, s26, {SB}
    v_add_u32 v{TMP+1}, s26, v{TMP+1}
    v_cndmask_b32 v{Q}, v{Q}, v{Q+1}, s[48:49]
    v_cndmask_b32 v{Q}, v{Q}, v{Q+2}, s[50:51]
    v_cndmask_b32 v{Q}, v{Q}, v{Q+3}, s[52:53]
    ds_write_b32 v{TMP+1}, v{Q}
    s_lshl_b32 s26, s17, 8
    s_add_u32 s26, s26, {SB}
    v_lshl_add_u32 v{TMP+2}, v{VT0}, 2, s26
    v_lshrrev_b32 v{TMP+3}, 5, v{VT0}
    v_lshlrev_b32 v{TMP+3}, 12, v{TMP+3}
    v_and_b32 v{TMP+4}, 31, v{VT0}
    v_lshl_add_u32 v{TMP+3}, v{TMP+4}, 2, v{TMP+3}
    s_lshl_b32 s26, s36, 7
    s_lshl_b32 s27, s17, 13
    s_add_u32 s26, s26, s27
    s_add_u32 s26, s26, {ST1}
    s_waitcnt lgkmcnt(0)
    s_barrier
    s_cmp_ge_u32 s17, 2
    s_cbranch_scc1 M_NOAT
    ds_read_b32 v{Q}, v{TMP+2}
    ds_read_b32 v{Q+1}, v{TMP+2} offset:512
    ds_read_b32 v{Q+2}, v{TMP+2} offset:1024
    ds_read_b32 v{Q+3}, v{TMP+2} offset:1536
    s_waitcnt lgkmcnt(0)
    v_add_f32 v{Q}, v{Q}, v{Q+1}
    v_add_f32 v{Q+2}, v{Q+2}, v{Q+3}
    v_add_f32 v{Q}, v{Q}, v{Q+2}
    buffer_atomic_add_f32 v{Q}, v{TMP+3}, s[8:11], s26 offen
    M_NOAT:
    @STAMP 12
    @FLUSH 13
    s_endpgm
    M_FINAL:
    """)
    TP = 144; TB2 = 98304
    srd(k, 48, 6, L * D * 2)
    k(f"""
    s_lshl_b32 s26, s16, 4
    v_add_u32 v{TMP}, s26, v{VT1}
    v_mul_u32_u24 v{TMP}, {TP}, v{TMP}
    v_lshl_add_u32 v{TMP}, v{VT2}, 4, v{TMP}
    s_lshl_b32 s26, s29, 6
    s_add_u32 s26, s26, {TB2}
    v_add_u32 v{TMP}, s26, v{TMP}
    ds_write_b128 v{TMP}, v[{OUT}:{OUT+3}]
    v_lshrrev_b32 v{TMP+1}, 2, v{VT1}
    v_lshl_add_u32 v{TMP+1}, v{VT2}, 3, v{TMP+1}
    v_mul_u32_u24 v{TMP+1}, {TP}, v{TMP+1}
    v_and_b32 v{TMP+2}, 3, v{VT1}
    v_lshl_add_u32 v{TMP+1}, v{TMP+2}, 3, v{TMP+1}
    s_lshl_b32 s26, s16, 5
    s_mul_i32 s27, s29, {32*TP}
    s_add_u32 s26, s26, s27
    s_add_u32 s26, s26, {TB2}
    v_add_u32 v{TMP+1}, s26, v{TMP+1}
    v_lshlrev_b32 v{TMP+2}, 10, v{VT1}
    v_lshl_add_u32 v{TMP+2}, v{VT2}, 4, v{TMP+2}
    s_lshl_b32 s26, s36, 2
    s_add_u32 s26, s26, s16
    s_lshl_b32 s26, s26, 14
    s_lshl_b32 s27, s37, 7
    s_add_u32 s26, s26, s27
    s_lshl_b32 s27, s29, 6
    s_add_u32 s26, s26, s27
    s_waitcnt lgkmcnt(0)
    s_barrier
    ds_read_b64_tr_b16 v[32:33], v{TMP+1}
    ds_read_b64_tr_b16 v[34:35], v{TMP+1} offset:{4*TP}
    s_waitcnt lgkmcnt(0)
    buffer_store_dwordx4 v[32:35], v{TMP+2}, s[48:51], s26 offen {OUT_ST}
    @STAMP 12
    @FLUSH 13 last
    M_END:
    s_endpgm
    """)
    k(f"""
    M_STATS:
    s_mov_b32 s47, 0
    M_SL1:
    s_mov_b32 m0, s19
    s_add_u32 s19, s19, 0x2000
    buffer_load_dwordx4 v{VDMA}, s[8:11], s18 offen lds
    s_add_u32 s18, s18, 0x2000
    s_mov_b32 m0, s19
    s_add_u32 s19, s19, 0x2000
    buffer_load_dwordx4 v{VDMA}, s[8:11], s18 offen lds
    s_add_u32 s18, s18, 0x2000
    s_add_u32 s47, s47, 1
    s_cmp_lt_u32 s47, 8
    s_cbranch_scc1 M_SL1
    """)
    id_store("s")
    SACC = 0; ONES = 16
    k(f"""
    v_xor_b32 v{TMP+3}, s17, v{TMP+1}
    v_lshl_add_u32 v{XA}, v{TMP+3}, 5, v{TMP+2}
    """)
    for r in range(8): k(f"v_mov_b32 v{SACC+r}, 0")
    for r in range(4): k(f"v_mov_b32 v{ONES+r}, 0x3f803f80")
    k(f"""
    s_mov_b32 s47, 0
    s_waitcnt vmcnt(0)
    s_barrier
    M_SL2:
    """)
    for u in range(8):
        r = FR + 4 * u
        if u == 7: k("s_waitcnt lgkmcnt(12)")
        k(f"ds_read_b64_tr_b16 v[{r}:{r+1}], v{XA} offset:{u*8192}")
        k(f"ds_read_b64_tr_b16 v[{r+2}:{r+3}], v{XA} offset:{u*8192+4096}")
    k(f"v_add_u32 v{XA}, 0x10000, v{XA}")
    for u in range(8):
        r = FR + 4 * u
        k(f"s_waitcnt lgkmcnt({14 - 2*u})")
        k(f"v_mfma_f32_16x16x32_bf16 v[{SACC}:{SACC+3}], v[{r}:{r+3}], v[{r}:{r+3}], v[{SACC}:{SACC+3}]")
        k(f"v_mfma_f32_16x16x32_bf16 v[{SACC+4}:{SACC+7}], v[{ONES}:{ONES+3}], v[{r}:{r+3}], v[{SACC+4}:{SACC+7}]")
    k(f"""
    s_add_u32 s47, s47, 1
    s_cmp_lt_u32 s47, 2
    s_cbranch_scc1 M_SL2
    v_and_b32 v{TMP}, 3, v{VT1}
    v_cmp_eq_u32 s[48:49], 1, v{TMP}
    v_cmp_eq_u32 s[50:51], 2, v{TMP}
    v_cmp_eq_u32 s[52:53], 3, v{TMP}
    v_lshrrev_b32 v{TMP}, 2, v{VT1}
    v_cmp_eq_u32 s[54:55], v{TMP}, v{VT2}
    v_cndmask_b32 v{SACC}, v{SACC}, v{SACC+1}, s[48:49]
    v_cndmask_b32 v{SACC}, v{SACC}, v{SACC+2}, s[50:51]
    v_cndmask_b32 v{SACC+5}, v{SACC}, v{SACC+3}, s[52:53]
    v_mov_b32 v{SACC+12}, v{SACC+4}
    v_mov_b32 v{SACC+13}, v{SACC+5}
    """)
    stats_pair(k, SACC+4, SACC+5, SACC+12, SACC+13, TMP, keep=(SACC+6, SACC+14))
    k(f"""
    v_lshrrev_b32 v{SACC+4}, 16, v{SACC+4}
    v_or_b32 v{SACC+4}, v{SACC+4}, v{SACC+6}
    v_lshlrev_b32 v{VSTX}, 2, v{VT1}
    s_lshl_b32 s41, s14, 9
    s_lshl_b32 s26, s17, 6
    s_add_u32 s41, s41, s26
    s_add_u32 s41, s41, s33
    s_mov_b64 exec, s[54:55]
    buffer_store_dword v{SACC+4}, v{VSTX}, s[8:11], s41 offen sc1
    s_mov_b64 exec, -1
    """)
    for p in res_parts: k(p)
    for i in range(22): k(wd_part(i))
    k(f"""
    s_barrier
    s_branch M_SYNC
    .p2align 8
    mlpb_kernel:
    s_mov_b32 s30, {X3T}
    s_mov_b32 s31, {HB1}
    s_mov_b32 s33, {STX + 0x2000}
    s_mov_b32 s34, {FLG + 0x8000}
    s_mov_b32 s35, 1
    s_mov_b32 s56, {IDT + 0x400}
    @KID 5
    s_branch M_BODY
    """)
    info = dict(vgpr=NV + 88, sgpr=64, accum=NV, grid=256, block=512, lds=MLP_LDS)
    return k, info

DIAG_KN = {2: ("mlpa", 13), 5: ("mlpb", 13), 3: ("wroles", 2), 6: ("none", 1)}
def emit(path, launches=None):
    kp, ip = gen_prep()
    kc, ic = gen_conv()
    km, im = gen_mlp()
    ic1 = dict(ic); ic1["grid"] = B_E
    infos = {"prep_kernel": ip, "conv1_kernel": ic1, "conv2_kernel": ic, "mlpa_kernel": im, "mlpb_kernel": im}
    if os.environ.get("ORDER"): launches = [x + "_kernel" for x in os.environ["ORDER"].split(",")]
    order = launches or ["prep_kernel", "conv1_kernel", "mlpa_kernel", "conv2_kernel", "mlpb_kernel"]
    hdr = open("cdna_kernels/" + NAME + ".s.ref").read().split("; Override launch")[0]
    out = [hdr.rstrip("\n")]
    for n in order:
        i = infos[n]
        out.append(f"; @launch kernel={n} grid=({i['grid']},1,1) block=({i['block']},1,1) lds={i['lds']}")
    out.append('.amdgcn_target "amdgcn-amd-amdhsa--gfx950"\n.text')
    for n in infos:
        out.append(f".globl {n}\n.type {n},@function")
    out.append(".p2align 8\nprep_kernel:\n" + kp.text())
    for kk in (kc, km):
        out.append(".p2align 8\n" + kk.text())
    for n, i in infos.items():
        out.append(descriptor(n, i["vgpr"], 102 if DIAG else i["sgpr"], i["accum"]))
    open(path, "w").write("\n".join(out))

if __name__ == "__main__":
    emit(sys.argv[1] if len(sys.argv) > 1 else "cdna_kernels/" + NAME + ".s")
```

```python
import sys, struct, re
from asmlib import *

NAME = "interleave_layers__ssm_conv_s4d__glu_gated_glu__prompt"
KA_U, KA_LOGA, KA_AIM, KA_CRE, KA_CIM, KA_LOGDT, KA_DSKIP, KA_BX, KA_WG, KA_WU, KA_WD, KA_OUT, KA_DBG, KA_WS = [8 * i for i in range(14)]
XT0, X1T, X2T, X3T = 0x3000000, 0x3300000, 0x3600000, 0x3900000
ST0, ST1, CSUM = 0x0800000, 0x0804000, 0x0808000
WP = 0x0C00000
WD = 0x1000000
HB = 0x1200000
HB1 = 0x2200000
GFB = 0x0840000
ZR = 0x0810000; STX = 0x0810000; FLG = 0x0820000
KP = 0x1800000; KCS = 4160; KP_STRIDE = 1536
WS_BYTES = 0x10000000
L, D, F, NST = 2048, 512, 1376, 128
NKS2 = 44
HKS = 45

import os
XP = int(os.environ.get('XP', '4352'))
PREP_W_POL = os.environ.get('PREP_W_POL', 'sc1')
PREP_K_POL = os.environ.get('PREP_K_POL', '')
PREP_X_POL = os.environ.get('PREP_X_POL', '')
LATE_PRIO = int(os.environ.get('LATE_PRIO', '0'))
PREP_PRIO = int(os.environ.get('PREP_PRIO', '0'))
CONV_ST = os.environ.get('CONV_ST', 'sc1')
OUT_ST = os.environ.get('OUT_ST', '')
X2_ST = os.environ.get('X2_ST', 'sc1')
F1_SLEEP = int(os.environ.get('F1_SLEEP', '2'))
CODEPF_BASE = int(os.environ.get('CODEPF_BASE', '760' if int(os.environ.get('FUSE1', '1')) else '0'))
CPFR = 166 if int(os.environ.get('FUSE1', '1')) else 94
SENT = int(os.environ.get('SENT', '0'))
SPLITPUB = int(os.environ.get('SPLITPUB', '1'))
POISON_POL = os.environ.get('POISON_POL', 'sc1')
SENT_SLEEP = int(os.environ.get('SENT_SLEEP', '2'))
WTOUCH = int(os.environ.get('WTOUCH', '0'))
CODEPF3 = int(os.environ.get('CODEPF3', '0'))
CODEPF2 = int(os.environ.get('CODEPF2', '1'))
TLBPF = int(os.environ.get('TLBPF', '0'))
TLBPF_BASE = int(os.environ.get('TLBPF_BASE', '1216'))
CODEPF = int(os.environ.get('CODEPF', '1'))
DIAG = int(os.environ.get("DIAG", "0"))
DIAG_OFF = 0x4000000
_Kern = Kern
class Kern(_Kern):
    def __call__(self, s):
        for l in s.strip("\n").split("\n"):
            t = l.strip()
            if t.startswith("@GFLOAD"):
                super().__call__(f"s_lshl_b32 s26, s2, 7\ns_add_u32 s26, s26, {GFB}\nv_mov_b32 v165, s26\nglobal_load_dword v164, v165, s[4:5] sc1")
                continue
            if t.startswith("@WTOUCH"):
                if WTOUCH:
                    super().__call__(f"""
                    s_mul_i32 s15, s3, 5504
                    v_min_u32 v90, 85, v0
                    v_lshl_add_u32 v90, v90, 6, s15
                    global_load_dword v91, v90, s[16:17]
                    global_load_dword v92, v90, s[18:19]
                    global_load_dword v93, v90, s[20:21]
                    """)
                continue
            if t.startswith("@CODEPF3"):
                if CODEPF3:
                    super().__call__(f"""
                    s_cmp_ge_u32 s2, 8
                    s_cbranch_scc1 M_NOPF
                    s_cmp_lt_u32 s17, 2
                    s_cbranch_scc1 M_NOPF
                    s_getpc_b64 s[26:27]
                    M_PFPC:
                    s_sub_u32 s26, s26, M_PFPC-conv1_kernel
                    s_subb_u32 s27, s27, 0
                    s_and_b32 s28, s17, 1
                    s_lshl_b32 s28, s28, 12
                    v_lshl_add_u32 v163, v136, 6, s28
                    global_load_dword v163, v163, s[26:27]
                    M_NOPF:
                    """)
                continue
            if t.startswith("@CNTLOAD"):
                super().__call__("global_load_dword v59, v2, s[28:29] sc1")
                continue
            if t.startswith("@CODEPF"):
                if CODEPF:
                    super().__call__(f"""
                    s_sub_u32 s3, s2, {CODEPF_BASE}
                    s_cmp_ge_u32 s3, 8
                    s_cbranch_scc1 P_NOPF
                    s_getpc_b64 s[6:7]
                    v_lshlrev_b32 v1, 6, v0
                    global_load_dword v{CPFR}, v1, s[6:7]
                    v_add_u32 v1, 0x4000, v1
                    global_load_dword v{CPFR+1}, v1, s[6:7]
                    P_NOPF:
                    """)
                if TLBPF:
                    super().__call__(f"""
                    s_sub_u32 s3, s2, {TLBPF_BASE}
                    s_cmp_ge_u32 s3, 8
                    s_cbranch_scc1 P_NOPF2
                    s_load_dwordx2 s[6:7], s[0:1], {KA_OUT}
                    v_lshlrev_b32 v1, 18, v0
                    v_lshlrev_b32 v2, 13, v0
                    s_waitcnt lgkmcnt(0)
                    global_load_dword v93, v1, s[4:5]
                    global_load_dword v92, v2, s[6:7]
                    P_NOPF2:
                    """)
                continue
            if t.startswith("@"):
                if not DIAG: continue
                p = t.split()
                if p[0] == "@KID":
                    super().__call__(f"s_mov_b32 s59, {DIAG_OFF + int(p[1]) * 0x80000}\ns_mov_b32 s57, {3 if int(p[1]) in (2, 5) else 2}")
                elif p[0] == "@INIT":
                    super().__call__("v_readfirstlane_b32 s58, v0\ns_memrealtime s[64:65]\ns_memtime s[66:67]")
                elif p[0] == "@STAMP":
                    i = int(p[1]); super().__call__(f"s_memtime s[{64+2*i}:{65+2*i}]")
                elif p[0] == "@FLUSH":
                    n = int(p[1])
                    super().__call__(f"""
                    s_waitcnt vmcnt(0)
                    s_memtime s[{64+2*n}:{65+2*n}]
                    s_memrealtime s[{66+2*n}:{67+2*n}]
                    s_waitcnt lgkmcnt(0)
                    s_mov_b64 exec, -1
                    s_lshr_b32 s58, s58, 6
                    s_lshl_b32 s61, s2, s57
                    s_add_u32 s60, s58, s61
                    s_lshl_b32 s60, s60, 6
                    s_add_u32 s60, s60, s59
                    v_mov_b32 v1, s60
                    """)
                    for i in range(n + 2):
                        super().__call__(f"v_mov_b32 v2, s{64+2*i}\nglobal_store_dword v1, v2, s[4:5] offset:{4*i}")
                    super().__call__("s_getreg_b32 s61, hwreg(HW_REG_XCC_ID)\nv_mov_b32 v2, s61\nglobal_store_dword v1, v2, s[4:5] offset:60")
                    if DIAG == 2 and len(p) > 2:
                        lab = f"DG{len(self.lines)}"
                        txt = f"s_or_b32 s60, s2, s58\ns_cmp_lg_u32 s60, 0\ns_cbranch_scc1 {lab}\ns_load_dwordx2 s[62:63], s[0:1], {KA_DBG}\ns_waitcnt vmcnt(0) lgkmcnt(0)\n"
                        j = 0
                        for kid, nn in ((0, 6), (1, 13), (2, 13), (4, 13), (5, 13)):
                            for slot in (0, nn + 1):
                                txt += f"v_mov_b32 v1, {DIAG_OFF + kid * 0x80000 + 4 * slot}\nglobal_load_dword v2, v1, s[4:5] sc1\nv_mov_b32 v3, {4*j}\ns_waitcnt vmcnt(0)\nglobal_store_dword v3, v2, s[62:63]\n"
                                j += 1
                        for kid, slot in ((2, 1), (2, 3), (2, 5), (2, 9), (1, 1), (1, 5)):
                            txt += f"v_mov_b32 v1, {DIAG_OFF + kid * 0x80000 + 4 * slot}\nglobal_load_dword v2, v1, s[4:5] sc1\nv_mov_b32 v3, {4*j}\ns_waitcnt vmcnt(0)\nglobal_store_dword v3, v2, s[62:63]\n"
                            j += 1
                        super().__call__(txt + f"{lab}:")
                continue
            super().__call__(l)

def f2u(x): return struct.unpack("<I", struct.pack("<f", x))[0]
def fl(x): return "0x%08x" % f2u(x)
LOG2E = 1.4426950408889634
L2E_HI = struct.unpack("<f", struct.pack("<f", LOG2E))[0]
L2E_LO = LOG2E - L2E_HI
LN2 = 0.6931471805599453

def srd(k, s, base, nbytes):
    k(f"""
    s_mov_b32 s{s}, s{base}
    s_and_b32 s{s+1}, s{base+1}, 0xffff
    s_mov_b32 s{s+2}, {nbytes:#x}
    s_mov_b32 s{s+3}, 0x20000
    """)

def rnd_bf16(k, dst, a, b=None):
    k(f"v_cvt_pk_bf16_f32 v{dst}, v{a}, v{b if b is not None else a}")

def exp_acc(k, dst, x, t0, t1):
    k(f"""
    v_mul_f32 v{t0}, s40, v{x}
    v_fma_f32 v{t1}, s40, v{x}, -v{t0}
    v_fma_f32 v{t1}, s41, v{x}, v{t1}
    v_exp_f32 v{dst}, v{t0}
    v_mul_f32 v{t1}, s42, v{t1}
    v_fma_f32 v{dst}, v{dst}, v{t1}, v{dst}
    """)

N_K, N_T, N_W, N_D, N_C = 512, 256, 240, 176, 90
FUSE1 = int(os.environ.get('FUSE1', '1'))
F1_LD = os.environ.get('F1_LD', '')
F1_POLL = os.environ.get('F1_POLL', 'sc1')
WINC = os.environ.get('WINC', 'X')
_sz = {"C": N_C, "W": N_W, "D": N_D, "T": N_T}
B_K = 0
_pos = N_K; PREP_ROLES = []; _base = {}
for r in "CWTD":
    if r not in WINC:
        _base[r] = _pos; _pos += _sz[r]; PREP_ROLES.append((r, _pos))
PREP_WGS = _pos
_pos = 512; CONV_ROLES = []
for r in "CWD":
    if r in WINC:
        _base[r] = _pos; _pos += _sz[r]; CONV_ROLES.append((r, _pos))
B_E = _pos
B_C, B_W, B_T, B_D = _base["C"], _base["W"], _base["T"], _base["D"]
if FUSE1: B_T = 0; B_C = 0
PREP_GROUPS = [("prep.K", 0, N_K, 6)] + [("prep." + r, _base[r], e, 2) for r, e in PREP_ROLES]
if FUSE1: PREP_GROUPS = [("f1.TC", 0, N_C, 2), ("f1.T", N_C, N_T, 2)]
_lab = {"C": "P_C", "W": "P_W", "T": "P_TR", "D": "P_D"}
PREP_LDS = 18432
CSU = 4576
KL = 2 * CSU
CRED = KL + 16640
CONV_LDS = CRED + 24576
CPF = int(os.environ.get('CPF', '1'))
CPF_STRIDE = int(os.environ.get('CPF_STRIDE', '128'))
LOCALMAP0 = int(os.environ.get('LOCALMAP', '0'))
PFQ = int(os.environ.get('PFQ', '6144'))
SPIN_MAX = 1 << 20

class Remap:
    def __init__(self, k, voff, smap): self.k = k; self.voff = voff; self.smap = smap
    def __call__(self, t):
        def rv(m):
            if m.group(1): return f"v[{int(m.group(1))+self.voff}:{int(m.group(2))+self.voff}]"
            n = int(m.group(3)); return "v0" if n == 0 else f"v{n+self.voff}"
        t = re.sub(r"\bv\[(\d+):(\d+)\]|\bv(\d+)\b", rv, t)
        def rs(m):
            if m.group(1):
                a = int(m.group(1)); b = int(m.group(2))
                if a in self.smap: return f"s[{self.smap[a]}:{self.smap[a]+b-a}]"
                return m.group(0)
            n = int(m.group(3)); return f"s{self.smap.get(n, n)}"
        t = re.sub(r"\bs\[(\d+):(\d+)\]|\bs(\d+)\b", rs, t)
        self.k(t)
    def label(self, l): self.k.label(l)

class NoPk:
    def __init__(self, k): self.k = k
    def __call__(self, t):
        def f(m):
            d, a, b = int(m.group(1)), int(m.group(2)), int(m.group(3))
            return f"v_add_f32 v{d}, v{a}, v{b}\nv_add_f32 v{d+1}, v{a+1}, v{b+1}"
        self.k(re.sub(r"v_pk_add_f32 v\[(\d+):\d+\], v\[(\d+):\d+\], v\[(\d+):\d+\]", f, t))
    def label(self, l): self.k.label(l)
CONV_NOPK = int(os.environ.get('CONV_NOPK', '1'))

class UnitS:
    MAP = {12: 21, 13: 22, 14: 23, 15: 27, 16: 30, 17: 39, 18: 46, 19: 47, 21: 55, 3: 56}
    def __init__(self, k): self.k = k
    def __call__(self, t):
        self.k(re.sub(r"\bs(\d+)\b", lambda m: f"s{self.MAP.get(int(m.group(1)), int(m.group(1)))}", t))

class Remap2:
    def __init__(self, k, vmap): self.k = k; self.vmap = vmap
    def __call__(self, t):
        t = re.sub(r"\bv(\d+)\b", lambda m: f"v{self.vmap.get(int(m.group(1)), int(m.group(1)))}", t)
        self.k(t)

def conv_setup(k):
    k(f"""
    v_readfirstlane_b32 s17, v0
    s_mov_b32 s43, {fl(1.0/512)}
    s_mov_b32 s44, {fl(1e-5)}
    s_mov_b32 s45, {fl(1e-5)}
    s_mov_b32 s46, {fl(1.0/512)}
    s_mov_b32 s47, {fl(1.0/512)}
    s_lshr_b32 s17, s17, 6                ; pi
    s_mul_i32 s12, s2, {XP}
    s_add_u32 s13, s12, s30
    s_lshl_b32 s14, s2, 8
    s_add_u32 s14, s14, s32               ; out: d*256
    s_mul_i32 s15, s2, {KP_STRIDE}
    s_add_u32 s15, s15, {KP}
    s_lshr_b32 s16, s2, 1
    s_lshl_b32 s16, s16, 2
    v_lshlrev_b32 v1, 4, v0               ; tid*16
    v_and_b32 v3, 15, v0                  ; c / r
    v_bfe_u32 v4, v0, 4, 2                ; g
    v_and_b32 v5, 63, v0
    v_lshlrev_b32 v6, 4, v5               ; lane*16
    s_and_b32 s21, s2, 7
    v_bfe_u32 v2, v0, 1, 3
    v_xor_b32 v2, s21, v2
    v_lshlrev_b32 v2, 5, v2
    v_lshrrev_b32 v8, 4, v0
    v_lshl_add_u32 v2, v8, 17, v2
    v_and_b32 v8, 1, v0
    v_lshl_add_u32 v2, v8, 4, v2
    """)

def conv_loads(k, pol=""):
    k(f"""
    buffer_load_dwordx4 v[16:19], v1, s[8:11], s31 offen {pol}
    s_add_u32 s31, s31, 0x1000
    buffer_load_dwordx4 v[20:23], v1, s[8:11], s31 offen {pol}
    s_add_u32 s31, s31, 0x1000
    buffer_load_dwordx4 v[24:27], v1, s[8:11], s31 offen {pol}
    s_add_u32 s31, s31, 0x1000
    buffer_load_dwordx4 v[28:31], v1, s[8:11], s31 offen {pol}
    buffer_load_dwordx4 v[12:15], v1, s[8:11], s13 offen {pol}
    """)

def conv_p3(k, kzero=True):
    k(f"""
    v_mov_b32 v36, 0
    v_mov_b32 v37, 0
    v_mov_b32 v38, 0
    v_mov_b32 v39, 0
    """)
    if kzero: k(f"""
    v_bfe_u32 v9, v0, 2, 2
    v_mul_u32_u24 v9, {KCS}, v9
    v_and_b32 v10, 3, v0
    v_min_u32 v10, 2, v10
    v_lshl_add_u32 v9, v10, 4, v9
    ds_write_b128 v9, v[36:39] offset:{KL}
    """)
    k(f"""
    v_lshlrev_b32 v40, 3, v0
    s_sub_u32 s19, s18, {2 * (0x4300 - 128)}
    """)
    for e in range(11):
        k(f"v_add_u32 v{48+e}, {e-3}, v40")
        if e < 3: k(f"v_max_i32 v{48+e}, 0, v{48+e}")
        k(f"v_cvt_f32_u32 v{60+e}, v{48+e}")
    for e in range(0, 11, 2):
        k(f"v_cvt_pk_bf16_f32 v{72+e//2}, v{60+e}, v{min(61+e, 70)}")
    for e in range(11):
        src = 72 + e // 2
        if e & 1: k(f"v_lshrrev_b32 v{60+e}, 16, v{src}")
        else: k(f"v_and_b32 v{60+e}, 0xffff, v{src}")
        k(f"v_lshl_add_u32 v{60+e}, v{60+e}, 1, s19")
        k(f"v_lshl_add_u32 v{48+e}, v{48+e}, 1, s18")
    k("v_cmp_gt_u32 s[24:25], 17, v0")
    for e in range(11):
        k(f"v_cndmask_b32 v{48+e}, v{60+e}, v{48+e}, s[24:25]")
    k(f"""
    s_and_b32 s21, s17, 1
    s_sub_u32 s22, 56, s21
    s_mul_i32 s21, s21, {CSU}
    v_min_u32 v9, s22, v5
    v_lshl_add_u32 v9, v9, 3, s21
    ds_write_b64 v9, v[36:37]
    v_and_b32 v9, 1, v3
    v_mul_u32_u24 v9, {CSU}, v9
    v_lshrrev_b32 v10, 1, v3
    v_lshlrev_b32 v11, 2, v10
    v_sub_u32 v11, v11, v4
    s_lshl_b32 s21, s17, 2
    s_sub_u32 s21, 15, s21
    v_add_u32 v11, s21, v11
    v_lshl_add_u32 v9, v11, 4, v9         ; v9 = u addr
    v_and_b32 v7, 3, v3
    v_mul_u32_u24 v7, {KCS}, v7
    v_lshrrev_b32 v8, 2, v3
    v_add_u32 v8, v8, v4
    v_lshl_add_u32 v7, v8, 4, v7
    s_lshl_b32 s21, s17, 6
    s_add_u32 s21, s21, {KL}
    v_add_u32 v7, s21, v7                 ; v7 = K addr
    v_xor_b32 v8, v4, v10
    v_and_b32 v8, 3, v8
    v_lshlrev_b32 v8, 1, v8
    v_lshl_add_u32 v8, v10, 3, v8
    v_and_b32 v11, 1, v3
    v_add_u32 v8, v8, v11
    s_lshl_b32 s21, s17, 11
    v_lshl_add_u32 v10, v8, 4, s21
    v_bfe_u32 v8, v0, 2, 3
    v_xor_b32 v11, v8, v0
    v_and_b32 v11, 3, v11
    v_lshlrev_b32 v11, 5, v11
    v_lshl_add_u32 v11, v8, 7, v11
    v_bfe_u32 v8, v0, 5, 1
    v_lshl_add_u32 v11, v8, 10, v11
    s_lshl_b32 s21, s17, 13
    s_add_u32 s21, s21, {CRED}
    s_cmp_eq_u32 s17, 3
    s_cselect_b32 s21, {KL}, s21
    v_add_u32 v11, s21, v11
    """)

def conv_expand(k):
    k("""
    v_cmp_eq_u32 vcc, 0, v0
    s_waitcnt lgkmcnt(0)
    v_cndmask_b32 v48, v48, v36, vcc
    v_cndmask_b32 v49, v49, v36, vcc
    v_cndmask_b32 v50, v50, v36, vcc
    """)
    for sft in range(4):
        for j in range(4):
            k(f"v_lshl_or_b32 v{64+4*sft+j}, v{48+sft+6-2*j}, 16, v{48+sft+7-2*j}")
        k(f"ds_write_b128 v1, v[{64+4*sft}:{67+4*sft}] offset:{KL + sft*KCS + 48}")

def conv_norm(k):
    for j in range(4):
        k(f"""
        v_lshlrev_b32 v40, 16, v{12+j}
        v_and_b32 v41, 0xffff0000, v{12+j}
        v_sub_f32 v40, v40, v{16+4*j}
        v_sub_f32 v41, v41, v{18+4*j}
        v_cvt_pk_bf16_f32 v41, v40, v41
        v_lshlrev_b32 v40, 16, v41
        v_and_b32 v41, 0xffff0000, v41
        v_mul_f32 v40, v40, v{17+4*j}
        v_mul_f32 v41, v41, v{19+4*j}
        v_cvt_pk_bf16_f32 v{32+j}, v40, v41
        """)
    k(f"""
    ds_write_b128 v1, v[32:35] offset:{CSU + 16*28}
    ds_write2_b64 v1, v[32:33], v[34:35] offset0:57 offset1:58
    """)

def gen_prep():
    k = Kern("prep_kernel")
    k(f"""
    @KID 0
    @INIT
    s_load_dwordx2 s[4:5], s[0:1], {KA_WS}
    @CODEPF
    s_sub_u32 s26, s2, {B_K}
    s_cmp_lt_u32 s26, {N_K}
    s_cbranch_scc1 P_KGEN
    """)
    for r, e in PREP_ROLES: k(f"s_cmp_lt_u32 s2, {e}\ns_cbranch_scc1 {_lab[r]}")
    k(f"""
    s_endpgm
    P_WROLES:
    @KID 3
    @INIT
    s_load_dwordx2 s[4:5], s[0:1], {KA_WS}
    """)
    for r, e in CONV_ROLES: k(f"s_cmp_lt_u32 s2, {e}\ns_cbranch_scc1 {_lab[r]}")
    k("s_endpgm")
    k.label("P_KGEN")
    TB = 16384
    k(f"""
    s_load_dwordx4 s[8:11], s[0:1], {KA_LOGA}
    s_load_dwordx4 s[12:15], s[0:1], {KA_CRE}
    s_load_dwordx2 s[16:17], s[0:1], {KA_LOGDT}
    s_mov_b32 s40, {fl(L2E_HI)}
    s_mov_b32 s41, {fl(L2E_LO)}
    s_mov_b32 s42, {fl(LN2)}
    v_lshrrev_b32 v1, 1, v0
    v_and_b32 v1, 0x60, v1
    v_and_or_b32 v1, v0, 31, v1           ; n = 32 w + (lane & 31)
    s_lshl_b32 s3, s26, 8
    v_lshl_add_u32 v2, v1, 1, s3
    s_lshl_b32 s18, s26, 1
    v_mov_b32 v3, s18
    v_readfirstlane_b32 s19, v0
    s_lshr_b32 s19, s19, 6                ; wave
    s_waitcnt lgkmcnt(0)
    global_load_ushort v4, v2, s[8:9]
    global_load_ushort v8, v3, s[16:17]
    global_load_ushort v5, v2, s[10:11]
    global_load_ushort v6, v2, s[12:13]
    global_load_ushort v7, v2, s[14:15]
    v_and_b32 v20, 15, v0                 ; i / j
    v_bfe_u32 v21, v0, 4, 2               ; g
    ; hi0 = 128*(i>>3) + (i&7)
    v_lshrrev_b32 v23, 3, v20
    v_and_b32 v24, 7, v20
    v_lshl_add_u32 v23, v23, 7, v24
    v_cvt_f32_u32 v30, v23
    ; hi1 = (g''<2 ? 256+2g'' : 256*g'') + 128*((i>>1)&1) + 4*(i&1)
    v_lshrrev_b32 v23, 2, v20
    v_lshlrev_b32 v24, 1, v23
    v_add_u32 v24, 0x100, v24
    v_lshlrev_b32 v25, 8, v23
    v_cmp_gt_u32 vcc, 2, v23
    v_cndmask_b32 v24, v25, v24, vcc
    v_bfe_u32 v25, v20, 1, 1
    v_lshl_add_u32 v24, v25, 7, v24
    v_and_b32 v25, 1, v20
    v_lshl_add_u32 v24, v25, 2, v24
    v_cvt_f32_u32 v31, v24
    v_lshlrev_b32 v23, 7, v20
    v_add_u32 v23, 0x400, v23
    v_cvt_f32_u32 v32, v23                ; hi2
    v_lshlrev_b32 v23, 3, v20
    v_cvt_f32_u32 v33, v23                ; lo
    s_lshl_b32 s20, s19, 9
    v_lshl_add_u32 v34, v21, 6, s20
    v_lshrrev_b32 v23, 1, v21
    v_and_b32 v24, 1, v21
    v_lshlrev_b32 v24, 2, v24
    v_lshl_add_u32 v35, v23, 7, v24
    v_lshl_add_u32 v35, v20, 3, v35
    v_mov_b32 v36, 1
    v_mov_b32 v37, 2
    s_cmp_eq_u32 s19, 0
    s_cbranch_scc1 P_KA
    v_lshl_add_u32 v35, v21, 6, v20
    v_add_u32 v35, 0x200, v35
    v_mov_b32 v36, 16
    v_mov_b32 v37, 32
    s_cmp_lg_u32 s19, 1
    s_cbranch_scc1 P_KA
    v_lshl_add_u32 v23, v20, 2, v21
    v_add_u32 v23, 0x100, v23             ; seg1: 256 + g' + 4j ; o1=2 o2=64
    v_lshlrev_b32 v24, 6, v21
    v_lshl_add_u32 v24, v20, 1, v24
    v_add_u32 v24, 0x100, v24             ; seg2: 384 + 64(g'-2) + 2j ; o1=1 o2=32
    v_cmp_gt_u32 vcc, 2, v21
    v_cndmask_b32 v35, v24, v23, vcc
    v_cndmask_b32 v36, 1, 2, vcc
    v_cndmask_b32 v37, 32, 64, vcc
    P_KA:
    v_add_u32 v38, v36, v37
    v_add_lshl_u32 v36, v36, v35, 1
    v_add_lshl_u32 v37, v37, v35, 1
    v_add_lshl_u32 v38, v38, v35, 1
    v_lshlrev_b32 v35, 1, v35
    v_and_b32 v39, 63, v0
    v_lshlrev_b32 v39, 4, v39             ; lane*16
    s_waitcnt vmcnt(3)
    @STAMP 2
    v_lshlrev_b32 v4, 16, v4
    v_lshlrev_b32 v8, 16, v8
    """)
    exp_acc(k, 10, 8, 16, 17)
    exp_acc(k, 11, 4, 18, 19)
    k(f"""
    v_cvt_pk_bf16_f32 v10, v10, v11
    v_and_b32 v11, 0xffff0000, v10        ; eA
    v_lshlrev_b32 v10, 16, v10            ; dt
    v_mul_f32 v12, v11, v10
    v_mul_f32 v12, s40, v12
    v_sub_f32 v12, 0, v12
    s_waitcnt vmcnt(0)
    v_lshlrev_b32 v5, 16, v5
    v_lshlrev_b32 v6, 16, v6
    v_lshlrev_b32 v7, 16, v7
    v_mul_f32 v13, v5, v10
    v_mul_f32 v13, 0.15915494, v13
    v_add_f32 v10, v10, v10
    v_mul_f32 v14, v6, v10                ; 2*Cre*dt
    v_mul_f32 v15, v7, v10                ; 2*Cim*dt
    v_lshlrev_b32 v9, 4, v1
    ds_write_b128 v9, v[12:15]
    v_max3_f32 v16, |v14|, |v15|, 0
    v_max_f32_dpp v16, v16, v16 row_shr:1 row_mask:0xf bank_mask:0xf
    v_max_f32_dpp v16, v16, v16 row_shr:2 row_mask:0xf bank_mask:0xf
    v_max_f32_dpp v16, v16, v16 row_shr:4 row_mask:0xf bank_mask:0xf
    v_max_f32_dpp v16, v16, v16 row_shr:8 row_mask:0xf bank_mask:0xf
    v_max_f32_dpp v16, v16, v16 row_bcast:15 row_mask:0xa bank_mask:0xf
    v_readlane_b32 s23, v16, 31
    s_mov_b32 s20, 0
    @STAMP 3
    v_mov_b32 v16, s23
    v_bfe_u32 v16, v16, 23, 8
    v_max_u32 v16, 14, v16
    v_sub_u32 v17, 0x8c, v16
    v_cvt_f32_i32 v29, v17                ; kf = 140 - e'
    v_mov_b32 v28, 0
    v_subrev_u32 v16, 13, v16
    v_lshlrev_b32 v27, 23, v16            ; Sinv
    P_KLOOP:
    ds_read_b128 v[52:55], v34
    ds_read_b128 v[56:59], v34 offset:16
    ds_read_b128 v[60:63], v34 offset:32
    ds_read_b128 v[64:67], v34 offset:48
    v_add_u32 v34, 0x100, v34
    """)
    for nn in range(4):
        p = 52 + 4 * nn
        k(f"""
        s_waitcnt lgkmcnt({3-nn})
        v_pk_mul_f32 v[2:3], v[30:31], v[{p}:{p+1}] op_sel_hi:[1,0]
        v_pk_fma_f32 v[4:5], v[32:33], v[{p}:{p+1}], v[28:29] op_sel_hi:[1,0,1]
        v_pk_mul_f32 v[6:7], v[30:31], v[{p}:{p+1}] op_sel:[0,1] op_sel_hi:[1,1]
        v_pk_mul_f32 v[8:9], v[32:33], v[{p}:{p+1}] op_sel:[0,1] op_sel_hi:[1,1]
        v_exp_f32 v2, v2
        v_exp_f32 v3, v3
        v_exp_f32 v4, v4
        v_exp_f32 v5, v5
        v_fract_f32 v6, v6
        v_fract_f32 v7, v7
        v_fract_f32 v8, v8
        v_fract_f32 v9, v9
        v_cos_f32 v10, v6
        v_sin_f32 v11, v6
        v_cos_f32 v12, v7
        v_sin_f32 v13, v7
        v_cos_f32 v14, v8
        v_sin_f32 v15, v8
        v_cos_f32 v16, v9
        v_sin_f32 v17, v9
        v_pk_mul_f32 v[10:11], v[10:11], v[2:3] op_sel_hi:[1,0]
        v_pk_mul_f32 v[12:13], v[12:13], v[2:3] op_sel:[0,1] op_sel_hi:[1,1]
        v_pk_mul_f32 v[14:15], v[14:15], v[4:5] op_sel_hi:[1,0]
        v_pk_mul_f32 v[16:17], v[16:17], v[4:5] op_sel:[0,1] op_sel_hi:[1,1]
        v_cvt_pk_f16_f32 v{68+nn}, v10, v11
        v_cvt_pk_f16_f32 v{72+nn}, v12, v13
        v_cvt_pk_f16_f32 v{76+nn}, v14, v15
        v_pk_mul_f32 v[18:19], v[16:17], v[{p+2}:{p+3}] op_sel_hi:[1,0]
        v_pk_fma_f32 v[18:19], v[16:17], v[{p+2}:{p+3}], v[18:19] op_sel:[1,1,0] op_sel_hi:[0,1,1] neg_lo:[1,0,0]
        v_cvt_pk_f16_f32 v{80+nn}, v18, -v19
        """)
    k(f"""
    s_cmp_eq_u32 s20, 1
    s_cbranch_scc1 P_KL2
    v_mfma_f32_16x16x32_f16 v[40:43], v[68:71], v[80:83], 0
    v_mfma_f32_16x16x32_f16 v[44:47], v[72:75], v[80:83], 0
    v_mfma_f32_16x16x32_f16 v[48:51], v[76:79], v[80:83], 0
    s_mov_b32 s20, 1
    s_branch P_KLOOP
    P_KL2:
    v_mfma_f32_16x16x32_f16 v[40:43], v[68:71], v[80:83], v[40:43]
    v_mfma_f32_16x16x32_f16 v[44:47], v[72:75], v[80:83], v[44:47]
    v_mfma_f32_16x16x32_f16 v[48:51], v[76:79], v[80:83], v[48:51]
    @STAMP 4
    s_mul_i32 s20, s19, 3072
    v_add_u32 v2, s20, v39
    s_lshl_b32 s20, s19, 10
    v_add_u32 v3, s20, v39
    """)
    k("v_mov_b32 v26, v27")
    for r in range(40, 52, 2): k(f"v_pk_mul_f32 v[{r}:{r+1}], v[{r}:{r+1}], v[26:27]")
    k(f"""
    ds_write_b128 v2, v[40:43] offset:4096
    ds_write_b128 v2, v[44:47] offset:5120
    ds_write_b128 v2, v[48:51] offset:6144
    s_mul_i32 s3, s26, {KP_STRIDE}
    s_add_u32 s3, s3, {KP}
    v_lshlrev_b32 v1, 4, v0
    v_add_u32 v8, s3, v1
    s_waitcnt lgkmcnt(0)
    s_barrier
    s_cmp_eq_u32 s19, 3
    s_cbranch_scc1 P_KS
    ds_read_b128 v[40:43], v3 offset:4096
    ds_read_b128 v[44:47], v3 offset:{4096+3072}
    ds_read_b128 v[48:51], v3 offset:{4096+6144}
    ds_read_b128 v[4:7], v3 offset:{4096+9216}
    s_waitcnt lgkmcnt(2)
    v_pk_add_f32 v[40:41], v[40:41], v[44:45]
    v_pk_add_f32 v[42:43], v[42:43], v[46:47]
    s_waitcnt lgkmcnt(0)
    v_pk_add_f32 v[48:49], v[48:49], v[4:5]
    v_pk_add_f32 v[50:51], v[50:51], v[6:7]
    v_pk_add_f32 v[40:41], v[40:41], v[48:49]
    v_pk_add_f32 v[42:43], v[42:43], v[50:51]
    v_cvt_pk_bf16_f32 v40, v40, v41
    v_cvt_pk_bf16_f32 v42, v42, v43
    ds_write_b16 v35, v40 offset:{TB}
    ds_write_b16_d16_hi v36, v40 offset:{TB}
    ds_write_b16 v37, v42 offset:{TB}
    ds_write_b16_d16_hi v38, v42 offset:{TB}
    P_KS:
    s_waitcnt lgkmcnt(0)
    s_barrier
    @STAMP 5
    v_cmp_gt_u32 vcc, 0x60, v0
    s_and_saveexec_b64 s[22:23], vcc
    s_cbranch_execz P_KEND
    ds_read_b128 v[40:43], v1 offset:{TB}
    s_waitcnt lgkmcnt(0)
    global_store_dwordx4 v8, v[40:43], s[4:5]
    P_KEND:
    @FLUSH 6
    s_endpgm
    """)
    k.label("P_TR")
    PITCH = 144
    k(f"""
    s_load_dwordx2 s[8:9], s[0:1], {KA_U}
    s_load_dwordx4 s[16:19], s[0:1], {KA_WG}
    s_load_dwordx2 s[20:21], s[0:1], {KA_WD}
    s_sub_u32 s3, s2, {B_T}
    s_lshr_b32 s10, s3, 3                 ; lt (0..31)
    s_and_b32 s11, s3, 7                  ; dt (0..7)
    v_lshrrev_b32 v1, 3, v0               ; row 0..31
    v_and_b32 v2, 7, v0                   ; chunk
    s_lshl_b32 s12, s10, 16               ; lt*64*1024
    s_lshl_b32 s13, s11, 7
    s_add_u32 s12, s12, s13
    v_lshlrev_b32 v3, 10, v1
    v_lshl_add_u32 v3, v2, 4, v3
    v_add_u32 v3, s12, v3
    v_add_u32 v4, 0x8000, v3
    s_waitcnt lgkmcnt(0)
    global_load_dwordx4 v[8:11], v3, s[8:9]
    global_load_dwordx4 v[12:15], v4, s[8:9]
    v_lshrrev_b32 v41, 6, v0
    v_and_b32 v42, 63, v0
    s_lshl_b32 s14, s3, 13                ; 8 rows * 1024
    v_lshlrev_b32 v43, 11, v41
    v_lshl_add_u32 v43, v42, 4, v43
    v_add_u32 v43, s14, v43
    global_load_dwordx4 v[48:51], v43, s[8:9]
    global_load_dwordx4 v[52:55], v43, s[8:9] offset:1024
    s_setprio {LATE_PRIO}
    @WTOUCH
    v_mul_u32_u24 v5, {PITCH}, v1
    v_lshl_add_u32 v5, v2, 4, v5
    v_and_b32 v6, 15, v0                  ; lam
    v_bfe_u32 v7, v0, 4, 2                ; g
    v_lshrrev_b32 v16, 6, v0              ; w
    v_lshrrev_b32 v17, 2, v6              ; r = lam>>2
    v_lshl_add_u32 v17, v7, 3, v17        ; row = 8g + r
    v_mul_u32_u24 v17, {PITCH}, v17
    v_and_b32 v18, 3, v6
    v_lshl_add_u32 v17, v18, 3, v17       ; + c*8
    v_lshl_add_u32 v17, v16, 5, v17       ; + w*32 bytes
    """)
    if FUSE1:
        k(f"""
        s_setprio 3
        s_lshl_b32 s12, s10, 16
        s_lshl_b32 s13, s11, 12
        s_add_u32 s12, s12, s13
        s_add_u32 s12, s12, {XT0}
        v_lshl_add_u32 v19, v16, 4, v6
        v_lshlrev_b32 v19, 6, v19
        v_lshl_add_u32 v19, v7, 4, v19
        v_add_u32 v19, s12, v19
        v_add_u32 v44, 0x8000, v19
        """)
    else:
        k(f"""
    s_mul_i32 s12, s11, {64*XP}
    s_lshl_b32 s13, s10, 7
    s_add_u32 s12, s12, s13
    s_add_u32 s12, s12, {XT0}
    v_lshl_add_u32 v19, v16, 4, v6
    v_mul_u32_u24 v19, {XP}, v19
    v_lshl_add_u32 v19, v7, 4, v19
    v_add_u32 v19, s12, v19
        v_add_u32 v44, 64, v19
        """)
    k(f"""
    s_waitcnt vmcnt({5 if WTOUCH else 2})
    ds_write_b128 v5, v[8:11]
    ds_write_b128 v5, v[12:15] offset:{32*PITCH}
    s_waitcnt lgkmcnt(0)
    s_barrier
    ds_read_b64_tr_b16 v[8:9], v17
    ds_read_b64_tr_b16 v[10:11], v17 offset:{4*PITCH}
    ds_read_b64_tr_b16 v[12:13], v17 offset:{32*PITCH}
    ds_read_b64_tr_b16 v[14:15], v17 offset:{36*PITCH}
    s_waitcnt lgkmcnt(0)
    global_store_dwordx4 v19, v[8:11], s[4:5] {'sc1' if FUSE1 else PREP_X_POL}
    global_store_dwordx4 v44, v[12:15], s[4:5] {'sc1' if FUSE1 else PREP_X_POL}
    """)
    k(f"""
    v_mov_b32 v2, v42
    s_lshl_b32 s10, s3, 4
    v_lshlrev_b32 v4, 12, v41
    v_add_u32 v4, s10, v4                 ; w*4096 + wg*16
    v_add_u32 v5, {ST0}, v4
    v_add_u32 v6, {ST1}, v4
    s_waitcnt vmcnt({5 if WTOUCH else 2})
    """)
    for row, (base, sm, sq) in enumerate([(48, 20, 21), (52, 22, 23)]):
        for j in range(4):
            k(f"v_lshlrev_b32 v16, 16, v{base+j}")
            k(f"v_and_b32 v17, 0xffff0000, v{base+j}")
            if j == 0:
                k(f"v_add_f32 v{sm}, v16, v17")
                k(f"v_mul_f32 v{sq}, v16, v16")
            else:
                k(f"v_add_f32 v{sm}, v{sm}, v16")
                k(f"v_add_f32 v{sm}, v{sm}, v17")
                k(f"v_fmac_f32 v{sq}, v16, v16")
            k(f"v_fmac_f32 v{sq}, v17, v17")
    for sh in ("row_shr:1", "row_shr:2", "row_shr:4", "row_shr:8"):
        for r in range(20, 24):
            k(f"v_add_f32_dpp v{r}, v{r}, v{r} {sh} row_mask:0xf bank_mask:0xf bound_ctrl:0")
    for r in range(20, 24):
        k(f"v_add_f32_dpp v{r}, v{r}, v{r} row_bcast:15 row_mask:0xa bank_mask:0xf")
    for r in range(20, 24):
        k(f"v_add_f32_dpp v{r}, v{r}, v{r} row_bcast:31 row_mask:0xc bank_mask:0xf")
    k(f"""
    v_mov_b32 v24, 0
    v_mov_b32 v25, 0
    v_mov_b32 v26, 0
    v_mov_b32 v27, 0
    s_lshl_b32 s10, s3, 9
    s_add_u32 s10, s10, {ZR}
    v_and_b32 v7, 31, v0
    v_lshl_add_u32 v7, v7, 4, s10
    global_store_dwordx4 v7, v[24:27], s[4:5]
    v_cmp_eq_u32 vcc, 63, v2
    s_and_saveexec_b64 s[22:23], vcc
    global_store_dwordx4 v5, v[20:23], s[4:5] {'sc1' if FUSE1 else ''}
    global_store_dwordx4 v6, v[24:27], s[4:5]
    """)
    if FUSE1:
        k(f"""
        s_mov_b64 exec, -1
        s_and_b32 s10, s2, 3
        s_lshl_b32 s10, s10, 6
        v_mov_b32 v8, s10
        v_mov_b32 v9, 1
        v_cmp_eq_u32 vcc, 0, v0
        s_waitcnt vmcnt(0)
        s_barrier
        v_readfirstlane_b32 s10, v0
        s_cmp_lg_u32 s10, 0
        s_cbranch_scc1 P_TEND
        s_mov_b64 exec, 1
        global_atomic_add v10, v8, v9, s[28:29] sc0 sc1
        s_waitcnt vmcnt(0)
        v_readfirstlane_b32 s10, v10
        s_cmp_lg_u32 s10, {N_T // 4 - 1}
        s_cbranch_scc1 P_TEND
        v_mov_b32 v8, 4
        global_atomic_add v10, v8, v9, s[28:29] sc0 sc1
        s_waitcnt vmcnt(0)
        v_readfirstlane_b32 s10, v10
        s_cmp_lg_u32 s10, 3
        s_cbranch_scc1 P_TEND
        global_store_dword v8, v9, s[28:29] offset:4 sc1
        s_mov_b64 exec, -1
        v_lshlrev_b32 v8, 7, v0
        v_add_u32 v8, {GFB}, v8
        global_atomic_add v8, v9, s[4:5] sc1
        v_add_u32 v8, 0x2000, v8
        global_atomic_add v8, v9, s[4:5] sc1
        v_add_u32 v8, 0x2000, v8
        global_atomic_add v8, v9, s[4:5] sc1
        v_add_u32 v8, 0x2000, v8
        global_atomic_add v8, v9, s[4:5] sc1
        v_add_u32 v8, 0x2000, v8
        global_atomic_add v8, v9, s[4:5] sc1
        v_add_u32 v8, 0x2000, v8
        global_atomic_add v8, v9, s[4:5] sc1
        v_add_u32 v8, 0x2000, v8
        global_atomic_add v8, v9, s[4:5] sc1
        v_add_u32 v8, 0x2000, v8
        global_atomic_add v8, v9, s[4:5] sc1
        v_add_u32 v8, 0x2000, v8
        P_TEND:
        s_mov_b64 exec, -1
        s_setprio 0
        s_cmp_lt_u32 s2, {N_C}
        s_cbranch_scc1 P_C
        """)
    k("""
    @FLUSH 2
    s_endpgm
    """)
    k.label("P_W")
    WPITCH = 400
    k(f"""
    s_load_dwordx4 s[8:11], s[0:1], {KA_WG}
    s_sub_u32 s3, s2, {B_W}
    s_lshr_b32 s12, s3, 4                 ; ft
    s_and_b32 s13, s3, 15                 ; s
    """)
    k(f"""
    s_mul_i32 s14, s13, {32*F*2}
    s_mul_i32 s15, s12, 192
    s_add_u32 s14, s14, s15
    s_mul_i32 s16, s12, 12
    s_mov_b32 s17, 0x15555556
    """)
    k(f"v_mov_b32 v5, {F//8}")
    for i in range(2):
        k(f"""
        v_add_u32 v1, {256*i}, v0
        v_mul_hi_u32 v2, v1, s17
        v_mul_u32_u24 v3, 12, v2
        v_sub_u32 v3, v1, v3                  ; chunk
        v_mul_u32_u24 v4, {F*2}, v2
        v_lshl_add_u32 v4, v3, 4, v4
        v_add_u32 v{40+i}, s14, v4
        v_mul_u32_u24 v4, {WPITCH}, v2
        v_lshl_add_u32 v{42+i}, v3, 5, v4
        v_add_u32 v3, s16, v3
        v_cmp_gt_u32 s[{24+2*i}:{25+2*i}], v5, v3
        """)
    for r in range(8, 24): k(f"v_mov_b32 v{r}, 0")
    k(f"""
    v_cmp_gt_u32 vcc, 0x80, v0
    s_and_b64 s[26:27], s[26:27], vcc
    s_waitcnt lgkmcnt(0)
    s_mov_b64 s[28:29], exec
    s_mov_b64 exec, s[24:25]
    s_cbranch_execz P_W1
    global_load_dwordx4 v[8:11], v40, s[8:9]
    global_load_dwordx4 v[12:15], v40, s[10:11]
    P_W1:
    s_mov_b64 exec, s[26:27]
    s_cbranch_execz P_W2
    global_load_dwordx4 v[16:19], v41, s[8:9]
    global_load_dwordx4 v[20:23], v41, s[10:11]
    P_W2:
    s_setprio {LATE_PRIO}
    s_mov_b64 exec, s[28:29]
    s_waitcnt vmcnt(0)
    ds_write2_b32 v42, v8, v9 offset0:0 offset1:2
    ds_write2_b32 v42, v10, v11 offset0:4 offset1:6
    ds_write2_b32 v42, v12, v13 offset0:1 offset1:3
    ds_write2_b32 v42, v14, v15 offset0:5 offset1:7
    s_and_saveexec_b64 s[28:29], vcc
    s_cbranch_execz P_W3
    ds_write2_b32 v43, v16, v17 offset0:0 offset1:2
    ds_write2_b32 v43, v18, v19 offset0:4 offset1:6
    ds_write2_b32 v43, v20, v21 offset0:1 offset1:3
    ds_write2_b32 v43, v22, v23 offset0:5 offset1:7
    P_W3:
    s_mov_b64 exec, s[28:29]
    v_and_b32 v1, 15, v0
    v_bfe_u32 v2, v0, 4, 2
    v_lshrrev_b32 v3, 2, v1
    v_lshl_add_u32 v3, v2, 2, v3
    v_mul_u32_u24 v3, {WPITCH}, v3
    v_and_b32 v4, 3, v1
    v_lshl_add_u32 v3, v4, 3, v3
    v_readfirstlane_b32 s18, v0
    s_lshr_b32 s18, s18, 6                ; w
    s_lshl_b32 s19, s18, 7
    s_mov_b32 s20, 32
    s_cmp_eq_u32 s18, 3
    s_cselect_b32 s19, 96, s19
    s_cselect_b32 s20, 128, s20
    v_add_u32 v3, s19, v3
    v_add_u32 v4, s20, v3
    v_add_u32 v5, s20, v4
    s_lshl_b32 s21, s12, 2
    s_add_u32 s21, s21, s18
    s_lshl_b32 s21, s21, 4
    s_add_u32 s21, s21, s13
    s_mul_i32 s21, s21, 3072
    s_add_u32 s21, s21, {WP}
    v_and_b32 v6, 63, v0
    v_lshlrev_b32 v6, 4, v6
    v_add_u32 v6, s21, v6
    v_add_u32 v7, 0x400, v6
    v_add_u32 v24, 0x800, v6
    s_waitcnt lgkmcnt(0)
    s_barrier
    ds_read_b64_tr_b16 v[8:9], v3
    ds_read_b64_tr_b16 v[10:11], v3 offset:{16*WPITCH}
    ds_read_b64_tr_b16 v[12:13], v4
    ds_read_b64_tr_b16 v[14:15], v4 offset:{16*WPITCH}
    ds_read_b64_tr_b16 v[16:17], v5
    ds_read_b64_tr_b16 v[18:19], v5 offset:{16*WPITCH}
    s_waitcnt lgkmcnt(0)
    global_store_dwordx4 v6, v[8:11], s[4:5] {PREP_W_POL}
    global_store_dwordx4 v7, v[12:15], s[4:5] {PREP_W_POL}
    global_store_dwordx4 v24, v[16:19], s[4:5] {PREP_W_POL}
    @FLUSH 2
    s_endpgm
    """)
    k.label("P_D")
    DPITCH = 272
    k(f"""
    s_load_dwordx2 s[8:9], s[0:1], {KA_WD}
    s_sub_u32 s3, s2, {B_D}
    s_lshr_b32 s12, s3, 2                 ; ks 0..43
    s_and_b32 s13, s3, 3                  ; dq
    v_lshrrev_b32 v1, 4, v0               ; row 0..15 (+16)
    v_and_b32 v2, 15, v0                  ; chunk
    s_lshl_b32 s14, s12, 15               ; ks*32*1024
    s_lshl_b32 s15, s13, 8
    s_add_u32 s14, s14, s15
    v_lshlrev_b32 v3, 10, v1
    v_lshl_add_u32 v3, v2, 4, v3
    v_add_u32 v3, s14, v3
    v_add_u32 v4, 0x4000, v3
    """)
    for r in range(8, 16): k(f"v_mov_b32 v{r}, 0")
    k(f"""
    s_waitcnt lgkmcnt(0)
    s_cmp_ge_u32 s12, 43
    s_cbranch_scc1 P_D1
    global_load_dwordx4 v[8:11], v3, s[8:9]
    global_load_dwordx4 v[12:15], v4, s[8:9]
    P_D1:
    s_setprio {LATE_PRIO}
    v_bfe_u32 v5, v1, 1, 2                ; g
    v_lshrrev_b32 v6, 3, v1               ; dw (0/1)
    v_and_b32 v7, 1, v1
    v_lshl_add_u32 v7, v6, 1, v7
    v_lshl_add_u32 v7, v5, 3, v7          ; rho
    v_mul_u32_u24 v7, {DPITCH}, v7
    v_lshl_add_u32 v7, v2, 4, v7
    v_and_b32 v1, 15, v0
    v_bfe_u32 v2, v0, 4, 2
    v_lshrrev_b32 v16, 6, v0
    v_lshrrev_b32 v3, 2, v1
    v_lshl_add_u32 v3, v2, 3, v3          ; row = 8g + r
    v_mul_u32_u24 v3, {DPITCH}, v3
    v_and_b32 v4, 3, v1
    v_lshl_add_u32 v3, v4, 3, v3          ; + c*8 bytes (4 d)
    v_lshl_add_u32 v3, v16, 6, v3         ; + w*64
    s_lshl_b32 s16, s13, 3
    v_lshl_add_u32 v17, v16, 1, s16
    v_mul_u32_u24 v17, {NKS2*1024}, v17
    v_and_b32 v18, 63, v0
    v_lshl_add_u32 v17, v18, 4, v17
    s_lshl_b32 s16, s12, 10
    s_add_u32 s16, s16, {WD}
    v_add_u32 v17, s16, v17
    v_add_u32 v18, {NKS2*1024}, v17
    s_waitcnt vmcnt(0)
    ds_write_b128 v7, v[8:11]
    ds_write_b128 v7, v[12:15] offset:{4*DPITCH}
    s_waitcnt lgkmcnt(0)
    s_barrier
    ds_read_b64_tr_b16 v[8:9], v3
    ds_read_b64_tr_b16 v[10:11], v3 offset:{4*DPITCH}
    ds_read_b64_tr_b16 v[12:13], v3 offset:32
    ds_read_b64_tr_b16 v[14:15], v3 offset:{4*DPITCH+32}
    s_waitcnt lgkmcnt(0)
    global_store_dwordx4 v17, v[8:11], s[4:5] {PREP_W_POL}
    global_store_dwordx4 v18, v[12:15], s[4:5] {PREP_W_POL}
    @FLUSH 2
    s_endpgm
    """)
    k.label("P_C")
    k(f"""
    s_load_dwordx4 s[8:11], s[0:1], {KA_WG}
    s_sub_u32 s3, s2, {B_C}
    s_and_b32 s12, s3, 1                  ; mat
    s_lshr_b32 s13, s3, 1                 ; cb 0..44
    v_lshrrev_b32 v1, 2, v0
    v_and_b32 v2, 3, v0                   ; chunk
    s_lshl_b32 s14, s13, 6
    v_mul_u32_u24 v4, {F*2}, v1
    v_lshl_add_u32 v4, v2, 4, v4
    v_add_u32 v4, s14, v4
    """)
    for r in range(8, 16): k(f"v_mov_b32 v{r}, 0")
    k(f"""
    s_waitcnt lgkmcnt(0)
    s_cmp_eq_u32 s12, 1
    s_cselect_b32 s8, s10, s8
    s_cselect_b32 s9, s11, s9
    s_cmp_ge_u32 s13, 43
    s_cbranch_scc1 P_C2
    """)
    for i in range(8):
        k(f"global_load_dwordx4 v[{16+4*i}:{19+4*i}], v4, s[8:9]")
        if i < 7: k(f"v_add_u32 v4, {64*F*2}, v4")
    k(f"s_setprio {LATE_PRIO}")
    for i in range(8):
        k(f"s_waitcnt vmcnt({7-i})")
        for j in range(4):
            k(f"v_lshlrev_b32 v6, 16, v{16+4*i+j}")
            k(f"v_and_b32 v7, 0xffff0000, v{16+4*i+j}")
            k(f"v_pk_add_f32 v[{8+2*j}:{9+2*j}], v[{8+2*j}:{9+2*j}], v[6:7]")
    for sh in ("row_shr:4", "row_shr:8"):
        for r in range(8, 16):
            k(f"v_add_f32_dpp v{r}, v{r}, v{r} {sh} row_mask:0xf bank_mask:0xf bound_ctrl:0")
    k(f"""
    P_C2:
    v_lshrrev_b32 v6, 4, v0
    v_lshlrev_b32 v6, 7, v6
    v_lshl_add_u32 v6, v2, 5, v6
    v_and_b32 v7, 12, v0
    v_cmp_eq_u32 vcc, 12, v7
    s_and_saveexec_b64 s[46:47], vcc
    ds_write_b128 v6, v[8:11]
    ds_write_b128 v6, v[12:15] offset:16
    s_mov_b64 exec, s[46:47]
    s_waitcnt lgkmcnt(0)
    s_barrier
    v_cmp_gt_u32 vcc, 32, v0
    s_and_saveexec_b64 s[46:47], vcc
    s_cbranch_execz P_C3
    v_lshlrev_b32 v6, 2, v0
    """)
    for i in range(16):
        k(f"ds_read_b32 v{16+i}, v6 offset:{128*i}")
    k(f"""
    s_mul_i32 s14, s13, 0x5556
    s_lshr_b32 s14, s14, 16               ; ft
    s_mul_i32 s15, s14, 3
    s_sub_u32 s15, s13, s15               ; j
    s_mul_i32 s16, s15, 3
    s_add_u32 s17, s15, 9
    v_lshrrev_b32 v5, 3, v0               ; dw
    v_add_u32 v7, s16, v5
    v_mov_b32 v8, s17
    v_cmp_eq_u32 vcc, 3, v5
    v_cndmask_b32 v7, v7, v8, vcc         ; w*3+tau
    s_mul_i32 s14, s14, 12
    v_add_u32 v7, s14, v7
    v_lshlrev_b32 v7, 4, v7
    v_bfe_u32 v8, v0, 1, 2
    v_lshl_add_u32 v7, v8, 2, v7
    v_and_b32 v8, 1, v0
    v_add_u32 v7, v7, v8
    s_lshl_b32 s14, s12, 1
    v_add_u32 v7, s14, v7
    v_lshlrev_b32 v7, 2, v7
    v_add_u32 v7, {CSUM}, v7
    s_waitcnt lgkmcnt(0)
    """)
    for st in (8, 4, 2, 1):
        for i in range(st):
            k(f"v_add_f32 v{16+i}, v{16+i}, v{16+i+st}")
    k(f"""
    global_store_dword v7, v16, s[4:5]
    P_C3:
    @FLUSH 2
    s_endpgm
    """)
    return k, dict(vgpr=96, sgpr=48, accum=96, grid=PREP_WGS, block=256, lds=PREP_LDS)


def stats_pair(k, sa, qa, sb, qb, t, keep=None):
    for s_, q_ in ((sa, qa), (sb, qb)):
        k(f"""
        v_mul_f32 v{s_}, s43, v{s_}
        v_mul_f32 v{q_}, s43, v{q_}
        v_fma_f32 v{q_}, -v{s_}, v{s_}, v{q_}
        v_max_f32 v{q_}, 0, v{q_}
        v_cvt_pk_bf16_f32 v{q_}, v{s_}, v{q_}
        v_lshlrev_b32 v{s_}, 16, v{q_}
        v_and_b32 v{q_}, 0xffff0000, v{q_}
        v_add_f32 v{q_}, s44, v{q_}
        """)
    k(f"""
    v_cvt_pk_bf16_f32 v{t}, v{qa}, v{qb}
    v_lshlrev_b32 v{qa}, 16, v{t}
    v_and_b32 v{qb}, 0xffff0000, v{t}
    v_sqrt_f32 v{qa}, v{qa}
    v_sqrt_f32 v{qb}, v{qb}
    v_cvt_pk_bf16_f32 v{t}, v{qa}, v{qb}
    v_lshlrev_b32 v{keep[0] if keep else qa}, 16, v{t}
    v_and_b32 v{keep[1] if keep else qb}, 0xffff0000, v{t}
    v_rcp_f32 v{qa}, v{keep[0] if keep else qa}
    v_rcp_f32 v{qb}, v{keep[1] if keep else qb}
    """)


def conv_stats_norm(k, wait_x):
    for i in range(4):
        b = 16 + 4 * i
        k(f"""
        v_pk_mul_f32 v[{b}:{b+1}], v[{b}:{b+1}], s[46:47]
        v_pk_mul_f32 v[{b+2}:{b+3}], v[{b+2}:{b+3}], s[46:47]
        v_fma_f32 v{b+1}, -v{b}, v{b}, v{b+1}
        v_fma_f32 v{b+3}, -v{b+2}, v{b+2}, v{b+3}
        v_cvt_pk_bf16_f32 v{b}, v{b}, v{b+2}          ; (m_a, m_b)
        v_cvt_pk_bf16_f32 v{b+2}, v{b+1}, v{b+3}
        v_and_b32 v{b+1}, 0xffff0000, v{b}
        v_lshlrev_b32 v{b}, 16, v{b}                  ; v[b:b+1] = (m_a, m_b) f32
        v_and_b32 v{b+3}, 0xffff0000, v{b+2}
        v_lshlrev_b32 v{b+2}, 16, v{b+2}
        v_max_f32 v{b+2}, 0, v{b+2}
        v_max_f32 v{b+3}, 0, v{b+3}
        v_pk_add_f32 v[{b+2}:{b+3}], v[{b+2}:{b+3}], s[44:45]
        v_cvt_pk_bf16_f32 v{b+2}, v{b+2}, v{b+3}
        v_and_b32 v{b+3}, 0xffff0000, v{b+2}
        v_lshlrev_b32 v{b+2}, 16, v{b+2}
        v_sqrt_f32 v{b+2}, v{b+2}
        v_sqrt_f32 v{b+3}, v{b+3}
        """)
    for i in range(4):
        b = 16 + 4 * i
        k(f"""
        v_cvt_pk_bf16_f32 v{b+2}, v{b+2}, v{b+3}
        v_and_b32 v{b+3}, 0xffff0000, v{b+2}
        v_lshlrev_b32 v{b+2}, 16, v{b+2}
        v_rcp_f32 v{b+2}, v{b+2}
        v_rcp_f32 v{b+3}, v{b+3}
        """)
    k(wait_x)
    for j in range(4):
        b = 16 + 4 * j
        k(f"""
        v_lshlrev_b32 v40, 16, v{12+j}
        v_and_b32 v41, 0xffff0000, v{12+j}
        v_pk_add_f32 v[40:41], v[40:41], v[{b}:{b+1}] neg_lo:[0,1] neg_hi:[0,1]
        v_cvt_pk_bf16_f32 v41, v40, v41
        v_lshlrev_b32 v40, 16, v41
        v_and_b32 v41, 0xffff0000, v41
        v_pk_mul_f32 v[40:41], v[40:41], v[{b+2}:{b+3}]
        v_cvt_pk_bf16_f32 v{32+j}, v40, v41
        """)
    k(f"""
    ds_write_b128 v1, v[32:35] offset:{CSU + 16*28}
    ds_write2_b64 v1, v[32:33], v[34:35] offset0:57 offset1:58
    """)

def gen_f1():
    k = Kern("f1")
    WPITCH = 400; DPITCH = 272
    US = KL
    KS = CRED; TB = KS + 2304
    k(f"""
    f1_kernel:
    @KID 0
    @INIT
    s_load_dwordx2 s[4:5], s[0:1], {KA_WS}
    s_load_dwordx2 s[28:29], s[0:1], {KA_DBG}
    @CODEPF
    s_cmp_lt_u32 s2, {N_T}
    s_cbranch_scc1 P_TR
    s_cmp_ge_u32 s2, {N_T + N_K}
    s_cbranch_scc1 CONV_END
    """)
    kk = Remap(k, 64, {19: 33, 20: 34, 23: 35, 24: 36, 3: 37, 22: 38, 18: 45})
    kk(f"""
    @KID 1
    s_load_dwordx4 s[8:11], s[0:1], {KA_LOGA}
    s_load_dwordx4 s[12:15], s[0:1], {KA_CRE}
    s_load_dwordx2 s[16:17], s[0:1], {KA_LOGDT}
    s_load_dwordx2 s[6:7], s[0:1], {KA_DSKIP}
    s_load_dwordx4 s[48:51], s[0:1], {KA_WG}
    s_load_dwordx2 s[52:53], s[0:1], {KA_WD}
    s_sub_u32 s2, s2, {N_T}
    s_mov_b32 s40, {fl(L2E_HI)}
    s_mov_b32 s41, {fl(L2E_LO)}
    s_mov_b32 s42, {fl(LN2)}
    v_lshrrev_b32 v1, 1, v0
    v_and_b32 v1, 0x60, v1
    v_and_or_b32 v1, v0, 31, v1           ; n = 32 w + (lane & 31)
    s_lshl_b32 s3, s2, 8
    v_lshl_add_u32 v2, v1, 1, s3
    s_lshl_b32 s18, s2, 1
    v_mov_b32 v3, s18
    v_readfirstlane_b32 s19, v0
    s_lshr_b32 s19, s19, 6                ; wave
    v_and_b32 v20, 15, v0                 ; i / j
    v_bfe_u32 v21, v0, 4, 2               ; g
    ; hi0 = 128*(i>>3) + (i&7)
    v_lshrrev_b32 v23, 3, v20
    v_and_b32 v24, 7, v20
    v_lshl_add_u32 v23, v23, 7, v24
    v_cvt_f32_u32 v30, v23
    ; hi1 = (g''<2 ? 256+2g'' : 256*g'') + 128*((i>>1)&1) + 4*(i&1)
    v_lshrrev_b32 v23, 2, v20
    v_lshlrev_b32 v24, 1, v23
    v_add_u32 v24, 0x100, v24
    v_lshlrev_b32 v25, 8, v23
    v_cmp_gt_u32 vcc, 2, v23
    v_cndmask_b32 v24, v25, v24, vcc
    v_bfe_u32 v25, v20, 1, 1
    v_lshl_add_u32 v24, v25, 7, v24
    v_and_b32 v25, 1, v20
    v_lshl_add_u32 v24, v25, 2, v24
    v_cvt_f32_u32 v31, v24
    v_lshlrev_b32 v23, 7, v20
    v_add_u32 v23, 0x400, v23
    v_cvt_f32_u32 v32, v23                ; hi2
    v_lshlrev_b32 v23, 3, v20
    v_cvt_f32_u32 v33, v23                ; lo
    s_lshl_b32 s20, s19, 9
    v_lshl_add_u32 v34, v21, 6, s20
    v_lshrrev_b32 v23, 1, v21
    v_and_b32 v24, 1, v21
    v_lshlrev_b32 v24, 2, v24
    v_lshl_add_u32 v35, v23, 7, v24
    v_lshl_add_u32 v35, v20, 3, v35
    v_mov_b32 v36, 1
    v_mov_b32 v37, 2
    s_cmp_eq_u32 s19, 0
    s_cbranch_scc1 F_KA
    v_lshl_add_u32 v35, v21, 6, v20
    v_add_u32 v35, 0x200, v35
    v_mov_b32 v36, 16
    v_mov_b32 v37, 32
    s_cmp_lg_u32 s19, 1
    s_cbranch_scc1 F_KA
    v_lshl_add_u32 v23, v20, 2, v21
    v_add_u32 v23, 0x100, v23             ; seg1: 256 + g' + 4j ; o1=2 o2=64
    v_lshlrev_b32 v24, 6, v21
    v_lshl_add_u32 v24, v20, 1, v24
    v_add_u32 v24, 0x100, v24             ; seg2: 384 + 64(g'-2) + 2j ; o1=1 o2=32
    v_cmp_gt_u32 vcc, 2, v21
    v_cndmask_b32 v35, v24, v23, vcc
    v_cndmask_b32 v36, 1, 2, vcc
    v_cndmask_b32 v37, 32, 64, vcc
    F_KA:
    v_add_u32 v38, v36, v37
    v_add_lshl_u32 v36, v36, v35, 1
    v_add_lshl_u32 v37, v37, v35, 1
    v_add_lshl_u32 v38, v38, v35, 1
    v_lshlrev_b32 v35, 1, v35
    v_and_b32 v39, 63, v0
    v_lshlrev_b32 v39, 4, v39             ; lane*16
    s_waitcnt lgkmcnt(0)
    global_load_ushort v84, v2, s[8:9]
    @GFLOAD
    global_load_ushort v85, v3, s[16:17]
    global_load_ushort v86, v2, s[10:11]
    global_load_ushort v87, v2, s[12:13]
    global_load_ushort v88, v2, s[14:15]
    v_mov_b32 v89, v1
    """)
    k(f"""
    s_mov_b32 s30, 0
    s_mov_b32 s31, {ST0}
    s_mov_b32 s32, {X1T}
    s_mov_b32 s18, {TB}
    """)
    conv_setup(k)
    k("s_load_dword s20, s[6:7], s16")
    srd(k, 8, 4, WS_BYTES)
    conv_p3(k, kzero=False)
    k(f"""
    v_and_b32 v61, 3, v0
    v_mov_b32 v62, 0
    v_lshrrev_b32 v60, 2, v0
    v_lshlrev_b32 v60, 15, v60
    v_lshl_add_u32 v60, v61, 4, v60       ; x voffset
    s_lshl_b32 s13, s2, 6
    s_add_u32 s13, s13, {XT0}
    """)
    k("s_waitcnt vmcnt(0)")
    kk(f"""
    v_mov_b32 v4, v84
    v_mov_b32 v8, v85
    v_mov_b32 v5, v86
    v_mov_b32 v6, v87
    v_mov_b32 v7, v88
    v_mov_b32 v1, v89
    @STAMP 10
    v_lshlrev_b32 v4, 16, v4
    v_lshlrev_b32 v8, 16, v8
    """)
    exp_acc(kk, 10, 8, 16, 17)
    exp_acc(kk, 11, 4, 18, 19)
    kk(f"""
    v_cvt_pk_bf16_f32 v10, v10, v11
    v_and_b32 v11, 0xffff0000, v10        ; eA
    v_lshlrev_b32 v10, 16, v10            ; dt
    v_mul_f32 v12, v11, v10
    v_mul_f32 v12, s40, v12
    v_sub_f32 v12, 0, v12
    v_lshlrev_b32 v5, 16, v5
    v_lshlrev_b32 v6, 16, v6
    v_lshlrev_b32 v7, 16, v7
    v_mul_f32 v13, v5, v10
    v_mul_f32 v13, 0.15915494, v13
    v_add_f32 v10, v10, v10
    v_mul_f32 v14, v6, v10                ; 2*Cre*dt
    v_mul_f32 v15, v7, v10                ; 2*Cim*dt
    v_lshlrev_b32 v9, 4, v1
    ds_write_b128 v9, v[12:15] offset:{KS}
    v_max3_f32 v16, |v14|, |v15|, 0
    v_max_f32_dpp v16, v16, v16 row_shr:1 row_mask:0xf bank_mask:0xf
    v_max_f32_dpp v16, v16, v16 row_shr:2 row_mask:0xf bank_mask:0xf
    v_max_f32_dpp v16, v16, v16 row_shr:4 row_mask:0xf bank_mask:0xf
    v_max_f32_dpp v16, v16, v16 row_shr:8 row_mask:0xf bank_mask:0xf
    v_max_f32_dpp v16, v16, v16 row_bcast:15 row_mask:0xa bank_mask:0xf
    v_readlane_b32 s23, v16, 31
    s_mov_b32 s20, 0
    @STAMP 11
    v_mov_b32 v16, s23
    v_bfe_u32 v16, v16, 23, 8
    v_max_u32 v16, 14, v16
    v_sub_u32 v17, 0x8c, v16
    v_cvt_f32_i32 v29, v17                ; kf = 140 - e'
    v_mov_b32 v28, 0
    v_subrev_u32 v16, 13, v16
    v_lshlrev_b32 v27, 23, v16            ; Sinv
    F_KLOOP:
    ds_read_b128 v[52:55], v34 offset:{KS}
    ds_read_b128 v[56:59], v34 offset:{KS+16}
    ds_read_b128 v[60:63], v34 offset:{KS+32}
    ds_read_b128 v[64:67], v34 offset:{KS+48}
    v_add_u32 v34, 0x100, v34
    """)
    for nn in range(4):
        p = 52 + 4 * nn
        kk(f"""
        s_waitcnt lgkmcnt({3-nn})
        v_pk_mul_f32 v[2:3], v[30:31], v[{p}:{p+1}] op_sel_hi:[1,0]
        v_pk_fma_f32 v[4:5], v[32:33], v[{p}:{p+1}], v[28:29] op_sel_hi:[1,0,1]
        v_pk_mul_f32 v[6:7], v[30:31], v[{p}:{p+1}] op_sel:[0,1] op_sel_hi:[1,1]
        v_pk_mul_f32 v[8:9], v[32:33], v[{p}:{p+1}] op_sel:[0,1] op_sel_hi:[1,1]
        v_exp_f32 v2, v2
        v_exp_f32 v3, v3
        v_exp_f32 v4, v4
        v_exp_f32 v5, v5
        v_fract_f32 v6, v6
        v_fract_f32 v7, v7
        v_fract_f32 v8, v8
        v_fract_f32 v9, v9
        v_cos_f32 v10, v6
        v_sin_f32 v11, v6
        v_cos_f32 v12, v7
        v_sin_f32 v13, v7
        v_cos_f32 v14, v8
        v_sin_f32 v15, v8
        v_cos_f32 v16, v9
        v_sin_f32 v17, v9
        v_pk_mul_f32 v[10:11], v[10:11], v[2:3] op_sel_hi:[1,0]
        v_pk_mul_f32 v[12:13], v[12:13], v[2:3] op_sel:[0,1] op_sel_hi:[1,1]
        v_pk_mul_f32 v[14:15], v[14:15], v[4:5] op_sel_hi:[1,0]
        v_pk_mul_f32 v[16:17], v[16:17], v[4:5] op_sel:[0,1] op_sel_hi:[1,1]
        v_cvt_pk_f16_f32 v{68+nn}, v10, v11
        v_cvt_pk_f16_f32 v{72+nn}, v12, v13
        v_cvt_pk_f16_f32 v{76+nn}, v14, v15
        v_pk_mul_f32 v[18:19], v[16:17], v[{p+2}:{p+3}] op_sel_hi:[1,0]
        v_pk_fma_f32 v[18:19], v[16:17], v[{p+2}:{p+3}], v[18:19] op_sel:[1,1,0] op_sel_hi:[0,1,1] neg_lo:[1,0,0]
        v_cvt_pk_f16_f32 v{80+nn}, v18, -v19
        """)
    kk(f"""
    s_cmp_eq_u32 s20, 1
    s_cbranch_scc1 F_KL2
    v_mfma_f32_16x16x32_f16 v[40:43], v[68:71], v[80:83], 0
    v_mfma_f32_16x16x32_f16 v[44:47], v[72:75], v[80:83], 0
    v_mfma_f32_16x16x32_f16 v[48:51], v[76:79], v[80:83], 0
    s_mov_b32 s20, 1
    s_branch F_KLOOP
    F_KL2:
    v_mfma_f32_16x16x32_f16 v[40:43], v[68:71], v[80:83], v[40:43]
    v_mfma_f32_16x16x32_f16 v[44:47], v[72:75], v[80:83], v[44:47]
    v_mfma_f32_16x16x32_f16 v[48:51], v[76:79], v[80:83], v[48:51]
    @STAMP 12
    s_mul_i32 s20, s19, 3072
    v_add_u32 v2, s20, v39
    s_lshl_b32 s20, s19, 10
    v_add_u32 v3, s20, v39
    v_mov_b32 v26, v27
    """)
    for r in range(40, 52, 2): kk(f"v_pk_mul_f32 v[{r}:{r+1}], v[{r}:{r+1}], v[26:27]")
    kk(f"""
    ds_write_b128 v2, v[40:43] offset:{KS+4096}
    ds_write_b128 v2, v[44:47] offset:{KS+5120}
    ds_write_b128 v2, v[48:51] offset:{KS+6144}
    """)
    k0 = k; k = Remap2(UnitS(k0), {1: 154, 2: 155, 6: 156, 7: 157, 8: 158, 9: 159, 10: 160, 11: 161})
    for r in list(range(16, 32)) + list(range(41, 48)): k(f"v_mov_b32 v{r}, 0")
    k(f"""
    s_mov_b32 s54, 2
    s_cmp_ge_u32 s2, {N_W + N_D}
    s_cbranch_scc1 U_LDONE
    s_cmp_ge_u32 s2, {N_W}
    s_cbranch_scc1 U_LD
    s_mov_b32 s54, 0
    s_lshr_b32 s12, s2, 4                 ; ft
    s_and_b32 s13, s2, 15                 ; s
    s_mul_i32 s14, s13, {32*F*2}
    s_mul_i32 s15, s12, 192
    s_add_u32 s14, s14, s15
    s_mul_i32 s16, s12, 12
    s_mov_b32 s17, 0x15555556
    v_mov_b32 v11, {F//8}
    """)
    for i in range(2):
        k(f"""
        v_add_u32 v1, {256*i}, v0
        v_mul_hi_u32 v2, v1, s17
        v_mul_u32_u24 v6, 12, v2
        v_sub_u32 v6, v1, v6                  ; chunk
        v_mul_u32_u24 v7, {F*2}, v2
        v_lshl_add_u32 v7, v6, 4, v7
        v_add_u32 v{8+i}, s14, v7
        v_mul_u32_u24 v7, {WPITCH}, v2
        v_lshl_add_u32 v{41+i}, v6, 5, v7
        v_add_u32 v6, s16, v6
        v_cmp_gt_u32 s[{24+2*i}:{25+2*i}], v11, v6
        """)
    k(f"""
    s_mov_b64 exec, s[24:25]
    s_cbranch_execz U_W1
    global_load_dwordx4 v[16:19], v8, s[48:49]
    global_load_dwordx4 v[20:23], v8, s[50:51]
    U_W1:
    s_mov_b64 exec, -1
    s_cmp_ge_u32 s33, 2
    s_cbranch_scc1 U_W2
    s_mov_b64 exec, s[26:27]
    s_cbranch_execz U_W2
    global_load_dwordx4 v[24:27], v9, s[48:49]
    global_load_dwordx4 v[28:31], v9, s[50:51]
    U_W2:
    s_mov_b64 exec, -1
    v_add_u32 v41, {US}, v41
    v_add_u32 v42, {US}, v42
    v_lshrrev_b32 v6, 2, v3
    v_lshl_add_u32 v6, v4, 2, v6
    v_mul_u32_u24 v6, {WPITCH}, v6
    v_and_b32 v7, 3, v3
    v_lshl_add_u32 v6, v7, 3, v6
    s_lshl_b32 s18, s33, 7
    s_mov_b32 s19, 32
    s_cmp_eq_u32 s33, 3
    s_cselect_b32 s18, 96, s18
    s_cselect_b32 s19, 128, s19
    s_add_u32 s18, s18, {US}
    v_add_u32 v43, s18, v6
    v_add_u32 v44, s19, v43
    v_add_u32 v45, s19, v44
    s_lshl_b32 s21, s12, 2
    s_add_u32 s21, s21, s33
    s_lshl_b32 s21, s21, 4
    s_add_u32 s21, s21, s13
    s_mul_i32 s21, s21, 3072
    s_add_u32 s21, s21, {WP}
    v_lshl_add_u32 v46, v5, 4, s21
    s_branch U_LDONE
    U_LD:
    s_mov_b32 s54, 1
    s_sub_u32 s3, s2, {N_W}
    s_lshr_b32 s12, s3, 2                 ; ks
    s_and_b32 s13, s3, 3                  ; dq
    v_lshrrev_b32 v1, 4, v0               ; row 0..15 (+16)
    s_lshl_b32 s14, s12, 15
    s_lshl_b32 s15, s13, 8
    s_add_u32 s14, s14, s15
    v_lshlrev_b32 v6, 10, v1
    v_lshl_add_u32 v6, v3, 4, v6
    v_add_u32 v6, s14, v6
    v_add_u32 v7, 0x4000, v6
    s_cmp_ge_u32 s12, 43
    s_cbranch_scc1 U_D1
    global_load_dwordx4 v[16:19], v6, s[52:53]
    global_load_dwordx4 v[20:23], v7, s[52:53]
    U_D1:
    v_bfe_u32 v8, v1, 1, 2
    v_lshrrev_b32 v9, 3, v1
    v_and_b32 v10, 1, v1
    v_lshl_add_u32 v10, v9, 1, v10
    v_lshl_add_u32 v10, v8, 3, v10        ; rho
    v_mul_u32_u24 v10, {DPITCH}, v10
    v_lshl_add_u32 v10, v3, 4, v10
    v_add_u32 v41, {US}, v10
    v_lshrrev_b32 v6, 2, v3
    v_lshl_add_u32 v6, v4, 3, v6
    v_mul_u32_u24 v6, {DPITCH}, v6
    v_and_b32 v7, 3, v3
    v_lshl_add_u32 v6, v7, 3, v6
    s_lshl_b32 s18, s33, 6
    s_add_u32 s18, s18, {US}
    v_add_u32 v43, s18, v6
    s_lshl_b32 s16, s13, 3
    s_lshl_b32 s17, s33, 1
    s_add_u32 s16, s16, s17
    s_mul_i32 s16, s16, {NKS2*1024}
    s_lshl_b32 s17, s12, 10
    s_add_u32 s16, s16, s17
    s_add_u32 s16, s16, {WD}
    v_lshl_add_u32 v46, v5, 4, s16
    v_add_u32 v47, {NKS2*1024}, v46
    U_LDONE:
    """)
    k = k0
    k(f"""
    s_waitcnt vmcnt(0)
    s_cmp_eq_u32 s54, 2
    s_cbranch_scc1 U_SDONE
    s_cmp_eq_u32 s54, 1
    s_cbranch_scc1 U_SD
    ds_write2_b32 v41, v16, v17 offset0:0 offset1:2
    ds_write2_b32 v41, v18, v19 offset0:4 offset1:6
    ds_write2_b32 v41, v20, v21 offset0:1 offset1:3
    ds_write2_b32 v41, v22, v23 offset0:5 offset1:7
    s_cmp_ge_u32 s17, 2
    s_cbranch_scc1 U_SDONE
    ds_write2_b32 v42, v24, v25 offset0:0 offset1:2
    ds_write2_b32 v42, v26, v27 offset0:4 offset1:6
    ds_write2_b32 v42, v28, v29 offset0:1 offset1:3
    ds_write2_b32 v42, v30, v31 offset0:5 offset1:7
    s_branch U_SDONE
    U_SD:
    ds_write_b128 v41, v[16:19]
    ds_write_b128 v41, v[20:23] offset:{4*DPITCH}
    U_SDONE:
    s_cmp_lg_u32 s17, 3
    s_cbranch_scc1 F1_GO
    s_mov_b32 s26, 0
    F1_CHK:
    global_load_dword v59, v165, s[4:5] sc1
    s_waitcnt vmcnt(0)
    v_cmp_ne_u32 vcc, v59, v164
    s_cmp_lg_u64 vcc, 0
    s_cbranch_scc1 F1_GO
    s_add_u32 s26, s26, 1
    s_cmp_ge_u32 s26, {SPIN_MAX >> 2}
    s_cbranch_scc1 F1_GO
    s_sleep {F1_SLEEP}
    s_and_b32 s21, s26, 63
    s_cmp_lg_u32 s21, 0
    s_cbranch_scc1 F1_CHK
    global_load_dword v59, v62, s[28:29] offset:8 sc1
    s_waitcnt vmcnt(0)
    v_cmp_eq_u32 vcc, 0, v59
    s_cmp_lg_u64 vcc, 0
    s_cbranch_scc1 F1_CHK
    F1_GO:
    s_waitcnt lgkmcnt(0)
    s_barrier
    @STAMP 2
    buffer_load_dwordx4 v[16:19], v1, s[8:11], s31 offen {F1_LD}
    s_add_u32 s31, s31, 0x1000
    buffer_load_dwordx4 v[20:23], v1, s[8:11], s31 offen {F1_LD}
    s_add_u32 s31, s31, 0x1000
    buffer_load_dwordx4 v[24:27], v1, s[8:11], s31 offen {F1_LD}
    s_add_u32 s31, s31, 0x1000
    buffer_load_dwordx4 v[28:31], v1, s[8:11], s31 offen {F1_LD}
    buffer_load_dwordx4 v[12:15], v60, s[8:11], s13 offen {F1_LD}
    s_cmp_eq_u32 s54, 2
    s_cbranch_scc1 U_RDONE
    s_cmp_eq_u32 s54, 1
    s_cbranch_scc1 U_RD
    ds_read_b64_tr_b16 v[154:155], v43
    ds_read_b64_tr_b16 v[156:157], v43 offset:{16*WPITCH}
    ds_read_b64_tr_b16 v[158:159], v44
    ds_read_b64_tr_b16 v[160:161], v44 offset:{16*WPITCH}
    ds_read_b64_tr_b16 v[162:163], v45
    ds_read_b64_tr_b16 v[164:165], v45 offset:{16*WPITCH}
    s_waitcnt lgkmcnt(0)
    global_store_dwordx4 v46, v[154:157], s[4:5] {PREP_W_POL}
    global_store_dwordx4 v46, v[158:161], s[4:5] offset:1024 {PREP_W_POL}
    global_store_dwordx4 v46, v[162:165], s[4:5] offset:2048 {PREP_W_POL}
    s_branch U_RDONE
    U_RD:
    ds_read_b64_tr_b16 v[154:155], v43
    ds_read_b64_tr_b16 v[156:157], v43 offset:{4*DPITCH}
    ds_read_b64_tr_b16 v[158:159], v43 offset:32
    ds_read_b64_tr_b16 v[160:161], v43 offset:{4*DPITCH+32}
    s_waitcnt lgkmcnt(0)
    global_store_dwordx4 v46, v[154:157], s[4:5] {PREP_W_POL}
    global_store_dwordx4 v47, v[158:161], s[4:5] {PREP_W_POL}
    s_branch U_RDONE
    U_RDONE:
    """)
    kk(f"""
    s_cmp_eq_u32 s19, 3
    s_cbranch_scc1 F_KS
    ds_read_b128 v[40:43], v3 offset:{KS+4096}
    ds_read_b128 v[44:47], v3 offset:{KS+4096+3072}
    ds_read_b128 v[48:51], v3 offset:{KS+4096+6144}
    ds_read_b128 v[4:7], v3 offset:{KS+4096+9216}
    s_waitcnt lgkmcnt(2)
    v_pk_add_f32 v[40:41], v[40:41], v[44:45]
    v_pk_add_f32 v[42:43], v[42:43], v[46:47]
    s_waitcnt lgkmcnt(0)
    v_pk_add_f32 v[48:49], v[48:49], v[4:5]
    v_pk_add_f32 v[50:51], v[50:51], v[6:7]
    v_pk_add_f32 v[40:41], v[40:41], v[48:49]
    v_pk_add_f32 v[42:43], v[42:43], v[50:51]
    v_cvt_pk_bf16_f32 v40, v40, v41
    v_cvt_pk_bf16_f32 v42, v42, v43
    ds_write_b16 v35, v40 offset:{TB}
    ds_write_b16_d16_hi v36, v40 offset:{TB}
    ds_write_b16 v37, v42 offset:{TB}
    ds_write_b16_d16_hi v38, v42 offset:{TB}
    F_KS:
    s_waitcnt lgkmcnt(0)
    s_barrier
    """)
    for e in range(11):
        k(f"ds_read_u16 v{48+e}, v{48+e}")
    k(f"""
    v_min_u32 v61, 0x5f0, v1
    ds_read_b128 v[80:83], v61 offset:{TB}
    v_bfe_u32 v62, v0, 2, 2
    v_mul_u32_u24 v62, {KCS}, v62
    v_and_b32 v63, 3, v0
    v_min_u32 v63, 2, v63
    v_lshl_add_u32 v62, v63, 4, v62
    ds_write_b128 v62, v[36:39] offset:{KL}
    """)
    conv_expand(k)
    k("""
    s_waitcnt vmcnt(3)
    s_cmp_eq_u32 s54, 0
    s_cbranch_scc1 F_W3
    s_waitcnt vmcnt(2)
    s_cmp_eq_u32 s54, 1
    s_cbranch_scc1 F_W3
    s_waitcnt vmcnt(0)
    F_W3:
    @STAMP 3
    buffer_store_dwordx4 v[80:83], v61, s[8:11], s15 offen
    """)
    for i in range(4):
        stats_pair(k, 16 + 4*i, 17 + 4*i, 18 + 4*i, 19 + 4*i, 40)
    conv_norm(k)
    k("s_branch CONV_PRE")
    info = dict(vgpr=168, sgpr=60, accum=168, grid=N_T + N_K, block=256, lds=CONV_LDS)
    return k, info

def gen_conv():
    k = Kern("conv")
    k(f"""
    conv1_kernel:
    s_cmp_ge_u32 s2, 512
    s_cbranch_scc1 P_WROLES
    s_mov_b32 s34, {0 if 'W' in WINC else 1}
    s_mov_b32 s30, {XT0}
    s_mov_b32 s31, {ST0}
    s_mov_b32 s32, {X1T}
    s_mov_b32 s33, {HB}
    @KID 1
    CONV_BODY:
    s_cmp_ge_u32 s2, 512
    s_cbranch_scc1 CONV_END
    @INIT
    s_load_dwordx2 s[4:5], s[0:1], {KA_WS}
    s_load_dwordx2 s[6:7], s[0:1], {KA_DSKIP}
    """)
    conv_setup(k)
    k(f"""
    s_lshl_b32 s18, s17, 11
    s_add_u32 s18, s18, {CRED}
    """)
    conv_p3(k)
    k("""
    @STAMP 10
    s_waitcnt lgkmcnt(0)
    @STAMP 11
    s_load_dword s20, s[6:7], s16
    """)
    srd(k, 8, 4, WS_BYTES)
    k(f"""
    s_mov_b32 m0, s18
    s_nop 0
    buffer_load_dwordx4 v6, s[8:11], s15 offen lds
    buffer_load_dwordx4 v6, s[8:11], s15 offen offset:1024 lds
    """)
    conv_loads(k)
    npf = 0
    k(f"""
    @STAMP 12
    @STAMP 2
    s_waitcnt vmcnt({5 + npf})
    """)
    for e in range(11):
        k(f"ds_read_u16 v{48+e}, v{48+e}")
    conv_expand(k)
    k(f"""
    s_waitcnt vmcnt({1 + npf})
    @STAMP 3
    """)
    for i in range(4):
        stats_pair(k, 16 + 4*i, 17 + 4*i, 18 + 4*i, 19 + 4*i, 40)
    k(f"s_waitcnt vmcnt({npf})")
    conv_norm(k)
    if CPF:
        if LOCALMAP0:
            k(f"""
            s_lshr_b32 s21, s2, 3
            s_mul_i32 s22, s21, 49152
            s_mul_i32 s23, s17, {PFQ}
            s_add_u32 s22, s22, s23
            s_add_u32 s22, s22, {WP}
            v_min_u32 v38, {PFQ // 128 - 1}, v5
            v_lshlrev_b32 v38, 7, v38
            buffer_load_dword v150, v38, s[8:11], s22 offen
            """)
        else:
            k(f"""
            s_lshr_b32 s21, s2, 3
            s_lshl_b32 s21, s21, 2
            s_add_u32 s21, s21, s17
            s_mul_i32 s22, s21, 6144
            s_and_b32 s23, s2, 1
            s_mul_i32 s23, s23, {8*196608}
            s_add_u32 s22, s22, s23
            s_add_u32 s22, s22, {WP}
            v_lshlrev_b32 v38, 7, v5
            s_cmp_eq_u32 s34, 0
            s_cbranch_scc1 CONV_NOW
            buffer_load_dword v150, v38, s[8:11], s22 offen
            CONV_NOW:
            """)
    if SENT:
        k(f"""
        v_mov_b32 v40, -1
        v_mov_b32 v41, -1
        v_mov_b32 v42, -1
        v_mov_b32 v43, -1
        s_mul_i32 s21, s2, 11520
        s_add_u32 s21, s21, s33
        v_min_u32 v38, {11520 - 8192 - 16}, v1
        buffer_store_dwordx4 v[40:43], v1, s[8:11], s21 offen {POISON_POL}
        s_add_u32 s21, s21, 0x1000
        buffer_store_dwordx4 v[40:43], v1, s[8:11], s21 offen {POISON_POL}
        s_add_u32 s21, s21, 0x1000
        buffer_store_dwordx4 v[40:43], v38, s[8:11], s21 offen {POISON_POL}
        """)
    k.label("CONV_PRE")
    if CODEPF2:
        k(f"""
        s_cmp_ge_u32 s2, 8
        s_cbranch_scc1 CONV_NOPF
        s_getpc_b64 s[22:23]
        v_lshlrev_b32 v38, 6, v0
        global_load_dword v39, v38, s[22:23]
        CONV_NOPF:
        """)
    k("""
    @STAMP 4
    s_waitcnt lgkmcnt(0)
    s_barrier
    CONV_MAIN2:
    @STAMP 5
    """)
    if CONV_NOPK: k = NoPk(k)
    KF = 48; UB = 16; ACC = 112
    pend = []
    def rd(tag):
        if tag[0] == "U":
            mu = int(tag[1:]); r = UB + 4 * (mu & 3)
            k(f"ds_read_b128 v[{r}:{r+3}], v9 offset:{256*mu}")
        else:
            t = int(tag[1:]); r = KF + 4 * t
            k(f"ds_read_b128 v[{r}:{r+3}], v7 offset:{256*t}")
        pend.append(tag)
    def need(tags):
        idx = max([pend.index(t) for t in tags if t in pend], default=-1)
        if idx >= 0:
            k(f"s_waitcnt lgkmcnt({len(pend) - idx - 1})")
            del pend[:idx + 1]
    queue = ["U0"] + [f"K{t}" for t in range(1, 16, 2)] + ["U1"] + [f"K{t}" for t in range(0, 16, 2)] + ["U2", "U3"]
    for t in queue[:12]: rd(t)
    queue = queue[12:]
    for mu in range(16):
        a = UB + 4 * (mu & 3)
        q0 = max(0, -(-(mu - 1) // 2))
        for q in range(q0, 8):
            tp = 2 * q + 1 - mu
            need([f"U{mu}", f"K{tp}"])
            c = "0" if mu == 0 else f"v[{ACC+4*q}:{ACC+4*q+3}]"
            k(f"v_mfma_f32_16x16x32_bf16 v[{ACC+4*q}:{ACC+4*q+3}], v[{KF+4*tp}:{KF+4*tp+3}], v[{a}:{a+3}], {c}")
            if queue: rd(queue.pop(0))
        if mu + 4 < 16: rd(f"U{mu+4}")
        if mu & 1 and mu >= 3:
            q = (mu - 3) // 2
            k(f"ds_write_b128 v10, v[{ACC+4*q}:{ACC+4*q+3}] offset:{(CRED + (q>>1)*8192 if q < 6 else KL) + (q&1)*1024}")
            pend.append("W")
        if mu == 6:
            assert not any(t[0] == "K" for t in pend + queue)
            k("s_barrier")
    k("@STAMP 6")
    k(f"""
    s_and_b32 s21, s20, 0xffff0000
    s_lshl_b32 s20, s20, 16
    s_bitcmp1_b32 s2, 0
    s_cselect_b32 s20, s21, s20
    """)
    for p in range(4):
        k(f"""
        v_lshlrev_b32 v40, 16, v{32+p}
        v_and_b32 v41, 0xffff0000, v{32+p}
        v_mul_f32 v40, s20, v40
        v_mul_f32 v41, s20, v41
        v_cvt_pk_bf16_f32 v41, v40, v41
        """)
        if p == 0:
            k(f"ds_write_b128 v10, v[{ACC+28}:{ACC+31}] offset:{KL + 1024}")
        k(f"""
        v_lshlrev_b32 v{48+2*p}, 16, v41
        v_and_b32 v{49+2*p}, 0xffff0000, v41
        v_lshlrev_b32 v{56+2*p}, 16, v{12+p}
        v_and_b32 v{57+2*p}, 0xffff0000, v{12+p}
        """)
    k("""
    s_waitcnt lgkmcnt(0)
    s_barrier
    @STAMP 7
    """)
    for src in range(4):
        for t in range(2):
            k(f"ds_read_b128 v[{ACC+8*src+4*t}:{ACC+8*src+4*t+3}], v11 offset:{src*2048 + t*16}")
    k("s_waitcnt lgkmcnt(4)")
    for r in range(0, 8, 2):
        k(f"v_pk_add_f32 v[{ACC+r}:{ACC+r+1}], v[{ACC+r}:{ACC+r+1}], v[{ACC+8+r}:{ACC+9+r}]")
    k("s_waitcnt lgkmcnt(0)")
    for r in range(0, 8, 2):
        k(f"v_pk_add_f32 v[{ACC+16+r}:{ACC+17+r}], v[{ACC+16+r}:{ACC+17+r}], v[{ACC+24+r}:{ACC+25+r}]")
    for r in range(0, 8, 2):
        k(f"v_pk_add_f32 v[{ACC+r}:{ACC+r+1}], v[{ACC+r}:{ACC+r+1}], v[{ACC+16+r}:{ACC+17+r}]")
    k("@STAMP 8")
    for p in range(4):
        y0, y1 = ACC + 2*p, ACC + 2*p + 1
        k(f"""
        v_cvt_pk_bf16_f32 v{y1}, v{y0}, v{y1}
        v_lshlrev_b32 v{y0}, 16, v{y1}
        v_and_b32 v{y1}, 0xffff0000, v{y1}
        v_pk_add_f32 v[{y0}:{y1}], v[{y0}:{y1}], v[{48+2*p}:{49+2*p}]
        v_cvt_pk_bf16_f32 v{y1}, v{y0}, v{y1}
        v_lshlrev_b32 v{y0}, 16, v{y1}
        v_and_b32 v{y1}, 0xffff0000, v{y1}
        v_pk_add_f32 v[{y0}:{y1}], v[{y0}:{y1}], v[{56+2*p}:{57+2*p}]
        v_cvt_pk_bf16_f32 v{44+p}, v{y0}, v{y1}
        """)
    k(f"""
    buffer_store_dwordx4 v[44:47], v2, s[8:11], s14 offen {CONV_ST}
    @STAMP 9
    @FLUSH 13
    CONV_END:
    s_endpgm
    .p2align 8
    conv2_kernel:
    s_mov_b32 s34, 1
    s_mov_b32 s30, {X2T}
    s_mov_b32 s31, {ST1}
    s_mov_b32 s32, {X3T}
    s_mov_b32 s33, {HB1}
    @KID 4
    s_branch CONV_BODY
    """)
    if CONV_NOPK: k = k.k
    info = dict(vgpr=152, sgpr=48, accum=152, grid=512, block=256, lds=CONV_LDS)
    return k, info

MLP_LDS = 163840
H_LD = os.environ.get('H_LD', 'sc1')
M_PRE2 = int(os.environ.get('M_PRE2', '5'))
M_OLD = int(os.environ.get('M_OLD', '1'))
M_FINE = int(os.environ.get('M_FINE', '1'))
M_LOOK = int(os.environ.get('M_LOOK', '5'))
M_TOUCH = int(os.environ.get('M_TOUCH', '0'))
M_PRE = int(os.environ.get('M_PRE', '8'))
M_OPS = int(os.environ.get('M_OPS', '3'))
M_RAMP = int(os.environ.get('M_RAMP', '5'))
M_LATE = int(os.environ.get('M_LATE', '-100'))
LOCALMAP = int(os.environ.get('LOCALMAP', '0'))
LOC_POL = os.environ.get('LOC_POL', 'sc1')
IDT = ZR + 0x4000
M_PRIO = int(os.environ.get('M_PRIO', '0'))
M_FIRST = int(os.environ.get('M_FIRST', '1'))
M_WDM = int(os.environ.get('M_WDM', '6'))
M_WDE = int(os.environ.get('M_WDE', '2'))
M_AHEAD2 = int(os.environ.get('M_AHEAD2', '6'))
SPIN_MAX = 1 << 20
SLOT = 40960
def gen_mlp():
    k = Kern("mlp")
    ACC = 0
    FR = 48
    XA = 104
    WA = 112
    CSR = 114
    STV = 126
    RES = 130
    VDMA, VW, VT0, VT1, VT2 = 134, 135, 136, 137, 138
    SA = 139
    VRES = 142; VSTX = 143; VPUB = 144; VCS = 145
    MR = 146
    TMP = 150
    NV = 168
    VID = TMP + 14
    VRES2 = TMP + 9
    def wdreg(i): return f"a[{4*i}:{4*i+3}]"
    k(f"""
    mlpa_kernel:
    s_mov_b32 s30, {X1T}
    s_mov_b32 s31, {HB}
    s_mov_b32 s33, {STX}
    s_mov_b32 s34, {FLG}
    s_mov_b32 s35, 0
    s_mov_b32 s56, {IDT}
    @KID 2
    M_BODY:
    s_cmp_ge_u32 s2, 256
    s_cbranch_scc1 M_END
    @INIT
    s_load_dwordx2 s[4:5], s[0:1], {KA_WS}
    s_load_dwordx2 s[6:7], s[0:1], {KA_OUT}
    v_readfirstlane_b32 s17, v0
    s_and_b32 s12, s2, 7                  ; xcd
    s_lshr_b32 s13, s2, 3                 ; idx
    """)
    if LOCALMAP:
        k(f"""
        s_lshl_b32 s14, s12, 1
        s_and_b32 s15, s13, 1
        s_add_u32 s14, s14, s15
        s_lshl_b32 s36, s12, 2
        s_and_b32 s15, s13, 3
        s_add_u32 s36, s36, s15
        s_lshr_b32 s37, s13, 2                ; dt
        s_lshr_b32 s15, s13, 1                ; ft
        """)
    else:
        k(f"""
    s_lshr_b32 s14, s12, 1
    s_lshl_b32 s14, s14, 2
    s_and_b32 s15, s13, 3
    s_add_u32 s14, s14, s15               ; lt
    s_lshl_b32 s36, s12, 2
    s_add_u32 s36, s36, s15               ; lt64
    s_lshr_b32 s37, s13, 2                ; dt
    s_and_b32 s15, s12, 1
    s_lshl_b32 s15, s15, 3
    s_add_u32 s15, s15, s37               ; ft
        """)
    k(f"""
    s_lshr_b32 s17, s17, 6                ; w
    s_and_b32 s16, s17, 3
    s_lshr_b32 s29, s17, 2
    v_and_b32 v{VT0}, 63, v0              ; lane
    v_and_b32 v{VT1}, 15, v0              ; lam / j
    v_bfe_u32 v{VT2}, v0, 4, 2            ; g
    v_lshlrev_b32 v{VDMA}, 4, v{VT0}
    v_lshlrev_b32 v{VW}, 4, v{VT0}                    ; lane*16
    s_lshl_b32 s18, s14, 17
    s_add_u32 s18, s18, s30
    s_lshl_b32 s19, s17, 10
    s_add_u32 s18, s18, s19
    s_lshl_b32 s19, s17, 10               ; x m0 part: w*1024
    s_lshl_b32 s20, s15, 2
    s_add_u32 s20, s20, s16
    s_lshl_b32 s21, s20, 4
    s_add_u32 s21, s21, s29
    s_mul_i32 s21, s21, 3072
    s_add_u32 s21, s21, {WP}
    s_mul_i32 s22, s17, 3072
    s_add_u32 s22, s22, 0x4000
    s_mul_i32 s24, s20, {3*16*4}
    s_add_u32 s24, s24, {CSUM}
    s_lshl_b32 s38, s37, 2
    s_add_u32 s38, s38, s16
    s_mul_i32 s38, s38, {NKS2*1024}
    s_mul_i32 s23, s29, {22*1024}
    s_add_u32 s38, s38, s23
    s_add_u32 s38, s38, {WD}
    """)
    def group_parts(t):
        base = (t & 3) * SLOT
        parts = [f"""
        s_add_u32 m0, s19, {base}
        s_nop 0
        buffer_load_dwordx4 v{VDMA}, s[8:11], s18 offen lds
        s_add_u32 s18, s18, 0x2000
        """, f"""
        s_add_u32 m0, s22, {base}
        s_nop 0
        buffer_load_dwordx4 v{VW}, s[8:11], s21 offen lds
        """, f"""
        buffer_load_dwordx4 v{VW}, s[8:11], s21 offen offset:1024 lds
        """, f"""
        buffer_load_dwordx4 v{VW}, s[8:11], s21 offen offset:2048 lds
        s_add_u32 s21, s21, 0x1800
        """, f"""
        s_add_u32 m0, s19, {base + 8192}
        s_nop 0
        buffer_load_dwordx4 v{VDMA}, s[8:11], s18 offen lds
        s_add_u32 s18, s18, 0x2000
        """]
        return parts
    def wd_part(i):
        p = f"buffer_load_dwordx4 {wdreg(i)}, v{VW}, s[8:11], s38 offen offset:{1024*(i&3)}"
        if (i & 3) == 3: p += "\ns_add_u32 s38, s38, 0x1000"
        return p
    def common_addr():
        k(f"""
        s_mov_b32 s43, {fl(1.0/512)}
        s_mov_b32 s44, {fl(1e-5)}
        s_mov_b32 s45, {fl(-LOG2E)}
        v_lshrrev_b32 v{TMP}, 2, v{VT1}
        v_lshl_add_u32 v{TMP}, v{VT2}, 2, v{TMP}          ; 4g + r
        v_and_b32 v{TMP+1}, 7, v{TMP}                     ; xi
        v_and_b32 v{TMP+2}, 3, v{VT1}
        v_lshlrev_b32 v{TMP+2}, 3, v{TMP+2}
        v_lshl_add_u32 v{TMP+2}, v{TMP}, 8, v{TMP+2}
        v_mul_u32_u24 v{VRES}, {XP}, v{VT1}
        v_lshl_add_u32 v{VRES}, v{VT2}, 4, v{VRES}
        s_lshl_b32 s39, s37, 2
        s_add_u32 s39, s39, s16
        s_mul_i32 s39, s39, {16*XP}
        s_lshl_b32 s40, s36, 7
        s_add_u32 s39, s39, s40
        s_lshl_b32 s40, s29, 6
        s_add_u32 s39, s39, s40
        s_lshr_b32 s40, s36, 1
        s_lshl_b32 s40, s40, 17
        s_add_u32 s40, s40, s30
        s_lshl_b32 s26, s37, 2
        s_add_u32 s26, s26, s16
        s_lshl_b32 s26, s26, 12
        s_add_u32 s40, s40, s26
        s_and_b32 s26, s36, 1
        s_lshl_b32 s26, s26, 1
        s_add_u32 s26, s26, s29
        s_lshl_b32 s26, s26, 1
        v_lshrrev_b32 v{TMP+3}, 1, v{VT2}
        v_add_u32 v{TMP+3}, s26, v{TMP+3}
        v_and_b32 v{TMP+4}, 7, v{VT1}
        v_xor_b32 v{TMP+3}, v{TMP+3}, v{TMP+4}
        v_lshlrev_b32 v{TMP+3}, 5, v{TMP+3}
        v_lshl_add_u32 v{TMP+3}, v{VT1}, 8, v{TMP+3}
        v_and_b32 v{TMP+4}, 1, v{VT2}
        v_lshl_add_u32 v{VRES2}, v{TMP+4}, 4, v{TMP+3}
        """)
    res_parts = [f"buffer_load_dwordx4 v[{RES}:{RES+3}], v{VRES2}, s[8:11], s40 offen"]
    common_addr()
    k("s_lshl_b32 s25, s29, 2")
    for b in range(4):
        k(f"""
        s_add_u32 s26, s25, {b}
        v_xor_b32 v{TMP+3}, s26, v{TMP+1}
        v_lshl_add_u32 v{XA+b}, v{TMP+3}, 5, v{TMP+2}
        v_add_u32 v{XA+4+b}, {2*SLOT}, v{XA+b}
        """)
    k(f"""
    s_mul_i32 s26, s16, 3072
    s_add_u32 s26, s26, 0x4000
    v_add_u32 v{WA}, s26, v{VW}
    v_add_u32 v{WA+1}, {2*SLOT}, v{WA}
    """)
    def late_addr():
        k(f"""
        v_bfe_u32 v{TMP}, v{VT1}, 2, 1                    ; half
        v_mul_u32_u24 v{TMP+4}, 3072, v{TMP}
        v_lshrrev_b32 v{TMP}, 3, v{VT1}
        v_lshl_add_u32 v{TMP+4}, v{TMP}, 6, v{TMP+4}
        v_and_b32 v{TMP}, 3, v{VT1}
        v_lshl_add_u32 v{TMP+4}, v{TMP}, 4, v{TMP+4}
        v_lshl_add_u32 v{TMP+4}, v{VT2}, 8, v{TMP+4}
        s_lshl_b32 s26, s16, 10
        s_cmp_eq_u32 s16, 3
        s_cselect_b32 s26, 12, s26
        s_cselect_b32 s27, 0x400, 4
        s_mul_i32 s28, s29, 12288
        s_add_u32 s26, s26, s28
        v_add_u32 v{SA}, s26, v{TMP+4}
        v_add_u32 v{SA+1}, s27, v{SA}
        v_add_u32 v{SA+2}, s27, v{SA+1}
        v_lshlrev_b32 v{VSTX}, 2, v{VT1}
        s_lshl_b32 s41, s14, 9
        s_lshl_b32 s26, s29, 8
        s_add_u32 s41, s41, s26
        s_add_u32 s41, s41, s33
        s_and_b32 s27, s17, 1
        s_and_b32 s28, s17, 2
        s_lshl_b32 s28, s28, 1
        s_or_b32 s27, s27, s28
        s_lshl_b32 s28, s29, 1
        s_or_b32 s27, s27, s28
        s_mul_i32 s26, s27, 3072
        v_add_u32 v{VPUB}, s26, v{VW}
        s_lshl_b32 s42, s14, 3
        s_add_u32 s42, s42, s27
        s_mul_i32 s42, s42, {HKS*1024}
        s_mul_i32 s26, s15, 3072
        s_add_u32 s42, s42, s26
        s_add_u32 s42, s42, s31
        v_lshlrev_b32 v{VCS}, 4, v{VT2}
        """)
    late_addr()
    k(f"""
    v_lshrrev_b32 v{TMP+6}, 3, v{VT0}
    v_mul_u32_u24 v{TMP+6}, {XP}, v{TMP+6}
    v_and_b32 v{TMP+7}, 7, v{VT0}
    v_lshl_add_u32 v{TMP+6}, v{TMP+7}, 5, v{TMP+6}
    s_lshl_b32 s46, s37, 3
    s_add_u32 s46, s46, s17
    s_mul_i32 s46, s46, {8*XP}
    s_lshl_b32 s47, s14, 8
    s_add_u32 s46, s46, s47
    s_add_u32 s46, s46, s30
    """)
    if LOCALMAP:
        k(f"""
        s_getreg_b32 s23, hwreg(HW_REG_XCC_ID)
        s_and_b32 s23, s23, 15
        s_add_u32 s23, s23, 1
        s_lshl_b32 s26, s12, 7
        s_add_u32 s56, s56, s26
        s_lshl_b32 s26, s13, 2
        v_mov_b32 v{VID}, s23
        v_mov_b32 v{VID+1}, s26
        v_and_b32 v{VID+2}, 31, v{VT0}
        v_lshlrev_b32 v{VID+2}, 2, v{VID+2}
        """)
    k("s_waitcnt lgkmcnt(0)")
    srd(k, 8, 4, WS_BYTES)
    if M_TOUCH & 1: k(f"buffer_load_dword v{TMP+8}, v{TMP+6}, s[8:11], s46 offen")
    def id_store(tag):
        if LOCALMAP:
            k(f"""
            s_mov_b64 exec, 1
            buffer_store_dword v{VID}, v{VID+1}, s[8:11], s56 offen sc1
            s_mov_b64 exec, -1
            """)
    if M_PRIO:
        k(f"""
        s_cmp_lg_u32 s29, {M_PRIO - 1}
        s_cbranch_scc1 M_NOPRIO
        s_setprio 1
        M_NOPRIO:
        """)
    k("""
    s_cmp_eq_u32 s15, 15
    s_cbranch_scc1 M_STATS
    """)
    def reads(s):
        res = []
        t = s >> 1; hi = (t & 3) >> 1; base = (t & 1) * SLOT
        buf = FR + 28 * (s & 1)
        for tau in range(3):
            r = buf + 16 + 4 * tau
            res.append(f"ds_read_b128 v[{r}:{r+3}], v{WA+hi} offset:{base + (s&1)*12288 + tau*1024}")
        for b in range(4):
            off = base + (s & 1) * 8192
            res.append(f"ds_read_b64_tr_b16 v[{buf+4*b}:{buf+4*b+1}], v{XA+4*hi+b} offset:{off}")
            res.append(f"ds_read_b64_tr_b16 v[{buf+4*b+2}:{buf+4*b+3}], v{XA+4*hi+b} offset:{off+4096}")
        return res
    later = [f"buffer_load_dwordx4 v[{CSR+4*tau}:{CSR+4*tau+3}], v{VCS}, s[8:11], s24 offen offset:{64*tau}" for tau in range(3)]
    later += res_parts
    later += [f"buffer_load_dword v{STV+b}, v{VSTX}, s[8:11], s41 offen offset:{64*b} sc1" for b in range(4)]
    if LOCALMAP: later += [f"buffer_load_dword v{VID+3}, v{VID+2}, s[8:11], s56 offen sc1"]
    n_crit = len(later)
    later += [wd_part(i) for i in range(M_WDM)]
    n_need = len(later)
    later += [wd_part(i) for i in range(M_WDM, 22)]
    vm = []
    def wait_for(tag):
        assert not any(o[1] == tag for o in opq), tag
        idxs = [i for i, x in enumerate(vm) if x == tag]
        if not idxs: return
        idx = max(idxs)
        k(f"s_waitcnt vmcnt({len(vm) - idx - 1})")
        del vm[:idx + 1]
    opq = []
    for u in range(8):
        gp = group_parts(u)
        e0 = max(2*u - 7, 2*u - M_LOOK)
        if M_OLD: e0 = {0: -1, 1: -1, 2: 0, 3: 1}.get(u, 2*u - 6)
        for j in (0, 1, 2): opq.append((gp[j], f"D{2*u}", e0))
        opq.append((gp[3], f"D{2*u}", e0 + 1 if u > (3 if M_OLD else 1) else e0))
        opq.append((gp[4], f"D{2*u+1}", e0 + 1 if u > (3 if M_OLD else 1) else e0))
    for i, p in enumerate(later[:n_need]): opq.append((p, "N" if i < n_crit else "L", -100 if i < n_crit else M_LATE))
    nlater = n_need
    def issue(n, s):
        out = []
        while opq and len(out) < n and opq[0][2] <= s:
            out.append(opq.pop(0))
        return out
    for p, tag, _ in issue(10 if M_OLD else M_PRE, -1):
        k(p); vm.append(tag)
    k("@STAMP 2")
    wait_for("D1" if (M_OLD and not M_FIRST) else "D0")
    k("s_barrier")
    k("@STAMP 3")
    for r in reads(0): k(r)
    EXP = os.environ.get('EXP', '')
    for s in range(16):
        if M_OLD:
            bar = False
            if s == 0 and M_FIRST: wait_for("D1"); bar = True
            if s == 1: wait_for("D3"); bar = True
            elif (s & 1) == 0 and 0 < s < 14: wait_for(f"D{s+3}"); bar = True
            if bar: k("s_barrier")
            k("s_waitcnt lgkmcnt(0)")
        elif M_FINE:
            if s < 15: wait_for(f"D{s+1}")
            k("s_waitcnt lgkmcnt(0)")
            if s < 15: k("s_barrier")
        else:
            if s == 0: wait_for("D1")
            elif s < 15 and (s & 1): wait_for(f"D{s+2}")
            k("s_waitcnt lgkmcnt(0)")
            if s < 15 and (s == 0 or (s & 1)): k("s_barrier")
        if s == 8: k("@STAMP 4")
        if s == 3 and LOCALMAP:
            id_store("m"); vm.append("I")
        fill = reads(s + 1) if s < 15 else []
        mf = []
        buf = FR + 28 * (s & 1)
        for b in range(4):
            for tau in range(3):
                a = ACC + (b * 3 + tau) * 4
                c = "0" if s == 0 else f"v[{a}:{a+3}]"
                mf.append(f"v_mfma_f32_16x16x32_bf16 v[{a}:{a+3}], v[{buf+16+4*tau}:{buf+19+4*tau}], v[{buf+4*b}:{buf+4*b+3}], {c}")
        parts = issue((5 if (s < 2 or s >= 12) else 3) if M_OLD else (M_OPS if s < M_RAMP else (5 if s >= 12 else 3)), s)
        step = 12 // max(len(parts), 1)
        slots = {1 + step * j: p for j, p in enumerate(parts)}
        for i, m in enumerate(mf):
            k(m)
            if i < len(fill): k(fill[i])
            if i in slots:
                k(slots[i][0]); vm.append(slots[i][1])
    assert not opq, len(opq)
    assert nlater >= n_need
    k("@STAMP 5")
    wait_for("N")
    k(f"""
    s_mov_b32 s47, 0
    M_STCHK:
    v_min3_u32 v{TMP}, v{STV}, v{STV+1}, v{STV+2}
    v_min_u32 v{TMP}, v{TMP}, v{STV+3}
    v_cmp_eq_u32 vcc, 0, v{TMP}
    s_cmp_eq_u64 vcc, 0
    s_cbranch_scc1 M_STOK
    s_add_u32 s47, s47, 1
    s_cmp_ge_u32 s47, {SPIN_MAX}
    s_cbranch_scc1 M_STOK
    s_sleep 2
    """)
    for b in range(4): k(f"buffer_load_dword v{STV+b}, v{VSTX}, s[8:11], s41 offen offset:{64*b} sc1")
    k("""
    s_waitcnt vmcnt(0)
    s_branch M_STCHK
    M_STOK:
    @STAMP 6
    """)
    if LOCALMAP:
        k(f"""
        v_cmp_ne_u32 vcc, s23, v{VID+3}
        s_cmp_eq_u64 vcc, 0
        s_cselect_b32 s54, 1, 0
        """)
    PB = FR
    def pub():
        for i in range(3):
            k(f"ds_read_b128 v[{PB+4*i}:{PB+4*i+3}], v{VPUB} offset:{1024*i}")
        if LOCALMAP:
            pub.n += 1
            k(f"""
            s_cmp_eq_u32 s54, 0
            s_cbranch_scc1 M_PG{pub.n}
            """)
            for i in range(3):
                k(f"s_waitcnt lgkmcnt({2-i})")
                k(f"buffer_store_dwordx4 v[{PB+4*i}:{PB+4*i+3}], v{VW}, s[8:11], s42 offen offset:{1024*i} {LOC_POL}")
            k(f"s_branch M_PE{pub.n}\nM_PG{pub.n}:")
        for i in range(3):
            k(f"s_waitcnt lgkmcnt({2-i})")
            k(f"buffer_store_dwordx4 v[{PB+4*i}:{PB+4*i+3}], v{VW}, s[8:11], s42 offen offset:{1024*i} sc1")
        if LOCALMAP: k(f"M_PE{pub.n}:")
    pub.n = 0
    for b in range(4):
        m = MR
        k(f"""
        v_and_b32 v{m+2}, 0xffff0000, v{STV+b}        ; s
        v_lshlrev_b32 v{m}, 16, v{STV+b}              ; m
        v_rcp_f32 v{m+1}, v{m+2}
        v_mul_f32 v{m+1}, s45, v{m+1}
        """)
        for tau in range(3):
            a = ACC + (b * 3 + tau) * 4
            c = CSR + 4 * tau
            k(f"""
            v_pk_fma_f32 v[{a}:{a+1}], v[{m}:{m+1}], v[{c}:{c+1}], v[{a}:{a+1}] op_sel_hi:[0,1,1] neg_lo:[1,0,0] neg_hi:[1,0,0]
            v_pk_fma_f32 v[{a+2}:{a+3}], v[{m}:{m+1}], v[{c+2}:{c+3}], v[{a+2}:{a+3}] op_sel_hi:[0,1,1] neg_lo:[1,0,0] neg_hi:[1,0,0]
            v_pk_mul_f32 v[{a}:{a+1}], v[{a}:{a+1}], v[{m}:{m+1}] op_sel:[0,1] op_sel_hi:[1,1]
            v_exp_f32 v{a}, v{a}
            v_exp_f32 v{a+1}, v{a+1}
            """)
            if tau < M_WDE and nlater < len(later):
                k(later[nlater]); nlater += 1
        for tau in range(3):
            a = ACC + (b * 3 + tau) * 4
            k(f"""
            v_pk_fma_f32 v[{a}:{a+1}], v[{a}:{a+1}], v[{m+2}:{m+3}], v[{m+2}:{m+3}] op_sel_hi:[1,0,0]
            v_rcp_f32 v{a}, v{a}
            v_rcp_f32 v{a+1}, v{a+1}
            """)
        for _ in range(M_WDE - 3):
            if nlater < len(later):
                k(later[nlater]); nlater += 1
        for tau in range(3):
            a = ACC + (b * 3 + tau) * 4
            k(f"""
            v_pk_mul_f32 v[{a}:{a+1}], v[{a}:{a+1}], v[{a+2}:{a+3}]
            v_cvt_pk_bf16_f32 v{a}, v{a}, v{a+1}
            ds_write_b32 v{SA+tau}, v{a} offset:{(b>>1)*6144 + (b&1)*128}
            """)
        if b == 1 and SPLITPUB:
            k("""
            s_waitcnt lgkmcnt(0)
            s_barrier
            s_cmp_lg_u32 s29, 0
            s_cbranch_scc1 M_PUB1
            """)
            pub()
            k.label("M_PUB1")
    k("""
    s_waitcnt lgkmcnt(0)
    s_barrier
    @STAMP 7
    """)
    if SPLITPUB:
        k("""
        s_cmp_eq_u32 s29, 0
        s_cbranch_scc1 M_PUB2
        """)
    pub()
    k.label("M_PUB2")
    rest = later[nlater:]
    if not SENT:
        k(f"""
        s_lshl_b32 s26, s14, 4
        s_add_u32 s26, s26, s15
        s_lshl_b32 s26, s26, 7
        s_add_u32 s26, s26, s34
        v_mov_b32 v{TMP}, 1
        v_mov_b32 v{TMP+1}, 0
        s_waitcnt vmcnt(0)
        s_barrier
        s_cmp_lg_u32 s17, 0
        s_cbranch_scc1 M_NOFLAG
        s_mov_b64 exec, 1
        s_cmp_eq_u32 s54, {1 if LOCALMAP else 77}
        s_cbranch_scc1 M_FLOC
        buffer_store_dword v{TMP}, v{TMP+1}, s[8:11], s26 offen sc1
        s_branch M_FEND
        M_FLOC:
        buffer_store_dword v{TMP}, v{TMP+1}, s[8:11], s26 offen
        M_FEND:
        s_mov_b64 exec, -1
        M_NOFLAG:
        """)
    for p in rest: k(p)
    HA = XA
    k(f"""
    M_SYNC:
    @CODEPF3
    s_mov_b32 s55, 0
    M_SYNC2:
    @STAMP 8
    v_mov_b32 v{TMP+10}, 0
    s_lshl_b32 s26, s36, 2
    s_add_u32 s26, s26, s16
    s_mul_i32 s26, s26, {HKS*1024}
    s_mul_i32 s27, s29, {22*1024}
    s_add_u32 s26, s26, s27
    s_add_u32 s26, s26, s31
    s_lshl_b32 s27, s17, 11               ; m0 part
    s_mul_i32 s28, s29, 0x3000
    v_add_u32 v{HA}, s28, v{VW}
    s_lshl_b32 s28, s29, 12
    s_add_u32 s28, s28, 0x1000
    v_add_u32 v{HA+1}, s28, v{VW}
    v_add_u32 v{HA+2}, 0x10000, v{HA}
    v_add_u32 v{HA+3}, 0x10000, v{HA+1}
    v_add_u32 v{HA+4}, 0x20000, v{HA}
    v_add_u32 v{HA+5}, 0x20000, v{HA+1}
    s_cmp_lg_u32 s17, 1
    s_cbranch_scc1 M_WAITB
    """)
    if SENT:
        k(f"""
        s_mul_i32 s28, s36, {4*HKS*1024}
        s_add_u32 s28, s28, s31
        v_min_u32 v{TMP+4}, 14, v{VT1}
        v_mul_u32_u24 v{TMP+4}, 3072, v{TMP+4}
        v_mul_u32_u24 v{TMP+5}, {HKS*1024}, v{VT2}
        v_add_u32 v{TMP+4}, v{TMP+4}, v{TMP+5}
        s_mov_b32 s47, 0
        M_POLL:
        buffer_load_dword v{TMP+5}, v{TMP+4}, s[8:11], s28 offen offset:3056 sc1
        s_waitcnt vmcnt(0)
        v_cmp_eq_u32 vcc, -1, v{TMP+5}
        s_cmp_eq_u64 vcc, 0
        s_cbranch_scc1 M_WAITB
        s_sleep {SENT_SLEEP}
        s_add_u32 s47, s47, 1
        s_cmp_lt_u32 s47, {SPIN_MAX}
        s_cbranch_scc1 M_POLL
        """)
    else:
        k(f"""
        s_lshr_b32 s28, s36, 1
        s_lshl_b32 s28, s28, 11
        s_add_u32 s28, s28, s34
        v_min_u32 v{TMP+4}, 14, v{VT0}
        v_lshlrev_b32 v{TMP+4}, 7, v{TMP+4}
        s_mov_b32 s47, 0
        M_POLL:
        buffer_load_dword v{TMP+5}, v{TMP+4}, s[8:11], s28 offen sc1
        s_waitcnt vmcnt(0)
        v_cmp_eq_u32 vcc, 0, v{TMP+5}
        s_cmp_eq_u64 vcc, 0
        s_cbranch_scc1 M_WAITB
        s_add_u32 s47, s47, 1
        s_cmp_lt_u32 s47, {SPIN_MAX}
        s_cbranch_scc1 M_POLL
        """)
    k(f"""
    M_WAITB:
    s_lshl_b32 s46, s37, 3
    s_add_u32 s46, s46, s17
    s_mul_i32 s46, s46, 2880
    s_mul_i32 s47, s36, {4*HKS*1024}
    s_add_u32 s46, s46, s47
    s_add_u32 s46, s46, s31
    v_min_u32 v{TMP+6}, 44, v{VT0}
    v_lshlrev_b32 v{TMP+6}, 6, v{TMP+6}
    s_barrier
    @STAMP 9
    """)
    if M_TOUCH & 2: k(f"buffer_load_dword v{TMP+8}, v{TMP+6}, s[8:11], s46 offen")
    def hchunk(c):
        return [f"""
        s_add_u32 m0, s27, {(c % 10) * 16384}
        s_nop 0
        buffer_load_dwordx4 v{VW}, s[8:11], s26 offen {H_LD} lds
        """, f"""
        buffer_load_dwordx4 v{VW}, s[8:11], s26 offen offset:1024 {H_LD} lds
        s_add_u32 s26, s26, 0x800
        """]
    HF = 16
    A2 = 0
    def hreads(c):
        res = []
        for i in range(2):
            for lb in range(4):
                off = (c % 10) * 16384 + (lb & 1) * 2048 + i * 1024
                base = HA + 2 * (off >> 16) + (lb >> 1)
                r = HF + 32 * (c & 1) + (i * 4 + lb) * 4
                res.append(f"ds_read_b128 v[{r}:{r+3}], v{base} offset:{off & 0xffff}")
        return res
    iss = M_PRE2
    for c in range(iss):
        for p in hchunk(c): k(p)
    k(f"s_waitcnt vmcnt({2*(iss-1)})")
    k("s_barrier")
    k("@STAMP 10")
    for r in hreads(0): k(r)
    for c in range(11):
        fill = []
        if c < 10:
            k(f"s_waitcnt vmcnt({2*(iss-(c+2))})")
            k("s_barrier")
        k("s_waitcnt lgkmcnt(0)")
        if c < 10: fill = hreads(c + 1)
        parts = []
        for rep_ in range(2):
            if iss < 11 and (iss < 10 or c >= 1) and iss < c + M_AHEAD2:
                parts += hchunk(iss); iss += 1
        slots = {1 + 2 * j: p for j, p in enumerate(parts)}
        n = 0
        for i in range(2):
            for lb in range(4):
                r = HF + 32 * (c & 1) + (i * 4 + lb) * 4
                a = A2 + 4 * lb
                cc = "0" if (c == 0 and i == 0) else f"v[{a}:{a+3}]"
                k(f"v_mfma_f32_16x16x32_bf16 v[{a}:{a+3}], v[{r}:{r+3}], {wdreg(2*c+i)}, {cc}")
                if SENT and (n & 1) == 0: k(f"v_max3_u32 v{TMP+10}, v{r}, v{r+4}, v{TMP+10}")
                if n < len(fill): k(fill[n])
                if n in slots: k(slots[n])
                n += 1
    k("@STAMP 11")
    XB = 65536
    k(f"""
    s_lshl_b32 s26, s17, 11
    s_add_u32 s26, s26, {XB}
    v_add_u32 v{TMP}, s26, v{VW}
    s_xor_b32 s26, s26, 0x2000
    v_add_u32 v{TMP+1}, s26, v{VW}
    """)
    for j in range(4):
        k(f"v_lshlrev_b32 v{32+2*j}, 16, v{RES+j}")
        k(f"v_and_b32 v{33+2*j}, 0xffff0000, v{RES+j}")
    k(f"""
    ds_write_b128 v{TMP}, v[8:11]
    ds_write_b128 v{TMP}, v[12:15] offset:1024
    """)
    if SENT:
        k(f"""
        v_cmp_eq_u32 vcc, -1, v{TMP+10}
        s_cmp_lg_u64 vcc, 0
        s_cselect_b32 s26, 1, 0
        s_lshl_b32 s27, s17, 2
        s_add_u32 s27, s27, {XB + 16384}
        v_mov_b32 v{TMP+11}, s26
        v_mov_b32 v{TMP+12}, s27
        v_and_b32 v{TMP+13}, 7, v{VT0}
        v_lshlrev_b32 v{TMP+13}, 2, v{TMP+13}
        v_add_u32 v{TMP+13}, {XB + 16384}, v{TMP+13}
        ds_write_b32 v{TMP+12}, v{TMP+11}
        """)
    k(f"""
    s_waitcnt lgkmcnt(0)
    s_barrier
    ds_read_b128 v[8:11], v{TMP+1}
    ds_read_b128 v[12:15], v{TMP+1} offset:1024
    """)
    if SENT:
        k(f"""
        ds_read_b32 v{TMP+11}, v{TMP+13}
        s_waitcnt lgkmcnt(0)
        v_cmp_ne_u32 vcc, 0, v{TMP+11}
        s_cmp_eq_u64 vcc, 0
        s_cbranch_scc1 M_OK
        s_add_u32 s55, s55, 1
        s_cmp_lt_u32 s55, 64
        s_cbranch_scc1 M_SYNC2
        M_OK:
        """)
    k("s_waitcnt lgkmcnt(0)")
    OUT = 16
    for j in range(4):
        y0, y1 = A2 + 2*j, A2 + 2*j + 1
        k(f"""
        v_pk_add_f32 v[{y0}:{y1}], v[{y0}:{y1}], v[{y0+8}:{y1+8}]
        v_cvt_pk_bf16_f32 v{y1}, v{y0}, v{y1}
        v_lshlrev_b32 v{y0}, 16, v{y1}
        v_and_b32 v{y1}, 0xffff0000, v{y1}
        v_pk_add_f32 v[{y0}:{y1}], v[{y0}:{y1}], v[{32+2*j}:{33+2*j}]
        v_cvt_pk_bf16_f32 v{OUT+j}, v{y0}, v{y1}
        """)
    k(f"""
    s_cmp_lg_u32 s35, 0
    s_cbranch_scc1 M_FINAL
    s_add_u32 s40, s39, {X2T}
    buffer_store_dwordx4 v[{OUT}:{OUT+3}], v{VRES}, s[8:11], s40 offen {X2_ST}
    """)
    Q = 48
    for j in range(4):
        k(f"""
        v_lshlrev_b32 v{Q+4*j}, 16, v{OUT+j}
        v_and_b32 v{Q+4*j+2}, 0xffff0000, v{OUT+j}
        v_mul_f32 v{Q+4*j+1}, v{Q+4*j}, v{Q+4*j}
        v_mul_f32 v{Q+4*j+3}, v{Q+4*j+2}, v{Q+4*j+2}
        """)
    for q in range(8):
        k(f"v_add_f32_dpp v{Q+q}, v{Q+q}, v{Q+q} row_ror:8 row_mask:0xf bank_mask:0x3")
        k(f"v_add_f32_dpp v{Q+q}, v{Q+q+8}, v{Q+q+8} row_ror:8 row_mask:0xf bank_mask:0xc")
    for q in range(4):
        k(f"v_add_f32_dpp v{Q+q}, v{Q+q}, v{Q+q} row_shl:4 row_mask:0xf bank_mask:0x5")
        k(f"v_add_f32_dpp v{Q+q}, v{Q+q+4}, v{Q+q+4} row_shr:4 row_mask:0xf bank_mask:0xa")
    for q in range(4):
        k(f"v_add_f32_dpp v{Q+q}, v{Q+q}, v{Q+q} quad_perm:[1,0,3,2] row_mask:0xf bank_mask:0xf")
    for q in range(4):
        k(f"v_add_f32_dpp v{Q+q}, v{Q+q}, v{Q+q} quad_perm:[2,3,0,1] row_mask:0xf bank_mask:0xf")
    SB = 98304
    k(f"""
    v_and_b32 v{TMP}, 3, v{VT1}
    v_cmp_eq_u32 s[48:49], 1, v{TMP}
    v_cmp_eq_u32 s[50:51], 2, v{TMP}
    v_cmp_eq_u32 s[52:53], 3, v{TMP}
    v_lshrrev_b32 v{TMP+1}, 2, v{VT1}
    v_lshlrev_b32 v{TMP+1}, 7, v{TMP+1}
    v_lshl_add_u32 v{TMP+1}, v{VT2}, 4, v{TMP+1}
    v_lshl_add_u32 v{TMP+1}, v{TMP}, 2, v{TMP+1}
    s_lshl_b32 s26, s16, 9
    s_lshl_b32 s27, s29, 6
    s_add_u32 s26, s26, s27
    s_add_u32 s26, s26, {SB}
    v_add_u32 v{TMP+1}, s26, v{TMP+1}
    v_cndmask_b32 v{Q}, v{Q}, v{Q+1}, s[48:49]
    v_cndmask_b32 v{Q}, v{Q}, v{Q+2}, s[50:51]
    v_cndmask_b32 v{Q}, v{Q}, v{Q+3}, s[52:53]
    ds_write_b32 v{TMP+1}, v{Q}
    s_lshl_b32 s26, s17, 8
    s_add_u32 s26, s26, {SB}
    v_lshl_add_u32 v{TMP+2}, v{VT0}, 2, s26
    v_lshrrev_b32 v{TMP+3}, 5, v{VT0}
    v_lshlrev_b32 v{TMP+3}, 12, v{TMP+3}
    v_and_b32 v{TMP+4}, 31, v{VT0}
    v_lshl_add_u32 v{TMP+3}, v{TMP+4}, 2, v{TMP+3}
    s_lshl_b32 s26, s36, 7
    s_lshl_b32 s27, s17, 13
    s_add_u32 s26, s26, s27
    s_add_u32 s26, s26, {ST1}
    s_waitcnt lgkmcnt(0)
    s_barrier
    s_cmp_ge_u32 s17, 2
    s_cbranch_scc1 M_NOAT
    ds_read_b32 v{Q}, v{TMP+2}
    ds_read_b32 v{Q+1}, v{TMP+2} offset:512
    ds_read_b32 v{Q+2}, v{TMP+2} offset:1024
    ds_read_b32 v{Q+3}, v{TMP+2} offset:1536
    s_waitcnt lgkmcnt(0)
    v_add_f32 v{Q}, v{Q}, v{Q+1}
    v_add_f32 v{Q+2}, v{Q+2}, v{Q+3}
    v_add_f32 v{Q}, v{Q}, v{Q+2}
    buffer_atomic_add_f32 v{Q}, v{TMP+3}, s[8:11], s26 offen
    M_NOAT:
    @STAMP 12
    @FLUSH 13
    s_endpgm
    M_FINAL:
    """)
    TP = 144; TB2 = 98304
    srd(k, 48, 6, L * D * 2)
    k(f"""
    s_lshl_b32 s26, s16, 4
    v_add_u32 v{TMP}, s26, v{VT1}
    v_mul_u32_u24 v{TMP}, {TP}, v{TMP}
    v_lshl_add_u32 v{TMP}, v{VT2}, 4, v{TMP}
    s_lshl_b32 s26, s29, 6
    s_add_u32 s26, s26, {TB2}
    v_add_u32 v{TMP}, s26, v{TMP}
    ds_write_b128 v{TMP}, v[{OUT}:{OUT+3}]
    v_lshrrev_b32 v{TMP+1}, 2, v{VT1}
    v_lshl_add_u32 v{TMP+1}, v{VT2}, 3, v{TMP+1}
    v_mul_u32_u24 v{TMP+1}, {TP}, v{TMP+1}
    v_and_b32 v{TMP+2}, 3, v{VT1}
    v_lshl_add_u32 v{TMP+1}, v{TMP+2}, 3, v{TMP+1}
    s_lshl_b32 s26, s16, 5
    s_mul_i32 s27, s29, {32*TP}
    s_add_u32 s26, s26, s27
    s_add_u32 s26, s26, {TB2}
    v_add_u32 v{TMP+1}, s26, v{TMP+1}
    v_lshlrev_b32 v{TMP+2}, 10, v{VT1}
    v_lshl_add_u32 v{TMP+2}, v{VT2}, 4, v{TMP+2}
    s_lshl_b32 s26, s36, 2
    s_add_u32 s26, s26, s16
    s_lshl_b32 s26, s26, 14
    s_lshl_b32 s27, s37, 7
    s_add_u32 s26, s26, s27
    s_lshl_b32 s27, s29, 6
    s_add_u32 s26, s26, s27
    s_waitcnt lgkmcnt(0)
    s_barrier
    ds_read_b64_tr_b16 v[32:33], v{TMP+1}
    ds_read_b64_tr_b16 v[34:35], v{TMP+1} offset:{4*TP}
    s_waitcnt lgkmcnt(0)
    buffer_store_dwordx4 v[32:35], v{TMP+2}, s[48:51], s26 offen {OUT_ST}
    @STAMP 12
    @FLUSH 13 last
    M_END:
    s_endpgm
    """)
    k(f"""
    M_STATS:
    s_mov_b32 s47, 0
    M_SL1:
    s_mov_b32 m0, s19
    s_add_u32 s19, s19, 0x2000
    buffer_load_dwordx4 v{VDMA}, s[8:11], s18 offen lds
    s_add_u32 s18, s18, 0x2000
    s_mov_b32 m0, s19
    s_add_u32 s19, s19, 0x2000
    buffer_load_dwordx4 v{VDMA}, s[8:11], s18 offen lds
    s_add_u32 s18, s18, 0x2000
    s_add_u32 s47, s47, 1
    s_cmp_lt_u32 s47, 8
    s_cbranch_scc1 M_SL1
    """)
    id_store("s")
    SACC = 0; ONES = 16
    k(f"""
    v_xor_b32 v{TMP+3}, s17, v{TMP+1}
    v_lshl_add_u32 v{XA}, v{TMP+3}, 5, v{TMP+2}
    """)
    for r in range(8): k(f"v_mov_b32 v{SACC+r}, 0")
    for r in range(4): k(f"v_mov_b32 v{ONES+r}, 0x3f803f80")
    k(f"""
    s_mov_b32 s47, 0
    s_waitcnt vmcnt(0)
    s_barrier
    M_SL2:
    """)
    for u in range(8):
        r = FR + 4 * u
        if u == 7: k("s_waitcnt lgkmcnt(12)")
        k(f"ds_read_b64_tr_b16 v[{r}:{r+1}], v{XA} offset:{u*8192}")
        k(f"ds_read_b64_tr_b16 v[{r+2}:{r+3}], v{XA} offset:{u*8192+4096}")
    k(f"v_add_u32 v{XA}, 0x10000, v{XA}")
    for u in range(8):
        r = FR + 4 * u
        k(f"s_waitcnt lgkmcnt({14 - 2*u})")
        k(f"v_mfma_f32_16x16x32_bf16 v[{SACC}:{SACC+3}], v[{r}:{r+3}], v[{r}:{r+3}], v[{SACC}:{SACC+3}]")
        k(f"v_mfma_f32_16x16x32_bf16 v[{SACC+4}:{SACC+7}], v[{ONES}:{ONES+3}], v[{r}:{r+3}], v[{SACC+4}:{SACC+7}]")
    k(f"""
    s_add_u32 s47, s47, 1
    s_cmp_lt_u32 s47, 2
    s_cbranch_scc1 M_SL2
    v_and_b32 v{TMP}, 3, v{VT1}
    v_cmp_eq_u32 s[48:49], 1, v{TMP}
    v_cmp_eq_u32 s[50:51], 2, v{TMP}
    v_cmp_eq_u32 s[52:53], 3, v{TMP}
    v_lshrrev_b32 v{TMP}, 2, v{VT1}
    v_cmp_eq_u32 s[54:55], v{TMP}, v{VT2}
    v_cndmask_b32 v{SACC}, v{SACC}, v{SACC+1}, s[48:49]
    v_cndmask_b32 v{SACC}, v{SACC}, v{SACC+2}, s[50:51]
    v_cndmask_b32 v{SACC+5}, v{SACC}, v{SACC+3}, s[52:53]
    v_mov_b32 v{SACC+12}, v{SACC+4}
    v_mov_b32 v{SACC+13}, v{SACC+5}
    """)
    stats_pair(k, SACC+4, SACC+5, SACC+12, SACC+13, TMP, keep=(SACC+6, SACC+14))
    k(f"""
    v_lshrrev_b32 v{SACC+4}, 16, v{SACC+4}
    v_or_b32 v{SACC+4}, v{SACC+4}, v{SACC+6}
    v_lshlrev_b32 v{VSTX}, 2, v{VT1}
    s_lshl_b32 s41, s14, 9
    s_lshl_b32 s26, s17, 6
    s_add_u32 s41, s41, s26
    s_add_u32 s41, s41, s33
    s_mov_b64 exec, s[54:55]
    buffer_store_dword v{SACC+4}, v{VSTX}, s[8:11], s41 offen sc1
    s_mov_b64 exec, -1
    """)
    for p in res_parts: k(p)
    for i in range(22): k(wd_part(i))
    k(f"""
    s_barrier
    s_branch M_SYNC
    .p2align 8
    mlpb_kernel:
    s_mov_b32 s30, {X3T}
    s_mov_b32 s31, {HB1}
    s_mov_b32 s33, {STX + 0x2000}
    s_mov_b32 s34, {FLG + 0x8000}
    s_mov_b32 s35, 1
    s_mov_b32 s56, {IDT + 0x400}
    @KID 5
    s_branch M_BODY
    """)
    info = dict(vgpr=NV + 88, sgpr=64, accum=NV, grid=256, block=512, lds=MLP_LDS)
    return k, info

DIAG_KN = {2: ("mlpa", 13), 5: ("mlpb", 13), 3: ("wroles", 2), 6: ("none", 1)}
def emit(path, launches=None):
    kp, ip = gen_prep()
    kc, ic = gen_conv()
    km, im = gen_mlp()
    ic1 = dict(ic); ic1["grid"] = B_E
    infos = {"prep_kernel": ip, "conv1_kernel": ic1, "conv2_kernel": ic, "mlpa_kernel": im, "mlpb_kernel": im}
    kf, if1 = gen_f1()
    if FUSE1:
        infos = {"f1_kernel": if1, "conv2_kernel": ic, "mlpa_kernel": im, "mlpb_kernel": im}
        launches = launches or ["f1_kernel", "mlpa_kernel", "conv2_kernel", "mlpb_kernel"]
    if os.environ.get("ORDER"): launches = [x + "_kernel" for x in os.environ["ORDER"].split(",")]
    order = launches or ["prep_kernel", "conv1_kernel", "mlpa_kernel", "conv2_kernel", "mlpb_kernel"]
    hdr = open("cdna_kernels/" + NAME + ".s.ref").read().split("; Override launch")[0]
    out = [hdr.rstrip("\n")]
    for n in order:
        i = infos[n]
        out.append(f"; @launch kernel={n} grid=({i['grid']},1,1) block=({i['block']},1,1) lds={i['lds']}")
    out.append('.amdgcn_target "amdgcn-amd-amdhsa--gfx950"\n.text')
    for n in infos:
        out.append(f".globl {n}\n.type {n},@function")
    if FUSE1: out.append(".p2align 8\n" + kf.text())
    out.append(".p2align 8\nprep_kernel:\n" + kp.text().replace("P_NOPF", "Q_NOPF"))
    for kk in (kc, km):
        out.append(".p2align 8\n" + kk.text())
    for n, i in infos.items():
        out.append(descriptor(n, i["vgpr"], 102 if DIAG else i["sgpr"], i["accum"]))
    open(path, "w").write("\n".join(out))

if __name__ == "__main__":
    emit(sys.argv[1] if len(sys.argv) > 1 else "cdna_kernels/" + NAME + ".s")
```

```python
import sys, struct, re, os
from asmlib import *

NAME = "interleave_layers__ssm_conv_s4d__glu_gated_glu__prompt"
KA_U, KA_LOGA, KA_AIM, KA_CRE, KA_CIM, KA_LOGDT, KA_DSKIP, KA_BX, KA_WG, KA_WU, KA_WD, KA_OUT, KA_DBG, KA_WS = [8 * i for i in range(14)]
XT0, X1T, X2T, X3T = 0x3000000, 0x3300000, 0x3600000, 0x3900000
ST0, ST1, CSUM = 0x0800000, 0x0804000, 0x0808000
WP = 0x0C00000
WD = 0x1000000
HB = 0x1200000
HB1 = 0x2200000
GFB = 0x0840000
GFN = int(os.environ.get('GFN', '32'))
ZR = 0x0810000; STX = 0x0810000; FLG = 0x0820000
KP = 0x1800000; KCS = 4160; KP_STRIDE = 1536
WS_BYTES = 0x10000000
L, D, F, NST = 2048, 512, 1376, 128
NKS2 = 44
HKS = 45

import os
XP = int(os.environ.get('XP', '4352'))
PREP_W_POL = os.environ.get('PREP_W_POL', 'sc1')
PREP_K_POL = os.environ.get('PREP_K_POL', '')
PREP_X_POL = os.environ.get('PREP_X_POL', '')
LATE_PRIO = int(os.environ.get('LATE_PRIO', '0'))
PREP_PRIO = int(os.environ.get('PREP_PRIO', '0'))
CONV_ST = os.environ.get('CONV_ST', 'sc1')
OUT_ST = os.environ.get('OUT_ST', '')
X2_ST = os.environ.get('X2_ST', 'sc1')
F1_SLEEP = int(os.environ.get('F1_SLEEP', '2'))
CODEPF_BASE = int(os.environ.get('CODEPF_BASE', '760' if int(os.environ.get('FUSE1', '1')) else '0'))
CPFR = 142 if int(os.environ.get('FUSE1', '1')) else 94
SENT = int(os.environ.get('SENT', '0'))
SPLITPUB = int(os.environ.get('SPLITPUB', '1'))
POISON_POL = os.environ.get('POISON_POL', 'sc1')
SENT_SLEEP = int(os.environ.get('SENT_SLEEP', '2'))
WTOUCH = int(os.environ.get('WTOUCH', '0'))
CODEPF3 = int(os.environ.get('CODEPF3', '0'))
CODEPF2 = int(os.environ.get('CODEPF2', '1'))
TLBPF = int(os.environ.get('TLBPF', '0'))
TLBPF_BASE = int(os.environ.get('TLBPF_BASE', '1216'))
CODEPF = int(os.environ.get('CODEPF', '1'))
DIAG = int(os.environ.get("DIAG", "0"))
DIAG_OFF = 0x4000000
_Kern = Kern
class Kern(_Kern):
    def __call__(self, s):
        for l in s.strip("\n").split("\n"):
            t = l.strip()
            if t.startswith("@GFLOAD"):
                super().__call__(f"s_and_b32 s26, s2, {GFN-1}\ns_lshl_b32 s26, s26, 7\ns_add_u32 s26, s26, {GFB}\nv_mov_b32 v165, s26\nglobal_load_dword v164, v165, s[4:5] sc1")
                continue
            if t.startswith("@WTOUCH"):
                if WTOUCH:
                    super().__call__(f"""
                    s_mul_i32 s15, s3, 5504
                    v_min_u32 v90, 85, v0
                    v_lshl_add_u32 v90, v90, 6, s15
                    global_load_dword v91, v90, s[16:17]
                    global_load_dword v92, v90, s[18:19]
                    global_load_dword v93, v90, s[20:21]
                    """)
                continue
            if t.startswith("@CODEPF3"):
                if CODEPF3:
                    super().__call__(f"""
                    s_cmp_ge_u32 s2, 8
                    s_cbranch_scc1 M_NOPF
                    s_cmp_lt_u32 s17, 2
                    s_cbranch_scc1 M_NOPF
                    s_getpc_b64 s[26:27]
                    M_PFPC:
                    s_sub_u32 s26, s26, M_PFPC-conv1_kernel
                    s_subb_u32 s27, s27, 0
                    s_and_b32 s28, s17, 1
                    s_lshl_b32 s28, s28, 12
                    v_lshl_add_u32 v163, v136, 6, s28
                    global_load_dword v163, v163, s[26:27]
                    M_NOPF:
                    """)
                continue
            if t.startswith("@CNTLOAD"):
                super().__call__("global_load_dword v59, v2, s[28:29] sc1")
                continue
            if t.startswith("@CODEPF"):
                if CODEPF:
                    super().__call__(f"""
                    s_sub_u32 s3, s2, {CODEPF_BASE}
                    s_cmp_ge_u32 s3, 8
                    s_cbranch_scc1 P_NOPF
                    s_getpc_b64 s[6:7]
                    v_lshlrev_b32 v1, 6, v0
                    global_load_dword v{CPFR}, v1, s[6:7]
                    v_add_u32 v1, 0x4000, v1
                    global_load_dword v{CPFR+1}, v1, s[6:7]
                    P_NOPF:
                    """)
                if TLBPF:
                    super().__call__(f"""
                    s_sub_u32 s3, s2, {TLBPF_BASE}
                    s_cmp_ge_u32 s3, 8
                    s_cbranch_scc1 P_NOPF2
                    s_load_dwordx2 s[6:7], s[0:1], {KA_OUT}
                    v_lshlrev_b32 v1, 18, v0
                    v_lshlrev_b32 v2, 13, v0
                    s_waitcnt lgkmcnt(0)
                    global_load_dword v93, v1, s[4:5]
                    global_load_dword v92, v2, s[6:7]
                    P_NOPF2:
                    """)
                continue
            if t.startswith("@"):
                if not DIAG: continue
                p = t.split()
                if p[0] == "@KID":
                    super().__call__(f"s_mov_b32 s59, {DIAG_OFF + int(p[1]) * 0x80000}\ns_mov_b32 s57, {3 if int(p[1]) in (2, 5) else 2}")
                elif p[0] == "@INIT":
                    super().__call__("v_readfirstlane_b32 s58, v0\ns_memrealtime s[64:65]\ns_memtime s[66:67]")
                elif p[0] == "@STAMP":
                    i = int(p[1]); super().__call__(f"s_memtime s[{64+2*i}:{65+2*i}]")
                elif p[0] == "@FLUSH":
                    n = int(p[1])
                    super().__call__(f"""
                    s_waitcnt vmcnt(0)
                    s_memtime s[{64+2*n}:{65+2*n}]
                    s_memrealtime s[{66+2*n}:{67+2*n}]
                    s_waitcnt lgkmcnt(0)
                    s_mov_b64 exec, -1
                    s_lshr_b32 s58, s58, 6
                    s_lshl_b32 s61, s2, s57
                    s_add_u32 s60, s58, s61
                    s_lshl_b32 s60, s60, 6
                    s_add_u32 s60, s60, s59
                    v_mov_b32 v1, s60
                    """)
                    for i in range(n + 2):
                        super().__call__(f"v_mov_b32 v2, s{64+2*i}\nglobal_store_dword v1, v2, s[4:5] offset:{4*i}")
                    super().__call__("s_getreg_b32 s61, hwreg(HW_REG_XCC_ID)\nv_mov_b32 v2, s61\nglobal_store_dword v1, v2, s[4:5] offset:60")
                    if DIAG == 2 and len(p) > 2:
                        lab = f"DG{len(self.lines)}"
                        txt = f"s_or_b32 s60, s2, s58\ns_cmp_lg_u32 s60, 0\ns_cbranch_scc1 {lab}\ns_load_dwordx2 s[62:63], s[0:1], {KA_DBG}\ns_waitcnt vmcnt(0) lgkmcnt(0)\n"
                        j = 0
                        for kid, nn in ((0, 6), (1, 13), (2, 13), (4, 13), (5, 13)):
                            for slot in (0, nn + 1):
                                txt += f"v_mov_b32 v1, {DIAG_OFF + kid * 0x80000 + 4 * slot}\nglobal_load_dword v2, v1, s[4:5] sc1\nv_mov_b32 v3, {4*j}\ns_waitcnt vmcnt(0)\nglobal_store_dword v3, v2, s[62:63]\n"
                                j += 1
                        for kid, slot in ((2, 1), (2, 3), (2, 5), (2, 9), (1, 1), (1, 5)):
                            txt += f"v_mov_b32 v1, {DIAG_OFF + kid * 0x80000 + 4 * slot}\nglobal_load_dword v2, v1, s[4:5] sc1\nv_mov_b32 v3, {4*j}\ns_waitcnt vmcnt(0)\nglobal_store_dword v3, v2, s[62:63]\n"
                            j += 1
                        super().__call__(txt + f"{lab}:")
                continue
            super().__call__(l)

def f2u(x): return struct.unpack("<I", struct.pack("<f", x))[0]
def fl(x): return "0x%08x" % f2u(x)
LOG2E = 1.4426950408889634
L2E_HI = struct.unpack("<f", struct.pack("<f", LOG2E))[0]
L2E_LO = LOG2E - L2E_HI
LN2 = 0.6931471805599453

def srd(k, s, base, nbytes):
    k(f"""
    s_mov_b32 s{s}, s{base}
    s_and_b32 s{s+1}, s{base+1}, 0xffff
    s_mov_b32 s{s+2}, {nbytes:#x}
    s_mov_b32 s{s+3}, 0x20000
    """)

def rnd_bf16(k, dst, a, b=None):
    k(f"v_cvt_pk_bf16_f32 v{dst}, v{a}, v{b if b is not None else a}")

def exp_acc(k, dst, x, t0, t1):
    k(f"""
    v_mul_f32 v{t0}, s40, v{x}
    v_fma_f32 v{t1}, s40, v{x}, -v{t0}
    v_fma_f32 v{t1}, s41, v{x}, v{t1}
    v_exp_f32 v{dst}, v{t0}
    v_mul_f32 v{t1}, s42, v{t1}
    v_fma_f32 v{dst}, v{dst}, v{t1}, v{dst}
    """)

N_K, N_T, N_W, N_D, N_C = 512, 256, 240, 176, 90
FUSE1 = int(os.environ.get('FUSE1', '1'))
F1_LD = os.environ.get('F1_LD', '')
F1_POLL = os.environ.get('F1_POLL', 'sc1')
WINC = os.environ.get('WINC', 'X')
_sz = {"C": N_C, "W": N_W, "D": N_D, "T": N_T}
B_K = 0
_pos = N_K; PREP_ROLES = []; _base = {}
for r in "CWTD":
    if r not in WINC:
        _base[r] = _pos; _pos += _sz[r]; PREP_ROLES.append((r, _pos))
PREP_WGS = _pos
_pos = 512; CONV_ROLES = []
for r in "CWD":
    if r in WINC:
        _base[r] = _pos; _pos += _sz[r]; CONV_ROLES.append((r, _pos))
B_E = _pos
B_C, B_W, B_T, B_D = _base["C"], _base["W"], _base["T"], _base["D"]
if FUSE1: B_T = 0; B_C = 0
PREP_GROUPS = [("prep.K", 0, N_K, 6)] + [("prep." + r, _base[r], e, 2) for r, e in PREP_ROLES]
if FUSE1: PREP_GROUPS = [("f1.TC", 0, N_C, 2), ("f1.T", N_C, N_T, 2)]
_lab = {"C": "P_C", "W": "P_W", "T": "P_TR", "D": "P_D"}
PREP_LDS = 18432
CSU = 4576
KL = 2 * CSU
CRED = KL + 16640
CONV_LDS = CRED + 24576
CPF = int(os.environ.get('CPF', '1'))
CPF_STRIDE = int(os.environ.get('CPF_STRIDE', '128'))
LOCALMAP0 = int(os.environ.get('LOCALMAP', '0'))
PFQ = int(os.environ.get('PFQ', '6144'))
SPIN_MAX = 1 << 20

class Remap:
    def __init__(self, k, voff, smap): self.k = k; self.voff = voff; self.smap = smap
    def __call__(self, t):
        def rv(m):
            if m.group(1): return f"v[{int(m.group(1))+self.voff}:{int(m.group(2))+self.voff}]"
            n = int(m.group(3)); return "v0" if n == 0 else f"v{n+self.voff}"
        t = re.sub(r"\bv\[(\d+):(\d+)\]|\bv(\d+)\b", rv, t)
        def rs(m):
            if m.group(1):
                a = int(m.group(1)); b = int(m.group(2))
                if a in self.smap: return f"s[{self.smap[a]}:{self.smap[a]+b-a}]"
                return m.group(0)
            n = int(m.group(3)); return f"s{self.smap.get(n, n)}"
        t = re.sub(r"\bs\[(\d+):(\d+)\]|\bs(\d+)\b", rs, t)
        self.k(t)
    def label(self, l): self.k.label(l)

class NoPk:
    def __init__(self, k): self.k = k
    def __call__(self, t):
        def f(m):
            d, a, b = int(m.group(1)), int(m.group(2)), int(m.group(3))
            return f"v_add_f32 v{d}, v{a}, v{b}\nv_add_f32 v{d+1}, v{a+1}, v{b+1}"
        self.k(re.sub(r"v_pk_add_f32 v\[(\d+):\d+\], v\[(\d+):\d+\], v\[(\d+):\d+\]", f, t))
    def label(self, l): self.k.label(l)
CONV_NOPK = int(os.environ.get('CONV_NOPK', '1'))

class UnitS:
    MAP = {12: 21, 13: 22, 14: 23, 15: 27, 16: 30, 17: 39, 18: 46, 19: 47, 21: 55, 3: 56}
    def __init__(self, k): self.k = k
    def __call__(self, t):
        self.k(re.sub(r"\bs(\d+)\b", lambda m: f"s{self.MAP.get(int(m.group(1)), int(m.group(1)))}", t))

class Remap2:
    def __init__(self, k, vmap): self.k = k; self.vmap = vmap
    def __call__(self, t):
        t = re.sub(r"\bv(\d+)\b", lambda m: f"v{self.vmap.get(int(m.group(1)), int(m.group(1)))}", t)
        self.k(t)

def conv_setup(k):
    k(f"""
    v_readfirstlane_b32 s17, v0
    s_mov_b32 s43, {fl(1.0/512)}
    s_mov_b32 s44, {fl(1e-5)}
    s_mov_b32 s45, {fl(1e-5)}
    s_mov_b32 s46, {fl(1.0/512)}
    s_mov_b32 s47, {fl(1.0/512)}
    s_lshr_b32 s17, s17, 6                ; pi
    s_mul_i32 s12, s2, {XP}
    s_add_u32 s13, s12, s30
    s_lshl_b32 s14, s2, 8
    s_add_u32 s14, s14, s32               ; out: d*256
    s_mul_i32 s15, s2, {KP_STRIDE}
    s_add_u32 s15, s15, {KP}
    s_lshr_b32 s16, s2, 1
    s_lshl_b32 s16, s16, 2
    v_lshlrev_b32 v1, 4, v0               ; tid*16
    v_and_b32 v3, 15, v0                  ; c / r
    v_bfe_u32 v4, v0, 4, 2                ; g
    v_and_b32 v5, 63, v0
    v_lshlrev_b32 v6, 4, v5               ; lane*16
    s_and_b32 s21, s2, 7
    v_bfe_u32 v2, v0, 1, 3
    v_xor_b32 v2, s21, v2
    v_lshlrev_b32 v2, 5, v2
    v_lshrrev_b32 v8, 4, v0
    v_lshl_add_u32 v2, v8, 17, v2
    v_and_b32 v8, 1, v0
    v_lshl_add_u32 v2, v8, 4, v2
    """)

def conv_loads(k, pol=""):
    k(f"""
    buffer_load_dwordx4 v[16:19], v1, s[8:11], s31 offen {pol}
    s_add_u32 s31, s31, 0x1000
    buffer_load_dwordx4 v[20:23], v1, s[8:11], s31 offen {pol}
    s_add_u32 s31, s31, 0x1000
    buffer_load_dwordx4 v[24:27], v1, s[8:11], s31 offen {pol}
    s_add_u32 s31, s31, 0x1000
    buffer_load_dwordx4 v[28:31], v1, s[8:11], s31 offen {pol}
    buffer_load_dwordx4 v[12:15], v1, s[8:11], s13 offen {pol}
    """)

def conv_p3(k, kzero=True):
    k(f"""
    v_mov_b32 v36, 0
    v_mov_b32 v37, 0
    v_mov_b32 v38, 0
    v_mov_b32 v39, 0
    """)
    if kzero: k(f"""
    v_bfe_u32 v9, v0, 2, 2
    v_mul_u32_u24 v9, {KCS}, v9
    v_and_b32 v10, 3, v0
    v_min_u32 v10, 2, v10
    v_lshl_add_u32 v9, v10, 4, v9
    ds_write_b128 v9, v[36:39] offset:{KL}
    """)
    k(f"""
    v_lshlrev_b32 v40, 3, v0
    s_sub_u32 s19, s18, {2 * (0x4300 - 128)}
    """)
    for e in range(11):
        k(f"v_add_u32 v{48+e}, {e-3}, v40")
        if e < 3: k(f"v_max_i32 v{48+e}, 0, v{48+e}")
        k(f"v_cvt_f32_u32 v{60+e}, v{48+e}")
    for e in range(0, 11, 2):
        k(f"v_cvt_pk_bf16_f32 v{72+e//2}, v{60+e}, v{min(61+e, 70)}")
    for e in range(11):
        src = 72 + e // 2
        if e & 1: k(f"v_lshrrev_b32 v{60+e}, 16, v{src}")
        else: k(f"v_and_b32 v{60+e}, 0xffff, v{src}")
        k(f"v_lshl_add_u32 v{60+e}, v{60+e}, 1, s19")
        k(f"v_lshl_add_u32 v{48+e}, v{48+e}, 1, s18")
    k("v_cmp_gt_u32 s[24:25], 17, v0")
    for e in range(11):
        k(f"v_cndmask_b32 v{48+e}, v{60+e}, v{48+e}, s[24:25]")
    k(f"""
    s_and_b32 s21, s17, 1
    s_sub_u32 s22, 56, s21
    s_mul_i32 s21, s21, {CSU}
    v_min_u32 v9, s22, v5
    v_lshl_add_u32 v9, v9, 3, s21
    ds_write_b64 v9, v[36:37]
    v_and_b32 v9, 1, v3
    v_mul_u32_u24 v9, {CSU}, v9
    v_lshrrev_b32 v10, 1, v3
    v_lshlrev_b32 v11, 2, v10
    v_sub_u32 v11, v11, v4
    s_lshl_b32 s21, s17, 2
    s_sub_u32 s21, 15, s21
    v_add_u32 v11, s21, v11
    v_lshl_add_u32 v9, v11, 4, v9         ; v9 = u addr
    v_and_b32 v7, 3, v3
    v_mul_u32_u24 v7, {KCS}, v7
    v_lshrrev_b32 v8, 2, v3
    v_add_u32 v8, v8, v4
    v_lshl_add_u32 v7, v8, 4, v7
    s_lshl_b32 s21, s17, 6
    s_add_u32 s21, s21, {KL}
    v_add_u32 v7, s21, v7                 ; v7 = K addr
    v_xor_b32 v8, v4, v10
    v_and_b32 v8, 3, v8
    v_lshlrev_b32 v8, 1, v8
    v_lshl_add_u32 v8, v10, 3, v8
    v_and_b32 v11, 1, v3
    v_add_u32 v8, v8, v11
    s_lshl_b32 s21, s17, 11
    v_lshl_add_u32 v10, v8, 4, s21
    v_bfe_u32 v8, v0, 2, 3
    v_xor_b32 v11, v8, v0
    v_and_b32 v11, 3, v11
    v_lshlrev_b32 v11, 5, v11
    v_lshl_add_u32 v11, v8, 7, v11
    v_bfe_u32 v8, v0, 5, 1
    v_lshl_add_u32 v11, v8, 10, v11
    s_lshl_b32 s21, s17, 13
    s_add_u32 s21, s21, {CRED}
    s_cmp_eq_u32 s17, 3
    s_cselect_b32 s21, {KL}, s21
    v_add_u32 v11, s21, v11
    """)

def conv_expand(k):
    k("""
    v_cmp_eq_u32 vcc, 0, v0
    s_waitcnt lgkmcnt(0)
    v_cndmask_b32 v48, v48, v36, vcc
    v_cndmask_b32 v49, v49, v36, vcc
    v_cndmask_b32 v50, v50, v36, vcc
    """)
    for sft in range(4):
        for j in range(4):
            k(f"v_lshl_or_b32 v{64+4*sft+j}, v{48+sft+6-2*j}, 16, v{48+sft+7-2*j}")
        k(f"ds_write_b128 v1, v[{64+4*sft}:{67+4*sft}] offset:{KL + sft*KCS + 48}")

def conv_norm(k):
    for j in range(4):
        k(f"""
        v_lshlrev_b32 v40, 16, v{12+j}
        v_and_b32 v41, 0xffff0000, v{12+j}
        v_sub_f32 v40, v40, v{16+4*j}
        v_sub_f32 v41, v41, v{18+4*j}
        v_cvt_pk_bf16_f32 v41, v40, v41
        v_lshlrev_b32 v40, 16, v41
        v_and_b32 v41, 0xffff0000, v41
        v_mul_f32 v40, v40, v{17+4*j}
        v_mul_f32 v41, v41, v{19+4*j}
        v_cvt_pk_bf16_f32 v{32+j}, v40, v41
        """)
    k(f"""
    ds_write_b128 v1, v[32:35] offset:{CSU + 16*28}
    ds_write2_b64 v1, v[32:33], v[34:35] offset0:57 offset1:58
    """)

def gen_prep():
    k = Kern("prep_kernel")
    k(f"""
    @KID 0
    @INIT
    s_load_dwordx2 s[4:5], s[0:1], {KA_WS}
    @CODEPF
    s_sub_u32 s26, s2, {B_K}
    s_cmp_lt_u32 s26, {N_K}
    s_cbranch_scc1 P_KGEN
    """)
    for r, e in PREP_ROLES: k(f"s_cmp_lt_u32 s2, {e}\ns_cbranch_scc1 {_lab[r]}")
    k(f"""
    s_endpgm
    P_WROLES:
    @KID 3
    @INIT
    s_load_dwordx2 s[4:5], s[0:1], {KA_WS}
    """)
    for r, e in CONV_ROLES: k(f"s_cmp_lt_u32 s2, {e}\ns_cbranch_scc1 {_lab[r]}")
    k("s_endpgm")
    k.label("P_KGEN")
    TB = 16384
    k(f"""
    s_load_dwordx4 s[8:11], s[0:1], {KA_LOGA}
    s_load_dwordx4 s[12:15], s[0:1], {KA_CRE}
    s_load_dwordx2 s[16:17], s[0:1], {KA_LOGDT}
    s_mov_b32 s40, {fl(L2E_HI)}
    s_mov_b32 s41, {fl(L2E_LO)}
    s_mov_b32 s42, {fl(LN2)}
    v_lshrrev_b32 v1, 1, v0
    v_and_b32 v1, 0x60, v1
    v_and_or_b32 v1, v0, 31, v1           ; n = 32 w + (lane & 31)
    s_lshl_b32 s3, s26, 8
    v_lshl_add_u32 v2, v1, 1, s3
    s_lshl_b32 s18, s26, 1
    v_mov_b32 v3, s18
    v_readfirstlane_b32 s19, v0
    s_lshr_b32 s19, s19, 6                ; wave
    s_waitcnt lgkmcnt(0)
    global_load_ushort v4, v2, s[8:9]
    global_load_ushort v8, v3, s[16:17]
    global_load_ushort v5, v2, s[10:11]
    global_load_ushort v6, v2, s[12:13]
    global_load_ushort v7, v2, s[14:15]
    v_and_b32 v20, 15, v0                 ; i / j
    v_bfe_u32 v21, v0, 4, 2               ; g
    ; hi0 = 128*(i>>3) + (i&7)
    v_lshrrev_b32 v23, 3, v20
    v_and_b32 v24, 7, v20
    v_lshl_add_u32 v23, v23, 7, v24
    v_cvt_f32_u32 v30, v23
    ; hi1 = (g''<2 ? 256+2g'' : 256*g'') + 128*((i>>1)&1) + 4*(i&1)
    v_lshrrev_b32 v23, 2, v20
    v_lshlrev_b32 v24, 1, v23
    v_add_u32 v24, 0x100, v24
    v_lshlrev_b32 v25, 8, v23
    v_cmp_gt_u32 vcc, 2, v23
    v_cndmask_b32 v24, v25, v24, vcc
    v_bfe_u32 v25, v20, 1, 1
    v_lshl_add_u32 v24, v25, 7, v24
    v_and_b32 v25, 1, v20
    v_lshl_add_u32 v24, v25, 2, v24
    v_cvt_f32_u32 v31, v24
    v_lshlrev_b32 v23, 7, v20
    v_add_u32 v23, 0x400, v23
    v_cvt_f32_u32 v32, v23                ; hi2
    v_lshlrev_b32 v23, 3, v20
    v_cvt_f32_u32 v33, v23                ; lo
    s_lshl_b32 s20, s19, 9
    v_lshl_add_u32 v34, v21, 6, s20
    v_lshrrev_b32 v23, 1, v21
    v_and_b32 v24, 1, v21
    v_lshlrev_b32 v24, 2, v24
    v_lshl_add_u32 v35, v23, 7, v24
    v_lshl_add_u32 v35, v20, 3, v35
    v_mov_b32 v36, 1
    v_mov_b32 v37, 2
    s_cmp_eq_u32 s19, 0
    s_cbranch_scc1 P_KA
    v_lshl_add_u32 v35, v21, 6, v20
    v_add_u32 v35, 0x200, v35
    v_mov_b32 v36, 16
    v_mov_b32 v37, 32
    s_cmp_lg_u32 s19, 1
    s_cbranch_scc1 P_KA
    v_lshl_add_u32 v23, v20, 2, v21
    v_add_u32 v23, 0x100, v23             ; seg1: 256 + g' + 4j ; o1=2 o2=64
    v_lshlrev_b32 v24, 6, v21
    v_lshl_add_u32 v24, v20, 1, v24
    v_add_u32 v24, 0x100, v24             ; seg2: 384 + 64(g'-2) + 2j ; o1=1 o2=32
    v_cmp_gt_u32 vcc, 2, v21
    v_cndmask_b32 v35, v24, v23, vcc
    v_cndmask_b32 v36, 1, 2, vcc
    v_cndmask_b32 v37, 32, 64, vcc
    P_KA:
    v_add_u32 v38, v36, v37
    v_add_lshl_u32 v36, v36, v35, 1
    v_add_lshl_u32 v37, v37, v35, 1
    v_add_lshl_u32 v38, v38, v35, 1
    v_lshlrev_b32 v35, 1, v35
    v_and_b32 v39, 63, v0
    v_lshlrev_b32 v39, 4, v39             ; lane*16
    s_waitcnt vmcnt(3)
    @STAMP 2
    v_lshlrev_b32 v4, 16, v4
    v_lshlrev_b32 v8, 16, v8
    """)
    exp_acc(k, 10, 8, 16, 17)
    exp_acc(k, 11, 4, 18, 19)
    k(f"""
    v_cvt_pk_bf16_f32 v10, v10, v11
    v_and_b32 v11, 0xffff0000, v10        ; eA
    v_lshlrev_b32 v10, 16, v10            ; dt
    v_mul_f32 v12, v11, v10
    v_mul_f32 v12, s40, v12
    v_sub_f32 v12, 0, v12
    s_waitcnt vmcnt(0)
    v_lshlrev_b32 v5, 16, v5
    v_lshlrev_b32 v6, 16, v6
    v_lshlrev_b32 v7, 16, v7
    v_mul_f32 v13, v5, v10
    v_mul_f32 v13, 0.15915494, v13
    v_add_f32 v10, v10, v10
    v_mul_f32 v14, v6, v10                ; 2*Cre*dt
    v_mul_f32 v15, v7, v10                ; 2*Cim*dt
    v_lshlrev_b32 v9, 4, v1
    ds_write_b128 v9, v[12:15]
    v_max3_f32 v16, |v14|, |v15|, 0
    v_max_f32_dpp v16, v16, v16 row_shr:1 row_mask:0xf bank_mask:0xf
    v_max_f32_dpp v16, v16, v16 row_shr:2 row_mask:0xf bank_mask:0xf
    v_max_f32_dpp v16, v16, v16 row_shr:4 row_mask:0xf bank_mask:0xf
    v_max_f32_dpp v16, v16, v16 row_shr:8 row_mask:0xf bank_mask:0xf
    v_max_f32_dpp v16, v16, v16 row_bcast:15 row_mask:0xa bank_mask:0xf
    v_readlane_b32 s23, v16, 31
    s_mov_b32 s20, 0
    @STAMP 3
    v_mov_b32 v16, s23
    v_bfe_u32 v16, v16, 23, 8
    v_max_u32 v16, 14, v16
    v_sub_u32 v17, 0x8c, v16
    v_cvt_f32_i32 v29, v17                ; kf = 140 - e'
    v_mov_b32 v28, 0
    v_subrev_u32 v16, 13, v16
    v_lshlrev_b32 v27, 23, v16            ; Sinv
    P_KLOOP:
    ds_read_b128 v[52:55], v34
    ds_read_b128 v[56:59], v34 offset:16
    ds_read_b128 v[60:63], v34 offset:32
    ds_read_b128 v[64:67], v34 offset:48
    v_add_u32 v34, 0x100, v34
    """)
    for nn in range(4):
        p = 52 + 4 * nn
        k(f"""
        s_waitcnt lgkmcnt({3-nn})
        v_pk_mul_f32 v[2:3], v[30:31], v[{p}:{p+1}] op_sel_hi:[1,0]
        v_pk_fma_f32 v[4:5], v[32:33], v[{p}:{p+1}], v[28:29] op_sel_hi:[1,0,1]
        v_pk_mul_f32 v[6:7], v[30:31], v[{p}:{p+1}] op_sel:[0,1] op_sel_hi:[1,1]
        v_pk_mul_f32 v[8:9], v[32:33], v[{p}:{p+1}] op_sel:[0,1] op_sel_hi:[1,1]
        v_exp_f32 v2, v2
        v_exp_f32 v3, v3
        v_exp_f32 v4, v4
        v_exp_f32 v5, v5
        v_fract_f32 v6, v6
        v_fract_f32 v7, v7
        v_fract_f32 v8, v8
        v_fract_f32 v9, v9
        v_cos_f32 v10, v6
        v_sin_f32 v11, v6
        v_cos_f32 v12, v7
        v_sin_f32 v13, v7
        v_cos_f32 v14, v8
        v_sin_f32 v15, v8
        v_cos_f32 v16, v9
        v_sin_f32 v17, v9
        v_pk_mul_f32 v[10:11], v[10:11], v[2:3] op_sel_hi:[1,0]
        v_pk_mul_f32 v[12:13], v[12:13], v[2:3] op_sel:[0,1] op_sel_hi:[1,1]
        v_pk_mul_f32 v[14:15], v[14:15], v[4:5] op_sel_hi:[1,0]
        v_pk_mul_f32 v[16:17], v[16:17], v[4:5] op_sel:[0,1] op_sel_hi:[1,1]
        v_cvt_pk_f16_f32 v{68+nn}, v10, v11
        v_cvt_pk_f16_f32 v{72+nn}, v12, v13
        v_cvt_pk_f16_f32 v{76+nn}, v14, v15
        v_pk_mul_f32 v[18:19], v[16:17], v[{p+2}:{p+3}] op_sel_hi:[1,0]
        v_pk_fma_f32 v[18:19], v[16:17], v[{p+2}:{p+3}], v[18:19] op_sel:[1,1,0] op_sel_hi:[0,1,1] neg_lo:[1,0,0]
        v_cvt_pk_f16_f32 v{80+nn}, v18, -v19
        """)
    k(f"""
    s_cmp_eq_u32 s20, 1
    s_cbranch_scc1 P_KL2
    v_mfma_f32_16x16x32_f16 v[40:43], v[68:71], v[80:83], 0
    v_mfma_f32_16x16x32_f16 v[44:47], v[72:75], v[80:83], 0
    v_mfma_f32_16x16x32_f16 v[48:51], v[76:79], v[80:83], 0
    s_mov_b32 s20, 1
    s_branch P_KLOOP
    P_KL2:
    v_mfma_f32_16x16x32_f16 v[40:43], v[68:71], v[80:83], v[40:43]
    v_mfma_f32_16x16x32_f16 v[44:47], v[72:75], v[80:83], v[44:47]
    v_mfma_f32_16x16x32_f16 v[48:51], v[76:79], v[80:83], v[48:51]
    @STAMP 4
    s_mul_i32 s20, s19, 3072
    v_add_u32 v2, s20, v39
    s_lshl_b32 s20, s19, 10
    v_add_u32 v3, s20, v39
    """)
    k("v_mov_b32 v26, v27")
    for r in range(40, 52, 2): k(f"v_pk_mul_f32 v[{r}:{r+1}], v[{r}:{r+1}], v[26:27]")
    k(f"""
    ds_write_b128 v2, v[40:43] offset:4096
    ds_write_b128 v2, v[44:47] offset:5120
    ds_write_b128 v2, v[48:51] offset:6144
    s_mul_i32 s3, s26, {KP_STRIDE}
    s_add_u32 s3, s3, {KP}
    v_lshlrev_b32 v1, 4, v0
    v_add_u32 v8, s3, v1
    s_waitcnt lgkmcnt(0)
    s_barrier
    s_cmp_eq_u32 s19, 3
    s_cbranch_scc1 P_KS
    ds_read_b128 v[40:43], v3 offset:4096
    ds_read_b128 v[44:47], v3 offset:{4096+3072}
    ds_read_b128 v[48:51], v3 offset:{4096+6144}
    ds_read_b128 v[4:7], v3 offset:{4096+9216}
    s_waitcnt lgkmcnt(2)
    v_pk_add_f32 v[40:41], v[40:41], v[44:45]
    v_pk_add_f32 v[42:43], v[42:43], v[46:47]
    s_waitcnt lgkmcnt(0)
    v_pk_add_f32 v[48:49], v[48:49], v[4:5]
    v_pk_add_f32 v[50:51], v[50:51], v[6:7]
    v_pk_add_f32 v[40:41], v[40:41], v[48:49]
    v_pk_add_f32 v[42:43], v[42:43], v[50:51]
    v_cvt_pk_bf16_f32 v40, v40, v41
    v_cvt_pk_bf16_f32 v42, v42, v43
    ds_write_b16 v35, v40 offset:{TB}
    ds_write_b16_d16_hi v36, v40 offset:{TB}
    ds_write_b16 v37, v42 offset:{TB}
    ds_write_b16_d16_hi v38, v42 offset:{TB}
    P_KS:
    s_waitcnt lgkmcnt(0)
    s_barrier
    @STAMP 5
    v_cmp_gt_u32 vcc, 0x60, v0
    s_and_saveexec_b64 s[22:23], vcc
    s_cbranch_execz P_KEND
    ds_read_b128 v[40:43], v1 offset:{TB}
    s_waitcnt lgkmcnt(0)
    global_store_dwordx4 v8, v[40:43], s[4:5]
    P_KEND:
    @FLUSH 6
    s_endpgm
    """)
    k.label("P_TR")
    PITCH = 144
    k(f"""
    s_load_dwordx2 s[8:9], s[0:1], {KA_U}
    s_load_dwordx4 s[16:19], s[0:1], {KA_WG}
    s_load_dwordx2 s[20:21], s[0:1], {KA_WD}
    s_sub_u32 s3, s2, {B_T}
    s_lshr_b32 s10, s3, 3                 ; lt (0..31)
    s_and_b32 s11, s3, 7                  ; dt (0..7)
    v_lshrrev_b32 v1, 3, v0               ; row 0..31
    v_and_b32 v2, 7, v0                   ; chunk
    s_lshl_b32 s12, s10, 16               ; lt*64*1024
    s_lshl_b32 s13, s11, 7
    s_add_u32 s12, s12, s13
    v_lshlrev_b32 v3, 10, v1
    v_lshl_add_u32 v3, v2, 4, v3
    v_add_u32 v3, s12, v3
    v_add_u32 v4, 0x8000, v3
    s_waitcnt lgkmcnt(0)
    global_load_dwordx4 v[8:11], v3, s[8:9]
    global_load_dwordx4 v[12:15], v4, s[8:9]
    v_lshrrev_b32 v41, 6, v0
    v_and_b32 v42, 63, v0
    s_lshl_b32 s14, s3, 13                ; 8 rows * 1024
    v_lshlrev_b32 v43, 11, v41
    v_lshl_add_u32 v43, v42, 4, v43
    v_add_u32 v43, s14, v43
    global_load_dwordx4 v[48:51], v43, s[8:9]
    global_load_dwordx4 v[52:55], v43, s[8:9] offset:1024
    s_setprio {LATE_PRIO}
    @WTOUCH
    v_mul_u32_u24 v5, {PITCH}, v1
    v_lshl_add_u32 v5, v2, 4, v5
    v_and_b32 v6, 15, v0                  ; lam
    v_bfe_u32 v7, v0, 4, 2                ; g
    v_lshrrev_b32 v16, 6, v0              ; w
    v_lshrrev_b32 v17, 2, v6              ; r = lam>>2
    v_lshl_add_u32 v17, v7, 3, v17        ; row = 8g + r
    v_mul_u32_u24 v17, {PITCH}, v17
    v_and_b32 v18, 3, v6
    v_lshl_add_u32 v17, v18, 3, v17       ; + c*8
    v_lshl_add_u32 v17, v16, 5, v17       ; + w*32 bytes
    """)
    if FUSE1:
        k(f"""
        s_setprio 3
        s_lshl_b32 s12, s10, 16
        s_lshl_b32 s13, s11, 12
        s_add_u32 s12, s12, s13
        s_add_u32 s12, s12, {XT0}
        v_lshl_add_u32 v19, v16, 4, v6
        v_lshlrev_b32 v19, 6, v19
        v_lshl_add_u32 v19, v7, 4, v19
        v_add_u32 v19, s12, v19
        v_add_u32 v44, 0x8000, v19
        """)
    else:
        k(f"""
    s_mul_i32 s12, s11, {64*XP}
    s_lshl_b32 s13, s10, 7
    s_add_u32 s12, s12, s13
    s_add_u32 s12, s12, {XT0}
    v_lshl_add_u32 v19, v16, 4, v6
    v_mul_u32_u24 v19, {XP}, v19
    v_lshl_add_u32 v19, v7, 4, v19
    v_add_u32 v19, s12, v19
        v_add_u32 v44, 64, v19
        """)
    k(f"""
    s_waitcnt vmcnt({5 if WTOUCH else 2})
    ds_write_b128 v5, v[8:11]
    ds_write_b128 v5, v[12:15] offset:{32*PITCH}
    s_waitcnt lgkmcnt(0)
    s_barrier
    ds_read_b64_tr_b16 v[8:9], v17
    ds_read_b64_tr_b16 v[10:11], v17 offset:{4*PITCH}
    ds_read_b64_tr_b16 v[12:13], v17 offset:{32*PITCH}
    ds_read_b64_tr_b16 v[14:15], v17 offset:{36*PITCH}
    s_waitcnt lgkmcnt(0)
    global_store_dwordx4 v19, v[8:11], s[4:5] {'sc1' if FUSE1 else PREP_X_POL}
    global_store_dwordx4 v44, v[12:15], s[4:5] {'sc1' if FUSE1 else PREP_X_POL}
    """)
    k(f"""
    v_mov_b32 v2, v42
    s_lshl_b32 s10, s3, 4
    v_lshlrev_b32 v4, 12, v41
    v_add_u32 v4, s10, v4                 ; w*4096 + wg*16
    v_add_u32 v5, {ST0}, v4
    v_add_u32 v6, {ST1}, v4
    s_waitcnt vmcnt({5 if WTOUCH else 2})
    """)
    for row, (base, sm, sq) in enumerate([(48, 20, 21), (52, 22, 23)]):
        for j in range(4):
            k(f"v_lshlrev_b32 v16, 16, v{base+j}")
            k(f"v_and_b32 v17, 0xffff0000, v{base+j}")
            if j == 0:
                k(f"v_add_f32 v{sm}, v16, v17")
                k(f"v_mul_f32 v{sq}, v16, v16")
            else:
                k(f"v_add_f32 v{sm}, v{sm}, v16")
                k(f"v_add_f32 v{sm}, v{sm}, v17")
                k(f"v_fmac_f32 v{sq}, v16, v16")
            k(f"v_fmac_f32 v{sq}, v17, v17")
    for sh in ("row_shr:1", "row_shr:2", "row_shr:4", "row_shr:8"):
        for r in range(20, 24):
            k(f"v_add_f32_dpp v{r}, v{r}, v{r} {sh} row_mask:0xf bank_mask:0xf bound_ctrl:0")
    for r in range(20, 24):
        k(f"v_add_f32_dpp v{r}, v{r}, v{r} row_bcast:15 row_mask:0xa bank_mask:0xf")
    for r in range(20, 24):
        k(f"v_add_f32_dpp v{r}, v{r}, v{r} row_bcast:31 row_mask:0xc bank_mask:0xf")
    k(f"""
    v_mov_b32 v24, 0
    v_mov_b32 v25, 0
    v_mov_b32 v26, 0
    v_mov_b32 v27, 0
    s_lshl_b32 s10, s3, 9
    s_add_u32 s10, s10, {ZR}
    v_and_b32 v7, 31, v0
    v_lshl_add_u32 v7, v7, 4, s10
    global_store_dwordx4 v7, v[24:27], s[4:5]
    v_cmp_eq_u32 vcc, 63, v2
    s_and_saveexec_b64 s[22:23], vcc
    global_store_dwordx4 v5, v[20:23], s[4:5] {'sc1' if FUSE1 else ''}
    global_store_dwordx4 v6, v[24:27], s[4:5]
    """)
    if FUSE1:
        k(f"""
        s_mov_b64 exec, -1
        s_and_b32 s10, s2, 3
        s_lshl_b32 s10, s10, 6
        v_mov_b32 v8, s10
        v_mov_b32 v9, 1
        v_cmp_eq_u32 vcc, 0, v0
        s_waitcnt vmcnt(0)
        s_barrier
        v_readfirstlane_b32 s10, v0
        s_cmp_lg_u32 s10, 0
        s_cbranch_scc1 P_TEND
        s_mov_b64 exec, 1
        global_atomic_add v10, v8, v9, s[28:29] sc0 sc1
        s_waitcnt vmcnt(0)
        v_readfirstlane_b32 s10, v10
        s_cmp_lg_u32 s10, {N_T // 4 - 1}
        s_cbranch_scc1 P_TEND
        v_mov_b32 v8, 8
        global_atomic_add v8, v9, s[28:29] sc1
        s_mov_b64 exec, -1
        v_lshlrev_b32 v8, 7, v0
        v_add_u32 v8, {GFB}, v8
        s_mov_b64 exec, {(1 << GFN) - 1 if GFN < 64 else -1}
        global_atomic_add v8, v9, s[4:5] sc1
        P_TEND:
        s_mov_b64 exec, -1
        s_setprio 0
        s_cmp_lt_u32 s2, {N_C}
        s_cbranch_scc1 P_C
        """)
    k("""
    @FLUSH 2
    s_endpgm
    """)
    k.label("P_W")
    WPITCH = 400
    k(f"""
    s_load_dwordx4 s[8:11], s[0:1], {KA_WG}
    s_sub_u32 s3, s2, {B_W}
    s_lshr_b32 s12, s3, 4                 ; ft
    s_and_b32 s13, s3, 15                 ; s
    """)
    k(f"""
    s_mul_i32 s14, s13, {32*F*2}
    s_mul_i32 s15, s12, 192
    s_add_u32 s14, s14, s15
    s_mul_i32 s16, s12, 12
    s_mov_b32 s17, 0x15555556
    """)
    k(f"v_mov_b32 v5, {F//8}")
    for i in range(2):
        k(f"""
        v_add_u32 v1, {256*i}, v0
        v_mul_hi_u32 v2, v1, s17
        v_mul_u32_u24 v3, 12, v2
        v_sub_u32 v3, v1, v3                  ; chunk
        v_mul_u32_u24 v4, {F*2}, v2
        v_lshl_add_u32 v4, v3, 4, v4
        v_add_u32 v{40+i}, s14, v4
        v_mul_u32_u24 v4, {WPITCH}, v2
        v_lshl_add_u32 v{42+i}, v3, 5, v4
        v_add_u32 v3, s16, v3
        v_cmp_gt_u32 s[{24+2*i}:{25+2*i}], v5, v3
        """)
    for r in range(8, 24): k(f"v_mov_b32 v{r}, 0")
    k(f"""
    v_cmp_gt_u32 vcc, 0x80, v0
    s_and_b64 s[26:27], s[26:27], vcc
    s_waitcnt lgkmcnt(0)
    s_mov_b64 s[28:29], exec
    s_mov_b64 exec, s[24:25]
    s_cbranch_execz P_W1
    global_load_dwordx4 v[8:11], v40, s[8:9]
    global_load_dwordx4 v[12:15], v40, s[10:11]
    P_W1:
    s_mov_b64 exec, s[26:27]
    s_cbranch_execz P_W2
    global_load_dwordx4 v[16:19], v41, s[8:9]
    global_load_dwordx4 v[20:23], v41, s[10:11]
    P_W2:
    s_setprio {LATE_PRIO}
    s_mov_b64 exec, s[28:29]
    s_waitcnt vmcnt(0)
    ds_write2_b32 v42, v8, v9 offset0:0 offset1:2
    ds_write2_b32 v42, v10, v11 offset0:4 offset1:6
    ds_write2_b32 v42, v12, v13 offset0:1 offset1:3
    ds_write2_b32 v42, v14, v15 offset0:5 offset1:7
    s_and_saveexec_b64 s[28:29], vcc
    s_cbranch_execz P_W3
    ds_write2_b32 v43, v16, v17 offset0:0 offset1:2
    ds_write2_b32 v43, v18, v19 offset0:4 offset1:6
    ds_write2_b32 v43, v20, v21 offset0:1 offset1:3
    ds_write2_b32 v43, v22, v23 offset0:5 offset1:7
    P_W3:
    s_mov_b64 exec, s[28:29]
    v_and_b32 v1, 15, v0
    v_bfe_u32 v2, v0, 4, 2
    v_lshrrev_b32 v3, 2, v1
    v_lshl_add_u32 v3, v2, 2, v3
    v_mul_u32_u24 v3, {WPITCH}, v3
    v_and_b32 v4, 3, v1
    v_lshl_add_u32 v3, v4, 3, v3
    v_readfirstlane_b32 s18, v0
    s_lshr_b32 s18, s18, 6                ; w
    s_lshl_b32 s19, s18, 7
    s_mov_b32 s20, 32
    s_cmp_eq_u32 s18, 3
    s_cselect_b32 s19, 96, s19
    s_cselect_b32 s20, 128, s20
    v_add_u32 v3, s19, v3
    v_add_u32 v4, s20, v3
    v_add_u32 v5, s20, v4
    s_lshl_b32 s21, s12, 2
    s_add_u32 s21, s21, s18
    s_lshl_b32 s21, s21, 4
    s_add_u32 s21, s21, s13
    s_mul_i32 s21, s21, 3072
    s_add_u32 s21, s21, {WP}
    v_and_b32 v6, 63, v0
    v_lshlrev_b32 v6, 4, v6
    v_add_u32 v6, s21, v6
    v_add_u32 v7, 0x400, v6
    v_add_u32 v24, 0x800, v6
    s_waitcnt lgkmcnt(0)
    s_barrier
    ds_read_b64_tr_b16 v[8:9], v3
    ds_read_b64_tr_b16 v[10:11], v3 offset:{16*WPITCH}
    ds_read_b64_tr_b16 v[12:13], v4
    ds_read_b64_tr_b16 v[14:15], v4 offset:{16*WPITCH}
    ds_read_b64_tr_b16 v[16:17], v5
    ds_read_b64_tr_b16 v[18:19], v5 offset:{16*WPITCH}
    s_waitcnt lgkmcnt(0)
    global_store_dwordx4 v6, v[8:11], s[4:5] {PREP_W_POL}
    global_store_dwordx4 v7, v[12:15], s[4:5] {PREP_W_POL}
    global_store_dwordx4 v24, v[16:19], s[4:5] {PREP_W_POL}
    @FLUSH 2
    s_endpgm
    """)
    k.label("P_D")
    DPITCH = 272
    k(f"""
    s_load_dwordx2 s[8:9], s[0:1], {KA_WD}
    s_sub_u32 s3, s2, {B_D}
    s_lshr_b32 s12, s3, 2                 ; ks 0..43
    s_and_b32 s13, s3, 3                  ; dq
    v_lshrrev_b32 v1, 4, v0               ; row 0..15 (+16)
    v_and_b32 v2, 15, v0                  ; chunk
    s_lshl_b32 s14, s12, 15               ; ks*32*1024
    s_lshl_b32 s15, s13, 8
    s_add_u32 s14, s14, s15
    v_lshlrev_b32 v3, 10, v1
    v_lshl_add_u32 v3, v2, 4, v3
    v_add_u32 v3, s14, v3
    v_add_u32 v4, 0x4000, v3
    """)
    for r in range(8, 16): k(f"v_mov_b32 v{r}, 0")
    k(f"""
    s_waitcnt lgkmcnt(0)
    s_cmp_ge_u32 s12, 43
    s_cbranch_scc1 P_D1
    global_load_dwordx4 v[8:11], v3, s[8:9]
    global_load_dwordx4 v[12:15], v4, s[8:9]
    P_D1:
    s_setprio {LATE_PRIO}
    v_bfe_u32 v5, v1, 1, 2                ; g
    v_lshrrev_b32 v6, 3, v1               ; dw (0/1)
    v_and_b32 v7, 1, v1
    v_lshl_add_u32 v7, v6, 1, v7
    v_lshl_add_u32 v7, v5, 3, v7          ; rho
    v_mul_u32_u24 v7, {DPITCH}, v7
    v_lshl_add_u32 v7, v2, 4, v7
    v_and_b32 v1, 15, v0
    v_bfe_u32 v2, v0, 4, 2
    v_lshrrev_b32 v16, 6, v0
    v_lshrrev_b32 v3, 2, v1
    v_lshl_add_u32 v3, v2, 3, v3          ; row = 8g + r
    v_mul_u32_u24 v3, {DPITCH}, v3
    v_and_b32 v4, 3, v1
    v_lshl_add_u32 v3, v4, 3, v3          ; + c*8 bytes (4 d)
    v_lshl_add_u32 v3, v16, 6, v3         ; + w*64
    s_lshl_b32 s16, s13, 3
    v_lshl_add_u32 v17, v16, 1, s16
    v_mul_u32_u24 v17, {NKS2*1024}, v17
    v_and_b32 v18, 63, v0
    v_lshl_add_u32 v17, v18, 4, v17
    s_lshl_b32 s16, s12, 10
    s_add_u32 s16, s16, {WD}
    v_add_u32 v17, s16, v17
    v_add_u32 v18, {NKS2*1024}, v17
    s_waitcnt vmcnt(0)
    ds_write_b128 v7, v[8:11]
    ds_write_b128 v7, v[12:15] offset:{4*DPITCH}
    s_waitcnt lgkmcnt(0)
    s_barrier
    ds_read_b64_tr_b16 v[8:9], v3
    ds_read_b64_tr_b16 v[10:11], v3 offset:{4*DPITCH}
    ds_read_b64_tr_b16 v[12:13], v3 offset:32
    ds_read_b64_tr_b16 v[14:15], v3 offset:{4*DPITCH+32}
    s_waitcnt lgkmcnt(0)
    global_store_dwordx4 v17, v[8:11], s[4:5] {PREP_W_POL}
    global_store_dwordx4 v18, v[12:15], s[4:5] {PREP_W_POL}
    @FLUSH 2
    s_endpgm
    """)
    k.label("P_C")
    k(f"""
    s_load_dwordx4 s[8:11], s[0:1], {KA_WG}
    s_sub_u32 s3, s2, {B_C}
    s_and_b32 s12, s3, 1                  ; mat
    s_lshr_b32 s13, s3, 1                 ; cb 0..44
    v_lshrrev_b32 v1, 2, v0
    v_and_b32 v2, 3, v0                   ; chunk
    s_lshl_b32 s14, s13, 6
    v_mul_u32_u24 v4, {F*2}, v1
    v_lshl_add_u32 v4, v2, 4, v4
    v_add_u32 v4, s14, v4
    """)
    for r in range(8, 16): k(f"v_mov_b32 v{r}, 0")
    k(f"""
    s_waitcnt lgkmcnt(0)
    s_cmp_eq_u32 s12, 1
    s_cselect_b32 s8, s10, s8
    s_cselect_b32 s9, s11, s9
    s_cmp_ge_u32 s13, 43
    s_cbranch_scc1 P_C2
    """)
    for i in range(8):
        k(f"global_load_dwordx4 v[{16+4*i}:{19+4*i}], v4, s[8:9]")
        if i < 7: k(f"v_add_u32 v4, {64*F*2}, v4")
    k(f"s_setprio {LATE_PRIO}")
    for i in range(8):
        k(f"s_waitcnt vmcnt({7-i})")
        for j in range(4):
            k(f"v_lshlrev_b32 v6, 16, v{16+4*i+j}")
            k(f"v_and_b32 v7, 0xffff0000, v{16+4*i+j}")
            k(f"v_pk_add_f32 v[{8+2*j}:{9+2*j}], v[{8+2*j}:{9+2*j}], v[6:7]")
    for sh in ("row_shr:4", "row_shr:8"):
        for r in range(8, 16):
            k(f"v_add_f32_dpp v{r}, v{r}, v{r} {sh} row_mask:0xf bank_mask:0xf bound_ctrl:0")
    k(f"""
    P_C2:
    v_lshrrev_b32 v6, 4, v0
    v_lshlrev_b32 v6, 7, v6
    v_lshl_add_u32 v6, v2, 5, v6
    v_and_b32 v7, 12, v0
    v_cmp_eq_u32 vcc, 12, v7
    s_and_saveexec_b64 s[46:47], vcc
    ds_write_b128 v6, v[8:11]
    ds_write_b128 v6, v[12:15] offset:16
    s_mov_b64 exec, s[46:47]
    s_waitcnt lgkmcnt(0)
    s_barrier
    v_cmp_gt_u32 vcc, 32, v0
    s_and_saveexec_b64 s[46:47], vcc
    s_cbranch_execz P_C3
    v_lshlrev_b32 v6, 2, v0
    """)
    for i in range(16):
        k(f"ds_read_b32 v{16+i}, v6 offset:{128*i}")
    k(f"""
    s_mul_i32 s14, s13, 0x5556
    s_lshr_b32 s14, s14, 16               ; ft
    s_mul_i32 s15, s14, 3
    s_sub_u32 s15, s13, s15               ; j
    s_mul_i32 s16, s15, 3
    s_add_u32 s17, s15, 9
    v_lshrrev_b32 v5, 3, v0               ; dw
    v_add_u32 v7, s16, v5
    v_mov_b32 v8, s17
    v_cmp_eq_u32 vcc, 3, v5
    v_cndmask_b32 v7, v7, v8, vcc         ; w*3+tau
    s_mul_i32 s14, s14, 12
    v_add_u32 v7, s14, v7
    v_lshlrev_b32 v7, 4, v7
    v_bfe_u32 v8, v0, 1, 2
    v_lshl_add_u32 v7, v8, 2, v7
    v_and_b32 v8, 1, v0
    v_add_u32 v7, v7, v8
    s_lshl_b32 s14, s12, 1
    v_add_u32 v7, s14, v7
    v_lshlrev_b32 v7, 2, v7
    v_add_u32 v7, {CSUM}, v7
    s_waitcnt lgkmcnt(0)
    """)
    for st in (8, 4, 2, 1):
        for i in range(st):
            k(f"v_add_f32 v{16+i}, v{16+i}, v{16+i+st}")
    k(f"""
    global_store_dword v7, v16, s[4:5]
    P_C3:
    @FLUSH 2
    s_endpgm
    """)
    return k, dict(vgpr=96, sgpr=48, accum=96, grid=PREP_WGS, block=256, lds=PREP_LDS)


def stats_pair(k, sa, qa, sb, qb, t, keep=None):
    for s_, q_ in ((sa, qa), (sb, qb)):
        k(f"""
        v_mul_f32 v{s_}, s43, v{s_}
        v_mul_f32 v{q_}, s43, v{q_}
        v_fma_f32 v{q_}, -v{s_}, v{s_}, v{q_}
        v_max_f32 v{q_}, 0, v{q_}
        v_cvt_pk_bf16_f32 v{q_}, v{s_}, v{q_}
        v_lshlrev_b32 v{s_}, 16, v{q_}
        v_and_b32 v{q_}, 0xffff0000, v{q_}
        v_add_f32 v{q_}, s44, v{q_}
        """)
    k(f"""
    v_cvt_pk_bf16_f32 v{t}, v{qa}, v{qb}
    v_lshlrev_b32 v{qa}, 16, v{t}
    v_and_b32 v{qb}, 0xffff0000, v{t}
    v_sqrt_f32 v{qa}, v{qa}
    v_sqrt_f32 v{qb}, v{qb}
    v_cvt_pk_bf16_f32 v{t}, v{qa}, v{qb}
    v_lshlrev_b32 v{keep[0] if keep else qa}, 16, v{t}
    v_and_b32 v{keep[1] if keep else qb}, 0xffff0000, v{t}
    v_rcp_f32 v{qa}, v{keep[0] if keep else qa}
    v_rcp_f32 v{qb}, v{keep[1] if keep else qb}
    """)


def conv_stats_norm(k, wait_x):
    for i in range(4):
        b = 16 + 4 * i
        k(f"""
        v_pk_mul_f32 v[{b}:{b+1}], v[{b}:{b+1}], s[46:47]
        v_pk_mul_f32 v[{b+2}:{b+3}], v[{b+2}:{b+3}], s[46:47]
        v_fma_f32 v{b+1}, -v{b}, v{b}, v{b+1}
        v_fma_f32 v{b+3}, -v{b+2}, v{b+2}, v{b+3}
        v_cvt_pk_bf16_f32 v{b}, v{b}, v{b+2}          ; (m_a, m_b)
        v_cvt_pk_bf16_f32 v{b+2}, v{b+1}, v{b+3}
        v_and_b32 v{b+1}, 0xffff0000, v{b}
        v_lshlrev_b32 v{b}, 16, v{b}                  ; v[b:b+1] = (m_a, m_b) f32
        v_and_b32 v{b+3}, 0xffff0000, v{b+2}
        v_lshlrev_b32 v{b+2}, 16, v{b+2}
        v_max_f32 v{b+2}, 0, v{b+2}
        v_max_f32 v{b+3}, 0, v{b+3}
        v_pk_add_f32 v[{b+2}:{b+3}], v[{b+2}:{b+3}], s[44:45]
        v_cvt_pk_bf16_f32 v{b+2}, v{b+2}, v{b+3}
        v_and_b32 v{b+3}, 0xffff0000, v{b+2}
        v_lshlrev_b32 v{b+2}, 16, v{b+2}
        v_sqrt_f32 v{b+2}, v{b+2}
        v_sqrt_f32 v{b+3}, v{b+3}
        """)
    for i in range(4):
        b = 16 + 4 * i
        k(f"""
        v_cvt_pk_bf16_f32 v{b+2}, v{b+2}, v{b+3}
        v_and_b32 v{b+3}, 0xffff0000, v{b+2}
        v_lshlrev_b32 v{b+2}, 16, v{b+2}
        v_rcp_f32 v{b+2}, v{b+2}
        v_rcp_f32 v{b+3}, v{b+3}
        """)
    k(wait_x)
    for j in range(4):
        b = 16 + 4 * j
        k(f"""
        v_lshlrev_b32 v40, 16, v{12+j}
        v_and_b32 v41, 0xffff0000, v{12+j}
        v_pk_add_f32 v[40:41], v[40:41], v[{b}:{b+1}] neg_lo:[0,1] neg_hi:[0,1]
        v_cvt_pk_bf16_f32 v41, v40, v41
        v_lshlrev_b32 v40, 16, v41
        v_and_b32 v41, 0xffff0000, v41
        v_pk_mul_f32 v[40:41], v[40:41], v[{b+2}:{b+3}]
        v_cvt_pk_bf16_f32 v{32+j}, v40, v41
        """)
    k(f"""
    ds_write_b128 v1, v[32:35] offset:{CSU + 16*28}
    ds_write2_b64 v1, v[32:33], v[34:35] offset0:57 offset1:58
    """)

def gen_f1():
    k = Kern("f1")
    WPITCH = 400; DPITCH = 272
    US = 0
    KS = CRED; TB = KS + 2304
    k(f"""
    f1_kernel:
    @KID 0
    @INIT
    s_load_dwordx2 s[4:5], s[0:1], {KA_WS}
    s_load_dwordx2 s[28:29], s[0:1], {KA_DBG}
    @CODEPF
    s_cmp_lt_u32 s2, {N_T}
    s_cbranch_scc1 P_TR
    s_cmp_ge_u32 s2, {N_T + N_K}
    s_cbranch_scc1 CONV_END
    """)
    kk = Remap(k, 64, {19: 33, 20: 34, 23: 35, 24: 36, 3: 37, 22: 38, 18: 45})
    kk(f"""
    @KID 1
    s_load_dwordx4 s[8:11], s[0:1], {KA_LOGA}
    s_load_dwordx4 s[12:15], s[0:1], {KA_CRE}
    s_load_dwordx2 s[16:17], s[0:1], {KA_LOGDT}
    s_load_dwordx2 s[6:7], s[0:1], {KA_DSKIP}
    s_load_dwordx4 s[48:51], s[0:1], {KA_WG}
    s_load_dwordx2 s[52:53], s[0:1], {KA_WD}
    s_sub_u32 s2, s2, {N_T}
    s_mov_b32 s40, {fl(L2E_HI)}
    s_mov_b32 s41, {fl(L2E_LO)}
    s_mov_b32 s42, {fl(LN2)}
    v_lshrrev_b32 v1, 1, v0
    v_and_b32 v1, 0x60, v1
    v_and_or_b32 v1, v0, 31, v1           ; n = 32 w + (lane & 31)
    s_lshl_b32 s3, s2, 8
    v_lshl_add_u32 v2, v1, 1, s3
    s_lshl_b32 s18, s2, 1
    v_mov_b32 v3, s18
    v_readfirstlane_b32 s19, v0
    s_lshr_b32 s19, s19, 6                ; wave
    v_and_b32 v20, 15, v0                 ; i / j
    v_bfe_u32 v21, v0, 4, 2               ; g
    ; hi0 = 128*(i>>3) + (i&7)
    v_lshrrev_b32 v23, 3, v20
    v_and_b32 v24, 7, v20
    v_lshl_add_u32 v23, v23, 7, v24
    v_cvt_f32_u32 v30, v23
    ; hi1 = (g''<2 ? 256+2g'' : 256*g'') + 128*((i>>1)&1) + 4*(i&1)
    v_lshrrev_b32 v23, 2, v20
    v_lshlrev_b32 v24, 1, v23
    v_add_u32 v24, 0x100, v24
    v_lshlrev_b32 v25, 8, v23
    v_cmp_gt_u32 vcc, 2, v23
    v_cndmask_b32 v24, v25, v24, vcc
    v_bfe_u32 v25, v20, 1, 1
    v_lshl_add_u32 v24, v25, 7, v24
    v_and_b32 v25, 1, v20
    v_lshl_add_u32 v24, v25, 2, v24
    v_cvt_f32_u32 v31, v24
    v_lshlrev_b32 v23, 7, v20
    v_add_u32 v23, 0x400, v23
    v_cvt_f32_u32 v32, v23                ; hi2
    v_lshlrev_b32 v23, 3, v20
    v_cvt_f32_u32 v33, v23                ; lo
    s_lshl_b32 s20, s19, 9
    v_lshl_add_u32 v34, v21, 6, s20
    v_lshrrev_b32 v23, 1, v21
    v_and_b32 v24, 1, v21
    v_lshlrev_b32 v24, 2, v24
    v_lshl_add_u32 v35, v23, 7, v24
    v_lshl_add_u32 v35, v20, 3, v35
    v_mov_b32 v36, 1
    v_mov_b32 v37, 2
    s_cmp_eq_u32 s19, 0
    s_cbranch_scc1 F_KA
    v_lshl_add_u32 v35, v21, 6, v20
    v_add_u32 v35, 0x200, v35
    v_mov_b32 v36, 16
    v_mov_b32 v37, 32
    s_cmp_lg_u32 s19, 1
    s_cbranch_scc1 F_KA
    v_lshl_add_u32 v23, v20, 2, v21
    v_add_u32 v23, 0x100, v23             ; seg1: 256 + g' + 4j ; o1=2 o2=64
    v_lshlrev_b32 v24, 6, v21
    v_lshl_add_u32 v24, v20, 1, v24
    v_add_u32 v24, 0x100, v24             ; seg2: 384 + 64(g'-2) + 2j ; o1=1 o2=32
    v_cmp_gt_u32 vcc, 2, v21
    v_cndmask_b32 v35, v24, v23, vcc
    v_cndmask_b32 v36, 1, 2, vcc
    v_cndmask_b32 v37, 32, 64, vcc
    F_KA:
    v_add_u32 v38, v36, v37
    v_add_lshl_u32 v36, v36, v35, 1
    v_add_lshl_u32 v37, v37, v35, 1
    v_add_lshl_u32 v38, v38, v35, 1
    v_lshlrev_b32 v35, 1, v35
    v_and_b32 v39, 63, v0
    v_lshlrev_b32 v39, 4, v39             ; lane*16
    s_waitcnt lgkmcnt(0)
    global_load_ushort v84, v2, s[8:9]
    @GFLOAD
    global_load_ushort v85, v3, s[16:17]
    global_load_ushort v86, v2, s[10:11]
    global_load_ushort v87, v2, s[12:13]
    global_load_ushort v88, v2, s[14:15]
    v_mov_b32 v89, v1
    """)
    k(f"""
    s_mov_b32 s30, 0
    s_mov_b32 s31, {ST0}
    s_mov_b32 s32, {X1T}
    s_mov_b32 s18, {TB}
    """)
    conv_setup(k)
    k("s_load_dword s20, s[6:7], s16")
    srd(k, 8, 4, WS_BYTES)
    conv_p3(k, kzero=False)
    k(f"""
    v_and_b32 v61, 3, v0
    v_mov_b32 v62, 0
    v_lshrrev_b32 v60, 2, v0
    v_lshlrev_b32 v60, 15, v60
    v_lshl_add_u32 v60, v61, 4, v60       ; x voffset
    s_lshl_b32 s13, s2, 6
    s_add_u32 s13, s13, {XT0}
    """)
    k("s_waitcnt vmcnt(0)")
    kk(f"""
    v_mov_b32 v4, v84
    v_mov_b32 v8, v85
    v_mov_b32 v5, v86
    v_mov_b32 v6, v87
    v_mov_b32 v7, v88
    v_mov_b32 v1, v89
    @STAMP 10
    v_lshlrev_b32 v4, 16, v4
    v_lshlrev_b32 v8, 16, v8
    """)
    exp_acc(kk, 10, 8, 16, 17)
    exp_acc(kk, 11, 4, 18, 19)
    kk(f"""
    v_cvt_pk_bf16_f32 v10, v10, v11
    v_and_b32 v11, 0xffff0000, v10        ; eA
    v_lshlrev_b32 v10, 16, v10            ; dt
    v_mul_f32 v12, v11, v10
    v_mul_f32 v12, s40, v12
    v_sub_f32 v12, 0, v12
    v_lshlrev_b32 v5, 16, v5
    v_lshlrev_b32 v6, 16, v6
    v_lshlrev_b32 v7, 16, v7
    v_mul_f32 v13, v5, v10
    v_mul_f32 v13, 0.15915494, v13
    v_add_f32 v10, v10, v10
    v_mul_f32 v14, v6, v10                ; 2*Cre*dt
    v_mul_f32 v15, v7, v10                ; 2*Cim*dt
    v_lshlrev_b32 v9, 4, v1
    ds_write_b128 v9, v[12:15] offset:{KS}
    v_max3_f32 v16, |v14|, |v15|, 0
    v_max_f32_dpp v16, v16, v16 row_shr:1 row_mask:0xf bank_mask:0xf
    v_max_f32_dpp v16, v16, v16 row_shr:2 row_mask:0xf bank_mask:0xf
    v_max_f32_dpp v16, v16, v16 row_shr:4 row_mask:0xf bank_mask:0xf
    v_max_f32_dpp v16, v16, v16 row_shr:8 row_mask:0xf bank_mask:0xf
    v_max_f32_dpp v16, v16, v16 row_bcast:15 row_mask:0xa bank_mask:0xf
    v_readlane_b32 s23, v16, 31
    s_mov_b32 s20, 0
    @STAMP 11
    v_mov_b32 v16, s23
    v_bfe_u32 v16, v16, 23, 8
    v_max_u32 v16, 14, v16
    v_sub_u32 v17, 0x8c, v16
    v_cvt_f32_i32 v29, v17                ; kf = 140 - e'
    v_mov_b32 v28, 0
    v_subrev_u32 v16, 13, v16
    v_lshlrev_b32 v27, 23, v16            ; Sinv
    F_KLOOP:
    ds_read_b128 v[52:55], v34 offset:{KS}
    ds_read_b128 v[56:59], v34 offset:{KS+16}
    ds_read_b128 v[60:63], v34 offset:{KS+32}
    ds_read_b128 v[64:67], v34 offset:{KS+48}
    v_add_u32 v34, 0x100, v34
    """)
    for nn in range(4):
        p = 52 + 4 * nn
        kk(f"""
        s_waitcnt lgkmcnt({3-nn})
        v_pk_mul_f32 v[2:3], v[30:31], v[{p}:{p+1}] op_sel_hi:[1,0]
        v_pk_fma_f32 v[4:5], v[32:33], v[{p}:{p+1}], v[28:29] op_sel_hi:[1,0,1]
        v_pk_mul_f32 v[6:7], v[30:31], v[{p}:{p+1}] op_sel:[0,1] op_sel_hi:[1,1]
        v_pk_mul_f32 v[8:9], v[32:33], v[{p}:{p+1}] op_sel:[0,1] op_sel_hi:[1,1]
        v_exp_f32 v2, v2
        v_exp_f32 v3, v3
        v_exp_f32 v4, v4
        v_exp_f32 v5, v5
        v_fract_f32 v6, v6
        v_fract_f32 v7, v7
        v_fract_f32 v8, v8
        v_fract_f32 v9, v9
        v_cos_f32 v10, v6
        v_sin_f32 v11, v6
        v_cos_f32 v12, v7
        v_sin_f32 v13, v7
        v_cos_f32 v14, v8
        v_sin_f32 v15, v8
        v_cos_f32 v16, v9
        v_sin_f32 v17, v9
        v_pk_mul_f32 v[10:11], v[10:11], v[2:3] op_sel_hi:[1,0]
        v_pk_mul_f32 v[12:13], v[12:13], v[2:3] op_sel:[0,1] op_sel_hi:[1,1]
        v_pk_mul_f32 v[14:15], v[14:15], v[4:5] op_sel_hi:[1,0]
        v_pk_mul_f32 v[16:17], v[16:17], v[4:5] op_sel:[0,1] op_sel_hi:[1,1]
        v_cvt_pk_f16_f32 v{68+nn}, v10, v11
        v_cvt_pk_f16_f32 v{72+nn}, v12, v13
        v_cvt_pk_f16_f32 v{76+nn}, v14, v15
        v_pk_mul_f32 v[18:19], v[16:17], v[{p+2}:{p+3}] op_sel_hi:[1,0]
        v_pk_fma_f32 v[18:19], v[16:17], v[{p+2}:{p+3}], v[18:19] op_sel:[1,1,0] op_sel_hi:[0,1,1] neg_lo:[1,0,0]
        v_cvt_pk_f16_f32 v{80+nn}, v18, -v19
        """)
    kk(f"""
    s_cmp_eq_u32 s20, 1
    s_cbranch_scc1 F_KL2
    v_mfma_f32_16x16x32_f16 v[40:43], v[68:71], v[80:83], 0
    v_mfma_f32_16x16x32_f16 v[44:47], v[72:75], v[80:83], 0
    v_mfma_f32_16x16x32_f16 v[48:51], v[76:79], v[80:83], 0
    s_mov_b32 s20, 1
    s_branch F_KLOOP
    F_KL2:
    v_mfma_f32_16x16x32_f16 v[40:43], v[68:71], v[80:83], v[40:43]
    v_mfma_f32_16x16x32_f16 v[44:47], v[72:75], v[80:83], v[44:47]
    v_mfma_f32_16x16x32_f16 v[48:51], v[76:79], v[80:83], v[48:51]
    @STAMP 12
    s_mul_i32 s20, s19, 3072
    v_add_u32 v2, s20, v39
    s_lshl_b32 s20, s19, 10
    v_add_u32 v3, s20, v39
    v_mov_b32 v26, v27
    """)
    for r in range(40, 52, 2): kk(f"v_pk_mul_f32 v[{r}:{r+1}], v[{r}:{r+1}], v[26:27]")
    kk(f"""
    ds_write_b128 v2, v[40:43] offset:{KS+4096}
    ds_write_b128 v2, v[44:47] offset:{KS+5120}
    ds_write_b128 v2, v[48:51] offset:{KS+6144}
    """)
    k(f"""
    s_cmp_lg_u32 s17, 3
    s_cbranch_scc1 F1_GO
    s_mov_b32 s26, 0
    F1_CHK:
    global_load_dword v59, v165, s[4:5] sc1
    s_waitcnt vmcnt(0)
    v_sub_u32 v59, v59, v164
    v_cmp_le_u32 vcc, 4, v59
    s_cmp_lg_u64 vcc, 0
    s_cbranch_scc1 F1_GO
    s_add_u32 s26, s26, 1
    s_cmp_ge_u32 s26, {SPIN_MAX >> 2}
    s_cbranch_scc1 F1_GO
    s_sleep {F1_SLEEP}
    s_and_b32 s21, s26, 63
    s_cmp_lg_u32 s21, 0
    s_cbranch_scc1 F1_CHK
    global_load_dword v59, v62, s[28:29] offset:8 sc1
    s_waitcnt vmcnt(0)
    v_cmp_gt_u32 vcc, 4, v59
    s_cmp_lg_u64 vcc, 0
    s_cbranch_scc1 F1_CHK
    F1_GO:
    s_waitcnt lgkmcnt(0)
    s_barrier
    @STAMP 2
    buffer_load_dwordx4 v[16:19], v1, s[8:11], s31 offen {F1_LD}
    s_add_u32 s31, s31, 0x1000
    buffer_load_dwordx4 v[20:23], v1, s[8:11], s31 offen {F1_LD}
    s_add_u32 s31, s31, 0x1000
    buffer_load_dwordx4 v[24:27], v1, s[8:11], s31 offen {F1_LD}
    s_add_u32 s31, s31, 0x1000
    buffer_load_dwordx4 v[28:31], v1, s[8:11], s31 offen {F1_LD}
    buffer_load_dwordx4 v[12:15], v60, s[8:11], s13 offen {F1_LD}
    """)
    kk(f"""
    s_cmp_eq_u32 s19, 3
    s_cbranch_scc1 F_KS
    ds_read_b128 v[40:43], v3 offset:{KS+4096}
    ds_read_b128 v[44:47], v3 offset:{KS+4096+3072}
    ds_read_b128 v[48:51], v3 offset:{KS+4096+6144}
    ds_read_b128 v[4:7], v3 offset:{KS+4096+9216}
    s_waitcnt lgkmcnt(2)
    v_pk_add_f32 v[40:41], v[40:41], v[44:45]
    v_pk_add_f32 v[42:43], v[42:43], v[46:47]
    s_waitcnt lgkmcnt(0)
    v_pk_add_f32 v[48:49], v[48:49], v[4:5]
    v_pk_add_f32 v[50:51], v[50:51], v[6:7]
    v_pk_add_f32 v[40:41], v[40:41], v[48:49]
    v_pk_add_f32 v[42:43], v[42:43], v[50:51]
    v_cvt_pk_bf16_f32 v40, v40, v41
    v_cvt_pk_bf16_f32 v42, v42, v43
    ds_write_b16 v35, v40 offset:{TB}
    ds_write_b16_d16_hi v36, v40 offset:{TB}
    ds_write_b16 v37, v42 offset:{TB}
    ds_write_b16_d16_hi v38, v42 offset:{TB}
    F_KS:
    s_waitcnt lgkmcnt(0)
    s_barrier
    """)
    k0 = k; k = Remap2(UnitS(k0), {**{1: 84, 2: 85, 6: 86, 7: 87, 8: 88, 9: 89, 10: 90, 11: 91}, **{i: i + 128 for i in range(16, 32)}, **{i: i + 119 for i in range(41, 48)}})
    for r in list(range(16, 32)) + list(range(41, 48)): k(f"v_mov_b32 v{r}, 0")
    k(f"""
    s_mov_b32 s54, 2
    s_cmp_ge_u32 s2, {N_W + N_D}
    s_cbranch_scc1 U_LDONE
    s_cmp_ge_u32 s2, {N_W}
    s_cbranch_scc1 U_LD
    s_mov_b32 s54, 0
    s_lshr_b32 s12, s2, 4                 ; ft
    s_and_b32 s13, s2, 15                 ; s
    s_mul_i32 s14, s13, {32*F*2}
    s_mul_i32 s15, s12, 192
    s_add_u32 s14, s14, s15
    s_mul_i32 s16, s12, 12
    s_mov_b32 s17, 0x15555556
    v_mov_b32 v11, {F//8}
    """)
    for i in range(2):
        k(f"""
        v_add_u32 v1, {256*i}, v0
        v_mul_hi_u32 v2, v1, s17
        v_mul_u32_u24 v6, 12, v2
        v_sub_u32 v6, v1, v6                  ; chunk
        v_mul_u32_u24 v7, {F*2}, v2
        v_lshl_add_u32 v7, v6, 4, v7
        v_add_u32 v{8+i}, s14, v7
        v_mul_u32_u24 v7, {WPITCH}, v2
        v_lshl_add_u32 v{41+i}, v6, 5, v7
        v_add_u32 v6, s16, v6
        v_cmp_gt_u32 s[{24+2*i}:{25+2*i}], v11, v6
        """)
    k(f"""
    s_mov_b64 exec, s[24:25]
    s_cbranch_execz U_W1
    global_load_dwordx4 v[144:147], v8, s[48:49]
    global_load_dwordx4 v[148:151], v8, s[50:51]
    U_W1:
    s_mov_b64 exec, -1
    s_cmp_ge_u32 s33, 2
    s_cbranch_scc1 U_W2
    s_mov_b64 exec, s[26:27]
    s_cbranch_execz U_W2
    global_load_dwordx4 v[152:155], v9, s[48:49]
    global_load_dwordx4 v[156:159], v9, s[50:51]
    U_W2:
    s_mov_b64 exec, -1
    v_add_u32 v41, {US}, v41
    v_add_u32 v42, {US}, v42
    v_lshrrev_b32 v6, 2, v3
    v_lshl_add_u32 v6, v4, 2, v6
    v_mul_u32_u24 v6, {WPITCH}, v6
    v_and_b32 v7, 3, v3
    v_lshl_add_u32 v6, v7, 3, v6
    s_lshl_b32 s18, s33, 7
    s_mov_b32 s19, 32
    s_cmp_eq_u32 s33, 3
    s_cselect_b32 s18, 96, s18
    s_cselect_b32 s19, 128, s19
    s_add_u32 s18, s18, {US}
    v_add_u32 v43, s18, v6
    v_add_u32 v44, s19, v43
    v_add_u32 v45, s19, v44
    s_lshl_b32 s21, s12, 2
    s_add_u32 s21, s21, s33
    s_lshl_b32 s21, s21, 4
    s_add_u32 s21, s21, s13
    s_mul_i32 s21, s21, 3072
    s_add_u32 s21, s21, {WP}
    v_lshl_add_u32 v46, v5, 4, s21
    s_branch U_LDONE
    U_LD:
    s_mov_b32 s54, 1
    s_sub_u32 s3, s2, {N_W}
    s_lshr_b32 s12, s3, 2                 ; ks
    s_and_b32 s13, s3, 3                  ; dq
    v_lshrrev_b32 v1, 4, v0               ; row 0..15 (+16)
    s_lshl_b32 s14, s12, 15
    s_lshl_b32 s15, s13, 8
    s_add_u32 s14, s14, s15
    v_lshlrev_b32 v6, 10, v1
    v_lshl_add_u32 v6, v3, 4, v6
    v_add_u32 v6, s14, v6
    v_add_u32 v7, 0x4000, v6
    s_cmp_ge_u32 s12, 43
    s_cbranch_scc1 U_D1
    global_load_dwordx4 v[144:147], v6, s[52:53]
    global_load_dwordx4 v[148:151], v7, s[52:53]
    U_D1:
    v_bfe_u32 v8, v1, 1, 2
    v_lshrrev_b32 v9, 3, v1
    v_and_b32 v10, 1, v1
    v_lshl_add_u32 v10, v9, 1, v10
    v_lshl_add_u32 v10, v8, 3, v10        ; rho
    v_mul_u32_u24 v10, {DPITCH}, v10
    v_lshl_add_u32 v10, v3, 4, v10
    v_add_u32 v41, {US}, v10
    v_lshrrev_b32 v6, 2, v3
    v_lshl_add_u32 v6, v4, 3, v6
    v_mul_u32_u24 v6, {DPITCH}, v6
    v_and_b32 v7, 3, v3
    v_lshl_add_u32 v6, v7, 3, v6
    s_lshl_b32 s18, s33, 6
    s_add_u32 s18, s18, {US}
    v_add_u32 v43, s18, v6
    s_lshl_b32 s16, s13, 3
    s_lshl_b32 s17, s33, 1
    s_add_u32 s16, s16, s17
    s_mul_i32 s16, s16, {NKS2*1024}
    s_lshl_b32 s17, s12, 10
    s_add_u32 s16, s16, s17
    s_add_u32 s16, s16, {WD}
    v_lshl_add_u32 v46, v5, 4, s16
    v_add_u32 v47, {NKS2*1024}, v46
    U_LDONE:
    """)
    k = k0
    for e in range(11):
        k(f"ds_read_u16 v{48+e}, v{48+e}")
    k(f"""
    v_min_u32 v61, 0x5f0, v1
    ds_read_b128 v[80:83], v61 offset:{TB}
    v_bfe_u32 v62, v0, 2, 2
    v_mul_u32_u24 v62, {KCS}, v62
    v_and_b32 v63, 3, v0
    v_min_u32 v63, 2, v63
    v_lshl_add_u32 v62, v63, 4, v62
    ds_write_b128 v62, v[36:39] offset:{KL}
    """)
    conv_expand(k)
    k("""
    s_waitcnt vmcnt(4)
    s_lshr_b32 s21, s17, 1
    s_or_b32 s21, s21, s54
    s_cmp_eq_u32 s21, 0
    s_cbranch_scc1 F_W3
    s_waitcnt vmcnt(2)
    s_cmp_lt_u32 s2, 412
    s_cbranch_scc1 F_W3
    s_waitcnt vmcnt(0)
    F_W3:
    @STAMP 3
    buffer_store_dwordx4 v[80:83], v61, s[8:11], s15 offen
    """)
    for i in range(4):
        stats_pair(k, 16 + 4*i, 17 + 4*i, 18 + 4*i, 19 + 4*i, 40)
    conv_norm(k)
    k("s_branch CONV_PRE")
    k(f"""
    F1_TAIL:
    s_barrier
    s_waitcnt vmcnt(1)
    s_cmp_eq_u32 s54, 2
    s_cbranch_scc1 U_SDONE
    s_cmp_eq_u32 s54, 1
    s_cbranch_scc1 U_SD
    ds_write2_b32 v160, v144, v145 offset0:0 offset1:2
    ds_write2_b32 v160, v146, v147 offset0:4 offset1:6
    ds_write2_b32 v160, v148, v149 offset0:1 offset1:3
    ds_write2_b32 v160, v150, v151 offset0:5 offset1:7
    s_cmp_ge_u32 s17, 2
    s_cbranch_scc1 U_SDONE
    ds_write2_b32 v161, v152, v153 offset0:0 offset1:2
    ds_write2_b32 v161, v154, v155 offset0:4 offset1:6
    ds_write2_b32 v161, v156, v157 offset0:1 offset1:3
    ds_write2_b32 v161, v158, v159 offset0:5 offset1:7
    s_branch U_SDONE
    U_SD:
    ds_write_b128 v160, v[144:147]
    ds_write_b128 v160, v[148:151] offset:{4*DPITCH}
    U_SDONE:
    s_waitcnt lgkmcnt(0)
    s_barrier
    s_cmp_eq_u32 s54, 2
    s_cbranch_scc1 U_RDONE
    s_cmp_eq_u32 s54, 1
    s_cbranch_scc1 U_RD
    ds_read_b64_tr_b16 v[64:65], v162
    ds_read_b64_tr_b16 v[66:67], v162 offset:{16*WPITCH}
    ds_read_b64_tr_b16 v[68:69], v163
    ds_read_b64_tr_b16 v[70:71], v163 offset:{16*WPITCH}
    ds_read_b64_tr_b16 v[72:73], v164
    ds_read_b64_tr_b16 v[74:75], v164 offset:{16*WPITCH}
    s_waitcnt lgkmcnt(0)
    global_store_dwordx4 v165, v[64:67], s[4:5] {PREP_W_POL}
    global_store_dwordx4 v165, v[68:71], s[4:5] offset:1024 {PREP_W_POL}
    global_store_dwordx4 v165, v[72:75], s[4:5] offset:2048 {PREP_W_POL}
    s_branch U_RDONE
    U_RD:
    ds_read_b64_tr_b16 v[64:65], v162
    ds_read_b64_tr_b16 v[66:67], v162 offset:{4*DPITCH}
    ds_read_b64_tr_b16 v[68:69], v162 offset:32
    ds_read_b64_tr_b16 v[70:71], v162 offset:{4*DPITCH+32}
    s_waitcnt lgkmcnt(0)
    global_store_dwordx4 v165, v[64:67], s[4:5] {PREP_W_POL}
    global_store_dwordx4 v166, v[68:71], s[4:5] {PREP_W_POL}
    s_branch U_RDONE
    U_RDONE:
    @FLUSH 13
    s_endpgm
    """)
    info = dict(vgpr=168, sgpr=60, accum=168, grid=N_T + N_K, block=256, lds=CONV_LDS)
    return k, info

def gen_conv():
    k = Kern("conv")
    k(f"""
    conv1_kernel:
    s_cmp_ge_u32 s2, 512
    s_cbranch_scc1 P_WROLES
    s_mov_b32 s34, {0 if 'W' in WINC else 1}
    s_mov_b32 s30, {XT0}
    s_mov_b32 s31, {ST0}
    s_mov_b32 s32, {X1T}
    s_mov_b32 s33, {HB}
    @KID 1
    CONV_BODY:
    s_mov_b32 s54, 2
    s_cmp_ge_u32 s2, 512
    s_cbranch_scc1 CONV_END
    @INIT
    s_load_dwordx2 s[4:5], s[0:1], {KA_WS}
    s_load_dwordx2 s[6:7], s[0:1], {KA_DSKIP}
    """)
    conv_setup(k)
    k(f"""
    s_lshl_b32 s18, s17, 11
    s_add_u32 s18, s18, {CRED}
    """)
    conv_p3(k)
    k("""
    @STAMP 10
    s_waitcnt lgkmcnt(0)
    @STAMP 11
    s_load_dword s20, s[6:7], s16
    """)
    srd(k, 8, 4, WS_BYTES)
    k(f"""
    s_mov_b32 m0, s18
    s_nop 0
    buffer_load_dwordx4 v6, s[8:11], s15 offen lds
    buffer_load_dwordx4 v6, s[8:11], s15 offen offset:1024 lds
    """)
    conv_loads(k)
    npf = 0
    k(f"""
    @STAMP 12
    @STAMP 2
    s_waitcnt vmcnt({5 + npf})
    """)
    for e in range(11):
        k(f"ds_read_u16 v{48+e}, v{48+e}")
    conv_expand(k)
    k(f"""
    s_waitcnt vmcnt({1 + npf})
    @STAMP 3
    """)
    for i in range(4):
        stats_pair(k, 16 + 4*i, 17 + 4*i, 18 + 4*i, 19 + 4*i, 40)
    k(f"s_waitcnt vmcnt({npf})")
    conv_norm(k)
    if CPF:
        if LOCALMAP0:
            k(f"""
            s_lshr_b32 s21, s2, 3
            s_mul_i32 s22, s21, 49152
            s_mul_i32 s23, s17, {PFQ}
            s_add_u32 s22, s22, s23
            s_add_u32 s22, s22, {WP}
            v_min_u32 v38, {PFQ // 128 - 1}, v5
            v_lshlrev_b32 v38, 7, v38
            buffer_load_dword v150, v38, s[8:11], s22 offen
            """)
        else:
            k(f"""
            s_lshr_b32 s21, s2, 3
            s_lshl_b32 s21, s21, 2
            s_add_u32 s21, s21, s17
            s_mul_i32 s22, s21, 6144
            s_and_b32 s23, s2, 1
            s_mul_i32 s23, s23, {8*196608}
            s_add_u32 s22, s22, s23
            s_add_u32 s22, s22, {WP}
            v_lshlrev_b32 v38, 7, v5
            s_cmp_eq_u32 s34, 0
            s_cbranch_scc1 CONV_NOW
            buffer_load_dword v150, v38, s[8:11], s22 offen
            CONV_NOW:
            """)
    if SENT:
        k(f"""
        v_mov_b32 v40, -1
        v_mov_b32 v41, -1
        v_mov_b32 v42, -1
        v_mov_b32 v43, -1
        s_mul_i32 s21, s2, 11520
        s_add_u32 s21, s21, s33
        v_min_u32 v38, {11520 - 8192 - 16}, v1
        buffer_store_dwordx4 v[40:43], v1, s[8:11], s21 offen {POISON_POL}
        s_add_u32 s21, s21, 0x1000
        buffer_store_dwordx4 v[40:43], v1, s[8:11], s21 offen {POISON_POL}
        s_add_u32 s21, s21, 0x1000
        buffer_store_dwordx4 v[40:43], v38, s[8:11], s21 offen {POISON_POL}
        """)
    k.label("CONV_PRE")
    if CODEPF2:
        k(f"""
        s_cmp_ge_u32 s2, 8
        s_cbranch_scc1 CONV_NOPF
        s_getpc_b64 s[22:23]
        v_lshlrev_b32 v38, 6, v0
        global_load_dword v39, v38, s[22:23]
        CONV_NOPF:
        """)
    k("""
    @STAMP 4
    s_waitcnt lgkmcnt(0)
    s_barrier
    CONV_MAIN2:
    @STAMP 5
    """)
    if CONV_NOPK: k = NoPk(k)
    KF = 48; UB = 16; ACC = 112
    pend = []
    def rd(tag):
        if tag[0] == "U":
            mu = int(tag[1:]); r = UB + 4 * (mu & 3)
            k(f"ds_read_b128 v[{r}:{r+3}], v9 offset:{256*mu}")
        else:
            t = int(tag[1:]); r = KF + 4 * t
            k(f"ds_read_b128 v[{r}:{r+3}], v7 offset:{256*t}")
        pend.append(tag)
    def need(tags):
        idx = max([pend.index(t) for t in tags if t in pend], default=-1)
        if idx >= 0:
            k(f"s_waitcnt lgkmcnt({len(pend) - idx - 1})")
            del pend[:idx + 1]
    queue = ["U0"] + [f"K{t}" for t in range(1, 16, 2)] + ["U1"] + [f"K{t}" for t in range(0, 16, 2)] + ["U2", "U3"]
    for t in queue[:12]: rd(t)
    queue = queue[12:]
    for mu in range(16):
        a = UB + 4 * (mu & 3)
        q0 = max(0, -(-(mu - 1) // 2))
        for q in range(q0, 8):
            tp = 2 * q + 1 - mu
            need([f"U{mu}", f"K{tp}"])
            c = "0" if mu == 0 else f"v[{ACC+4*q}:{ACC+4*q+3}]"
            k(f"v_mfma_f32_16x16x32_bf16 v[{ACC+4*q}:{ACC+4*q+3}], v[{KF+4*tp}:{KF+4*tp+3}], v[{a}:{a+3}], {c}")
            if queue: rd(queue.pop(0))
        if mu + 4 < 16: rd(f"U{mu+4}")
        if mu & 1 and mu >= 3:
            q = (mu - 3) // 2
            k(f"ds_write_b128 v10, v[{ACC+4*q}:{ACC+4*q+3}] offset:{(CRED + (q>>1)*8192 if q < 6 else KL) + (q&1)*1024}")
            pend.append("W")
        if mu == 6:
            assert not any(t[0] == "K" for t in pend + queue)
            k("s_barrier")
    k("@STAMP 6")
    k(f"""
    s_and_b32 s21, s20, 0xffff0000
    s_lshl_b32 s20, s20, 16
    s_bitcmp1_b32 s2, 0
    s_cselect_b32 s20, s21, s20
    """)
    for p in range(4):
        k(f"""
        v_lshlrev_b32 v40, 16, v{32+p}
        v_and_b32 v41, 0xffff0000, v{32+p}
        v_mul_f32 v40, s20, v40
        v_mul_f32 v41, s20, v41
        v_cvt_pk_bf16_f32 v41, v40, v41
        """)
        if p == 0:
            k(f"ds_write_b128 v10, v[{ACC+28}:{ACC+31}] offset:{KL + 1024}")
        k(f"""
        v_lshlrev_b32 v{48+2*p}, 16, v41
        v_and_b32 v{49+2*p}, 0xffff0000, v41
        v_lshlrev_b32 v{56+2*p}, 16, v{12+p}
        v_and_b32 v{57+2*p}, 0xffff0000, v{12+p}
        """)
    k("""
    s_waitcnt lgkmcnt(0)
    s_barrier
    @STAMP 7
    """)
    for src in range(4):
        for t in range(2):
            k(f"ds_read_b128 v[{ACC+8*src+4*t}:{ACC+8*src+4*t+3}], v11 offset:{src*2048 + t*16}")
    k("s_waitcnt lgkmcnt(4)")
    for r in range(0, 8, 2):
        k(f"v_pk_add_f32 v[{ACC+r}:{ACC+r+1}], v[{ACC+r}:{ACC+r+1}], v[{ACC+8+r}:{ACC+9+r}]")
    k("s_waitcnt lgkmcnt(0)")
    for r in range(0, 8, 2):
        k(f"v_pk_add_f32 v[{ACC+16+r}:{ACC+17+r}], v[{ACC+16+r}:{ACC+17+r}], v[{ACC+24+r}:{ACC+25+r}]")
    for r in range(0, 8, 2):
        k(f"v_pk_add_f32 v[{ACC+r}:{ACC+r+1}], v[{ACC+r}:{ACC+r+1}], v[{ACC+16+r}:{ACC+17+r}]")
    k("@STAMP 8")
    for p in range(4):
        y0, y1 = ACC + 2*p, ACC + 2*p + 1
        k(f"""
        v_cvt_pk_bf16_f32 v{y1}, v{y0}, v{y1}
        v_lshlrev_b32 v{y0}, 16, v{y1}
        v_and_b32 v{y1}, 0xffff0000, v{y1}
        v_pk_add_f32 v[{y0}:{y1}], v[{y0}:{y1}], v[{48+2*p}:{49+2*p}]
        v_cvt_pk_bf16_f32 v{y1}, v{y0}, v{y1}
        v_lshlrev_b32 v{y0}, 16, v{y1}
        v_and_b32 v{y1}, 0xffff0000, v{y1}
        v_pk_add_f32 v[{y0}:{y1}], v[{y0}:{y1}], v[{56+2*p}:{57+2*p}]
        v_cvt_pk_bf16_f32 v{44+p}, v{y0}, v{y1}
        """)
    k(f"""
    buffer_store_dwordx4 v[44:47], v2, s[8:11], s14 offen {CONV_ST}
    @STAMP 9
    s_cmp_lg_u32 s54, 2
    s_cbranch_scc1 {'F1_TAIL' if FUSE1 else 'CONV_END'}
    @FLUSH 13
    CONV_END:
    s_endpgm
    .p2align 8
    conv2_kernel:
    s_mov_b32 s34, 1
    s_mov_b32 s30, {X2T}
    s_mov_b32 s31, {ST1}
    s_mov_b32 s32, {X3T}
    s_mov_b32 s33, {HB1}
    @KID 4
    s_branch CONV_BODY
    """)
    if CONV_NOPK: k = k.k
    info = dict(vgpr=168, sgpr=60, accum=168, grid=512, block=256, lds=CONV_LDS)
    return k, info

MLP_LDS = 163840
H_LD = os.environ.get('H_LD', 'sc1')
M_PRE2 = int(os.environ.get('M_PRE2', '5'))
M_OLD = int(os.environ.get('M_OLD', '1'))
M_FINE = int(os.environ.get('M_FINE', '1'))
M_LOOK = int(os.environ.get('M_LOOK', '5'))
M_TOUCH = int(os.environ.get('M_TOUCH', '0'))
M_PRE = int(os.environ.get('M_PRE', '8'))
M_OPS = int(os.environ.get('M_OPS', '3'))
M_RAMP = int(os.environ.get('M_RAMP', '5'))
M_LATE = int(os.environ.get('M_LATE', '-100'))
LOCALMAP = int(os.environ.get('LOCALMAP', '0'))
LOC_POL = os.environ.get('LOC_POL', 'sc1')
IDT = ZR + 0x4000
M_PRIO = int(os.environ.get('M_PRIO', '0'))
M_FIRST = int(os.environ.get('M_FIRST', '1'))
M_WDM = int(os.environ.get('M_WDM', '6'))
M_WDE = int(os.environ.get('M_WDE', '2'))
M_AHEAD2 = int(os.environ.get('M_AHEAD2', '6'))
SPIN_MAX = 1 << 20
SLOT = 40960
def gen_mlp():
    k = Kern("mlp")
    ACC = 0
    FR = 48
    XA = 104
    WA = 112
    CSR = 114
    STV = 126
    RES = 130
    VDMA, VW, VT0, VT1, VT2 = 134, 135, 136, 137, 138
    SA = 139
    VRES = 142; VSTX = 143; VPUB = 144; VCS = 145
    MR = 146
    TMP = 150
    NV = 168
    VID = TMP + 14
    VRES2 = TMP + 9
    def wdreg(i): return f"a[{4*i}:{4*i+3}]"
    k(f"""
    mlpa_kernel:
    s_mov_b32 s30, {X1T}
    s_mov_b32 s31, {HB}
    s_mov_b32 s33, {STX}
    s_mov_b32 s34, {FLG}
    s_mov_b32 s35, 0
    s_mov_b32 s56, {IDT}
    @KID 2
    M_BODY:
    s_cmp_ge_u32 s2, 256
    s_cbranch_scc1 M_END
    @INIT
    s_load_dwordx2 s[4:5], s[0:1], {KA_WS}
    s_load_dwordx2 s[6:7], s[0:1], {KA_OUT}
    v_readfirstlane_b32 s17, v0
    s_and_b32 s12, s2, 7                  ; xcd
    s_lshr_b32 s13, s2, 3                 ; idx
    """)
    if LOCALMAP:
        k(f"""
        s_lshl_b32 s14, s12, 1
        s_and_b32 s15, s13, 1
        s_add_u32 s14, s14, s15
        s_lshl_b32 s36, s12, 2
        s_and_b32 s15, s13, 3
        s_add_u32 s36, s36, s15
        s_lshr_b32 s37, s13, 2                ; dt
        s_lshr_b32 s15, s13, 1                ; ft
        """)
    else:
        k(f"""
    s_lshr_b32 s14, s12, 1
    s_lshl_b32 s14, s14, 2
    s_and_b32 s15, s13, 3
    s_add_u32 s14, s14, s15               ; lt
    s_lshl_b32 s36, s12, 2
    s_add_u32 s36, s36, s15               ; lt64
    s_lshr_b32 s37, s13, 2                ; dt
    s_and_b32 s15, s12, 1
    s_lshl_b32 s15, s15, 3
    s_add_u32 s15, s15, s37               ; ft
        """)
    k(f"""
    s_lshr_b32 s17, s17, 6                ; w
    s_and_b32 s16, s17, 3
    s_lshr_b32 s29, s17, 2
    v_and_b32 v{VT0}, 63, v0              ; lane
    v_and_b32 v{VT1}, 15, v0              ; lam / j
    v_bfe_u32 v{VT2}, v0, 4, 2            ; g
    v_lshlrev_b32 v{VDMA}, 4, v{VT0}
    v_lshlrev_b32 v{VW}, 4, v{VT0}                    ; lane*16
    s_lshl_b32 s18, s14, 17
    s_add_u32 s18, s18, s30
    s_lshl_b32 s19, s17, 10
    s_add_u32 s18, s18, s19
    s_lshl_b32 s19, s17, 10               ; x m0 part: w*1024
    s_lshl_b32 s20, s15, 2
    s_add_u32 s20, s20, s16
    s_lshl_b32 s21, s20, 4
    s_add_u32 s21, s21, s29
    s_mul_i32 s21, s21, 3072
    s_add_u32 s21, s21, {WP}
    s_mul_i32 s22, s17, 3072
    s_add_u32 s22, s22, 0x4000
    s_mul_i32 s24, s20, {3*16*4}
    s_add_u32 s24, s24, {CSUM}
    s_lshl_b32 s38, s37, 2
    s_add_u32 s38, s38, s16
    s_mul_i32 s38, s38, {NKS2*1024}
    s_mul_i32 s23, s29, {22*1024}
    s_add_u32 s38, s38, s23
    s_add_u32 s38, s38, {WD}
    """)
    def group_parts(t):
        base = (t & 3) * SLOT
        parts = [f"""
        s_add_u32 m0, s19, {base}
        s_nop 0
        buffer_load_dwordx4 v{VDMA}, s[8:11], s18 offen lds
        s_add_u32 s18, s18, 0x2000
        """, f"""
        s_add_u32 m0, s22, {base}
        s_nop 0
        buffer_load_dwordx4 v{VW}, s[8:11], s21 offen lds
        """, f"""
        buffer_load_dwordx4 v{VW}, s[8:11], s21 offen offset:1024 lds
        """, f"""
        buffer_load_dwordx4 v{VW}, s[8:11], s21 offen offset:2048 lds
        s_add_u32 s21, s21, 0x1800
        """, f"""
        s_add_u32 m0, s19, {base + 8192}
        s_nop 0
        buffer_load_dwordx4 v{VDMA}, s[8:11], s18 offen lds
        s_add_u32 s18, s18, 0x2000
        """]
        return parts
    def wd_part(i):
        p = f"buffer_load_dwordx4 {wdreg(i)}, v{VW}, s[8:11], s38 offen offset:{1024*(i&3)}"
        if (i & 3) == 3: p += "\ns_add_u32 s38, s38, 0x1000"
        return p
    def common_addr():
        k(f"""
        s_mov_b32 s43, {fl(1.0/512)}
        s_mov_b32 s44, {fl(1e-5)}
        s_mov_b32 s45, {fl(-LOG2E)}
        v_lshrrev_b32 v{TMP}, 2, v{VT1}
        v_lshl_add_u32 v{TMP}, v{VT2}, 2, v{TMP}          ; 4g + r
        v_and_b32 v{TMP+1}, 7, v{TMP}                     ; xi
        v_and_b32 v{TMP+2}, 3, v{VT1}
        v_lshlrev_b32 v{TMP+2}, 3, v{TMP+2}
        v_lshl_add_u32 v{TMP+2}, v{TMP}, 8, v{TMP+2}
        v_mul_u32_u24 v{VRES}, {XP}, v{VT1}
        v_lshl_add_u32 v{VRES}, v{VT2}, 4, v{VRES}
        s_lshl_b32 s39, s37, 2
        s_add_u32 s39, s39, s16
        s_mul_i32 s39, s39, {16*XP}
        s_lshl_b32 s40, s36, 7
        s_add_u32 s39, s39, s40
        s_lshl_b32 s40, s29, 6
        s_add_u32 s39, s39, s40
        s_lshr_b32 s40, s36, 1
        s_lshl_b32 s40, s40, 17
        s_add_u32 s40, s40, s30
        s_lshl_b32 s26, s37, 2
        s_add_u32 s26, s26, s16
        s_lshl_b32 s26, s26, 12
        s_add_u32 s40, s40, s26
        s_and_b32 s26, s36, 1
        s_lshl_b32 s26, s26, 1
        s_add_u32 s26, s26, s29
        s_lshl_b32 s26, s26, 1
        v_lshrrev_b32 v{TMP+3}, 1, v{VT2}
        v_add_u32 v{TMP+3}, s26, v{TMP+3}
        v_and_b32 v{TMP+4}, 7, v{VT1}
        v_xor_b32 v{TMP+3}, v{TMP+3}, v{TMP+4}
        v_lshlrev_b32 v{TMP+3}, 5, v{TMP+3}
        v_lshl_add_u32 v{TMP+3}, v{VT1}, 8, v{TMP+3}
        v_and_b32 v{TMP+4}, 1, v{VT2}
        v_lshl_add_u32 v{VRES2}, v{TMP+4}, 4, v{TMP+3}
        """)
    res_parts = [f"buffer_load_dwordx4 v[{RES}:{RES+3}], v{VRES2}, s[8:11], s40 offen"]
    common_addr()
    k("s_lshl_b32 s25, s29, 2")
    for b in range(4):
        k(f"""
        s_add_u32 s26, s25, {b}
        v_xor_b32 v{TMP+3}, s26, v{TMP+1}
        v_lshl_add_u32 v{XA+b}, v{TMP+3}, 5, v{TMP+2}
        v_add_u32 v{XA+4+b}, {2*SLOT}, v{XA+b}
        """)
    k(f"""
    s_mul_i32 s26, s16, 3072
    s_add_u32 s26, s26, 0x4000
    v_add_u32 v{WA}, s26, v{VW}
    v_add_u32 v{WA+1}, {2*SLOT}, v{WA}
    """)
    def late_addr():
        k(f"""
        v_bfe_u32 v{TMP}, v{VT1}, 2, 1                    ; half
        v_mul_u32_u24 v{TMP+4}, 3072, v{TMP}
        v_lshrrev_b32 v{TMP}, 3, v{VT1}
        v_lshl_add_u32 v{TMP+4}, v{TMP}, 6, v{TMP+4}
        v_and_b32 v{TMP}, 3, v{VT1}
        v_lshl_add_u32 v{TMP+4}, v{TMP}, 4, v{TMP+4}
        v_lshl_add_u32 v{TMP+4}, v{VT2}, 8, v{TMP+4}
        s_lshl_b32 s26, s16, 10
        s_cmp_eq_u32 s16, 3
        s_cselect_b32 s26, 12, s26
        s_cselect_b32 s27, 0x400, 4
        s_mul_i32 s28, s29, 12288
        s_add_u32 s26, s26, s28
        v_add_u32 v{SA}, s26, v{TMP+4}
        v_add_u32 v{SA+1}, s27, v{SA}
        v_add_u32 v{SA+2}, s27, v{SA+1}
        v_lshlrev_b32 v{VSTX}, 2, v{VT1}
        s_lshl_b32 s41, s14, 9
        s_lshl_b32 s26, s29, 8
        s_add_u32 s41, s41, s26
        s_add_u32 s41, s41, s33
        s_and_b32 s27, s17, 1
        s_and_b32 s28, s17, 2
        s_lshl_b32 s28, s28, 1
        s_or_b32 s27, s27, s28
        s_lshl_b32 s28, s29, 1
        s_or_b32 s27, s27, s28
        s_mul_i32 s26, s27, 3072
        v_add_u32 v{VPUB}, s26, v{VW}
        s_lshl_b32 s42, s14, 3
        s_add_u32 s42, s42, s27
        s_mul_i32 s42, s42, {HKS*1024}
        s_mul_i32 s26, s15, 3072
        s_add_u32 s42, s42, s26
        s_add_u32 s42, s42, s31
        v_lshlrev_b32 v{VCS}, 4, v{VT2}
        """)
    late_addr()
    k(f"""
    v_lshrrev_b32 v{TMP+6}, 3, v{VT0}
    v_mul_u32_u24 v{TMP+6}, {XP}, v{TMP+6}
    v_and_b32 v{TMP+7}, 7, v{VT0}
    v_lshl_add_u32 v{TMP+6}, v{TMP+7}, 5, v{TMP+6}
    s_lshl_b32 s46, s37, 3
    s_add_u32 s46, s46, s17
    s_mul_i32 s46, s46, {8*XP}
    s_lshl_b32 s47, s14, 8
    s_add_u32 s46, s46, s47
    s_add_u32 s46, s46, s30
    """)
    if LOCALMAP:
        k(f"""
        s_getreg_b32 s23, hwreg(HW_REG_XCC_ID)
        s_and_b32 s23, s23, 15
        s_add_u32 s23, s23, 1
        s_lshl_b32 s26, s12, 7
        s_add_u32 s56, s56, s26
        s_lshl_b32 s26, s13, 2
        v_mov_b32 v{VID}, s23
        v_mov_b32 v{VID+1}, s26
        v_and_b32 v{VID+2}, 31, v{VT0}
        v_lshlrev_b32 v{VID+2}, 2, v{VID+2}
        """)
    k("s_waitcnt lgkmcnt(0)")
    srd(k, 8, 4, WS_BYTES)
    if M_TOUCH & 1: k(f"buffer_load_dword v{TMP+8}, v{TMP+6}, s[8:11], s46 offen")
    def id_store(tag):
        if LOCALMAP:
            k(f"""
            s_mov_b64 exec, 1
            buffer_store_dword v{VID}, v{VID+1}, s[8:11], s56 offen sc1
            s_mov_b64 exec, -1
            """)
    if M_PRIO:
        k(f"""
        s_cmp_lg_u32 s29, {M_PRIO - 1}
        s_cbranch_scc1 M_NOPRIO
        s_setprio 1
        M_NOPRIO:
        """)
    k("""
    s_cmp_eq_u32 s15, 15
    s_cbranch_scc1 M_STATS
    """)
    def reads(s):
        res = []
        t = s >> 1; hi = (t & 3) >> 1; base = (t & 1) * SLOT
        buf = FR + 28 * (s & 1)
        for tau in range(3):
            r = buf + 16 + 4 * tau
            res.append(f"ds_read_b128 v[{r}:{r+3}], v{WA+hi} offset:{base + (s&1)*12288 + tau*1024}")
        for b in range(4):
            off = base + (s & 1) * 8192
            res.append(f"ds_read_b64_tr_b16 v[{buf+4*b}:{buf+4*b+1}], v{XA+4*hi+b} offset:{off}")
            res.append(f"ds_read_b64_tr_b16 v[{buf+4*b+2}:{buf+4*b+3}], v{XA+4*hi+b} offset:{off+4096}")
        return res
    later = [f"buffer_load_dwordx4 v[{CSR+4*tau}:{CSR+4*tau+3}], v{VCS}, s[8:11], s24 offen offset:{64*tau}" for tau in range(3)]
    later += res_parts
    later += [f"buffer_load_dword v{STV+b}, v{VSTX}, s[8:11], s41 offen offset:{64*b} sc1" for b in range(4)]
    if LOCALMAP: later += [f"buffer_load_dword v{VID+3}, v{VID+2}, s[8:11], s56 offen sc1"]
    n_crit = len(later)
    later += [wd_part(i) for i in range(M_WDM)]
    n_need = len(later)
    later += [wd_part(i) for i in range(M_WDM, 22)]
    vm = []
    def wait_for(tag):
        assert not any(o[1] == tag for o in opq), tag
        idxs = [i for i, x in enumerate(vm) if x == tag]
        if not idxs: return
        idx = max(idxs)
        k(f"s_waitcnt vmcnt({len(vm) - idx - 1})")
        del vm[:idx + 1]
    opq = []
    for u in range(8):
        gp = group_parts(u)
        e0 = max(2*u - 7, 2*u - M_LOOK)
        if M_OLD: e0 = {0: -1, 1: -1, 2: 0, 3: 1}.get(u, 2*u - 6)
        for j in (0, 1, 2): opq.append((gp[j], f"D{2*u}", e0))
        opq.append((gp[3], f"D{2*u}", e0 + 1 if u > (3 if M_OLD else 1) else e0))
        opq.append((gp[4], f"D{2*u+1}", e0 + 1 if u > (3 if M_OLD else 1) else e0))
    for i, p in enumerate(later[:n_need]): opq.append((p, "N" if i < n_crit else "L", -100 if i < n_crit else M_LATE))
    nlater = n_need
    def issue(n, s):
        out = []
        while opq and len(out) < n and opq[0][2] <= s:
            out.append(opq.pop(0))
        return out
    for p, tag, _ in issue(10 if M_OLD else M_PRE, -1):
        k(p); vm.append(tag)
    k("@STAMP 2")
    wait_for("D1" if (M_OLD and not M_FIRST) else "D0")
    k("s_barrier")
    k("@STAMP 3")
    for r in reads(0): k(r)
    EXP = os.environ.get('EXP', '')
    for s in range(16):
        if M_OLD:
            bar = False
            if s == 0 and M_FIRST: wait_for("D1"); bar = True
            if s == 1: wait_for("D3"); bar = True
            elif (s & 1) == 0 and 0 < s < 14: wait_for(f"D{s+3}"); bar = True
            if bar: k("s_barrier")
            k("s_waitcnt lgkmcnt(0)")
        elif M_FINE:
            if s < 15: wait_for(f"D{s+1}")
            k("s_waitcnt lgkmcnt(0)")
            if s < 15: k("s_barrier")
        else:
            if s == 0: wait_for("D1")
            elif s < 15 and (s & 1): wait_for(f"D{s+2}")
            k("s_waitcnt lgkmcnt(0)")
            if s < 15 and (s == 0 or (s & 1)): k("s_barrier")
        if s == 8: k("@STAMP 4")
        if s == 3 and LOCALMAP:
            id_store("m"); vm.append("I")
        fill = reads(s + 1) if s < 15 else []
        mf = []
        buf = FR + 28 * (s & 1)
        for b in range(4):
            for tau in range(3):
                a = ACC + (b * 3 + tau) * 4
                c = "0" if s == 0 else f"v[{a}:{a+3}]"
                mf.append(f"v_mfma_f32_16x16x32_bf16 v[{a}:{a+3}], v[{buf+16+4*tau}:{buf+19+4*tau}], v[{buf+4*b}:{buf+4*b+3}], {c}")
        parts = issue((5 if (s < 2 or s >= 12) else 3) if M_OLD else (M_OPS if s < M_RAMP else (5 if s >= 12 else 3)), s)
        step = 12 // max(len(parts), 1)
        slots = {1 + step * j: p for j, p in enumerate(parts)}
        for i, m in enumerate(mf):
            k(m)
            if i < len(fill): k(fill[i])
            if i in slots:
                k(slots[i][0]); vm.append(slots[i][1])
    assert not opq, len(opq)
    assert nlater >= n_need
    k("@STAMP 5")
    wait_for("N")
    k(f"""
    s_mov_b32 s47, 0
    M_STCHK:
    v_min3_u32 v{TMP}, v{STV}, v{STV+1}, v{STV+2}
    v_min_u32 v{TMP}, v{TMP}, v{STV+3}
    v_cmp_eq_u32 vcc, 0, v{TMP}
    s_cmp_eq_u64 vcc, 0
    s_cbranch_scc1 M_STOK
    s_add_u32 s47, s47, 1
    s_cmp_ge_u32 s47, {SPIN_MAX}
    s_cbranch_scc1 M_STOK
    s_sleep 2
    """)
    for b in range(4): k(f"buffer_load_dword v{STV+b}, v{VSTX}, s[8:11], s41 offen offset:{64*b} sc1")
    k("""
    s_waitcnt vmcnt(0)
    s_branch M_STCHK
    M_STOK:
    @STAMP 6
    """)
    if LOCALMAP:
        k(f"""
        v_cmp_ne_u32 vcc, s23, v{VID+3}
        s_cmp_eq_u64 vcc, 0
        s_cselect_b32 s54, 1, 0
        """)
    PB = FR
    def pub():
        for i in range(3):
            k(f"ds_read_b128 v[{PB+4*i}:{PB+4*i+3}], v{VPUB} offset:{1024*i}")
        if LOCALMAP:
            pub.n += 1
            k(f"""
            s_cmp_eq_u32 s54, 0
            s_cbranch_scc1 M_PG{pub.n}
            """)
            for i in range(3):
                k(f"s_waitcnt lgkmcnt({2-i})")
                k(f"buffer_store_dwordx4 v[{PB+4*i}:{PB+4*i+3}], v{VW}, s[8:11], s42 offen offset:{1024*i} {LOC_POL}")
            k(f"s_branch M_PE{pub.n}\nM_PG{pub.n}:")
        for i in range(3):
            k(f"s_waitcnt lgkmcnt({2-i})")
            k(f"buffer_store_dwordx4 v[{PB+4*i}:{PB+4*i+3}], v{VW}, s[8:11], s42 offen offset:{1024*i} sc1")
        if LOCALMAP: k(f"M_PE{pub.n}:")
    pub.n = 0
    for b in range(4):
        m = MR
        k(f"""
        v_and_b32 v{m+2}, 0xffff0000, v{STV+b}        ; s
        v_lshlrev_b32 v{m}, 16, v{STV+b}              ; m
        v_rcp_f32 v{m+1}, v{m+2}
        v_mul_f32 v{m+1}, s45, v{m+1}
        """)
        for tau in range(3):
            a = ACC + (b * 3 + tau) * 4
            c = CSR + 4 * tau
            k(f"""
            v_pk_fma_f32 v[{a}:{a+1}], v[{m}:{m+1}], v[{c}:{c+1}], v[{a}:{a+1}] op_sel_hi:[0,1,1] neg_lo:[1,0,0] neg_hi:[1,0,0]
            v_pk_fma_f32 v[{a+2}:{a+3}], v[{m}:{m+1}], v[{c+2}:{c+3}], v[{a+2}:{a+3}] op_sel_hi:[0,1,1] neg_lo:[1,0,0] neg_hi:[1,0,0]
            v_pk_mul_f32 v[{a}:{a+1}], v[{a}:{a+1}], v[{m}:{m+1}] op_sel:[0,1] op_sel_hi:[1,1]
            v_exp_f32 v{a}, v{a}
            v_exp_f32 v{a+1}, v{a+1}
            """)
            if tau < M_WDE and nlater < len(later):
                k(later[nlater]); nlater += 1
        for tau in range(3):
            a = ACC + (b * 3 + tau) * 4
            k(f"""
            v_pk_fma_f32 v[{a}:{a+1}], v[{a}:{a+1}], v[{m+2}:{m+3}], v[{m+2}:{m+3}] op_sel_hi:[1,0,0]
            v_rcp_f32 v{a}, v{a}
            v_rcp_f32 v{a+1}, v{a+1}
            """)
        for _ in range(M_WDE - 3):
            if nlater < len(later):
                k(later[nlater]); nlater += 1
        for tau in range(3):
            a = ACC + (b * 3 + tau) * 4
            k(f"""
            v_pk_mul_f32 v[{a}:{a+1}], v[{a}:{a+1}], v[{a+2}:{a+3}]
            v_cvt_pk_bf16_f32 v{a}, v{a}, v{a+1}
            ds_write_b32 v{SA+tau}, v{a} offset:{(b>>1)*6144 + (b&1)*128}
            """)
        if b == 1 and SPLITPUB:
            k("""
            s_waitcnt lgkmcnt(0)
            s_barrier
            s_cmp_lg_u32 s29, 0
            s_cbranch_scc1 M_PUB1
            """)
            pub()
            k.label("M_PUB1")
    k("""
    s_waitcnt lgkmcnt(0)
    s_barrier
    @STAMP 7
    """)
    if SPLITPUB:
        k("""
        s_cmp_eq_u32 s29, 0
        s_cbranch_scc1 M_PUB2
        """)
    pub()
    k.label("M_PUB2")
    rest = later[nlater:]
    if not SENT:
        k(f"""
        s_lshl_b32 s26, s14, 4
        s_add_u32 s26, s26, s15
        s_lshl_b32 s26, s26, 7
        s_add_u32 s26, s26, s34
        v_mov_b32 v{TMP}, 1
        v_mov_b32 v{TMP+1}, 0
        s_waitcnt vmcnt(0)
        s_barrier
        s_cmp_lg_u32 s17, 0
        s_cbranch_scc1 M_NOFLAG
        s_mov_b64 exec, 1
        s_cmp_eq_u32 s54, {1 if LOCALMAP else 77}
        s_cbranch_scc1 M_FLOC
        buffer_store_dword v{TMP}, v{TMP+1}, s[8:11], s26 offen sc1
        s_branch M_FEND
        M_FLOC:
        buffer_store_dword v{TMP}, v{TMP+1}, s[8:11], s26 offen
        M_FEND:
        s_mov_b64 exec, -1
        M_NOFLAG:
        """)
    for p in rest: k(p)
    HA = XA
    k(f"""
    M_SYNC:
    @CODEPF3
    s_mov_b32 s55, 0
    M_SYNC2:
    @STAMP 8
    v_mov_b32 v{TMP+10}, 0
    s_lshl_b32 s26, s36, 2
    s_add_u32 s26, s26, s16
    s_mul_i32 s26, s26, {HKS*1024}
    s_mul_i32 s27, s29, {22*1024}
    s_add_u32 s26, s26, s27
    s_add_u32 s26, s26, s31
    s_lshl_b32 s27, s17, 11               ; m0 part
    s_mul_i32 s28, s29, 0x3000
    v_add_u32 v{HA}, s28, v{VW}
    s_lshl_b32 s28, s29, 12
    s_add_u32 s28, s28, 0x1000
    v_add_u32 v{HA+1}, s28, v{VW}
    v_add_u32 v{HA+2}, 0x10000, v{HA}
    v_add_u32 v{HA+3}, 0x10000, v{HA+1}
    v_add_u32 v{HA+4}, 0x20000, v{HA}
    v_add_u32 v{HA+5}, 0x20000, v{HA+1}
    s_cmp_lg_u32 s17, 1
    s_cbranch_scc1 M_WAITB
    """)
    if SENT:
        k(f"""
        s_mul_i32 s28, s36, {4*HKS*1024}
        s_add_u32 s28, s28, s31
        v_min_u32 v{TMP+4}, 14, v{VT1}
        v_mul_u32_u24 v{TMP+4}, 3072, v{TMP+4}
        v_mul_u32_u24 v{TMP+5}, {HKS*1024}, v{VT2}
        v_add_u32 v{TMP+4}, v{TMP+4}, v{TMP+5}
        s_mov_b32 s47, 0
        M_POLL:
        buffer_load_dword v{TMP+5}, v{TMP+4}, s[8:11], s28 offen offset:3056 sc1
        s_waitcnt vmcnt(0)
        v_cmp_eq_u32 vcc, -1, v{TMP+5}
        s_cmp_eq_u64 vcc, 0
        s_cbranch_scc1 M_WAITB
        s_sleep {SENT_SLEEP}
        s_add_u32 s47, s47, 1
        s_cmp_lt_u32 s47, {SPIN_MAX}
        s_cbranch_scc1 M_POLL
        """)
    else:
        k(f"""
        s_lshr_b32 s28, s36, 1
        s_lshl_b32 s28, s28, 11
        s_add_u32 s28, s28, s34
        v_min_u32 v{TMP+4}, 14, v{VT0}
        v_lshlrev_b32 v{TMP+4}, 7, v{TMP+4}
        s_mov_b32 s47, 0
        M_POLL:
        buffer_load_dword v{TMP+5}, v{TMP+4}, s[8:11], s28 offen sc1
        s_waitcnt vmcnt(0)
        v_cmp_eq_u32 vcc, 0, v{TMP+5}
        s_cmp_eq_u64 vcc, 0
        s_cbranch_scc1 M_WAITB
        s_add_u32 s47, s47, 1
        s_cmp_lt_u32 s47, {SPIN_MAX}
        s_cbranch_scc1 M_POLL
        """)
    k(f"""
    M_WAITB:
    s_lshl_b32 s46, s37, 3
    s_add_u32 s46, s46, s17
    s_mul_i32 s46, s46, 2880
    s_mul_i32 s47, s36, {4*HKS*1024}
    s_add_u32 s46, s46, s47
    s_add_u32 s46, s46, s31
    v_min_u32 v{TMP+6}, 44, v{VT0}
    v_lshlrev_b32 v{TMP+6}, 6, v{TMP+6}
    s_barrier
    @STAMP 9
    """)
    if M_TOUCH & 2: k(f"buffer_load_dword v{TMP+8}, v{TMP+6}, s[8:11], s46 offen")
    def hchunk(c):
        return [f"""
        s_add_u32 m0, s27, {(c % 10) * 16384}
        s_nop 0
        buffer_load_dwordx4 v{VW}, s[8:11], s26 offen {H_LD} lds
        """, f"""
        buffer_load_dwordx4 v{VW}, s[8:11], s26 offen offset:1024 {H_LD} lds
        s_add_u32 s26, s26, 0x800
        """]
    HF = 16
    A2 = 0
    def hreads(c):
        res = []
        for i in range(2):
            for lb in range(4):
                off = (c % 10) * 16384 + (lb & 1) * 2048 + i * 1024
                base = HA + 2 * (off >> 16) + (lb >> 1)
                r = HF + 32 * (c & 1) + (i * 4 + lb) * 4
                res.append(f"ds_read_b128 v[{r}:{r+3}], v{base} offset:{off & 0xffff}")
        return res
    iss = M_PRE2
    for c in range(iss):
        for p in hchunk(c): k(p)
    k(f"s_waitcnt vmcnt({2*(iss-1)})")
    k("s_barrier")
    k("@STAMP 10")
    for r in hreads(0): k(r)
    for c in range(11):
        fill = []
        if c < 10:
            k(f"s_waitcnt vmcnt({2*(iss-(c+2))})")
            k("s_barrier")
        k("s_waitcnt lgkmcnt(0)")
        if c < 10: fill = hreads(c + 1)
        parts = []
        for rep_ in range(2):
            if iss < 11 and (iss < 10 or c >= 1) and iss < c + M_AHEAD2:
                parts += hchunk(iss); iss += 1
        slots = {1 + 2 * j: p for j, p in enumerate(parts)}
        n = 0
        for i in range(2):
            for lb in range(4):
                r = HF + 32 * (c & 1) + (i * 4 + lb) * 4
                a = A2 + 4 * lb
                cc = "0" if (c == 0 and i == 0) else f"v[{a}:{a+3}]"
                k(f"v_mfma_f32_16x16x32_bf16 v[{a}:{a+3}], v[{r}:{r+3}], {wdreg(2*c+i)}, {cc}")
                if SENT and (n & 1) == 0: k(f"v_max3_u32 v{TMP+10}, v{r}, v{r+4}, v{TMP+10}")
                if n < len(fill): k(fill[n])
                if n in slots: k(slots[n])
                n += 1
    k("@STAMP 11")
    XB = 65536
    k(f"""
    s_lshl_b32 s26, s17, 11
    s_add_u32 s26, s26, {XB}
    v_add_u32 v{TMP}, s26, v{VW}
    s_xor_b32 s26, s26, 0x2000
    v_add_u32 v{TMP+1}, s26, v{VW}
    """)
    for j in range(4):
        k(f"v_lshlrev_b32 v{32+2*j}, 16, v{RES+j}")
        k(f"v_and_b32 v{33+2*j}, 0xffff0000, v{RES+j}")
    k(f"""
    ds_write_b128 v{TMP}, v[8:11]
    ds_write_b128 v{TMP}, v[12:15] offset:1024
    """)
    if SENT:
        k(f"""
        v_cmp_eq_u32 vcc, -1, v{TMP+10}
        s_cmp_lg_u64 vcc, 0
        s_cselect_b32 s26, 1, 0
        s_lshl_b32 s27, s17, 2
        s_add_u32 s27, s27, {XB + 16384}
        v_mov_b32 v{TMP+11}, s26
        v_mov_b32 v{TMP+12}, s27
        v_and_b32 v{TMP+13}, 7, v{VT0}
        v_lshlrev_b32 v{TMP+13}, 2, v{TMP+13}
        v_add_u32 v{TMP+13}, {XB + 16384}, v{TMP+13}
        ds_write_b32 v{TMP+12}, v{TMP+11}
        """)
    k(f"""
    s_waitcnt lgkmcnt(0)
    s_barrier
    ds_read_b128 v[8:11], v{TMP+1}
    ds_read_b128 v[12:15], v{TMP+1} offset:1024
    """)
    if SENT:
        k(f"""
        ds_read_b32 v{TMP+11}, v{TMP+13}
        s_waitcnt lgkmcnt(0)
        v_cmp_ne_u32 vcc, 0, v{TMP+11}
        s_cmp_eq_u64 vcc, 0
        s_cbranch_scc1 M_OK
        s_add_u32 s55, s55, 1
        s_cmp_lt_u32 s55, 64
        s_cbranch_scc1 M_SYNC2
        M_OK:
        """)
    k("s_waitcnt lgkmcnt(0)")
    OUT = 16
    for j in range(4):
        y0, y1 = A2 + 2*j, A2 + 2*j + 1
        k(f"""
        v_pk_add_f32 v[{y0}:{y1}], v[{y0}:{y1}], v[{y0+8}:{y1+8}]
        v_cvt_pk_bf16_f32 v{y1}, v{y0}, v{y1}
        v_lshlrev_b32 v{y0}, 16, v{y1}
        v_and_b32 v{y1}, 0xffff0000, v{y1}
        v_pk_add_f32 v[{y0}:{y1}], v[{y0}:{y1}], v[{32+2*j}:{33+2*j}]
        v_cvt_pk_bf16_f32 v{OUT+j}, v{y0}, v{y1}
        """)
    k(f"""
    s_cmp_lg_u32 s35, 0
    s_cbranch_scc1 M_FINAL
    s_add_u32 s40, s39, {X2T}
    buffer_store_dwordx4 v[{OUT}:{OUT+3}], v{VRES}, s[8:11], s40 offen {X2_ST}
    """)
    Q = 48
    for j in range(4):
        k(f"""
        v_lshlrev_b32 v{Q+4*j}, 16, v{OUT+j}
        v_and_b32 v{Q+4*j+2}, 0xffff0000, v{OUT+j}
        v_mul_f32 v{Q+4*j+1}, v{Q+4*j}, v{Q+4*j}
        v_mul_f32 v{Q+4*j+3}, v{Q+4*j+2}, v{Q+4*j+2}
        """)
    for q in range(8):
        k(f"v_add_f32_dpp v{Q+q}, v{Q+q}, v{Q+q} row_ror:8 row_mask:0xf bank_mask:0x3")
        k(f"v_add_f32_dpp v{Q+q}, v{Q+q+8}, v{Q+q+8} row_ror:8 row_mask:0xf bank_mask:0xc")
    for q in range(4):
        k(f"v_add_f32_dpp v{Q+q}, v{Q+q}, v{Q+q} row_shl:4 row_mask:0xf bank_mask:0x5")
        k(f"v_add_f32_dpp v{Q+q}, v{Q+q+4}, v{Q+q+4} row_shr:4 row_mask:0xf bank_mask:0xa")
    for q in range(4):
        k(f"v_add_f32_dpp v{Q+q}, v{Q+q}, v{Q+q} quad_perm:[1,0,3,2] row_mask:0xf bank_mask:0xf")
    for q in range(4):
        k(f"v_add_f32_dpp v{Q+q}, v{Q+q}, v{Q+q} quad_perm:[2,3,0,1] row_mask:0xf bank_mask:0xf")
    SB = 98304
    k(f"""
    v_and_b32 v{TMP}, 3, v{VT1}
    v_cmp_eq_u32 s[48:49], 1, v{TMP}
    v_cmp_eq_u32 s[50:51], 2, v{TMP}
    v_cmp_eq_u32 s[52:53], 3, v{TMP}
    v_lshrrev_b32 v{TMP+1}, 2, v{VT1}
    v_lshlrev_b32 v{TMP+1}, 7, v{TMP+1}
    v_lshl_add_u32 v{TMP+1}, v{VT2}, 4, v{TMP+1}
    v_lshl_add_u32 v{TMP+1}, v{TMP}, 2, v{TMP+1}
    s_lshl_b32 s26, s16, 9
    s_lshl_b32 s27, s29, 6
    s_add_u32 s26, s26, s27
    s_add_u32 s26, s26, {SB}
    v_add_u32 v{TMP+1}, s26, v{TMP+1}
    v_cndmask_b32 v{Q}, v{Q}, v{Q+1}, s[48:49]
    v_cndmask_b32 v{Q}, v{Q}, v{Q+2}, s[50:51]
    v_cndmask_b32 v{Q}, v{Q}, v{Q+3}, s[52:53]
    ds_write_b32 v{TMP+1}, v{Q}
    s_lshl_b32 s26, s17, 8
    s_add_u32 s26, s26, {SB}
    v_lshl_add_u32 v{TMP+2}, v{VT0}, 2, s26
    v_lshrrev_b32 v{TMP+3}, 5, v{VT0}
    v_lshlrev_b32 v{TMP+3}, 12, v{TMP+3}
    v_and_b32 v{TMP+4}, 31, v{VT0}
    v_lshl_add_u32 v{TMP+3}, v{TMP+4}, 2, v{TMP+3}
    s_lshl_b32 s26, s36, 7
    s_lshl_b32 s27, s17, 13
    s_add_u32 s26, s26, s27
    s_add_u32 s26, s26, {ST1}
    s_waitcnt lgkmcnt(0)
    s_barrier
    s_cmp_ge_u32 s17, 2
    s_cbranch_scc1 M_NOAT
    ds_read_b32 v{Q}, v{TMP+2}
    ds_read_b32 v{Q+1}, v{TMP+2} offset:512
    ds_read_b32 v{Q+2}, v{TMP+2} offset:1024
    ds_read_b32 v{Q+3}, v{TMP+2} offset:1536
    s_waitcnt lgkmcnt(0)
    v_add_f32 v{Q}, v{Q}, v{Q+1}
    v_add_f32 v{Q+2}, v{Q+2}, v{Q+3}
    v_add_f32 v{Q}, v{Q}, v{Q+2}
    buffer_atomic_add_f32 v{Q}, v{TMP+3}, s[8:11], s26 offen
    M_NOAT:
    @STAMP 12
    @FLUSH 13
    s_endpgm
    M_FINAL:
    """)
    TP = 144; TB2 = 98304
    srd(k, 48, 6, L * D * 2)
    k(f"""
    s_lshl_b32 s26, s16, 4
    v_add_u32 v{TMP}, s26, v{VT1}
    v_mul_u32_u24 v{TMP}, {TP}, v{TMP}
    v_lshl_add_u32 v{TMP}, v{VT2}, 4, v{TMP}
    s_lshl_b32 s26, s29, 6
    s_add_u32 s26, s26, {TB2}
    v_add_u32 v{TMP}, s26, v{TMP}
    ds_write_b128 v{TMP}, v[{OUT}:{OUT+3}]
    v_lshrrev_b32 v{TMP+1}, 2, v{VT1}
    v_lshl_add_u32 v{TMP+1}, v{VT2}, 3, v{TMP+1}
    v_mul_u32_u24 v{TMP+1}, {TP}, v{TMP+1}
    v_and_b32 v{TMP+2}, 3, v{VT1}
    v_lshl_add_u32 v{TMP+1}, v{TMP+2}, 3, v{TMP+1}
    s_lshl_b32 s26, s16, 5
    s_mul_i32 s27, s29, {32*TP}
    s_add_u32 s26, s26, s27
    s_add_u32 s26, s26, {TB2}
    v_add_u32 v{TMP+1}, s26, v{TMP+1}
    v_lshlrev_b32 v{TMP+2}, 10, v{VT1}
    v_lshl_add_u32 v{TMP+2}, v{VT2}, 4, v{TMP+2}
    s_lshl_b32 s26, s36, 2
    s_add_u32 s26, s26, s16
    s_lshl_b32 s26, s26, 14
    s_lshl_b32 s27, s37, 7
    s_add_u32 s26, s26, s27
    s_lshl_b32 s27, s29, 6
    s_add_u32 s26, s26, s27
    s_waitcnt lgkmcnt(0)
    s_barrier
    ds_read_b64_tr_b16 v[32:33], v{TMP+1}
    ds_read_b64_tr_b16 v[34:35], v{TMP+1} offset:{4*TP}
    s_waitcnt lgkmcnt(0)
    buffer_store_dwordx4 v[32:35], v{TMP+2}, s[48:51], s26 offen {OUT_ST}
    @STAMP 12
    @FLUSH 13 last
    M_END:
    s_endpgm
    """)
    k(f"""
    M_STATS:
    s_mov_b32 s47, 0
    M_SL1:
    s_mov_b32 m0, s19
    s_add_u32 s19, s19, 0x2000
    buffer_load_dwordx4 v{VDMA}, s[8:11], s18 offen lds
    s_add_u32 s18, s18, 0x2000
    s_mov_b32 m0, s19
    s_add_u32 s19, s19, 0x2000
    buffer_load_dwordx4 v{VDMA}, s[8:11], s18 offen lds
    s_add_u32 s18, s18, 0x2000
    s_add_u32 s47, s47, 1
    s_cmp_lt_u32 s47, 8
    s_cbranch_scc1 M_SL1
    """)
    id_store("s")
    SACC = 0; ONES = 16
    k(f"""
    v_xor_b32 v{TMP+3}, s17, v{TMP+1}
    v_lshl_add_u32 v{XA}, v{TMP+3}, 5, v{TMP+2}
    """)
    for r in range(8): k(f"v_mov_b32 v{SACC+r}, 0")
    for r in range(4): k(f"v_mov_b32 v{ONES+r}, 0x3f803f80")
    k(f"""
    s_mov_b32 s47, 0
    s_waitcnt vmcnt(0)
    s_barrier
    M_SL2:
    """)
    for u in range(8):
        r = FR + 4 * u
        if u == 7: k("s_waitcnt lgkmcnt(12)")
        k(f"ds_read_b64_tr_b16 v[{r}:{r+1}], v{XA} offset:{u*8192}")
        k(f"ds_read_b64_tr_b16 v[{r+2}:{r+3}], v{XA} offset:{u*8192+4096}")
    k(f"v_add_u32 v{XA}, 0x10000, v{XA}")
    for u in range(8):
        r = FR + 4 * u
        k(f"s_waitcnt lgkmcnt({14 - 2*u})")
        k(f"v_mfma_f32_16x16x32_bf16 v[{SACC}:{SACC+3}], v[{r}:{r+3}], v[{r}:{r+3}], v[{SACC}:{SACC+3}]")
        k(f"v_mfma_f32_16x16x32_bf16 v[{SACC+4}:{SACC+7}], v[{ONES}:{ONES+3}], v[{r}:{r+3}], v[{SACC+4}:{SACC+7}]")
    k(f"""
    s_add_u32 s47, s47, 1
    s_cmp_lt_u32 s47, 2
    s_cbranch_scc1 M_SL2
    v_and_b32 v{TMP}, 3, v{VT1}
    v_cmp_eq_u32 s[48:49], 1, v{TMP}
    v_cmp_eq_u32 s[50:51], 2, v{TMP}
    v_cmp_eq_u32 s[52:53], 3, v{TMP}
    v_lshrrev_b32 v{TMP}, 2, v{VT1}
    v_cmp_eq_u32 s[54:55], v{TMP}, v{VT2}
    v_cndmask_b32 v{SACC}, v{SACC}, v{SACC+1}, s[48:49]
    v_cndmask_b32 v{SACC}, v{SACC}, v{SACC+2}, s[50:51]
    v_cndmask_b32 v{SACC+5}, v{SACC}, v{SACC+3}, s[52:53]
    v_mov_b32 v{SACC+12}, v{SACC+4}
    v_mov_b32 v{SACC+13}, v{SACC+5}
    """)
    stats_pair(k, SACC+4, SACC+5, SACC+12, SACC+13, TMP, keep=(SACC+6, SACC+14))
    k(f"""
    v_lshrrev_b32 v{SACC+4}, 16, v{SACC+4}
    v_or_b32 v{SACC+4}, v{SACC+4}, v{SACC+6}
    v_lshlrev_b32 v{VSTX}, 2, v{VT1}
    s_lshl_b32 s41, s14, 9
    s_lshl_b32 s26, s17, 6
    s_add_u32 s41, s41, s26
    s_add_u32 s41, s41, s33
    s_mov_b64 exec, s[54:55]
    buffer_store_dword v{SACC+4}, v{VSTX}, s[8:11], s41 offen sc1
    s_mov_b64 exec, -1
    """)
    for p in res_parts: k(p)
    for i in range(22): k(wd_part(i))
    k(f"""
    s_barrier
    s_branch M_SYNC
    .p2align 8
    mlpb_kernel:
    s_mov_b32 s30, {X3T}
    s_mov_b32 s31, {HB1}
    s_mov_b32 s33, {STX + 0x2000}
    s_mov_b32 s34, {FLG + 0x8000}
    s_mov_b32 s35, 1
    s_mov_b32 s56, {IDT + 0x400}
    @KID 5
    s_branch M_BODY
    """)
    info = dict(vgpr=NV + 88, sgpr=64, accum=NV, grid=256, block=512, lds=MLP_LDS)
    return k, info

DIAG_KN = {2: ("mlpa", 13), 5: ("mlpb", 13), 3: ("wroles", 2), 6: ("none", 1)}
def emit(path, launches=None):
    kp, ip = gen_prep()
    kc, ic = gen_conv()
    km, im = gen_mlp()
    ic1 = dict(ic); ic1["grid"] = B_E
    infos = {"prep_kernel": ip, "conv1_kernel": ic1, "conv2_kernel": ic, "mlpa_kernel": im, "mlpb_kernel": im}
    kf, if1 = gen_f1()
    if FUSE1:
        infos = {"f1_kernel": if1, "conv2_kernel": ic, "mlpa_kernel": im, "mlpb_kernel": im}
        launches = launches or ["f1_kernel", "mlpa_kernel", "conv2_kernel", "mlpb_kernel"]
    if os.environ.get("ORDER"): launches = [x + "_kernel" for x in os.environ["ORDER"].split(",")]
    order = launches or ["prep_kernel", "conv1_kernel", "mlpa_kernel", "conv2_kernel", "mlpb_kernel"]
    hdr = open("cdna_kernels/" + NAME + ".s.ref").read().split("; Override launch")[0]
    out = [hdr.rstrip("\n")]
    for n in order:
        i = infos[n]
        out.append(f"; @launch kernel={n} grid=({i['grid']},1,1) block=({i['block']},1,1) lds={i['lds']}")
    out.append('.amdgcn_target "amdgcn-amd-amdhsa--gfx950"\n.text')
    for n in infos:
        out.append(f".globl {n}\n.type {n},@function")
    if FUSE1: out.append(".p2align 8\n" + kf.text())
    out.append(".p2align 8\nprep_kernel:\n" + kp.text().replace("P_NOPF", "Q_NOPF"))
    for kk in (kc, km):
        out.append(".p2align 8\n" + kk.text())
    for n, i in infos.items():
        out.append(descriptor(n, i["vgpr"], 102 if DIAG else i["sgpr"], i["accum"]))
    open(path, "w").write("\n".join(out))

if __name__ == "__main__":
    emit(sys.argv[1] if len(sys.argv) > 1 else "cdna_kernels/" + NAME + ".s")
```

```python
import sys, struct, re, os
from asmlib import *

NAME = "interleave_layers__ssm_conv_s4d__glu_gated_glu__prompt"
KA_U, KA_LOGA, KA_AIM, KA_CRE, KA_CIM, KA_LOGDT, KA_DSKIP, KA_BX, KA_WG, KA_WU, KA_WD, KA_OUT, KA_DBG, KA_WS = [8 * i for i in range(14)]
XT0, X1T, X2T, X3T = 0x3000000, 0x3300000, 0x3600000, 0x3900000
ST0, ST1, CSUM = 0x0800000, 0x0804000, 0x0808000
WP = 0x0C00000
WD = 0x1000000
HB = 0x1200000
HB1 = 0x2200000
GFB = 0x0840000
GFN = int(os.environ.get('GFN', '32'))
ZR = 0x0810000; STX = 0x0810000; FLG = 0x0820000
KP = 0x1800000; KCS = 4160; KP_STRIDE = 1536
WS_BYTES = 0x10000000
L, D, F, NST = 2048, 512, 1376, 128
NKS2 = 44
HKS = 45

import os
XP = int(os.environ.get('XP', '4352'))
PREP_W_POL = os.environ.get('PREP_W_POL', 'sc1')
PREP_K_POL = os.environ.get('PREP_K_POL', '')
PREP_X_POL = os.environ.get('PREP_X_POL', '')
LATE_PRIO = int(os.environ.get('LATE_PRIO', '0'))
PREP_PRIO = int(os.environ.get('PREP_PRIO', '0'))
CONV_ST = os.environ.get('CONV_ST', 'sc1')
OUT_ST = os.environ.get('OUT_ST', '')
X2_ST = os.environ.get('X2_ST', 'sc1')
F1_SLEEP = int(os.environ.get('F1_SLEEP', '2'))
CODEPF_BASE = int(os.environ.get('CODEPF_BASE', '760' if int(os.environ.get('FUSE1', '1')) else '0'))
CPFR = 142 if int(os.environ.get('FUSE1', '1')) else 94
SENT = int(os.environ.get('SENT', '0'))
SPLITPUB = int(os.environ.get('SPLITPUB', '1'))
POISON_POL = os.environ.get('POISON_POL', 'sc1')
SENT_SLEEP = int(os.environ.get('SENT_SLEEP', '2'))
WTOUCH = int(os.environ.get('WTOUCH', '0'))
CODEPF3 = int(os.environ.get('CODEPF3', '0'))
CODEPF2 = int(os.environ.get('CODEPF2', '1'))
TLBPF = int(os.environ.get('TLBPF', '0'))
TLBPF_BASE = int(os.environ.get('TLBPF_BASE', '1216'))
CODEPF = int(os.environ.get('CODEPF', '1'))
DIAG = int(os.environ.get("DIAG", "0"))
DIAG_OFF = 0x4000000
_Kern = Kern
class Kern(_Kern):
    def __call__(self, s):
        for l in s.strip("\n").split("\n"):
            t = l.strip()
            if t.startswith("@GFLOAD"):
                super().__call__(f"s_and_b32 s26, s2, {GFN-1}\ns_lshl_b32 s26, s26, 7\ns_add_u32 s26, s26, {GFB}\nv_mov_b32 v165, s26\nglobal_load_dword v164, v165, s[4:5] sc1")
                continue
            if t.startswith("@WTOUCH"):
                if WTOUCH:
                    super().__call__(f"""
                    s_mul_i32 s15, s3, 5504
                    v_min_u32 v90, 85, v0
                    v_lshl_add_u32 v90, v90, 6, s15
                    global_load_dword v91, v90, s[16:17]
                    global_load_dword v92, v90, s[18:19]
                    global_load_dword v93, v90, s[20:21]
                    """)
                continue
            if t.startswith("@CODEPF3"):
                if CODEPF3:
                    super().__call__(f"""
                    s_cmp_ge_u32 s2, 8
                    s_cbranch_scc1 M_NOPF
                    s_cmp_lt_u32 s17, 2
                    s_cbranch_scc1 M_NOPF
                    s_getpc_b64 s[26:27]
                    M_PFPC:
                    s_sub_u32 s26, s26, M_PFPC-conv1_kernel
                    s_subb_u32 s27, s27, 0
                    s_and_b32 s28, s17, 1
                    s_lshl_b32 s28, s28, 12
                    v_lshl_add_u32 v163, v136, 6, s28
                    global_load_dword v163, v163, s[26:27]
                    M_NOPF:
                    """)
                continue
            if t.startswith("@CNTLOAD"):
                super().__call__("global_load_dword v59, v2, s[28:29] sc1")
                continue
            if t.startswith("@CODEPF"):
                if CODEPF:
                    super().__call__(f"""
                    s_sub_u32 s3, s2, {CODEPF_BASE}
                    s_cmp_ge_u32 s3, 8
                    s_cbranch_scc1 P_NOPF
                    s_getpc_b64 s[6:7]
                    v_lshlrev_b32 v1, 6, v0
                    global_load_dword v{CPFR}, v1, s[6:7]
                    v_add_u32 v1, 0x4000, v1
                    global_load_dword v{CPFR+1}, v1, s[6:7]
                    P_NOPF:
                    """)
                if TLBPF:
                    super().__call__(f"""
                    s_sub_u32 s3, s2, {TLBPF_BASE}
                    s_cmp_ge_u32 s3, 8
                    s_cbranch_scc1 P_NOPF2
                    s_load_dwordx2 s[6:7], s[0:1], {KA_OUT}
                    v_lshlrev_b32 v1, 18, v0
                    v_lshlrev_b32 v2, 13, v0
                    s_waitcnt lgkmcnt(0)
                    global_load_dword v93, v1, s[4:5]
                    global_load_dword v92, v2, s[6:7]
                    P_NOPF2:
                    """)
                continue
            if t.startswith("@"):
                if not DIAG: continue
                p = t.split()
                if p[0] == "@KID":
                    super().__call__(f"s_mov_b32 s59, {DIAG_OFF + int(p[1]) * 0x80000}\ns_mov_b32 s57, {3 if int(p[1]) in (2, 5) else 2}")
                elif p[0] == "@INIT":
                    super().__call__("v_readfirstlane_b32 s58, v0\ns_memrealtime s[64:65]\ns_memtime s[66:67]")
                elif p[0] == "@STAMP":
                    i = int(p[1]); super().__call__(f"s_memtime s[{64+2*i}:{65+2*i}]")
                elif p[0] == "@FLUSH":
                    n = int(p[1])
                    super().__call__(f"""
                    s_waitcnt vmcnt(0)
                    s_memtime s[{64+2*n}:{65+2*n}]
                    s_memrealtime s[{66+2*n}:{67+2*n}]
                    s_waitcnt lgkmcnt(0)
                    s_mov_b64 exec, -1
                    s_lshr_b32 s58, s58, 6
                    s_lshl_b32 s61, s2, s57
                    s_add_u32 s60, s58, s61
                    s_lshl_b32 s60, s60, 6
                    s_add_u32 s60, s60, s59
                    v_mov_b32 v1, s60
                    """)
                    for i in range(n + 2):
                        super().__call__(f"v_mov_b32 v2, s{64+2*i}\nglobal_store_dword v1, v2, s[4:5] offset:{4*i}")
                    super().__call__("s_getreg_b32 s61, hwreg(HW_REG_XCC_ID)\nv_mov_b32 v2, s61\nglobal_store_dword v1, v2, s[4:5] offset:60")
                    if DIAG == 2 and len(p) > 2:
                        lab = f"DG{len(self.lines)}"
                        txt = f"s_or_b32 s60, s2, s58\ns_cmp_lg_u32 s60, 0\ns_cbranch_scc1 {lab}\ns_load_dwordx2 s[62:63], s[0:1], {KA_DBG}\ns_waitcnt vmcnt(0) lgkmcnt(0)\n"
                        j = 0
                        for kid, nn in ((0, 6), (1, 13), (2, 13), (4, 13), (5, 13)):
                            for slot in (0, nn + 1):
                                txt += f"v_mov_b32 v1, {DIAG_OFF + kid * 0x80000 + 4 * slot}\nglobal_load_dword v2, v1, s[4:5] sc1\nv_mov_b32 v3, {4*j}\ns_waitcnt vmcnt(0)\nglobal_store_dword v3, v2, s[62:63]\n"
                                j += 1
                        for kid, slot in ((2, 1), (2, 3), (2, 5), (2, 9), (1, 1), (1, 5)):
                            txt += f"v_mov_b32 v1, {DIAG_OFF + kid * 0x80000 + 4 * slot}\nglobal_load_dword v2, v1, s[4:5] sc1\nv_mov_b32 v3, {4*j}\ns_waitcnt vmcnt(0)\nglobal_store_dword v3, v2, s[62:63]\n"
                            j += 1
                        super().__call__(txt + f"{lab}:")
                continue
            super().__call__(l)

def f2u(x): return struct.unpack("<I", struct.pack("<f", x))[0]
def fl(x): return "0x%08x" % f2u(x)
LOG2E = 1.4426950408889634
L2E_HI = struct.unpack("<f", struct.pack("<f", LOG2E))[0]
L2E_LO = LOG2E - L2E_HI
LN2 = 0.6931471805599453

def srd(k, s, base, nbytes):
    k(f"""
    s_mov_b32 s{s}, s{base}
    s_and_b32 s{s+1}, s{base+1}, 0xffff
    s_mov_b32 s{s+2}, {nbytes:#x}
    s_mov_b32 s{s+3}, 0x20000
    """)

def rnd_bf16(k, dst, a, b=None):
    k(f"v_cvt_pk_bf16_f32 v{dst}, v{a}, v{b if b is not None else a}")

def exp_acc(k, dst, x, t0, t1):
    k(f"""
    v_mul_f32 v{t0}, s40, v{x}
    v_fma_f32 v{t1}, s40, v{x}, -v{t0}
    v_fma_f32 v{t1}, s41, v{x}, v{t1}
    v_exp_f32 v{dst}, v{t0}
    v_mul_f32 v{t1}, s42, v{t1}
    v_fma_f32 v{dst}, v{dst}, v{t1}, v{dst}
    """)

N_K, N_T, N_W, N_D, N_C = 512, 256, 240, 176, 90
FUSE1 = int(os.environ.get('FUSE1', '1'))
C_SLEEP = int(os.environ.get('C_SLEEP', '0'))
C_WAITN = int(os.environ.get('C_WAITN', '1'))
F1_LD = os.environ.get('F1_LD', 'sc1')
F1_POLL = os.environ.get('F1_POLL', 'sc1')
WINC = os.environ.get('WINC', 'X')
_sz = {"C": N_C, "W": N_W, "D": N_D, "T": N_T}
B_K = 0
_pos = N_K; PREP_ROLES = []; _base = {}
for r in "CWTD":
    if r not in WINC:
        _base[r] = _pos; _pos += _sz[r]; PREP_ROLES.append((r, _pos))
PREP_WGS = _pos
_pos = 512; CONV_ROLES = []
for r in "CWD":
    if r in WINC:
        _base[r] = _pos; _pos += _sz[r]; CONV_ROLES.append((r, _pos))
B_E = _pos
B_C, B_W, B_T, B_D = _base["C"], _base["W"], _base["T"], _base["D"]
if FUSE1: B_T = 0; B_C = 0
PREP_GROUPS = [("prep.K", 0, N_K, 6)] + [("prep." + r, _base[r], e, 2) for r, e in PREP_ROLES]
if FUSE1: PREP_GROUPS = [("f1.TC", 0, N_C, 6), ("f1.T", N_C, N_T, 6)]
_lab = {"C": "P_C", "W": "P_W", "T": "P_TR", "D": "P_D"}
PREP_LDS = 18432
CSU = 4576
KL = 2 * CSU
CRED = KL + 16640
CONV_LDS = CRED + 24576
CPF = int(os.environ.get('CPF', '1'))
CPF_STRIDE = int(os.environ.get('CPF_STRIDE', '128'))
LOCALMAP0 = int(os.environ.get('LOCALMAP', '0'))
PFQ = int(os.environ.get('PFQ', '6144'))
SPIN_MAX = 1 << 20

class Remap:
    def __init__(self, k, voff, smap): self.k = k; self.voff = voff; self.smap = smap
    def __call__(self, t):
        def rv(m):
            if m.group(1): return f"v[{int(m.group(1))+self.voff}:{int(m.group(2))+self.voff}]"
            n = int(m.group(3)); return "v0" if n == 0 else f"v{n+self.voff}"
        t = re.sub(r"\bv\[(\d+):(\d+)\]|\bv(\d+)\b", rv, t)
        def rs(m):
            if m.group(1):
                a = int(m.group(1)); b = int(m.group(2))
                if a in self.smap: return f"s[{self.smap[a]}:{self.smap[a]+b-a}]"
                return m.group(0)
            n = int(m.group(3)); return f"s{self.smap.get(n, n)}"
        t = re.sub(r"\bs\[(\d+):(\d+)\]|\bs(\d+)\b", rs, t)
        self.k(t)
    def label(self, l): self.k.label(l)

class NoPk:
    def __init__(self, k): self.k = k
    def __call__(self, t):
        def f(m):
            d, a, b = int(m.group(1)), int(m.group(2)), int(m.group(3))
            return f"v_add_f32 v{d}, v{a}, v{b}\nv_add_f32 v{d+1}, v{a+1}, v{b+1}"
        self.k(re.sub(r"v_pk_add_f32 v\[(\d+):\d+\], v\[(\d+):\d+\], v\[(\d+):\d+\]", f, t))
    def label(self, l): self.k.label(l)
CONV_NOPK = int(os.environ.get('CONV_NOPK', '1'))

class UnitS:
    MAP = {12: 21, 13: 22, 14: 23, 15: 27, 16: 30, 17: 39, 18: 46, 19: 47, 21: 55, 3: 56}
    def __init__(self, k): self.k = k
    def __call__(self, t):
        self.k(re.sub(r"\bs(\d+)\b", lambda m: f"s{self.MAP.get(int(m.group(1)), int(m.group(1)))}", t))

class Remap2:
    def __init__(self, k, vmap): self.k = k; self.vmap = vmap
    def __call__(self, t):
        t = re.sub(r"\bv(\d+)\b", lambda m: f"v{self.vmap.get(int(m.group(1)), int(m.group(1)))}", t)
        self.k(t)

def conv_setup(k):
    k(f"""
    v_readfirstlane_b32 s17, v0
    s_mov_b32 s43, {fl(1.0/512)}
    s_mov_b32 s44, {fl(1e-5)}
    s_mov_b32 s45, {fl(1e-5)}
    s_mov_b32 s46, {fl(1.0/512)}
    s_mov_b32 s47, {fl(1.0/512)}
    s_lshr_b32 s17, s17, 6                ; pi
    s_mul_i32 s12, s2, {XP}
    s_add_u32 s13, s12, s30
    s_lshl_b32 s14, s2, 8
    s_add_u32 s14, s14, s32               ; out: d*256
    s_mul_i32 s15, s2, {KP_STRIDE}
    s_add_u32 s15, s15, {KP}
    s_lshr_b32 s16, s2, 1
    s_lshl_b32 s16, s16, 2
    v_lshlrev_b32 v1, 4, v0               ; tid*16
    v_and_b32 v3, 15, v0                  ; c / r
    v_bfe_u32 v4, v0, 4, 2                ; g
    v_and_b32 v5, 63, v0
    v_lshlrev_b32 v6, 4, v5               ; lane*16
    s_and_b32 s21, s2, 7
    v_bfe_u32 v2, v0, 1, 3
    v_xor_b32 v2, s21, v2
    v_lshlrev_b32 v2, 5, v2
    v_lshrrev_b32 v8, 4, v0
    v_lshl_add_u32 v2, v8, 17, v2
    v_and_b32 v8, 1, v0
    v_lshl_add_u32 v2, v8, 4, v2
    """)

def conv_loads(k, pol=""):
    k(f"""
    buffer_load_dwordx4 v[16:19], v1, s[8:11], s31 offen {pol}
    s_add_u32 s31, s31, 0x1000
    buffer_load_dwordx4 v[20:23], v1, s[8:11], s31 offen {pol}
    s_add_u32 s31, s31, 0x1000
    buffer_load_dwordx4 v[24:27], v1, s[8:11], s31 offen {pol}
    s_add_u32 s31, s31, 0x1000
    buffer_load_dwordx4 v[28:31], v1, s[8:11], s31 offen {pol}
    buffer_load_dwordx4 v[12:15], v1, s[8:11], s13 offen {pol}
    """)

def conv_p3(k, kzero=True):
    k(f"""
    v_mov_b32 v36, 0
    v_mov_b32 v37, 0
    v_mov_b32 v38, 0
    v_mov_b32 v39, 0
    """)
    if kzero: k(f"""
    v_bfe_u32 v9, v0, 2, 2
    v_mul_u32_u24 v9, {KCS}, v9
    v_and_b32 v10, 3, v0
    v_min_u32 v10, 2, v10
    v_lshl_add_u32 v9, v10, 4, v9
    ds_write_b128 v9, v[36:39] offset:{KL}
    """)
    k(f"""
    v_lshlrev_b32 v40, 3, v0
    s_sub_u32 s19, s18, {2 * (0x4300 - 128)}
    """)
    for e in range(11):
        k(f"v_add_u32 v{48+e}, {e-3}, v40")
        if e < 3: k(f"v_max_i32 v{48+e}, 0, v{48+e}")
        k(f"v_cvt_f32_u32 v{60+e}, v{48+e}")
    for e in range(0, 11, 2):
        k(f"v_cvt_pk_bf16_f32 v{72+e//2}, v{60+e}, v{min(61+e, 70)}")
    for e in range(11):
        src = 72 + e // 2
        if e & 1: k(f"v_lshrrev_b32 v{60+e}, 16, v{src}")
        else: k(f"v_and_b32 v{60+e}, 0xffff, v{src}")
        k(f"v_lshl_add_u32 v{60+e}, v{60+e}, 1, s19")
        k(f"v_lshl_add_u32 v{48+e}, v{48+e}, 1, s18")
    k("v_cmp_gt_u32 s[24:25], 17, v0")
    for e in range(11):
        k(f"v_cndmask_b32 v{48+e}, v{60+e}, v{48+e}, s[24:25]")
    k(f"""
    s_and_b32 s21, s17, 1
    s_sub_u32 s22, 56, s21
    s_mul_i32 s21, s21, {CSU}
    v_min_u32 v9, s22, v5
    v_lshl_add_u32 v9, v9, 3, s21
    ds_write_b64 v9, v[36:37]
    v_and_b32 v9, 1, v3
    v_mul_u32_u24 v9, {CSU}, v9
    v_lshrrev_b32 v10, 1, v3
    v_lshlrev_b32 v11, 2, v10
    v_sub_u32 v11, v11, v4
    s_lshl_b32 s21, s17, 2
    s_sub_u32 s21, 15, s21
    v_add_u32 v11, s21, v11
    v_lshl_add_u32 v9, v11, 4, v9         ; v9 = u addr
    v_and_b32 v7, 3, v3
    v_mul_u32_u24 v7, {KCS}, v7
    v_lshrrev_b32 v8, 2, v3
    v_add_u32 v8, v8, v4
    v_lshl_add_u32 v7, v8, 4, v7
    s_lshl_b32 s21, s17, 6
    s_add_u32 s21, s21, {KL}
    v_add_u32 v7, s21, v7                 ; v7 = K addr
    v_xor_b32 v8, v4, v10
    v_and_b32 v8, 3, v8
    v_lshlrev_b32 v8, 1, v8
    v_lshl_add_u32 v8, v10, 3, v8
    v_and_b32 v11, 1, v3
    v_add_u32 v8, v8, v11
    s_lshl_b32 s21, s17, 11
    v_lshl_add_u32 v10, v8, 4, s21
    v_bfe_u32 v8, v0, 2, 3
    v_xor_b32 v11, v8, v0
    v_and_b32 v11, 3, v11
    v_lshlrev_b32 v11, 5, v11
    v_lshl_add_u32 v11, v8, 7, v11
    v_bfe_u32 v8, v0, 5, 1
    v_lshl_add_u32 v11, v8, 10, v11
    s_lshl_b32 s21, s17, 13
    s_add_u32 s21, s21, {CRED}
    s_cmp_eq_u32 s17, 3
    s_cselect_b32 s21, {KL}, s21
    v_add_u32 v11, s21, v11
    """)

def conv_expand(k):
    k("""
    v_cmp_eq_u32 vcc, 0, v0
    s_waitcnt lgkmcnt(0)
    v_cndmask_b32 v48, v48, v36, vcc
    v_cndmask_b32 v49, v49, v36, vcc
    v_cndmask_b32 v50, v50, v36, vcc
    """)
    for sft in range(4):
        for j in range(4):
            k(f"v_lshl_or_b32 v{64+4*sft+j}, v{48+sft+6-2*j}, 16, v{48+sft+7-2*j}")
        k(f"ds_write_b128 v1, v[{64+4*sft}:{67+4*sft}] offset:{KL + sft*KCS + 48}")

def conv_norm(k):
    for j in range(4):
        k(f"""
        v_lshlrev_b32 v40, 16, v{12+j}
        v_and_b32 v41, 0xffff0000, v{12+j}
        v_sub_f32 v40, v40, v{16+4*j}
        v_sub_f32 v41, v41, v{18+4*j}
        v_cvt_pk_bf16_f32 v41, v40, v41
        v_lshlrev_b32 v40, 16, v41
        v_and_b32 v41, 0xffff0000, v41
        v_mul_f32 v40, v40, v{17+4*j}
        v_mul_f32 v41, v41, v{19+4*j}
        v_cvt_pk_bf16_f32 v{32+j}, v40, v41
        """)
    k(f"""
    ds_write_b128 v1, v[32:35] offset:{CSU + 16*28}
    ds_write2_b64 v1, v[32:33], v[34:35] offset0:57 offset1:58
    """)

def gen_prep():
    k = Kern("prep_kernel")
    k(f"""
    @KID 0
    @INIT
    s_load_dwordx2 s[4:5], s[0:1], {KA_WS}
    @CODEPF
    s_sub_u32 s26, s2, {B_K}
    s_cmp_lt_u32 s26, {N_K}
    s_cbranch_scc1 P_KGEN
    """)
    for r, e in PREP_ROLES: k(f"s_cmp_lt_u32 s2, {e}\ns_cbranch_scc1 {_lab[r]}")
    k(f"""
    s_endpgm
    P_WROLES:
    @KID 3
    @INIT
    s_load_dwordx2 s[4:5], s[0:1], {KA_WS}
    """)
    for r, e in CONV_ROLES: k(f"s_cmp_lt_u32 s2, {e}\ns_cbranch_scc1 {_lab[r]}")
    k("s_endpgm")
    k.label("P_KGEN")
    TB = 16384
    k(f"""
    s_load_dwordx4 s[8:11], s[0:1], {KA_LOGA}
    s_load_dwordx4 s[12:15], s[0:1], {KA_CRE}
    s_load_dwordx2 s[16:17], s[0:1], {KA_LOGDT}
    s_mov_b32 s40, {fl(L2E_HI)}
    s_mov_b32 s41, {fl(L2E_LO)}
    s_mov_b32 s42, {fl(LN2)}
    v_lshrrev_b32 v1, 1, v0
    v_and_b32 v1, 0x60, v1
    v_and_or_b32 v1, v0, 31, v1           ; n = 32 w + (lane & 31)
    s_lshl_b32 s3, s26, 8
    v_lshl_add_u32 v2, v1, 1, s3
    s_lshl_b32 s18, s26, 1
    v_mov_b32 v3, s18
    v_readfirstlane_b32 s19, v0
    s_lshr_b32 s19, s19, 6                ; wave
    s_waitcnt lgkmcnt(0)
    global_load_ushort v4, v2, s[8:9]
    global_load_ushort v8, v3, s[16:17]
    global_load_ushort v5, v2, s[10:11]
    global_load_ushort v6, v2, s[12:13]
    global_load_ushort v7, v2, s[14:15]
    v_and_b32 v20, 15, v0                 ; i / j
    v_bfe_u32 v21, v0, 4, 2               ; g
    ; hi0 = 128*(i>>3) + (i&7)
    v_lshrrev_b32 v23, 3, v20
    v_and_b32 v24, 7, v20
    v_lshl_add_u32 v23, v23, 7, v24
    v_cvt_f32_u32 v30, v23
    ; hi1 = (g''<2 ? 256+2g'' : 256*g'') + 128*((i>>1)&1) + 4*(i&1)
    v_lshrrev_b32 v23, 2, v20
    v_lshlrev_b32 v24, 1, v23
    v_add_u32 v24, 0x100, v24
    v_lshlrev_b32 v25, 8, v23
    v_cmp_gt_u32 vcc, 2, v23
    v_cndmask_b32 v24, v25, v24, vcc
    v_bfe_u32 v25, v20, 1, 1
    v_lshl_add_u32 v24, v25, 7, v24
    v_and_b32 v25, 1, v20
    v_lshl_add_u32 v24, v25, 2, v24
    v_cvt_f32_u32 v31, v24
    v_lshlrev_b32 v23, 7, v20
    v_add_u32 v23, 0x400, v23
    v_cvt_f32_u32 v32, v23                ; hi2
    v_lshlrev_b32 v23, 3, v20
    v_cvt_f32_u32 v33, v23                ; lo
    s_lshl_b32 s20, s19, 9
    v_lshl_add_u32 v34, v21, 6, s20
    v_lshrrev_b32 v23, 1, v21
    v_and_b32 v24, 1, v21
    v_lshlrev_b32 v24, 2, v24
    v_lshl_add_u32 v35, v23, 7, v24
    v_lshl_add_u32 v35, v20, 3, v35
    v_mov_b32 v36, 1
    v_mov_b32 v37, 2
    s_cmp_eq_u32 s19, 0
    s_cbranch_scc1 P_KA
    v_lshl_add_u32 v35, v21, 6, v20
    v_add_u32 v35, 0x200, v35
    v_mov_b32 v36, 16
    v_mov_b32 v37, 32
    s_cmp_lg_u32 s19, 1
    s_cbranch_scc1 P_KA
    v_lshl_add_u32 v23, v20, 2, v21
    v_add_u32 v23, 0x100, v23             ; seg1: 256 + g' + 4j ; o1=2 o2=64
    v_lshlrev_b32 v24, 6, v21
    v_lshl_add_u32 v24, v20, 1, v24
    v_add_u32 v24, 0x100, v24             ; seg2: 384 + 64(g'-2) + 2j ; o1=1 o2=32
    v_cmp_gt_u32 vcc, 2, v21
    v_cndmask_b32 v35, v24, v23, vcc
    v_cndmask_b32 v36, 1, 2, vcc
    v_cndmask_b32 v37, 32, 64, vcc
    P_KA:
    v_add_u32 v38, v36, v37
    v_add_lshl_u32 v36, v36, v35, 1
    v_add_lshl_u32 v37, v37, v35, 1
    v_add_lshl_u32 v38, v38, v35, 1
    v_lshlrev_b32 v35, 1, v35
    v_and_b32 v39, 63, v0
    v_lshlrev_b32 v39, 4, v39             ; lane*16
    s_waitcnt vmcnt(3)
    @STAMP 2
    v_lshlrev_b32 v4, 16, v4
    v_lshlrev_b32 v8, 16, v8
    """)
    exp_acc(k, 10, 8, 16, 17)
    exp_acc(k, 11, 4, 18, 19)
    k(f"""
    v_cvt_pk_bf16_f32 v10, v10, v11
    v_and_b32 v11, 0xffff0000, v10        ; eA
    v_lshlrev_b32 v10, 16, v10            ; dt
    v_mul_f32 v12, v11, v10
    v_mul_f32 v12, s40, v12
    v_sub_f32 v12, 0, v12
    s_waitcnt vmcnt(0)
    v_lshlrev_b32 v5, 16, v5
    v_lshlrev_b32 v6, 16, v6
    v_lshlrev_b32 v7, 16, v7
    v_mul_f32 v13, v5, v10
    v_mul_f32 v13, 0.15915494, v13
    v_add_f32 v10, v10, v10
    v_mul_f32 v14, v6, v10                ; 2*Cre*dt
    v_mul_f32 v15, v7, v10                ; 2*Cim*dt
    v_lshlrev_b32 v9, 4, v1
    ds_write_b128 v9, v[12:15]
    v_max3_f32 v16, |v14|, |v15|, 0
    v_max_f32_dpp v16, v16, v16 row_shr:1 row_mask:0xf bank_mask:0xf
    v_max_f32_dpp v16, v16, v16 row_shr:2 row_mask:0xf bank_mask:0xf
    v_max_f32_dpp v16, v16, v16 row_shr:4 row_mask:0xf bank_mask:0xf
    v_max_f32_dpp v16, v16, v16 row_shr:8 row_mask:0xf bank_mask:0xf
    v_max_f32_dpp v16, v16, v16 row_bcast:15 row_mask:0xa bank_mask:0xf
    v_readlane_b32 s23, v16, 31
    s_mov_b32 s20, 0
    @STAMP 3
    v_mov_b32 v16, s23
    v_bfe_u32 v16, v16, 23, 8
    v_max_u32 v16, 14, v16
    v_sub_u32 v17, 0x8c, v16
    v_cvt_f32_i32 v29, v17                ; kf = 140 - e'
    v_mov_b32 v28, 0
    v_subrev_u32 v16, 13, v16
    v_lshlrev_b32 v27, 23, v16            ; Sinv
    P_KLOOP:
    ds_read_b128 v[52:55], v34
    ds_read_b128 v[56:59], v34 offset:16
    ds_read_b128 v[60:63], v34 offset:32
    ds_read_b128 v[64:67], v34 offset:48
    v_add_u32 v34, 0x100, v34
    """)
    for nn in range(4):
        p = 52 + 4 * nn
        k(f"""
        s_waitcnt lgkmcnt({3-nn})
        v_pk_mul_f32 v[2:3], v[30:31], v[{p}:{p+1}] op_sel_hi:[1,0]
        v_pk_fma_f32 v[4:5], v[32:33], v[{p}:{p+1}], v[28:29] op_sel_hi:[1,0,1]
        v_pk_mul_f32 v[6:7], v[30:31], v[{p}:{p+1}] op_sel:[0,1] op_sel_hi:[1,1]
        v_pk_mul_f32 v[8:9], v[32:33], v[{p}:{p+1}] op_sel:[0,1] op_sel_hi:[1,1]
        v_exp_f32 v2, v2
        v_exp_f32 v3, v3
        v_exp_f32 v4, v4
        v_exp_f32 v5, v5
        v_fract_f32 v6, v6
        v_fract_f32 v7, v7
        v_fract_f32 v8, v8
        v_fract_f32 v9, v9
        v_cos_f32 v10, v6
        v_sin_f32 v11, v6
        v_cos_f32 v12, v7
        v_sin_f32 v13, v7
        v_cos_f32 v14, v8
        v_sin_f32 v15, v8
        v_cos_f32 v16, v9
        v_sin_f32 v17, v9
        v_pk_mul_f32 v[10:11], v[10:11], v[2:3] op_sel_hi:[1,0]
        v_pk_mul_f32 v[12:13], v[12:13], v[2:3] op_sel:[0,1] op_sel_hi:[1,1]
        v_pk_mul_f32 v[14:15], v[14:15], v[4:5] op_sel_hi:[1,0]
        v_pk_mul_f32 v[16:17], v[16:17], v[4:5] op_sel:[0,1] op_sel_hi:[1,1]
        v_cvt_pk_f16_f32 v{68+nn}, v10, v11
        v_cvt_pk_f16_f32 v{72+nn}, v12, v13
        v_cvt_pk_f16_f32 v{76+nn}, v14, v15
        v_pk_mul_f32 v[18:19], v[16:17], v[{p+2}:{p+3}] op_sel_hi:[1,0]
        v_pk_fma_f32 v[18:19], v[16:17], v[{p+2}:{p+3}], v[18:19] op_sel:[1,1,0] op_sel_hi:[0,1,1] neg_lo:[1,0,0]
        v_cvt_pk_f16_f32 v{80+nn}, v18, -v19
        """)
    k(f"""
    s_cmp_eq_u32 s20, 1
    s_cbranch_scc1 P_KL2
    v_mfma_f32_16x16x32_f16 v[40:43], v[68:71], v[80:83], 0
    v_mfma_f32_16x16x32_f16 v[44:47], v[72:75], v[80:83], 0
    v_mfma_f32_16x16x32_f16 v[48:51], v[76:79], v[80:83], 0
    s_mov_b32 s20, 1
    s_branch P_KLOOP
    P_KL2:
    v_mfma_f32_16x16x32_f16 v[40:43], v[68:71], v[80:83], v[40:43]
    v_mfma_f32_16x16x32_f16 v[44:47], v[72:75], v[80:83], v[44:47]
    v_mfma_f32_16x16x32_f16 v[48:51], v[76:79], v[80:83], v[48:51]
    @STAMP 4
    s_mul_i32 s20, s19, 3072
    v_add_u32 v2, s20, v39
    s_lshl_b32 s20, s19, 10
    v_add_u32 v3, s20, v39
    """)
    k("v_mov_b32 v26, v27")
    for r in range(40, 52, 2): k(f"v_pk_mul_f32 v[{r}:{r+1}], v[{r}:{r+1}], v[26:27]")
    k(f"""
    ds_write_b128 v2, v[40:43] offset:4096
    ds_write_b128 v2, v[44:47] offset:5120
    ds_write_b128 v2, v[48:51] offset:6144
    s_mul_i32 s3, s26, {KP_STRIDE}
    s_add_u32 s3, s3, {KP}
    v_lshlrev_b32 v1, 4, v0
    v_add_u32 v8, s3, v1
    s_waitcnt lgkmcnt(0)
    s_barrier
    s_cmp_eq_u32 s19, 3
    s_cbranch_scc1 P_KS
    ds_read_b128 v[40:43], v3 offset:4096
    ds_read_b128 v[44:47], v3 offset:{4096+3072}
    ds_read_b128 v[48:51], v3 offset:{4096+6144}
    ds_read_b128 v[4:7], v3 offset:{4096+9216}
    s_waitcnt lgkmcnt(2)
    v_pk_add_f32 v[40:41], v[40:41], v[44:45]
    v_pk_add_f32 v[42:43], v[42:43], v[46:47]
    s_waitcnt lgkmcnt(0)
    v_pk_add_f32 v[48:49], v[48:49], v[4:5]
    v_pk_add_f32 v[50:51], v[50:51], v[6:7]
    v_pk_add_f32 v[40:41], v[40:41], v[48:49]
    v_pk_add_f32 v[42:43], v[42:43], v[50:51]
    v_cvt_pk_bf16_f32 v40, v40, v41
    v_cvt_pk_bf16_f32 v42, v42, v43
    ds_write_b16 v35, v40 offset:{TB}
    ds_write_b16_d16_hi v36, v40 offset:{TB}
    ds_write_b16 v37, v42 offset:{TB}
    ds_write_b16_d16_hi v38, v42 offset:{TB}
    P_KS:
    s_waitcnt lgkmcnt(0)
    s_barrier
    @STAMP 5
    v_cmp_gt_u32 vcc, 0x60, v0
    s_and_saveexec_b64 s[22:23], vcc
    s_cbranch_execz P_KEND
    ds_read_b128 v[40:43], v1 offset:{TB}
    s_waitcnt lgkmcnt(0)
    global_store_dwordx4 v8, v[40:43], s[4:5]
    P_KEND:
    @FLUSH 6
    s_endpgm
    """)
    k.label("P_TR")
    PITCH = 144
    k(f"""
    s_load_dwordx2 s[8:9], s[0:1], {KA_U}
    s_load_dwordx4 s[16:19], s[0:1], {KA_WG}
    s_load_dwordx2 s[20:21], s[0:1], {KA_WD}
    s_sub_u32 s3, s2, {B_T}
    s_lshr_b32 s10, s3, 3                 ; lt (0..31)
    s_and_b32 s11, s3, 7                  ; dt (0..7)
    v_lshrrev_b32 v1, 3, v0               ; row 0..31
    v_and_b32 v2, 7, v0                   ; chunk
    s_lshl_b32 s12, s10, 16               ; lt*64*1024
    s_lshl_b32 s13, s11, 7
    s_add_u32 s12, s12, s13
    v_lshlrev_b32 v3, 10, v1
    v_lshl_add_u32 v3, v2, 4, v3
    v_add_u32 v3, s12, v3
    v_add_u32 v4, 0x8000, v3
    s_waitcnt lgkmcnt(0)
    global_load_dwordx4 v[8:11], v3, s[8:9]
    global_load_dwordx4 v[12:15], v4, s[8:9]
    v_lshrrev_b32 v41, 6, v0
    v_and_b32 v42, 63, v0
    s_lshl_b32 s14, s3, 13                ; 8 rows * 1024
    v_lshlrev_b32 v43, 11, v41
    v_lshl_add_u32 v43, v42, 4, v43
    v_add_u32 v43, s14, v43
    global_load_dwordx4 v[48:51], v43, s[8:9]
    global_load_dwordx4 v[52:55], v43, s[8:9] offset:1024
    s_setprio {LATE_PRIO}
    @WTOUCH
    v_mul_u32_u24 v5, {PITCH}, v1
    v_lshl_add_u32 v5, v2, 4, v5
    v_and_b32 v6, 15, v0                  ; lam
    v_bfe_u32 v7, v0, 4, 2                ; g
    v_lshrrev_b32 v16, 6, v0              ; w
    v_lshrrev_b32 v17, 2, v6              ; r = lam>>2
    v_lshl_add_u32 v17, v7, 3, v17        ; row = 8g + r
    v_mul_u32_u24 v17, {PITCH}, v17
    v_and_b32 v18, 3, v6
    v_lshl_add_u32 v17, v18, 3, v17       ; + c*8
    v_lshl_add_u32 v17, v16, 5, v17       ; + w*32 bytes
    """)
    if FUSE1:
        k(f"""
        s_setprio 3
        s_lshl_b32 s12, s10, 16
        s_lshl_b32 s13, s11, 12
        s_add_u32 s12, s12, s13
        s_add_u32 s12, s12, {XT0}
        v_lshl_add_u32 v19, v16, 4, v6
        v_lshlrev_b32 v19, 6, v19
        v_lshl_add_u32 v19, v7, 4, v19
        v_add_u32 v19, s12, v19
        v_add_u32 v44, 0x8000, v19
        """)
    else:
        k(f"""
    s_mul_i32 s12, s11, {64*XP}
    s_lshl_b32 s13, s10, 7
    s_add_u32 s12, s12, s13
    s_add_u32 s12, s12, {XT0}
    v_lshl_add_u32 v19, v16, 4, v6
    v_mul_u32_u24 v19, {XP}, v19
    v_lshl_add_u32 v19, v7, 4, v19
    v_add_u32 v19, s12, v19
        v_add_u32 v44, 64, v19
        """)
    k(f"""
    s_waitcnt vmcnt({5 if WTOUCH else 2})
    @STAMP 2
    ds_write_b128 v5, v[8:11]
    ds_write_b128 v5, v[12:15] offset:{32*PITCH}
    s_waitcnt lgkmcnt(0)
    s_barrier
    ds_read_b64_tr_b16 v[8:9], v17
    ds_read_b64_tr_b16 v[10:11], v17 offset:{4*PITCH}
    ds_read_b64_tr_b16 v[12:13], v17 offset:{32*PITCH}
    ds_read_b64_tr_b16 v[14:15], v17 offset:{36*PITCH}
    s_waitcnt lgkmcnt(0)
    global_store_dwordx4 v19, v[8:11], s[4:5] {'sc1' if FUSE1 else PREP_X_POL}
    global_store_dwordx4 v44, v[12:15], s[4:5] {'sc1' if FUSE1 else PREP_X_POL}
    """)
    k(f"""
    v_mov_b32 v2, v42
    s_lshl_b32 s10, s3, 4
    v_lshlrev_b32 v4, 12, v41
    v_add_u32 v4, s10, v4                 ; w*4096 + wg*16
    v_add_u32 v5, {ST0}, v4
    v_add_u32 v6, {ST1}, v4
    s_waitcnt vmcnt({5 if WTOUCH else 2})
    """)
    for row, (base, sm, sq) in enumerate([(48, 20, 21), (52, 22, 23)]):
        for j in range(4):
            k(f"v_lshlrev_b32 v16, 16, v{base+j}")
            k(f"v_and_b32 v17, 0xffff0000, v{base+j}")
            if j == 0:
                k(f"v_add_f32 v{sm}, v16, v17")
                k(f"v_mul_f32 v{sq}, v16, v16")
            else:
                k(f"v_add_f32 v{sm}, v{sm}, v16")
                k(f"v_add_f32 v{sm}, v{sm}, v17")
                k(f"v_fmac_f32 v{sq}, v16, v16")
            k(f"v_fmac_f32 v{sq}, v17, v17")
    for sh in ("row_shr:1", "row_shr:2", "row_shr:4", "row_shr:8"):
        for r in range(20, 24):
            k(f"v_add_f32_dpp v{r}, v{r}, v{r} {sh} row_mask:0xf bank_mask:0xf bound_ctrl:0")
    for r in range(20, 24):
        k(f"v_add_f32_dpp v{r}, v{r}, v{r} row_bcast:15 row_mask:0xa bank_mask:0xf")
    for r in range(20, 24):
        k(f"v_add_f32_dpp v{r}, v{r}, v{r} row_bcast:31 row_mask:0xc bank_mask:0xf")
    if FUSE1:
        k(f"s_mov_b32 s43, {fl(1.0/512)}\ns_mov_b32 s44, {fl(1e-5)}")
        stats_pair(k, 20, 21, 22, 23, 40)
    k(f"""
    v_mov_b32 v24, 0
    v_mov_b32 v25, 0
    v_mov_b32 v26, 0
    v_mov_b32 v27, 0
    s_lshl_b32 s10, s3, 9
    s_add_u32 s10, s10, {ZR}
    v_and_b32 v7, 31, v0
    v_lshl_add_u32 v7, v7, 4, s10
    global_store_dwordx4 v7, v[24:27], s[4:5]
    v_cmp_eq_u32 vcc, 63, v2
    s_and_saveexec_b64 s[22:23], vcc
    global_store_dwordx4 v5, v[20:23], s[4:5] {'sc1' if FUSE1 else ''}
    global_store_dwordx4 v6, v[24:27], s[4:5]
    """)
    if FUSE1:
        k(f"""
        s_mov_b64 exec, -1
        s_and_b32 s10, s2, 3
        s_lshl_b32 s10, s10, 6
        v_mov_b32 v8, s10
        v_mov_b32 v9, 1
        v_cmp_eq_u32 vcc, 0, v0
        @STAMP 3
        s_waitcnt vmcnt(0)
        s_barrier
        @STAMP 4
        v_readfirstlane_b32 s10, v0
        s_cmp_lg_u32 s10, 0
        s_cbranch_scc1 P_TEND
        s_mov_b64 exec, 1
        global_atomic_add v10, v8, v9, s[28:29] sc0 sc1
        s_waitcnt vmcnt(0)
        v_readfirstlane_b32 s10, v10
        s_cmp_lg_u32 s10, {N_T // 4 - 1}
        s_cbranch_scc1 P_TEND
        v_mov_b32 v8, 8
        global_atomic_add v8, v9, s[28:29] sc1
        s_mov_b64 exec, -1
        v_lshlrev_b32 v8, 7, v0
        v_add_u32 v8, {GFB}, v8
        s_mov_b64 exec, {(1 << GFN) - 1 if GFN < 64 else -1}
        global_atomic_add v8, v9, s[4:5] sc1
        P_TEND:
        s_mov_b64 exec, -1
        s_setprio 0
        @STAMP 5
        s_cmp_lt_u32 s2, {N_C}
        s_cbranch_scc1 P_C
        """)
    k(f"""
    @FLUSH {6 if FUSE1 else 2}
    s_endpgm
    """)
    k.label("P_W")
    WPITCH = 400
    k(f"""
    s_load_dwordx4 s[8:11], s[0:1], {KA_WG}
    s_sub_u32 s3, s2, {B_W}
    s_lshr_b32 s12, s3, 4                 ; ft
    s_and_b32 s13, s3, 15                 ; s
    """)
    k(f"""
    s_mul_i32 s14, s13, {32*F*2}
    s_mul_i32 s15, s12, 192
    s_add_u32 s14, s14, s15
    s_mul_i32 s16, s12, 12
    s_mov_b32 s17, 0x15555556
    """)
    k(f"v_mov_b32 v5, {F//8}")
    for i in range(2):
        k(f"""
        v_add_u32 v1, {256*i}, v0
        v_mul_hi_u32 v2, v1, s17
        v_mul_u32_u24 v3, 12, v2
        v_sub_u32 v3, v1, v3                  ; chunk
        v_mul_u32_u24 v4, {F*2}, v2
        v_lshl_add_u32 v4, v3, 4, v4
        v_add_u32 v{40+i}, s14, v4
        v_mul_u32_u24 v4, {WPITCH}, v2
        v_lshl_add_u32 v{42+i}, v3, 5, v4
        v_add_u32 v3, s16, v3
        v_cmp_gt_u32 s[{24+2*i}:{25+2*i}], v5, v3
        """)
    for r in range(8, 24): k(f"v_mov_b32 v{r}, 0")
    k(f"""
    v_cmp_gt_u32 vcc, 0x80, v0
    s_and_b64 s[26:27], s[26:27], vcc
    s_waitcnt lgkmcnt(0)
    s_mov_b64 s[28:29], exec
    s_mov_b64 exec, s[24:25]
    s_cbranch_execz P_W1
    global_load_dwordx4 v[8:11], v40, s[8:9]
    global_load_dwordx4 v[12:15], v40, s[10:11]
    P_W1:
    s_mov_b64 exec, s[26:27]
    s_cbranch_execz P_W2
    global_load_dwordx4 v[16:19], v41, s[8:9]
    global_load_dwordx4 v[20:23], v41, s[10:11]
    P_W2:
    s_setprio {LATE_PRIO}
    s_mov_b64 exec, s[28:29]
    s_waitcnt vmcnt(0)
    ds_write2_b32 v42, v8, v9 offset0:0 offset1:2
    ds_write2_b32 v42, v10, v11 offset0:4 offset1:6
    ds_write2_b32 v42, v12, v13 offset0:1 offset1:3
    ds_write2_b32 v42, v14, v15 offset0:5 offset1:7
    s_and_saveexec_b64 s[28:29], vcc
    s_cbranch_execz P_W3
    ds_write2_b32 v43, v16, v17 offset0:0 offset1:2
    ds_write2_b32 v43, v18, v19 offset0:4 offset1:6
    ds_write2_b32 v43, v20, v21 offset0:1 offset1:3
    ds_write2_b32 v43, v22, v23 offset0:5 offset1:7
    P_W3:
    s_mov_b64 exec, s[28:29]
    v_and_b32 v1, 15, v0
    v_bfe_u32 v2, v0, 4, 2
    v_lshrrev_b32 v3, 2, v1
    v_lshl_add_u32 v3, v2, 2, v3
    v_mul_u32_u24 v3, {WPITCH}, v3
    v_and_b32 v4, 3, v1
    v_lshl_add_u32 v3, v4, 3, v3
    v_readfirstlane_b32 s18, v0
    s_lshr_b32 s18, s18, 6                ; w
    s_lshl_b32 s19, s18, 7
    s_mov_b32 s20, 32
    s_cmp_eq_u32 s18, 3
    s_cselect_b32 s19, 96, s19
    s_cselect_b32 s20, 128, s20
    v_add_u32 v3, s19, v3
    v_add_u32 v4, s20, v3
    v_add_u32 v5, s20, v4
    s_lshl_b32 s21, s12, 2
    s_add_u32 s21, s21, s18
    s_lshl_b32 s21, s21, 4
    s_add_u32 s21, s21, s13
    s_mul_i32 s21, s21, 3072
    s_add_u32 s21, s21, {WP}
    v_and_b32 v6, 63, v0
    v_lshlrev_b32 v6, 4, v6
    v_add_u32 v6, s21, v6
    v_add_u32 v7, 0x400, v6
    v_add_u32 v24, 0x800, v6
    s_waitcnt lgkmcnt(0)
    s_barrier
    ds_read_b64_tr_b16 v[8:9], v3
    ds_read_b64_tr_b16 v[10:11], v3 offset:{16*WPITCH}
    ds_read_b64_tr_b16 v[12:13], v4
    ds_read_b64_tr_b16 v[14:15], v4 offset:{16*WPITCH}
    ds_read_b64_tr_b16 v[16:17], v5
    ds_read_b64_tr_b16 v[18:19], v5 offset:{16*WPITCH}
    s_waitcnt lgkmcnt(0)
    global_store_dwordx4 v6, v[8:11], s[4:5] {PREP_W_POL}
    global_store_dwordx4 v7, v[12:15], s[4:5] {PREP_W_POL}
    global_store_dwordx4 v24, v[16:19], s[4:5] {PREP_W_POL}
    @FLUSH 2
    s_endpgm
    """)
    k.label("P_D")
    DPITCH = 272
    k(f"""
    s_load_dwordx2 s[8:9], s[0:1], {KA_WD}
    s_sub_u32 s3, s2, {B_D}
    s_lshr_b32 s12, s3, 2                 ; ks 0..43
    s_and_b32 s13, s3, 3                  ; dq
    v_lshrrev_b32 v1, 4, v0               ; row 0..15 (+16)
    v_and_b32 v2, 15, v0                  ; chunk
    s_lshl_b32 s14, s12, 15               ; ks*32*1024
    s_lshl_b32 s15, s13, 8
    s_add_u32 s14, s14, s15
    v_lshlrev_b32 v3, 10, v1
    v_lshl_add_u32 v3, v2, 4, v3
    v_add_u32 v3, s14, v3
    v_add_u32 v4, 0x4000, v3
    """)
    for r in range(8, 16): k(f"v_mov_b32 v{r}, 0")
    k(f"""
    s_waitcnt lgkmcnt(0)
    s_cmp_ge_u32 s12, 43
    s_cbranch_scc1 P_D1
    global_load_dwordx4 v[8:11], v3, s[8:9]
    global_load_dwordx4 v[12:15], v4, s[8:9]
    P_D1:
    s_setprio {LATE_PRIO}
    v_bfe_u32 v5, v1, 1, 2                ; g
    v_lshrrev_b32 v6, 3, v1               ; dw (0/1)
    v_and_b32 v7, 1, v1
    v_lshl_add_u32 v7, v6, 1, v7
    v_lshl_add_u32 v7, v5, 3, v7          ; rho
    v_mul_u32_u24 v7, {DPITCH}, v7
    v_lshl_add_u32 v7, v2, 4, v7
    v_and_b32 v1, 15, v0
    v_bfe_u32 v2, v0, 4, 2
    v_lshrrev_b32 v16, 6, v0
    v_lshrrev_b32 v3, 2, v1
    v_lshl_add_u32 v3, v2, 3, v3          ; row = 8g + r
    v_mul_u32_u24 v3, {DPITCH}, v3
    v_and_b32 v4, 3, v1
    v_lshl_add_u32 v3, v4, 3, v3          ; + c*8 bytes (4 d)
    v_lshl_add_u32 v3, v16, 6, v3         ; + w*64
    s_lshl_b32 s16, s13, 3
    v_lshl_add_u32 v17, v16, 1, s16
    v_mul_u32_u24 v17, {NKS2*1024}, v17
    v_and_b32 v18, 63, v0
    v_lshl_add_u32 v17, v18, 4, v17
    s_lshl_b32 s16, s12, 10
    s_add_u32 s16, s16, {WD}
    v_add_u32 v17, s16, v17
    v_add_u32 v18, {NKS2*1024}, v17
    s_waitcnt vmcnt(0)
    ds_write_b128 v7, v[8:11]
    ds_write_b128 v7, v[12:15] offset:{4*DPITCH}
    s_waitcnt lgkmcnt(0)
    s_barrier
    ds_read_b64_tr_b16 v[8:9], v3
    ds_read_b64_tr_b16 v[10:11], v3 offset:{4*DPITCH}
    ds_read_b64_tr_b16 v[12:13], v3 offset:32
    ds_read_b64_tr_b16 v[14:15], v3 offset:{4*DPITCH+32}
    s_waitcnt lgkmcnt(0)
    global_store_dwordx4 v17, v[8:11], s[4:5] {PREP_W_POL}
    global_store_dwordx4 v18, v[12:15], s[4:5] {PREP_W_POL}
    @FLUSH 2
    s_endpgm
    """)
    k.label("P_C")
    k(f"""
    s_load_dwordx4 s[8:11], s[0:1], {KA_WG}
    s_sub_u32 s3, s2, {B_C}
    s_and_b32 s12, s3, 1                  ; mat
    s_lshr_b32 s13, s3, 1                 ; cb 0..44
    v_lshrrev_b32 v1, 2, v0
    v_and_b32 v2, 3, v0                   ; chunk
    s_lshl_b32 s14, s13, 6
    v_mul_u32_u24 v4, {F*2}, v1
    v_lshl_add_u32 v4, v2, 4, v4
    v_add_u32 v4, s14, v4
    """)
    for r in range(8, 16): k(f"v_mov_b32 v{r}, 0")
    k(f"""
    s_waitcnt lgkmcnt(0)
    s_cmp_eq_u32 s12, 1
    s_cselect_b32 s8, s10, s8
    s_cselect_b32 s9, s11, s9
    s_cmp_ge_u32 s13, 43
    s_cbranch_scc1 P_C2
    """)
    for i in range(8):
        k(f"global_load_dwordx4 v[{16+4*i}:{19+4*i}], v4, s[8:9]")
        if i < 7: k(f"v_add_u32 v4, {64*F*2}, v4")
    k(f"s_setprio {LATE_PRIO}")
    for i in range(8):
        k(f"s_waitcnt vmcnt({7-i})")
        for j in range(4):
            k(f"v_lshlrev_b32 v6, 16, v{16+4*i+j}")
            k(f"v_and_b32 v7, 0xffff0000, v{16+4*i+j}")
            k(f"v_pk_add_f32 v[{8+2*j}:{9+2*j}], v[{8+2*j}:{9+2*j}], v[6:7]")
    for sh in ("row_shr:4", "row_shr:8"):
        for r in range(8, 16):
            k(f"v_add_f32_dpp v{r}, v{r}, v{r} {sh} row_mask:0xf bank_mask:0xf bound_ctrl:0")
    k(f"""
    P_C2:
    v_lshrrev_b32 v6, 4, v0
    v_lshlrev_b32 v6, 7, v6
    v_lshl_add_u32 v6, v2, 5, v6
    v_and_b32 v7, 12, v0
    v_cmp_eq_u32 vcc, 12, v7
    s_and_saveexec_b64 s[46:47], vcc
    ds_write_b128 v6, v[8:11]
    ds_write_b128 v6, v[12:15] offset:16
    s_mov_b64 exec, s[46:47]
    s_waitcnt lgkmcnt(0)
    s_barrier
    v_cmp_gt_u32 vcc, 32, v0
    s_and_saveexec_b64 s[46:47], vcc
    s_cbranch_execz P_C3
    v_lshlrev_b32 v6, 2, v0
    """)
    for i in range(16):
        k(f"ds_read_b32 v{16+i}, v6 offset:{128*i}")
    k(f"""
    s_mul_i32 s14, s13, 0x5556
    s_lshr_b32 s14, s14, 16               ; ft
    s_mul_i32 s15, s14, 3
    s_sub_u32 s15, s13, s15               ; j
    s_mul_i32 s16, s15, 3
    s_add_u32 s17, s15, 9
    v_lshrrev_b32 v5, 3, v0               ; dw
    v_add_u32 v7, s16, v5
    v_mov_b32 v8, s17
    v_cmp_eq_u32 vcc, 3, v5
    v_cndmask_b32 v7, v7, v8, vcc         ; w*3+tau
    s_mul_i32 s14, s14, 12
    v_add_u32 v7, s14, v7
    v_lshlrev_b32 v7, 4, v7
    v_bfe_u32 v8, v0, 1, 2
    v_lshl_add_u32 v7, v8, 2, v7
    v_and_b32 v8, 1, v0
    v_add_u32 v7, v7, v8
    s_lshl_b32 s14, s12, 1
    v_add_u32 v7, s14, v7
    v_lshlrev_b32 v7, 2, v7
    v_add_u32 v7, {CSUM}, v7
    s_waitcnt lgkmcnt(0)
    """)
    for st in (8, 4, 2, 1):
        for i in range(st):
            k(f"v_add_f32 v{16+i}, v{16+i}, v{16+i+st}")
    k(f"""
    global_store_dword v7, v16, s[4:5]
    P_C3:
    @FLUSH {6 if FUSE1 else 2}
    s_endpgm
    """)
    return k, dict(vgpr=96, sgpr=48, accum=96, grid=PREP_WGS, block=256, lds=PREP_LDS)


def stats_pair(k, sa, qa, sb, qb, t, keep=None):
    for s_, q_ in ((sa, qa), (sb, qb)):
        k(f"""
        v_mul_f32 v{s_}, s43, v{s_}
        v_mul_f32 v{q_}, s43, v{q_}
        v_fma_f32 v{q_}, -v{s_}, v{s_}, v{q_}
        v_max_f32 v{q_}, 0, v{q_}
        v_cvt_pk_bf16_f32 v{q_}, v{s_}, v{q_}
        v_lshlrev_b32 v{s_}, 16, v{q_}
        v_and_b32 v{q_}, 0xffff0000, v{q_}
        v_add_f32 v{q_}, s44, v{q_}
        """)
    k(f"""
    v_cvt_pk_bf16_f32 v{t}, v{qa}, v{qb}
    v_lshlrev_b32 v{qa}, 16, v{t}
    v_and_b32 v{qb}, 0xffff0000, v{t}
    v_sqrt_f32 v{qa}, v{qa}
    v_sqrt_f32 v{qb}, v{qb}
    v_cvt_pk_bf16_f32 v{t}, v{qa}, v{qb}
    v_lshlrev_b32 v{keep[0] if keep else qa}, 16, v{t}
    v_and_b32 v{keep[1] if keep else qb}, 0xffff0000, v{t}
    v_rcp_f32 v{qa}, v{keep[0] if keep else qa}
    v_rcp_f32 v{qb}, v{keep[1] if keep else qb}
    """)


def conv_stats_norm(k, wait_x):
    for i in range(4):
        b = 16 + 4 * i
        k(f"""
        v_pk_mul_f32 v[{b}:{b+1}], v[{b}:{b+1}], s[46:47]
        v_pk_mul_f32 v[{b+2}:{b+3}], v[{b+2}:{b+3}], s[46:47]
        v_fma_f32 v{b+1}, -v{b}, v{b}, v{b+1}
        v_fma_f32 v{b+3}, -v{b+2}, v{b+2}, v{b+3}
        v_cvt_pk_bf16_f32 v{b}, v{b}, v{b+2}          ; (m_a, m_b)
        v_cvt_pk_bf16_f32 v{b+2}, v{b+1}, v{b+3}
        v_and_b32 v{b+1}, 0xffff0000, v{b}
        v_lshlrev_b32 v{b}, 16, v{b}                  ; v[b:b+1] = (m_a, m_b) f32
        v_and_b32 v{b+3}, 0xffff0000, v{b+2}
        v_lshlrev_b32 v{b+2}, 16, v{b+2}
        v_max_f32 v{b+2}, 0, v{b+2}
        v_max_f32 v{b+3}, 0, v{b+3}
        v_pk_add_f32 v[{b+2}:{b+3}], v[{b+2}:{b+3}], s[44:45]
        v_cvt_pk_bf16_f32 v{b+2}, v{b+2}, v{b+3}
        v_and_b32 v{b+3}, 0xffff0000, v{b+2}
        v_lshlrev_b32 v{b+2}, 16, v{b+2}
        v_sqrt_f32 v{b+2}, v{b+2}
        v_sqrt_f32 v{b+3}, v{b+3}
        """)
    for i in range(4):
        b = 16 + 4 * i
        k(f"""
        v_cvt_pk_bf16_f32 v{b+2}, v{b+2}, v{b+3}
        v_and_b32 v{b+3}, 0xffff0000, v{b+2}
        v_lshlrev_b32 v{b+2}, 16, v{b+2}
        v_rcp_f32 v{b+2}, v{b+2}
        v_rcp_f32 v{b+3}, v{b+3}
        """)
    k(wait_x)
    for j in range(4):
        b = 16 + 4 * j
        k(f"""
        v_lshlrev_b32 v40, 16, v{12+j}
        v_and_b32 v41, 0xffff0000, v{12+j}
        v_pk_add_f32 v[40:41], v[40:41], v[{b}:{b+1}] neg_lo:[0,1] neg_hi:[0,1]
        v_cvt_pk_bf16_f32 v41, v40, v41
        v_lshlrev_b32 v40, 16, v41
        v_and_b32 v41, 0xffff0000, v41
        v_pk_mul_f32 v[40:41], v[40:41], v[{b+2}:{b+3}]
        v_cvt_pk_bf16_f32 v{32+j}, v40, v41
        """)
    k(f"""
    ds_write_b128 v1, v[32:35] offset:{CSU + 16*28}
    ds_write2_b64 v1, v[32:33], v[34:35] offset0:57 offset1:58
    """)

def gen_f1():
    k = Kern("f1")
    WPITCH = 400; DPITCH = 272
    US = 0
    KS = CRED; TB = KS + 2304
    k(f"""
    f1_kernel:
    @KID 0
    @INIT
    s_load_dwordx2 s[4:5], s[0:1], {KA_WS}
    s_load_dwordx2 s[28:29], s[0:1], {KA_DBG}
    @CODEPF
    s_cmp_lt_u32 s2, {N_T}
    s_cbranch_scc1 P_TR
    s_cmp_ge_u32 s2, {N_T + N_K}
    s_cbranch_scc1 CONV_END
    """)
    kk = Remap(k, 64, {19: 33, 20: 34, 23: 35, 24: 36, 3: 37, 22: 38, 18: 45})
    kk(f"""
    @KID 1
    s_load_dwordx4 s[8:11], s[0:1], {KA_LOGA}
    s_load_dwordx4 s[12:15], s[0:1], {KA_CRE}
    s_load_dwordx2 s[16:17], s[0:1], {KA_LOGDT}
    s_load_dwordx2 s[6:7], s[0:1], {KA_DSKIP}
    s_load_dwordx4 s[48:51], s[0:1], {KA_WG}
    s_load_dwordx2 s[52:53], s[0:1], {KA_WD}
    s_sub_u32 s2, s2, {N_T}
    s_mov_b32 s40, {fl(L2E_HI)}
    s_mov_b32 s41, {fl(L2E_LO)}
    s_mov_b32 s42, {fl(LN2)}
    v_lshrrev_b32 v1, 1, v0
    v_and_b32 v1, 0x60, v1
    v_and_or_b32 v1, v0, 31, v1           ; n = 32 w + (lane & 31)
    s_lshl_b32 s3, s2, 8
    v_lshl_add_u32 v2, v1, 1, s3
    s_lshl_b32 s18, s2, 1
    v_mov_b32 v3, s18
    v_readfirstlane_b32 s19, v0
    s_lshr_b32 s19, s19, 6                ; wave
    v_and_b32 v20, 15, v0                 ; i / j
    v_bfe_u32 v21, v0, 4, 2               ; g
    ; hi0 = 128*(i>>3) + (i&7)
    v_lshrrev_b32 v23, 3, v20
    v_and_b32 v24, 7, v20
    v_lshl_add_u32 v23, v23, 7, v24
    v_cvt_f32_u32 v30, v23
    ; hi1 = (g''<2 ? 256+2g'' : 256*g'') + 128*((i>>1)&1) + 4*(i&1)
    v_lshrrev_b32 v23, 2, v20
    v_lshlrev_b32 v24, 1, v23
    v_add_u32 v24, 0x100, v24
    v_lshlrev_b32 v25, 8, v23
    v_cmp_gt_u32 vcc, 2, v23
    v_cndmask_b32 v24, v25, v24, vcc
    v_bfe_u32 v25, v20, 1, 1
    v_lshl_add_u32 v24, v25, 7, v24
    v_and_b32 v25, 1, v20
    v_lshl_add_u32 v24, v25, 2, v24
    v_cvt_f32_u32 v31, v24
    v_lshlrev_b32 v23, 7, v20
    v_add_u32 v23, 0x400, v23
    v_cvt_f32_u32 v32, v23                ; hi2
    v_lshlrev_b32 v23, 3, v20
    v_cvt_f32_u32 v33, v23                ; lo
    s_lshl_b32 s20, s19, 9
    v_lshl_add_u32 v34, v21, 6, s20
    v_lshrrev_b32 v23, 1, v21
    v_and_b32 v24, 1, v21
    v_lshlrev_b32 v24, 2, v24
    v_lshl_add_u32 v35, v23, 7, v24
    v_lshl_add_u32 v35, v20, 3, v35
    v_mov_b32 v36, 1
    v_mov_b32 v37, 2
    s_cmp_eq_u32 s19, 0
    s_cbranch_scc1 F_KA
    v_lshl_add_u32 v35, v21, 6, v20
    v_add_u32 v35, 0x200, v35
    v_mov_b32 v36, 16
    v_mov_b32 v37, 32
    s_cmp_lg_u32 s19, 1
    s_cbranch_scc1 F_KA
    v_lshl_add_u32 v23, v20, 2, v21
    v_add_u32 v23, 0x100, v23             ; seg1: 256 + g' + 4j ; o1=2 o2=64
    v_lshlrev_b32 v24, 6, v21
    v_lshl_add_u32 v24, v20, 1, v24
    v_add_u32 v24, 0x100, v24             ; seg2: 384 + 64(g'-2) + 2j ; o1=1 o2=32
    v_cmp_gt_u32 vcc, 2, v21
    v_cndmask_b32 v35, v24, v23, vcc
    v_cndmask_b32 v36, 1, 2, vcc
    v_cndmask_b32 v37, 32, 64, vcc
    F_KA:
    v_add_u32 v38, v36, v37
    v_add_lshl_u32 v36, v36, v35, 1
    v_add_lshl_u32 v37, v37, v35, 1
    v_add_lshl_u32 v38, v38, v35, 1
    v_lshlrev_b32 v35, 1, v35
    v_and_b32 v39, 63, v0
    v_lshlrev_b32 v39, 4, v39             ; lane*16
    s_waitcnt lgkmcnt(0)
    global_load_ushort v84, v2, s[8:9]
    @GFLOAD
    global_load_ushort v85, v3, s[16:17]
    global_load_ushort v86, v2, s[10:11]
    global_load_ushort v87, v2, s[12:13]
    global_load_ushort v88, v2, s[14:15]
    v_mov_b32 v89, v1
    """)
    k(f"""
    s_mov_b32 s30, 0
    s_mov_b32 s31, {ST0}
    s_mov_b32 s32, {X1T}
    s_mov_b32 s18, {TB}
    """)
    conv_setup(k)
    k("s_load_dword s20, s[6:7], s16")
    srd(k, 8, 4, WS_BYTES)
    conv_p3(k, kzero=False)
    k(f"""
    v_and_b32 v61, 3, v0
    v_mov_b32 v62, 0
    v_lshrrev_b32 v60, 2, v0
    v_lshlrev_b32 v60, 15, v60
    v_lshl_add_u32 v60, v61, 4, v60       ; x voffset
    s_lshl_b32 s13, s2, 6
    s_add_u32 s13, s13, {XT0}
    """)
    k("s_waitcnt vmcnt(0)")
    kk(f"""
    v_mov_b32 v4, v84
    v_mov_b32 v8, v85
    v_mov_b32 v5, v86
    v_mov_b32 v6, v87
    v_mov_b32 v7, v88
    v_mov_b32 v1, v89
    @STAMP 10
    v_lshlrev_b32 v4, 16, v4
    v_lshlrev_b32 v8, 16, v8
    """)
    exp_acc(kk, 10, 8, 16, 17)
    exp_acc(kk, 11, 4, 18, 19)
    kk(f"""
    v_cvt_pk_bf16_f32 v10, v10, v11
    v_and_b32 v11, 0xffff0000, v10        ; eA
    v_lshlrev_b32 v10, 16, v10            ; dt
    v_mul_f32 v12, v11, v10
    v_mul_f32 v12, s40, v12
    v_sub_f32 v12, 0, v12
    v_lshlrev_b32 v5, 16, v5
    v_lshlrev_b32 v6, 16, v6
    v_lshlrev_b32 v7, 16, v7
    v_mul_f32 v13, v5, v10
    v_mul_f32 v13, 0.15915494, v13
    v_add_f32 v10, v10, v10
    v_mul_f32 v14, v6, v10                ; 2*Cre*dt
    v_mul_f32 v15, v7, v10                ; 2*Cim*dt
    v_lshlrev_b32 v9, 4, v1
    ds_write_b128 v9, v[12:15] offset:{KS}
    v_max3_f32 v16, |v14|, |v15|, 0
    v_max_f32_dpp v16, v16, v16 row_shr:1 row_mask:0xf bank_mask:0xf
    v_max_f32_dpp v16, v16, v16 row_shr:2 row_mask:0xf bank_mask:0xf
    v_max_f32_dpp v16, v16, v16 row_shr:4 row_mask:0xf bank_mask:0xf
    v_max_f32_dpp v16, v16, v16 row_shr:8 row_mask:0xf bank_mask:0xf
    v_max_f32_dpp v16, v16, v16 row_bcast:15 row_mask:0xa bank_mask:0xf
    v_readlane_b32 s23, v16, 31
    s_mov_b32 s20, 0
    @STAMP 11
    v_mov_b32 v16, s23
    v_bfe_u32 v16, v16, 23, 8
    v_max_u32 v16, 14, v16
    v_sub_u32 v17, 0x8c, v16
    v_cvt_f32_i32 v29, v17                ; kf = 140 - e'
    v_mov_b32 v28, 0
    v_subrev_u32 v16, 13, v16
    v_lshlrev_b32 v27, 23, v16            ; Sinv
    F_KLOOP:
    ds_read_b128 v[52:55], v34 offset:{KS}
    ds_read_b128 v[56:59], v34 offset:{KS+16}
    ds_read_b128 v[60:63], v34 offset:{KS+32}
    ds_read_b128 v[64:67], v34 offset:{KS+48}
    v_add_u32 v34, 0x100, v34
    """)
    for nn in range(4):
        p = 52 + 4 * nn
        kk(f"""
        s_waitcnt lgkmcnt({3-nn})
        v_pk_mul_f32 v[2:3], v[30:31], v[{p}:{p+1}] op_sel_hi:[1,0]
        v_pk_fma_f32 v[4:5], v[32:33], v[{p}:{p+1}], v[28:29] op_sel_hi:[1,0,1]
        v_pk_mul_f32 v[6:7], v[30:31], v[{p}:{p+1}] op_sel:[0,1] op_sel_hi:[1,1]
        v_pk_mul_f32 v[8:9], v[32:33], v[{p}:{p+1}] op_sel:[0,1] op_sel_hi:[1,1]
        v_exp_f32 v2, v2
        v_exp_f32 v3, v3
        v_exp_f32 v4, v4
        v_exp_f32 v5, v5
        v_fract_f32 v6, v6
        v_fract_f32 v7, v7
        v_fract_f32 v8, v8
        v_fract_f32 v9, v9
        v_cos_f32 v10, v6
        v_sin_f32 v11, v6
        v_cos_f32 v12, v7
        v_sin_f32 v13, v7
        v_cos_f32 v14, v8
        v_sin_f32 v15, v8
        v_cos_f32 v16, v9
        v_sin_f32 v17, v9
        v_pk_mul_f32 v[10:11], v[10:11], v[2:3] op_sel_hi:[1,0]
        v_pk_mul_f32 v[12:13], v[12:13], v[2:3] op_sel:[0,1] op_sel_hi:[1,1]
        v_pk_mul_f32 v[14:15], v[14:15], v[4:5] op_sel_hi:[1,0]
        v_pk_mul_f32 v[16:17], v[16:17], v[4:5] op_sel:[0,1] op_sel_hi:[1,1]
        v_cvt_pk_f16_f32 v{68+nn}, v10, v11
        v_cvt_pk_f16_f32 v{72+nn}, v12, v13
        v_cvt_pk_f16_f32 v{76+nn}, v14, v15
        v_pk_mul_f32 v[18:19], v[16:17], v[{p+2}:{p+3}] op_sel_hi:[1,0]
        v_pk_fma_f32 v[18:19], v[16:17], v[{p+2}:{p+3}], v[18:19] op_sel:[1,1,0] op_sel_hi:[0,1,1] neg_lo:[1,0,0]
        v_cvt_pk_f16_f32 v{80+nn}, v18, -v19
        """)
    kk(f"""
    s_cmp_eq_u32 s20, 1
    s_cbranch_scc1 F_KL2
    v_mfma_f32_16x16x32_f16 v[40:43], v[68:71], v[80:83], 0
    v_mfma_f32_16x16x32_f16 v[44:47], v[72:75], v[80:83], 0
    v_mfma_f32_16x16x32_f16 v[48:51], v[76:79], v[80:83], 0
    s_mov_b32 s20, 1
    s_branch F_KLOOP
    F_KL2:
    v_mfma_f32_16x16x32_f16 v[40:43], v[68:71], v[80:83], v[40:43]
    v_mfma_f32_16x16x32_f16 v[44:47], v[72:75], v[80:83], v[44:47]
    v_mfma_f32_16x16x32_f16 v[48:51], v[76:79], v[80:83], v[48:51]
    @STAMP 12
    s_mul_i32 s20, s19, 3072
    v_add_u32 v2, s20, v39
    s_lshl_b32 s20, s19, 10
    v_add_u32 v3, s20, v39
    v_mov_b32 v26, v27
    """)
    for r in range(40, 52, 2): kk(f"v_pk_mul_f32 v[{r}:{r+1}], v[{r}:{r+1}], v[26:27]")
    kk(f"""
    ds_write_b128 v2, v[40:43] offset:{KS+4096}
    ds_write_b128 v2, v[44:47] offset:{KS+5120}
    ds_write_b128 v2, v[48:51] offset:{KS+6144}
    """)
    k(f"""
    s_waitcnt lgkmcnt(0)
    s_barrier
    """)
    kk(f"""
    s_cmp_eq_u32 s19, 3
    s_cbranch_scc1 F_KS
    ds_read_b128 v[40:43], v3 offset:{KS+4096}
    ds_read_b128 v[44:47], v3 offset:{KS+4096+3072}
    ds_read_b128 v[48:51], v3 offset:{KS+4096+6144}
    ds_read_b128 v[4:7], v3 offset:{KS+4096+9216}
    s_waitcnt lgkmcnt(2)
    v_pk_add_f32 v[40:41], v[40:41], v[44:45]
    v_pk_add_f32 v[42:43], v[42:43], v[46:47]
    s_waitcnt lgkmcnt(0)
    v_pk_add_f32 v[48:49], v[48:49], v[4:5]
    v_pk_add_f32 v[50:51], v[50:51], v[6:7]
    v_pk_add_f32 v[40:41], v[40:41], v[48:49]
    v_pk_add_f32 v[42:43], v[42:43], v[50:51]
    v_cvt_pk_bf16_f32 v40, v40, v41
    v_cvt_pk_bf16_f32 v42, v42, v43
    ds_write_b16 v35, v40 offset:{TB}
    ds_write_b16_d16_hi v36, v40 offset:{TB}
    ds_write_b16 v37, v42 offset:{TB}
    ds_write_b16_d16_hi v38, v42 offset:{TB}
    F_KS:
    s_waitcnt lgkmcnt(0)
    s_barrier
    """)
    for e in range(11):
        k(f"ds_read_u16 v{48+e}, v{48+e}")
    k(f"""
    v_min_u32 v61, 0x5f0, v1
    ds_read_b128 v[80:83], v61 offset:{TB}
    v_bfe_u32 v62, v0, 2, 2
    v_mul_u32_u24 v62, {KCS}, v62
    v_and_b32 v63, 3, v0
    v_min_u32 v63, 2, v63
    v_lshl_add_u32 v62, v63, 4, v62
    ds_write_b128 v62, v[36:39] offset:{KL}
    """)
    conv_expand(k)
    k(f"""
    buffer_store_dwordx4 v[80:83], v61, s[8:11], s15 offen
    v_mov_b32 v62, 0
    s_cmp_lg_u32 s17, 3
    s_cbranch_scc1 F1_GO
    s_mov_b32 s26, 0
    F1_CHK:
    global_load_dword v59, v165, s[4:5] sc1
    s_waitcnt vmcnt(0)
    v_sub_u32 v59, v59, v164
    v_cmp_le_u32 vcc, 4, v59
    s_cmp_lg_u64 vcc, 0
    s_cbranch_scc1 F1_GO
    s_add_u32 s26, s26, 1
    s_cmp_ge_u32 s26, {SPIN_MAX >> 2}
    s_cbranch_scc1 F1_GO
    s_sleep {F1_SLEEP}
    s_and_b32 s21, s26, 63
    s_cmp_lg_u32 s21, 0
    s_cbranch_scc1 F1_CHK
    global_load_dword v59, v62, s[28:29] offset:8 sc1
    s_waitcnt vmcnt(0)
    v_cmp_gt_u32 vcc, 4, v59
    s_cmp_lg_u64 vcc, 0
    s_cbranch_scc1 F1_CHK
    F1_GO:
    s_waitcnt lgkmcnt(0)
    s_barrier
    @STAMP 2
    buffer_load_dwordx4 v[16:19], v1, s[8:11], s31 offen {F1_LD}
    s_add_u32 s31, s31, 0x1000
    buffer_load_dwordx4 v[20:23], v1, s[8:11], s31 offen {F1_LD}
    s_add_u32 s31, s31, 0x1000
    buffer_load_dwordx4 v[24:27], v1, s[8:11], s31 offen {F1_LD}
    s_add_u32 s31, s31, 0x1000
    buffer_load_dwordx4 v[28:31], v1, s[8:11], s31 offen {F1_LD}
    buffer_load_dwordx4 v[12:15], v60, s[8:11], s13 offen {F1_LD}
    """)
    k0 = k; k = Remap2(UnitS(k0), {**{1: 84, 2: 85, 6: 86, 7: 87, 8: 88, 9: 89, 10: 90, 11: 91}, **{i: i + 128 for i in range(16, 32)}, **{i: i + 119 for i in range(41, 48)}})
    for r in list(range(16, 32)) + list(range(41, 48)): k(f"v_mov_b32 v{r}, 0")
    k(f"""
    s_mov_b32 s54, 2
    s_cmp_ge_u32 s2, {N_W + N_D}
    s_cbranch_scc1 U_LDONE
    s_cmp_ge_u32 s2, {N_W}
    s_cbranch_scc1 U_LD
    s_mov_b32 s54, 0
    s_lshr_b32 s12, s2, 4                 ; ft
    s_and_b32 s13, s2, 15                 ; s
    s_mul_i32 s14, s13, {32*F*2}
    s_mul_i32 s15, s12, 192
    s_add_u32 s14, s14, s15
    s_mul_i32 s16, s12, 12
    s_mov_b32 s17, 0x15555556
    v_mov_b32 v11, {F//8}
    """)
    for i in range(2):
        k(f"""
        v_add_u32 v1, {256*i}, v0
        v_mul_hi_u32 v2, v1, s17
        v_mul_u32_u24 v6, 12, v2
        v_sub_u32 v6, v1, v6                  ; chunk
        v_mul_u32_u24 v7, {F*2}, v2
        v_lshl_add_u32 v7, v6, 4, v7
        v_add_u32 v{8+i}, s14, v7
        v_mul_u32_u24 v7, {WPITCH}, v2
        v_lshl_add_u32 v{41+i}, v6, 5, v7
        v_add_u32 v6, s16, v6
        v_cmp_gt_u32 s[{24+2*i}:{25+2*i}], v11, v6
        """)
    k(f"""
    s_mov_b64 exec, s[24:25]
    s_cbranch_execz U_W1
    global_load_dwordx4 v[144:147], v8, s[48:49]
    global_load_dwordx4 v[148:151], v8, s[50:51]
    U_W1:
    s_mov_b64 exec, -1
    s_cmp_ge_u32 s33, 2
    s_cbranch_scc1 U_W2
    s_mov_b64 exec, s[26:27]
    s_cbranch_execz U_W2
    global_load_dwordx4 v[152:155], v9, s[48:49]
    global_load_dwordx4 v[156:159], v9, s[50:51]
    U_W2:
    s_mov_b64 exec, -1
    v_add_u32 v41, {US}, v41
    v_add_u32 v42, {US}, v42
    v_lshrrev_b32 v6, 2, v3
    v_lshl_add_u32 v6, v4, 2, v6
    v_mul_u32_u24 v6, {WPITCH}, v6
    v_and_b32 v7, 3, v3
    v_lshl_add_u32 v6, v7, 3, v6
    s_lshl_b32 s18, s33, 7
    s_mov_b32 s19, 32
    s_cmp_eq_u32 s33, 3
    s_cselect_b32 s18, 96, s18
    s_cselect_b32 s19, 128, s19
    s_add_u32 s18, s18, {US}
    v_add_u32 v43, s18, v6
    v_add_u32 v44, s19, v43
    v_add_u32 v45, s19, v44
    s_lshl_b32 s21, s12, 2
    s_add_u32 s21, s21, s33
    s_lshl_b32 s21, s21, 4
    s_add_u32 s21, s21, s13
    s_mul_i32 s21, s21, 3072
    s_add_u32 s21, s21, {WP}
    v_lshl_add_u32 v46, v5, 4, s21
    s_branch U_LDONE
    U_LD:
    s_mov_b32 s54, 1
    s_sub_u32 s3, s2, {N_W}
    s_lshr_b32 s12, s3, 2                 ; ks
    s_and_b32 s13, s3, 3                  ; dq
    v_lshrrev_b32 v1, 4, v0               ; row 0..15 (+16)
    s_lshl_b32 s14, s12, 15
    s_lshl_b32 s15, s13, 8
    s_add_u32 s14, s14, s15
    v_lshlrev_b32 v6, 10, v1
    v_lshl_add_u32 v6, v3, 4, v6
    v_add_u32 v6, s14, v6
    v_add_u32 v7, 0x4000, v6
    s_cmp_ge_u32 s12, 43
    s_cbranch_scc1 U_D1
    global_load_dwordx4 v[144:147], v6, s[52:53]
    global_load_dwordx4 v[148:151], v7, s[52:53]
    U_D1:
    v_bfe_u32 v8, v1, 1, 2
    v_lshrrev_b32 v9, 3, v1
    v_and_b32 v10, 1, v1
    v_lshl_add_u32 v10, v9, 1, v10
    v_lshl_add_u32 v10, v8, 3, v10        ; rho
    v_mul_u32_u24 v10, {DPITCH}, v10
    v_lshl_add_u32 v10, v3, 4, v10
    v_add_u32 v41, {US}, v10
    v_lshrrev_b32 v6, 2, v3
    v_lshl_add_u32 v6, v4, 3, v6
    v_mul_u32_u24 v6, {DPITCH}, v6
    v_and_b32 v7, 3, v3
    v_lshl_add_u32 v6, v7, 3, v6
    s_lshl_b32 s18, s33, 6
    s_add_u32 s18, s18, {US}
    v_add_u32 v43, s18, v6
    s_lshl_b32 s16, s13, 3
    s_lshl_b32 s17, s33, 1
    s_add_u32 s16, s16, s17
    s_mul_i32 s16, s16, {NKS2*1024}
    s_lshl_b32 s17, s12, 10
    s_add_u32 s16, s16, s17
    s_add_u32 s16, s16, {WD}
    v_lshl_add_u32 v46, v5, 4, s16
    v_add_u32 v47, {NKS2*1024}, v46
    U_LDONE:
    """)
    k = k0
    k("""
    s_waitcnt vmcnt(4)
    s_lshr_b32 s21, s17, 1
    s_or_b32 s21, s21, s54
    s_cmp_eq_u32 s21, 0
    s_cbranch_scc1 F_W3
    s_waitcnt vmcnt(2)
    s_cmp_lt_u32 s2, 412
    s_cbranch_scc1 F_W3
    s_waitcnt vmcnt(0)
    F_W3:
    @STAMP 3
    """)
    conv_norm(k)
    k("s_branch CONV_PRE")
    k(f"""
    F1_TAIL:
    s_barrier
    s_waitcnt vmcnt(1)
    s_cmp_eq_u32 s54, 2
    s_cbranch_scc1 U_SDONE
    s_cmp_eq_u32 s54, 1
    s_cbranch_scc1 U_SD
    ds_write2_b32 v160, v144, v145 offset0:0 offset1:2
    ds_write2_b32 v160, v146, v147 offset0:4 offset1:6
    ds_write2_b32 v160, v148, v149 offset0:1 offset1:3
    ds_write2_b32 v160, v150, v151 offset0:5 offset1:7
    s_cmp_ge_u32 s17, 2
    s_cbranch_scc1 U_SDONE
    ds_write2_b32 v161, v152, v153 offset0:0 offset1:2
    ds_write2_b32 v161, v154, v155 offset0:4 offset1:6
    ds_write2_b32 v161, v156, v157 offset0:1 offset1:3
    ds_write2_b32 v161, v158, v159 offset0:5 offset1:7
    s_branch U_SDONE
    U_SD:
    ds_write_b128 v160, v[144:147]
    ds_write_b128 v160, v[148:151] offset:{4*DPITCH}
    U_SDONE:
    s_waitcnt lgkmcnt(0)
    s_barrier
    s_cmp_eq_u32 s54, 2
    s_cbranch_scc1 U_RDONE
    s_cmp_eq_u32 s54, 1
    s_cbranch_scc1 U_RD
    ds_read_b64_tr_b16 v[64:65], v162
    ds_read_b64_tr_b16 v[66:67], v162 offset:{16*WPITCH}
    ds_read_b64_tr_b16 v[68:69], v163
    ds_read_b64_tr_b16 v[70:71], v163 offset:{16*WPITCH}
    ds_read_b64_tr_b16 v[72:73], v164
    ds_read_b64_tr_b16 v[74:75], v164 offset:{16*WPITCH}
    s_waitcnt lgkmcnt(0)
    global_store_dwordx4 v165, v[64:67], s[4:5] {PREP_W_POL}
    global_store_dwordx4 v165, v[68:71], s[4:5] offset:1024 {PREP_W_POL}
    global_store_dwordx4 v165, v[72:75], s[4:5] offset:2048 {PREP_W_POL}
    s_branch U_RDONE
    U_RD:
    ds_read_b64_tr_b16 v[64:65], v162
    ds_read_b64_tr_b16 v[66:67], v162 offset:{4*DPITCH}
    ds_read_b64_tr_b16 v[68:69], v162 offset:32
    ds_read_b64_tr_b16 v[70:71], v162 offset:{4*DPITCH+32}
    s_waitcnt lgkmcnt(0)
    global_store_dwordx4 v165, v[64:67], s[4:5] {PREP_W_POL}
    global_store_dwordx4 v166, v[68:71], s[4:5] {PREP_W_POL}
    s_branch U_RDONE
    U_RDONE:
    @FLUSH 13
    s_endpgm
    """)
    info = dict(vgpr=168, sgpr=60, accum=168, grid=N_T + N_K, block=256, lds=CONV_LDS)
    return k, info

def gen_conv():
    k = Kern("conv")
    k(f"""
    conv1_kernel:
    s_cmp_ge_u32 s2, 512
    s_cbranch_scc1 P_WROLES
    s_mov_b32 s34, {0 if 'W' in WINC else 1}
    s_mov_b32 s30, {XT0}
    s_mov_b32 s31, {ST0}
    s_mov_b32 s32, {X1T}
    s_mov_b32 s33, {HB}
    @KID 1
    CONV_BODY:
    s_mov_b32 s54, 2
    s_cmp_ge_u32 s2, 512
    s_cbranch_scc1 CONV_END
    @INIT
    s_load_dwordx2 s[4:5], s[0:1], {KA_WS}
    s_load_dwordx2 s[6:7], s[0:1], {KA_DSKIP}
    """)
    conv_setup(k)
    k(f"""
    s_lshl_b32 s18, s17, 11
    s_add_u32 s18, s18, {CRED}
    """)
    conv_p3(k)
    k("""
    @STAMP 10
    s_waitcnt lgkmcnt(0)
    @STAMP 11
    s_load_dword s20, s[6:7], s16
    """)
    srd(k, 8, 4, WS_BYTES)
    k(f"""
    s_mov_b32 m0, s18
    s_nop 0
    buffer_load_dwordx4 v6, s[8:11], s15 offen lds
    buffer_load_dwordx4 v6, s[8:11], s15 offen offset:1024 lds
    """)
    conv_loads(k)
    npf = 0
    k(f"""
    @STAMP 12
    @STAMP 2
    s_waitcnt vmcnt({5 + npf})
    """)
    for e in range(11):
        k(f"ds_read_u16 v{48+e}, v{48+e}")
    conv_expand(k)
    k(f"""
    s_waitcnt vmcnt({1 + npf})
    @STAMP 3
    """)
    for i in range(4):
        stats_pair(k, 16 + 4*i, 17 + 4*i, 18 + 4*i, 19 + 4*i, 40)
    k(f"s_waitcnt vmcnt({npf})")
    conv_norm(k)
    if CPF:
        if LOCALMAP0:
            k(f"""
            s_lshr_b32 s21, s2, 3
            s_mul_i32 s22, s21, 49152
            s_mul_i32 s23, s17, {PFQ}
            s_add_u32 s22, s22, s23
            s_add_u32 s22, s22, {WP}
            v_min_u32 v38, {PFQ // 128 - 1}, v5
            v_lshlrev_b32 v38, 7, v38
            buffer_load_dword v150, v38, s[8:11], s22 offen
            """)
        else:
            k(f"""
            s_lshr_b32 s21, s2, 3
            s_lshl_b32 s21, s21, 2
            s_add_u32 s21, s21, s17
            s_mul_i32 s22, s21, 6144
            s_and_b32 s23, s2, 1
            s_mul_i32 s23, s23, {8*196608}
            s_add_u32 s22, s22, s23
            s_add_u32 s22, s22, {WP}
            v_lshlrev_b32 v38, 7, v5
            s_cmp_eq_u32 s34, 0
            s_cbranch_scc1 CONV_NOW
            buffer_load_dword v150, v38, s[8:11], s22 offen
            CONV_NOW:
            """)
    if SENT:
        k(f"""
        v_mov_b32 v40, -1
        v_mov_b32 v41, -1
        v_mov_b32 v42, -1
        v_mov_b32 v43, -1
        s_mul_i32 s21, s2, 11520
        s_add_u32 s21, s21, s33
        v_min_u32 v38, {11520 - 8192 - 16}, v1
        buffer_store_dwordx4 v[40:43], v1, s[8:11], s21 offen {POISON_POL}
        s_add_u32 s21, s21, 0x1000
        buffer_store_dwordx4 v[40:43], v1, s[8:11], s21 offen {POISON_POL}
        s_add_u32 s21, s21, 0x1000
        buffer_store_dwordx4 v[40:43], v38, s[8:11], s21 offen {POISON_POL}
        """)
    k.label("CONV_PRE")
    if CODEPF2:
        k(f"""
        s_cmp_ge_u32 s2, 8
        s_cbranch_scc1 CONV_NOPF
        s_getpc_b64 s[22:23]
        v_lshlrev_b32 v38, 6, v0
        global_load_dword v39, v38, s[22:23]
        CONV_NOPF:
        """)
    k("""
    @STAMP 4
    s_waitcnt lgkmcnt(0)
    s_barrier
    CONV_MAIN2:
    @STAMP 5
    """)
    if CONV_NOPK: k = NoPk(k)
    KF = 48; UB = 16; ACC = 112
    pend = []
    def rd(tag):
        if tag[0] == "U":
            mu = int(tag[1:]); r = UB + 4 * (mu & 3)
            k(f"ds_read_b128 v[{r}:{r+3}], v9 offset:{256*mu}")
        else:
            t = int(tag[1:]); r = KF + 4 * t
            k(f"ds_read_b128 v[{r}:{r+3}], v7 offset:{256*t}")
        pend.append(tag)
    def need(tags):
        idx = max([pend.index(t) for t in tags if t in pend], default=-1)
        if idx >= 0:
            k(f"s_waitcnt lgkmcnt({len(pend) - idx - 1})")
            del pend[:idx + 1]
    queue = ["U0"] + [f"K{t}" for t in range(1, 16, 2)] + ["U1"] + [f"K{t}" for t in range(0, 16, 2)] + ["U2", "U3"]
    for t in queue[:12]: rd(t)
    queue = queue[12:]
    for mu in range(16):
        a = UB + 4 * (mu & 3)
        q0 = max(0, -(-(mu - 1) // 2))
        for q in range(q0, 8):
            tp = 2 * q + 1 - mu
            need([f"U{mu}", f"K{tp}"])
            c = "0" if mu == 0 else f"v[{ACC+4*q}:{ACC+4*q+3}]"
            k(f"v_mfma_f32_16x16x32_bf16 v[{ACC+4*q}:{ACC+4*q+3}], v[{KF+4*tp}:{KF+4*tp+3}], v[{a}:{a+3}], {c}")
            if queue: rd(queue.pop(0))
        if mu + 4 < 16: rd(f"U{mu+4}")
        if mu & 1 and mu >= 3:
            q = (mu - 3) // 2
            k(f"ds_write_b128 v10, v[{ACC+4*q}:{ACC+4*q+3}] offset:{(CRED + (q>>1)*8192 if q < 6 else KL) + (q&1)*1024}")
            pend.append("W")
        if mu == 6:
            assert not any(t[0] == "K" for t in pend + queue)
            k("s_barrier")
    k("@STAMP 6")
    k(f"""
    s_and_b32 s21, s20, 0xffff0000
    s_lshl_b32 s20, s20, 16
    s_bitcmp1_b32 s2, 0
    s_cselect_b32 s20, s21, s20
    """)
    for p in range(4):
        k(f"""
        v_lshlrev_b32 v40, 16, v{32+p}
        v_and_b32 v41, 0xffff0000, v{32+p}
        v_mul_f32 v40, s20, v40
        v_mul_f32 v41, s20, v41
        v_cvt_pk_bf16_f32 v41, v40, v41
        """)
        if p == 0:
            k(f"ds_write_b128 v10, v[{ACC+28}:{ACC+31}] offset:{KL + 1024}")
        k(f"""
        v_lshlrev_b32 v{48+2*p}, 16, v41
        v_and_b32 v{49+2*p}, 0xffff0000, v41
        v_lshlrev_b32 v{56+2*p}, 16, v{12+p}
        v_and_b32 v{57+2*p}, 0xffff0000, v{12+p}
        """)
    k("""
    s_waitcnt lgkmcnt(0)
    s_barrier
    @STAMP 7
    """)
    for src in range(4):
        for t in range(2):
            k(f"ds_read_b128 v[{ACC+8*src+4*t}:{ACC+8*src+4*t+3}], v11 offset:{src*2048 + t*16}")
    k("s_waitcnt lgkmcnt(4)")
    for r in range(0, 8, 2):
        k(f"v_pk_add_f32 v[{ACC+r}:{ACC+r+1}], v[{ACC+r}:{ACC+r+1}], v[{ACC+8+r}:{ACC+9+r}]")
    k("s_waitcnt lgkmcnt(0)")
    for r in range(0, 8, 2):
        k(f"v_pk_add_f32 v[{ACC+16+r}:{ACC+17+r}], v[{ACC+16+r}:{ACC+17+r}], v[{ACC+24+r}:{ACC+25+r}]")
    for r in range(0, 8, 2):
        k(f"v_pk_add_f32 v[{ACC+r}:{ACC+r+1}], v[{ACC+r}:{ACC+r+1}], v[{ACC+16+r}:{ACC+17+r}]")
    k("@STAMP 8")
    for p in range(4):
        y0, y1 = ACC + 2*p, ACC + 2*p + 1
        k(f"""
        v_cvt_pk_bf16_f32 v{y1}, v{y0}, v{y1}
        v_lshlrev_b32 v{y0}, 16, v{y1}
        v_and_b32 v{y1}, 0xffff0000, v{y1}
        v_pk_add_f32 v[{y0}:{y1}], v[{y0}:{y1}], v[{48+2*p}:{49+2*p}]
        v_cvt_pk_bf16_f32 v{y1}, v{y0}, v{y1}
        v_lshlrev_b32 v{y0}, 16, v{y1}
        v_and_b32 v{y1}, 0xffff0000, v{y1}
        v_pk_add_f32 v[{y0}:{y1}], v[{y0}:{y1}], v[{56+2*p}:{57+2*p}]
        v_cvt_pk_bf16_f32 v{44+p}, v{y0}, v{y1}
        """)
    k(f"""
    buffer_store_dwordx4 v[44:47], v2, s[8:11], s14 offen {CONV_ST}
    @STAMP 9
    s_cmp_lg_u32 s54, 2
    s_cbranch_scc1 {'F1_TAIL' if FUSE1 else 'CONV_END'}
    @FLUSH 13
    CONV_END:
    s_endpgm
    .p2align 8
    conv2_kernel:
    s_mov_b32 s34, 1
    s_mov_b32 s30, {X2T}
    s_mov_b32 s31, {ST1}
    s_mov_b32 s32, {X3T}
    s_mov_b32 s33, {HB1}
    @KID 4
    s_branch CONV_BODY
    """)
    if CONV_NOPK: k = k.k
    info = dict(vgpr=168, sgpr=60, accum=168, grid=512, block=256, lds=CONV_LDS)
    return k, info

MLP_LDS = 163840
H_LD = os.environ.get('H_LD', 'sc1')
M_PRE2 = int(os.environ.get('M_PRE2', '5'))
M_OLD = int(os.environ.get('M_OLD', '1'))
M_FINE = int(os.environ.get('M_FINE', '1'))
M_LOOK = int(os.environ.get('M_LOOK', '5'))
M_TOUCH = int(os.environ.get('M_TOUCH', '0'))
M_PRE = int(os.environ.get('M_PRE', '8'))
M_OPS = int(os.environ.get('M_OPS', '3'))
M_RAMP = int(os.environ.get('M_RAMP', '5'))
M_LATE = int(os.environ.get('M_LATE', '-100'))
LOCALMAP = int(os.environ.get('LOCALMAP', '0'))
LOC_POL = os.environ.get('LOC_POL', 'sc1')
IDT = ZR + 0x4000
M_PRIO = int(os.environ.get('M_PRIO', '0'))
M_FIRST = int(os.environ.get('M_FIRST', '1'))
M_WDT = int(os.environ.get('M_WDT', '-1'))
M_WDM = int(os.environ.get('M_WDM', '6'))
M_WDE = int(os.environ.get('M_WDE', '2'))
M_AHEAD2 = int(os.environ.get('M_AHEAD2', '6'))
SPIN_MAX = 1 << 20
SLOT = 40960
def gen_mlp():
    k = Kern("mlp")
    ACC = 0
    FR = 48
    XA = 104
    WA = 112
    CSR = 114
    STV = 126
    RES = 130
    VDMA, VW, VT0, VT1, VT2 = 134, 135, 136, 137, 138
    SA = 139
    VRES = 142; VSTX = 143; VPUB = 144; VCS = 145
    MR = 146
    TMP = 150
    NV = 168
    VID = TMP + 14
    VRES2 = TMP + 9
    def wdreg(i): return f"a[{4*i}:{4*i+3}]"
    k(f"""
    mlpa_kernel:
    s_mov_b32 s30, {X1T}
    s_mov_b32 s31, {HB}
    s_mov_b32 s33, {STX}
    s_mov_b32 s34, {FLG}
    s_mov_b32 s35, 0
    s_mov_b32 s56, {IDT}
    @KID 2
    M_BODY:
    s_cmp_ge_u32 s2, 256
    s_cbranch_scc1 M_END
    @INIT
    s_load_dwordx2 s[4:5], s[0:1], {KA_WS}
    s_load_dwordx2 s[6:7], s[0:1], {KA_OUT}
    v_readfirstlane_b32 s17, v0
    s_and_b32 s12, s2, 7                  ; xcd
    s_lshr_b32 s13, s2, 3                 ; idx
    """)
    if LOCALMAP:
        k(f"""
        s_lshl_b32 s14, s12, 1
        s_and_b32 s15, s13, 1
        s_add_u32 s14, s14, s15
        s_lshl_b32 s36, s12, 2
        s_and_b32 s15, s13, 3
        s_add_u32 s36, s36, s15
        s_lshr_b32 s37, s13, 2                ; dt
        s_lshr_b32 s15, s13, 1                ; ft
        """)
    else:
        k(f"""
    s_lshr_b32 s14, s12, 1
    s_lshl_b32 s14, s14, 2
    s_and_b32 s15, s13, 3
    s_add_u32 s14, s14, s15               ; lt
    s_lshl_b32 s36, s12, 2
    s_add_u32 s36, s36, s15               ; lt64
    s_lshr_b32 s37, s13, 2                ; dt
    s_and_b32 s15, s12, 1
    s_lshl_b32 s15, s15, 3
    s_add_u32 s15, s15, s37               ; ft
        """)
    k(f"""
    s_lshr_b32 s17, s17, 6                ; w
    s_and_b32 s16, s17, 3
    s_lshr_b32 s29, s17, 2
    v_and_b32 v{VT0}, 63, v0              ; lane
    v_and_b32 v{VT1}, 15, v0              ; lam / j
    v_bfe_u32 v{VT2}, v0, 4, 2            ; g
    v_lshlrev_b32 v{VDMA}, 4, v{VT0}
    v_lshlrev_b32 v{VW}, 4, v{VT0}                    ; lane*16
    s_lshl_b32 s18, s14, 17
    s_add_u32 s18, s18, s30
    s_lshl_b32 s19, s17, 10
    s_add_u32 s18, s18, s19
    s_lshl_b32 s19, s17, 10               ; x m0 part: w*1024
    s_lshl_b32 s20, s15, 2
    s_add_u32 s20, s20, s16
    s_lshl_b32 s21, s20, 4
    s_add_u32 s21, s21, s29
    s_mul_i32 s21, s21, 3072
    s_add_u32 s21, s21, {WP}
    s_mul_i32 s22, s17, 3072
    s_add_u32 s22, s22, 0x4000
    s_mul_i32 s24, s20, {3*16*4}
    s_add_u32 s24, s24, {CSUM}
    s_lshl_b32 s38, s37, 2
    s_add_u32 s38, s38, s16
    s_mul_i32 s38, s38, {NKS2*1024}
    s_mul_i32 s23, s29, {22*1024}
    s_add_u32 s38, s38, s23
    s_add_u32 s38, s38, {WD}
    """)
    def group_parts(t):
        base = (t & 3) * SLOT
        parts = [f"""
        s_add_u32 m0, s19, {base}
        s_nop 0
        buffer_load_dwordx4 v{VDMA}, s[8:11], s18 offen lds
        s_add_u32 s18, s18, 0x2000
        """, f"""
        s_add_u32 m0, s22, {base}
        s_nop 0
        buffer_load_dwordx4 v{VW}, s[8:11], s21 offen lds
        """, f"""
        buffer_load_dwordx4 v{VW}, s[8:11], s21 offen offset:1024 lds
        """, f"""
        buffer_load_dwordx4 v{VW}, s[8:11], s21 offen offset:2048 lds
        s_add_u32 s21, s21, 0x1800
        """, f"""
        s_add_u32 m0, s19, {base + 8192}
        s_nop 0
        buffer_load_dwordx4 v{VDMA}, s[8:11], s18 offen lds
        s_add_u32 s18, s18, 0x2000
        """]
        return parts
    def wd_part(i):
        p = f"buffer_load_dwordx4 {wdreg(i)}, v{VW}, s[8:11], s38 offen offset:{1024*(i&3)}"
        if (i & 3) == 3: p += "\ns_add_u32 s38, s38, 0x1000"
        return p
    def common_addr():
        k(f"""
        s_mov_b32 s43, {fl(1.0/512)}
        s_mov_b32 s44, {fl(1e-5)}
        s_mov_b32 s45, {fl(-LOG2E)}
        v_lshrrev_b32 v{TMP}, 2, v{VT1}
        v_lshl_add_u32 v{TMP}, v{VT2}, 2, v{TMP}          ; 4g + r
        v_and_b32 v{TMP+1}, 7, v{TMP}                     ; xi
        v_and_b32 v{TMP+2}, 3, v{VT1}
        v_lshlrev_b32 v{TMP+2}, 3, v{TMP+2}
        v_lshl_add_u32 v{TMP+2}, v{TMP}, 8, v{TMP+2}
        v_mul_u32_u24 v{VRES}, {XP}, v{VT1}
        v_lshl_add_u32 v{VRES}, v{VT2}, 4, v{VRES}
        s_lshl_b32 s39, s37, 2
        s_add_u32 s39, s39, s16
        s_mul_i32 s39, s39, {16*XP}
        s_lshl_b32 s40, s36, 7
        s_add_u32 s39, s39, s40
        s_lshl_b32 s40, s29, 6
        s_add_u32 s39, s39, s40
        s_lshr_b32 s40, s36, 1
        s_lshl_b32 s40, s40, 17
        s_add_u32 s40, s40, s30
        s_lshl_b32 s26, s37, 2
        s_add_u32 s26, s26, s16
        s_lshl_b32 s26, s26, 12
        s_add_u32 s40, s40, s26
        s_and_b32 s26, s36, 1
        s_lshl_b32 s26, s26, 1
        s_add_u32 s26, s26, s29
        s_lshl_b32 s26, s26, 1
        v_lshrrev_b32 v{TMP+3}, 1, v{VT2}
        v_add_u32 v{TMP+3}, s26, v{TMP+3}
        v_and_b32 v{TMP+4}, 7, v{VT1}
        v_xor_b32 v{TMP+3}, v{TMP+3}, v{TMP+4}
        v_lshlrev_b32 v{TMP+3}, 5, v{TMP+3}
        v_lshl_add_u32 v{TMP+3}, v{VT1}, 8, v{TMP+3}
        v_and_b32 v{TMP+4}, 1, v{VT2}
        v_lshl_add_u32 v{VRES2}, v{TMP+4}, 4, v{TMP+3}
        """)
    res_parts = [f"buffer_load_dwordx4 v[{RES}:{RES+3}], v{VRES2}, s[8:11], s40 offen"]
    common_addr()
    k("s_lshl_b32 s25, s29, 2")
    for b in range(4):
        k(f"""
        s_add_u32 s26, s25, {b}
        v_xor_b32 v{TMP+3}, s26, v{TMP+1}
        v_lshl_add_u32 v{XA+b}, v{TMP+3}, 5, v{TMP+2}
        v_add_u32 v{XA+4+b}, {2*SLOT}, v{XA+b}
        """)
    k(f"""
    s_mul_i32 s26, s16, 3072
    s_add_u32 s26, s26, 0x4000
    v_add_u32 v{WA}, s26, v{VW}
    v_add_u32 v{WA+1}, {2*SLOT}, v{WA}
    """)
    def late_addr():
        k(f"""
        v_bfe_u32 v{TMP}, v{VT1}, 2, 1                    ; half
        v_mul_u32_u24 v{TMP+4}, 3072, v{TMP}
        v_lshrrev_b32 v{TMP}, 3, v{VT1}
        v_lshl_add_u32 v{TMP+4}, v{TMP}, 6, v{TMP+4}
        v_and_b32 v{TMP}, 3, v{VT1}
        v_lshl_add_u32 v{TMP+4}, v{TMP}, 4, v{TMP+4}
        v_lshl_add_u32 v{TMP+4}, v{VT2}, 8, v{TMP+4}
        s_lshl_b32 s26, s16, 10
        s_cmp_eq_u32 s16, 3
        s_cselect_b32 s26, 12, s26
        s_cselect_b32 s27, 0x400, 4
        s_mul_i32 s28, s29, 12288
        s_add_u32 s26, s26, s28
        v_add_u32 v{SA}, s26, v{TMP+4}
        v_add_u32 v{SA+1}, s27, v{SA}
        v_add_u32 v{SA+2}, s27, v{SA+1}
        v_lshlrev_b32 v{VSTX}, 2, v{VT1}
        s_lshl_b32 s41, s14, 9
        s_lshl_b32 s26, s29, 8
        s_add_u32 s41, s41, s26
        s_add_u32 s41, s41, s33
        s_and_b32 s27, s17, 1
        s_and_b32 s28, s17, 2
        s_lshl_b32 s28, s28, 1
        s_or_b32 s27, s27, s28
        s_lshl_b32 s28, s29, 1
        s_or_b32 s27, s27, s28
        s_mul_i32 s26, s27, 3072
        v_add_u32 v{VPUB}, s26, v{VW}
        s_lshl_b32 s42, s14, 3
        s_add_u32 s42, s42, s27
        s_mul_i32 s42, s42, {HKS*1024}
        s_mul_i32 s26, s15, 3072
        s_add_u32 s42, s42, s26
        s_add_u32 s42, s42, s31
        v_lshlrev_b32 v{VCS}, 4, v{VT2}
        """)
    late_addr()
    k(f"""
    v_lshrrev_b32 v{TMP+6}, 3, v{VT0}
    v_mul_u32_u24 v{TMP+6}, {XP}, v{TMP+6}
    v_and_b32 v{TMP+7}, 7, v{VT0}
    v_lshl_add_u32 v{TMP+6}, v{TMP+7}, 5, v{TMP+6}
    s_lshl_b32 s46, s37, 3
    s_add_u32 s46, s46, s17
    s_mul_i32 s46, s46, {8*XP}
    s_lshl_b32 s47, s14, 8
    s_add_u32 s46, s46, s47
    s_add_u32 s46, s46, s30
    """)
    if LOCALMAP:
        k(f"""
        s_getreg_b32 s23, hwreg(HW_REG_XCC_ID)
        s_and_b32 s23, s23, 15
        s_add_u32 s23, s23, 1
        s_lshl_b32 s26, s12, 7
        s_add_u32 s56, s56, s26
        s_lshl_b32 s26, s13, 2
        v_mov_b32 v{VID}, s23
        v_mov_b32 v{VID+1}, s26
        v_and_b32 v{VID+2}, 31, v{VT0}
        v_lshlrev_b32 v{VID+2}, 2, v{VID+2}
        """)
    k("s_waitcnt lgkmcnt(0)")
    srd(k, 8, 4, WS_BYTES)
    if M_TOUCH & 1: k(f"buffer_load_dword v{TMP+8}, v{TMP+6}, s[8:11], s46 offen")
    def id_store(tag):
        if LOCALMAP:
            k(f"""
            s_mov_b64 exec, 1
            buffer_store_dword v{VID}, v{VID+1}, s[8:11], s56 offen sc1
            s_mov_b64 exec, -1
            """)
    if M_PRIO:
        k(f"""
        s_cmp_lg_u32 s29, {M_PRIO - 1}
        s_cbranch_scc1 M_NOPRIO
        s_setprio 1
        M_NOPRIO:
        """)
    k("""
    s_cmp_eq_u32 s15, 15
    s_cbranch_scc1 M_STATS
    """)
    def reads(s):
        res = []
        t = s >> 1; hi = (t & 3) >> 1; base = (t & 1) * SLOT
        buf = FR + 28 * (s & 1)
        for tau in range(3):
            r = buf + 16 + 4 * tau
            res.append(f"ds_read_b128 v[{r}:{r+3}], v{WA+hi} offset:{base + (s&1)*12288 + tau*1024}")
        for b in range(4):
            off = base + (s & 1) * 8192
            res.append(f"ds_read_b64_tr_b16 v[{buf+4*b}:{buf+4*b+1}], v{XA+4*hi+b} offset:{off}")
            res.append(f"ds_read_b64_tr_b16 v[{buf+4*b+2}:{buf+4*b+3}], v{XA+4*hi+b} offset:{off+4096}")
        return res
    later = [f"buffer_load_dwordx4 v[{CSR+4*tau}:{CSR+4*tau+3}], v{VCS}, s[8:11], s24 offen offset:{64*tau}" for tau in range(3)]
    later += res_parts
    later += [f"buffer_load_dword v{STV+b}, v{VSTX}, s[8:11], s41 offen offset:{64*b} sc1" for b in range(4)]
    if LOCALMAP: later += [f"buffer_load_dword v{VID+3}, v{VID+2}, s[8:11], s56 offen sc1"]
    n_crit = len(later)
    later += [wd_part(i) for i in range(M_WDM)]
    n_need = len(later)
    later += [wd_part(i) for i in range(M_WDM, 22)]
    vm = []
    def wait_for(tag):
        assert not any(o[1] == tag for o in opq), tag
        idxs = [i for i, x in enumerate(vm) if x == tag]
        if not idxs: return
        idx = max(idxs)
        k(f"s_waitcnt vmcnt({len(vm) - idx - 1})")
        del vm[:idx + 1]
    opq = []
    for u in range(8):
        gp = group_parts(u)
        e0 = max(2*u - 7, 2*u - M_LOOK)
        if M_OLD: e0 = {0: -1, 1: -1, 2: 0, 3: 1}.get(u, 2*u - 6)
        for j in (0, 1, 2): opq.append((gp[j], f"D{2*u}", e0))
        opq.append((gp[3], f"D{2*u}", e0 + 1 if u > (3 if M_OLD else 1) else e0))
        opq.append((gp[4], f"D{2*u+1}", e0 + 1 if u > (3 if M_OLD else 1) else e0))
    for i, p in enumerate(later[:n_need]): opq.append((p, "N" if i < n_crit else "L", -100 if i < n_crit else M_LATE))
    nlater = n_need
    def issue(n, s):
        out = []
        while opq and len(out) < n and opq[0][2] <= s:
            out.append(opq.pop(0))
        return out
    for p, tag, _ in issue(10 if M_OLD else M_PRE, -1):
        k(p); vm.append(tag)
    k("@STAMP 2")
    wait_for("D1" if (M_OLD and not M_FIRST) else "D0")
    k("s_barrier")
    k("@STAMP 3")
    for r in reads(0): k(r)
    EXP = os.environ.get('EXP', '')
    for s in range(16):
        if M_OLD:
            bar = False
            if s == 0 and M_FIRST: wait_for("D1"); bar = True
            if s == 1: wait_for("D3"); bar = True
            elif (s & 1) == 0 and 0 < s < 14: wait_for(f"D{s+3}"); bar = True
            if bar: k("s_barrier")
            k("s_waitcnt lgkmcnt(0)")
        elif M_FINE:
            if s < 15: wait_for(f"D{s+1}")
            k("s_waitcnt lgkmcnt(0)")
            if s < 15: k("s_barrier")
        else:
            if s == 0: wait_for("D1")
            elif s < 15 and (s & 1): wait_for(f"D{s+2}")
            k("s_waitcnt lgkmcnt(0)")
            if s < 15 and (s == 0 or (s & 1)): k("s_barrier")
        if s == 8: k("@STAMP 4")
        if s == M_WDT:
            k(f"""
            s_lshl_b32 s46, s13, 3
            s_add_u32 s46, s46, s17
            s_mul_i32 s46, s46, 6528
            s_add_u32 s46, s46, {WD}
            v_min_u32 v{TMP+6}, 50, v{VT0}
            v_lshlrev_b32 v{TMP+6}, 7, v{TMP+6}
            buffer_load_dword v{TMP+8}, v{TMP+6}, s[8:11], s46 offen
            """)
            vm.append("T")
        if s == 3 and LOCALMAP:
            id_store("m"); vm.append("I")
        fill = reads(s + 1) if s < 15 else []
        mf = []
        buf = FR + 28 * (s & 1)
        for b in range(4):
            for tau in range(3):
                a = ACC + (b * 3 + tau) * 4
                c = "0" if s == 0 else f"v[{a}:{a+3}]"
                mf.append(f"v_mfma_f32_16x16x32_bf16 v[{a}:{a+3}], v[{buf+16+4*tau}:{buf+19+4*tau}], v[{buf+4*b}:{buf+4*b+3}], {c}")
        parts = issue((5 if (s < 2 or s >= 12) else 3) if M_OLD else (M_OPS if s < M_RAMP else (5 if s >= 12 else 3)), s)
        step = 12 // max(len(parts), 1)
        slots = {1 + step * j: p for j, p in enumerate(parts)}
        for i, m in enumerate(mf):
            k(m)
            if i < len(fill): k(fill[i])
            if i in slots:
                k(slots[i][0]); vm.append(slots[i][1])
    assert not opq, len(opq)
    assert nlater >= n_need
    k("@STAMP 5")
    wait_for("N")
    k(f"""
    s_mov_b32 s47, 0
    M_STCHK:
    v_min3_u32 v{TMP}, v{STV}, v{STV+1}, v{STV+2}
    v_min_u32 v{TMP}, v{TMP}, v{STV+3}
    v_cmp_eq_u32 vcc, 0, v{TMP}
    s_cmp_eq_u64 vcc, 0
    s_cbranch_scc1 M_STOK
    s_add_u32 s47, s47, 1
    s_cmp_ge_u32 s47, {SPIN_MAX}
    s_cbranch_scc1 M_STOK
    s_sleep 2
    """)
    for b in range(4): k(f"buffer_load_dword v{STV+b}, v{VSTX}, s[8:11], s41 offen offset:{64*b} sc1")
    k("""
    s_waitcnt vmcnt(0)
    s_branch M_STCHK
    M_STOK:
    @STAMP 6
    """)
    if LOCALMAP:
        k(f"""
        v_cmp_ne_u32 vcc, s23, v{VID+3}
        s_cmp_eq_u64 vcc, 0
        s_cselect_b32 s54, 1, 0
        """)
    PB = FR
    def pub():
        for i in range(3):
            k(f"ds_read_b128 v[{PB+4*i}:{PB+4*i+3}], v{VPUB} offset:{1024*i}")
        if LOCALMAP:
            pub.n += 1
            k(f"""
            s_cmp_eq_u32 s54, 0
            s_cbranch_scc1 M_PG{pub.n}
            """)
            for i in range(3):
                k(f"s_waitcnt lgkmcnt({2-i})")
                k(f"buffer_store_dwordx4 v[{PB+4*i}:{PB+4*i+3}], v{VW}, s[8:11], s42 offen offset:{1024*i} {LOC_POL}")
            k(f"s_branch M_PE{pub.n}\nM_PG{pub.n}:")
        for i in range(3):
            k(f"s_waitcnt lgkmcnt({2-i})")
            k(f"buffer_store_dwordx4 v[{PB+4*i}:{PB+4*i+3}], v{VW}, s[8:11], s42 offen offset:{1024*i} sc1")
        if LOCALMAP: k(f"M_PE{pub.n}:")
    pub.n = 0
    for b in range(4):
        m = MR
        k(f"""
        v_and_b32 v{m+2}, 0xffff0000, v{STV+b}        ; s
        v_lshlrev_b32 v{m}, 16, v{STV+b}              ; m
        v_rcp_f32 v{m+1}, v{m+2}
        v_mul_f32 v{m+1}, s45, v{m+1}
        """)
        for tau in range(3):
            a = ACC + (b * 3 + tau) * 4
            c = CSR + 4 * tau
            k(f"""
            v_pk_fma_f32 v[{a}:{a+1}], v[{m}:{m+1}], v[{c}:{c+1}], v[{a}:{a+1}] op_sel_hi:[0,1,1] neg_lo:[1,0,0] neg_hi:[1,0,0]
            v_pk_fma_f32 v[{a+2}:{a+3}], v[{m}:{m+1}], v[{c+2}:{c+3}], v[{a+2}:{a+3}] op_sel_hi:[0,1,1] neg_lo:[1,0,0] neg_hi:[1,0,0]
            v_pk_mul_f32 v[{a}:{a+1}], v[{a}:{a+1}], v[{m}:{m+1}] op_sel:[0,1] op_sel_hi:[1,1]
            v_exp_f32 v{a}, v{a}
            v_exp_f32 v{a+1}, v{a+1}
            """)
            if tau < M_WDE and nlater < len(later):
                k(later[nlater]); nlater += 1
        for tau in range(3):
            a = ACC + (b * 3 + tau) * 4
            k(f"""
            v_pk_fma_f32 v[{a}:{a+1}], v[{a}:{a+1}], v[{m+2}:{m+3}], v[{m+2}:{m+3}] op_sel_hi:[1,0,0]
            v_rcp_f32 v{a}, v{a}
            v_rcp_f32 v{a+1}, v{a+1}
            """)
        for _ in range(M_WDE - 3):
            if nlater < len(later):
                k(later[nlater]); nlater += 1
        for tau in range(3):
            a = ACC + (b * 3 + tau) * 4
            k(f"""
            v_pk_mul_f32 v[{a}:{a+1}], v[{a}:{a+1}], v[{a+2}:{a+3}]
            v_cvt_pk_bf16_f32 v{a}, v{a}, v{a+1}
            ds_write_b32 v{SA+tau}, v{a} offset:{(b>>1)*6144 + (b&1)*128}
            """)
        if b == 1 and SPLITPUB:
            k("""
            s_waitcnt lgkmcnt(0)
            s_barrier
            s_cmp_lg_u32 s29, 0
            s_cbranch_scc1 M_PUB1
            """)
            pub()
            k.label("M_PUB1")
    k("""
    s_waitcnt lgkmcnt(0)
    s_barrier
    @STAMP 7
    """)
    if SPLITPUB:
        k("""
        s_cmp_eq_u32 s29, 0
        s_cbranch_scc1 M_PUB2
        """)
    pub()
    k.label("M_PUB2")
    rest = later[nlater:]
    if not SENT:
        k(f"""
        s_lshl_b32 s26, s14, 4
        s_add_u32 s26, s26, s15
        s_lshl_b32 s26, s26, 7
        s_add_u32 s26, s26, s34
        v_mov_b32 v{TMP}, 1
        v_mov_b32 v{TMP+1}, 0
        s_waitcnt vmcnt(0)
        s_barrier
        s_cmp_lg_u32 s17, 0
        s_cbranch_scc1 M_NOFLAG
        s_mov_b64 exec, 1
        s_cmp_eq_u32 s54, {1 if LOCALMAP else 77}
        s_cbranch_scc1 M_FLOC
        buffer_store_dword v{TMP}, v{TMP+1}, s[8:11], s26 offen sc1
        s_branch M_FEND
        M_FLOC:
        buffer_store_dword v{TMP}, v{TMP+1}, s[8:11], s26 offen
        M_FEND:
        s_mov_b64 exec, -1
        M_NOFLAG:
        """)
    for p in rest: k(p)
    HA = XA
    k(f"""
    M_SYNC:
    @CODEPF3
    s_mov_b32 s55, 0
    M_SYNC2:
    @STAMP 8
    v_mov_b32 v{TMP+10}, 0
    s_lshl_b32 s26, s36, 2
    s_add_u32 s26, s26, s16
    s_mul_i32 s26, s26, {HKS*1024}
    s_mul_i32 s27, s29, {22*1024}
    s_add_u32 s26, s26, s27
    s_add_u32 s26, s26, s31
    s_lshl_b32 s27, s17, 11               ; m0 part
    s_mul_i32 s28, s29, 0x3000
    v_add_u32 v{HA}, s28, v{VW}
    s_lshl_b32 s28, s29, 12
    s_add_u32 s28, s28, 0x1000
    v_add_u32 v{HA+1}, s28, v{VW}
    v_add_u32 v{HA+2}, 0x10000, v{HA}
    v_add_u32 v{HA+3}, 0x10000, v{HA+1}
    v_add_u32 v{HA+4}, 0x20000, v{HA}
    v_add_u32 v{HA+5}, 0x20000, v{HA+1}
    s_cmp_lg_u32 s17, 1
    s_cbranch_scc1 M_WAITB
    """)
    if SENT:
        k(f"""
        s_mul_i32 s28, s36, {4*HKS*1024}
        s_add_u32 s28, s28, s31
        v_min_u32 v{TMP+4}, 14, v{VT1}
        v_mul_u32_u24 v{TMP+4}, 3072, v{TMP+4}
        v_mul_u32_u24 v{TMP+5}, {HKS*1024}, v{VT2}
        v_add_u32 v{TMP+4}, v{TMP+4}, v{TMP+5}
        s_mov_b32 s47, 0
        M_POLL:
        buffer_load_dword v{TMP+5}, v{TMP+4}, s[8:11], s28 offen offset:3056 sc1
        s_waitcnt vmcnt(0)
        v_cmp_eq_u32 vcc, -1, v{TMP+5}
        s_cmp_eq_u64 vcc, 0
        s_cbranch_scc1 M_WAITB
        s_sleep {SENT_SLEEP}
        s_add_u32 s47, s47, 1
        s_cmp_lt_u32 s47, {SPIN_MAX}
        s_cbranch_scc1 M_POLL
        """)
    else:
        k(f"""
        s_lshr_b32 s28, s36, 1
        s_lshl_b32 s28, s28, 11
        s_add_u32 s28, s28, s34
        v_min_u32 v{TMP+4}, 14, v{VT0}
        v_lshlrev_b32 v{TMP+4}, 7, v{TMP+4}
        s_mov_b32 s47, 0
        M_POLL:
        buffer_load_dword v{TMP+5}, v{TMP+4}, s[8:11], s28 offen sc1
        s_waitcnt vmcnt(0)
        v_cmp_eq_u32 vcc, 0, v{TMP+5}
        s_cmp_eq_u64 vcc, 0
        s_cbranch_scc1 M_WAITB
        s_add_u32 s47, s47, 1
        s_cmp_lt_u32 s47, {SPIN_MAX}
        s_cbranch_scc1 M_POLL
        """)
    k(f"""
    M_WAITB:
    s_lshl_b32 s46, s37, 3
    s_add_u32 s46, s46, s17
    s_mul_i32 s46, s46, 2880
    s_mul_i32 s47, s36, {4*HKS*1024}
    s_add_u32 s46, s46, s47
    s_add_u32 s46, s46, s31
    v_min_u32 v{TMP+6}, 44, v{VT0}
    v_lshlrev_b32 v{TMP+6}, 6, v{TMP+6}
    s_barrier
    @STAMP 9
    """)
    if M_TOUCH & 2: k(f"buffer_load_dword v{TMP+8}, v{TMP+6}, s[8:11], s46 offen")
    def hchunk(c):
        return [f"""
        s_add_u32 m0, s27, {(c % 10) * 16384}
        s_nop 0
        buffer_load_dwordx4 v{VW}, s[8:11], s26 offen {H_LD} lds
        """, f"""
        buffer_load_dwordx4 v{VW}, s[8:11], s26 offen offset:1024 {H_LD} lds
        s_add_u32 s26, s26, 0x800
        """]
    HF = 16
    A2 = 0
    def hreads(c):
        res = []
        for i in range(2):
            for lb in range(4):
                off = (c % 10) * 16384 + (lb & 1) * 2048 + i * 1024
                base = HA + 2 * (off >> 16) + (lb >> 1)
                r = HF + 32 * (c & 1) + (i * 4 + lb) * 4
                res.append(f"ds_read_b128 v[{r}:{r+3}], v{base} offset:{off & 0xffff}")
        return res
    iss = M_PRE2
    for c in range(iss):
        for p in hchunk(c): k(p)
    k(f"s_waitcnt vmcnt({2*(iss-1)})")
    k("s_barrier")
    k("@STAMP 10")
    for r in hreads(0): k(r)
    for c in range(11):
        fill = []
        if c < 10:
            k(f"s_waitcnt vmcnt({2*(iss-(c+2))})")
            k("s_barrier")
        k("s_waitcnt lgkmcnt(0)")
        if c < 10: fill = hreads(c + 1)
        parts = []
        for rep_ in range(2):
            if iss < 11 and (iss < 10 or c >= 1) and iss < c + M_AHEAD2:
                parts += hchunk(iss); iss += 1
        slots = {1 + 2 * j: p for j, p in enumerate(parts)}
        n = 0
        for i in range(2):
            for lb in range(4):
                r = HF + 32 * (c & 1) + (i * 4 + lb) * 4
                a = A2 + 4 * lb
                cc = "0" if (c == 0 and i == 0) else f"v[{a}:{a+3}]"
                k(f"v_mfma_f32_16x16x32_bf16 v[{a}:{a+3}], v[{r}:{r+3}], {wdreg(2*c+i)}, {cc}")
                if SENT and (n & 1) == 0: k(f"v_max3_u32 v{TMP+10}, v{r}, v{r+4}, v{TMP+10}")
                if n < len(fill): k(fill[n])
                if n in slots: k(slots[n])
                n += 1
    k("@STAMP 11")
    XB = 65536
    k(f"""
    s_lshl_b32 s26, s17, 11
    s_add_u32 s26, s26, {XB}
    v_add_u32 v{TMP}, s26, v{VW}
    s_xor_b32 s26, s26, 0x2000
    v_add_u32 v{TMP+1}, s26, v{VW}
    """)
    for j in range(4):
        k(f"v_lshlrev_b32 v{32+2*j}, 16, v{RES+j}")
        k(f"v_and_b32 v{33+2*j}, 0xffff0000, v{RES+j}")
    k(f"""
    ds_write_b128 v{TMP}, v[8:11]
    ds_write_b128 v{TMP}, v[12:15] offset:1024
    """)
    if SENT:
        k(f"""
        v_cmp_eq_u32 vcc, -1, v{TMP+10}
        s_cmp_lg_u64 vcc, 0
        s_cselect_b32 s26, 1, 0
        s_lshl_b32 s27, s17, 2
        s_add_u32 s27, s27, {XB + 16384}
        v_mov_b32 v{TMP+11}, s26
        v_mov_b32 v{TMP+12}, s27
        v_and_b32 v{TMP+13}, 7, v{VT0}
        v_lshlrev_b32 v{TMP+13}, 2, v{TMP+13}
        v_add_u32 v{TMP+13}, {XB + 16384}, v{TMP+13}
        ds_write_b32 v{TMP+12}, v{TMP+11}
        """)
    k(f"""
    s_waitcnt lgkmcnt(0)
    s_barrier
    ds_read_b128 v[8:11], v{TMP+1}
    ds_read_b128 v[12:15], v{TMP+1} offset:1024
    """)
    if SENT:
        k(f"""
        ds_read_b32 v{TMP+11}, v{TMP+13}
        s_waitcnt lgkmcnt(0)
        v_cmp_ne_u32 vcc, 0, v{TMP+11}
        s_cmp_eq_u64 vcc, 0
        s_cbranch_scc1 M_OK
        s_add_u32 s55, s55, 1
        s_cmp_lt_u32 s55, 64
        s_cbranch_scc1 M_SYNC2
        M_OK:
        """)
    k("s_waitcnt lgkmcnt(0)")
    OUT = 16
    for j in range(4):
        y0, y1 = A2 + 2*j, A2 + 2*j + 1
        k(f"""
        v_pk_add_f32 v[{y0}:{y1}], v[{y0}:{y1}], v[{y0+8}:{y1+8}]
        v_cvt_pk_bf16_f32 v{y1}, v{y0}, v{y1}
        v_lshlrev_b32 v{y0}, 16, v{y1}
        v_and_b32 v{y1}, 0xffff0000, v{y1}
        v_pk_add_f32 v[{y0}:{y1}], v[{y0}:{y1}], v[{32+2*j}:{33+2*j}]
        v_cvt_pk_bf16_f32 v{OUT+j}, v{y0}, v{y1}
        """)
    k(f"""
    s_cmp_lg_u32 s35, 0
    s_cbranch_scc1 M_FINAL
    s_add_u32 s40, s39, {X2T}
    buffer_store_dwordx4 v[{OUT}:{OUT+3}], v{VRES}, s[8:11], s40 offen {X2_ST}
    """)
    Q = 48
    for j in range(4):
        k(f"""
        v_lshlrev_b32 v{Q+4*j}, 16, v{OUT+j}
        v_and_b32 v{Q+4*j+2}, 0xffff0000, v{OUT+j}
        v_mul_f32 v{Q+4*j+1}, v{Q+4*j}, v{Q+4*j}
        v_mul_f32 v{Q+4*j+3}, v{Q+4*j+2}, v{Q+4*j+2}
        """)
    for q in range(8):
        k(f"v_add_f32_dpp v{Q+q}, v{Q+q}, v{Q+q} row_ror:8 row_mask:0xf bank_mask:0x3")
        k(f"v_add_f32_dpp v{Q+q}, v{Q+q+8}, v{Q+q+8} row_ror:8 row_mask:0xf bank_mask:0xc")
    for q in range(4):
        k(f"v_add_f32_dpp v{Q+q}, v{Q+q}, v{Q+q} row_shl:4 row_mask:0xf bank_mask:0x5")
        k(f"v_add_f32_dpp v{Q+q}, v{Q+q+4}, v{Q+q+4} row_shr:4 row_mask:0xf bank_mask:0xa")
    for q in range(4):
        k(f"v_add_f32_dpp v{Q+q}, v{Q+q}, v{Q+q} quad_perm:[1,0,3,2] row_mask:0xf bank_mask:0xf")
    for q in range(4):
        k(f"v_add_f32_dpp v{Q+q}, v{Q+q}, v{Q+q} quad_perm:[2,3,0,1] row_mask:0xf bank_mask:0xf")
    SB = 98304
    k(f"""
    v_and_b32 v{TMP}, 3, v{VT1}
    v_cmp_eq_u32 s[48:49], 1, v{TMP}
    v_cmp_eq_u32 s[50:51], 2, v{TMP}
    v_cmp_eq_u32 s[52:53], 3, v{TMP}
    v_lshrrev_b32 v{TMP+1}, 2, v{VT1}
    v_lshlrev_b32 v{TMP+1}, 7, v{TMP+1}
    v_lshl_add_u32 v{TMP+1}, v{VT2}, 4, v{TMP+1}
    v_lshl_add_u32 v{TMP+1}, v{TMP}, 2, v{TMP+1}
    s_lshl_b32 s26, s16, 9
    s_lshl_b32 s27, s29, 6
    s_add_u32 s26, s26, s27
    s_add_u32 s26, s26, {SB}
    v_add_u32 v{TMP+1}, s26, v{TMP+1}
    v_cndmask_b32 v{Q}, v{Q}, v{Q+1}, s[48:49]
    v_cndmask_b32 v{Q}, v{Q}, v{Q+2}, s[50:51]
    v_cndmask_b32 v{Q}, v{Q}, v{Q+3}, s[52:53]
    ds_write_b32 v{TMP+1}, v{Q}
    s_lshl_b32 s26, s17, 8
    s_add_u32 s26, s26, {SB}
    v_lshl_add_u32 v{TMP+2}, v{VT0}, 2, s26
    v_lshrrev_b32 v{TMP+3}, 5, v{VT0}
    v_lshlrev_b32 v{TMP+3}, 12, v{TMP+3}
    v_and_b32 v{TMP+4}, 31, v{VT0}
    v_lshl_add_u32 v{TMP+3}, v{TMP+4}, 2, v{TMP+3}
    s_lshl_b32 s26, s36, 7
    s_lshl_b32 s27, s17, 13
    s_add_u32 s26, s26, s27
    s_add_u32 s26, s26, {ST1}
    s_waitcnt lgkmcnt(0)
    s_barrier
    s_cmp_ge_u32 s17, 2
    s_cbranch_scc1 M_NOAT
    ds_read_b32 v{Q}, v{TMP+2}
    ds_read_b32 v{Q+1}, v{TMP+2} offset:512
    ds_read_b32 v{Q+2}, v{TMP+2} offset:1024
    ds_read_b32 v{Q+3}, v{TMP+2} offset:1536
    s_waitcnt lgkmcnt(0)
    v_add_f32 v{Q}, v{Q}, v{Q+1}
    v_add_f32 v{Q+2}, v{Q+2}, v{Q+3}
    v_add_f32 v{Q}, v{Q}, v{Q+2}
    buffer_atomic_add_f32 v{Q}, v{TMP+3}, s[8:11], s26 offen
    M_NOAT:
    @STAMP 12
    @FLUSH 13
    s_endpgm
    M_FINAL:
    """)
    TP = 144; TB2 = 98304
    srd(k, 48, 6, L * D * 2)
    k(f"""
    s_lshl_b32 s26, s16, 4
    v_add_u32 v{TMP}, s26, v{VT1}
    v_mul_u32_u24 v{TMP}, {TP}, v{TMP}
    v_lshl_add_u32 v{TMP}, v{VT2}, 4, v{TMP}
    s_lshl_b32 s26, s29, 6
    s_add_u32 s26, s26, {TB2}
    v_add_u32 v{TMP}, s26, v{TMP}
    ds_write_b128 v{TMP}, v[{OUT}:{OUT+3}]
    v_lshrrev_b32 v{TMP+1}, 2, v{VT1}
    v_lshl_add_u32 v{TMP+1}, v{VT2}, 3, v{TMP+1}
    v_mul_u32_u24 v{TMP+1}, {TP}, v{TMP+1}
    v_and_b32 v{TMP+2}, 3, v{VT1}
    v_lshl_add_u32 v{TMP+1}, v{TMP+2}, 3, v{TMP+1}
    s_lshl_b32 s26, s16, 5
    s_mul_i32 s27, s29, {32*TP}
    s_add_u32 s26, s26, s27
    s_add_u32 s26, s26, {TB2}
    v_add_u32 v{TMP+1}, s26, v{TMP+1}
    v_lshlrev_b32 v{TMP+2}, 10, v{VT1}
    v_lshl_add_u32 v{TMP+2}, v{VT2}, 4, v{TMP+2}
    s_lshl_b32 s26, s36, 2
    s_add_u32 s26, s26, s16
    s_lshl_b32 s26, s26, 14
    s_lshl_b32 s27, s37, 7
    s_add_u32 s26, s26, s27
    s_lshl_b32 s27, s29, 6
    s_add_u32 s26, s26, s27
    s_waitcnt lgkmcnt(0)
    s_barrier
    ds_read_b64_tr_b16 v[32:33], v{TMP+1}
    ds_read_b64_tr_b16 v[34:35], v{TMP+1} offset:{4*TP}
    s_waitcnt lgkmcnt(0)
    buffer_store_dwordx4 v[32:35], v{TMP+2}, s[48:51], s26 offen {OUT_ST}
    @STAMP 12
    @FLUSH 13 last
    M_END:
    s_endpgm
    """)
    k(f"""
    M_STATS:
    s_mov_b32 s47, 0
    M_SL1:
    s_mov_b32 m0, s19
    s_add_u32 s19, s19, 0x2000
    buffer_load_dwordx4 v{VDMA}, s[8:11], s18 offen lds
    s_add_u32 s18, s18, 0x2000
    s_mov_b32 m0, s19
    s_add_u32 s19, s19, 0x2000
    buffer_load_dwordx4 v{VDMA}, s[8:11], s18 offen lds
    s_add_u32 s18, s18, 0x2000
    s_add_u32 s47, s47, 1
    s_cmp_lt_u32 s47, 8
    s_cbranch_scc1 M_SL1
    """)
    id_store("s")
    SACC = 0; ONES = 16
    k(f"""
    v_xor_b32 v{TMP+3}, s17, v{TMP+1}
    v_lshl_add_u32 v{XA}, v{TMP+3}, 5, v{TMP+2}
    """)
    for r in range(8): k(f"v_mov_b32 v{SACC+r}, 0")
    for r in range(4): k(f"v_mov_b32 v{ONES+r}, 0x3f803f80")
    k(f"""
    s_mov_b32 s47, 0
    s_waitcnt vmcnt(0)
    s_barrier
    M_SL2:
    """)
    for u in range(8):
        r = FR + 4 * u
        if u == 7: k("s_waitcnt lgkmcnt(12)")
        k(f"ds_read_b64_tr_b16 v[{r}:{r+1}], v{XA} offset:{u*8192}")
        k(f"ds_read_b64_tr_b16 v[{r+2}:{r+3}], v{XA} offset:{u*8192+4096}")
    k(f"v_add_u32 v{XA}, 0x10000, v{XA}")
    for u in range(8):
        r = FR + 4 * u
        k(f"s_waitcnt lgkmcnt({14 - 2*u})")
        k(f"v_mfma_f32_16x16x32_bf16 v[{SACC}:{SACC+3}], v[{r}:{r+3}], v[{r}:{r+3}], v[{SACC}:{SACC+3}]")
        k(f"v_mfma_f32_16x16x32_bf16 v[{SACC+4}:{SACC+7}], v[{ONES}:{ONES+3}], v[{r}:{r+3}], v[{SACC+4}:{SACC+7}]")
    k(f"""
    s_add_u32 s47, s47, 1
    s_cmp_lt_u32 s47, 2
    s_cbranch_scc1 M_SL2
    v_and_b32 v{TMP}, 3, v{VT1}
    v_cmp_eq_u32 s[48:49], 1, v{TMP}
    v_cmp_eq_u32 s[50:51], 2, v{TMP}
    v_cmp_eq_u32 s[52:53], 3, v{TMP}
    v_lshrrev_b32 v{TMP}, 2, v{VT1}
    v_cmp_eq_u32 s[54:55], v{TMP}, v{VT2}
    v_cndmask_b32 v{SACC}, v{SACC}, v{SACC+1}, s[48:49]
    v_cndmask_b32 v{SACC}, v{SACC}, v{SACC+2}, s[50:51]
    v_cndmask_b32 v{SACC+5}, v{SACC}, v{SACC+3}, s[52:53]
    v_mov_b32 v{SACC+12}, v{SACC+4}
    v_mov_b32 v{SACC+13}, v{SACC+5}
    """)
    stats_pair(k, SACC+4, SACC+5, SACC+12, SACC+13, TMP, keep=(SACC+6, SACC+14))
    k(f"""
    v_lshrrev_b32 v{SACC+4}, 16, v{SACC+4}
    v_or_b32 v{SACC+4}, v{SACC+4}, v{SACC+6}
    v_lshlrev_b32 v{VSTX}, 2, v{VT1}
    s_lshl_b32 s41, s14, 9
    s_lshl_b32 s26, s17, 6
    s_add_u32 s41, s41, s26
    s_add_u32 s41, s41, s33
    s_mov_b64 exec, s[54:55]
    buffer_store_dword v{SACC+4}, v{VSTX}, s[8:11], s41 offen sc1
    s_mov_b64 exec, -1
    """)
    for p in res_parts: k(p)
    for i in range(22): k(wd_part(i))
    k(f"""
    s_barrier
    s_branch M_SYNC
    .p2align 8
    mlpb_kernel:
    s_mov_b32 s30, {X3T}
    s_mov_b32 s31, {HB1}
    s_mov_b32 s33, {STX + 0x2000}
    s_mov_b32 s34, {FLG + 0x8000}
    s_mov_b32 s35, 1
    s_mov_b32 s56, {IDT + 0x400}
    @KID 5
    s_branch M_BODY
    """)
    info = dict(vgpr=NV + 88, sgpr=64, accum=NV, grid=256, block=512, lds=MLP_LDS)
    return k, info

DIAG_KN = {2: ("mlpa", 13), 5: ("mlpb", 13), 3: ("wroles", 2), 6: ("none", 1)}
def emit(path, launches=None):
    kp, ip = gen_prep()
    kc, ic = gen_conv()
    km, im = gen_mlp()
    ic1 = dict(ic); ic1["grid"] = B_E
    infos = {"prep_kernel": ip, "conv1_kernel": ic1, "conv2_kernel": ic, "mlpa_kernel": im, "mlpb_kernel": im}
    kf, if1 = gen_f1()
    if FUSE1:
        infos = {"f1_kernel": if1, "conv2_kernel": ic, "mlpa_kernel": im, "mlpb_kernel": im}
        launches = launches or ["f1_kernel", "mlpa_kernel", "conv2_kernel", "mlpb_kernel"]
    if os.environ.get("ORDER"): launches = [x + "_kernel" for x in os.environ["ORDER"].split(",")]
    order = launches or ["prep_kernel", "conv1_kernel", "mlpa_kernel", "conv2_kernel", "mlpb_kernel"]
    hdr = open("cdna_kernels/" + NAME + ".s.ref").read().split("; Override launch")[0]
    out = [hdr.rstrip("\n")]
    for n in order:
        i = infos[n]
        out.append(f"; @launch kernel={n} grid=({i['grid']},1,1) block=({i['block']},1,1) lds={i['lds']}")
    out.append('.amdgcn_target "amdgcn-amd-amdhsa--gfx950"\n.text')
    for n in infos:
        out.append(f".globl {n}\n.type {n},@function")
    if FUSE1: out.append(".p2align 8\n" + kf.text())
    out.append(".p2align 8\nprep_kernel:\n" + kp.text().replace("P_NOPF", "Q_NOPF"))
    for kk in (kc, km):
        out.append(".p2align 8\n" + kk.text())
    for n, i in infos.items():
        out.append(descriptor(n, i["vgpr"], 102 if DIAG else i["sgpr"], i["accum"]))
    open(path, "w").write("\n".join(out))

if __name__ == "__main__":
    emit(sys.argv[1] if len(sys.argv) > 1 else "cdna_kernels/" + NAME + ".s")
```

```python
import sys, struct, re, os
from asmlib import *

NAME = "interleave_layers__ssm_conv_s4d__glu_gated_glu__prompt"
KA_U, KA_LOGA, KA_AIM, KA_CRE, KA_CIM, KA_LOGDT, KA_DSKIP, KA_BX, KA_WG, KA_WU, KA_WD, KA_OUT, KA_DBG, KA_WS = [8 * i for i in range(14)]
XT0, X1T, X2T, X3T = 0x3000000, 0x3300000, 0x3600000, 0x3900000
ST0, ST1, CSUM = 0x0800000, 0x0804000, 0x0808000
WP = 0x0C00000
WD = 0x1000000
HB = 0x1200000
HB1 = 0x2200000
GFB = 0x0840000
GFN = int(os.environ.get('GFN', '32'))
ZR = 0x0810000; STX = 0x0810000; FLG = 0x0820000
KP = 0x1800000; KCS = 4160; KP_STRIDE = 1536
WS_BYTES = 0x10000000
L, D, F, NST = 2048, 512, 1376, 128
NKS2 = 44
HKS = 45

import os
XP = int(os.environ.get('XP', '4352'))
PREP_W_POL = os.environ.get('PREP_W_POL', 'sc1')
PREP_K_POL = os.environ.get('PREP_K_POL', '')
PREP_X_POL = os.environ.get('PREP_X_POL', '')
LATE_PRIO = int(os.environ.get('LATE_PRIO', '0'))
PREP_PRIO = int(os.environ.get('PREP_PRIO', '0'))
CONV_ST = os.environ.get('CONV_ST', 'sc1')
OUT_ST = os.environ.get('OUT_ST', '')
X2_ST = os.environ.get('X2_ST', 'sc1')
F1_SLEEP = int(os.environ.get('F1_SLEEP', '2'))
CODEPF_BASE = int(os.environ.get('CODEPF_BASE', '760' if int(os.environ.get('FUSE1', '1')) else '0'))
CPFR = 142 if int(os.environ.get('FUSE1', '1')) else 94
SENT = int(os.environ.get('SENT', '0'))
SPLITPUB = int(os.environ.get('SPLITPUB', '1'))
POISON_POL = os.environ.get('POISON_POL', 'sc1')
SENT_SLEEP = int(os.environ.get('SENT_SLEEP', '2'))
WTOUCH = int(os.environ.get('WTOUCH', '0'))
CODEPF3 = int(os.environ.get('CODEPF3', '0'))
CODEPF2 = int(os.environ.get('CODEPF2', '1'))
TLBPF = int(os.environ.get('TLBPF', '0'))
TLBPF_BASE = int(os.environ.get('TLBPF_BASE', '1216'))
CODEPF = int(os.environ.get('CODEPF', '1'))
DIAG = int(os.environ.get("DIAG", "0"))
DIAG_OFF = 0x4000000
_Kern = Kern
class Kern(_Kern):
    def __call__(self, s):
        for l in s.strip("\n").split("\n"):
            t = l.strip()
            if t.startswith("@GFLOAD"):
                super().__call__(f"s_and_b32 s26, s2, {GFN-1}\ns_lshl_b32 s26, s26, 7\ns_add_u32 s26, s26, {GFB}\nv_mov_b32 v43, s26\nglobal_load_dword v42, v43, s[4:5] sc1")
                continue
            if t.startswith("@WTOUCH"):
                if WTOUCH:
                    super().__call__(f"""
                    s_mul_i32 s15, s3, 5504
                    v_min_u32 v90, 85, v0
                    v_lshl_add_u32 v90, v90, 6, s15
                    global_load_dword v91, v90, s[16:17]
                    global_load_dword v92, v90, s[18:19]
                    global_load_dword v93, v90, s[20:21]
                    """)
                continue
            if t.startswith("@CODEPF3"):
                if CODEPF3:
                    super().__call__(f"""
                    s_cmp_ge_u32 s2, 8
                    s_cbranch_scc1 M_NOPF
                    s_cmp_lt_u32 s17, 2
                    s_cbranch_scc1 M_NOPF
                    s_getpc_b64 s[26:27]
                    M_PFPC:
                    s_sub_u32 s26, s26, M_PFPC-conv1_kernel
                    s_subb_u32 s27, s27, 0
                    s_and_b32 s28, s17, 1
                    s_lshl_b32 s28, s28, 12
                    v_lshl_add_u32 v163, v136, 6, s28
                    global_load_dword v163, v163, s[26:27]
                    M_NOPF:
                    """)
                continue
            if t.startswith("@CNTLOAD"):
                super().__call__("global_load_dword v59, v2, s[28:29] sc1")
                continue
            if t.startswith("@CODEPF"):
                if CODEPF:
                    super().__call__(f"""
                    s_sub_u32 s3, s2, {CODEPF_BASE}
                    s_cmp_ge_u32 s3, 8
                    s_cbranch_scc1 P_NOPF
                    s_getpc_b64 s[6:7]
                    P_NOPF_PC:
                    v_lshlrev_b32 v1, 6, v0
                    global_load_dword v{CPFR}, v1, s[6:7]
                    v_add_u32 v1, 0x4000, v1
                    v_min_u32 v1, TEXT_END-P_NOPF_PC-4, v1
                    global_load_dword v{CPFR+1}, v1, s[6:7]
                    P_NOPF:
                    """)
                if TLBPF:
                    super().__call__(f"""
                    s_sub_u32 s3, s2, {TLBPF_BASE}
                    s_cmp_ge_u32 s3, 8
                    s_cbranch_scc1 P_NOPF2
                    s_load_dwordx2 s[6:7], s[0:1], {KA_OUT}
                    v_lshlrev_b32 v1, 18, v0
                    v_lshlrev_b32 v2, 13, v0
                    s_waitcnt lgkmcnt(0)
                    global_load_dword v93, v1, s[4:5]
                    global_load_dword v92, v2, s[6:7]
                    P_NOPF2:
                    """)
                continue
            if t.startswith("@"):
                if not DIAG: continue
                p = t.split()
                if p[0] == "@KID":
                    super().__call__(f"s_mov_b32 s59, {DIAG_OFF + int(p[1]) * 0x80000}\ns_mov_b32 s57, {3 if int(p[1]) in (2, 5) else 2}")
                elif p[0] == "@INIT":
                    super().__call__("v_readfirstlane_b32 s58, v0\ns_memrealtime s[64:65]\ns_memtime s[66:67]")
                elif p[0] == "@STAMP":
                    i = int(p[1]); super().__call__(f"s_memtime s[{64+2*i}:{65+2*i}]")
                elif p[0] == "@FLUSH":
                    n = int(p[1])
                    super().__call__(f"""
                    s_waitcnt vmcnt(0)
                    s_memtime s[{64+2*n}:{65+2*n}]
                    s_memrealtime s[{66+2*n}:{67+2*n}]
                    s_waitcnt lgkmcnt(0)
                    s_mov_b64 exec, -1
                    s_lshr_b32 s58, s58, 6
                    s_lshl_b32 s61, s2, s57
                    s_add_u32 s60, s58, s61
                    s_lshl_b32 s60, s60, 6
                    s_add_u32 s60, s60, s59
                    v_mov_b32 v1, s60
                    """)
                    for i in range(n + 2):
                        super().__call__(f"v_mov_b32 v2, s{64+2*i}\nglobal_store_dword v1, v2, s[4:5] offset:{4*i}")
                    super().__call__("s_getreg_b32 s61, hwreg(HW_REG_XCC_ID)\nv_mov_b32 v2, s61\nglobal_store_dword v1, v2, s[4:5] offset:60")
                    if DIAG == 2 and len(p) > 2:
                        lab = f"DG{len(self.lines)}"
                        txt = f"s_or_b32 s60, s2, s58\ns_cmp_lg_u32 s60, 0\ns_cbranch_scc1 {lab}\ns_load_dwordx2 s[62:63], s[0:1], {KA_DBG}\ns_waitcnt vmcnt(0) lgkmcnt(0)\n"
                        j = 0
                        for kid, nn in ((0, 6), (1, 13), (2, 13), (4, 13), (5, 13)):
                            for slot in (0, nn + 1):
                                txt += f"v_mov_b32 v1, {DIAG_OFF + kid * 0x80000 + 4 * slot}\nglobal_load_dword v2, v1, s[4:5] sc1\nv_mov_b32 v3, {4*j}\ns_waitcnt vmcnt(0)\nglobal_store_dword v3, v2, s[62:63]\n"
                                j += 1
                        for kid, slot in ((2, 1), (2, 3), (2, 5), (2, 9), (1, 1), (1, 5)):
                            txt += f"v_mov_b32 v1, {DIAG_OFF + kid * 0x80000 + 4 * slot}\nglobal_load_dword v2, v1, s[4:5] sc1\nv_mov_b32 v3, {4*j}\ns_waitcnt vmcnt(0)\nglobal_store_dword v3, v2, s[62:63]\n"
                            j += 1
                        super().__call__(txt + f"{lab}:")
                continue
            super().__call__(l)

def f2u(x): return struct.unpack("<I", struct.pack("<f", x))[0]
def fl(x): return "0x%08x" % f2u(x)
LOG2E = 1.4426950408889634
L2E_HI = struct.unpack("<f", struct.pack("<f", LOG2E))[0]
L2E_LO = LOG2E - L2E_HI
LN2 = 0.6931471805599453

def srd(k, s, base, nbytes):
    k(f"""
    s_mov_b32 s{s}, s{base}
    s_and_b32 s{s+1}, s{base+1}, 0xffff
    s_mov_b32 s{s+2}, {nbytes:#x}
    s_mov_b32 s{s+3}, 0x20000
    """)

def rnd_bf16(k, dst, a, b=None):
    k(f"v_cvt_pk_bf16_f32 v{dst}, v{a}, v{b if b is not None else a}")

def exp_acc(k, dst, x, t0, t1):
    k(f"""
    v_mul_f32 v{t0}, s40, v{x}
    v_fma_f32 v{t1}, s40, v{x}, -v{t0}
    v_fma_f32 v{t1}, s41, v{x}, v{t1}
    v_exp_f32 v{dst}, v{t0}
    v_mul_f32 v{t1}, s42, v{t1}
    v_fma_f32 v{dst}, v{dst}, v{t1}, v{dst}
    """)

N_K, N_T, N_W, N_D, N_C = 512, 256, 240, 176, 90
FUSE1 = int(os.environ.get('FUSE1', '1'))
MERGE = int(os.environ.get('MERGE', '0'))
UEARLY = int(os.environ.get('UEARLY', '0'))
C_SLEEP = int(os.environ.get('C_SLEEP', '0'))
C_WAITN = int(os.environ.get('C_WAITN', '1'))
F1_LD = os.environ.get('F1_LD', 'sc1')
F1_POLL = os.environ.get('F1_POLL', 'sc1')
WINC = os.environ.get('WINC', 'X')
_sz = {"C": N_C, "W": N_W, "D": N_D, "T": N_T}
B_K = 0
_pos = N_K; PREP_ROLES = []; _base = {}
for r in "CWTD":
    if r not in WINC:
        _base[r] = _pos; _pos += _sz[r]; PREP_ROLES.append((r, _pos))
PREP_WGS = _pos
_pos = 512; CONV_ROLES = []
for r in "CWD":
    if r in WINC:
        _base[r] = _pos; _pos += _sz[r]; CONV_ROLES.append((r, _pos))
B_E = _pos
B_C, B_W, B_T, B_D = _base["C"], _base["W"], _base["T"], _base["D"]
if FUSE1: B_T = 0; B_C = 0
PREP_GROUPS = [("prep.K", 0, N_K, 6)] + [("prep." + r, _base[r], e, 2) for r, e in PREP_ROLES]
if FUSE1: PREP_GROUPS = [("f1.TC", 0, N_C, 6), ("f1.T", N_C, N_T, 6)]
_lab = {"C": "P_C", "W": "P_W", "T": "P_TR", "D": "P_D"}
PREP_LDS = 18432
CSU = 4576
KL = 2 * CSU
CRED = KL + 16640
CONV_LDS = CRED + 24576
CPF = int(os.environ.get('CPF', '1'))
CPF_STRIDE = int(os.environ.get('CPF_STRIDE', '128'))
LOCALMAP0 = int(os.environ.get('LOCALMAP', '0'))
PFQ = int(os.environ.get('PFQ', '6144'))
SPIN_MAX = 1 << 20

class Remap:
    def __init__(self, k, voff, smap): self.k = k; self.voff = voff; self.smap = smap
    def __call__(self, t):
        def rv(m):
            if m.group(1): return f"v[{int(m.group(1))+self.voff}:{int(m.group(2))+self.voff}]"
            n = int(m.group(3)); return "v0" if n == 0 else f"v{n+self.voff}"
        t = re.sub(r"\bv\[(\d+):(\d+)\]|\bv(\d+)\b", rv, t)
        def rs(m):
            if m.group(1):
                a = int(m.group(1)); b = int(m.group(2))
                if a in self.smap: return f"s[{self.smap[a]}:{self.smap[a]+b-a}]"
                return m.group(0)
            n = int(m.group(3)); return f"s{self.smap.get(n, n)}"
        t = re.sub(r"\bs\[(\d+):(\d+)\]|\bs(\d+)\b", rs, t)
        self.k(t)
    def label(self, l): self.k.label(l)

class NoPk:
    def __init__(self, k): self.k = k
    def __call__(self, t):
        def f(m):
            d, a, b = int(m.group(1)), int(m.group(2)), int(m.group(3))
            return f"v_add_f32 v{d}, v{a}, v{b}\nv_add_f32 v{d+1}, v{a+1}, v{b+1}"
        self.k(re.sub(r"v_pk_add_f32 v\[(\d+):\d+\], v\[(\d+):\d+\], v\[(\d+):\d+\]", f, t))
    def label(self, l): self.k.label(l)
CONV_NOPK = int(os.environ.get('CONV_NOPK', '1'))

class UnitS:
    MAP = {12: 21, 13: 22, 14: 23, 15: 27, 16: 30, 17: 39, 18: 46, 19: 47, 21: 55, 3: 56}
    def __init__(self, k): self.k = k
    def __call__(self, t):
        self.k(re.sub(r"\bs(\d+)\b", lambda m: f"s{self.MAP.get(int(m.group(1)), int(m.group(1)))}", t))

class Remap2:
    def __init__(self, k, vmap): self.k = k; self.vmap = vmap
    def __call__(self, t):
        t = re.sub(r"\bv(\d+)\b", lambda m: f"v{self.vmap.get(int(m.group(1)), int(m.group(1)))}", t)
        self.k(t)

def conv_setup(k):
    k(f"""
    v_readfirstlane_b32 s17, v0
    s_mov_b32 s43, {fl(1.0/512)}
    s_mov_b32 s44, {fl(1e-5)}
    s_mov_b32 s45, {fl(1e-5)}
    s_mov_b32 s46, {fl(1.0/512)}
    s_mov_b32 s47, {fl(1.0/512)}
    s_lshr_b32 s17, s17, 6                ; pi
    s_mul_i32 s12, s2, {XP}
    s_add_u32 s13, s12, s30
    s_lshl_b32 s14, s2, 8
    s_add_u32 s14, s14, s32               ; out: d*256
    s_mul_i32 s15, s2, {KP_STRIDE}
    s_add_u32 s15, s15, {KP}
    s_lshr_b32 s16, s2, 1
    s_lshl_b32 s16, s16, 2
    v_lshlrev_b32 v1, 4, v0               ; tid*16
    v_and_b32 v3, 15, v0                  ; c / r
    v_bfe_u32 v4, v0, 4, 2                ; g
    v_and_b32 v5, 63, v0
    v_lshlrev_b32 v6, 4, v5               ; lane*16
    s_and_b32 s21, s2, 7
    v_bfe_u32 v2, v0, 1, 3
    v_xor_b32 v2, s21, v2
    v_lshlrev_b32 v2, 5, v2
    v_lshrrev_b32 v8, 4, v0
    v_lshl_add_u32 v2, v8, 17, v2
    v_and_b32 v8, 1, v0
    v_lshl_add_u32 v2, v8, 4, v2
    """)

def conv_loads(k, pol=""):
    k(f"""
    buffer_load_dwordx4 v[16:19], v1, s[8:11], s31 offen {pol}
    s_add_u32 s31, s31, 0x1000
    buffer_load_dwordx4 v[20:23], v1, s[8:11], s31 offen {pol}
    s_add_u32 s31, s31, 0x1000
    buffer_load_dwordx4 v[24:27], v1, s[8:11], s31 offen {pol}
    s_add_u32 s31, s31, 0x1000
    buffer_load_dwordx4 v[28:31], v1, s[8:11], s31 offen {pol}
    buffer_load_dwordx4 v[12:15], v1, s[8:11], s13 offen {pol}
    """)

def conv_p3(k, kzero=True, lb=None):
    k(f"""
    v_mov_b32 v36, 0
    v_mov_b32 v37, 0
    v_mov_b32 v38, 0
    v_mov_b32 v39, 0
    """)
    if kzero: k(f"""
    v_bfe_u32 v9, v0, 2, 2
    v_mul_u32_u24 v9, {KCS}, v9
    v_and_b32 v10, 3, v0
    v_min_u32 v10, 2, v10
    v_lshl_add_u32 v9, v10, 4, v9
    {f'v_add_u32 v9, {lb}, v9' if lb else ''}
    ds_write_b128 v9, v[36:39] offset:{KL}
    """)
    k(f"""
    v_lshlrev_b32 v40, 3, v0
    s_sub_u32 s19, s18, {2 * (0x4300 - 128)}
    """)
    for e in range(11):
        k(f"v_add_u32 v{48+e}, {e-3}, v40")
        if e < 3: k(f"v_max_i32 v{48+e}, 0, v{48+e}")
        k(f"v_cvt_f32_u32 v{60+e}, v{48+e}")
    for e in range(0, 11, 2):
        k(f"v_cvt_pk_bf16_f32 v{72+e//2}, v{60+e}, v{min(61+e, 70)}")
    for e in range(11):
        src = 72 + e // 2
        if e & 1: k(f"v_lshrrev_b32 v{60+e}, 16, v{src}")
        else: k(f"v_and_b32 v{60+e}, 0xffff, v{src}")
        k(f"v_lshl_add_u32 v{60+e}, v{60+e}, 1, s19")
        k(f"v_lshl_add_u32 v{48+e}, v{48+e}, 1, s18")
    k("v_cmp_gt_u32 s[24:25], 17, v0")
    for e in range(11):
        k(f"v_cndmask_b32 v{48+e}, v{60+e}, v{48+e}, s[24:25]")
    k(f"""
    s_and_b32 s21, s17, 1
    s_sub_u32 s22, 56, s21
    s_mul_i32 s21, s21, {CSU}
    v_min_u32 v9, s22, v5
    v_lshl_add_u32 v9, v9, 3, s21
    {f'v_add_u32 v9, {lb}, v9' if lb else ''}
    ds_write_b64 v9, v[36:37]
    v_and_b32 v9, 1, v3
    v_mul_u32_u24 v9, {CSU}, v9
    v_lshrrev_b32 v10, 1, v3
    v_lshlrev_b32 v11, 2, v10
    v_sub_u32 v11, v11, v4
    s_lshl_b32 s21, s17, 2
    s_sub_u32 s21, 15, s21
    v_add_u32 v11, s21, v11
    v_lshl_add_u32 v9, v11, 4, v9         ; v9 = u addr
    v_and_b32 v7, 3, v3
    v_mul_u32_u24 v7, {KCS}, v7
    v_lshrrev_b32 v8, 2, v3
    v_add_u32 v8, v8, v4
    v_lshl_add_u32 v7, v8, 4, v7
    s_lshl_b32 s21, s17, 6
    s_add_u32 s21, s21, {KL}
    v_add_u32 v7, s21, v7                 ; v7 = K addr
    v_xor_b32 v8, v4, v10
    v_and_b32 v8, 3, v8
    v_lshlrev_b32 v8, 1, v8
    v_lshl_add_u32 v8, v10, 3, v8
    v_and_b32 v11, 1, v3
    v_add_u32 v8, v8, v11
    s_lshl_b32 s21, s17, 11
    v_lshl_add_u32 v10, v8, 4, s21
    v_bfe_u32 v8, v0, 2, 3
    v_xor_b32 v11, v8, v0
    v_and_b32 v11, 3, v11
    v_lshlrev_b32 v11, 5, v11
    v_lshl_add_u32 v11, v8, 7, v11
    v_bfe_u32 v8, v0, 5, 1
    v_lshl_add_u32 v11, v8, 10, v11
    s_lshl_b32 s21, s17, 13
    s_add_u32 s21, s21, {CRED}
    s_cmp_eq_u32 s17, 3
    s_cselect_b32 s21, {KL}, s21
    v_add_u32 v11, s21, v11
    """)
    if lb:
        for r in (7, 9, 10, 11): k(f"v_add_u32 v{r}, {lb}, v{r}")
        k(f"v_add_u32 v42, {lb}, v1")

def conv_expand(k, a="v1"):
    k("""
    v_cmp_eq_u32 vcc, 0, v0
    s_waitcnt lgkmcnt(0)
    v_cndmask_b32 v48, v48, v36, vcc
    v_cndmask_b32 v49, v49, v36, vcc
    v_cndmask_b32 v50, v50, v36, vcc
    """)
    for sft in range(4):
        for j in range(4):
            k(f"v_lshl_or_b32 v{64+4*sft+j}, v{48+sft+6-2*j}, 16, v{48+sft+7-2*j}")
        k(f"ds_write_b128 {a}, v[{64+4*sft}:{67+4*sft}] offset:{KL + sft*KCS + 48}")

def conv_norm(k, a="v1"):
    for j in range(4):
        k(f"""
        v_lshlrev_b32 v40, 16, v{12+j}
        v_and_b32 v41, 0xffff0000, v{12+j}
        v_sub_f32 v40, v40, v{16+4*j}
        v_sub_f32 v41, v41, v{18+4*j}
        v_cvt_pk_bf16_f32 v41, v40, v41
        v_lshlrev_b32 v40, 16, v41
        v_and_b32 v41, 0xffff0000, v41
        v_mul_f32 v40, v40, v{17+4*j}
        v_mul_f32 v41, v41, v{19+4*j}
        v_cvt_pk_bf16_f32 v{32+j}, v40, v41
        """)
    k(f"""
    ds_write_b128 {a}, v[32:35] offset:{CSU + 16*28}
    ds_write2_b64 {a}, v[32:33], v[34:35] offset0:57 offset1:58
    """)

BARB = ZR + 0x8000
def grid_arrive(k, b, tag, wave_sgpr, wg_sgpr, t0):
    k(f"""
    s_waitcnt vmcnt(0)
    s_barrier
    s_cmp_lg_u32 {wave_sgpr}, 7
    s_cbranch_scc1 GA_{tag}
    s_and_b32 s26, {wg_sgpr}, 15
    s_lshl_b32 s26, s26, 7
    s_add_u32 s26, s26, {BARB + b * 4096}
    v_mov_b32 v{t0}, 1
    v_mov_b32 v{t0+1}, 0
    v_mbcnt_lo_u32_b32 v{t0+2}, -1, 0
    v_lshlrev_b32 v{t0+2}, 7, v{t0+2}
    s_mov_b64 exec, 1
    buffer_atomic_add v{t0}, v{t0+1}, s[8:11], s26 offen sc0 sc1
    s_waitcnt vmcnt(0)
    v_readfirstlane_b32 s27, v{t0}
    s_mov_b64 exec, -1
    s_cmp_lg_u32 s27, 15
    s_cbranch_scc1 GA_{tag}
    v_mov_b32 v{t0}, 1
    s_mov_b32 s26, {BARB + b * 4096 + 2048}
    s_mov_b64 exec, 0xffff
    buffer_atomic_add v{t0}, v{t0+2}, s[8:11], s26 offen sc1
    s_mov_b64 exec, -1
    GA_{tag}:
    """)
def grid_wait(k, b, tag, wave_sgpr, wg_sgpr, t0, pollwave=3):
    k(f"""
    s_cmp_lg_u32 {wave_sgpr}, {pollwave}
    s_cbranch_scc1 GW_{tag}
    s_lshr_b32 s26, {wg_sgpr}, 4
    s_lshl_b32 s26, s26, 7
    s_add_u32 s26, s26, {BARB + b * 4096 + 2048}
    v_mov_b32 v{t0+1}, 0
    s_mov_b32 s27, 0
    GP_{tag}:
    buffer_load_dword v{t0}, v{t0+1}, s[8:11], s26 offen sc1
    s_waitcnt vmcnt(0)
    v_readfirstlane_b32 s28, v{t0}
    s_cmp_ge_u32 s28, 16
    s_cbranch_scc1 GW_{tag}
    s_sleep {F1_SLEEP}
    s_add_u32 s27, s27, 1
    s_cmp_lt_u32 s27, {SPIN_MAX >> 2}
    s_cbranch_scc1 GP_{tag}
    GW_{tag}:
    s_waitcnt lgkmcnt(0)
    s_barrier
    """)

def gen_prep():
    kreal = Kern("prep_kernel"); knull = Kern("null")
    k = knull if FUSE1 else kreal
    k(f"""
    @KID 0
    @INIT
    s_load_dwordx2 s[4:5], s[0:1], {KA_WS}
    @CODEPF
    s_sub_u32 s26, s2, {B_K}
    s_cmp_lt_u32 s26, {N_K}
    s_cbranch_scc1 P_KGEN
    """)
    for r, e in PREP_ROLES: k(f"s_cmp_lt_u32 s2, {e}\ns_cbranch_scc1 {_lab[r]}")
    k(f"""
    s_endpgm
    P_WROLES:
    @KID 3
    @INIT
    s_load_dwordx2 s[4:5], s[0:1], {KA_WS}
    """)
    for r, e in CONV_ROLES: k(f"s_cmp_lt_u32 s2, {e}\ns_cbranch_scc1 {_lab[r]}")
    k("s_endpgm")
    k.label("P_KGEN")
    TB = 16384
    k(f"""
    s_load_dwordx4 s[8:11], s[0:1], {KA_LOGA}
    s_load_dwordx4 s[12:15], s[0:1], {KA_CRE}
    s_load_dwordx2 s[16:17], s[0:1], {KA_LOGDT}
    s_mov_b32 s40, {fl(L2E_HI)}
    s_mov_b32 s41, {fl(L2E_LO)}
    s_mov_b32 s42, {fl(LN2)}
    v_lshrrev_b32 v1, 1, v0
    v_and_b32 v1, 0x60, v1
    v_and_or_b32 v1, v0, 31, v1           ; n = 32 w + (lane & 31)
    s_lshl_b32 s3, s26, 8
    v_lshl_add_u32 v2, v1, 1, s3
    s_lshl_b32 s18, s26, 1
    v_mov_b32 v3, s18
    v_readfirstlane_b32 s19, v0
    s_lshr_b32 s19, s19, 6                ; wave
    s_waitcnt lgkmcnt(0)
    global_load_ushort v4, v2, s[8:9]
    global_load_ushort v8, v3, s[16:17]
    global_load_ushort v5, v2, s[10:11]
    global_load_ushort v6, v2, s[12:13]
    global_load_ushort v7, v2, s[14:15]
    v_and_b32 v20, 15, v0                 ; i / j
    v_bfe_u32 v21, v0, 4, 2               ; g
    ; hi0 = 128*(i>>3) + (i&7)
    v_lshrrev_b32 v23, 3, v20
    v_and_b32 v24, 7, v20
    v_lshl_add_u32 v23, v23, 7, v24
    v_cvt_f32_u32 v30, v23
    ; hi1 = (g''<2 ? 256+2g'' : 256*g'') + 128*((i>>1)&1) + 4*(i&1)
    v_lshrrev_b32 v23, 2, v20
    v_lshlrev_b32 v24, 1, v23
    v_add_u32 v24, 0x100, v24
    v_lshlrev_b32 v25, 8, v23
    v_cmp_gt_u32 vcc, 2, v23
    v_cndmask_b32 v24, v25, v24, vcc
    v_bfe_u32 v25, v20, 1, 1
    v_lshl_add_u32 v24, v25, 7, v24
    v_and_b32 v25, 1, v20
    v_lshl_add_u32 v24, v25, 2, v24
    v_cvt_f32_u32 v31, v24
    v_lshlrev_b32 v23, 7, v20
    v_add_u32 v23, 0x400, v23
    v_cvt_f32_u32 v32, v23                ; hi2
    v_lshlrev_b32 v23, 3, v20
    v_cvt_f32_u32 v33, v23                ; lo
    s_lshl_b32 s20, s19, 9
    v_lshl_add_u32 v34, v21, 6, s20
    v_lshrrev_b32 v23, 1, v21
    v_and_b32 v24, 1, v21
    v_lshlrev_b32 v24, 2, v24
    v_lshl_add_u32 v35, v23, 7, v24
    v_lshl_add_u32 v35, v20, 3, v35
    v_mov_b32 v36, 1
    v_mov_b32 v37, 2
    s_cmp_eq_u32 s19, 0
    s_cbranch_scc1 P_KA
    v_lshl_add_u32 v35, v21, 6, v20
    v_add_u32 v35, 0x200, v35
    v_mov_b32 v36, 16
    v_mov_b32 v37, 32
    s_cmp_lg_u32 s19, 1
    s_cbranch_scc1 P_KA
    v_lshl_add_u32 v23, v20, 2, v21
    v_add_u32 v23, 0x100, v23             ; seg1: 256 + g' + 4j ; o1=2 o2=64
    v_lshlrev_b32 v24, 6, v21
    v_lshl_add_u32 v24, v20, 1, v24
    v_add_u32 v24, 0x100, v24             ; seg2: 384 + 64(g'-2) + 2j ; o1=1 o2=32
    v_cmp_gt_u32 vcc, 2, v21
    v_cndmask_b32 v35, v24, v23, vcc
    v_cndmask_b32 v36, 1, 2, vcc
    v_cndmask_b32 v37, 32, 64, vcc
    P_KA:
    v_add_u32 v38, v36, v37
    v_add_lshl_u32 v36, v36, v35, 1
    v_add_lshl_u32 v37, v37, v35, 1
    v_add_lshl_u32 v38, v38, v35, 1
    v_lshlrev_b32 v35, 1, v35
    v_and_b32 v39, 63, v0
    v_lshlrev_b32 v39, 4, v39             ; lane*16
    s_waitcnt vmcnt(3)
    @STAMP 2
    v_lshlrev_b32 v4, 16, v4
    v_lshlrev_b32 v8, 16, v8
    """)
    exp_acc(k, 10, 8, 16, 17)
    exp_acc(k, 11, 4, 18, 19)
    k(f"""
    v_cvt_pk_bf16_f32 v10, v10, v11
    v_and_b32 v11, 0xffff0000, v10        ; eA
    v_lshlrev_b32 v10, 16, v10            ; dt
    v_mul_f32 v12, v11, v10
    v_mul_f32 v12, s40, v12
    v_sub_f32 v12, 0, v12
    s_waitcnt vmcnt(0)
    v_lshlrev_b32 v5, 16, v5
    v_lshlrev_b32 v6, 16, v6
    v_lshlrev_b32 v7, 16, v7
    v_mul_f32 v13, v5, v10
    v_mul_f32 v13, 0.15915494, v13
    v_add_f32 v10, v10, v10
    v_mul_f32 v14, v6, v10                ; 2*Cre*dt
    v_mul_f32 v15, v7, v10                ; 2*Cim*dt
    v_lshlrev_b32 v9, 4, v1
    ds_write_b128 v9, v[12:15]
    v_max3_f32 v16, |v14|, |v15|, 0
    v_max_f32_dpp v16, v16, v16 row_shr:1 row_mask:0xf bank_mask:0xf
    v_max_f32_dpp v16, v16, v16 row_shr:2 row_mask:0xf bank_mask:0xf
    v_max_f32_dpp v16, v16, v16 row_shr:4 row_mask:0xf bank_mask:0xf
    v_max_f32_dpp v16, v16, v16 row_shr:8 row_mask:0xf bank_mask:0xf
    v_max_f32_dpp v16, v16, v16 row_bcast:15 row_mask:0xa bank_mask:0xf
    v_readlane_b32 s23, v16, 31
    s_mov_b32 s20, 0
    @STAMP 3
    v_mov_b32 v16, s23
    v_bfe_u32 v16, v16, 23, 8
    v_max_u32 v16, 14, v16
    v_sub_u32 v17, 0x8c, v16
    v_cvt_f32_i32 v29, v17                ; kf = 140 - e'
    v_mov_b32 v28, 0
    v_subrev_u32 v16, 13, v16
    v_lshlrev_b32 v27, 23, v16            ; Sinv
    P_KLOOP:
    ds_read_b128 v[52:55], v34
    ds_read_b128 v[56:59], v34 offset:16
    ds_read_b128 v[60:63], v34 offset:32
    ds_read_b128 v[64:67], v34 offset:48
    v_add_u32 v34, 0x100, v34
    """)
    for nn in range(4):
        p = 52 + 4 * nn
        k(f"""
        s_waitcnt lgkmcnt({3-nn})
        v_pk_mul_f32 v[2:3], v[30:31], v[{p}:{p+1}] op_sel_hi:[1,0]
        v_pk_fma_f32 v[4:5], v[32:33], v[{p}:{p+1}], v[28:29] op_sel_hi:[1,0,1]
        v_pk_mul_f32 v[6:7], v[30:31], v[{p}:{p+1}] op_sel:[0,1] op_sel_hi:[1,1]
        v_pk_mul_f32 v[8:9], v[32:33], v[{p}:{p+1}] op_sel:[0,1] op_sel_hi:[1,1]
        v_exp_f32 v2, v2
        v_exp_f32 v3, v3
        v_exp_f32 v4, v4
        v_exp_f32 v5, v5
        v_fract_f32 v6, v6
        v_fract_f32 v7, v7
        v_fract_f32 v8, v8
        v_fract_f32 v9, v9
        v_cos_f32 v10, v6
        v_sin_f32 v11, v6
        v_cos_f32 v12, v7
        v_sin_f32 v13, v7
        v_cos_f32 v14, v8
        v_sin_f32 v15, v8
        v_cos_f32 v16, v9
        v_sin_f32 v17, v9
        v_pk_mul_f32 v[10:11], v[10:11], v[2:3] op_sel_hi:[1,0]
        v_pk_mul_f32 v[12:13], v[12:13], v[2:3] op_sel:[0,1] op_sel_hi:[1,1]
        v_pk_mul_f32 v[14:15], v[14:15], v[4:5] op_sel_hi:[1,0]
        v_pk_mul_f32 v[16:17], v[16:17], v[4:5] op_sel:[0,1] op_sel_hi:[1,1]
        v_cvt_pk_f16_f32 v{68+nn}, v10, v11
        v_cvt_pk_f16_f32 v{72+nn}, v12, v13
        v_cvt_pk_f16_f32 v{76+nn}, v14, v15
        v_pk_mul_f32 v[18:19], v[16:17], v[{p+2}:{p+3}] op_sel_hi:[1,0]
        v_pk_fma_f32 v[18:19], v[16:17], v[{p+2}:{p+3}], v[18:19] op_sel:[1,1,0] op_sel_hi:[0,1,1] neg_lo:[1,0,0]
        v_cvt_pk_f16_f32 v{80+nn}, v18, -v19
        """)
    k(f"""
    s_cmp_eq_u32 s20, 1
    s_cbranch_scc1 P_KL2
    v_mfma_f32_16x16x32_f16 v[40:43], v[68:71], v[80:83], 0
    v_mfma_f32_16x16x32_f16 v[44:47], v[72:75], v[80:83], 0
    v_mfma_f32_16x16x32_f16 v[48:51], v[76:79], v[80:83], 0
    s_mov_b32 s20, 1
    s_branch P_KLOOP
    P_KL2:
    v_mfma_f32_16x16x32_f16 v[40:43], v[68:71], v[80:83], v[40:43]
    v_mfma_f32_16x16x32_f16 v[44:47], v[72:75], v[80:83], v[44:47]
    v_mfma_f32_16x16x32_f16 v[48:51], v[76:79], v[80:83], v[48:51]
    @STAMP 4
    s_mul_i32 s20, s19, 3072
    v_add_u32 v2, s20, v39
    s_lshl_b32 s20, s19, 10
    v_add_u32 v3, s20, v39
    """)
    k("v_mov_b32 v26, v27")
    for r in range(40, 52, 2): k(f"v_pk_mul_f32 v[{r}:{r+1}], v[{r}:{r+1}], v[26:27]")
    k(f"""
    ds_write_b128 v2, v[40:43] offset:4096
    ds_write_b128 v2, v[44:47] offset:5120
    ds_write_b128 v2, v[48:51] offset:6144
    s_mul_i32 s3, s26, {KP_STRIDE}
    s_add_u32 s3, s3, {KP}
    v_lshlrev_b32 v1, 4, v0
    v_add_u32 v8, s3, v1
    s_waitcnt lgkmcnt(0)
    s_barrier
    s_cmp_eq_u32 s19, 3
    s_cbranch_scc1 P_KS
    ds_read_b128 v[40:43], v3 offset:4096
    ds_read_b128 v[44:47], v3 offset:{4096+3072}
    ds_read_b128 v[48:51], v3 offset:{4096+6144}
    ds_read_b128 v[4:7], v3 offset:{4096+9216}
    s_waitcnt lgkmcnt(2)
    v_pk_add_f32 v[40:41], v[40:41], v[44:45]
    v_pk_add_f32 v[42:43], v[42:43], v[46:47]
    s_waitcnt lgkmcnt(0)
    v_pk_add_f32 v[48:49], v[48:49], v[4:5]
    v_pk_add_f32 v[50:51], v[50:51], v[6:7]
    v_pk_add_f32 v[40:41], v[40:41], v[48:49]
    v_pk_add_f32 v[42:43], v[42:43], v[50:51]
    v_cvt_pk_bf16_f32 v40, v40, v41
    v_cvt_pk_bf16_f32 v42, v42, v43
    ds_write_b16 v35, v40 offset:{TB}
    ds_write_b16_d16_hi v36, v40 offset:{TB}
    ds_write_b16 v37, v42 offset:{TB}
    ds_write_b16_d16_hi v38, v42 offset:{TB}
    P_KS:
    s_waitcnt lgkmcnt(0)
    s_barrier
    @STAMP 5
    v_cmp_gt_u32 vcc, 0x60, v0
    s_and_saveexec_b64 s[22:23], vcc
    s_cbranch_execz P_KEND
    ds_read_b128 v[40:43], v1 offset:{TB}
    s_waitcnt lgkmcnt(0)
    global_store_dwordx4 v8, v[40:43], s[4:5]
    P_KEND:
    @FLUSH 6
    s_endpgm
    """)
    k = kreal
    k.label("P_TR")
    PITCH = 144
    k(f"""
    s_load_dwordx2 s[8:9], s[0:1], {KA_U}
    s_load_dwordx4 s[16:19], s[0:1], {KA_WG}
    s_load_dwordx2 s[20:21], s[0:1], {KA_WD}
    s_sub_u32 s3, s2, {B_T}
    s_lshr_b32 s10, s3, 3                 ; lt (0..31)
    s_and_b32 s11, s3, 7                  ; dt (0..7)
    v_lshrrev_b32 v1, 3, v0               ; row 0..31
    v_and_b32 v2, 7, v0                   ; chunk
    s_lshl_b32 s12, s10, 16               ; lt*64*1024
    s_lshl_b32 s13, s11, 7
    s_add_u32 s12, s12, s13
    v_lshlrev_b32 v3, 10, v1
    v_lshl_add_u32 v3, v2, 4, v3
    v_add_u32 v3, s12, v3
    v_add_u32 v4, 0x8000, v3
    s_waitcnt lgkmcnt(0)
    global_load_dwordx4 v[8:11], v3, s[8:9]
    global_load_dwordx4 v[12:15], v4, s[8:9]
    v_lshrrev_b32 v41, 6, v0
    v_and_b32 v42, 63, v0
    s_lshl_b32 s14, s3, 13                ; 8 rows * 1024
    v_lshlrev_b32 v43, 11, v41
    v_lshl_add_u32 v43, v42, 4, v43
    v_add_u32 v43, s14, v43
    global_load_dwordx4 v[48:51], v43, s[8:9]
    global_load_dwordx4 v[52:55], v43, s[8:9] offset:1024
    s_setprio {LATE_PRIO}
    @WTOUCH
    v_mul_u32_u24 v5, {PITCH}, v1
    v_lshl_add_u32 v5, v2, 4, v5
    v_and_b32 v6, 15, v0                  ; lam
    v_bfe_u32 v7, v0, 4, 2                ; g
    v_lshrrev_b32 v16, 6, v0              ; w
    v_lshrrev_b32 v17, 2, v6              ; r = lam>>2
    v_lshl_add_u32 v17, v7, 3, v17        ; row = 8g + r
    v_mul_u32_u24 v17, {PITCH}, v17
    v_and_b32 v18, 3, v6
    v_lshl_add_u32 v17, v18, 3, v17       ; + c*8
    v_lshl_add_u32 v17, v16, 5, v17       ; + w*32 bytes
    """)
    if FUSE1:
        k(f"""
        s_setprio 3
        s_lshl_b32 s12, s10, 16
        s_lshl_b32 s13, s11, 12
        s_add_u32 s12, s12, s13
        s_add_u32 s12, s12, {XT0}
        v_lshl_add_u32 v19, v16, 4, v6
        v_lshlrev_b32 v19, 6, v19
        v_lshl_add_u32 v19, v7, 4, v19
        v_add_u32 v19, s12, v19
        v_add_u32 v44, 0x8000, v19
        """)
    else:
        k(f"""
    s_mul_i32 s12, s11, {64*XP}
    s_lshl_b32 s13, s10, 7
    s_add_u32 s12, s12, s13
    s_add_u32 s12, s12, {XT0}
    v_lshl_add_u32 v19, v16, 4, v6
    v_mul_u32_u24 v19, {XP}, v19
    v_lshl_add_u32 v19, v7, 4, v19
    v_add_u32 v19, s12, v19
        v_add_u32 v44, 64, v19
        """)
    k(f"""
    s_waitcnt vmcnt({5 if WTOUCH else 2})
    @STAMP 2
    ds_write_b128 v5, v[8:11]
    ds_write_b128 v5, v[12:15] offset:{32*PITCH}
    s_waitcnt lgkmcnt(0)
    s_barrier
    ds_read_b64_tr_b16 v[8:9], v17
    ds_read_b64_tr_b16 v[10:11], v17 offset:{4*PITCH}
    ds_read_b64_tr_b16 v[12:13], v17 offset:{32*PITCH}
    ds_read_b64_tr_b16 v[14:15], v17 offset:{36*PITCH}
    s_waitcnt lgkmcnt(0)
    global_store_dwordx4 v19, v[8:11], s[4:5] {'sc1' if FUSE1 else PREP_X_POL}
    global_store_dwordx4 v44, v[12:15], s[4:5] {'sc1' if FUSE1 else PREP_X_POL}
    """)
    k(f"""
    v_mov_b32 v2, v42
    s_lshl_b32 s10, s3, 4
    v_lshlrev_b32 v4, 12, v41
    v_add_u32 v4, s10, v4                 ; w*4096 + wg*16
    v_add_u32 v5, {ST0}, v4
    v_add_u32 v6, {ST1}, v4
    s_waitcnt vmcnt({5 if WTOUCH else 2})
    """)
    for row, (base, sm, sq) in enumerate([(48, 20, 21), (52, 22, 23)]):
        for j in range(4):
            k(f"v_lshlrev_b32 v16, 16, v{base+j}")
            k(f"v_and_b32 v17, 0xffff0000, v{base+j}")
            if j == 0:
                k(f"v_add_f32 v{sm}, v16, v17")
                k(f"v_mul_f32 v{sq}, v16, v16")
            else:
                k(f"v_add_f32 v{sm}, v{sm}, v16")
                k(f"v_add_f32 v{sm}, v{sm}, v17")
                k(f"v_fmac_f32 v{sq}, v16, v16")
            k(f"v_fmac_f32 v{sq}, v17, v17")
    for sh in ("row_shr:1", "row_shr:2", "row_shr:4", "row_shr:8"):
        for r in range(20, 24):
            k(f"v_add_f32_dpp v{r}, v{r}, v{r} {sh} row_mask:0xf bank_mask:0xf bound_ctrl:0")
    for r in range(20, 24):
        k(f"v_add_f32_dpp v{r}, v{r}, v{r} row_bcast:15 row_mask:0xa bank_mask:0xf")
    for r in range(20, 24):
        k(f"v_add_f32_dpp v{r}, v{r}, v{r} row_bcast:31 row_mask:0xc bank_mask:0xf")
    if FUSE1:
        k(f"s_mov_b32 s43, {fl(1.0/512)}\ns_mov_b32 s44, {fl(1e-5)}")
        stats_pair(k, 20, 21, 22, 23, 40)
    k(f"""
    v_mov_b32 v24, 0
    v_mov_b32 v25, 0
    v_mov_b32 v26, 0
    v_mov_b32 v27, 0
    s_lshl_b32 s10, s3, 9
    s_add_u32 s10, s10, {ZR}
    v_and_b32 v7, 31, v0
    v_lshl_add_u32 v7, v7, 4, s10
    global_store_dwordx4 v7, v[24:27], s[4:5]
    v_cmp_eq_u32 vcc, 63, v2
    s_and_saveexec_b64 s[22:23], vcc
    global_store_dwordx4 v5, v[20:23], s[4:5] {'sc1' if FUSE1 else ''}
    global_store_dwordx4 v6, v[24:27], s[4:5]
    """)
    if FUSE1:
        k(f"""
        s_mov_b64 exec, -1
        s_and_b32 s10, s2, 3
        s_lshl_b32 s10, s10, 6
        v_mov_b32 v8, s10
        v_mov_b32 v9, 1
        v_cmp_eq_u32 vcc, 0, v0
        @STAMP 3
        s_waitcnt vmcnt(0)
        s_barrier
        @STAMP 4
        v_readfirstlane_b32 s10, v0
        s_cmp_lg_u32 s10, 0
        s_cbranch_scc1 P_TEND
        s_mov_b64 exec, 1
        global_atomic_add v10, v8, v9, s[28:29] sc0 sc1
        s_waitcnt vmcnt(0)
        v_readfirstlane_b32 s10, v10
        s_cmp_lg_u32 s10, {N_T // 4 - 1}
        s_cbranch_scc1 P_TEND
        v_mov_b32 v8, 8
        global_atomic_add v8, v9, s[28:29] sc1
        s_mov_b64 exec, -1
        v_lshlrev_b32 v8, 7, v0
        v_add_u32 v8, {GFB}, v8
        s_mov_b64 exec, {(1 << GFN) - 1 if GFN < 64 else -1}
        global_atomic_add v8, v9, s[4:5] sc1
        P_TEND:
        s_mov_b64 exec, -1
        s_setprio 0
        @STAMP 5
        s_cmp_lt_u32 s2, {N_C}
        s_cbranch_scc1 P_C
        """)
    k(f"""
    @FLUSH {6 if FUSE1 else 2}
    s_endpgm
    """)
    k = knull if FUSE1 else kreal
    k.label("P_W")
    WPITCH = 400
    k(f"""
    s_load_dwordx4 s[8:11], s[0:1], {KA_WG}
    s_sub_u32 s3, s2, {B_W}
    s_lshr_b32 s12, s3, 4                 ; ft
    s_and_b32 s13, s3, 15                 ; s
    """)
    k(f"""
    s_mul_i32 s14, s13, {32*F*2}
    s_mul_i32 s15, s12, 192
    s_add_u32 s14, s14, s15
    s_mul_i32 s16, s12, 12
    s_mov_b32 s17, 0x15555556
    """)
    k(f"v_mov_b32 v5, {F//8}")
    for i in range(2):
        k(f"""
        v_add_u32 v1, {256*i}, v0
        v_mul_hi_u32 v2, v1, s17
        v_mul_u32_u24 v3, 12, v2
        v_sub_u32 v3, v1, v3                  ; chunk
        v_mul_u32_u24 v4, {F*2}, v2
        v_lshl_add_u32 v4, v3, 4, v4
        v_add_u32 v{40+i}, s14, v4
        v_mul_u32_u24 v4, {WPITCH}, v2
        v_lshl_add_u32 v{42+i}, v3, 5, v4
        v_add_u32 v3, s16, v3
        v_cmp_gt_u32 s[{24+2*i}:{25+2*i}], v5, v3
        """)
    for r in range(8, 24): k(f"v_mov_b32 v{r}, 0")
    k(f"""
    v_cmp_gt_u32 vcc, 0x80, v0
    s_and_b64 s[26:27], s[26:27], vcc
    s_waitcnt lgkmcnt(0)
    s_mov_b64 s[28:29], exec
    s_mov_b64 exec, s[24:25]
    s_cbranch_execz P_W1
    global_load_dwordx4 v[8:11], v40, s[8:9]
    global_load_dwordx4 v[12:15], v40, s[10:11]
    P_W1:
    s_mov_b64 exec, s[26:27]
    s_cbranch_execz P_W2
    global_load_dwordx4 v[16:19], v41, s[8:9]
    global_load_dwordx4 v[20:23], v41, s[10:11]
    P_W2:
    s_setprio {LATE_PRIO}
    s_mov_b64 exec, s[28:29]
    s_waitcnt vmcnt(0)
    ds_write2_b32 v42, v8, v9 offset0:0 offset1:2
    ds_write2_b32 v42, v10, v11 offset0:4 offset1:6
    ds_write2_b32 v42, v12, v13 offset0:1 offset1:3
    ds_write2_b32 v42, v14, v15 offset0:5 offset1:7
    s_and_saveexec_b64 s[28:29], vcc
    s_cbranch_execz P_W3
    ds_write2_b32 v43, v16, v17 offset0:0 offset1:2
    ds_write2_b32 v43, v18, v19 offset0:4 offset1:6
    ds_write2_b32 v43, v20, v21 offset0:1 offset1:3
    ds_write2_b32 v43, v22, v23 offset0:5 offset1:7
    P_W3:
    s_mov_b64 exec, s[28:29]
    v_and_b32 v1, 15, v0
    v_bfe_u32 v2, v0, 4, 2
    v_lshrrev_b32 v3, 2, v1
    v_lshl_add_u32 v3, v2, 2, v3
    v_mul_u32_u24 v3, {WPITCH}, v3
    v_and_b32 v4, 3, v1
    v_lshl_add_u32 v3, v4, 3, v3
    v_readfirstlane_b32 s18, v0
    s_lshr_b32 s18, s18, 6                ; w
    s_lshl_b32 s19, s18, 7
    s_mov_b32 s20, 32
    s_cmp_eq_u32 s18, 3
    s_cselect_b32 s19, 96, s19
    s_cselect_b32 s20, 128, s20
    v_add_u32 v3, s19, v3
    v_add_u32 v4, s20, v3
    v_add_u32 v5, s20, v4
    s_lshl_b32 s21, s12, 2
    s_add_u32 s21, s21, s18
    s_lshl_b32 s21, s21, 4
    s_add_u32 s21, s21, s13
    s_mul_i32 s21, s21, 3072
    s_add_u32 s21, s21, {WP}
    v_and_b32 v6, 63, v0
    v_lshlrev_b32 v6, 4, v6
    v_add_u32 v6, s21, v6
    v_add_u32 v7, 0x400, v6
    v_add_u32 v24, 0x800, v6
    s_waitcnt lgkmcnt(0)
    s_barrier
    ds_read_b64_tr_b16 v[8:9], v3
    ds_read_b64_tr_b16 v[10:11], v3 offset:{16*WPITCH}
    ds_read_b64_tr_b16 v[12:13], v4
    ds_read_b64_tr_b16 v[14:15], v4 offset:{16*WPITCH}
    ds_read_b64_tr_b16 v[16:17], v5
    ds_read_b64_tr_b16 v[18:19], v5 offset:{16*WPITCH}
    s_waitcnt lgkmcnt(0)
    global_store_dwordx4 v6, v[8:11], s[4:5] {PREP_W_POL}
    global_store_dwordx4 v7, v[12:15], s[4:5] {PREP_W_POL}
    global_store_dwordx4 v24, v[16:19], s[4:5] {PREP_W_POL}
    @FLUSH 2
    s_endpgm
    """)
    k.label("P_D")
    DPITCH = 272
    k(f"""
    s_load_dwordx2 s[8:9], s[0:1], {KA_WD}
    s_sub_u32 s3, s2, {B_D}
    s_lshr_b32 s12, s3, 2                 ; ks 0..43
    s_and_b32 s13, s3, 3                  ; dq
    v_lshrrev_b32 v1, 4, v0               ; row 0..15 (+16)
    v_and_b32 v2, 15, v0                  ; chunk
    s_lshl_b32 s14, s12, 15               ; ks*32*1024
    s_lshl_b32 s15, s13, 8
    s_add_u32 s14, s14, s15
    v_lshlrev_b32 v3, 10, v1
    v_lshl_add_u32 v3, v2, 4, v3
    v_add_u32 v3, s14, v3
    v_add_u32 v4, 0x4000, v3
    """)
    for r in range(8, 16): k(f"v_mov_b32 v{r}, 0")
    k(f"""
    s_waitcnt lgkmcnt(0)
    s_cmp_ge_u32 s12, 43
    s_cbranch_scc1 P_D1
    global_load_dwordx4 v[8:11], v3, s[8:9]
    global_load_dwordx4 v[12:15], v4, s[8:9]
    P_D1:
    s_setprio {LATE_PRIO}
    v_bfe_u32 v5, v1, 1, 2                ; g
    v_lshrrev_b32 v6, 3, v1               ; dw (0/1)
    v_and_b32 v7, 1, v1
    v_lshl_add_u32 v7, v6, 1, v7
    v_lshl_add_u32 v7, v5, 3, v7          ; rho
    v_mul_u32_u24 v7, {DPITCH}, v7
    v_lshl_add_u32 v7, v2, 4, v7
    v_and_b32 v1, 15, v0
    v_bfe_u32 v2, v0, 4, 2
    v_lshrrev_b32 v16, 6, v0
    v_lshrrev_b32 v3, 2, v1
    v_lshl_add_u32 v3, v2, 3, v3          ; row = 8g + r
    v_mul_u32_u24 v3, {DPITCH}, v3
    v_and_b32 v4, 3, v1
    v_lshl_add_u32 v3, v4, 3, v3          ; + c*8 bytes (4 d)
    v_lshl_add_u32 v3, v16, 6, v3         ; + w*64
    s_lshl_b32 s16, s13, 3
    v_lshl_add_u32 v17, v16, 1, s16
    v_mul_u32_u24 v17, {NKS2*1024}, v17
    v_and_b32 v18, 63, v0
    v_lshl_add_u32 v17, v18, 4, v17
    s_lshl_b32 s16, s12, 10
    s_add_u32 s16, s16, {WD}
    v_add_u32 v17, s16, v17
    v_add_u32 v18, {NKS2*1024}, v17
    s_waitcnt vmcnt(0)
    ds_write_b128 v7, v[8:11]
    ds_write_b128 v7, v[12:15] offset:{4*DPITCH}
    s_waitcnt lgkmcnt(0)
    s_barrier
    ds_read_b64_tr_b16 v[8:9], v3
    ds_read_b64_tr_b16 v[10:11], v3 offset:{4*DPITCH}
    ds_read_b64_tr_b16 v[12:13], v3 offset:32
    ds_read_b64_tr_b16 v[14:15], v3 offset:{4*DPITCH+32}
    s_waitcnt lgkmcnt(0)
    global_store_dwordx4 v17, v[8:11], s[4:5] {PREP_W_POL}
    global_store_dwordx4 v18, v[12:15], s[4:5] {PREP_W_POL}
    @FLUSH 2
    s_endpgm
    """)
    k = kreal
    k.label("P_C")
    k(f"""
    s_load_dwordx4 s[8:11], s[0:1], {KA_WG}
    s_sub_u32 s3, s2, {B_C}
    s_and_b32 s12, s3, 1                  ; mat
    s_lshr_b32 s13, s3, 1                 ; cb 0..44
    v_lshrrev_b32 v1, 2, v0
    v_and_b32 v2, 3, v0                   ; chunk
    s_lshl_b32 s14, s13, 6
    v_mul_u32_u24 v4, {F*2}, v1
    v_lshl_add_u32 v4, v2, 4, v4
    v_add_u32 v4, s14, v4
    """)
    for r in range(8, 16): k(f"v_mov_b32 v{r}, 0")
    k(f"""
    s_waitcnt lgkmcnt(0)
    s_cmp_eq_u32 s12, 1
    s_cselect_b32 s8, s10, s8
    s_cselect_b32 s9, s11, s9
    s_cmp_ge_u32 s13, 43
    s_cbranch_scc1 P_C2
    """)
    for i in range(8):
        k(f"global_load_dwordx4 v[{16+4*i}:{19+4*i}], v4, s[8:9]")
        if i < 7: k(f"v_add_u32 v4, {64*F*2}, v4")
    k(f"s_setprio {LATE_PRIO}")
    for i in range(8):
        k(f"s_waitcnt vmcnt({7-i})")
        for j in range(4):
            k(f"v_lshlrev_b32 v6, 16, v{16+4*i+j}")
            k(f"v_and_b32 v7, 0xffff0000, v{16+4*i+j}")
            k(f"v_pk_add_f32 v[{8+2*j}:{9+2*j}], v[{8+2*j}:{9+2*j}], v[6:7]")
    for sh in ("row_shr:4", "row_shr:8"):
        for r in range(8, 16):
            k(f"v_add_f32_dpp v{r}, v{r}, v{r} {sh} row_mask:0xf bank_mask:0xf bound_ctrl:0")
    k(f"""
    P_C2:
    v_lshrrev_b32 v6, 4, v0
    v_lshlrev_b32 v6, 7, v6
    v_lshl_add_u32 v6, v2, 5, v6
    v_and_b32 v7, 12, v0
    v_cmp_eq_u32 vcc, 12, v7
    s_and_saveexec_b64 s[46:47], vcc
    ds_write_b128 v6, v[8:11]
    ds_write_b128 v6, v[12:15] offset:16
    s_mov_b64 exec, s[46:47]
    s_waitcnt lgkmcnt(0)
    s_barrier
    v_cmp_gt_u32 vcc, 32, v0
    s_and_saveexec_b64 s[46:47], vcc
    s_cbranch_execz P_C3
    v_lshlrev_b32 v6, 2, v0
    """)
    for i in range(16):
        k(f"ds_read_b32 v{16+i}, v6 offset:{128*i}")
    k(f"""
    s_mul_i32 s14, s13, 0x5556
    s_lshr_b32 s14, s14, 16               ; ft
    s_mul_i32 s15, s14, 3
    s_sub_u32 s15, s13, s15               ; j
    s_mul_i32 s16, s15, 3
    s_add_u32 s17, s15, 9
    v_lshrrev_b32 v5, 3, v0               ; dw
    v_add_u32 v7, s16, v5
    v_mov_b32 v8, s17
    v_cmp_eq_u32 vcc, 3, v5
    v_cndmask_b32 v7, v7, v8, vcc         ; w*3+tau
    s_mul_i32 s14, s14, 12
    v_add_u32 v7, s14, v7
    v_lshlrev_b32 v7, 4, v7
    v_bfe_u32 v8, v0, 1, 2
    v_lshl_add_u32 v7, v8, 2, v7
    v_and_b32 v8, 1, v0
    v_add_u32 v7, v7, v8
    s_lshl_b32 s14, s12, 1
    v_add_u32 v7, s14, v7
    v_lshlrev_b32 v7, 2, v7
    v_add_u32 v7, {CSUM}, v7
    s_waitcnt lgkmcnt(0)
    """)
    for st in (8, 4, 2, 1):
        for i in range(st):
            k(f"v_add_f32 v{16+i}, v{16+i}, v{16+i+st}")
    k(f"""
    global_store_dword v7, v16, s[4:5]
    P_C3:
    @FLUSH {6 if FUSE1 else 2}
    s_endpgm
    """)
    return k, dict(vgpr=96, sgpr=48, accum=96, grid=PREP_WGS, block=256, lds=PREP_LDS)


def stats_pair(k, sa, qa, sb, qb, t, keep=None):
    for s_, q_ in ((sa, qa), (sb, qb)):
        k(f"""
        v_mul_f32 v{s_}, s43, v{s_}
        v_mul_f32 v{q_}, s43, v{q_}
        v_fma_f32 v{q_}, -v{s_}, v{s_}, v{q_}
        v_max_f32 v{q_}, 0, v{q_}
        v_cvt_pk_bf16_f32 v{q_}, v{s_}, v{q_}
        v_lshlrev_b32 v{s_}, 16, v{q_}
        v_and_b32 v{q_}, 0xffff0000, v{q_}
        v_add_f32 v{q_}, s44, v{q_}
        """)
    k(f"""
    v_cvt_pk_bf16_f32 v{t}, v{qa}, v{qb}
    v_lshlrev_b32 v{qa}, 16, v{t}
    v_and_b32 v{qb}, 0xffff0000, v{t}
    v_sqrt_f32 v{qa}, v{qa}
    v_sqrt_f32 v{qb}, v{qb}
    v_cvt_pk_bf16_f32 v{t}, v{qa}, v{qb}
    v_lshlrev_b32 v{keep[0] if keep else qa}, 16, v{t}
    v_and_b32 v{keep[1] if keep else qb}, 0xffff0000, v{t}
    v_rcp_f32 v{qa}, v{keep[0] if keep else qa}
    v_rcp_f32 v{qb}, v{keep[1] if keep else qb}
    """)


def conv_stats_norm(k, wait_x):
    for i in range(4):
        b = 16 + 4 * i
        k(f"""
        v_pk_mul_f32 v[{b}:{b+1}], v[{b}:{b+1}], s[46:47]
        v_pk_mul_f32 v[{b+2}:{b+3}], v[{b+2}:{b+3}], s[46:47]
        v_fma_f32 v{b+1}, -v{b}, v{b}, v{b+1}
        v_fma_f32 v{b+3}, -v{b+2}, v{b+2}, v{b+3}
        v_cvt_pk_bf16_f32 v{b}, v{b}, v{b+2}          ; (m_a, m_b)
        v_cvt_pk_bf16_f32 v{b+2}, v{b+1}, v{b+3}
        v_and_b32 v{b+1}, 0xffff0000, v{b}
        v_lshlrev_b32 v{b}, 16, v{b}                  ; v[b:b+1] = (m_a, m_b) f32
        v_and_b32 v{b+3}, 0xffff0000, v{b+2}
        v_lshlrev_b32 v{b+2}, 16, v{b+2}
        v_max_f32 v{b+2}, 0, v{b+2}
        v_max_f32 v{b+3}, 0, v{b+3}
        v_pk_add_f32 v[{b+2}:{b+3}], v[{b+2}:{b+3}], s[44:45]
        v_cvt_pk_bf16_f32 v{b+2}, v{b+2}, v{b+3}
        v_and_b32 v{b+3}, 0xffff0000, v{b+2}
        v_lshlrev_b32 v{b+2}, 16, v{b+2}
        v_sqrt_f32 v{b+2}, v{b+2}
        v_sqrt_f32 v{b+3}, v{b+3}
        """)
    for i in range(4):
        b = 16 + 4 * i
        k(f"""
        v_cvt_pk_bf16_f32 v{b+2}, v{b+2}, v{b+3}
        v_and_b32 v{b+3}, 0xffff0000, v{b+2}
        v_lshlrev_b32 v{b+2}, 16, v{b+2}
        v_rcp_f32 v{b+2}, v{b+2}
        v_rcp_f32 v{b+3}, v{b+3}
        """)
    k(wait_x)
    for j in range(4):
        b = 16 + 4 * j
        k(f"""
        v_lshlrev_b32 v40, 16, v{12+j}
        v_and_b32 v41, 0xffff0000, v{12+j}
        v_pk_add_f32 v[40:41], v[40:41], v[{b}:{b+1}] neg_lo:[0,1] neg_hi:[0,1]
        v_cvt_pk_bf16_f32 v41, v40, v41
        v_lshlrev_b32 v40, 16, v41
        v_and_b32 v41, 0xffff0000, v41
        v_pk_mul_f32 v[40:41], v[40:41], v[{b+2}:{b+3}]
        v_cvt_pk_bf16_f32 v{32+j}, v40, v41
        """)
    k(f"""
    ds_write_b128 v1, v[32:35] offset:{CSU + 16*28}
    ds_write2_b64 v1, v[32:33], v[34:35] offset0:57 offset1:58
    """)

def gen_f1():
    k = Kern("f1")
    WPITCH = 400; DPITCH = 272
    US = CRED + 8192 if UEARLY else 0
    KS = CRED; TB = KS + 2304
    k(f"""
    f1_kernel:
    @KID 0
    @INIT
    s_load_dwordx2 s[4:5], s[0:1], {KA_WS}
    s_load_dwordx2 s[28:29], s[0:1], {KA_DBG}
    @CODEPF
    s_cmp_lt_u32 s2, {N_T}
    s_cbranch_scc1 P_TR
    s_cmp_ge_u32 s2, {N_T + N_K}
    s_cbranch_scc1 CONV_END
    """)
    kk = Remap(k, 64, {19: 33, 20: 34, 23: 35, 24: 36, 3: 37, 22: 38, 18: 45})
    kk(f"""
    @KID 1
    s_load_dwordx4 s[8:11], s[0:1], {KA_LOGA}
    s_load_dwordx4 s[12:15], s[0:1], {KA_CRE}
    s_load_dwordx2 s[16:17], s[0:1], {KA_LOGDT}
    s_load_dwordx2 s[6:7], s[0:1], {KA_DSKIP}
    s_load_dwordx4 s[48:51], s[0:1], {KA_WG}
    s_load_dwordx2 s[52:53], s[0:1], {KA_WD}
    s_sub_u32 s2, s2, {N_T}
    s_mov_b32 s40, {fl(L2E_HI)}
    s_mov_b32 s41, {fl(L2E_LO)}
    s_mov_b32 s42, {fl(LN2)}
    v_lshrrev_b32 v1, 1, v0
    v_and_b32 v1, 0x60, v1
    v_and_or_b32 v1, v0, 31, v1           ; n = 32 w + (lane & 31)
    s_lshl_b32 s3, s2, 8
    v_lshl_add_u32 v2, v1, 1, s3
    s_lshl_b32 s18, s2, 1
    v_mov_b32 v3, s18
    v_readfirstlane_b32 s19, v0
    s_lshr_b32 s19, s19, 6                ; wave
    v_and_b32 v20, 15, v0                 ; i / j
    v_bfe_u32 v21, v0, 4, 2               ; g
    ; hi0 = 128*(i>>3) + (i&7)
    v_lshrrev_b32 v23, 3, v20
    v_and_b32 v24, 7, v20
    v_lshl_add_u32 v23, v23, 7, v24
    v_cvt_f32_u32 v30, v23
    ; hi1 = (g''<2 ? 256+2g'' : 256*g'') + 128*((i>>1)&1) + 4*(i&1)
    v_lshrrev_b32 v23, 2, v20
    v_lshlrev_b32 v24, 1, v23
    v_add_u32 v24, 0x100, v24
    v_lshlrev_b32 v25, 8, v23
    v_cmp_gt_u32 vcc, 2, v23
    v_cndmask_b32 v24, v25, v24, vcc
    v_bfe_u32 v25, v20, 1, 1
    v_lshl_add_u32 v24, v25, 7, v24
    v_and_b32 v25, 1, v20
    v_lshl_add_u32 v24, v25, 2, v24
    v_cvt_f32_u32 v31, v24
    v_lshlrev_b32 v23, 7, v20
    v_add_u32 v23, 0x400, v23
    v_cvt_f32_u32 v32, v23                ; hi2
    v_lshlrev_b32 v23, 3, v20
    v_cvt_f32_u32 v33, v23                ; lo
    s_lshl_b32 s20, s19, 9
    v_lshl_add_u32 v34, v21, 6, s20
    v_lshrrev_b32 v23, 1, v21
    v_and_b32 v24, 1, v21
    v_lshlrev_b32 v24, 2, v24
    v_lshl_add_u32 v35, v23, 7, v24
    v_lshl_add_u32 v35, v20, 3, v35
    v_mov_b32 v36, 1
    v_mov_b32 v37, 2
    s_cmp_eq_u32 s19, 0
    s_cbranch_scc1 F_KA
    v_lshl_add_u32 v35, v21, 6, v20
    v_add_u32 v35, 0x200, v35
    v_mov_b32 v36, 16
    v_mov_b32 v37, 32
    s_cmp_lg_u32 s19, 1
    s_cbranch_scc1 F_KA
    v_lshl_add_u32 v23, v20, 2, v21
    v_add_u32 v23, 0x100, v23             ; seg1: 256 + g' + 4j ; o1=2 o2=64
    v_lshlrev_b32 v24, 6, v21
    v_lshl_add_u32 v24, v20, 1, v24
    v_add_u32 v24, 0x100, v24             ; seg2: 384 + 64(g'-2) + 2j ; o1=1 o2=32
    v_cmp_gt_u32 vcc, 2, v21
    v_cndmask_b32 v35, v24, v23, vcc
    v_cndmask_b32 v36, 1, 2, vcc
    v_cndmask_b32 v37, 32, 64, vcc
    F_KA:
    v_add_u32 v38, v36, v37
    v_add_lshl_u32 v36, v36, v35, 1
    v_add_lshl_u32 v37, v37, v35, 1
    v_add_lshl_u32 v38, v38, v35, 1
    v_lshlrev_b32 v35, 1, v35
    v_and_b32 v39, 63, v0
    v_lshlrev_b32 v39, 4, v39             ; lane*16
    s_waitcnt lgkmcnt(0)
    global_load_ushort v84, v2, s[8:9]
    @GFLOAD
    global_load_ushort v85, v3, s[16:17]
    global_load_ushort v86, v2, s[10:11]
    global_load_ushort v87, v2, s[12:13]
    global_load_ushort v88, v2, s[14:15]
    v_mov_b32 v89, v1
    """)
    k(f"""
    s_mov_b32 s30, 0
    s_mov_b32 s31, {ST0}
    s_mov_b32 s32, {X1T}
    s_mov_b32 s18, {TB}
    """)
    conv_setup(k)
    k("s_load_dword s20, s[6:7], s16")
    srd(k, 8, 4, WS_BYTES)
    conv_p3(k, kzero=False)
    k(f"""
    v_and_b32 v61, 3, v0
    v_mov_b32 v62, 0
    v_lshrrev_b32 v60, 2, v0
    v_lshlrev_b32 v60, 15, v60
    v_lshl_add_u32 v60, v61, 4, v60       ; x voffset
    s_lshl_b32 s13, s2, 6
    s_add_u32 s13, s13, {XT0}
    """)
    k("s_waitcnt vmcnt(0)")
    kk(f"""
    v_mov_b32 v4, v84
    v_mov_b32 v8, v85
    v_mov_b32 v5, v86
    v_mov_b32 v6, v87
    v_mov_b32 v7, v88
    v_mov_b32 v1, v89
    @STAMP 10
    v_lshlrev_b32 v4, 16, v4
    v_lshlrev_b32 v8, 16, v8
    """)
    exp_acc(kk, 10, 8, 16, 17)
    exp_acc(kk, 11, 4, 18, 19)
    kk(f"""
    v_cvt_pk_bf16_f32 v10, v10, v11
    v_and_b32 v11, 0xffff0000, v10        ; eA
    v_lshlrev_b32 v10, 16, v10            ; dt
    v_mul_f32 v12, v11, v10
    v_mul_f32 v12, s40, v12
    v_sub_f32 v12, 0, v12
    v_lshlrev_b32 v5, 16, v5
    v_lshlrev_b32 v6, 16, v6
    v_lshlrev_b32 v7, 16, v7
    v_mul_f32 v13, v5, v10
    v_mul_f32 v13, 0.15915494, v13
    v_add_f32 v10, v10, v10
    v_mul_f32 v14, v6, v10                ; 2*Cre*dt
    v_mul_f32 v15, v7, v10                ; 2*Cim*dt
    v_lshlrev_b32 v9, 4, v1
    ds_write_b128 v9, v[12:15] offset:{KS}
    v_max3_f32 v16, |v14|, |v15|, 0
    v_max_f32_dpp v16, v16, v16 row_shr:1 row_mask:0xf bank_mask:0xf
    v_max_f32_dpp v16, v16, v16 row_shr:2 row_mask:0xf bank_mask:0xf
    v_max_f32_dpp v16, v16, v16 row_shr:4 row_mask:0xf bank_mask:0xf
    v_max_f32_dpp v16, v16, v16 row_shr:8 row_mask:0xf bank_mask:0xf
    v_max_f32_dpp v16, v16, v16 row_bcast:15 row_mask:0xa bank_mask:0xf
    v_readlane_b32 s23, v16, 31
    s_mov_b32 s20, 0
    @STAMP 11
    v_mov_b32 v16, s23
    v_bfe_u32 v16, v16, 23, 8
    v_max_u32 v16, 14, v16
    v_sub_u32 v17, 0x8c, v16
    v_cvt_f32_i32 v29, v17                ; kf = 140 - e'
    v_mov_b32 v28, 0
    v_subrev_u32 v16, 13, v16
    v_lshlrev_b32 v27, 23, v16            ; Sinv
    F_KLOOP:
    ds_read_b128 v[52:55], v34 offset:{KS}
    ds_read_b128 v[56:59], v34 offset:{KS+16}
    ds_read_b128 v[60:63], v34 offset:{KS+32}
    ds_read_b128 v[64:67], v34 offset:{KS+48}
    v_add_u32 v34, 0x100, v34
    """)
    for nn in range(4):
        p = 52 + 4 * nn
        kk(f"""
        s_waitcnt lgkmcnt({3-nn})
        v_pk_mul_f32 v[2:3], v[30:31], v[{p}:{p+1}] op_sel_hi:[1,0]
        v_pk_fma_f32 v[4:5], v[32:33], v[{p}:{p+1}], v[28:29] op_sel_hi:[1,0,1]
        v_pk_mul_f32 v[6:7], v[30:31], v[{p}:{p+1}] op_sel:[0,1] op_sel_hi:[1,1]
        v_pk_mul_f32 v[8:9], v[32:33], v[{p}:{p+1}] op_sel:[0,1] op_sel_hi:[1,1]
        v_exp_f32 v2, v2
        v_exp_f32 v3, v3
        v_exp_f32 v4, v4
        v_exp_f32 v5, v5
        v_fract_f32 v6, v6
        v_fract_f32 v7, v7
        v_fract_f32 v8, v8
        v_fract_f32 v9, v9
        v_cos_f32 v10, v6
        v_sin_f32 v11, v6
        v_cos_f32 v12, v7
        v_sin_f32 v13, v7
        v_cos_f32 v14, v8
        v_sin_f32 v15, v8
        v_cos_f32 v16, v9
        v_sin_f32 v17, v9
        v_pk_mul_f32 v[10:11], v[10:11], v[2:3] op_sel_hi:[1,0]
        v_pk_mul_f32 v[12:13], v[12:13], v[2:3] op_sel:[0,1] op_sel_hi:[1,1]
        v_pk_mul_f32 v[14:15], v[14:15], v[4:5] op_sel_hi:[1,0]
        v_pk_mul_f32 v[16:17], v[16:17], v[4:5] op_sel:[0,1] op_sel_hi:[1,1]
        v_cvt_pk_f16_f32 v{68+nn}, v10, v11
        v_cvt_pk_f16_f32 v{72+nn}, v12, v13
        v_cvt_pk_f16_f32 v{76+nn}, v14, v15
        v_pk_mul_f32 v[18:19], v[16:17], v[{p+2}:{p+3}] op_sel_hi:[1,0]
        v_pk_fma_f32 v[18:19], v[16:17], v[{p+2}:{p+3}], v[18:19] op_sel:[1,1,0] op_sel_hi:[0,1,1] neg_lo:[1,0,0]
        v_cvt_pk_f16_f32 v{80+nn}, v18, -v19
        """)
    kk(f"""
    s_cmp_eq_u32 s20, 1
    s_cbranch_scc1 F_KL2
    v_mfma_f32_16x16x32_f16 v[40:43], v[68:71], v[80:83], 0
    v_mfma_f32_16x16x32_f16 v[44:47], v[72:75], v[80:83], 0
    v_mfma_f32_16x16x32_f16 v[48:51], v[76:79], v[80:83], 0
    s_mov_b32 s20, 1
    s_branch F_KLOOP
    F_KL2:
    v_mfma_f32_16x16x32_f16 v[40:43], v[68:71], v[80:83], v[40:43]
    v_mfma_f32_16x16x32_f16 v[44:47], v[72:75], v[80:83], v[44:47]
    v_mfma_f32_16x16x32_f16 v[48:51], v[76:79], v[80:83], v[48:51]
    @STAMP 12
    s_mul_i32 s20, s19, 3072
    v_add_u32 v2, s20, v39
    s_lshl_b32 s20, s19, 10
    v_add_u32 v3, s20, v39
    v_mov_b32 v26, v27
    """)
    for r in range(40, 52, 2): kk(f"v_pk_mul_f32 v[{r}:{r+1}], v[{r}:{r+1}], v[26:27]")
    kk(f"""
    ds_write_b128 v2, v[40:43] offset:{KS+4096}
    ds_write_b128 v2, v[44:47] offset:{KS+5120}
    ds_write_b128 v2, v[48:51] offset:{KS+6144}
    """)
    k(f"""
    s_waitcnt lgkmcnt(0)
    s_barrier
    """)
    kk(f"""
    s_cmp_eq_u32 s19, 3
    s_cbranch_scc1 F_KS
    ds_read_b128 v[40:43], v3 offset:{KS+4096}
    ds_read_b128 v[44:47], v3 offset:{KS+4096+3072}
    ds_read_b128 v[48:51], v3 offset:{KS+4096+6144}
    ds_read_b128 v[4:7], v3 offset:{KS+4096+9216}
    s_waitcnt lgkmcnt(2)
    v_pk_add_f32 v[40:41], v[40:41], v[44:45]
    v_pk_add_f32 v[42:43], v[42:43], v[46:47]
    s_waitcnt lgkmcnt(0)
    v_pk_add_f32 v[48:49], v[48:49], v[4:5]
    v_pk_add_f32 v[50:51], v[50:51], v[6:7]
    v_pk_add_f32 v[40:41], v[40:41], v[48:49]
    v_pk_add_f32 v[42:43], v[42:43], v[50:51]
    v_cvt_pk_bf16_f32 v40, v40, v41
    v_cvt_pk_bf16_f32 v42, v42, v43
    ds_write_b16 v35, v40 offset:{TB}
    ds_write_b16_d16_hi v36, v40 offset:{TB}
    ds_write_b16 v37, v42 offset:{TB}
    ds_write_b16_d16_hi v38, v42 offset:{TB}
    F_KS:
    s_waitcnt lgkmcnt(0)
    s_barrier
    """)
    if UEARLY:
        k0 = k; k = Remap2(UnitS(k0), {**{1: 84, 2: 85, 6: 86, 7: 87, 8: 88, 9: 89, 10: 90, 11: 91}, **{i: i + 128 for i in range(16, 32)}, **{i: i + 119 for i in range(41, 48)}})
        for r in list(range(16, 32)) + list(range(41, 48)): k(f"v_mov_b32 v{r}, 0")
        k(f"""
        s_mov_b32 s54, 2
        s_cmp_ge_u32 s2, {N_W + N_D}
        s_cbranch_scc1 U_LDONE
        s_cmp_ge_u32 s2, {N_W}
        s_cbranch_scc1 U_LD
        s_mov_b32 s54, 0
        s_lshr_b32 s12, s2, 4                 ; ft
        s_and_b32 s13, s2, 15                 ; s
        s_mul_i32 s14, s13, {32*F*2}
        s_mul_i32 s15, s12, 192
        s_add_u32 s14, s14, s15
        s_mul_i32 s16, s12, 12
        s_mov_b32 s17, 0x15555556
        v_mov_b32 v11, {F//8}
        """)
        for i in range(2):
            k(f"""
            v_add_u32 v1, {256*i}, v0
            v_mul_hi_u32 v2, v1, s17
            v_mul_u32_u24 v6, 12, v2
            v_sub_u32 v6, v1, v6                  ; chunk
            v_mul_u32_u24 v7, {F*2}, v2
            v_lshl_add_u32 v7, v6, 4, v7
            v_add_u32 v{8+i}, s14, v7
            v_mul_u32_u24 v7, {WPITCH}, v2
            v_lshl_add_u32 v{41+i}, v6, 5, v7
            v_add_u32 v6, s16, v6
            v_cmp_gt_u32 s[{24+2*i}:{25+2*i}], v11, v6
            """)
        k(f"""
        s_mov_b64 exec, s[24:25]
        s_cbranch_execz U_W1
        global_load_dwordx4 v[144:147], v8, s[48:49]
        global_load_dwordx4 v[148:151], v8, s[50:51]
        U_W1:
        s_mov_b64 exec, -1
        s_cmp_ge_u32 s33, 2
        s_cbranch_scc1 U_W2
        s_mov_b64 exec, s[26:27]
        s_cbranch_execz U_W2
        global_load_dwordx4 v[152:155], v9, s[48:49]
        global_load_dwordx4 v[156:159], v9, s[50:51]
        U_W2:
        s_mov_b64 exec, -1
        v_add_u32 v41, {US}, v41
        v_add_u32 v42, {US}, v42
        v_lshrrev_b32 v6, 2, v3
        v_lshl_add_u32 v6, v4, 2, v6
        v_mul_u32_u24 v6, {WPITCH}, v6
        v_and_b32 v7, 3, v3
        v_lshl_add_u32 v6, v7, 3, v6
        s_lshl_b32 s18, s33, 7
        s_mov_b32 s19, 32
        s_cmp_eq_u32 s33, 3
        s_cselect_b32 s18, 96, s18
        s_cselect_b32 s19, 128, s19
        s_add_u32 s18, s18, {US}
        v_add_u32 v43, s18, v6
        v_add_u32 v44, s19, v43
        v_add_u32 v45, s19, v44
        s_lshl_b32 s21, s12, 2
        s_add_u32 s21, s21, s33
        s_lshl_b32 s21, s21, 4
        s_add_u32 s21, s21, s13
        s_mul_i32 s21, s21, 3072
        s_add_u32 s21, s21, {WP}
        v_lshl_add_u32 v46, v5, 4, s21
        s_branch U_LDONE
        U_LD:
        s_mov_b32 s54, 1
        s_sub_u32 s3, s2, {N_W}
        s_lshr_b32 s12, s3, 2                 ; ks
        s_and_b32 s13, s3, 3                  ; dq
        v_lshrrev_b32 v1, 4, v0               ; row 0..15 (+16)
        s_lshl_b32 s14, s12, 15
        s_lshl_b32 s15, s13, 8
        s_add_u32 s14, s14, s15
        v_lshlrev_b32 v6, 10, v1
        v_lshl_add_u32 v6, v3, 4, v6
        v_add_u32 v6, s14, v6
        v_add_u32 v7, 0x4000, v6
        s_cmp_ge_u32 s12, 43
        s_cbranch_scc1 U_D1
        global_load_dwordx4 v[144:147], v6, s[52:53]
        global_load_dwordx4 v[148:151], v7, s[52:53]
        U_D1:
        v_bfe_u32 v8, v1, 1, 2
        v_lshrrev_b32 v9, 3, v1
        v_and_b32 v10, 1, v1
        v_lshl_add_u32 v10, v9, 1, v10
        v_lshl_add_u32 v10, v8, 3, v10        ; rho
        v_mul_u32_u24 v10, {DPITCH}, v10
        v_lshl_add_u32 v10, v3, 4, v10
        v_add_u32 v41, {US}, v10
        v_lshrrev_b32 v6, 2, v3
        v_lshl_add_u32 v6, v4, 3, v6
        v_mul_u32_u24 v6, {DPITCH}, v6
        v_and_b32 v7, 3, v3
        v_lshl_add_u32 v6, v7, 3, v6
        s_lshl_b32 s18, s33, 6
        s_add_u32 s18, s18, {US}
        v_add_u32 v43, s18, v6
        s_lshl_b32 s16, s13, 3
        s_lshl_b32 s17, s33, 1
        s_add_u32 s16, s16, s17
        s_mul_i32 s16, s16, {NKS2*1024}
        s_lshl_b32 s17, s12, 10
        s_add_u32 s16, s16, s17
        s_add_u32 s16, s16, {WD}
        v_lshl_add_u32 v46, v5, 4, s16
        v_add_u32 v47, {NKS2*1024}, v46
        U_LDONE:
        """)
        k = k0
    for e in range(11):
        k(f"ds_read_u16 v{48+e}, v{48+e}")
    k(f"""
    v_min_u32 v61, 0x5f0, v1
    ds_read_b128 v[80:83], v61 offset:{TB}
    v_bfe_u32 v62, v0, 2, 2
    v_mul_u32_u24 v62, {KCS}, v62
    v_and_b32 v63, 3, v0
    v_min_u32 v63, 2, v63
    v_lshl_add_u32 v62, v63, 4, v62
    ds_write_b128 v62, v[36:39] offset:{KL}
    """)
    conv_expand(k)
    k(f"""
    buffer_store_dwordx4 v[80:83], v61, s[8:11], s15 offen
    v_mov_b32 v62, 0
    """)
    if UEARLY: k(f"""
    s_waitcnt vmcnt(1)
    s_cmp_eq_u32 s54, 2
    s_cbranch_scc1 U_SDONE
    s_cmp_eq_u32 s54, 1
    s_cbranch_scc1 U_SD
    ds_write2_b32 v160, v144, v145 offset0:0 offset1:2
    ds_write2_b32 v160, v146, v147 offset0:4 offset1:6
    ds_write2_b32 v160, v148, v149 offset0:1 offset1:3
    ds_write2_b32 v160, v150, v151 offset0:5 offset1:7
    s_cmp_ge_u32 s17, 2
    s_cbranch_scc1 U_SDONE
    ds_write2_b32 v161, v152, v153 offset0:0 offset1:2
    ds_write2_b32 v161, v154, v155 offset0:4 offset1:6
    ds_write2_b32 v161, v156, v157 offset0:1 offset1:3
    ds_write2_b32 v161, v158, v159 offset0:5 offset1:7
    s_branch U_SDONE
    U_SD:
    ds_write_b128 v160, v[144:147]
    ds_write_b128 v160, v[148:151] offset:{4*DPITCH}
    U_SDONE:
    """)
    k(f"""
    s_cmp_lg_u32 s17, 3
    s_cbranch_scc1 F1_GO
    s_mov_b32 s26, 0
    F1_CHK:
    global_load_dword v59, v43, s[4:5] sc1
    s_waitcnt vmcnt(0)
    v_sub_u32 v59, v59, v42
    v_cmp_le_u32 vcc, 4, v59
    s_cmp_lg_u64 vcc, 0
    s_cbranch_scc1 F1_GO
    s_add_u32 s26, s26, 1
    s_cmp_ge_u32 s26, {SPIN_MAX >> 2}
    s_cbranch_scc1 F1_GO
    s_sleep {F1_SLEEP}
    s_and_b32 s21, s26, 63
    s_cmp_lg_u32 s21, 0
    s_cbranch_scc1 F1_CHK
    global_load_dword v59, v62, s[28:29] offset:8 sc1
    s_waitcnt vmcnt(0)
    v_cmp_gt_u32 vcc, 4, v59
    s_cmp_lg_u64 vcc, 0
    s_cbranch_scc1 F1_CHK
    F1_GO:
    s_waitcnt lgkmcnt(0)
    s_barrier
    @STAMP 2
    buffer_load_dwordx4 v[16:19], v1, s[8:11], s31 offen {F1_LD}
    s_add_u32 s31, s31, 0x1000
    buffer_load_dwordx4 v[20:23], v1, s[8:11], s31 offen {F1_LD}
    s_add_u32 s31, s31, 0x1000
    buffer_load_dwordx4 v[24:27], v1, s[8:11], s31 offen {F1_LD}
    s_add_u32 s31, s31, 0x1000
    buffer_load_dwordx4 v[28:31], v1, s[8:11], s31 offen {F1_LD}
    buffer_load_dwordx4 v[12:15], v60, s[8:11], s13 offen {F1_LD}
    """)
    if not UEARLY:
        k0 = k; k = Remap2(UnitS(k0), {**{1: 84, 2: 85, 6: 86, 7: 87, 8: 88, 9: 89, 10: 90, 11: 91}, **{i: i + 128 for i in range(16, 32)}, **{i: i + 119 for i in range(41, 48)}})
        for r in list(range(16, 32)) + list(range(41, 48)): k(f"v_mov_b32 v{r}, 0")
        k(f"""
        s_mov_b32 s54, 2
        s_cmp_ge_u32 s2, {N_W + N_D}
        s_cbranch_scc1 U_LDONE
        s_cmp_ge_u32 s2, {N_W}
        s_cbranch_scc1 U_LD
        s_mov_b32 s54, 0
        s_lshr_b32 s12, s2, 4                 ; ft
        s_and_b32 s13, s2, 15                 ; s
        s_mul_i32 s14, s13, {32*F*2}
        s_mul_i32 s15, s12, 192
        s_add_u32 s14, s14, s15
        s_mul_i32 s16, s12, 12
        s_mov_b32 s17, 0x15555556
        v_mov_b32 v11, {F//8}
        """)
        for i in range(2):
            k(f"""
            v_add_u32 v1, {256*i}, v0
            v_mul_hi_u32 v2, v1, s17
            v_mul_u32_u24 v6, 12, v2
            v_sub_u32 v6, v1, v6                  ; chunk
            v_mul_u32_u24 v7, {F*2}, v2
            v_lshl_add_u32 v7, v6, 4, v7
            v_add_u32 v{8+i}, s14, v7
            v_mul_u32_u24 v7, {WPITCH}, v2
            v_lshl_add_u32 v{41+i}, v6, 5, v7
            v_add_u32 v6, s16, v6
            v_cmp_gt_u32 s[{24+2*i}:{25+2*i}], v11, v6
            """)
        k(f"""
        s_mov_b64 exec, s[24:25]
        s_cbranch_execz U_W1
        global_load_dwordx4 v[144:147], v8, s[48:49]
        global_load_dwordx4 v[148:151], v8, s[50:51]
        U_W1:
        s_mov_b64 exec, -1
        s_cmp_ge_u32 s33, 2
        s_cbranch_scc1 U_W2
        s_mov_b64 exec, s[26:27]
        s_cbranch_execz U_W2
        global_load_dwordx4 v[152:155], v9, s[48:49]
        global_load_dwordx4 v[156:159], v9, s[50:51]
        U_W2:
        s_mov_b64 exec, -1
        v_add_u32 v41, {US}, v41
        v_add_u32 v42, {US}, v42
        v_lshrrev_b32 v6, 2, v3
        v_lshl_add_u32 v6, v4, 2, v6
        v_mul_u32_u24 v6, {WPITCH}, v6
        v_and_b32 v7, 3, v3
        v_lshl_add_u32 v6, v7, 3, v6
        s_lshl_b32 s18, s33, 7
        s_mov_b32 s19, 32
        s_cmp_eq_u32 s33, 3
        s_cselect_b32 s18, 96, s18
        s_cselect_b32 s19, 128, s19
        s_add_u32 s18, s18, {US}
        v_add_u32 v43, s18, v6
        v_add_u32 v44, s19, v43
        v_add_u32 v45, s19, v44
        s_lshl_b32 s21, s12, 2
        s_add_u32 s21, s21, s33
        s_lshl_b32 s21, s21, 4
        s_add_u32 s21, s21, s13
        s_mul_i32 s21, s21, 3072
        s_add_u32 s21, s21, {WP}
        v_lshl_add_u32 v46, v5, 4, s21
        s_branch U_LDONE
        U_LD:
        s_mov_b32 s54, 1
        s_sub_u32 s3, s2, {N_W}
        s_lshr_b32 s12, s3, 2                 ; ks
        s_and_b32 s13, s3, 3                  ; dq
        v_lshrrev_b32 v1, 4, v0               ; row 0..15 (+16)
        s_lshl_b32 s14, s12, 15
        s_lshl_b32 s15, s13, 8
        s_add_u32 s14, s14, s15
        v_lshlrev_b32 v6, 10, v1
        v_lshl_add_u32 v6, v3, 4, v6
        v_add_u32 v6, s14, v6
        v_add_u32 v7, 0x4000, v6
        s_cmp_ge_u32 s12, 43
        s_cbranch_scc1 U_D1
        global_load_dwordx4 v[144:147], v6, s[52:53]
        global_load_dwordx4 v[148:151], v7, s[52:53]
        U_D1:
        v_bfe_u32 v8, v1, 1, 2
        v_lshrrev_b32 v9, 3, v1
        v_and_b32 v10, 1, v1
        v_lshl_add_u32 v10, v9, 1, v10
        v_lshl_add_u32 v10, v8, 3, v10        ; rho
        v_mul_u32_u24 v10, {DPITCH}, v10
        v_lshl_add_u32 v10, v3, 4, v10
        v_add_u32 v41, {US}, v10
        v_lshrrev_b32 v6, 2, v3
        v_lshl_add_u32 v6, v4, 3, v6
        v_mul_u32_u24 v6, {DPITCH}, v6
        v_and_b32 v7, 3, v3
        v_lshl_add_u32 v6, v7, 3, v6
        s_lshl_b32 s18, s33, 6
        s_add_u32 s18, s18, {US}
        v_add_u32 v43, s18, v6
        s_lshl_b32 s16, s13, 3
        s_lshl_b32 s17, s33, 1
        s_add_u32 s16, s16, s17
        s_mul_i32 s16, s16, {NKS2*1024}
        s_lshl_b32 s17, s12, 10
        s_add_u32 s16, s16, s17
        s_add_u32 s16, s16, {WD}
        v_lshl_add_u32 v46, v5, 4, s16
        v_add_u32 v47, {NKS2*1024}, v46
        U_LDONE:
        """)
        k = k0
    if UEARLY:
        k(f"""
    s_cmp_eq_u32 s54, 2
    s_cbranch_scc1 U_RDONE
    s_cmp_eq_u32 s54, 1
    s_cbranch_scc1 U_RD
    ds_read_b64_tr_b16 v[64:65], v162
    ds_read_b64_tr_b16 v[66:67], v162 offset:{16*WPITCH}
    ds_read_b64_tr_b16 v[68:69], v163
    ds_read_b64_tr_b16 v[70:71], v163 offset:{16*WPITCH}
    ds_read_b64_tr_b16 v[72:73], v164
    ds_read_b64_tr_b16 v[74:75], v164 offset:{16*WPITCH}
    s_waitcnt lgkmcnt(0)
    global_store_dwordx4 v165, v[64:67], s[4:5] {PREP_W_POL}
    global_store_dwordx4 v165, v[68:71], s[4:5] offset:1024 {PREP_W_POL}
    global_store_dwordx4 v165, v[72:75], s[4:5] offset:2048 {PREP_W_POL}
    s_branch U_RDONE
    U_RD:
    ds_read_b64_tr_b16 v[64:65], v162
    ds_read_b64_tr_b16 v[66:67], v162 offset:{4*DPITCH}
    ds_read_b64_tr_b16 v[68:69], v162 offset:32
    ds_read_b64_tr_b16 v[70:71], v162 offset:{4*DPITCH+32}
    s_waitcnt lgkmcnt(0)
    global_store_dwordx4 v165, v[64:67], s[4:5] {PREP_W_POL}
    global_store_dwordx4 v166, v[68:71], s[4:5] {PREP_W_POL}
    s_branch U_RDONE
    U_RDONE:
    s_waitcnt vmcnt(3)
    s_cmp_eq_u32 s54, 0
    s_cbranch_scc1 F_W3
    s_waitcnt vmcnt(2)
    s_cmp_eq_u32 s54, 1
    s_cbranch_scc1 F_W3
    s_waitcnt vmcnt(0)
    F_W3:
    s_mov_b32 s54, 2
    @STAMP 3
    """)
    else:
        k("""
        s_waitcnt vmcnt(4)
        s_lshr_b32 s21, s17, 1
        s_or_b32 s21, s21, s54
        s_cmp_eq_u32 s21, 0
        s_cbranch_scc1 F_W3
        s_waitcnt vmcnt(2)
        s_cmp_lt_u32 s2, 412
        s_cbranch_scc1 F_W3
        s_waitcnt vmcnt(0)
        F_W3:
        @STAMP 3
        """)
    conv_norm(k)
    k("s_branch CONV_PRE")
    if UEARLY: k("F1_TAIL:\ns_endpgm")
    else:
        k(f"""
        F1_TAIL:
        s_barrier
        s_waitcnt vmcnt(1)
        s_cmp_eq_u32 s54, 2
        s_cbranch_scc1 U_SDONE
        s_cmp_eq_u32 s54, 1
        s_cbranch_scc1 U_SD
        ds_write2_b32 v160, v144, v145 offset0:0 offset1:2
        ds_write2_b32 v160, v146, v147 offset0:4 offset1:6
        ds_write2_b32 v160, v148, v149 offset0:1 offset1:3
        ds_write2_b32 v160, v150, v151 offset0:5 offset1:7
        s_cmp_ge_u32 s17, 2
        s_cbranch_scc1 U_SDONE
        ds_write2_b32 v161, v152, v153 offset0:0 offset1:2
        ds_write2_b32 v161, v154, v155 offset0:4 offset1:6
        ds_write2_b32 v161, v156, v157 offset0:1 offset1:3
        ds_write2_b32 v161, v158, v159 offset0:5 offset1:7
        s_branch U_SDONE
        U_SD:
        ds_write_b128 v160, v[144:147]
        ds_write_b128 v160, v[148:151] offset:{4*DPITCH}
        U_SDONE:
        s_waitcnt lgkmcnt(0)
        s_barrier
        s_cmp_eq_u32 s54, 2
        s_cbranch_scc1 U_RDONE
        s_cmp_eq_u32 s54, 1
        s_cbranch_scc1 U_RD
        ds_read_b64_tr_b16 v[64:65], v162
        ds_read_b64_tr_b16 v[66:67], v162 offset:{16*WPITCH}
        ds_read_b64_tr_b16 v[68:69], v163
        ds_read_b64_tr_b16 v[70:71], v163 offset:{16*WPITCH}
        ds_read_b64_tr_b16 v[72:73], v164
        ds_read_b64_tr_b16 v[74:75], v164 offset:{16*WPITCH}
        s_waitcnt lgkmcnt(0)
        global_store_dwordx4 v165, v[64:67], s[4:5] {PREP_W_POL}
        global_store_dwordx4 v165, v[68:71], s[4:5] offset:1024 {PREP_W_POL}
        global_store_dwordx4 v165, v[72:75], s[4:5] offset:2048 {PREP_W_POL}
        s_branch U_RDONE
        U_RD:
        ds_read_b64_tr_b16 v[64:65], v162
        ds_read_b64_tr_b16 v[66:67], v162 offset:{4*DPITCH}
        ds_read_b64_tr_b16 v[68:69], v162 offset:32
        ds_read_b64_tr_b16 v[70:71], v162 offset:{4*DPITCH+32}
        s_waitcnt lgkmcnt(0)
        global_store_dwordx4 v165, v[64:67], s[4:5] {PREP_W_POL}
        global_store_dwordx4 v166, v[68:71], s[4:5] {PREP_W_POL}
        s_branch U_RDONE
        U_RDONE:
        @FLUSH 13
        s_endpgm
        """)
    info = dict(vgpr=168, sgpr=60, accum=168, grid=N_T + N_K, block=256, lds=CONV_LDS)
    return k, info

def gen_conv():
    k = Kern("conv")
    if FUSE1: k(f"""
    conv2_kernel:
    s_mov_b32 s34, 1
    s_mov_b32 s30, {X2T}
    s_mov_b32 s31, {ST1}
    s_mov_b32 s32, {X3T}
    s_mov_b32 s33, {HB1}
    @KID 4
    """)
    else: k(f"""
    conv1_kernel:
    s_cmp_ge_u32 s2, 512
    s_cbranch_scc1 P_WROLES
    s_mov_b32 s34, {0 if 'W' in WINC else 1}
    s_mov_b32 s30, {XT0}
    s_mov_b32 s31, {ST0}
    s_mov_b32 s32, {X1T}
    s_mov_b32 s33, {HB}
    @KID 1
    """)
    k(f"""
    CONV_BODY:
    s_mov_b32 s54, 2
    s_cmp_ge_u32 s2, 512
    s_cbranch_scc1 CONV_END
    @INIT
    s_load_dwordx2 s[4:5], s[0:1], {KA_WS}
    s_load_dwordx2 s[6:7], s[0:1], {KA_DSKIP}
    """)
    conv_setup(k)
    k(f"""
    s_lshl_b32 s18, s17, 11
    s_add_u32 s18, s18, {CRED}
    """)
    conv_p3(k)
    k("""
    @STAMP 10
    s_waitcnt lgkmcnt(0)
    @STAMP 11
    s_load_dword s20, s[6:7], s16
    """)
    srd(k, 8, 4, WS_BYTES)
    k(f"""
    s_mov_b32 m0, s18
    s_nop 0
    buffer_load_dwordx4 v6, s[8:11], s15 offen lds
    buffer_load_dwordx4 v6, s[8:11], s15 offen offset:1024 lds
    """)
    conv_loads(k)
    npf = 0
    k(f"""
    @STAMP 12
    @STAMP 2
    s_waitcnt vmcnt({5 + npf})
    """)
    for e in range(11):
        k(f"ds_read_u16 v{48+e}, v{48+e}")
    conv_expand(k)
    k(f"""
    s_waitcnt vmcnt({1 + npf})
    @STAMP 3
    """)
    for i in range(4):
        stats_pair(k, 16 + 4*i, 17 + 4*i, 18 + 4*i, 19 + 4*i, 40)
    k(f"s_waitcnt vmcnt({npf})")
    conv_norm(k)
    if CPF:
        if LOCALMAP0:
            k(f"""
            s_lshr_b32 s21, s2, 3
            s_mul_i32 s22, s21, 49152
            s_mul_i32 s23, s17, {PFQ}
            s_add_u32 s22, s22, s23
            s_add_u32 s22, s22, {WP}
            v_min_u32 v38, {PFQ // 128 - 1}, v5
            v_lshlrev_b32 v38, 7, v38
            buffer_load_dword v150, v38, s[8:11], s22 offen
            """)
        else:
            k(f"""
            s_lshr_b32 s21, s2, 3
            s_lshl_b32 s21, s21, 2
            s_add_u32 s21, s21, s17
            s_mul_i32 s22, s21, 6144
            s_and_b32 s23, s2, 1
            s_mul_i32 s23, s23, {8*196608}
            s_add_u32 s22, s22, s23
            s_add_u32 s22, s22, {WP}
            v_lshlrev_b32 v38, 7, v5
            s_cmp_eq_u32 s34, 0
            s_cbranch_scc1 CONV_NOW
            buffer_load_dword v150, v38, s[8:11], s22 offen
            CONV_NOW:
            """)
    if SENT:
        k(f"""
        v_mov_b32 v40, -1
        v_mov_b32 v41, -1
        v_mov_b32 v42, -1
        v_mov_b32 v43, -1
        s_mul_i32 s21, s2, 11520
        s_add_u32 s21, s21, s33
        v_min_u32 v38, {11520 - 8192 - 16}, v1
        buffer_store_dwordx4 v[40:43], v1, s[8:11], s21 offen {POISON_POL}
        s_add_u32 s21, s21, 0x1000
        buffer_store_dwordx4 v[40:43], v1, s[8:11], s21 offen {POISON_POL}
        s_add_u32 s21, s21, 0x1000
        buffer_store_dwordx4 v[40:43], v38, s[8:11], s21 offen {POISON_POL}
        """)
    k.label("CONV_PRE")
    if CODEPF2:
        k(f"""
        s_cmp_ge_u32 s2, 8
        s_cbranch_scc1 CONV_NOPF
        s_getpc_b64 s[22:23]
        CONV_PFPC:
        v_lshlrev_b32 v38, 6, v0
        v_min_u32 v38, TEXT_END-CONV_PFPC-4, v38
        global_load_dword v39, v38, s[22:23]
        CONV_NOPF:
        """)
    k("""
    @STAMP 4
    s_waitcnt lgkmcnt(0)
    s_barrier
    CONV_MAIN2:
    @STAMP 5
    """)
    if CONV_NOPK: k = NoPk(k)
    KF = 48; UB = 16; ACC = 112
    pend = []
    def rd(tag):
        if tag[0] == "U":
            mu = int(tag[1:]); r = UB + 4 * (mu & 3)
            k(f"ds_read_b128 v[{r}:{r+3}], v9 offset:{256*mu}")
        else:
            t = int(tag[1:]); r = KF + 4 * t
            k(f"ds_read_b128 v[{r}:{r+3}], v7 offset:{256*t}")
        pend.append(tag)
    def need(tags):
        idx = max([pend.index(t) for t in tags if t in pend], default=-1)
        if idx >= 0:
            k(f"s_waitcnt lgkmcnt({len(pend) - idx - 1})")
            del pend[:idx + 1]
    queue = ["U0"] + [f"K{t}" for t in range(1, 16, 2)] + ["U1"] + [f"K{t}" for t in range(0, 16, 2)] + ["U2", "U3"]
    for t in queue[:12]: rd(t)
    queue = queue[12:]
    for mu in range(16):
        a = UB + 4 * (mu & 3)
        q0 = max(0, -(-(mu - 1) // 2))
        for q in range(q0, 8):
            tp = 2 * q + 1 - mu
            need([f"U{mu}", f"K{tp}"])
            c = "0" if mu == 0 else f"v[{ACC+4*q}:{ACC+4*q+3}]"
            k(f"v_mfma_f32_16x16x32_bf16 v[{ACC+4*q}:{ACC+4*q+3}], v[{KF+4*tp}:{KF+4*tp+3}], v[{a}:{a+3}], {c}")
            if queue: rd(queue.pop(0))
        if mu + 4 < 16: rd(f"U{mu+4}")
        if mu & 1 and mu >= 3:
            q = (mu - 3) // 2
            k(f"ds_write_b128 v10, v[{ACC+4*q}:{ACC+4*q+3}] offset:{(CRED + (q>>1)*8192 if q < 6 else KL) + (q&1)*1024}")
            pend.append("W")
        if mu == 6:
            assert not any(t[0] == "K" for t in pend + queue)
            k("s_barrier")
    k("@STAMP 6")
    k(f"""
    s_and_b32 s21, s20, 0xffff0000
    s_lshl_b32 s20, s20, 16
    s_bitcmp1_b32 s2, 0
    s_cselect_b32 s20, s21, s20
    """)
    for p in range(4):
        k(f"""
        v_lshlrev_b32 v40, 16, v{32+p}
        v_and_b32 v41, 0xffff0000, v{32+p}
        v_mul_f32 v40, s20, v40
        v_mul_f32 v41, s20, v41
        v_cvt_pk_bf16_f32 v41, v40, v41
        """)
        if p == 0:
            k(f"ds_write_b128 v10, v[{ACC+28}:{ACC+31}] offset:{KL + 1024}")
        k(f"""
        v_lshlrev_b32 v{48+2*p}, 16, v41
        v_and_b32 v{49+2*p}, 0xffff0000, v41
        v_lshlrev_b32 v{56+2*p}, 16, v{12+p}
        v_and_b32 v{57+2*p}, 0xffff0000, v{12+p}
        """)
    k("""
    s_waitcnt lgkmcnt(0)
    s_barrier
    @STAMP 7
    """)
    for src in range(4):
        for t in range(2):
            k(f"ds_read_b128 v[{ACC+8*src+4*t}:{ACC+8*src+4*t+3}], v11 offset:{src*2048 + t*16}")
    k("s_waitcnt lgkmcnt(4)")
    for r in range(0, 8, 2):
        k(f"v_pk_add_f32 v[{ACC+r}:{ACC+r+1}], v[{ACC+r}:{ACC+r+1}], v[{ACC+8+r}:{ACC+9+r}]")
    k("s_waitcnt lgkmcnt(0)")
    for r in range(0, 8, 2):
        k(f"v_pk_add_f32 v[{ACC+16+r}:{ACC+17+r}], v[{ACC+16+r}:{ACC+17+r}], v[{ACC+24+r}:{ACC+25+r}]")
    for r in range(0, 8, 2):
        k(f"v_pk_add_f32 v[{ACC+r}:{ACC+r+1}], v[{ACC+r}:{ACC+r+1}], v[{ACC+16+r}:{ACC+17+r}]")
    k("@STAMP 8")
    for p in range(4):
        y0, y1 = ACC + 2*p, ACC + 2*p + 1
        k(f"""
        v_cvt_pk_bf16_f32 v{y1}, v{y0}, v{y1}
        v_lshlrev_b32 v{y0}, 16, v{y1}
        v_and_b32 v{y1}, 0xffff0000, v{y1}
        v_pk_add_f32 v[{y0}:{y1}], v[{y0}:{y1}], v[{48+2*p}:{49+2*p}]
        v_cvt_pk_bf16_f32 v{y1}, v{y0}, v{y1}
        v_lshlrev_b32 v{y0}, 16, v{y1}
        v_and_b32 v{y1}, 0xffff0000, v{y1}
        v_pk_add_f32 v[{y0}:{y1}], v[{y0}:{y1}], v[{56+2*p}:{57+2*p}]
        v_cvt_pk_bf16_f32 v{44+p}, v{y0}, v{y1}
        """)
    k(f"""
    buffer_store_dwordx4 v[44:47], v2, s[8:11], s14 offen {CONV_ST}
    @STAMP 9
    s_cmp_lg_u32 s54, 2
    s_cbranch_scc1 {'F1_TAIL' if FUSE1 else 'CONV_END'}
    @FLUSH 13
    CONV_END:
    s_endpgm
    """)
    if not FUSE1: k(f"""
    .p2align 8
    conv2_kernel:
    s_mov_b32 s34, 1
    s_mov_b32 s30, {X2T}
    s_mov_b32 s31, {ST1}
    s_mov_b32 s32, {X3T}
    s_mov_b32 s33, {HB1}
    @KID 4
    s_branch CONV_BODY
    """)
    if CONV_NOPK: k = k.k
    info = dict(vgpr=168, sgpr=60, accum=168, grid=512, block=256, lds=CONV_LDS)
    return k, info

MLP_LDS = 163840
H_LD = os.environ.get('H_LD', 'sc1')
M_PRE2 = int(os.environ.get('M_PRE2', '5'))
M_OLD = int(os.environ.get('M_OLD', '1'))
M_FINE = int(os.environ.get('M_FINE', '1'))
M_LOOK = int(os.environ.get('M_LOOK', '5'))
M_TOUCH = int(os.environ.get('M_TOUCH', '0'))
M_PRE = int(os.environ.get('M_PRE', '8'))
M_OPS = int(os.environ.get('M_OPS', '3'))
M_RAMP = int(os.environ.get('M_RAMP', '5'))
M_LATE = int(os.environ.get('M_LATE', '-100'))
LOCALMAP = int(os.environ.get('LOCALMAP', '0'))
LOC_POL = os.environ.get('LOC_POL', 'sc1')
IDT = ZR + 0x4000
M_PRIO = int(os.environ.get('M_PRIO', '0'))
M_FIRST = int(os.environ.get('M_FIRST', '1'))
M_WDT = int(os.environ.get('M_WDT', '-1'))
M_STW = int(os.environ.get('M_STW', '0'))
M_WDM = int(os.environ.get('M_WDM', '6'))
M_WDE = int(os.environ.get('M_WDE', '2'))
M_AHEAD2 = int(os.environ.get('M_AHEAD2', '6'))
SPIN_MAX = 1 << 20
SLOT = 40960
def gen_mlp():
    k = Kern("mlp")
    ACC = 0
    FR = 48
    XA = 104
    WA = 112
    CSR = 114
    STV = 126
    RES = 130
    VDMA, VW, VT0, VT1, VT2 = 134, 135, 136, 137, 138
    SA = 139
    VRES = 142; VSTX = 143; VPUB = 144; VCS = 145
    MR = 146
    TMP = 150
    NV = 168
    VID = TMP + 14
    VRES2 = TMP + 9
    def wdreg(i): return f"a[{4*i}:{4*i+3}]"
    k(f"""
    mlpa_kernel:
    s_mov_b32 s30, {X1T}
    s_mov_b32 s31, {HB}
    s_mov_b32 s33, {STX}
    s_mov_b32 s34, {FLG}
    s_mov_b32 s35, 0
    s_mov_b32 s56, {IDT}
    @KID 2
    M_BODY:
    s_cmp_ge_u32 s2, 256
    s_cbranch_scc1 M_END
    @INIT
    s_load_dwordx2 s[4:5], s[0:1], {KA_WS}
    s_load_dwordx2 s[6:7], s[0:1], {KA_OUT}
    v_readfirstlane_b32 s17, v0
    s_and_b32 s12, s2, 7                  ; xcd
    s_lshr_b32 s13, s2, 3                 ; idx
    """)
    if LOCALMAP:
        k(f"""
        s_lshl_b32 s14, s12, 1
        s_and_b32 s15, s13, 1
        s_add_u32 s14, s14, s15
        s_lshl_b32 s36, s12, 2
        s_and_b32 s15, s13, 3
        s_add_u32 s36, s36, s15
        s_lshr_b32 s37, s13, 2                ; dt
        s_lshr_b32 s15, s13, 1                ; ft
        """)
    else:
        k(f"""
    s_lshr_b32 s14, s12, 1
    s_lshl_b32 s14, s14, 2
    s_and_b32 s15, s13, 3
    s_add_u32 s14, s14, s15               ; lt
    s_lshl_b32 s36, s12, 2
    s_add_u32 s36, s36, s15               ; lt64
    s_lshr_b32 s37, s13, 2                ; dt
    s_and_b32 s15, s12, 1
    s_lshl_b32 s15, s15, 3
    s_add_u32 s15, s15, s37               ; ft
        """)
    k(f"""
    s_lshr_b32 s17, s17, 6                ; w
    s_and_b32 s16, s17, 3
    s_lshr_b32 s29, s17, 2
    v_and_b32 v{VT0}, 63, v0              ; lane
    v_and_b32 v{VT1}, 15, v0              ; lam / j
    v_bfe_u32 v{VT2}, v0, 4, 2            ; g
    v_lshlrev_b32 v{VDMA}, 4, v{VT0}
    v_lshlrev_b32 v{VW}, 4, v{VT0}                    ; lane*16
    s_lshl_b32 s18, s14, 17
    s_add_u32 s18, s18, s30
    s_lshl_b32 s19, s17, 10
    s_add_u32 s18, s18, s19
    s_lshl_b32 s19, s17, 10               ; x m0 part: w*1024
    s_lshl_b32 s20, s15, 2
    s_add_u32 s20, s20, s16
    s_lshl_b32 s21, s20, 4
    s_add_u32 s21, s21, s29
    s_mul_i32 s21, s21, 3072
    s_add_u32 s21, s21, {WP}
    s_mul_i32 s22, s17, 3072
    s_add_u32 s22, s22, 0x4000
    s_mul_i32 s24, s20, {3*16*4}
    s_add_u32 s24, s24, {CSUM}
    s_lshl_b32 s38, s37, 2
    s_add_u32 s38, s38, s16
    s_mul_i32 s38, s38, {NKS2*1024}
    s_mul_i32 s23, s29, {22*1024}
    s_add_u32 s38, s38, s23
    s_add_u32 s38, s38, {WD}
    """)
    def group_parts(t):
        base = (t & 3) * SLOT
        parts = [f"""
        s_add_u32 m0, s19, {base}
        s_nop 0
        buffer_load_dwordx4 v{VDMA}, s[8:11], s18 offen lds
        s_add_u32 s18, s18, 0x2000
        """, f"""
        s_add_u32 m0, s22, {base}
        s_nop 0
        buffer_load_dwordx4 v{VW}, s[8:11], s21 offen lds
        """, f"""
        buffer_load_dwordx4 v{VW}, s[8:11], s21 offen offset:1024 lds
        """, f"""
        buffer_load_dwordx4 v{VW}, s[8:11], s21 offen offset:2048 lds
        s_add_u32 s21, s21, 0x1800
        """, f"""
        s_add_u32 m0, s19, {base + 8192}
        s_nop 0
        buffer_load_dwordx4 v{VDMA}, s[8:11], s18 offen lds
        s_add_u32 s18, s18, 0x2000
        """]
        return parts
    def wd_part(i):
        p = f"buffer_load_dwordx4 {wdreg(i)}, v{VW}, s[8:11], s38 offen offset:{1024*(i&3)}"
        if (i & 3) == 3: p += "\ns_add_u32 s38, s38, 0x1000"
        return p
    def common_addr():
        k(f"""
        s_mov_b32 s43, {fl(1.0/512)}
        s_mov_b32 s44, {fl(1e-5)}
        s_mov_b32 s45, {fl(-LOG2E)}
        v_lshrrev_b32 v{TMP}, 2, v{VT1}
        v_lshl_add_u32 v{TMP}, v{VT2}, 2, v{TMP}          ; 4g + r
        v_and_b32 v{TMP+1}, 7, v{TMP}                     ; xi
        v_and_b32 v{TMP+2}, 3, v{VT1}
        v_lshlrev_b32 v{TMP+2}, 3, v{TMP+2}
        v_lshl_add_u32 v{TMP+2}, v{TMP}, 8, v{TMP+2}
        v_mul_u32_u24 v{VRES}, {XP}, v{VT1}
        v_lshl_add_u32 v{VRES}, v{VT2}, 4, v{VRES}
        s_lshl_b32 s39, s37, 2
        s_add_u32 s39, s39, s16
        s_mul_i32 s39, s39, {16*XP}
        s_lshl_b32 s40, s36, 7
        s_add_u32 s39, s39, s40
        s_lshl_b32 s40, s29, 6
        s_add_u32 s39, s39, s40
        s_lshr_b32 s40, s36, 1
        s_lshl_b32 s40, s40, 17
        s_add_u32 s40, s40, s30
        s_lshl_b32 s26, s37, 2
        s_add_u32 s26, s26, s16
        s_lshl_b32 s26, s26, 12
        s_add_u32 s40, s40, s26
        s_and_b32 s26, s36, 1
        s_lshl_b32 s26, s26, 1
        s_add_u32 s26, s26, s29
        s_lshl_b32 s26, s26, 1
        v_lshrrev_b32 v{TMP+3}, 1, v{VT2}
        v_add_u32 v{TMP+3}, s26, v{TMP+3}
        v_and_b32 v{TMP+4}, 7, v{VT1}
        v_xor_b32 v{TMP+3}, v{TMP+3}, v{TMP+4}
        v_lshlrev_b32 v{TMP+3}, 5, v{TMP+3}
        v_lshl_add_u32 v{TMP+3}, v{VT1}, 8, v{TMP+3}
        v_and_b32 v{TMP+4}, 1, v{VT2}
        v_lshl_add_u32 v{VRES2}, v{TMP+4}, 4, v{TMP+3}
        """)
    res_parts = [f"buffer_load_dwordx4 v[{RES}:{RES+3}], v{VRES2}, s[8:11], s40 offen"]
    common_addr()
    k("s_lshl_b32 s25, s29, 2")
    for b in range(4):
        k(f"""
        s_add_u32 s26, s25, {b}
        v_xor_b32 v{TMP+3}, s26, v{TMP+1}
        v_lshl_add_u32 v{XA+b}, v{TMP+3}, 5, v{TMP+2}
        v_add_u32 v{XA+4+b}, {2*SLOT}, v{XA+b}
        """)
    k(f"""
    s_mul_i32 s26, s16, 3072
    s_add_u32 s26, s26, 0x4000
    v_add_u32 v{WA}, s26, v{VW}
    v_add_u32 v{WA+1}, {2*SLOT}, v{WA}
    """)
    def late_addr():
        k(f"""
        v_bfe_u32 v{TMP}, v{VT1}, 2, 1                    ; half
        v_mul_u32_u24 v{TMP+4}, 3072, v{TMP}
        v_lshrrev_b32 v{TMP}, 3, v{VT1}
        v_lshl_add_u32 v{TMP+4}, v{TMP}, 6, v{TMP+4}
        v_and_b32 v{TMP}, 3, v{VT1}
        v_lshl_add_u32 v{TMP+4}, v{TMP}, 4, v{TMP+4}
        v_lshl_add_u32 v{TMP+4}, v{VT2}, 8, v{TMP+4}
        s_lshl_b32 s26, s16, 10
        s_cmp_eq_u32 s16, 3
        s_cselect_b32 s26, 12, s26
        s_cselect_b32 s27, 0x400, 4
        s_mul_i32 s28, s29, 12288
        s_add_u32 s26, s26, s28
        v_add_u32 v{SA}, s26, v{TMP+4}
        v_add_u32 v{SA+1}, s27, v{SA}
        v_add_u32 v{SA+2}, s27, v{SA+1}
        v_lshlrev_b32 v{VSTX}, 2, v{VT1}
        s_lshl_b32 s41, s14, 9
        s_lshl_b32 s26, s29, 8
        s_add_u32 s41, s41, s26
        s_add_u32 s41, s41, s33
        s_and_b32 s27, s17, 1
        s_and_b32 s28, s17, 2
        s_lshl_b32 s28, s28, 1
        s_or_b32 s27, s27, s28
        s_lshl_b32 s28, s29, 1
        s_or_b32 s27, s27, s28
        s_mul_i32 s26, s27, 3072
        v_add_u32 v{VPUB}, s26, v{VW}
        s_lshl_b32 s42, s14, 3
        s_add_u32 s42, s42, s27
        s_mul_i32 s42, s42, {HKS*1024}
        s_mul_i32 s26, s15, 3072
        s_add_u32 s42, s42, s26
        s_add_u32 s42, s42, s31
        v_lshlrev_b32 v{VCS}, 4, v{VT2}
        """)
    late_addr()
    k(f"""
    v_lshrrev_b32 v{TMP+6}, 3, v{VT0}
    v_mul_u32_u24 v{TMP+6}, {XP}, v{TMP+6}
    v_and_b32 v{TMP+7}, 7, v{VT0}
    v_lshl_add_u32 v{TMP+6}, v{TMP+7}, 5, v{TMP+6}
    s_lshl_b32 s46, s37, 3
    s_add_u32 s46, s46, s17
    s_mul_i32 s46, s46, {8*XP}
    s_lshl_b32 s47, s14, 8
    s_add_u32 s46, s46, s47
    s_add_u32 s46, s46, s30
    """)
    if LOCALMAP:
        k(f"""
        s_getreg_b32 s23, hwreg(HW_REG_XCC_ID)
        s_and_b32 s23, s23, 15
        s_add_u32 s23, s23, 1
        s_lshl_b32 s26, s12, 7
        s_add_u32 s56, s56, s26
        s_lshl_b32 s26, s13, 2
        v_mov_b32 v{VID}, s23
        v_mov_b32 v{VID+1}, s26
        v_and_b32 v{VID+2}, 31, v{VT0}
        v_lshlrev_b32 v{VID+2}, 2, v{VID+2}
        """)
    k("s_waitcnt lgkmcnt(0)")
    srd(k, 8, 4, WS_BYTES)
    if M_TOUCH & 1: k(f"buffer_load_dword v{TMP+8}, v{TMP+6}, s[8:11], s46 offen")
    def id_store(tag):
        if LOCALMAP:
            k(f"""
            s_mov_b64 exec, 1
            buffer_store_dword v{VID}, v{VID+1}, s[8:11], s56 offen sc1
            s_mov_b64 exec, -1
            """)
    if M_PRIO:
        k(f"""
        s_cmp_lg_u32 s29, {M_PRIO - 1}
        s_cbranch_scc1 M_NOPRIO
        s_setprio 1
        M_NOPRIO:
        """)
    k("""
    s_cmp_eq_u32 s15, 15
    s_cbranch_scc1 M_STATS
    """)
    def reads(s):
        res = []
        t = s >> 1; hi = (t & 3) >> 1; base = (t & 1) * SLOT
        buf = FR + 28 * (s & 1)
        for tau in range(3):
            r = buf + 16 + 4 * tau
            res.append(f"ds_read_b128 v[{r}:{r+3}], v{WA+hi} offset:{base + (s&1)*12288 + tau*1024}")
        for b in range(4):
            off = base + (s & 1) * 8192
            res.append(f"ds_read_b64_tr_b16 v[{buf+4*b}:{buf+4*b+1}], v{XA+4*hi+b} offset:{off}")
            res.append(f"ds_read_b64_tr_b16 v[{buf+4*b+2}:{buf+4*b+3}], v{XA+4*hi+b} offset:{off+4096}")
        return res
    later = [f"buffer_load_dwordx4 v[{CSR+4*tau}:{CSR+4*tau+3}], v{VCS}, s[8:11], s24 offen offset:{64*tau}" for tau in range(3)]
    later += res_parts
    later += [f"buffer_load_dword v{STV+b}, v{VSTX}, s[8:11], s41 offen offset:{64*b} sc1" for b in range(4)]
    if LOCALMAP: later += [f"buffer_load_dword v{VID+3}, v{VID+2}, s[8:11], s56 offen sc1"]
    n_crit = len(later)
    later += [wd_part(i) for i in range(M_WDM)]
    n_need = len(later)
    later += [wd_part(i) for i in range(M_WDM, 22)]
    vm = []
    def wait_for(tag):
        assert not any(o[1] == tag for o in opq), tag
        idxs = [i for i, x in enumerate(vm) if x == tag]
        if not idxs: return
        idx = max(idxs)
        k(f"s_waitcnt vmcnt({len(vm) - idx - 1})")
        del vm[:idx + 1]
    opq = []
    for u in range(8):
        gp = group_parts(u)
        e0 = max(2*u - 7, 2*u - M_LOOK)
        if M_OLD: e0 = {0: -1, 1: -1, 2: 0, 3: 1}.get(u, 2*u - 6)
        for j in (0, 1, 2): opq.append((gp[j], f"D{2*u}", e0))
        opq.append((gp[3], f"D{2*u}", e0 + 1 if u > (3 if M_OLD else 1) else e0))
        opq.append((gp[4], f"D{2*u+1}", e0 + 1 if u > (3 if M_OLD else 1) else e0))
    for i, p in enumerate(later[:n_need]): opq.append((p, "N" if i < n_crit else "L", -100 if i < n_crit else M_LATE))
    nlater = n_need
    def issue(n, s):
        out = []
        while opq and len(out) < n and opq[0][2] <= s:
            out.append(opq.pop(0))
        return out
    for p, tag, _ in issue(10 if M_OLD else M_PRE, -1):
        k(p); vm.append(tag)
    k("@STAMP 2")
    wait_for("D1" if (M_OLD and not M_FIRST) else "D0")
    k("s_barrier")
    k("@STAMP 3")
    for r in reads(0): k(r)
    EXP = os.environ.get('EXP', '')
    for s in range(16):
        if M_OLD:
            bar = False
            if s == 0 and M_FIRST: wait_for("D1"); bar = True
            if s == 1: wait_for("D3"); bar = True
            elif (s & 1) == 0 and 0 < s < 14: wait_for(f"D{s+3}"); bar = True
            if bar: k("s_barrier")
            k("s_waitcnt lgkmcnt(0)")
        elif M_FINE:
            if s < 15: wait_for(f"D{s+1}")
            k("s_waitcnt lgkmcnt(0)")
            if s < 15: k("s_barrier")
        else:
            if s == 0: wait_for("D1")
            elif s < 15 and (s & 1): wait_for(f"D{s+2}")
            k("s_waitcnt lgkmcnt(0)")
            if s < 15 and (s == 0 or (s & 1)): k("s_barrier")
        if s == 8: k("@STAMP 4")
        if s == M_WDT:
            k(f"""
            s_lshl_b32 s46, s13, 3
            s_add_u32 s46, s46, s17
            s_mul_i32 s46, s46, 6528
            s_add_u32 s46, s46, {WD}
            v_min_u32 v{TMP+6}, 50, v{VT0}
            v_lshlrev_b32 v{TMP+6}, 7, v{TMP+6}
            buffer_load_dword v{TMP+8}, v{TMP+6}, s[8:11], s46 offen
            """)
            vm.append("T")
        if s == 3 and LOCALMAP:
            id_store("m"); vm.append("I")
        fill = reads(s + 1) if s < 15 else []
        mf = []
        buf = FR + 28 * (s & 1)
        for b in range(4):
            for tau in range(3):
                a = ACC + (b * 3 + tau) * 4
                c = "0" if s == 0 else f"v[{a}:{a+3}]"
                mf.append(f"v_mfma_f32_16x16x32_bf16 v[{a}:{a+3}], v[{buf+16+4*tau}:{buf+19+4*tau}], v[{buf+4*b}:{buf+4*b+3}], {c}")
        parts = issue((5 if (s < 2 or s >= 12) else 3) if M_OLD else (M_OPS if s < M_RAMP else (5 if s >= 12 else 3)), s)
        step = 12 // max(len(parts), 1)
        slots = {1 + step * j: p for j, p in enumerate(parts)}
        for i, m in enumerate(mf):
            k(m)
            if i < len(fill): k(fill[i])
            if i in slots:
                k(slots[i][0]); vm.append(slots[i][1])
    assert not opq, len(opq)
    assert nlater >= n_need
    k("@STAMP 5")
    wait_for("N")
    k(f"""
    s_mov_b32 s47, 0
    M_STCHK:
    v_min3_u32 v{TMP}, v{STV}, v{STV+1}, v{STV+2}
    v_min_u32 v{TMP}, v{TMP}, v{STV+3}
    v_cmp_eq_u32 vcc, 0, v{TMP}
    s_cmp_eq_u64 vcc, 0
    s_cbranch_scc1 M_STOK
    s_add_u32 s47, s47, 1
    s_cmp_ge_u32 s47, {SPIN_MAX}
    s_cbranch_scc1 M_STOK
    s_sleep 2
    """)
    for b in range(4): k(f"buffer_load_dword v{STV+b}, v{VSTX}, s[8:11], s41 offen offset:{64*b} sc1")
    k("""
    s_waitcnt vmcnt(0)
    s_branch M_STCHK
    M_STOK:
    @STAMP 6
    """)
    if LOCALMAP:
        k(f"""
        v_cmp_ne_u32 vcc, s23, v{VID+3}
        s_cmp_eq_u64 vcc, 0
        s_cselect_b32 s54, 1, 0
        """)
    PB = FR
    def pub():
        for i in range(3):
            k(f"ds_read_b128 v[{PB+4*i}:{PB+4*i+3}], v{VPUB} offset:{1024*i}")
        if LOCALMAP:
            pub.n += 1
            k(f"""
            s_cmp_eq_u32 s54, 0
            s_cbranch_scc1 M_PG{pub.n}
            """)
            for i in range(3):
                k(f"s_waitcnt lgkmcnt({2-i})")
                k(f"buffer_store_dwordx4 v[{PB+4*i}:{PB+4*i+3}], v{VW}, s[8:11], s42 offen offset:{1024*i} {LOC_POL}")
            k(f"s_branch M_PE{pub.n}\nM_PG{pub.n}:")
        for i in range(3):
            k(f"s_waitcnt lgkmcnt({2-i})")
            k(f"buffer_store_dwordx4 v[{PB+4*i}:{PB+4*i+3}], v{VW}, s[8:11], s42 offen offset:{1024*i} sc1")
        if LOCALMAP: k(f"M_PE{pub.n}:")
    pub.n = 0
    for b in range(4):
        m = MR
        k(f"""
        v_and_b32 v{m+2}, 0xffff0000, v{STV+b}        ; s
        v_lshlrev_b32 v{m}, 16, v{STV+b}              ; m
        v_rcp_f32 v{m+1}, v{m+2}
        v_mul_f32 v{m+1}, s45, v{m+1}
        """)
        for tau in range(3):
            a = ACC + (b * 3 + tau) * 4
            c = CSR + 4 * tau
            k(f"""
            v_pk_fma_f32 v[{a}:{a+1}], v[{m}:{m+1}], v[{c}:{c+1}], v[{a}:{a+1}] op_sel_hi:[0,1,1] neg_lo:[1,0,0] neg_hi:[1,0,0]
            v_pk_fma_f32 v[{a+2}:{a+3}], v[{m}:{m+1}], v[{c+2}:{c+3}], v[{a+2}:{a+3}] op_sel_hi:[0,1,1] neg_lo:[1,0,0] neg_hi:[1,0,0]
            v_pk_mul_f32 v[{a}:{a+1}], v[{a}:{a+1}], v[{m}:{m+1}] op_sel:[0,1] op_sel_hi:[1,1]
            v_exp_f32 v{a}, v{a}
            v_exp_f32 v{a+1}, v{a+1}
            """)
            if tau < M_WDE and nlater < len(later):
                k(later[nlater]); nlater += 1
        for tau in range(3):
            a = ACC + (b * 3 + tau) * 4
            k(f"""
            v_pk_fma_f32 v[{a}:{a+1}], v[{a}:{a+1}], v[{m+2}:{m+3}], v[{m+2}:{m+3}] op_sel_hi:[1,0,0]
            v_rcp_f32 v{a}, v{a}
            v_rcp_f32 v{a+1}, v{a+1}
            """)
        for _ in range(M_WDE - 3):
            if nlater < len(later):
                k(later[nlater]); nlater += 1
        for tau in range(3):
            a = ACC + (b * 3 + tau) * 4
            k(f"""
            v_pk_mul_f32 v[{a}:{a+1}], v[{a}:{a+1}], v[{a+2}:{a+3}]
            v_cvt_pk_bf16_f32 v{a}, v{a}, v{a+1}
            ds_write_b32 v{SA+tau}, v{a} offset:{(b>>1)*6144 + (b&1)*128}
            """)
        if b == 1 and SPLITPUB:
            k("""
            s_waitcnt lgkmcnt(0)
            s_barrier
            s_cmp_lg_u32 s29, 0
            s_cbranch_scc1 M_PUB1
            """)
            pub()
            k.label("M_PUB1")
    k("""
    s_waitcnt lgkmcnt(0)
    s_barrier
    @STAMP 7
    """)
    if SPLITPUB:
        k("""
        s_cmp_eq_u32 s29, 0
        s_cbranch_scc1 M_PUB2
        """)
    pub()
    k.label("M_PUB2")
    rest = later[nlater:]
    if not SENT:
        k(f"""
        s_lshl_b32 s26, s14, 4
        s_add_u32 s26, s26, s15
        s_lshl_b32 s26, s26, 7
        s_add_u32 s26, s26, s34
        v_mov_b32 v{TMP}, 1
        v_mov_b32 v{TMP+1}, 0
        s_waitcnt vmcnt(0)
        s_barrier
        s_cmp_lg_u32 s17, 0
        s_cbranch_scc1 M_NOFLAG
        s_mov_b64 exec, 1
        s_cmp_eq_u32 s54, {1 if LOCALMAP else 77}
        s_cbranch_scc1 M_FLOC
        buffer_store_dword v{TMP}, v{TMP+1}, s[8:11], s26 offen sc1
        s_branch M_FEND
        M_FLOC:
        buffer_store_dword v{TMP}, v{TMP+1}, s[8:11], s26 offen
        M_FEND:
        s_mov_b64 exec, -1
        M_NOFLAG:
        """)
    for p in rest: k(p)
    HA = XA
    k(f"""
    M_SYNC:
    @CODEPF3
    s_mov_b32 s55, 0
    M_SYNC2:
    @STAMP 8
    v_mov_b32 v{TMP+10}, 0
    s_lshl_b32 s26, s36, 2
    s_add_u32 s26, s26, s16
    s_mul_i32 s26, s26, {HKS*1024}
    s_mul_i32 s27, s29, {22*1024}
    s_add_u32 s26, s26, s27
    s_add_u32 s26, s26, s31
    s_lshl_b32 s27, s17, 11               ; m0 part
    s_mul_i32 s28, s29, 0x3000
    v_add_u32 v{HA}, s28, v{VW}
    s_lshl_b32 s28, s29, 12
    s_add_u32 s28, s28, 0x1000
    v_add_u32 v{HA+1}, s28, v{VW}
    v_add_u32 v{HA+2}, 0x10000, v{HA}
    v_add_u32 v{HA+3}, 0x10000, v{HA+1}
    v_add_u32 v{HA+4}, 0x20000, v{HA}
    v_add_u32 v{HA+5}, 0x20000, v{HA+1}
    s_cmp_lg_u32 s17, 1
    s_cbranch_scc1 M_WAITB
    """)
    if SENT:
        k(f"""
        s_mul_i32 s28, s36, {4*HKS*1024}
        s_add_u32 s28, s28, s31
        v_min_u32 v{TMP+4}, 14, v{VT1}
        v_mul_u32_u24 v{TMP+4}, 3072, v{TMP+4}
        v_mul_u32_u24 v{TMP+5}, {HKS*1024}, v{VT2}
        v_add_u32 v{TMP+4}, v{TMP+4}, v{TMP+5}
        s_mov_b32 s47, 0
        M_POLL:
        buffer_load_dword v{TMP+5}, v{TMP+4}, s[8:11], s28 offen offset:3056 sc1
        s_waitcnt vmcnt(0)
        v_cmp_eq_u32 vcc, -1, v{TMP+5}
        s_cmp_eq_u64 vcc, 0
        s_cbranch_scc1 M_WAITB
        s_sleep {SENT_SLEEP}
        s_add_u32 s47, s47, 1
        s_cmp_lt_u32 s47, {SPIN_MAX}
        s_cbranch_scc1 M_POLL
        """)
    else:
        k(f"""
        s_lshr_b32 s28, s36, 1
        s_lshl_b32 s28, s28, 11
        s_add_u32 s28, s28, s34
        v_min_u32 v{TMP+4}, 14, v{VT0}
        v_lshlrev_b32 v{TMP+4}, 7, v{TMP+4}
        s_mov_b32 s47, 0
        M_POLL:
        buffer_load_dword v{TMP+5}, v{TMP+4}, s[8:11], s28 offen sc1
        s_waitcnt vmcnt(0)
        v_cmp_eq_u32 vcc, 0, v{TMP+5}
        s_cmp_eq_u64 vcc, 0
        s_cbranch_scc1 M_WAITB
        s_add_u32 s47, s47, 1
        s_cmp_lt_u32 s47, {SPIN_MAX}
        s_cbranch_scc1 M_POLL
        """)
    k(f"""
    M_WAITB:
    s_lshl_b32 s46, s37, 3
    s_add_u32 s46, s46, s17
    s_mul_i32 s46, s46, 2880
    s_mul_i32 s47, s36, {4*HKS*1024}
    s_add_u32 s46, s46, s47
    s_add_u32 s46, s46, s31
    v_min_u32 v{TMP+6}, 44, v{VT0}
    v_lshlrev_b32 v{TMP+6}, 6, v{TMP+6}
    s_barrier
    @STAMP 9
    """)
    if M_TOUCH & 2: k(f"buffer_load_dword v{TMP+8}, v{TMP+6}, s[8:11], s46 offen")
    def hchunk(c):
        return [f"""
        s_add_u32 m0, s27, {(c % 10) * 16384}
        s_nop 0
        buffer_load_dwordx4 v{VW}, s[8:11], s26 offen {H_LD} lds
        """, f"""
        buffer_load_dwordx4 v{VW}, s[8:11], s26 offen offset:1024 {H_LD} lds
        s_add_u32 s26, s26, 0x800
        """]
    HF = 16
    A2 = 0
    def hreads(c):
        res = []
        for i in range(2):
            for lb in range(4):
                off = (c % 10) * 16384 + (lb & 1) * 2048 + i * 1024
                base = HA + 2 * (off >> 16) + (lb >> 1)
                r = HF + 32 * (c & 1) + (i * 4 + lb) * 4
                res.append(f"ds_read_b128 v[{r}:{r+3}], v{base} offset:{off & 0xffff}")
        return res
    iss = M_PRE2
    for c in range(iss):
        for p in hchunk(c): k(p)
    k(f"s_waitcnt vmcnt({2*(iss-1)})")
    k("s_barrier")
    k("@STAMP 10")
    for r in hreads(0): k(r)
    for c in range(11):
        fill = []
        if c < 10:
            k(f"s_waitcnt vmcnt({2*(iss-(c+2))})")
            k("s_barrier")
        k("s_waitcnt lgkmcnt(0)")
        if c < 10: fill = hreads(c + 1)
        parts = []
        for rep_ in range(2):
            if iss < 11 and (iss < 10 or c >= 1) and iss < c + M_AHEAD2:
                parts += hchunk(iss); iss += 1
        slots = {1 + 2 * j: p for j, p in enumerate(parts)}
        n = 0
        for i in range(2):
            for lb in range(4):
                r = HF + 32 * (c & 1) + (i * 4 + lb) * 4
                a = A2 + 4 * lb
                cc = "0" if (c == 0 and i == 0) else f"v[{a}:{a+3}]"
                k(f"v_mfma_f32_16x16x32_bf16 v[{a}:{a+3}], v[{r}:{r+3}], {wdreg(2*c+i)}, {cc}")
                if SENT and (n & 1) == 0: k(f"v_max3_u32 v{TMP+10}, v{r}, v{r+4}, v{TMP+10}")
                if n < len(fill): k(fill[n])
                if n in slots: k(slots[n])
                n += 1
    k("@STAMP 11")
    XB = 65536
    k(f"""
    s_lshl_b32 s26, s17, 11
    s_add_u32 s26, s26, {XB}
    v_add_u32 v{TMP}, s26, v{VW}
    s_xor_b32 s26, s26, 0x2000
    v_add_u32 v{TMP+1}, s26, v{VW}
    """)
    for j in range(4):
        k(f"v_lshlrev_b32 v{32+2*j}, 16, v{RES+j}")
        k(f"v_and_b32 v{33+2*j}, 0xffff0000, v{RES+j}")
    k(f"""
    ds_write_b128 v{TMP}, v[8:11]
    ds_write_b128 v{TMP}, v[12:15] offset:1024
    """)
    if SENT:
        k(f"""
        v_cmp_eq_u32 vcc, -1, v{TMP+10}
        s_cmp_lg_u64 vcc, 0
        s_cselect_b32 s26, 1, 0
        s_lshl_b32 s27, s17, 2
        s_add_u32 s27, s27, {XB + 16384}
        v_mov_b32 v{TMP+11}, s26
        v_mov_b32 v{TMP+12}, s27
        v_and_b32 v{TMP+13}, 7, v{VT0}
        v_lshlrev_b32 v{TMP+13}, 2, v{TMP+13}
        v_add_u32 v{TMP+13}, {XB + 16384}, v{TMP+13}
        ds_write_b32 v{TMP+12}, v{TMP+11}
        """)
    k(f"""
    s_waitcnt lgkmcnt(0)
    s_barrier
    ds_read_b128 v[8:11], v{TMP+1}
    ds_read_b128 v[12:15], v{TMP+1} offset:1024
    """)
    if SENT:
        k(f"""
        ds_read_b32 v{TMP+11}, v{TMP+13}
        s_waitcnt lgkmcnt(0)
        v_cmp_ne_u32 vcc, 0, v{TMP+11}
        s_cmp_eq_u64 vcc, 0
        s_cbranch_scc1 M_OK
        s_add_u32 s55, s55, 1
        s_cmp_lt_u32 s55, 64
        s_cbranch_scc1 M_SYNC2
        M_OK:
        """)
    k("s_waitcnt lgkmcnt(0)")
    OUT = 16
    for j in range(4):
        y0, y1 = A2 + 2*j, A2 + 2*j + 1
        k(f"""
        v_pk_add_f32 v[{y0}:{y1}], v[{y0}:{y1}], v[{y0+8}:{y1+8}]
        v_cvt_pk_bf16_f32 v{y1}, v{y0}, v{y1}
        v_lshlrev_b32 v{y0}, 16, v{y1}
        v_and_b32 v{y1}, 0xffff0000, v{y1}
        v_pk_add_f32 v[{y0}:{y1}], v[{y0}:{y1}], v[{32+2*j}:{33+2*j}]
        v_cvt_pk_bf16_f32 v{OUT+j}, v{y0}, v{y1}
        """)
    k(f"""
    s_cmp_lg_u32 s35, 0
    s_cbranch_scc1 M_FINAL
    s_add_u32 s40, s39, {X2T}
    buffer_store_dwordx4 v[{OUT}:{OUT+3}], v{VRES}, s[8:11], s40 offen {X2_ST}
    """)
    Q = 48
    for j in range(4):
        k(f"""
        v_lshlrev_b32 v{Q+4*j}, 16, v{OUT+j}
        v_and_b32 v{Q+4*j+2}, 0xffff0000, v{OUT+j}
        v_mul_f32 v{Q+4*j+1}, v{Q+4*j}, v{Q+4*j}
        v_mul_f32 v{Q+4*j+3}, v{Q+4*j+2}, v{Q+4*j+2}
        """)
    for q in range(8):
        k(f"v_add_f32_dpp v{Q+q}, v{Q+q}, v{Q+q} row_ror:8 row_mask:0xf bank_mask:0x3")
        k(f"v_add_f32_dpp v{Q+q}, v{Q+q+8}, v{Q+q+8} row_ror:8 row_mask:0xf bank_mask:0xc")
    for q in range(4):
        k(f"v_add_f32_dpp v{Q+q}, v{Q+q}, v{Q+q} row_shl:4 row_mask:0xf bank_mask:0x5")
        k(f"v_add_f32_dpp v{Q+q}, v{Q+q+4}, v{Q+q+4} row_shr:4 row_mask:0xf bank_mask:0xa")
    for q in range(4):
        k(f"v_add_f32_dpp v{Q+q}, v{Q+q}, v{Q+q} quad_perm:[1,0,3,2] row_mask:0xf bank_mask:0xf")
    for q in range(4):
        k(f"v_add_f32_dpp v{Q+q}, v{Q+q}, v{Q+q} quad_perm:[2,3,0,1] row_mask:0xf bank_mask:0xf")
    SB = 98304
    k(f"""
    v_and_b32 v{TMP}, 3, v{VT1}
    v_cmp_eq_u32 s[48:49], 1, v{TMP}
    v_cmp_eq_u32 s[50:51], 2, v{TMP}
    v_cmp_eq_u32 s[52:53], 3, v{TMP}
    v_lshrrev_b32 v{TMP+1}, 2, v{VT1}
    v_lshlrev_b32 v{TMP+1}, 7, v{TMP+1}
    v_lshl_add_u32 v{TMP+1}, v{VT2}, 4, v{TMP+1}
    v_lshl_add_u32 v{TMP+1}, v{TMP}, 2, v{TMP+1}
    s_lshl_b32 s26, s16, 9
    s_lshl_b32 s27, s29, 6
    s_add_u32 s26, s26, s27
    s_add_u32 s26, s26, {SB}
    v_add_u32 v{TMP+1}, s26, v{TMP+1}
    v_cndmask_b32 v{Q}, v{Q}, v{Q+1}, s[48:49]
    v_cndmask_b32 v{Q}, v{Q}, v{Q+2}, s[50:51]
    v_cndmask_b32 v{Q}, v{Q}, v{Q+3}, s[52:53]
    ds_write_b32 v{TMP+1}, v{Q}
    s_lshl_b32 s26, s17, 8
    s_add_u32 s26, s26, {SB}
    v_lshl_add_u32 v{TMP+2}, v{VT0}, 2, s26
    v_lshrrev_b32 v{TMP+3}, 5, v{VT0}
    v_lshlrev_b32 v{TMP+3}, 12, v{TMP+3}
    v_and_b32 v{TMP+4}, 31, v{VT0}
    v_lshl_add_u32 v{TMP+3}, v{TMP+4}, 2, v{TMP+3}
    s_lshl_b32 s26, s36, 7
    s_lshl_b32 s27, s17, 13
    s_add_u32 s26, s26, s27
    s_add_u32 s26, s26, {ST1}
    s_waitcnt lgkmcnt(0)
    s_barrier
    s_cmp_ge_u32 s17, 2
    s_cbranch_scc1 M_NOAT
    ds_read_b32 v{Q}, v{TMP+2}
    ds_read_b32 v{Q+1}, v{TMP+2} offset:512
    ds_read_b32 v{Q+2}, v{TMP+2} offset:1024
    ds_read_b32 v{Q+3}, v{TMP+2} offset:1536
    s_waitcnt lgkmcnt(0)
    v_add_f32 v{Q}, v{Q}, v{Q+1}
    v_add_f32 v{Q+2}, v{Q+2}, v{Q+3}
    v_add_f32 v{Q}, v{Q}, v{Q+2}
    buffer_atomic_add_f32 v{Q}, v{TMP+3}, s[8:11], s26 offen
    M_NOAT:
    @STAMP 12
    @FLUSH 13
    """)
    if MERGE:
        k(f"""
        s_mov_b32 s62, s2
        s_mov_b32 s63, s17
        s_load_dwordx2 s[6:7], s[0:1], {KA_DSKIP}
        """)
        grid_arrive(k, 0, "a", "s63", "s62", 144)
        k(f"""
        s_lshl_b32 s26, s16, 6
        v_add_u32 v0, s26, v{VT0}
        s_lshl_b32 s2, s62, 1
        s_add_u32 s2, s2, s29                 ; channel
        s_mul_i32 s55, s29, {CONV_LDS}
        s_mov_b32 s30, {X2T}
        s_mov_b32 s31, {ST1}
        s_mov_b32 s32, {X3T}
        s_mov_b32 s54, {3 if MERGE > 1 else 2}
        @KID 4
        @INIT
        """)
        conv_setup(k)
        k(f"""
        s_lshl_b32 s18, s17, 11
        s_add_u32 s18, s18, {CRED}
        s_add_u32 s18, s18, s55
        s_mov_b32 m0, s18
        s_waitcnt lgkmcnt(0)
        s_load_dword s20, s[6:7], s16
        buffer_load_dwordx4 v6, s[8:11], s15 offen lds
        buffer_load_dwordx4 v6, s[8:11], s15 offen offset:1024 lds
        """)
        conv_p3(k, lb="s55")
        k("@STAMP 10\ns_waitcnt vmcnt(0)")
        for e in range(11):
            k(f"ds_read_u16 v{48+e}, v{48+e}")
        conv_expand(k, "v42")
        k("@STAMP 11")
        grid_wait(k, 0, "a", "s63", "s62", 144)
        k("@STAMP 12\n@STAMP 2")
        conv_loads(k, "sc1")
        k("s_waitcnt vmcnt(1)\n@STAMP 3")
        for i in range(4):
            stats_pair(k, 16 + 4*i, 17 + 4*i, 18 + 4*i, 19 + 4*i, 40)
        k("s_waitcnt vmcnt(0)")
        conv_norm(k, "v42")
        k(f"""
        s_lshr_b32 s21, s62, 3
        s_lshl_b32 s21, s21, 3
        s_add_u32 s21, s21, s63
        s_mul_i32 s22, s21, 6144
        s_and_b32 s23, s62, 1
        s_mul_i32 s23, s23, {8*196608}
        s_add_u32 s22, s22, s23
        s_add_u32 s22, s22, {WP}
        v_lshlrev_b32 v38, 7, v5
        buffer_load_dword v150, v38, s[8:11], s22 offen
        s_branch CONV_NOPF
        """)
    else:
        k("s_endpgm")
    k("""
    M_FINAL:
    """)
    TP = 144; TB2 = 98304
    srd(k, 48, 6, L * D * 2)
    k(f"""
    s_lshl_b32 s26, s16, 4
    v_add_u32 v{TMP}, s26, v{VT1}
    v_mul_u32_u24 v{TMP}, {TP}, v{TMP}
    v_lshl_add_u32 v{TMP}, v{VT2}, 4, v{TMP}
    s_lshl_b32 s26, s29, 6
    s_add_u32 s26, s26, {TB2}
    v_add_u32 v{TMP}, s26, v{TMP}
    ds_write_b128 v{TMP}, v[{OUT}:{OUT+3}]
    v_lshrrev_b32 v{TMP+1}, 2, v{VT1}
    v_lshl_add_u32 v{TMP+1}, v{VT2}, 3, v{TMP+1}
    v_mul_u32_u24 v{TMP+1}, {TP}, v{TMP+1}
    v_and_b32 v{TMP+2}, 3, v{VT1}
    v_lshl_add_u32 v{TMP+1}, v{TMP+2}, 3, v{TMP+1}
    s_lshl_b32 s26, s16, 5
    s_mul_i32 s27, s29, {32*TP}
    s_add_u32 s26, s26, s27
    s_add_u32 s26, s26, {TB2}
    v_add_u32 v{TMP+1}, s26, v{TMP+1}
    v_lshlrev_b32 v{TMP+2}, 10, v{VT1}
    v_lshl_add_u32 v{TMP+2}, v{VT2}, 4, v{TMP+2}
    s_lshl_b32 s26, s36, 2
    s_add_u32 s26, s26, s16
    s_lshl_b32 s26, s26, 14
    s_lshl_b32 s27, s37, 7
    s_add_u32 s26, s26, s27
    s_lshl_b32 s27, s29, 6
    s_add_u32 s26, s26, s27
    s_waitcnt lgkmcnt(0)
    s_barrier
    ds_read_b64_tr_b16 v[32:33], v{TMP+1}
    ds_read_b64_tr_b16 v[34:35], v{TMP+1} offset:{4*TP}
    s_waitcnt lgkmcnt(0)
    buffer_store_dwordx4 v[32:35], v{TMP+2}, s[48:51], s26 offen {OUT_ST}
    @STAMP 12
    @FLUSH 13 last
    M_END:
    s_endpgm
    """)
    k(f"""
    M_STATS:
    s_mov_b32 s47, 0
    M_SL1:
    s_mov_b32 m0, s19
    s_add_u32 s19, s19, 0x2000
    buffer_load_dwordx4 v{VDMA}, s[8:11], s18 offen lds
    s_add_u32 s18, s18, 0x2000
    s_mov_b32 m0, s19
    s_add_u32 s19, s19, 0x2000
    buffer_load_dwordx4 v{VDMA}, s[8:11], s18 offen lds
    s_add_u32 s18, s18, 0x2000
    s_add_u32 s47, s47, 1
    s_cmp_lt_u32 s47, 8
    s_cbranch_scc1 M_SL1
    """)
    id_store("s")
    SACC = 0; ONES = 16
    k(f"""
    v_xor_b32 v{TMP+3}, s17, v{TMP+1}
    v_lshl_add_u32 v{XA}, v{TMP+3}, 5, v{TMP+2}
    """)
    for r in range(8): k(f"v_mov_b32 v{SACC+r}, 0")
    for r in range(4): k(f"v_mov_b32 v{ONES+r}, 0x3f803f80")
    k(f"""
    s_mov_b32 s47, 0
    s_waitcnt vmcnt(0)
    s_barrier
    M_SL2:
    """)
    for u in range(8):
        r = FR + 4 * u
        if u == 7: k("s_waitcnt lgkmcnt(12)")
        k(f"ds_read_b64_tr_b16 v[{r}:{r+1}], v{XA} offset:{u*8192}")
        k(f"ds_read_b64_tr_b16 v[{r+2}:{r+3}], v{XA} offset:{u*8192+4096}")
    k(f"v_add_u32 v{XA}, 0x10000, v{XA}")
    for u in range(8):
        r = FR + 4 * u
        k(f"s_waitcnt lgkmcnt({14 - 2*u})")
        k(f"v_mfma_f32_16x16x32_bf16 v[{SACC}:{SACC+3}], v[{r}:{r+3}], v[{r}:{r+3}], v[{SACC}:{SACC+3}]")
        k(f"v_mfma_f32_16x16x32_bf16 v[{SACC+4}:{SACC+7}], v[{ONES}:{ONES+3}], v[{r}:{r+3}], v[{SACC+4}:{SACC+7}]")
    k(f"""
    s_add_u32 s47, s47, 1
    s_cmp_lt_u32 s47, 2
    s_cbranch_scc1 M_SL2
    v_and_b32 v{TMP}, 3, v{VT1}
    v_cmp_eq_u32 s[48:49], 1, v{TMP}
    v_cmp_eq_u32 s[50:51], 2, v{TMP}
    v_cmp_eq_u32 s[52:53], 3, v{TMP}
    v_lshrrev_b32 v{TMP}, 2, v{VT1}
    v_cmp_eq_u32 s[54:55], v{TMP}, v{VT2}
    v_cndmask_b32 v{SACC}, v{SACC}, v{SACC+1}, s[48:49]
    v_cndmask_b32 v{SACC}, v{SACC}, v{SACC+2}, s[50:51]
    v_cndmask_b32 v{SACC+5}, v{SACC}, v{SACC+3}, s[52:53]
    v_mov_b32 v{SACC+12}, v{SACC+4}
    v_mov_b32 v{SACC+13}, v{SACC+5}
    """)
    stats_pair(k, SACC+4, SACC+5, SACC+12, SACC+13, TMP, keep=(SACC+6, SACC+14))
    k(f"""
    v_lshrrev_b32 v{SACC+4}, 16, v{SACC+4}
    v_or_b32 v{SACC+4}, v{SACC+4}, v{SACC+6}
    v_lshlrev_b32 v{VSTX}, 2, v{VT1}
    s_lshl_b32 s41, s14, 9
    s_lshl_b32 s26, s17, 6
    s_add_u32 s41, s41, s26
    s_add_u32 s41, s41, s33
    s_mov_b64 exec, s[54:55]
    buffer_store_dword v{SACC+4}, v{VSTX}, s[8:11], s41 offen sc1
    s_mov_b64 exec, -1
    """)
    if M_STW:
        k(f"""
        s_lshl_b32 s46, s14, 3
        s_add_u32 s46, s46, s17
        s_mul_i32 s46, s46, 11264
        s_add_u32 s46, s46, {WD}
        v_lshlrev_b32 v{TMP+6}, 7, v{VT0}
        buffer_load_dword v{TMP+8}, v{TMP+6}, s[8:11], s46 offen
        s_add_u32 s46, s46, 0x2000
        v_min_u32 v{TMP+6}, {23*128}, v{TMP+6}
        buffer_load_dword v{TMP+8}, v{TMP+6}, s[8:11], s46 offen
        """)
    for p in res_parts: k(p)
    for i in range(22): k(wd_part(i))
    k(f"""
    s_barrier
    s_branch M_SYNC
    .p2align 8
    mlpb_kernel:
    s_mov_b32 s30, {X3T}
    s_mov_b32 s31, {HB1}
    s_mov_b32 s33, {STX + 0x2000}
    s_mov_b32 s34, {FLG + 0x8000}
    s_mov_b32 s35, 1
    s_mov_b32 s56, {IDT + 0x400}
    @KID 5
    s_branch M_BODY
    TEXT_END:
    """)
    info = dict(vgpr=NV + 88, sgpr=66, accum=NV, grid=256, block=512, lds=MLP_LDS)
    return k, info

DIAG_KN = {2: ("mlpa", 13), 5: ("mlpb", 13), 3: ("wroles", 2), 6: ("none", 1)}
def emit(path, launches=None):
    kp, ip = gen_prep()
    kc, ic = gen_conv()
    km, im = gen_mlp()
    ic1 = dict(ic); ic1["grid"] = B_E
    infos = {"prep_kernel": ip, "conv1_kernel": ic1, "conv2_kernel": ic, "mlpa_kernel": im, "mlpb_kernel": im}
    kf, if1 = gen_f1()
    if FUSE1:
        infos = {"f1_kernel": if1, "conv2_kernel": ic, "mlpa_kernel": im, "mlpb_kernel": im}
        launches = launches or (["f1_kernel", "mlpa_kernel", "mlpb_kernel"] if MERGE == 1 else ["f1_kernel", "mlpa_kernel"] if MERGE == 2 else ["f1_kernel", "mlpa_kernel", "conv2_kernel", "mlpb_kernel"])
    if os.environ.get("ORDER"): launches = [x + "_kernel" for x in os.environ["ORDER"].split(",")]
    order = launches or ["prep_kernel", "conv1_kernel", "mlpa_kernel", "conv2_kernel", "mlpb_kernel"]
    hdr = open("cdna_kernels/" + NAME + ".s.ref").read().split("; Override launch")[0]
    out = [hdr.rstrip("\n")]
    for n in order:
        i = infos[n]
        out.append(f"; @launch kernel={n} grid=({i['grid']},1,1) block=({i['block']},1,1) lds={i['lds']}")
    out.append('.amdgcn_target "amdgcn-amd-amdhsa--gfx950"\n.text')
    for n in infos:
        out.append(f".globl {n}\n.type {n},@function")
    if FUSE1: out.append(".p2align 8\n" + kf.text())
    out.append(("" if FUSE1 else ".p2align 8\nprep_kernel:\n") + kp.text().replace("P_NOPF", "Q_NOPF"))
    for kk in (kc, km):
        out.append(".p2align 8\n" + kk.text())
    for n, i in infos.items():
        out.append(descriptor(n, i["vgpr"], 102 if DIAG else i["sgpr"], i["accum"]))
    open(path, "w").write("\n".join(out))

if __name__ == "__main__":
    emit(sys.argv[1] if len(sys.argv) > 1 else "cdna_kernels/" + NAME + ".s")
```

```python
import sys, struct, re, os
from asmlib import *

NAME = "interleave_layers__ssm_conv_s4d__glu_gated_glu__prompt"
KA_U, KA_LOGA, KA_AIM, KA_CRE, KA_CIM, KA_LOGDT, KA_DSKIP, KA_BX, KA_WG, KA_WU, KA_WD, KA_OUT, KA_DBG, KA_WS = [8 * i for i in range(14)]
BASE = int(os.environ.get('BASE', '0'), 0)
REUSE = int(os.environ.get('REUSE', '1'))
ST0, ST1, CSUM = BASE + 0x0000000, BASE + 0x0004000, BASE + 0x0008000
ZR = BASE + 0x0010000; STX = ZR; FLG = ZR + 0x10000
GFB = BASE + 0x0040000
GFN = int(os.environ.get('GFN', '32'))
KP = BASE + 0x0080000; KCS = 4160; KP_STRIDE = 1536
WP = BASE + 0x0180000
WD = BASE + 0x0480000
XT0 = BASE + 0x0600000
X1T = BASE + 0x0840000
HB = BASE + 0x0A40000
if REUSE:
    X2T, X3T, HB1 = XT0, X1T, HB
else:
    X2T, X3T, HB1 = BASE + 0x1000000, BASE + 0x1240000, BASE + 0x1440000
WS_BYTES = 0x10000000
L, D, F, NST = 2048, 512, 1376, 128
NKS2 = 44
HKS = 45

import os
XP = int(os.environ.get('XP', '4352'))
PREP_W_POL = os.environ.get('PREP_W_POL', 'sc1')
PREP_K_POL = os.environ.get('PREP_K_POL', '')
PREP_X_POL = os.environ.get('PREP_X_POL', '')
LATE_PRIO = int(os.environ.get('LATE_PRIO', '0'))
PREP_PRIO = int(os.environ.get('PREP_PRIO', '0'))
CONV_ST = os.environ.get('CONV_ST', 'sc1')
OUT_ST = os.environ.get('OUT_ST', '')
X2_ST = os.environ.get('X2_ST', 'sc1')
F1_SLEEP = int(os.environ.get('F1_SLEEP', '2'))
CODEPF_BASE = int(os.environ.get('CODEPF_BASE', '760' if int(os.environ.get('FUSE1', '1')) else '0'))
CPFR = 142 if int(os.environ.get('FUSE1', '1')) else 94
SENT = int(os.environ.get('SENT', '0'))
SPLITPUB = int(os.environ.get('SPLITPUB', '1'))
POISON_POL = os.environ.get('POISON_POL', 'sc1')
SENT_SLEEP = int(os.environ.get('SENT_SLEEP', '2'))
WTOUCH = int(os.environ.get('WTOUCH', '0'))
CODEPF3 = int(os.environ.get('CODEPF3', '0'))
CODEPF2 = int(os.environ.get('CODEPF2', '1'))
TLBPF = int(os.environ.get('TLBPF', '0'))
TLBPF_BASE = int(os.environ.get('TLBPF_BASE', '1216'))
CODEPF = int(os.environ.get('CODEPF', '1'))
DIAG = int(os.environ.get("DIAG", "0"))
DIAG_OFF = 0x4000000
_Kern = Kern
class Kern(_Kern):
    def __call__(self, s):
        for l in s.strip("\n").split("\n"):
            t = l.strip()
            if t.startswith("@GFLOAD"):
                super().__call__(f"s_and_b32 s26, s2, {GFN-1}\ns_lshl_b32 s26, s26, 7\ns_add_u32 s26, s26, {GFB}\nv_mov_b32 v43, s26\nglobal_load_dword v42, v43, s[4:5] sc1")
                continue
            if t.startswith("@WTOUCH"):
                if WTOUCH:
                    super().__call__(f"""
                    s_mul_i32 s15, s3, 5504
                    v_min_u32 v90, 85, v0
                    v_lshl_add_u32 v90, v90, 6, s15
                    global_load_dword v91, v90, s[16:17]
                    global_load_dword v92, v90, s[18:19]
                    global_load_dword v93, v90, s[20:21]
                    """)
                continue
            if t.startswith("@CODEPF3"):
                if CODEPF3:
                    super().__call__(f"""
                    s_cmp_ge_u32 s2, 8
                    s_cbranch_scc1 M_NOPF
                    s_cmp_lt_u32 s17, 2
                    s_cbranch_scc1 M_NOPF
                    s_getpc_b64 s[26:27]
                    M_PFPC:
                    s_sub_u32 s26, s26, M_PFPC-conv1_kernel
                    s_subb_u32 s27, s27, 0
                    s_and_b32 s28, s17, 1
                    s_lshl_b32 s28, s28, 12
                    v_lshl_add_u32 v163, v136, 6, s28
                    global_load_dword v163, v163, s[26:27]
                    M_NOPF:
                    """)
                continue
            if t.startswith("@CNTLOAD"):
                super().__call__("global_load_dword v59, v2, s[28:29] sc1")
                continue
            if t.startswith("@CODEPF"):
                if CODEPF:
                    super().__call__(f"""
                    s_sub_u32 s3, s2, {CODEPF_BASE}
                    s_cmp_ge_u32 s3, 8
                    s_cbranch_scc1 P_NOPF
                    s_getpc_b64 s[6:7]
                    P_NOPF_PC:
                    v_lshlrev_b32 v1, 6, v0
                    global_load_dword v{CPFR}, v1, s[6:7]
                    v_add_u32 v1, 0x4000, v1
                    v_min_u32 v1, TEXT_END-P_NOPF_PC-4, v1
                    global_load_dword v{CPFR+1}, v1, s[6:7]
                    P_NOPF:
                    """)
                if TLBPF:
                    super().__call__(f"""
                    s_sub_u32 s3, s2, {TLBPF_BASE}
                    s_cmp_ge_u32 s3, 8
                    s_cbranch_scc1 P_NOPF2
                    s_load_dwordx2 s[6:7], s[0:1], {KA_OUT}
                    v_lshlrev_b32 v1, 18, v0
                    v_lshlrev_b32 v2, 13, v0
                    s_waitcnt lgkmcnt(0)
                    global_load_dword v93, v1, s[4:5]
                    global_load_dword v92, v2, s[6:7]
                    P_NOPF2:
                    """)
                continue
            if t.startswith("@"):
                if not DIAG: continue
                p = t.split()
                if p[0] == "@KID":
                    super().__call__(f"s_mov_b32 s59, {DIAG_OFF + int(p[1]) * 0x80000}\ns_mov_b32 s57, {3 if int(p[1]) in (2, 5) else 2}")
                elif p[0] == "@INIT":
                    super().__call__("v_readfirstlane_b32 s58, v0\ns_memrealtime s[64:65]\ns_memtime s[66:67]")
                elif p[0] == "@STAMP":
                    i = int(p[1]); super().__call__(f"s_memtime s[{64+2*i}:{65+2*i}]")
                elif p[0] == "@FLUSH":
                    n = int(p[1])
                    super().__call__(f"""
                    s_waitcnt vmcnt(0)
                    s_memtime s[{64+2*n}:{65+2*n}]
                    s_memrealtime s[{66+2*n}:{67+2*n}]
                    s_waitcnt lgkmcnt(0)
                    s_mov_b64 exec, -1
                    s_lshr_b32 s58, s58, 6
                    s_lshl_b32 s61, s2, s57
                    s_add_u32 s60, s58, s61
                    s_lshl_b32 s60, s60, 6
                    s_add_u32 s60, s60, s59
                    v_mov_b32 v1, s60
                    """)
                    for i in range(n + 2):
                        super().__call__(f"v_mov_b32 v2, s{64+2*i}\nglobal_store_dword v1, v2, s[4:5] offset:{4*i}")
                    super().__call__("s_getreg_b32 s61, hwreg(HW_REG_XCC_ID)\nv_mov_b32 v2, s61\nglobal_store_dword v1, v2, s[4:5] offset:60")
                    if DIAG == 2 and len(p) > 2:
                        lab = f"DG{len(self.lines)}"
                        txt = f"s_or_b32 s60, s2, s58\ns_cmp_lg_u32 s60, 0\ns_cbranch_scc1 {lab}\ns_load_dwordx2 s[62:63], s[0:1], {KA_DBG}\ns_waitcnt vmcnt(0) lgkmcnt(0)\n"
                        j = 0
                        for kid, nn in ((0, 6), (1, 13), (2, 13), (4, 13), (5, 13)):
                            for slot in (0, nn + 1):
                                txt += f"v_mov_b32 v1, {DIAG_OFF + kid * 0x80000 + 4 * slot}\nglobal_load_dword v2, v1, s[4:5] sc1\nv_mov_b32 v3, {4*j}\ns_waitcnt vmcnt(0)\nglobal_store_dword v3, v2, s[62:63]\n"
                                j += 1
                        for kid, slot in ((2, 1), (2, 3), (2, 5), (2, 9), (1, 1), (1, 5)):
                            txt += f"v_mov_b32 v1, {DIAG_OFF + kid * 0x80000 + 4 * slot}\nglobal_load_dword v2, v1, s[4:5] sc1\nv_mov_b32 v3, {4*j}\ns_waitcnt vmcnt(0)\nglobal_store_dword v3, v2, s[62:63]\n"
                            j += 1
                        super().__call__(txt + f"{lab}:")
                continue
            super().__call__(l)

def f2u(x): return struct.unpack("<I", struct.pack("<f", x))[0]
def fl(x): return "0x%08x" % f2u(x)
LOG2E = 1.4426950408889634
L2E_HI = struct.unpack("<f", struct.pack("<f", LOG2E))[0]
L2E_LO = LOG2E - L2E_HI
LN2 = 0.6931471805599453

def srd(k, s, base, nbytes):
    k(f"""
    s_mov_b32 s{s}, s{base}
    s_and_b32 s{s+1}, s{base+1}, 0xffff
    s_mov_b32 s{s+2}, {nbytes:#x}
    s_mov_b32 s{s+3}, 0x20000
    """)

def rnd_bf16(k, dst, a, b=None):
    k(f"v_cvt_pk_bf16_f32 v{dst}, v{a}, v{b if b is not None else a}")

def exp_acc(k, dst, x, t0, t1):
    k(f"""
    v_mul_f32 v{t0}, s40, v{x}
    v_fma_f32 v{t1}, s40, v{x}, -v{t0}
    v_fma_f32 v{t1}, s41, v{x}, v{t1}
    v_exp_f32 v{dst}, v{t0}
    v_mul_f32 v{t1}, s42, v{t1}
    v_fma_f32 v{dst}, v{dst}, v{t1}, v{dst}
    """)

N_K, N_T, N_W, N_D, N_C = 512, 256, 240, 176, 90
FUSE1 = int(os.environ.get('FUSE1', '1'))
MERGE = int(os.environ.get('MERGE', '0'))
UEARLY = int(os.environ.get('UEARLY', '0'))
C_SLEEP = int(os.environ.get('C_SLEEP', '0'))
C_WAITN = int(os.environ.get('C_WAITN', '1'))
F1_LD = os.environ.get('F1_LD', 'sc1')
F1_POLL = os.environ.get('F1_POLL', 'sc1')
WINC = os.environ.get('WINC', 'X')
_sz = {"C": N_C, "W": N_W, "D": N_D, "T": N_T}
B_K = 0
_pos = N_K; PREP_ROLES = []; _base = {}
for r in "CWTD":
    if r not in WINC:
        _base[r] = _pos; _pos += _sz[r]; PREP_ROLES.append((r, _pos))
PREP_WGS = _pos
_pos = 512; CONV_ROLES = []
for r in "CWD":
    if r in WINC:
        _base[r] = _pos; _pos += _sz[r]; CONV_ROLES.append((r, _pos))
B_E = _pos
B_C, B_W, B_T, B_D = _base["C"], _base["W"], _base["T"], _base["D"]
if FUSE1: B_T = 0; B_C = 0
PREP_GROUPS = [("prep.K", 0, N_K, 6)] + [("prep." + r, _base[r], e, 2) for r, e in PREP_ROLES]
if FUSE1: PREP_GROUPS = [("f1.TC", 0, N_C, 6), ("f1.T", N_C, N_T, 6)]
_lab = {"C": "P_C", "W": "P_W", "T": "P_TR", "D": "P_D"}
PREP_LDS = 18432
CSU = 4576
KL = 2 * CSU
CRED = KL + 16640
CONV_LDS = CRED + 24576
CPF = int(os.environ.get('CPF', '1'))
CPF_STRIDE = int(os.environ.get('CPF_STRIDE', '128'))
LOCALMAP0 = int(os.environ.get('LOCALMAP', '0'))
PFQ = int(os.environ.get('PFQ', '6144'))
SPIN_MAX = 1 << 20

class Remap:
    def __init__(self, k, voff, smap): self.k = k; self.voff = voff; self.smap = smap
    def __call__(self, t):
        def rv(m):
            if m.group(1): return f"v[{int(m.group(1))+self.voff}:{int(m.group(2))+self.voff}]"
            n = int(m.group(3)); return "v0" if n == 0 else f"v{n+self.voff}"
        t = re.sub(r"\bv\[(\d+):(\d+)\]|\bv(\d+)\b", rv, t)
        def rs(m):
            if m.group(1):
                a = int(m.group(1)); b = int(m.group(2))
                if a in self.smap: return f"s[{self.smap[a]}:{self.smap[a]+b-a}]"
                return m.group(0)
            n = int(m.group(3)); return f"s{self.smap.get(n, n)}"
        t = re.sub(r"\bs\[(\d+):(\d+)\]|\bs(\d+)\b", rs, t)
        self.k(t)
    def label(self, l): self.k.label(l)

class NoPk:
    def __init__(self, k): self.k = k
    def __call__(self, t):
        def f(m):
            d, a, b = int(m.group(1)), int(m.group(2)), int(m.group(3))
            return f"v_add_f32 v{d}, v{a}, v{b}\nv_add_f32 v{d+1}, v{a+1}, v{b+1}"
        self.k(re.sub(r"v_pk_add_f32 v\[(\d+):\d+\], v\[(\d+):\d+\], v\[(\d+):\d+\]", f, t))
    def label(self, l): self.k.label(l)
CONV_NOPK = int(os.environ.get('CONV_NOPK', '1'))

class UnitS:
    MAP = {12: 21, 13: 22, 14: 23, 15: 27, 16: 30, 17: 39, 18: 46, 19: 47, 21: 55, 3: 56}
    def __init__(self, k): self.k = k
    def __call__(self, t):
        self.k(re.sub(r"\bs(\d+)\b", lambda m: f"s{self.MAP.get(int(m.group(1)), int(m.group(1)))}", t))

class Remap2:
    def __init__(self, k, vmap): self.k = k; self.vmap = vmap
    def __call__(self, t):
        t = re.sub(r"\bv(\d+)\b", lambda m: f"v{self.vmap.get(int(m.group(1)), int(m.group(1)))}", t)
        self.k(t)

def conv_setup(k):
    k(f"""
    v_readfirstlane_b32 s17, v0
    s_mov_b32 s43, {fl(1.0/512)}
    s_mov_b32 s44, {fl(1e-5)}
    s_mov_b32 s45, {fl(1e-5)}
    s_mov_b32 s46, {fl(1.0/512)}
    s_mov_b32 s47, {fl(1.0/512)}
    s_lshr_b32 s17, s17, 6                ; pi
    s_mul_i32 s12, s2, {XP}
    s_add_u32 s13, s12, s30
    s_lshl_b32 s14, s2, 8
    s_add_u32 s14, s14, s32               ; out: d*256
    s_mul_i32 s15, s2, {KP_STRIDE}
    s_add_u32 s15, s15, {KP}
    s_lshr_b32 s16, s2, 1
    s_lshl_b32 s16, s16, 2
    v_lshlrev_b32 v1, 4, v0               ; tid*16
    v_and_b32 v3, 15, v0                  ; c / r
    v_bfe_u32 v4, v0, 4, 2                ; g
    v_and_b32 v5, 63, v0
    v_lshlrev_b32 v6, 4, v5               ; lane*16
    s_and_b32 s21, s2, 7
    v_bfe_u32 v2, v0, 1, 3
    v_xor_b32 v2, s21, v2
    v_lshlrev_b32 v2, 5, v2
    v_lshrrev_b32 v8, 4, v0
    v_lshl_add_u32 v2, v8, 17, v2
    v_and_b32 v8, 1, v0
    v_lshl_add_u32 v2, v8, 4, v2
    """)

def conv_loads(k, pol=""):
    k(f"""
    buffer_load_dwordx4 v[16:19], v1, s[8:11], s31 offen {pol}
    s_add_u32 s31, s31, 0x1000
    buffer_load_dwordx4 v[20:23], v1, s[8:11], s31 offen {pol}
    s_add_u32 s31, s31, 0x1000
    buffer_load_dwordx4 v[24:27], v1, s[8:11], s31 offen {pol}
    s_add_u32 s31, s31, 0x1000
    buffer_load_dwordx4 v[28:31], v1, s[8:11], s31 offen {pol}
    buffer_load_dwordx4 v[12:15], v1, s[8:11], s13 offen {pol}
    """)

def conv_p3(k, kzero=True, lb=None):
    k(f"""
    v_mov_b32 v36, 0
    v_mov_b32 v37, 0
    v_mov_b32 v38, 0
    v_mov_b32 v39, 0
    """)
    if kzero: k(f"""
    v_bfe_u32 v9, v0, 2, 2
    v_mul_u32_u24 v9, {KCS}, v9
    v_and_b32 v10, 3, v0
    v_min_u32 v10, 2, v10
    v_lshl_add_u32 v9, v10, 4, v9
    {f'v_add_u32 v9, {lb}, v9' if lb else ''}
    ds_write_b128 v9, v[36:39] offset:{KL}
    """)
    k(f"""
    v_lshlrev_b32 v40, 3, v0
    s_sub_u32 s19, s18, {2 * (0x4300 - 128)}
    """)
    for e in range(11):
        k(f"v_add_u32 v{48+e}, {e-3}, v40")
        if e < 3: k(f"v_max_i32 v{48+e}, 0, v{48+e}")
        k(f"v_cvt_f32_u32 v{60+e}, v{48+e}")
    for e in range(0, 11, 2):
        k(f"v_cvt_pk_bf16_f32 v{72+e//2}, v{60+e}, v{min(61+e, 70)}")
    for e in range(11):
        src = 72 + e // 2
        if e & 1: k(f"v_lshrrev_b32 v{60+e}, 16, v{src}")
        else: k(f"v_and_b32 v{60+e}, 0xffff, v{src}")
        k(f"v_lshl_add_u32 v{60+e}, v{60+e}, 1, s19")
        k(f"v_lshl_add_u32 v{48+e}, v{48+e}, 1, s18")
    k("v_cmp_gt_u32 s[24:25], 17, v0")
    for e in range(11):
        k(f"v_cndmask_b32 v{48+e}, v{60+e}, v{48+e}, s[24:25]")
    k(f"""
    s_and_b32 s21, s17, 1
    s_sub_u32 s22, 56, s21
    s_mul_i32 s21, s21, {CSU}
    v_min_u32 v9, s22, v5
    v_lshl_add_u32 v9, v9, 3, s21
    {f'v_add_u32 v9, {lb}, v9' if lb else ''}
    ds_write_b64 v9, v[36:37]
    v_and_b32 v9, 1, v3
    v_mul_u32_u24 v9, {CSU}, v9
    v_lshrrev_b32 v10, 1, v3
    v_lshlrev_b32 v11, 2, v10
    v_sub_u32 v11, v11, v4
    s_lshl_b32 s21, s17, 2
    s_sub_u32 s21, 15, s21
    v_add_u32 v11, s21, v11
    v_lshl_add_u32 v9, v11, 4, v9         ; v9 = u addr
    v_and_b32 v7, 3, v3
    v_mul_u32_u24 v7, {KCS}, v7
    v_lshrrev_b32 v8, 2, v3
    v_add_u32 v8, v8, v4
    v_lshl_add_u32 v7, v8, 4, v7
    s_lshl_b32 s21, s17, 6
    s_add_u32 s21, s21, {KL}
    v_add_u32 v7, s21, v7                 ; v7 = K addr
    v_xor_b32 v8, v4, v10
    v_and_b32 v8, 3, v8
    v_lshlrev_b32 v8, 1, v8
    v_lshl_add_u32 v8, v10, 3, v8
    v_and_b32 v11, 1, v3
    v_add_u32 v8, v8, v11
    s_lshl_b32 s21, s17, 11
    v_lshl_add_u32 v10, v8, 4, s21
    v_bfe_u32 v8, v0, 2, 3
    v_xor_b32 v11, v8, v0
    v_and_b32 v11, 3, v11
    v_lshlrev_b32 v11, 5, v11
    v_lshl_add_u32 v11, v8, 7, v11
    v_bfe_u32 v8, v0, 5, 1
    v_lshl_add_u32 v11, v8, 10, v11
    s_lshl_b32 s21, s17, 13
    s_add_u32 s21, s21, {CRED}
    s_cmp_eq_u32 s17, 3
    s_cselect_b32 s21, {KL}, s21
    v_add_u32 v11, s21, v11
    """)
    if lb:
        for r in (7, 9, 10, 11): k(f"v_add_u32 v{r}, {lb}, v{r}")
        k(f"v_add_u32 v42, {lb}, v1")

def conv_expand(k, a="v1"):
    k("""
    v_cmp_eq_u32 vcc, 0, v0
    s_waitcnt lgkmcnt(0)
    v_cndmask_b32 v48, v48, v36, vcc
    v_cndmask_b32 v49, v49, v36, vcc
    v_cndmask_b32 v50, v50, v36, vcc
    """)
    for sft in range(4):
        for j in range(4):
            k(f"v_lshl_or_b32 v{64+4*sft+j}, v{48+sft+6-2*j}, 16, v{48+sft+7-2*j}")
        k(f"ds_write_b128 {a}, v[{64+4*sft}:{67+4*sft}] offset:{KL + sft*KCS + 48}")

def conv_norm(k, a="v1"):
    for j in range(4):
        k(f"""
        v_lshlrev_b32 v40, 16, v{12+j}
        v_and_b32 v41, 0xffff0000, v{12+j}
        v_sub_f32 v40, v40, v{16+4*j}
        v_sub_f32 v41, v41, v{18+4*j}
        v_cvt_pk_bf16_f32 v41, v40, v41
        v_lshlrev_b32 v40, 16, v41
        v_and_b32 v41, 0xffff0000, v41
        v_mul_f32 v40, v40, v{17+4*j}
        v_mul_f32 v41, v41, v{19+4*j}
        v_cvt_pk_bf16_f32 v{32+j}, v40, v41
        """)
    k(f"""
    ds_write_b128 {a}, v[32:35] offset:{CSU + 16*28}
    ds_write2_b64 {a}, v[32:33], v[34:35] offset0:57 offset1:58
    """)

BARB = ZR + 0x8000
def grid_arrive(k, b, tag, wave_sgpr, wg_sgpr, t0):
    k(f"""
    s_waitcnt vmcnt(0)
    s_barrier
    s_cmp_lg_u32 {wave_sgpr}, 7
    s_cbranch_scc1 GA_{tag}
    s_and_b32 s26, {wg_sgpr}, 15
    s_lshl_b32 s26, s26, 7
    s_add_u32 s26, s26, {BARB + b * 4096}
    v_mov_b32 v{t0}, 1
    v_mov_b32 v{t0+1}, 0
    v_mbcnt_lo_u32_b32 v{t0+2}, -1, 0
    v_lshlrev_b32 v{t0+2}, 7, v{t0+2}
    s_mov_b64 exec, 1
    buffer_atomic_add v{t0}, v{t0+1}, s[8:11], s26 offen sc0 sc1
    s_waitcnt vmcnt(0)
    v_readfirstlane_b32 s27, v{t0}
    s_mov_b64 exec, -1
    s_cmp_lg_u32 s27, 15
    s_cbranch_scc1 GA_{tag}
    v_mov_b32 v{t0}, 1
    s_mov_b32 s26, {BARB + b * 4096 + 2048}
    s_mov_b64 exec, 0xffff
    buffer_atomic_add v{t0}, v{t0+2}, s[8:11], s26 offen sc1
    s_mov_b64 exec, -1
    GA_{tag}:
    """)
def grid_wait(k, b, tag, wave_sgpr, wg_sgpr, t0, pollwave=3):
    k(f"""
    s_cmp_lg_u32 {wave_sgpr}, {pollwave}
    s_cbranch_scc1 GW_{tag}
    s_lshr_b32 s26, {wg_sgpr}, 4
    s_lshl_b32 s26, s26, 7
    s_add_u32 s26, s26, {BARB + b * 4096 + 2048}
    v_mov_b32 v{t0+1}, 0
    s_mov_b32 s27, 0
    GP_{tag}:
    buffer_load_dword v{t0}, v{t0+1}, s[8:11], s26 offen sc1
    s_waitcnt vmcnt(0)
    v_readfirstlane_b32 s28, v{t0}
    s_cmp_ge_u32 s28, 16
    s_cbranch_scc1 GW_{tag}
    s_sleep {F1_SLEEP}
    s_add_u32 s27, s27, 1
    s_cmp_lt_u32 s27, {SPIN_MAX >> 2}
    s_cbranch_scc1 GP_{tag}
    GW_{tag}:
    s_waitcnt lgkmcnt(0)
    s_barrier
    """)

def gen_prep():
    kreal = Kern("prep_kernel"); knull = Kern("null")
    k = knull if FUSE1 else kreal
    k(f"""
    @KID 0
    @INIT
    s_load_dwordx2 s[4:5], s[0:1], {KA_WS}
    @CODEPF
    s_sub_u32 s26, s2, {B_K}
    s_cmp_lt_u32 s26, {N_K}
    s_cbranch_scc1 P_KGEN
    """)
    for r, e in PREP_ROLES: k(f"s_cmp_lt_u32 s2, {e}\ns_cbranch_scc1 {_lab[r]}")
    k(f"""
    s_endpgm
    P_WROLES:
    @KID 3
    @INIT
    s_load_dwordx2 s[4:5], s[0:1], {KA_WS}
    """)
    for r, e in CONV_ROLES: k(f"s_cmp_lt_u32 s2, {e}\ns_cbranch_scc1 {_lab[r]}")
    k("s_endpgm")
    k.label("P_KGEN")
    TB = 16384
    k(f"""
    s_load_dwordx4 s[8:11], s[0:1], {KA_LOGA}
    s_load_dwordx4 s[12:15], s[0:1], {KA_CRE}
    s_load_dwordx2 s[16:17], s[0:1], {KA_LOGDT}
    s_mov_b32 s40, {fl(L2E_HI)}
    s_mov_b32 s41, {fl(L2E_LO)}
    s_mov_b32 s42, {fl(LN2)}
    v_lshrrev_b32 v1, 1, v0
    v_and_b32 v1, 0x60, v1
    v_and_or_b32 v1, v0, 31, v1           ; n = 32 w + (lane & 31)
    s_lshl_b32 s3, s26, 8
    v_lshl_add_u32 v2, v1, 1, s3
    s_lshl_b32 s18, s26, 1
    v_mov_b32 v3, s18
    v_readfirstlane_b32 s19, v0
    s_lshr_b32 s19, s19, 6                ; wave
    s_waitcnt lgkmcnt(0)
    global_load_ushort v4, v2, s[8:9]
    global_load_ushort v8, v3, s[16:17]
    global_load_ushort v5, v2, s[10:11]
    global_load_ushort v6, v2, s[12:13]
    global_load_ushort v7, v2, s[14:15]
    v_and_b32 v20, 15, v0                 ; i / j
    v_bfe_u32 v21, v0, 4, 2               ; g
    ; hi0 = 128*(i>>3) + (i&7)
    v_lshrrev_b32 v23, 3, v20
    v_and_b32 v24, 7, v20
    v_lshl_add_u32 v23, v23, 7, v24
    v_cvt_f32_u32 v30, v23
    ; hi1 = (g''<2 ? 256+2g'' : 256*g'') + 128*((i>>1)&1) + 4*(i&1)
    v_lshrrev_b32 v23, 2, v20
    v_lshlrev_b32 v24, 1, v23
    v_add_u32 v24, 0x100, v24
    v_lshlrev_b32 v25, 8, v23
    v_cmp_gt_u32 vcc, 2, v23
    v_cndmask_b32 v24, v25, v24, vcc
    v_bfe_u32 v25, v20, 1, 1
    v_lshl_add_u32 v24, v25, 7, v24
    v_and_b32 v25, 1, v20
    v_lshl_add_u32 v24, v25, 2, v24
    v_cvt_f32_u32 v31, v24
    v_lshlrev_b32 v23, 7, v20
    v_add_u32 v23, 0x400, v23
    v_cvt_f32_u32 v32, v23                ; hi2
    v_lshlrev_b32 v23, 3, v20
    v_cvt_f32_u32 v33, v23                ; lo
    s_lshl_b32 s20, s19, 9
    v_lshl_add_u32 v34, v21, 6, s20
    v_lshrrev_b32 v23, 1, v21
    v_and_b32 v24, 1, v21
    v_lshlrev_b32 v24, 2, v24
    v_lshl_add_u32 v35, v23, 7, v24
    v_lshl_add_u32 v35, v20, 3, v35
    v_mov_b32 v36, 1
    v_mov_b32 v37, 2
    s_cmp_eq_u32 s19, 0
    s_cbranch_scc1 P_KA
    v_lshl_add_u32 v35, v21, 6, v20
    v_add_u32 v35, 0x200, v35
    v_mov_b32 v36, 16
    v_mov_b32 v37, 32
    s_cmp_lg_u32 s19, 1
    s_cbranch_scc1 P_KA
    v_lshl_add_u32 v23, v20, 2, v21
    v_add_u32 v23, 0x100, v23             ; seg1: 256 + g' + 4j ; o1=2 o2=64
    v_lshlrev_b32 v24, 6, v21
    v_lshl_add_u32 v24, v20, 1, v24
    v_add_u32 v24, 0x100, v24             ; seg2: 384 + 64(g'-2) + 2j ; o1=1 o2=32
    v_cmp_gt_u32 vcc, 2, v21
    v_cndmask_b32 v35, v24, v23, vcc
    v_cndmask_b32 v36, 1, 2, vcc
    v_cndmask_b32 v37, 32, 64, vcc
    P_KA:
    v_add_u32 v38, v36, v37
    v_add_lshl_u32 v36, v36, v35, 1
    v_add_lshl_u32 v37, v37, v35, 1
    v_add_lshl_u32 v38, v38, v35, 1
    v_lshlrev_b32 v35, 1, v35
    v_and_b32 v39, 63, v0
    v_lshlrev_b32 v39, 4, v39             ; lane*16
    s_waitcnt vmcnt(3)
    @STAMP 2
    v_lshlrev_b32 v4, 16, v4
    v_lshlrev_b32 v8, 16, v8
    """)
    exp_acc(k, 10, 8, 16, 17)
    exp_acc(k, 11, 4, 18, 19)
    k(f"""
    v_cvt_pk_bf16_f32 v10, v10, v11
    v_and_b32 v11, 0xffff0000, v10        ; eA
    v_lshlrev_b32 v10, 16, v10            ; dt
    v_mul_f32 v12, v11, v10
    v_mul_f32 v12, s40, v12
    v_sub_f32 v12, 0, v12
    s_waitcnt vmcnt(0)
    v_lshlrev_b32 v5, 16, v5
    v_lshlrev_b32 v6, 16, v6
    v_lshlrev_b32 v7, 16, v7
    v_mul_f32 v13, v5, v10
    v_mul_f32 v13, 0.15915494, v13
    v_add_f32 v10, v10, v10
    v_mul_f32 v14, v6, v10                ; 2*Cre*dt
    v_mul_f32 v15, v7, v10                ; 2*Cim*dt
    v_lshlrev_b32 v9, 4, v1
    ds_write_b128 v9, v[12:15]
    v_max3_f32 v16, |v14|, |v15|, 0
    v_max_f32_dpp v16, v16, v16 row_shr:1 row_mask:0xf bank_mask:0xf
    v_max_f32_dpp v16, v16, v16 row_shr:2 row_mask:0xf bank_mask:0xf
    v_max_f32_dpp v16, v16, v16 row_shr:4 row_mask:0xf bank_mask:0xf
    v_max_f32_dpp v16, v16, v16 row_shr:8 row_mask:0xf bank_mask:0xf
    v_max_f32_dpp v16, v16, v16 row_bcast:15 row_mask:0xa bank_mask:0xf
    v_readlane_b32 s23, v16, 31
    s_mov_b32 s20, 0
    @STAMP 3
    v_mov_b32 v16, s23
    v_bfe_u32 v16, v16, 23, 8
    v_max_u32 v16, 14, v16
    v_sub_u32 v17, 0x8c, v16
    v_cvt_f32_i32 v29, v17                ; kf = 140 - e'
    v_mov_b32 v28, 0
    v_subrev_u32 v16, 13, v16
    v_lshlrev_b32 v27, 23, v16            ; Sinv
    P_KLOOP:
    ds_read_b128 v[52:55], v34
    ds_read_b128 v[56:59], v34 offset:16
    ds_read_b128 v[60:63], v34 offset:32
    ds_read_b128 v[64:67], v34 offset:48
    v_add_u32 v34, 0x100, v34
    """)
    for nn in range(4):
        p = 52 + 4 * nn
        k(f"""
        s_waitcnt lgkmcnt({3-nn})
        v_pk_mul_f32 v[2:3], v[30:31], v[{p}:{p+1}] op_sel_hi:[1,0]
        v_pk_fma_f32 v[4:5], v[32:33], v[{p}:{p+1}], v[28:29] op_sel_hi:[1,0,1]
        v_pk_mul_f32 v[6:7], v[30:31], v[{p}:{p+1}] op_sel:[0,1] op_sel_hi:[1,1]
        v_pk_mul_f32 v[8:9], v[32:33], v[{p}:{p+1}] op_sel:[0,1] op_sel_hi:[1,1]
        v_exp_f32 v2, v2
        v_exp_f32 v3, v3
        v_exp_f32 v4, v4
        v_exp_f32 v5, v5
        v_fract_f32 v6, v6
        v_fract_f32 v7, v7
        v_fract_f32 v8, v8
        v_fract_f32 v9, v9
        v_cos_f32 v10, v6
        v_sin_f32 v11, v6
        v_cos_f32 v12, v7
        v_sin_f32 v13, v7
        v_cos_f32 v14, v8
        v_sin_f32 v15, v8
        v_cos_f32 v16, v9
        v_sin_f32 v17, v9
        v_pk_mul_f32 v[10:11], v[10:11], v[2:3] op_sel_hi:[1,0]
        v_pk_mul_f32 v[12:13], v[12:13], v[2:3] op_sel:[0,1] op_sel_hi:[1,1]
        v_pk_mul_f32 v[14:15], v[14:15], v[4:5] op_sel_hi:[1,0]
        v_pk_mul_f32 v[16:17], v[16:17], v[4:5] op_sel:[0,1] op_sel_hi:[1,1]
        v_cvt_pk_f16_f32 v{68+nn}, v10, v11
        v_cvt_pk_f16_f32 v{72+nn}, v12, v13
        v_cvt_pk_f16_f32 v{76+nn}, v14, v15
        v_pk_mul_f32 v[18:19], v[16:17], v[{p+2}:{p+3}] op_sel_hi:[1,0]
        v_pk_fma_f32 v[18:19], v[16:17], v[{p+2}:{p+3}], v[18:19] op_sel:[1,1,0] op_sel_hi:[0,1,1] neg_lo:[1,0,0]
        v_cvt_pk_f16_f32 v{80+nn}, v18, -v19
        """)
    k(f"""
    s_cmp_eq_u32 s20, 1
    s_cbranch_scc1 P_KL2
    v_mfma_f32_16x16x32_f16 v[40:43], v[68:71], v[80:83], 0
    v_mfma_f32_16x16x32_f16 v[44:47], v[72:75], v[80:83], 0
    v_mfma_f32_16x16x32_f16 v[48:51], v[76:79], v[80:83], 0
    s_mov_b32 s20, 1
    s_branch P_KLOOP
    P_KL2:
    v_mfma_f32_16x16x32_f16 v[40:43], v[68:71], v[80:83], v[40:43]
    v_mfma_f32_16x16x32_f16 v[44:47], v[72:75], v[80:83], v[44:47]
    v_mfma_f32_16x16x32_f16 v[48:51], v[76:79], v[80:83], v[48:51]
    @STAMP 4
    s_mul_i32 s20, s19, 3072
    v_add_u32 v2, s20, v39
    s_lshl_b32 s20, s19, 10
    v_add_u32 v3, s20, v39
    """)
    k("v_mov_b32 v26, v27")
    for r in range(40, 52, 2): k(f"v_pk_mul_f32 v[{r}:{r+1}], v[{r}:{r+1}], v[26:27]")
    k(f"""
    ds_write_b128 v2, v[40:43] offset:4096
    ds_write_b128 v2, v[44:47] offset:5120
    ds_write_b128 v2, v[48:51] offset:6144
    s_mul_i32 s3, s26, {KP_STRIDE}
    s_add_u32 s3, s3, {KP}
    v_lshlrev_b32 v1, 4, v0
    v_add_u32 v8, s3, v1
    s_waitcnt lgkmcnt(0)
    s_barrier
    s_cmp_eq_u32 s19, 3
    s_cbranch_scc1 P_KS
    ds_read_b128 v[40:43], v3 offset:4096
    ds_read_b128 v[44:47], v3 offset:{4096+3072}
    ds_read_b128 v[48:51], v3 offset:{4096+6144}
    ds_read_b128 v[4:7], v3 offset:{4096+9216}
    s_waitcnt lgkmcnt(2)
    v_pk_add_f32 v[40:41], v[40:41], v[44:45]
    v_pk_add_f32 v[42:43], v[42:43], v[46:47]
    s_waitcnt lgkmcnt(0)
    v_pk_add_f32 v[48:49], v[48:49], v[4:5]
    v_pk_add_f32 v[50:51], v[50:51], v[6:7]
    v_pk_add_f32 v[40:41], v[40:41], v[48:49]
    v_pk_add_f32 v[42:43], v[42:43], v[50:51]
    v_cvt_pk_bf16_f32 v40, v40, v41
    v_cvt_pk_bf16_f32 v42, v42, v43
    ds_write_b16 v35, v40 offset:{TB}
    ds_write_b16_d16_hi v36, v40 offset:{TB}
    ds_write_b16 v37, v42 offset:{TB}
    ds_write_b16_d16_hi v38, v42 offset:{TB}
    P_KS:
    s_waitcnt lgkmcnt(0)
    s_barrier
    @STAMP 5
    v_cmp_gt_u32 vcc, 0x60, v0
    s_and_saveexec_b64 s[22:23], vcc
    s_cbranch_execz P_KEND
    ds_read_b128 v[40:43], v1 offset:{TB}
    s_waitcnt lgkmcnt(0)
    global_store_dwordx4 v8, v[40:43], s[4:5]
    P_KEND:
    @FLUSH 6
    s_endpgm
    """)
    k = kreal
    k.label("P_TR")
    PITCH = 144
    k(f"""
    s_load_dwordx2 s[8:9], s[0:1], {KA_U}
    s_load_dwordx4 s[16:19], s[0:1], {KA_WG}
    s_load_dwordx2 s[20:21], s[0:1], {KA_WD}
    s_sub_u32 s3, s2, {B_T}
    s_lshr_b32 s10, s3, 3                 ; lt (0..31)
    s_and_b32 s11, s3, 7                  ; dt (0..7)
    v_lshrrev_b32 v1, 3, v0               ; row 0..31
    v_and_b32 v2, 7, v0                   ; chunk
    s_lshl_b32 s12, s10, 16               ; lt*64*1024
    s_lshl_b32 s13, s11, 7
    s_add_u32 s12, s12, s13
    v_lshlrev_b32 v3, 10, v1
    v_lshl_add_u32 v3, v2, 4, v3
    v_add_u32 v3, s12, v3
    v_add_u32 v4, 0x8000, v3
    s_waitcnt lgkmcnt(0)
    global_load_dwordx4 v[8:11], v3, s[8:9]
    global_load_dwordx4 v[12:15], v4, s[8:9]
    v_lshrrev_b32 v41, 6, v0
    v_and_b32 v42, 63, v0
    s_lshl_b32 s14, s3, 13                ; 8 rows * 1024
    v_lshlrev_b32 v43, 11, v41
    v_lshl_add_u32 v43, v42, 4, v43
    v_add_u32 v43, s14, v43
    global_load_dwordx4 v[48:51], v43, s[8:9]
    global_load_dwordx4 v[52:55], v43, s[8:9] offset:1024
    s_setprio {LATE_PRIO}
    @WTOUCH
    v_mul_u32_u24 v5, {PITCH}, v1
    v_lshl_add_u32 v5, v2, 4, v5
    v_and_b32 v6, 15, v0                  ; lam
    v_bfe_u32 v7, v0, 4, 2                ; g
    v_lshrrev_b32 v16, 6, v0              ; w
    v_lshrrev_b32 v17, 2, v6              ; r = lam>>2
    v_lshl_add_u32 v17, v7, 3, v17        ; row = 8g + r
    v_mul_u32_u24 v17, {PITCH}, v17
    v_and_b32 v18, 3, v6
    v_lshl_add_u32 v17, v18, 3, v17       ; + c*8
    v_lshl_add_u32 v17, v16, 5, v17       ; + w*32 bytes
    """)
    if FUSE1:
        k(f"""
        s_setprio 3
        s_lshl_b32 s12, s10, 16
        s_lshl_b32 s13, s11, 12
        s_add_u32 s12, s12, s13
        s_add_u32 s12, s12, {XT0}
        v_lshl_add_u32 v19, v16, 4, v6
        v_lshlrev_b32 v19, 6, v19
        v_lshl_add_u32 v19, v7, 4, v19
        v_add_u32 v19, s12, v19
        v_add_u32 v44, 0x8000, v19
        """)
    else:
        k(f"""
    s_mul_i32 s12, s11, {64*XP}
    s_lshl_b32 s13, s10, 7
    s_add_u32 s12, s12, s13
    s_add_u32 s12, s12, {XT0}
    v_lshl_add_u32 v19, v16, 4, v6
    v_mul_u32_u24 v19, {XP}, v19
    v_lshl_add_u32 v19, v7, 4, v19
    v_add_u32 v19, s12, v19
        v_add_u32 v44, 64, v19
        """)
    k(f"""
    s_waitcnt vmcnt({5 if WTOUCH else 2})
    @STAMP 2
    ds_write_b128 v5, v[8:11]
    ds_write_b128 v5, v[12:15] offset:{32*PITCH}
    s_waitcnt lgkmcnt(0)
    s_barrier
    ds_read_b64_tr_b16 v[8:9], v17
    ds_read_b64_tr_b16 v[10:11], v17 offset:{4*PITCH}
    ds_read_b64_tr_b16 v[12:13], v17 offset:{32*PITCH}
    ds_read_b64_tr_b16 v[14:15], v17 offset:{36*PITCH}
    s_waitcnt lgkmcnt(0)
    global_store_dwordx4 v19, v[8:11], s[4:5] {'sc1' if FUSE1 else PREP_X_POL}
    global_store_dwordx4 v44, v[12:15], s[4:5] {'sc1' if FUSE1 else PREP_X_POL}
    """)
    k(f"""
    v_mov_b32 v2, v42
    s_lshl_b32 s10, s3, 4
    v_lshlrev_b32 v4, 12, v41
    v_add_u32 v4, s10, v4                 ; w*4096 + wg*16
    v_add_u32 v5, {ST0}, v4
    v_add_u32 v6, {ST1}, v4
    s_waitcnt vmcnt({5 if WTOUCH else 2})
    """)
    for row, (base, sm, sq) in enumerate([(48, 20, 21), (52, 22, 23)]):
        for j in range(4):
            k(f"v_lshlrev_b32 v16, 16, v{base+j}")
            k(f"v_and_b32 v17, 0xffff0000, v{base+j}")
            if j == 0:
                k(f"v_add_f32 v{sm}, v16, v17")
                k(f"v_mul_f32 v{sq}, v16, v16")
            else:
                k(f"v_add_f32 v{sm}, v{sm}, v16")
                k(f"v_add_f32 v{sm}, v{sm}, v17")
                k(f"v_fmac_f32 v{sq}, v16, v16")
            k(f"v_fmac_f32 v{sq}, v17, v17")
    for sh in ("row_shr:1", "row_shr:2", "row_shr:4", "row_shr:8"):
        for r in range(20, 24):
            k(f"v_add_f32_dpp v{r}, v{r}, v{r} {sh} row_mask:0xf bank_mask:0xf bound_ctrl:0")
    for r in range(20, 24):
        k(f"v_add_f32_dpp v{r}, v{r}, v{r} row_bcast:15 row_mask:0xa bank_mask:0xf")
    for r in range(20, 24):
        k(f"v_add_f32_dpp v{r}, v{r}, v{r} row_bcast:31 row_mask:0xc bank_mask:0xf")
    if FUSE1:
        k(f"s_mov_b32 s43, {fl(1.0/512)}\ns_mov_b32 s44, {fl(1e-5)}")
        stats_pair(k, 20, 21, 22, 23, 40)
    k(f"""
    v_mov_b32 v24, 0
    v_mov_b32 v25, 0
    v_mov_b32 v26, 0
    v_mov_b32 v27, 0
    s_lshl_b32 s10, s3, 9
    s_add_u32 s10, s10, {ZR}
    v_and_b32 v7, 31, v0
    v_lshl_add_u32 v7, v7, 4, s10
    global_store_dwordx4 v7, v[24:27], s[4:5]
    v_cmp_eq_u32 vcc, 63, v2
    s_and_saveexec_b64 s[22:23], vcc
    global_store_dwordx4 v5, v[20:23], s[4:5] {'sc1' if FUSE1 else ''}
    global_store_dwordx4 v6, v[24:27], s[4:5]
    """)
    if FUSE1:
        k(f"""
        s_mov_b64 exec, -1
        s_and_b32 s10, s2, 3
        s_lshl_b32 s10, s10, 6
        v_mov_b32 v8, s10
        v_mov_b32 v9, 1
        v_cmp_eq_u32 vcc, 0, v0
        @STAMP 3
        s_waitcnt vmcnt(0)
        s_barrier
        @STAMP 4
        v_readfirstlane_b32 s10, v0
        s_cmp_lg_u32 s10, 0
        s_cbranch_scc1 P_TEND
        s_mov_b64 exec, 1
        global_atomic_add v10, v8, v9, s[28:29] sc0 sc1
        s_waitcnt vmcnt(0)
        v_readfirstlane_b32 s10, v10
        s_cmp_lg_u32 s10, {N_T // 4 - 1}
        s_cbranch_scc1 P_TEND
        v_mov_b32 v8, 8
        global_atomic_add v8, v9, s[28:29] sc1
        s_mov_b64 exec, -1
        v_lshlrev_b32 v8, 7, v0
        v_add_u32 v8, {GFB}, v8
        s_mov_b64 exec, {(1 << GFN) - 1 if GFN < 64 else -1}
        global_atomic_add v8, v9, s[4:5] sc1
        P_TEND:
        s_mov_b64 exec, -1
        s_setprio 0
        @STAMP 5
        s_cmp_lt_u32 s2, {N_C}
        s_cbranch_scc1 P_C
        """)
    k(f"""
    @FLUSH {6 if FUSE1 else 2}
    s_endpgm
    """)
    k = knull if FUSE1 else kreal
    k.label("P_W")
    WPITCH = 400
    k(f"""
    s_load_dwordx4 s[8:11], s[0:1], {KA_WG}
    s_sub_u32 s3, s2, {B_W}
    s_lshr_b32 s12, s3, 4                 ; ft
    s_and_b32 s13, s3, 15                 ; s
    """)
    k(f"""
    s_mul_i32 s14, s13, {32*F*2}
    s_mul_i32 s15, s12, 192
    s_add_u32 s14, s14, s15
    s_mul_i32 s16, s12, 12
    s_mov_b32 s17, 0x15555556
    """)
    k(f"v_mov_b32 v5, {F//8}")
    for i in range(2):
        k(f"""
        v_add_u32 v1, {256*i}, v0
        v_mul_hi_u32 v2, v1, s17
        v_mul_u32_u24 v3, 12, v2
        v_sub_u32 v3, v1, v3                  ; chunk
        v_mul_u32_u24 v4, {F*2}, v2
        v_lshl_add_u32 v4, v3, 4, v4
        v_add_u32 v{40+i}, s14, v4
        v_mul_u32_u24 v4, {WPITCH}, v2
        v_lshl_add_u32 v{42+i}, v3, 5, v4
        v_add_u32 v3, s16, v3
        v_cmp_gt_u32 s[{24+2*i}:{25+2*i}], v5, v3
        """)
    for r in range(8, 24): k(f"v_mov_b32 v{r}, 0")
    k(f"""
    v_cmp_gt_u32 vcc, 0x80, v0
    s_and_b64 s[26:27], s[26:27], vcc
    s_waitcnt lgkmcnt(0)
    s_mov_b64 s[28:29], exec
    s_mov_b64 exec, s[24:25]
    s_cbranch_execz P_W1
    global_load_dwordx4 v[8:11], v40, s[8:9]
    global_load_dwordx4 v[12:15], v40, s[10:11]
    P_W1:
    s_mov_b64 exec, s[26:27]
    s_cbranch_execz P_W2
    global_load_dwordx4 v[16:19], v41, s[8:9]
    global_load_dwordx4 v[20:23], v41, s[10:11]
    P_W2:
    s_setprio {LATE_PRIO}
    s_mov_b64 exec, s[28:29]
    s_waitcnt vmcnt(0)
    ds_write2_b32 v42, v8, v9 offset0:0 offset1:2
    ds_write2_b32 v42, v10, v11 offset0:4 offset1:6
    ds_write2_b32 v42, v12, v13 offset0:1 offset1:3
    ds_write2_b32 v42, v14, v15 offset0:5 offset1:7
    s_and_saveexec_b64 s[28:29], vcc
    s_cbranch_execz P_W3
    ds_write2_b32 v43, v16, v17 offset0:0 offset1:2
    ds_write2_b32 v43, v18, v19 offset0:4 offset1:6
    ds_write2_b32 v43, v20, v21 offset0:1 offset1:3
    ds_write2_b32 v43, v22, v23 offset0:5 offset1:7
    P_W3:
    s_mov_b64 exec, s[28:29]
    v_and_b32 v1, 15, v0
    v_bfe_u32 v2, v0, 4, 2
    v_lshrrev_b32 v3, 2, v1
    v_lshl_add_u32 v3, v2, 2, v3
    v_mul_u32_u24 v3, {WPITCH}, v3
    v_and_b32 v4, 3, v1
    v_lshl_add_u32 v3, v4, 3, v3
    v_readfirstlane_b32 s18, v0
    s_lshr_b32 s18, s18, 6                ; w
    s_lshl_b32 s19, s18, 7
    s_mov_b32 s20, 32
    s_cmp_eq_u32 s18, 3
    s_cselect_b32 s19, 96, s19
    s_cselect_b32 s20, 128, s20
    v_add_u32 v3, s19, v3
    v_add_u32 v4, s20, v3
    v_add_u32 v5, s20, v4
    s_lshl_b32 s21, s12, 2
    s_add_u32 s21, s21, s18
    s_lshl_b32 s21, s21, 4
    s_add_u32 s21, s21, s13
    s_mul_i32 s21, s21, 3072
    s_add_u32 s21, s21, {WP}
    v_and_b32 v6, 63, v0
    v_lshlrev_b32 v6, 4, v6
    v_add_u32 v6, s21, v6
    v_add_u32 v7, 0x400, v6
    v_add_u32 v24, 0x800, v6
    s_waitcnt lgkmcnt(0)
    s_barrier
    ds_read_b64_tr_b16 v[8:9], v3
    ds_read_b64_tr_b16 v[10:11], v3 offset:{16*WPITCH}
    ds_read_b64_tr_b16 v[12:13], v4
    ds_read_b64_tr_b16 v[14:15], v4 offset:{16*WPITCH}
    ds_read_b64_tr_b16 v[16:17], v5
    ds_read_b64_tr_b16 v[18:19], v5 offset:{16*WPITCH}
    s_waitcnt lgkmcnt(0)
    global_store_dwordx4 v6, v[8:11], s[4:5] {PREP_W_POL}
    global_store_dwordx4 v7, v[12:15], s[4:5] {PREP_W_POL}
    global_store_dwordx4 v24, v[16:19], s[4:5] {PREP_W_POL}
    @FLUSH 2
    s_endpgm
    """)
    k.label("P_D")
    DPITCH = 272
    k(f"""
    s_load_dwordx2 s[8:9], s[0:1], {KA_WD}
    s_sub_u32 s3, s2, {B_D}
    s_lshr_b32 s12, s3, 2                 ; ks 0..43
    s_and_b32 s13, s3, 3                  ; dq
    v_lshrrev_b32 v1, 4, v0               ; row 0..15 (+16)
    v_and_b32 v2, 15, v0                  ; chunk
    s_lshl_b32 s14, s12, 15               ; ks*32*1024
    s_lshl_b32 s15, s13, 8
    s_add_u32 s14, s14, s15
    v_lshlrev_b32 v3, 10, v1
    v_lshl_add_u32 v3, v2, 4, v3
    v_add_u32 v3, s14, v3
    v_add_u32 v4, 0x4000, v3
    """)
    for r in range(8, 16): k(f"v_mov_b32 v{r}, 0")
    k(f"""
    s_waitcnt lgkmcnt(0)
    s_cmp_ge_u32 s12, 43
    s_cbranch_scc1 P_D1
    global_load_dwordx4 v[8:11], v3, s[8:9]
    global_load_dwordx4 v[12:15], v4, s[8:9]
    P_D1:
    s_setprio {LATE_PRIO}
    v_bfe_u32 v5, v1, 1, 2                ; g
    v_lshrrev_b32 v6, 3, v1               ; dw (0/1)
    v_and_b32 v7, 1, v1
    v_lshl_add_u32 v7, v6, 1, v7
    v_lshl_add_u32 v7, v5, 3, v7          ; rho
    v_mul_u32_u24 v7, {DPITCH}, v7
    v_lshl_add_u32 v7, v2, 4, v7
    v_and_b32 v1, 15, v0
    v_bfe_u32 v2, v0, 4, 2
    v_lshrrev_b32 v16, 6, v0
    v_lshrrev_b32 v3, 2, v1
    v_lshl_add_u32 v3, v2, 3, v3          ; row = 8g + r
    v_mul_u32_u24 v3, {DPITCH}, v3
    v_and_b32 v4, 3, v1
    v_lshl_add_u32 v3, v4, 3, v3          ; + c*8 bytes (4 d)
    v_lshl_add_u32 v3, v16, 6, v3         ; + w*64
    s_lshl_b32 s16, s13, 3
    v_lshl_add_u32 v17, v16, 1, s16
    v_mul_u32_u24 v17, {NKS2*1024}, v17
    v_and_b32 v18, 63, v0
    v_lshl_add_u32 v17, v18, 4, v17
    s_lshl_b32 s16, s12, 10
    s_add_u32 s16, s16, {WD}
    v_add_u32 v17, s16, v17
    v_add_u32 v18, {NKS2*1024}, v17
    s_waitcnt vmcnt(0)
    ds_write_b128 v7, v[8:11]
    ds_write_b128 v7, v[12:15] offset:{4*DPITCH}
    s_waitcnt lgkmcnt(0)
    s_barrier
    ds_read_b64_tr_b16 v[8:9], v3
    ds_read_b64_tr_b16 v[10:11], v3 offset:{4*DPITCH}
    ds_read_b64_tr_b16 v[12:13], v3 offset:32
    ds_read_b64_tr_b16 v[14:15], v3 offset:{4*DPITCH+32}
    s_waitcnt lgkmcnt(0)
    global_store_dwordx4 v17, v[8:11], s[4:5] {PREP_W_POL}
    global_store_dwordx4 v18, v[12:15], s[4:5] {PREP_W_POL}
    @FLUSH 2
    s_endpgm
    """)
    k = kreal
    k.label("P_C")
    k(f"""
    s_load_dwordx4 s[8:11], s[0:1], {KA_WG}
    s_sub_u32 s3, s2, {B_C}
    s_and_b32 s12, s3, 1                  ; mat
    s_lshr_b32 s13, s3, 1                 ; cb 0..44
    v_lshrrev_b32 v1, 2, v0
    v_and_b32 v2, 3, v0                   ; chunk
    s_lshl_b32 s14, s13, 6
    v_mul_u32_u24 v4, {F*2}, v1
    v_lshl_add_u32 v4, v2, 4, v4
    v_add_u32 v4, s14, v4
    """)
    for r in range(8, 16): k(f"v_mov_b32 v{r}, 0")
    k(f"""
    s_waitcnt lgkmcnt(0)
    s_cmp_eq_u32 s12, 1
    s_cselect_b32 s8, s10, s8
    s_cselect_b32 s9, s11, s9
    s_cmp_ge_u32 s13, 43
    s_cbranch_scc1 P_C2
    """)
    for i in range(8):
        k(f"global_load_dwordx4 v[{16+4*i}:{19+4*i}], v4, s[8:9]")
        if i < 7: k(f"v_add_u32 v4, {64*F*2}, v4")
    k(f"s_setprio {LATE_PRIO}")
    for i in range(8):
        k(f"s_waitcnt vmcnt({7-i})")
        for j in range(4):
            k(f"v_lshlrev_b32 v6, 16, v{16+4*i+j}")
            k(f"v_and_b32 v7, 0xffff0000, v{16+4*i+j}")
            k(f"v_pk_add_f32 v[{8+2*j}:{9+2*j}], v[{8+2*j}:{9+2*j}], v[6:7]")
    for sh in ("row_shr:4", "row_shr:8"):
        for r in range(8, 16):
            k(f"v_add_f32_dpp v{r}, v{r}, v{r} {sh} row_mask:0xf bank_mask:0xf bound_ctrl:0")
    k(f"""
    P_C2:
    v_lshrrev_b32 v6, 4, v0
    v_lshlrev_b32 v6, 7, v6
    v_lshl_add_u32 v6, v2, 5, v6
    v_and_b32 v7, 12, v0
    v_cmp_eq_u32 vcc, 12, v7
    s_and_saveexec_b64 s[46:47], vcc
    ds_write_b128 v6, v[8:11]
    ds_write_b128 v6, v[12:15] offset:16
    s_mov_b64 exec, s[46:47]
    s_waitcnt lgkmcnt(0)
    s_barrier
    v_cmp_gt_u32 vcc, 32, v0
    s_and_saveexec_b64 s[46:47], vcc
    s_cbranch_execz P_C3
    v_lshlrev_b32 v6, 2, v0
    """)
    for i in range(16):
        k(f"ds_read_b32 v{16+i}, v6 offset:{128*i}")
    k(f"""
    s_mul_i32 s14, s13, 0x5556
    s_lshr_b32 s14, s14, 16               ; ft
    s_mul_i32 s15, s14, 3
    s_sub_u32 s15, s13, s15               ; j
    s_mul_i32 s16, s15, 3
    s_add_u32 s17, s15, 9
    v_lshrrev_b32 v5, 3, v0               ; dw
    v_add_u32 v7, s16, v5
    v_mov_b32 v8, s17
    v_cmp_eq_u32 vcc, 3, v5
    v_cndmask_b32 v7, v7, v8, vcc         ; w*3+tau
    s_mul_i32 s14, s14, 12
    v_add_u32 v7, s14, v7
    v_lshlrev_b32 v7, 4, v7
    v_bfe_u32 v8, v0, 1, 2
    v_lshl_add_u32 v7, v8, 2, v7
    v_and_b32 v8, 1, v0
    v_add_u32 v7, v7, v8
    s_lshl_b32 s14, s12, 1
    v_add_u32 v7, s14, v7
    v_lshlrev_b32 v7, 2, v7
    v_add_u32 v7, {CSUM}, v7
    s_waitcnt lgkmcnt(0)
    """)
    for st in (8, 4, 2, 1):
        for i in range(st):
            k(f"v_add_f32 v{16+i}, v{16+i}, v{16+i+st}")
    k(f"""
    global_store_dword v7, v16, s[4:5]
    P_C3:
    @FLUSH {6 if FUSE1 else 2}
    s_endpgm
    """)
    return k, dict(vgpr=96, sgpr=48, accum=96, grid=PREP_WGS, block=256, lds=PREP_LDS)


def stats_pair(k, sa, qa, sb, qb, t, keep=None):
    for s_, q_ in ((sa, qa), (sb, qb)):
        k(f"""
        v_mul_f32 v{s_}, s43, v{s_}
        v_mul_f32 v{q_}, s43, v{q_}
        v_fma_f32 v{q_}, -v{s_}, v{s_}, v{q_}
        v_max_f32 v{q_}, 0, v{q_}
        v_cvt_pk_bf16_f32 v{q_}, v{s_}, v{q_}
        v_lshlrev_b32 v{s_}, 16, v{q_}
        v_and_b32 v{q_}, 0xffff0000, v{q_}
        v_add_f32 v{q_}, s44, v{q_}
        """)
    k(f"""
    v_cvt_pk_bf16_f32 v{t}, v{qa}, v{qb}
    v_lshlrev_b32 v{qa}, 16, v{t}
    v_and_b32 v{qb}, 0xffff0000, v{t}
    v_sqrt_f32 v{qa}, v{qa}
    v_sqrt_f32 v{qb}, v{qb}
    v_cvt_pk_bf16_f32 v{t}, v{qa}, v{qb}
    v_lshlrev_b32 v{keep[0] if keep else qa}, 16, v{t}
    v_and_b32 v{keep[1] if keep else qb}, 0xffff0000, v{t}
    v_rcp_f32 v{qa}, v{keep[0] if keep else qa}
    v_rcp_f32 v{qb}, v{keep[1] if keep else qb}
    """)


def conv_stats_norm(k, wait_x):
    for i in range(4):
        b = 16 + 4 * i
        k(f"""
        v_pk_mul_f32 v[{b}:{b+1}], v[{b}:{b+1}], s[46:47]
        v_pk_mul_f32 v[{b+2}:{b+3}], v[{b+2}:{b+3}], s[46:47]
        v_fma_f32 v{b+1}, -v{b}, v{b}, v{b+1}
        v_fma_f32 v{b+3}, -v{b+2}, v{b+2}, v{b+3}
        v_cvt_pk_bf16_f32 v{b}, v{b}, v{b+2}          ; (m_a, m_b)
        v_cvt_pk_bf16_f32 v{b+2}, v{b+1}, v{b+3}
        v_and_b32 v{b+1}, 0xffff0000, v{b}
        v_lshlrev_b32 v{b}, 16, v{b}                  ; v[b:b+1] = (m_a, m_b) f32
        v_and_b32 v{b+3}, 0xffff0000, v{b+2}
        v_lshlrev_b32 v{b+2}, 16, v{b+2}
        v_max_f32 v{b+2}, 0, v{b+2}
        v_max_f32 v{b+3}, 0, v{b+3}
        v_pk_add_f32 v[{b+2}:{b+3}], v[{b+2}:{b+3}], s[44:45]
        v_cvt_pk_bf16_f32 v{b+2}, v{b+2}, v{b+3}
        v_and_b32 v{b+3}, 0xffff0000, v{b+2}
        v_lshlrev_b32 v{b+2}, 16, v{b+2}
        v_sqrt_f32 v{b+2}, v{b+2}
        v_sqrt_f32 v{b+3}, v{b+3}
        """)
    for i in range(4):
        b = 16 + 4 * i
        k(f"""
        v_cvt_pk_bf16_f32 v{b+2}, v{b+2}, v{b+3}
        v_and_b32 v{b+3}, 0xffff0000, v{b+2}
        v_lshlrev_b32 v{b+2}, 16, v{b+2}
        v_rcp_f32 v{b+2}, v{b+2}
        v_rcp_f32 v{b+3}, v{b+3}
        """)
    k(wait_x)
    for j in range(4):
        b = 16 + 4 * j
        k(f"""
        v_lshlrev_b32 v40, 16, v{12+j}
        v_and_b32 v41, 0xffff0000, v{12+j}
        v_pk_add_f32 v[40:41], v[40:41], v[{b}:{b+1}] neg_lo:[0,1] neg_hi:[0,1]
        v_cvt_pk_bf16_f32 v41, v40, v41
        v_lshlrev_b32 v40, 16, v41
        v_and_b32 v41, 0xffff0000, v41
        v_pk_mul_f32 v[40:41], v[40:41], v[{b+2}:{b+3}]
        v_cvt_pk_bf16_f32 v{32+j}, v40, v41
        """)
    k(f"""
    ds_write_b128 v1, v[32:35] offset:{CSU + 16*28}
    ds_write2_b64 v1, v[32:33], v[34:35] offset0:57 offset1:58
    """)

def gen_f1():
    k = Kern("f1")
    WPITCH = 400; DPITCH = 272
    US = CRED + 8192 if UEARLY else 0
    KS = CRED; TB = KS + 2304
    k(f"""
    f1_kernel:
    @KID 0
    @INIT
    s_load_dwordx2 s[4:5], s[0:1], {KA_WS}
    s_load_dwordx2 s[28:29], s[0:1], {KA_DBG}
    @CODEPF
    s_cmp_lt_u32 s2, {N_T}
    s_cbranch_scc1 P_TR
    s_cmp_ge_u32 s2, {N_T + N_K}
    s_cbranch_scc1 CONV_END
    """)
    kk = Remap(k, 64, {19: 33, 20: 34, 23: 35, 24: 36, 3: 37, 22: 38, 18: 45})
    kk(f"""
    @KID 1
    s_load_dwordx4 s[8:11], s[0:1], {KA_LOGA}
    s_load_dwordx4 s[12:15], s[0:1], {KA_CRE}
    s_load_dwordx2 s[16:17], s[0:1], {KA_LOGDT}
    s_load_dwordx2 s[6:7], s[0:1], {KA_DSKIP}
    s_load_dwordx4 s[48:51], s[0:1], {KA_WG}
    s_load_dwordx2 s[52:53], s[0:1], {KA_WD}
    s_sub_u32 s2, s2, {N_T}
    s_mov_b32 s40, {fl(L2E_HI)}
    s_mov_b32 s41, {fl(L2E_LO)}
    s_mov_b32 s42, {fl(LN2)}
    v_lshrrev_b32 v1, 1, v0
    v_and_b32 v1, 0x60, v1
    v_and_or_b32 v1, v0, 31, v1           ; n = 32 w + (lane & 31)
    s_lshl_b32 s3, s2, 8
    v_lshl_add_u32 v2, v1, 1, s3
    s_lshl_b32 s18, s2, 1
    v_mov_b32 v3, s18
    v_readfirstlane_b32 s19, v0
    s_lshr_b32 s19, s19, 6                ; wave
    v_and_b32 v20, 15, v0                 ; i / j
    v_bfe_u32 v21, v0, 4, 2               ; g
    ; hi0 = 128*(i>>3) + (i&7)
    v_lshrrev_b32 v23, 3, v20
    v_and_b32 v24, 7, v20
    v_lshl_add_u32 v23, v23, 7, v24
    v_cvt_f32_u32 v30, v23
    ; hi1 = (g''<2 ? 256+2g'' : 256*g'') + 128*((i>>1)&1) + 4*(i&1)
    v_lshrrev_b32 v23, 2, v20
    v_lshlrev_b32 v24, 1, v23
    v_add_u32 v24, 0x100, v24
    v_lshlrev_b32 v25, 8, v23
    v_cmp_gt_u32 vcc, 2, v23
    v_cndmask_b32 v24, v25, v24, vcc
    v_bfe_u32 v25, v20, 1, 1
    v_lshl_add_u32 v24, v25, 7, v24
    v_and_b32 v25, 1, v20
    v_lshl_add_u32 v24, v25, 2, v24
    v_cvt_f32_u32 v31, v24
    v_lshlrev_b32 v23, 7, v20
    v_add_u32 v23, 0x400, v23
    v_cvt_f32_u32 v32, v23                ; hi2
    v_lshlrev_b32 v23, 3, v20
    v_cvt_f32_u32 v33, v23                ; lo
    s_lshl_b32 s20, s19, 9
    v_lshl_add_u32 v34, v21, 6, s20
    v_lshrrev_b32 v23, 1, v21
    v_and_b32 v24, 1, v21
    v_lshlrev_b32 v24, 2, v24
    v_lshl_add_u32 v35, v23, 7, v24
    v_lshl_add_u32 v35, v20, 3, v35
    v_mov_b32 v36, 1
    v_mov_b32 v37, 2
    s_cmp_eq_u32 s19, 0
    s_cbranch_scc1 F_KA
    v_lshl_add_u32 v35, v21, 6, v20
    v_add_u32 v35, 0x200, v35
    v_mov_b32 v36, 16
    v_mov_b32 v37, 32
    s_cmp_lg_u32 s19, 1
    s_cbranch_scc1 F_KA
    v_lshl_add_u32 v23, v20, 2, v21
    v_add_u32 v23, 0x100, v23             ; seg1: 256 + g' + 4j ; o1=2 o2=64
    v_lshlrev_b32 v24, 6, v21
    v_lshl_add_u32 v24, v20, 1, v24
    v_add_u32 v24, 0x100, v24             ; seg2: 384 + 64(g'-2) + 2j ; o1=1 o2=32
    v_cmp_gt_u32 vcc, 2, v21
    v_cndmask_b32 v35, v24, v23, vcc
    v_cndmask_b32 v36, 1, 2, vcc
    v_cndmask_b32 v37, 32, 64, vcc
    F_KA:
    v_add_u32 v38, v36, v37
    v_add_lshl_u32 v36, v36, v35, 1
    v_add_lshl_u32 v37, v37, v35, 1
    v_add_lshl_u32 v38, v38, v35, 1
    v_lshlrev_b32 v35, 1, v35
    v_and_b32 v39, 63, v0
    v_lshlrev_b32 v39, 4, v39             ; lane*16
    s_waitcnt lgkmcnt(0)
    global_load_ushort v84, v2, s[8:9]
    @GFLOAD
    global_load_ushort v85, v3, s[16:17]
    global_load_ushort v86, v2, s[10:11]
    global_load_ushort v87, v2, s[12:13]
    global_load_ushort v88, v2, s[14:15]
    v_mov_b32 v89, v1
    """)
    k(f"""
    s_mov_b32 s30, 0
    s_mov_b32 s31, {ST0}
    s_mov_b32 s32, {X1T}
    s_mov_b32 s18, {TB}
    """)
    conv_setup(k)
    k("s_load_dword s20, s[6:7], s16")
    srd(k, 8, 4, WS_BYTES)
    conv_p3(k, kzero=False)
    k(f"""
    v_and_b32 v61, 3, v0
    v_mov_b32 v62, 0
    v_lshrrev_b32 v60, 2, v0
    v_lshlrev_b32 v60, 15, v60
    v_lshl_add_u32 v60, v61, 4, v60       ; x voffset
    s_lshl_b32 s13, s2, 6
    s_add_u32 s13, s13, {XT0}
    """)
    k("s_waitcnt vmcnt(0)")
    kk(f"""
    v_mov_b32 v4, v84
    v_mov_b32 v8, v85
    v_mov_b32 v5, v86
    v_mov_b32 v6, v87
    v_mov_b32 v7, v88
    v_mov_b32 v1, v89
    @STAMP 10
    v_lshlrev_b32 v4, 16, v4
    v_lshlrev_b32 v8, 16, v8
    """)
    exp_acc(kk, 10, 8, 16, 17)
    exp_acc(kk, 11, 4, 18, 19)
    kk(f"""
    v_cvt_pk_bf16_f32 v10, v10, v11
    v_and_b32 v11, 0xffff0000, v10        ; eA
    v_lshlrev_b32 v10, 16, v10            ; dt
    v_mul_f32 v12, v11, v10
    v_mul_f32 v12, s40, v12
    v_sub_f32 v12, 0, v12
    v_lshlrev_b32 v5, 16, v5
    v_lshlrev_b32 v6, 16, v6
    v_lshlrev_b32 v7, 16, v7
    v_mul_f32 v13, v5, v10
    v_mul_f32 v13, 0.15915494, v13
    v_add_f32 v10, v10, v10
    v_mul_f32 v14, v6, v10                ; 2*Cre*dt
    v_mul_f32 v15, v7, v10                ; 2*Cim*dt
    v_lshlrev_b32 v9, 4, v1
    ds_write_b128 v9, v[12:15] offset:{KS}
    v_max3_f32 v16, |v14|, |v15|, 0
    v_max_f32_dpp v16, v16, v16 row_shr:1 row_mask:0xf bank_mask:0xf
    v_max_f32_dpp v16, v16, v16 row_shr:2 row_mask:0xf bank_mask:0xf
    v_max_f32_dpp v16, v16, v16 row_shr:4 row_mask:0xf bank_mask:0xf
    v_max_f32_dpp v16, v16, v16 row_shr:8 row_mask:0xf bank_mask:0xf
    v_max_f32_dpp v16, v16, v16 row_bcast:15 row_mask:0xa bank_mask:0xf
    v_readlane_b32 s23, v16, 31
    s_mov_b32 s20, 0
    @STAMP 11
    v_mov_b32 v16, s23
    v_bfe_u32 v16, v16, 23, 8
    v_max_u32 v16, 14, v16
    v_sub_u32 v17, 0x8c, v16
    v_cvt_f32_i32 v29, v17                ; kf = 140 - e'
    v_mov_b32 v28, 0
    v_subrev_u32 v16, 13, v16
    v_lshlrev_b32 v27, 23, v16            ; Sinv
    F_KLOOP:
    ds_read_b128 v[52:55], v34 offset:{KS}
    ds_read_b128 v[56:59], v34 offset:{KS+16}
    ds_read_b128 v[60:63], v34 offset:{KS+32}
    ds_read_b128 v[64:67], v34 offset:{KS+48}
    v_add_u32 v34, 0x100, v34
    """)
    for nn in range(4):
        p = 52 + 4 * nn
        kk(f"""
        s_waitcnt lgkmcnt({3-nn})
        v_pk_mul_f32 v[2:3], v[30:31], v[{p}:{p+1}] op_sel_hi:[1,0]
        v_pk_fma_f32 v[4:5], v[32:33], v[{p}:{p+1}], v[28:29] op_sel_hi:[1,0,1]
        v_pk_mul_f32 v[6:7], v[30:31], v[{p}:{p+1}] op_sel:[0,1] op_sel_hi:[1,1]
        v_pk_mul_f32 v[8:9], v[32:33], v[{p}:{p+1}] op_sel:[0,1] op_sel_hi:[1,1]
        v_exp_f32 v2, v2
        v_exp_f32 v3, v3
        v_exp_f32 v4, v4
        v_exp_f32 v5, v5
        v_fract_f32 v6, v6
        v_fract_f32 v7, v7
        v_fract_f32 v8, v8
        v_fract_f32 v9, v9
        v_cos_f32 v10, v6
        v_sin_f32 v11, v6
        v_cos_f32 v12, v7
        v_sin_f32 v13, v7
        v_cos_f32 v14, v8
        v_sin_f32 v15, v8
        v_cos_f32 v16, v9
        v_sin_f32 v17, v9
        v_pk_mul_f32 v[10:11], v[10:11], v[2:3] op_sel_hi:[1,0]
        v_pk_mul_f32 v[12:13], v[12:13], v[2:3] op_sel:[0,1] op_sel_hi:[1,1]
        v_pk_mul_f32 v[14:15], v[14:15], v[4:5] op_sel_hi:[1,0]
        v_pk_mul_f32 v[16:17], v[16:17], v[4:5] op_sel:[0,1] op_sel_hi:[1,1]
        v_cvt_pk_f16_f32 v{68+nn}, v10, v11
        v_cvt_pk_f16_f32 v{72+nn}, v12, v13
        v_cvt_pk_f16_f32 v{76+nn}, v14, v15
        v_pk_mul_f32 v[18:19], v[16:17], v[{p+2}:{p+3}] op_sel_hi:[1,0]
        v_pk_fma_f32 v[18:19], v[16:17], v[{p+2}:{p+3}], v[18:19] op_sel:[1,1,0] op_sel_hi:[0,1,1] neg_lo:[1,0,0]
        v_cvt_pk_f16_f32 v{80+nn}, v18, -v19
        """)
    kk(f"""
    s_cmp_eq_u32 s20, 1
    s_cbranch_scc1 F_KL2
    v_mfma_f32_16x16x32_f16 v[40:43], v[68:71], v[80:83], 0
    v_mfma_f32_16x16x32_f16 v[44:47], v[72:75], v[80:83], 0
    v_mfma_f32_16x16x32_f16 v[48:51], v[76:79], v[80:83], 0
    s_mov_b32 s20, 1
    s_branch F_KLOOP
    F_KL2:
    v_mfma_f32_16x16x32_f16 v[40:43], v[68:71], v[80:83], v[40:43]
    v_mfma_f32_16x16x32_f16 v[44:47], v[72:75], v[80:83], v[44:47]
    v_mfma_f32_16x16x32_f16 v[48:51], v[76:79], v[80:83], v[48:51]
    @STAMP 12
    s_mul_i32 s20, s19, 3072
    v_add_u32 v2, s20, v39
    s_lshl_b32 s20, s19, 10
    v_add_u32 v3, s20, v39
    v_mov_b32 v26, v27
    """)
    for r in range(40, 52, 2): kk(f"v_pk_mul_f32 v[{r}:{r+1}], v[{r}:{r+1}], v[26:27]")
    kk(f"""
    ds_write_b128 v2, v[40:43] offset:{KS+4096}
    ds_write_b128 v2, v[44:47] offset:{KS+5120}
    ds_write_b128 v2, v[48:51] offset:{KS+6144}
    """)
    k(f"""
    s_waitcnt lgkmcnt(0)
    s_barrier
    """)
    kk(f"""
    s_cmp_eq_u32 s19, 3
    s_cbranch_scc1 F_KS
    ds_read_b128 v[40:43], v3 offset:{KS+4096}
    ds_read_b128 v[44:47], v3 offset:{KS+4096+3072}
    ds_read_b128 v[48:51], v3 offset:{KS+4096+6144}
    ds_read_b128 v[4:7], v3 offset:{KS+4096+9216}
    s_waitcnt lgkmcnt(2)
    v_pk_add_f32 v[40:41], v[40:41], v[44:45]
    v_pk_add_f32 v[42:43], v[42:43], v[46:47]
    s_waitcnt lgkmcnt(0)
    v_pk_add_f32 v[48:49], v[48:49], v[4:5]
    v_pk_add_f32 v[50:51], v[50:51], v[6:7]
    v_pk_add_f32 v[40:41], v[40:41], v[48:49]
    v_pk_add_f32 v[42:43], v[42:43], v[50:51]
    v_cvt_pk_bf16_f32 v40, v40, v41
    v_cvt_pk_bf16_f32 v42, v42, v43
    ds_write_b16 v35, v40 offset:{TB}
    ds_write_b16_d16_hi v36, v40 offset:{TB}
    ds_write_b16 v37, v42 offset:{TB}
    ds_write_b16_d16_hi v38, v42 offset:{TB}
    F_KS:
    s_waitcnt lgkmcnt(0)
    s_barrier
    """)
    if UEARLY:
        k0 = k; k = Remap2(UnitS(k0), {**{1: 84, 2: 85, 6: 86, 7: 87, 8: 88, 9: 89, 10: 90, 11: 91}, **{i: i + 128 for i in range(16, 32)}, **{i: i + 119 for i in range(41, 48)}})
        for r in list(range(16, 32)) + list(range(41, 48)): k(f"v_mov_b32 v{r}, 0")
        k(f"""
        s_mov_b32 s54, 2
        s_cmp_ge_u32 s2, {N_W + N_D}
        s_cbranch_scc1 U_LDONE
        s_cmp_ge_u32 s2, {N_W}
        s_cbranch_scc1 U_LD
        s_mov_b32 s54, 0
        s_lshr_b32 s12, s2, 4                 ; ft
        s_and_b32 s13, s2, 15                 ; s
        s_mul_i32 s14, s13, {32*F*2}
        s_mul_i32 s15, s12, 192
        s_add_u32 s14, s14, s15
        s_mul_i32 s16, s12, 12
        s_mov_b32 s17, 0x15555556
        v_mov_b32 v11, {F//8}
        """)
        for i in range(2):
            k(f"""
            v_add_u32 v1, {256*i}, v0
            v_mul_hi_u32 v2, v1, s17
            v_mul_u32_u24 v6, 12, v2
            v_sub_u32 v6, v1, v6                  ; chunk
            v_mul_u32_u24 v7, {F*2}, v2
            v_lshl_add_u32 v7, v6, 4, v7
            v_add_u32 v{8+i}, s14, v7
            v_mul_u32_u24 v7, {WPITCH}, v2
            v_lshl_add_u32 v{41+i}, v6, 5, v7
            v_add_u32 v6, s16, v6
            v_cmp_gt_u32 s[{24+2*i}:{25+2*i}], v11, v6
            """)
        k(f"""
        s_mov_b64 exec, s[24:25]
        s_cbranch_execz U_W1
        global_load_dwordx4 v[144:147], v8, s[48:49]
        global_load_dwordx4 v[148:151], v8, s[50:51]
        U_W1:
        s_mov_b64 exec, -1
        s_cmp_ge_u32 s33, 2
        s_cbranch_scc1 U_W2
        s_mov_b64 exec, s[26:27]
        s_cbranch_execz U_W2
        global_load_dwordx4 v[152:155], v9, s[48:49]
        global_load_dwordx4 v[156:159], v9, s[50:51]
        U_W2:
        s_mov_b64 exec, -1
        v_add_u32 v41, {US}, v41
        v_add_u32 v42, {US}, v42
        v_lshrrev_b32 v6, 2, v3
        v_lshl_add_u32 v6, v4, 2, v6
        v_mul_u32_u24 v6, {WPITCH}, v6
        v_and_b32 v7, 3, v3
        v_lshl_add_u32 v6, v7, 3, v6
        s_lshl_b32 s18, s33, 7
        s_mov_b32 s19, 32
        s_cmp_eq_u32 s33, 3
        s_cselect_b32 s18, 96, s18
        s_cselect_b32 s19, 128, s19
        s_add_u32 s18, s18, {US}
        v_add_u32 v43, s18, v6
        v_add_u32 v44, s19, v43
        v_add_u32 v45, s19, v44
        s_lshl_b32 s21, s12, 2
        s_add_u32 s21, s21, s33
        s_lshl_b32 s21, s21, 4
        s_add_u32 s21, s21, s13
        s_mul_i32 s21, s21, 3072
        s_add_u32 s21, s21, {WP}
        v_lshl_add_u32 v46, v5, 4, s21
        s_branch U_LDONE
        U_LD:
        s_mov_b32 s54, 1
        s_sub_u32 s3, s2, {N_W}
        s_lshr_b32 s12, s3, 2                 ; ks
        s_and_b32 s13, s3, 3                  ; dq
        v_lshrrev_b32 v1, 4, v0               ; row 0..15 (+16)
        s_lshl_b32 s14, s12, 15
        s_lshl_b32 s15, s13, 8
        s_add_u32 s14, s14, s15
        v_lshlrev_b32 v6, 10, v1
        v_lshl_add_u32 v6, v3, 4, v6
        v_add_u32 v6, s14, v6
        v_add_u32 v7, 0x4000, v6
        s_cmp_ge_u32 s12, 43
        s_cbranch_scc1 U_D1
        global_load_dwordx4 v[144:147], v6, s[52:53]
        global_load_dwordx4 v[148:151], v7, s[52:53]
        U_D1:
        v_bfe_u32 v8, v1, 1, 2
        v_lshrrev_b32 v9, 3, v1
        v_and_b32 v10, 1, v1
        v_lshl_add_u32 v10, v9, 1, v10
        v_lshl_add_u32 v10, v8, 3, v10        ; rho
        v_mul_u32_u24 v10, {DPITCH}, v10
        v_lshl_add_u32 v10, v3, 4, v10
        v_add_u32 v41, {US}, v10
        v_lshrrev_b32 v6, 2, v3
        v_lshl_add_u32 v6, v4, 3, v6
        v_mul_u32_u24 v6, {DPITCH}, v6
        v_and_b32 v7, 3, v3
        v_lshl_add_u32 v6, v7, 3, v6
        s_lshl_b32 s18, s33, 6
        s_add_u32 s18, s18, {US}
        v_add_u32 v43, s18, v6
        s_lshl_b32 s16, s13, 3
        s_lshl_b32 s17, s33, 1
        s_add_u32 s16, s16, s17
        s_mul_i32 s16, s16, {NKS2*1024}
        s_lshl_b32 s17, s12, 10
        s_add_u32 s16, s16, s17
        s_add_u32 s16, s16, {WD}
        v_lshl_add_u32 v46, v5, 4, s16
        v_add_u32 v47, {NKS2*1024}, v46
        U_LDONE:
        """)
        k = k0
    for e in range(11):
        k(f"ds_read_u16 v{48+e}, v{48+e}")
    k(f"""
    v_min_u32 v61, 0x5f0, v1
    ds_read_b128 v[80:83], v61 offset:{TB}
    v_bfe_u32 v62, v0, 2, 2
    v_mul_u32_u24 v62, {KCS}, v62
    v_and_b32 v63, 3, v0
    v_min_u32 v63, 2, v63
    v_lshl_add_u32 v62, v63, 4, v62
    ds_write_b128 v62, v[36:39] offset:{KL}
    """)
    conv_expand(k)
    k(f"""
    buffer_store_dwordx4 v[80:83], v61, s[8:11], s15 offen
    v_mov_b32 v62, 0
    """)
    if UEARLY: k(f"""
    s_waitcnt vmcnt(1)
    s_cmp_eq_u32 s54, 2
    s_cbranch_scc1 U_SDONE
    s_cmp_eq_u32 s54, 1
    s_cbranch_scc1 U_SD
    ds_write2_b32 v160, v144, v145 offset0:0 offset1:2
    ds_write2_b32 v160, v146, v147 offset0:4 offset1:6
    ds_write2_b32 v160, v148, v149 offset0:1 offset1:3
    ds_write2_b32 v160, v150, v151 offset0:5 offset1:7
    s_cmp_ge_u32 s17, 2
    s_cbranch_scc1 U_SDONE
    ds_write2_b32 v161, v152, v153 offset0:0 offset1:2
    ds_write2_b32 v161, v154, v155 offset0:4 offset1:6
    ds_write2_b32 v161, v156, v157 offset0:1 offset1:3
    ds_write2_b32 v161, v158, v159 offset0:5 offset1:7
    s_branch U_SDONE
    U_SD:
    ds_write_b128 v160, v[144:147]
    ds_write_b128 v160, v[148:151] offset:{4*DPITCH}
    U_SDONE:
    """)
    k(f"""
    s_cmp_lg_u32 s17, 3
    s_cbranch_scc1 F1_GO
    s_mov_b32 s26, 0
    F1_CHK:
    global_load_dword v59, v43, s[4:5] sc1
    s_waitcnt vmcnt(0)
    v_sub_u32 v59, v59, v42
    v_cmp_le_u32 vcc, 4, v59
    s_cmp_lg_u64 vcc, 0
    s_cbranch_scc1 F1_GO
    s_add_u32 s26, s26, 1
    s_cmp_ge_u32 s26, {SPIN_MAX >> 2}
    s_cbranch_scc1 F1_GO
    s_sleep {F1_SLEEP}
    s_and_b32 s21, s26, 63
    s_cmp_lg_u32 s21, 0
    s_cbranch_scc1 F1_CHK
    global_load_dword v59, v62, s[28:29] offset:8 sc1
    s_waitcnt vmcnt(0)
    v_cmp_gt_u32 vcc, 4, v59
    s_cmp_lg_u64 vcc, 0
    s_cbranch_scc1 F1_CHK
    F1_GO:
    s_waitcnt lgkmcnt(0)
    s_barrier
    @STAMP 2
    buffer_load_dwordx4 v[16:19], v1, s[8:11], s31 offen {F1_LD}
    s_add_u32 s31, s31, 0x1000
    buffer_load_dwordx4 v[20:23], v1, s[8:11], s31 offen {F1_LD}
    s_add_u32 s31, s31, 0x1000
    buffer_load_dwordx4 v[24:27], v1, s[8:11], s31 offen {F1_LD}
    s_add_u32 s31, s31, 0x1000
    buffer_load_dwordx4 v[28:31], v1, s[8:11], s31 offen {F1_LD}
    buffer_load_dwordx4 v[12:15], v60, s[8:11], s13 offen {F1_LD}
    """)
    if not UEARLY:
        k0 = k; k = Remap2(UnitS(k0), {**{1: 84, 2: 85, 6: 86, 7: 87, 8: 88, 9: 89, 10: 90, 11: 91}, **{i: i + 128 for i in range(16, 32)}, **{i: i + 119 for i in range(41, 48)}})
        for r in list(range(16, 32)) + list(range(41, 48)): k(f"v_mov_b32 v{r}, 0")
        k(f"""
        s_mov_b32 s54, 2
        s_cmp_ge_u32 s2, {N_W + N_D}
        s_cbranch_scc1 U_LDONE
        s_cmp_ge_u32 s2, {N_W}
        s_cbranch_scc1 U_LD
        s_mov_b32 s54, 0
        s_lshr_b32 s12, s2, 4                 ; ft
        s_and_b32 s13, s2, 15                 ; s
        s_mul_i32 s14, s13, {32*F*2}
        s_mul_i32 s15, s12, 192
        s_add_u32 s14, s14, s15
        s_mul_i32 s16, s12, 12
        s_mov_b32 s17, 0x15555556
        v_mov_b32 v11, {F//8}
        """)
        for i in range(2):
            k(f"""
            v_add_u32 v1, {256*i}, v0
            v_mul_hi_u32 v2, v1, s17
            v_mul_u32_u24 v6, 12, v2
            v_sub_u32 v6, v1, v6                  ; chunk
            v_mul_u32_u24 v7, {F*2}, v2
            v_lshl_add_u32 v7, v6, 4, v7
            v_add_u32 v{8+i}, s14, v7
            v_mul_u32_u24 v7, {WPITCH}, v2
            v_lshl_add_u32 v{41+i}, v6, 5, v7
            v_add_u32 v6, s16, v6
            v_cmp_gt_u32 s[{24+2*i}:{25+2*i}], v11, v6
            """)
        k(f"""
        s_mov_b64 exec, s[24:25]
        s_cbranch_execz U_W1
        global_load_dwordx4 v[144:147], v8, s[48:49]
        global_load_dwordx4 v[148:151], v8, s[50:51]
        U_W1:
        s_mov_b64 exec, -1
        s_cmp_ge_u32 s33, 2
        s_cbranch_scc1 U_W2
        s_mov_b64 exec, s[26:27]
        s_cbranch_execz U_W2
        global_load_dwordx4 v[152:155], v9, s[48:49]
        global_load_dwordx4 v[156:159], v9, s[50:51]
        U_W2:
        s_mov_b64 exec, -1
        v_add_u32 v41, {US}, v41
        v_add_u32 v42, {US}, v42
        v_lshrrev_b32 v6, 2, v3
        v_lshl_add_u32 v6, v4, 2, v6
        v_mul_u32_u24 v6, {WPITCH}, v6
        v_and_b32 v7, 3, v3
        v_lshl_add_u32 v6, v7, 3, v6
        s_lshl_b32 s18, s33, 7
        s_mov_b32 s19, 32
        s_cmp_eq_u32 s33, 3
        s_cselect_b32 s18, 96, s18
        s_cselect_b32 s19, 128, s19
        s_add_u32 s18, s18, {US}
        v_add_u32 v43, s18, v6
        v_add_u32 v44, s19, v43
        v_add_u32 v45, s19, v44
        s_lshl_b32 s21, s12, 2
        s_add_u32 s21, s21, s33
        s_lshl_b32 s21, s21, 4
        s_add_u32 s21, s21, s13
        s_mul_i32 s21, s21, 3072
        s_add_u32 s21, s21, {WP}
        v_lshl_add_u32 v46, v5, 4, s21
        s_branch U_LDONE
        U_LD:
        s_mov_b32 s54, 1
        s_sub_u32 s3, s2, {N_W}
        s_lshr_b32 s12, s3, 2                 ; ks
        s_and_b32 s13, s3, 3                  ; dq
        v_lshrrev_b32 v1, 4, v0               ; row 0..15 (+16)
        s_lshl_b32 s14, s12, 15
        s_lshl_b32 s15, s13, 8
        s_add_u32 s14, s14, s15
        v_lshlrev_b32 v6, 10, v1
        v_lshl_add_u32 v6, v3, 4, v6
        v_add_u32 v6, s14, v6
        v_add_u32 v7, 0x4000, v6
        s_cmp_ge_u32 s12, 43
        s_cbranch_scc1 U_D1
        global_load_dwordx4 v[144:147], v6, s[52:53]
        global_load_dwordx4 v[148:151], v7, s[52:53]
        U_D1:
        v_bfe_u32 v8, v1, 1, 2
        v_lshrrev_b32 v9, 3, v1
        v_and_b32 v10, 1, v1
        v_lshl_add_u32 v10, v9, 1, v10
        v_lshl_add_u32 v10, v8, 3, v10        ; rho
        v_mul_u32_u24 v10, {DPITCH}, v10
        v_lshl_add_u32 v10, v3, 4, v10
        v_add_u32 v41, {US}, v10
        v_lshrrev_b32 v6, 2, v3
        v_lshl_add_u32 v6, v4, 3, v6
        v_mul_u32_u24 v6, {DPITCH}, v6
        v_and_b32 v7, 3, v3
        v_lshl_add_u32 v6, v7, 3, v6
        s_lshl_b32 s18, s33, 6
        s_add_u32 s18, s18, {US}
        v_add_u32 v43, s18, v6
        s_lshl_b32 s16, s13, 3
        s_lshl_b32 s17, s33, 1
        s_add_u32 s16, s16, s17
        s_mul_i32 s16, s16, {NKS2*1024}
        s_lshl_b32 s17, s12, 10
        s_add_u32 s16, s16, s17
        s_add_u32 s16, s16, {WD}
        v_lshl_add_u32 v46, v5, 4, s16
        v_add_u32 v47, {NKS2*1024}, v46
        U_LDONE:
        """)
        k = k0
    if UEARLY:
        k(f"""
    s_cmp_eq_u32 s54, 2
    s_cbranch_scc1 U_RDONE
    s_cmp_eq_u32 s54, 1
    s_cbranch_scc1 U_RD
    ds_read_b64_tr_b16 v[64:65], v162
    ds_read_b64_tr_b16 v[66:67], v162 offset:{16*WPITCH}
    ds_read_b64_tr_b16 v[68:69], v163
    ds_read_b64_tr_b16 v[70:71], v163 offset:{16*WPITCH}
    ds_read_b64_tr_b16 v[72:73], v164
    ds_read_b64_tr_b16 v[74:75], v164 offset:{16*WPITCH}
    s_waitcnt lgkmcnt(0)
    global_store_dwordx4 v165, v[64:67], s[4:5] {PREP_W_POL}
    global_store_dwordx4 v165, v[68:71], s[4:5] offset:1024 {PREP_W_POL}
    global_store_dwordx4 v165, v[72:75], s[4:5] offset:2048 {PREP_W_POL}
    s_branch U_RDONE
    U_RD:
    ds_read_b64_tr_b16 v[64:65], v162
    ds_read_b64_tr_b16 v[66:67], v162 offset:{4*DPITCH}
    ds_read_b64_tr_b16 v[68:69], v162 offset:32
    ds_read_b64_tr_b16 v[70:71], v162 offset:{4*DPITCH+32}
    s_waitcnt lgkmcnt(0)
    global_store_dwordx4 v165, v[64:67], s[4:5] {PREP_W_POL}
    global_store_dwordx4 v166, v[68:71], s[4:5] {PREP_W_POL}
    s_branch U_RDONE
    U_RDONE:
    s_waitcnt vmcnt(3)
    s_cmp_eq_u32 s54, 0
    s_cbranch_scc1 F_W3
    s_waitcnt vmcnt(2)
    s_cmp_eq_u32 s54, 1
    s_cbranch_scc1 F_W3
    s_waitcnt vmcnt(0)
    F_W3:
    s_mov_b32 s54, 2
    @STAMP 3
    """)
    else:
        k("""
        s_waitcnt vmcnt(4)
        s_lshr_b32 s21, s17, 1
        s_or_b32 s21, s21, s54
        s_cmp_eq_u32 s21, 0
        s_cbranch_scc1 F_W3
        s_waitcnt vmcnt(2)
        s_cmp_lt_u32 s2, 412
        s_cbranch_scc1 F_W3
        s_waitcnt vmcnt(0)
        F_W3:
        @STAMP 3
        """)
    conv_norm(k)
    k("s_branch CONV_PRE")
    if UEARLY: k("F1_TAIL:\ns_endpgm")
    else:
        k(f"""
        F1_TAIL:
        s_barrier
        s_waitcnt vmcnt(1)
        s_cmp_eq_u32 s54, 2
        s_cbranch_scc1 U_SDONE
        s_cmp_eq_u32 s54, 1
        s_cbranch_scc1 U_SD
        ds_write2_b32 v160, v144, v145 offset0:0 offset1:2
        ds_write2_b32 v160, v146, v147 offset0:4 offset1:6
        ds_write2_b32 v160, v148, v149 offset0:1 offset1:3
        ds_write2_b32 v160, v150, v151 offset0:5 offset1:7
        s_cmp_ge_u32 s17, 2
        s_cbranch_scc1 U_SDONE
        ds_write2_b32 v161, v152, v153 offset0:0 offset1:2
        ds_write2_b32 v161, v154, v155 offset0:4 offset1:6
        ds_write2_b32 v161, v156, v157 offset0:1 offset1:3
        ds_write2_b32 v161, v158, v159 offset0:5 offset1:7
        s_branch U_SDONE
        U_SD:
        ds_write_b128 v160, v[144:147]
        ds_write_b128 v160, v[148:151] offset:{4*DPITCH}
        U_SDONE:
        s_waitcnt lgkmcnt(0)
        s_barrier
        s_cmp_eq_u32 s54, 2
        s_cbranch_scc1 U_RDONE
        s_cmp_eq_u32 s54, 1
        s_cbranch_scc1 U_RD
        ds_read_b64_tr_b16 v[64:65], v162
        ds_read_b64_tr_b16 v[66:67], v162 offset:{16*WPITCH}
        ds_read_b64_tr_b16 v[68:69], v163
        ds_read_b64_tr_b16 v[70:71], v163 offset:{16*WPITCH}
        ds_read_b64_tr_b16 v[72:73], v164
        ds_read_b64_tr_b16 v[74:75], v164 offset:{16*WPITCH}
        s_waitcnt lgkmcnt(0)
        global_store_dwordx4 v165, v[64:67], s[4:5] {PREP_W_POL}
        global_store_dwordx4 v165, v[68:71], s[4:5] offset:1024 {PREP_W_POL}
        global_store_dwordx4 v165, v[72:75], s[4:5] offset:2048 {PREP_W_POL}
        s_branch U_RDONE
        U_RD:
        ds_read_b64_tr_b16 v[64:65], v162
        ds_read_b64_tr_b16 v[66:67], v162 offset:{4*DPITCH}
        ds_read_b64_tr_b16 v[68:69], v162 offset:32
        ds_read_b64_tr_b16 v[70:71], v162 offset:{4*DPITCH+32}
        s_waitcnt lgkmcnt(0)
        global_store_dwordx4 v165, v[64:67], s[4:5] {PREP_W_POL}
        global_store_dwordx4 v166, v[68:71], s[4:5] {PREP_W_POL}
        s_branch U_RDONE
        U_RDONE:
        @FLUSH 13
        s_endpgm
        """)
    info = dict(vgpr=168, sgpr=60, accum=168, grid=N_T + N_K, block=256, lds=CONV_LDS)
    return k, info

def gen_conv():
    k = Kern("conv")
    if FUSE1: k(f"""
    conv2_kernel:
    s_mov_b32 s34, 1
    s_mov_b32 s30, {X2T}
    s_mov_b32 s31, {ST1}
    s_mov_b32 s32, {X3T}
    s_mov_b32 s33, {HB1}
    @KID 4
    """)
    else: k(f"""
    conv1_kernel:
    s_cmp_ge_u32 s2, 512
    s_cbranch_scc1 P_WROLES
    s_mov_b32 s34, {0 if 'W' in WINC else 1}
    s_mov_b32 s30, {XT0}
    s_mov_b32 s31, {ST0}
    s_mov_b32 s32, {X1T}
    s_mov_b32 s33, {HB}
    @KID 1
    """)
    k(f"""
    CONV_BODY:
    s_mov_b32 s54, 2
    s_cmp_ge_u32 s2, 512
    s_cbranch_scc1 CONV_END
    @INIT
    s_load_dwordx2 s[4:5], s[0:1], {KA_WS}
    s_load_dwordx2 s[6:7], s[0:1], {KA_DSKIP}
    """)
    conv_setup(k)
    k(f"""
    s_lshl_b32 s18, s17, 11
    s_add_u32 s18, s18, {CRED}
    """)
    conv_p3(k)
    k("""
    @STAMP 10
    s_waitcnt lgkmcnt(0)
    @STAMP 11
    s_load_dword s20, s[6:7], s16
    """)
    srd(k, 8, 4, WS_BYTES)
    k(f"""
    s_mov_b32 m0, s18
    s_nop 0
    buffer_load_dwordx4 v6, s[8:11], s15 offen lds
    buffer_load_dwordx4 v6, s[8:11], s15 offen offset:1024 lds
    """)
    conv_loads(k)
    npf = 0
    k(f"""
    @STAMP 12
    @STAMP 2
    s_waitcnt vmcnt({5 + npf})
    """)
    for e in range(11):
        k(f"ds_read_u16 v{48+e}, v{48+e}")
    conv_expand(k)
    k(f"""
    s_waitcnt vmcnt({1 + npf})
    @STAMP 3
    """)
    for i in range(4):
        stats_pair(k, 16 + 4*i, 17 + 4*i, 18 + 4*i, 19 + 4*i, 40)
    k(f"s_waitcnt vmcnt({npf})")
    conv_norm(k)
    if CPF:
        if LOCALMAP0:
            k(f"""
            s_lshr_b32 s21, s2, 3
            s_mul_i32 s22, s21, 49152
            s_mul_i32 s23, s17, {PFQ}
            s_add_u32 s22, s22, s23
            s_add_u32 s22, s22, {WP}
            v_min_u32 v38, {PFQ // 128 - 1}, v5
            v_lshlrev_b32 v38, 7, v38
            buffer_load_dword v150, v38, s[8:11], s22 offen
            """)
        else:
            k(f"""
            s_lshr_b32 s21, s2, 3
            s_lshl_b32 s21, s21, 2
            s_add_u32 s21, s21, s17
            s_mul_i32 s22, s21, 6144
            s_and_b32 s23, s2, 1
            s_mul_i32 s23, s23, {8*196608}
            s_add_u32 s22, s22, s23
            s_add_u32 s22, s22, {WP}
            v_lshlrev_b32 v38, 7, v5
            s_cmp_eq_u32 s34, 0
            s_cbranch_scc1 CONV_NOW
            buffer_load_dword v150, v38, s[8:11], s22 offen
            CONV_NOW:
            """)
    if SENT:
        k(f"""
        v_mov_b32 v40, -1
        v_mov_b32 v41, -1
        v_mov_b32 v42, -1
        v_mov_b32 v43, -1
        s_mul_i32 s21, s2, 11520
        s_add_u32 s21, s21, s33
        v_min_u32 v38, {11520 - 8192 - 16}, v1
        buffer_store_dwordx4 v[40:43], v1, s[8:11], s21 offen {POISON_POL}
        s_add_u32 s21, s21, 0x1000
        buffer_store_dwordx4 v[40:43], v1, s[8:11], s21 offen {POISON_POL}
        s_add_u32 s21, s21, 0x1000
        buffer_store_dwordx4 v[40:43], v38, s[8:11], s21 offen {POISON_POL}
        """)
    k.label("CONV_PRE")
    if CODEPF2:
        k(f"""
        s_cmp_ge_u32 s2, 8
        s_cbranch_scc1 CONV_NOPF
        s_getpc_b64 s[22:23]
        CONV_PFPC:
        v_lshlrev_b32 v38, 6, v0
        v_min_u32 v38, TEXT_END-CONV_PFPC-4, v38
        global_load_dword v39, v38, s[22:23]
        CONV_NOPF:
        """)
    k("""
    @STAMP 4
    s_waitcnt lgkmcnt(0)
    s_barrier
    CONV_MAIN2:
    @STAMP 5
    """)
    if CONV_NOPK: k = NoPk(k)
    KF = 48; UB = 16; ACC = 112
    pend = []
    def rd(tag):
        if tag[0] == "U":
            mu = int(tag[1:]); r = UB + 4 * (mu & 3)
            k(f"ds_read_b128 v[{r}:{r+3}], v9 offset:{256*mu}")
        else:
            t = int(tag[1:]); r = KF + 4 * t
            k(f"ds_read_b128 v[{r}:{r+3}], v7 offset:{256*t}")
        pend.append(tag)
    def need(tags):
        idx = max([pend.index(t) for t in tags if t in pend], default=-1)
        if idx >= 0:
            k(f"s_waitcnt lgkmcnt({len(pend) - idx - 1})")
            del pend[:idx + 1]
    queue = ["U0"] + [f"K{t}" for t in range(1, 16, 2)] + ["U1"] + [f"K{t}" for t in range(0, 16, 2)] + ["U2", "U3"]
    for t in queue[:12]: rd(t)
    queue = queue[12:]
    for mu in range(16):
        a = UB + 4 * (mu & 3)
        q0 = max(0, -(-(mu - 1) // 2))
        for q in range(q0, 8):
            tp = 2 * q + 1 - mu
            need([f"U{mu}", f"K{tp}"])
            c = "0" if mu == 0 else f"v[{ACC+4*q}:{ACC+4*q+3}]"
            k(f"v_mfma_f32_16x16x32_bf16 v[{ACC+4*q}:{ACC+4*q+3}], v[{KF+4*tp}:{KF+4*tp+3}], v[{a}:{a+3}], {c}")
            if queue: rd(queue.pop(0))
        if mu + 4 < 16: rd(f"U{mu+4}")
        if mu & 1 and mu >= 3:
            q = (mu - 3) // 2
            k(f"ds_write_b128 v10, v[{ACC+4*q}:{ACC+4*q+3}] offset:{(CRED + (q>>1)*8192 if q < 6 else KL) + (q&1)*1024}")
            pend.append("W")
        if mu == 6:
            assert not any(t[0] == "K" for t in pend + queue)
            k("s_barrier")
    k("@STAMP 6")
    k(f"""
    s_and_b32 s21, s20, 0xffff0000
    s_lshl_b32 s20, s20, 16
    s_bitcmp1_b32 s2, 0
    s_cselect_b32 s20, s21, s20
    """)
    for p in range(4):
        k(f"""
        v_lshlrev_b32 v40, 16, v{32+p}
        v_and_b32 v41, 0xffff0000, v{32+p}
        v_mul_f32 v40, s20, v40
        v_mul_f32 v41, s20, v41
        v_cvt_pk_bf16_f32 v41, v40, v41
        """)
        if p == 0:
            k(f"ds_write_b128 v10, v[{ACC+28}:{ACC+31}] offset:{KL + 1024}")
        k(f"""
        v_lshlrev_b32 v{48+2*p}, 16, v41
        v_and_b32 v{49+2*p}, 0xffff0000, v41
        v_lshlrev_b32 v{56+2*p}, 16, v{12+p}
        v_and_b32 v{57+2*p}, 0xffff0000, v{12+p}
        """)
    k("""
    s_waitcnt lgkmcnt(0)
    s_barrier
    @STAMP 7
    """)
    for src in range(4):
        for t in range(2):
            k(f"ds_read_b128 v[{ACC+8*src+4*t}:{ACC+8*src+4*t+3}], v11 offset:{src*2048 + t*16}")
    k("s_waitcnt lgkmcnt(4)")
    for r in range(0, 8, 2):
        k(f"v_pk_add_f32 v[{ACC+r}:{ACC+r+1}], v[{ACC+r}:{ACC+r+1}], v[{ACC+8+r}:{ACC+9+r}]")
    k("s_waitcnt lgkmcnt(0)")
    for r in range(0, 8, 2):
        k(f"v_pk_add_f32 v[{ACC+16+r}:{ACC+17+r}], v[{ACC+16+r}:{ACC+17+r}], v[{ACC+24+r}:{ACC+25+r}]")
    for r in range(0, 8, 2):
        k(f"v_pk_add_f32 v[{ACC+r}:{ACC+r+1}], v[{ACC+r}:{ACC+r+1}], v[{ACC+16+r}:{ACC+17+r}]")
    k("@STAMP 8")
    for p in range(4):
        y0, y1 = ACC + 2*p, ACC + 2*p + 1
        k(f"""
        v_cvt_pk_bf16_f32 v{y1}, v{y0}, v{y1}
        v_lshlrev_b32 v{y0}, 16, v{y1}
        v_and_b32 v{y1}, 0xffff0000, v{y1}
        v_pk_add_f32 v[{y0}:{y1}], v[{y0}:{y1}], v[{48+2*p}:{49+2*p}]
        v_cvt_pk_bf16_f32 v{y1}, v{y0}, v{y1}
        v_lshlrev_b32 v{y0}, 16, v{y1}
        v_and_b32 v{y1}, 0xffff0000, v{y1}
        v_pk_add_f32 v[{y0}:{y1}], v[{y0}:{y1}], v[{56+2*p}:{57+2*p}]
        v_cvt_pk_bf16_f32 v{44+p}, v{y0}, v{y1}
        """)
    k(f"""
    buffer_store_dwordx4 v[44:47], v2, s[8:11], s14 offen {CONV_ST}
    @STAMP 9
    s_cmp_lg_u32 s54, 2
    s_cbranch_scc1 {'F1_TAIL' if FUSE1 else 'CONV_END'}
    @FLUSH 13
    CONV_END:
    s_endpgm
    """)
    if not FUSE1: k(f"""
    .p2align 8
    conv2_kernel:
    s_mov_b32 s34, 1
    s_mov_b32 s30, {X2T}
    s_mov_b32 s31, {ST1}
    s_mov_b32 s32, {X3T}
    s_mov_b32 s33, {HB1}
    @KID 4
    s_branch CONV_BODY
    """)
    if CONV_NOPK: k = k.k
    info = dict(vgpr=168, sgpr=60, accum=168, grid=512, block=256, lds=CONV_LDS)
    return k, info

MLP_LDS = 163840
H_LD = os.environ.get('H_LD', 'sc1')
M_PRE2 = int(os.environ.get('M_PRE2', '5'))
M_OLD = int(os.environ.get('M_OLD', '1'))
M_FINE = int(os.environ.get('M_FINE', '1'))
M_LOOK = int(os.environ.get('M_LOOK', '5'))
M_TOUCH = int(os.environ.get('M_TOUCH', '0'))
M_PRE = int(os.environ.get('M_PRE', '8'))
M_OPS = int(os.environ.get('M_OPS', '3'))
M_RAMP = int(os.environ.get('M_RAMP', '5'))
M_LATE = int(os.environ.get('M_LATE', '-100'))
LOCALMAP = int(os.environ.get('LOCALMAP', '0'))
LOC_POL = os.environ.get('LOC_POL', 'sc1')
IDT = ZR + 0x4000
M_PRIO = int(os.environ.get('M_PRIO', '0'))
M_FIRST = int(os.environ.get('M_FIRST', '1'))
M_WDT = int(os.environ.get('M_WDT', '-1'))
M_STW = int(os.environ.get('M_STW', '0'))
M_WDM = int(os.environ.get('M_WDM', '6'))
M_WDE = int(os.environ.get('M_WDE', '2'))
M_AHEAD2 = int(os.environ.get('M_AHEAD2', '6'))
SPIN_MAX = 1 << 20
SLOT = 40960
def gen_mlp():
    k = Kern("mlp")
    ACC = 0
    FR = 48
    XA = 104
    WA = 112
    CSR = 114
    STV = 126
    RES = 130
    VDMA, VW, VT0, VT1, VT2 = 134, 135, 136, 137, 138
    SA = 139
    VRES = 142; VSTX = 143; VPUB = 144; VCS = 145
    MR = 146
    TMP = 150
    NV = 168
    VID = TMP + 14
    VRES2 = TMP + 9
    def wdreg(i): return f"a[{4*i}:{4*i+3}]"
    k(f"""
    mlpa_kernel:
    s_mov_b32 s30, {X1T}
    s_mov_b32 s31, {HB}
    s_mov_b32 s33, {STX}
    s_mov_b32 s34, {FLG}
    s_mov_b32 s35, 0
    s_mov_b32 s56, {IDT}
    @KID 2
    M_BODY:
    s_cmp_ge_u32 s2, 256
    s_cbranch_scc1 M_END
    @INIT
    s_load_dwordx2 s[4:5], s[0:1], {KA_WS}
    s_load_dwordx2 s[6:7], s[0:1], {KA_OUT}
    v_readfirstlane_b32 s17, v0
    s_and_b32 s12, s2, 7                  ; xcd
    s_lshr_b32 s13, s2, 3                 ; idx
    """)
    if LOCALMAP:
        k(f"""
        s_lshl_b32 s14, s12, 1
        s_and_b32 s15, s13, 1
        s_add_u32 s14, s14, s15
        s_lshl_b32 s36, s12, 2
        s_and_b32 s15, s13, 3
        s_add_u32 s36, s36, s15
        s_lshr_b32 s37, s13, 2                ; dt
        s_lshr_b32 s15, s13, 1                ; ft
        """)
    else:
        k(f"""
    s_lshr_b32 s14, s12, 1
    s_lshl_b32 s14, s14, 2
    s_and_b32 s15, s13, 3
    s_add_u32 s14, s14, s15               ; lt
    s_lshl_b32 s36, s12, 2
    s_add_u32 s36, s36, s15               ; lt64
    s_lshr_b32 s37, s13, 2                ; dt
    s_and_b32 s15, s12, 1
    s_lshl_b32 s15, s15, 3
    s_add_u32 s15, s15, s37               ; ft
        """)
    k(f"""
    s_lshr_b32 s17, s17, 6                ; w
    s_and_b32 s16, s17, 3
    s_lshr_b32 s29, s17, 2
    v_and_b32 v{VT0}, 63, v0              ; lane
    v_and_b32 v{VT1}, 15, v0              ; lam / j
    v_bfe_u32 v{VT2}, v0, 4, 2            ; g
    v_lshlrev_b32 v{VDMA}, 4, v{VT0}
    v_lshlrev_b32 v{VW}, 4, v{VT0}                    ; lane*16
    s_lshl_b32 s18, s14, 17
    s_add_u32 s18, s18, s30
    s_lshl_b32 s19, s17, 10
    s_add_u32 s18, s18, s19
    s_lshl_b32 s19, s17, 10               ; x m0 part: w*1024
    s_lshl_b32 s20, s15, 2
    s_add_u32 s20, s20, s16
    s_lshl_b32 s21, s20, 4
    s_add_u32 s21, s21, s29
    s_mul_i32 s21, s21, 3072
    s_add_u32 s21, s21, {WP}
    s_mul_i32 s22, s17, 3072
    s_add_u32 s22, s22, 0x4000
    s_mul_i32 s24, s20, {3*16*4}
    s_add_u32 s24, s24, {CSUM}
    s_lshl_b32 s38, s37, 2
    s_add_u32 s38, s38, s16
    s_mul_i32 s38, s38, {NKS2*1024}
    s_mul_i32 s23, s29, {22*1024}
    s_add_u32 s38, s38, s23
    s_add_u32 s38, s38, {WD}
    """)
    def group_parts(t):
        base = (t & 3) * SLOT
        parts = [f"""
        s_add_u32 m0, s19, {base}
        s_nop 0
        buffer_load_dwordx4 v{VDMA}, s[8:11], s18 offen lds
        s_add_u32 s18, s18, 0x2000
        """, f"""
        s_add_u32 m0, s22, {base}
        s_nop 0
        buffer_load_dwordx4 v{VW}, s[8:11], s21 offen lds
        """, f"""
        buffer_load_dwordx4 v{VW}, s[8:11], s21 offen offset:1024 lds
        """, f"""
        buffer_load_dwordx4 v{VW}, s[8:11], s21 offen offset:2048 lds
        s_add_u32 s21, s21, 0x1800
        """, f"""
        s_add_u32 m0, s19, {base + 8192}
        s_nop 0
        buffer_load_dwordx4 v{VDMA}, s[8:11], s18 offen lds
        s_add_u32 s18, s18, 0x2000
        """]
        return parts
    def wd_part(i):
        p = f"buffer_load_dwordx4 {wdreg(i)}, v{VW}, s[8:11], s38 offen offset:{1024*(i&3)}"
        if (i & 3) == 3: p += "\ns_add_u32 s38, s38, 0x1000"
        return p
    def common_addr():
        k(f"""
        s_mov_b32 s43, {fl(1.0/512)}
        s_mov_b32 s44, {fl(1e-5)}
        s_mov_b32 s45, {fl(-LOG2E)}
        v_lshrrev_b32 v{TMP}, 2, v{VT1}
        v_lshl_add_u32 v{TMP}, v{VT2}, 2, v{TMP}          ; 4g + r
        v_and_b32 v{TMP+1}, 7, v{TMP}                     ; xi
        v_and_b32 v{TMP+2}, 3, v{VT1}
        v_lshlrev_b32 v{TMP+2}, 3, v{TMP+2}
        v_lshl_add_u32 v{TMP+2}, v{TMP}, 8, v{TMP+2}
        v_mul_u32_u24 v{VRES}, {XP}, v{VT1}
        v_lshl_add_u32 v{VRES}, v{VT2}, 4, v{VRES}
        s_lshl_b32 s39, s37, 2
        s_add_u32 s39, s39, s16
        s_mul_i32 s39, s39, {16*XP}
        s_lshl_b32 s40, s36, 7
        s_add_u32 s39, s39, s40
        s_lshl_b32 s40, s29, 6
        s_add_u32 s39, s39, s40
        s_lshr_b32 s40, s36, 1
        s_lshl_b32 s40, s40, 17
        s_add_u32 s40, s40, s30
        s_lshl_b32 s26, s37, 2
        s_add_u32 s26, s26, s16
        s_lshl_b32 s26, s26, 12
        s_add_u32 s40, s40, s26
        s_and_b32 s26, s36, 1
        s_lshl_b32 s26, s26, 1
        s_add_u32 s26, s26, s29
        s_lshl_b32 s26, s26, 1
        v_lshrrev_b32 v{TMP+3}, 1, v{VT2}
        v_add_u32 v{TMP+3}, s26, v{TMP+3}
        v_and_b32 v{TMP+4}, 7, v{VT1}
        v_xor_b32 v{TMP+3}, v{TMP+3}, v{TMP+4}
        v_lshlrev_b32 v{TMP+3}, 5, v{TMP+3}
        v_lshl_add_u32 v{TMP+3}, v{VT1}, 8, v{TMP+3}
        v_and_b32 v{TMP+4}, 1, v{VT2}
        v_lshl_add_u32 v{VRES2}, v{TMP+4}, 4, v{TMP+3}
        """)
    res_parts = [f"buffer_load_dwordx4 v[{RES}:{RES+3}], v{VRES2}, s[8:11], s40 offen"]
    common_addr()
    k("s_lshl_b32 s25, s29, 2")
    for b in range(4):
        k(f"""
        s_add_u32 s26, s25, {b}
        v_xor_b32 v{TMP+3}, s26, v{TMP+1}
        v_lshl_add_u32 v{XA+b}, v{TMP+3}, 5, v{TMP+2}
        v_add_u32 v{XA+4+b}, {2*SLOT}, v{XA+b}
        """)
    k(f"""
    s_mul_i32 s26, s16, 3072
    s_add_u32 s26, s26, 0x4000
    v_add_u32 v{WA}, s26, v{VW}
    v_add_u32 v{WA+1}, {2*SLOT}, v{WA}
    """)
    def late_addr():
        k(f"""
        v_bfe_u32 v{TMP}, v{VT1}, 2, 1                    ; half
        v_mul_u32_u24 v{TMP+4}, 3072, v{TMP}
        v_lshrrev_b32 v{TMP}, 3, v{VT1}
        v_lshl_add_u32 v{TMP+4}, v{TMP}, 6, v{TMP+4}
        v_and_b32 v{TMP}, 3, v{VT1}
        v_lshl_add_u32 v{TMP+4}, v{TMP}, 4, v{TMP+4}
        v_lshl_add_u32 v{TMP+4}, v{VT2}, 8, v{TMP+4}
        s_lshl_b32 s26, s16, 10
        s_cmp_eq_u32 s16, 3
        s_cselect_b32 s26, 12, s26
        s_cselect_b32 s27, 0x400, 4
        s_mul_i32 s28, s29, 12288
        s_add_u32 s26, s26, s28
        v_add_u32 v{SA}, s26, v{TMP+4}
        v_add_u32 v{SA+1}, s27, v{SA}
        v_add_u32 v{SA+2}, s27, v{SA+1}
        v_lshlrev_b32 v{VSTX}, 2, v{VT1}
        s_lshl_b32 s41, s14, 9
        s_lshl_b32 s26, s29, 8
        s_add_u32 s41, s41, s26
        s_add_u32 s41, s41, s33
        s_and_b32 s27, s17, 1
        s_and_b32 s28, s17, 2
        s_lshl_b32 s28, s28, 1
        s_or_b32 s27, s27, s28
        s_lshl_b32 s28, s29, 1
        s_or_b32 s27, s27, s28
        s_mul_i32 s26, s27, 3072
        v_add_u32 v{VPUB}, s26, v{VW}
        s_lshl_b32 s42, s14, 3
        s_add_u32 s42, s42, s27
        s_mul_i32 s42, s42, {HKS*1024}
        s_mul_i32 s26, s15, 3072
        s_add_u32 s42, s42, s26
        s_add_u32 s42, s42, s31
        v_lshlrev_b32 v{VCS}, 4, v{VT2}
        """)
    late_addr()
    k(f"""
    v_lshrrev_b32 v{TMP+6}, 3, v{VT0}
    v_mul_u32_u24 v{TMP+6}, {XP}, v{TMP+6}
    v_and_b32 v{TMP+7}, 7, v{VT0}
    v_lshl_add_u32 v{TMP+6}, v{TMP+7}, 5, v{TMP+6}
    s_lshl_b32 s46, s37, 3
    s_add_u32 s46, s46, s17
    s_mul_i32 s46, s46, {8*XP}
    s_lshl_b32 s47, s14, 8
    s_add_u32 s46, s46, s47
    s_add_u32 s46, s46, s30
    """)
    if LOCALMAP:
        k(f"""
        s_getreg_b32 s23, hwreg(HW_REG_XCC_ID)
        s_and_b32 s23, s23, 15
        s_add_u32 s23, s23, 1
        s_lshl_b32 s26, s12, 7
        s_add_u32 s56, s56, s26
        s_lshl_b32 s26, s13, 2
        v_mov_b32 v{VID}, s23
        v_mov_b32 v{VID+1}, s26
        v_and_b32 v{VID+2}, 31, v{VT0}
        v_lshlrev_b32 v{VID+2}, 2, v{VID+2}
        """)
    k("s_waitcnt lgkmcnt(0)")
    srd(k, 8, 4, WS_BYTES)
    if M_TOUCH & 1: k(f"buffer_load_dword v{TMP+8}, v{TMP+6}, s[8:11], s46 offen")
    def id_store(tag):
        if LOCALMAP:
            k(f"""
            s_mov_b64 exec, 1
            buffer_store_dword v{VID}, v{VID+1}, s[8:11], s56 offen sc1
            s_mov_b64 exec, -1
            """)
    if M_PRIO:
        k(f"""
        s_cmp_lg_u32 s29, {M_PRIO - 1}
        s_cbranch_scc1 M_NOPRIO
        s_setprio 1
        M_NOPRIO:
        """)
    k("""
    s_cmp_eq_u32 s15, 15
    s_cbranch_scc1 M_STATS
    """)
    def reads(s):
        res = []
        t = s >> 1; hi = (t & 3) >> 1; base = (t & 1) * SLOT
        buf = FR + 28 * (s & 1)
        for tau in range(3):
            r = buf + 16 + 4 * tau
            res.append(f"ds_read_b128 v[{r}:{r+3}], v{WA+hi} offset:{base + (s&1)*12288 + tau*1024}")
        for b in range(4):
            off = base + (s & 1) * 8192
            res.append(f"ds_read_b64_tr_b16 v[{buf+4*b}:{buf+4*b+1}], v{XA+4*hi+b} offset:{off}")
            res.append(f"ds_read_b64_tr_b16 v[{buf+4*b+2}:{buf+4*b+3}], v{XA+4*hi+b} offset:{off+4096}")
        return res
    later = [f"buffer_load_dwordx4 v[{CSR+4*tau}:{CSR+4*tau+3}], v{VCS}, s[8:11], s24 offen offset:{64*tau}" for tau in range(3)]
    later += res_parts
    later += [f"buffer_load_dword v{STV+b}, v{VSTX}, s[8:11], s41 offen offset:{64*b} sc1" for b in range(4)]
    if LOCALMAP: later += [f"buffer_load_dword v{VID+3}, v{VID+2}, s[8:11], s56 offen sc1"]
    n_crit = len(later)
    later += [wd_part(i) for i in range(M_WDM)]
    n_need = len(later)
    later += [wd_part(i) for i in range(M_WDM, 22)]
    vm = []
    def wait_for(tag):
        assert not any(o[1] == tag for o in opq), tag
        idxs = [i for i, x in enumerate(vm) if x == tag]
        if not idxs: return
        idx = max(idxs)
        k(f"s_waitcnt vmcnt({len(vm) - idx - 1})")
        del vm[:idx + 1]
    opq = []
    for u in range(8):
        gp = group_parts(u)
        e0 = max(2*u - 7, 2*u - M_LOOK)
        if M_OLD: e0 = {0: -1, 1: -1, 2: 0, 3: 1}.get(u, 2*u - 6)
        for j in (0, 1, 2): opq.append((gp[j], f"D{2*u}", e0))
        opq.append((gp[3], f"D{2*u}", e0 + 1 if u > (3 if M_OLD else 1) else e0))
        opq.append((gp[4], f"D{2*u+1}", e0 + 1 if u > (3 if M_OLD else 1) else e0))
    for i, p in enumerate(later[:n_need]): opq.append((p, "N" if i < n_crit else "L", -100 if i < n_crit else M_LATE))
    nlater = n_need
    def issue(n, s):
        out = []
        while opq and len(out) < n and opq[0][2] <= s:
            out.append(opq.pop(0))
        return out
    for p, tag, _ in issue(10 if M_OLD else M_PRE, -1):
        k(p); vm.append(tag)
    k("@STAMP 2")
    wait_for("D1" if (M_OLD and not M_FIRST) else "D0")
    k("s_barrier")
    k("@STAMP 3")
    for r in reads(0): k(r)
    EXP = os.environ.get('EXP', '')
    for s in range(16):
        if M_OLD:
            bar = False
            if s == 0 and M_FIRST: wait_for("D1"); bar = True
            if s == 1: wait_for("D3"); bar = True
            elif (s & 1) == 0 and 0 < s < 14: wait_for(f"D{s+3}"); bar = True
            if bar: k("s_barrier")
            k("s_waitcnt lgkmcnt(0)")
        elif M_FINE:
            if s < 15: wait_for(f"D{s+1}")
            k("s_waitcnt lgkmcnt(0)")
            if s < 15: k("s_barrier")
        else:
            if s == 0: wait_for("D1")
            elif s < 15 and (s & 1): wait_for(f"D{s+2}")
            k("s_waitcnt lgkmcnt(0)")
            if s < 15 and (s == 0 or (s & 1)): k("s_barrier")
        if s == 8: k("@STAMP 4")
        if s == M_WDT:
            k(f"""
            s_lshl_b32 s46, s13, 3
            s_add_u32 s46, s46, s17
            s_mul_i32 s46, s46, 6528
            s_add_u32 s46, s46, {WD}
            v_min_u32 v{TMP+6}, 50, v{VT0}
            v_lshlrev_b32 v{TMP+6}, 7, v{TMP+6}
            buffer_load_dword v{TMP+8}, v{TMP+6}, s[8:11], s46 offen
            """)
            vm.append("T")
        if s == 3 and LOCALMAP:
            id_store("m"); vm.append("I")
        fill = reads(s + 1) if s < 15 else []
        mf = []
        buf = FR + 28 * (s & 1)
        for b in range(4):
            for tau in range(3):
                a = ACC + (b * 3 + tau) * 4
                c = "0" if s == 0 else f"v[{a}:{a+3}]"
                mf.append(f"v_mfma_f32_16x16x32_bf16 v[{a}:{a+3}], v[{buf+16+4*tau}:{buf+19+4*tau}], v[{buf+4*b}:{buf+4*b+3}], {c}")
        parts = issue((5 if (s < 2 or s >= 12) else 3) if M_OLD else (M_OPS if s < M_RAMP else (5 if s >= 12 else 3)), s)
        step = 12 // max(len(parts), 1)
        slots = {1 + step * j: p for j, p in enumerate(parts)}
        for i, m in enumerate(mf):
            k(m)
            if i < len(fill): k(fill[i])
            if i in slots:
                k(slots[i][0]); vm.append(slots[i][1])
    assert not opq, len(opq)
    assert nlater >= n_need
    k("@STAMP 5")
    wait_for("N")
    k(f"""
    s_mov_b32 s47, 0
    M_STCHK:
    v_min3_u32 v{TMP}, v{STV}, v{STV+1}, v{STV+2}
    v_min_u32 v{TMP}, v{TMP}, v{STV+3}
    v_cmp_eq_u32 vcc, 0, v{TMP}
    s_cmp_eq_u64 vcc, 0
    s_cbranch_scc1 M_STOK
    s_add_u32 s47, s47, 1
    s_cmp_ge_u32 s47, {SPIN_MAX}
    s_cbranch_scc1 M_STOK
    s_sleep 2
    """)
    for b in range(4): k(f"buffer_load_dword v{STV+b}, v{VSTX}, s[8:11], s41 offen offset:{64*b} sc1")
    k("""
    s_waitcnt vmcnt(0)
    s_branch M_STCHK
    M_STOK:
    @STAMP 6
    """)
    if LOCALMAP:
        k(f"""
        v_cmp_ne_u32 vcc, s23, v{VID+3}
        s_cmp_eq_u64 vcc, 0
        s_cselect_b32 s54, 1, 0
        """)
    PB = FR
    def pub():
        for i in range(3):
            k(f"ds_read_b128 v[{PB+4*i}:{PB+4*i+3}], v{VPUB} offset:{1024*i}")
        if LOCALMAP:
            pub.n += 1
            k(f"""
            s_cmp_eq_u32 s54, 0
            s_cbranch_scc1 M_PG{pub.n}
            """)
            for i in range(3):
                k(f"s_waitcnt lgkmcnt({2-i})")
                k(f"buffer_store_dwordx4 v[{PB+4*i}:{PB+4*i+3}], v{VW}, s[8:11], s42 offen offset:{1024*i} {LOC_POL}")
            k(f"s_branch M_PE{pub.n}\nM_PG{pub.n}:")
        for i in range(3):
            k(f"s_waitcnt lgkmcnt({2-i})")
            k(f"buffer_store_dwordx4 v[{PB+4*i}:{PB+4*i+3}], v{VW}, s[8:11], s42 offen offset:{1024*i} sc1")
        if LOCALMAP: k(f"M_PE{pub.n}:")
    pub.n = 0
    for b in range(4):
        m = MR
        k(f"""
        v_and_b32 v{m+2}, 0xffff0000, v{STV+b}        ; s
        v_lshlrev_b32 v{m}, 16, v{STV+b}              ; m
        v_rcp_f32 v{m+1}, v{m+2}
        v_mul_f32 v{m+1}, s45, v{m+1}
        """)
        for tau in range(3):
            a = ACC + (b * 3 + tau) * 4
            c = CSR + 4 * tau
            k(f"""
            v_pk_fma_f32 v[{a}:{a+1}], v[{m}:{m+1}], v[{c}:{c+1}], v[{a}:{a+1}] op_sel_hi:[0,1,1] neg_lo:[1,0,0] neg_hi:[1,0,0]
            v_pk_fma_f32 v[{a+2}:{a+3}], v[{m}:{m+1}], v[{c+2}:{c+3}], v[{a+2}:{a+3}] op_sel_hi:[0,1,1] neg_lo:[1,0,0] neg_hi:[1,0,0]
            v_pk_mul_f32 v[{a}:{a+1}], v[{a}:{a+1}], v[{m}:{m+1}] op_sel:[0,1] op_sel_hi:[1,1]
            v_exp_f32 v{a}, v{a}
            v_exp_f32 v{a+1}, v{a+1}
            """)
            if tau < M_WDE and nlater < len(later):
                k(later[nlater]); nlater += 1
        for tau in range(3):
            a = ACC + (b * 3 + tau) * 4
            k(f"""
            v_pk_fma_f32 v[{a}:{a+1}], v[{a}:{a+1}], v[{m+2}:{m+3}], v[{m+2}:{m+3}] op_sel_hi:[1,0,0]
            v_rcp_f32 v{a}, v{a}
            v_rcp_f32 v{a+1}, v{a+1}
            """)
        for _ in range(M_WDE - 3):
            if nlater < len(later):
                k(later[nlater]); nlater += 1
        for tau in range(3):
            a = ACC + (b * 3 + tau) * 4
            k(f"""
            v_pk_mul_f32 v[{a}:{a+1}], v[{a}:{a+1}], v[{a+2}:{a+3}]
            v_cvt_pk_bf16_f32 v{a}, v{a}, v{a+1}
            ds_write_b32 v{SA+tau}, v{a} offset:{(b>>1)*6144 + (b&1)*128}
            """)
        if b == 1 and SPLITPUB:
            k("""
            s_waitcnt lgkmcnt(0)
            s_barrier
            s_cmp_lg_u32 s29, 0
            s_cbranch_scc1 M_PUB1
            """)
            pub()
            k.label("M_PUB1")
    k("""
    s_waitcnt lgkmcnt(0)
    s_barrier
    @STAMP 7
    """)
    if SPLITPUB:
        k("""
        s_cmp_eq_u32 s29, 0
        s_cbranch_scc1 M_PUB2
        """)
    pub()
    k.label("M_PUB2")
    rest = later[nlater:]
    if not SENT:
        k(f"""
        s_lshl_b32 s26, s14, 4
        s_add_u32 s26, s26, s15
        s_lshl_b32 s26, s26, 7
        s_add_u32 s26, s26, s34
        v_mov_b32 v{TMP}, 1
        v_mov_b32 v{TMP+1}, 0
        s_waitcnt vmcnt(0)
        s_barrier
        s_cmp_lg_u32 s17, 0
        s_cbranch_scc1 M_NOFLAG
        s_mov_b64 exec, 1
        s_cmp_eq_u32 s54, {1 if LOCALMAP else 77}
        s_cbranch_scc1 M_FLOC
        buffer_store_dword v{TMP}, v{TMP+1}, s[8:11], s26 offen sc1
        s_branch M_FEND
        M_FLOC:
        buffer_store_dword v{TMP}, v{TMP+1}, s[8:11], s26 offen
        M_FEND:
        s_mov_b64 exec, -1
        M_NOFLAG:
        """)
    for p in rest: k(p)
    HA = XA
    k(f"""
    M_SYNC:
    @CODEPF3
    s_mov_b32 s55, 0
    M_SYNC2:
    @STAMP 8
    v_mov_b32 v{TMP+10}, 0
    s_lshl_b32 s26, s36, 2
    s_add_u32 s26, s26, s16
    s_mul_i32 s26, s26, {HKS*1024}
    s_mul_i32 s27, s29, {22*1024}
    s_add_u32 s26, s26, s27
    s_add_u32 s26, s26, s31
    s_lshl_b32 s27, s17, 11               ; m0 part
    s_mul_i32 s28, s29, 0x3000
    v_add_u32 v{HA}, s28, v{VW}
    s_lshl_b32 s28, s29, 12
    s_add_u32 s28, s28, 0x1000
    v_add_u32 v{HA+1}, s28, v{VW}
    v_add_u32 v{HA+2}, 0x10000, v{HA}
    v_add_u32 v{HA+3}, 0x10000, v{HA+1}
    v_add_u32 v{HA+4}, 0x20000, v{HA}
    v_add_u32 v{HA+5}, 0x20000, v{HA+1}
    s_cmp_lg_u32 s17, 1
    s_cbranch_scc1 M_WAITB
    """)
    if SENT:
        k(f"""
        s_mul_i32 s28, s36, {4*HKS*1024}
        s_add_u32 s28, s28, s31
        v_min_u32 v{TMP+4}, 14, v{VT1}
        v_mul_u32_u24 v{TMP+4}, 3072, v{TMP+4}
        v_mul_u32_u24 v{TMP+5}, {HKS*1024}, v{VT2}
        v_add_u32 v{TMP+4}, v{TMP+4}, v{TMP+5}
        s_mov_b32 s47, 0
        M_POLL:
        buffer_load_dword v{TMP+5}, v{TMP+4}, s[8:11], s28 offen offset:3056 sc1
        s_waitcnt vmcnt(0)
        v_cmp_eq_u32 vcc, -1, v{TMP+5}
        s_cmp_eq_u64 vcc, 0
        s_cbranch_scc1 M_WAITB
        s_sleep {SENT_SLEEP}
        s_add_u32 s47, s47, 1
        s_cmp_lt_u32 s47, {SPIN_MAX}
        s_cbranch_scc1 M_POLL
        """)
    else:
        k(f"""
        s_lshr_b32 s28, s36, 1
        s_lshl_b32 s28, s28, 11
        s_add_u32 s28, s28, s34
        v_min_u32 v{TMP+4}, 14, v{VT0}
        v_lshlrev_b32 v{TMP+4}, 7, v{TMP+4}
        s_mov_b32 s47, 0
        M_POLL:
        buffer_load_dword v{TMP+5}, v{TMP+4}, s[8:11], s28 offen sc1
        s_waitcnt vmcnt(0)
        v_cmp_eq_u32 vcc, 0, v{TMP+5}
        s_cmp_eq_u64 vcc, 0
        s_cbranch_scc1 M_WAITB
        s_add_u32 s47, s47, 1
        s_cmp_lt_u32 s47, {SPIN_MAX}
        s_cbranch_scc1 M_POLL
        """)
    k(f"""
    M_WAITB:
    s_lshl_b32 s46, s37, 3
    s_add_u32 s46, s46, s17
    s_mul_i32 s46, s46, 2880
    s_mul_i32 s47, s36, {4*HKS*1024}
    s_add_u32 s46, s46, s47
    s_add_u32 s46, s46, s31
    v_min_u32 v{TMP+6}, 44, v{VT0}
    v_lshlrev_b32 v{TMP+6}, 6, v{TMP+6}
    s_barrier
    @STAMP 9
    """)
    if M_TOUCH & 2: k(f"buffer_load_dword v{TMP+8}, v{TMP+6}, s[8:11], s46 offen")
    def hchunk(c):
        return [f"""
        s_add_u32 m0, s27, {(c % 10) * 16384}
        s_nop 0
        buffer_load_dwordx4 v{VW}, s[8:11], s26 offen {H_LD} lds
        """, f"""
        buffer_load_dwordx4 v{VW}, s[8:11], s26 offen offset:1024 {H_LD} lds
        s_add_u32 s26, s26, 0x800
        """]
    HF = 16
    A2 = 0
    def hreads(c):
        res = []
        for i in range(2):
            for lb in range(4):
                off = (c % 10) * 16384 + (lb & 1) * 2048 + i * 1024
                base = HA + 2 * (off >> 16) + (lb >> 1)
                r = HF + 32 * (c & 1) + (i * 4 + lb) * 4
                res.append(f"ds_read_b128 v[{r}:{r+3}], v{base} offset:{off & 0xffff}")
        return res
    iss = M_PRE2
    for c in range(iss):
        for p in hchunk(c): k(p)
    k(f"s_waitcnt vmcnt({2*(iss-1)})")
    k("s_barrier")
    k("@STAMP 10")
    for r in hreads(0): k(r)
    for c in range(11):
        fill = []
        if c < 10:
            k(f"s_waitcnt vmcnt({2*(iss-(c+2))})")
            k("s_barrier")
        k("s_waitcnt lgkmcnt(0)")
        if c < 10: fill = hreads(c + 1)
        parts = []
        for rep_ in range(2):
            if iss < 11 and (iss < 10 or c >= 1) and iss < c + M_AHEAD2:
                parts += hchunk(iss); iss += 1
        slots = {1 + 2 * j: p for j, p in enumerate(parts)}
        n = 0
        for i in range(2):
            for lb in range(4):
                r = HF + 32 * (c & 1) + (i * 4 + lb) * 4
                a = A2 + 4 * lb
                cc = "0" if (c == 0 and i == 0) else f"v[{a}:{a+3}]"
                k(f"v_mfma_f32_16x16x32_bf16 v[{a}:{a+3}], v[{r}:{r+3}], {wdreg(2*c+i)}, {cc}")
                if SENT and (n & 1) == 0: k(f"v_max3_u32 v{TMP+10}, v{r}, v{r+4}, v{TMP+10}")
                if n < len(fill): k(fill[n])
                if n in slots: k(slots[n])
                n += 1
    k("@STAMP 11")
    XB = 65536
    k(f"""
    s_lshl_b32 s26, s17, 11
    s_add_u32 s26, s26, {XB}
    v_add_u32 v{TMP}, s26, v{VW}
    s_xor_b32 s26, s26, 0x2000
    v_add_u32 v{TMP+1}, s26, v{VW}
    """)
    for j in range(4):
        k(f"v_lshlrev_b32 v{32+2*j}, 16, v{RES+j}")
        k(f"v_and_b32 v{33+2*j}, 0xffff0000, v{RES+j}")
    k(f"""
    ds_write_b128 v{TMP}, v[8:11]
    ds_write_b128 v{TMP}, v[12:15] offset:1024
    """)
    if SENT:
        k(f"""
        v_cmp_eq_u32 vcc, -1, v{TMP+10}
        s_cmp_lg_u64 vcc, 0
        s_cselect_b32 s26, 1, 0
        s_lshl_b32 s27, s17, 2
        s_add_u32 s27, s27, {XB + 16384}
        v_mov_b32 v{TMP+11}, s26
        v_mov_b32 v{TMP+12}, s27
        v_and_b32 v{TMP+13}, 7, v{VT0}
        v_lshlrev_b32 v{TMP+13}, 2, v{TMP+13}
        v_add_u32 v{TMP+13}, {XB + 16384}, v{TMP+13}
        ds_write_b32 v{TMP+12}, v{TMP+11}
        """)
    k(f"""
    s_waitcnt lgkmcnt(0)
    s_barrier
    ds_read_b128 v[8:11], v{TMP+1}
    ds_read_b128 v[12:15], v{TMP+1} offset:1024
    """)
    if SENT:
        k(f"""
        ds_read_b32 v{TMP+11}, v{TMP+13}
        s_waitcnt lgkmcnt(0)
        v_cmp_ne_u32 vcc, 0, v{TMP+11}
        s_cmp_eq_u64 vcc, 0
        s_cbranch_scc1 M_OK
        s_add_u32 s55, s55, 1
        s_cmp_lt_u32 s55, 64
        s_cbranch_scc1 M_SYNC2
        M_OK:
        """)
    k("s_waitcnt lgkmcnt(0)")
    OUT = 16
    for j in range(4):
        y0, y1 = A2 + 2*j, A2 + 2*j + 1
        k(f"""
        v_pk_add_f32 v[{y0}:{y1}], v[{y0}:{y1}], v[{y0+8}:{y1+8}]
        v_cvt_pk_bf16_f32 v{y1}, v{y0}, v{y1}
        v_lshlrev_b32 v{y0}, 16, v{y1}
        v_and_b32 v{y1}, 0xffff0000, v{y1}
        v_pk_add_f32 v[{y0}:{y1}], v[{y0}:{y1}], v[{32+2*j}:{33+2*j}]
        v_cvt_pk_bf16_f32 v{OUT+j}, v{y0}, v{y1}
        """)
    k(f"""
    s_cmp_lg_u32 s35, 0
    s_cbranch_scc1 M_FINAL
    s_add_u32 s40, s39, {X2T}
    buffer_store_dwordx4 v[{OUT}:{OUT+3}], v{VRES}, s[8:11], s40 offen {X2_ST}
    """)
    Q = 48
    for j in range(4):
        k(f"""
        v_lshlrev_b32 v{Q+4*j}, 16, v{OUT+j}
        v_and_b32 v{Q+4*j+2}, 0xffff0000, v{OUT+j}
        v_mul_f32 v{Q+4*j+1}, v{Q+4*j}, v{Q+4*j}
        v_mul_f32 v{Q+4*j+3}, v{Q+4*j+2}, v{Q+4*j+2}
        """)
    for q in range(8):
        k(f"v_add_f32_dpp v{Q+q}, v{Q+q}, v{Q+q} row_ror:8 row_mask:0xf bank_mask:0x3")
        k(f"v_add_f32_dpp v{Q+q}, v{Q+q+8}, v{Q+q+8} row_ror:8 row_mask:0xf bank_mask:0xc")
    for q in range(4):
        k(f"v_add_f32_dpp v{Q+q}, v{Q+q}, v{Q+q} row_shl:4 row_mask:0xf bank_mask:0x5")
        k(f"v_add_f32_dpp v{Q+q}, v{Q+q+4}, v{Q+q+4} row_shr:4 row_mask:0xf bank_mask:0xa")
    for q in range(4):
        k(f"v_add_f32_dpp v{Q+q}, v{Q+q}, v{Q+q} quad_perm:[1,0,3,2] row_mask:0xf bank_mask:0xf")
    for q in range(4):
        k(f"v_add_f32_dpp v{Q+q}, v{Q+q}, v{Q+q} quad_perm:[2,3,0,1] row_mask:0xf bank_mask:0xf")
    SB = 98304
    k(f"""
    v_and_b32 v{TMP}, 3, v{VT1}
    v_cmp_eq_u32 s[48:49], 1, v{TMP}
    v_cmp_eq_u32 s[50:51], 2, v{TMP}
    v_cmp_eq_u32 s[52:53], 3, v{TMP}
    v_lshrrev_b32 v{TMP+1}, 2, v{VT1}
    v_lshlrev_b32 v{TMP+1}, 7, v{TMP+1}
    v_lshl_add_u32 v{TMP+1}, v{VT2}, 4, v{TMP+1}
    v_lshl_add_u32 v{TMP+1}, v{TMP}, 2, v{TMP+1}
    s_lshl_b32 s26, s16, 9
    s_lshl_b32 s27, s29, 6
    s_add_u32 s26, s26, s27
    s_add_u32 s26, s26, {SB}
    v_add_u32 v{TMP+1}, s26, v{TMP+1}
    v_cndmask_b32 v{Q}, v{Q}, v{Q+1}, s[48:49]
    v_cndmask_b32 v{Q}, v{Q}, v{Q+2}, s[50:51]
    v_cndmask_b32 v{Q}, v{Q}, v{Q+3}, s[52:53]
    ds_write_b32 v{TMP+1}, v{Q}
    s_lshl_b32 s26, s17, 8
    s_add_u32 s26, s26, {SB}
    v_lshl_add_u32 v{TMP+2}, v{VT0}, 2, s26
    v_lshrrev_b32 v{TMP+3}, 5, v{VT0}
    v_lshlrev_b32 v{TMP+3}, 12, v{TMP+3}
    v_and_b32 v{TMP+4}, 31, v{VT0}
    v_lshl_add_u32 v{TMP+3}, v{TMP+4}, 2, v{TMP+3}
    s_lshl_b32 s26, s36, 7
    s_lshl_b32 s27, s17, 13
    s_add_u32 s26, s26, s27
    s_add_u32 s26, s26, {ST1}
    s_waitcnt lgkmcnt(0)
    s_barrier
    s_cmp_ge_u32 s17, 2
    s_cbranch_scc1 M_NOAT
    ds_read_b32 v{Q}, v{TMP+2}
    ds_read_b32 v{Q+1}, v{TMP+2} offset:512
    ds_read_b32 v{Q+2}, v{TMP+2} offset:1024
    ds_read_b32 v{Q+3}, v{TMP+2} offset:1536
    s_waitcnt lgkmcnt(0)
    v_add_f32 v{Q}, v{Q}, v{Q+1}
    v_add_f32 v{Q+2}, v{Q+2}, v{Q+3}
    v_add_f32 v{Q}, v{Q}, v{Q+2}
    buffer_atomic_add_f32 v{Q}, v{TMP+3}, s[8:11], s26 offen
    M_NOAT:
    @STAMP 12
    @FLUSH 13
    """)
    if MERGE:
        k(f"""
        s_mov_b32 s62, s2
        s_mov_b32 s63, s17
        s_load_dwordx2 s[6:7], s[0:1], {KA_DSKIP}
        """)
        grid_arrive(k, 0, "a", "s63", "s62", 144)
        k(f"""
        s_lshl_b32 s26, s16, 6
        v_add_u32 v0, s26, v{VT0}
        s_lshl_b32 s2, s62, 1
        s_add_u32 s2, s2, s29                 ; channel
        s_mul_i32 s55, s29, {CONV_LDS}
        s_mov_b32 s30, {X2T}
        s_mov_b32 s31, {ST1}
        s_mov_b32 s32, {X3T}
        s_mov_b32 s54, {3 if MERGE > 1 else 2}
        @KID 4
        @INIT
        """)
        conv_setup(k)
        k(f"""
        s_lshl_b32 s18, s17, 11
        s_add_u32 s18, s18, {CRED}
        s_add_u32 s18, s18, s55
        s_mov_b32 m0, s18
        s_waitcnt lgkmcnt(0)
        s_load_dword s20, s[6:7], s16
        buffer_load_dwordx4 v6, s[8:11], s15 offen lds
        buffer_load_dwordx4 v6, s[8:11], s15 offen offset:1024 lds
        """)
        conv_p3(k, lb="s55")
        k("@STAMP 10\ns_waitcnt vmcnt(0)")
        for e in range(11):
            k(f"ds_read_u16 v{48+e}, v{48+e}")
        conv_expand(k, "v42")
        k("@STAMP 11")
        grid_wait(k, 0, "a", "s63", "s62", 144)
        k("@STAMP 12\n@STAMP 2")
        conv_loads(k, "sc1")
        k("s_waitcnt vmcnt(1)\n@STAMP 3")
        for i in range(4):
            stats_pair(k, 16 + 4*i, 17 + 4*i, 18 + 4*i, 19 + 4*i, 40)
        k("s_waitcnt vmcnt(0)")
        conv_norm(k, "v42")
        k(f"""
        s_lshr_b32 s21, s62, 3
        s_lshl_b32 s21, s21, 3
        s_add_u32 s21, s21, s63
        s_mul_i32 s22, s21, 6144
        s_and_b32 s23, s62, 1
        s_mul_i32 s23, s23, {8*196608}
        s_add_u32 s22, s22, s23
        s_add_u32 s22, s22, {WP}
        v_lshlrev_b32 v38, 7, v5
        buffer_load_dword v150, v38, s[8:11], s22 offen
        s_branch CONV_NOPF
        """)
    else:
        k("s_endpgm")
    k("""
    M_FINAL:
    """)
    TP = 144; TB2 = 98304
    srd(k, 48, 6, L * D * 2)
    k(f"""
    s_lshl_b32 s26, s16, 4
    v_add_u32 v{TMP}, s26, v{VT1}
    v_mul_u32_u24 v{TMP}, {TP}, v{TMP}
    v_lshl_add_u32 v{TMP}, v{VT2}, 4, v{TMP}
    s_lshl_b32 s26, s29, 6
    s_add_u32 s26, s26, {TB2}
    v_add_u32 v{TMP}, s26, v{TMP}
    ds_write_b128 v{TMP}, v[{OUT}:{OUT+3}]
    v_lshrrev_b32 v{TMP+1}, 2, v{VT1}
    v_lshl_add_u32 v{TMP+1}, v{VT2}, 3, v{TMP+1}
    v_mul_u32_u24 v{TMP+1}, {TP}, v{TMP+1}
    v_and_b32 v{TMP+2}, 3, v{VT1}
    v_lshl_add_u32 v{TMP+1}, v{TMP+2}, 3, v{TMP+1}
    s_lshl_b32 s26, s16, 5
    s_mul_i32 s27, s29, {32*TP}
    s_add_u32 s26, s26, s27
    s_add_u32 s26, s26, {TB2}
    v_add_u32 v{TMP+1}, s26, v{TMP+1}
    v_lshlrev_b32 v{TMP+2}, 10, v{VT1}
    v_lshl_add_u32 v{TMP+2}, v{VT2}, 4, v{TMP+2}
    s_lshl_b32 s26, s36, 2
    s_add_u32 s26, s26, s16
    s_lshl_b32 s26, s26, 14
    s_lshl_b32 s27, s37, 7
    s_add_u32 s26, s26, s27
    s_lshl_b32 s27, s29, 6
    s_add_u32 s26, s26, s27
    s_waitcnt lgkmcnt(0)
    s_barrier
    ds_read_b64_tr_b16 v[32:33], v{TMP+1}
    ds_read_b64_tr_b16 v[34:35], v{TMP+1} offset:{4*TP}
    s_waitcnt lgkmcnt(0)
    buffer_store_dwordx4 v[32:35], v{TMP+2}, s[48:51], s26 offen {OUT_ST}
    @STAMP 12
    @FLUSH 13 last
    M_END:
    s_endpgm
    """)
    k(f"""
    M_STATS:
    s_mov_b32 s47, 0
    M_SL1:
    s_mov_b32 m0, s19
    s_add_u32 s19, s19, 0x2000
    buffer_load_dwordx4 v{VDMA}, s[8:11], s18 offen lds
    s_add_u32 s18, s18, 0x2000
    s_mov_b32 m0, s19
    s_add_u32 s19, s19, 0x2000
    buffer_load_dwordx4 v{VDMA}, s[8:11], s18 offen lds
    s_add_u32 s18, s18, 0x2000
    s_add_u32 s47, s47, 1
    s_cmp_lt_u32 s47, 8
    s_cbranch_scc1 M_SL1
    """)
    id_store("s")
    SACC = 0; ONES = 16
    k(f"""
    v_xor_b32 v{TMP+3}, s17, v{TMP+1}
    v_lshl_add_u32 v{XA}, v{TMP+3}, 5, v{TMP+2}
    """)
    for r in range(8): k(f"v_mov_b32 v{SACC+r}, 0")
    for r in range(4): k(f"v_mov_b32 v{ONES+r}, 0x3f803f80")
    k(f"""
    s_mov_b32 s47, 0
    s_waitcnt vmcnt(0)
    s_barrier
    M_SL2:
    """)
    for u in range(8):
        r = FR + 4 * u
        if u == 7: k("s_waitcnt lgkmcnt(12)")
        k(f"ds_read_b64_tr_b16 v[{r}:{r+1}], v{XA} offset:{u*8192}")
        k(f"ds_read_b64_tr_b16 v[{r+2}:{r+3}], v{XA} offset:{u*8192+4096}")
    k(f"v_add_u32 v{XA}, 0x10000, v{XA}")
    for u in range(8):
        r = FR + 4 * u
        k(f"s_waitcnt lgkmcnt({14 - 2*u})")
        k(f"v_mfma_f32_16x16x32_bf16 v[{SACC}:{SACC+3}], v[{r}:{r+3}], v[{r}:{r+3}], v[{SACC}:{SACC+3}]")
        k(f"v_mfma_f32_16x16x32_bf16 v[{SACC+4}:{SACC+7}], v[{ONES}:{ONES+3}], v[{r}:{r+3}], v[{SACC+4}:{SACC+7}]")
    k(f"""
    s_add_u32 s47, s47, 1
    s_cmp_lt_u32 s47, 2
    s_cbranch_scc1 M_SL2
    v_and_b32 v{TMP}, 3, v{VT1}
    v_cmp_eq_u32 s[48:49], 1, v{TMP}
    v_cmp_eq_u32 s[50:51], 2, v{TMP}
    v_cmp_eq_u32 s[52:53], 3, v{TMP}
    v_lshrrev_b32 v{TMP}, 2, v{VT1}
    v_cmp_eq_u32 s[54:55], v{TMP}, v{VT2}
    v_cndmask_b32 v{SACC}, v{SACC}, v{SACC+1}, s[48:49]
    v_cndmask_b32 v{SACC}, v{SACC}, v{SACC+2}, s[50:51]
    v_cndmask_b32 v{SACC+5}, v{SACC}, v{SACC+3}, s[52:53]
    v_mov_b32 v{SACC+12}, v{SACC+4}
    v_mov_b32 v{SACC+13}, v{SACC+5}
    """)
    stats_pair(k, SACC+4, SACC+5, SACC+12, SACC+13, TMP, keep=(SACC+6, SACC+14))
    k(f"""
    v_lshrrev_b32 v{SACC+4}, 16, v{SACC+4}
    v_or_b32 v{SACC+4}, v{SACC+4}, v{SACC+6}
    v_lshlrev_b32 v{VSTX}, 2, v{VT1}
    s_lshl_b32 s41, s14, 9
    s_lshl_b32 s26, s17, 6
    s_add_u32 s41, s41, s26
    s_add_u32 s41, s41, s33
    s_mov_b64 exec, s[54:55]
    buffer_store_dword v{SACC+4}, v{VSTX}, s[8:11], s41 offen sc1
    s_mov_b64 exec, -1
    """)
    if M_STW:
        k(f"""
        s_lshl_b32 s46, s14, 3
        s_add_u32 s46, s46, s17
        s_mul_i32 s46, s46, 11264
        s_add_u32 s46, s46, {WD}
        v_lshlrev_b32 v{TMP+6}, 7, v{VT0}
        buffer_load_dword v{TMP+8}, v{TMP+6}, s[8:11], s46 offen
        s_add_u32 s46, s46, 0x2000
        v_min_u32 v{TMP+6}, {23*128}, v{TMP+6}
        buffer_load_dword v{TMP+8}, v{TMP+6}, s[8:11], s46 offen
        """)
    for p in res_parts: k(p)
    for i in range(22): k(wd_part(i))
    k(f"""
    s_barrier
    s_branch M_SYNC
    .p2align 8
    mlpb_kernel:
    s_mov_b32 s30, {X3T}
    s_mov_b32 s31, {HB1}
    s_mov_b32 s33, {STX + 0x2000}
    s_mov_b32 s34, {FLG + 0x8000}
    s_mov_b32 s35, 1
    s_mov_b32 s56, {IDT + 0x400}
    @KID 5
    s_branch M_BODY
    TEXT_END:
    """)
    info = dict(vgpr=NV + 88, sgpr=66, accum=NV, grid=256, block=512, lds=MLP_LDS)
    return k, info

DIAG_KN = {2: ("mlpa", 13), 5: ("mlpb", 13), 3: ("wroles", 2), 6: ("none", 1)}
def emit(path, launches=None):
    kp, ip = gen_prep()
    kc, ic = gen_conv()
    km, im = gen_mlp()
    ic1 = dict(ic); ic1["grid"] = B_E
    infos = {"prep_kernel": ip, "conv1_kernel": ic1, "conv2_kernel": ic, "mlpa_kernel": im, "mlpb_kernel": im}
    kf, if1 = gen_f1()
    if FUSE1:
        infos = {"f1_kernel": if1, "conv2_kernel": ic, "mlpa_kernel": im, "mlpb_kernel": im}
        launches = launches or (["f1_kernel", "mlpa_kernel", "mlpb_kernel"] if MERGE == 1 else ["f1_kernel", "mlpa_kernel"] if MERGE == 2 else ["f1_kernel", "mlpa_kernel", "conv2_kernel", "mlpb_kernel"])
    if os.environ.get("ORDER"): launches = [x + "_kernel" for x in os.environ["ORDER"].split(",")]
    order = launches or ["prep_kernel", "conv1_kernel", "mlpa_kernel", "conv2_kernel", "mlpb_kernel"]
    hdr = open("cdna_kernels/" + NAME + ".s.ref").read().split("; Override launch")[0]
    out = [hdr.rstrip("\n")]
    for n in order:
        i = infos[n]
        out.append(f"; @launch kernel={n} grid=({i['grid']},1,1) block=({i['block']},1,1) lds={i['lds']}")
    out.append('.amdgcn_target "amdgcn-amd-amdhsa--gfx950"\n.text')
    for n in infos:
        out.append(f".globl {n}\n.type {n},@function")
    if FUSE1: out.append(".p2align 8\n" + kf.text())
    out.append(("" if FUSE1 else ".p2align 8\nprep_kernel:\n") + kp.text().replace("P_NOPF", "Q_NOPF"))
    for kk in (kc, km):
        out.append(".p2align 8\n" + kk.text())
    for n, i in infos.items():
        out.append(descriptor(n, i["vgpr"], 102 if DIAG else i["sgpr"], i["accum"]))
    open(path, "w").write("\n".join(out))

if __name__ == "__main__":
    emit(sys.argv[1] if len(sys.argv) > 1 else "cdna_kernels/" + NAME + ".s")
```

```python
import sys, struct, re, os
from asmlib import *

NAME = "interleave_layers__ssm_conv_s4d__glu_gated_glu__prompt"
KA_U, KA_LOGA, KA_AIM, KA_CRE, KA_CIM, KA_LOGDT, KA_DSKIP, KA_BX, KA_WG, KA_WU, KA_WD, KA_OUT, KA_DBG, KA_WS = [8 * i for i in range(14)]
BASE = int(os.environ.get('BASE', '0'), 0)
REUSE = int(os.environ.get('REUSE', '0'))
ST0, ST1, CSUM = BASE + 0x0000000, BASE + 0x0004000, BASE + 0x0008000
ZR = BASE + 0x0010000; STX = ZR; FLG = ZR + 0x10000
GFB = BASE + 0x0040000
GFN = int(os.environ.get('GFN', '32'))
KP = BASE + 0x0080000; KCS = 4160; KP_STRIDE = 1536
WP = BASE + 0x0180000
WD = BASE + 0x0480000
XT0 = BASE + 0x0600000
X1T = BASE + 0x0840000
HB = BASE + 0x0A40000
if REUSE:
    X2T, X3T, HB1 = XT0, X1T, HB
else:
    X2T, X3T, HB1 = BASE + 0x1000000, BASE + 0x1240000, BASE + 0x1440000
WS_BYTES = 0x10000000
L, D, F, NST = 2048, 512, 1376, 128
NKS2 = 44
HKS = 45

import os
XP = int(os.environ.get('XP', '4352'))
PREP_W_POL = os.environ.get('PREP_W_POL', 'sc1')
PREP_K_POL = os.environ.get('PREP_K_POL', '')
PREP_X_POL = os.environ.get('PREP_X_POL', '')
LATE_PRIO = int(os.environ.get('LATE_PRIO', '0'))
PREP_PRIO = int(os.environ.get('PREP_PRIO', '0'))
CONV_ST = os.environ.get('CONV_ST', 'sc1')
OUT_ST = os.environ.get('OUT_ST', '')
X2_ST = os.environ.get('X2_ST', 'sc1')
F1_SLEEP = int(os.environ.get('F1_SLEEP', '2'))
CODEPF_BASE = int(os.environ.get('CODEPF_BASE', '760' if int(os.environ.get('FUSE1', '1')) else '0'))
CPFR = 142 if int(os.environ.get('FUSE1', '1')) else 94
SENT = int(os.environ.get('SENT', '0'))
SPLITPUB = int(os.environ.get('SPLITPUB', '1'))
POISON_POL = os.environ.get('POISON_POL', 'sc1')
SENT_SLEEP = int(os.environ.get('SENT_SLEEP', '2'))
WTOUCH = int(os.environ.get('WTOUCH', '0'))
CODEPF3 = int(os.environ.get('CODEPF3', '0'))
CODEPF2 = int(os.environ.get('CODEPF2', '1'))
TLBPF = int(os.environ.get('TLBPF', '0'))
TLBPF_BASE = int(os.environ.get('TLBPF_BASE', '1216'))
CODEPF = int(os.environ.get('CODEPF', '1'))
DIAG = int(os.environ.get("DIAG", "0"))
DIAG_OFF = 0x4000000
_Kern = Kern
class Kern(_Kern):
    def __call__(self, s):
        for l in s.strip("\n").split("\n"):
            t = l.strip()
            if t.startswith("@GFLOAD"):
                super().__call__(f"s_and_b32 s26, s2, {GFN-1}\ns_lshl_b32 s26, s26, 7\ns_add_u32 s26, s26, {GFB}\nv_mov_b32 v43, s26\nglobal_load_dword v42, v43, s[4:5] sc1")
                continue
            if t.startswith("@WTOUCH"):
                if WTOUCH:
                    super().__call__(f"""
                    s_mul_i32 s15, s3, 5504
                    v_min_u32 v90, 85, v0
                    v_lshl_add_u32 v90, v90, 6, s15
                    global_load_dword v91, v90, s[16:17]
                    global_load_dword v92, v90, s[18:19]
                    global_load_dword v93, v90, s[20:21]
                    """)
                continue
            if t.startswith("@CODEPF3"):
                if CODEPF3:
                    super().__call__(f"""
                    s_cmp_ge_u32 s2, 8
                    s_cbranch_scc1 M_NOPF
                    s_cmp_lt_u32 s17, 2
                    s_cbranch_scc1 M_NOPF
                    s_getpc_b64 s[26:27]
                    M_PFPC:
                    s_sub_u32 s26, s26, M_PFPC-conv1_kernel
                    s_subb_u32 s27, s27, 0
                    s_and_b32 s28, s17, 1
                    s_lshl_b32 s28, s28, 12
                    v_lshl_add_u32 v163, v136, 6, s28
                    global_load_dword v163, v163, s[26:27]
                    M_NOPF:
                    """)
                continue
            if t.startswith("@CNTLOAD"):
                super().__call__("global_load_dword v59, v2, s[28:29] sc1")
                continue
            if t.startswith("@CODEPF"):
                if CODEPF:
                    super().__call__(f"""
                    s_sub_u32 s3, s2, {CODEPF_BASE}
                    s_cmp_ge_u32 s3, 8
                    s_cbranch_scc1 P_NOPF
                    s_getpc_b64 s[6:7]
                    P_NOPF_PC:
                    v_lshlrev_b32 v1, 6, v0
                    global_load_dword v{CPFR}, v1, s[6:7]
                    v_add_u32 v1, 0x4000, v1
                    v_min_u32 v1, TEXT_END-P_NOPF_PC-4, v1
                    global_load_dword v{CPFR+1}, v1, s[6:7]
                    P_NOPF:
                    """)
                if TLBPF:
                    super().__call__(f"""
                    s_sub_u32 s3, s2, {TLBPF_BASE}
                    s_cmp_ge_u32 s3, 8
                    s_cbranch_scc1 P_NOPF2
                    s_load_dwordx2 s[6:7], s[0:1], {KA_OUT}
                    v_lshlrev_b32 v1, 18, v0
                    v_lshlrev_b32 v2, 13, v0
                    s_waitcnt lgkmcnt(0)
                    global_load_dword v93, v1, s[4:5]
                    global_load_dword v92, v2, s[6:7]
                    P_NOPF2:
                    """)
                continue
            if t.startswith("@"):
                if not DIAG: continue
                p = t.split()
                if p[0] == "@KID":
                    super().__call__(f"s_mov_b32 s59, {DIAG_OFF + int(p[1]) * 0x80000}\ns_mov_b32 s57, {3 if int(p[1]) in (2, 5) else 2}")
                elif p[0] == "@INIT":
                    super().__call__("v_readfirstlane_b32 s58, v0\ns_memrealtime s[64:65]\ns_memtime s[66:67]")
                elif p[0] == "@STAMP":
                    i = int(p[1]); super().__call__(f"s_memtime s[{64+2*i}:{65+2*i}]")
                elif p[0] == "@FLUSH":
                    n = int(p[1])
                    super().__call__(f"""
                    s_waitcnt vmcnt(0)
                    s_memtime s[{64+2*n}:{65+2*n}]
                    s_memrealtime s[{66+2*n}:{67+2*n}]
                    s_waitcnt lgkmcnt(0)
                    s_mov_b64 exec, -1
                    s_lshr_b32 s58, s58, 6
                    s_lshl_b32 s61, s2, s57
                    s_add_u32 s60, s58, s61
                    s_lshl_b32 s60, s60, 6
                    s_add_u32 s60, s60, s59
                    v_mov_b32 v1, s60
                    """)
                    for i in range(n + 2):
                        super().__call__(f"v_mov_b32 v2, s{64+2*i}\nglobal_store_dword v1, v2, s[4:5] offset:{4*i}")
                    super().__call__("s_getreg_b32 s61, hwreg(HW_REG_XCC_ID)\nv_mov_b32 v2, s61\nglobal_store_dword v1, v2, s[4:5] offset:60")
                    if DIAG == 2 and len(p) > 2:
                        lab = f"DG{len(self.lines)}"
                        txt = f"s_or_b32 s60, s2, s58\ns_cmp_lg_u32 s60, 0\ns_cbranch_scc1 {lab}\ns_load_dwordx2 s[62:63], s[0:1], {KA_DBG}\ns_waitcnt vmcnt(0) lgkmcnt(0)\n"
                        j = 0
                        for kid, nn in ((0, 6), (1, 13), (2, 13), (4, 13), (5, 13)):
                            for slot in (0, nn + 1):
                                txt += f"v_mov_b32 v1, {DIAG_OFF + kid * 0x80000 + 4 * slot}\nglobal_load_dword v2, v1, s[4:5] sc1\nv_mov_b32 v3, {4*j}\ns_waitcnt vmcnt(0)\nglobal_store_dword v3, v2, s[62:63]\n"
                                j += 1
                        for kid, slot in ((2, 1), (2, 3), (2, 5), (2, 9), (1, 1), (1, 5)):
                            txt += f"v_mov_b32 v1, {DIAG_OFF + kid * 0x80000 + 4 * slot}\nglobal_load_dword v2, v1, s[4:5] sc1\nv_mov_b32 v3, {4*j}\ns_waitcnt vmcnt(0)\nglobal_store_dword v3, v2, s[62:63]\n"
                            j += 1
                        super().__call__(txt + f"{lab}:")
                continue
            super().__call__(l)

def f2u(x): return struct.unpack("<I", struct.pack("<f", x))[0]
def fl(x): return "0x%08x" % f2u(x)
LOG2E = 1.4426950408889634
L2E_HI = struct.unpack("<f", struct.pack("<f", LOG2E))[0]
L2E_LO = LOG2E - L2E_HI
LN2 = 0.6931471805599453

def srd(k, s, base, nbytes):
    k(f"""
    s_mov_b32 s{s}, s{base}
    s_and_b32 s{s+1}, s{base+1}, 0xffff
    s_mov_b32 s{s+2}, {nbytes:#x}
    s_mov_b32 s{s+3}, 0x20000
    """)

def rnd_bf16(k, dst, a, b=None):
    k(f"v_cvt_pk_bf16_f32 v{dst}, v{a}, v{b if b is not None else a}")

def exp_acc(k, dst, x, t0, t1):
    k(f"""
    v_mul_f32 v{t0}, s40, v{x}
    v_fma_f32 v{t1}, s40, v{x}, -v{t0}
    v_fma_f32 v{t1}, s41, v{x}, v{t1}
    v_exp_f32 v{dst}, v{t0}
    v_mul_f32 v{t1}, s42, v{t1}
    v_fma_f32 v{dst}, v{dst}, v{t1}, v{dst}
    """)

N_K, N_T, N_W, N_D, N_C = 512, 256, 240, 176, 90
FUSE1 = int(os.environ.get('FUSE1', '1'))
MERGE = int(os.environ.get('MERGE', '0'))
UEARLY = int(os.environ.get('UEARLY', '0'))
C_SLEEP = int(os.environ.get('C_SLEEP', '0'))
C_WAITN = int(os.environ.get('C_WAITN', '1'))
F1_LD = os.environ.get('F1_LD', 'sc1')
F1_POLL = os.environ.get('F1_POLL', 'sc1')
WINC = os.environ.get('WINC', 'X')
_sz = {"C": N_C, "W": N_W, "D": N_D, "T": N_T}
B_K = 0
_pos = N_K; PREP_ROLES = []; _base = {}
for r in "CWTD":
    if r not in WINC:
        _base[r] = _pos; _pos += _sz[r]; PREP_ROLES.append((r, _pos))
PREP_WGS = _pos
_pos = 512; CONV_ROLES = []
for r in "CWD":
    if r in WINC:
        _base[r] = _pos; _pos += _sz[r]; CONV_ROLES.append((r, _pos))
B_E = _pos
B_C, B_W, B_T, B_D = _base["C"], _base["W"], _base["T"], _base["D"]
if FUSE1: B_T = 0; B_C = 0
PREP_GROUPS = [("prep.K", 0, N_K, 6)] + [("prep." + r, _base[r], e, 2) for r, e in PREP_ROLES]
if FUSE1: PREP_GROUPS = [("f1.TC", 0, N_C, 6), ("f1.T", N_C, N_T, 6)]
_lab = {"C": "P_C", "W": "P_W", "T": "P_TR", "D": "P_D"}
PREP_LDS = 18432
CSU = 4576
KL = 2 * CSU
CRED = KL + 16640
CONV_LDS = CRED + 24576
CPF = int(os.environ.get('CPF', '1'))
CPF_STRIDE = int(os.environ.get('CPF_STRIDE', '128'))
LOCALMAP0 = int(os.environ.get('LOCALMAP', '0'))
PFQ = int(os.environ.get('PFQ', '6144'))
SPIN_MAX = 1 << 20

class Remap:
    def __init__(self, k, voff, smap): self.k = k; self.voff = voff; self.smap = smap
    def __call__(self, t):
        def rv(m):
            if m.group(1): return f"v[{int(m.group(1))+self.voff}:{int(m.group(2))+self.voff}]"
            n = int(m.group(3)); return "v0" if n == 0 else f"v{n+self.voff}"
        t = re.sub(r"\bv\[(\d+):(\d+)\]|\bv(\d+)\b", rv, t)
        def rs(m):
            if m.group(1):
                a = int(m.group(1)); b = int(m.group(2))
                if a in self.smap: return f"s[{self.smap[a]}:{self.smap[a]+b-a}]"
                return m.group(0)
            n = int(m.group(3)); return f"s{self.smap.get(n, n)}"
        t = re.sub(r"\bs\[(\d+):(\d+)\]|\bs(\d+)\b", rs, t)
        self.k(t)
    def label(self, l): self.k.label(l)

class NoPk:
    def __init__(self, k): self.k = k
    def __call__(self, t):
        def f(m):
            d, a, b = int(m.group(1)), int(m.group(2)), int(m.group(3))
            return f"v_add_f32 v{d}, v{a}, v{b}\nv_add_f32 v{d+1}, v{a+1}, v{b+1}"
        self.k(re.sub(r"v_pk_add_f32 v\[(\d+):\d+\], v\[(\d+):\d+\], v\[(\d+):\d+\]", f, t))
    def label(self, l): self.k.label(l)
CONV_NOPK = int(os.environ.get('CONV_NOPK', '1'))

class UnitS:
    MAP = {12: 21, 13: 22, 14: 23, 15: 27, 16: 30, 17: 39, 18: 46, 19: 47, 21: 55, 3: 56}
    def __init__(self, k): self.k = k
    def __call__(self, t):
        self.k(re.sub(r"\bs(\d+)\b", lambda m: f"s{self.MAP.get(int(m.group(1)), int(m.group(1)))}", t))

class Remap2:
    def __init__(self, k, vmap): self.k = k; self.vmap = vmap
    def __call__(self, t):
        t = re.sub(r"\bv(\d+)\b", lambda m: f"v{self.vmap.get(int(m.group(1)), int(m.group(1)))}", t)
        self.k(t)

def conv_setup(k):
    k(f"""
    v_readfirstlane_b32 s17, v0
    s_mov_b32 s43, {fl(1.0/512)}
    s_mov_b32 s44, {fl(1e-5)}
    s_mov_b32 s45, {fl(1e-5)}
    s_mov_b32 s46, {fl(1.0/512)}
    s_mov_b32 s47, {fl(1.0/512)}
    s_lshr_b32 s17, s17, 6                ; pi
    s_mul_i32 s12, s2, {XP}
    s_add_u32 s13, s12, s30
    s_lshl_b32 s14, s2, 8
    s_add_u32 s14, s14, s32               ; out: d*256
    s_mul_i32 s15, s2, {KP_STRIDE}
    s_add_u32 s15, s15, {KP}
    s_lshr_b32 s16, s2, 1
    s_lshl_b32 s16, s16, 2
    v_lshlrev_b32 v1, 4, v0               ; tid*16
    v_and_b32 v3, 15, v0                  ; c / r
    v_bfe_u32 v4, v0, 4, 2                ; g
    v_and_b32 v5, 63, v0
    v_lshlrev_b32 v6, 4, v5               ; lane*16
    s_and_b32 s21, s2, 7
    v_bfe_u32 v2, v0, 1, 3
    v_xor_b32 v2, s21, v2
    v_lshlrev_b32 v2, 5, v2
    v_lshrrev_b32 v8, 4, v0
    v_lshl_add_u32 v2, v8, 17, v2
    v_and_b32 v8, 1, v0
    v_lshl_add_u32 v2, v8, 4, v2
    """)

def conv_loads(k, pol=""):
    k(f"""
    buffer_load_dwordx4 v[16:19], v1, s[8:11], s31 offen {pol}
    s_add_u32 s31, s31, 0x1000
    buffer_load_dwordx4 v[20:23], v1, s[8:11], s31 offen {pol}
    s_add_u32 s31, s31, 0x1000
    buffer_load_dwordx4 v[24:27], v1, s[8:11], s31 offen {pol}
    s_add_u32 s31, s31, 0x1000
    buffer_load_dwordx4 v[28:31], v1, s[8:11], s31 offen {pol}
    buffer_load_dwordx4 v[12:15], v1, s[8:11], s13 offen {pol}
    """)

def conv_p3(k, kzero=True, lb=None):
    k(f"""
    v_mov_b32 v36, 0
    v_mov_b32 v37, 0
    v_mov_b32 v38, 0
    v_mov_b32 v39, 0
    """)
    if kzero: k(f"""
    v_bfe_u32 v9, v0, 2, 2
    v_mul_u32_u24 v9, {KCS}, v9
    v_and_b32 v10, 3, v0
    v_min_u32 v10, 2, v10
    v_lshl_add_u32 v9, v10, 4, v9
    {f'v_add_u32 v9, {lb}, v9' if lb else ''}
    ds_write_b128 v9, v[36:39] offset:{KL}
    """)
    k(f"""
    v_lshlrev_b32 v40, 3, v0
    s_sub_u32 s19, s18, {2 * (0x4300 - 128)}
    """)
    for e in range(11):
        k(f"v_add_u32 v{48+e}, {e-3}, v40")
        if e < 3: k(f"v_max_i32 v{48+e}, 0, v{48+e}")
        k(f"v_cvt_f32_u32 v{60+e}, v{48+e}")
    for e in range(0, 11, 2):
        k(f"v_cvt_pk_bf16_f32 v{72+e//2}, v{60+e}, v{min(61+e, 70)}")
    for e in range(11):
        src = 72 + e // 2
        if e & 1: k(f"v_lshrrev_b32 v{60+e}, 16, v{src}")
        else: k(f"v_and_b32 v{60+e}, 0xffff, v{src}")
        k(f"v_lshl_add_u32 v{60+e}, v{60+e}, 1, s19")
        k(f"v_lshl_add_u32 v{48+e}, v{48+e}, 1, s18")
    k("v_cmp_gt_u32 s[24:25], 17, v0")
    for e in range(11):
        k(f"v_cndmask_b32 v{48+e}, v{60+e}, v{48+e}, s[24:25]")
    k(f"""
    s_and_b32 s21, s17, 1
    s_sub_u32 s22, 56, s21
    s_mul_i32 s21, s21, {CSU}
    v_min_u32 v9, s22, v5
    v_lshl_add_u32 v9, v9, 3, s21
    {f'v_add_u32 v9, {lb}, v9' if lb else ''}
    ds_write_b64 v9, v[36:37]
    v_and_b32 v9, 1, v3
    v_mul_u32_u24 v9, {CSU}, v9
    v_lshrrev_b32 v10, 1, v3
    v_lshlrev_b32 v11, 2, v10
    v_sub_u32 v11, v11, v4
    s_lshl_b32 s21, s17, 2
    s_sub_u32 s21, 15, s21
    v_add_u32 v11, s21, v11
    v_lshl_add_u32 v9, v11, 4, v9         ; v9 = u addr
    v_and_b32 v7, 3, v3
    v_mul_u32_u24 v7, {KCS}, v7
    v_lshrrev_b32 v8, 2, v3
    v_add_u32 v8, v8, v4
    v_lshl_add_u32 v7, v8, 4, v7
    s_lshl_b32 s21, s17, 6
    s_add_u32 s21, s21, {KL}
    v_add_u32 v7, s21, v7                 ; v7 = K addr
    v_xor_b32 v8, v4, v10
    v_and_b32 v8, 3, v8
    v_lshlrev_b32 v8, 1, v8
    v_lshl_add_u32 v8, v10, 3, v8
    v_and_b32 v11, 1, v3
    v_add_u32 v8, v8, v11
    s_lshl_b32 s21, s17, 11
    v_lshl_add_u32 v10, v8, 4, s21
    v_bfe_u32 v8, v0, 2, 3
    v_xor_b32 v11, v8, v0
    v_and_b32 v11, 3, v11
    v_lshlrev_b32 v11, 5, v11
    v_lshl_add_u32 v11, v8, 7, v11
    v_bfe_u32 v8, v0, 5, 1
    v_lshl_add_u32 v11, v8, 10, v11
    s_lshl_b32 s21, s17, 13
    s_add_u32 s21, s21, {CRED}
    s_cmp_eq_u32 s17, 3
    s_cselect_b32 s21, {KL}, s21
    v_add_u32 v11, s21, v11
    """)
    if lb:
        for r in (7, 9, 10, 11): k(f"v_add_u32 v{r}, {lb}, v{r}")
        k(f"v_add_u32 v42, {lb}, v1")

def conv_expand(k, a="v1"):
    k("""
    v_cmp_eq_u32 vcc, 0, v0
    s_waitcnt lgkmcnt(0)
    v_cndmask_b32 v48, v48, v36, vcc
    v_cndmask_b32 v49, v49, v36, vcc
    v_cndmask_b32 v50, v50, v36, vcc
    """)
    for sft in range(4):
        for j in range(4):
            k(f"v_lshl_or_b32 v{64+4*sft+j}, v{48+sft+6-2*j}, 16, v{48+sft+7-2*j}")
        k(f"ds_write_b128 {a}, v[{64+4*sft}:{67+4*sft}] offset:{KL + sft*KCS + 48}")

def conv_norm(k, a="v1"):
    for j in range(4):
        k(f"""
        v_lshlrev_b32 v40, 16, v{12+j}
        v_and_b32 v41, 0xffff0000, v{12+j}
        v_sub_f32 v40, v40, v{16+4*j}
        v_sub_f32 v41, v41, v{18+4*j}
        v_cvt_pk_bf16_f32 v41, v40, v41
        v_lshlrev_b32 v40, 16, v41
        v_and_b32 v41, 0xffff0000, v41
        v_mul_f32 v40, v40, v{17+4*j}
        v_mul_f32 v41, v41, v{19+4*j}
        v_cvt_pk_bf16_f32 v{32+j}, v40, v41
        """)
    k(f"""
    ds_write_b128 {a}, v[32:35] offset:{CSU + 16*28}
    ds_write2_b64 {a}, v[32:33], v[34:35] offset0:57 offset1:58
    """)

BARB = ZR + 0x8000
def grid_arrive(k, b, tag, wave_sgpr, wg_sgpr, t0):
    k(f"""
    s_waitcnt vmcnt(0)
    s_barrier
    s_cmp_lg_u32 {wave_sgpr}, 7
    s_cbranch_scc1 GA_{tag}
    s_and_b32 s26, {wg_sgpr}, 15
    s_lshl_b32 s26, s26, 7
    s_add_u32 s26, s26, {BARB + b * 4096}
    v_mov_b32 v{t0}, 1
    v_mov_b32 v{t0+1}, 0
    v_mbcnt_lo_u32_b32 v{t0+2}, -1, 0
    v_lshlrev_b32 v{t0+2}, 7, v{t0+2}
    s_mov_b64 exec, 1
    buffer_atomic_add v{t0}, v{t0+1}, s[8:11], s26 offen sc0 sc1
    s_waitcnt vmcnt(0)
    v_readfirstlane_b32 s27, v{t0}
    s_mov_b64 exec, -1
    s_cmp_lg_u32 s27, 15
    s_cbranch_scc1 GA_{tag}
    v_mov_b32 v{t0}, 1
    s_mov_b32 s26, {BARB + b * 4096 + 2048}
    s_mov_b64 exec, 0xffff
    buffer_atomic_add v{t0}, v{t0+2}, s[8:11], s26 offen sc1
    s_mov_b64 exec, -1
    GA_{tag}:
    """)
def grid_wait(k, b, tag, wave_sgpr, wg_sgpr, t0, pollwave=3):
    k(f"""
    s_cmp_lg_u32 {wave_sgpr}, {pollwave}
    s_cbranch_scc1 GW_{tag}
    s_lshr_b32 s26, {wg_sgpr}, 4
    s_lshl_b32 s26, s26, 7
    s_add_u32 s26, s26, {BARB + b * 4096 + 2048}
    v_mov_b32 v{t0+1}, 0
    s_mov_b32 s27, 0
    GP_{tag}:
    buffer_load_dword v{t0}, v{t0+1}, s[8:11], s26 offen sc1
    s_waitcnt vmcnt(0)
    v_readfirstlane_b32 s28, v{t0}
    s_cmp_ge_u32 s28, 16
    s_cbranch_scc1 GW_{tag}
    s_sleep {F1_SLEEP}
    s_add_u32 s27, s27, 1
    s_cmp_lt_u32 s27, {SPIN_MAX >> 2}
    s_cbranch_scc1 GP_{tag}
    GW_{tag}:
    s_waitcnt lgkmcnt(0)
    s_barrier
    """)

def gen_prep():
    kreal = Kern("prep_kernel"); knull = Kern("null")
    k = knull if FUSE1 else kreal
    k(f"""
    @KID 0
    @INIT
    s_load_dwordx2 s[4:5], s[0:1], {KA_WS}
    @CODEPF
    s_sub_u32 s26, s2, {B_K}
    s_cmp_lt_u32 s26, {N_K}
    s_cbranch_scc1 P_KGEN
    """)
    for r, e in PREP_ROLES: k(f"s_cmp_lt_u32 s2, {e}\ns_cbranch_scc1 {_lab[r]}")
    k(f"""
    s_endpgm
    P_WROLES:
    @KID 3
    @INIT
    s_load_dwordx2 s[4:5], s[0:1], {KA_WS}
    """)
    for r, e in CONV_ROLES: k(f"s_cmp_lt_u32 s2, {e}\ns_cbranch_scc1 {_lab[r]}")
    k("s_endpgm")
    k.label("P_KGEN")
    TB = 16384
    k(f"""
    s_load_dwordx4 s[8:11], s[0:1], {KA_LOGA}
    s_load_dwordx4 s[12:15], s[0:1], {KA_CRE}
    s_load_dwordx2 s[16:17], s[0:1], {KA_LOGDT}
    s_mov_b32 s40, {fl(L2E_HI)}
    s_mov_b32 s41, {fl(L2E_LO)}
    s_mov_b32 s42, {fl(LN2)}
    v_lshrrev_b32 v1, 1, v0
    v_and_b32 v1, 0x60, v1
    v_and_or_b32 v1, v0, 31, v1           ; n = 32 w + (lane & 31)
    s_lshl_b32 s3, s26, 8
    v_lshl_add_u32 v2, v1, 1, s3
    s_lshl_b32 s18, s26, 1
    v_mov_b32 v3, s18
    v_readfirstlane_b32 s19, v0
    s_lshr_b32 s19, s19, 6                ; wave
    s_waitcnt lgkmcnt(0)
    global_load_ushort v4, v2, s[8:9]
    global_load_ushort v8, v3, s[16:17]
    global_load_ushort v5, v2, s[10:11]
    global_load_ushort v6, v2, s[12:13]
    global_load_ushort v7, v2, s[14:15]
    v_and_b32 v20, 15, v0                 ; i / j
    v_bfe_u32 v21, v0, 4, 2               ; g
    ; hi0 = 128*(i>>3) + (i&7)
    v_lshrrev_b32 v23, 3, v20
    v_and_b32 v24, 7, v20
    v_lshl_add_u32 v23, v23, 7, v24
    v_cvt_f32_u32 v30, v23
    ; hi1 = (g''<2 ? 256+2g'' : 256*g'') + 128*((i>>1)&1) + 4*(i&1)
    v_lshrrev_b32 v23, 2, v20
    v_lshlrev_b32 v24, 1, v23
    v_add_u32 v24, 0x100, v24
    v_lshlrev_b32 v25, 8, v23
    v_cmp_gt_u32 vcc, 2, v23
    v_cndmask_b32 v24, v25, v24, vcc
    v_bfe_u32 v25, v20, 1, 1
    v_lshl_add_u32 v24, v25, 7, v24
    v_and_b32 v25, 1, v20
    v_lshl_add_u32 v24, v25, 2, v24
    v_cvt_f32_u32 v31, v24
    v_lshlrev_b32 v23, 7, v20
    v_add_u32 v23, 0x400, v23
    v_cvt_f32_u32 v32, v23                ; hi2
    v_lshlrev_b32 v23, 3, v20
    v_cvt_f32_u32 v33, v23                ; lo
    s_lshl_b32 s20, s19, 9
    v_lshl_add_u32 v34, v21, 6, s20
    v_lshrrev_b32 v23, 1, v21
    v_and_b32 v24, 1, v21
    v_lshlrev_b32 v24, 2, v24
    v_lshl_add_u32 v35, v23, 7, v24
    v_lshl_add_u32 v35, v20, 3, v35
    v_mov_b32 v36, 1
    v_mov_b32 v37, 2
    s_cmp_eq_u32 s19, 0
    s_cbranch_scc1 P_KA
    v_lshl_add_u32 v35, v21, 6, v20
    v_add_u32 v35, 0x200, v35
    v_mov_b32 v36, 16
    v_mov_b32 v37, 32
    s_cmp_lg_u32 s19, 1
    s_cbranch_scc1 P_KA
    v_lshl_add_u32 v23, v20, 2, v21
    v_add_u32 v23, 0x100, v23             ; seg1: 256 + g' + 4j ; o1=2 o2=64
    v_lshlrev_b32 v24, 6, v21
    v_lshl_add_u32 v24, v20, 1, v24
    v_add_u32 v24, 0x100, v24             ; seg2: 384 + 64(g'-2) + 2j ; o1=1 o2=32
    v_cmp_gt_u32 vcc, 2, v21
    v_cndmask_b32 v35, v24, v23, vcc
    v_cndmask_b32 v36, 1, 2, vcc
    v_cndmask_b32 v37, 32, 64, vcc
    P_KA:
    v_add_u32 v38, v36, v37
    v_add_lshl_u32 v36, v36, v35, 1
    v_add_lshl_u32 v37, v37, v35, 1
    v_add_lshl_u32 v38, v38, v35, 1
    v_lshlrev_b32 v35, 1, v35
    v_and_b32 v39, 63, v0
    v_lshlrev_b32 v39, 4, v39             ; lane*16
    s_waitcnt vmcnt(3)
    @STAMP 2
    v_lshlrev_b32 v4, 16, v4
    v_lshlrev_b32 v8, 16, v8
    """)
    exp_acc(k, 10, 8, 16, 17)
    exp_acc(k, 11, 4, 18, 19)
    k(f"""
    v_cvt_pk_bf16_f32 v10, v10, v11
    v_and_b32 v11, 0xffff0000, v10        ; eA
    v_lshlrev_b32 v10, 16, v10            ; dt
    v_mul_f32 v12, v11, v10
    v_mul_f32 v12, s40, v12
    v_sub_f32 v12, 0, v12
    s_waitcnt vmcnt(0)
    v_lshlrev_b32 v5, 16, v5
    v_lshlrev_b32 v6, 16, v6
    v_lshlrev_b32 v7, 16, v7
    v_mul_f32 v13, v5, v10
    v_mul_f32 v13, 0.15915494, v13
    v_add_f32 v10, v10, v10
    v_mul_f32 v14, v6, v10                ; 2*Cre*dt
    v_mul_f32 v15, v7, v10                ; 2*Cim*dt
    v_lshlrev_b32 v9, 4, v1
    ds_write_b128 v9, v[12:15]
    v_max3_f32 v16, |v14|, |v15|, 0
    v_max_f32_dpp v16, v16, v16 row_shr:1 row_mask:0xf bank_mask:0xf
    v_max_f32_dpp v16, v16, v16 row_shr:2 row_mask:0xf bank_mask:0xf
    v_max_f32_dpp v16, v16, v16 row_shr:4 row_mask:0xf bank_mask:0xf
    v_max_f32_dpp v16, v16, v16 row_shr:8 row_mask:0xf bank_mask:0xf
    v_max_f32_dpp v16, v16, v16 row_bcast:15 row_mask:0xa bank_mask:0xf
    v_readlane_b32 s23, v16, 31
    s_mov_b32 s20, 0
    @STAMP 3
    v_mov_b32 v16, s23
    v_bfe_u32 v16, v16, 23, 8
    v_max_u32 v16, 14, v16
    v_sub_u32 v17, 0x8c, v16
    v_cvt_f32_i32 v29, v17                ; kf = 140 - e'
    v_mov_b32 v28, 0
    v_subrev_u32 v16, 13, v16
    v_lshlrev_b32 v27, 23, v16            ; Sinv
    P_KLOOP:
    ds_read_b128 v[52:55], v34
    ds_read_b128 v[56:59], v34 offset:16
    ds_read_b128 v[60:63], v34 offset:32
    ds_read_b128 v[64:67], v34 offset:48
    v_add_u32 v34, 0x100, v34
    """)
    for nn in range(4):
        p = 52 + 4 * nn
        k(f"""
        s_waitcnt lgkmcnt({3-nn})
        v_pk_mul_f32 v[2:3], v[30:31], v[{p}:{p+1}] op_sel_hi:[1,0]
        v_pk_fma_f32 v[4:5], v[32:33], v[{p}:{p+1}], v[28:29] op_sel_hi:[1,0,1]
        v_pk_mul_f32 v[6:7], v[30:31], v[{p}:{p+1}] op_sel:[0,1] op_sel_hi:[1,1]
        v_pk_mul_f32 v[8:9], v[32:33], v[{p}:{p+1}] op_sel:[0,1] op_sel_hi:[1,1]
        v_exp_f32 v2, v2
        v_exp_f32 v3, v3
        v_exp_f32 v4, v4
        v_exp_f32 v5, v5
        v_fract_f32 v6, v6
        v_fract_f32 v7, v7
        v_fract_f32 v8, v8
        v_fract_f32 v9, v9
        v_cos_f32 v10, v6
        v_sin_f32 v11, v6
        v_cos_f32 v12, v7
        v_sin_f32 v13, v7
        v_cos_f32 v14, v8
        v_sin_f32 v15, v8
        v_cos_f32 v16, v9
        v_sin_f32 v17, v9
        v_pk_mul_f32 v[10:11], v[10:11], v[2:3] op_sel_hi:[1,0]
        v_pk_mul_f32 v[12:13], v[12:13], v[2:3] op_sel:[0,1] op_sel_hi:[1,1]
        v_pk_mul_f32 v[14:15], v[14:15], v[4:5] op_sel_hi:[1,0]
        v_pk_mul_f32 v[16:17], v[16:17], v[4:5] op_sel:[0,1] op_sel_hi:[1,1]
        v_cvt_pk_f16_f32 v{68+nn}, v10, v11
        v_cvt_pk_f16_f32 v{72+nn}, v12, v13
        v_cvt_pk_f16_f32 v{76+nn}, v14, v15
        v_pk_mul_f32 v[18:19], v[16:17], v[{p+2}:{p+3}] op_sel_hi:[1,0]
        v_pk_fma_f32 v[18:19], v[16:17], v[{p+2}:{p+3}], v[18:19] op_sel:[1,1,0] op_sel_hi:[0,1,1] neg_lo:[1,0,0]
        v_cvt_pk_f16_f32 v{80+nn}, v18, -v19
        """)
    k(f"""
    s_cmp_eq_u32 s20, 1
    s_cbranch_scc1 P_KL2
    v_mfma_f32_16x16x32_f16 v[40:43], v[68:71], v[80:83], 0
    v_mfma_f32_16x16x32_f16 v[44:47], v[72:75], v[80:83], 0
    v_mfma_f32_16x16x32_f16 v[48:51], v[76:79], v[80:83], 0
    s_mov_b32 s20, 1
    s_branch P_KLOOP
    P_KL2:
    v_mfma_f32_16x16x32_f16 v[40:43], v[68:71], v[80:83], v[40:43]
    v_mfma_f32_16x16x32_f16 v[44:47], v[72:75], v[80:83], v[44:47]
    v_mfma_f32_16x16x32_f16 v[48:51], v[76:79], v[80:83], v[48:51]
    @STAMP 4
    s_mul_i32 s20, s19, 3072
    v_add_u32 v2, s20, v39
    s_lshl_b32 s20, s19, 10
    v_add_u32 v3, s20, v39
    """)
    k("v_mov_b32 v26, v27")
    for r in range(40, 52, 2): k(f"v_pk_mul_f32 v[{r}:{r+1}], v[{r}:{r+1}], v[26:27]")
    k(f"""
    ds_write_b128 v2, v[40:43] offset:4096
    ds_write_b128 v2, v[44:47] offset:5120
    ds_write_b128 v2, v[48:51] offset:6144
    s_mul_i32 s3, s26, {KP_STRIDE}
    s_add_u32 s3, s3, {KP}
    v_lshlrev_b32 v1, 4, v0
    v_add_u32 v8, s3, v1
    s_waitcnt lgkmcnt(0)
    s_barrier
    s_cmp_eq_u32 s19, 3
    s_cbranch_scc1 P_KS
    ds_read_b128 v[40:43], v3 offset:4096
    ds_read_b128 v[44:47], v3 offset:{4096+3072}
    ds_read_b128 v[48:51], v3 offset:{4096+6144}
    ds_read_b128 v[4:7], v3 offset:{4096+9216}
    s_waitcnt lgkmcnt(2)
    v_pk_add_f32 v[40:41], v[40:41], v[44:45]
    v_pk_add_f32 v[42:43], v[42:43], v[46:47]
    s_waitcnt lgkmcnt(0)
    v_pk_add_f32 v[48:49], v[48:49], v[4:5]
    v_pk_add_f32 v[50:51], v[50:51], v[6:7]
    v_pk_add_f32 v[40:41], v[40:41], v[48:49]
    v_pk_add_f32 v[42:43], v[42:43], v[50:51]
    v_cvt_pk_bf16_f32 v40, v40, v41
    v_cvt_pk_bf16_f32 v42, v42, v43
    ds_write_b16 v35, v40 offset:{TB}
    ds_write_b16_d16_hi v36, v40 offset:{TB}
    ds_write_b16 v37, v42 offset:{TB}
    ds_write_b16_d16_hi v38, v42 offset:{TB}
    P_KS:
    s_waitcnt lgkmcnt(0)
    s_barrier
    @STAMP 5
    v_cmp_gt_u32 vcc, 0x60, v0
    s_and_saveexec_b64 s[22:23], vcc
    s_cbranch_execz P_KEND
    ds_read_b128 v[40:43], v1 offset:{TB}
    s_waitcnt lgkmcnt(0)
    global_store_dwordx4 v8, v[40:43], s[4:5]
    P_KEND:
    @FLUSH 6
    s_endpgm
    """)
    k = kreal
    k.label("P_TR")
    PITCH = 144
    k(f"""
    s_load_dwordx2 s[8:9], s[0:1], {KA_U}
    s_load_dwordx4 s[16:19], s[0:1], {KA_WG}
    s_load_dwordx2 s[20:21], s[0:1], {KA_WD}
    s_sub_u32 s3, s2, {B_T}
    s_lshr_b32 s10, s3, 3                 ; lt (0..31)
    s_and_b32 s11, s3, 7                  ; dt (0..7)
    v_lshrrev_b32 v1, 3, v0               ; row 0..31
    v_and_b32 v2, 7, v0                   ; chunk
    s_lshl_b32 s12, s10, 16               ; lt*64*1024
    s_lshl_b32 s13, s11, 7
    s_add_u32 s12, s12, s13
    v_lshlrev_b32 v3, 10, v1
    v_lshl_add_u32 v3, v2, 4, v3
    v_add_u32 v3, s12, v3
    v_add_u32 v4, 0x8000, v3
    s_waitcnt lgkmcnt(0)
    global_load_dwordx4 v[8:11], v3, s[8:9]
    global_load_dwordx4 v[12:15], v4, s[8:9]
    v_lshrrev_b32 v41, 6, v0
    v_and_b32 v42, 63, v0
    s_lshl_b32 s14, s3, 13                ; 8 rows * 1024
    v_lshlrev_b32 v43, 11, v41
    v_lshl_add_u32 v43, v42, 4, v43
    v_add_u32 v43, s14, v43
    global_load_dwordx4 v[48:51], v43, s[8:9]
    global_load_dwordx4 v[52:55], v43, s[8:9] offset:1024
    s_setprio {LATE_PRIO}
    @WTOUCH
    v_mul_u32_u24 v5, {PITCH}, v1
    v_lshl_add_u32 v5, v2, 4, v5
    v_and_b32 v6, 15, v0                  ; lam
    v_bfe_u32 v7, v0, 4, 2                ; g
    v_lshrrev_b32 v16, 6, v0              ; w
    v_lshrrev_b32 v17, 2, v6              ; r = lam>>2
    v_lshl_add_u32 v17, v7, 3, v17        ; row = 8g + r
    v_mul_u32_u24 v17, {PITCH}, v17
    v_and_b32 v18, 3, v6
    v_lshl_add_u32 v17, v18, 3, v17       ; + c*8
    v_lshl_add_u32 v17, v16, 5, v17       ; + w*32 bytes
    """)
    if FUSE1:
        k(f"""
        s_setprio 3
        s_lshl_b32 s12, s10, 16
        s_lshl_b32 s13, s11, 12
        s_add_u32 s12, s12, s13
        s_add_u32 s12, s12, {XT0}
        v_lshl_add_u32 v19, v16, 4, v6
        v_lshlrev_b32 v19, 6, v19
        v_lshl_add_u32 v19, v7, 4, v19
        v_add_u32 v19, s12, v19
        v_add_u32 v44, 0x8000, v19
        """)
    else:
        k(f"""
    s_mul_i32 s12, s11, {64*XP}
    s_lshl_b32 s13, s10, 7
    s_add_u32 s12, s12, s13
    s_add_u32 s12, s12, {XT0}
    v_lshl_add_u32 v19, v16, 4, v6
    v_mul_u32_u24 v19, {XP}, v19
    v_lshl_add_u32 v19, v7, 4, v19
    v_add_u32 v19, s12, v19
        v_add_u32 v44, 64, v19
        """)
    k(f"""
    s_waitcnt vmcnt({5 if WTOUCH else 2})
    @STAMP 2
    ds_write_b128 v5, v[8:11]
    ds_write_b128 v5, v[12:15] offset:{32*PITCH}
    s_waitcnt lgkmcnt(0)
    s_barrier
    ds_read_b64_tr_b16 v[8:9], v17
    ds_read_b64_tr_b16 v[10:11], v17 offset:{4*PITCH}
    ds_read_b64_tr_b16 v[12:13], v17 offset:{32*PITCH}
    ds_read_b64_tr_b16 v[14:15], v17 offset:{36*PITCH}
    s_waitcnt lgkmcnt(0)
    global_store_dwordx4 v19, v[8:11], s[4:5] {'sc1' if FUSE1 else PREP_X_POL}
    global_store_dwordx4 v44, v[12:15], s[4:5] {'sc1' if FUSE1 else PREP_X_POL}
    """)
    k(f"""
    v_mov_b32 v2, v42
    s_lshl_b32 s10, s3, 4
    v_lshlrev_b32 v4, 12, v41
    v_add_u32 v4, s10, v4                 ; w*4096 + wg*16
    v_add_u32 v5, {ST0}, v4
    v_add_u32 v6, {ST1}, v4
    s_waitcnt vmcnt({5 if WTOUCH else 2})
    """)
    for row, (base, sm, sq) in enumerate([(48, 20, 21), (52, 22, 23)]):
        for j in range(4):
            k(f"v_lshlrev_b32 v16, 16, v{base+j}")
            k(f"v_and_b32 v17, 0xffff0000, v{base+j}")
            if j == 0:
                k(f"v_add_f32 v{sm}, v16, v17")
                k(f"v_mul_f32 v{sq}, v16, v16")
            else:
                k(f"v_add_f32 v{sm}, v{sm}, v16")
                k(f"v_add_f32 v{sm}, v{sm}, v17")
                k(f"v_fmac_f32 v{sq}, v16, v16")
            k(f"v_fmac_f32 v{sq}, v17, v17")
    for sh in ("row_shr:1", "row_shr:2", "row_shr:4", "row_shr:8"):
        for r in range(20, 24):
            k(f"v_add_f32_dpp v{r}, v{r}, v{r} {sh} row_mask:0xf bank_mask:0xf bound_ctrl:0")
    for r in range(20, 24):
        k(f"v_add_f32_dpp v{r}, v{r}, v{r} row_bcast:15 row_mask:0xa bank_mask:0xf")
    for r in range(20, 24):
        k(f"v_add_f32_dpp v{r}, v{r}, v{r} row_bcast:31 row_mask:0xc bank_mask:0xf")
    if FUSE1:
        k(f"s_mov_b32 s43, {fl(1.0/512)}\ns_mov_b32 s44, {fl(1e-5)}")
        stats_pair(k, 20, 21, 22, 23, 40)
    k(f"""
    v_mov_b32 v24, 0
    v_mov_b32 v25, 0
    v_mov_b32 v26, 0
    v_mov_b32 v27, 0
    s_lshl_b32 s10, s3, 9
    s_add_u32 s10, s10, {ZR}
    v_and_b32 v7, 31, v0
    v_lshl_add_u32 v7, v7, 4, s10
    global_store_dwordx4 v7, v[24:27], s[4:5]
    v_cmp_eq_u32 vcc, 63, v2
    s_and_saveexec_b64 s[22:23], vcc
    global_store_dwordx4 v5, v[20:23], s[4:5] {'sc1' if FUSE1 else ''}
    global_store_dwordx4 v6, v[24:27], s[4:5]
    """)
    if FUSE1:
        k(f"""
        s_mov_b64 exec, -1
        s_and_b32 s10, s2, 3
        s_lshl_b32 s10, s10, 6
        v_mov_b32 v8, s10
        v_mov_b32 v9, 1
        v_cmp_eq_u32 vcc, 0, v0
        @STAMP 3
        s_waitcnt vmcnt(0)
        s_barrier
        @STAMP 4
        v_readfirstlane_b32 s10, v0
        s_cmp_lg_u32 s10, 0
        s_cbranch_scc1 P_TEND
        s_mov_b64 exec, 1
        global_atomic_add v10, v8, v9, s[28:29] sc0 sc1
        s_waitcnt vmcnt(0)
        v_readfirstlane_b32 s10, v10
        s_cmp_lg_u32 s10, {N_T // 4 - 1}
        s_cbranch_scc1 P_TEND
        v_mov_b32 v8, 8
        global_atomic_add v8, v9, s[28:29] sc1
        s_mov_b64 exec, -1
        v_lshlrev_b32 v8, 7, v0
        v_add_u32 v8, {GFB}, v8
        s_mov_b64 exec, {(1 << GFN) - 1 if GFN < 64 else -1}
        global_atomic_add v8, v9, s[4:5] sc1
        P_TEND:
        s_mov_b64 exec, -1
        s_setprio 0
        @STAMP 5
        s_cmp_lt_u32 s2, {N_C}
        s_cbranch_scc1 P_C
        """)
    k(f"""
    @FLUSH {6 if FUSE1 else 2}
    s_endpgm
    """)
    k = knull if FUSE1 else kreal
    k.label("P_W")
    WPITCH = 400
    k(f"""
    s_load_dwordx4 s[8:11], s[0:1], {KA_WG}
    s_sub_u32 s3, s2, {B_W}
    s_lshr_b32 s12, s3, 4                 ; ft
    s_and_b32 s13, s3, 15                 ; s
    """)
    k(f"""
    s_mul_i32 s14, s13, {32*F*2}
    s_mul_i32 s15, s12, 192
    s_add_u32 s14, s14, s15
    s_mul_i32 s16, s12, 12
    s_mov_b32 s17, 0x15555556
    """)
    k(f"v_mov_b32 v5, {F//8}")
    for i in range(2):
        k(f"""
        v_add_u32 v1, {256*i}, v0
        v_mul_hi_u32 v2, v1, s17
        v_mul_u32_u24 v3, 12, v2
        v_sub_u32 v3, v1, v3                  ; chunk
        v_mul_u32_u24 v4, {F*2}, v2
        v_lshl_add_u32 v4, v3, 4, v4
        v_add_u32 v{40+i}, s14, v4
        v_mul_u32_u24 v4, {WPITCH}, v2
        v_lshl_add_u32 v{42+i}, v3, 5, v4
        v_add_u32 v3, s16, v3
        v_cmp_gt_u32 s[{24+2*i}:{25+2*i}], v5, v3
        """)
    for r in range(8, 24): k(f"v_mov_b32 v{r}, 0")
    k(f"""
    v_cmp_gt_u32 vcc, 0x80, v0
    s_and_b64 s[26:27], s[26:27], vcc
    s_waitcnt lgkmcnt(0)
    s_mov_b64 s[28:29], exec
    s_mov_b64 exec, s[24:25]
    s_cbranch_execz P_W1
    global_load_dwordx4 v[8:11], v40, s[8:9]
    global_load_dwordx4 v[12:15], v40, s[10:11]
    P_W1:
    s_mov_b64 exec, s[26:27]
    s_cbranch_execz P_W2
    global_load_dwordx4 v[16:19], v41, s[8:9]
    global_load_dwordx4 v[20:23], v41, s[10:11]
    P_W2:
    s_setprio {LATE_PRIO}
    s_mov_b64 exec, s[28:29]
    s_waitcnt vmcnt(0)
    ds_write2_b32 v42, v8, v9 offset0:0 offset1:2
    ds_write2_b32 v42, v10, v11 offset0:4 offset1:6
    ds_write2_b32 v42, v12, v13 offset0:1 offset1:3
    ds_write2_b32 v42, v14, v15 offset0:5 offset1:7
    s_and_saveexec_b64 s[28:29], vcc
    s_cbranch_execz P_W3
    ds_write2_b32 v43, v16, v17 offset0:0 offset1:2
    ds_write2_b32 v43, v18, v19 offset0:4 offset1:6
    ds_write2_b32 v43, v20, v21 offset0:1 offset1:3
    ds_write2_b32 v43, v22, v23 offset0:5 offset1:7
    P_W3:
    s_mov_b64 exec, s[28:29]
    v_and_b32 v1, 15, v0
    v_bfe_u32 v2, v0, 4, 2
    v_lshrrev_b32 v3, 2, v1
    v_lshl_add_u32 v3, v2, 2, v3
    v_mul_u32_u24 v3, {WPITCH}, v3
    v_and_b32 v4, 3, v1
    v_lshl_add_u32 v3, v4, 3, v3
    v_readfirstlane_b32 s18, v0
    s_lshr_b32 s18, s18, 6                ; w
    s_lshl_b32 s19, s18, 7
    s_mov_b32 s20, 32
    s_cmp_eq_u32 s18, 3
    s_cselect_b32 s19, 96, s19
    s_cselect_b32 s20, 128, s20
    v_add_u32 v3, s19, v3
    v_add_u32 v4, s20, v3
    v_add_u32 v5, s20, v4
    s_lshl_b32 s21, s12, 2
    s_add_u32 s21, s21, s18
    s_lshl_b32 s21, s21, 4
    s_add_u32 s21, s21, s13
    s_mul_i32 s21, s21, 3072
    s_add_u32 s21, s21, {WP}
    v_and_b32 v6, 63, v0
    v_lshlrev_b32 v6, 4, v6
    v_add_u32 v6, s21, v6
    v_add_u32 v7, 0x400, v6
    v_add_u32 v24, 0x800, v6
    s_waitcnt lgkmcnt(0)
    s_barrier
    ds_read_b64_tr_b16 v[8:9], v3
    ds_read_b64_tr_b16 v[10:11], v3 offset:{16*WPITCH}
    ds_read_b64_tr_b16 v[12:13], v4
    ds_read_b64_tr_b16 v[14:15], v4 offset:{16*WPITCH}
    ds_read_b64_tr_b16 v[16:17], v5
    ds_read_b64_tr_b16 v[18:19], v5 offset:{16*WPITCH}
    s_waitcnt lgkmcnt(0)
    global_store_dwordx4 v6, v[8:11], s[4:5] {PREP_W_POL}
    global_store_dwordx4 v7, v[12:15], s[4:5] {PREP_W_POL}
    global_store_dwordx4 v24, v[16:19], s[4:5] {PREP_W_POL}
    @FLUSH 2
    s_endpgm
    """)
    k.label("P_D")
    DPITCH = 272
    k(f"""
    s_load_dwordx2 s[8:9], s[0:1], {KA_WD}
    s_sub_u32 s3, s2, {B_D}
    s_lshr_b32 s12, s3, 2                 ; ks 0..43
    s_and_b32 s13, s3, 3                  ; dq
    v_lshrrev_b32 v1, 4, v0               ; row 0..15 (+16)
    v_and_b32 v2, 15, v0                  ; chunk
    s_lshl_b32 s14, s12, 15               ; ks*32*1024
    s_lshl_b32 s15, s13, 8
    s_add_u32 s14, s14, s15
    v_lshlrev_b32 v3, 10, v1
    v_lshl_add_u32 v3, v2, 4, v3
    v_add_u32 v3, s14, v3
    v_add_u32 v4, 0x4000, v3
    """)
    for r in range(8, 16): k(f"v_mov_b32 v{r}, 0")
    k(f"""
    s_waitcnt lgkmcnt(0)
    s_cmp_ge_u32 s12, 43
    s_cbranch_scc1 P_D1
    global_load_dwordx4 v[8:11], v3, s[8:9]
    global_load_dwordx4 v[12:15], v4, s[8:9]
    P_D1:
    s_setprio {LATE_PRIO}
    v_bfe_u32 v5, v1, 1, 2                ; g
    v_lshrrev_b32 v6, 3, v1               ; dw (0/1)
    v_and_b32 v7, 1, v1
    v_lshl_add_u32 v7, v6, 1, v7
    v_lshl_add_u32 v7, v5, 3, v7          ; rho
    v_mul_u32_u24 v7, {DPITCH}, v7
    v_lshl_add_u32 v7, v2, 4, v7
    v_and_b32 v1, 15, v0
    v_bfe_u32 v2, v0, 4, 2
    v_lshrrev_b32 v16, 6, v0
    v_lshrrev_b32 v3, 2, v1
    v_lshl_add_u32 v3, v2, 3, v3          ; row = 8g + r
    v_mul_u32_u24 v3, {DPITCH}, v3
    v_and_b32 v4, 3, v1
    v_lshl_add_u32 v3, v4, 3, v3          ; + c*8 bytes (4 d)
    v_lshl_add_u32 v3, v16, 6, v3         ; + w*64
    s_lshl_b32 s16, s13, 3
    v_lshl_add_u32 v17, v16, 1, s16
    v_mul_u32_u24 v17, {NKS2*1024}, v17
    v_and_b32 v18, 63, v0
    v_lshl_add_u32 v17, v18, 4, v17
    s_lshl_b32 s16, s12, 10
    s_add_u32 s16, s16, {WD}
    v_add_u32 v17, s16, v17
    v_add_u32 v18, {NKS2*1024}, v17
    s_waitcnt vmcnt(0)
    ds_write_b128 v7, v[8:11]
    ds_write_b128 v7, v[12:15] offset:{4*DPITCH}
    s_waitcnt lgkmcnt(0)
    s_barrier
    ds_read_b64_tr_b16 v[8:9], v3
    ds_read_b64_tr_b16 v[10:11], v3 offset:{4*DPITCH}
    ds_read_b64_tr_b16 v[12:13], v3 offset:32
    ds_read_b64_tr_b16 v[14:15], v3 offset:{4*DPITCH+32}
    s_waitcnt lgkmcnt(0)
    global_store_dwordx4 v17, v[8:11], s[4:5] {PREP_W_POL}
    global_store_dwordx4 v18, v[12:15], s[4:5] {PREP_W_POL}
    @FLUSH 2
    s_endpgm
    """)
    k = kreal
    k.label("P_C")
    k(f"""
    s_load_dwordx4 s[8:11], s[0:1], {KA_WG}
    s_sub_u32 s3, s2, {B_C}
    s_and_b32 s12, s3, 1                  ; mat
    s_lshr_b32 s13, s3, 1                 ; cb 0..44
    v_lshrrev_b32 v1, 2, v0
    v_and_b32 v2, 3, v0                   ; chunk
    s_lshl_b32 s14, s13, 6
    v_mul_u32_u24 v4, {F*2}, v1
    v_lshl_add_u32 v4, v2, 4, v4
    v_add_u32 v4, s14, v4
    """)
    for r in range(8, 16): k(f"v_mov_b32 v{r}, 0")
    k(f"""
    s_waitcnt lgkmcnt(0)
    s_cmp_eq_u32 s12, 1
    s_cselect_b32 s8, s10, s8
    s_cselect_b32 s9, s11, s9
    s_cmp_ge_u32 s13, 43
    s_cbranch_scc1 P_C2
    """)
    for i in range(8):
        k(f"global_load_dwordx4 v[{16+4*i}:{19+4*i}], v4, s[8:9]")
        if i < 7: k(f"v_add_u32 v4, {64*F*2}, v4")
    k(f"s_setprio {LATE_PRIO}")
    for i in range(8):
        k(f"s_waitcnt vmcnt({7-i})")
        for j in range(4):
            k(f"v_lshlrev_b32 v6, 16, v{16+4*i+j}")
            k(f"v_and_b32 v7, 0xffff0000, v{16+4*i+j}")
            k(f"v_pk_add_f32 v[{8+2*j}:{9+2*j}], v[{8+2*j}:{9+2*j}], v[6:7]")
    for sh in ("row_shr:4", "row_shr:8"):
        for r in range(8, 16):
            k(f"v_add_f32_dpp v{r}, v{r}, v{r} {sh} row_mask:0xf bank_mask:0xf bound_ctrl:0")
    k(f"""
    P_C2:
    v_lshrrev_b32 v6, 4, v0
    v_lshlrev_b32 v6, 7, v6
    v_lshl_add_u32 v6, v2, 5, v6
    v_and_b32 v7, 12, v0
    v_cmp_eq_u32 vcc, 12, v7
    s_and_saveexec_b64 s[46:47], vcc
    ds_write_b128 v6, v[8:11]
    ds_write_b128 v6, v[12:15] offset:16
    s_mov_b64 exec, s[46:47]
    s_waitcnt lgkmcnt(0)
    s_barrier
    v_cmp_gt_u32 vcc, 32, v0
    s_and_saveexec_b64 s[46:47], vcc
    s_cbranch_execz P_C3
    v_lshlrev_b32 v6, 2, v0
    """)
    for i in range(16):
        k(f"ds_read_b32 v{16+i}, v6 offset:{128*i}")
    k(f"""
    s_mul_i32 s14, s13, 0x5556
    s_lshr_b32 s14, s14, 16               ; ft
    s_mul_i32 s15, s14, 3
    s_sub_u32 s15, s13, s15               ; j
    s_mul_i32 s16, s15, 3
    s_add_u32 s17, s15, 9
    v_lshrrev_b32 v5, 3, v0               ; dw
    v_add_u32 v7, s16, v5
    v_mov_b32 v8, s17
    v_cmp_eq_u32 vcc, 3, v5
    v_cndmask_b32 v7, v7, v8, vcc         ; w*3+tau
    s_mul_i32 s14, s14, 12
    v_add_u32 v7, s14, v7
    v_lshlrev_b32 v7, 4, v7
    v_bfe_u32 v8, v0, 1, 2
    v_lshl_add_u32 v7, v8, 2, v7
    v_and_b32 v8, 1, v0
    v_add_u32 v7, v7, v8
    s_lshl_b32 s14, s12, 1
    v_add_u32 v7, s14, v7
    v_lshlrev_b32 v7, 2, v7
    v_add_u32 v7, {CSUM}, v7
    s_waitcnt lgkmcnt(0)
    """)
    for st in (8, 4, 2, 1):
        for i in range(st):
            k(f"v_add_f32 v{16+i}, v{16+i}, v{16+i+st}")
    k(f"""
    global_store_dword v7, v16, s[4:5]
    P_C3:
    @FLUSH {6 if FUSE1 else 2}
    s_endpgm
    """)
    return k, dict(vgpr=96, sgpr=48, accum=96, grid=PREP_WGS, block=256, lds=PREP_LDS)


def stats_pair(k, sa, qa, sb, qb, t, keep=None):
    for s_, q_ in ((sa, qa), (sb, qb)):
        k(f"""
        v_mul_f32 v{s_}, s43, v{s_}
        v_mul_f32 v{q_}, s43, v{q_}
        v_fma_f32 v{q_}, -v{s_}, v{s_}, v{q_}
        v_max_f32 v{q_}, 0, v{q_}
        v_cvt_pk_bf16_f32 v{q_}, v{s_}, v{q_}
        v_lshlrev_b32 v{s_}, 16, v{q_}
        v_and_b32 v{q_}, 0xffff0000, v{q_}
        v_add_f32 v{q_}, s44, v{q_}
        """)
    k(f"""
    v_cvt_pk_bf16_f32 v{t}, v{qa}, v{qb}
    v_lshlrev_b32 v{qa}, 16, v{t}
    v_and_b32 v{qb}, 0xffff0000, v{t}
    v_sqrt_f32 v{qa}, v{qa}
    v_sqrt_f32 v{qb}, v{qb}
    v_cvt_pk_bf16_f32 v{t}, v{qa}, v{qb}
    v_lshlrev_b32 v{keep[0] if keep else qa}, 16, v{t}
    v_and_b32 v{keep[1] if keep else qb}, 0xffff0000, v{t}
    v_rcp_f32 v{qa}, v{keep[0] if keep else qa}
    v_rcp_f32 v{qb}, v{keep[1] if keep else qb}
    """)


def conv_stats_norm(k, wait_x):
    for i in range(4):
        b = 16 + 4 * i
        k(f"""
        v_pk_mul_f32 v[{b}:{b+1}], v[{b}:{b+1}], s[46:47]
        v_pk_mul_f32 v[{b+2}:{b+3}], v[{b+2}:{b+3}], s[46:47]
        v_fma_f32 v{b+1}, -v{b}, v{b}, v{b+1}
        v_fma_f32 v{b+3}, -v{b+2}, v{b+2}, v{b+3}
        v_cvt_pk_bf16_f32 v{b}, v{b}, v{b+2}          ; (m_a, m_b)
        v_cvt_pk_bf16_f32 v{b+2}, v{b+1}, v{b+3}
        v_and_b32 v{b+1}, 0xffff0000, v{b}
        v_lshlrev_b32 v{b}, 16, v{b}                  ; v[b:b+1] = (m_a, m_b) f32
        v_and_b32 v{b+3}, 0xffff0000, v{b+2}
        v_lshlrev_b32 v{b+2}, 16, v{b+2}
        v_max_f32 v{b+2}, 0, v{b+2}
        v_max_f32 v{b+3}, 0, v{b+3}
        v_pk_add_f32 v[{b+2}:{b+3}], v[{b+2}:{b+3}], s[44:45]
        v_cvt_pk_bf16_f32 v{b+2}, v{b+2}, v{b+3}
        v_and_b32 v{b+3}, 0xffff0000, v{b+2}
        v_lshlrev_b32 v{b+2}, 16, v{b+2}
        v_sqrt_f32 v{b+2}, v{b+2}
        v_sqrt_f32 v{b+3}, v{b+3}
        """)
    for i in range(4):
        b = 16 + 4 * i
        k(f"""
        v_cvt_pk_bf16_f32 v{b+2}, v{b+2}, v{b+3}
        v_and_b32 v{b+3}, 0xffff0000, v{b+2}
        v_lshlrev_b32 v{b+2}, 16, v{b+2}
        v_rcp_f32 v{b+2}, v{b+2}
        v_rcp_f32 v{b+3}, v{b+3}
        """)
    k(wait_x)
    for j in range(4):
        b = 16 + 4 * j
        k(f"""
        v_lshlrev_b32 v40, 16, v{12+j}
        v_and_b32 v41, 0xffff0000, v{12+j}
        v_pk_add_f32 v[40:41], v[40:41], v[{b}:{b+1}] neg_lo:[0,1] neg_hi:[0,1]
        v_cvt_pk_bf16_f32 v41, v40, v41
        v_lshlrev_b32 v40, 16, v41
        v_and_b32 v41, 0xffff0000, v41
        v_pk_mul_f32 v[40:41], v[40:41], v[{b+2}:{b+3}]
        v_cvt_pk_bf16_f32 v{32+j}, v40, v41
        """)
    k(f"""
    ds_write_b128 v1, v[32:35] offset:{CSU + 16*28}
    ds_write2_b64 v1, v[32:33], v[34:35] offset0:57 offset1:58
    """)

def gen_f1():
    k = Kern("f1")
    WPITCH = 400; DPITCH = 272
    US = CRED + 8192 if UEARLY else 0
    KS = CRED; TB = KS + 2304
    k(f"""
    f1_kernel:
    @KID 0
    @INIT
    s_load_dwordx2 s[4:5], s[0:1], {KA_WS}
    s_load_dwordx2 s[28:29], s[0:1], {KA_DBG}
    @CODEPF
    s_cmp_lt_u32 s2, {N_T}
    s_cbranch_scc1 P_TR
    s_cmp_ge_u32 s2, {N_T + N_K}
    s_cbranch_scc1 CONV_END
    """)
    kk = Remap(k, 64, {19: 33, 20: 34, 23: 35, 24: 36, 3: 37, 22: 38, 18: 45})
    kk(f"""
    @KID 1
    s_load_dwordx4 s[8:11], s[0:1], {KA_LOGA}
    s_load_dwordx4 s[12:15], s[0:1], {KA_CRE}
    s_load_dwordx2 s[16:17], s[0:1], {KA_LOGDT}
    s_load_dwordx2 s[6:7], s[0:1], {KA_DSKIP}
    s_load_dwordx4 s[48:51], s[0:1], {KA_WG}
    s_load_dwordx2 s[52:53], s[0:1], {KA_WD}
    s_sub_u32 s2, s2, {N_T}
    s_mov_b32 s40, {fl(L2E_HI)}
    s_mov_b32 s41, {fl(L2E_LO)}
    s_mov_b32 s42, {fl(LN2)}
    v_lshrrev_b32 v1, 1, v0
    v_and_b32 v1, 0x60, v1
    v_and_or_b32 v1, v0, 31, v1           ; n = 32 w + (lane & 31)
    s_lshl_b32 s3, s2, 8
    v_lshl_add_u32 v2, v1, 1, s3
    s_lshl_b32 s18, s2, 1
    v_mov_b32 v3, s18
    v_readfirstlane_b32 s19, v0
    s_lshr_b32 s19, s19, 6                ; wave
    v_and_b32 v20, 15, v0                 ; i / j
    v_bfe_u32 v21, v0, 4, 2               ; g
    ; hi0 = 128*(i>>3) + (i&7)
    v_lshrrev_b32 v23, 3, v20
    v_and_b32 v24, 7, v20
    v_lshl_add_u32 v23, v23, 7, v24
    v_cvt_f32_u32 v30, v23
    ; hi1 = (g''<2 ? 256+2g'' : 256*g'') + 128*((i>>1)&1) + 4*(i&1)
    v_lshrrev_b32 v23, 2, v20
    v_lshlrev_b32 v24, 1, v23
    v_add_u32 v24, 0x100, v24
    v_lshlrev_b32 v25, 8, v23
    v_cmp_gt_u32 vcc, 2, v23
    v_cndmask_b32 v24, v25, v24, vcc
    v_bfe_u32 v25, v20, 1, 1
    v_lshl_add_u32 v24, v25, 7, v24
    v_and_b32 v25, 1, v20
    v_lshl_add_u32 v24, v25, 2, v24
    v_cvt_f32_u32 v31, v24
    v_lshlrev_b32 v23, 7, v20
    v_add_u32 v23, 0x400, v23
    v_cvt_f32_u32 v32, v23                ; hi2
    v_lshlrev_b32 v23, 3, v20
    v_cvt_f32_u32 v33, v23                ; lo
    s_lshl_b32 s20, s19, 9
    v_lshl_add_u32 v34, v21, 6, s20
    v_lshrrev_b32 v23, 1, v21
    v_and_b32 v24, 1, v21
    v_lshlrev_b32 v24, 2, v24
    v_lshl_add_u32 v35, v23, 7, v24
    v_lshl_add_u32 v35, v20, 3, v35
    v_mov_b32 v36, 1
    v_mov_b32 v37, 2
    s_cmp_eq_u32 s19, 0
    s_cbranch_scc1 F_KA
    v_lshl_add_u32 v35, v21, 6, v20
    v_add_u32 v35, 0x200, v35
    v_mov_b32 v36, 16
    v_mov_b32 v37, 32
    s_cmp_lg_u32 s19, 1
    s_cbranch_scc1 F_KA
    v_lshl_add_u32 v23, v20, 2, v21
    v_add_u32 v23, 0x100, v23             ; seg1: 256 + g' + 4j ; o1=2 o2=64
    v_lshlrev_b32 v24, 6, v21
    v_lshl_add_u32 v24, v20, 1, v24
    v_add_u32 v24, 0x100, v24             ; seg2: 384 + 64(g'-2) + 2j ; o1=1 o2=32
    v_cmp_gt_u32 vcc, 2, v21
    v_cndmask_b32 v35, v24, v23, vcc
    v_cndmask_b32 v36, 1, 2, vcc
    v_cndmask_b32 v37, 32, 64, vcc
    F_KA:
    v_add_u32 v38, v36, v37
    v_add_lshl_u32 v36, v36, v35, 1
    v_add_lshl_u32 v37, v37, v35, 1
    v_add_lshl_u32 v38, v38, v35, 1
    v_lshlrev_b32 v35, 1, v35
    v_and_b32 v39, 63, v0
    v_lshlrev_b32 v39, 4, v39             ; lane*16
    s_waitcnt lgkmcnt(0)
    global_load_ushort v84, v2, s[8:9]
    @GFLOAD
    global_load_ushort v85, v3, s[16:17]
    global_load_ushort v86, v2, s[10:11]
    global_load_ushort v87, v2, s[12:13]
    global_load_ushort v88, v2, s[14:15]
    v_mov_b32 v89, v1
    """)
    k(f"""
    s_mov_b32 s30, 0
    s_mov_b32 s31, {ST0}
    s_mov_b32 s32, {X1T}
    s_mov_b32 s18, {TB}
    """)
    conv_setup(k)
    k("s_load_dword s20, s[6:7], s16")
    srd(k, 8, 4, WS_BYTES)
    conv_p3(k, kzero=False)
    k(f"""
    v_and_b32 v61, 3, v0
    v_mov_b32 v62, 0
    v_lshrrev_b32 v60, 2, v0
    v_lshlrev_b32 v60, 15, v60
    v_lshl_add_u32 v60, v61, 4, v60       ; x voffset
    s_lshl_b32 s13, s2, 6
    s_add_u32 s13, s13, {XT0}
    """)
    k("s_waitcnt vmcnt(0)")
    kk(f"""
    v_mov_b32 v4, v84
    v_mov_b32 v8, v85
    v_mov_b32 v5, v86
    v_mov_b32 v6, v87
    v_mov_b32 v7, v88
    v_mov_b32 v1, v89
    @STAMP 10
    v_lshlrev_b32 v4, 16, v4
    v_lshlrev_b32 v8, 16, v8
    """)
    exp_acc(kk, 10, 8, 16, 17)
    exp_acc(kk, 11, 4, 18, 19)
    kk(f"""
    v_cvt_pk_bf16_f32 v10, v10, v11
    v_and_b32 v11, 0xffff0000, v10        ; eA
    v_lshlrev_b32 v10, 16, v10            ; dt
    v_mul_f32 v12, v11, v10
    v_mul_f32 v12, s40, v12
    v_sub_f32 v12, 0, v12
    v_lshlrev_b32 v5, 16, v5
    v_lshlrev_b32 v6, 16, v6
    v_lshlrev_b32 v7, 16, v7
    v_mul_f32 v13, v5, v10
    v_mul_f32 v13, 0.15915494, v13
    v_add_f32 v10, v10, v10
    v_mul_f32 v14, v6, v10                ; 2*Cre*dt
    v_mul_f32 v15, v7, v10                ; 2*Cim*dt
    v_lshlrev_b32 v9, 4, v1
    ds_write_b128 v9, v[12:15] offset:{KS}
    v_max3_f32 v16, |v14|, |v15|, 0
    v_max_f32_dpp v16, v16, v16 row_shr:1 row_mask:0xf bank_mask:0xf
    v_max_f32_dpp v16, v16, v16 row_shr:2 row_mask:0xf bank_mask:0xf
    v_max_f32_dpp v16, v16, v16 row_shr:4 row_mask:0xf bank_mask:0xf
    v_max_f32_dpp v16, v16, v16 row_shr:8 row_mask:0xf bank_mask:0xf
    v_max_f32_dpp v16, v16, v16 row_bcast:15 row_mask:0xa bank_mask:0xf
    v_readlane_b32 s23, v16, 31
    s_mov_b32 s20, 0
    @STAMP 11
    v_mov_b32 v16, s23
    v_bfe_u32 v16, v16, 23, 8
    v_max_u32 v16, 14, v16
    v_sub_u32 v17, 0x8c, v16
    v_cvt_f32_i32 v29, v17                ; kf = 140 - e'
    v_mov_b32 v28, 0
    v_subrev_u32 v16, 13, v16
    v_lshlrev_b32 v27, 23, v16            ; Sinv
    F_KLOOP:
    ds_read_b128 v[52:55], v34 offset:{KS}
    ds_read_b128 v[56:59], v34 offset:{KS+16}
    ds_read_b128 v[60:63], v34 offset:{KS+32}
    ds_read_b128 v[64:67], v34 offset:{KS+48}
    v_add_u32 v34, 0x100, v34
    """)
    for nn in range(4):
        p = 52 + 4 * nn
        kk(f"""
        s_waitcnt lgkmcnt({3-nn})
        v_pk_mul_f32 v[2:3], v[30:31], v[{p}:{p+1}] op_sel_hi:[1,0]
        v_pk_fma_f32 v[4:5], v[32:33], v[{p}:{p+1}], v[28:29] op_sel_hi:[1,0,1]
        v_pk_mul_f32 v[6:7], v[30:31], v[{p}:{p+1}] op_sel:[0,1] op_sel_hi:[1,1]
        v_pk_mul_f32 v[8:9], v[32:33], v[{p}:{p+1}] op_sel:[0,1] op_sel_hi:[1,1]
        v_exp_f32 v2, v2
        v_exp_f32 v3, v3
        v_exp_f32 v4, v4
        v_exp_f32 v5, v5
        v_fract_f32 v6, v6
        v_fract_f32 v7, v7
        v_fract_f32 v8, v8
        v_fract_f32 v9, v9
        v_cos_f32 v10, v6
        v_sin_f32 v11, v6
        v_cos_f32 v12, v7
        v_sin_f32 v13, v7
        v_cos_f32 v14, v8
        v_sin_f32 v15, v8
        v_cos_f32 v16, v9
        v_sin_f32 v17, v9
        v_pk_mul_f32 v[10:11], v[10:11], v[2:3] op_sel_hi:[1,0]
        v_pk_mul_f32 v[12:13], v[12:13], v[2:3] op_sel:[0,1] op_sel_hi:[1,1]
        v_pk_mul_f32 v[14:15], v[14:15], v[4:5] op_sel_hi:[1,0]
        v_pk_mul_f32 v[16:17], v[16:17], v[4:5] op_sel:[0,1] op_sel_hi:[1,1]
        v_cvt_pk_f16_f32 v{68+nn}, v10, v11
        v_cvt_pk_f16_f32 v{72+nn}, v12, v13
        v_cvt_pk_f16_f32 v{76+nn}, v14, v15
        v_pk_mul_f32 v[18:19], v[16:17], v[{p+2}:{p+3}] op_sel_hi:[1,0]
        v_pk_fma_f32 v[18:19], v[16:17], v[{p+2}:{p+3}], v[18:19] op_sel:[1,1,0] op_sel_hi:[0,1,1] neg_lo:[1,0,0]
        v_cvt_pk_f16_f32 v{80+nn}, v18, -v19
        """)
    kk(f"""
    s_cmp_eq_u32 s20, 1
    s_cbranch_scc1 F_KL2
    v_mfma_f32_16x16x32_f16 v[40:43], v[68:71], v[80:83], 0
    v_mfma_f32_16x16x32_f16 v[44:47], v[72:75], v[80:83], 0
    v_mfma_f32_16x16x32_f16 v[48:51], v[76:79], v[80:83], 0
    s_mov_b32 s20, 1
    s_branch F_KLOOP
    F_KL2:
    v_mfma_f32_16x16x32_f16 v[40:43], v[68:71], v[80:83], v[40:43]
    v_mfma_f32_16x16x32_f16 v[44:47], v[72:75], v[80:83], v[44:47]
    v_mfma_f32_16x16x32_f16 v[48:51], v[76:79], v[80:83], v[48:51]
    @STAMP 12
    s_mul_i32 s20, s19, 3072
    v_add_u32 v2, s20, v39
    s_lshl_b32 s20, s19, 10
    v_add_u32 v3, s20, v39
    v_mov_b32 v26, v27
    """)
    for r in range(40, 52, 2): kk(f"v_pk_mul_f32 v[{r}:{r+1}], v[{r}:{r+1}], v[26:27]")
    kk(f"""
    ds_write_b128 v2, v[40:43] offset:{KS+4096}
    ds_write_b128 v2, v[44:47] offset:{KS+5120}
    ds_write_b128 v2, v[48:51] offset:{KS+6144}
    """)
    k(f"""
    s_waitcnt lgkmcnt(0)
    s_barrier
    """)
    kk(f"""
    s_cmp_eq_u32 s19, 3
    s_cbranch_scc1 F_KS
    ds_read_b128 v[40:43], v3 offset:{KS+4096}
    ds_read_b128 v[44:47], v3 offset:{KS+4096+3072}
    ds_read_b128 v[48:51], v3 offset:{KS+4096+6144}
    ds_read_b128 v[4:7], v3 offset:{KS+4096+9216}
    s_waitcnt lgkmcnt(2)
    v_pk_add_f32 v[40:41], v[40:41], v[44:45]
    v_pk_add_f32 v[42:43], v[42:43], v[46:47]
    s_waitcnt lgkmcnt(0)
    v_pk_add_f32 v[48:49], v[48:49], v[4:5]
    v_pk_add_f32 v[50:51], v[50:51], v[6:7]
    v_pk_add_f32 v[40:41], v[40:41], v[48:49]
    v_pk_add_f32 v[42:43], v[42:43], v[50:51]
    v_cvt_pk_bf16_f32 v40, v40, v41
    v_cvt_pk_bf16_f32 v42, v42, v43
    ds_write_b16 v35, v40 offset:{TB}
    ds_write_b16_d16_hi v36, v40 offset:{TB}
    ds_write_b16 v37, v42 offset:{TB}
    ds_write_b16_d16_hi v38, v42 offset:{TB}
    F_KS:
    s_waitcnt lgkmcnt(0)
    s_barrier
    """)
    if UEARLY:
        k0 = k; k = Remap2(UnitS(k0), {**{1: 84, 2: 85, 6: 86, 7: 87, 8: 88, 9: 89, 10: 90, 11: 91}, **{i: i + 128 for i in range(16, 32)}, **{i: i + 119 for i in range(41, 48)}})
        for r in list(range(16, 32)) + list(range(41, 48)): k(f"v_mov_b32 v{r}, 0")
        k(f"""
        s_mov_b32 s54, 2
        s_cmp_ge_u32 s2, {N_W + N_D}
        s_cbranch_scc1 U_LDONE
        s_cmp_ge_u32 s2, {N_W}
        s_cbranch_scc1 U_LD
        s_mov_b32 s54, 0
        s_lshr_b32 s12, s2, 4                 ; ft
        s_and_b32 s13, s2, 15                 ; s
        s_mul_i32 s14, s13, {32*F*2}
        s_mul_i32 s15, s12, 192
        s_add_u32 s14, s14, s15
        s_mul_i32 s16, s12, 12
        s_mov_b32 s17, 0x15555556
        v_mov_b32 v11, {F//8}
        """)
        for i in range(2):
            k(f"""
            v_add_u32 v1, {256*i}, v0
            v_mul_hi_u32 v2, v1, s17
            v_mul_u32_u24 v6, 12, v2
            v_sub_u32 v6, v1, v6                  ; chunk
            v_mul_u32_u24 v7, {F*2}, v2
            v_lshl_add_u32 v7, v6, 4, v7
            v_add_u32 v{8+i}, s14, v7
            v_mul_u32_u24 v7, {WPITCH}, v2
            v_lshl_add_u32 v{41+i}, v6, 5, v7
            v_add_u32 v6, s16, v6
            v_cmp_gt_u32 s[{24+2*i}:{25+2*i}], v11, v6
            """)
        k(f"""
        s_mov_b64 exec, s[24:25]
        s_cbranch_execz U_W1
        global_load_dwordx4 v[144:147], v8, s[48:49]
        global_load_dwordx4 v[148:151], v8, s[50:51]
        U_W1:
        s_mov_b64 exec, -1
        s_cmp_ge_u32 s33, 2
        s_cbranch_scc1 U_W2
        s_mov_b64 exec, s[26:27]
        s_cbranch_execz U_W2
        global_load_dwordx4 v[152:155], v9, s[48:49]
        global_load_dwordx4 v[156:159], v9, s[50:51]
        U_W2:
        s_mov_b64 exec, -1
        v_add_u32 v41, {US}, v41
        v_add_u32 v42, {US}, v42
        v_lshrrev_b32 v6, 2, v3
        v_lshl_add_u32 v6, v4, 2, v6
        v_mul_u32_u24 v6, {WPITCH}, v6
        v_and_b32 v7, 3, v3
        v_lshl_add_u32 v6, v7, 3, v6
        s_lshl_b32 s18, s33, 7
        s_mov_b32 s19, 32
        s_cmp_eq_u32 s33, 3
        s_cselect_b32 s18, 96, s18
        s_cselect_b32 s19, 128, s19
        s_add_u32 s18, s18, {US}
        v_add_u32 v43, s18, v6
        v_add_u32 v44, s19, v43
        v_add_u32 v45, s19, v44
        s_lshl_b32 s21, s12, 2
        s_add_u32 s21, s21, s33
        s_lshl_b32 s21, s21, 4
        s_add_u32 s21, s21, s13
        s_mul_i32 s21, s21, 3072
        s_add_u32 s21, s21, {WP}
        v_lshl_add_u32 v46, v5, 4, s21
        s_branch U_LDONE
        U_LD:
        s_mov_b32 s54, 1
        s_sub_u32 s3, s2, {N_W}
        s_lshr_b32 s12, s3, 2                 ; ks
        s_and_b32 s13, s3, 3                  ; dq
        v_lshrrev_b32 v1, 4, v0               ; row 0..15 (+16)
        s_lshl_b32 s14, s12, 15
        s_lshl_b32 s15, s13, 8
        s_add_u32 s14, s14, s15
        v_lshlrev_b32 v6, 10, v1
        v_lshl_add_u32 v6, v3, 4, v6
        v_add_u32 v6, s14, v6
        v_add_u32 v7, 0x4000, v6
        s_cmp_ge_u32 s12, 43
        s_cbranch_scc1 U_D1
        global_load_dwordx4 v[144:147], v6, s[52:53]
        global_load_dwordx4 v[148:151], v7, s[52:53]
        U_D1:
        v_bfe_u32 v8, v1, 1, 2
        v_lshrrev_b32 v9, 3, v1
        v_and_b32 v10, 1, v1
        v_lshl_add_u32 v10, v9, 1, v10
        v_lshl_add_u32 v10, v8, 3, v10        ; rho
        v_mul_u32_u24 v10, {DPITCH}, v10
        v_lshl_add_u32 v10, v3, 4, v10
        v_add_u32 v41, {US}, v10
        v_lshrrev_b32 v6, 2, v3
        v_lshl_add_u32 v6, v4, 3, v6
        v_mul_u32_u24 v6, {DPITCH}, v6
        v_and_b32 v7, 3, v3
        v_lshl_add_u32 v6, v7, 3, v6
        s_lshl_b32 s18, s33, 6
        s_add_u32 s18, s18, {US}
        v_add_u32 v43, s18, v6
        s_lshl_b32 s16, s13, 3
        s_lshl_b32 s17, s33, 1
        s_add_u32 s16, s16, s17
        s_mul_i32 s16, s16, {NKS2*1024}
        s_lshl_b32 s17, s12, 10
        s_add_u32 s16, s16, s17
        s_add_u32 s16, s16, {WD}
        v_lshl_add_u32 v46, v5, 4, s16
        v_add_u32 v47, {NKS2*1024}, v46
        U_LDONE:
        """)
        k = k0
    for e in range(11):
        k(f"ds_read_u16 v{48+e}, v{48+e}")
    k(f"""
    v_min_u32 v61, 0x5f0, v1
    ds_read_b128 v[80:83], v61 offset:{TB}
    v_bfe_u32 v62, v0, 2, 2
    v_mul_u32_u24 v62, {KCS}, v62
    v_and_b32 v63, 3, v0
    v_min_u32 v63, 2, v63
    v_lshl_add_u32 v62, v63, 4, v62
    ds_write_b128 v62, v[36:39] offset:{KL}
    """)
    conv_expand(k)
    k(f"""
    buffer_store_dwordx4 v[80:83], v61, s[8:11], s15 offen
    v_mov_b32 v62, 0
    """)
    if UEARLY: k(f"""
    s_waitcnt vmcnt(1)
    s_cmp_eq_u32 s54, 2
    s_cbranch_scc1 U_SDONE
    s_cmp_eq_u32 s54, 1
    s_cbranch_scc1 U_SD
    ds_write2_b32 v160, v144, v145 offset0:0 offset1:2
    ds_write2_b32 v160, v146, v147 offset0:4 offset1:6
    ds_write2_b32 v160, v148, v149 offset0:1 offset1:3
    ds_write2_b32 v160, v150, v151 offset0:5 offset1:7
    s_cmp_ge_u32 s17, 2
    s_cbranch_scc1 U_SDONE
    ds_write2_b32 v161, v152, v153 offset0:0 offset1:2
    ds_write2_b32 v161, v154, v155 offset0:4 offset1:6
    ds_write2_b32 v161, v156, v157 offset0:1 offset1:3
    ds_write2_b32 v161, v158, v159 offset0:5 offset1:7
    s_branch U_SDONE
    U_SD:
    ds_write_b128 v160, v[144:147]
    ds_write_b128 v160, v[148:151] offset:{4*DPITCH}
    U_SDONE:
    """)
    k(f"""
    s_cmp_lg_u32 s17, 3
    s_cbranch_scc1 F1_GO
    s_mov_b32 s26, 0
    F1_CHK:
    global_load_dword v59, v43, s[4:5] sc1
    s_waitcnt vmcnt(0)
    v_sub_u32 v59, v59, v42
    v_cmp_le_u32 vcc, 4, v59
    s_cmp_lg_u64 vcc, 0
    s_cbranch_scc1 F1_GO
    s_add_u32 s26, s26, 1
    s_cmp_ge_u32 s26, {SPIN_MAX >> 2}
    s_cbranch_scc1 F1_GO
    s_sleep {F1_SLEEP}
    s_and_b32 s21, s26, 63
    s_cmp_lg_u32 s21, 0
    s_cbranch_scc1 F1_CHK
    global_load_dword v59, v62, s[28:29] offset:8 sc1
    s_waitcnt vmcnt(0)
    v_cmp_gt_u32 vcc, 4, v59
    s_cmp_lg_u64 vcc, 0
    s_cbranch_scc1 F1_CHK
    F1_GO:
    s_waitcnt lgkmcnt(0)
    s_barrier
    @STAMP 2
    buffer_load_dwordx4 v[16:19], v1, s[8:11], s31 offen {F1_LD}
    s_add_u32 s31, s31, 0x1000
    buffer_load_dwordx4 v[20:23], v1, s[8:11], s31 offen {F1_LD}
    s_add_u32 s31, s31, 0x1000
    buffer_load_dwordx4 v[24:27], v1, s[8:11], s31 offen {F1_LD}
    s_add_u32 s31, s31, 0x1000
    buffer_load_dwordx4 v[28:31], v1, s[8:11], s31 offen {F1_LD}
    buffer_load_dwordx4 v[12:15], v60, s[8:11], s13 offen {F1_LD}
    """)
    if not UEARLY:
        k0 = k; k = Remap2(UnitS(k0), {**{1: 84, 2: 85, 6: 86, 7: 87, 8: 88, 9: 89, 10: 90, 11: 91}, **{i: i + 128 for i in range(16, 32)}, **{i: i + 119 for i in range(41, 48)}})
        for r in list(range(16, 32)) + list(range(41, 48)): k(f"v_mov_b32 v{r}, 0")
        k(f"""
        s_mov_b32 s54, 2
        s_cmp_ge_u32 s2, {N_W + N_D}
        s_cbranch_scc1 U_LDONE
        s_cmp_ge_u32 s2, {N_W}
        s_cbranch_scc1 U_LD
        s_mov_b32 s54, 0
        s_lshr_b32 s12, s2, 4                 ; ft
        s_and_b32 s13, s2, 15                 ; s
        s_mul_i32 s14, s13, {32*F*2}
        s_mul_i32 s15, s12, 192
        s_add_u32 s14, s14, s15
        s_mul_i32 s16, s12, 12
        s_mov_b32 s17, 0x15555556
        v_mov_b32 v11, {F//8}
        """)
        for i in range(2):
            k(f"""
            v_add_u32 v1, {256*i}, v0
            v_mul_hi_u32 v2, v1, s17
            v_mul_u32_u24 v6, 12, v2
            v_sub_u32 v6, v1, v6                  ; chunk
            v_mul_u32_u24 v7, {F*2}, v2
            v_lshl_add_u32 v7, v6, 4, v7
            v_add_u32 v{8+i}, s14, v7
            v_mul_u32_u24 v7, {WPITCH}, v2
            v_lshl_add_u32 v{41+i}, v6, 5, v7
            v_add_u32 v6, s16, v6
            v_cmp_gt_u32 s[{24+2*i}:{25+2*i}], v11, v6
            """)
        k(f"""
        s_mov_b64 exec, s[24:25]
        s_cbranch_execz U_W1
        global_load_dwordx4 v[144:147], v8, s[48:49]
        global_load_dwordx4 v[148:151], v8, s[50:51]
        U_W1:
        s_mov_b64 exec, -1
        s_cmp_ge_u32 s33, 2
        s_cbranch_scc1 U_W2
        s_mov_b64 exec, s[26:27]
        s_cbranch_execz U_W2
        global_load_dwordx4 v[152:155], v9, s[48:49]
        global_load_dwordx4 v[156:159], v9, s[50:51]
        U_W2:
        s_mov_b64 exec, -1
        v_add_u32 v41, {US}, v41
        v_add_u32 v42, {US}, v42
        v_lshrrev_b32 v6, 2, v3
        v_lshl_add_u32 v6, v4, 2, v6
        v_mul_u32_u24 v6, {WPITCH}, v6
        v_and_b32 v7, 3, v3
        v_lshl_add_u32 v6, v7, 3, v6
        s_lshl_b32 s18, s33, 7
        s_mov_b32 s19, 32
        s_cmp_eq_u32 s33, 3
        s_cselect_b32 s18, 96, s18
        s_cselect_b32 s19, 128, s19
        s_add_u32 s18, s18, {US}
        v_add_u32 v43, s18, v6
        v_add_u32 v44, s19, v43
        v_add_u32 v45, s19, v44
        s_lshl_b32 s21, s12, 2
        s_add_u32 s21, s21, s33
        s_lshl_b32 s21, s21, 4
        s_add_u32 s21, s21, s13
        s_mul_i32 s21, s21, 3072
        s_add_u32 s21, s21, {WP}
        v_lshl_add_u32 v46, v5, 4, s21
        s_branch U_LDONE
        U_LD:
        s_mov_b32 s54, 1
        s_sub_u32 s3, s2, {N_W}
        s_lshr_b32 s12, s3, 2                 ; ks
        s_and_b32 s13, s3, 3                  ; dq
        v_lshrrev_b32 v1, 4, v0               ; row 0..15 (+16)
        s_lshl_b32 s14, s12, 15
        s_lshl_b32 s15, s13, 8
        s_add_u32 s14, s14, s15
        v_lshlrev_b32 v6, 10, v1
        v_lshl_add_u32 v6, v3, 4, v6
        v_add_u32 v6, s14, v6
        v_add_u32 v7, 0x4000, v6
        s_cmp_ge_u32 s12, 43
        s_cbranch_scc1 U_D1
        global_load_dwordx4 v[144:147], v6, s[52:53]
        global_load_dwordx4 v[148:151], v7, s[52:53]
        U_D1:
        v_bfe_u32 v8, v1, 1, 2
        v_lshrrev_b32 v9, 3, v1
        v_and_b32 v10, 1, v1
        v_lshl_add_u32 v10, v9, 1, v10
        v_lshl_add_u32 v10, v8, 3, v10        ; rho
        v_mul_u32_u24 v10, {DPITCH}, v10
        v_lshl_add_u32 v10, v3, 4, v10
        v_add_u32 v41, {US}, v10
        v_lshrrev_b32 v6, 2, v3
        v_lshl_add_u32 v6, v4, 3, v6
        v_mul_u32_u24 v6, {DPITCH}, v6
        v_and_b32 v7, 3, v3
        v_lshl_add_u32 v6, v7, 3, v6
        s_lshl_b32 s18, s33, 6
        s_add_u32 s18, s18, {US}
        v_add_u32 v43, s18, v6
        s_lshl_b32 s16, s13, 3
        s_lshl_b32 s17, s33, 1
        s_add_u32 s16, s16, s17
        s_mul_i32 s16, s16, {NKS2*1024}
        s_lshl_b32 s17, s12, 10
        s_add_u32 s16, s16, s17
        s_add_u32 s16, s16, {WD}
        v_lshl_add_u32 v46, v5, 4, s16
        v_add_u32 v47, {NKS2*1024}, v46
        U_LDONE:
        """)
        k = k0
    if UEARLY:
        k(f"""
    s_cmp_eq_u32 s54, 2
    s_cbranch_scc1 U_RDONE
    s_cmp_eq_u32 s54, 1
    s_cbranch_scc1 U_RD
    ds_read_b64_tr_b16 v[64:65], v162
    ds_read_b64_tr_b16 v[66:67], v162 offset:{16*WPITCH}
    ds_read_b64_tr_b16 v[68:69], v163
    ds_read_b64_tr_b16 v[70:71], v163 offset:{16*WPITCH}
    ds_read_b64_tr_b16 v[72:73], v164
    ds_read_b64_tr_b16 v[74:75], v164 offset:{16*WPITCH}
    s_waitcnt lgkmcnt(0)
    global_store_dwordx4 v165, v[64:67], s[4:5] {PREP_W_POL}
    global_store_dwordx4 v165, v[68:71], s[4:5] offset:1024 {PREP_W_POL}
    global_store_dwordx4 v165, v[72:75], s[4:5] offset:2048 {PREP_W_POL}
    s_branch U_RDONE
    U_RD:
    ds_read_b64_tr_b16 v[64:65], v162
    ds_read_b64_tr_b16 v[66:67], v162 offset:{4*DPITCH}
    ds_read_b64_tr_b16 v[68:69], v162 offset:32
    ds_read_b64_tr_b16 v[70:71], v162 offset:{4*DPITCH+32}
    s_waitcnt lgkmcnt(0)
    global_store_dwordx4 v165, v[64:67], s[4:5] {PREP_W_POL}
    global_store_dwordx4 v166, v[68:71], s[4:5] {PREP_W_POL}
    s_branch U_RDONE
    U_RDONE:
    s_waitcnt vmcnt(3)
    s_cmp_eq_u32 s54, 0
    s_cbranch_scc1 F_W3
    s_waitcnt vmcnt(2)
    s_cmp_eq_u32 s54, 1
    s_cbranch_scc1 F_W3
    s_waitcnt vmcnt(0)
    F_W3:
    s_mov_b32 s54, 2
    @STAMP 3
    """)
    else:
        k("""
        s_waitcnt vmcnt(4)
        s_lshr_b32 s21, s17, 1
        s_or_b32 s21, s21, s54
        s_cmp_eq_u32 s21, 0
        s_cbranch_scc1 F_W3
        s_waitcnt vmcnt(2)
        s_cmp_lt_u32 s2, 412
        s_cbranch_scc1 F_W3
        s_waitcnt vmcnt(0)
        F_W3:
        @STAMP 3
        """)
    conv_norm(k)
    k("s_branch CONV_PRE")
    if UEARLY: k("F1_TAIL:\ns_endpgm")
    else:
        k(f"""
        F1_TAIL:
        s_barrier
        s_waitcnt vmcnt(1)
        s_cmp_eq_u32 s54, 2
        s_cbranch_scc1 U_SDONE
        s_cmp_eq_u32 s54, 1
        s_cbranch_scc1 U_SD
        ds_write2_b32 v160, v144, v145 offset0:0 offset1:2
        ds_write2_b32 v160, v146, v147 offset0:4 offset1:6
        ds_write2_b32 v160, v148, v149 offset0:1 offset1:3
        ds_write2_b32 v160, v150, v151 offset0:5 offset1:7
        s_cmp_ge_u32 s17, 2
        s_cbranch_scc1 U_SDONE
        ds_write2_b32 v161, v152, v153 offset0:0 offset1:2
        ds_write2_b32 v161, v154, v155 offset0:4 offset1:6
        ds_write2_b32 v161, v156, v157 offset0:1 offset1:3
        ds_write2_b32 v161, v158, v159 offset0:5 offset1:7
        s_branch U_SDONE
        U_SD:
        ds_write_b128 v160, v[144:147]
        ds_write_b128 v160, v[148:151] offset:{4*DPITCH}
        U_SDONE:
        s_waitcnt lgkmcnt(0)
        s_barrier
        s_cmp_eq_u32 s54, 2
        s_cbranch_scc1 U_RDONE
        s_cmp_eq_u32 s54, 1
        s_cbranch_scc1 U_RD
        ds_read_b64_tr_b16 v[64:65], v162
        ds_read_b64_tr_b16 v[66:67], v162 offset:{16*WPITCH}
        ds_read_b64_tr_b16 v[68:69], v163
        ds_read_b64_tr_b16 v[70:71], v163 offset:{16*WPITCH}
        ds_read_b64_tr_b16 v[72:73], v164
        ds_read_b64_tr_b16 v[74:75], v164 offset:{16*WPITCH}
        s_waitcnt lgkmcnt(0)
        global_store_dwordx4 v165, v[64:67], s[4:5] {PREP_W_POL}
        global_store_dwordx4 v165, v[68:71], s[4:5] offset:1024 {PREP_W_POL}
        global_store_dwordx4 v165, v[72:75], s[4:5] offset:2048 {PREP_W_POL}
        s_branch U_RDONE
        U_RD:
        ds_read_b64_tr_b16 v[64:65], v162
        ds_read_b64_tr_b16 v[66:67], v162 offset:{4*DPITCH}
        ds_read_b64_tr_b16 v[68:69], v162 offset:32
        ds_read_b64_tr_b16 v[70:71], v162 offset:{4*DPITCH+32}
        s_waitcnt lgkmcnt(0)
        global_store_dwordx4 v165, v[64:67], s[4:5] {PREP_W_POL}
        global_store_dwordx4 v166, v[68:71], s[4:5] {PREP_W_POL}
        s_branch U_RDONE
        U_RDONE:
        @FLUSH 13
        s_endpgm
        """)
    info = dict(vgpr=168, sgpr=60, accum=168, grid=N_T + N_K, block=256, lds=CONV_LDS)
    return k, info

def gen_conv():
    k = Kern("conv")
    if FUSE1: k(f"""
    conv2_kernel:
    s_mov_b32 s34, 1
    s_mov_b32 s30, {X2T}
    s_mov_b32 s31, {ST1}
    s_mov_b32 s32, {X3T}
    s_mov_b32 s33, {HB1}
    @KID 4
    """)
    else: k(f"""
    conv1_kernel:
    s_cmp_ge_u32 s2, 512
    s_cbranch_scc1 P_WROLES
    s_mov_b32 s34, {0 if 'W' in WINC else 1}
    s_mov_b32 s30, {XT0}
    s_mov_b32 s31, {ST0}
    s_mov_b32 s32, {X1T}
    s_mov_b32 s33, {HB}
    @KID 1
    """)
    k(f"""
    CONV_BODY:
    s_mov_b32 s54, 2
    s_cmp_ge_u32 s2, 512
    s_cbranch_scc1 CONV_END
    @INIT
    s_load_dwordx2 s[4:5], s[0:1], {KA_WS}
    s_load_dwordx2 s[6:7], s[0:1], {KA_DSKIP}
    """)
    conv_setup(k)
    k(f"""
    s_lshl_b32 s18, s17, 11
    s_add_u32 s18, s18, {CRED}
    """)
    conv_p3(k)
    k("""
    @STAMP 10
    s_waitcnt lgkmcnt(0)
    @STAMP 11
    s_load_dword s20, s[6:7], s16
    """)
    srd(k, 8, 4, WS_BYTES)
    k(f"""
    s_mov_b32 m0, s18
    s_nop 0
    buffer_load_dwordx4 v6, s[8:11], s15 offen lds
    buffer_load_dwordx4 v6, s[8:11], s15 offen offset:1024 lds
    """)
    conv_loads(k)
    npf = 0
    k(f"""
    @STAMP 12
    @STAMP 2
    s_waitcnt vmcnt({5 + npf})
    """)
    for e in range(11):
        k(f"ds_read_u16 v{48+e}, v{48+e}")
    conv_expand(k)
    k(f"""
    s_waitcnt vmcnt({1 + npf})
    @STAMP 3
    """)
    for i in range(4):
        stats_pair(k, 16 + 4*i, 17 + 4*i, 18 + 4*i, 19 + 4*i, 40)
    k(f"s_waitcnt vmcnt({npf})")
    conv_norm(k)
    if CPF:
        if LOCALMAP0:
            k(f"""
            s_lshr_b32 s21, s2, 3
            s_mul_i32 s22, s21, 49152
            s_mul_i32 s23, s17, {PFQ}
            s_add_u32 s22, s22, s23
            s_add_u32 s22, s22, {WP}
            v_min_u32 v38, {PFQ // 128 - 1}, v5
            v_lshlrev_b32 v38, 7, v38
            buffer_load_dword v150, v38, s[8:11], s22 offen
            """)
        else:
            k(f"""
            s_lshr_b32 s21, s2, 3
            s_lshl_b32 s21, s21, 2
            s_add_u32 s21, s21, s17
            s_mul_i32 s22, s21, 6144
            s_and_b32 s23, s2, 1
            s_mul_i32 s23, s23, {8*196608}
            s_add_u32 s22, s22, s23
            s_add_u32 s22, s22, {WP}
            v_lshlrev_b32 v38, 7, v5
            s_cmp_eq_u32 s34, 0
            s_cbranch_scc1 CONV_NOW
            buffer_load_dword v150, v38, s[8:11], s22 offen
            CONV_NOW:
            """)
    if SENT:
        k(f"""
        v_mov_b32 v40, -1
        v_mov_b32 v41, -1
        v_mov_b32 v42, -1
        v_mov_b32 v43, -1
        s_mul_i32 s21, s2, 11520
        s_add_u32 s21, s21, s33
        v_min_u32 v38, {11520 - 8192 - 16}, v1
        buffer_store_dwordx4 v[40:43], v1, s[8:11], s21 offen {POISON_POL}
        s_add_u32 s21, s21, 0x1000
        buffer_store_dwordx4 v[40:43], v1, s[8:11], s21 offen {POISON_POL}
        s_add_u32 s21, s21, 0x1000
        buffer_store_dwordx4 v[40:43], v38, s[8:11], s21 offen {POISON_POL}
        """)
    k.label("CONV_PRE")
    if CODEPF2:
        k(f"""
        s_cmp_ge_u32 s2, 8
        s_cbranch_scc1 CONV_NOPF
        s_getpc_b64 s[22:23]
        CONV_PFPC:
        v_lshlrev_b32 v38, 6, v0
        v_min_u32 v38, TEXT_END-CONV_PFPC-4, v38
        global_load_dword v39, v38, s[22:23]
        CONV_NOPF:
        """)
    k("""
    @STAMP 4
    s_waitcnt lgkmcnt(0)
    s_barrier
    CONV_MAIN2:
    @STAMP 5
    """)
    if CONV_NOPK: k = NoPk(k)
    KF = 48; UB = 16; ACC = 112
    pend = []
    def rd(tag):
        if tag[0] == "U":
            mu = int(tag[1:]); r = UB + 4 * (mu & 3)
            k(f"ds_read_b128 v[{r}:{r+3}], v9 offset:{256*mu}")
        else:
            t = int(tag[1:]); r = KF + 4 * t
            k(f"ds_read_b128 v[{r}:{r+3}], v7 offset:{256*t}")
        pend.append(tag)
    def need(tags):
        idx = max([pend.index(t) for t in tags if t in pend], default=-1)
        if idx >= 0:
            k(f"s_waitcnt lgkmcnt({len(pend) - idx - 1})")
            del pend[:idx + 1]
    queue = ["U0"] + [f"K{t}" for t in range(1, 16, 2)] + ["U1"] + [f"K{t}" for t in range(0, 16, 2)] + ["U2", "U3"]
    for t in queue[:12]: rd(t)
    queue = queue[12:]
    for mu in range(16):
        a = UB + 4 * (mu & 3)
        q0 = max(0, -(-(mu - 1) // 2))
        for q in range(q0, 8):
            tp = 2 * q + 1 - mu
            need([f"U{mu}", f"K{tp}"])
            c = "0" if mu == 0 else f"v[{ACC+4*q}:{ACC+4*q+3}]"
            k(f"v_mfma_f32_16x16x32_bf16 v[{ACC+4*q}:{ACC+4*q+3}], v[{KF+4*tp}:{KF+4*tp+3}], v[{a}:{a+3}], {c}")
            if queue: rd(queue.pop(0))
        if mu + 4 < 16: rd(f"U{mu+4}")
        if mu & 1 and mu >= 3:
            q = (mu - 3) // 2
            k(f"ds_write_b128 v10, v[{ACC+4*q}:{ACC+4*q+3}] offset:{(CRED + (q>>1)*8192 if q < 6 else KL) + (q&1)*1024}")
            pend.append("W")
        if mu == 6:
            assert not any(t[0] == "K" for t in pend + queue)
            k("s_barrier")
    k("@STAMP 6")
    k(f"""
    s_and_b32 s21, s20, 0xffff0000
    s_lshl_b32 s20, s20, 16
    s_bitcmp1_b32 s2, 0
    s_cselect_b32 s20, s21, s20
    """)
    for p in range(4):
        k(f"""
        v_lshlrev_b32 v40, 16, v{32+p}
        v_and_b32 v41, 0xffff0000, v{32+p}
        v_mul_f32 v40, s20, v40
        v_mul_f32 v41, s20, v41
        v_cvt_pk_bf16_f32 v41, v40, v41
        """)
        if p == 0:
            k(f"ds_write_b128 v10, v[{ACC+28}:{ACC+31}] offset:{KL + 1024}")
        k(f"""
        v_lshlrev_b32 v{48+2*p}, 16, v41
        v_and_b32 v{49+2*p}, 0xffff0000, v41
        v_lshlrev_b32 v{56+2*p}, 16, v{12+p}
        v_and_b32 v{57+2*p}, 0xffff0000, v{12+p}
        """)
    k("""
    s_waitcnt lgkmcnt(0)
    s_barrier
    @STAMP 7
    """)
    for src in range(4):
        for t in range(2):
            k(f"ds_read_b128 v[{ACC+8*src+4*t}:{ACC+8*src+4*t+3}], v11 offset:{src*2048 + t*16}")
    k("s_waitcnt lgkmcnt(4)")
    for r in range(0, 8, 2):
        k(f"v_pk_add_f32 v[{ACC+r}:{ACC+r+1}], v[{ACC+r}:{ACC+r+1}], v[{ACC+8+r}:{ACC+9+r}]")
    k("s_waitcnt lgkmcnt(0)")
    for r in range(0, 8, 2):
        k(f"v_pk_add_f32 v[{ACC+16+r}:{ACC+17+r}], v[{ACC+16+r}:{ACC+17+r}], v[{ACC+24+r}:{ACC+25+r}]")
    for r in range(0, 8, 2):
        k(f"v_pk_add_f32 v[{ACC+r}:{ACC+r+1}], v[{ACC+r}:{ACC+r+1}], v[{ACC+16+r}:{ACC+17+r}]")
    k("@STAMP 8")
    for p in range(4):
        y0, y1 = ACC + 2*p, ACC + 2*p + 1
        k(f"""
        v_cvt_pk_bf16_f32 v{y1}, v{y0}, v{y1}
        v_lshlrev_b32 v{y0}, 16, v{y1}
        v_and_b32 v{y1}, 0xffff0000, v{y1}
        v_pk_add_f32 v[{y0}:{y1}], v[{y0}:{y1}], v[{48+2*p}:{49+2*p}]
        v_cvt_pk_bf16_f32 v{y1}, v{y0}, v{y1}
        v_lshlrev_b32 v{y0}, 16, v{y1}
        v_and_b32 v{y1}, 0xffff0000, v{y1}
        v_pk_add_f32 v[{y0}:{y1}], v[{y0}:{y1}], v[{56+2*p}:{57+2*p}]
        v_cvt_pk_bf16_f32 v{44+p}, v{y0}, v{y1}
        """)
    k(f"""
    buffer_store_dwordx4 v[44:47], v2, s[8:11], s14 offen {CONV_ST}
    @STAMP 9
    s_cmp_lg_u32 s54, 2
    s_cbranch_scc1 {'F1_TAIL' if FUSE1 else 'CONV_END'}
    @FLUSH 13
    CONV_END:
    s_endpgm
    """)
    if not FUSE1: k(f"""
    .p2align 8
    conv2_kernel:
    s_mov_b32 s34, 1
    s_mov_b32 s30, {X2T}
    s_mov_b32 s31, {ST1}
    s_mov_b32 s32, {X3T}
    s_mov_b32 s33, {HB1}
    @KID 4
    s_branch CONV_BODY
    """)
    if CONV_NOPK: k = k.k
    info = dict(vgpr=168, sgpr=60, accum=168, grid=512, block=256, lds=CONV_LDS)
    return k, info

MLP_LDS = 163840
H_LD = os.environ.get('H_LD', 'sc1')
M_PRE2 = int(os.environ.get('M_PRE2', '5'))
M_OLD = int(os.environ.get('M_OLD', '1'))
M_FINE = int(os.environ.get('M_FINE', '1'))
M_LOOK = int(os.environ.get('M_LOOK', '5'))
M_TOUCH = int(os.environ.get('M_TOUCH', '0'))
M_PRE = int(os.environ.get('M_PRE', '8'))
M_OPS = int(os.environ.get('M_OPS', '3'))
M_RAMP = int(os.environ.get('M_RAMP', '5'))
M_LATE = int(os.environ.get('M_LATE', '-100'))
LOCALMAP = int(os.environ.get('LOCALMAP', '0'))
LOC_POL = os.environ.get('LOC_POL', 'sc1')
IDT = ZR + 0x4000
M_PRIO = int(os.environ.get('M_PRIO', '0'))
M_FIRST = int(os.environ.get('M_FIRST', '1'))
M_WDT = int(os.environ.get('M_WDT', '-1'))
M_STW = int(os.environ.get('M_STW', '0'))
M_WDM = int(os.environ.get('M_WDM', '6'))
M_WDE = int(os.environ.get('M_WDE', '2'))
M_AHEAD2 = int(os.environ.get('M_AHEAD2', '6'))
SPIN_MAX = 1 << 20
SLOT = 40960
def gen_mlp():
    k = Kern("mlp")
    ACC = 0
    FR = 48
    XA = 104
    WA = 112
    CSR = 114
    STV = 126
    RES = 130
    VDMA, VW, VT0, VT1, VT2 = 134, 135, 136, 137, 138
    SA = 139
    VRES = 142; VSTX = 143; VPUB = 144; VCS = 145
    MR = 146
    TMP = 150
    NV = 168
    VID = TMP + 14
    VRES2 = TMP + 9
    def wdreg(i): return f"a[{4*i}:{4*i+3}]"
    k(f"""
    mlpa_kernel:
    s_mov_b32 s30, {X1T}
    s_mov_b32 s31, {HB}
    s_mov_b32 s33, {STX}
    s_mov_b32 s34, {FLG}
    s_mov_b32 s35, 0
    s_mov_b32 s56, {IDT}
    @KID 2
    M_BODY:
    s_cmp_ge_u32 s2, 256
    s_cbranch_scc1 M_END
    @INIT
    s_load_dwordx2 s[4:5], s[0:1], {KA_WS}
    s_load_dwordx2 s[6:7], s[0:1], {KA_OUT}
    v_readfirstlane_b32 s17, v0
    s_and_b32 s12, s2, 7                  ; xcd
    s_lshr_b32 s13, s2, 3                 ; idx
    """)
    if LOCALMAP:
        k(f"""
        s_lshl_b32 s14, s12, 1
        s_and_b32 s15, s13, 1
        s_add_u32 s14, s14, s15
        s_lshl_b32 s36, s12, 2
        s_and_b32 s15, s13, 3
        s_add_u32 s36, s36, s15
        s_lshr_b32 s37, s13, 2                ; dt
        s_lshr_b32 s15, s13, 1                ; ft
        """)
    else:
        k(f"""
    s_lshr_b32 s14, s12, 1
    s_lshl_b32 s14, s14, 2
    s_and_b32 s15, s13, 3
    s_add_u32 s14, s14, s15               ; lt
    s_lshl_b32 s36, s12, 2
    s_add_u32 s36, s36, s15               ; lt64
    s_lshr_b32 s37, s13, 2                ; dt
    s_and_b32 s15, s12, 1
    s_lshl_b32 s15, s15, 3
    s_add_u32 s15, s15, s37               ; ft
        """)
    k(f"""
    s_lshr_b32 s17, s17, 6                ; w
    s_and_b32 s16, s17, 3
    s_lshr_b32 s29, s17, 2
    v_and_b32 v{VT0}, 63, v0              ; lane
    v_and_b32 v{VT1}, 15, v0              ; lam / j
    v_bfe_u32 v{VT2}, v0, 4, 2            ; g
    v_lshlrev_b32 v{VDMA}, 4, v{VT0}
    v_lshlrev_b32 v{VW}, 4, v{VT0}                    ; lane*16
    s_lshl_b32 s18, s14, 17
    s_add_u32 s18, s18, s30
    s_lshl_b32 s19, s17, 10
    s_add_u32 s18, s18, s19
    s_lshl_b32 s19, s17, 10               ; x m0 part: w*1024
    s_lshl_b32 s20, s15, 2
    s_add_u32 s20, s20, s16
    s_lshl_b32 s21, s20, 4
    s_add_u32 s21, s21, s29
    s_mul_i32 s21, s21, 3072
    s_add_u32 s21, s21, {WP}
    s_mul_i32 s22, s17, 3072
    s_add_u32 s22, s22, 0x4000
    s_mul_i32 s24, s20, {3*16*4}
    s_add_u32 s24, s24, {CSUM}
    s_lshl_b32 s38, s37, 2
    s_add_u32 s38, s38, s16
    s_mul_i32 s38, s38, {NKS2*1024}
    s_mul_i32 s23, s29, {22*1024}
    s_add_u32 s38, s38, s23
    s_add_u32 s38, s38, {WD}
    """)
    def group_parts(t):
        base = (t & 3) * SLOT
        parts = [f"""
        s_add_u32 m0, s19, {base}
        s_nop 0
        buffer_load_dwordx4 v{VDMA}, s[8:11], s18 offen lds
        s_add_u32 s18, s18, 0x2000
        """, f"""
        s_add_u32 m0, s22, {base}
        s_nop 0
        buffer_load_dwordx4 v{VW}, s[8:11], s21 offen lds
        """, f"""
        buffer_load_dwordx4 v{VW}, s[8:11], s21 offen offset:1024 lds
        """, f"""
        buffer_load_dwordx4 v{VW}, s[8:11], s21 offen offset:2048 lds
        s_add_u32 s21, s21, 0x1800
        """, f"""
        s_add_u32 m0, s19, {base + 8192}
        s_nop 0
        buffer_load_dwordx4 v{VDMA}, s[8:11], s18 offen lds
        s_add_u32 s18, s18, 0x2000
        """]
        return parts
    def wd_part(i):
        p = f"buffer_load_dwordx4 {wdreg(i)}, v{VW}, s[8:11], s38 offen offset:{1024*(i&3)}"
        if (i & 3) == 3: p += "\ns_add_u32 s38, s38, 0x1000"
        return p
    def common_addr():
        k(f"""
        s_mov_b32 s43, {fl(1.0/512)}
        s_mov_b32 s44, {fl(1e-5)}
        s_mov_b32 s45, {fl(-LOG2E)}
        v_lshrrev_b32 v{TMP}, 2, v{VT1}
        v_lshl_add_u32 v{TMP}, v{VT2}, 2, v{TMP}          ; 4g + r
        v_and_b32 v{TMP+1}, 7, v{TMP}                     ; xi
        v_and_b32 v{TMP+2}, 3, v{VT1}
        v_lshlrev_b32 v{TMP+2}, 3, v{TMP+2}
        v_lshl_add_u32 v{TMP+2}, v{TMP}, 8, v{TMP+2}
        v_mul_u32_u24 v{VRES}, {XP}, v{VT1}
        v_lshl_add_u32 v{VRES}, v{VT2}, 4, v{VRES}
        s_lshl_b32 s39, s37, 2
        s_add_u32 s39, s39, s16
        s_mul_i32 s39, s39, {16*XP}
        s_lshl_b32 s40, s36, 7
        s_add_u32 s39, s39, s40
        s_lshl_b32 s40, s29, 6
        s_add_u32 s39, s39, s40
        s_lshr_b32 s40, s36, 1
        s_lshl_b32 s40, s40, 17
        s_add_u32 s40, s40, s30
        s_lshl_b32 s26, s37, 2
        s_add_u32 s26, s26, s16
        s_lshl_b32 s26, s26, 12
        s_add_u32 s40, s40, s26
        s_and_b32 s26, s36, 1
        s_lshl_b32 s26, s26, 1
        s_add_u32 s26, s26, s29
        s_lshl_b32 s26, s26, 1
        v_lshrrev_b32 v{TMP+3}, 1, v{VT2}
        v_add_u32 v{TMP+3}, s26, v{TMP+3}
        v_and_b32 v{TMP+4}, 7, v{VT1}
        v_xor_b32 v{TMP+3}, v{TMP+3}, v{TMP+4}
        v_lshlrev_b32 v{TMP+3}, 5, v{TMP+3}
        v_lshl_add_u32 v{TMP+3}, v{VT1}, 8, v{TMP+3}
        v_and_b32 v{TMP+4}, 1, v{VT2}
        v_lshl_add_u32 v{VRES2}, v{TMP+4}, 4, v{TMP+3}
        """)
    res_parts = [f"buffer_load_dwordx4 v[{RES}:{RES+3}], v{VRES2}, s[8:11], s40 offen"]
    common_addr()
    k("s_lshl_b32 s25, s29, 2")
    for b in range(4):
        k(f"""
        s_add_u32 s26, s25, {b}
        v_xor_b32 v{TMP+3}, s26, v{TMP+1}
        v_lshl_add_u32 v{XA+b}, v{TMP+3}, 5, v{TMP+2}
        v_add_u32 v{XA+4+b}, {2*SLOT}, v{XA+b}
        """)
    k(f"""
    s_mul_i32 s26, s16, 3072
    s_add_u32 s26, s26, 0x4000
    v_add_u32 v{WA}, s26, v{VW}
    v_add_u32 v{WA+1}, {2*SLOT}, v{WA}
    """)
    def late_addr():
        k(f"""
        v_bfe_u32 v{TMP}, v{VT1}, 2, 1                    ; half
        v_mul_u32_u24 v{TMP+4}, 3072, v{TMP}
        v_lshrrev_b32 v{TMP}, 3, v{VT1}
        v_lshl_add_u32 v{TMP+4}, v{TMP}, 6, v{TMP+4}
        v_and_b32 v{TMP}, 3, v{VT1}
        v_lshl_add_u32 v{TMP+4}, v{TMP}, 4, v{TMP+4}
        v_lshl_add_u32 v{TMP+4}, v{VT2}, 8, v{TMP+4}
        s_lshl_b32 s26, s16, 10
        s_cmp_eq_u32 s16, 3
        s_cselect_b32 s26, 12, s26
        s_cselect_b32 s27, 0x400, 4
        s_mul_i32 s28, s29, 12288
        s_add_u32 s26, s26, s28
        v_add_u32 v{SA}, s26, v{TMP+4}
        v_add_u32 v{SA+1}, s27, v{SA}
        v_add_u32 v{SA+2}, s27, v{SA+1}
        v_lshlrev_b32 v{VSTX}, 2, v{VT1}
        s_lshl_b32 s41, s14, 9
        s_lshl_b32 s26, s29, 8
        s_add_u32 s41, s41, s26
        s_add_u32 s41, s41, s33
        s_and_b32 s27, s17, 1
        s_and_b32 s28, s17, 2
        s_lshl_b32 s28, s28, 1
        s_or_b32 s27, s27, s28
        s_lshl_b32 s28, s29, 1
        s_or_b32 s27, s27, s28
        s_mul_i32 s26, s27, 3072
        v_add_u32 v{VPUB}, s26, v{VW}
        s_lshl_b32 s42, s14, 3
        s_add_u32 s42, s42, s27
        s_mul_i32 s42, s42, {HKS*1024}
        s_mul_i32 s26, s15, 3072
        s_add_u32 s42, s42, s26
        s_add_u32 s42, s42, s31
        v_lshlrev_b32 v{VCS}, 4, v{VT2}
        """)
    late_addr()
    k(f"""
    v_lshrrev_b32 v{TMP+6}, 3, v{VT0}
    v_mul_u32_u24 v{TMP+6}, {XP}, v{TMP+6}
    v_and_b32 v{TMP+7}, 7, v{VT0}
    v_lshl_add_u32 v{TMP+6}, v{TMP+7}, 5, v{TMP+6}
    s_lshl_b32 s46, s37, 3
    s_add_u32 s46, s46, s17
    s_mul_i32 s46, s46, {8*XP}
    s_lshl_b32 s47, s14, 8
    s_add_u32 s46, s46, s47
    s_add_u32 s46, s46, s30
    """)
    if LOCALMAP:
        k(f"""
        s_getreg_b32 s23, hwreg(HW_REG_XCC_ID)
        s_and_b32 s23, s23, 15
        s_add_u32 s23, s23, 1
        s_lshl_b32 s26, s12, 7
        s_add_u32 s56, s56, s26
        s_lshl_b32 s26, s13, 2
        v_mov_b32 v{VID}, s23
        v_mov_b32 v{VID+1}, s26
        v_and_b32 v{VID+2}, 31, v{VT0}
        v_lshlrev_b32 v{VID+2}, 2, v{VID+2}
        """)
    k("s_waitcnt lgkmcnt(0)")
    srd(k, 8, 4, WS_BYTES)
    if M_TOUCH & 1: k(f"buffer_load_dword v{TMP+8}, v{TMP+6}, s[8:11], s46 offen")
    def id_store(tag):
        if LOCALMAP:
            k(f"""
            s_mov_b64 exec, 1
            buffer_store_dword v{VID}, v{VID+1}, s[8:11], s56 offen sc1
            s_mov_b64 exec, -1
            """)
    if M_PRIO:
        k(f"""
        s_cmp_lg_u32 s29, {M_PRIO - 1}
        s_cbranch_scc1 M_NOPRIO
        s_setprio 1
        M_NOPRIO:
        """)
    k("""
    s_cmp_eq_u32 s15, 15
    s_cbranch_scc1 M_STATS
    """)
    def reads(s):
        res = []
        t = s >> 1; hi = (t & 3) >> 1; base = (t & 1) * SLOT
        buf = FR + 28 * (s & 1)
        for tau in range(3):
            r = buf + 16 + 4 * tau
            res.append(f"ds_read_b128 v[{r}:{r+3}], v{WA+hi} offset:{base + (s&1)*12288 + tau*1024}")
        for b in range(4):
            off = base + (s & 1) * 8192
            res.append(f"ds_read_b64_tr_b16 v[{buf+4*b}:{buf+4*b+1}], v{XA+4*hi+b} offset:{off}")
            res.append(f"ds_read_b64_tr_b16 v[{buf+4*b+2}:{buf+4*b+3}], v{XA+4*hi+b} offset:{off+4096}")
        return res
    later = [f"buffer_load_dwordx4 v[{CSR+4*tau}:{CSR+4*tau+3}], v{VCS}, s[8:11], s24 offen offset:{64*tau}" for tau in range(3)]
    later += res_parts
    later += [f"buffer_load_dword v{STV+b}, v{VSTX}, s[8:11], s41 offen offset:{64*b} sc1" for b in range(4)]
    if LOCALMAP: later += [f"buffer_load_dword v{VID+3}, v{VID+2}, s[8:11], s56 offen sc1"]
    n_crit = len(later)
    later += [wd_part(i) for i in range(M_WDM)]
    n_need = len(later)
    later += [wd_part(i) for i in range(M_WDM, 22)]
    vm = []
    def wait_for(tag):
        assert not any(o[1] == tag for o in opq), tag
        idxs = [i for i, x in enumerate(vm) if x == tag]
        if not idxs: return
        idx = max(idxs)
        k(f"s_waitcnt vmcnt({len(vm) - idx - 1})")
        del vm[:idx + 1]
    opq = []
    for u in range(8):
        gp = group_parts(u)
        e0 = max(2*u - 7, 2*u - M_LOOK)
        if M_OLD: e0 = {0: -1, 1: -1, 2: 0, 3: 1}.get(u, 2*u - 6)
        for j in (0, 1, 2): opq.append((gp[j], f"D{2*u}", e0))
        opq.append((gp[3], f"D{2*u}", e0 + 1 if u > (3 if M_OLD else 1) else e0))
        opq.append((gp[4], f"D{2*u+1}", e0 + 1 if u > (3 if M_OLD else 1) else e0))
    for i, p in enumerate(later[:n_need]): opq.append((p, "N" if i < n_crit else "L", -100 if i < n_crit else M_LATE))
    nlater = n_need
    def issue(n, s):
        out = []
        while opq and len(out) < n and opq[0][2] <= s:
            out.append(opq.pop(0))
        return out
    for p, tag, _ in issue(10 if M_OLD else M_PRE, -1):
        k(p); vm.append(tag)
    k("@STAMP 2")
    wait_for("D1" if (M_OLD and not M_FIRST) else "D0")
    k("s_barrier")
    k("@STAMP 3")
    for r in reads(0): k(r)
    EXP = os.environ.get('EXP', '')
    for s in range(16):
        if M_OLD:
            bar = False
            if s == 0 and M_FIRST: wait_for("D1"); bar = True
            if s == 1: wait_for("D3"); bar = True
            elif (s & 1) == 0 and 0 < s < 14: wait_for(f"D{s+3}"); bar = True
            if bar: k("s_barrier")
            k("s_waitcnt lgkmcnt(0)")
        elif M_FINE:
            if s < 15: wait_for(f"D{s+1}")
            k("s_waitcnt lgkmcnt(0)")
            if s < 15: k("s_barrier")
        else:
            if s == 0: wait_for("D1")
            elif s < 15 and (s & 1): wait_for(f"D{s+2}")
            k("s_waitcnt lgkmcnt(0)")
            if s < 15 and (s == 0 or (s & 1)): k("s_barrier")
        if s == 8: k("@STAMP 4")
        if s == M_WDT:
            k(f"""
            s_lshl_b32 s46, s13, 3
            s_add_u32 s46, s46, s17
            s_mul_i32 s46, s46, 6528
            s_add_u32 s46, s46, {WD}
            v_min_u32 v{TMP+6}, 50, v{VT0}
            v_lshlrev_b32 v{TMP+6}, 7, v{TMP+6}
            buffer_load_dword v{TMP+8}, v{TMP+6}, s[8:11], s46 offen
            """)
            vm.append("T")
        if s == 3 and LOCALMAP:
            id_store("m"); vm.append("I")
        fill = reads(s + 1) if s < 15 else []
        mf = []
        buf = FR + 28 * (s & 1)
        for b in range(4):
            for tau in range(3):
                a = ACC + (b * 3 + tau) * 4
                c = "0" if s == 0 else f"v[{a}:{a+3}]"
                mf.append(f"v_mfma_f32_16x16x32_bf16 v[{a}:{a+3}], v[{buf+16+4*tau}:{buf+19+4*tau}], v[{buf+4*b}:{buf+4*b+3}], {c}")
        parts = issue((5 if (s < 2 or s >= 12) else 3) if M_OLD else (M_OPS if s < M_RAMP else (5 if s >= 12 else 3)), s)
        step = 12 // max(len(parts), 1)
        slots = {1 + step * j: p for j, p in enumerate(parts)}
        for i, m in enumerate(mf):
            k(m)
            if i < len(fill): k(fill[i])
            if i in slots:
                k(slots[i][0]); vm.append(slots[i][1])
    assert not opq, len(opq)
    assert nlater >= n_need
    k("@STAMP 5")
    wait_for("N")
    k(f"""
    s_mov_b32 s47, 0
    M_STCHK:
    v_min3_u32 v{TMP}, v{STV}, v{STV+1}, v{STV+2}
    v_min_u32 v{TMP}, v{TMP}, v{STV+3}
    v_cmp_eq_u32 vcc, 0, v{TMP}
    s_cmp_eq_u64 vcc, 0
    s_cbranch_scc1 M_STOK
    s_add_u32 s47, s47, 1
    s_cmp_ge_u32 s47, {SPIN_MAX}
    s_cbranch_scc1 M_STOK
    s_sleep 2
    """)
    for b in range(4): k(f"buffer_load_dword v{STV+b}, v{VSTX}, s[8:11], s41 offen offset:{64*b} sc1")
    k("""
    s_waitcnt vmcnt(0)
    s_branch M_STCHK
    M_STOK:
    @STAMP 6
    """)
    if LOCALMAP:
        k(f"""
        v_cmp_ne_u32 vcc, s23, v{VID+3}
        s_cmp_eq_u64 vcc, 0
        s_cselect_b32 s54, 1, 0
        """)
    PB = FR
    def pub():
        for i in range(3):
            k(f"ds_read_b128 v[{PB+4*i}:{PB+4*i+3}], v{VPUB} offset:{1024*i}")
        if LOCALMAP:
            pub.n += 1
            k(f"""
            s_cmp_eq_u32 s54, 0
            s_cbranch_scc1 M_PG{pub.n}
            """)
            for i in range(3):
                k(f"s_waitcnt lgkmcnt({2-i})")
                k(f"buffer_store_dwordx4 v[{PB+4*i}:{PB+4*i+3}], v{VW}, s[8:11], s42 offen offset:{1024*i} {LOC_POL}")
            k(f"s_branch M_PE{pub.n}\nM_PG{pub.n}:")
        for i in range(3):
            k(f"s_waitcnt lgkmcnt({2-i})")
            k(f"buffer_store_dwordx4 v[{PB+4*i}:{PB+4*i+3}], v{VW}, s[8:11], s42 offen offset:{1024*i} sc1")
        if LOCALMAP: k(f"M_PE{pub.n}:")
    pub.n = 0
    for b in range(4):
        m = MR
        k(f"""
        v_and_b32 v{m+2}, 0xffff0000, v{STV+b}        ; s
        v_lshlrev_b32 v{m}, 16, v{STV+b}              ; m
        v_rcp_f32 v{m+1}, v{m+2}
        v_mul_f32 v{m+1}, s45, v{m+1}
        """)
        for tau in range(3):
            a = ACC + (b * 3 + tau) * 4
            c = CSR + 4 * tau
            k(f"""
            v_pk_fma_f32 v[{a}:{a+1}], v[{m}:{m+1}], v[{c}:{c+1}], v[{a}:{a+1}] op_sel_hi:[0,1,1] neg_lo:[1,0,0] neg_hi:[1,0,0]
            v_pk_fma_f32 v[{a+2}:{a+3}], v[{m}:{m+1}], v[{c+2}:{c+3}], v[{a+2}:{a+3}] op_sel_hi:[0,1,1] neg_lo:[1,0,0] neg_hi:[1,0,0]
            v_pk_mul_f32 v[{a}:{a+1}], v[{a}:{a+1}], v[{m}:{m+1}] op_sel:[0,1] op_sel_hi:[1,1]
            v_exp_f32 v{a}, v{a}
            v_exp_f32 v{a+1}, v{a+1}
            """)
            if tau < M_WDE and nlater < len(later):
                k(later[nlater]); nlater += 1
        for tau in range(3):
            a = ACC + (b * 3 + tau) * 4
            k(f"""
            v_pk_fma_f32 v[{a}:{a+1}], v[{a}:{a+1}], v[{m+2}:{m+3}], v[{m+2}:{m+3}] op_sel_hi:[1,0,0]
            v_rcp_f32 v{a}, v{a}
            v_rcp_f32 v{a+1}, v{a+1}
            """)
        for _ in range(M_WDE - 3):
            if nlater < len(later):
                k(later[nlater]); nlater += 1
        for tau in range(3):
            a = ACC + (b * 3 + tau) * 4
            k(f"""
            v_pk_mul_f32 v[{a}:{a+1}], v[{a}:{a+1}], v[{a+2}:{a+3}]
            v_cvt_pk_bf16_f32 v{a}, v{a}, v{a+1}
            ds_write_b32 v{SA+tau}, v{a} offset:{(b>>1)*6144 + (b&1)*128}
            """)
        if b == 1 and SPLITPUB:
            k("""
            s_waitcnt lgkmcnt(0)
            s_barrier
            s_cmp_lg_u32 s29, 0
            s_cbranch_scc1 M_PUB1
            """)
            pub()
            k.label("M_PUB1")
    k("""
    s_waitcnt lgkmcnt(0)
    s_barrier
    @STAMP 7
    """)
    if SPLITPUB:
        k("""
        s_cmp_eq_u32 s29, 0
        s_cbranch_scc1 M_PUB2
        """)
    pub()
    k.label("M_PUB2")
    rest = later[nlater:]
    if not SENT:
        k(f"""
        s_lshl_b32 s26, s14, 4
        s_add_u32 s26, s26, s15
        s_lshl_b32 s26, s26, 7
        s_add_u32 s26, s26, s34
        v_mov_b32 v{TMP}, 1
        v_mov_b32 v{TMP+1}, 0
        s_waitcnt vmcnt(0)
        s_barrier
        s_cmp_lg_u32 s17, 0
        s_cbranch_scc1 M_NOFLAG
        s_mov_b64 exec, 1
        s_cmp_eq_u32 s54, {1 if LOCALMAP else 77}
        s_cbranch_scc1 M_FLOC
        buffer_store_dword v{TMP}, v{TMP+1}, s[8:11], s26 offen sc1
        s_branch M_FEND
        M_FLOC:
        buffer_store_dword v{TMP}, v{TMP+1}, s[8:11], s26 offen
        M_FEND:
        s_mov_b64 exec, -1
        M_NOFLAG:
        """)
    for p in rest: k(p)
    HA = XA
    k(f"""
    M_SYNC:
    @CODEPF3
    s_mov_b32 s55, 0
    M_SYNC2:
    @STAMP 8
    v_mov_b32 v{TMP+10}, 0
    s_lshl_b32 s26, s36, 2
    s_add_u32 s26, s26, s16
    s_mul_i32 s26, s26, {HKS*1024}
    s_mul_i32 s27, s29, {22*1024}
    s_add_u32 s26, s26, s27
    s_add_u32 s26, s26, s31
    s_lshl_b32 s27, s17, 11               ; m0 part
    s_mul_i32 s28, s29, 0x3000
    v_add_u32 v{HA}, s28, v{VW}
    s_lshl_b32 s28, s29, 12
    s_add_u32 s28, s28, 0x1000
    v_add_u32 v{HA+1}, s28, v{VW}
    v_add_u32 v{HA+2}, 0x10000, v{HA}
    v_add_u32 v{HA+3}, 0x10000, v{HA+1}
    v_add_u32 v{HA+4}, 0x20000, v{HA}
    v_add_u32 v{HA+5}, 0x20000, v{HA+1}
    s_cmp_lg_u32 s17, 1
    s_cbranch_scc1 M_WAITB
    """)
    if SENT:
        k(f"""
        s_mul_i32 s28, s36, {4*HKS*1024}
        s_add_u32 s28, s28, s31
        v_min_u32 v{TMP+4}, 14, v{VT1}
        v_mul_u32_u24 v{TMP+4}, 3072, v{TMP+4}
        v_mul_u32_u24 v{TMP+5}, {HKS*1024}, v{VT2}
        v_add_u32 v{TMP+4}, v{TMP+4}, v{TMP+5}
        s_mov_b32 s47, 0
        M_POLL:
        buffer_load_dword v{TMP+5}, v{TMP+4}, s[8:11], s28 offen offset:3056 sc1
        s_waitcnt vmcnt(0)
        v_cmp_eq_u32 vcc, -1, v{TMP+5}
        s_cmp_eq_u64 vcc, 0
        s_cbranch_scc1 M_WAITB
        s_sleep {SENT_SLEEP}
        s_add_u32 s47, s47, 1
        s_cmp_lt_u32 s47, {SPIN_MAX}
        s_cbranch_scc1 M_POLL
        """)
    else:
        k(f"""
        s_lshr_b32 s28, s36, 1
        s_lshl_b32 s28, s28, 11
        s_add_u32 s28, s28, s34
        v_min_u32 v{TMP+4}, 14, v{VT0}
        v_lshlrev_b32 v{TMP+4}, 7, v{TMP+4}
        s_mov_b32 s47, 0
        M_POLL:
        buffer_load_dword v{TMP+5}, v{TMP+4}, s[8:11], s28 offen sc1
        s_waitcnt vmcnt(0)
        v_cmp_eq_u32 vcc, 0, v{TMP+5}
        s_cmp_eq_u64 vcc, 0
        s_cbranch_scc1 M_WAITB
        s_add_u32 s47, s47, 1
        s_cmp_lt_u32 s47, {SPIN_MAX}
        s_cbranch_scc1 M_POLL
        """)
    k(f"""
    M_WAITB:
    s_lshl_b32 s46, s37, 3
    s_add_u32 s46, s46, s17
    s_mul_i32 s46, s46, 2880
    s_mul_i32 s47, s36, {4*HKS*1024}
    s_add_u32 s46, s46, s47
    s_add_u32 s46, s46, s31
    v_min_u32 v{TMP+6}, 44, v{VT0}
    v_lshlrev_b32 v{TMP+6}, 6, v{TMP+6}
    s_barrier
    @STAMP 9
    """)
    if M_TOUCH & 2: k(f"buffer_load_dword v{TMP+8}, v{TMP+6}, s[8:11], s46 offen")
    def hchunk(c):
        return [f"""
        s_add_u32 m0, s27, {(c % 10) * 16384}
        s_nop 0
        buffer_load_dwordx4 v{VW}, s[8:11], s26 offen {H_LD} lds
        """, f"""
        buffer_load_dwordx4 v{VW}, s[8:11], s26 offen offset:1024 {H_LD} lds
        s_add_u32 s26, s26, 0x800
        """]
    HF = 16
    A2 = 0
    def hreads(c):
        res = []
        for i in range(2):
            for lb in range(4):
                off = (c % 10) * 16384 + (lb & 1) * 2048 + i * 1024
                base = HA + 2 * (off >> 16) + (lb >> 1)
                r = HF + 32 * (c & 1) + (i * 4 + lb) * 4
                res.append(f"ds_read_b128 v[{r}:{r+3}], v{base} offset:{off & 0xffff}")
        return res
    iss = M_PRE2
    for c in range(iss):
        for p in hchunk(c): k(p)
    k(f"s_waitcnt vmcnt({2*(iss-1)})")
    k("s_barrier")
    k("@STAMP 10")
    for r in hreads(0): k(r)
    for c in range(11):
        fill = []
        if c < 10:
            k(f"s_waitcnt vmcnt({2*(iss-(c+2))})")
            k("s_barrier")
        k("s_waitcnt lgkmcnt(0)")
        if c < 10: fill = hreads(c + 1)
        parts = []
        for rep_ in range(2):
            if iss < 11 and (iss < 10 or c >= 1) and iss < c + M_AHEAD2:
                parts += hchunk(iss); iss += 1
        slots = {1 + 2 * j: p for j, p in enumerate(parts)}
        n = 0
        for i in range(2):
            for lb in range(4):
                r = HF + 32 * (c & 1) + (i * 4 + lb) * 4
                a = A2 + 4 * lb
                cc = "0" if (c == 0 and i == 0) else f"v[{a}:{a+3}]"
                k(f"v_mfma_f32_16x16x32_bf16 v[{a}:{a+3}], v[{r}:{r+3}], {wdreg(2*c+i)}, {cc}")
                if SENT and (n & 1) == 0: k(f"v_max3_u32 v{TMP+10}, v{r}, v{r+4}, v{TMP+10}")
                if n < len(fill): k(fill[n])
                if n in slots: k(slots[n])
                n += 1
    k("@STAMP 11")
    XB = 65536
    k(f"""
    s_lshl_b32 s26, s17, 11
    s_add_u32 s26, s26, {XB}
    v_add_u32 v{TMP}, s26, v{VW}
    s_xor_b32 s26, s26, 0x2000
    v_add_u32 v{TMP+1}, s26, v{VW}
    """)
    for j in range(4):
        k(f"v_lshlrev_b32 v{32+2*j}, 16, v{RES+j}")
        k(f"v_and_b32 v{33+2*j}, 0xffff0000, v{RES+j}")
    k(f"""
    ds_write_b128 v{TMP}, v[8:11]
    ds_write_b128 v{TMP}, v[12:15] offset:1024
    """)
    if SENT:
        k(f"""
        v_cmp_eq_u32 vcc, -1, v{TMP+10}
        s_cmp_lg_u64 vcc, 0
        s_cselect_b32 s26, 1, 0
        s_lshl_b32 s27, s17, 2
        s_add_u32 s27, s27, {XB + 16384}
        v_mov_b32 v{TMP+11}, s26
        v_mov_b32 v{TMP+12}, s27
        v_and_b32 v{TMP+13}, 7, v{VT0}
        v_lshlrev_b32 v{TMP+13}, 2, v{TMP+13}
        v_add_u32 v{TMP+13}, {XB + 16384}, v{TMP+13}
        ds_write_b32 v{TMP+12}, v{TMP+11}
        """)
    k(f"""
    s_waitcnt lgkmcnt(0)
    s_barrier
    ds_read_b128 v[8:11], v{TMP+1}
    ds_read_b128 v[12:15], v{TMP+1} offset:1024
    """)
    if SENT:
        k(f"""
        ds_read_b32 v{TMP+11}, v{TMP+13}
        s_waitcnt lgkmcnt(0)
        v_cmp_ne_u32 vcc, 0, v{TMP+11}
        s_cmp_eq_u64 vcc, 0
        s_cbranch_scc1 M_OK
        s_add_u32 s55, s55, 1
        s_cmp_lt_u32 s55, 64
        s_cbranch_scc1 M_SYNC2
        M_OK:
        """)
    k("s_waitcnt lgkmcnt(0)")
    OUT = 16
    for j in range(4):
        y0, y1 = A2 + 2*j, A2 + 2*j + 1
        k(f"""
        v_pk_add_f32 v[{y0}:{y1}], v[{y0}:{y1}], v[{y0+8}:{y1+8}]
        v_cvt_pk_bf16_f32 v{y1}, v{y0}, v{y1}
        v_lshlrev_b32 v{y0}, 16, v{y1}
        v_and_b32 v{y1}, 0xffff0000, v{y1}
        v_pk_add_f32 v[{y0}:{y1}], v[{y0}:{y1}], v[{32+2*j}:{33+2*j}]
        v_cvt_pk_bf16_f32 v{OUT+j}, v{y0}, v{y1}
        """)
    k(f"""
    s_cmp_lg_u32 s35, 0
    s_cbranch_scc1 M_FINAL
    s_add_u32 s40, s39, {X2T}
    buffer_store_dwordx4 v[{OUT}:{OUT+3}], v{VRES}, s[8:11], s40 offen {X2_ST}
    """)
    Q = 48
    for j in range(4):
        k(f"""
        v_lshlrev_b32 v{Q+4*j}, 16, v{OUT+j}
        v_and_b32 v{Q+4*j+2}, 0xffff0000, v{OUT+j}
        v_mul_f32 v{Q+4*j+1}, v{Q+4*j}, v{Q+4*j}
        v_mul_f32 v{Q+4*j+3}, v{Q+4*j+2}, v{Q+4*j+2}
        """)
    for q in range(8):
        k(f"v_add_f32_dpp v{Q+q}, v{Q+q}, v{Q+q} row_ror:8 row_mask:0xf bank_mask:0x3")
        k(f"v_add_f32_dpp v{Q+q}, v{Q+q+8}, v{Q+q+8} row_ror:8 row_mask:0xf bank_mask:0xc")
    for q in range(4):
        k(f"v_add_f32_dpp v{Q+q}, v{Q+q}, v{Q+q} row_shl:4 row_mask:0xf bank_mask:0x5")
        k(f"v_add_f32_dpp v{Q+q}, v{Q+q+4}, v{Q+q+4} row_shr:4 row_mask:0xf bank_mask:0xa")
    for q in range(4):
        k(f"v_add_f32_dpp v{Q+q}, v{Q+q}, v{Q+q} quad_perm:[1,0,3,2] row_mask:0xf bank_mask:0xf")
    for q in range(4):
        k(f"v_add_f32_dpp v{Q+q}, v{Q+q}, v{Q+q} quad_perm:[2,3,0,1] row_mask:0xf bank_mask:0xf")
    SB = 98304
    k(f"""
    v_and_b32 v{TMP}, 3, v{VT1}
    v_cmp_eq_u32 s[48:49], 1, v{TMP}
    v_cmp_eq_u32 s[50:51], 2, v{TMP}
    v_cmp_eq_u32 s[52:53], 3, v{TMP}
    v_lshrrev_b32 v{TMP+1}, 2, v{VT1}
    v_lshlrev_b32 v{TMP+1}, 7, v{TMP+1}
    v_lshl_add_u32 v{TMP+1}, v{VT2}, 4, v{TMP+1}
    v_lshl_add_u32 v{TMP+1}, v{TMP}, 2, v{TMP+1}
    s_lshl_b32 s26, s16, 9
    s_lshl_b32 s27, s29, 6
    s_add_u32 s26, s26, s27
    s_add_u32 s26, s26, {SB}
    v_add_u32 v{TMP+1}, s26, v{TMP+1}
    v_cndmask_b32 v{Q}, v{Q}, v{Q+1}, s[48:49]
    v_cndmask_b32 v{Q}, v{Q}, v{Q+2}, s[50:51]
    v_cndmask_b32 v{Q}, v{Q}, v{Q+3}, s[52:53]
    ds_write_b32 v{TMP+1}, v{Q}
    s_lshl_b32 s26, s17, 8
    s_add_u32 s26, s26, {SB}
    v_lshl_add_u32 v{TMP+2}, v{VT0}, 2, s26
    v_lshrrev_b32 v{TMP+3}, 5, v{VT0}
    v_lshlrev_b32 v{TMP+3}, 12, v{TMP+3}
    v_and_b32 v{TMP+4}, 31, v{VT0}
    v_lshl_add_u32 v{TMP+3}, v{TMP+4}, 2, v{TMP+3}
    s_lshl_b32 s26, s36, 7
    s_lshl_b32 s27, s17, 13
    s_add_u32 s26, s26, s27
    s_add_u32 s26, s26, {ST1}
    s_waitcnt lgkmcnt(0)
    s_barrier
    s_cmp_ge_u32 s17, 2
    s_cbranch_scc1 M_NOAT
    ds_read_b32 v{Q}, v{TMP+2}
    ds_read_b32 v{Q+1}, v{TMP+2} offset:512
    ds_read_b32 v{Q+2}, v{TMP+2} offset:1024
    ds_read_b32 v{Q+3}, v{TMP+2} offset:1536
    s_waitcnt lgkmcnt(0)
    v_add_f32 v{Q}, v{Q}, v{Q+1}
    v_add_f32 v{Q+2}, v{Q+2}, v{Q+3}
    v_add_f32 v{Q}, v{Q}, v{Q+2}
    buffer_atomic_add_f32 v{Q}, v{TMP+3}, s[8:11], s26 offen
    M_NOAT:
    @STAMP 12
    @FLUSH 13
    """)
    if MERGE:
        k(f"""
        s_mov_b32 s62, s2
        s_mov_b32 s63, s17
        s_load_dwordx2 s[6:7], s[0:1], {KA_DSKIP}
        """)
        grid_arrive(k, 0, "a", "s63", "s62", 144)
        k(f"""
        s_lshl_b32 s26, s16, 6
        v_add_u32 v0, s26, v{VT0}
        s_lshl_b32 s2, s62, 1
        s_add_u32 s2, s2, s29                 ; channel
        s_mul_i32 s55, s29, {CONV_LDS}
        s_mov_b32 s30, {X2T}
        s_mov_b32 s31, {ST1}
        s_mov_b32 s32, {X3T}
        s_mov_b32 s54, {3 if MERGE > 1 else 2}
        @KID 4
        @INIT
        """)
        conv_setup(k)
        k(f"""
        s_lshl_b32 s18, s17, 11
        s_add_u32 s18, s18, {CRED}
        s_add_u32 s18, s18, s55
        s_mov_b32 m0, s18
        s_waitcnt lgkmcnt(0)
        s_load_dword s20, s[6:7], s16
        buffer_load_dwordx4 v6, s[8:11], s15 offen lds
        buffer_load_dwordx4 v6, s[8:11], s15 offen offset:1024 lds
        """)
        conv_p3(k, lb="s55")
        k("@STAMP 10\ns_waitcnt vmcnt(0)")
        for e in range(11):
            k(f"ds_read_u16 v{48+e}, v{48+e}")
        conv_expand(k, "v42")
        k("@STAMP 11")
        grid_wait(k, 0, "a", "s63", "s62", 144)
        k("@STAMP 12\n@STAMP 2")
        conv_loads(k, "sc1")
        k("s_waitcnt vmcnt(1)\n@STAMP 3")
        for i in range(4):
            stats_pair(k, 16 + 4*i, 17 + 4*i, 18 + 4*i, 19 + 4*i, 40)
        k("s_waitcnt vmcnt(0)")
        conv_norm(k, "v42")
        k(f"""
        s_lshr_b32 s21, s62, 3
        s_lshl_b32 s21, s21, 3
        s_add_u32 s21, s21, s63
        s_mul_i32 s22, s21, 6144
        s_and_b32 s23, s62, 1
        s_mul_i32 s23, s23, {8*196608}
        s_add_u32 s22, s22, s23
        s_add_u32 s22, s22, {WP}
        v_lshlrev_b32 v38, 7, v5
        buffer_load_dword v150, v38, s[8:11], s22 offen
        s_branch CONV_NOPF
        """)
    else:
        k("s_endpgm")
    k("""
    M_FINAL:
    """)
    TP = 144; TB2 = 98304
    srd(k, 48, 6, L * D * 2)
    k(f"""
    s_lshl_b32 s26, s16, 4
    v_add_u32 v{TMP}, s26, v{VT1}
    v_mul_u32_u24 v{TMP}, {TP}, v{TMP}
    v_lshl_add_u32 v{TMP}, v{VT2}, 4, v{TMP}
    s_lshl_b32 s26, s29, 6
    s_add_u32 s26, s26, {TB2}
    v_add_u32 v{TMP}, s26, v{TMP}
    ds_write_b128 v{TMP}, v[{OUT}:{OUT+3}]
    v_lshrrev_b32 v{TMP+1}, 2, v{VT1}
    v_lshl_add_u32 v{TMP+1}, v{VT2}, 3, v{TMP+1}
    v_mul_u32_u24 v{TMP+1}, {TP}, v{TMP+1}
    v_and_b32 v{TMP+2}, 3, v{VT1}
    v_lshl_add_u32 v{TMP+1}, v{TMP+2}, 3, v{TMP+1}
    s_lshl_b32 s26, s16, 5
    s_mul_i32 s27, s29, {32*TP}
    s_add_u32 s26, s26, s27
    s_add_u32 s26, s26, {TB2}
    v_add_u32 v{TMP+1}, s26, v{TMP+1}
    v_lshlrev_b32 v{TMP+2}, 10, v{VT1}
    v_lshl_add_u32 v{TMP+2}, v{VT2}, 4, v{TMP+2}
    s_lshl_b32 s26, s36, 2
    s_add_u32 s26, s26, s16
    s_lshl_b32 s26, s26, 14
    s_lshl_b32 s27, s37, 7
    s_add_u32 s26, s26, s27
    s_lshl_b32 s27, s29, 6
    s_add_u32 s26, s26, s27
    s_waitcnt lgkmcnt(0)
    s_barrier
    ds_read_b64_tr_b16 v[32:33], v{TMP+1}
    ds_read_b64_tr_b16 v[34:35], v{TMP+1} offset:{4*TP}
    s_waitcnt lgkmcnt(0)
    buffer_store_dwordx4 v[32:35], v{TMP+2}, s[48:51], s26 offen {OUT_ST}
    @STAMP 12
    @FLUSH 13 last
    M_END:
    s_endpgm
    """)
    k(f"""
    M_STATS:
    s_mov_b32 s47, 0
    M_SL1:
    s_mov_b32 m0, s19
    s_add_u32 s19, s19, 0x2000
    buffer_load_dwordx4 v{VDMA}, s[8:11], s18 offen lds
    s_add_u32 s18, s18, 0x2000
    s_mov_b32 m0, s19
    s_add_u32 s19, s19, 0x2000
    buffer_load_dwordx4 v{VDMA}, s[8:11], s18 offen lds
    s_add_u32 s18, s18, 0x2000
    s_add_u32 s47, s47, 1
    s_cmp_lt_u32 s47, 8
    s_cbranch_scc1 M_SL1
    """)
    id_store("s")
    SACC = 0; ONES = 16
    k(f"""
    v_xor_b32 v{TMP+3}, s17, v{TMP+1}
    v_lshl_add_u32 v{XA}, v{TMP+3}, 5, v{TMP+2}
    """)
    for r in range(8): k(f"v_mov_b32 v{SACC+r}, 0")
    for r in range(4): k(f"v_mov_b32 v{ONES+r}, 0x3f803f80")
    k(f"""
    s_mov_b32 s47, 0
    s_waitcnt vmcnt(0)
    s_barrier
    M_SL2:
    """)
    for u in range(8):
        r = FR + 4 * u
        if u == 7: k("s_waitcnt lgkmcnt(12)")
        k(f"ds_read_b64_tr_b16 v[{r}:{r+1}], v{XA} offset:{u*8192}")
        k(f"ds_read_b64_tr_b16 v[{r+2}:{r+3}], v{XA} offset:{u*8192+4096}")
    k(f"v_add_u32 v{XA}, 0x10000, v{XA}")
    for u in range(8):
        r = FR + 4 * u
        k(f"s_waitcnt lgkmcnt({14 - 2*u})")
        k(f"v_mfma_f32_16x16x32_bf16 v[{SACC}:{SACC+3}], v[{r}:{r+3}], v[{r}:{r+3}], v[{SACC}:{SACC+3}]")
        k(f"v_mfma_f32_16x16x32_bf16 v[{SACC+4}:{SACC+7}], v[{ONES}:{ONES+3}], v[{r}:{r+3}], v[{SACC+4}:{SACC+7}]")
    k(f"""
    s_add_u32 s47, s47, 1
    s_cmp_lt_u32 s47, 2
    s_cbranch_scc1 M_SL2
    v_and_b32 v{TMP}, 3, v{VT1}
    v_cmp_eq_u32 s[48:49], 1, v{TMP}
    v_cmp_eq_u32 s[50:51], 2, v{TMP}
    v_cmp_eq_u32 s[52:53], 3, v{TMP}
    v_lshrrev_b32 v{TMP}, 2, v{VT1}
    v_cmp_eq_u32 s[54:55], v{TMP}, v{VT2}
    v_cndmask_b32 v{SACC}, v{SACC}, v{SACC+1}, s[48:49]
    v_cndmask_b32 v{SACC}, v{SACC}, v{SACC+2}, s[50:51]
    v_cndmask_b32 v{SACC+5}, v{SACC}, v{SACC+3}, s[52:53]
    v_mov_b32 v{SACC+12}, v{SACC+4}
    v_mov_b32 v{SACC+13}, v{SACC+5}
    """)
    stats_pair(k, SACC+4, SACC+5, SACC+12, SACC+13, TMP, keep=(SACC+6, SACC+14))
    k(f"""
    v_lshrrev_b32 v{SACC+4}, 16, v{SACC+4}
    v_or_b32 v{SACC+4}, v{SACC+4}, v{SACC+6}
    v_lshlrev_b32 v{VSTX}, 2, v{VT1}
    s_lshl_b32 s41, s14, 9
    s_lshl_b32 s26, s17, 6
    s_add_u32 s41, s41, s26
    s_add_u32 s41, s41, s33
    s_mov_b64 exec, s[54:55]
    buffer_store_dword v{SACC+4}, v{VSTX}, s[8:11], s41 offen sc1
    s_mov_b64 exec, -1
    """)
    if M_STW:
        k(f"""
        s_lshl_b32 s46, s14, 3
        s_add_u32 s46, s46, s17
        s_mul_i32 s46, s46, 11264
        s_add_u32 s46, s46, {WD}
        v_lshlrev_b32 v{TMP+6}, 7, v{VT0}
        buffer_load_dword v{TMP+8}, v{TMP+6}, s[8:11], s46 offen
        s_add_u32 s46, s46, 0x2000
        v_min_u32 v{TMP+6}, {23*128}, v{TMP+6}
        buffer_load_dword v{TMP+8}, v{TMP+6}, s[8:11], s46 offen
        """)
    for p in res_parts: k(p)
    for i in range(22): k(wd_part(i))
    k(f"""
    s_barrier
    s_branch M_SYNC
    .p2align 8
    mlpb_kernel:
    s_mov_b32 s30, {X3T}
    s_mov_b32 s31, {HB1}
    s_mov_b32 s33, {STX + 0x2000}
    s_mov_b32 s34, {FLG + 0x8000}
    s_mov_b32 s35, 1
    s_mov_b32 s56, {IDT + 0x400}
    @KID 5
    s_branch M_BODY
    TEXT_END:
    """)
    info = dict(vgpr=NV + 88, sgpr=66, accum=NV, grid=256, block=512, lds=MLP_LDS)
    return k, info

DIAG_KN = {2: ("mlpa", 13), 5: ("mlpb", 13), 3: ("wroles", 2), 6: ("none", 1)}
def emit(path, launches=None):
    kp, ip = gen_prep()
    kc, ic = gen_conv()
    km, im = gen_mlp()
    ic1 = dict(ic); ic1["grid"] = B_E
    infos = {"prep_kernel": ip, "conv1_kernel": ic1, "conv2_kernel": ic, "mlpa_kernel": im, "mlpb_kernel": im}
    kf, if1 = gen_f1()
    if FUSE1:
        infos = {"f1_kernel": if1, "conv2_kernel": ic, "mlpa_kernel": im, "mlpb_kernel": im}
        launches = launches or (["f1_kernel", "mlpa_kernel", "mlpb_kernel"] if MERGE == 1 else ["f1_kernel", "mlpa_kernel"] if MERGE == 2 else ["f1_kernel", "mlpa_kernel", "conv2_kernel", "mlpb_kernel"])
    if os.environ.get("ORDER"): launches = [x + "_kernel" for x in os.environ["ORDER"].split(",")]
    order = launches or ["prep_kernel", "conv1_kernel", "mlpa_kernel", "conv2_kernel", "mlpb_kernel"]
    hdr = open("cdna_kernels/" + NAME + ".s.ref").read().split("; Override launch")[0]
    out = [hdr.rstrip("\n")]
    for n in order:
        i = infos[n]
        out.append(f"; @launch kernel={n} grid=({i['grid']},1,1) block=({i['block']},1,1) lds={i['lds']}")
    out.append('.amdgcn_target "amdgcn-amd-amdhsa--gfx950"\n.text')
    for n in infos:
        out.append(f".globl {n}\n.type {n},@function")
    if FUSE1: out.append(".p2align 8\n" + kf.text())
    out.append(("" if FUSE1 else ".p2align 8\nprep_kernel:\n") + kp.text().replace("P_NOPF", "Q_NOPF"))
    for kk in (kc, km):
        out.append(".p2align 8\n" + kk.text())
    for n, i in infos.items():
        out.append(descriptor(n, i["vgpr"], 102 if DIAG else i["sgpr"], i["accum"]))
    txt = "\n".join(out)
    AL = os.environ.get('ALIGN8', '0')
    if AL == '1':
        txt = re.sub(r"\n(\s+v_mfma_f32_16x16x32_bf16)", r"\n    .p2align 3\n\1", txt)
    elif AL == '2':
        txt = re.sub(r"\n(\s+(v_mfma_f32_16x16x32_bf16|ds_read_b|buffer_load_dwordx4|v_pk_|v_cvt_pk))", r"\n    .p2align 3\n\1", txt)
    open(path, "w").write(txt)

if __name__ == "__main__":
    emit(sys.argv[1] if len(sys.argv) > 1 else "cdna_kernels/" + NAME + ".s")
```
